```python
import torch

def _softmax(x, axis=-1):
    return torch.softmax(x, dim=axis)
def _gelu(x):
    return torch.nn.functional.gelu(x, approximate="tanh")
def _silu(x):
    return torch.nn.functional.silu(x)
def _sigmoid(x):
    return torch.sigmoid(x)
def _layernorm(x, axis=-1, eps=1e-5):
    m = x.mean(dim=axis, keepdim=True)
    v = x.var(dim=axis, keepdim=True, unbiased=False)
    return (x - m) / torch.sqrt(v + eps)
def _scatter_add(tgt, idx, src, axis=0):
    return tgt.clone().index_add_(axis, idx, src)
def _segment_sum(src, seg, n):
    out = torch.zeros((n,) + src.shape[1:], dtype=src.dtype)
    return out.index_add_(0, seg, src)
def _pad(x, pw):
    flat = tuple(v for pair in reversed(pw) for v in pair)
    return torch.nn.functional.pad(x, flat)

kernel_name = 'standalone__weight_only_int_quip__prompt'

def setup_inputs():

    _w = (lambda a: (lambda t: t.to(torch.bfloat16) if t.is_floating_point() else t)(torch.as_tensor(a)))
    B, S, D, F = 1, 2048, 640, 1536
    G = 32 if 32 > 0 else D
    D = (D // G) * G
    ng = D // G
    bits = 3 if 3 > 0 else 4
    qmax = 1 << bits
    qw = torch.randint(0, qmax, (D, F)).to(torch.int32)
    U, _ = (lambda *_a, **_k: torch.linalg.qr(*[torch.as_tensor(_x).float() for _x in _a], **_k))((lambda *s: torch.randn(*s, dtype=torch.bfloat16) * 0.05)(D, D))
    V, _ = (lambda *_a, **_k: torch.linalg.qr(*[torch.as_tensor(_x).float() for _x in _a], **_k))((lambda *s: torch.randn(*s, dtype=torch.bfloat16) * 0.05)(F, F))
    return {
        "x": _w((lambda *s: torch.randn(*s, dtype=torch.bfloat16) * 0.05)(B, S, D)),
        "qw": _w(qw),
        "scales": _w(torch.abs((lambda *s: torch.randn(*s, dtype=torch.bfloat16) * 0.05)(ng, F)) * 0.02 + 0.005),
        "zeros": _w(torch.full((ng, F), qmax / 2.0, dtype=float)),
        "U": _w(U.to(float)),
        "V": _w(V.to(float)),
    }

def reference(x, qw, scales, zeros, U, V):
    B, S, D = x.shape
    ng, F = scales.shape
    G = D // ng
    s = (lambda x, n, axis: torch.repeat_interleave(x, n, dim=axis))(scales, G, axis=0)
    z = (lambda x, n, axis: torch.repeat_interleave(x, n, dim=axis))(zeros, G, axis=0)
    wq = ((lambda x, dt: x.to(dt))(qw, x.dtype) - z) * s
    xr = torch.einsum("bsd,de->bse", x, U)
    h  = torch.einsum("bse,ef->bsf", xr, wq)
    y  = torch.einsum("bsf,fg->bsg", h, V)
    return y
```

```python
import sys

HEADER = """; Kernarg layout for this problem (72 bytes, ptrs only, base s[0:1]):
"""

XRF = 0
W2F = 64 * 40 * 1024
WS_USED = W2F + 16 * 40 * 3 * 1024

X_BYTES = 2048 * 640 * 2
QW_BYTES = 640 * 1536 * 4
SC_BYTES = 20 * 1536 * 2
U_BYTES = 640 * 640 * 2
V_BYTES = 1536 * 1536 * 2
OUT_BYTES = 2048 * 1536 * 2

VRING = 0
VSTAGE = 32768
ABASE = 3 * VSTAGE
ASTAGE = 12288
STBL = ABASE + 2 * ASTAGE
ZTBL = STBL + 6144
LDS1 = ZTBL + 6144
XSTAGE = 32768
LDS2 = 120 * 1024


class Asm:
    def __init__(self):
        self.lines = []

    def __call__(self, s):
        for l in s.strip("\n").split("\n"):
            self.lines.append("    " + l.strip() if not l.strip().endswith(":") else l.strip())

    def label(self, s):
        self.lines.append(s + ":")

    def comment(self, s):
        self.lines.append("    ; " + s)

    def text(self):
        return "\n".join(self.lines) + "\n"


def vr(a, n):
    return f"v[{a}:{a+n-1}]"


def ar(a, n):
    return f"a[{a}:{a+n-1}]"


def gen_p1(A, opt):
    dbg = opt.get("dbg", False)
    A.label("quip_p1_kernel")
    A("""
    s_load_dwordx2 s[8:9], s[0:1], 8
    s_load_dwordx2 s[12:13], s[0:1], 40
    s_load_dwordx2 s[16:17], s[0:1], 16
    s_load_dwordx2 s[20:21], s[0:1], 24
    s_load_dwordx2 s[28:29], s[0:1], 0
    s_load_dwordx2 s[32:33], s[0:1], 32
    s_load_dwordx2 s[24:25], s[0:1], 64
    s_cmp_ge_u32 s2, 248
    s_cbranch_scc1 P1_EXIT
    v_and_b32 v1, 63, v0
    v_lshrrev_b32 v2, 6, v0
    s_getpc_b64 s[4:5]
    """)
    A.label("P1_PC")
    A("""
    v_readfirstlane_b32 s36, v2
    v_lshlrev_b32 v3, 7, v1
    v_min_u32 v3, CODE_END-P1_PC-4, v3
    s_lshr_b32 s3, s2, 3
    s_and_b32 s37, s2, 7
    s_cmp_lg_u32 s36, 7
    s_cbranch_scc1 P1_NOPF
    global_load_dword v112, v3, s[4:5]
    """)
    A.label("P1_NOPF")
    A(f"""
    s_mov_b32 s11, 0x00020000
    s_mov_b32 s15, 0x00020000
    s_mov_b32 s27, 0x00020000
    s_mov_b32 s26, {WS_USED}
    v_lshlrev_b32 v5, 4, v1
    s_cmp_ge_u32 s3, 21
    s_cbranch_scc1 P1_XR
    """)
    gen_w2(A, opt)
    A.label("P1_XR")
    gen_xr(A, opt)
    A.label("P1_EXIT")
    A("s_endpgm")


def gen_w2(A, opt):
    sW, sLOC, sXCD = "s36", "s3", "s37"
    sT, sWt = "s38", "s39"
    sMI, sNI = "s40", "s41"
    sVOFS, sVEND, sVST = "s42", "s43", "s44"
    sQOFS, sQEND = "s45", "s46"
    sSOFS = "s47"
    sCST = "s48"
    sC = "s49"
    sPAR = "s50"
    sMASK = "s51"
    sT0, sT1, sT2 = "s52", "s53", "s54"
    sVSTEND = "s55"
    vVO = 6
    vQO = 10
    vAW = 12
    vAR = 14
    vBR = 18
    vSC = 20
    vT0, vT1 = 21, 22
    vQ = 24
    vACC = 48
    vF = 72
    A(f"""
    s_mul_i32 s4, {sLOC}, 171
    s_lshr_b32 s4, s4, 9
    s_mul_i32 s5, s4, 3
    s_sub_u32 s5, {sLOC}, s5
    s_lshr_b32 s6, {sXCD}, 2
    s_mul_i32 s6, s6, 7
    s_add_u32 {sMI}, s6, s4
    s_and_b32 s6, {sXCD}, 3
    s_mul_i32 s6, s6, 3
    s_add_u32 {sNI}, s6, s5
    s_lshl_b32 s6, s5, 1
    s_add_u32 s6, s6, s4
    s_cmp_ge_u32 s6, 6
    s_cselect_b32 s7, 6, 0
    s_sub_u32 s6, s6, s7
    s_cmp_ge_u32 s6, 6
    s_cselect_b32 s7, 6, 0
    s_sub_u32 s6, s6, s7
    s_lshr_b32 {sT}, {sW}, 2
    s_and_b32 {sWt}, {sW}, 3
    """)
    A(f"""
    s_mul_i32 s4, {sMI}, 3
    s_lshr_b32 s4, s4, 1
    s_mul_i32 s4, s4, 3072
    s_sub_u32 s5, {sW}, 6
    s_cmp_lt_u32 {sW}, 6
    s_cselect_b32 s5, {sW}, s5
    s_lshl_b32 s5, s5, 10
    s_add_u32 s4, s4, s5
    s_add_u32 m0, s5, {STBL}
    s_mov_b32 s18, {SC_BYTES}
    s_mov_b32 s19, 0x00020000
    s_mov_b32 s22, {SC_BYTES}
    s_mov_b32 s23, 0x00020000
    s_mov_b32 s10, {QW_BYTES}
    s_mov_b32 s14, {V_BYTES}
    """)
    A(f"""
    v_lshrrev_b32 v2, 4, v1
    v_and_b32 v3, 15, v1
    v_lshlrev_b32 v4, 1, v2
    v_xor_b32 v3, v3, v4
    v_lshlrev_b32 v3, 4, v3
    v_mul_u32_u24 v4, 0xc00, v2
    v_add_u32 v{vVO}, v3, v4
    v_add_u32 v{vVO+1}, 11264, v{vVO}
    v_xor_b32 v3, 0x80, v{vVO}
    v_add_u32 v{vVO+2}, {2*11264}, v3
    v_add_u32 v{vVO+3}, {3*11264}, v3
    """)
    A(f"""
    v_lshrrev_b32 v2, 5, v1
    v_and_b32 v3, 31, v1
    v_lshlrev_b32 v4, 4, v3
    v_mul_u32_u24 v{vQO}, 0x1800, v2
    v_add_u32 v{vQO}, v{vQO}, v4
    v_add_u32 v{vQO+1}, 12288, v{vQO}
    """)
    A(f"""
    s_lshl_b32 s7, {sNI}, 8
    s_mul_i32 s5, {sW}, {16*3072}
    s_add_u32 s7, s7, s5
    s_add_u32 {sVEND}, s7, {12*393216}
    s_mul_i32 s5, s6, {2*393216}
    s_add_u32 {sVOFS}, s7, s5
    s_mul_i32 s7, {sMI}, {48*6144}
    s_mul_i32 s5, {sWt}, {4*6144}
    s_add_u32 s7, s7, s5
    s_add_u32 {sQEND}, s7, 6144
    s_lshl_b32 s5, s6, 1
    s_add_u32 s5, s5, {sT}
    s_lshl_b32 {sSOFS}, s5, 8
    s_lshl_b32 s5, s5, 9
    s_add_u32 {sQOFS}, s7, s5
    s_lshl_b32 {sVST}, {sW}, 12
    s_add_u32 {sVSTEND}, {sVST}, {3*VSTAGE}
    s_add_u32 {sT1}, {sQOFS}, 98304
    s_add_u32 {sT2}, {sQOFS}, {2*98304}
    s_waitcnt lgkmcnt(0)
    buffer_load_dwordx4 v5, s[16:19], s4 offen lds
    s_add_u32 m0, m0, 6144
    s_cmp_eq_u32 {sT}, 0
    buffer_load_dwordx4 v5, s[20:23], s4 offen lds
    s_mov_b32 m0, {sVST}
    s_cbranch_scc1 W2_PRO1
    """)

    def v_issue():
        for j in range(4):
            A(f"buffer_load_dwordx4 v{vVO+j}, s[12:15], {sVOFS} offen offset:{1024*j} lds")

    def v_advance():
        A(f"""
        s_add_u32 {sVOFS}, {sVOFS}, 393216
        s_cmp_ge_u32 {sVOFS}, {sVEND}
        s_cselect_b32 s4, {12*393216}, 0
        s_sub_u32 {sVOFS}, {sVOFS}, s4
        s_add_u32 {sVST}, {sVST}, {VSTAGE}
        s_cmp_ge_u32 {sVST}, {sVSTEND}
        s_cselect_b32 s4, {3*VSTAGE}, 0
        s_sub_u32 {sVST}, {sVST}, s4
        """)

    def q_issue():
        for b, so in enumerate((sQOFS, sT1, sT2)):
            for i2 in range(2):
                A(f"buffer_load_dwordx4 {vr(vQ+(2*b+i2)*4,4)}, v{vQO+i2}, s[8:11], {so} offen")

    v_issue()
    A.label("W2_PRO1")
    q_issue()
    A(f"""
    s_cmp_lg_u32 {sT}, 0
    s_cbranch_scc1 W2_PRO2
    """)
    v_issue()
    A.label("W2_PRO2")
    v_advance()
    A(f"s_mov_b32 m0, {sVST}")
    A("s_nop 0")
    v_issue()
    v_advance()
    A(f"""
    s_mul_i32 s4, {sT}, {ASTAGE}
    s_add_u32 s4, s4, {ABASE}
    s_lshl_b32 s5, {sWt}, 2
    v_lshrrev_b32 v2, 5, v1
    v_add_u32 v2, s5, v2
    v_bfe_u32 v3, v1, 1, 4
    v_xor_b32 v4, v3, v2
    v_lshlrev_b32 v4, 4, v4
    v_lshl_add_u32 v4, v2, 8, v4
    v_and_b32 v{vT0}, 1, v1
    v_lshl_add_u32 v4, v{vT0}, 3, v4
    v_add_u32 v{vAW}, s4, v4
    v_xor_b32 v4, 32, v4
    v_add_u32 v4, 512, v4
    v_add_u32 v{vAW+1}, s4, v4
    """)
    A(f"""
    v_and_b32 v2, 15, v1
    v_lshrrev_b32 v3, 4, v1
    v_xor_b32 v4, v2, v3
    v_lshlrev_b32 v4, 4, v4
    v_lshl_add_u32 v4, v2, 8, v4
    v_add_u32 v{vAR}, s4, v4
    v_xor_b32 v{vAR+1}, 64, v{vAR}
    v_xor_b32 v{vAR+2}, 128, v{vAR}
    v_xor_b32 v{vAR+3}, 192, v{vAR}
    """)
    A(f"""
    v_bfe_u32 v2, v1, 2, 2
    v_and_b32 v4, 1, v3
    v_lshl_or_b32 v4, v4, 2, v2
    s_lshl_b32 s5, {sWt}, 1
    v_xor_b32 v4, s5, v4
    v_lshlrev_b32 v4, 5, v4
    v_lshl_add_u32 v2, v3, 3, v2
    v_lshl_add_u32 v4, v2, 8, v4
    v_and_b32 v2, 3, v1
    v_lshl_add_u32 v{vBR}, v2, 3, v4
    v_xor_b32 v{vBR+1}, 32, v{vBR}
    v_and_b32 v2, 31, v1
    v_lshlrev_b32 v2, 3, v2
    v_add_u32 v{vSC}, {STBL}, v2
    s_and_b32 s5, {sMI}, 1
    s_mul_i32 {sPAR}, s5, 3072
    s_mov_b32 {sMASK}, 0xffff0000
    s_mul_i32 {sCST}, {sT}, {VSTAGE}
    s_mov_b32 {sC}, 0
    """)
    for i in range(24):
        A(f"v_mov_b32 v{vACC+i}, 0")
    A("""
    s_waitcnt vmcnt(14)
    s_barrier
    """)
    A.label("W2_LOOP")
    A(f"""
    s_and_b32 s4, {sC}, 1
    s_cmp_lg_u32 s4, {sT}
    s_cbranch_scc1 W2_COMPUTE
    s_cmp_eq_u32 {sC}, 12
    s_cbranch_scc1 W2_NEXT
    """)
    P = vF
    U_ = vF + 12
    Ft = vF + 20
    O = vF + 28
    A(f"""
    v_add_u32 v{vT0}, {sSOFS}, v{vSC}
    s_add_u32 s4, {sSOFS}, {sPAR}
    v_add_u32 v{vT1}, s4, v{vSC}
    ds_read_b64 {vr(P,2)}, v{vT0}
    ds_read_b64 {vr(P+2,2)}, v{vT0} offset:6144
    ds_read_b64 {vr(P+4,2)}, v{vT1}
    ds_read_b64 {vr(P+6,2)}, v{vT1} offset:6144
    ds_read_b64 {vr(P+8,2)}, v{vT0} offset:3072
    ds_read_b64 {vr(P+10,2)}, v{vT0} offset:9216
    s_add_u32 {sSOFS}, {sSOFS}, 512
    s_cmp_ge_u32 {sSOFS}, 3072
    s_cselect_b32 s4, 3072, 0
    s_sub_u32 {sSOFS}, {sSOFS}, s4
    s_add_u32 {sQOFS}, {sQOFS}, 1024
    s_cmp_ge_u32 {sQOFS}, {sQEND}
    s_cselect_b32 s4, 6144, 0
    s_sub_u32 {sQOFS}, {sQOFS}, s4
    s_add_u32 {sT1}, {sQOFS}, 98304
    s_add_u32 {sT2}, {sQOFS}, {2*98304}
    s_cmp_ge_u32 {sC}, 10
    s_cselect_b32 s10, 0, {QW_BYTES}
    s_waitcnt vmcnt(8)
    """)
    for b in range(3):
        A("s_waitcnt lgkmcnt(4)")
        ps, pz = P + 4 * b, P + 4 * b + 2
        A(f"""
        v_lshlrev_b32 v{U_}, 16, v{ps}
        v_and_b32 v{U_+1}, {sMASK}, v{ps}
        v_lshlrev_b32 v{U_+2}, 16, v{ps+1}
        v_and_b32 v{U_+3}, {sMASK}, v{ps+1}
        v_lshlrev_b32 v{U_+4}, 16, v{pz}
        v_and_b32 v{U_+5}, {sMASK}, v{pz}
        v_lshlrev_b32 v{U_+6}, 16, v{pz+1}
        v_and_b32 v{U_+7}, {sMASK}, v{pz+1}
        v_pk_mul_f32 {vr(U_+4,2)}, {vr(U_+4,2)}, {vr(U_,2)} neg_lo:[1,0] neg_hi:[1,0]
        v_pk_mul_f32 {vr(U_+6,2)}, {vr(U_+6,2)}, {vr(U_+2,2)} neg_lo:[1,0] neg_hi:[1,0]
        """)
        for i2 in range(2):
            q = vQ + (2 * b + i2) * 4
            f = Ft + 4 * i2
            o = O + 2 * i2
            A(f"""
            v_cvt_f32_i32 v{f}, v{q}
            v_cvt_f32_i32 v{f+1}, v{q+1}
            v_cvt_f32_i32 v{f+2}, v{q+2}
            v_cvt_f32_i32 v{f+3}, v{q+3}
            v_pk_fma_f32 {vr(f,2)}, {vr(f,2)}, {vr(U_,2)}, {vr(U_+4,2)}
            v_pk_fma_f32 {vr(f+2,2)}, {vr(f+2,2)}, {vr(U_+2,2)}, {vr(U_+6,2)}
            v_cvt_pk_bf16_f32 v{o}, v{f}, v{f+1}
            v_cvt_pk_bf16_f32 v{o+1}, v{f+2}, v{f+3}
            ds_write_b64 v{vAW+i2}, {vr(o,2)} offset:{4096*b}
            """)
    q_issue()
    A("s_branch W2_NEXT")
    A.label("W2_COMPUTE")
    A(f"""
    s_cmp_eq_u32 {sC}, 0
    s_cbranch_scc1 W2_NEXT
    v_add_u32 v{vT0}, {sCST}, v{vBR}
    v_add_u32 v{vT1}, {sCST}, v{vBR+1}
    """)

    def reads(s, buf):
        fa = vF + buf * 20
        fb = fa + 12
        for b in range(3):
            A(f"ds_read_b128 {vr(fa+4*b,4)}, v{vAR+s} offset:{4096*b}")
        for t in range(2):
            for u in range(2):
                A(f"ds_read_b64_tr_b16 {vr(fb+4*t+2*u,2)}, v{vT0+t} offset:{(32*s+4*u)*256}")

    def mfmas(buf):
        fa = vF + buf * 20
        fb = fa + 12
        for b in range(3):
            for t in range(2):
                acc = vACC + (b * 2 + t) * 4
                A(f"v_mfma_f32_16x16x32_bf16 {vr(acc,4)}, {vr(fa+4*b,4)}, {vr(fb+4*t,4)}, {vr(acc,4)}")

    reads(0, 0)
    reads(1, 1)
    A(f"""
    s_add_u32 {sCST}, {sCST}, {2*VSTAGE}
    s_cmp_ge_u32 {sCST}, {3*VSTAGE}
    s_cselect_b32 s4, {3*VSTAGE}, 0
    s_sub_u32 {sCST}, {sCST}, s4
    s_waitcnt lgkmcnt(7)
    """)
    mfmas(0)
    reads(2, 0)
    A("s_waitcnt lgkmcnt(7)")
    mfmas(1)
    reads(3, 1)
    A("s_waitcnt lgkmcnt(7)")
    mfmas(0)
    A("s_waitcnt lgkmcnt(0)")
    mfmas(1)
    A.label("W2_NEXT")
    A(f"""
    s_cmp_ge_u32 {sC}, 10
    s_cselect_b32 s14, 0, {V_BYTES}
    s_mov_b32 m0, {sVST}
    s_waitcnt vmcnt(10) lgkmcnt(0)
    s_barrier
    """)
    v_issue()
    v_advance()
    A(f"""
    s_add_u32 {sC}, {sC}, 1
    s_cmp_le_u32 {sC}, 12
    s_cbranch_scc1 W2_LOOP
    """)
    A(f"""
    s_waitcnt vmcnt(0)
    s_barrier
    s_mul_i32 s4, {sWt}, 6144
    v_add_u32 v2, s4, v5
    s_cmp_eq_u32 {sT}, 0
    s_cbranch_scc1 W2_EPI0
    """)
    for i in range(6):
        A(f"ds_write_b128 v2, {vr(vACC+4*i,4)} offset:{1024*i}")
    A("""
    s_waitcnt lgkmcnt(0)
    s_barrier
    s_endpgm
    """)
    A.label("W2_EPI0")
    A(f"""
    s_lshl_b32 s4, {sNI}, 2
    s_add_u32 s4, s4, {sWt}
    s_mul_i32 s5, s4, 171
    s_lshr_b32 s5, s5, 9
    s_mul_i32 s6, s5, 3
    s_sub_u32 s6, s4, s6
    s_mul_i32 s5, s5, 40
    s_mul_i32 s7, {sMI}, 3
    s_add_u32 s5, s5, s7
    s_mul_i32 s5, s5, 3
    s_add_u32 s5, s5, s6
    s_lshl_b32 s5, s5, 10
    s_add_u32 s5, s5, {W2F}
    s_add_u32 s6, s5, 3072
    s_add_u32 s7, s5, 6144
    v_bfe_u32 v3, v1, 4, 1
    v_lshrrev_b32 v4, 5, v1
    v_and_b32 v{vT0}, 15, v1
    v_lshl_add_u32 v{vT0}, v3, 5, v{vT0}
    v_lshl_add_u32 v{vT0}, v4, 4, v{vT0}
    v_lshlrev_b32 v{vT0}, 4, v{vT0}
    s_barrier
    """)
    for i in range(6):
        A(f"ds_read_b128 {vr(vF+4*i,4)}, v2 offset:{1024*i}")
    for b in range(3):
        A(f"s_waitcnt lgkmcnt({4-2*b})")
        for t in range(2):
            a = vACC + (2 * b + t) * 4
            r = vF + (2 * b + t) * 4
            A(f"""
            v_pk_add_f32 {vr(a,2)}, {vr(a,2)}, {vr(r,2)}
            v_pk_add_f32 {vr(a+2,2)}, {vr(a+2,2)}, {vr(r+2,2)}
            """)
        a = vACC + 8 * b
        o = vQ + 4 * b
        A(f"""
        v_cvt_pk_bf16_f32 v{o}, v{a}, v{a+1}
        v_cvt_pk_bf16_f32 v{o+1}, v{a+2}, v{a+3}
        v_cvt_pk_bf16_f32 v{o+2}, v{a+4}, v{a+5}
        v_cvt_pk_bf16_f32 v{o+3}, v{a+6}, v{a+7}
        s_nop 1
        v_permlane32_swap_b32 v{o}, v{o+2}
        v_permlane32_swap_b32 v{o+1}, v{o+3}
        buffer_store_dwordx4 {vr(o,4)}, v{vT0}, s[24:27], s{5+b} offen
        """)
        if b == 0:
            A(f"""
            s_cmp_eq_u32 {sMI}, 13
            s_cbranch_scc1 P1_EXIT
            """)
    A("s_endpgm")


def gen_xr(A, opt):
    sW, sLOC, sXCD = "s36", "s3", "s37"
    sMT, sNT = "s40", "s41"
    sXOFS, sXEND = "s42", "s43"
    sUOFS = "s44"
    sST, sSTEND = "s45", "s46"
    sCST = "s47"
    sC = "s48"
    vXO = 6
    vUO = 8
    vXR = 10
    vUR = 14
    vT = 16
    vACC = 24
    vF = 56
    A(f"""
    s_sub_u32 s4, {sLOC}, 21
    s_cmp_ge_u32 s4, 5
    s_cselect_b32 s5, 1, 0
    s_cselect_b32 s6, 5, 0
    s_sub_u32 {sNT}, s4, s6
    s_lshl_b32 s7, {sXCD}, 1
    s_add_u32 {sMT}, s7, s5
    s_lshl_b32 s7, {sNT}, 1
    s_add_u32 s6, s6, s7
    s_cmp_ge_u32 s6, 10
    s_cselect_b32 s7, 10, 0
    s_sub_u32 s6, s6, s7
    s_mov_b32 s30, {X_BYTES}
    s_mov_b32 s31, 0x00020000
    s_mov_b32 s34, {U_BYTES}
    s_mov_b32 s35, 0x00020000
    """)
    A(f"""
    v_lshrrev_b32 v2, 3, v1
    v_lshrrev_b32 v3, 4, v1
    v_and_b32 v4, 7, v1
    v_xor_b32 v4, v4, v3
    v_lshlrev_b32 v4, 4, v4
    v_mul_u32_u24 v{vXO}, 0x500, v2
    v_add_u32 v{vXO}, v{vXO}, v4
    v_xor_b32 v4, 64, v{vXO}
    v_add_u32 v{vXO+1}, 9216, v4
    v_and_b32 v4, 15, v1
    v_lshlrev_b32 v2, 2, v3
    v_xor_b32 v4, v4, v2
    v_lshlrev_b32 v4, 4, v4
    v_mul_u32_u24 v{vUO}, 0x500, v3
    v_add_u32 v{vUO}, v{vUO}, v4
    v_add_u32 v{vUO+1}, {4*1280-1024}, v{vUO}
    s_lshl_b32 s4, {sMT}, 7
    s_lshl_b32 s5, {sW}, 4
    s_add_u32 s4, s4, s5
    s_mul_i32 s4, s4, 1280
    s_add_u32 {sXEND}, s4, 1280
    s_lshl_b32 s5, s6, 7
    s_add_u32 {sXOFS}, s4, s5
    s_lshl_b32 s4, s6, 6
    s_lshl_b32 s5, {sW}, 3
    s_add_u32 s4, s4, s5
    s_mul_i32 s4, s4, 1280
    s_lshl_b32 s5, {sNT}, 8
    s_add_u32 {sUOFS}, s4, s5
    s_lshl_b32 {sST}, {sW}, 12
    s_add_u32 {sSTEND}, {sST}, {4*XSTAGE}
    s_waitcnt lgkmcnt(0)
    """)

    def issue():
        A(f"""
        s_mov_b32 m0, {sST}
        s_add_u32 s4, {sST}, 2048
        buffer_load_dwordx4 v{vXO}, s[28:31], {sXOFS} offen lds
        buffer_load_dwordx4 v{vXO+1}, s[28:31], {sXOFS} offen offset:1024 lds
        s_mov_b32 m0, s4
        s_add_u32 {sXOFS}, {sXOFS}, 128
        buffer_load_dwordx4 v{vUO}, s[32:35], {sUOFS} offen lds
        buffer_load_dwordx4 v{vUO+1}, s[32:35], {sUOFS} offen offset:1024 lds
        s_add_u32 {sUOFS}, {sUOFS}, {64*1280}
        s_cmp_ge_u32 {sXOFS}, {sXEND}
        s_cselect_b32 s4, 1280, 0
        s_cselect_b32 s5, {640*1280}, 0
        s_sub_u32 {sXOFS}, {sXOFS}, s4
        s_sub_u32 {sUOFS}, {sUOFS}, s5
        s_add_u32 {sST}, {sST}, {XSTAGE}
        s_cmp_ge_u32 {sST}, {sSTEND}
        s_cselect_b32 s4, {4*XSTAGE}, 0
        s_sub_u32 {sST}, {sST}, s4
        """)

    A(f"s_mov_b32 {sC}, 0")
    A.label("XR_PRO")
    issue()
    A(f"""
    s_add_u32 {sC}, {sC}, 1
    s_cmp_lt_u32 {sC}, 3
    s_cbranch_scc1 XR_PRO
    """)
    A(f"""
    s_lshr_b32 s4, {sW}, 1
    s_and_b32 s5, {sW}, 1
    s_lshl_b32 s6, s4, 13
    v_bfe_u32 v2, v1, 4, 1
    v_and_b32 v3, 15, v1
    v_bfe_u32 v4, v1, 1, 3
    v_lshrrev_b32 v{vT}, 5, v1
    v_xor_b32 v4, v4, v{vT}
    v_lshlrev_b32 v4, 4, v4
    v_lshl_add_u32 v4, v3, 7, v4
    v_lshl_add_u32 v4, v2, 12, v4
    v_add_u32 v{vXR}, s6, v4
    v_xor_b32 v{vXR+1}, 32, v{vXR}
    v_xor_b32 v{vXR+2}, 64, v{vXR}
    v_xor_b32 v{vXR+3}, 96, v{vXR}
    v_bfe_u32 v3, v1, 2, 2
    s_lshl_b32 s6, s5, 1
    v_xor_b32 v4, s6, v3
    v_lshlrev_b32 v4, 6, v4
    v_lshl_add_u32 v4, v3, 8, v4
    v_lshl_add_u32 v4, v{vT}, 12, v4
    v_lshl_add_u32 v4, v2, 5, v4
    v_and_b32 v3, 3, v1
    v_lshl_add_u32 v4, v3, 3, v4
    v_add_u32 v{vUR}, 2048, v4
    v_xor_b32 v{vUR+1}, 64, v{vUR}
    s_mov_b32 {sCST}, 0
    s_mov_b32 {sC}, 0
    """)
    for i in range(32):
        A(f"v_mov_b32 v{vACC+i}, 0")
    A.label("XR_LOOP")
    A(f"""
    s_cmp_ge_u32 {sC}, 7
    s_cselect_b32 s30, 0, {X_BYTES}
    s_cselect_b32 s34, 0, {U_BYTES}
    """)
    for i in range(4):
        A(f"v_add_u32 v{vT+i}, {sCST}, v{vXR+i}")
    for i in range(2):
        A(f"v_add_u32 v{vT+4+i}, {sCST}, v{vUR+i}")
    A("""
    s_waitcnt vmcnt(8)
    s_barrier
    """)

    def reads(s):
        f = vF + 12 * s
        A(f"ds_read_b128 {vr(f+8,4)}, v{vT+s}")
        for tn in range(2):
            for u in range(2):
                A(f"ds_read_b64_tr_b16 {vr(f+4*tn+2*u,2)}, v{vT+4+tn} offset:{s*8192+u*1024}")

    def mfmas(s):
        f = vF + 12 * s
        for tn in range(2):
            acc = vACC + 16 * tn
            A(f"v_mfma_f32_32x32x16_bf16 {vr(acc,16)}, {vr(f+4*tn,4)}, {vr(f+8,4)}, {vr(acc,16)}")

    reads(0)
    reads(1)
    reads(2)
    issue()
    A(f"""
    s_add_u32 {sCST}, {sCST}, {XSTAGE}
    s_and_b32 {sCST}, {sCST}, {4*XSTAGE-1}
    s_waitcnt lgkmcnt(10)
    """)
    mfmas(0)
    reads(3)
    A("s_waitcnt lgkmcnt(10)")
    mfmas(1)
    A("s_waitcnt lgkmcnt(5)")
    mfmas(2)
    A("s_waitcnt lgkmcnt(0)")
    mfmas(3)
    A(f"""
    s_add_u32 {sC}, {sC}, 1
    s_cmp_lt_u32 {sC}, 10
    s_cbranch_scc1 XR_LOOP
    """)
    A(f"""
    s_lshr_b32 s4, {sW}, 1
    s_and_b32 s5, {sW}, 1
    s_lshl_b32 s6, {sMT}, 2
    s_add_u32 s6, s6, s4
    s_mul_i32 s6, s6, 40
    s_lshl_b32 s7, {sNT}, 3
    s_add_u32 s6, s6, s7
    s_lshl_b32 s7, s5, 2
    s_add_u32 s6, s6, s7
    s_lshl_b32 s6, s6, 10
    s_nop 7
    """)
    for i in range(4):
        a = vACC + 8 * i
        o = vF + 4 * i
        for j in range(4):
            A(f"v_cvt_pk_bf16_f32 v{o+j}, v{a+2*j}, v{a+2*j+1}")
        A(f"buffer_store_dwordx4 {vr(o,4)}, v5, s[24:27], s6 offen offset:{1024*i}")


def gen_p2(A, opt):
    A.label("quip_p2_kernel")
    vACC = 8
    vF = 56
    A(f"""
    s_load_dwordx2 s[8:9], s[0:1], 64
    s_load_dwordx2 s[12:13], s[0:1], 48
    s_cmp_ge_u32 s2, 256
    s_cbranch_scc1 P2_EXIT
    v_and_b32 v1, 63, v0
    v_lshrrev_b32 v2, 6, v0
    s_and_b32 s4, s2, 7
    v_readfirstlane_b32 s16, v2
    s_lshr_b32 s5, s2, 3
    s_lshr_b32 s6, s4, 1
    s_lshl_b32 s6, s6, 2
    s_lshr_b32 s7, s5, 3
    s_add_u32 s17, s6, s7
    s_and_b32 s6, s4, 1
    s_lshl_b32 s6, s6, 3
    s_and_b32 s7, s5, 7
    s_add_u32 s18, s6, s7
    s_mov_b32 s10, {WS_USED}
    s_mov_b32 s11, 0x00020000
    s_mov_b32 s14, {OUT_BYTES}
    s_mov_b32 s15, 0x00020000
    v_lshlrev_b32 v3, 4, v1
    v_add_u32 v4, 61440, v3
    s_lshl_b32 s4, s17, 2
    s_add_u32 s4, s4, s16
    s_mul_i32 s20, s4, 40960
    s_mul_i32 s21, s16, 3072
    s_mul_i32 s22, s18, 122880
    s_add_u32 s22, s22, {W2F}
    s_add_u32 s22, s22, s21
    s_mov_b32 m0, s21
    s_waitcnt lgkmcnt(0)
    """)

    def issue(c):
        for i in range(3):
            A(f"buffer_load_dwordx4 v3, s[8:11], s22 offen offset:{1024*i} lds")
        A("s_add_u32 m0, m0, 12288")
        A("s_add_u32 s22, s22, 12288")
        for i in range(4):
            A(f"buffer_load_dwordx4 {ar(16*c+4*i,4)}, v3, s[8:11], s20 offen offset:{1024*i}")
        A("s_add_u32 s20, s20, 4096")

    for c in range(9):
        issue(c)
    for i in range(48):
        A(f"v_mov_b32 v{vACC+i}, 0")
    A(f"""
    v_and_b32 v5, 31, v1
    v_lshrrev_b32 v6, 5, v1
    v_mul_u32_u24 v5, 0xc00, v5
    v_lshl_add_u32 v5, v6, 4, v5
    s_mul_i32 s4, s4, {32*3072}
    s_mul_i32 s5, s18, 192
    s_add_u32 s23, s4, s5
    """)
    for c in range(10):
        rem = 56 if c <= 1 else 7 * (9 - c)
        A(f"s_waitcnt vmcnt({rem})")
        A("s_barrier")
        for j in range(12):
            off = c * 12288 + j * 1024
            base, o = ("v3", off) if off < 61440 else ("v4", off - 61440)
            A(f"ds_read_b128 {vr(vF+4*j,4)}, {base} offset:{o}")
        if c == 0:
            issue(9)
        for j in range(12):
            kbl, nbl = divmod(j, 3)
            A(f"s_waitcnt lgkmcnt({11-j})")
            acc = vACC + 16 * nbl
            A(f"v_mfma_f32_32x32x16_bf16 {vr(acc,16)}, {vr(vF+4*j,4)}, {ar(16*c+4*kbl,4)}, {vr(acc,16)}")
    A("s_nop 15")
    for t in range(3):
        for p in range(2):
            a = vACC + 16 * t + 8 * p
            o = vF + (2 * t + p) * 4
            for j in range(4):
                A(f"v_cvt_pk_bf16_f32 v{o+j}, v{a+2*j}, v{a+2*j+1}")
            A(f"""
            s_nop 1
            v_permlane32_swap_b32 v{o}, v{o+2}
            v_permlane32_swap_b32 v{o+1}, v{o+3}
            buffer_store_dwordx4 {vr(o,4)}, v5, s[12:15], s23 offen offset:{64*t+32*p}
            """)
    A.label("P2_EXIT")
    A("s_endpgm")


def descriptor(name, vgpr, accum, sgpr):
    return f""".amdhsa_kernel {name}
  .amdhsa_next_free_vgpr {vgpr}
  .amdhsa_next_free_sgpr {sgpr}
  .amdhsa_accum_offset {accum}
  .amdhsa_group_segment_fixed_size 0
  .amdhsa_kernarg_size 72
  .amdhsa_user_sgpr_count 2
  .amdhsa_user_sgpr_kernarg_segment_ptr 1
  .amdhsa_system_sgpr_workgroup_id_x 1
  .amdhsa_float_denorm_mode_32 3
.end_amdhsa_kernel
"""


def generate(opt):
    out = HEADER
    out += f"; @launch kernel=quip_p1_kernel grid=(248,1,1) block=(512,1,1) lds={LDS1}\n"
    out += f"; @launch kernel=quip_p2_kernel grid=(256,1,1) block=(256,1,1) lds={LDS2}\n"
    out += '.amdgcn_target "amdgcn-amd-amdhsa--gfx950"\n.text\n'
    A = Asm()
    out += ".globl quip_p1_kernel\n.p2align 8\n.type quip_p1_kernel,@function\n"
    gen_p1(A, opt)
    out += A.text()
    A = Asm()
    out += ".globl quip_p2_kernel\n.p2align 8\n.type quip_p2_kernel,@function\n"
    gen_p2(A, opt)
    out += A.text()
    out += "CODE_END:\n"
    out += '.section .rodata,"a"\n.p2align 6\n'
    out += descriptor("quip_p1_kernel", 116, 116, 64)
    out += ".p2align 6\n"
    out += descriptor("quip_p2_kernel", 104 + 160, 104, 32)
    return out


if __name__ == "__main__":
    path = sys.argv[1] if len(sys.argv) > 1 else "standalone__weight_only_int_quip__prompt.s"
    open(path, "w").write(generate({}))
    print("wrote", path)
```

```python
import sys

HEADER = """; Kernarg layout for this problem (72 bytes, ptrs only, base s[0:1]):
"""

XRF = 0
W2F = 64 * 40 * 1024
WS_USED = W2F + 16 * 40 * 3 * 1024

X_BYTES = 2048 * 640 * 2
QW_BYTES = 640 * 1536 * 4
SC_BYTES = 20 * 1536 * 2
U_BYTES = 640 * 640 * 2
V_BYTES = 1536 * 1536 * 2
OUT_BYTES = 2048 * 1536 * 2

VSTAGE = 32768
ABASE = 3 * VSTAGE
ASTAGE = 12288
TBL = ABASE + 2 * ASTAGE
LDS1 = TBL + 24576
QE = 112
XSTAGE = 32768
LDS2 = 120 * 1024


class Asm:
    def __init__(self):
        self.lines = []

    def __call__(self, s):
        for l in s.strip("\n").split("\n"):
            self.lines.append("    " + l.strip() if not l.strip().endswith(":") else l.strip())

    def label(self, s):
        self.lines.append(s + ":")

    def comment(self, s):
        self.lines.append("    ; " + s)

    def text(self):
        return "\n".join(self.lines) + "\n"


def NT(opt, k):
    return " nt" if opt.get("nt" + k) else ""


def vr(a, n):
    return f"v[{a}:{a+n-1}]"


def ar(a, n):
    return f"a[{a}:{a+n-1}]"


STAMP_OFS = 32 << 20


NSTAMP = 8


def stamp(A, opt, i):
    if opt.get("stamp"):
        A(f"s_memrealtime s[{64+2*i}:{65+2*i}]")


SV = {"v": 176, "lds": 0}


def it_init(A, opt, wreg):
    if opt.get("stamp"):
        v = SV["v"]
        A(f"""
        s_lshl_b32 s84, {wreg}, 8
        s_add_u32 s84, s84, {SV["lds"]}
        v_and_b32 v{v}, 63, v0
        v_lshlrev_b32 v{v}, 2, v{v}
        v_add_u32 v{v+3}, s84, v{v}
        v_mov_b32 v{v+1}, 0
        ds_write_b32 v{v+3}, v{v+1}
        v_mov_b32 v{v}, s84
        s_mov_b32 s85, 1
        s_mov_b32 s80, 0
        s_mov_b32 s82, 0
        s_waitcnt lgkmcnt(0)
        """)


def barrier(A, opt):
    if opt.get("its"):
        A("s_memrealtime s[80:81]")
    A("s_barrier")
    if opt.get("its"):
        A("s_memrealtime s[82:83]")


def it_flush(A, opt, wait=False):
    if opt.get("its"):
        v = SV["v"]
        if wait: A("s_waitcnt lgkmcnt(0)")
        A(f"""
        v_mov_b32 v{v+1}, s80
        v_mov_b32 v{v+2}, s82
        ds_write_b64 v{v}, v[{v+1}:{v+2}]
        v_add_u32 v{v}, 8, v{v}
        """)


def stamp_begin(A, opt):
    if opt.get("stamp"):
        for i in range(1, NSTAMP):
            A(f"s_mov_b32 s{64+2*i}, 0")
        A("s_mov_b32 s85, 0")
        A("s_memtime s[86:87]")
    stamp(A, opt, 0)


def stamp_end(A, opt, kidx, wsreg):
    if opt.get("stamp"):
        A("s_waitcnt vmcnt(0) lgkmcnt(0)")
        stamp(A, opt, NSTAMP - 1)
        A("s_memtime s[88:89]")
        A(f"""
        s_load_dwordx2 s[56:57], s[0:1], 64
        s_waitcnt lgkmcnt(0)
        s_mov_b32 s58, 0x7fffffff
        s_mov_b32 s59, 0x00020000
        v_lshrrev_b32 v1, 6, v0
        v_lshlrev_b32 v1, 5, v1
        s_lshl_b32 s4, s2, 8
        s_add_u32 s4, s4, {STAMP_OFS + kidx * 131072}
        """)
        for i in range(NSTAMP):
            A(f"v_mov_b32 v{4+i}, s{64+2*i}")
        A("""
        buffer_store_dwordx4 v[4:7], v1, s[56:59], s4 offen
        buffer_store_dwordx4 v[8:11], v1, s[56:59], s4 offen offset:16
        """)
        v = SV["v"]
        A(f"""
        s_cmp_eq_u32 s85, 0
        s_cbranch_scc1 ST_END{kidx}
        ds_read_b32 v{v+1}, v{v+3}
        v_lshlrev_b32 v1, 2, v0
        s_lshl_b32 s4, s2, 11
        s_add_u32 s4, s4, {STAMP_OFS + 262144 + kidx * 1048576}
        s_waitcnt lgkmcnt(0)
        s_sub_u32 s88, s88, s86
        s_sub_u32 s89, s78, s64
        v_writelane_b32 v{v+1}, s88, 62
        v_writelane_b32 v{v+1}, s89, 63
        buffer_store_dword v{v+1}, v1, s[56:59], s4 offen
        """)
        A.label(f"ST_END{kidx}")
        if opt.get("hstamp"):
            A(f"""
            s_load_dwordx2 s[56:57], s[0:1], 56
            v_cmp_gt_u32 vcc, 8, v0
            s_and_b32 s4, s2, 0x18
            s_cmp_lg_u32 s4, 0
            s_cbranch_scc1 HS_END{kidx}
            s_and_b64 exec, exec, vcc
            s_cbranch_execz HS_END{kidx}
            s_not_b32 s4, s64
            v_writelane_b32 v4, s4, 0
            v_writelane_b32 v4, s64, 1
            v_writelane_b32 v4, s66, 2
            v_writelane_b32 v4, s70, 3
            v_writelane_b32 v4, s72, 4
            v_writelane_b32 v4, s76, 5
            s_cmp_eq_u32 s76, 0
            s_cselect_b32 s4, s78, 0
            s_cselect_b32 s5, 0, s78
            v_writelane_b32 v4, s4, 6
            v_writelane_b32 v4, s5, 7
            v_lshlrev_b32 v1, 2, v0
            s_movk_i32 s58, 256
            s_waitcnt lgkmcnt(0)
            buffer_atomic_umax v4, v1, s[56:59], 0 offen offset:{32*kidx}
            """)
            if kidx == 1:
                A(f"""
                s_cmp_lg_u32 s2, 0
                s_cbranch_scc1 HS_END{kidx}
                s_mov_b64 exec, -1
                s_load_dwordx2 s[60:61], s[0:1], 64
                s_mov_b32 s62, 0x7fffffff
                s_mov_b32 s63, 0x00020000
                v_lshrrev_b32 v2, 3, v0
                v_mul_u32_u24 v2, {31*256}, v2
                v_and_b32 v3, 7, v0
                v_lshl_add_u32 v2, v3, 2, v2
                s_mov_b32 s4, {STAMP_OFS}
                s_waitcnt lgkmcnt(0)
                buffer_load_dword v4, v2, s[60:63], s4 offen sc1
                v_lshlrev_b32 v1, 2, v3
                v_cmp_eq_u32 vcc, 0, v3
                s_waitcnt vmcnt(0)
                v_not_b32 v5, v4
                v_cndmask_b32 v4, v4, v5, vcc
                buffer_atomic_umax v4, v1, s[56:59], 0 offen
                """)
            A.label(f"HS_END{kidx}")
    A("s_endpgm")


def gen_p1(A, opt):
    dbg = opt.get("dbg", False)
    A.label("quip_p1_kernel")
    stamp_begin(A, opt)
    A("""
    s_load_dwordx2 s[8:9], s[0:1], 8
    s_load_dwordx2 s[12:13], s[0:1], 40
    s_load_dwordx2 s[16:17], s[0:1], 16
    s_load_dwordx2 s[20:21], s[0:1], 24
    s_load_dwordx2 s[28:29], s[0:1], 0
    s_load_dwordx2 s[32:33], s[0:1], 32
    s_load_dwordx2 s[24:25], s[0:1], 64
    s_cmp_ge_u32 s2, 256
    s_cbranch_scc1 P1_EXIT
    v_and_b32 v1, 63, v0
    v_lshrrev_b32 v2, 6, v0
    s_getpc_b64 s[4:5]
    """)
    A.label("P1_PC")
    A("""
    v_readfirstlane_b32 s36, v2
    v_lshlrev_b32 v3, 7, v1
    v_min_u32 v3, CODE_END-P1_PC-4, v3
    s_lshr_b32 s3, s2, 3
    s_and_b32 s37, s2, 7
    s_cmp_lg_u32 s36, 7
    s_cbranch_scc1 P1_NOPF
    global_load_dword v60, v3, s[4:5]
    """)
    A.label("P1_NOPF")
    SV["v"], SV["lds"] = 249, LDS1
    it_init(A, opt, "s36")
    A(f"""
    s_mov_b32 s11, 0x00020000
    s_mov_b32 s15, 0x00020000
    s_mov_b32 s27, 0x00020000
    s_mov_b32 s26, {WS_USED}
    v_lshlrev_b32 v5, 4, v1
    s_cmp_ge_u32 s3, 21
    s_cbranch_scc1 P1_XR
    """)
    gen_w2(A, opt)
    A.label("P1_XR")
    gen_xr(A, opt)
    A.label("P1_EXIT")
    stamp_end(A, opt, 0, None)


def gen_w2(A, opt):
    NQ = opt.get("nq", 2)
    RING = 3 * VSTAGE
    RG = opt.get("rg", 2)
    sW, sLOC, sXCD = "s36", "s3", "s37"
    sMI, sNI = "s40", "s41"
    sC = "s49"
    sVOFS = "s43"
    vVO = 6
    A(f"""
    s_mul_i32 s4, {sLOC}, 171
    s_lshr_b32 s4, s4, 9
    s_mul_i32 s5, s4, 3
    s_sub_u32 s5, {sLOC}, s5
    s_lshr_b32 s6, {sXCD}, 2
    s_mul_i32 s6, s6, 7
    s_add_u32 {sMI}, s6, s4
    s_and_b32 s6, {sXCD}, 3
    s_mul_i32 s6, s6, 3
    s_add_u32 {sNI}, s6, s5
    s_mul_i32 s42, {sMI}, 3
    s_mov_b32 s56, s4
    s_mov_b32 s57, s5
    """)
    W = opt.get("rw", 1)
    if W > 1:
        ra, rb = opt.get("rota", 1), opt.get("rotb", 1)
        P2 = sum((i % W) << (4 * i) for i in range(2 * W))
        A(f"""
        s_mul_i32 s6, s4, {ra}
        s_mul_i32 s7, s5, {rb}
        s_add_u32 s6, s6, s7
        """)
        if W in (2, 4):
            A(f"s_and_b32 s6, s6, {W-1}")
        else:
            M = {3: 86, 6: 43}[W]
            A(f"""
            s_mul_i32 s7, s6, {M}
            s_lshr_b32 s7, s7, 8
            s_mul_i32 s7, s7, {W}
            s_sub_u32 s6, s6, s7
            """)
        ones = sum(1 << (4 * i) for i in range(W))
        A(f"""
        s_lshl_b32 s6, s6, 2
        s_mov_b32 s60, {P2 & 0xffffffff}
        s_mov_b32 s61, {P2 >> 32}
        s_lshr_b64 s[60:61], s[60:61], s6
        s_and_b32 s6, s60, {(1 << (4*W)) - 1}
        s_mov_b32 s60, 0
        s_mov_b32 s61, 0
        s_mov_b32 s7, 0
        """)
        for j in range(12 // W - 1, -1, -1):
            A(f"""
            s_lshl_b64 s[60:61], s[60:61], {4*W}
            s_add_u32 s6, s6, {(ones * W * j) & 0xffffffff}
            s_or_b64 s[60:61], s[60:61], s[6:7]
            s_sub_u32 s6, s6, {(ones * W * j) & 0xffffffff}
            """)
    else:
        A("""
        s_mov_b32 s60, 0x76543210
        s_mov_b32 s61, 0xba98
        """)
    A(f"""
    s_sub_u32 s4, {sW}, 4
    s_cmp_lt_u32 s4, 3
    s_cbranch_scc1 W2_DEQ
    s_mov_b32 s14, {V_BYTES}
    v_lshrrev_b32 v2, 4, v1
    v_and_b32 v3, 15, v1
    v_lshlrev_b32 v4, 1, v2
    v_xor_b32 v3, v3, v4
    v_lshlrev_b32 v3, 4, v3
    v_mul_u32_u24 v4, 0xc00, v2
    v_add_u32 v{vVO}, v3, v4
    v_add_u32 v{vVO+1}, 11264, v{vVO}
    v_xor_b32 v3, 0x80, v{vVO}
    v_add_u32 v{vVO+2}, {2*11264}, v3
    v_add_u32 v{vVO+3}, {3*11264}, v3
    s_lshl_b32 {sVOFS}, {sNI}, 8
    s_cmp_lt_u32 {sW}, 4
    s_cbranch_scc1 W2_MFMA
    """)

    def v_group():
        for j in range(4):
            A(f"buffer_load_dwordx4 v{vVO+j}, s[12:15], {sVOFS} offen offset:{1024*j} lds")

    for g in range(1, 8):
        for j in range(4):
            A(f"v_add_u32 v{vVO+4*g+j}, {g*16*3072}, v{vVO+j}")
    A(f"""
    s_mov_b32 s44, {sVOFS}
    s_mov_b32 m0, {VSTAGE}
    s_mov_b32 {sC}, 1
    s_waitcnt lgkmcnt(0)
    """)
    stamp(A, opt, 1)
    A.label("W2L_LOOP")
    A(f"""
    s_lshr_b64 s[60:61], s[60:61], 4
    s_and_b32 s4, s60, 15
    s_mul_i32 s4, s4, 393216
    s_add_u32 {sVOFS}, s44, s4
    """)
    for g in range(8):
        if g == 6: A("s_waitcnt vmcnt(55)")
        for j in range(4):
            A(f"buffer_load_dwordx4 v{vVO+4*g+j}, s[12:15], {sVOFS} offen offset:{1024*j} lds")
            if j == 3: A("s_add_u32 m0, m0, 4096")
            if j == 3 and g < 7: A("s_nop 0")
    A(f"""
    s_cmp_ge_u32 m0, {RING}
    s_cselect_b32 m0, 0, m0
    s_add_u32 {sC}, {sC}, 1
    s_cmp_lg_u32 {sC}, 2
    s_cbranch_scc1 W2L_NT
    s_barrier
    """)
    if opt.get("prio", 1): A("s_setprio 3")
    A.label("W2L_NT")
    it_flush(A, opt, True)
    A("s_waitcnt vmcnt(32)")
    barrier(A, opt)
    A(f"""
    s_cmp_lt_u32 {sC}, 12
    s_cbranch_scc1 W2L_LOOP
    """)
    it_flush(A, opt, True)
    A("s_waitcnt vmcnt(0)")
    barrier(A, opt)
    it_flush(A, opt, True)
    A("s_branch P1_EXIT")
    A.label("W2_DEQ")
    sB = "s38"
    sQOFS = "s43"
    vQO = 6
    vAW = 14
    vTB = 22
    U_ = 24
    Ft = 40
    O = 48
    vQ = 52
    QS = 32
    A(f"""
    s_mov_b32 {sB}, s4
    s_add_u32 s4, s42, {sB}
    s_cmp_ge_u32 s4, 40
    s_cbranch_scc1 W2D_IDLE
    s_mul_i32 s44, s4, {16*6144}
    s_mov_b64 s[62:63], s[60:61]
    s_lshr_b32 s6, s4, 1
    s_lshr_b32 s5, s42, 1
    s_sub_u32 s6, s6, s5
    s_mul_i32 s6, s6, 6144
    s_add_u32 s6, s6, {TBL}
    s_mov_b32 s10, {QW_BYTES}
    v_lshrrev_b32 v2, 5, v1
    v_and_b32 v3, 31, v1
    v_lshlrev_b32 v4, 4, v3
    v_mul_u32_u24 v{vQO}, 0x1800, v2
    v_add_u32 v{vQO}, v{vQO}, v4
    v_add_u32 v{vTB}, s6, v4
    """)
    QR = opt.get("qr", 3)
    A(f"s_mul_i32 s57, s57, {QR}")
    for i in range(7, -1, -1):
        A(f"""
        s_add_u32 s4, s57, {i}
        s_and_b32 s4, s4, 7
        s_mul_i32 s4, s4, 12288
        v_add_u32 v{vQO+i}, s4, v{vQO}
        """)
    A("s_waitcnt lgkmcnt(0)")
    stamp(A, opt, 1)

    def q_next():
        A(f"""
        s_and_b32 s4, s60, 15
        s_lshr_b64 s[60:61], s[60:61], 4
        s_lshl_b32 s4, s4, 9
        s_add_u32 {sQOFS}, s44, s4
        """)

    def q_issue(u):
        q = vQ + QS * u
        q_next()
        for i in range(8):
            A(f"buffer_load_dwordx4 {vr(q+4*i,4)}, v{vQO+i}, s[8:11], {sQOFS} offen")

    def t_read(n):
        u = U_ + 8 * (n & 1)
        A(f"""
        s_and_b32 s4, s62, 15
        s_lshr_b64 s[62:63], s[62:63], 4
        s_lshl_b32 s4, s4, 9
        v_add_u32 v{vTB+1}, s4, v{vTB}
        ds_read_b128 {vr(u,4)}, v{vTB+1}
        ds_read_b128 {vr(u+4,4)}, v{vTB+1} offset:12288
        """)

    for u in range(NQ):
        q_issue(u)
    A(f"""
    s_lshl_b32 s4, {sB}, 12
    s_add_u32 s4, s4, {ABASE}
    v_bfe_u32 v3, v1, 1, 4
    v_xor_b32 v4, v3, v2
    v_lshlrev_b32 v4, 4, v4
    v_lshl_add_u32 v4, v2, 8, v4
    v_and_b32 v3, 1, v1
    v_lshl_add_u32 v4, v3, 3, v4
    v_add_u32 v{vAW}, s4, v4
    """)
    for i in range(7, -1, -1):
        A(f"""
        s_add_u32 s4, s57, {i}
        s_and_b32 s4, s4, 7
        s_lshl_b32 s5, s4, 5
        s_lshl_b32 s4, s4, 9
        v_xor_b32 v3, s5, v{vAW}
        v_add_u32 v{vAW+i}, s4, v3
        """)
    A(f"""
    s_mov_b32 {sC}, 0
    s_barrier
    """)
    if opt.get("prio", 1): A("s_setprio 3")
    t_read(0)
    A("s_waitcnt lgkmcnt(0)")
    assert 12 % NQ == 0
    UN = NQ if NQ % 2 == 0 else 2 * NQ
    assert 12 % UN == 0
    A.label("W2D_LOOP")
    for n in range(UN):
        u = n % NQ
        q = vQ + QS * u
        S = U_ + 8 * (n & 1)
        t_read(n + 1)
        q_next()
        A(f"""
        s_cmp_lt_u32 {sC}, {12-NQ-n+1}
        s_waitcnt vmcnt({8*(NQ-1)})
        s_cbranch_scc1 W2D_NT{n}
        s_waitcnt vmcnt({8*min(NQ-1, max(0, UN-1-n))})
        """)
        A.label(f"W2D_NT{n}")
        A(f"s_cmp_lt_u32 {sC}, {12-NQ-n}")
        for i in range(8):
            if opt.get("nodeq"): break
            qq = q + 4 * i
            f = Ft + 4 * (i & 1)
            o = O + 2 * (i & 1)
            A(f"""
            v_fma_f32 v{f}, v{qq}, v{S}, v{S+4}
            v_fma_f32 v{f+1}, v{qq+1}, v{S+1}, v{S+5}
            v_fma_f32 v{f+2}, v{qq+2}, v{S+2}, v{S+6}
            v_fma_f32 v{f+3}, v{qq+3}, v{S+3}, v{S+7}
            v_cvt_pk_bf16_f32 v{o}, v{f}, v{f+1}
            v_cvt_pk_bf16_f32 v{o+1}, v{f+2}, v{f+3}
            ds_write_b64 v{vAW+i}, {vr(o,2)} offset:{ASTAGE*(n&1)}
            """)
            if (i + 1) % RG == 0:
                A(f"s_cbranch_scc0 W2D_SK{n}_{i}")
                for ii in range(i + 1 - RG, i + 1):
                    A(f"buffer_load_dwordx4 {vr(q+4*ii,4)}, v{vQO+ii}, s[8:11], {sQOFS} offen")
                A.label(f"W2D_SK{n}_{i}")
        it_flush(A, opt, True)
        A("s_waitcnt lgkmcnt(0)")
        barrier(A, opt)
    A(f"""
    s_add_u32 {sC}, {sC}, {UN}
    s_cmp_lt_u32 {sC}, 12
    s_cbranch_scc1 W2D_LOOP
    """)
    it_flush(A, opt, True)
    A("s_branch P1_EXIT")
    A.label("W2D_IDLE")
    A(f"s_mov_b32 {sC}, 0")
    A.label("W2D_IDL")
    A(f"""
    s_barrier
    s_add_u32 {sC}, {sC}, 1
    s_cmp_lt_u32 {sC}, 13
    s_cbranch_scc1 W2D_IDL
    s_branch P1_EXIT
    """)
    A.label("W2_MFMA")
    sCST = "s45"
    vAR = 10
    vBR = 14
    vT0, vT1 = 16, 17
    vST = 18
    vACC = 20
    vF = 44
    P = vF
    A(f"""
    s_lshl_b32 s4, {sW}, 13
    s_mov_b32 m0, s4
    s_mul_i32 s4, {sW}, {32*3072}
    s_add_u32 {sVOFS}, {sVOFS}, s4
    s_and_b32 s4, s60, 15
    s_mul_i32 s4, s4, 393216
    s_add_u32 {sVOFS}, {sVOFS}, s4
    s_lshr_b32 s6, s42, 1
    s_mul_i32 s6, s6, 3072
    s_mov_b32 s18, {SC_BYTES}
    s_mov_b32 s19, 0x00020000
    s_mov_b32 s22, {SC_BYTES}
    s_mov_b32 s23, 0x00020000
    v_and_b32 v2, 0xff, v0
    v_lshlrev_b32 v19, 3, v2
    s_waitcnt lgkmcnt(0)
    """)
    stamp(A, opt, 1)
    for j in range(2):
        A(f"""
        buffer_load_dwordx2 {vr(P+4*j,2)}, v19, s[16:19], s6 offen offset:{2048*j}
        buffer_load_dwordx2 {vr(P+4*j+2,2)}, v19, s[20:23], s6 offen offset:{2048*j}
        """)
    A(f"""
    s_add_u32 s6, s6, 4096
    buffer_load_dwordx2 {vr(P+8,2)}, v19, s[16:19], s6 offen
    buffer_load_dwordx2 {vr(P+10,2)}, v19, s[20:23], s6 offen
    """)
    v_group()
    A(f"""
    s_add_u32 m0, m0, 4096
    s_add_u32 {sVOFS}, {sVOFS}, {16*3072}
    """)
    v_group()
    A(f"""
    v_lshlrev_b32 v19, 1, v19
    v_add_u32 v19, {TBL}, v19
    v_and_b32 v2, 15, v1
    v_lshrrev_b32 v3, 4, v1
    v_xor_b32 v4, v2, v3
    v_lshlrev_b32 v4, 4, v4
    v_lshl_add_u32 v4, v2, 8, v4
    v_add_u32 v{vAR}, {ABASE}, v4
    v_xor_b32 v{vAR+1}, 64, v{vAR}
    v_xor_b32 v{vAR+2}, 128, v{vAR}
    v_xor_b32 v{vAR+3}, 192, v{vAR}
    v_bfe_u32 v2, v1, 2, 2
    v_and_b32 v4, 1, v3
    v_lshl_or_b32 v4, v4, 2, v2
    s_lshl_b32 s5, {sW}, 1
    v_xor_b32 v4, s5, v4
    v_lshlrev_b32 v4, 5, v4
    v_lshl_add_u32 v2, v3, 3, v2
    v_lshl_add_u32 v4, v2, 8, v4
    v_and_b32 v2, 3, v1
    v_lshl_add_u32 v{vBR}, v2, 3, v4
    v_xor_b32 v{vBR+1}, 32, v{vBR}
    s_mov_b32 {sCST}, 0
    s_mov_b32 {sC}, 0
    s_lshl_b32 s4, {sNI}, 2
    s_add_u32 s4, s4, {sW}
    s_mul_i32 s5, s4, 171
    s_lshr_b32 s5, s5, 9
    s_mul_i32 s6, s5, 3
    s_sub_u32 s6, s4, s6
    s_mul_i32 s5, s5, 40
    s_add_u32 s5, s5, s42
    s_mul_i32 s5, s5, 3
    s_add_u32 s5, s5, s6
    s_lshl_b32 s5, s5, 10
    s_add_u32 s50, s5, {W2F}
    s_add_u32 s51, s50, 3072
    s_add_u32 s52, s50, 6144
    s_mov_b32 s54, {hex((127+149-QE) << 23)}
    s_mov_b32 s55, {hex((127+149-QE) << 23)}
    s_mov_b32 s46, 0xffff0000
    s_mov_b32 s47, {hex((127+QE) << 23)}
    s_mov_b32 s48, {hex(0x80000000 | ((127+QE-149) << 23))}
    v_bfe_u32 v3, v1, 4, 1
    v_lshrrev_b32 v4, 5, v1
    v_and_b32 v{vST}, 15, v1
    v_lshl_add_u32 v{vST}, v3, 5, v{vST}
    v_lshl_add_u32 v{vST}, v4, 4, v{vST}
    v_lshlrev_b32 v{vST}, 4, v{vST}
    """)
    for i in range(0, 24, 2):
        A(f"v_mov_b64 {vr(vACC+i,2)}, 0")
    for i in range(0, 80, 2):
        A(f"v_mov_b64 {vr(vF+80+i,2)}, 0")
    for j in range(3):
        q = P + 4 * j
        u = P + 16 + 8 * j
        A(f"""
        s_waitcnt vmcnt({8 + 4 - 2*j})
        v_lshlrev_b32 v{u}, 16, v{q}
        v_and_b32 v{u+1}, s46, v{q}
        v_lshlrev_b32 v{u+2}, 16, v{q+1}
        v_and_b32 v{u+3}, s46, v{q+1}
        v_lshlrev_b32 v{u+4}, 16, v{q+2}
        v_and_b32 v{u+5}, s46, v{q+2}
        v_lshlrev_b32 v{u+6}, 16, v{q+3}
        v_and_b32 v{u+7}, s46, v{q+3}
        """)
        for i in range(4): A(f"v_mul_f32 v{u+4+i}, s48, v{u+4+i}")
        for i in range(4): A(f"v_mul_f32 v{u+4+i}, v{u+i}, v{u+4+i}")
        for i in range(4): A(f"v_mul_f32 v{u+i}, s47, v{u+i}")
        A(f"""
        ds_write_b128 v19, {vr(u,4)} offset:{4096*j}
        ds_write_b128 v19, {vr(u+4,4)} offset:{4096*j+12288}
        """)
    if opt.get("st2") == 1: stamp(A, opt, 2)
    A("""
    s_waitcnt lgkmcnt(0)
    s_barrier
    """)
    if opt.get("st2") == 2: stamp(A, opt, 2)
    A("s_waitcnt vmcnt(0)")
    if opt.get("st2") == 3: stamp(A, opt, 2)
    if opt.get("st2"): A("s_waitcnt lgkmcnt(0)")

    def reads(s, buf):
        fa = vF + buf * 80 + 20 * s
        fb = fa + 12
        r = []
        for b in range(3):
            r.append(f"ds_read_b128 {vr(fa+4*b,4)}, v{vAR+s} offset:{4096*b + ASTAGE*buf}")
        for t in range(2):
            for u in range(2):
                r.append(f"ds_read_b64_tr_b16 {vr(fb+4*t+2*u,2)}, v{vT0+t} offset:{(32*s+4*u)*256}")
        return [] if opt.get("nocomp") else r

    def mfmas(s, buf):
        fa = vF + buf * 80 + 20 * s
        fb = fa + 12
        r = []
        for b in range(3):
            for t in range(2):
                acc = vACC + (b * 2 + t) * 4
                r.append(f"v_mfma_f32_16x16x32_bf16 {vr(acc,4)}, {vr(fa+4*b,4)}, {vr(fb+4*t,4)}, {vr(acc,4)}")
        return [] if (opt.get("nocomp") or opt.get("nomfma")) else r

    A.label("W2M_LOOP")
    for buf in range(2):
        A(f"""
        v_add_u32 v{vT0}, {sCST}, v{vBR}
        v_add_u32 v{vT1}, {sCST}, v{vBR+1}
        s_add_u32 {sCST}, {sCST}, {VSTAGE}
        s_cmp_ge_u32 {sCST}, {RING}
        s_cselect_b32 {sCST}, 0, {sCST}
        """)
        barrier(A, opt)
        rd = sum((reads(s, buf) for s in range(4)), [])
        mf = sum((mfmas(s, buf ^ 1) for s in range(4)), [])
        seq = rd[:4]
        ri = 4
        for m in mf:
            seq.append(m)
            seq += rd[ri:ri + 1]
            ri += 1
        seq += rd[ri:]
        for x in seq: A(x)
        A("s_waitcnt lgkmcnt(0)")
        it_flush(A, opt)
        if opt.get("stamp") and buf == 0:
            for cc, si in ((0, 3), (4, 4), (8, 5)):
                A(f"""
                s_cmp_lg_u32 {sC}, {cc}
                s_cbranch_scc1 W2M_ST{si}
                """)
                stamp(A, opt, si)
                A("s_waitcnt lgkmcnt(0)")
                A.label(f"W2M_ST{si}")
    A(f"""
    s_add_u32 {sC}, {sC}, 2
    s_cmp_lt_u32 {sC}, 12
    s_cbranch_scc1 W2M_LOOP
    """)
    for s_ in range(4):
        for m in mfmas(s_, 1): A(m)
    A("s_nop 7")
    stamp(A, opt, 6)
    for b in range(3):
        a = vACC + 8 * b
        o = vF + 4 * b
        for j in range(4):
            A(f"v_pk_mul_f32 {vr(a+2*j,2)}, {vr(a+2*j,2)}, s[54:55]")
        A(f"""
        v_cvt_pk_bf16_f32 v{o}, v{a}, v{a+1}
        v_cvt_pk_bf16_f32 v{o+1}, v{a+2}, v{a+3}
        v_cvt_pk_bf16_f32 v{o+2}, v{a+4}, v{a+5}
        v_cvt_pk_bf16_f32 v{o+3}, v{a+6}, v{a+7}
        s_nop 1
        v_permlane32_swap_b32 v{o}, v{o+2}
        v_permlane32_swap_b32 v{o+1}, v{o+3}
        buffer_store_dwordx4 {vr(o,4)}, v{vST}, s[24:27], s{50+b} offen
        """)
        if b == 0:
            A(f"""
            s_cmp_eq_u32 {sMI}, 13
            s_cbranch_scc1 P1_EXIT
            """)
    A("s_branch P1_EXIT")


def gen_xr(A, opt):
    sW, sLOC, sXCD = "s36", "s3", "s37"
    sMT, sNT = "s40", "s41"
    sR0 = "s42"
    sC = "s48"
    A(f"""
    s_sub_u32 s4, {sLOC}, 21
    s_cmp_ge_u32 s4, 5
    s_cselect_b32 s5, 1, 0
    s_cselect_b32 s6, 5, 0
    s_sub_u32 {sNT}, s4, s6
    s_lshl_b32 s7, {sXCD}, 1
    s_add_u32 {sMT}, s7, s5
    s_mul_i32 s6, s5, {opt.get("xrota", 0)}
    s_mul_i32 s7, {sNT}, {opt.get("xrotb", 0)}
    s_add_u32 s6, s6, s7
    s_cmp_ge_u32 s6, 10
    s_cselect_b32 s7, 10, 0
    s_sub_u32 {sR0}, s6, s7
    s_cmp_eq_u32 {sW}, 6
    s_cbranch_scc1 XR_PF
    s_cmp_ge_u32 {sLOC}, 31
    s_cbranch_scc1 P1_EXIT
    s_cmp_lt_u32 {sW}, 4
    s_cbranch_scc1 XR_MFMA
    s_cmp_ge_u32 {sW}, 6
    s_cbranch_scc1 P1_EXIT
    s_branch XR_LD
    """)
    A.label("XR_PF")
    if opt.get("nopf"):
        A("s_branch P1_EXIT")
    A(f"""
    s_cmp_lt_u32 s4, 4
    s_cbranch_scc0 XRP_Q
    v_lshrrev_b32 v2, 1, v1
    v_and_b32 v3, 1, v1
    v_mul_u32_u24 v6, 0xc00, v2
    v_lshl_add_u32 v6, v3, 7, v6
    v_add_u32 v7, 256, v6
    v_add_u32 v8, 512, v6
    s_and_b32 s6, {sXCD}, 3
    s_mul_i32 s6, s6, 768
    s_mul_i32 s7, s4, {32*3072}
    s_add_u32 s43, s6, s7
    s_mov_b32 s44, {128*3072}
    s_mov_b32 s10, {V_BYTES}
    s_waitcnt lgkmcnt(0)
    s_mov_b32 s8, s12
    s_mov_b32 s9, s13
    s_branch XRP_GO
    """)
    A.label("XRP_Q")
    A(f"""
    v_lshrrev_b32 v2, 2, v1
    v_and_b32 v3, 3, v1
    v_mul_u32_u24 v6, 0x1800, v2
    v_lshl_add_u32 v6, v3, 7, v6
    v_add_u32 v7, {16*6144}, v6
    v_add_u32 v8, {32*6144}, v6
    s_lshr_b32 s6, {sXCD}, 2
    s_mul_i32 s6, s6, 7
    s_add_u32 s6, s6, s4
    s_sub_u32 s6, s6, 4
    s_mul_i32 s43, s6, {48*6144}
    s_movk_i32 s44, 512
    s_mov_b32 s10, {QW_BYTES}
    s_waitcnt lgkmcnt(0)
    """)
    A.label("XRP_GO")
    A(f"s_mov_b32 {sC}, 0")
    A.label("XRP_LOOP")
    A(f"""
    buffer_load_dword v9, v6, s[8:11], s43 offen
    buffer_load_dword v10, v7, s[8:11], s43 offen
    buffer_load_dword v11, v8, s[8:11], s43 offen
    s_add_u32 s43, s43, s44
    s_add_u32 {sC}, {sC}, 1
    s_cmp_lt_u32 {sC}, 12
    s_cbranch_scc1 XRP_LOOP
    s_branch P1_EXIT
    """)
    A.label("XR_LD")
    sOFS, sEND, sGRP, sCH, sWRAP = "s43", "s44", "s45", "s46", "s47"
    vO = 6
    A(f"""
    v_lshrrev_b32 v3, 4, v1
    s_cmp_eq_u32 {sW}, 4
    s_cbranch_scc0 XRL_U
    v_lshrrev_b32 v2, 3, v1
    v_and_b32 v4, 7, v1
    v_xor_b32 v4, v4, v3
    v_lshlrev_b32 v4, 4, v4
    v_mul_u32_u24 v{vO}, 0x500, v2
    v_add_u32 v{vO}, v{vO}, v4
    v_xor_b32 v4, 64, v{vO}
    v_add_u32 v{vO+1}, 9216, v4
    v_add_u32 v{vO+2}, {2*9216}, v{vO}
    v_add_u32 v{vO+3}, {3*9216}, v4
    s_mul_i32 s4, {sMT}, {128*1280}
    s_add_u32 {sEND}, s4, 1280
    s_lshl_b32 s5, {sR0}, 7
    s_add_u32 {sOFS}, s4, s5
    s_mov_b32 {sGRP}, {32*1280}
    s_mov_b32 {sCH}, {128 - 128*1280 + (1<<32)}
    s_movk_i32 {sWRAP}, 1280
    s_mov_b32 m0, 0
    s_mov_b32 s30, {X_BYTES}
    s_waitcnt lgkmcnt(0)
    s_branch XRL_GO
    """)
    A.label("XRL_U")
    A(f"""
    v_and_b32 v4, 15, v1
    v_lshlrev_b32 v2, 2, v3
    v_xor_b32 v4, v4, v2
    v_lshlrev_b32 v4, 4, v4
    v_mul_u32_u24 v{vO}, 0x500, v3
    v_add_u32 v{vO}, v{vO}, v4
    v_add_u32 v{vO+1}, {4*1280-1024}, v{vO}
    v_add_u32 v{vO+2}, {2*(4*1280-1024)}, v{vO}
    v_add_u32 v{vO+3}, {3*(4*1280-1024)}, v{vO}
    s_lshl_b32 s4, {sNT}, 8
    s_add_u32 {sEND}, s4, {640*1280}
    s_mul_i32 s5, {sR0}, {64*1280}
    s_add_u32 {sOFS}, s4, s5
    s_mov_b32 {sGRP}, {16*1280}
    s_mov_b32 {sCH}, 0
    s_mov_b32 {sWRAP}, {640*1280}
    s_movk_i32 m0, 16384
    s_mov_b32 s30, {U_BYTES}
    s_waitcnt lgkmcnt(0)
    s_mov_b32 s28, s32
    s_mov_b32 s29, s33
    """)
    A.label("XRL_GO")
    A(f"""
    s_mov_b32 s31, 0x00020000
    s_mov_b32 {sC}, 0
    """)
    A.label("XRL_LOOP")
    for g in range(4):
        for j in range(4):
            A(f"buffer_load_dwordx4 v{vO+j}, s[28:31], {sOFS} offen offset:{1024*j}{NT(opt,'x')} lds")
        A(f"""
        s_add_u32 m0, m0, 4096
        s_add_u32 {sOFS}, {sOFS}, {sGRP}
        """)
    A(f"""
    s_add_u32 {sOFS}, {sOFS}, {sCH}
    s_cmp_ge_u32 {sOFS}, {sEND}
    s_cselect_b32 s4, {sWRAP}, 0
    s_sub_u32 {sOFS}, {sOFS}, s4
    s_add_u32 m0, m0, 16384
    s_and_b32 m0, m0, {4*XSTAGE-1}
    s_add_u32 {sC}, {sC}, 1
    s_and_b32 s4, {sC}, 13
    s_cmp_eq_u32 s4, 1
    s_cbranch_scc1 XRL_LOOP
    s_cmp_eq_u32 {sC}, 2
    s_cbranch_scc0 XRL_W
    s_waitcnt vmcnt(16)
    """)
    A.label("XRL_W")
    it_flush(A, opt, True)
    A("s_waitcnt vmcnt(32)")
    barrier(A, opt)
    A(f"""
    s_cmp_lt_u32 {sC}, 10
    s_cbranch_scc1 XRL_LOOP
    """)
    it_flush(A, opt, True)
    A("s_waitcnt vmcnt(16)")
    barrier(A, opt)
    it_flush(A, opt, True)
    A("s_waitcnt vmcnt(0)")
    barrier(A, opt)
    it_flush(A, opt, True)
    A("s_branch P1_EXIT")
    A.label("XR_MFMA")
    sCST = "s43"
    vXR = 6
    vUR = 10
    vT = 12
    vACC = 20
    vF = 84
    A(f"""
    s_lshr_b32 s4, {sW}, 1
    s_and_b32 s5, {sW}, 1
    s_lshl_b32 s6, s4, 13
    v_and_b32 v3, 31, v1
    v_bfe_u32 v4, v1, 1, 3
    v_lshrrev_b32 v{vT}, 5, v1
    v_xor_b32 v4, v4, v{vT}
    v_lshlrev_b32 v4, 4, v4
    v_lshl_add_u32 v4, v3, 7, v4
    v_add_u32 v{vXR}, s6, v4
    v_xor_b32 v{vXR+1}, 32, v{vXR}
    v_xor_b32 v{vXR+2}, 64, v{vXR}
    v_xor_b32 v{vXR+3}, 96, v{vXR}
    v_bfe_u32 v2, v1, 4, 1
    v_bfe_u32 v3, v1, 2, 2
    s_lshl_b32 s6, s5, 1
    v_xor_b32 v4, s6, v3
    v_lshlrev_b32 v4, 6, v4
    v_lshl_add_u32 v4, v3, 8, v4
    v_lshl_add_u32 v4, v{vT}, 11, v4
    v_lshl_add_u32 v4, v2, 5, v4
    v_and_b32 v3, 3, v1
    v_lshl_add_u32 v4, v3, 3, v4
    v_add_u32 v{vUR}, 16384, v4
    v_xor_b32 v{vUR+1}, 64, v{vUR}
    s_mov_b32 {sCST}, 0
    s_mov_b32 {sC}, 0
    s_lshl_b32 s6, {sMT}, 2
    s_lshl_b32 s7, s4, 1
    s_add_u32 s6, s6, s7
    s_mul_i32 s6, s6, 40
    s_lshl_b32 s7, {sNT}, 3
    s_add_u32 s6, s6, s7
    s_lshl_b32 s7, s5, 2
    s_add_u32 s6, s6, s7
    s_lshl_b32 s50, s6, 10
    s_add_u32 s51, s50, 40960
    """)
    for i in range(0, 64, 2):
        A(f"v_mov_b64 {vr(vACC+i,2)}, 0")
    for i in range(0, 64, 2):
        A(f"v_mov_b64 {vr(vF+64+i,2)}, 0")
    A("s_waitcnt lgkmcnt(0)")

    def reads(s, buf):
        f = vF + 64 * buf + 16 * s
        r = []
        for tn in range(2):
            r.append(f"ds_read_b128 {vr(f+8+4*tn,4)}, v{vT+s} offset:{4096*tn}")
            for u in range(2):
                r.append(f"ds_read_b64_tr_b16 {vr(f+4*tn+2*u,2)}, v{vT+4+tn} offset:{s*4096+u*1024}")
        return [] if opt.get("nocomp") else r

    def mfmas(s, buf):
        f = vF + 64 * buf + 16 * s
        r = []
        for tm in range(2):
            for tn in range(2):
                acc = vACC + 32 * tm + 16 * tn
                r.append(f"v_mfma_f32_32x32x16_bf16 {vr(acc,16)}, {vr(f+4*tn,4)}, {vr(f+8+4*tm,4)}, {vr(acc,16)}")
        return [] if (opt.get("nocomp") or opt.get("nomfma")) else r

    A.label("XR_LOOP")
    for buf in range(2):
        for i in range(4):
            A(f"v_add_u32 v{vT+i}, {sCST}, v{vXR+i}")
        for i in range(2):
            A(f"v_add_u32 v{vT+4+i}, {sCST}, v{vUR+i}")
        A(f"""
        s_add_u32 {sCST}, {sCST}, {XSTAGE}
        s_and_b32 {sCST}, {sCST}, {4*XSTAGE-1}
        """)
        barrier(A, opt)
        rd = sum((reads(s_, buf) for s_ in range(4)), [])
        mf = sum((mfmas(s_, buf ^ 1) for s_ in range(4)), [])
        ri = 0
        for m in mf:
            A(m)
            for x in rd[ri:ri + 2]: A(x)
            ri += 2
        for x in rd[ri:]: A(x)
        A("s_waitcnt lgkmcnt(0)")
        it_flush(A, opt)
    A(f"""
    s_add_u32 {sC}, {sC}, 2
    s_cmp_lt_u32 {sC}, 10
    s_cbranch_scc1 XR_LOOP
    """)
    for s_ in range(4):
        for m in mfmas(s_, 1): A(m)
    A("s_nop 15")
    for tm in range(2):
        for i in range(4):
            a = vACC + 32 * tm + 8 * i
            o = vF + 16 * tm + 4 * i
            for j in range(4):
                A(f"v_cvt_pk_bf16_f32 v{o+j}, v{a+2*j}, v{a+2*j+1}")
            A(f"buffer_store_dwordx4 {vr(o,4)}, v5, s[24:27], s{50+tm} offen offset:{1024*i}{NT(opt,'w')}")


def gen_p2(A, opt):
    D = opt.get("p2d", 4)
    A.label("quip_p2_kernel")
    stamp_begin(A, opt)
    vACC = 8
    vF = 56
    NF = 9
    A(f"""
    s_load_dwordx2 s[8:9], s[0:1], 64
    s_load_dwordx2 s[12:13], s[0:1], 48
    s_cmp_ge_u32 s2, 256
    s_cbranch_scc1 P2_EXIT
    v_and_b32 v1, 63, v0
    v_lshrrev_b32 v2, 6, v0
    s_and_b32 s4, s2, 7
    v_readfirstlane_b32 s16, v2
    s_lshr_b32 s5, s2, 3
    s_lshr_b32 s6, s4, 1
    s_lshl_b32 s6, s6, 2
    s_lshr_b32 s7, s5, 3
    s_add_u32 s17, s6, s7
    s_and_b32 s6, s4, 1
    s_lshl_b32 s6, s6, 3
    s_and_b32 s7, s5, 7
    s_add_u32 s18, s6, s7
    s_mov_b32 s10, {WS_USED}
    s_mov_b32 s11, 0x00020000
    v_lshlrev_b32 v3, 4, v1
    s_cmp_lt_u32 s16, 4
    s_cbranch_scc1 P2_MFMA
    """)
    A(f"""
    s_sub_u32 s4, s16, 4
    s_lshl_b32 s21, s4, 12
    s_mul_i32 s22, s18, 122880
    s_add_u32 s22, s22, {W2F}
    s_add_u32 s22, s22, s21
    s_mov_b32 m0, s21
    s_mov_b32 s20, 0
    s_waitcnt lgkmcnt(0)
    """)
    stamp(A, opt, 1)
    A.label("P2L_LOOP")
    for i in range(4):
        A(f"buffer_load_dwordx4 v3, s[8:11], s22 offen offset:{1024*i}{NT(opt,'r')} lds")
    A(f"""
    s_add_u32 m0, m0, 12288
    s_add_u32 s22, s22, 12288
    s_add_u32 s20, s20, 1
    s_cmp_lt_u32 s20, {D}
    s_cbranch_scc1 P2L_LOOP
    s_waitcnt vmcnt({4*(D-2)})
    s_barrier
    s_cmp_lt_u32 s20, 10
    s_cbranch_scc1 P2L_LOOP
    """)
    for r in range(D - 3, -1, -1):
        A(f"""
        s_waitcnt vmcnt({4*r})
        s_barrier
        """)
    A("s_branch P2_EXIT")
    A.label("P2_MFMA")
    A(f"""
    s_mov_b32 s14, {OUT_BYTES}
    s_mov_b32 s15, 0x00020000
    v_add_u32 v4, 61440, v3
    s_lshl_b32 s4, s17, 2
    s_add_u32 s4, s4, s16
    s_mul_i32 s20, s4, 40960
    s_waitcnt lgkmcnt(0)
    """)
    stamp(A, opt, 1)

    def xload(kb):
        A(f"buffer_load_dwordx4 {ar(4*kb,4)}, v3, s[8:11], s20 offen offset:{1024*(kb&3)}{NT(opt,'r')}")
        if kb & 3 == 3:
            A("s_add_u32 s20, s20, 4096")

    for kb in range(4 * D):
        xload(kb)
    stamp(A, opt, 2)
    for i in range(48):
        A(f"v_mov_b32 v{vACC+i}, 0")
    A(f"""
    v_and_b32 v5, 31, v1
    v_lshrrev_b32 v6, 5, v1
    v_mul_u32_u24 v5, 0xc00, v5
    v_lshl_add_u32 v5, v6, 4, v5
    s_mul_i32 s4, s4, {32*3072}
    s_mul_i32 s5, s18, 192
    s_add_u32 s23, s4, s5
    """)
    if opt.get("stamp"): A("s_waitcnt lgkmcnt(0)")
    A("s_barrier")
    stamp(A, opt, 3)
    if opt.get("stamp"): A("s_waitcnt lgkmcnt(0)")

    def rd(j):
        off = j * 1024
        base, o = ("v3", off) if off < 61440 else ("v4", off - 61440)
        A(f"ds_read_b128 {vr(vF+4*(j%NF),4)}, {base} offset:{o}")

    RA = 6
    for j in range(RA):
        rd(j)
    for kb in range(40):
        c = kb // 4
        if kb % 4 == 0 and 1 <= c <= 8:
            A("s_barrier")
            if c == 5:
                stamp(A, opt, 4)
                if opt.get("stamp"): A("s_waitcnt lgkmcnt(0)")
        nxt = kb + 4 * D
        issued = min(40, nxt)
        A(f"s_waitcnt vmcnt({issued - kb - 1})")
        for nbl in range(3):
            j = kb * 3 + nbl
            outstanding_after = min(120, j + RA) - j - 1
            A(f"s_waitcnt lgkmcnt({outstanding_after})")
            acc = vACC + 16 * nbl
            A(f"v_mfma_f32_32x32x16_bf16 {vr(acc,16)}, {vr(vF+4*(j%NF),4)}, {ar(4*kb,4)}, {vr(acc,16)}")
            if j + RA < 120:
                rd(j + RA)
            if nbl == 0 and nxt < 40:
                xload(nxt)
    A("s_nop 15")
    stamp(A, opt, 6)
    for t in range(3):
        for p in range(2):
            a = vACC + 16 * t + 8 * p
            o = vF + (2 * t + p) * 4
            for j in range(4):
                A(f"v_cvt_pk_bf16_f32 v{o+j}, v{a+2*j}, v{a+2*j+1}")
            A(f"""
            s_nop 1
            v_permlane32_swap_b32 v{o}, v{o+2}
            v_permlane32_swap_b32 v{o+1}, v{o+3}
            buffer_store_dwordx4 {vr(o,4)}, v5, s[12:15], s23 offen offset:{64*t+32*p}{NT(opt,'y')}
            """)
    A.label("P2_EXIT")
    stamp_end(A, opt, 1, None)


def descriptor(name, vgpr, accum, sgpr):
    return f""".amdhsa_kernel {name}
  .amdhsa_next_free_vgpr {vgpr}
  .amdhsa_next_free_sgpr {sgpr}
  .amdhsa_accum_offset {accum}
  .amdhsa_group_segment_fixed_size 0
  .amdhsa_kernarg_size 72
  .amdhsa_user_sgpr_count 2
  .amdhsa_user_sgpr_kernarg_segment_ptr 1
  .amdhsa_system_sgpr_workgroup_id_x 1
  .amdhsa_float_denorm_mode_32 3
.end_amdhsa_kernel
"""


def generate(opt):
    global X_BYTES, QW_BYTES, U_BYTES, V_BYTES
    if opt.get("nold"):
        X_BYTES = QW_BYTES = U_BYTES = V_BYTES = 0
    out = HEADER
    out += f"; @launch kernel=quip_p1_kernel grid=(256,1,1) block=(512,1,1) lds={LDS1 + (2048 if opt.get('stamp') else 0)}\n"
    out += f"; @launch kernel=quip_p2_kernel grid=(256,1,1) block=(448,1,1) lds={LDS2}\n"
    out += '.amdgcn_target "amdgcn-amd-amdhsa--gfx950"\n.text\n'
    A = Asm()
    out += ".globl quip_p1_kernel\n.p2align 8\n.type quip_p1_kernel,@function\n"
    gen_p1(A, opt)
    out += A.text()
    A = Asm()
    out += ".globl quip_p2_kernel\n.p2align 8\n.type quip_p2_kernel,@function\n"
    gen_p2(A, opt)
    out += A.text()
    out += "CODE_END:\n"
    out += '.section .rodata,"a"\n.p2align 6\n'
    nv = 256 if opt.get("stamp") else max(52 + 32 * opt.get("nq", 4), 212)
    out += descriptor("quip_p1_kernel", nv, nv, 96)
    out += ".p2align 6\n"
    out += descriptor("quip_p2_kernel", 92 + 160, 92, 96)
    return out


if __name__ == "__main__":
    path = sys.argv[1] if len(sys.argv) > 1 else "standalone__weight_only_int_quip__prompt.s"
    opt = {}
    for a in sys.argv[2:]:
        k, _, v = a.partition("=")
        opt[k] = int(v) if v else 1
    open(path, "w").write(generate(opt))
    print("wrote", path)
```

```python
import sys

KNAME = "standalone__weight_only_int_quip__prompt_kernel"
HEADER = """; Kernarg layout for this problem (72 bytes, ptrs only, base s[0:1]):
"""

XRF = 0
W2F = 64 * 40 * 1024
FLG = W2F + 48 * 40 * 1024
WS_USED = FLG + 256 * 256

X_BYTES = 2048 * 640 * 2
QW_BYTES = 640 * 1536 * 4
SC_BYTES = 20 * 1536 * 2
U_BYTES = 640 * 640 * 2
V_BYTES = 1536 * 1536 * 2
OUT_BYTES = 2048 * 1536 * 2

VSTAGE = 32768
ABASE = 3 * VSTAGE
ASTAGE = 12288
TBL = ABASE + 2 * ASTAGE
LDS1 = TBL + 24576
QE = 112
XSTAGE = 32768
POLL_MAX = 40000


class Asm:
    def __init__(self):
        self.lines = []

    def __call__(self, s):
        for l in s.strip("\n").split("\n"):
            self.lines.append("    " + l.strip() if not l.strip().endswith(":") else l.strip())

    def label(self, s):
        self.lines.append(s + ":")

    def comment(self, s):
        self.lines.append("    ; " + s)

    def text(self):
        return "\n".join(self.lines) + "\n"


def vr(a, n):
    return f"v[{a}:{a+n-1}]"


STAMP_OFS = 32 << 20
NSTAMP = 8


def stamp(A, opt, i, wait=False):
    if opt.get("stamp"):
        A(f"s_memrealtime s[{64+2*i}:{65+2*i}]")
        if wait: A("s_waitcnt lgkmcnt(0)")


def stamp_begin(A, opt):
    if opt.get("stamp"):
        for i in range(1, NSTAMP):
            A(f"s_mov_b32 s{64+2*i}, 0")
    stamp(A, opt, 0)


def stamp_end(A, opt):
    if opt.get("stamp"):
        A("s_waitcnt vmcnt(0) lgkmcnt(0)")
        stamp(A, opt, NSTAMP - 1)
        A(f"""
        s_load_dwordx2 s[56:57], s[0:1], 64
        s_waitcnt lgkmcnt(0)
        s_mov_b32 s58, 0x7fffffff
        s_mov_b32 s59, 0x00020000
        v_lshrrev_b32 v1, 6, v0
        v_lshlrev_b32 v1, 5, v1
        s_lshl_b32 s4, s2, 8
        s_add_u32 s4, s4, {STAMP_OFS}
        """)
        for i in range(NSTAMP):
            A(f"v_mov_b32 v{4+i}, s{64+2*i}")
        A("""
        buffer_store_dwordx4 v[4:7], v1, s[56:59], s4 offen
        buffer_store_dwordx4 v[8:11], v1, s[56:59], s4 offen offset:16
        """)
    A("s_endpgm")


def poll_check(A, vdst, dc, again):
    A(f"v_cmp_ne_u32 vcc, 0, {vdst}")
    if dc & 0xffffffff: A(f"s_or_b32 vcc_lo, vcc_lo, {hex(dc & 0xffffffff)}")
    if dc >> 32: A(f"s_or_b32 vcc_hi, vcc_hi, {hex(dc >> 32)}")
    A(f"""
    s_cmp_eq_u64 vcc, -1
    s_cbranch_scc0 {again}
    """)


def poll(A, name, srd, soff, vaddr, vdst, dc, scnt="s7", sleep=0):
    A(f"s_mov_b32 {scnt}, {POLL_MAX}")
    if sleep: A(f"s_branch {name}_1")
    A.label(name)
    if sleep:
        A(f"s_sleep {sleep}")
        A.label(name + "_1")
    A(f"""
    s_sub_u32 {scnt}, {scnt}, 1
    s_cbranch_scc1 {name}_X
    buffer_load_dword {vdst}, {vaddr}, {srd}, {soff} offen sc1
    s_waitcnt vmcnt(0)
    """)
    A.label(name + "_C")
    poll_check(A, vdst, dc, name)
    A.label(name + "_X")


DC_X = 0xC00003FFFFFFFFFF
DC_W = 0xFFFFFC0000000000
DBG = "s[92:95]"


def p2_tile(A):
    A(f"""
    s_and_b32 s38, s37, 1
    s_lshl_b32 s38, s38, 3
    s_and_b32 s39, s3, 7
    s_add_u32 s38, s38, s39
    s_lshr_b32 s39, s37, 1
    s_lshl_b32 s39, s39, 2
    s_lshr_b32 s4, s3, 3
    s_add_u32 s39, s39, s4
    s_lshl_b32 s45, s38, 4
    s_add_u32 s45, s45, s39
    s_lshl_b32 s45, s45, 8
    s_add_u32 s45, s45, {FLG}
    """)


def publish(A, opt, sflag, sshift):
    A(f"""
    v_mov_b32 v2, 1
    v_lshlrev_b32 v3, {sshift}, v1
    s_waitcnt vmcnt(0)
    s_mov_b64 exec, 0xffff
    buffer_store_dword v2, v3, s[24:27], {sflag} offen sc1
    s_mov_b64 exec, -1
    """)
    stamp(A, opt, 4)


def gen_kernel(A, opt):
    A.label(KNAME)
    stamp_begin(A, opt)
    A("""
    s_load_dwordx2 s[8:9], s[0:1], 8
    s_load_dwordx2 s[12:13], s[0:1], 40
    s_load_dwordx2 s[16:17], s[0:1], 16
    s_load_dwordx2 s[20:21], s[0:1], 24
    s_load_dwordx2 s[28:29], s[0:1], 0
    s_load_dwordx2 s[32:33], s[0:1], 32
    s_load_dwordx2 s[24:25], s[0:1], 64
    s_load_dwordx2 s[92:93], s[0:1], 56
    s_load_dwordx2 s[96:97], s[0:1], 48
    s_cmp_ge_u32 s2, 256
    s_cbranch_scc1 K_EXIT
    v_and_b32 v1, 63, v0
    v_lshrrev_b32 v2, 6, v0
    s_getpc_b64 s[4:5]
    """)
    A.label("P1_PC")
    A("""
    v_readfirstlane_b32 s36, v2
    v_lshlrev_b32 v3, 7, v1
    v_add_u32 v4, 0x2000, v3
    v_min_u32 v4, CODE_END-P1_PC-4, v4
    s_lshr_b32 s3, s2, 3
    s_and_b32 s37, s2, 7
    s_cmp_lg_u32 s36, 7
    s_cbranch_scc1 P1_NOPF
    global_load_dword v60, v3, s[4:5]
    global_load_dword v61, v4, s[4:5]
    """)
    A.label("P1_NOPF")
    A(f"""
    s_mov_b32 s11, 0x00020000
    s_mov_b32 s15, 0x00020000
    s_mov_b32 s27, 0x00020000
    s_mov_b32 s26, {WS_USED}
    s_movk_i32 s94, 256
    s_mov_b32 s95, 0x00020000
    s_mov_b32 s98, {OUT_BYTES}
    s_mov_b32 s99, 0x00020000
    v_lshlrev_b32 v5, 4, v1
    s_cmp_ge_u32 s3, 21
    s_cbranch_scc1 P1_XR
    """)
    gen_w2(A, opt)
    A.label("P1_XR")
    gen_xr(A, opt)
    gen_p2(A, opt)
    A.label("K_EXIT")
    stamp_end(A, opt)


def gen_w2(A, opt):
    NQ = opt.get("nq", 2)
    RING = 3 * VSTAGE
    RG = opt.get("rg", 2)
    sW, sLOC, sXCD = "s36", "s3", "s37"
    sMI, sNI = "s40", "s41"
    sC = "s49"
    sVOFS = "s43"
    vVO = 6
    A(f"""
    s_mul_i32 s4, {sLOC}, 171
    s_lshr_b32 s4, s4, 9
    s_mul_i32 s5, s4, 3
    s_sub_u32 s5, {sLOC}, s5
    s_lshr_b32 s6, {sXCD}, 2
    s_mul_i32 s6, s6, 7
    s_add_u32 {sMI}, s6, s4
    s_and_b32 s6, {sXCD}, 3
    s_mul_i32 s6, s6, 3
    s_add_u32 {sNI}, s6, s5
    s_mul_i32 s42, {sMI}, 3
    s_mov_b32 s56, s4
    s_mov_b32 s57, s5
    """)
    W = opt.get("rw", 1)
    if W > 1:
        ra, rb = opt.get("rota", 1), opt.get("rotb", 1)
        P2 = sum((i % W) << (4 * i) for i in range(2 * W))
        A(f"""
        s_mul_i32 s6, s4, {ra}
        s_mul_i32 s7, s5, {rb}
        s_add_u32 s6, s6, s7
        """)
        if W in (2, 4):
            A(f"s_and_b32 s6, s6, {W-1}")
        else:
            M = {3: 86, 6: 43}[W]
            A(f"""
            s_mul_i32 s7, s6, {M}
            s_lshr_b32 s7, s7, 8
            s_mul_i32 s7, s7, {W}
            s_sub_u32 s6, s6, s7
            """)
        ones = sum(1 << (4 * i) for i in range(W))
        A(f"""
        s_lshl_b32 s6, s6, 2
        s_mov_b32 s60, {P2 & 0xffffffff}
        s_mov_b32 s61, {P2 >> 32}
        s_lshr_b64 s[60:61], s[60:61], s6
        s_and_b32 s6, s60, {(1 << (4*W)) - 1}
        s_mov_b32 s60, 0
        s_mov_b32 s61, 0
        s_mov_b32 s7, 0
        """)
        for j in range(12 // W - 1, -1, -1):
            A(f"""
            s_lshl_b64 s[60:61], s[60:61], {4*W}
            s_add_u32 s6, s6, {(ones * W * j) & 0xffffffff}
            s_or_b64 s[60:61], s[60:61], s[6:7]
            s_sub_u32 s6, s6, {(ones * W * j) & 0xffffffff}
            """)
    else:
        A("""
        s_mov_b32 s60, 0x76543210
        s_mov_b32 s61, 0xba98
        """)
    A(f"""
    s_sub_u32 s4, {sW}, 4
    s_cmp_lt_u32 s4, 3
    s_cbranch_scc1 W2_DEQ
    s_mov_b32 s14, {V_BYTES}
    v_lshrrev_b32 v2, 4, v1
    v_and_b32 v3, 15, v1
    v_lshlrev_b32 v4, 1, v2
    v_xor_b32 v3, v3, v4
    v_lshlrev_b32 v3, 4, v3
    v_mul_u32_u24 v4, 0xc00, v2
    v_add_u32 v{vVO}, v3, v4
    v_add_u32 v{vVO+1}, 11264, v{vVO}
    v_xor_b32 v3, 0x80, v{vVO}
    v_add_u32 v{vVO+2}, {2*11264}, v3
    v_add_u32 v{vVO+3}, {3*11264}, v3
    s_lshl_b32 {sVOFS}, {sNI}, 8
    s_cmp_lt_u32 {sW}, 4
    s_cbranch_scc1 W2_MFMA
    """)

    def v_group():
        for j in range(4):
            A(f"buffer_load_dwordx4 v{vVO+j}, s[12:15], {sVOFS} offen offset:{1024*j} lds")

    GPC, XPC = opt.get("gpc", 4), 11
    for g in range(1, 8):
        for j in range(4):
            A(f"v_add_u32 v{vVO+4*g+j}, {g*16*3072}, v{vVO+j}")
    p2_tile(A)
    A(f"""
    v_mov_b32 v40, 0
    v_lshlrev_b32 v41, 2, v1
    s_mov_b32 s44, {sVOFS}
    s_mov_b32 m0, {VSTAGE}
    s_mov_b32 {sC}, 1
    s_waitcnt lgkmcnt(0)
    """)
    stamp(A, opt, 1)
    A.label("W2L_LOOP")
    A(f"""
    s_lshr_b64 s[60:61], s[60:61], 4
    s_and_b32 s4, s60, 15
    s_mul_i32 s4, s4, 393216
    s_add_u32 {sVOFS}, s44, s4
    s_cmp_lg_u32 {sC}, {GPC}
    s_cbranch_scc1 W2L_NG
    buffer_load_dword v42, v40, {DBG}, 0 offen sc1
    """)
    A.label("W2L_NG")
    A(f"""
    s_cmp_lg_u32 {sC}, {XPC}
    s_cbranch_scc1 W2L_NX
    buffer_load_dword v42, v41, s[24:27], s45 offen sc1
    """)
    A.label("W2L_NX")
    for g in range(8):
        if g == 6: A("s_waitcnt vmcnt(54)")
        for j in range(4):
            A(f"buffer_load_dwordx4 v{vVO+4*g+j}, s[12:15], {sVOFS} offen offset:{1024*j} lds")
            if j == 3: A("s_add_u32 m0, m0, 4096")
            if j == 3 and g < 7: A("s_nop 0")
    A(f"""
    s_cmp_ge_u32 m0, {RING}
    s_cselect_b32 m0, 0, m0
    s_cmp_lg_u32 {sC}, 1
    s_cbranch_scc1 W2L_NT
    """)
    A("s_barrier")
    if opt.get("prio", 1): A("s_setprio 3")
    A.label("W2L_NT")
    A(f"""
    s_waitcnt vmcnt(32)
    s_cmp_lg_u32 {sC}, {GPC}
    s_cbranch_scc1 W2L_G_X
    """)
    poll_check(A, "v42", 0, "W2L_GS")
    A.label("W2L_G_X")
    A(f"""
    s_add_u32 {sC}, {sC}, 1
    s_barrier
    s_cmp_lt_u32 {sC}, 12
    s_cbranch_scc1 W2L_LOOP
    s_setprio 0
    """)
    XE = opt.get("xe", 16)
    poll_check(A, "v42", DC_X, "W2L_XS")
    A(f"""
    s_lshl_b32 s4, s38, 2
    s_add_u32 s4, s4, 3
    s_mul_i32 s20, s4, 40960
    """)
    for kb in range(XE): xload(A, opt, kb)
    A(f"""
    s_waitcnt vmcnt({XE})
    s_barrier
    """)
    stamp(A, opt, 2)
    for kb in range(XE, 40): xload(A, opt, kb)
    A("s_branch P2_MM2")
    A.label("W2L_XS")
    A("""
    s_waitcnt vmcnt(0)
    s_barrier
    s_branch P2_MM0
    """)
    A.label("W2L_GS")
    A(f"s_mov_b32 s7, {POLL_MAX}")
    A.label("W2L_G")
    A(f"""
    s_sub_u32 s7, s7, 1
    s_cbranch_scc1 W2L_G_X
    buffer_load_dword v42, v40, {DBG}, 0 offen sc1
    s_waitcnt vmcnt(0)
    """)
    poll_check(A, "v42", 0, "W2L_G")
    A("s_branch W2L_G_X")
    A.label("W2_DEQ")
    sB = "s38"
    sQOFS = "s43"
    vQO = 6
    vAW = 14
    vTB = 22
    U_ = 24
    Ft = 40
    O = 48
    vQ = 52
    QS = 32
    A(f"""
    s_mov_b32 {sB}, s4
    s_add_u32 s4, s42, {sB}
    s_cmp_ge_u32 s4, 40
    s_cbranch_scc1 W2D_IDLE
    s_mul_i32 s44, s4, {16*6144}
    s_mov_b64 s[62:63], s[60:61]
    s_lshr_b32 s6, s4, 1
    s_lshr_b32 s5, s42, 1
    s_sub_u32 s6, s6, s5
    s_mul_i32 s6, s6, 6144
    s_add_u32 s6, s6, {TBL}
    s_mov_b32 s10, {QW_BYTES}
    v_lshrrev_b32 v2, 5, v1
    v_and_b32 v3, 31, v1
    v_lshlrev_b32 v4, 4, v3
    v_mul_u32_u24 v{vQO}, 0x1800, v2
    v_add_u32 v{vQO}, v{vQO}, v4
    v_add_u32 v{vTB}, s6, v4
    """)
    QR = opt.get("qr", 3)
    A(f"s_mul_i32 s57, s57, {QR}")
    for i in range(7, -1, -1):
        A(f"""
        s_add_u32 s4, s57, {i}
        s_and_b32 s4, s4, 7
        s_mul_i32 s4, s4, 12288
        v_add_u32 v{vQO+i}, s4, v{vQO}
        """)
    A("s_waitcnt lgkmcnt(0)")
    stamp(A, opt, 1)

    def q_next():
        A(f"""
        s_and_b32 s4, s60, 15
        s_lshr_b64 s[60:61], s[60:61], 4
        s_lshl_b32 s4, s4, 9
        s_add_u32 {sQOFS}, s44, s4
        """)

    def q_issue(u):
        q = vQ + QS * u
        q_next()
        for i in range(8):
            A(f"buffer_load_dwordx4 {vr(q+4*i,4)}, v{vQO+i}, s[8:11], {sQOFS} offen")

    def t_read(n):
        u = U_ + 8 * (n & 1)
        A(f"""
        s_and_b32 s4, s62, 15
        s_lshr_b64 s[62:63], s[62:63], 4
        s_lshl_b32 s4, s4, 9
        v_add_u32 v{vTB+1}, s4, v{vTB}
        ds_read_b128 {vr(u,4)}, v{vTB+1}
        ds_read_b128 {vr(u+4,4)}, v{vTB+1} offset:12288
        """)

    for u in range(NQ):
        q_issue(u)
    A(f"""
    s_lshl_b32 s4, {sB}, 12
    s_add_u32 s4, s4, {ABASE}
    v_bfe_u32 v3, v1, 1, 4
    v_xor_b32 v4, v3, v2
    v_lshlrev_b32 v4, 4, v4
    v_lshl_add_u32 v4, v2, 8, v4
    v_and_b32 v3, 1, v1
    v_lshl_add_u32 v4, v3, 3, v4
    v_add_u32 v{vAW}, s4, v4
    """)
    for i in range(7, -1, -1):
        A(f"""
        s_add_u32 s4, s57, {i}
        s_and_b32 s4, s4, 7
        s_lshl_b32 s5, s4, 5
        s_lshl_b32 s4, s4, 9
        v_xor_b32 v3, s5, v{vAW}
        v_add_u32 v{vAW+i}, s4, v3
        """)
    p2_tile(A)
    A(f"""
    v_lshlrev_b32 v2, 2, v1
    s_mov_b32 {sC}, 0
    s_barrier
    """)
    if opt.get("prio", 1): A("s_setprio 3")
    t_read(0)
    A("s_waitcnt lgkmcnt(0)")
    assert 12 % NQ == 0
    UN = NQ if NQ % 2 == 0 else 2 * NQ
    assert 12 % UN == 0
    A.label("W2D_LOOP")
    for n in range(UN):
        u = n % NQ
        q = vQ + QS * u
        S = U_ + 8 * (n & 1)
        t_read(n + 1)
        q_next()
        A(f"""
        s_cmp_lt_u32 {sC}, {12-NQ-n+1}
        s_waitcnt vmcnt({8*(NQ-1)})
        s_cbranch_scc1 W2D_NT{n}
        s_waitcnt vmcnt({8*min(NQ-1, max(0, UN-1-n))})
        """)
        A.label(f"W2D_NT{n}")
        if n == UN - 1:
            A(f"""
            s_cmp_lg_u32 {sC}, {12-UN}
            s_cbranch_scc1 W2D_NP
            buffer_load_dword v3, v2, s[24:27], s45 offen sc1
            """)
            A.label("W2D_NP")
        A(f"s_cmp_lt_u32 {sC}, {12-NQ-n}")
        for i in range(8):
            qq = q + 4 * i
            f = Ft + 4 * (i & 1)
            o = O + 2 * (i & 1)
            A(f"""
            v_fma_f32 v{f}, v{qq}, v{S}, v{S+4}
            v_fma_f32 v{f+1}, v{qq+1}, v{S+1}, v{S+5}
            v_fma_f32 v{f+2}, v{qq+2}, v{S+2}, v{S+6}
            v_fma_f32 v{f+3}, v{qq+3}, v{S+3}, v{S+7}
            v_cvt_pk_bf16_f32 v{o}, v{f}, v{f+1}
            v_cvt_pk_bf16_f32 v{o+1}, v{f+2}, v{f+3}
            ds_write_b64 v{vAW+i}, {vr(o,2)} offset:{ASTAGE*(n&1)}
            """)
            if (i + 1) % RG == 0:
                A(f"s_cbranch_scc0 W2D_SK{n}_{i}")
                for ii in range(i + 1 - RG, i + 1):
                    A(f"buffer_load_dwordx4 {vr(q+4*ii,4)}, v{vQO+ii}, s[8:11], {sQOFS} offen")
                A.label(f"W2D_SK{n}_{i}")
        A("""
        s_waitcnt lgkmcnt(0)
        s_barrier
        """)
    A(f"""
    s_add_u32 {sC}, {sC}, {UN}
    s_cmp_lt_u32 {sC}, 12
    s_cbranch_scc1 W2D_LOOP
    s_setprio 0
    s_lshl_b32 s4, s38, 2
    s_add_u32 s4, s4, s36
    s_sub_u32 s4, s4, 4
    s_mul_i32 s20, s4, 40960
    s_mov_b32 s7, {POLL_MAX}
    s_waitcnt vmcnt(0)
    s_branch P2_X_C
    """)
    A.label("W2D_IDLE")
    A(f"""
    s_mov_b32 {sC}, 0
    s_waitcnt lgkmcnt(0)
    """)
    A.label("W2D_IDL")
    A(f"""
    s_barrier
    s_add_u32 {sC}, {sC}, 1
    s_cmp_lt_u32 {sC}, 13
    s_cbranch_scc1 W2D_IDL
    s_branch P2_MM0
    """)
    A.label("W2_MFMA")
    sCST = "s45"
    vAR = 10
    vBR = 14
    vT0, vT1 = 16, 17
    vST = 18
    vACC = 20
    vF = 44
    P = vF
    A(f"""
    s_lshl_b32 s4, {sW}, 13
    s_mov_b32 m0, s4
    s_mul_i32 s4, {sW}, {32*3072}
    s_add_u32 {sVOFS}, {sVOFS}, s4
    s_and_b32 s4, s60, 15
    s_mul_i32 s4, s4, 393216
    s_add_u32 {sVOFS}, {sVOFS}, s4
    s_lshr_b32 s6, s42, 1
    s_mul_i32 s6, s6, 3072
    s_mov_b32 s18, {SC_BYTES}
    s_mov_b32 s19, 0x00020000
    s_mov_b32 s22, {SC_BYTES}
    s_mov_b32 s23, 0x00020000
    v_and_b32 v2, 0xff, v0
    v_lshlrev_b32 v19, 3, v2
    s_waitcnt lgkmcnt(0)
    """)
    stamp(A, opt, 1)
    for j in range(2):
        A(f"""
        buffer_load_dwordx2 {vr(P+4*j,2)}, v19, s[16:19], s6 offen offset:{2048*j}
        buffer_load_dwordx2 {vr(P+4*j+2,2)}, v19, s[20:23], s6 offen offset:{2048*j}
        """)
    A(f"""
    s_add_u32 s6, s6, 4096
    buffer_load_dwordx2 {vr(P+8,2)}, v19, s[16:19], s6 offen
    buffer_load_dwordx2 {vr(P+10,2)}, v19, s[20:23], s6 offen
    """)
    v_group()
    A(f"""
    s_add_u32 m0, m0, 4096
    s_add_u32 {sVOFS}, {sVOFS}, {16*3072}
    """)
    v_group()
    A(f"""
    v_lshlrev_b32 v19, 1, v19
    v_add_u32 v19, {TBL}, v19
    v_and_b32 v2, 15, v1
    v_lshrrev_b32 v3, 4, v1
    v_xor_b32 v4, v2, v3
    v_lshlrev_b32 v4, 4, v4
    v_lshl_add_u32 v4, v2, 8, v4
    v_add_u32 v{vAR}, {ABASE}, v4
    v_xor_b32 v{vAR+1}, 64, v{vAR}
    v_xor_b32 v{vAR+2}, 128, v{vAR}
    v_xor_b32 v{vAR+3}, 192, v{vAR}
    v_bfe_u32 v2, v1, 2, 2
    v_and_b32 v4, 1, v3
    v_lshl_or_b32 v4, v4, 2, v2
    s_lshl_b32 s5, {sW}, 1
    v_xor_b32 v4, s5, v4
    v_lshlrev_b32 v4, 5, v4
    v_lshl_add_u32 v2, v3, 3, v2
    v_lshl_add_u32 v4, v2, 8, v4
    v_and_b32 v2, 3, v1
    v_lshl_add_u32 v{vBR}, v2, 3, v4
    v_xor_b32 v{vBR+1}, 32, v{vBR}
    s_mov_b32 {sCST}, 0
    s_mov_b32 {sC}, 0
    s_lshl_b32 s4, {sNI}, 2
    s_add_u32 s4, s4, {sW}
    s_mul_i32 s5, s4, 40
    s_add_u32 s5, s5, s42
    s_lshl_b32 s5, s5, 10
    s_add_u32 s50, s5, {W2F}
    s_mul_i32 s5, s4, 171
    s_lshr_b32 s5, s5, 9
    s_mul_i32 s6, s5, 3
    s_sub_u32 s6, s4, s6
    s_mul_i32 s6, s6, 14
    s_add_u32 s6, s6, {sMI}
    s_lshl_b32 s6, s6, 2
    s_lshl_b32 s5, s5, 8
    s_add_u32 s5, s5, s6
    s_add_u32 s51, s5, {FLG}
    s_mov_b32 s53, 12
    s_mov_b32 s54, {hex((127+149-QE) << 23)}
    s_mov_b32 s55, {hex((127+149-QE) << 23)}
    s_mov_b32 s46, 0xffff0000
    s_mov_b32 s47, {hex((127+QE) << 23)}
    s_mov_b32 s48, {hex(0x80000000 | ((127+QE-149) << 23))}
    v_bfe_u32 v3, v1, 4, 1
    v_lshrrev_b32 v4, 5, v1
    v_and_b32 v{vST}, 15, v1
    v_lshl_add_u32 v{vST}, v3, 5, v{vST}
    v_lshl_add_u32 v{vST}, v4, 4, v{vST}
    v_lshlrev_b32 v{vST}, 4, v{vST}
    """)
    for i in range(0, 24, 2):
        A(f"v_mov_b64 {vr(vACC+i,2)}, 0")
    for i in range(0, 80, 2):
        A(f"v_mov_b64 {vr(vF+80+i,2)}, 0")
    for j in range(3):
        q = P + 4 * j
        u = P + 16 + 8 * j
        A(f"""
        s_waitcnt vmcnt({8 + 4 - 2*j})
        v_lshlrev_b32 v{u}, 16, v{q}
        v_and_b32 v{u+1}, s46, v{q}
        v_lshlrev_b32 v{u+2}, 16, v{q+1}
        v_and_b32 v{u+3}, s46, v{q+1}
        v_lshlrev_b32 v{u+4}, 16, v{q+2}
        v_and_b32 v{u+5}, s46, v{q+2}
        v_lshlrev_b32 v{u+6}, 16, v{q+3}
        v_and_b32 v{u+7}, s46, v{q+3}
        """)
        for i in range(4): A(f"v_mul_f32 v{u+4+i}, s48, v{u+4+i}")
        for i in range(4): A(f"v_mul_f32 v{u+4+i}, v{u+i}, v{u+4+i}")
        for i in range(4): A(f"v_mul_f32 v{u+i}, s47, v{u+i}")
        A(f"""
        ds_write_b128 v19, {vr(u,4)} offset:{4096*j}
        ds_write_b128 v19, {vr(u+4,4)} offset:{4096*j+12288}
        """)
    A("""
    s_waitcnt lgkmcnt(0)
    s_barrier
    s_waitcnt vmcnt(0)
    """)

    def reads(s, buf):
        fa = vF + buf * 80 + 20 * s
        fb = fa + 12
        r = []
        for b in range(3):
            r.append(f"ds_read_b128 {vr(fa+4*b,4)}, v{vAR+s} offset:{4096*b + ASTAGE*buf}")
        for t in range(2):
            for u in range(2):
                r.append(f"ds_read_b64_tr_b16 {vr(fb+4*t+2*u,2)}, v{vT0+t} offset:{(32*s+4*u)*256}")
        return r

    def mfmas(s, buf):
        fa = vF + buf * 80 + 20 * s
        fb = fa + 12
        r = []
        for b in range(3):
            for t in range(2):
                acc = vACC + (b * 2 + t) * 4
                r.append(f"v_mfma_f32_16x16x32_bf16 {vr(acc,4)}, {vr(fa+4*b,4)}, {vr(fb+4*t,4)}, {vr(acc,4)}")
        return r

    A.label("W2M_LOOP")
    for buf in range(2):
        A(f"""
        v_add_u32 v{vT0}, {sCST}, v{vBR}
        v_add_u32 v{vT1}, {sCST}, v{vBR+1}
        s_add_u32 {sCST}, {sCST}, {VSTAGE}
        s_cmp_ge_u32 {sCST}, {RING}
        s_cselect_b32 {sCST}, 0, {sCST}
        s_barrier
        """)
        rd = sum((reads(s, buf) for s in range(4)), [])
        mf = sum((mfmas(s, buf ^ 1) for s in range(4)), [])
        seq = rd[:4]
        ri = 4
        for m in mf:
            seq.append(m)
            seq += rd[ri:ri + 1]
            ri += 1
        seq += rd[ri:]
        for x in seq: A(x)
        A("s_waitcnt lgkmcnt(0)")
        if opt.get("stamp") and buf == 0:
            A(f"""
            s_cmp_lg_u32 {sC}, 0
            s_cbranch_scc1 W2M_ST
            """)
            stamp(A, opt, 2, True)
            A.label("W2M_ST")
    A(f"""
    s_add_u32 {sC}, {sC}, 2
    s_cmp_lt_u32 {sC}, 12
    s_cbranch_scc1 W2M_LOOP
    s_setprio 3
    """)
    for s_ in range(4):
        for m in mfmas(s_, 1): A(m)
    A("s_nop 7")
    stamp(A, opt, 3)
    for b in range(3):
        a = vACC + 8 * b
        o = vF + 4 * b
        for j in range(4):
            A(f"v_pk_mul_f32 {vr(a+2*j,2)}, {vr(a+2*j,2)}, s[54:55]")
        A(f"""
        v_cvt_pk_bf16_f32 v{o}, v{a}, v{a+1}
        v_cvt_pk_bf16_f32 v{o+1}, v{a+2}, v{a+3}
        v_cvt_pk_bf16_f32 v{o+2}, v{a+4}, v{a+5}
        v_cvt_pk_bf16_f32 v{o+3}, v{a+6}, v{a+7}
        s_nop 1
        v_permlane32_swap_b32 v{o}, v{o+2}
        v_permlane32_swap_b32 v{o+1}, v{o+3}
        buffer_store_dwordx4 {vr(o,4)}, v{vST}, s[24:27], s50 offen offset:{1024*b} sc1
        """)
        if b == 0:
            A(f"""
            s_cmp_eq_u32 {sMI}, 13
            s_cbranch_scc1 P2_PUB
            """)
    A("s_branch P2_PUB")


def gen_xr(A, opt):
    sW, sLOC, sXCD = "s36", "s3", "s37"
    sMT, sNT = "s40", "s41"
    sC = "s48"
    A(f"""
    s_sub_u32 s4, {sLOC}, 21
    s_cmp_ge_u32 s4, 5
    s_cselect_b32 s5, 1, 0
    s_cselect_b32 s6, 5, 0
    s_sub_u32 {sNT}, s4, s6
    s_lshl_b32 s7, {sXCD}, 1
    s_add_u32 {sMT}, s7, s5
    s_cmp_ge_u32 {sLOC}, 31
    s_cbranch_scc1 IDLE_WG
    s_cmp_lt_u32 {sW}, 4
    s_cbranch_scc1 XR_MFMA
    s_cmp_lt_u32 {sW}, 6
    s_cbranch_scc1 XR_LD
    """)
    A(f"""
    v_mov_b32 v2, 0
    s_waitcnt lgkmcnt(0)
    """)
    for i in range(5): A("s_barrier")
    A(f"""
    s_cmp_lg_u32 {sW}, 6
    s_cbranch_scc1 XR_G_X
    """)
    poll(A, "XR_G", DBG, "0", "v2", "v3", 0)
    for i in range(5): A("s_barrier")
    A("s_branch P2_MM0")
    A.label("IDLE_WG")
    A(f"""
    v_mov_b32 v2, 0
    v_mov_b32 v3, 1
    s_cmp_lg_u32 {sXCD}, 0
    s_waitcnt lgkmcnt(0)
    s_cbranch_scc1 IDLE_G0
    v_mov_b32 v6, 0
    v_mov_b32 v7, 0
    v_mov_b32 v8, 0
    v_mov_b32 v9, 0
    s_lshl_b32 s4, {sW}, 13
    s_add_u32 s4, s4, {FLG}
    s_add_u32 s5, s4, 4096
    """)
    for i in range(8):
        A(f"buffer_store_dwordx4 v[6:9], v5, s[24:27], s{4+i//4} offen offset:{1024*(i&3)} sc1")
    A("s_waitcnt vmcnt(0)")
    A.label("IDLE_G0")
    A(f"""
    s_barrier
    s_cmp_lg_u32 {sW}, 0
    s_cbranch_scc1 IDLE_G_X
    s_cmp_lg_u32 {sXCD}, 0
    s_cbranch_scc1 IDLE_G1
    s_mov_b64 exec, 1
    buffer_store_dword v3, v2, {DBG}, 0 offen sc1
    s_mov_b64 exec, -1
    """)
    A.label("IDLE_G1")
    poll(A, "IDLE_G", DBG, "0", "v2", "v3", 0, sleep=8)
    A(f"""
    s_barrier
    s_cmp_lt_u32 {sW}, 4
    s_cbranch_scc1 P2_LD
    s_branch P2_MM0
    """)
    A.label("XR_LD")
    sOFS, sGRP, sCH = "s43", "s45", "s46"
    vO = 6
    A(f"""
    v_lshrrev_b32 v3, 4, v1
    s_cmp_eq_u32 {sW}, 4
    s_cbranch_scc0 XRL_U
    v_lshrrev_b32 v2, 3, v1
    v_and_b32 v4, 7, v1
    v_xor_b32 v4, v4, v3
    v_lshlrev_b32 v4, 4, v4
    v_mul_u32_u24 v{vO}, 0x500, v2
    v_add_u32 v{vO}, v{vO}, v4
    v_xor_b32 v4, 64, v{vO}
    v_add_u32 v{vO+1}, 9216, v4
    v_add_u32 v{vO+2}, {2*9216}, v{vO}
    v_add_u32 v{vO+3}, {3*9216}, v4
    s_mul_i32 {sOFS}, {sMT}, {128*1280}
    s_mov_b32 {sGRP}, {32*1280}
    s_mov_b32 {sCH}, {128 - 128*1280 + (1<<32)}
    s_mov_b32 m0, 0
    s_mov_b32 s30, {X_BYTES}
    s_waitcnt lgkmcnt(0)
    s_branch XRL_GO
    """)
    A.label("XRL_U")
    A(f"""
    v_and_b32 v4, 15, v1
    v_lshlrev_b32 v2, 2, v3
    v_xor_b32 v4, v4, v2
    v_lshlrev_b32 v4, 4, v4
    v_mul_u32_u24 v{vO}, 0x500, v3
    v_add_u32 v{vO}, v{vO}, v4
    v_add_u32 v{vO+1}, {4*1280-1024}, v{vO}
    v_add_u32 v{vO+2}, {2*(4*1280-1024)}, v{vO}
    v_add_u32 v{vO+3}, {3*(4*1280-1024)}, v{vO}
    s_lshl_b32 {sOFS}, {sNT}, 8
    s_mov_b32 {sGRP}, {16*1280}
    s_mov_b32 {sCH}, 0
    s_movk_i32 m0, 16384
    s_mov_b32 s30, {U_BYTES}
    s_waitcnt lgkmcnt(0)
    s_mov_b32 s28, s32
    s_mov_b32 s29, s33
    """)
    A.label("XRL_GO")
    A(f"""
    s_mov_b32 s31, 0x00020000
    s_mov_b32 {sC}, 0
    """)
    A.label("XRL_LOOP")
    for g in range(4):
        for j in range(4):
            A(f"buffer_load_dwordx4 v{vO+j}, s[28:31], {sOFS} offen offset:{1024*j} lds")
        A(f"""
        s_add_u32 m0, m0, 4096
        s_add_u32 {sOFS}, {sOFS}, {sGRP}
        """)
    A(f"""
    s_add_u32 {sOFS}, {sOFS}, {sCH}
    s_add_u32 m0, m0, 16384
    s_and_b32 m0, m0, {4*XSTAGE-1}
    s_add_u32 {sC}, {sC}, 1
    s_and_b32 s4, {sC}, 13
    s_cmp_eq_u32 s4, 1
    s_cbranch_scc1 XRL_LOOP
    s_cmp_eq_u32 {sC}, 2
    s_cbranch_scc0 XRL_W
    s_waitcnt vmcnt(16)
    """)
    A.label("XRL_W")
    A(f"""
    s_waitcnt vmcnt(32)
    s_barrier
    s_cmp_lt_u32 {sC}, 10
    s_cbranch_scc1 XRL_LOOP
    s_waitcnt vmcnt(16)
    s_barrier
    s_waitcnt vmcnt(0)
    s_barrier
    s_branch P2_MM0
    """)
    A.label("XR_MFMA")
    sCST = "s43"
    vXR = 6
    vUR = 10
    vT = 12
    vACC = 20
    vF = 84
    A(f"""
    s_lshr_b32 s4, {sW}, 1
    s_and_b32 s5, {sW}, 1
    s_lshl_b32 s6, s4, 13
    v_and_b32 v3, 31, v1
    v_bfe_u32 v4, v1, 1, 3
    v_lshrrev_b32 v{vT}, 5, v1
    v_xor_b32 v4, v4, v{vT}
    v_lshlrev_b32 v4, 4, v4
    v_lshl_add_u32 v4, v3, 7, v4
    v_add_u32 v{vXR}, s6, v4
    v_xor_b32 v{vXR+1}, 32, v{vXR}
    v_xor_b32 v{vXR+2}, 64, v{vXR}
    v_xor_b32 v{vXR+3}, 96, v{vXR}
    v_bfe_u32 v2, v1, 4, 1
    v_bfe_u32 v3, v1, 2, 2
    s_lshl_b32 s6, s5, 1
    v_xor_b32 v4, s6, v3
    v_lshlrev_b32 v4, 6, v4
    v_lshl_add_u32 v4, v3, 8, v4
    v_lshl_add_u32 v4, v{vT}, 11, v4
    v_lshl_add_u32 v4, v2, 5, v4
    v_and_b32 v3, 3, v1
    v_lshl_add_u32 v4, v3, 3, v4
    v_add_u32 v{vUR}, 16384, v4
    v_xor_b32 v{vUR+1}, 64, v{vUR}
    s_mov_b32 {sCST}, 0
    s_mov_b32 {sC}, 0
    s_lshl_b32 s6, {sMT}, 1
    s_add_u32 s6, s6, s4
    s_lshl_b32 s7, {sNT}, 1
    s_add_u32 s7, s7, s5
    s_mul_i32 s51, s4, 10
    s_add_u32 s51, s51, s7
    s_lshl_b32 s51, s51, 2
    s_lshl_b32 s52, {sMT}, 12
    s_add_u32 s51, s51, s52
    s_add_u32 s51, s51, {FLG + 42*4}
    s_mov_b32 s53, 8
    s_mul_i32 s6, s6, 80
    s_lshl_b32 s7, s7, 2
    s_add_u32 s6, s6, s7
    s_lshl_b32 s50, s6, 10
    s_add_u32 s52, s50, 40960
    """)
    for i in range(0, 64, 2):
        A(f"v_mov_b64 {vr(vACC+i,2)}, 0")
    for i in range(0, 64, 2):
        A(f"v_mov_b64 {vr(vF+64+i,2)}, 0")
    A("s_waitcnt lgkmcnt(0)")

    def reads(s, buf):
        f = vF + 64 * buf + 16 * s
        r = []
        for tn in range(2):
            r.append(f"ds_read_b128 {vr(f+8+4*tn,4)}, v{vT+s} offset:{4096*tn}")
            for u in range(2):
                r.append(f"ds_read_b64_tr_b16 {vr(f+4*tn+2*u,2)}, v{vT+4+tn} offset:{s*4096+u*1024}")
        return r

    def mfmas(s, buf):
        f = vF + 64 * buf + 16 * s
        r = []
        for tm in range(2):
            for tn in range(2):
                acc = vACC + 32 * tm + 16 * tn
                r.append(f"v_mfma_f32_32x32x16_bf16 {vr(acc,16)}, {vr(f+4*tn,4)}, {vr(f+8+4*tm,4)}, {vr(acc,16)}")
        return r

    A.label("XR_LOOP")
    for buf in range(2):
        for i in range(4):
            A(f"v_add_u32 v{vT+i}, {sCST}, v{vXR+i}")
        for i in range(2):
            A(f"v_add_u32 v{vT+4+i}, {sCST}, v{vUR+i}")
        A(f"""
        s_add_u32 {sCST}, {sCST}, {XSTAGE}
        s_and_b32 {sCST}, {sCST}, {4*XSTAGE-1}
        s_barrier
        """)
        rd = sum((reads(s_, buf) for s_ in range(4)), [])
        mf = sum((mfmas(s_, buf ^ 1) for s_ in range(4)), [])
        ri = 0
        for m in mf:
            A(m)
            for x in rd[ri:ri + 2]: A(x)
            ri += 2
        for x in rd[ri:]: A(x)
        A("s_waitcnt lgkmcnt(0)")
    A(f"""
    s_add_u32 {sC}, {sC}, 2
    s_cmp_lt_u32 {sC}, 10
    s_cbranch_scc1 XR_LOOP
    """)
    for s_ in range(4):
        for m in mfmas(s_, 1): A(m)
    A("s_nop 15")
    stamp(A, opt, 3)
    for tm in range(2):
        for i in range(4):
            a = vACC + 32 * tm + 8 * i
            o = vF + 16 * tm + 4 * i
            for j in range(4):
                A(f"v_cvt_pk_bf16_f32 v{o+j}, v{a+2*j}, v{a+2*j+1}")
            A(f"buffer_store_dwordx4 {vr(o,4)}, v5, s[24:27], s{50+2*tm} offen offset:{1024*i} sc1")


VX = 96


def xload(A, opt, kb):
    sc = "" if opt.get("xplain") else " sc1"
    A(f"buffer_load_dwordx4 {vr(VX+4*kb,4)}, v5, s[24:27], s20 offen offset:{1024*(kb&3)}{sc}")
    if kb & 3 == 3 and kb < 39:
        A("s_add_u32 s20, s20, 4096")


def gen_p2(A, opt):
    CH = {1: [8, 8, 16, 24, 32, 32], 2: [8, 16, 16, 16, 16, 16, 16, 16], 3: [4, 8, 12, 16, 16, 32, 32],
          4: [16, 24, 40, 40]}[opt.get("ch", 1)]
    assert sum(CH) == 120
    wsc = "" if opt.get("wplain") else " sc1"
    A.label("P2_PUB")
    publish(A, opt, "s51", "s53")
    A.label("P2_LD")
    p2_tile(A)
    A(f"""
    s_mul_i32 s22, s39, 122880
    s_add_u32 s22, s22, {W2F}
    s_lshl_b32 s21, s36, 10
    v_lshlrev_b32 v2, 2, v1
    s_cmp_lg_u32 s36, 0
    s_cbranch_scc1 P2_W_X
    """)
    poll(A, "P2_W", "s[24:27]", "s45", "v2", "v3", DC_W, sleep=opt.get("wsl", 0))
    A("s_barrier")
    stamp(A, opt, 5)
    AH = opt.get("ah", 4)
    st = [sum(CH[:i]) for i in range(len(CH) + 1)]

    def issue(c):
        per = CH[c] // 4
        A(f"""
        s_mul_i32 s4, s21, {per}
        s_add_u32 m0, s4, {st[c]*1024}
        s_add_u32 s5, m0, s22
        """)
        for i in range(per):
            if i and i % 4 == 0:
                A("""
                s_add_u32 m0, m0, 4096
                s_add_u32 s5, s5, 4096
                """)
            A(f"buffer_load_dwordx4 v5, s[24:27], s5 offen offset:{1024*(i&3)}{wsc} lds")

    for c in range(min(AH, len(CH))): issue(c)
    for c in range(len(CH)):
        issued = min(len(CH), AH + c)
        A(f"""
        s_waitcnt vmcnt({(st[issued] - st[c+1]) // 4})
        s_barrier
        """)
        if AH + c < len(CH): issue(AH + c)
    stamp(A, opt, 6)
    A("s_branch K_EXIT")

    vACC = 8
    vF = 56
    NF = 8
    vO = 88
    A.label("P2_MM0")
    p2_tile(A)
    A(f"""
    v_lshlrev_b32 v2, 2, v1
    s_lshl_b32 s4, s38, 2
    s_add_u32 s4, s4, s36
    s_sub_u32 s4, s4, 4
    s_mul_i32 s20, s4, 40960
    """)
    poll(A, "P2_X", "s[24:27]", "s45", "v2", "v3", DC_X, sleep=opt.get("xsl", 0))
    stamp(A, opt, 2)
    for kb in range(40): xload(A, opt, kb)
    A.label("P2_MM2")
    A(f"""
    v_add_u32 v4, 61440, v5
    v_and_b32 v6, 31, v1
    v_lshrrev_b32 v7, 5, v1
    v_mul_u32_u24 v6, 0xc00, v6
    v_lshl_add_u32 v6, v7, 4, v6
    s_mul_i32 s4, s4, {32*3072}
    s_mul_i32 s5, s39, 192
    s_add_u32 s23, s4, s5
    """)
    A("s_barrier")
    stamp(A, opt, 5, True)

    def rd(j):
        off = j * 1024
        base, o = ("v5", off) if off < 61440 else ("v4", off - 61440)
        return f"ds_read_b128 {vr(vF+4*(j%NF),4)}, {base} offset:{o}"

    ysc = " sc1" if opt.get("ysc") else ""

    def epi(t):
        r = []
        for p in range(2):
            a = vACC + 16 * t + 8 * p
            o = vO + 4 * p
            r.append([f"v_cvt_pk_bf16_f32 v{o+j}, v{a+2*j}, v{a+2*j+1}" for j in range(4)])
            r.append(["s_nop 1", f"v_permlane32_swap_b32 v{o}, v{o+2}", f"v_permlane32_swap_b32 v{o+1}, v{o+3}",
                      f"buffer_store_dwordx4 {vr(o,4)}, v6, s[96:99], s23 offen offset:{64*t+32*p}{ysc if t < 2 else ''}"])
        return r

    starts = []
    f0 = 0
    for n in CH:
        starts.append(f0)
        f0 += n
    RA = opt.get("ra", 6)
    assert RA < NF

    def read(j):
        if j in starts: A("s_barrier")
        A(rd(j))

    for j in range(RA): read(j)
    pending = []
    for j in range(120):
        nbl, kb = divmod(j, 40)
        if nbl == 0: A(f"s_waitcnt vmcnt({39-kb})")
        A(f"s_waitcnt lgkmcnt({min(120, j + RA) - j - 1})")
        acc = vACC + 16 * nbl
        c = "0" if kb == 0 else vr(acc, 16)
        A(f"v_mfma_f32_32x32x16_bf16 {vr(acc,16)}, {vr(vF+4*(j%NF),4)}, {vr(VX+4*kb,4)}, {c}")
        if j == 0 and opt.get("stamp"):
            stamp(A, opt, 3)
            A("s_memtime s[80:81]\ns_nop 7\ns_nop 7\ns_waitcnt lgkmcnt(0)")
        if j + RA < 120: read(j + RA)
        if nbl and kb == 2: pending = epi(nbl - 1)
        if pending:
            for x in pending.pop(0): A(x)
    A("s_nop 15")
    stamp(A, opt, 6)
    if opt.get("stamp"):
        A("s_memtime s[82:83]\ns_waitcnt lgkmcnt(0)\ns_sub_u32 s72, s82, s80")
    for g in epi(2):
        for x in g: A(x)


def descriptor(name, vgpr, accum, sgpr):
    return f""".amdhsa_kernel {name}
  .amdhsa_next_free_vgpr {vgpr}
  .amdhsa_next_free_sgpr {sgpr}
  .amdhsa_accum_offset {accum}
  .amdhsa_group_segment_fixed_size 0
  .amdhsa_kernarg_size 72
  .amdhsa_user_sgpr_count 2
  .amdhsa_user_sgpr_kernarg_segment_ptr 1
  .amdhsa_system_sgpr_workgroup_id_x 1
  .amdhsa_float_denorm_mode_32 3
.end_amdhsa_kernel
"""


def generate(opt):
    out = HEADER
    k = f"kernel={KNAME} " if opt.get("list") else ""
    out += f"; @launch {k}grid=(256,1,1) block=(512,1,1) lds={LDS1}\n"
    out += '.amdgcn_target "amdgcn-amd-amdhsa--gfx950"\n.text\n'
    A = Asm()
    out += f".globl {KNAME}\n.p2align 8\n.type {KNAME},@function\n"
    gen_kernel(A, opt)
    out += A.text()
    out += "CODE_END:\n"
    out += '.section .rodata,"a"\n.p2align 6\n'
    out += descriptor(KNAME, 256, 256, 100)
    return out


if __name__ == "__main__":
    path = sys.argv[1] if len(sys.argv) > 1 else "standalone__weight_only_int_quip__prompt.s"
    opt = {}
    for a in sys.argv[2:]:
        k, _, v = a.partition("=")
        opt[k] = int(v) if v else 1
    open(path, "w").write(generate(opt))
    print("wrote", path)
```

```python
import sys

KNAME = "standalone__weight_only_int_quip__prompt_kernel"
HEADER = """; Kernarg layout for this problem (72 bytes, ptrs only, base s[0:1]):
"""

XRF = 0
W2F = 64 * 40 * 1024
FLG = W2F + 48 * 40 * 1024
WS_USED = FLG + 256 * 256

X_BYTES = 2048 * 640 * 2
QW_BYTES = 640 * 1536 * 4
SC_BYTES = 20 * 1536 * 2
U_BYTES = 640 * 640 * 2
V_BYTES = 1536 * 1536 * 2
OUT_BYTES = 2048 * 1536 * 2

VSTAGE = 32768
ABASE = 3 * VSTAGE
ASTAGE = 12288
TBL = ABASE + 2 * ASTAGE
LDS1 = TBL + 24576
QE = 112
XSTAGE = 32768
POLL_MAX = 40000


class Asm:
    def __init__(self):
        self.lines = []

    def __call__(self, s):
        for l in s.strip("\n").split("\n"):
            self.lines.append("    " + l.strip() if not l.strip().endswith(":") else l.strip())

    def label(self, s):
        self.lines.append(s + ":")

    def comment(self, s):
        self.lines.append("    ; " + s)

    def text(self):
        return "\n".join(self.lines) + "\n"


def vr(a, n):
    return f"v[{a}:{a+n-1}]"


STAMP_OFS = 32 << 20
NSTAMP = 8


def stamp(A, opt, i, wait=False):
    if opt.get("stamp") or ("probe" in opt and i in (0, opt["probe"])):
        A(f"s_memrealtime s[{64+2*i}:{65+2*i}]")
        if wait: A("s_waitcnt lgkmcnt(0)")


def stamp_begin(A, opt):
    if opt.get("stamp") or "probe" in opt:
        for i in range(1, NSTAMP):
            A(f"s_mov_b32 s{64+2*i}, 0")
    stamp(A, opt, 0)


def stamp_end(A, opt):
    if "probe" in opt:
        p = opt["probe"]
        wl, wh = opt.get("pwl", 0), opt.get("pwh", 7)
        A(f"""
        s_waitcnt vmcnt(0) lgkmcnt(0)
        s_memrealtime s[78:79]
        s_waitcnt lgkmcnt(0)
        s_cmp_ge_u32 s2, 256
        s_cbranch_scc1 PRB_X
        s_cmp_lt_u32 s36, {wl}
        s_cbranch_scc1 PRB_X
        s_cmp_gt_u32 s36, {wh}
        s_cbranch_scc1 PRB_X
        s_cmp_eq_u32 s{64+2*p}, 0
        s_cbranch_scc1 PRB_X
        s_sub_u32 s4, s{64+2*p}, s64
        s_mul_i32 s4, s4, 3
        s_min_u32 s4, s4, 20000
        """)
        A.label("PRB")
        A("""
        s_memrealtime s[6:7]
        s_waitcnt lgkmcnt(0)
        s_sub_u32 s5, s6, s78
        s_cmp_lt_u32 s5, s4
        s_cbranch_scc1 PRB
        """)
        A.label("PRB_X")
    if opt.get("stamp"):
        A("s_waitcnt vmcnt(0) lgkmcnt(0)")
        stamp(A, opt, NSTAMP - 1)
        A(f"""
        s_load_dwordx2 s[56:57], s[0:1], 64
        s_waitcnt lgkmcnt(0)
        s_mov_b32 s58, 0x7fffffff
        s_mov_b32 s59, 0x00020000
        v_lshrrev_b32 v1, 6, v0
        v_lshlrev_b32 v1, 5, v1
        s_lshl_b32 s4, s2, 8
        s_add_u32 s4, s4, {STAMP_OFS}
        """)
        for i in range(NSTAMP):
            A(f"v_mov_b32 v{4+i}, s{64+2*i}")
        A("""
        buffer_store_dwordx4 v[4:7], v1, s[56:59], s4 offen
        buffer_store_dwordx4 v[8:11], v1, s[56:59], s4 offen offset:16
        """)
    A("s_endpgm")


def poll_check(A, vdst, dc, again):
    A(f"v_cmp_ne_u32 vcc, 0, {vdst}")
    if dc & 0xffffffff: A(f"s_or_b32 vcc_lo, vcc_lo, {hex(dc & 0xffffffff)}")
    if dc >> 32: A(f"s_or_b32 vcc_hi, vcc_hi, {hex(dc >> 32)}")
    A(f"""
    s_cmp_eq_u64 vcc, -1
    s_cbranch_scc0 {again}
    """)


def poll(A, name, srd, soff, vaddr, vdst, dc, scnt="s7", sleep=0):
    A(f"s_mov_b32 {scnt}, {POLL_MAX}")
    if sleep: A(f"s_branch {name}_1")
    A.label(name)
    if sleep:
        A(f"s_sleep {sleep}")
        A.label(name + "_1")
    A(f"""
    s_sub_u32 {scnt}, {scnt}, 1
    s_cbranch_scc1 {name}_X
    buffer_load_dword {vdst}, {vaddr}, {srd}, {soff} offen sc1
    s_waitcnt vmcnt(0)
    """)
    A.label(name + "_C")
    poll_check(A, vdst, dc, name)
    A.label(name + "_X")


DC_X = 0xC00003FFFFFFFFFF
DC_W = 0xFFFFFC0000000000
DBG = "s[92:95]"


def p2_tile(A):
    A(f"""
    s_and_b32 s38, s37, 1
    s_lshl_b32 s38, s38, 3
    s_and_b32 s39, s3, 7
    s_add_u32 s38, s38, s39
    s_lshr_b32 s39, s37, 1
    s_lshl_b32 s39, s39, 2
    s_lshr_b32 s4, s3, 3
    s_add_u32 s39, s39, s4
    s_lshl_b32 s45, s38, 4
    s_add_u32 s45, s45, s39
    s_lshl_b32 s45, s45, 8
    s_add_u32 s45, s45, {FLG}
    """)


def publish(A, opt, sflag, sshift):
    A(f"""
    v_mov_b32 v2, 1
    v_lshlrev_b32 v3, {sshift}, v1
    s_waitcnt vmcnt(0)
    s_mov_b64 exec, 0xffff
    buffer_store_dword v2, v3, s[24:27], {sflag} offen sc1
    s_mov_b64 exec, -1
    """)
    stamp(A, opt, 4)


def gen_kernel(A, opt):
    A.label(KNAME)
    stamp_begin(A, opt)
    A("""
    s_load_dwordx2 s[8:9], s[0:1], 8
    s_load_dwordx2 s[12:13], s[0:1], 40
    s_load_dwordx2 s[16:17], s[0:1], 16
    s_load_dwordx2 s[20:21], s[0:1], 24
    s_load_dwordx2 s[28:29], s[0:1], 0
    s_load_dwordx2 s[32:33], s[0:1], 32
    s_load_dwordx2 s[24:25], s[0:1], 64
    s_load_dwordx2 s[92:93], s[0:1], 56
    s_load_dwordx2 s[96:97], s[0:1], 48
    s_cmp_ge_u32 s2, 256
    s_cbranch_scc1 K_EXIT
    v_and_b32 v1, 63, v0
    v_lshrrev_b32 v2, 6, v0
    s_getpc_b64 s[4:5]
    """)
    A.label("P1_PC")
    A("""
    v_readfirstlane_b32 s36, v2
    v_lshlrev_b32 v3, 7, v1
    v_add_u32 v4, 0x2000, v3
    v_min_u32 v4, CODE_END-P1_PC-4, v4
    s_lshr_b32 s3, s2, 3
    s_and_b32 s37, s2, 7
    s_cmp_lg_u32 s36, 7
    s_cbranch_scc1 P1_NOPF
    global_load_dword v60, v3, s[4:5]
    global_load_dword v61, v4, s[4:5]
    """)
    A.label("P1_NOPF")
    A(f"""
    s_mov_b32 s11, 0x00020000
    s_mov_b32 s15, 0x00020000
    s_mov_b32 s27, 0x00020000
    s_mov_b32 s26, {WS_USED}
    s_movk_i32 s94, 256
    s_mov_b32 s95, 0x00020000
    s_mov_b32 s98, {OUT_BYTES}
    s_mov_b32 s99, 0x00020000
    v_lshlrev_b32 v5, 4, v1
    s_cmp_ge_u32 s3, 21
    s_cbranch_scc1 P1_XR
    """)
    gen_w2(A, opt)
    A.label("P1_XR")
    gen_xr(A, opt)
    gen_p2(A, opt)
    A.label("K_EXIT")
    stamp_end(A, opt)


def gen_w2(A, opt):
    NQ = opt.get("nq", 2)
    RING = 3 * VSTAGE
    RG = opt.get("rg", 2)
    sW, sLOC, sXCD = "s36", "s3", "s37"
    sMI, sNI = "s40", "s41"
    sC = "s49"
    sVOFS = "s43"
    vVO = 6
    A(f"""
    s_mul_i32 s4, {sLOC}, 171
    s_lshr_b32 s4, s4, 9
    s_mul_i32 s5, s4, 3
    s_sub_u32 s5, {sLOC}, s5
    s_lshr_b32 s6, {sXCD}, 2
    s_mul_i32 s6, s6, 7
    s_add_u32 {sMI}, s6, s4
    s_and_b32 s6, {sXCD}, 3
    s_mul_i32 s6, s6, 3
    s_add_u32 {sNI}, s6, s5
    s_mul_i32 s42, {sMI}, 3
    s_mov_b32 s56, s4
    s_mov_b32 s57, s5
    """)
    W = opt.get("rw", 1)
    if W > 1:
        ra, rb = opt.get("rota", 1), opt.get("rotb", 1)
        P2 = sum((i % W) << (4 * i) for i in range(2 * W))
        A(f"""
        s_mul_i32 s6, s4, {ra}
        s_mul_i32 s7, s5, {rb}
        s_add_u32 s6, s6, s7
        """)
        if W in (2, 4):
            A(f"s_and_b32 s6, s6, {W-1}")
        else:
            M = {3: 86, 6: 43}[W]
            A(f"""
            s_mul_i32 s7, s6, {M}
            s_lshr_b32 s7, s7, 8
            s_mul_i32 s7, s7, {W}
            s_sub_u32 s6, s6, s7
            """)
        ones = sum(1 << (4 * i) for i in range(W))
        A(f"""
        s_lshl_b32 s6, s6, 2
        s_mov_b32 s60, {P2 & 0xffffffff}
        s_mov_b32 s61, {P2 >> 32}
        s_lshr_b64 s[60:61], s[60:61], s6
        s_and_b32 s6, s60, {(1 << (4*W)) - 1}
        s_mov_b32 s60, 0
        s_mov_b32 s61, 0
        s_mov_b32 s7, 0
        """)
        for j in range(12 // W - 1, -1, -1):
            A(f"""
            s_lshl_b64 s[60:61], s[60:61], {4*W}
            s_add_u32 s6, s6, {(ones * W * j) & 0xffffffff}
            s_or_b64 s[60:61], s[60:61], s[6:7]
            s_sub_u32 s6, s6, {(ones * W * j) & 0xffffffff}
            """)
    else:
        A("""
        s_mov_b32 s60, 0x76543210
        s_mov_b32 s61, 0xba98
        """)
    A(f"""
    s_sub_u32 s4, {sW}, 4
    s_cmp_lt_u32 s4, 3
    s_cbranch_scc1 W2_DEQ
    s_mov_b32 s14, {V_BYTES}
    v_lshrrev_b32 v2, 4, v1
    v_and_b32 v3, 15, v1
    v_lshlrev_b32 v4, 1, v2
    v_xor_b32 v3, v3, v4
    v_lshlrev_b32 v3, 4, v3
    v_mul_u32_u24 v4, 0xc00, v2
    v_add_u32 v{vVO}, v3, v4
    v_add_u32 v{vVO+1}, 11264, v{vVO}
    v_xor_b32 v3, 0x80, v{vVO}
    v_add_u32 v{vVO+2}, {2*11264}, v3
    v_add_u32 v{vVO+3}, {3*11264}, v3
    s_lshl_b32 {sVOFS}, {sNI}, 8
    s_cmp_lt_u32 {sW}, 4
    s_cbranch_scc1 W2_MFMA
    """)

    def v_group():
        for j in range(4):
            A(f"buffer_load_dwordx4 v{vVO+j}, s[12:15], {sVOFS} offen offset:{1024*j} lds")

    GPC, XPC = opt.get("gpc", 4), 11
    for g in range(1, 8):
        for j in range(4):
            A(f"v_add_u32 v{vVO+4*g+j}, {g*16*3072}, v{vVO+j}")
    p2_tile(A)
    A(f"""
    v_mov_b32 v40, 0
    v_lshlrev_b32 v41, 2, v1
    s_mov_b32 s44, {sVOFS}
    s_mov_b32 m0, {VSTAGE}
    s_mov_b32 {sC}, 1
    s_waitcnt lgkmcnt(0)
    """)
    stamp(A, opt, 1)
    A.label("W2L_LOOP")
    A(f"""
    s_lshr_b64 s[60:61], s[60:61], 4
    s_and_b32 s4, s60, 15
    s_mul_i32 s4, s4, 393216
    s_add_u32 {sVOFS}, s44, s4
    s_cmp_lg_u32 {sC}, {GPC}
    s_cbranch_scc1 W2L_NG
    buffer_load_dword v42, v40, {DBG}, 0 offen sc1
    """)
    A.label("W2L_NG")
    A(f"""
    s_cmp_lg_u32 {sC}, {XPC}
    s_cbranch_scc1 W2L_NX
    buffer_load_dword v42, v41, s[24:27], s45 offen sc1
    """)
    A.label("W2L_NX")
    for g in range(8):
        if g == 6: A("s_waitcnt vmcnt(54)")
        for j in range(4):
            A(f"buffer_load_dwordx4 v{vVO+4*g+j}, s[12:15], {sVOFS} offen offset:{1024*j} lds")
            if j == 3: A("s_add_u32 m0, m0, 4096")
            if j == 3 and g < 7: A("s_nop 0")
    A(f"""
    s_cmp_ge_u32 m0, {RING}
    s_cselect_b32 m0, 0, m0
    """)
    EC = opt.get("ec", 1)
    if EC:
        A(f"""
        s_cmp_gt_u32 {sC}, 2
        s_cbranch_scc1 W2L_NT
        s_add_u32 {sC}, {sC}, 1
        s_cmp_eq_u32 {sC}, 2
        s_cbranch_scc1 W2L_LOOP
        s_mov_b32 {sC}, 2
        s_barrier
        """)
    else:
        A(f"""
        s_cmp_lg_u32 {sC}, 1
        s_cbranch_scc1 W2L_NT
        """)
    A("s_barrier")
    if opt.get("prio", 1): A("s_setprio 3")
    A.label("W2L_NT")
    A(f"""
    s_waitcnt vmcnt(32)
    s_cmp_lg_u32 {sC}, {GPC}
    s_cbranch_scc1 W2L_G_X
    """)
    poll_check(A, "v42", 0, "W2L_GS")
    A.label("W2L_G_X")
    A(f"""
    s_add_u32 {sC}, {sC}, 1
    s_barrier
    s_cmp_lt_u32 {sC}, 12
    s_cbranch_scc1 W2L_LOOP
    s_setprio 0
    """)
    XE = opt.get("xe", 16)
    poll_check(A, "v42", DC_X, "W2L_XS")
    A(f"""
    s_lshl_b32 s4, s38, 2
    s_add_u32 s4, s4, 3
    s_mul_i32 s20, s4, 40960
    """)
    for kb in range(XE): xload(A, opt, kb)
    A(f"""
    s_waitcnt vmcnt({XE})
    s_barrier
    """)
    stamp(A, opt, 2)
    for kb in range(XE, 40): xload(A, opt, kb)
    A("s_branch P2_MM2")
    A.label("W2L_XS")
    A("""
    s_waitcnt vmcnt(0)
    s_barrier
    s_branch P2_MM0
    """)
    A.label("W2L_GS")
    A(f"s_mov_b32 s7, {POLL_MAX}")
    A.label("W2L_G")
    A(f"""
    s_sub_u32 s7, s7, 1
    s_cbranch_scc1 W2L_G_X
    buffer_load_dword v42, v40, {DBG}, 0 offen sc1
    s_waitcnt vmcnt(0)
    """)
    poll_check(A, "v42", 0, "W2L_G")
    A("s_branch W2L_G_X")
    A.label("W2_DEQ")
    sB = "s38"
    sQOFS = "s43"
    vQO = 6
    vAW = 14
    vTB = 22
    U_ = 24
    Ft = 40
    O = 48
    vQ = 52
    QS = 32
    A(f"""
    s_mov_b32 {sB}, s4
    s_add_u32 s4, s42, {sB}
    s_cmp_ge_u32 s4, 40
    s_cbranch_scc1 W2D_IDLE
    s_mul_i32 s44, s4, {16*6144}
    s_mov_b64 s[62:63], s[60:61]
    s_lshr_b32 s6, s4, 1
    s_lshr_b32 s5, s42, 1
    s_sub_u32 s6, s6, s5
    s_mul_i32 s6, s6, 6144
    s_add_u32 s6, s6, {TBL}
    s_mov_b32 s10, {QW_BYTES}
    v_lshrrev_b32 v2, 5, v1
    v_and_b32 v3, 31, v1
    v_lshlrev_b32 v4, 4, v3
    v_mul_u32_u24 v{vQO}, 0x1800, v2
    v_add_u32 v{vQO}, v{vQO}, v4
    v_add_u32 v{vTB}, s6, v4
    """)
    QR = opt.get("qr", 3)
    A(f"s_mul_i32 s57, s57, {QR}")
    for i in range(7, -1, -1):
        A(f"""
        s_add_u32 s4, s57, {i}
        s_and_b32 s4, s4, 7
        s_mul_i32 s4, s4, 12288
        v_add_u32 v{vQO+i}, s4, v{vQO}
        """)
    A("s_waitcnt lgkmcnt(0)")
    stamp(A, opt, 1)

    def q_next():
        A(f"""
        s_and_b32 s4, s60, 15
        s_lshr_b64 s[60:61], s[60:61], 4
        s_lshl_b32 s4, s4, 9
        s_add_u32 {sQOFS}, s44, s4
        """)

    def q_issue(u):
        q = vQ + QS * u
        q_next()
        for i in range(8):
            A(f"buffer_load_dwordx4 {vr(q+4*i,4)}, v{vQO+i}, s[8:11], {sQOFS} offen")

    def t_read(n):
        u = U_ + 8 * (n & 1)
        A(f"""
        s_and_b32 s4, s62, 15
        s_lshr_b64 s[62:63], s[62:63], 4
        s_lshl_b32 s4, s4, 9
        v_add_u32 v{vTB+1}, s4, v{vTB}
        ds_read_b128 {vr(u,4)}, v{vTB+1}
        ds_read_b128 {vr(u+4,4)}, v{vTB+1} offset:12288
        """)

    for u in range(NQ):
        q_issue(u)
    A(f"""
    s_lshl_b32 s4, {sB}, 12
    s_add_u32 s4, s4, {ABASE}
    v_bfe_u32 v3, v1, 1, 4
    v_xor_b32 v4, v3, v2
    v_lshlrev_b32 v4, 4, v4
    v_lshl_add_u32 v4, v2, 8, v4
    v_and_b32 v3, 1, v1
    v_lshl_add_u32 v4, v3, 3, v4
    v_add_u32 v{vAW}, s4, v4
    """)
    for i in range(7, -1, -1):
        A(f"""
        s_add_u32 s4, s57, {i}
        s_and_b32 s4, s4, 7
        s_lshl_b32 s5, s4, 5
        s_lshl_b32 s4, s4, 9
        v_xor_b32 v3, s5, v{vAW}
        v_add_u32 v{vAW+i}, s4, v3
        """)
    p2_tile(A)
    A(f"""
    v_lshlrev_b32 v2, 2, v1
    s_mov_b32 {sC}, 0
    s_barrier
    """)
    if opt.get("prio", 1): A("s_setprio 3")
    t_read(0)
    A("s_waitcnt lgkmcnt(0)")
    assert 12 % NQ == 0
    UN = NQ if NQ % 2 == 0 else 2 * NQ
    assert 12 % UN == 0
    A.label("W2D_LOOP")
    for n in range(UN):
        u = n % NQ
        q = vQ + QS * u
        S = U_ + 8 * (n & 1)
        t_read(n + 1)
        q_next()
        A(f"""
        s_cmp_lt_u32 {sC}, {12-NQ-n+1}
        s_waitcnt vmcnt({8*(NQ-1)})
        s_cbranch_scc1 W2D_NT{n}
        s_waitcnt vmcnt({8*min(NQ-1, max(0, UN-1-n))})
        """)
        A.label(f"W2D_NT{n}")
        if n == UN - 1:
            A(f"""
            s_cmp_lg_u32 {sC}, {12-UN}
            s_cbranch_scc1 W2D_NP
            buffer_load_dword v3, v2, s[24:27], s45 offen sc1
            """)
            A.label("W2D_NP")
        A(f"s_cmp_lt_u32 {sC}, {12-NQ-n}")
        for i in range(8):
            qq = q + 4 * i
            f = Ft + 4 * (i & 1)
            o = O + 2 * (i & 1)
            A(f"""
            v_fma_f32 v{f}, v{qq}, v{S}, v{S+4}
            v_fma_f32 v{f+1}, v{qq+1}, v{S+1}, v{S+5}
            v_fma_f32 v{f+2}, v{qq+2}, v{S+2}, v{S+6}
            v_fma_f32 v{f+3}, v{qq+3}, v{S+3}, v{S+7}
            v_cvt_pk_bf16_f32 v{o}, v{f}, v{f+1}
            v_cvt_pk_bf16_f32 v{o+1}, v{f+2}, v{f+3}
            ds_write_b64 v{vAW+i}, {vr(o,2)} offset:{ASTAGE*(n&1)}
            """)
            if (i + 1) % RG == 0:
                A(f"s_cbranch_scc0 W2D_SK{n}_{i}")
                for ii in range(i + 1 - RG, i + 1):
                    A(f"buffer_load_dwordx4 {vr(q+4*ii,4)}, v{vQO+ii}, s[8:11], {sQOFS} offen")
                A.label(f"W2D_SK{n}_{i}")
        A("""
        s_waitcnt lgkmcnt(0)
        s_barrier
        """)
    A(f"""
    s_add_u32 {sC}, {sC}, {UN}
    s_cmp_lt_u32 {sC}, 12
    s_cbranch_scc1 W2D_LOOP
    s_setprio 0
    s_lshl_b32 s4, s38, 2
    s_add_u32 s4, s4, s36
    s_sub_u32 s4, s4, 4
    s_mul_i32 s20, s4, 40960
    s_mov_b32 s7, {POLL_MAX}
    s_waitcnt vmcnt(0)
    s_branch P2_X_C
    """)
    A.label("W2D_IDLE")
    A(f"""
    s_mov_b32 {sC}, 0
    s_waitcnt lgkmcnt(0)
    """)
    A.label("W2D_IDL")
    A(f"""
    s_barrier
    s_add_u32 {sC}, {sC}, 1
    s_cmp_lt_u32 {sC}, 13
    s_cbranch_scc1 W2D_IDL
    s_branch P2_MM0
    """)
    A.label("W2_MFMA")
    sCST = "s45"
    vAR = 10
    vBR = 14
    vT0, vT1 = 16, 17
    vST = 18
    vACC = 20
    vF = 44
    P = vF
    A(f"""
    s_lshl_b32 s4, {sW}, 13
    s_mov_b32 m0, s4
    s_mul_i32 s4, {sW}, {32*3072}
    s_add_u32 {sVOFS}, {sVOFS}, s4
    s_and_b32 s4, s60, 15
    s_mul_i32 s4, s4, 393216
    s_add_u32 {sVOFS}, {sVOFS}, s4
    s_lshr_b32 s6, s42, 1
    s_mul_i32 s6, s6, 3072
    s_mov_b32 s18, {SC_BYTES}
    s_mov_b32 s19, 0x00020000
    s_mov_b32 s22, {SC_BYTES}
    s_mov_b32 s23, 0x00020000
    v_and_b32 v2, 0xff, v0
    v_lshlrev_b32 v19, 3, v2
    s_waitcnt lgkmcnt(0)
    """)
    stamp(A, opt, 1)
    for j in range(2):
        A(f"""
        buffer_load_dwordx2 {vr(P+4*j,2)}, v19, s[16:19], s6 offen offset:{2048*j}
        buffer_load_dwordx2 {vr(P+4*j+2,2)}, v19, s[20:23], s6 offen offset:{2048*j}
        """)
    A(f"""
    s_add_u32 s6, s6, 4096
    buffer_load_dwordx2 {vr(P+8,2)}, v19, s[16:19], s6 offen
    buffer_load_dwordx2 {vr(P+10,2)}, v19, s[20:23], s6 offen
    """)
    v_group()
    A(f"""
    s_add_u32 m0, m0, 4096
    s_add_u32 {sVOFS}, {sVOFS}, {16*3072}
    """)
    v_group()
    TP = opt.get("tp", 1)
    T = 2 if TP == 1 else 0
    TC = opt.get("tc", 3)

    def touches():
        A(f"""
        v_lshrrev_b32 v2, 1, v1
        v_and_b32 v3, 1, v1
        v_mul_u32_u24 v2, 0xc00, v2
        v_lshl_add_u32 v2, v3, 7, v2
        v_min_u32 v3, {47 - 4*TC}, v1
        v_lshlrev_b32 v3, 7, v3
        v_add_u32 v3, {512*TC}, v3
        s_lshl_b32 s4, {sMI}, 2
        s_add_u32 s4, s4, {sW}
        s_add_u32 s4, s4, {4*TC}
        s_mul_i32 s4, s4, {32*3072}
        s_lshl_b32 s5, {sNI}, 8
        s_add_u32 s4, s4, s5
        s_lshl_b32 s5, {sNI}, 2
        s_add_u32 s5, s5, {sW}
        s_mul_i32 s6, {sMI}, 48
        s_add_u32 s5, s5, s6
        s_mul_i32 s5, s5, 6144
        s_mov_b32 s10, {QW_BYTES}
        buffer_load_dword v208, v2, s[12:15], s4 offen
        buffer_load_dword v209, v3, s[8:11], s5 offen
        """)
    if TP == 1: touches()
    A(f"""
    v_lshlrev_b32 v19, 1, v19
    v_add_u32 v19, {TBL}, v19
    v_and_b32 v2, 15, v1
    v_lshrrev_b32 v3, 4, v1
    v_xor_b32 v4, v2, v3
    v_lshlrev_b32 v4, 4, v4
    v_lshl_add_u32 v4, v2, 8, v4
    v_add_u32 v{vAR}, {ABASE}, v4
    v_xor_b32 v{vAR+1}, 64, v{vAR}
    v_xor_b32 v{vAR+2}, 128, v{vAR}
    v_xor_b32 v{vAR+3}, 192, v{vAR}
    v_bfe_u32 v2, v1, 2, 2
    v_and_b32 v4, 1, v3
    v_lshl_or_b32 v4, v4, 2, v2
    s_lshl_b32 s5, {sW}, 1
    v_xor_b32 v4, s5, v4
    v_lshlrev_b32 v4, 5, v4
    v_lshl_add_u32 v2, v3, 3, v2
    v_lshl_add_u32 v4, v2, 8, v4
    v_and_b32 v2, 3, v1
    v_lshl_add_u32 v{vBR}, v2, 3, v4
    v_xor_b32 v{vBR+1}, 32, v{vBR}
    s_mov_b32 {sCST}, 0
    s_mov_b32 {sC}, 0
    s_lshl_b32 s4, {sNI}, 2
    s_add_u32 s4, s4, {sW}
    s_mul_i32 s5, s4, 40
    s_add_u32 s5, s5, s42
    s_lshl_b32 s5, s5, 10
    s_add_u32 s50, s5, {W2F}
    s_mul_i32 s5, s4, 171
    s_lshr_b32 s5, s5, 9
    s_mul_i32 s6, s5, 3
    s_sub_u32 s6, s4, s6
    s_mul_i32 s6, s6, 14
    s_add_u32 s6, s6, {sMI}
    s_lshl_b32 s6, s6, 2
    s_lshl_b32 s5, s5, 8
    s_add_u32 s5, s5, s6
    s_add_u32 s51, s5, {FLG}
    s_mov_b32 s53, 12
    s_mov_b32 s54, {hex((127+149-QE) << 23)}
    s_mov_b32 s55, {hex((127+149-QE) << 23)}
    s_mov_b32 s46, 0xffff0000
    s_mov_b32 s47, {hex((127+QE) << 23)}
    s_mov_b32 s48, {hex(0x80000000 | ((127+QE-149) << 23))}
    v_bfe_u32 v3, v1, 4, 1
    v_lshrrev_b32 v4, 5, v1
    v_and_b32 v{vST}, 15, v1
    v_lshl_add_u32 v{vST}, v3, 5, v{vST}
    v_lshl_add_u32 v{vST}, v4, 4, v{vST}
    v_lshlrev_b32 v{vST}, 4, v{vST}
    """)
    for i in range(0, 24, 2):
        A(f"v_mov_b64 {vr(vACC+i,2)}, 0")
    for i in range(0, 80, 2):
        A(f"v_mov_b64 {vr(vF+80+i,2)}, 0")
    for j in range(3):
        q = P + 4 * j
        u = P + 16 + 8 * j
        A(f"""
        s_waitcnt vmcnt({8 + 4 - 2*j + T})
        v_lshlrev_b32 v{u}, 16, v{q}
        v_and_b32 v{u+1}, s46, v{q}
        v_lshlrev_b32 v{u+2}, 16, v{q+1}
        v_and_b32 v{u+3}, s46, v{q+1}
        v_lshlrev_b32 v{u+4}, 16, v{q+2}
        v_and_b32 v{u+5}, s46, v{q+2}
        v_lshlrev_b32 v{u+6}, 16, v{q+3}
        v_and_b32 v{u+7}, s46, v{q+3}
        """)
        for i in range(4): A(f"v_mul_f32 v{u+4+i}, s48, v{u+4+i}")
        for i in range(4): A(f"v_mul_f32 v{u+4+i}, v{u+i}, v{u+4+i}")
        for i in range(4): A(f"v_mul_f32 v{u+i}, s47, v{u+i}")
        A(f"""
        ds_write_b128 v19, {vr(u,4)} offset:{4096*j}
        ds_write_b128 v19, {vr(u+4,4)} offset:{4096*j+12288}
        """)
    if TP == 3: touches()
    A("""
    s_waitcnt lgkmcnt(0)
    s_barrier
    """)
    if TP == 2: touches()
    A(f"s_waitcnt vmcnt({2 if TP else 0})")

    def reads(s, buf):
        fa = vF + buf * 80 + 20 * s
        fb = fa + 12
        r = []
        for b in range(3):
            r.append(f"ds_read_b128 {vr(fa+4*b,4)}, v{vAR+s} offset:{4096*b + ASTAGE*buf}")
        for t in range(2):
            for u in range(2):
                r.append(f"ds_read_b64_tr_b16 {vr(fb+4*t+2*u,2)}, v{vT0+t} offset:{(32*s+4*u)*256}")
        return r

    def mfmas(s, buf):
        fa = vF + buf * 80 + 20 * s
        fb = fa + 12
        r = []
        for b in range(3):
            for t in range(2):
                acc = vACC + (b * 2 + t) * 4
                r.append(f"v_mfma_f32_16x16x32_bf16 {vr(acc,4)}, {vr(fa+4*b,4)}, {vr(fb+4*t,4)}, {vr(acc,4)}")
        return r

    A.label("W2M_LOOP")
    for buf in range(2):
        A(f"""
        v_add_u32 v{vT0}, {sCST}, v{vBR}
        v_add_u32 v{vT1}, {sCST}, v{vBR+1}
        s_add_u32 {sCST}, {sCST}, {VSTAGE}
        s_cmp_ge_u32 {sCST}, {RING}
        s_cselect_b32 {sCST}, 0, {sCST}
        s_barrier
        """)
        rd = sum((reads(s, buf) for s in range(4)), [])
        mf = sum((mfmas(s, buf ^ 1) for s in range(4)), [])
        seq = rd[:4]
        ri = 4
        for m in mf:
            seq.append(m)
            seq += rd[ri:ri + 1]
            ri += 1
        seq += rd[ri:]
        for x in seq: A(x)
        A("s_waitcnt lgkmcnt(0)")
        if (opt.get("stamp") or opt.get("probe") == 2) and buf == 0:
            A(f"""
            s_cmp_lg_u32 {sC}, 0
            s_cbranch_scc1 W2M_ST
            """)
            stamp(A, opt, 2, True)
            A.label("W2M_ST")
    A(f"""
    s_add_u32 {sC}, {sC}, 2
    s_cmp_lt_u32 {sC}, 12
    s_cbranch_scc1 W2M_LOOP
    s_setprio 3
    """)
    for s_ in range(4):
        for m in mfmas(s_, 1): A(m)
    A("s_nop 7")
    stamp(A, opt, 3)
    for b in range(3):
        a = vACC + 8 * b
        o = vF + 4 * b
        for j in range(4):
            A(f"v_pk_mul_f32 {vr(a+2*j,2)}, {vr(a+2*j,2)}, s[54:55]")
        A(f"""
        v_cvt_pk_bf16_f32 v{o}, v{a}, v{a+1}
        v_cvt_pk_bf16_f32 v{o+1}, v{a+2}, v{a+3}
        v_cvt_pk_bf16_f32 v{o+2}, v{a+4}, v{a+5}
        v_cvt_pk_bf16_f32 v{o+3}, v{a+6}, v{a+7}
        s_nop 1
        v_permlane32_swap_b32 v{o}, v{o+2}
        v_permlane32_swap_b32 v{o+1}, v{o+3}
        buffer_store_dwordx4 {vr(o,4)}, v{vST}, s[24:27], s50 offen offset:{1024*b} sc1
        """)
        if b == 0:
            A(f"""
            s_cmp_eq_u32 {sMI}, 13
            s_cbranch_scc1 P2_PUB
            """)
    A("s_branch P2_PUB")


def gen_xr(A, opt):
    sW, sLOC, sXCD = "s36", "s3", "s37"
    sMT, sNT = "s40", "s41"
    sC = "s48"
    A(f"""
    s_sub_u32 s4, {sLOC}, 21
    s_cmp_ge_u32 s4, 5
    s_cselect_b32 s5, 1, 0
    s_cselect_b32 s6, 5, 0
    s_sub_u32 {sNT}, s4, s6
    s_lshl_b32 s7, {sXCD}, 1
    s_add_u32 {sMT}, s7, s5
    s_cmp_ge_u32 {sLOC}, 31
    s_cbranch_scc1 IDLE_WG
    s_cmp_lt_u32 {sW}, 4
    s_cbranch_scc1 XR_MFMA
    s_cmp_lt_u32 {sW}, 6
    s_cbranch_scc1 XR_LD
    """)
    A(f"""
    v_mov_b32 v2, 0
    v_lshlrev_b32 v6, 7, v1
    s_mul_i32 s4, {sMT}, 5
    s_add_u32 s4, s4, {sNT}
    s_lshl_b32 s5, s4, 15
    s_lshl_b32 s6, s4, 14
    s_mov_b32 s30, {X_BYTES}
    s_mov_b32 s31, 0x00020000
    s_mov_b32 s34, {U_BYTES}
    s_mov_b32 s35, 0x00020000
    s_waitcnt lgkmcnt(0)
    """)
    if opt.get("tx", 1):
        A(f"""
        s_cmp_lg_u32 {sW}, 6
        s_cbranch_scc1 XR_TU
        """)
        for i in range(4):
            A(f"buffer_load_dword v{8+i}, v6, s[28:31], s5 offen")
            if i < 3: A("s_add_u32 s5, s5, 8192")
        A("s_branch XR_TX")
        A.label("XR_TU")
        for i in range(2):
            A(f"buffer_load_dword v{8+i}, v6, s[32:35], s6 offen")
            if i < 1: A("s_add_u32 s6, s6, 8192")
        A.label("XR_TX")
    for i in range(5): A("s_barrier")
    A(f"""
    s_cmp_lg_u32 {sW}, 6
    s_cbranch_scc1 XR_G_X
    """)
    poll(A, "XR_G", DBG, "0", "v2", "v3", 0)
    for i in range(5): A("s_barrier")
    A("s_branch P2_MM0")
    A.label("IDLE_WG")
    A(f"""
    v_mov_b32 v2, 0
    v_mov_b32 v3, 1
    s_cmp_lg_u32 {sXCD}, 0
    s_waitcnt lgkmcnt(0)
    s_cbranch_scc1 IDLE_G0
    v_mov_b32 v6, 0
    v_mov_b32 v7, 0
    v_mov_b32 v8, 0
    v_mov_b32 v9, 0
    s_lshl_b32 s4, {sW}, 13
    s_add_u32 s4, s4, {FLG}
    s_add_u32 s5, s4, 4096
    """)
    for i in range(8):
        A(f"buffer_store_dwordx4 v[6:9], v5, s[24:27], s{4+i//4} offen offset:{1024*(i&3)} sc1")
    A("s_waitcnt vmcnt(0)")
    A.label("IDLE_G0")
    A(f"""
    s_barrier
    s_cmp_lg_u32 {sW}, 0
    s_cbranch_scc1 IDLE_G_X
    s_cmp_lg_u32 {sXCD}, 0
    s_cbranch_scc1 IDLE_G1
    s_mov_b64 exec, 1
    buffer_store_dword v3, v2, {DBG}, 0 offen sc1
    s_mov_b64 exec, -1
    """)
    A.label("IDLE_G1")
    poll(A, "IDLE_G", DBG, "0", "v2", "v3", 0, sleep=8)
    A(f"""
    s_barrier
    s_cmp_lt_u32 {sW}, 4
    s_cbranch_scc1 P2_LD
    s_branch P2_MM0
    """)
    A.label("XR_LD")
    sOFS, sGRP, sCH = "s43", "s45", "s46"
    vO = 6
    A(f"""
    v_lshrrev_b32 v3, 4, v1
    s_cmp_eq_u32 {sW}, 4
    s_cbranch_scc0 XRL_U
    v_lshrrev_b32 v2, 3, v1
    v_and_b32 v4, 7, v1
    v_xor_b32 v4, v4, v3
    v_lshlrev_b32 v4, 4, v4
    v_mul_u32_u24 v{vO}, 0x500, v2
    v_add_u32 v{vO}, v{vO}, v4
    v_xor_b32 v4, 64, v{vO}
    v_add_u32 v{vO+1}, 9216, v4
    v_add_u32 v{vO+2}, {2*9216}, v{vO}
    v_add_u32 v{vO+3}, {3*9216}, v4
    s_mul_i32 {sOFS}, {sMT}, {128*1280}
    s_mov_b32 {sGRP}, {32*1280}
    s_mov_b32 {sCH}, {128 - 128*1280 + (1<<32)}
    s_mov_b32 m0, 0
    s_mov_b32 s30, {X_BYTES}
    s_waitcnt lgkmcnt(0)
    s_branch XRL_GO
    """)
    A.label("XRL_U")
    A(f"""
    v_and_b32 v4, 15, v1
    v_lshlrev_b32 v2, 2, v3
    v_xor_b32 v4, v4, v2
    v_lshlrev_b32 v4, 4, v4
    v_mul_u32_u24 v{vO}, 0x500, v3
    v_add_u32 v{vO}, v{vO}, v4
    v_add_u32 v{vO+1}, {4*1280-1024}, v{vO}
    v_add_u32 v{vO+2}, {2*(4*1280-1024)}, v{vO}
    v_add_u32 v{vO+3}, {3*(4*1280-1024)}, v{vO}
    s_lshl_b32 {sOFS}, {sNT}, 8
    s_mov_b32 {sGRP}, {16*1280}
    s_mov_b32 {sCH}, 0
    s_movk_i32 m0, 16384
    s_mov_b32 s30, {U_BYTES}
    s_waitcnt lgkmcnt(0)
    s_mov_b32 s28, s32
    s_mov_b32 s29, s33
    """)
    A.label("XRL_GO")
    A(f"""
    s_mov_b32 s31, 0x00020000
    s_mov_b32 {sC}, 0
    """)
    A.label("XRL_LOOP")
    for g in range(4):
        for j in range(4):
            A(f"buffer_load_dwordx4 v{vO+j}, s[28:31], {sOFS} offen offset:{1024*j} lds")
        A(f"""
        s_add_u32 m0, m0, 4096
        s_add_u32 {sOFS}, {sOFS}, {sGRP}
        """)
    A(f"""
    s_add_u32 {sOFS}, {sOFS}, {sCH}
    s_add_u32 m0, m0, 16384
    s_and_b32 m0, m0, {4*XSTAGE-1}
    s_add_u32 {sC}, {sC}, 1
    s_and_b32 s4, {sC}, 13
    s_cmp_eq_u32 s4, 1
    s_cbranch_scc1 XRL_LOOP
    s_cmp_eq_u32 {sC}, 2
    s_cbranch_scc0 XRL_W
    s_waitcnt vmcnt(16)
    """)
    A.label("XRL_W")
    A(f"""
    s_waitcnt vmcnt(32)
    s_barrier
    s_cmp_lt_u32 {sC}, 10
    s_cbranch_scc1 XRL_LOOP
    s_waitcnt vmcnt(16)
    s_barrier
    s_waitcnt vmcnt(0)
    s_barrier
    s_branch P2_MM0
    """)
    A.label("XR_MFMA")
    sCST = "s43"
    vXR = 6
    vUR = 10
    vT = 12
    vACC = 20
    vF = 84
    A(f"""
    s_lshr_b32 s4, {sW}, 1
    s_and_b32 s5, {sW}, 1
    s_lshl_b32 s6, s4, 13
    v_and_b32 v3, 31, v1
    v_bfe_u32 v4, v1, 1, 3
    v_lshrrev_b32 v{vT}, 5, v1
    v_xor_b32 v4, v4, v{vT}
    v_lshlrev_b32 v4, 4, v4
    v_lshl_add_u32 v4, v3, 7, v4
    v_add_u32 v{vXR}, s6, v4
    v_xor_b32 v{vXR+1}, 32, v{vXR}
    v_xor_b32 v{vXR+2}, 64, v{vXR}
    v_xor_b32 v{vXR+3}, 96, v{vXR}
    v_bfe_u32 v2, v1, 4, 1
    v_bfe_u32 v3, v1, 2, 2
    s_lshl_b32 s6, s5, 1
    v_xor_b32 v4, s6, v3
    v_lshlrev_b32 v4, 6, v4
    v_lshl_add_u32 v4, v3, 8, v4
    v_lshl_add_u32 v4, v{vT}, 11, v4
    v_lshl_add_u32 v4, v2, 5, v4
    v_and_b32 v3, 3, v1
    v_lshl_add_u32 v4, v3, 3, v4
    v_add_u32 v{vUR}, 16384, v4
    v_xor_b32 v{vUR+1}, 64, v{vUR}
    s_mov_b32 {sCST}, 0
    s_mov_b32 {sC}, 0
    s_lshl_b32 s6, {sMT}, 1
    s_add_u32 s6, s6, s4
    s_lshl_b32 s7, {sNT}, 1
    s_add_u32 s7, s7, s5
    s_mul_i32 s51, s4, 10
    s_add_u32 s51, s51, s7
    s_lshl_b32 s51, s51, 2
    s_lshl_b32 s52, {sMT}, 12
    s_add_u32 s51, s51, s52
    s_add_u32 s51, s51, {FLG + 42*4}
    s_mov_b32 s53, 8
    s_mul_i32 s6, s6, 80
    s_lshl_b32 s7, s7, 2
    s_add_u32 s6, s6, s7
    s_lshl_b32 s50, s6, 10
    s_add_u32 s52, s50, 40960
    """)
    for i in range(0, 64, 2):
        A(f"v_mov_b64 {vr(vACC+i,2)}, 0")
    for i in range(0, 64, 2):
        A(f"v_mov_b64 {vr(vF+64+i,2)}, 0")
    A("s_waitcnt lgkmcnt(0)")

    def reads(s, buf):
        f = vF + 64 * buf + 16 * s
        r = []
        for tn in range(2):
            r.append(f"ds_read_b128 {vr(f+8+4*tn,4)}, v{vT+s} offset:{4096*tn}")
            for u in range(2):
                r.append(f"ds_read_b64_tr_b16 {vr(f+4*tn+2*u,2)}, v{vT+4+tn} offset:{s*4096+u*1024}")
        return r

    def mfmas(s, buf):
        f = vF + 64 * buf + 16 * s
        r = []
        for tm in range(2):
            for tn in range(2):
                acc = vACC + 32 * tm + 16 * tn
                r.append(f"v_mfma_f32_32x32x16_bf16 {vr(acc,16)}, {vr(f+4*tn,4)}, {vr(f+8+4*tm,4)}, {vr(acc,16)}")
        return r

    A.label("XR_LOOP")
    for buf in range(2):
        for i in range(4):
            A(f"v_add_u32 v{vT+i}, {sCST}, v{vXR+i}")
        for i in range(2):
            A(f"v_add_u32 v{vT+4+i}, {sCST}, v{vUR+i}")
        A(f"""
        s_add_u32 {sCST}, {sCST}, {XSTAGE}
        s_and_b32 {sCST}, {sCST}, {4*XSTAGE-1}
        s_barrier
        """)
        rd = sum((reads(s_, buf) for s_ in range(4)), [])
        mf = sum((mfmas(s_, buf ^ 1) for s_ in range(4)), [])
        ri = 0
        for m in mf:
            A(m)
            for x in rd[ri:ri + 2]: A(x)
            ri += 2
        for x in rd[ri:]: A(x)
        A("s_waitcnt lgkmcnt(0)")
    A(f"""
    s_add_u32 {sC}, {sC}, 2
    s_cmp_lt_u32 {sC}, 10
    s_cbranch_scc1 XR_LOOP
    """)
    for s_ in range(4):
        for m in mfmas(s_, 1): A(m)
    A("s_nop 15")
    stamp(A, opt, 3)
    for tm in range(2):
        for i in range(4):
            a = vACC + 32 * tm + 8 * i
            o = vF + 16 * tm + 4 * i
            for j in range(4):
                A(f"v_cvt_pk_bf16_f32 v{o+j}, v{a+2*j}, v{a+2*j+1}")
            A(f"buffer_store_dwordx4 {vr(o,4)}, v5, s[24:27], s{50+2*tm} offen offset:{1024*i} sc1")


VX = 96


def xload(A, opt, kb):
    sc = "" if opt.get("xplain") else " sc1"
    A(f"buffer_load_dwordx4 {vr(VX+4*kb,4)}, v5, s[24:27], s20 offen offset:{1024*(kb&3)}{sc}")
    if kb & 3 == 3 and kb < 39:
        A("s_add_u32 s20, s20, 4096")


def gen_p2(A, opt):
    CH = {1: [8, 8, 16, 24, 32, 32], 2: [8, 16, 16, 16, 16, 16, 16, 16], 3: [4, 8, 12, 16, 16, 32, 32],
          4: [16, 24, 40, 40]}[opt.get("ch", 1)]
    assert sum(CH) == 120
    wsc = "" if opt.get("wplain") else " sc1"
    A.label("P2_PUB")
    publish(A, opt, "s51", "s53")
    A.label("P2_LD")
    p2_tile(A)
    A(f"""
    s_mul_i32 s22, s39, 122880
    s_add_u32 s22, s22, {W2F}
    s_lshl_b32 s21, s36, 10
    v_lshlrev_b32 v2, 2, v1
    s_cmp_lg_u32 s36, 0
    s_cbranch_scc1 P2_W_X
    """)
    poll(A, "P2_W", "s[24:27]", "s45", "v2", "v3", DC_W, sleep=opt.get("wsl", 0))
    A("s_barrier")
    stamp(A, opt, 5)
    AH = opt.get("ah", 4)
    st = [sum(CH[:i]) for i in range(len(CH) + 1)]

    def issue(c):
        per = CH[c] // 4
        A(f"""
        s_mul_i32 s4, s21, {per}
        s_add_u32 m0, s4, {st[c]*1024}
        s_add_u32 s5, m0, s22
        """)
        for i in range(per):
            if i and i % 4 == 0:
                A("""
                s_add_u32 m0, m0, 4096
                s_add_u32 s5, s5, 4096
                """)
            A(f"buffer_load_dwordx4 v5, s[24:27], s5 offen offset:{1024*(i&3)}{wsc} lds")

    for c in range(min(AH, len(CH))): issue(c)
    for c in range(len(CH)):
        issued = min(len(CH), AH + c)
        A(f"""
        s_waitcnt vmcnt({(st[issued] - st[c+1]) // 4})
        s_barrier
        """)
        if AH + c < len(CH): issue(AH + c)
    stamp(A, opt, 6)
    A("s_branch K_EXIT")

    vACC = 8
    vF = 56
    NF = 8
    vO = 88
    A.label("P2_MM0")
    p2_tile(A)
    A(f"""
    v_lshlrev_b32 v2, 2, v1
    s_lshl_b32 s4, s38, 2
    s_add_u32 s4, s4, s36
    s_sub_u32 s4, s4, 4
    s_mul_i32 s20, s4, 40960
    """)
    poll(A, "P2_X", "s[24:27]", "s45", "v2", "v3", DC_X, sleep=opt.get("xsl", 0))
    stamp(A, opt, 2)
    for kb in range(40): xload(A, opt, kb)
    A.label("P2_MM2")
    A(f"""
    v_add_u32 v4, 61440, v5
    v_and_b32 v6, 31, v1
    v_lshrrev_b32 v7, 5, v1
    v_mul_u32_u24 v6, 0xc00, v6
    v_lshl_add_u32 v6, v7, 4, v6
    s_mul_i32 s4, s4, {32*3072}
    s_mul_i32 s5, s39, 192
    s_add_u32 s23, s4, s5
    """)
    A("s_barrier")
    stamp(A, opt, 5, True)

    def rd(j):
        off = j * 1024
        base, o = ("v5", off) if off < 61440 else ("v4", off - 61440)
        return f"ds_read_b128 {vr(vF+4*(j%NF),4)}, {base} offset:{o}"

    ysc = " sc1" if opt.get("ysc") else ""

    def epi(t):
        r = []
        for p in range(2):
            a = vACC + 16 * t + 8 * p
            o = vO + 4 * p
            r.append([f"v_cvt_pk_bf16_f32 v{o+j}, v{a+2*j}, v{a+2*j+1}" for j in range(4)])
            r.append(["s_nop 1", f"v_permlane32_swap_b32 v{o}, v{o+2}", f"v_permlane32_swap_b32 v{o+1}, v{o+3}",
                      f"buffer_store_dwordx4 {vr(o,4)}, v6, s[96:99], s23 offen offset:{64*t+32*p}{ysc if t < 2 else ''}"])
        return r

    starts = []
    f0 = 0
    for n in CH:
        starts.append(f0)
        f0 += n
    RA = opt.get("ra", 6)
    assert RA < NF

    def read(j):
        if j in starts: A("s_barrier")
        A(rd(j))

    for j in range(RA): read(j)
    pending = []
    for j in range(120):
        nbl, kb = divmod(j, 40)
        if nbl == 0: A(f"s_waitcnt vmcnt({39-kb})")
        A(f"s_waitcnt lgkmcnt({min(120, j + RA) - j - 1})")
        acc = vACC + 16 * nbl
        c = "0" if kb == 0 else vr(acc, 16)
        A(f"v_mfma_f32_32x32x16_bf16 {vr(acc,16)}, {vr(vF+4*(j%NF),4)}, {vr(VX+4*kb,4)}, {c}")
        if j == 0 and opt.get("stamp"):
            stamp(A, opt, 3)
            A("s_memtime s[80:81]\ns_nop 7\ns_nop 7\ns_waitcnt lgkmcnt(0)")
        if j + RA < 120: read(j + RA)
        if nbl and kb == 2: pending = epi(nbl - 1)
        if pending:
            for x in pending.pop(0): A(x)
    A("s_nop 15")
    stamp(A, opt, 6)
    if opt.get("stamp"):
        A("s_memtime s[82:83]\ns_waitcnt lgkmcnt(0)\ns_sub_u32 s72, s82, s80")
    for g in epi(2):
        for x in g: A(x)


def descriptor(name, vgpr, accum, sgpr):
    return f""".amdhsa_kernel {name}
  .amdhsa_next_free_vgpr {vgpr}
  .amdhsa_next_free_sgpr {sgpr}
  .amdhsa_accum_offset {accum}
  .amdhsa_group_segment_fixed_size 0
  .amdhsa_kernarg_size 72
  .amdhsa_user_sgpr_count 2
  .amdhsa_user_sgpr_kernarg_segment_ptr 1
  .amdhsa_system_sgpr_workgroup_id_x 1
  .amdhsa_float_denorm_mode_32 3
.end_amdhsa_kernel
"""


def generate(opt):
    out = HEADER
    k = f"kernel={KNAME} " if opt.get("list") else ""
    out += f"; @launch {k}grid=(256,1,1) block=(512,1,1) lds={LDS1}\n"
    out += '.amdgcn_target "amdgcn-amd-amdhsa--gfx950"\n.text\n'
    A = Asm()
    out += f".globl {KNAME}\n.p2align 8\n.type {KNAME},@function\n"
    gen_kernel(A, opt)
    out += A.text()
    out += "CODE_END:\n"
    out += '.section .rodata,"a"\n.p2align 6\n'
    out += descriptor(KNAME, 256, 256, 100)
    return out


if __name__ == "__main__":
    path = sys.argv[1] if len(sys.argv) > 1 else "standalone__weight_only_int_quip__prompt.s"
    opt = {}
    for a in sys.argv[2:]:
        k, _, v = a.partition("=")
        opt[k] = int(v) if v else 1
    open(path, "w").write(generate(opt))
    print("wrote", path)
```

```python
import sys

KNAME = "standalone__weight_only_int_quip__prompt_kernel"
HEADER = """; Kernarg layout for this problem (72 bytes, ptrs only, base s[0:1]):
"""

XRF = 0
W2F = 64 * 40 * 1024
FLG = W2F + 48 * 40 * 1024
WS_USED = FLG + 256 * 256

X_BYTES = 2048 * 640 * 2
QW_BYTES = 640 * 1536 * 4
SC_BYTES = 20 * 1536 * 2
U_BYTES = 640 * 640 * 2
V_BYTES = 1536 * 1536 * 2
OUT_BYTES = 2048 * 1536 * 2

VSTAGE = 32768
ABASE = 3 * VSTAGE
ASTAGE = 12288
TBL = ABASE + 2 * ASTAGE
LDS1 = TBL + 24576
QE = 112
XSTAGE = 32768
POLL_MAX = 40000


class Asm:
    def __init__(self):
        self.lines = []

    def __call__(self, s):
        for l in s.strip("\n").split("\n"):
            self.lines.append("    " + l.strip() if not l.strip().endswith(":") else l.strip())

    def label(self, s):
        self.lines.append(s + ":")

    def comment(self, s):
        self.lines.append("    ; " + s)

    def text(self):
        return "\n".join(self.lines) + "\n"


def vr(a, n):
    return f"v[{a}:{a+n-1}]"


STAMP_OFS = 32 << 20
NSTAMP = 8


def stamp(A, opt, i, wait=False):
    if opt.get("stamp") or ("probe" in opt and i in (0, opt["probe"])):
        A(f"s_memrealtime s[{64+2*i}:{65+2*i}]")
        if wait: A("s_waitcnt lgkmcnt(0)")


def stamp_begin(A, opt):
    if opt.get("stamp") or "probe" in opt:
        for i in range(1, NSTAMP):
            A(f"s_mov_b32 s{64+2*i}, 0")
    stamp(A, opt, 0)


def stamp_end(A, opt):
    if "probe" in opt:
        p = opt["probe"]
        wl, wh = opt.get("pwl", 0), opt.get("pwh", 7)
        A(f"""
        s_waitcnt vmcnt(0) lgkmcnt(0)
        s_memrealtime s[78:79]
        s_waitcnt lgkmcnt(0)
        s_cmp_ge_u32 s2, 256
        s_cbranch_scc1 PRB_X
        s_cmp_lt_u32 s36, {wl}
        s_cbranch_scc1 PRB_X
        s_cmp_gt_u32 s36, {wh}
        s_cbranch_scc1 PRB_X
        s_cmp_eq_u32 s{64+2*p}, 0
        s_cbranch_scc1 PRB_X
        s_sub_u32 s4, s{64+2*p}, s64
        s_mul_i32 s4, s4, 3
        s_min_u32 s4, s4, 20000
        """)
        A.label("PRB")
        A("""
        s_memrealtime s[6:7]
        s_waitcnt lgkmcnt(0)
        s_sub_u32 s5, s6, s78
        s_cmp_lt_u32 s5, s4
        s_cbranch_scc1 PRB
        """)
        A.label("PRB_X")
    if opt.get("stamp"):
        A("s_waitcnt vmcnt(0) lgkmcnt(0)")
        stamp(A, opt, NSTAMP - 1)
        A(f"""
        s_load_dwordx2 s[56:57], s[0:1], 64
        s_waitcnt lgkmcnt(0)
        s_mov_b32 s58, 0x7fffffff
        s_mov_b32 s59, 0x00020000
        v_lshrrev_b32 v1, 6, v0
        v_lshlrev_b32 v1, 5, v1
        s_lshl_b32 s4, s2, 8
        s_add_u32 s4, s4, {STAMP_OFS}
        """)
        for i in range(NSTAMP):
            A(f"v_mov_b32 v{4+i}, s{64+2*i}")
        A("""
        buffer_store_dwordx4 v[4:7], v1, s[56:59], s4 offen
        buffer_store_dwordx4 v[8:11], v1, s[56:59], s4 offen offset:16
        """)
    A("s_endpgm")


def poll_check(A, vdst, dc, again):
    A(f"v_cmp_ne_u32 vcc, 0, {vdst}")
    if dc & 0xffffffff: A(f"s_or_b32 vcc_lo, vcc_lo, {hex(dc & 0xffffffff)}")
    if dc >> 32: A(f"s_or_b32 vcc_hi, vcc_hi, {hex(dc >> 32)}")
    A(f"""
    s_cmp_eq_u64 vcc, -1
    s_cbranch_scc0 {again}
    """)


def poll(A, name, srd, soff, vaddr, vdst, dc, scnt="s7", sleep=0):
    A(f"s_mov_b32 {scnt}, {POLL_MAX}")
    if sleep: A(f"s_branch {name}_1")
    A.label(name)
    if sleep:
        A(f"s_sleep {sleep}")
        A.label(name + "_1")
    A(f"""
    s_sub_u32 {scnt}, {scnt}, 1
    s_cbranch_scc1 {name}_X
    buffer_load_dword {vdst}, {vaddr}, {srd}, {soff} offen sc1
    s_waitcnt vmcnt(0)
    """)
    A.label(name + "_C")
    poll_check(A, vdst, dc, name)
    A.label(name + "_X")


DC_X = 0xC00003FFFFFFFFFF
DC_W = 0xFFFFFC0000000000
DBG = "s[92:95]"


MAP = {"m": 3}


def p2_tile(A):
    lm = MAP["m"]
    ln = 5 - lm
    xm = 4 - lm
    A(f"""
    s_and_b32 s38, s37, {(1 << xm) - 1}
    s_lshl_b32 s38, s38, {lm}
    s_and_b32 s39, s3, {(1 << lm) - 1}
    s_add_u32 s38, s38, s39
    s_lshr_b32 s39, s37, {xm}
    s_lshl_b32 s39, s39, {ln}
    s_lshr_b32 s4, s3, {lm}
    s_add_u32 s39, s39, s4
    s_lshl_b32 s45, s38, 4
    s_add_u32 s45, s45, s39
    s_lshl_b32 s45, s45, 8
    s_add_u32 s45, s45, {FLG}
    """)


def publish(A, opt, sflag, sshift):
    A(f"""
    v_mov_b32 v2, 1
    v_lshlrev_b32 v3, {sshift}, v1
    s_waitcnt vmcnt(0)
    s_mov_b64 exec, 0xffff
    buffer_store_dword v2, v3, s[24:27], {sflag} offen sc1
    s_mov_b64 exec, -1
    """)
    stamp(A, opt, 4)


def gen_kernel(A, opt):
    A.label(KNAME)
    stamp_begin(A, opt)
    A("""
    s_load_dwordx2 s[8:9], s[0:1], 8
    s_load_dwordx2 s[12:13], s[0:1], 40
    s_load_dwordx2 s[16:17], s[0:1], 16
    s_load_dwordx2 s[20:21], s[0:1], 24
    s_load_dwordx2 s[28:29], s[0:1], 0
    s_load_dwordx2 s[32:33], s[0:1], 32
    s_load_dwordx2 s[24:25], s[0:1], 64
    s_load_dwordx2 s[92:93], s[0:1], 56
    s_load_dwordx2 s[96:97], s[0:1], 48
    s_cmp_ge_u32 s2, 256
    s_cbranch_scc1 K_EXIT
    v_and_b32 v1, 63, v0
    v_lshrrev_b32 v2, 6, v0
    s_getpc_b64 s[4:5]
    """)
    A.label("P1_PC")
    A("""
    v_readfirstlane_b32 s36, v2
    v_lshlrev_b32 v3, 7, v1
    v_add_u32 v4, 0x2000, v3
    v_min_u32 v4, CODE_END-P1_PC-4, v4
    s_lshr_b32 s3, s2, 3
    s_and_b32 s37, s2, 7
    s_cmp_lg_u32 s36, 7
    s_cbranch_scc1 P1_NOPF
    global_load_dword v60, v3, s[4:5]
    global_load_dword v61, v4, s[4:5]
    """)
    A.label("P1_NOPF")
    A(f"""
    s_mov_b32 s11, 0x00020000
    s_mov_b32 s15, 0x00020000
    s_mov_b32 s27, 0x00020000
    s_mov_b32 s26, {WS_USED}
    s_movk_i32 s94, 256
    s_mov_b32 s95, 0x00020000
    s_mov_b32 s98, {OUT_BYTES}
    s_mov_b32 s99, 0x00020000
    v_lshlrev_b32 v5, 4, v1
    s_cmp_ge_u32 s3, 21
    s_cbranch_scc1 P1_XR
    """)
    gen_w2(A, opt)
    A.label("P1_XR")
    gen_xr(A, opt)
    gen_p2(A, opt)
    A.label("K_EXIT")
    stamp_end(A, opt)


def gen_w2(A, opt):
    NQ = opt.get("nq", 2)
    RING = 3 * VSTAGE
    RG = opt.get("rg", 2)
    sW, sLOC, sXCD = "s36", "s3", "s37"
    sMI, sNI = "s40", "s41"
    sC = "s49"
    sVOFS = "s43"
    vVO = 6
    A(f"""
    s_mul_i32 s4, {sLOC}, 171
    s_lshr_b32 s4, s4, 9
    s_mul_i32 s5, s4, 3
    s_sub_u32 s5, {sLOC}, s5
    s_lshr_b32 s6, {sXCD}, 2
    s_mul_i32 s6, s6, 7
    s_add_u32 {sMI}, s6, s4
    s_and_b32 s6, {sXCD}, 3
    s_mul_i32 s6, s6, 3
    s_add_u32 {sNI}, s6, s5
    s_mul_i32 s42, {sMI}, 3
    s_mov_b32 s56, s4
    s_mov_b32 s57, s5
    """)
    W = opt.get("rw", 1)
    if W > 1:
        ra, rb = opt.get("rota", 1), opt.get("rotb", 1)
        P2 = sum((i % W) << (4 * i) for i in range(2 * W))
        A(f"""
        s_mul_i32 s6, s4, {ra}
        s_mul_i32 s7, s5, {rb}
        s_add_u32 s6, s6, s7
        """)
        if W in (2, 4):
            A(f"s_and_b32 s6, s6, {W-1}")
        else:
            M = {3: 86, 6: 43}[W]
            A(f"""
            s_mul_i32 s7, s6, {M}
            s_lshr_b32 s7, s7, 8
            s_mul_i32 s7, s7, {W}
            s_sub_u32 s6, s6, s7
            """)
        ones = sum(1 << (4 * i) for i in range(W))
        A(f"""
        s_lshl_b32 s6, s6, 2
        s_mov_b32 s60, {P2 & 0xffffffff}
        s_mov_b32 s61, {P2 >> 32}
        s_lshr_b64 s[60:61], s[60:61], s6
        s_and_b32 s6, s60, {(1 << (4*W)) - 1}
        s_mov_b32 s60, 0
        s_mov_b32 s61, 0
        s_mov_b32 s7, 0
        """)
        for j in range(12 // W - 1, -1, -1):
            A(f"""
            s_lshl_b64 s[60:61], s[60:61], {4*W}
            s_add_u32 s6, s6, {(ones * W * j) & 0xffffffff}
            s_or_b64 s[60:61], s[60:61], s[6:7]
            s_sub_u32 s6, s6, {(ones * W * j) & 0xffffffff}
            """)
    else:
        A("""
        s_mov_b32 s60, 0x76543210
        s_mov_b32 s61, 0xba98
        """)
    A(f"""
    s_sub_u32 s4, {sW}, 4
    s_cmp_lt_u32 s4, 3
    s_cbranch_scc1 W2_DEQ
    s_mov_b32 s14, {V_BYTES}
    v_lshrrev_b32 v2, 4, v1
    v_and_b32 v3, 15, v1
    v_lshlrev_b32 v4, 1, v2
    v_xor_b32 v3, v3, v4
    v_lshlrev_b32 v3, 4, v3
    v_mul_u32_u24 v4, 0xc00, v2
    v_add_u32 v{vVO}, v3, v4
    v_add_u32 v{vVO+1}, 11264, v{vVO}
    v_xor_b32 v3, 0x80, v{vVO}
    v_add_u32 v{vVO+2}, {2*11264}, v3
    v_add_u32 v{vVO+3}, {3*11264}, v3
    s_lshl_b32 {sVOFS}, {sNI}, 8
    s_cmp_lt_u32 {sW}, 4
    s_cbranch_scc1 W2_MFMA
    """)

    def v_group():
        for j in range(4):
            A(f"buffer_load_dwordx4 v{vVO+j}, s[12:15], {sVOFS} offen offset:{1024*j} lds")

    GPC, XPC = opt.get("gpc", 4), 11
    for g in range(1, 8):
        for j in range(4):
            A(f"v_add_u32 v{vVO+4*g+j}, {g*16*3072}, v{vVO+j}")
    p2_tile(A)
    A(f"""
    v_mov_b32 v40, 0
    v_lshlrev_b32 v41, 2, v1
    s_mov_b32 s44, {sVOFS}
    s_mov_b32 m0, {VSTAGE}
    s_mov_b32 {sC}, 1
    s_waitcnt lgkmcnt(0)
    """)
    stamp(A, opt, 1)
    A.label("W2L_LOOP")
    A(f"""
    s_lshr_b64 s[60:61], s[60:61], 4
    s_and_b32 s4, s60, 15
    s_mul_i32 s4, s4, 393216
    s_add_u32 {sVOFS}, s44, s4
    s_cmp_lg_u32 {sC}, {GPC}
    s_cbranch_scc1 W2L_NG
    buffer_load_dword v42, v40, {DBG}, 0 offen sc1
    """)
    A.label("W2L_NG")
    A(f"""
    s_cmp_lg_u32 {sC}, {XPC}
    s_cbranch_scc1 W2L_NX
    buffer_load_dword v42, v41, s[24:27], s45 offen sc1
    """)
    A.label("W2L_NX")
    for g in range(8):
        if g == 6: A("s_waitcnt vmcnt(54)")
        for j in range(4):
            A(f"buffer_load_dwordx4 v{vVO+4*g+j}, s[12:15], {sVOFS} offen offset:{1024*j} lds")
            if j == 3: A("s_add_u32 m0, m0, 4096")
            if j == 3 and g < 7: A("s_nop 0")
    A(f"""
    s_cmp_ge_u32 m0, {RING}
    s_cselect_b32 m0, 0, m0
    """)
    EC = opt.get("ec", 1)
    if EC:
        A(f"""
        s_cmp_gt_u32 {sC}, 2
        s_cbranch_scc1 W2L_NT
        s_add_u32 {sC}, {sC}, 1
        s_cmp_eq_u32 {sC}, 2
        s_cbranch_scc1 W2L_LOOP
        s_mov_b32 {sC}, 2
        s_barrier
        """)
    else:
        A(f"""
        s_cmp_lg_u32 {sC}, 1
        s_cbranch_scc1 W2L_NT
        """)
    A("s_barrier")
    if opt.get("prio", 1): A("s_setprio 3")
    A.label("W2L_NT")
    A(f"""
    s_waitcnt vmcnt(32)
    s_cmp_lg_u32 {sC}, {GPC}
    s_cbranch_scc1 W2L_G_X
    """)
    poll_check(A, "v42", 0, "W2L_GS")
    A.label("W2L_G_X")
    A(f"""
    s_add_u32 {sC}, {sC}, 1
    s_barrier
    s_cmp_lt_u32 {sC}, 12
    s_cbranch_scc1 W2L_LOOP
    s_setprio 0
    """)
    XE = opt.get("xe", 16)
    poll_check(A, "v42", DC_X, "W2L_XS")
    if opt.get("xlate"): A("s_branch W2L_XS")
    A(f"""
    s_lshl_b32 s4, s38, 2
    s_add_u32 s4, s4, 3
    s_mul_i32 s20, s4, 40960
    """)
    for kb in range(XE): xload(A, opt, kb)
    A(f"""
    s_waitcnt vmcnt({XE})
    s_barrier
    """)
    stamp(A, opt, 2)
    if opt.get("bst"): A("s_barrier")
    for kb in range(XE, 40): xload(A, opt, kb)
    A("s_branch P2_MM2")
    A.label("W2L_XS")
    A("""
    s_waitcnt vmcnt(0)
    s_barrier
    """)
    if opt.get("bst"): A("s_barrier")
    A("s_branch P2_MM0")
    A.label("W2L_GS")
    A(f"s_mov_b32 s7, {POLL_MAX}")
    A.label("W2L_G")
    A(f"""
    s_sub_u32 s7, s7, 1
    s_cbranch_scc1 W2L_G_X
    buffer_load_dword v42, v40, {DBG}, 0 offen sc1
    s_waitcnt vmcnt(0)
    """)
    poll_check(A, "v42", 0, "W2L_G")
    A("s_branch W2L_G_X")
    A.label("W2_DEQ")
    sB = "s38"
    sQOFS = "s43"
    vQO = 6
    vAW = 14
    vTB = 22
    U_ = 24
    Ft = 40
    O = 48
    vQ = 52
    QS = 32
    A(f"""
    s_mov_b32 {sB}, s4
    s_add_u32 s4, s42, {sB}
    s_cmp_ge_u32 s4, 40
    s_cbranch_scc1 W2D_IDLE
    s_mul_i32 s44, s4, {16*6144}
    s_mov_b64 s[62:63], s[60:61]
    s_lshr_b32 s6, s4, 1
    s_lshr_b32 s5, s42, 1
    s_sub_u32 s6, s6, s5
    s_mul_i32 s6, s6, 6144
    s_add_u32 s6, s6, {TBL}
    s_mov_b32 s10, {QW_BYTES}
    v_lshrrev_b32 v2, 5, v1
    v_and_b32 v3, 31, v1
    v_lshlrev_b32 v4, 4, v3
    v_mul_u32_u24 v{vQO}, 0x1800, v2
    v_add_u32 v{vQO}, v{vQO}, v4
    v_add_u32 v{vTB}, s6, v4
    """)
    QR = opt.get("qr", 3)
    A(f"s_mul_i32 s57, s57, {QR}")
    for i in range(7, -1, -1):
        A(f"""
        s_add_u32 s4, s57, {i}
        s_and_b32 s4, s4, 7
        s_mul_i32 s4, s4, 12288
        v_add_u32 v{vQO+i}, s4, v{vQO}
        """)
    A("s_waitcnt lgkmcnt(0)")
    stamp(A, opt, 1)

    def q_next():
        A(f"""
        s_and_b32 s4, s60, 15
        s_lshr_b64 s[60:61], s[60:61], 4
        s_lshl_b32 s4, s4, 9
        s_add_u32 {sQOFS}, s44, s4
        """)

    def q_issue(u):
        q = vQ + QS * u
        q_next()
        for i in range(8):
            A(f"buffer_load_dwordx4 {vr(q+4*i,4)}, v{vQO+i}, s[8:11], {sQOFS} offen")

    def t_read(n):
        u = U_ + 8 * (n & 1)
        A(f"""
        s_and_b32 s4, s62, 15
        s_lshr_b64 s[62:63], s[62:63], 4
        s_lshl_b32 s4, s4, 9
        v_add_u32 v{vTB+1}, s4, v{vTB}
        ds_read_b128 {vr(u,4)}, v{vTB+1}
        ds_read_b128 {vr(u+4,4)}, v{vTB+1} offset:12288
        """)

    for u in range(NQ):
        q_issue(u)
    A(f"""
    s_lshl_b32 s4, {sB}, 12
    s_add_u32 s4, s4, {ABASE}
    v_bfe_u32 v3, v1, 1, 4
    v_xor_b32 v4, v3, v2
    v_lshlrev_b32 v4, 4, v4
    v_lshl_add_u32 v4, v2, 8, v4
    v_and_b32 v3, 1, v1
    v_lshl_add_u32 v4, v3, 3, v4
    v_add_u32 v{vAW}, s4, v4
    """)
    for i in range(7, -1, -1):
        A(f"""
        s_add_u32 s4, s57, {i}
        s_and_b32 s4, s4, 7
        s_lshl_b32 s5, s4, 5
        s_lshl_b32 s4, s4, 9
        v_xor_b32 v3, s5, v{vAW}
        v_add_u32 v{vAW+i}, s4, v3
        """)
    p2_tile(A)
    A(f"""
    v_lshlrev_b32 v2, 2, v1
    s_mov_b32 {sC}, 0
    s_barrier
    """)
    if opt.get("prio", 1): A("s_setprio 3")
    t_read(0)
    A("s_waitcnt lgkmcnt(0)")
    assert 12 % NQ == 0
    UN = NQ if NQ % 2 == 0 else 2 * NQ
    assert 12 % UN == 0
    A.label("W2D_LOOP")
    for n in range(UN):
        u = n % NQ
        q = vQ + QS * u
        S = U_ + 8 * (n & 1)
        t_read(n + 1)
        q_next()
        A(f"""
        s_cmp_lt_u32 {sC}, {12-NQ-n+1}
        s_waitcnt vmcnt({8*(NQ-1)})
        s_cbranch_scc1 W2D_NT{n}
        s_waitcnt vmcnt({8*min(NQ-1, max(0, UN-1-n))})
        """)
        A.label(f"W2D_NT{n}")
        if n == UN - 1:
            A(f"""
            s_cmp_lg_u32 {sC}, {12-UN}
            s_cbranch_scc1 W2D_NP
            buffer_load_dword v3, v2, s[24:27], s45 offen sc1
            """)
            A.label("W2D_NP")
        A(f"s_cmp_lt_u32 {sC}, {12-NQ-n}")
        for i in range(8):
            qq = q + 4 * i
            f = Ft + 4 * (i & 1)
            o = O + 2 * (i & 1)
            A(f"""
            v_fma_f32 v{f}, v{qq}, v{S}, v{S+4}
            v_fma_f32 v{f+1}, v{qq+1}, v{S+1}, v{S+5}
            v_fma_f32 v{f+2}, v{qq+2}, v{S+2}, v{S+6}
            v_fma_f32 v{f+3}, v{qq+3}, v{S+3}, v{S+7}
            v_cvt_pk_bf16_f32 v{o}, v{f}, v{f+1}
            v_cvt_pk_bf16_f32 v{o+1}, v{f+2}, v{f+3}
            ds_write_b64 v{vAW+i}, {vr(o,2)} offset:{ASTAGE*(n&1)}
            """)
            if (i + 1) % RG == 0:
                A(f"s_cbranch_scc0 W2D_SK{n}_{i}")
                for ii in range(i + 1 - RG, i + 1):
                    A(f"buffer_load_dwordx4 {vr(q+4*ii,4)}, v{vQO+ii}, s[8:11], {sQOFS} offen")
                A.label(f"W2D_SK{n}_{i}")
        A("""
        s_waitcnt lgkmcnt(0)
        s_barrier
        """)
    A(f"""
    s_add_u32 {sC}, {sC}, {UN}
    s_cmp_lt_u32 {sC}, 12
    s_cbranch_scc1 W2D_LOOP
    s_setprio 0
    s_lshl_b32 s4, s38, 2
    s_add_u32 s4, s4, s36
    s_sub_u32 s4, s4, 4
    s_mul_i32 s20, s4, 40960
    s_mov_b32 s7, {POLL_MAX}
    s_waitcnt vmcnt(0)
    {"s_barrier" if opt.get("bst") else ""}
    s_branch {"P2_MM0" if opt.get("xlate") else "P2_X_C"}
    """)
    A.label("W2D_IDLE")
    A(f"""
    s_mov_b32 {sC}, 0
    s_waitcnt lgkmcnt(0)
    """)
    A.label("W2D_IDL")
    A(f"""
    s_barrier
    s_add_u32 {sC}, {sC}, 1
    s_cmp_lt_u32 {sC}, {14 if opt.get("bst") else 13}
    s_cbranch_scc1 W2D_IDL
    s_branch P2_MM0
    """)
    A.label("W2_MFMA")
    sCST = "s45"
    vAR = 10
    vBR = 14
    vT0, vT1 = 16, 17
    vST = 18
    vACC = 20
    vF = 44
    P = vF
    A(f"""
    s_lshl_b32 s4, {sW}, 13
    s_mov_b32 m0, s4
    s_mul_i32 s4, {sW}, {32*3072}
    s_add_u32 {sVOFS}, {sVOFS}, s4
    s_and_b32 s4, s60, 15
    s_mul_i32 s4, s4, 393216
    s_add_u32 {sVOFS}, {sVOFS}, s4
    s_lshr_b32 s6, s42, 1
    s_mul_i32 s6, s6, 3072
    s_mov_b32 s18, {SC_BYTES}
    s_mov_b32 s19, 0x00020000
    s_mov_b32 s22, {SC_BYTES}
    s_mov_b32 s23, 0x00020000
    v_and_b32 v2, 0xff, v0
    v_lshlrev_b32 v19, 3, v2
    s_waitcnt lgkmcnt(0)
    """)
    stamp(A, opt, 1)
    for j in range(2):
        A(f"""
        buffer_load_dwordx2 {vr(P+4*j,2)}, v19, s[16:19], s6 offen offset:{2048*j}
        buffer_load_dwordx2 {vr(P+4*j+2,2)}, v19, s[20:23], s6 offen offset:{2048*j}
        """)
    A(f"""
    s_add_u32 s6, s6, 4096
    buffer_load_dwordx2 {vr(P+8,2)}, v19, s[16:19], s6 offen
    buffer_load_dwordx2 {vr(P+10,2)}, v19, s[20:23], s6 offen
    """)
    v_group()
    A(f"""
    s_add_u32 m0, m0, 4096
    s_add_u32 {sVOFS}, {sVOFS}, {16*3072}
    """)
    v_group()
    TP = opt.get("tp", 1)
    T = 2 if TP == 1 else 0
    TC = opt.get("tc", 3)

    def touches():
        A(f"""
        v_lshrrev_b32 v2, 1, v1
        v_and_b32 v3, 1, v1
        v_mul_u32_u24 v2, 0xc00, v2
        v_lshl_add_u32 v2, v3, 7, v2
        v_min_u32 v3, {47 - 4*TC}, v1
        v_lshlrev_b32 v3, 7, v3
        v_add_u32 v3, {512*TC}, v3
        s_lshl_b32 s4, {sMI}, 2
        s_add_u32 s4, s4, {sW}
        s_add_u32 s4, s4, {4*TC}
        s_mul_i32 s4, s4, {32*3072}
        s_lshl_b32 s5, {sNI}, 8
        s_add_u32 s4, s4, s5
        s_lshl_b32 s5, {sNI}, 2
        s_add_u32 s5, s5, {sW}
        s_mul_i32 s6, {sMI}, 48
        s_add_u32 s5, s5, s6
        s_mul_i32 s5, s5, 6144
        s_mov_b32 s10, {QW_BYTES}
        buffer_load_dword v208, v2, s[12:15], s4 offen
        buffer_load_dword v209, v3, s[8:11], s5 offen
        """)
    if TP == 1: touches()
    A(f"""
    v_lshlrev_b32 v19, 1, v19
    v_add_u32 v19, {TBL}, v19
    v_and_b32 v2, 15, v1
    v_lshrrev_b32 v3, 4, v1
    v_xor_b32 v4, v2, v3
    v_lshlrev_b32 v4, 4, v4
    v_lshl_add_u32 v4, v2, 8, v4
    v_add_u32 v{vAR}, {ABASE}, v4
    v_xor_b32 v{vAR+1}, 64, v{vAR}
    v_xor_b32 v{vAR+2}, 128, v{vAR}
    v_xor_b32 v{vAR+3}, 192, v{vAR}
    v_bfe_u32 v2, v1, 2, 2
    v_and_b32 v4, 1, v3
    v_lshl_or_b32 v4, v4, 2, v2
    s_lshl_b32 s5, {sW}, 1
    v_xor_b32 v4, s5, v4
    v_lshlrev_b32 v4, 5, v4
    v_lshl_add_u32 v2, v3, 3, v2
    v_lshl_add_u32 v4, v2, 8, v4
    v_and_b32 v2, 3, v1
    v_lshl_add_u32 v{vBR}, v2, 3, v4
    v_xor_b32 v{vBR+1}, 32, v{vBR}
    s_mov_b32 {sCST}, 0
    s_mov_b32 {sC}, 0
    s_lshl_b32 s4, {sNI}, 2
    s_add_u32 s4, s4, {sW}
    s_mul_i32 s5, s4, 40
    s_add_u32 s5, s5, s42
    s_lshl_b32 s5, s5, 10
    s_add_u32 s50, s5, {W2F}
    s_mul_i32 s5, s4, 171
    s_lshr_b32 s5, s5, 9
    s_mul_i32 s6, s5, 3
    s_sub_u32 s6, s4, s6
    s_mul_i32 s6, s6, 14
    s_add_u32 s6, s6, {sMI}
    s_lshl_b32 s6, s6, 2
    s_lshl_b32 s5, s5, 8
    s_add_u32 s5, s5, s6
    s_add_u32 s51, s5, {FLG}
    s_mov_b32 s53, 12
    s_mov_b32 s54, {hex((127+149-QE) << 23)}
    s_mov_b32 s55, {hex((127+149-QE) << 23)}
    s_mov_b32 s46, 0xffff0000
    s_mov_b32 s47, {hex((127+QE) << 23)}
    s_mov_b32 s48, {hex(0x80000000 | ((127+QE-149) << 23))}
    v_bfe_u32 v3, v1, 4, 1
    v_lshrrev_b32 v4, 5, v1
    v_and_b32 v{vST}, 15, v1
    v_lshl_add_u32 v{vST}, v3, 5, v{vST}
    v_lshl_add_u32 v{vST}, v4, 4, v{vST}
    v_lshlrev_b32 v{vST}, 4, v{vST}
    """)
    for i in range(0, 24, 2):
        A(f"v_mov_b64 {vr(vACC+i,2)}, 0")
    for i in range(0, 80, 2):
        A(f"v_mov_b64 {vr(vF+80+i,2)}, 0")
    for j in range(3):
        q = P + 4 * j
        u = P + 16 + 8 * j
        A(f"""
        s_waitcnt vmcnt({8 + 4 - 2*j + T})
        v_lshlrev_b32 v{u}, 16, v{q}
        v_and_b32 v{u+1}, s46, v{q}
        v_lshlrev_b32 v{u+2}, 16, v{q+1}
        v_and_b32 v{u+3}, s46, v{q+1}
        v_lshlrev_b32 v{u+4}, 16, v{q+2}
        v_and_b32 v{u+5}, s46, v{q+2}
        v_lshlrev_b32 v{u+6}, 16, v{q+3}
        v_and_b32 v{u+7}, s46, v{q+3}
        """)
        for i in range(4): A(f"v_mul_f32 v{u+4+i}, s48, v{u+4+i}")
        for i in range(4): A(f"v_mul_f32 v{u+4+i}, v{u+i}, v{u+4+i}")
        for i in range(4): A(f"v_mul_f32 v{u+i}, s47, v{u+i}")
        A(f"""
        ds_write_b128 v19, {vr(u,4)} offset:{4096*j}
        ds_write_b128 v19, {vr(u+4,4)} offset:{4096*j+12288}
        """)
    if TP == 3: touches()
    A("""
    s_waitcnt lgkmcnt(0)
    s_barrier
    """)
    if TP == 2: touches()
    A(f"s_waitcnt vmcnt({2 if TP else 0})")

    def reads(s, buf):
        fa = vF + buf * 80 + 20 * s
        fb = fa + 12
        r = []
        for b in range(3):
            r.append(f"ds_read_b128 {vr(fa+4*b,4)}, v{vAR+s} offset:{4096*b + ASTAGE*buf}")
        for t in range(2):
            for u in range(2):
                r.append(f"ds_read_b64_tr_b16 {vr(fb+4*t+2*u,2)}, v{vT0+t} offset:{(32*s+4*u)*256}")
        return r

    def mfmas(s, buf):
        fa = vF + buf * 80 + 20 * s
        fb = fa + 12
        r = []
        for b in range(3):
            for t in range(2):
                acc = vACC + (b * 2 + t) * 4
                r.append(f"v_mfma_f32_16x16x32_bf16 {vr(acc,4)}, {vr(fa+4*b,4)}, {vr(fb+4*t,4)}, {vr(acc,4)}")
        return r

    A.label("W2M_LOOP")
    for buf in range(2):
        A(f"""
        v_add_u32 v{vT0}, {sCST}, v{vBR}
        v_add_u32 v{vT1}, {sCST}, v{vBR+1}
        s_add_u32 {sCST}, {sCST}, {VSTAGE}
        s_cmp_ge_u32 {sCST}, {RING}
        s_cselect_b32 {sCST}, 0, {sCST}
        s_barrier
        """)
        rd = sum((reads(s, buf) for s in range(4)), [])
        mf = sum((mfmas(s, buf ^ 1) for s in range(4)), [])
        seq = rd[:4]
        ri = 4
        for m in mf:
            seq.append(m)
            seq += rd[ri:ri + 1]
            ri += 1
        seq += rd[ri:]
        for x in seq: A(x)
        A("s_waitcnt lgkmcnt(0)")
        if (opt.get("stamp") or opt.get("probe") == 2) and buf == 0:
            A(f"""
            s_cmp_lg_u32 {sC}, 0
            s_cbranch_scc1 W2M_ST
            """)
            stamp(A, opt, 2, True)
            A.label("W2M_ST")
    A(f"""
    s_add_u32 {sC}, {sC}, 2
    s_cmp_lt_u32 {sC}, 12
    s_cbranch_scc1 W2M_LOOP
    s_setprio 3
    """)
    for s_ in range(4):
        for m in mfmas(s_, 1): A(m)
    A("s_nop 7")
    stamp(A, opt, 3)
    for b in range(3):
        a = vACC + 8 * b
        o = vF + 4 * b
        for j in range(4):
            A(f"v_pk_mul_f32 {vr(a+2*j,2)}, {vr(a+2*j,2)}, s[54:55]")
        A(f"""
        v_cvt_pk_bf16_f32 v{o}, v{a}, v{a+1}
        v_cvt_pk_bf16_f32 v{o+1}, v{a+2}, v{a+3}
        v_cvt_pk_bf16_f32 v{o+2}, v{a+4}, v{a+5}
        v_cvt_pk_bf16_f32 v{o+3}, v{a+6}, v{a+7}
        s_nop 1
        v_permlane32_swap_b32 v{o}, v{o+2}
        v_permlane32_swap_b32 v{o+1}, v{o+3}
        buffer_store_dwordx4 {vr(o,4)}, v{vST}, s[24:27], s50 offen offset:{1024*b} sc1
        """)
        if b == 0:
            A(f"""
            s_cmp_eq_u32 {sMI}, 13
            s_cbranch_scc1 W2M_END
            """)
    A.label("W2M_END")
    if opt.get("bst"): A("s_barrier")
    A("s_branch P2_PUB")


def wt_setup(A, opt, tag):
    TC = opt.get("wtc", 2)
    A(f"""
    s_sub_u32 s4, s2, 168
    s_cmp_ge_u32 s4, 48
    s_cbranch_scc1 WT_Q{tag}
    v_lshlrev_b32 v7, 7, v1
    s_lshl_b32 s46, s4, 13
    s_add_u32 s46, s46, {TC*393216}
    s_mov_b32 s47, 393216
    s_mov_b32 s8, s12
    s_mov_b32 s9, s13
    s_mov_b32 s10, {V_BYTES}
    s_branch WT_G{tag}
    """)
    A.label(f"WT_Q{tag}")
    A(f"""
    v_lshrrev_b32 v7, 2, v1
    v_mul_u32_u24 v7, 0x1800, v7
    v_and_b32 v3, 3, v1
    v_lshl_add_u32 v7, v3, 7, v7
    s_sub_u32 s4, s4, 48
    s_mul_i32 s46, s4, {16*6144}
    s_add_u32 s46, s46, {TC*512}
    s_movk_i32 s47, 512
    s_mov_b32 s10, {QW_BYTES}
    """)
    A.label(f"WT_G{tag}")


def wt(A, i):
    A(f"""
    buffer_load_dword v{16+i}, v7, s[8:11], s46 offen
    s_add_u32 s46, s46, s47
    """)


def gen_xr(A, opt):
    sW, sLOC, sXCD = "s36", "s3", "s37"
    sMT, sNT = "s40", "s41"
    sC = "s48"
    A(f"""
    s_sub_u32 s4, {sLOC}, 21
    s_cmp_ge_u32 s4, 5
    s_cselect_b32 s5, 1, 0
    s_cselect_b32 s6, 5, 0
    s_sub_u32 {sNT}, s4, s6
    s_lshl_b32 s7, {sXCD}, 1
    s_add_u32 {sMT}, s7, s5
    s_cmp_ge_u32 {sLOC}, 31
    s_cbranch_scc1 IDLE_WG
    s_cmp_lt_u32 {sW}, 4
    s_cbranch_scc1 XR_MFMA
    s_cmp_lt_u32 {sW}, 6
    s_cbranch_scc1 XR_LD
    """)
    A(f"""
    v_mov_b32 v2, 0
    v_lshlrev_b32 v6, 7, v1
    s_mul_i32 s4, {sMT}, 5
    s_add_u32 s4, s4, {sNT}
    s_lshl_b32 s5, s4, 15
    s_lshl_b32 s6, s4, 14
    s_mov_b32 s30, {X_BYTES}
    s_mov_b32 s31, 0x00020000
    s_mov_b32 s34, {U_BYTES}
    s_mov_b32 s35, 0x00020000
    s_waitcnt lgkmcnt(0)
    """)
    if opt.get("tx", 1):
        A(f"""
        s_cmp_lg_u32 {sW}, 6
        s_cbranch_scc1 XR_TU
        """)
        for i in range(4):
            A(f"buffer_load_dword v{8+i}, v6, s[28:31], s5 offen")
            if i < 3: A("s_add_u32 s5, s5, 8192")
        A("s_branch XR_TX")
        A.label("XR_TU")
        for i in range(2):
            A(f"buffer_load_dword v{8+i}, v6, s[32:35], s6 offen")
            if i < 1: A("s_add_u32 s6, s6, 8192")
        A.label("XR_TX")
    WT = opt.get("wt", 0)
    NT_ = 12 - opt.get("wtc", 2)
    if WT:
        A(f"""
        s_cmp_lg_u32 {sW}, 7
        s_cbranch_scc1 XR_W6
        """)
        wt_setup(A, opt, "x")
        k = 0
        for b in range(10):
            for _ in range(WT if b == 0 else opt.get("wtn", 1)):
                if k < NT_:
                    wt(A, k); k += 1
            A("s_barrier")
        A("s_branch P2_MM0")
        A.label("XR_W6")
    for i in range(5): A("s_barrier")
    A(f"""
    s_cmp_lg_u32 {sW}, 6
    s_cbranch_scc1 XR_G_X
    """)
    poll(A, "XR_G", DBG, "0", "v2", "v3", 0)
    for i in range(5): A("s_barrier")
    A("s_branch P2_MM0")
    A.label("IDLE_WG")
    A(f"""
    v_mov_b32 v2, 0
    v_mov_b32 v3, 1
    s_cmp_lg_u32 {sXCD}, 0
    s_waitcnt lgkmcnt(0)
    s_cbranch_scc1 IDLE_G0
    v_mov_b32 v6, 0
    v_mov_b32 v7, 0
    v_mov_b32 v8, 0
    v_mov_b32 v9, 0
    s_lshl_b32 s4, {sW}, 13
    s_add_u32 s4, s4, {FLG}
    s_add_u32 s5, s4, 4096
    """)
    for i in range(8):
        A(f"buffer_store_dwordx4 v[6:9], v5, s[24:27], s{4+i//4} offen offset:{1024*(i&3)} sc1")
    A("s_waitcnt vmcnt(0)")
    A.label("IDLE_G0")
    A("s_barrier")
    if opt.get("it"):
        TC = opt.get("wtc", 2)
        A(f"""
        s_lshl_b32 s4, {sXCD}, 3
        s_add_u32 s4, s4, {sW}
        v_lshlrev_b32 v7, 7, v1
        s_lshl_b32 s46, s4, 13
        s_add_u32 s46, s46, {TC*393216}
        s_mov_b32 s14, {V_BYTES}
        v_lshrrev_b32 v8, 3, v1
        v_mul_u32_u24 v8, 0x1800, v8
        v_and_b32 v9, 7, v1
        v_lshl_add_u32 v8, v9, 7, v8
        s_mul_i32 s47, s4, {10*6144}
        s_add_u32 s47, s47, {TC*512}
        s_mov_b32 s10, {QW_BYTES}
        v_cmp_gt_u32 vcc, 16, v1
        v_add_u32 v9, {8*6144}, v8
        v_cndmask_b32 v9, v8, v9, vcc
        """)
        nv = ((12 - TC) * 48 + 63) // 64
        k = 0
        for p in range((12 - TC) // 2):
            A(f"""
            buffer_load_dword v{16+k}, v8, s[8:11], s47 offen
            buffer_load_dword v{17+k}, v9, s[8:11], s47 offen
            s_add_u32 s47, s47, 1024
            """)
            k += 2
            for _ in range(2 if p % 2 == 0 else 1):
                if nv:
                    A(f"""
                    buffer_load_dword v{16+k}, v7, s[12:15], s46 offen
                    s_add_u32 s46, s46, {64*8192}
                    """)
                    k += 1; nv -= 1
        assert nv == 0, nv
    if WT:
        A(f"""
        s_cmp_lg_u32 {sW}, 7
        s_cbranch_scc1 IDLE_NT
        """)
        wt_setup(A, opt, "i")
        for k in range(NT_):
            wt(A, k)
            if k >= WT - 1 and k < NT_ - 1: A("s_sleep 12")
        A.label("IDLE_NT")
    A(f"""
    s_cmp_lg_u32 {sW}, 0
    s_cbranch_scc1 IDLE_G_X
    s_cmp_lg_u32 {sXCD}, 0
    s_cbranch_scc1 IDLE_G1
    s_mov_b64 exec, 1
    buffer_store_dword v3, v2, {DBG}, 0 offen sc1
    s_mov_b64 exec, -1
    """)
    A.label("IDLE_G1")
    poll(A, "IDLE_G", DBG, "0", "v2", "v3", 0, sleep=8)
    A(f"""
    s_barrier
    s_cmp_lt_u32 {sW}, 4
    s_cbranch_scc1 P2_LD
    s_branch P2_MM0
    """)
    A.label("XR_LD")
    sOFS, sGRP, sCH = "s43", "s45", "s46"
    vO = 6
    A(f"""
    v_lshrrev_b32 v3, 4, v1
    s_cmp_eq_u32 {sW}, 4
    s_cbranch_scc0 XRL_U
    v_lshrrev_b32 v2, 3, v1
    v_and_b32 v4, 7, v1
    v_xor_b32 v4, v4, v3
    v_lshlrev_b32 v4, 4, v4
    v_mul_u32_u24 v{vO}, 0x500, v2
    v_add_u32 v{vO}, v{vO}, v4
    v_xor_b32 v4, 64, v{vO}
    v_add_u32 v{vO+1}, 9216, v4
    v_add_u32 v{vO+2}, {2*9216}, v{vO}
    v_add_u32 v{vO+3}, {3*9216}, v4
    s_mul_i32 {sOFS}, {sMT}, {128*1280}
    s_mov_b32 {sGRP}, {32*1280}
    s_mov_b32 {sCH}, {128 - 128*1280 + (1<<32)}
    s_mov_b32 m0, 0
    s_mov_b32 s30, {X_BYTES}
    s_waitcnt lgkmcnt(0)
    s_branch XRL_GO
    """)
    A.label("XRL_U")
    A(f"""
    v_and_b32 v4, 15, v1
    v_lshlrev_b32 v2, 2, v3
    v_xor_b32 v4, v4, v2
    v_lshlrev_b32 v4, 4, v4
    v_mul_u32_u24 v{vO}, 0x500, v3
    v_add_u32 v{vO}, v{vO}, v4
    v_add_u32 v{vO+1}, {4*1280-1024}, v{vO}
    v_add_u32 v{vO+2}, {2*(4*1280-1024)}, v{vO}
    v_add_u32 v{vO+3}, {3*(4*1280-1024)}, v{vO}
    s_lshl_b32 {sOFS}, {sNT}, 8
    s_mov_b32 {sGRP}, {16*1280}
    s_mov_b32 {sCH}, 0
    s_movk_i32 m0, 16384
    s_mov_b32 s30, {U_BYTES}
    s_waitcnt lgkmcnt(0)
    s_mov_b32 s28, s32
    s_mov_b32 s29, s33
    """)
    A.label("XRL_GO")
    A(f"""
    s_mov_b32 s31, 0x00020000
    s_mov_b32 {sC}, 0
    """)
    A.label("XRL_LOOP")
    for g in range(4):
        for j in range(4):
            A(f"buffer_load_dwordx4 v{vO+j}, s[28:31], {sOFS} offen offset:{1024*j} lds")
        A(f"""
        s_add_u32 m0, m0, 4096
        s_add_u32 {sOFS}, {sOFS}, {sGRP}
        """)
    A(f"""
    s_add_u32 {sOFS}, {sOFS}, {sCH}
    s_add_u32 m0, m0, 16384
    s_and_b32 m0, m0, {4*XSTAGE-1}
    s_add_u32 {sC}, {sC}, 1
    s_and_b32 s4, {sC}, 13
    s_cmp_eq_u32 s4, 1
    s_cbranch_scc1 XRL_LOOP
    s_cmp_eq_u32 {sC}, 2
    s_cbranch_scc0 XRL_W
    s_waitcnt vmcnt(16)
    """)
    A.label("XRL_W")
    A(f"""
    s_waitcnt vmcnt(32)
    s_barrier
    s_cmp_lt_u32 {sC}, 10
    s_cbranch_scc1 XRL_LOOP
    s_waitcnt vmcnt(16)
    s_barrier
    s_waitcnt vmcnt(0)
    s_barrier
    s_branch P2_MM0
    """)
    A.label("XR_MFMA")
    sCST = "s43"
    vXR = 6
    vUR = 10
    vT = 12
    vACC = 20
    vF = 84
    A(f"""
    s_lshr_b32 s4, {sW}, 1
    s_and_b32 s5, {sW}, 1
    s_lshl_b32 s6, s4, 13
    v_and_b32 v3, 31, v1
    v_bfe_u32 v4, v1, 1, 3
    v_lshrrev_b32 v{vT}, 5, v1
    v_xor_b32 v4, v4, v{vT}
    v_lshlrev_b32 v4, 4, v4
    v_lshl_add_u32 v4, v3, 7, v4
    v_add_u32 v{vXR}, s6, v4
    v_xor_b32 v{vXR+1}, 32, v{vXR}
    v_xor_b32 v{vXR+2}, 64, v{vXR}
    v_xor_b32 v{vXR+3}, 96, v{vXR}
    v_bfe_u32 v2, v1, 4, 1
    v_bfe_u32 v3, v1, 2, 2
    s_lshl_b32 s6, s5, 1
    v_xor_b32 v4, s6, v3
    v_lshlrev_b32 v4, 6, v4
    v_lshl_add_u32 v4, v3, 8, v4
    v_lshl_add_u32 v4, v{vT}, 11, v4
    v_lshl_add_u32 v4, v2, 5, v4
    v_and_b32 v3, 3, v1
    v_lshl_add_u32 v4, v3, 3, v4
    v_add_u32 v{vUR}, 16384, v4
    v_xor_b32 v{vUR+1}, 64, v{vUR}
    s_mov_b32 {sCST}, 0
    s_mov_b32 {sC}, 0
    s_lshl_b32 s6, {sMT}, 1
    s_add_u32 s6, s6, s4
    s_lshl_b32 s7, {sNT}, 1
    s_add_u32 s7, s7, s5
    s_mul_i32 s51, s4, 10
    s_add_u32 s51, s51, s7
    s_lshl_b32 s51, s51, 2
    s_lshl_b32 s52, {sMT}, 12
    s_add_u32 s51, s51, s52
    s_add_u32 s51, s51, {FLG + 42*4}
    s_mov_b32 s53, 8
    s_mul_i32 s6, s6, 80
    s_lshl_b32 s7, s7, 2
    s_add_u32 s6, s6, s7
    s_lshl_b32 s50, s6, 10
    s_add_u32 s52, s50, 40960
    """)
    for i in range(0, 64, 2):
        A(f"v_mov_b64 {vr(vACC+i,2)}, 0")
    for i in range(0, 64, 2):
        A(f"v_mov_b64 {vr(vF+64+i,2)}, 0")
    A("s_waitcnt lgkmcnt(0)")

    def reads(s, buf):
        f = vF + 64 * buf + 16 * s
        r = []
        for tn in range(2):
            r.append(f"ds_read_b128 {vr(f+8+4*tn,4)}, v{vT+s} offset:{4096*tn}")
            for u in range(2):
                r.append(f"ds_read_b64_tr_b16 {vr(f+4*tn+2*u,2)}, v{vT+4+tn} offset:{s*4096+u*1024}")
        return r

    def mfmas(s, buf):
        f = vF + 64 * buf + 16 * s
        r = []
        for tm in range(2):
            for tn in range(2):
                acc = vACC + 32 * tm + 16 * tn
                r.append(f"v_mfma_f32_32x32x16_bf16 {vr(acc,16)}, {vr(f+4*tn,4)}, {vr(f+8+4*tm,4)}, {vr(acc,16)}")
        return r

    A.label("XR_LOOP")
    for buf in range(2):
        for i in range(4):
            A(f"v_add_u32 v{vT+i}, {sCST}, v{vXR+i}")
        for i in range(2):
            A(f"v_add_u32 v{vT+4+i}, {sCST}, v{vUR+i}")
        A(f"""
        s_add_u32 {sCST}, {sCST}, {XSTAGE}
        s_and_b32 {sCST}, {sCST}, {4*XSTAGE-1}
        s_barrier
        """)
        rd = sum((reads(s_, buf) for s_ in range(4)), [])
        mf = sum((mfmas(s_, buf ^ 1) for s_ in range(4)), [])
        ri = 0
        for m in mf:
            A(m)
            for x in rd[ri:ri + 2]: A(x)
            ri += 2
        for x in rd[ri:]: A(x)
        A("s_waitcnt lgkmcnt(0)")
    A(f"""
    s_add_u32 {sC}, {sC}, 2
    s_cmp_lt_u32 {sC}, 10
    s_cbranch_scc1 XR_LOOP
    """)
    for s_ in range(4):
        for m in mfmas(s_, 1): A(m)
    A("s_nop 15")
    stamp(A, opt, 3)
    for tm in range(2):
        for i in range(4):
            a = vACC + 32 * tm + 8 * i
            o = vF + 16 * tm + 4 * i
            for j in range(4):
                A(f"v_cvt_pk_bf16_f32 v{o+j}, v{a+2*j}, v{a+2*j+1}")
            A(f"buffer_store_dwordx4 {vr(o,4)}, v5, s[24:27], s{50+2*tm} offen offset:{1024*i} sc1")


VX = 96


def xload(A, opt, kb):
    sc = "" if opt.get("xplain") else " sc1"
    A(f"buffer_load_dwordx4 {vr(VX+4*kb,4)}, v5, s[24:27], s20 offen offset:{1024*(kb&3)}{sc}")
    if kb & 3 == 3 and kb < 39:
        A("s_add_u32 s20, s20, 4096")


def gen_p2(A, opt):
    CH = {1: [8, 8, 16, 24, 32, 32], 2: [8, 16, 16, 16, 16, 16, 16, 16], 3: [4, 8, 12, 16, 16, 32, 32],
          4: [16, 24, 40, 40]}[opt.get("ch", 1)]
    assert sum(CH) == 120
    wsc = "" if opt.get("wplain") else " sc1"
    A.label("P2_PUB")
    publish(A, opt, "s51", "s53")
    A.label("P2_LD")
    p2_tile(A)
    A(f"""
    s_mul_i32 s22, s39, 122880
    s_add_u32 s22, s22, {W2F}
    s_lshl_b32 s21, s36, 10
    v_lshlrev_b32 v2, 2, v1
    s_cmp_lg_u32 s36, 0
    s_cbranch_scc1 P2_W_X
    """)
    poll(A, "P2_W", "s[24:27]", "s45", "v2", "v3", DC_W, sleep=opt.get("wsl", 0))
    A("s_barrier")
    stamp(A, opt, 5)
    AH = opt.get("ah", 4)
    st = [sum(CH[:i]) for i in range(len(CH) + 1)]

    def issue(c):
        per = CH[c] // 4
        A(f"""
        s_mul_i32 s4, s21, {per}
        s_add_u32 m0, s4, {st[c]*1024}
        s_add_u32 s5, m0, s22
        """)
        for i in range(per):
            if i and i % 4 == 0:
                A("""
                s_add_u32 m0, m0, 4096
                s_add_u32 s5, s5, 4096
                """)
            A(f"buffer_load_dwordx4 v5, s[24:27], s5 offen offset:{1024*(i&3)}{wsc} lds")

    for c in range(min(AH, len(CH))): issue(c)
    for c in range(len(CH)):
        issued = min(len(CH), AH + c)
        A(f"""
        s_waitcnt vmcnt({(st[issued] - st[c+1]) // 4})
        s_barrier
        """)
        if AH + c < len(CH): issue(AH + c)
    stamp(A, opt, 6)
    A("s_branch K_EXIT")

    vACC = 8
    vF = 56
    NF = 8
    vO = 88
    A.label("P2_MM0")
    if opt.get("xlate") == 1: A("s_barrier")
    p2_tile(A)
    A(f"""
    v_lshlrev_b32 v2, 2, v1
    s_lshl_b32 s4, s38, 2
    s_add_u32 s4, s4, s36
    s_sub_u32 s4, s4, 4
    s_mul_i32 s20, s4, 40960
    """)
    poll(A, "P2_X", "s[24:27]", "s45", "v2", "v3", DC_X, sleep=opt.get("xsl", 0))
    stamp(A, opt, 2)
    if opt.get("xlate") == 2: A("s_barrier")
    for kb in range(40):
        xload(A, opt, kb)
        if opt.get("xpace") and kb % 4 == 3 and kb < 39: A(f"s_waitcnt vmcnt({opt['xpace'] - 1})")
    A.label("P2_MM2")
    A(f"""
    v_add_u32 v4, 61440, v5
    v_and_b32 v6, 31, v1
    v_lshrrev_b32 v7, 5, v1
    v_mul_u32_u24 v6, 0xc00, v6
    v_lshl_add_u32 v6, v7, 4, v6
    s_mul_i32 s4, s4, {32*3072}
    s_mul_i32 s5, s39, 192
    s_add_u32 s23, s4, s5
    """)
    if not opt.get("xlate"): A("s_barrier")
    stamp(A, opt, 5, True)

    def rd(j):
        off = j * 1024
        base, o = ("v5", off) if off < 61440 else ("v4", off - 61440)
        return f"ds_read_b128 {vr(vF+4*(j%NF),4)}, {base} offset:{o}"

    ysc = " sc1" if opt.get("ysc") else ""

    def epi(t):
        r = []
        for p in range(2):
            a = vACC + 16 * t + 8 * p
            o = vO + 4 * p
            r.append([f"v_cvt_pk_bf16_f32 v{o+j}, v{a+2*j}, v{a+2*j+1}" for j in range(4)])
            r.append(["s_nop 1", f"v_permlane32_swap_b32 v{o}, v{o+2}", f"v_permlane32_swap_b32 v{o+1}, v{o+3}",
                      f"buffer_store_dwordx4 {vr(o,4)}, v6, s[96:99], s23 offen offset:{64*t+32*p}{ysc if t < 2 else ''}"])
        return r

    starts = []
    f0 = 0
    for n in CH:
        starts.append(f0)
        f0 += n
    RA = opt.get("ra", 6)
    assert RA < NF

    KBM = opt.get("kbm", 0)
    AB = opt.get("allbar", 0)
    order = [(j % 3) * 40 + j // 3 for j in range(120)] if KBM else list(range(120))

    def rd(i):
        off = order[i] * 1024
        base, o = ("v5", off) if off < 61440 else ("v4", off - 61440)
        return f"ds_read_b128 {vr(vF+4*(i%NF),4)}, {base} offset:{o}"

    def read(j):
        if j in starts and not AB: A("s_barrier")
        A(rd(j))

    if AB:
        for _ in CH: A("s_barrier")
        A("s_waitcnt vmcnt(0)")
    for j in range(RA): read(j)
    pending = []
    for j in range(120):
        nbl, kb = divmod(order[j], 40)
        if nbl == 0 and not AB: A(f"s_waitcnt vmcnt({39-kb})")
        A(f"s_waitcnt lgkmcnt({min(120, j + RA) - j - 1})")
        acc = vACC + 16 * nbl
        c = "0" if kb == 0 else vr(acc, 16)
        A(f"v_mfma_f32_32x32x16_bf16 {vr(acc,16)}, {vr(vF+4*(j%NF),4)}, {vr(VX+4*kb,4)}, {c}")
        if j == 0 and opt.get("stamp"):
            stamp(A, opt, 3)
            A("s_memtime s[80:81]\ns_nop 7\ns_nop 7\ns_waitcnt lgkmcnt(0)")
        if j + RA < 120: read(j + RA)
        if nbl and kb == 2 and not KBM: pending = epi(nbl - 1)
        if pending:
            for x in pending.pop(0): A(x)
    A("s_nop 15")
    stamp(A, opt, 6)
    if opt.get("stamp"):
        A("s_memtime s[82:83]\ns_waitcnt lgkmcnt(0)\ns_sub_u32 s72, s82, s80")
    for t in ((0, 1, 2) if KBM else (2,)):
        for g in epi(t):
            for x in g: A(x)


def descriptor(name, vgpr, accum, sgpr):
    return f""".amdhsa_kernel {name}
  .amdhsa_next_free_vgpr {vgpr}
  .amdhsa_next_free_sgpr {sgpr}
  .amdhsa_accum_offset {accum}
  .amdhsa_group_segment_fixed_size 0
  .amdhsa_kernarg_size 72
  .amdhsa_user_sgpr_count 2
  .amdhsa_user_sgpr_kernarg_segment_ptr 1
  .amdhsa_system_sgpr_workgroup_id_x 1
  .amdhsa_float_denorm_mode_32 3
.end_amdhsa_kernel
"""


def generate(opt):
    out = HEADER
    MAP["m"] = opt.get("map", 3)
    k = f"kernel={KNAME} " if opt.get("list") else ""
    out += f"; @launch {k}grid=(256,1,1) block=(512,1,1) lds={LDS1}\n"
    out += '.amdgcn_target "amdgcn-amd-amdhsa--gfx950"\n.text\n'
    A = Asm()
    out += f".globl {KNAME}\n.p2align 8\n.type {KNAME},@function\n"
    gen_kernel(A, opt)
    out += A.text()
    out += "CODE_END:\n"
    out += '.section .rodata,"a"\n.p2align 6\n'
    out += descriptor(KNAME, 256, 256, 100)
    return out


if __name__ == "__main__":
    path = sys.argv[1] if len(sys.argv) > 1 else "standalone__weight_only_int_quip__prompt.s"
    opt = {}
    for a in sys.argv[2:]:
        k, _, v = a.partition("=")
        opt[k] = int(v) if v else 1
    open(path, "w").write(generate(opt))
    print("wrote", path)
```

```python
import sys

KNAME = "standalone__weight_only_int_quip__prompt_kernel"
HEADER = """; Kernarg layout for this problem (72 bytes, ptrs only, base s[0:1]):
"""

XRF = 0
W2F = 64 * 40 * 1024
FLG = W2F + 48 * 40 * 1024
WS_USED = FLG + 256 * 256

X_BYTES = 2048 * 640 * 2
QW_BYTES = 640 * 1536 * 4
SC_BYTES = 20 * 1536 * 2
U_BYTES = 640 * 640 * 2
V_BYTES = 1536 * 1536 * 2
OUT_BYTES = 2048 * 1536 * 2

VSTAGE = 32768
ABASE = 3 * VSTAGE
ASTAGE = 12288
TBL = ABASE + 2 * ASTAGE
LDS1 = TBL + 24576
QE = 112
XSTAGE = 32768
POLL_MAX = 40000


class Asm:
    def __init__(self):
        self.lines = []

    def __call__(self, s):
        for l in s.strip("\n").split("\n"):
            self.lines.append("    " + l.strip() if not l.strip().endswith(":") else l.strip())

    def label(self, s):
        self.lines.append(s + ":")

    def comment(self, s):
        self.lines.append("    ; " + s)

    def text(self):
        return "\n".join(self.lines) + "\n"


def vr(a, n):
    return f"v[{a}:{a+n-1}]"


STAMP_OFS = 32 << 20
NSTAMP = 8


def stamp(A, opt, i, wait=False):
    if opt.get("stamp") or ("probe" in opt and i in (0, opt["probe"])):
        A(f"s_memrealtime s[{64+2*i}:{65+2*i}]")
        if wait: A("s_waitcnt lgkmcnt(0)")


def stamp_begin(A, opt):
    if opt.get("stamp") or "probe" in opt:
        for i in range(1, NSTAMP):
            A(f"s_mov_b32 s{64+2*i}, 0")
    stamp(A, opt, 0)


def stamp_end(A, opt):
    if "probe" in opt:
        p = opt["probe"]
        wl, wh = opt.get("pwl", 0), opt.get("pwh", 7)
        A(f"""
        s_waitcnt vmcnt(0) lgkmcnt(0)
        s_memrealtime s[78:79]
        s_waitcnt lgkmcnt(0)
        s_cmp_ge_u32 s2, 256
        s_cbranch_scc1 PRB_X
        s_cmp_lt_u32 s36, {wl}
        s_cbranch_scc1 PRB_X
        s_cmp_gt_u32 s36, {wh}
        s_cbranch_scc1 PRB_X
        s_cmp_eq_u32 s{64+2*p}, 0
        s_cbranch_scc1 PRB_X
        s_sub_u32 s4, s{64+2*p}, s64
        s_mul_i32 s4, s4, 3
        s_min_u32 s4, s4, 20000
        """)
        A.label("PRB")
        A("""
        s_memrealtime s[6:7]
        s_waitcnt lgkmcnt(0)
        s_sub_u32 s5, s6, s78
        s_cmp_lt_u32 s5, s4
        s_cbranch_scc1 PRB
        """)
        A.label("PRB_X")
    if opt.get("stamp"):
        A("s_waitcnt vmcnt(0) lgkmcnt(0)")
        stamp(A, opt, NSTAMP - 1)
        A(f"""
        s_load_dwordx2 s[56:57], s[0:1], 64
        s_waitcnt lgkmcnt(0)
        s_mov_b32 s58, 0x7fffffff
        s_mov_b32 s59, 0x00020000
        v_lshrrev_b32 v1, 6, v0
        v_lshlrev_b32 v1, 5, v1
        s_lshl_b32 s4, s2, 8
        s_add_u32 s4, s4, {STAMP_OFS}
        """)
        for i in range(NSTAMP):
            A(f"v_mov_b32 v{4+i}, s{64+2*i}")
        A("""
        buffer_store_dwordx4 v[4:7], v1, s[56:59], s4 offen
        buffer_store_dwordx4 v[8:11], v1, s[56:59], s4 offen offset:16
        """)
    A("s_endpgm")


def poll_check(A, vdst, dc, again):
    A(f"v_cmp_ne_u32 vcc, 0, {vdst}")
    if dc & 0xffffffff: A(f"s_or_b32 vcc_lo, vcc_lo, {hex(dc & 0xffffffff)}")
    if dc >> 32: A(f"s_or_b32 vcc_hi, vcc_hi, {hex(dc >> 32)}")
    A(f"""
    s_cmp_eq_u64 vcc, -1
    s_cbranch_scc0 {again}
    """)


def poll(A, name, srd, soff, vaddr, vdst, dc, scnt="s7", sleep=0):
    A(f"s_mov_b32 {scnt}, {POLL_MAX}")
    if sleep: A(f"s_branch {name}_1")
    A.label(name)
    if sleep:
        A(f"s_sleep {sleep}")
        A.label(name + "_1")
    A(f"""
    s_sub_u32 {scnt}, {scnt}, 1
    s_cbranch_scc1 {name}_X
    buffer_load_dword {vdst}, {vaddr}, {srd}, {soff} offen sc1
    s_waitcnt vmcnt(0)
    """)
    A.label(name + "_C")
    poll_check(A, vdst, dc, name)
    A.label(name + "_X")


DC_X = 0xC00003FFFFFFFFFF
DC_W = 0xFFFFFC0000000000
DBG = "s[92:95]"


MAP = {"m": 3}


def p2_tile(A):
    lm = MAP["m"]
    ln = 5 - lm
    xm = 4 - lm
    A(f"""
    s_and_b32 s38, s37, {(1 << xm) - 1}
    s_lshl_b32 s38, s38, {lm}
    s_and_b32 s39, s3, {(1 << lm) - 1}
    s_add_u32 s38, s38, s39
    s_lshr_b32 s39, s37, {xm}
    s_lshl_b32 s39, s39, {ln}
    s_lshr_b32 s4, s3, {lm}
    s_add_u32 s39, s39, s4
    s_lshl_b32 s45, s38, 4
    s_add_u32 s45, s45, s39
    s_lshl_b32 s45, s45, 8
    s_add_u32 s45, s45, {FLG}
    """)


def publish(A, opt, sflag, sshift):
    A(f"""
    v_mov_b32 v2, 1
    v_lshlrev_b32 v3, {sshift}, v1
    s_waitcnt vmcnt(0)
    s_mov_b64 exec, 0xffff
    buffer_store_dword v2, v3, s[24:27], {sflag} offen sc1
    s_mov_b64 exec, -1
    """)
    stamp(A, opt, 4)


def gen_kernel(A, opt):
    A.label(KNAME)
    stamp_begin(A, opt)
    A("""
    s_load_dwordx2 s[8:9], s[0:1], 8
    s_load_dwordx2 s[12:13], s[0:1], 40
    s_load_dwordx2 s[16:17], s[0:1], 16
    s_load_dwordx2 s[20:21], s[0:1], 24
    s_load_dwordx2 s[28:29], s[0:1], 0
    s_load_dwordx2 s[32:33], s[0:1], 32
    s_load_dwordx2 s[24:25], s[0:1], 64
    s_load_dwordx2 s[92:93], s[0:1], 56
    s_load_dwordx2 s[96:97], s[0:1], 48
    s_cmp_ge_u32 s2, 256
    s_cbranch_scc1 K_EXIT
    v_and_b32 v1, 63, v0
    v_lshrrev_b32 v2, 6, v0
    s_getpc_b64 s[4:5]
    """)
    A.label("P1_PC")
    A("""
    v_readfirstlane_b32 s36, v2
    v_lshlrev_b32 v3, 7, v1
    v_add_u32 v4, 0x2000, v3
    v_min_u32 v4, CODE_END-P1_PC-4, v4
    s_lshr_b32 s3, s2, 3
    s_and_b32 s37, s2, 7
    s_cmp_lg_u32 s36, 7
    s_cbranch_scc1 P1_NOPF
    global_load_dword v60, v3, s[4:5]
    global_load_dword v61, v4, s[4:5]
    """)
    A.label("P1_NOPF")
    A(f"""
    s_mov_b32 s11, 0x00020000
    s_mov_b32 s15, 0x00020000
    s_mov_b32 s27, 0x00020000
    s_mov_b32 s26, {WS_USED}
    s_movk_i32 s94, 256
    s_mov_b32 s95, 0x00020000
    s_mov_b32 s98, {OUT_BYTES}
    s_mov_b32 s99, 0x00020000
    v_lshlrev_b32 v5, 4, v1
    s_cmp_ge_u32 s3, 21
    s_cbranch_scc1 P1_XR
    """)
    gen_w2(A, opt)
    A.label("P1_XR")
    gen_xr(A, opt)
    gen_p2(A, opt)
    A.label("K_EXIT")
    stamp_end(A, opt)


def gen_w2(A, opt):
    NQ = opt.get("nq", 2)
    RING = 3 * VSTAGE
    RG = opt.get("rg", 2)
    sW, sLOC, sXCD = "s36", "s3", "s37"
    sMI, sNI = "s40", "s41"
    sC = "s49"
    sVOFS = "s43"
    vVO = 6
    A(f"""
    s_mul_i32 s4, {sLOC}, 171
    s_lshr_b32 s4, s4, 9
    s_mul_i32 s5, s4, 3
    s_sub_u32 s5, {sLOC}, s5
    s_lshr_b32 s6, {sXCD}, 2
    s_mul_i32 s6, s6, 7
    s_add_u32 {sMI}, s6, s4
    s_and_b32 s6, {sXCD}, 3
    s_mul_i32 s6, s6, 3
    s_add_u32 {sNI}, s6, s5
    s_mul_i32 s42, {sMI}, 3
    s_mov_b32 s56, s4
    s_mov_b32 s57, s5
    """)
    W = opt.get("rw", 1)
    if W > 1:
        ra, rb = opt.get("rota", 1), opt.get("rotb", 1)
        P2 = sum((i % W) << (4 * i) for i in range(2 * W))
        A(f"""
        s_mul_i32 s6, s4, {ra}
        s_mul_i32 s7, s5, {rb}
        s_add_u32 s6, s6, s7
        """)
        if W in (2, 4):
            A(f"s_and_b32 s6, s6, {W-1}")
        else:
            M = {3: 86, 6: 43}[W]
            A(f"""
            s_mul_i32 s7, s6, {M}
            s_lshr_b32 s7, s7, 8
            s_mul_i32 s7, s7, {W}
            s_sub_u32 s6, s6, s7
            """)
        ones = sum(1 << (4 * i) for i in range(W))
        A(f"""
        s_lshl_b32 s6, s6, 2
        s_mov_b32 s60, {P2 & 0xffffffff}
        s_mov_b32 s61, {P2 >> 32}
        s_lshr_b64 s[60:61], s[60:61], s6
        s_and_b32 s6, s60, {(1 << (4*W)) - 1}
        s_mov_b32 s60, 0
        s_mov_b32 s61, 0
        s_mov_b32 s7, 0
        """)
        for j in range(12 // W - 1, -1, -1):
            A(f"""
            s_lshl_b64 s[60:61], s[60:61], {4*W}
            s_add_u32 s6, s6, {(ones * W * j) & 0xffffffff}
            s_or_b64 s[60:61], s[60:61], s[6:7]
            s_sub_u32 s6, s6, {(ones * W * j) & 0xffffffff}
            """)
    else:
        A("""
        s_mov_b32 s60, 0x76543210
        s_mov_b32 s61, 0xba98
        """)
    A(f"""
    s_sub_u32 s4, {sW}, 4
    s_cmp_lt_u32 s4, 3
    s_cbranch_scc1 W2_DEQ
    s_mov_b32 s14, {V_BYTES}
    v_lshrrev_b32 v2, 4, v1
    v_and_b32 v3, 15, v1
    v_lshlrev_b32 v4, 1, v2
    v_xor_b32 v3, v3, v4
    v_lshlrev_b32 v3, 4, v3
    v_mul_u32_u24 v4, 0xc00, v2
    v_add_u32 v{vVO}, v3, v4
    v_add_u32 v{vVO+1}, 11264, v{vVO}
    v_xor_b32 v3, 0x80, v{vVO}
    v_add_u32 v{vVO+2}, {2*11264}, v3
    v_add_u32 v{vVO+3}, {3*11264}, v3
    s_lshl_b32 {sVOFS}, {sNI}, 8
    s_cmp_lt_u32 {sW}, 4
    s_cbranch_scc1 W2_MFMA
    """)

    def v_group():
        for j in range(4):
            A(f"buffer_load_dwordx4 v{vVO+j}, s[12:15], {sVOFS} offen offset:{1024*j} lds")

    GPC, XPC = opt.get("gpc", 4), 11
    for g in range(1, 8):
        for j in range(4):
            A(f"v_add_u32 v{vVO+4*g+j}, {g*16*3072}, v{vVO+j}")
    A(f"""
    v_mov_b32 v40, 0
    s_mov_b32 s44, {sVOFS}
    s_mov_b32 m0, {VSTAGE}
    s_mov_b32 {sC}, 1
    s_waitcnt lgkmcnt(0)
    """)
    stamp(A, opt, 1)
    A.label("W2L_LOOP")
    A(f"""
    s_lshr_b64 s[60:61], s[60:61], 4
    s_and_b32 s4, s60, 15
    s_mul_i32 s4, s4, 393216
    s_add_u32 {sVOFS}, s44, s4
    s_cmp_lg_u32 {sC}, {GPC}
    s_cbranch_scc1 W2L_NG
    buffer_load_dword v42, v40, {DBG}, 0 offen sc1
    """)
    A.label("W2L_NG")
    for g in range(8):
        if g == 6: A("s_waitcnt vmcnt(54)")
        for j in range(4):
            A(f"buffer_load_dwordx4 v{vVO+4*g+j}, s[12:15], {sVOFS} offen offset:{1024*j} lds")
            if j == 3: A("s_add_u32 m0, m0, 4096")
            if j == 3 and g < 7: A("s_nop 0")
    A(f"""
    s_cmp_ge_u32 m0, {RING}
    s_cselect_b32 m0, 0, m0
    """)
    EC = opt.get("ec", 0)
    if EC:
        A(f"""
        s_cmp_gt_u32 {sC}, 2
        s_cbranch_scc1 W2L_NT
        s_add_u32 {sC}, {sC}, 1
        s_cmp_eq_u32 {sC}, 2
        s_cbranch_scc1 W2L_LOOP
        s_mov_b32 {sC}, 2
        s_barrier
        """)
    else:
        A(f"""
        s_cmp_lg_u32 {sC}, 1
        s_cbranch_scc1 W2L_NT
        """)
    A("s_barrier")
    if opt.get("prio", 1): A("s_setprio 3")
    A.label("W2L_NT")
    A(f"""
    s_waitcnt vmcnt(32)
    s_cmp_lg_u32 {sC}, {GPC}
    s_cbranch_scc1 W2L_G_X
    """)
    poll_check(A, "v42", 0, "W2L_GS")
    A.label("W2L_G_X")
    A(f"""
    s_add_u32 {sC}, {sC}, 1
    s_barrier
    s_cmp_lt_u32 {sC}, 12
    s_cbranch_scc1 W2L_LOOP
    s_setprio 0
    """)
    A("""
    s_waitcnt vmcnt(0)
    s_barrier
    s_branch P2_MM
    """)
    A.label("W2L_GS")
    A(f"s_mov_b32 s7, {POLL_MAX}")
    A.label("W2L_G")
    A(f"""
    s_sub_u32 s7, s7, 1
    s_cbranch_scc1 W2L_G_X
    buffer_load_dword v42, v40, {DBG}, 0 offen sc1
    s_waitcnt vmcnt(0)
    """)
    poll_check(A, "v42", 0, "W2L_G")
    A("s_branch W2L_G_X")
    A.label("W2_DEQ")
    sB = "s38"
    sQOFS = "s43"
    vQO = 6
    vAW = 14
    vTB = 22
    U_ = 24
    Ft = 40
    O = 48
    vQ = 52
    QS = 32
    A(f"""
    s_mov_b32 {sB}, s4
    s_add_u32 s4, s42, {sB}
    s_cmp_ge_u32 s4, 40
    s_cbranch_scc1 W2D_IDLE
    s_mul_i32 s44, s4, {16*6144}
    s_mov_b64 s[62:63], s[60:61]
    s_lshr_b32 s6, s4, 1
    s_lshr_b32 s5, s42, 1
    s_sub_u32 s6, s6, s5
    s_mul_i32 s6, s6, 6144
    s_add_u32 s6, s6, {TBL}
    s_mov_b32 s10, {QW_BYTES}
    v_lshrrev_b32 v2, 5, v1
    v_and_b32 v3, 31, v1
    v_lshlrev_b32 v4, 4, v3
    v_mul_u32_u24 v{vQO}, 0x1800, v2
    v_add_u32 v{vQO}, v{vQO}, v4
    v_add_u32 v{vTB}, s6, v4
    """)
    QR = opt.get("qr", 3)
    A(f"s_mul_i32 s57, s57, {QR}")
    for i in range(7, -1, -1):
        A(f"""
        s_add_u32 s4, s57, {i}
        s_and_b32 s4, s4, 7
        s_mul_i32 s4, s4, 12288
        v_add_u32 v{vQO+i}, s4, v{vQO}
        """)
    A("s_waitcnt lgkmcnt(0)")
    stamp(A, opt, 1)

    def q_next():
        A(f"""
        s_and_b32 s4, s60, 15
        s_lshr_b64 s[60:61], s[60:61], 4
        s_lshl_b32 s4, s4, 9
        s_add_u32 {sQOFS}, s44, s4
        """)

    def q_issue(u):
        q = vQ + QS * u
        q_next()
        for i in range(8):
            A(f"buffer_load_dwordx4 {vr(q+4*i,4)}, v{vQO+i}, s[8:11], {sQOFS} offen")

    def t_read(n):
        u = U_ + 8 * (n & 1)
        A(f"""
        s_and_b32 s4, s62, 15
        s_lshr_b64 s[62:63], s[62:63], 4
        s_lshl_b32 s4, s4, 9
        v_add_u32 v{vTB+1}, s4, v{vTB}
        ds_read_b128 {vr(u,4)}, v{vTB+1}
        ds_read_b128 {vr(u+4,4)}, v{vTB+1} offset:12288
        """)

    for u in range(NQ):
        q_issue(u)
    A(f"""
    s_lshl_b32 s4, {sB}, 12
    s_add_u32 s4, s4, {ABASE}
    v_bfe_u32 v3, v1, 1, 4
    v_xor_b32 v4, v3, v2
    v_lshlrev_b32 v4, 4, v4
    v_lshl_add_u32 v4, v2, 8, v4
    v_and_b32 v3, 1, v1
    v_lshl_add_u32 v4, v3, 3, v4
    v_add_u32 v{vAW}, s4, v4
    """)
    for i in range(7, -1, -1):
        A(f"""
        s_add_u32 s4, s57, {i}
        s_and_b32 s4, s4, 7
        s_lshl_b32 s5, s4, 5
        s_lshl_b32 s4, s4, 9
        v_xor_b32 v3, s5, v{vAW}
        v_add_u32 v{vAW+i}, s4, v3
        """)
    A(f"""
    s_mov_b32 {sC}, 0
    s_barrier
    """)
    if opt.get("prio", 1): A("s_setprio 3")
    t_read(0)
    A("s_waitcnt lgkmcnt(0)")
    assert 12 % NQ == 0
    UN = NQ if NQ % 2 == 0 else 2 * NQ
    assert 12 % UN == 0
    A.label("W2D_LOOP")
    for n in range(UN):
        u = n % NQ
        q = vQ + QS * u
        S = U_ + 8 * (n & 1)
        t_read(n + 1)
        q_next()
        A(f"""
        s_cmp_lt_u32 {sC}, {12-NQ-n+1}
        s_waitcnt vmcnt({8*(NQ-1)})
        s_cbranch_scc1 W2D_NT{n}
        s_waitcnt vmcnt({8*min(NQ-1, max(0, UN-1-n))})
        """)
        A.label(f"W2D_NT{n}")
        A(f"s_cmp_lt_u32 {sC}, {12-NQ-n}")
        for i in range(8):
            qq = q + 4 * i
            f = Ft + 4 * (i & 1)
            o = O + 2 * (i & 1)
            A(f"""
            v_fma_f32 v{f}, v{qq}, v{S}, v{S+4}
            v_fma_f32 v{f+1}, v{qq+1}, v{S+1}, v{S+5}
            v_fma_f32 v{f+2}, v{qq+2}, v{S+2}, v{S+6}
            v_fma_f32 v{f+3}, v{qq+3}, v{S+3}, v{S+7}
            v_cvt_pk_bf16_f32 v{o}, v{f}, v{f+1}
            v_cvt_pk_bf16_f32 v{o+1}, v{f+2}, v{f+3}
            ds_write_b64 v{vAW+i}, {vr(o,2)} offset:{ASTAGE*(n&1)}
            """)
            if (i + 1) % RG == 0:
                A(f"s_cbranch_scc0 W2D_SK{n}_{i}")
                for ii in range(i + 1 - RG, i + 1):
                    A(f"buffer_load_dwordx4 {vr(q+4*ii,4)}, v{vQO+ii}, s[8:11], {sQOFS} offen")
                A.label(f"W2D_SK{n}_{i}")
        A("""
        s_waitcnt lgkmcnt(0)
        s_barrier
        """)
    A(f"""
    s_add_u32 {sC}, {sC}, {UN}
    s_cmp_lt_u32 {sC}, 12
    s_cbranch_scc1 W2D_LOOP
    s_setprio 0
    s_branch P2_MM
    """)
    A.label("W2D_IDLE")
    A(f"""
    s_mov_b32 {sC}, 0
    s_waitcnt lgkmcnt(0)
    """)
    A.label("W2D_IDL")
    A(f"""
    s_barrier
    s_add_u32 {sC}, {sC}, 1
    s_cmp_lt_u32 {sC}, 13
    s_cbranch_scc1 W2D_IDL
    s_branch P2_MM
    """)
    A.label("W2_MFMA")
    sCST = "s45"
    vAR = 10
    vBR = 14
    vT0, vT1 = 16, 17
    vST = 18
    vACC = 20
    vF = 44
    P = vF
    A(f"""
    s_lshl_b32 s4, {sW}, 13
    s_mov_b32 m0, s4
    s_mul_i32 s4, {sW}, {32*3072}
    s_add_u32 {sVOFS}, {sVOFS}, s4
    s_and_b32 s4, s60, 15
    s_mul_i32 s4, s4, 393216
    s_add_u32 {sVOFS}, {sVOFS}, s4
    s_lshr_b32 s6, s42, 1
    s_mul_i32 s6, s6, 3072
    s_mov_b32 s18, {SC_BYTES}
    s_mov_b32 s19, 0x00020000
    s_mov_b32 s22, {SC_BYTES}
    s_mov_b32 s23, 0x00020000
    v_and_b32 v2, 0xff, v0
    v_lshlrev_b32 v19, 3, v2
    s_waitcnt lgkmcnt(0)
    """)
    stamp(A, opt, 1)
    for j in range(2):
        A(f"""
        buffer_load_dwordx2 {vr(P+4*j,2)}, v19, s[16:19], s6 offen offset:{2048*j}
        buffer_load_dwordx2 {vr(P+4*j+2,2)}, v19, s[20:23], s6 offen offset:{2048*j}
        """)
    A(f"""
    s_add_u32 s6, s6, 4096
    buffer_load_dwordx2 {vr(P+8,2)}, v19, s[16:19], s6 offen
    buffer_load_dwordx2 {vr(P+10,2)}, v19, s[20:23], s6 offen
    """)
    v_group()
    A(f"""
    s_add_u32 m0, m0, 4096
    s_add_u32 {sVOFS}, {sVOFS}, {16*3072}
    """)
    v_group()
    TP = opt.get("tp", 0)
    T = 2 if TP == 1 else 0
    TC = opt.get("tc", 3)

    def touches():
        A(f"""
        v_lshrrev_b32 v2, 1, v1
        v_and_b32 v3, 1, v1
        v_mul_u32_u24 v2, 0xc00, v2
        v_lshl_add_u32 v2, v3, 7, v2
        v_min_u32 v3, {47 - 4*TC}, v1
        v_lshlrev_b32 v3, 7, v3
        v_add_u32 v3, {512*TC}, v3
        s_lshl_b32 s4, {sMI}, 2
        s_add_u32 s4, s4, {sW}
        s_add_u32 s4, s4, {4*TC}
        s_mul_i32 s4, s4, {32*3072}
        s_lshl_b32 s5, {sNI}, 8
        s_add_u32 s4, s4, s5
        s_lshl_b32 s5, {sNI}, 2
        s_add_u32 s5, s5, {sW}
        s_mul_i32 s6, {sMI}, 48
        s_add_u32 s5, s5, s6
        s_mul_i32 s5, s5, 6144
        s_mov_b32 s10, {QW_BYTES}
        buffer_load_dword v208, v2, s[12:15], s4 offen
        buffer_load_dword v209, v3, s[8:11], s5 offen
        """)
    if TP == 1: touches()
    A(f"""
    v_lshlrev_b32 v19, 1, v19
    v_add_u32 v19, {TBL}, v19
    v_and_b32 v2, 15, v1
    v_lshrrev_b32 v3, 4, v1
    v_xor_b32 v4, v2, v3
    v_lshlrev_b32 v4, 4, v4
    v_lshl_add_u32 v4, v2, 8, v4
    v_add_u32 v{vAR}, {ABASE}, v4
    v_xor_b32 v{vAR+1}, 64, v{vAR}
    v_xor_b32 v{vAR+2}, 128, v{vAR}
    v_xor_b32 v{vAR+3}, 192, v{vAR}
    v_bfe_u32 v2, v1, 2, 2
    v_and_b32 v4, 1, v3
    v_lshl_or_b32 v4, v4, 2, v2
    s_lshl_b32 s5, {sW}, 1
    v_xor_b32 v4, s5, v4
    v_lshlrev_b32 v4, 5, v4
    v_lshl_add_u32 v2, v3, 3, v2
    v_lshl_add_u32 v4, v2, 8, v4
    v_and_b32 v2, 3, v1
    v_lshl_add_u32 v{vBR}, v2, 3, v4
    v_xor_b32 v{vBR+1}, 32, v{vBR}
    s_mov_b32 {sCST}, 0
    s_mov_b32 {sC}, 0
    s_lshl_b32 s4, {sNI}, 2
    s_add_u32 s4, s4, {sW}
    s_mul_i32 s5, s4, 40
    s_add_u32 s5, s5, s42
    s_lshl_b32 s5, s5, 10
    s_add_u32 s50, s5, {W2F}
    s_mul_i32 s5, s4, 171
    s_lshr_b32 s5, s5, 9
    s_mul_i32 s6, s5, 3
    s_sub_u32 s6, s4, s6
    s_mul_i32 s6, s6, 14
    s_add_u32 s6, s6, {sMI}
    s_lshl_b32 s6, s6, 2
    s_lshl_b32 s5, s5, 8
    s_add_u32 s5, s5, s6
    s_add_u32 s51, s5, {FLG}
    s_mov_b32 s53, 12
    s_mov_b32 s54, {hex((127+149-QE) << 23)}
    s_mov_b32 s55, {hex((127+149-QE) << 23)}
    s_mov_b32 s46, 0xffff0000
    s_mov_b32 s47, {hex((127+QE) << 23)}
    s_mov_b32 s48, {hex(0x80000000 | ((127+QE-149) << 23))}
    v_bfe_u32 v3, v1, 4, 1
    v_lshrrev_b32 v4, 5, v1
    v_and_b32 v{vST}, 15, v1
    v_lshl_add_u32 v{vST}, v3, 5, v{vST}
    v_lshl_add_u32 v{vST}, v4, 4, v{vST}
    v_lshlrev_b32 v{vST}, 4, v{vST}
    """)
    for i in range(0, 24, 2):
        A(f"v_mov_b64 {vr(vACC+i,2)}, 0")
    for i in range(0, 80, 2):
        A(f"v_mov_b64 {vr(vF+80+i,2)}, 0")
    for j in range(3):
        q = P + 4 * j
        u = P + 16 + 8 * j
        A(f"""
        s_waitcnt vmcnt({8 + 4 - 2*j + T})
        v_lshlrev_b32 v{u}, 16, v{q}
        v_and_b32 v{u+1}, s46, v{q}
        v_lshlrev_b32 v{u+2}, 16, v{q+1}
        v_and_b32 v{u+3}, s46, v{q+1}
        v_lshlrev_b32 v{u+4}, 16, v{q+2}
        v_and_b32 v{u+5}, s46, v{q+2}
        v_lshlrev_b32 v{u+6}, 16, v{q+3}
        v_and_b32 v{u+7}, s46, v{q+3}
        """)
        for i in range(4): A(f"v_mul_f32 v{u+4+i}, s48, v{u+4+i}")
        for i in range(4): A(f"v_mul_f32 v{u+4+i}, v{u+i}, v{u+4+i}")
        for i in range(4): A(f"v_mul_f32 v{u+i}, s47, v{u+i}")
        A(f"""
        ds_write_b128 v19, {vr(u,4)} offset:{4096*j}
        ds_write_b128 v19, {vr(u+4,4)} offset:{4096*j+12288}
        """)
    if TP == 3: touches()
    A("""
    s_waitcnt lgkmcnt(0)
    s_barrier
    """)
    if TP == 2: touches()
    A(f"s_waitcnt vmcnt({2 if TP else 0})")

    def reads(s, buf):
        fa = vF + buf * 80 + 20 * s
        fb = fa + 12
        r = []
        for b in range(3):
            r.append(f"ds_read_b128 {vr(fa+4*b,4)}, v{vAR+s} offset:{4096*b + ASTAGE*buf}")
        for t in range(2):
            for u in range(2):
                r.append(f"ds_read_b64_tr_b16 {vr(fb+4*t+2*u,2)}, v{vT0+t} offset:{(32*s+4*u)*256}")
        return r

    def mfmas(s, buf):
        fa = vF + buf * 80 + 20 * s
        fb = fa + 12
        r = []
        for b in range(3):
            for t in range(2):
                acc = vACC + (b * 2 + t) * 4
                r.append(f"v_mfma_f32_16x16x32_bf16 {vr(acc,4)}, {vr(fa+4*b,4)}, {vr(fb+4*t,4)}, {vr(acc,4)}")
        return r

    A.label("W2M_LOOP")
    for buf in range(2):
        A(f"""
        v_add_u32 v{vT0}, {sCST}, v{vBR}
        v_add_u32 v{vT1}, {sCST}, v{vBR+1}
        s_add_u32 {sCST}, {sCST}, {VSTAGE}
        s_cmp_ge_u32 {sCST}, {RING}
        s_cselect_b32 {sCST}, 0, {sCST}
        s_barrier
        """)
        rd = sum((reads(s, buf) for s in range(4)), [])
        mf = sum((mfmas(s, buf ^ 1) for s in range(4)), [])
        seq = rd[:4]
        ri = 4
        for m in mf:
            seq.append(m)
            seq += rd[ri:ri + 1]
            ri += 1
        seq += rd[ri:]
        for x in seq: A(x)
        A("s_waitcnt lgkmcnt(0)")
        if (opt.get("stamp") or opt.get("probe") == 2) and buf == 0:
            A(f"""
            s_cmp_lg_u32 {sC}, 0
            s_cbranch_scc1 W2M_ST
            """)
            stamp(A, opt, 2, True)
            A.label("W2M_ST")
    A(f"""
    s_add_u32 {sC}, {sC}, 2
    s_cmp_lt_u32 {sC}, 12
    s_cbranch_scc1 W2M_LOOP
    s_setprio 3
    """)
    for s_ in range(4):
        for m in mfmas(s_, 1): A(m)
    A("s_nop 7")
    stamp(A, opt, 3)
    for b in range(3):
        a = vACC + 8 * b
        o = vF + 4 * b
        for j in range(4):
            A(f"v_pk_mul_f32 {vr(a+2*j,2)}, {vr(a+2*j,2)}, s[54:55]")
        A(f"""
        v_cvt_pk_bf16_f32 v{o}, v{a}, v{a+1}
        v_cvt_pk_bf16_f32 v{o+1}, v{a+2}, v{a+3}
        v_cvt_pk_bf16_f32 v{o+2}, v{a+4}, v{a+5}
        v_cvt_pk_bf16_f32 v{o+3}, v{a+6}, v{a+7}
        s_nop 1
        v_permlane32_swap_b32 v{o}, v{o+2}
        v_permlane32_swap_b32 v{o+1}, v{o+3}
        buffer_store_dwordx4 {vr(o,4)}, v{vST}, s[24:27], s50 offen offset:{1024*b} sc1
        """)
        if b == 0:
            A(f"""
            s_cmp_eq_u32 {sMI}, 13
            s_cbranch_scc1 W2M_END
            """)
    A.label("W2M_END")
    A("s_branch P2_PUB")


def wt_setup(A, opt, tag):
    TC = opt.get("wtc", 2)
    A(f"""
    s_sub_u32 s4, s2, 168
    s_cmp_ge_u32 s4, 48
    s_cbranch_scc1 WT_Q{tag}
    v_lshlrev_b32 v7, 7, v1
    s_lshl_b32 s46, s4, 13
    s_add_u32 s46, s46, {TC*393216}
    s_mov_b32 s47, 393216
    s_mov_b32 s8, s12
    s_mov_b32 s9, s13
    s_mov_b32 s10, {V_BYTES}
    s_branch WT_G{tag}
    """)
    A.label(f"WT_Q{tag}")
    A(f"""
    v_lshrrev_b32 v7, 2, v1
    v_mul_u32_u24 v7, 0x1800, v7
    v_and_b32 v3, 3, v1
    v_lshl_add_u32 v7, v3, 7, v7
    s_sub_u32 s4, s4, 48
    s_mul_i32 s46, s4, {16*6144}
    s_add_u32 s46, s46, {TC*512}
    s_movk_i32 s47, 512
    s_mov_b32 s10, {QW_BYTES}
    """)
    A.label(f"WT_G{tag}")


def wt(A, i):
    A(f"""
    buffer_load_dword v{16+i}, v7, s[8:11], s46 offen
    s_add_u32 s46, s46, s47
    """)


def gen_xr(A, opt):
    sW, sLOC, sXCD = "s36", "s3", "s37"
    sMT, sNT = "s40", "s41"
    sC = "s48"
    A(f"""
    s_sub_u32 s4, {sLOC}, 21
    s_cmp_ge_u32 s4, 5
    s_cselect_b32 s5, 1, 0
    s_cselect_b32 s6, 5, 0
    s_sub_u32 {sNT}, s4, s6
    s_lshl_b32 s7, {sXCD}, 1
    s_add_u32 {sMT}, s7, s5
    s_cmp_ge_u32 {sLOC}, 31
    s_cbranch_scc1 IDLE_WG
    s_cmp_lt_u32 {sW}, 4
    s_cbranch_scc1 XR_MFMA
    s_cmp_lt_u32 {sW}, 6
    s_cbranch_scc1 XR_LD
    """)
    A(f"""
    v_mov_b32 v2, 0
    v_lshlrev_b32 v6, 7, v1
    s_mul_i32 s4, {sMT}, 5
    s_add_u32 s4, s4, {sNT}
    s_lshl_b32 s5, s4, 15
    s_lshl_b32 s6, s4, 14
    s_mov_b32 s30, {X_BYTES}
    s_mov_b32 s31, 0x00020000
    s_mov_b32 s34, {U_BYTES}
    s_mov_b32 s35, 0x00020000
    s_waitcnt lgkmcnt(0)
    """)
    if opt.get("tx", 1):
        A(f"""
        s_cmp_lg_u32 {sW}, 6
        s_cbranch_scc1 XR_TU
        """)
        for i in range(4):
            A(f"buffer_load_dword v{8+i}, v6, s[28:31], s5 offen")
            if i < 3: A("s_add_u32 s5, s5, 8192")
        A("s_branch XR_TX")
        A.label("XR_TU")
        for i in range(2):
            A(f"buffer_load_dword v{8+i}, v6, s[32:35], s6 offen")
            if i < 1: A("s_add_u32 s6, s6, 8192")
        A.label("XR_TX")
    WT = opt.get("wt", 2)
    NT_ = 12 - opt.get("wtc", 2)
    if WT:
        A(f"""
        s_cmp_lg_u32 {sW}, 7
        s_cbranch_scc1 XR_W6
        """)
        wt_setup(A, opt, "x")
        k = 0
        for b in range(10):
            for _ in range(WT if b == 0 else opt.get("wtn", 2)):
                if k < NT_:
                    wt(A, k); k += 1
            A("s_barrier")
        A("s_branch P2_MM")
        A.label("XR_W6")
    for i in range(5): A("s_barrier")
    A(f"""
    s_cmp_lg_u32 {sW}, 6
    s_cbranch_scc1 XR_G_X
    """)
    poll(A, "XR_G", DBG, "0", "v2", "v3", 0)
    for i in range(5): A("s_barrier")
    A("s_branch P2_MM")
    A.label("IDLE_WG")
    A(f"""
    v_mov_b32 v2, 0
    v_mov_b32 v3, 1
    s_cmp_lg_u32 {sXCD}, 0
    s_waitcnt lgkmcnt(0)
    s_cbranch_scc1 IDLE_G0
    v_mov_b32 v6, 0
    v_mov_b32 v7, 0
    v_mov_b32 v8, 0
    v_mov_b32 v9, 0
    s_lshl_b32 s4, {sW}, 13
    s_add_u32 s4, s4, {FLG}
    s_add_u32 s5, s4, 4096
    """)
    for i in range(8):
        A(f"buffer_store_dwordx4 v[6:9], v5, s[24:27], s{4+i//4} offen offset:{1024*(i&3)} sc1")
    A("s_waitcnt vmcnt(0)")
    A.label("IDLE_G0")
    A("s_barrier")
    if opt.get("it"):
        TC = opt.get("wtc", 2)
        A(f"""
        s_lshl_b32 s4, {sXCD}, 3
        s_add_u32 s4, s4, {sW}
        v_lshlrev_b32 v7, 7, v1
        s_lshl_b32 s46, s4, 13
        s_add_u32 s46, s46, {TC*393216}
        s_mov_b32 s14, {V_BYTES}
        v_lshrrev_b32 v8, 3, v1
        v_mul_u32_u24 v8, 0x1800, v8
        v_and_b32 v9, 7, v1
        v_lshl_add_u32 v8, v9, 7, v8
        s_mul_i32 s47, s4, {10*6144}
        s_add_u32 s47, s47, {TC*512}
        s_mov_b32 s10, {QW_BYTES}
        v_cmp_gt_u32 vcc, 16, v1
        v_add_u32 v9, {8*6144}, v8
        v_cndmask_b32 v9, v8, v9, vcc
        """)
        nv = ((12 - TC) * 48 + 63) // 64
        k = 0
        for p in range((12 - TC) // 2):
            A(f"""
            buffer_load_dword v{16+k}, v8, s[8:11], s47 offen
            buffer_load_dword v{17+k}, v9, s[8:11], s47 offen
            s_add_u32 s47, s47, 1024
            """)
            k += 2
            for _ in range(2 if p % 2 == 0 else 1):
                if nv:
                    A(f"""
                    buffer_load_dword v{16+k}, v7, s[12:15], s46 offen
                    s_add_u32 s46, s46, {64*8192}
                    """)
                    k += 1; nv -= 1
        assert nv == 0, nv
    if WT:
        A(f"""
        s_cmp_lg_u32 {sW}, 7
        s_cbranch_scc1 IDLE_NT
        """)
        wt_setup(A, opt, "i")
        for k in range(NT_):
            wt(A, k)
            if k >= WT - 1 and k < NT_ - 1: A("s_sleep 12")
        A.label("IDLE_NT")
    A(f"""
    s_cmp_lg_u32 {sW}, 0
    s_cbranch_scc1 IDLE_G_X
    s_cmp_lg_u32 {sXCD}, 0
    s_cbranch_scc1 IDLE_G1
    s_mov_b64 exec, 1
    buffer_store_dword v3, v2, {DBG}, 0 offen sc1
    s_mov_b64 exec, -1
    """)
    A.label("IDLE_G1")
    poll(A, "IDLE_G", DBG, "0", "v2", "v3", 0, sleep=8)
    A(f"""
    s_barrier
    s_cmp_lt_u32 {sW}, 4
    s_cbranch_scc1 P2_LD
    s_branch P2_MM
    """)
    A.label("XR_LD")
    sOFS, sGRP, sCH = "s43", "s45", "s46"
    vO = 6
    A(f"""
    v_lshrrev_b32 v3, 4, v1
    s_cmp_eq_u32 {sW}, 4
    s_cbranch_scc0 XRL_U
    v_lshrrev_b32 v2, 3, v1
    v_and_b32 v4, 7, v1
    v_xor_b32 v4, v4, v3
    v_lshlrev_b32 v4, 4, v4
    v_mul_u32_u24 v{vO}, 0x500, v2
    v_add_u32 v{vO}, v{vO}, v4
    v_xor_b32 v4, 64, v{vO}
    v_add_u32 v{vO+1}, 9216, v4
    v_add_u32 v{vO+2}, {2*9216}, v{vO}
    v_add_u32 v{vO+3}, {3*9216}, v4
    s_mul_i32 {sOFS}, {sMT}, {128*1280}
    s_mov_b32 {sGRP}, {32*1280}
    s_mov_b32 {sCH}, {128 - 128*1280 + (1<<32)}
    s_mov_b32 m0, 0
    s_mov_b32 s30, {X_BYTES}
    s_waitcnt lgkmcnt(0)
    s_branch XRL_GO
    """)
    A.label("XRL_U")
    A(f"""
    v_and_b32 v4, 15, v1
    v_lshlrev_b32 v2, 2, v3
    v_xor_b32 v4, v4, v2
    v_lshlrev_b32 v4, 4, v4
    v_mul_u32_u24 v{vO}, 0x500, v3
    v_add_u32 v{vO}, v{vO}, v4
    v_add_u32 v{vO+1}, {4*1280-1024}, v{vO}
    v_add_u32 v{vO+2}, {2*(4*1280-1024)}, v{vO}
    v_add_u32 v{vO+3}, {3*(4*1280-1024)}, v{vO}
    s_lshl_b32 {sOFS}, {sNT}, 8
    s_mov_b32 {sGRP}, {16*1280}
    s_mov_b32 {sCH}, 0
    s_movk_i32 m0, 16384
    s_mov_b32 s30, {U_BYTES}
    s_waitcnt lgkmcnt(0)
    s_mov_b32 s28, s32
    s_mov_b32 s29, s33
    """)
    A.label("XRL_GO")
    A(f"""
    s_mov_b32 s31, 0x00020000
    s_mov_b32 {sC}, 0
    """)
    A.label("XRL_LOOP")
    for g in range(4):
        for j in range(4):
            A(f"buffer_load_dwordx4 v{vO+j}, s[28:31], {sOFS} offen offset:{1024*j} lds")
        A(f"""
        s_add_u32 m0, m0, 4096
        s_add_u32 {sOFS}, {sOFS}, {sGRP}
        """)
    A(f"""
    s_add_u32 {sOFS}, {sOFS}, {sCH}
    s_add_u32 m0, m0, 16384
    s_and_b32 m0, m0, {4*XSTAGE-1}
    s_add_u32 {sC}, {sC}, 1
    s_and_b32 s4, {sC}, 13
    s_cmp_eq_u32 s4, 1
    s_cbranch_scc1 XRL_LOOP
    s_cmp_eq_u32 {sC}, 2
    s_cbranch_scc0 XRL_W
    s_waitcnt vmcnt(16)
    """)
    A.label("XRL_W")
    A(f"""
    s_waitcnt vmcnt(32)
    s_barrier
    s_cmp_lt_u32 {sC}, 10
    s_cbranch_scc1 XRL_LOOP
    s_waitcnt vmcnt(16)
    s_barrier
    s_waitcnt vmcnt(0)
    s_barrier
    s_branch P2_MM
    """)
    A.label("XR_MFMA")
    sCST = "s43"
    vXR = 6
    vUR = 10
    vT = 12
    vACC = 20
    vF = 84
    A(f"""
    s_lshr_b32 s4, {sW}, 1
    s_and_b32 s5, {sW}, 1
    s_lshl_b32 s6, s4, 13
    v_and_b32 v3, 31, v1
    v_bfe_u32 v4, v1, 1, 3
    v_lshrrev_b32 v{vT}, 5, v1
    v_xor_b32 v4, v4, v{vT}
    v_lshlrev_b32 v4, 4, v4
    v_lshl_add_u32 v4, v3, 7, v4
    v_add_u32 v{vXR}, s6, v4
    v_xor_b32 v{vXR+1}, 32, v{vXR}
    v_xor_b32 v{vXR+2}, 64, v{vXR}
    v_xor_b32 v{vXR+3}, 96, v{vXR}
    v_bfe_u32 v2, v1, 4, 1
    v_bfe_u32 v3, v1, 2, 2
    s_lshl_b32 s6, s5, 1
    v_xor_b32 v4, s6, v3
    v_lshlrev_b32 v4, 6, v4
    v_lshl_add_u32 v4, v3, 8, v4
    v_lshl_add_u32 v4, v{vT}, 11, v4
    v_lshl_add_u32 v4, v2, 5, v4
    v_and_b32 v3, 3, v1
    v_lshl_add_u32 v4, v3, 3, v4
    v_add_u32 v{vUR}, 16384, v4
    v_xor_b32 v{vUR+1}, 64, v{vUR}
    s_mov_b32 {sCST}, 0
    s_mov_b32 {sC}, 0
    s_lshl_b32 s6, {sMT}, 1
    s_add_u32 s6, s6, s4
    s_lshl_b32 s7, {sNT}, 1
    s_add_u32 s7, s7, s5
    s_mul_i32 s51, s4, 10
    s_add_u32 s51, s51, s7
    s_lshl_b32 s51, s51, 2
    s_lshl_b32 s52, {sMT}, 12
    s_add_u32 s51, s51, s52
    s_add_u32 s51, s51, {FLG + 42*4}
    s_mov_b32 s53, 8
    s_mul_i32 s6, s6, 80
    s_lshl_b32 s7, s7, 2
    s_add_u32 s6, s6, s7
    s_lshl_b32 s50, s6, 10
    s_add_u32 s52, s50, 40960
    """)
    for i in range(0, 64, 2):
        A(f"v_mov_b64 {vr(vACC+i,2)}, 0")
    for i in range(0, 64, 2):
        A(f"v_mov_b64 {vr(vF+64+i,2)}, 0")
    A("s_waitcnt lgkmcnt(0)")

    def reads(s, buf):
        f = vF + 64 * buf + 16 * s
        r = []
        for tn in range(2):
            r.append(f"ds_read_b128 {vr(f+8+4*tn,4)}, v{vT+s} offset:{4096*tn}")
            for u in range(2):
                r.append(f"ds_read_b64_tr_b16 {vr(f+4*tn+2*u,2)}, v{vT+4+tn} offset:{s*4096+u*1024}")
        return r

    def mfmas(s, buf):
        f = vF + 64 * buf + 16 * s
        r = []
        for tm in range(2):
            for tn in range(2):
                acc = vACC + 32 * tm + 16 * tn
                r.append(f"v_mfma_f32_32x32x16_bf16 {vr(acc,16)}, {vr(f+4*tn,4)}, {vr(f+8+4*tm,4)}, {vr(acc,16)}")
        return r

    A.label("XR_LOOP")
    for buf in range(2):
        for i in range(4):
            A(f"v_add_u32 v{vT+i}, {sCST}, v{vXR+i}")
        for i in range(2):
            A(f"v_add_u32 v{vT+4+i}, {sCST}, v{vUR+i}")
        A(f"""
        s_add_u32 {sCST}, {sCST}, {XSTAGE}
        s_and_b32 {sCST}, {sCST}, {4*XSTAGE-1}
        s_barrier
        """)
        rd = sum((reads(s_, buf) for s_ in range(4)), [])
        mf = sum((mfmas(s_, buf ^ 1) for s_ in range(4)), [])
        ri = 0
        for m in mf:
            A(m)
            for x in rd[ri:ri + 2]: A(x)
            ri += 2
        for x in rd[ri:]: A(x)
        A("s_waitcnt lgkmcnt(0)")
    A(f"""
    s_add_u32 {sC}, {sC}, 2
    s_cmp_lt_u32 {sC}, 10
    s_cbranch_scc1 XR_LOOP
    """)
    for s_ in range(4):
        for m in mfmas(s_, 1): A(m)
    A("s_nop 15")
    stamp(A, opt, 3)
    for tm in range(2):
        for i in range(4):
            a = vACC + 32 * tm + 8 * i
            o = vF + 16 * tm + 4 * i
            for j in range(4):
                A(f"v_cvt_pk_bf16_f32 v{o+j}, v{a+2*j}, v{a+2*j+1}")
            A(f"buffer_store_dwordx4 {vr(o,4)}, v5, s[24:27], s{50+2*tm} offen offset:{1024*i} sc1")


VX = 96


def xload(A, opt, kb):
    sc = "" if opt.get("xplain") else " sc1"
    A(f"buffer_load_dwordx4 {vr(VX+4*kb,4)}, v5, s[24:27], s20 offen offset:{1024*(kb&3)}{sc}")
    if kb & 3 == 3 and kb < 39:
        A("s_add_u32 s20, s20, 4096")
        if opt.get("pra") or opt.get("prb"):
            A("""
            s_cmp_eq_u32 s20, s19
            s_cselect_b32 s20, s18, s20
            """)


def p2_rot(A, opt):
    lm = MAP["m"]
    A(f"""
    s_and_b32 s17, s3, {(1 << lm) - 1}
    s_mul_i32 s17, s17, {opt.get("pra", 0)}
    s_lshr_b32 s16, s3, {lm}
    s_mul_i32 s16, s16, {opt.get("prb", 0)}
    s_add_u32 s17, s17, s16
    s_mul_i32 s16, s17, 205
    s_lshr_b32 s16, s16, 11
    s_mul_i32 s16, s16, 10
    s_sub_u32 s17, s17, s16
    s_lshl_b32 s17, s17, 12
    """)


def gen_p2(A, opt):
    NA = opt.get("na", 2)
    order = [(n, kb) for kb in range(40) for n in range(NA)] + [(n, kb) for n in range(NA, 3) for kb in range(40)]
    groups = []
    for n, kb in order:
        if (n, kb // 4) not in groups: groups.append((n, kb // 4))
    CH = {1: [2, 2, 4, 4, 4, 4, 10], 2: [2, 2, 2, 2, 4, 4, 4, 5, 5], 3: [2, 4, 6, 8, 10], 4: [3, 3, 6, 6, 6, 6],
          5: [1, 1, 2, 2, 4, 10, 10]}[opt.get("ch", 1)]
    assert sum(CH) == 30
    st = [sum(CH[:i]) for i in range(len(CH) + 1)]
    wsc = "" if opt.get("wplain") else " sc1"
    A.label("P2_PUB")
    publish(A, opt, "s51", "s53")
    A.label("P2_LD")
    p2_tile(A)
    p2_rot(A, opt)
    A(f"""
    s_mul_i32 s22, s39, 122880
    s_add_u32 s22, s22, {W2F}
    s_lshl_b32 s21, s36, 10
    s_add_u32 s22, s22, s21
    s_add_u32 s20, s22, s17
    s_add_u32 s19, s22, 40960
    v_lshlrev_b32 v2, 2, v1
    s_cmp_lg_u32 s36, 0
    s_cbranch_scc1 P2_W_X
    """)
    poll(A, "P2_W", "s[24:27]", "s45", "v2", "v3", DC_W & DC_X, sleep=opt.get("wsl", 16))
    A("s_barrier")
    stamp(A, opt, 5)
    AH = opt.get("ah", 3)

    ROT = opt.get("pra") or opt.get("prb")
    cur = [0]

    def issue(c):
        for n, q in groups[st[c]:st[c + 1]]:
            off = (n * 40 + q * 4) * 1024
            if ROT:
                if q != cur[0]:
                    assert q == (cur[0] + 1) % 10
                    A("""
                    s_add_u32 s20, s20, 4096
                    s_cmp_eq_u32 s20, s19
                    s_cselect_b32 s20, s22, s20
                    """)
                    cur[0] = q
                A(f"s_add_u32 s5, s20, {n * 40960}")
            else:
                A(f"s_add_u32 s5, s22, {off}")
            A(f"""
            s_add_u32 m0, s21, {off}
            s_nop 0
            buffer_load_dwordx4 v5, s[24:27], s5 offen{wsc} lds
            """)

    for c in range(min(AH, len(CH))): issue(c)
    for c in range(len(CH)):
        issued = min(len(CH), AH + c)
        A(f"""
        s_waitcnt vmcnt({st[issued] - st[c+1]})
        s_barrier
        """)
        if AH + c < len(CH): issue(AH + c)
    stamp(A, opt, 6)
    A("s_branch K_EXIT")

    vACC = 8
    vF = 56
    NF = 8
    vO = 88
    D = opt.get("xd", 16)
    A.label("P2_MM")
    stamp(A, opt, 2)
    p2_tile(A)
    p2_rot(A, opt)
    A(f"""
    s_lshl_b32 s4, s38, 2
    s_add_u32 s4, s4, s36
    s_sub_u32 s4, s4, 4
    s_mul_i32 s18, s4, 40960
    s_add_u32 s19, s18, 40960
    s_add_u32 s20, s18, s17
    v_add_u32 v4, 61440, v5
    v_and_b32 v6, 31, v1
    v_lshrrev_b32 v7, 5, v1
    v_mul_u32_u24 v6, 0xc00, v6
    v_lshl_add_u32 v6, v7, 4, v6
    s_mul_i32 s4, s4, {32*3072}
    s_mul_i32 s5, s39, 192
    s_add_u32 s23, s4, s5
    s_waitcnt vmcnt(0)
    s_barrier
    """)
    for kb in range(D): xload(A, opt, kb)
    stamp(A, opt, 5, True)
    ysc = {0: "", 1: " sc1", 2: " sc1", 3: " nt", 4: " sc0 sc1", 5: " sc1 nt"}[opt.get("ysc", 0)]
    ysc2 = ysc if opt.get("ysc", 0) > 1 else ""

    def epi(t):
        r = []
        for p in range(2):
            a = vACC + 16 * t + 8 * p
            o = vO + 4 * p
            r.append([f"v_cvt_pk_bf16_f32 v{o+j}, v{a+2*j}, v{a+2*j+1}" for j in range(4)])
            r.append(["s_nop 1", f"v_permlane32_swap_b32 v{o}, v{o+2}", f"v_permlane32_swap_b32 v{o+1}, v{o+3}",
                      f"buffer_store_dwordx4 {vr(o,4)}, v6, s[96:99], s23 offen offset:{64*t+32*p}{ysc if t < 2 else ''}"])
        return r

    RA = opt.get("ra", 6)
    assert RA < NF
    seen = [0]

    def read(i):
        n, kb = order[i]
        g = groups.index((n, kb // 4))
        while st[seen[0]] <= g:
            A("s_barrier")
            seen[0] += 1
        off = (n * 40 + kb) * 1024
        base, o = ("v5", off) if off < 61440 else ("v4", off - 61440)
        A(f"ds_read_b128 {vr(vF+4*(i%NF),4)}, {base} offset:{o}")

    for i in range(RA): read(i)
    pending = []
    done = set()
    issued = D
    last = {n: max(i for i, x in enumerate(order) if x[0] == n) for n in range(3)}
    for i, (n, kb) in enumerate(order):
        if n == 0: A(f"s_waitcnt vmcnt({issued - kb - 1})")
        A(f"s_waitcnt lgkmcnt({min(120, i + RA) - i - 1})")
        acc = vACC + 16 * n
        c = "0" if kb == 0 else vr(acc, 16)
        A(f"v_mfma_f32_32x32x16_bf16 {vr(acc,16)}, {vr(vF+4*(i%NF),4)}, {vr(VX+4*kb,4)}, {c}")
        if i == 0 and opt.get("stamp"):
            stamp(A, opt, 3)
            A("s_memtime s[80:81]\ns_nop 7\ns_nop 7\ns_waitcnt lgkmcnt(0)")
        if i + RA < 120: read(i + RA)
        for _ in range(opt.get("xr", 1) if n == 0 else 0):
            if issued < 40:
                xload(A, opt, issued)
                issued += 1
        for t in range(3):
            if i == last[t] + 3:
                pending += epi(t) + [[], [], [], []]
                done.add(t)
        if pending:
            for x in pending.pop(0): A(x)
    assert seen[0] == len(CH)
    A("s_nop 15")
    stamp(A, opt, 6)
    if opt.get("stamp"):
        A("s_memtime s[82:83]\ns_waitcnt lgkmcnt(0)\ns_sub_u32 s72, s82, s80")
    k = 0
    for t in range(3):
        if t in done: continue
        for p in range(2):
            a = vACC + 16 * t + 8 * p
            o = vF + 4 * k
            k += 1
            for j in range(4): A(f"v_cvt_pk_bf16_f32 v{o+j}, v{a+2*j}, v{a+2*j+1}")
            A(f"""
            s_nop 1
            v_permlane32_swap_b32 v{o}, v{o+2}
            v_permlane32_swap_b32 v{o+1}, v{o+3}
            buffer_store_dwordx4 {vr(o,4)}, v6, s[96:99], s23 offen offset:{64*t+32*p}{ysc2}
            """)


def descriptor(name, vgpr, accum, sgpr):
    return f""".amdhsa_kernel {name}
  .amdhsa_next_free_vgpr {vgpr}
  .amdhsa_next_free_sgpr {sgpr}
  .amdhsa_accum_offset {accum}
  .amdhsa_group_segment_fixed_size 0
  .amdhsa_kernarg_size 72
  .amdhsa_user_sgpr_count 2
  .amdhsa_user_sgpr_kernarg_segment_ptr 1
  .amdhsa_system_sgpr_workgroup_id_x 1
  .amdhsa_float_denorm_mode_32 3
.end_amdhsa_kernel
"""


def generate(opt):
    out = HEADER
    MAP["m"] = opt.get("map", 3)
    k = f"kernel={KNAME} " if opt.get("list") else ""
    out += f"; @launch {k}grid=(256,1,1) block=(512,1,1) lds={LDS1}\n"
    out += '.amdgcn_target "amdgcn-amd-amdhsa--gfx950"\n.text\n'
    A = Asm()
    out += f".globl {KNAME}\n.p2align 8\n.type {KNAME},@function\n"
    gen_kernel(A, opt)
    out += A.text()
    out += "CODE_END:\n"
    out += '.section .rodata,"a"\n.p2align 6\n'
    out += descriptor(KNAME, 256, 256, 100)
    return out


if __name__ == "__main__":
    path = sys.argv[1] if len(sys.argv) > 1 else "standalone__weight_only_int_quip__prompt.s"
    opt = {}
    for a in sys.argv[2:]:
        k, _, v = a.partition("=")
        opt[k] = int(v) if v else 1
    open(path, "w").write(generate(opt))
    print("wrote", path)
```

```python
import sys

KNAME = "standalone__weight_only_int_quip__prompt_kernel"
HEADER = """; Kernarg layout for this problem (72 bytes, ptrs only, base s[0:1]):
;   offset   0: d_in[0] x  shape=(1, 2048, 640) dtype=bfloat16 strides=(2621440, 1280, 2) contiguous=True
;   offset  16: d_in[2] scales  shape=(20, 1536) dtype=bfloat16 strides=(3072, 2) contiguous=True
;   offset  24: d_in[3] zeros  shape=(20, 1536) dtype=bfloat16 strides=(3072, 2) contiguous=True
;   offset  32: d_in[4] U  shape=(640, 640) dtype=bfloat16 strides=(1280, 2) contiguous=True
;   offset  40: d_in[5] V  shape=(1536, 1536) dtype=bfloat16 strides=(3072, 2) contiguous=True
;   offset  48: d_out     shape=(1, 2048, 1536) dtype=bfloat16 (2 bytes/elem)
; phase 2 makes y = xr@W2.  One workgroup per CU (256, all resident); hand-off through flags in d_ws
"""

XRF = 0
W2F = 64 * 40 * 1024
FLG = W2F + 48 * 40 * 1024
XFLG = FLG + 256 * 256
WS_USED = XFLG + 256 * 128

X_BYTES = 2048 * 640 * 2
QW_BYTES = 640 * 1536 * 4
SC_BYTES = 20 * 1536 * 2
U_BYTES = 640 * 640 * 2
V_BYTES = 1536 * 1536 * 2
OUT_BYTES = 2048 * 1536 * 2

VSTAGE = 32768
ABASE = 3 * VSTAGE
ASTAGE = 12288
TBL = ABASE + 2 * ASTAGE
LDS1 = TBL + 24576
LFLAG = LDS1
QE = 112
XSTAGE = 32768
POLL_MAX = 40000


class Asm:
    def __init__(self):
        self.lines = []

    def __call__(self, s):
        for l in s.strip("\n").split("\n"):
            self.lines.append("    " + l.strip() if not l.strip().endswith(":") else l.strip())

    def label(self, s):
        self.lines.append(s + ":")

    def comment(self, s):
        self.lines.append("    ; " + s)

    def text(self):
        return "\n".join(self.lines) + "\n"


def vr(a, n):
    return f"v[{a}:{a+n-1}]"


STAMP_OFS = 32 << 20
NSTAMP = 8


def stamp(A, opt, i, wait=False):
    if opt.get("stamp") or ("probe" in opt and i in (0, opt["probe"])):
        A(f"s_memrealtime s[{64+2*i}:{65+2*i}]")
        if wait: A("s_waitcnt lgkmcnt(0)")


def stamp_begin(A, opt):
    if opt.get("stamp") or "probe" in opt:
        for i in range(1, NSTAMP):
            A(f"s_mov_b32 s{64+2*i}, 0")
    stamp(A, opt, 0)


def stamp_end(A, opt):
    if "probe" in opt:
        p = opt["probe"]
        wl, wh = opt.get("pwl", 0), opt.get("pwh", 7)
        A(f"""
        s_waitcnt vmcnt(0) lgkmcnt(0)
        s_memrealtime s[78:79]
        s_waitcnt lgkmcnt(0)
        s_cmp_ge_u32 s2, 256
        s_cbranch_scc1 PRB_X
        s_cmp_lt_u32 s36, {wl}
        s_cbranch_scc1 PRB_X
        s_cmp_gt_u32 s36, {wh}
        s_cbranch_scc1 PRB_X
        s_cmp_eq_u32 s{64+2*p}, 0
        s_cbranch_scc1 PRB_X
        s_sub_u32 s4, s{64+2*p}, s64
        s_mul_i32 s4, s4, 3
        s_min_u32 s4, s4, 20000
        """)
        A.label("PRB")
        A("""
        s_memrealtime s[6:7]
        s_waitcnt lgkmcnt(0)
        s_sub_u32 s5, s6, s78
        s_cmp_lt_u32 s5, s4
        s_cbranch_scc1 PRB
        """)
        A.label("PRB_X")
    if opt.get("stamp"):
        A("s_waitcnt vmcnt(0) lgkmcnt(0)")
        stamp(A, opt, NSTAMP - 1)
        A(f"""
        s_load_dwordx2 s[56:57], s[0:1], 64
        s_waitcnt lgkmcnt(0)
        s_mov_b32 s58, 0x7fffffff
        s_mov_b32 s59, 0x00020000
        v_lshrrev_b32 v1, 6, v0
        v_lshlrev_b32 v1, 5, v1
        s_lshl_b32 s4, s2, 8
        s_add_u32 s4, s4, {STAMP_OFS}
        """)
        for i in range(NSTAMP):
            A(f"v_mov_b32 v{4+i}, s{64+2*i}")
        A("""
        buffer_store_dwordx4 v[4:7], v1, s[56:59], s4 offen
        buffer_store_dwordx4 v[8:11], v1, s[56:59], s4 offen offset:16
        """)
    A("s_endpgm")


def poll_check(A, vdst, dc, again):
    A(f"v_cmp_ne_u32 vcc, 0, {vdst}")
    if dc & 0xffffffff: A(f"s_or_b32 vcc_lo, vcc_lo, {hex(dc & 0xffffffff)}")
    if dc >> 32: A(f"s_or_b32 vcc_hi, vcc_hi, {hex(dc >> 32)}")
    A(f"""
    s_cmp_eq_u64 vcc, -1
    s_cbranch_scc0 {again}
    """)


def poll(A, name, srd, soff, vaddr, vdst, dc, scnt="s7", sleep=0):
    A(f"s_mov_b32 {scnt}, {POLL_MAX}")
    if sleep: A(f"s_branch {name}_1")
    A.label(name)
    if sleep:
        A(f"s_sleep {sleep}")
        A.label(name + "_1")
    A(f"""
    s_sub_u32 {scnt}, {scnt}, 1
    s_cbranch_scc1 {name}_X
    buffer_load_dword {vdst}, {vaddr}, {srd}, {soff} offen sc1
    s_waitcnt vmcnt(0)
    """)
    A.label(name + "_C")
    poll_check(A, vdst, dc, name)
    A.label(name + "_X")


DC_X = 0xC00003FFFFFFFFFF
DC_W = 0xFFFFFC0000000000
DBG = "s[92:95]"


MAP = {"m": 3}


def p2_tile(A):
    lm = MAP["m"]
    ln = 5 - lm
    xm = 4 - lm
    A(f"""
    s_and_b32 s38, s37, {(1 << xm) - 1}
    s_lshl_b32 s38, s38, {lm}
    s_and_b32 s39, s3, {(1 << lm) - 1}
    s_add_u32 s38, s38, s39
    s_lshr_b32 s39, s37, {xm}
    s_lshl_b32 s39, s39, {ln}
    s_lshr_b32 s4, s3, {lm}
    s_add_u32 s39, s39, s4
    s_lshl_b32 s45, s38, 4
    s_add_u32 s45, s45, s39
    s_lshl_b32 s44, s45, 7
    s_add_u32 s44, s44, {XFLG}
    s_lshl_b32 s45, s45, 8
    s_add_u32 s45, s45, {FLG}
    """)


def publish(A, opt, sflag, sshift):
    A(f"""
    v_mov_b32 v2, 1
    v_lshlrev_b32 v3, {sshift}, v1
    s_waitcnt vmcnt(0)
    s_mov_b64 exec, 0xffff
    buffer_store_dword v2, v3, s[24:27], {sflag} offen sc1
    s_mov_b64 exec, -1
    """)
    stamp(A, opt, 4)


def gen_kernel(A, opt):
    A.label(KNAME)
    stamp_begin(A, opt)
    A("""
    s_load_dwordx2 s[8:9], s[0:1], 8
    s_load_dwordx2 s[12:13], s[0:1], 40
    s_load_dwordx2 s[16:17], s[0:1], 16
    s_load_dwordx2 s[20:21], s[0:1], 24
    s_load_dwordx2 s[28:29], s[0:1], 0
    s_load_dwordx2 s[32:33], s[0:1], 32
    s_load_dwordx2 s[24:25], s[0:1], 64
    s_load_dwordx2 s[92:93], s[0:1], 56
    s_load_dwordx2 s[96:97], s[0:1], 48
    s_cmp_ge_u32 s2, 256
    s_cbranch_scc1 K_EXIT
    v_and_b32 v1, 63, v0
    v_lshrrev_b32 v2, 6, v0
    s_getpc_b64 s[4:5]
    """)
    A.label("P1_PC")
    A(f"""
    v_readfirstlane_b32 s36, v2
    v_lshlrev_b32 v3, 7, v1
    v_add_u32 v4, 0x2000, v3
    v_min_u32 v4, CODE_END-P1_PC-4, v4
    s_lshr_b32 s3, s2, 3
    s_and_b32 s37, s2, 7
    s_cmp_lg_u32 s36, 7
    s_cbranch_scc1 P1_NOPF
    global_load_dword v60, v3, s[4:5]
    global_load_dword v61, v4, s[4:5]
    v_mov_b32 v2, 0
    v_mov_b32 v3, 0
    v_mov_b32 v4, {LFLAG}
    ds_write_b64 v4, v[2:3]
    """)
    A.label("P1_NOPF")
    A(f"""
    s_mov_b32 s11, 0x00020000
    s_mov_b32 s15, 0x00020000
    s_mov_b32 s27, 0x00020000
    s_mov_b32 s26, {WS_USED}
    s_movk_i32 s94, 256
    s_mov_b32 s95, 0x00020000
    s_mov_b32 s98, {OUT_BYTES}
    s_mov_b32 s99, 0x00020000
    v_lshlrev_b32 v5, 4, v1
    s_cmp_ge_u32 s3, 21
    s_cbranch_scc1 P1_XR
    """)
    gen_w2(A, opt)
    A.label("P1_XR")
    gen_xr(A, opt)
    gen_p2(A, opt)
    A.label("K_EXIT")
    stamp_end(A, opt)


def gen_w2(A, opt):
    NQ = opt.get("nq", 2)
    RING = 3 * VSTAGE
    RG = opt.get("rg", 2)
    sW, sLOC, sXCD = "s36", "s3", "s37"
    sMI, sNI = "s40", "s41"
    sC = "s49"
    sVOFS = "s43"
    vVO = 6
    A(f"""
    s_mul_i32 s4, {sLOC}, 171
    s_lshr_b32 s4, s4, 9
    s_mul_i32 s5, s4, 3
    s_sub_u32 s5, {sLOC}, s5
    s_lshr_b32 s6, {sXCD}, 2
    s_mul_i32 s6, s6, 7
    s_add_u32 {sMI}, s6, s4
    s_and_b32 s6, {sXCD}, 3
    s_mul_i32 s6, s6, 3
    s_add_u32 {sNI}, s6, s5
    s_mul_i32 s42, {sMI}, 3
    s_mov_b32 s56, s4
    s_mov_b32 s57, s5
    """)
    W = opt.get("rw", 1)
    if W == 12:
        ra, rb, rx = opt.get("rota", 5), opt.get("rotb", 4), opt.get("rotx", 0)
        A(f"""
        s_mul_i32 s6, s4, {ra}
        s_mul_i32 s7, s5, {rb}
        s_add_u32 s6, s6, s7
        s_mul_i32 s7, {sXCD}, {rx}
        s_add_u32 s6, s6, s7
        s_mul_i32 s7, s6, 43
        s_lshr_b32 s7, s7, 9
        s_mul_i32 s7, s7, 12
        s_sub_u32 s6, s6, s7
        s_lshl_b32 s6, s6, 2
        s_sub_u32 s7, 48, s6
        s_mov_b32 s60, 0x76543210
        s_mov_b32 s61, 0xba98
        s_lshl_b64 s[62:63], s[60:61], s7
        s_lshr_b64 s[60:61], s[60:61], s6
        s_or_b64 s[60:61], s[60:61], s[62:63]
        """)
        assert all((v * 43) >> 9 == v // 12 for v in range(6 * ra + 2 * rb + 7 * rx + 1))
    elif W > 1:
        ra, rb = opt.get("rota", 1), opt.get("rotb", 1)
        P2 = sum((i % W) << (4 * i) for i in range(2 * W))
        A(f"""
        s_mul_i32 s6, s4, {ra}
        s_mul_i32 s7, s5, {rb}
        s_add_u32 s6, s6, s7
        """)
        if W in (2, 4):
            A(f"s_and_b32 s6, s6, {W-1}")
        else:
            M = {3: 86, 6: 43}[W]
            A(f"""
            s_mul_i32 s7, s6, {M}
            s_lshr_b32 s7, s7, 8
            s_mul_i32 s7, s7, {W}
            s_sub_u32 s6, s6, s7
            """)
        ones = sum(1 << (4 * i) for i in range(W))
        A(f"""
        s_lshl_b32 s6, s6, 2
        s_mov_b32 s60, {P2 & 0xffffffff}
        s_mov_b32 s61, {P2 >> 32}
        s_lshr_b64 s[60:61], s[60:61], s6
        s_and_b32 s6, s60, {(1 << (4*W)) - 1}
        s_mov_b32 s60, 0
        s_mov_b32 s61, 0
        s_mov_b32 s7, 0
        """)
        for j in range(12 // W - 1, -1, -1):
            A(f"""
            s_lshl_b64 s[60:61], s[60:61], {4*W}
            s_add_u32 s6, s6, {(ones * W * j) & 0xffffffff}
            s_or_b64 s[60:61], s[60:61], s[6:7]
            s_sub_u32 s6, s6, {(ones * W * j) & 0xffffffff}
            """)
    else:
        A("""
        s_mov_b32 s60, 0x76543210
        s_mov_b32 s61, 0xba98
        """)
    A(f"""
    s_sub_u32 s4, {sW}, 4
    s_cmp_lt_u32 s4, 3
    s_cbranch_scc1 W2_DEQ
    s_mov_b32 s14, {V_BYTES}
    v_lshrrev_b32 v2, 4, v1
    v_and_b32 v3, 15, v1
    v_lshlrev_b32 v4, 1, v2
    v_xor_b32 v3, v3, v4
    v_lshlrev_b32 v3, 4, v3
    v_mul_u32_u24 v4, 0xc00, v2
    v_add_u32 v{vVO}, v3, v4
    v_add_u32 v{vVO+1}, 11264, v{vVO}
    v_xor_b32 v3, 0x80, v{vVO}
    v_add_u32 v{vVO+2}, {2*11264}, v3
    v_add_u32 v{vVO+3}, {3*11264}, v3
    s_lshl_b32 {sVOFS}, {sNI}, 8
    s_cmp_lt_u32 {sW}, 4
    s_cbranch_scc1 W2_MFMA
    """)

    def v_group():
        for j in range(4):
            A(f"buffer_load_dwordx4 v{vVO+j}, s[12:15], {sVOFS} offen offset:{1024*j} lds")

    GPC, XPC = opt.get("gpc", 4), 11
    for g in range(1, 8):
        for j in range(4):
            A(f"v_add_u32 v{vVO+4*g+j}, {g*16*3072}, v{vVO+j}")
    A(f"""
    v_mov_b32 v40, 0
    s_mov_b32 s44, {sVOFS}
    s_mov_b32 m0, {VSTAGE}
    s_mov_b32 {sC}, 1
    s_waitcnt lgkmcnt(0)
    """)
    stamp(A, opt, 1)
    A.label("W2L_LOOP")
    A(f"""
    s_lshr_b64 s[60:61], s[60:61], 4
    s_and_b32 s4, s60, 15
    s_mul_i32 s4, s4, 393216
    s_add_u32 {sVOFS}, s44, s4
    s_cmp_lg_u32 {sC}, {GPC}
    s_cbranch_scc1 W2L_NG
    buffer_load_dword v42, v40, {DBG}, 0 offen sc1
    """)
    A.label("W2L_NG")
    for g in range(8):
        if g == 6: A("s_waitcnt vmcnt(54)")
        for j in range(4):
            A(f"buffer_load_dwordx4 v{vVO+4*g+j}, s[12:15], {sVOFS} offen offset:{1024*j} lds")
            if j == 3: A("s_add_u32 m0, m0, 4096")
            if j == 3 and g < 7: A("s_nop 0")
    A(f"""
    s_cmp_ge_u32 m0, {RING}
    s_cselect_b32 m0, 0, m0
    """)
    EC = opt.get("ec", 0)
    if EC:
        A(f"""
        s_cmp_gt_u32 {sC}, 2
        s_cbranch_scc1 W2L_NT
        s_add_u32 {sC}, {sC}, 1
        s_cmp_eq_u32 {sC}, 2
        s_cbranch_scc1 W2L_LOOP
        s_mov_b32 {sC}, 2
        s_barrier
        """)
    else:
        A(f"""
        s_cmp_lg_u32 {sC}, 1
        s_cbranch_scc1 W2L_NT
        """)
    A("s_barrier")
    if opt.get("prio", 1): A("s_setprio 3")
    A.label("W2L_NT")
    A(f"""
    s_waitcnt vmcnt(32)
    s_cmp_lg_u32 {sC}, {GPC}
    s_cbranch_scc1 W2L_G_X
    """)
    poll_check(A, "v42", 0, "W2L_GS")
    A.label("W2L_G_X")
    A(f"""
    s_add_u32 {sC}, {sC}, 1
    s_barrier
    s_cmp_lt_u32 {sC}, 12
    s_cbranch_scc1 W2L_LOOP
    s_setprio 0
    """)
    A("""
    s_waitcnt vmcnt(0)
    s_barrier
    """)
    if opt.get("bst"): A("s_barrier")
    A("s_branch P2_MM")
    A.label("W2L_GS")
    A(f"s_mov_b32 s7, {POLL_MAX}")
    A.label("W2L_G")
    A(f"""
    s_sub_u32 s7, s7, 1
    s_cbranch_scc1 W2L_G_X
    buffer_load_dword v42, v40, {DBG}, 0 offen sc1
    s_waitcnt vmcnt(0)
    """)
    poll_check(A, "v42", 0, "W2L_G")
    A("s_branch W2L_G_X")
    A.label("W2_DEQ")
    sB = "s38"
    sQOFS = "s43"
    vQO = 6
    vAW = 14
    vTB = 22
    U_ = 24
    Ft = 40
    O = 48
    vQ = 52
    QS = 32
    A(f"""
    s_mov_b32 {sB}, s4
    s_add_u32 s4, s42, {sB}
    s_cmp_ge_u32 s4, 40
    s_cbranch_scc1 W2D_IDLE
    s_mul_i32 s44, s4, {16*6144}
    s_mov_b64 s[62:63], s[60:61]
    s_lshr_b32 s6, s4, 1
    s_lshr_b32 s5, s42, 1
    s_sub_u32 s6, s6, s5
    s_mul_i32 s6, s6, 6144
    s_add_u32 s6, s6, {TBL}
    s_mov_b32 s10, {QW_BYTES}
    v_lshrrev_b32 v2, 5, v1
    v_and_b32 v3, 31, v1
    v_lshlrev_b32 v4, 4, v3
    v_mul_u32_u24 v{vQO}, 0x1800, v2
    v_add_u32 v{vQO}, v{vQO}, v4
    v_add_u32 v{vTB}, s6, v4
    """)
    QR = opt.get("qr", 3)
    A(f"s_mul_i32 s57, s57, {QR}")
    for i in range(7, -1, -1):
        A(f"""
        s_add_u32 s4, s57, {i}
        s_and_b32 s4, s4, 7
        s_mul_i32 s4, s4, 12288
        v_add_u32 v{vQO+i}, s4, v{vQO}
        """)
    A("s_waitcnt lgkmcnt(0)")
    stamp(A, opt, 1)

    def q_next():
        A(f"""
        s_and_b32 s4, s60, 15
        s_lshr_b64 s[60:61], s[60:61], 4
        s_lshl_b32 s4, s4, 9
        s_add_u32 {sQOFS}, s44, s4
        """)

    def q_issue(u):
        q = vQ + QS * u
        q_next()
        for i in range(8):
            A(f"buffer_load_dwordx4 {vr(q+4*i,4)}, v{vQO+i}, s[8:11], {sQOFS} offen")

    def t_read(n):
        u = U_ + 8 * (n & 1)
        A(f"""
        s_and_b32 s4, s62, 15
        s_lshr_b64 s[62:63], s[62:63], 4
        s_lshl_b32 s4, s4, 9
        v_add_u32 v{vTB+1}, s4, v{vTB}
        ds_read_b128 {vr(u,4)}, v{vTB+1}
        ds_read_b128 {vr(u+4,4)}, v{vTB+1} offset:12288
        """)

    for u in range(NQ):
        q_issue(u)
    A(f"""
    s_lshl_b32 s4, {sB}, 12
    s_add_u32 s4, s4, {ABASE}
    v_bfe_u32 v3, v1, 1, 4
    v_xor_b32 v4, v3, v2
    v_lshlrev_b32 v4, 4, v4
    v_lshl_add_u32 v4, v2, 8, v4
    v_and_b32 v3, 1, v1
    v_lshl_add_u32 v4, v3, 3, v4
    v_add_u32 v{vAW}, s4, v4
    """)
    for i in range(7, -1, -1):
        A(f"""
        s_add_u32 s4, s57, {i}
        s_and_b32 s4, s4, 7
        s_lshl_b32 s5, s4, 5
        s_lshl_b32 s4, s4, 9
        v_xor_b32 v3, s5, v{vAW}
        v_add_u32 v{vAW+i}, s4, v3
        """)
    A(f"""
    s_mov_b32 {sC}, 0
    s_barrier
    """)
    if opt.get("prio", 1): A("s_setprio 3")
    t_read(0)
    A("s_waitcnt lgkmcnt(0)")
    assert 12 % NQ == 0
    UN = NQ if NQ % 2 == 0 else 2 * NQ
    assert 12 % UN == 0
    A.label("W2D_LOOP")
    for n in range(UN):
        u = n % NQ
        q = vQ + QS * u
        S = U_ + 8 * (n & 1)
        t_read(n + 1)
        q_next()
        A(f"""
        s_cmp_lt_u32 {sC}, {12-NQ-n+1}
        s_waitcnt vmcnt({8*(NQ-1)})
        s_cbranch_scc1 W2D_NT{n}
        s_waitcnt vmcnt({8*min(NQ-1, max(0, UN-1-n))})
        """)
        A.label(f"W2D_NT{n}")
        A(f"s_cmp_lt_u32 {sC}, {12-NQ-n}")
        for i in range(8):
            qq = q + 4 * i
            f = Ft + 4 * (i & 1)
            o = O + 2 * (i & 1)
            A(f"""
            v_fma_f32 v{f}, v{qq}, v{S}, v{S+4}
            v_fma_f32 v{f+1}, v{qq+1}, v{S+1}, v{S+5}
            v_fma_f32 v{f+2}, v{qq+2}, v{S+2}, v{S+6}
            v_fma_f32 v{f+3}, v{qq+3}, v{S+3}, v{S+7}
            v_cvt_pk_bf16_f32 v{o}, v{f}, v{f+1}
            v_cvt_pk_bf16_f32 v{o+1}, v{f+2}, v{f+3}
            ds_write_b64 v{vAW+i}, {vr(o,2)} offset:{ASTAGE*(n&1)}
            """)
            if (i + 1) % RG == 0:
                A(f"s_cbranch_scc0 W2D_SK{n}_{i}")
                for ii in range(i + 1 - RG, i + 1):
                    A(f"buffer_load_dwordx4 {vr(q+4*ii,4)}, v{vQO+ii}, s[8:11], {sQOFS} offen")
                A.label(f"W2D_SK{n}_{i}")
        A("""
        s_waitcnt lgkmcnt(0)
        s_barrier
        """)
    A(f"""
    s_add_u32 {sC}, {sC}, {UN}
    s_cmp_lt_u32 {sC}, 12
    s_cbranch_scc1 W2D_LOOP
    s_setprio 0
    {"s_barrier" if opt.get("bst") else ""}
    s_branch P2_MM
    """)
    A.label("W2D_IDLE")
    A(f"""
    s_mov_b32 {sC}, 0
    s_waitcnt lgkmcnt(0)
    """)
    A.label("W2D_IDL")
    A(f"""
    s_barrier
    s_add_u32 {sC}, {sC}, 1
    s_cmp_lt_u32 {sC}, {14 if opt.get("bst") else 13}
    s_cbranch_scc1 W2D_IDL
    s_branch P2_MM
    """)
    A.label("W2_MFMA")
    sCST = "s45"
    vAR = 10
    vBR = 14
    vT0, vT1 = 16, 17
    vST = 18
    vACC = 20
    vF = 44
    P = vF
    A(f"""
    s_lshl_b32 s4, {sW}, 13
    s_mov_b32 m0, s4
    s_mul_i32 s4, {sW}, {32*3072}
    s_add_u32 {sVOFS}, {sVOFS}, s4
    s_and_b32 s4, s60, 15
    s_mul_i32 s4, s4, 393216
    s_add_u32 {sVOFS}, {sVOFS}, s4
    s_lshr_b32 s6, s42, 1
    s_mul_i32 s6, s6, 3072
    s_mov_b32 s18, {SC_BYTES}
    s_mov_b32 s19, 0x00020000
    s_mov_b32 s22, {SC_BYTES}
    s_mov_b32 s23, 0x00020000
    v_and_b32 v2, 0xff, v0
    v_lshlrev_b32 v19, 3, v2
    s_waitcnt lgkmcnt(0)
    """)
    stamp(A, opt, 1)
    for j in range(2):
        A(f"""
        buffer_load_dwordx2 {vr(P+4*j,2)}, v19, s[16:19], s6 offen offset:{2048*j}
        buffer_load_dwordx2 {vr(P+4*j+2,2)}, v19, s[20:23], s6 offen offset:{2048*j}
        """)
    A(f"""
    s_add_u32 s6, s6, 4096
    buffer_load_dwordx2 {vr(P+8,2)}, v19, s[16:19], s6 offen
    buffer_load_dwordx2 {vr(P+10,2)}, v19, s[20:23], s6 offen
    """)
    v_group()
    A(f"""
    s_add_u32 m0, m0, 4096
    s_add_u32 {sVOFS}, {sVOFS}, {16*3072}
    """)
    v_group()
    TP = opt.get("tp", 0)
    T = 2 if TP == 1 else 0
    TC = opt.get("tc", 3)

    def touches():
        A(f"""
        v_lshrrev_b32 v2, 1, v1
        v_and_b32 v3, 1, v1
        v_mul_u32_u24 v2, 0xc00, v2
        v_lshl_add_u32 v2, v3, 7, v2
        v_min_u32 v3, {47 - 4*TC}, v1
        v_lshlrev_b32 v3, 7, v3
        v_add_u32 v3, {512*TC}, v3
        s_lshl_b32 s4, {sMI}, 2
        s_add_u32 s4, s4, {sW}
        s_add_u32 s4, s4, {4*TC}
        s_mul_i32 s4, s4, {32*3072}
        s_lshl_b32 s5, {sNI}, 8
        s_add_u32 s4, s4, s5
        s_lshl_b32 s5, {sNI}, 2
        s_add_u32 s5, s5, {sW}
        s_mul_i32 s6, {sMI}, 48
        s_add_u32 s5, s5, s6
        s_mul_i32 s5, s5, 6144
        s_mov_b32 s10, {QW_BYTES}
        buffer_load_dword v208, v2, s[12:15], s4 offen
        buffer_load_dword v209, v3, s[8:11], s5 offen
        """)
    if TP == 1: touches()
    A(f"""
    v_lshlrev_b32 v19, 1, v19
    v_add_u32 v19, {TBL}, v19
    v_and_b32 v2, 15, v1
    v_lshrrev_b32 v3, 4, v1
    v_xor_b32 v4, v2, v3
    v_lshlrev_b32 v4, 4, v4
    v_lshl_add_u32 v4, v2, 8, v4
    v_add_u32 v{vAR}, {ABASE}, v4
    v_xor_b32 v{vAR+1}, 64, v{vAR}
    v_xor_b32 v{vAR+2}, 128, v{vAR}
    v_xor_b32 v{vAR+3}, 192, v{vAR}
    v_bfe_u32 v2, v1, 2, 2
    v_and_b32 v4, 1, v3
    v_lshl_or_b32 v4, v4, 2, v2
    s_lshl_b32 s5, {sW}, 1
    v_xor_b32 v4, s5, v4
    v_lshlrev_b32 v4, 5, v4
    v_lshl_add_u32 v2, v3, 3, v2
    v_lshl_add_u32 v4, v2, 8, v4
    v_and_b32 v2, 3, v1
    v_lshl_add_u32 v{vBR}, v2, 3, v4
    v_xor_b32 v{vBR+1}, 32, v{vBR}
    s_mov_b32 {sCST}, 0
    s_mov_b32 {sC}, 0
    s_lshl_b32 s4, {sNI}, 2
    s_add_u32 s4, s4, {sW}
    s_mul_i32 s5, s4, 40
    s_add_u32 s5, s5, s42
    s_lshl_b32 s5, s5, 10
    s_add_u32 s50, s5, {W2F}
    s_mul_i32 s5, s4, 171
    s_lshr_b32 s5, s5, 9
    s_mul_i32 s6, s5, 3
    s_sub_u32 s6, s4, s6
    s_mul_i32 s6, s6, 14
    s_add_u32 s6, s6, {sMI}
    s_lshl_b32 s6, s6, 2
    s_lshl_b32 s5, s5, 8
    s_add_u32 s5, s5, s6
    s_add_u32 s51, s5, {FLG}
    s_mov_b32 s53, 12
    s_mov_b32 s54, {hex((127+149-QE) << 23)}
    s_mov_b32 s55, {hex((127+149-QE) << 23)}
    s_mov_b32 s46, 0xffff0000
    s_mov_b32 s47, {hex((127+QE) << 23)}
    s_mov_b32 s48, {hex(0x80000000 | ((127+QE-149) << 23))}
    v_bfe_u32 v3, v1, 4, 1
    v_lshrrev_b32 v4, 5, v1
    v_and_b32 v{vST}, 15, v1
    v_lshl_add_u32 v{vST}, v3, 5, v{vST}
    v_lshl_add_u32 v{vST}, v4, 4, v{vST}
    v_lshlrev_b32 v{vST}, 4, v{vST}
    """)
    for i in range(0, 24, 2):
        A(f"v_mov_b64 {vr(vACC+i,2)}, 0")
    for i in range(0, 80, 2):
        A(f"v_mov_b64 {vr(vF+80+i,2)}, 0")
    for j in range(3):
        q = P + 4 * j
        u = P + 16 + 8 * j
        A(f"""
        s_waitcnt vmcnt({8 + 4 - 2*j + T})
        v_lshlrev_b32 v{u}, 16, v{q}
        v_and_b32 v{u+1}, s46, v{q}
        v_lshlrev_b32 v{u+2}, 16, v{q+1}
        v_and_b32 v{u+3}, s46, v{q+1}
        v_lshlrev_b32 v{u+4}, 16, v{q+2}
        v_and_b32 v{u+5}, s46, v{q+2}
        v_lshlrev_b32 v{u+6}, 16, v{q+3}
        v_and_b32 v{u+7}, s46, v{q+3}
        """)
        for i in range(4): A(f"v_mul_f32 v{u+4+i}, s48, v{u+4+i}")
        for i in range(4): A(f"v_mul_f32 v{u+4+i}, v{u+i}, v{u+4+i}")
        for i in range(4): A(f"v_mul_f32 v{u+i}, s47, v{u+i}")
        A(f"""
        ds_write_b128 v19, {vr(u,4)} offset:{4096*j}
        ds_write_b128 v19, {vr(u+4,4)} offset:{4096*j+12288}
        """)
    if TP == 3: touches()
    A("""
    s_waitcnt lgkmcnt(0)
    s_barrier
    """)
    if TP == 2: touches()
    A(f"s_waitcnt vmcnt({2 if TP else 0})")

    def reads(s, buf):
        fa = vF + buf * 80 + 20 * s
        fb = fa + 12
        r = []
        for b in range(3):
            r.append(f"ds_read_b128 {vr(fa+4*b,4)}, v{vAR+s} offset:{4096*b + ASTAGE*buf}")
        for t in range(2):
            for u in range(2):
                r.append(f"ds_read_b64_tr_b16 {vr(fb+4*t+2*u,2)}, v{vT0+t} offset:{(32*s+4*u)*256}")
        return r

    def mfmas(s, buf):
        fa = vF + buf * 80 + 20 * s
        fb = fa + 12
        r = []
        for b in range(3):
            for t in range(2):
                acc = vACC + (b * 2 + t) * 4
                r.append(f"v_mfma_f32_16x16x32_bf16 {vr(acc,4)}, {vr(fa+4*b,4)}, {vr(fb+4*t,4)}, {vr(acc,4)}")
        return r

    A.label("W2M_LOOP")
    for buf in range(2):
        A(f"""
        v_add_u32 v{vT0}, {sCST}, v{vBR}
        v_add_u32 v{vT1}, {sCST}, v{vBR+1}
        s_add_u32 {sCST}, {sCST}, {VSTAGE}
        s_cmp_ge_u32 {sCST}, {RING}
        s_cselect_b32 {sCST}, 0, {sCST}
        s_barrier
        """)
        rd = sum((reads(s, buf) for s in range(4)), [])
        mf = sum((mfmas(s, buf ^ 1) for s in range(4)), [])
        seq = rd[:4]
        ri = 4
        for m in mf:
            seq.append(m)
            seq += rd[ri:ri + 1]
            ri += 1
        seq += rd[ri:]
        for x in seq: A(x)
        A("s_waitcnt lgkmcnt(0)")
        if (opt.get("stamp") or opt.get("probe") == 2) and buf == 0:
            A(f"""
            s_cmp_lg_u32 {sC}, 0
            s_cbranch_scc1 W2M_ST
            """)
            stamp(A, opt, 2, True)
            A.label("W2M_ST")
    A(f"""
    s_add_u32 {sC}, {sC}, 2
    s_cmp_lt_u32 {sC}, 12
    s_cbranch_scc1 W2M_LOOP
    s_setprio 3
    """)
    if opt.get("bst") == 3: A("s_barrier")
    for s_ in range(4):
        for m in mfmas(s_, 1): A(m)
    A("s_nop 7")
    stamp(A, opt, 3)
    for b in range(3):
        a = vACC + 8 * b
        o = vF + 4 * b
        for j in range(4):
            A(f"v_pk_mul_f32 {vr(a+2*j,2)}, {vr(a+2*j,2)}, s[54:55]")
        A(f"""
        v_cvt_pk_bf16_f32 v{o}, v{a}, v{a+1}
        v_cvt_pk_bf16_f32 v{o+1}, v{a+2}, v{a+3}
        v_cvt_pk_bf16_f32 v{o+2}, v{a+4}, v{a+5}
        v_cvt_pk_bf16_f32 v{o+3}, v{a+6}, v{a+7}
        s_nop 1
        v_permlane32_swap_b32 v{o}, v{o+2}
        v_permlane32_swap_b32 v{o+1}, v{o+3}
        buffer_store_dwordx4 {vr(o,4)}, v{vST}, s[24:27], s50 offen offset:{1024*b} sc1
        """)
        if b == 0:
            A(f"""
            s_cmp_eq_u32 {sMI}, 13
            s_cbranch_scc1 W2M_END
            """)
    A.label("W2M_END")
    if opt.get("bst") == 1: A("s_barrier")
    if opt.get("bst") == 2:
        publish(A, opt, "s51", "s53")
        A("s_barrier\ns_branch P2_LD")
    A("s_branch P2_PUB")


def wt_setup(A, opt, tag):
    TC = opt.get("wtc", 2)
    A(f"""
    s_sub_u32 s4, s2, 168
    s_cmp_ge_u32 s4, 48
    s_cbranch_scc1 WT_Q{tag}
    v_lshlrev_b32 v7, 7, v1
    s_lshl_b32 s46, s4, 13
    s_add_u32 s46, s46, {TC*393216}
    s_mov_b32 s47, 393216
    s_mov_b32 s8, s12
    s_mov_b32 s9, s13
    s_mov_b32 s10, {V_BYTES}
    s_branch WT_G{tag}
    """)
    A.label(f"WT_Q{tag}")
    A(f"""
    v_lshrrev_b32 v7, 2, v1
    v_mul_u32_u24 v7, 0x1800, v7
    v_and_b32 v3, 3, v1
    v_lshl_add_u32 v7, v3, 7, v7
    s_sub_u32 s4, s4, 48
    s_mul_i32 s46, s4, {16*6144}
    s_add_u32 s46, s46, {TC*512}
    s_movk_i32 s47, 512
    s_mov_b32 s10, {QW_BYTES}
    """)
    A.label(f"WT_G{tag}")


def wt(A, i):
    A(f"""
    buffer_load_dword v{16+i}, v7, s[8:11], s46 offen
    s_add_u32 s46, s46, s47
    """)


def gen_xr(A, opt):
    sW, sLOC, sXCD = "s36", "s3", "s37"
    sMT, sNT = "s40", "s41"
    sC = "s48"
    A(f"""
    s_sub_u32 s4, {sLOC}, 21
    s_cmp_ge_u32 s4, 5
    s_cselect_b32 s5, 1, 0
    s_cselect_b32 s6, 5, 0
    s_sub_u32 {sNT}, s4, s6
    s_lshl_b32 s7, {sXCD}, 1
    s_add_u32 {sMT}, s7, s5
    s_cmp_ge_u32 {sLOC}, 31
    s_cbranch_scc1 IDLE_WG
    s_cmp_lt_u32 {sW}, 4
    s_cbranch_scc1 XR_MFMA
    s_cmp_lt_u32 {sW}, 6
    s_cbranch_scc1 XR_LD
    """)
    A(f"""
    v_mov_b32 v2, 0
    v_lshlrev_b32 v6, 7, v1
    s_mul_i32 s4, {sMT}, 5
    s_add_u32 s4, s4, {sNT}
    s_lshl_b32 s5, s4, 15
    s_lshl_b32 s6, s4, 14
    s_mov_b32 s30, {X_BYTES}
    s_mov_b32 s31, 0x00020000
    s_mov_b32 s34, {U_BYTES}
    s_mov_b32 s35, 0x00020000
    s_waitcnt lgkmcnt(0)
    """)
    if opt.get("tx", 1):
        A(f"""
        s_cmp_lg_u32 {sW}, 6
        s_cbranch_scc1 XR_TU
        """)
        for i in range(4):
            A(f"buffer_load_dword v{8+i}, v6, s[28:31], s5 offen")
            if i < 3: A("s_add_u32 s5, s5, 8192")
        A("s_branch XR_TX")
        A.label("XR_TU")
        for i in range(2):
            A(f"buffer_load_dword v{8+i}, v6, s[32:35], s6 offen")
            if i < 1: A("s_add_u32 s6, s6, 8192")
        A.label("XR_TX")
    WT = opt.get("wt", 2)
    NT_ = 12 - opt.get("wtc", 2)
    if WT:
        A(f"""
        s_cmp_lg_u32 {sW}, 7
        s_cbranch_scc1 XR_W6
        """)
        wt_setup(A, opt, "x")
        k = 0
        for b in range(10):
            for _ in range(WT if b == 0 else opt.get("wtn", 2)):
                if k < NT_:
                    wt(A, k); k += 1
            A("s_barrier")
        A("s_branch P2_MMX")
        A.label("XR_W6")
    for i in range(5): A("s_barrier")
    A(f"""
    s_cmp_lg_u32 {sW}, 6
    s_cbranch_scc1 XR_G_X
    """)
    poll(A, "XR_G", DBG, "0", "v2", "v3", 0)
    for i in range(5): A("s_barrier")
    A("s_branch P2_MMX")
    A.label("IDLE_WG")
    A(f"""
    v_mov_b32 v2, 0
    v_mov_b32 v3, 1
    s_cmp_lg_u32 {sXCD}, 0
    s_waitcnt lgkmcnt(0)
    s_cbranch_scc1 IDLE_G0
    v_mov_b32 v6, 0
    v_mov_b32 v7, 0
    v_mov_b32 v8, 0
    v_mov_b32 v9, 0
    s_lshl_b32 s4, {sW}, 13
    s_add_u32 s4, s4, {FLG}
    s_add_u32 s5, s4, 4096
    """)
    for i in range(8):
        A(f"buffer_store_dwordx4 v[6:9], v5, s[24:27], s{4+i//4} offen offset:{1024*(i&3)} sc1")
    A(f"""
    s_lshl_b32 s4, {sW}, 12
    s_add_u32 s4, s4, {XFLG}
    """)
    for i in range(4):
        A(f"buffer_store_dwordx4 v[6:9], v5, s[24:27], s4 offen offset:{1024*i} sc1")
    A("s_waitcnt vmcnt(0)")
    A.label("IDLE_G0")
    A("s_barrier")
    if opt.get("it"):
        TC = opt.get("wtc", 2)
        A(f"""
        s_lshl_b32 s4, {sXCD}, 3
        s_add_u32 s4, s4, {sW}
        v_lshlrev_b32 v7, 7, v1
        s_lshl_b32 s46, s4, 13
        s_add_u32 s46, s46, {TC*393216}
        s_mov_b32 s14, {V_BYTES}
        v_lshrrev_b32 v8, 3, v1
        v_mul_u32_u24 v8, 0x1800, v8
        v_and_b32 v9, 7, v1
        v_lshl_add_u32 v8, v9, 7, v8
        s_mul_i32 s47, s4, {10*6144}
        s_add_u32 s47, s47, {TC*512}
        s_mov_b32 s10, {QW_BYTES}
        v_cmp_gt_u32 vcc, 16, v1
        v_add_u32 v9, {8*6144}, v8
        v_cndmask_b32 v9, v8, v9, vcc
        """)
        nv = ((12 - TC) * 48 + 63) // 64
        k = 0
        for p in range((12 - TC) // 2):
            A(f"""
            buffer_load_dword v{16+k}, v8, s[8:11], s47 offen
            buffer_load_dword v{17+k}, v9, s[8:11], s47 offen
            s_add_u32 s47, s47, 1024
            """)
            k += 2
            for _ in range(2 if p % 2 == 0 else 1):
                if nv:
                    A(f"""
                    buffer_load_dword v{16+k}, v7, s[12:15], s46 offen
                    s_add_u32 s46, s46, {64*8192}
                    """)
                    k += 1; nv -= 1
        assert nv == 0, nv
    if WT:
        A(f"""
        s_cmp_lg_u32 {sW}, 7
        s_cbranch_scc1 IDLE_NT
        """)
        wt_setup(A, opt, "i")
        for k in range(NT_):
            wt(A, k)
            if k >= WT - 1 and k < NT_ - 1: A("s_sleep 12")
        A.label("IDLE_NT")
    A(f"""
    s_cmp_lg_u32 {sW}, 0
    s_cbranch_scc1 IDLE_G_X
    s_cmp_lg_u32 {sXCD}, 0
    s_cbranch_scc1 IDLE_G1
    s_mov_b64 exec, 1
    buffer_store_dword v3, v2, {DBG}, 0 offen sc1
    s_mov_b64 exec, -1
    """)
    A.label("IDLE_G1")
    poll(A, "IDLE_G", DBG, "0", "v2", "v3", 0, sleep=8)
    A(f"""
    s_barrier
    s_cmp_lt_u32 {sW}, 4
    s_cbranch_scc1 P2_LD
    s_branch P2_MMI
    """)
    A.label("XR_LD")
    sOFS, sGRP, sCH = "s43", "s45", "s46"
    vO = 6
    A(f"""
    v_lshrrev_b32 v3, 4, v1
    s_cmp_eq_u32 {sW}, 4
    s_cbranch_scc0 XRL_U
    v_lshrrev_b32 v2, 3, v1
    v_and_b32 v4, 7, v1
    v_xor_b32 v4, v4, v3
    v_lshlrev_b32 v4, 4, v4
    v_mul_u32_u24 v{vO}, 0x500, v2
    v_add_u32 v{vO}, v{vO}, v4
    v_xor_b32 v4, 64, v{vO}
    v_add_u32 v{vO+1}, 9216, v4
    v_add_u32 v{vO+2}, {2*9216}, v{vO}
    v_add_u32 v{vO+3}, {3*9216}, v4
    s_mul_i32 {sOFS}, {sMT}, {128*1280}
    s_mov_b32 {sGRP}, {32*1280}
    s_mov_b32 {sCH}, {128 - 128*1280 + (1<<32)}
    s_mov_b32 m0, 0
    s_mov_b32 s30, {X_BYTES}
    s_waitcnt lgkmcnt(0)
    s_branch XRL_GO
    """)
    A.label("XRL_U")
    A(f"""
    v_and_b32 v4, 15, v1
    v_lshlrev_b32 v2, 2, v3
    v_xor_b32 v4, v4, v2
    v_lshlrev_b32 v4, 4, v4
    v_mul_u32_u24 v{vO}, 0x500, v3
    v_add_u32 v{vO}, v{vO}, v4
    v_add_u32 v{vO+1}, {4*1280-1024}, v{vO}
    v_add_u32 v{vO+2}, {2*(4*1280-1024)}, v{vO}
    v_add_u32 v{vO+3}, {3*(4*1280-1024)}, v{vO}
    s_lshl_b32 {sOFS}, {sNT}, 8
    s_mov_b32 {sGRP}, {16*1280}
    s_mov_b32 {sCH}, 0
    s_movk_i32 m0, 16384
    s_mov_b32 s30, {U_BYTES}
    s_waitcnt lgkmcnt(0)
    s_mov_b32 s28, s32
    s_mov_b32 s29, s33
    """)
    A.label("XRL_GO")
    A(f"""
    s_mov_b32 s31, 0x00020000
    s_mov_b32 {sC}, 0
    """)
    A.label("XRL_LOOP")
    for g in range(4):
        for j in range(4):
            A(f"buffer_load_dwordx4 v{vO+j}, s[28:31], {sOFS} offen offset:{1024*j} lds")
        A(f"""
        s_add_u32 m0, m0, 4096
        s_add_u32 {sOFS}, {sOFS}, {sGRP}
        """)
    A(f"""
    s_add_u32 {sOFS}, {sOFS}, {sCH}
    s_add_u32 m0, m0, 16384
    s_and_b32 m0, m0, {4*XSTAGE-1}
    s_add_u32 {sC}, {sC}, 1
    s_and_b32 s4, {sC}, 13
    s_cmp_eq_u32 s4, 1
    s_cbranch_scc1 XRL_LOOP
    s_cmp_eq_u32 {sC}, 2
    s_cbranch_scc0 XRL_W
    s_waitcnt vmcnt(16)
    """)
    A.label("XRL_W")
    A(f"""
    s_waitcnt vmcnt(32)
    s_barrier
    s_cmp_lt_u32 {sC}, 10
    s_cbranch_scc1 XRL_LOOP
    s_waitcnt vmcnt(16)
    s_barrier
    s_waitcnt vmcnt(0)
    s_barrier
    s_branch P2_MMX
    """)
    A.label("XR_MFMA")
    sCST = "s43"
    vXR = 6
    vUR = 10
    vT = 12
    vACC = 20
    vF = 84
    A(f"""
    s_lshr_b32 s4, {sW}, 1
    s_and_b32 s5, {sW}, 1
    s_lshl_b32 s6, s4, 13
    v_and_b32 v3, 31, v1
    v_bfe_u32 v4, v1, 1, 3
    v_lshrrev_b32 v{vT}, 5, v1
    v_xor_b32 v4, v4, v{vT}
    v_lshlrev_b32 v4, 4, v4
    v_lshl_add_u32 v4, v3, 7, v4
    v_add_u32 v{vXR}, s6, v4
    v_xor_b32 v{vXR+1}, 32, v{vXR}
    v_xor_b32 v{vXR+2}, 64, v{vXR}
    v_xor_b32 v{vXR+3}, 96, v{vXR}
    v_bfe_u32 v2, v1, 4, 1
    v_bfe_u32 v3, v1, 2, 2
    s_lshl_b32 s6, s5, 1
    v_xor_b32 v4, s6, v3
    v_lshlrev_b32 v4, 6, v4
    v_lshl_add_u32 v4, v3, 8, v4
    v_lshl_add_u32 v4, v{vT}, 11, v4
    v_lshl_add_u32 v4, v2, 5, v4
    v_and_b32 v3, 3, v1
    v_lshl_add_u32 v4, v3, 3, v4
    v_add_u32 v{vUR}, 16384, v4
    v_xor_b32 v{vUR+1}, 64, v{vUR}
    s_mov_b32 {sCST}, 0
    s_mov_b32 {sC}, 0
    s_lshl_b32 s6, {sMT}, 1
    s_add_u32 s6, s6, s4
    s_lshl_b32 s7, {sNT}, 1
    s_add_u32 s7, s7, s5
    s_mul_i32 s51, s4, 10
    s_add_u32 s51, s51, s7
    s_lshl_b32 s51, s51, 2
    s_lshl_b32 s52, {sMT}, 11
    s_add_u32 s51, s51, s52
    s_add_u32 s51, s51, {XFLG}
    s_mov_b32 s53, 7
    s_mul_i32 s6, s6, 80
    s_lshl_b32 s7, s7, 2
    s_add_u32 s6, s6, s7
    s_lshl_b32 s50, s6, 10
    s_add_u32 s52, s50, 40960
    """)
    for i in range(0, 64, 2):
        A(f"v_mov_b64 {vr(vACC+i,2)}, 0")
    for i in range(0, 64, 2):
        A(f"v_mov_b64 {vr(vF+64+i,2)}, 0")
    A("s_waitcnt lgkmcnt(0)")

    def reads(s, buf):
        f = vF + 64 * buf + 16 * s
        r = []
        for tn in range(2):
            r.append(f"ds_read_b128 {vr(f+8+4*tn,4)}, v{vT+s} offset:{4096*tn}")
            for u in range(2):
                r.append(f"ds_read_b64_tr_b16 {vr(f+4*tn+2*u,2)}, v{vT+4+tn} offset:{s*4096+u*1024}")
        return r

    def mfmas(s, buf):
        f = vF + 64 * buf + 16 * s
        r = []
        for tm in range(2):
            for tn in range(2):
                acc = vACC + 32 * tm + 16 * tn
                r.append(f"v_mfma_f32_32x32x16_bf16 {vr(acc,16)}, {vr(f+4*tn,4)}, {vr(f+8+4*tm,4)}, {vr(acc,16)}")
        return r

    A.label("XR_LOOP")
    for buf in range(2):
        for i in range(4):
            A(f"v_add_u32 v{vT+i}, {sCST}, v{vXR+i}")
        for i in range(2):
            A(f"v_add_u32 v{vT+4+i}, {sCST}, v{vUR+i}")
        A(f"""
        s_add_u32 {sCST}, {sCST}, {XSTAGE}
        s_and_b32 {sCST}, {sCST}, {4*XSTAGE-1}
        s_barrier
        """)
        rd = sum((reads(s_, buf) for s_ in range(4)), [])
        mf = sum((mfmas(s_, buf ^ 1) for s_ in range(4)), [])
        ri = 0
        for m in mf:
            A(m)
            for x in rd[ri:ri + 2]: A(x)
            ri += 2
        for x in rd[ri:]: A(x)
        A("s_waitcnt lgkmcnt(0)")
    A(f"""
    s_add_u32 {sC}, {sC}, 2
    s_cmp_lt_u32 {sC}, 10
    s_cbranch_scc1 XR_LOOP
    """)
    if opt.get("lgo"): A("s_barrier")
    for s_ in range(4):
        for m in mfmas(s_, 1): A(m)
    A("s_nop 15")
    stamp(A, opt, 3)
    for tm in range(2):
        for i in range(4):
            a = vACC + 32 * tm + 8 * i
            o = vF + 16 * tm + 4 * i
            for j in range(4):
                A(f"v_cvt_pk_bf16_f32 v{o+j}, v{a+2*j}, v{a+2*j+1}")
            A(f"buffer_store_dwordx4 {vr(o,4)}, v5, s[24:27], s{50+2*tm} offen offset:{1024*i} sc1")


VX = 96


def xload(A, opt, kb):
    sc = "" if opt.get("xplain") else " sc1"
    A(f"buffer_load_dwordx4 {vr(VX+4*kb,4)}, v5, s[24:27], s20 offen offset:{1024*(kb&3)}{sc}")
    if kb & 3 == 3 and kb < 39:
        A("s_add_u32 s20, s20, 4096")
        if opt.get("pra") or opt.get("prb"):
            A("""
            s_cmp_eq_u32 s20, s19
            s_cselect_b32 s20, s18, s20
            """)


def p2_rot(A, opt):
    lm = MAP["m"]
    A(f"""
    s_and_b32 s17, s3, {(1 << lm) - 1}
    s_mul_i32 s17, s17, {opt.get("pra", 0)}
    s_lshr_b32 s16, s3, {lm}
    s_mul_i32 s16, s16, {opt.get("prb", 0)}
    s_add_u32 s17, s17, s16
    s_mul_i32 s16, s17, 205
    s_lshr_b32 s16, s16, 11
    s_mul_i32 s16, s16, 10
    s_sub_u32 s17, s17, s16
    s_lshl_b32 s17, s17, 12
    """)


def gen_p2(A, opt):
    NA = opt.get("na", 2)
    order = [(n, kb) for kb in range(40) for n in range(NA)] + [(n, kb) for n in range(NA, 3) for kb in range(40)]
    groups = []
    for n, kb in order:
        if (n, kb // 4) not in groups: groups.append((n, kb // 4))
    CH = {1: [2, 2, 4, 4, 4, 4, 10], 2: [2, 2, 2, 2, 4, 4, 4, 5, 5], 3: [2, 4, 6, 8, 10], 4: [3, 3, 6, 6, 6, 6],
          5: [1, 1, 2, 2, 4, 10, 10]}[opt.get("ch", 1)]
    assert sum(CH) == 30
    st = [sum(CH[:i]) for i in range(len(CH) + 1)]
    wsc = "" if opt.get("wplain") else " sc1"
    F2 = opt.get("fl", 1) == 2
    FS = opt.get("fs", 4)
    A.label("P2_PUB")
    if not F2: publish(A, opt, "s51", "s53")
    A.label("P2_LD")
    p2_tile(A)
    p2_rot(A, opt)
    if F2:
        A(f"""
        s_cmp_lg_u32 s36, 0
        s_cbranch_scc1 P2_NM
        s_mul_i32 s4, s39, 3
        s_add_u32 s5, s4, 2
        s_lshr_b32 s4, s4, 2
        s_lshr_b32 s5, s5, 2
        """)
        for j in range(4):
            if opt.get("fall"):
                A(f"v_mov_b32 v{12+j}, 0")
                continue
            A(f"v_lshl_add_u32 v2, v1, 2, {j}" if FS == 4 else f"v_add_u32 v2, {64*j}, v1")
            A(f"""
            v_and_b32 v3, 7, v2
            v_lshrrev_b32 v2, 3, v2
            v_mul_u32_u24 v4, 171, v2
            v_lshrrev_b32 v4, 9, v4
            v_mul_u32_u24 v4, 3, v4
            v_sub_u32 v4, v2, v4
            v_and_b32 v6, 3, v3
            v_mad_u32_u24 v4, v6, 3, v4
            v_cmp_eq_u32 s[6:7], s4, v4
            v_cmp_eq_u32 vcc, s5, v4
            s_or_b64 s[6:7], s[6:7], vcc
            v_cmp_gt_u32 vcc, 21, v2
            s_and_b64 s[6:7], s[6:7], vcc
            v_cmp_lt_u32 vcc, 25, v2
            v_lshlrev_b32 v3, 1, v3
            s_nop 0
            v_addc_co_u32 v3, vcc, 0, v3, vcc
            v_cmp_eq_u32 s[8:9], s38, v3
            v_subrev_u32 v2, 21, v2
            v_cmp_gt_u32 vcc, 10, v2
            s_and_b64 vcc, vcc, s[8:9]
            s_or_b64 vcc, vcc, s[6:7]
            v_cndmask_b32 v{12+j}, 1, 0, vcc
            """)
        A.label("P2_NM")
        A(f"""
        v_mov_b32 v2, 1
        v_mul_u32_u24 v3, {256*FS}, v1
        s_mul_i32 s4, s2, {FS}
        s_add_u32 s4, s4, {FLG}
        s_mul_i32 s45, s37, {256*FS}
        s_add_u32 s45, s45, {FLG}
        s_waitcnt vmcnt(0)
        s_barrier
        s_cmp_lg_u32 s36, 0
        s_cbranch_scc1 P2_NF
        s_mov_b64 exec, 0xff
        buffer_store_dword v2, v3, s[24:27], s4 offen sc1
        s_mov_b64 exec, -1
        """)
        A.label("P2_NF")
        stamp(A, opt, 4)
    A(f"""
    s_mul_i32 s22, s39, 122880
    s_add_u32 s22, s22, {W2F}
    s_lshl_b32 s21, s36, 10
    s_add_u32 s22, s22, s21
    s_add_u32 s20, s22, s17
    s_add_u32 s19, s22, 40960
    v_lshlrev_b32 v2, 2, v1
    v_mov_b32 v4, {LFLAG}
    s_cmp_lg_u32 s36, 0
    s_cbranch_scc1 {"P2_LW0" if opt.get("lgo") else "P2_W_X"}
    s_sub_u32 s4, s44, s45
    s_sub_u32 s4, s4, 168
    v_cmp_gt_u32 vcc, 42, v1
    v_add_u32 v3, s4, v2
    {"v_mov_b32 v3, 0" if opt.get("xe") else "s_nop 0"}
    v_cndmask_b32 v2, v3, v2, vcc
    """)
    XE = opt.get("xe", 0)
    if F2:
        A(f"""
        s_mov_b32 s7, {POLL_MAX}
        s_branch P2_W_1
        """)
        A.label("P2_W")
        A(f"s_sleep {opt.get('wsl', 16)}")
        A.label("P2_W_1")
        A("""
        s_sub_u32 s7, s7, 1
        s_cbranch_scc1 P2_W_X
        """)
        if FS == 4:
            A("buffer_load_dwordx4 v[8:11], v5, s[24:27], s45 offen sc1")
        else:
            assert FS == 16
            for j in range(4): A(f"buffer_load_dword v{8+j}, v5, s[24:27], s45 offen offset:{1024*j} sc1")
        A("s_waitcnt vmcnt(0)")
        if not opt.get("fall"):
            for j in range(4): A(f"v_or_b32 v{8+j}, v{8+j}, v{12+j}")
        A("""
        v_min3_u32 v8, v8, v9, v10
        v_min_u32 v8, v8, v11
        """)
        poll_check(A, "v8", 0, "P2_W")
        A.label("P2_W_X")
    else:
        poll(A, "P2_W", "s[24:27]", "s45", "v2", "v3", DC_W if XE else DC_W & DC_X, sleep=opt.get("wsl", 16))
    LGO = opt.get("lgo", 0)

    def lds_wait(name, ofs, vd, va):
        A(f"s_branch {name}")
        A.label(name + "_S")
        A(f"s_sleep {opt.get('lsl', 1)}")
        A.label(name)
        A(f"""
        ds_read_b32 {vd}, {va} offset:{ofs}
        s_waitcnt lgkmcnt(0)
        """)
        poll_check(A, vd, 0, name + "_S")
    if LGO:
        assert opt.get("bst") == 3 and not F2
        A(f"""
        v_mov_b32 v3, 1
        ds_write_b32 v4, v3 offset:4
        s_branch P2_GO
        """)
        A.label("P2_LW0")
        lds_wait("P2_LW", 4, "v3", "v4")
        A.label("P2_GO")
    else:
        A("s_barrier")
    stamp(A, opt, 5)
    AH = opt.get("ah", 3)

    ROT = opt.get("pra") or opt.get("prb")
    cur = [0]

    def issue(c):
        for n, q in groups[st[c]:st[c + 1]]:
            off = (n * 40 + q * 4) * 1024
            if ROT:
                if q != cur[0]:
                    assert q == (cur[0] + 1) % 10
                    A("""
                    s_add_u32 s20, s20, 4096
                    s_cmp_eq_u32 s20, s19
                    s_cselect_b32 s20, s22, s20
                    """)
                    cur[0] = q
                A(f"s_add_u32 s5, s20, {n * 40960}")
            else:
                A(f"s_add_u32 s5, s22, {off}")
            A(f"""
            s_add_u32 m0, s21, {off}
            s_nop 0
            buffer_load_dwordx4 v5, s[24:27], s5 offen{wsc} lds
            """)

    for c in range(min(AH, len(CH))): issue(c)
    for c in range(len(CH)):
        issued = min(len(CH), AH + c)
        A(f"""
        s_waitcnt vmcnt({st[issued] - st[c+1]})
        s_barrier
        """)
        if AH + c < len(CH): issue(AH + c)
    stamp(A, opt, 6)
    A("s_branch K_EXIT")

    vACC = 8
    vF = 56
    NF = 8
    vO = 88
    D = opt.get("xd", 16)
    A.label("P2_MMX")
    if opt.get("lgo"): A("s_barrier")
    A.label("P2_MMI")
    XT = opt.get("xt", 0)
    if XT:
        p2_tile(A)
        A(f"""
        s_cmp_lt_u32 s3, {opt.get("xtl", 24)}
        s_cbranch_scc1 P2_MM
        v_lshlrev_b32 v2, 2, v1
        v_lshlrev_b32 v4, 7, v1
        s_lshl_b32 s4, s38, 2
        s_add_u32 s4, s4, s36
        s_sub_u32 s4, s4, 4
        s_mul_i32 s18, s4, 40960
        """)
        A("v_min_u32 v2, 76, v2")
        poll(A, "P2_XT", "s[24:27]", "s44", "v2", "v3", 0, sleep=opt.get("xsl", 32))
        for i in range(5):
            A(f"buffer_load_dword v{8+i}, v4, s[24:27], s18 offen sc1")
            if i < 4: A("s_add_u32 s18, s18, 8192")
            if opt.get("xts"): A(f"s_sleep {opt['xts']}")
    A.label("P2_MM")
    stamp(A, opt, 2)
    p2_tile(A)
    p2_rot(A, opt)
    A(f"""
    s_lshl_b32 s4, s38, 2
    s_add_u32 s4, s4, s36
    s_sub_u32 s4, s4, 4
    s_mul_i32 s18, s4, 40960
    s_add_u32 s19, s18, 40960
    s_add_u32 s20, s18, s17
    s_mul_i32 s4, s4, {32*3072}
    s_mul_i32 s5, s39, 192
    s_add_u32 s23, s4, s5
    s_add_u32 s22, s23, {16*3072}
    """)
    Y64 = opt.get("y64", 1)
    if Y64:
        A("""
        v_bfe_u32 v2, v1, 2, 1
        v_bfe_u32 v4, v1, 3, 2
        v_and_b32 v3, 0x23, v1
        v_lshl_add_u32 v3, v2, 4, v3
        v_lshl_add_u32 v3, v4, 2, v3
        v_lshlrev_b32 v3, 4, v3
        v_and_b32 v6, 15, v1
        v_and_b32 v7, 48, v1
        v_mul_u32_u24 v6, 0xc00, v6
        v_add_u32 v6, v6, v7
        """)
    else:
        A("""
        v_mov_b32 v3, v5
        v_and_b32 v6, 31, v1
        v_lshrrev_b32 v7, 5, v1
        v_mul_u32_u24 v6, 0xc00, v6
        v_lshl_add_u32 v6, v7, 4, v6
        """)
    A("""
    v_add_u32 v4, 61440, v3
    s_waitcnt vmcnt(0)
    """)
    if XE:
        A(f"""
        v_min_u32 v2, 19, v1
        v_lshlrev_b32 v2, 2, v2
        v_mov_b32 v8, {LFLAG}
        s_cmp_lg_u32 s36, 7
        s_cbranch_scc1 P2_XW
        """)
        poll(A, "P2_X", "s[24:27]", "s44", "v2", "v7", 0, sleep=opt.get("xsl", 8))
        A("""
        v_mov_b32 v7, 1
        ds_write_b32 v8, v7
        s_branch P2_XW_X
        """)
        A.label("P2_XW_S")
        A("s_sleep 2")
        A.label("P2_XW")
        A("""
        ds_read_b32 v7, v8
        s_waitcnt lgkmcnt(0)
        """)
        poll_check(A, "v7", 0, "P2_XW_S")
        A.label("P2_XW_X")
        stamp(A, opt, 1)
        for kb in range(XE): xload(A, opt, kb)
    if F2: A("s_barrier")
    if not LGO: A("s_barrier")
    elif XE < D:
        A(f"v_mov_b32 v8, {LFLAG}")
        lds_wait("P2_MW", 4, "v7", "v8")
    for kb in range(XE, D): xload(A, opt, kb)
    D = max(D, XE)
    stamp(A, opt, 5, True)
    ysc = {0: "", 1: " sc1", 2: " sc1", 3: " nt", 4: " sc0 sc1", 5: " sc1 nt"}[opt.get("ysc", 0)]
    ysc2 = ysc if opt.get("ysc", 0) > 1 else ""

    def epi(t, o=vO, sc=None):
        r = []
        if sc is None: sc = ysc if t < 2 else ''
        if Y64:
            a = vACC + 16 * t
            r.append([f"v_cvt_pk_bf16_f32 v{o+j}, v{a+2*j}, v{a+2*j+1}" for j in range(4)])
            r.append([f"v_cvt_pk_bf16_f32 v{o+j}, v{a+2*j}, v{a+2*j+1}" for j in range(4, 8)])
            r.append(["s_nop 1"] + [f"v_permlane16_swap_b32 v{o+j}, v{o+4+j}" for j in range(4)])
            r.append([f"buffer_store_dwordx4 {vr(o,4)}, v6, s[96:99], s23 offen offset:{64*t}{sc}",
                      f"buffer_store_dwordx4 {vr(o+4,4)}, v6, s[96:99], s22 offen offset:{64*t}{sc}"])
            return r
        for p in range(2):
            a = vACC + 16 * t + 8 * p
            o = vO + 4 * p
            r.append([f"v_cvt_pk_bf16_f32 v{o+j}, v{a+2*j}, v{a+2*j+1}" for j in range(4)])
            r.append(["s_nop 1", f"v_permlane32_swap_b32 v{o}, v{o+2}", f"v_permlane32_swap_b32 v{o+1}, v{o+3}",
                      f"buffer_store_dwordx4 {vr(o,4)}, v6, s[96:99], s23 offen offset:{64*t+32*p}{ysc if t < 2 else ''}"])
        return r

    RA = opt.get("ra", 6)
    assert RA < NF
    seen = [0]

    def read(i):
        n, kb = order[i]
        g = groups.index((n, kb // 4))
        while st[seen[0]] <= g:
            A("s_barrier")
            seen[0] += 1
        off = (n * 40 + kb) * 1024
        base, o = ("v3", off) if off < 61440 else ("v4", off - 61440)
        A(f"ds_read_b128 {vr(vF+4*(i%NF),4)}, {base} offset:{o}")

    for i in range(RA): read(i)
    pending = []
    done = set()
    issued = D
    last = {n: max(i for i, x in enumerate(order) if x[0] == n) for n in range(3)}
    for i, (n, kb) in enumerate(order):
        if n == 0: A(f"s_waitcnt vmcnt({issued - kb - 1})")
        A(f"s_waitcnt lgkmcnt({min(120, i + RA) - i - 1})")
        acc = vACC + 16 * n
        c = "0" if kb == 0 else vr(acc, 16)
        A(f"v_mfma_f32_32x32x16_bf16 {vr(acc,16)}, {vr(vF+4*(i%NF),4)}, {vr(VX+4*kb,4)}, {c}")
        if i == 0 and opt.get("stamp"):
            stamp(A, opt, 3)
            A("s_memtime s[80:81]\ns_nop 7\ns_nop 7\ns_waitcnt lgkmcnt(0)")
        if i + RA < 120: read(i + RA)
        for _ in range(opt.get("xr", 1) if n == 0 else 0):
            if issued < 40:
                xload(A, opt, issued)
                issued += 1
        for t in range(3):
            if i == last[t] + 3:
                pending += epi(t) + [[], [], [], []]
                done.add(t)
        if pending:
            for x in pending.pop(0): A(x)
    assert seen[0] == len(CH)
    A("s_nop 15")
    stamp(A, opt, 6)
    if opt.get("stamp"):
        A("s_memtime s[82:83]\ns_waitcnt lgkmcnt(0)\ns_sub_u32 s72, s82, s80")
    k = 0
    for t in range(3):
        if t in done: continue
        if Y64:
            for x in sum(epi(t, vF + 8 * k, ysc2), []): A(x)
            k += 1
            continue
        for p in range(2):
            a = vACC + 16 * t + 8 * p
            o = vF + 4 * k
            k += 1
            for j in range(4): A(f"v_cvt_pk_bf16_f32 v{o+j}, v{a+2*j}, v{a+2*j+1}")
            A(f"""
            s_nop 1
            v_permlane32_swap_b32 v{o}, v{o+2}
            v_permlane32_swap_b32 v{o+1}, v{o+3}
            buffer_store_dwordx4 {vr(o,4)}, v6, s[96:99], s23 offen offset:{64*t+32*p}{ysc2}
            """)


def descriptor(name, vgpr, accum, sgpr):
    return f""".amdhsa_kernel {name}
  .amdhsa_next_free_vgpr {vgpr}
  .amdhsa_next_free_sgpr {sgpr}
  .amdhsa_accum_offset {accum}
  .amdhsa_group_segment_fixed_size 0
  .amdhsa_kernarg_size 72
  .amdhsa_user_sgpr_count 2
  .amdhsa_user_sgpr_kernarg_segment_ptr 1
  .amdhsa_system_sgpr_workgroup_id_x 1
  .amdhsa_float_denorm_mode_32 3
.end_amdhsa_kernel
"""


def generate(opt):
    out = HEADER
    MAP["m"] = opt.get("map", 3)
    k = f"kernel={KNAME} " if opt.get("list") else ""
    out += f"; @launch {k}grid=(256,1,1) block=(512,1,1) lds={LDS1 + 16}\n"
    out += '.amdgcn_target "amdgcn-amd-amdhsa--gfx950"\n.text\n'
    A = Asm()
    out += f".globl {KNAME}\n.p2align 8\n.type {KNAME},@function\n"
    gen_kernel(A, opt)
    out += A.text()
    out += "CODE_END:\n"
    out += '.section .rodata,"a"\n.p2align 6\n'
    out += descriptor(KNAME, 256, 256, 100)
    return out


if __name__ == "__main__":
    path = sys.argv[1] if len(sys.argv) > 1 else "standalone__weight_only_int_quip__prompt.s"
    opt = {}
    for a in sys.argv[2:]:
        k, _, v = a.partition("=")
        opt[k] = int(v) if v else 1
    open(path, "w").write(generate(opt))
    print("wrote", path)
```

```python
import sys

KNAME = "standalone__weight_only_int_quip__prompt_kernel"
HEADER = """; Kernarg layout for this problem (72 bytes, ptrs only, base s[0:1]):
;   offset   0: d_in[0] x  shape=(1, 2048, 640) dtype=bfloat16 strides=(2621440, 1280, 2) contiguous=True
;   offset  16: d_in[2] scales  shape=(20, 1536) dtype=bfloat16 strides=(3072, 2) contiguous=True
;   offset  24: d_in[3] zeros  shape=(20, 1536) dtype=bfloat16 strides=(3072, 2) contiguous=True
;   offset  32: d_in[4] U  shape=(640, 640) dtype=bfloat16 strides=(1280, 2) contiguous=True
;   offset  40: d_in[5] V  shape=(1536, 1536) dtype=bfloat16 strides=(3072, 2) contiguous=True
;   offset  48: d_out     shape=(1, 2048, 1536) dtype=bfloat16 (2 bytes/elem)
; phase 2 makes y = xr@W2.  One workgroup per CU (256, all resident); hand-off through flags in d_ws
"""

XRF = 0
W2F = 64 * 40 * 1024
FLG = W2F + 48 * 40 * 1024
XFLG = FLG + 256 * 256
WS_USED = XFLG + 256 * 128

X_BYTES = 2048 * 640 * 2
QW_BYTES = 640 * 1536 * 4
SC_BYTES = 20 * 1536 * 2
U_BYTES = 640 * 640 * 2
V_BYTES = 1536 * 1536 * 2
OUT_BYTES = 2048 * 1536 * 2

VSTAGE = 32768
ABASE = 3 * VSTAGE
ASTAGE = 12288
TBL = ABASE + 2 * ASTAGE
LDS1 = TBL + 24576
LFLAG = LDS1
QE = 112
XSTAGE = 32768
POLL_MAX = 40000


class Asm:
    def __init__(self):
        self.lines = []

    def __call__(self, s):
        for l in s.strip("\n").split("\n"):
            self.lines.append("    " + l.strip() if not l.strip().endswith(":") else l.strip())

    def label(self, s):
        self.lines.append(s + ":")

    def comment(self, s):
        self.lines.append("    ; " + s)

    def text(self):
        return "\n".join(self.lines) + "\n"


def vr(a, n):
    return f"v[{a}:{a+n-1}]"


STAMP_OFS = 32 << 20
NSTAMP = 8


def stamp(A, opt, i, wait=False):
    if opt.get("stamp") or ("probe" in opt and i in (0, opt["probe"])):
        A(f"s_memrealtime s[{64+2*i}:{65+2*i}]")
        if wait: A("s_waitcnt lgkmcnt(0)")


def stamp_begin(A, opt):
    if opt.get("stamp") or "probe" in opt:
        for i in range(1, NSTAMP):
            A(f"s_mov_b32 s{64+2*i}, 0")
    stamp(A, opt, 0)


def stamp_end(A, opt):
    if "probe" in opt:
        p = opt["probe"]
        wl, wh = opt.get("pwl", 0), opt.get("pwh", 7)
        A(f"""
        s_waitcnt vmcnt(0) lgkmcnt(0)
        s_memrealtime s[78:79]
        s_waitcnt lgkmcnt(0)
        s_cmp_ge_u32 s2, 256
        s_cbranch_scc1 PRB_X
        s_cmp_lt_u32 s36, {wl}
        s_cbranch_scc1 PRB_X
        s_cmp_gt_u32 s36, {wh}
        s_cbranch_scc1 PRB_X
        s_cmp_eq_u32 s{64+2*p}, 0
        s_cbranch_scc1 PRB_X
        s_sub_u32 s4, s{64+2*p}, s64
        s_mul_i32 s4, s4, 3
        s_min_u32 s4, s4, 20000
        """)
        A.label("PRB")
        A("""
        s_memrealtime s[6:7]
        s_waitcnt lgkmcnt(0)
        s_sub_u32 s5, s6, s78
        s_cmp_lt_u32 s5, s4
        s_cbranch_scc1 PRB
        """)
        A.label("PRB_X")
    if opt.get("stamp"):
        A("s_waitcnt vmcnt(0) lgkmcnt(0)")
        stamp(A, opt, NSTAMP - 1)
        A(f"""
        s_load_dwordx2 s[56:57], s[0:1], 64
        s_waitcnt lgkmcnt(0)
        s_mov_b32 s58, 0x7fffffff
        s_mov_b32 s59, 0x00020000
        v_lshrrev_b32 v1, 6, v0
        v_lshlrev_b32 v1, 5, v1
        s_lshl_b32 s4, s2, 8
        s_add_u32 s4, s4, {STAMP_OFS}
        """)
        for i in range(NSTAMP):
            A(f"v_mov_b32 v{4+i}, s{64+2*i}")
        A("""
        buffer_store_dwordx4 v[4:7], v1, s[56:59], s4 offen
        buffer_store_dwordx4 v[8:11], v1, s[56:59], s4 offen offset:16
        """)
    A("s_endpgm")


def poll_check(A, vdst, dc, again):
    A(f"v_cmp_ne_u32 vcc, 0, {vdst}")
    if dc & 0xffffffff: A(f"s_or_b32 vcc_lo, vcc_lo, {hex(dc & 0xffffffff)}")
    if dc >> 32: A(f"s_or_b32 vcc_hi, vcc_hi, {hex(dc >> 32)}")
    A(f"""
    s_cmp_eq_u64 vcc, -1
    s_cbranch_scc0 {again}
    """)


def poll(A, name, srd, soff, vaddr, vdst, dc, scnt="s7", sleep=0, st=None):
    A(f"s_mov_b32 {scnt}, {POLL_MAX}")
    if sleep: A(f"s_branch {name}_1")
    A.label(name)
    if sleep:
        A(f"s_sleep {sleep}")
        A.label(name + "_1")
    A(f"""
    s_sub_u32 {scnt}, {scnt}, 1
    s_cbranch_scc1 {name}_X
    """)
    if st: st()
    A(f"""
    buffer_load_dword {vdst}, {vaddr}, {srd}, {soff} offen sc1
    s_waitcnt vmcnt(0)
    """)
    A.label(name + "_C")
    poll_check(A, vdst, dc, name)
    A.label(name + "_X")


DC_X = 0xC00003FFFFFFFFFF
DC_W = 0xFFFFFC0000000000
DBG = "s[92:95]"


MAP = {"m": 3}


def p2_tile(A):
    lm = MAP["m"]
    ln = 5 - lm
    xm = 4 - lm
    A(f"""
    s_and_b32 s38, s37, {(1 << xm) - 1}
    s_lshl_b32 s38, s38, {lm}
    s_and_b32 s39, s3, {(1 << lm) - 1}
    s_add_u32 s38, s38, s39
    s_lshr_b32 s39, s37, {xm}
    s_lshl_b32 s39, s39, {ln}
    s_lshr_b32 s4, s3, {lm}
    s_add_u32 s39, s39, s4
    s_lshl_b32 s45, s38, 4
    s_add_u32 s45, s45, s39
    s_lshl_b32 s44, s45, 7
    s_add_u32 s44, s44, {XFLG}
    """)
    if MAP["fsh"]:
        A(f"""
        s_lshr_b32 s45, s38, {MAP["fsh"]}
        s_lshl_b32 s45, s45, 4
        s_add_u32 s45, s45, s39
        """)
    A(f"""
    s_lshl_b32 s45, s45, 8
    s_add_u32 s45, s45, {FLG}
    """)


def publish(A, opt, sflag, sshift):
    A(f"""
    v_mov_b32 v2, 1
    v_lshlrev_b32 v3, {sshift}, v1
    {"" if opt.get("hs") else "s_waitcnt vmcnt(0)"}
    s_mov_b64 exec, s[58:59]
    buffer_store_dword v2, v3, s[24:27], {sflag} offen sc1
    s_mov_b64 exec, -1
    """)
    stamp(A, opt, 4)


def gen_kernel(A, opt):
    A.label(KNAME)
    stamp_begin(A, opt)
    A("""
    s_load_dwordx2 s[8:9], s[0:1], 8
    s_load_dwordx2 s[12:13], s[0:1], 40
    s_load_dwordx2 s[16:17], s[0:1], 16
    s_load_dwordx2 s[20:21], s[0:1], 24
    s_load_dwordx2 s[28:29], s[0:1], 0
    s_load_dwordx2 s[32:33], s[0:1], 32
    s_load_dwordx2 s[24:25], s[0:1], 64
    s_load_dwordx2 s[92:93], s[0:1], 56
    s_load_dwordx2 s[96:97], s[0:1], 48
    s_cmp_ge_u32 s2, 256
    s_cbranch_scc1 K_EXIT
    v_and_b32 v1, 63, v0
    v_lshrrev_b32 v2, 6, v0
    s_getpc_b64 s[4:5]
    """)
    A.label("P1_PC")
    A(f"""
    v_readfirstlane_b32 s36, v2
    v_lshlrev_b32 v3, 7, v1
    v_add_u32 v4, 0x2000, v3
    v_min_u32 v4, CODE_END-P1_PC-4, v4
    s_lshr_b32 s3, s2, 3
    s_and_b32 s37, s2, 7
    s_cmp_lg_u32 s36, 7
    s_cbranch_scc1 P1_NOPF
    global_load_dword v60, v3, s[4:5]
    global_load_dword v61, v4, s[4:5]
    v_mov_b32 v2, 0
    v_mov_b32 v3, 0
    v_mov_b32 v4, {LFLAG}
    ds_write_b64 v4, v[2:3]
    """)
    A.label("P1_NOPF")
    A(f"""
    s_mov_b32 s11, 0x00020000
    s_mov_b32 s15, 0x00020000
    s_mov_b32 s27, 0x00020000
    s_mov_b32 s26, {WS_USED}
    s_movk_i32 s94, 256
    s_mov_b32 s95, 0x00020000
    s_mov_b32 s98, {OUT_BYTES}
    s_mov_b32 s99, 0x00020000
    v_lshlrev_b32 v5, 4, v1
    s_cmp_ge_u32 s3, 21
    s_cbranch_scc1 P1_XR
    """)
    gen_w2(A, opt)
    A.label("P1_XR")
    gen_xr(A, opt)
    gen_p2(A, opt)
    A.label("K_EXIT")
    stamp_end(A, opt)


def gen_w2(A, opt):
    NQ = opt.get("nq", 2)
    RING = 3 * VSTAGE
    RG = opt.get("rg", 2)
    sW, sLOC, sXCD = "s36", "s3", "s37"
    sMI, sNI = "s40", "s41"
    sC = "s49"
    sVOFS = "s43"
    vVO = 6
    A(f"""
    s_mul_i32 s4, {sLOC}, 171
    s_lshr_b32 s4, s4, 9
    s_mul_i32 s5, s4, 3
    s_sub_u32 s5, {sLOC}, s5
    s_lshr_b32 s6, {sXCD}, 2
    s_mul_i32 s6, s6, 7
    s_add_u32 {sMI}, s6, s4
    s_and_b32 s6, {sXCD}, 3
    s_mul_i32 s6, s6, 3
    s_add_u32 {sNI}, s6, s5
    s_mul_i32 s42, {sMI}, 3
    s_mov_b32 s56, s4
    s_mov_b32 s57, s5
    """)
    W = opt.get("rw", 1)
    if W == 12:
        ra, rb, rx = opt.get("rota", 5), opt.get("rotb", 4), opt.get("rotx", 0)
        A(f"""
        s_mul_i32 s6, s4, {ra}
        s_mul_i32 s7, s5, {rb}
        s_add_u32 s6, s6, s7
        s_mul_i32 s7, {sXCD}, {rx}
        s_add_u32 s6, s6, s7
        s_mul_i32 s7, s6, 43
        s_lshr_b32 s7, s7, 9
        s_mul_i32 s7, s7, 12
        s_sub_u32 s6, s6, s7
        s_lshl_b32 s6, s6, 2
        s_sub_u32 s7, 48, s6
        s_mov_b32 s60, 0x76543210
        s_mov_b32 s61, 0xba98
        s_lshl_b64 s[62:63], s[60:61], s7
        s_lshr_b64 s[60:61], s[60:61], s6
        s_or_b64 s[60:61], s[60:61], s[62:63]
        """)
        assert all((v * 43) >> 9 == v // 12 for v in range(6 * ra + 2 * rb + 7 * rx + 1))
    elif W > 1:
        ra, rb = opt.get("rota", 1), opt.get("rotb", 1)
        P2 = sum((i % W) << (4 * i) for i in range(2 * W))
        A(f"""
        s_mul_i32 s6, s4, {ra}
        s_mul_i32 s7, s5, {rb}
        s_add_u32 s6, s6, s7
        """)
        if W in (2, 4):
            A(f"s_and_b32 s6, s6, {W-1}")
        else:
            M = {3: 86, 6: 43}[W]
            A(f"""
            s_mul_i32 s7, s6, {M}
            s_lshr_b32 s7, s7, 8
            s_mul_i32 s7, s7, {W}
            s_sub_u32 s6, s6, s7
            """)
        ones = sum(1 << (4 * i) for i in range(W))
        A(f"""
        s_lshl_b32 s6, s6, 2
        s_mov_b32 s60, {P2 & 0xffffffff}
        s_mov_b32 s61, {P2 >> 32}
        s_lshr_b64 s[60:61], s[60:61], s6
        s_and_b32 s6, s60, {(1 << (4*W)) - 1}
        s_mov_b32 s60, 0
        s_mov_b32 s61, 0
        s_mov_b32 s7, 0
        """)
        for j in range(12 // W - 1, -1, -1):
            A(f"""
            s_lshl_b64 s[60:61], s[60:61], {4*W}
            s_add_u32 s6, s6, {(ones * W * j) & 0xffffffff}
            s_or_b64 s[60:61], s[60:61], s[6:7]
            s_sub_u32 s6, s6, {(ones * W * j) & 0xffffffff}
            """)
    else:
        A("""
        s_mov_b32 s60, 0x76543210
        s_mov_b32 s61, 0xba98
        """)
    A(f"""
    s_sub_u32 s4, {sW}, 4
    s_cmp_lt_u32 s4, 3
    s_cbranch_scc1 W2_DEQ
    s_mov_b32 s14, {V_BYTES}
    v_lshrrev_b32 v2, 4, v1
    v_and_b32 v3, 15, v1
    v_lshlrev_b32 v4, 1, v2
    v_xor_b32 v3, v3, v4
    v_lshlrev_b32 v3, 4, v3
    v_mul_u32_u24 v4, 0xc00, v2
    v_add_u32 v{vVO}, v3, v4
    v_add_u32 v{vVO+1}, 11264, v{vVO}
    v_xor_b32 v3, 0x80, v{vVO}
    v_add_u32 v{vVO+2}, {2*11264}, v3
    v_add_u32 v{vVO+3}, {3*11264}, v3
    s_lshl_b32 {sVOFS}, {sNI}, 8
    s_cmp_lt_u32 {sW}, 4
    s_cbranch_scc1 W2_MFMA
    """)

    def v_group():
        for j in range(4):
            A(f"buffer_load_dwordx4 v{vVO+j}, s[12:15], {sVOFS} offen offset:{1024*j} lds")

    GPC, XPC = opt.get("gpc", 4), 11
    for g in range(1, 8):
        for j in range(4):
            A(f"v_add_u32 v{vVO+4*g+j}, {g*16*3072}, v{vVO+j}")
    if opt.get("hs") and opt.get("wf") == 200:
        A("""
        v_min_u32 v40, 8, v1
        v_lshlrev_b32 v40, 2, v40
        """)
    else:
        A("v_mov_b32 v40, 0")
    A(f"""
    s_mov_b32 s44, {sVOFS}
    s_mov_b32 m0, {VSTAGE}
    s_mov_b32 {sC}, 1
    s_waitcnt lgkmcnt(0)
    """)
    stamp(A, opt, 1)
    A.label("W2L_LOOP")
    A(f"""
    s_lshr_b64 s[60:61], s[60:61], 4
    s_and_b32 s4, s60, 15
    s_mul_i32 s4, s4, 393216
    s_add_u32 {sVOFS}, s44, s4
    s_cmp_lg_u32 {sC}, {GPC}
    s_cbranch_scc1 W2L_NG
    buffer_load_dword v42, v40, {DBG}, 0 offen sc1
    """)
    A.label("W2L_NG")
    for g in range(8):
        if g == 6: A("s_waitcnt vmcnt(54)")
        for j in range(4):
            A(f"buffer_load_dwordx4 v{vVO+4*g+j}, s[12:15], {sVOFS} offen offset:{1024*j} lds")
            if j == 3: A("s_add_u32 m0, m0, 4096")
            if j == 3 and g < 7: A("s_nop 0")
    A(f"""
    s_cmp_ge_u32 m0, {RING}
    s_cselect_b32 m0, 0, m0
    """)
    EC = opt.get("ec", 0)
    if EC:
        A(f"""
        s_cmp_gt_u32 {sC}, 2
        s_cbranch_scc1 W2L_NT
        s_add_u32 {sC}, {sC}, 1
        s_cmp_eq_u32 {sC}, 2
        s_cbranch_scc1 W2L_LOOP
        s_mov_b32 {sC}, 2
        s_barrier
        """)
    else:
        A(f"""
        s_cmp_lg_u32 {sC}, 1
        s_cbranch_scc1 W2L_NT
        """)
    A("s_barrier")
    if opt.get("prio", 1): A("s_setprio 3")
    A.label("W2L_NT")
    A(f"""
    s_waitcnt vmcnt(32)
    s_cmp_lg_u32 {sC}, {GPC}
    s_cbranch_scc1 W2L_G_X
    """)
    poll_check(A, "v42", 0, "W2L_GS")
    A.label("W2L_G_X")
    A(f"""
    s_add_u32 {sC}, {sC}, 1
    s_barrier
    s_cmp_lt_u32 {sC}, 12
    s_cbranch_scc1 W2L_LOOP
    s_setprio 0
    """)
    A("""
    s_waitcnt vmcnt(0)
    s_barrier
    """)
    if opt.get("bst"): A("s_barrier")
    A("s_branch P2_MM")
    A.label("W2L_GS")
    A(f"s_mov_b32 s7, {POLL_MAX}")
    A.label("W2L_G")
    A(f"""
    s_sub_u32 s7, s7, 1
    s_cbranch_scc1 W2L_G_X
    buffer_load_dword v42, v40, {DBG}, 0 offen sc1
    s_waitcnt vmcnt(0)
    """)
    poll_check(A, "v42", 0, "W2L_G")
    A("s_branch W2L_G_X")
    A.label("W2_DEQ")
    sB = "s38"
    sQOFS = "s43"
    vQO = 6
    vAW = 14
    vTB = 22
    U_ = 24
    Ft = 40
    O = 48
    vQ = 52
    QS = 32
    A(f"""
    s_mov_b32 {sB}, s4
    s_add_u32 s4, s42, {sB}
    s_cmp_ge_u32 s4, 40
    s_cbranch_scc1 W2D_IDLE
    s_mul_i32 s44, s4, {16*6144}
    s_mov_b64 s[62:63], s[60:61]
    s_lshr_b32 s6, s4, 1
    s_lshr_b32 s5, s42, 1
    s_sub_u32 s6, s6, s5
    s_mul_i32 s6, s6, 6144
    s_add_u32 s6, s6, {TBL}
    s_mov_b32 s10, {QW_BYTES}
    v_lshrrev_b32 v2, 5, v1
    v_and_b32 v3, 31, v1
    v_lshlrev_b32 v4, 4, v3
    v_mul_u32_u24 v{vQO}, 0x1800, v2
    v_add_u32 v{vQO}, v{vQO}, v4
    v_add_u32 v{vTB}, s6, v4
    """)
    QR = opt.get("qr", 3)
    A(f"s_mul_i32 s57, s57, {QR}")
    for i in range(7, -1, -1):
        A(f"""
        s_add_u32 s4, s57, {i}
        s_and_b32 s4, s4, 7
        s_mul_i32 s4, s4, 12288
        v_add_u32 v{vQO+i}, s4, v{vQO}
        """)
    A("s_waitcnt lgkmcnt(0)")
    stamp(A, opt, 1)

    def q_next():
        A(f"""
        s_and_b32 s4, s60, 15
        s_lshr_b64 s[60:61], s[60:61], 4
        s_lshl_b32 s4, s4, 9
        s_add_u32 {sQOFS}, s44, s4
        """)

    def q_issue(u):
        q = vQ + QS * u
        q_next()
        for i in range(8):
            A(f"buffer_load_dwordx4 {vr(q+4*i,4)}, v{vQO+i}, s[8:11], {sQOFS} offen")

    def t_read(n):
        u = U_ + 8 * (n & 1)
        A(f"""
        s_and_b32 s4, s62, 15
        s_lshr_b64 s[62:63], s[62:63], 4
        s_lshl_b32 s4, s4, 9
        v_add_u32 v{vTB+1}, s4, v{vTB}
        ds_read_b128 {vr(u,4)}, v{vTB+1}
        ds_read_b128 {vr(u+4,4)}, v{vTB+1} offset:12288
        """)

    for u in range(NQ):
        q_issue(u)
    A(f"""
    s_lshl_b32 s4, {sB}, 12
    s_add_u32 s4, s4, {ABASE}
    v_bfe_u32 v3, v1, 1, 4
    v_xor_b32 v4, v3, v2
    v_lshlrev_b32 v4, 4, v4
    v_lshl_add_u32 v4, v2, 8, v4
    v_and_b32 v3, 1, v1
    v_lshl_add_u32 v4, v3, 3, v4
    v_add_u32 v{vAW}, s4, v4
    """)
    for i in range(7, -1, -1):
        A(f"""
        s_add_u32 s4, s57, {i}
        s_and_b32 s4, s4, 7
        s_lshl_b32 s5, s4, 5
        s_lshl_b32 s4, s4, 9
        v_xor_b32 v3, s5, v{vAW}
        v_add_u32 v{vAW+i}, s4, v3
        """)
    A(f"""
    s_mov_b32 {sC}, 0
    s_barrier
    """)
    if opt.get("prio", 1): A("s_setprio 3")
    t_read(0)
    A("s_waitcnt lgkmcnt(0)")
    assert 12 % NQ == 0
    UN = NQ if NQ % 2 == 0 else 2 * NQ
    assert 12 % UN == 0
    A.label("W2D_LOOP")
    for n in range(UN):
        u = n % NQ
        q = vQ + QS * u
        S = U_ + 8 * (n & 1)
        t_read(n + 1)
        q_next()
        A(f"""
        s_cmp_lt_u32 {sC}, {12-NQ-n+1}
        s_waitcnt vmcnt({8*(NQ-1)})
        s_cbranch_scc1 W2D_NT{n}
        s_waitcnt vmcnt({8*min(NQ-1, max(0, UN-1-n))})
        """)
        A.label(f"W2D_NT{n}")
        A(f"s_cmp_lt_u32 {sC}, {12-NQ-n}")
        for i in range(8):
            qq = q + 4 * i
            f = Ft + 4 * (i & 1)
            o = O + 2 * (i & 1)
            A(f"""
            v_fma_f32 v{f}, v{qq}, v{S}, v{S+4}
            v_fma_f32 v{f+1}, v{qq+1}, v{S+1}, v{S+5}
            v_fma_f32 v{f+2}, v{qq+2}, v{S+2}, v{S+6}
            v_fma_f32 v{f+3}, v{qq+3}, v{S+3}, v{S+7}
            v_cvt_pk_bf16_f32 v{o}, v{f}, v{f+1}
            v_cvt_pk_bf16_f32 v{o+1}, v{f+2}, v{f+3}
            ds_write_b64 v{vAW+i}, {vr(o,2)} offset:{ASTAGE*(n&1)}
            """)
            if (i + 1) % RG == 0:
                A(f"s_cbranch_scc0 W2D_SK{n}_{i}")
                for ii in range(i + 1 - RG, i + 1):
                    A(f"buffer_load_dwordx4 {vr(q+4*ii,4)}, v{vQO+ii}, s[8:11], {sQOFS} offen")
                A.label(f"W2D_SK{n}_{i}")
        A("""
        s_waitcnt lgkmcnt(0)
        s_barrier
        """)
    A(f"""
    s_add_u32 {sC}, {sC}, {UN}
    s_cmp_lt_u32 {sC}, 12
    s_cbranch_scc1 W2D_LOOP
    s_setprio 0
    {"s_barrier" if opt.get("bst") else ""}
    s_branch P2_MM
    """)
    A.label("W2D_IDLE")
    A(f"""
    s_mov_b32 {sC}, 0
    s_waitcnt lgkmcnt(0)
    """)
    A.label("W2D_IDL")
    A(f"""
    s_barrier
    s_add_u32 {sC}, {sC}, 1
    s_cmp_lt_u32 {sC}, {14 if opt.get("bst") else 13}
    s_cbranch_scc1 W2D_IDL
    s_branch P2_MM
    """)
    A.label("W2_MFMA")
    sCST = "s45"
    vAR = 10
    vBR = 14
    vT0, vT1 = 16, 17
    vST = 18
    vACC = 20
    vF = 44
    P = vF
    A(f"""
    s_lshl_b32 s4, {sW}, 13
    s_mov_b32 m0, s4
    s_mul_i32 s4, {sW}, {32*3072}
    s_add_u32 {sVOFS}, {sVOFS}, s4
    s_and_b32 s4, s60, 15
    s_mul_i32 s4, s4, 393216
    s_add_u32 {sVOFS}, {sVOFS}, s4
    s_lshr_b32 s6, s42, 1
    s_mul_i32 s6, s6, 3072
    s_mov_b32 s18, {SC_BYTES}
    s_mov_b32 s19, 0x00020000
    s_mov_b32 s22, {SC_BYTES}
    s_mov_b32 s23, 0x00020000
    v_and_b32 v2, 0xff, v0
    v_lshlrev_b32 v19, 3, v2
    s_waitcnt lgkmcnt(0)
    """)
    stamp(A, opt, 1)
    for j in range(2):
        A(f"""
        buffer_load_dwordx2 {vr(P+4*j,2)}, v19, s[16:19], s6 offen offset:{2048*j}
        buffer_load_dwordx2 {vr(P+4*j+2,2)}, v19, s[20:23], s6 offen offset:{2048*j}
        """)
    A(f"""
    s_add_u32 s6, s6, 4096
    buffer_load_dwordx2 {vr(P+8,2)}, v19, s[16:19], s6 offen
    buffer_load_dwordx2 {vr(P+10,2)}, v19, s[20:23], s6 offen
    """)
    v_group()
    A(f"""
    s_add_u32 m0, m0, 4096
    s_add_u32 {sVOFS}, {sVOFS}, {16*3072}
    """)
    v_group()
    TP = opt.get("tp", 0)
    T = 2 if TP == 1 else 0
    TC = opt.get("tc", 3)

    def touches():
        A(f"""
        v_lshrrev_b32 v2, 1, v1
        v_and_b32 v3, 1, v1
        v_mul_u32_u24 v2, 0xc00, v2
        v_lshl_add_u32 v2, v3, 7, v2
        v_min_u32 v3, {47 - 4*TC}, v1
        v_lshlrev_b32 v3, 7, v3
        v_add_u32 v3, {512*TC}, v3
        s_lshl_b32 s4, {sMI}, 2
        s_add_u32 s4, s4, {sW}
        s_add_u32 s4, s4, {4*TC}
        s_mul_i32 s4, s4, {32*3072}
        s_lshl_b32 s5, {sNI}, 8
        s_add_u32 s4, s4, s5
        s_lshl_b32 s5, {sNI}, 2
        s_add_u32 s5, s5, {sW}
        s_mul_i32 s6, {sMI}, 48
        s_add_u32 s5, s5, s6
        s_mul_i32 s5, s5, 6144
        s_mov_b32 s10, {QW_BYTES}
        buffer_load_dword v208, v2, s[12:15], s4 offen
        buffer_load_dword v209, v3, s[8:11], s5 offen
        """)
    if TP == 1: touches()
    A(f"""
    v_lshlrev_b32 v19, 1, v19
    v_add_u32 v19, {TBL}, v19
    v_and_b32 v2, 15, v1
    v_lshrrev_b32 v3, 4, v1
    v_xor_b32 v4, v2, v3
    v_lshlrev_b32 v4, 4, v4
    v_lshl_add_u32 v4, v2, 8, v4
    v_add_u32 v{vAR}, {ABASE}, v4
    v_xor_b32 v{vAR+1}, 64, v{vAR}
    v_xor_b32 v{vAR+2}, 128, v{vAR}
    v_xor_b32 v{vAR+3}, 192, v{vAR}
    v_bfe_u32 v2, v1, 2, 2
    v_and_b32 v4, 1, v3
    v_lshl_or_b32 v4, v4, 2, v2
    s_lshl_b32 s5, {sW}, 1
    v_xor_b32 v4, s5, v4
    v_lshlrev_b32 v4, 5, v4
    v_lshl_add_u32 v2, v3, 3, v2
    v_lshl_add_u32 v4, v2, 8, v4
    v_and_b32 v2, 3, v1
    v_lshl_add_u32 v{vBR}, v2, 3, v4
    v_xor_b32 v{vBR+1}, 32, v{vBR}
    s_mov_b32 {sCST}, 0
    s_mov_b32 {sC}, 0
    s_lshl_b32 s4, {sNI}, 2
    s_add_u32 s4, s4, {sW}
    s_mul_i32 s5, s4, 40
    s_add_u32 s5, s5, s42
    s_lshl_b32 s5, s5, 10
    s_add_u32 s50, s5, {W2F}
    s_mul_i32 s5, s4, 171
    s_lshr_b32 s5, s5, 9
    s_mul_i32 s6, s5, 3
    s_sub_u32 s6, s4, s6
    s_mul_i32 s6, s6, 14
    s_add_u32 s6, s6, {sMI}
    s_lshl_b32 s6, s6, 2
    s_lshl_b32 s5, s5, 8
    s_add_u32 s5, s5, s6
    s_add_u32 s51, s5, {FLG}
    s_mov_b32 s53, 12
    s_mov_b64 s[58:59], {hex((1 << (16 >> MAP["fsh"])) - 1)}
    s_mov_b32 s54, {hex((127+149-QE) << 23)}
    s_mov_b32 s55, {hex((127+149-QE) << 23)}
    s_mov_b32 s46, 0xffff0000
    s_mov_b32 s47, {hex((127+QE) << 23)}
    s_mov_b32 s48, {hex(0x80000000 | ((127+QE-149) << 23))}
    v_bfe_u32 v3, v1, 4, 1
    v_lshrrev_b32 v4, 5, v1
    v_and_b32 v{vST}, 15, v1
    v_lshl_add_u32 v{vST}, v3, 5, v{vST}
    v_lshl_add_u32 v{vST}, v4, 4, v{vST}
    v_lshlrev_b32 v{vST}, 4, v{vST}
    """)
    if opt.get("m16"):
        A(f"""
        v_lshlrev_b32 v3, 6, v3
        v_xor_b32 v{vST}, v3, v{vST}
        """)
    for i in range(0, 24, 2):
        A(f"v_mov_b64 {vr(vACC+i,2)}, 0")
    for i in range(0, 80, 2):
        A(f"v_mov_b64 {vr(vF+80+i,2)}, 0")
    for j in range(3):
        q = P + 4 * j
        u = P + 16 + 8 * j
        A(f"""
        s_waitcnt vmcnt({8 + 4 - 2*j + T})
        v_lshlrev_b32 v{u}, 16, v{q}
        v_and_b32 v{u+1}, s46, v{q}
        v_lshlrev_b32 v{u+2}, 16, v{q+1}
        v_and_b32 v{u+3}, s46, v{q+1}
        v_lshlrev_b32 v{u+4}, 16, v{q+2}
        v_and_b32 v{u+5}, s46, v{q+2}
        v_lshlrev_b32 v{u+6}, 16, v{q+3}
        v_and_b32 v{u+7}, s46, v{q+3}
        """)
        for i in range(4): A(f"v_mul_f32 v{u+4+i}, s48, v{u+4+i}")
        for i in range(4): A(f"v_mul_f32 v{u+4+i}, v{u+i}, v{u+4+i}")
        for i in range(4): A(f"v_mul_f32 v{u+i}, s47, v{u+i}")
        A(f"""
        ds_write_b128 v19, {vr(u,4)} offset:{4096*j}
        ds_write_b128 v19, {vr(u+4,4)} offset:{4096*j+12288}
        """)
    if TP == 3: touches()
    A("""
    s_waitcnt lgkmcnt(0)
    s_barrier
    """)
    if TP == 2: touches()
    A(f"s_waitcnt vmcnt({2 if TP else 0})")
    HS, HL = opt.get("hs", 0), opt.get("hl", 0)
    WF = opt.get("wf", -1)

    def wfill():
        for i in range(4): A(f"v_mov_b32 v{204+i}, -1")
        A(f"""
        buffer_store_dwordx4 v[204:207], v{vST}, s[24:27], s50 offen sc1
        s_cmp_eq_u32 {sMI}, 13
        s_cbranch_scc1 W2M_FL
        buffer_store_dwordx4 v[204:207], v{vST}, s[24:27], s50 offen offset:1024 sc1
        buffer_store_dwordx4 v[204:207], v{vST}, s[24:27], s50 offen offset:2048 sc1
        """)
        A.label("W2M_FL")
    if HS and WF < 0: wfill()
    if HS and WF == 100:
        for i in range(4): A(f"v_mov_b32 v{204+i}, -1")
        A(f"""
        s_add_u32 s4, s56, {sW}
        s_mul_i32 s5, s4, 171
        s_lshr_b32 s5, s5, 9
        s_mul_i32 s5, s5, 3
        s_sub_u32 s47, s4, s5
        s_add_u32 s47, s47, {opt.get("wf0", 2)}
        s_mov_b32 s46, s50
        s_cmp_eq_u32 {sMI}, 13
        s_cselect_b32 s48, 1, 3
        s_lshl_b32 s48, s48, 10
        s_add_u32 s48, s48, s50
        """)

    def reads(s, buf):
        fa = vF + buf * 80 + 20 * s
        fb = fa + 12
        r = []
        for b in range(3):
            r.append(f"ds_read_b128 {vr(fa+4*b,4)}, v{vAR+s} offset:{4096*b + ASTAGE*buf}")
        for t in range(2):
            for u in range(2):
                r.append(f"ds_read_b64_tr_b16 {vr(fb+4*t+2*u,2)}, v{vT0+t} offset:{(32*s+4*u)*256}")
        return r

    def mfmas(s, buf):
        fa = vF + buf * 80 + 20 * s
        fb = fa + 12
        r = []
        for b in range(3):
            for t in range(2):
                acc = vACC + (b * 2 + t) * 4
                r.append(f"v_mfma_f32_16x16x32_bf16 {vr(acc,4)}, {vr(fa+4*b,4)}, {vr(fb+4*t,4)}, {vr(acc,4)}")
        return r

    A.label("W2M_LOOP")
    for buf in range(2):
        A(f"""
        v_add_u32 v{vT0}, {sCST}, v{vBR}
        v_add_u32 v{vT1}, {sCST}, v{vBR+1}
        s_add_u32 {sCST}, {sCST}, {VSTAGE}
        s_cmp_ge_u32 {sCST}, {RING}
        s_cselect_b32 {sCST}, 0, {sCST}
        s_barrier
        """)
        if HS and WF == 100:
            A(f"""
            s_sub_u32 s47, s47, 1
            s_cmp_lg_u32 s47, 0
            s_cbranch_scc1 W2M_SF{buf}
            buffer_store_dwordx4 v[204:207], v{vST}, s[24:27], s46 offen sc1
            s_add_u32 s46, s46, 1024
            s_cmp_eq_u32 s46, s48
            s_cselect_b32 s47, 64, 3
            """)
            A.label(f"W2M_SF{buf}")
        elif HS and 0 <= WF < 100 and buf == 0:
            A(f"""
            s_cmp_lg_u32 {sC}, {WF}
            s_cbranch_scc1 W2M_FL
            """)
            wfill()
        if HS and HL >= 2 and (HL & 1) == (buf ^ 1):
            A(f"""
            s_cmp_lg_u32 {sC}, {10 - 2 * ((HL - 2) // 2)}
            s_cbranch_scc1 W2M_NH
            s_waitcnt vmcnt(0)
            """)
            publish(A, opt, "s51", "s53")
            A.label("W2M_NH")
        rd = sum((reads(s, buf) for s in range(4)), [])
        mf = sum((mfmas(s, buf ^ 1) for s in range(4)), [])
        seq = rd[:4]
        ri = 4
        for m in mf:
            seq.append(m)
            seq += rd[ri:ri + 1]
            ri += 1
        seq += rd[ri:]
        for x in seq: A(x)
        A("s_waitcnt lgkmcnt(0)")
        if (opt.get("stamp") or opt.get("probe") == 2) and buf == 0:
            A(f"""
            s_cmp_lg_u32 {sC}, 0
            s_cbranch_scc1 W2M_ST
            """)
            stamp(A, opt, 2, True)
            A.label("W2M_ST")
    A(f"""
    s_add_u32 {sC}, {sC}, 2
    s_cmp_lt_u32 {sC}, 12
    s_cbranch_scc1 W2M_LOOP
    s_setprio 3
    """)
    if opt.get("bst") == 3: A("s_barrier")
    if HS and HL < 2: A("s_waitcnt vmcnt(0)")
    if HS and HL == 1: publish(A, opt, "s51", "s53")
    for s_ in range(4):
        for m in mfmas(s_, 1): A(m)
    A("s_nop 7")
    stamp(A, opt, 3)
    for b in range(3):
        a = vACC + 8 * b
        o = vF + 4 * b
        for j in range(4):
            A(f"v_pk_mul_f32 {vr(a+2*j,2)}, {vr(a+2*j,2)}, s[54:55]")
        A(f"""
        v_cvt_pk_bf16_f32 v{o}, v{a}, v{a+1}
        v_cvt_pk_bf16_f32 v{o+1}, v{a+2}, v{a+3}
        v_cvt_pk_bf16_f32 v{o+2}, v{a+4}, v{a+5}
        v_cvt_pk_bf16_f32 v{o+3}, v{a+6}, v{a+7}
        """)
        if HS:
            for j in range(4): A(f"v_min_u32 v{o+j}, -2, v{o+j}")
        A(f"""
        s_nop 1
        v_permlane32_swap_b32 v{o}, v{o+2}
        v_permlane32_swap_b32 v{o+1}, v{o+3}
        buffer_store_dwordx4 {vr(o,4)}, v{vST}, s[24:27], s50 offen offset:{1024*b} sc1
        """)
        if b == 0:
            A(f"""
            s_cmp_eq_u32 {sMI}, 13
            s_cbranch_scc1 W2M_END
            """)
    A.label("W2M_END")
    if opt.get("bst") == 1: A("s_barrier")
    if opt.get("bst") == 2:
        publish(A, opt, "s51", "s53")
        A("s_barrier\ns_branch P2_LD")
    A("s_branch P2_LD" if HS and HL else "s_branch P2_PUB")


def wt_setup(A, opt, tag):
    TC = opt.get("wtc", 2)
    A(f"""
    s_sub_u32 s4, s2, 168
    s_cmp_ge_u32 s4, 48
    s_cbranch_scc1 WT_Q{tag}
    v_lshlrev_b32 v7, 7, v1
    s_lshl_b32 s46, s4, 13
    s_add_u32 s46, s46, {TC*393216}
    s_mov_b32 s47, 393216
    s_mov_b32 s8, s12
    s_mov_b32 s9, s13
    s_mov_b32 s10, {V_BYTES}
    s_branch WT_G{tag}
    """)
    A.label(f"WT_Q{tag}")
    A(f"""
    v_lshrrev_b32 v7, 2, v1
    v_mul_u32_u24 v7, 0x1800, v7
    v_and_b32 v3, 3, v1
    v_lshl_add_u32 v7, v3, 7, v7
    s_sub_u32 s4, s4, 48
    s_mul_i32 s46, s4, {16*6144}
    s_add_u32 s46, s46, {TC*512}
    s_movk_i32 s47, 512
    s_mov_b32 s10, {QW_BYTES}
    """)
    A.label(f"WT_G{tag}")


def wt(A, i):
    A(f"""
    buffer_load_dword v{16+i}, v7, s[8:11], s46 offen
    s_add_u32 s46, s46, s47
    """)


def gen_xr(A, opt):
    sW, sLOC, sXCD = "s36", "s3", "s37"
    sMT, sNT = "s40", "s41"
    sC = "s48"
    A(f"""
    s_sub_u32 s4, {sLOC}, 21
    s_cmp_ge_u32 s4, 5
    s_cselect_b32 s5, 1, 0
    s_cselect_b32 s6, 5, 0
    s_sub_u32 {sNT}, s4, s6
    s_lshl_b32 s7, {sXCD}, 1
    s_add_u32 {sMT}, s7, s5
    s_cmp_ge_u32 {sLOC}, 31
    s_cbranch_scc1 IDLE_WG
    s_cmp_lt_u32 {sW}, 4
    s_cbranch_scc1 XR_MFMA
    s_cmp_lt_u32 {sW}, 6
    s_cbranch_scc1 XR_LD
    """)
    A(f"""
    v_mov_b32 v2, 0
    v_lshlrev_b32 v6, 7, v1
    s_mul_i32 s4, {sMT}, 5
    s_add_u32 s4, s4, {sNT}
    s_lshl_b32 s5, s4, 15
    s_lshl_b32 s6, s4, 14
    s_mov_b32 s30, {X_BYTES}
    s_mov_b32 s31, 0x00020000
    s_mov_b32 s34, {U_BYTES}
    s_mov_b32 s35, 0x00020000
    s_waitcnt lgkmcnt(0)
    """)
    if opt.get("tx", 1):
        A(f"""
        s_cmp_lg_u32 {sW}, 6
        s_cbranch_scc1 XR_TU
        """)
        for i in range(4):
            A(f"buffer_load_dword v{8+i}, v6, s[28:31], s5 offen")
            if i < 3: A("s_add_u32 s5, s5, 8192")
        A("s_branch XR_TX")
        A.label("XR_TU")
        for i in range(2):
            A(f"buffer_load_dword v{8+i}, v6, s[32:35], s6 offen")
            if i < 1: A("s_add_u32 s6, s6, 8192")
        A.label("XR_TX")
    WT = opt.get("wt", 2)
    NT_ = 12 - opt.get("wtc", 2)
    if WT:
        A(f"""
        s_cmp_lg_u32 {sW}, 7
        s_cbranch_scc1 XR_W6
        """)
        wt_setup(A, opt, "x")
        k = 0
        for b in range(10):
            for _ in range(WT if b == 0 else opt.get("wtn", 2)):
                if k < NT_:
                    wt(A, k); k += 1
            A("s_barrier")
        A("s_branch P2_MMX")
        A.label("XR_W6")
    for i in range(5): A("s_barrier")
    A(f"""
    s_cmp_lg_u32 {sW}, 6
    s_cbranch_scc1 XR_G_X
    """)
    poll(A, "XR_G", DBG, "0", "v2", "v3", 0)
    for i in range(5): A("s_barrier")
    A("s_branch P2_MMX")
    A.label("IDLE_WG")
    A(f"""
    v_mov_b32 v2, 0
    v_mov_b32 v3, 1
    s_cmp_lg_u32 {sXCD}, 0
    s_waitcnt lgkmcnt(0)
    s_cbranch_scc1 IDLE_G0
    v_mov_b32 v6, 0
    v_mov_b32 v7, 0
    v_mov_b32 v8, 0
    v_mov_b32 v9, 0
    s_lshl_b32 s4, {sW}, 13
    s_add_u32 s4, s4, {FLG}
    s_add_u32 s5, s4, 4096
    """)
    for i in range(8):
        A(f"buffer_store_dwordx4 v[6:9], v5, s[24:27], s{4+i//4} offen offset:{1024*(i&3)} sc1")
    A(f"""
    s_lshl_b32 s4, {sW}, 12
    s_add_u32 s4, s4, {XFLG}
    """)
    for i in range(4):
        A(f"buffer_store_dwordx4 v[6:9], v5, s[24:27], s4 offen offset:{1024*i} sc1")
    A("s_waitcnt vmcnt(0)")
    A.label("IDLE_G0")
    A("s_barrier")
    if opt.get("it"):
        TC = opt.get("wtc", 2)
        A(f"""
        s_lshl_b32 s4, {sXCD}, 3
        s_add_u32 s4, s4, {sW}
        v_lshlrev_b32 v7, 7, v1
        s_lshl_b32 s46, s4, 13
        s_add_u32 s46, s46, {TC*393216}
        s_mov_b32 s14, {V_BYTES}
        v_lshrrev_b32 v8, 3, v1
        v_mul_u32_u24 v8, 0x1800, v8
        v_and_b32 v9, 7, v1
        v_lshl_add_u32 v8, v9, 7, v8
        s_mul_i32 s47, s4, {10*6144}
        s_add_u32 s47, s47, {TC*512}
        s_mov_b32 s10, {QW_BYTES}
        v_cmp_gt_u32 vcc, 16, v1
        v_add_u32 v9, {8*6144}, v8
        v_cndmask_b32 v9, v8, v9, vcc
        """)
        nv = ((12 - TC) * 48 + 63) // 64
        k = 0
        for p in range((12 - TC) // 2):
            A(f"""
            buffer_load_dword v{16+k}, v8, s[8:11], s47 offen
            buffer_load_dword v{17+k}, v9, s[8:11], s47 offen
            s_add_u32 s47, s47, 1024
            """)
            k += 2
            for _ in range(2 if p % 2 == 0 else 1):
                if nv:
                    A(f"""
                    buffer_load_dword v{16+k}, v7, s[12:15], s46 offen
                    s_add_u32 s46, s46, {64*8192}
                    """)
                    k += 1; nv -= 1
        assert nv == 0, nv
    if WT:
        A(f"""
        s_cmp_lg_u32 {sW}, 7
        s_cbranch_scc1 IDLE_NT
        """)
        wt_setup(A, opt, "i")
        for k in range(NT_):
            wt(A, k)
            if k >= WT - 1 and k < NT_ - 1: A("s_sleep 12")
        A.label("IDLE_NT")
    IF = opt.get("hs") and opt.get("wf") == 200
    if IF:
        A(f"""
        s_sub_u32 s4, {sW}, 1
        s_cmp_gt_u32 s4, 5
        s_cbranch_scc1 IDLE_NF
        s_mul_i32 s5, {sXCD}, 6
        s_add_u32 s4, s4, s5
        s_mul_i32 s4, s4, 40960
        s_add_u32 s4, s4, {W2F}
        s_mov_b32 s5, 10
        v_mov_b32 v6, -1
        v_mov_b32 v7, -1
        v_mov_b32 v8, -1
        v_mov_b32 v9, -1
        """)
        A.label("IDLE_F")
        for i in range(4):
            A(f"buffer_store_dwordx4 v[6:9], v5, s[24:27], s4 offen offset:{1024*i} sc1")
        A(f"""
        s_add_u32 s4, s4, 4096
        s_sub_u32 s5, s5, 1
        s_cmp_lg_u32 s5, 0
        s_cbranch_scc1 IDLE_F
        s_waitcnt vmcnt(0)
        """)
        A.label("IDLE_NF")
    A(f"""
    s_cmp_lg_u32 {sW}, 0
    s_cbranch_scc1 IDLE_G_X
    s_cmp_lg_u32 {sXCD}, 0
    s_cbranch_scc1 IDLE_G1
    s_mov_b64 exec, 1
    buffer_store_dword v3, v2, {DBG}, 0 offen sc1
    s_mov_b64 exec, -1
    """)
    A.label("IDLE_G1")
    poll(A, "IDLE_G", DBG, "0", "v2", "v3", 0, sleep=8)
    A("s_barrier")
    if IF:
        A(f"""
        s_cmp_lg_u32 {sW}, 1
        s_cbranch_scc1 IDLE_NS
        s_lshl_b32 s4, {sXCD}, 2
        s_mov_b64 exec, 1
        buffer_store_dword v3, v2, {DBG}, s4 offen offset:4 sc1
        s_mov_b64 exec, -1
        """)
        A.label("IDLE_NS")
    A(f"""
    s_cmp_lt_u32 {sW}, 4
    s_cbranch_scc1 P2_LD
    s_branch P2_MMI
    """)
    A.label("XR_LD")
    sOFS, sGRP, sCH = "s43", "s45", "s46"
    vO = 6
    A(f"""
    v_lshrrev_b32 v3, 4, v1
    s_cmp_eq_u32 {sW}, 4
    s_cbranch_scc0 XRL_U
    v_lshrrev_b32 v2, 3, v1
    v_and_b32 v4, 7, v1
    v_xor_b32 v4, v4, v3
    v_lshlrev_b32 v4, 4, v4
    v_mul_u32_u24 v{vO}, 0x500, v2
    v_add_u32 v{vO}, v{vO}, v4
    v_xor_b32 v4, 64, v{vO}
    v_add_u32 v{vO+1}, 9216, v4
    v_add_u32 v{vO+2}, {2*9216}, v{vO}
    v_add_u32 v{vO+3}, {3*9216}, v4
    s_mul_i32 {sOFS}, {sMT}, {128*1280}
    s_mov_b32 {sGRP}, {32*1280}
    s_mov_b32 {sCH}, {128 - 128*1280 + (1<<32)}
    s_mov_b32 m0, 0
    s_mov_b32 s30, {X_BYTES}
    s_waitcnt lgkmcnt(0)
    s_branch XRL_GO
    """)
    A.label("XRL_U")
    A(f"""
    v_and_b32 v4, 15, v1
    v_lshlrev_b32 v2, 2, v3
    v_xor_b32 v4, v4, v2
    v_lshlrev_b32 v4, 4, v4
    v_mul_u32_u24 v{vO}, 0x500, v3
    v_add_u32 v{vO}, v{vO}, v4
    v_add_u32 v{vO+1}, {4*1280-1024}, v{vO}
    v_add_u32 v{vO+2}, {2*(4*1280-1024)}, v{vO}
    v_add_u32 v{vO+3}, {3*(4*1280-1024)}, v{vO}
    s_lshl_b32 {sOFS}, {sNT}, 8
    s_mov_b32 {sGRP}, {16*1280}
    s_mov_b32 {sCH}, 0
    s_movk_i32 m0, 16384
    s_mov_b32 s30, {U_BYTES}
    s_waitcnt lgkmcnt(0)
    s_mov_b32 s28, s32
    s_mov_b32 s29, s33
    """)
    A.label("XRL_GO")
    A(f"""
    s_mov_b32 s31, 0x00020000
    s_mov_b32 {sC}, 0
    """)
    A.label("XRL_LOOP")
    for g in range(4):
        for j in range(4):
            A(f"buffer_load_dwordx4 v{vO+j}, s[28:31], {sOFS} offen offset:{1024*j} lds")
        A(f"""
        s_add_u32 m0, m0, 4096
        s_add_u32 {sOFS}, {sOFS}, {sGRP}
        """)
    A(f"""
    s_add_u32 {sOFS}, {sOFS}, {sCH}
    s_add_u32 m0, m0, 16384
    s_and_b32 m0, m0, {4*XSTAGE-1}
    s_add_u32 {sC}, {sC}, 1
    s_and_b32 s4, {sC}, 13
    s_cmp_eq_u32 s4, 1
    s_cbranch_scc1 XRL_LOOP
    s_cmp_eq_u32 {sC}, 2
    s_cbranch_scc0 XRL_W
    s_waitcnt vmcnt(16)
    """)
    A.label("XRL_W")
    A(f"""
    s_waitcnt vmcnt(32)
    s_barrier
    s_cmp_lt_u32 {sC}, 10
    s_cbranch_scc1 XRL_LOOP
    s_waitcnt vmcnt(16)
    s_barrier
    s_waitcnt vmcnt(0)
    s_barrier
    s_branch P2_MMX
    """)
    A.label("XR_MFMA")
    sCST = "s43"
    vXR = 6
    vUR = 10
    vT = 12
    vACC = 20
    vF = 84
    A(f"""
    s_lshr_b32 s4, {sW}, 1
    s_and_b32 s5, {sW}, 1
    s_lshl_b32 s6, s4, 13
    v_and_b32 v3, 31, v1
    v_bfe_u32 v4, v1, 1, 3
    v_lshrrev_b32 v{vT}, 5, v1
    v_xor_b32 v4, v4, v{vT}
    v_lshlrev_b32 v4, 4, v4
    v_lshl_add_u32 v4, v3, 7, v4
    v_add_u32 v{vXR}, s6, v4
    v_xor_b32 v{vXR+1}, 32, v{vXR}
    v_xor_b32 v{vXR+2}, 64, v{vXR}
    v_xor_b32 v{vXR+3}, 96, v{vXR}
    v_bfe_u32 v2, v1, 4, 1
    v_bfe_u32 v3, v1, 2, 2
    s_lshl_b32 s6, s5, 1
    v_xor_b32 v4, s6, v3
    v_lshlrev_b32 v4, 6, v4
    v_lshl_add_u32 v4, v3, 8, v4
    v_lshl_add_u32 v4, v{vT}, 11, v4
    v_lshl_add_u32 v4, v2, 5, v4
    v_and_b32 v3, 3, v1
    v_lshl_add_u32 v4, v3, 3, v4
    v_add_u32 v{vUR}, 16384, v4
    v_xor_b32 v{vUR+1}, 64, v{vUR}
    s_mov_b32 {sCST}, 0
    s_mov_b32 {sC}, 0
    s_lshl_b32 s6, {sMT}, 1
    s_add_u32 s6, s6, s4
    s_lshl_b32 s7, {sNT}, 1
    s_add_u32 s7, s7, s5
    s_mul_i32 s51, s4, 10
    s_add_u32 s51, s51, s7
    s_lshl_b32 s51, s51, 2
    s_lshl_b32 s52, {sMT}, 11
    s_add_u32 s51, s51, s52
    s_add_u32 s51, s51, {XFLG}
    s_mov_b32 s53, 7
    s_mov_b64 s[58:59], 0xffff
    s_mul_i32 s6, s6, 80
    s_lshl_b32 s7, s7, 2
    s_add_u32 s6, s6, s7
    s_lshl_b32 s50, s6, 10
    s_add_u32 s52, s50, 40960
    """)
    for i in range(0, 64, 2):
        A(f"v_mov_b64 {vr(vACC+i,2)}, 0")
    for i in range(0, 64, 2):
        A(f"v_mov_b64 {vr(vF+64+i,2)}, 0")
    A("s_waitcnt lgkmcnt(0)")
    HS, HX = opt.get("hs", 0) == 1, opt.get("hx", 0)

    def fill():
        for i in range(4): A(f"v_mov_b32 v{212+i}, -1")
        for tm in range(2):
            for i in range(4):
                A(f"buffer_store_dwordx4 v[212:215], v5, s[24:27], s{50+2*tm} offen offset:{1024*i} sc1")
    XF = opt.get("xf", 2)
    if HS and XF < 0: fill()

    def reads(s, buf):
        f = vF + 64 * buf + 16 * s
        r = []
        for tn in range(2):
            r.append(f"ds_read_b128 {vr(f+8+4*tn,4)}, v{vT+s} offset:{4096*tn}")
            for u in range(2):
                r.append(f"ds_read_b64_tr_b16 {vr(f+4*tn+2*u,2)}, v{vT+4+tn} offset:{s*4096+u*1024}")
        return r

    def mfmas(s, buf):
        f = vF + 64 * buf + 16 * s
        r = []
        for tm in range(2):
            for tn in range(2):
                acc = vACC + 32 * tm + 16 * tn
                r.append(f"v_mfma_f32_32x32x16_bf16 {vr(acc,16)}, {vr(f+4*tn,4)}, {vr(f+8+4*tm,4)}, {vr(acc,16)}")
        return r

    A.label("XR_LOOP")
    for buf in range(2):
        for i in range(4):
            A(f"v_add_u32 v{vT+i}, {sCST}, v{vXR+i}")
        for i in range(2):
            A(f"v_add_u32 v{vT+4+i}, {sCST}, v{vUR+i}")
        A(f"""
        s_add_u32 {sCST}, {sCST}, {XSTAGE}
        s_and_b32 {sCST}, {sCST}, {4*XSTAGE-1}
        s_barrier
        """)
        if HS and XF >= 0 and buf == 0:
            A(f"""
            s_cmp_lg_u32 {sC}, {XF}
            s_cbranch_scc1 XR_NF
            """)
            fill()
            A.label("XR_NF")
        if HS and HX >= 2 and (HX & 1) == (buf ^ 1):
            A(f"""
            s_cmp_lg_u32 {sC}, {8 - 2 * ((HX - 2) // 2)}
            s_cbranch_scc1 XR_NH
            s_waitcnt vmcnt(0)
            """)
            publish(A, opt, "s51", "s53")
            A.label("XR_NH")
        rd = sum((reads(s_, buf) for s_ in range(4)), [])
        mf = sum((mfmas(s_, buf ^ 1) for s_ in range(4)), [])
        ri = 0
        for m in mf:
            A(m)
            for x in rd[ri:ri + 2]: A(x)
            ri += 2
        for x in rd[ri:]: A(x)
        A("s_waitcnt lgkmcnt(0)")
    A(f"""
    s_add_u32 {sC}, {sC}, 2
    s_cmp_lt_u32 {sC}, 10
    s_cbranch_scc1 XR_LOOP
    """)
    if opt.get("lgo"): A("s_barrier")
    if HS and HX < 2: A("s_waitcnt vmcnt(0)")
    if HS and HX == 1: publish(A, opt, "s51", "s53")
    for s_ in range(4):
        for m in mfmas(s_, 1): A(m)
    A("s_nop 15")
    stamp(A, opt, 3)
    for tm in range(2):
        for i in range(4):
            a = vACC + 32 * tm + 8 * i
            o = vF + 16 * tm + 4 * i
            for j in range(4):
                A(f"v_cvt_pk_bf16_f32 v{o+j}, v{a+2*j}, v{a+2*j+1}")
            if HS:
                for j in range(4): A(f"v_min_u32 v{o+j}, -2, v{o+j}")
            A(f"buffer_store_dwordx4 {vr(o,4)}, v5, s[24:27], s{50+2*tm} offen offset:{1024*i} sc1")
    if HS and HX: A("s_branch P2_LD")
    if opt.get("hs") == 2: A("s_waitcnt vmcnt(0)")


VX = 96


def xload(A, opt, kb):
    sc = "" if opt.get("xplain") else " sc1"
    off = 256 * (kb & 1) + 1024 * (kb & 2) if opt.get("m16") else 1024 * (kb & 3)
    A(f"buffer_load_dwordx4 {vr(VX+4*kb,4)}, v5, s[24:27], s20 offen offset:{off}{sc}")
    if kb & 3 == 3 and kb < 39:
        A("s_add_u32 s20, s20, 4096")
        if opt.get("pra") or opt.get("prb"):
            A("""
            s_cmp_eq_u32 s20, s19
            s_cselect_b32 s20, s18, s20
            """)


def p2_rot(A, opt):
    lm = MAP["m"]
    A(f"""
    s_and_b32 s17, s3, {(1 << lm) - 1}
    s_mul_i32 s17, s17, {opt.get("pra", 0)}
    s_lshr_b32 s16, s3, {lm}
    s_mul_i32 s16, s16, {opt.get("prb", 0)}
    s_add_u32 s17, s17, s16
    s_mul_i32 s16, s17, 205
    s_lshr_b32 s16, s16, 11
    s_mul_i32 s16, s16, 10
    s_sub_u32 s17, s17, s16
    s_lshl_b32 s17, s17, 12
    """)


def gen_p2(A, opt):
    NA = opt.get("na", 2)
    order = [(n, kb) for kb in range(40) for n in range(NA)] + [(n, kb) for n in range(NA, 3) for kb in range(40)]
    groups = []
    for n, kb in order:
        if (n, kb // 4) not in groups: groups.append((n, kb // 4))
    CH = {1: [2, 2, 4, 4, 4, 4, 10], 2: [2, 2, 2, 2, 4, 4, 4, 5, 5], 3: [2, 4, 6, 8, 10], 4: [3, 3, 6, 6, 6, 6],
          5: [1, 1, 2, 2, 4, 10, 10], 6: [2, 4, 8, 16], 7: [2, 2, 6, 20], 8: [4, 10, 16], 9: [2, 4, 6, 8, 10],
          10: [2, 6, 12, 10]}[opt.get("ch", 1)]
    assert sum(CH) == 30
    st = [sum(CH[:i]) for i in range(len(CH) + 1)]
    wsc = "" if opt.get("wplain") else " sc1"
    F2 = opt.get("fl", 1) == 2
    FS = opt.get("fs", 4)
    A.label("P2_PUB")
    if not F2: publish(A, opt, "s51", "s53")
    A.label("P2_LD")
    p2_tile(A)
    p2_rot(A, opt)
    if F2:
        A(f"""
        s_cmp_lg_u32 s36, 0
        s_cbranch_scc1 P2_NM
        s_mul_i32 s4, s39, 3
        s_add_u32 s5, s4, 2
        s_lshr_b32 s4, s4, 2
        s_lshr_b32 s5, s5, 2
        """)
        for j in range(4):
            if opt.get("fall"):
                A(f"v_mov_b32 v{12+j}, 0")
                continue
            A(f"v_lshl_add_u32 v2, v1, 2, {j}" if FS == 4 else f"v_add_u32 v2, {64*j}, v1")
            A(f"""
            v_and_b32 v3, 7, v2
            v_lshrrev_b32 v2, 3, v2
            v_mul_u32_u24 v4, 171, v2
            v_lshrrev_b32 v4, 9, v4
            v_mul_u32_u24 v4, 3, v4
            v_sub_u32 v4, v2, v4
            v_and_b32 v6, 3, v3
            v_mad_u32_u24 v4, v6, 3, v4
            v_cmp_eq_u32 s[6:7], s4, v4
            v_cmp_eq_u32 vcc, s5, v4
            s_or_b64 s[6:7], s[6:7], vcc
            v_cmp_gt_u32 vcc, 21, v2
            s_and_b64 s[6:7], s[6:7], vcc
            v_cmp_lt_u32 vcc, 25, v2
            v_lshlrev_b32 v3, 1, v3
            s_nop 0
            v_addc_co_u32 v3, vcc, 0, v3, vcc
            v_cmp_eq_u32 s[8:9], s38, v3
            v_subrev_u32 v2, 21, v2
            v_cmp_gt_u32 vcc, 10, v2
            s_and_b64 vcc, vcc, s[8:9]
            s_or_b64 vcc, vcc, s[6:7]
            v_cndmask_b32 v{12+j}, 1, 0, vcc
            """)
        A.label("P2_NM")
        A(f"""
        v_mov_b32 v2, 1
        v_mul_u32_u24 v3, {256*FS}, v1
        s_mul_i32 s4, s2, {FS}
        s_add_u32 s4, s4, {FLG}
        s_mul_i32 s45, s37, {256*FS}
        s_add_u32 s45, s45, {FLG}
        s_waitcnt vmcnt(0)
        s_barrier
        s_cmp_lg_u32 s36, 0
        s_cbranch_scc1 P2_NF
        s_mov_b64 exec, 0xff
        buffer_store_dword v2, v3, s[24:27], s4 offen sc1
        s_mov_b64 exec, -1
        """)
        A.label("P2_NF")
        stamp(A, opt, 4)
    A(f"""
    s_mul_i32 s22, s39, 122880
    s_add_u32 s22, s22, {W2F}
    s_lshl_b32 s21, s36, 10
    s_add_u32 s22, s22, s21
    s_add_u32 s20, s22, s17
    s_add_u32 s19, s22, 40960
    v_lshlrev_b32 v2, 2, v1
    v_mov_b32 v4, {LFLAG}
    s_cmp_lg_u32 s36, 0
    s_cbranch_scc1 {"P2_LW0" if opt.get("lgo") else "P2_W_X"}
    s_sub_u32 s4, s44, s45
    s_sub_u32 s4, s4, 168
    v_cmp_gt_u32 vcc, 42, v1
    v_add_u32 v3, s4, v2
    {"v_mov_b32 v3, 0" if opt.get("xe") else "s_nop 0"}
    v_cndmask_b32 v2, v3, v2, vcc
    """)
    XE = opt.get("xe", 0)
    if F2:
        A(f"""
        s_mov_b32 s7, {POLL_MAX}
        s_branch P2_W_1
        """)
        A.label("P2_W")
        A(f"s_sleep {opt.get('wsl', 16)}")
        A.label("P2_W_1")
        A("""
        s_sub_u32 s7, s7, 1
        s_cbranch_scc1 P2_W_X
        """)
        if FS == 4:
            A("buffer_load_dwordx4 v[8:11], v5, s[24:27], s45 offen sc1")
        else:
            assert FS == 16
            for j in range(4): A(f"buffer_load_dword v{8+j}, v5, s[24:27], s45 offen offset:{1024*j} sc1")
        A("s_waitcnt vmcnt(0)")
        if not opt.get("fall"):
            for j in range(4): A(f"v_or_b32 v{8+j}, v{8+j}, v{12+j}")
        A("""
        v_min3_u32 v8, v8, v9, v10
        v_min_u32 v8, v8, v11
        """)
        poll_check(A, "v8", 0, "P2_W")
        A.label("P2_W_X")
    else:
        poll(A, "P2_W", "s[24:27]", "s45", "v2", "v3", DC_W if XE else DC_W & DC_X, sleep=opt.get("wsl", 16),
             st=(lambda: stamp(A, opt, 1)) if opt.get("pst") else None)
    LGO = opt.get("lgo", 0)

    def lds_wait(name, ofs, vd, va):
        A(f"s_branch {name}")
        A.label(name + "_S")
        A(f"s_sleep {opt.get('lsl', 1)}")
        A.label(name)
        A(f"""
        ds_read_b32 {vd}, {va} offset:{ofs}
        s_waitcnt lgkmcnt(0)
        """)
        poll_check(A, vd, 0, name + "_S")
    if LGO:
        assert opt.get("bst") == 3 and not F2
        A(f"""
        v_mov_b32 v3, 1
        ds_write_b32 v4, v3 offset:4
        s_branch P2_GO
        """)
        A.label("P2_LW0")
        lds_wait("P2_LW", 4, "v3", "v4")
        A.label("P2_GO")
    else:
        A("s_barrier")
    stamp(A, opt, 5)
    AH = opt.get("ah", 3)

    ROT = opt.get("pra") or opt.get("prb")
    cur = [0]

    def issue(c):
        for n, q in groups[st[c]:st[c + 1]]:
            off = (n * 40 + q * 4) * 1024
            if ROT:
                if q != cur[0]:
                    assert q == (cur[0] + 1) % 10
                    A("""
                    s_add_u32 s20, s20, 4096
                    s_cmp_eq_u32 s20, s19
                    s_cselect_b32 s20, s22, s20
                    """)
                    cur[0] = q
                A(f"s_add_u32 s5, s20, {n * 40960}")
            else:
                A(f"s_add_u32 s5, s22, {off}")
            A(f"""
            s_add_u32 m0, s21, {off}
            s_nop 0
            buffer_load_dwordx4 v5, s[24:27], s5 offen{wsc} lds
            """)

    HS = opt.get("hs", 0)

    def count(ofs):
        if opt.get("stamp"):
            A(f"""
            v_mov_b32 v88, 1
            v_mov_b32 v89, {ofs}
            s_mov_b64 exec, 1
            buffer_atomic_add v88, v89, {DBG}, 0 offen
            s_mov_b64 exec, -1
            """)
    for c in range(min(AH, len(CH))): issue(c)
    if HS:
        assert not ROT and (XE == 40 or HS == 2)
        A(f"""
        v_add_u32 v6, s21, v5
        v_add_u32 v7, 61440, v6
        s_mov_b32 s7, {POLL_MAX}
        """)
    for c in range(len(CH)):
        issued = min(len(CH), AH + c)
        A(f"s_waitcnt vmcnt({st[issued] - st[c+1]})")
        if HS and not opt.get("noval"):
            A.label(f"P2_V{c}")
            for j, (n, q) in enumerate(groups[st[c]:st[c + 1]]):
                off = (n * 40 + q * 4) * 1024
                base, o = ("v6", off) if off < 61440 else ("v7", off - 61440)
                A(f"ds_read_b128 {vr(8+4*j,4)}, {base} offset:{o}")
            for j in range(CH[c]):
                A(f"s_waitcnt lgkmcnt({CH[c]-1-j})")
                A(f"v_max3_u32 v2, v{8+4*j}, v{9+4*j}, {'v2' if j else '0'}")
                A(f"v_max3_u32 v2, v{10+4*j}, v{11+4*j}, v2")
            A(f"""
            v_cmp_eq_u32 vcc, -1, v2
            s_cbranch_vccnz P2_R{c}
            """)
            A.label(f"P2_VX{c}")
        A("s_barrier")
        if AH + c < len(CH): issue(AH + c)
    stamp(A, opt, 6)
    A("s_branch K_EXIT")
    if HS and not opt.get("noval"):
        for c in range(len(CH)):
            A.label(f"P2_R{c}")
            A(f"""
            s_sub_u32 s7, s7, 1
            s_cbranch_scc1 P2_VX{c}
            s_sleep {opt.get("rsl", 2)}
            """)
            count(48)
            issue(c)
            A(f"""
            s_waitcnt vmcnt(0)
            s_branch P2_V{c}
            """)

    HS = HS == 1
    if HS:
        A.comment("---- some xr word had not been written yet: fetch again, then redo the tile (barriers already passed are skipped)")
        A.label("P2_XR")
        A(f"""
        s_cmp_lg_u32 s16, 0
        s_cbranch_scc1 P2_XOK
        s_mov_b32 s16, 1
        s_mov_b32 s7, {POLL_MAX // 8}
        s_waitcnt lgkmcnt(0)
        s_nop 15
        """)
        A.label("P2_XR1")
        count(52)
        A(f"""
        s_sub_u32 s7, s7, 1
        s_cbranch_scc1 P2_AGAIN
        s_sleep 4
        s_mov_b32 s20, s18
        """)
        for kb in range(40): xload(A, opt, kb)
        A("v_mov_b32 v1, 0")
        for kb in range(40):
            A(f"""
            s_waitcnt vmcnt({39-kb})
            v_max3_u32 v1, v{VX+4*kb}, v{VX+4*kb+1}, v1
            v_max3_u32 v1, v{VX+4*kb+2}, v{VX+4*kb+3}, v1
            """)
        A("""
        v_cmp_eq_u32 vcc, -1, v1
        s_cbranch_vccnz P2_XR1
        s_branch P2_AGAIN
        """)
    vACC = 8
    vF = 56
    NF = 8
    vO = 88
    D = opt.get("xd", 16)
    A.label("P2_MMX")
    if opt.get("lgo"): A("s_barrier")
    A.label("P2_MMI")
    XT = opt.get("xt", 0)
    if XT:
        p2_tile(A)
        A(f"""
        s_cmp_lt_u32 s3, {opt.get("xtl", 24)}
        s_cbranch_scc1 P2_MM
        v_lshlrev_b32 v2, 2, v1
        v_lshlrev_b32 v4, 7, v1
        s_lshl_b32 s4, s38, 2
        s_add_u32 s4, s4, s36
        s_sub_u32 s4, s4, 4
        s_mul_i32 s18, s4, 40960
        """)
        A("v_min_u32 v2, 76, v2")
        poll(A, "P2_XT", "s[24:27]", "s44", "v2", "v3", 0, sleep=opt.get("xsl", 32))
        for i in range(5):
            A(f"buffer_load_dword v{8+i}, v4, s[24:27], s18 offen sc1")
            if i < 4: A("s_add_u32 s18, s18, 8192")
            if opt.get("xts"): A(f"s_sleep {opt['xts']}")
    A.label("P2_MM")
    stamp(A, opt, 2)
    p2_tile(A)
    p2_rot(A, opt)
    A(f"""
    s_lshl_b32 s4, s38, 2
    s_add_u32 s4, s4, s36
    s_sub_u32 s4, s4, 4
    s_mul_i32 s18, s4, 40960
    s_add_u32 s19, s18, 40960
    s_add_u32 s20, s18, s17
    s_mul_i32 s4, s4, {32*3072}
    s_mul_i32 s5, s39, 192
    s_add_u32 s23, s4, s5
    s_add_u32 s22, s23, {16*3072}
    """)
    Y64 = opt.get("y64", 1)
    M16 = opt.get("m16", 0)
    if M16:
        A("""
        v_lshrrev_b32 v2, 4, v1
        v_lshlrev_b32 v2, 9, v2
        v_and_b32 v6, 15, v1
        v_lshl_add_u32 v5, v6, 4, v2
        v_bfe_u32 v4, v1, 2, 2
        v_lshl_add_u32 v3, v4, 7, v2
        v_bfe_u32 v4, v1, 4, 1
        v_lshl_add_u32 v3, v4, 6, v3
        v_and_b32 v4, 3, v1
        v_lshl_add_u32 v3, v4, 4, v3
        v_and_b32 v7, 48, v1
        v_mul_u32_u24 v6, 0xc00, v6
        v_add_u32 v6, v6, v7
        """)
    elif Y64:
        A("""
        v_bfe_u32 v2, v1, 2, 1
        v_bfe_u32 v4, v1, 3, 2
        v_and_b32 v3, 0x23, v1
        v_lshl_add_u32 v3, v2, 4, v3
        v_lshl_add_u32 v3, v4, 2, v3
        v_lshlrev_b32 v3, 4, v3
        v_and_b32 v6, 15, v1
        v_and_b32 v7, 48, v1
        v_mul_u32_u24 v6, 0xc00, v6
        v_add_u32 v6, v6, v7
        """)
    else:
        A("""
        v_mov_b32 v3, v5
        v_and_b32 v6, 31, v1
        v_lshrrev_b32 v7, 5, v1
        v_mul_u32_u24 v6, 0xc00, v6
        v_lshl_add_u32 v6, v7, 4, v6
        """)
    A("""
    v_add_u32 v4, 61440, v3
    s_waitcnt vmcnt(0)
    """)
    if XE:
        A(f"""
        v_min_u32 v2, 19, v1
        v_lshlrev_b32 v2, 2, v2
        v_mov_b32 v8, {LFLAG}
        s_cmp_lg_u32 s36, 7
        s_cbranch_scc1 P2_XW
        """)
        poll(A, "P2_X", "s[24:27]", "s44", "v2", "v7", 0, sleep=opt.get("xsl", 8))
        A("""
        v_mov_b32 v7, 1
        ds_write_b32 v8, v7
        s_branch P2_XW_X
        """)
        A.label("P2_XW_S")
        A("s_sleep 2")
        A.label("P2_XW")
        A("""
        ds_read_b32 v7, v8
        s_waitcnt lgkmcnt(0)
        """)
        poll_check(A, "v7", 0, "P2_XW_S")
        A.label("P2_XW_X")
        stamp(A, opt, 1)
        for kb in range(XE):
            if opt.get("xp") and kb >= opt["xp"]: A(f"s_waitcnt vmcnt({opt['xp'] - 1})")
            xload(A, opt, kb)
    if F2: A("s_barrier")
    if not LGO: A("s_barrier")
    elif XE < D:
        A(f"v_mov_b32 v8, {LFLAG}")
        lds_wait("P2_MW", 4, "v7", "v8")
    for kb in range(XE, D): xload(A, opt, kb)
    D = max(D, XE)
    if M16:
        A("""
        v_xor_b32 v2, 64, v3
        v_xor_b32 v7, 64, v4
        """)
    stamp(A, opt, 5, True)
    ysc = {0: "", 1: " sc1", 2: " sc1", 3: " nt", 4: " sc0 sc1", 5: " sc1 nt"}[opt.get("ysc", 0)]
    ysc2 = ysc if opt.get("ysc", 0) > 1 else ""

    def epi(t, o=vO, sc=None):
        r = []
        if sc is None: sc = ysc if t < 2 else ''
        if Y64:
            a = vACC + 16 * t
            r.append([f"v_cvt_pk_bf16_f32 v{o+j}, v{a+2*j}, v{a+2*j+1}" for j in range(4)])
            r.append([f"v_cvt_pk_bf16_f32 v{o+j}, v{a+2*j}, v{a+2*j+1}" for j in range(4, 8)])
            if not M16: r.append(["s_nop 1"] + [f"v_permlane16_swap_b32 v{o+j}, v{o+4+j}" for j in range(4)])
            r.append([f"buffer_store_dwordx4 {vr(o,4)}, v6, s[96:99], s23 offen offset:{64*t}{sc}",
                      f"buffer_store_dwordx4 {vr(o+4,4)}, v6, s[96:99], s22 offen offset:{64*t}{sc}"])
            return r
        for p in range(2):
            a = vACC + 16 * t + 8 * p
            o = vO + 4 * p
            r.append([f"v_cvt_pk_bf16_f32 v{o+j}, v{a+2*j}, v{a+2*j+1}" for j in range(4)])
            r.append(["s_nop 1", f"v_permlane32_swap_b32 v{o}, v{o+2}", f"v_permlane32_swap_b32 v{o+1}, v{o+3}",
                      f"buffer_store_dwordx4 {vr(o,4)}, v6, s[96:99], s23 offen offset:{64*t+32*p}{ysc if t < 2 else ''}"])
        return r

    RA = opt.get("ra", 6)
    assert RA < NF
    seen = [0]

    def read(i):
        n, kb = order[i]
        g = groups.index((n, kb // 4))
        while st[seen[0]] <= g:
            if HS and i < 40 * NA + RA:
                A(f"""
                s_cmp_lg_u32 s16, 0
                s_cbranch_scc1 P2_SB{seen[0]}
                s_barrier
                """)
                A.label(f"P2_SB{seen[0]}")
            else:
                A("s_barrier")
            seen[0] += 1
        off = (n * 40 + kb) * 1024
        base, o = ("v3", off) if off < 61440 else ("v4", off - 61440)
        if M16 and kb & 1: base, o = {"v3": "v2", "v4": "v7"}[base], o - 1024
        A(f"ds_read_b128 {vr(vF+4*(i%NF),4)}, {base} offset:{o}")

    if HS:
        A("s_mov_b32 s16, 0")
        A.label("P2_AGAIN")
        A("v_mov_b32 v1, 0")
    for i in range(RA): read(i)
    pending = []
    done = set()
    issued = D
    last = {n: max(i for i, x in enumerate(order) if x[0] == n) for n in range(3)}
    for i, (n, kb) in enumerate(order):
        if n == 0 and not M16: A(f"s_waitcnt vmcnt({issued - kb - 1})")
        if n == 0 and M16 and not kb & 1: A(f"s_waitcnt vmcnt({issued - kb - 2})")
        A(f"s_waitcnt lgkmcnt({min(120, i + RA) - i - 1})")
        acc = vACC + 16 * n
        c = "0" if kb == 0 else vr(acc, 16)
        if M16:
            for a in range(2):
                ac = vr(acc + 8 * a + 4 * (kb & 1), 4)
                A(f"v_mfma_f32_16x16x32_bf16 {ac}, {vr(vF+4*(i%NF),4)}, {vr(VX+4*((kb&~1)+a),4)}, {'0' if kb < 2 else ac}")
        else:
            A(f"v_mfma_f32_32x32x16_bf16 {vr(acc,16)}, {vr(vF+4*(i%NF),4)}, {vr(VX+4*kb,4)}, {c}")
        if i == 0 and opt.get("stamp"):
            stamp(A, opt, 3)
            A("s_memtime s[80:81]\ns_nop 7\ns_nop 7\ns_waitcnt lgkmcnt(0)")
        if i + RA < 120: read(i + RA)
        if HS and n == 0:
            A(f"v_max3_u32 v1, v{VX+4*kb}, v{VX+4*kb+1}, v1")
            A(f"v_max3_u32 v1, v{VX+4*kb+2}, v{VX+4*kb+3}, v1")
        if HS and i == 40 * NA - 1:
            A("""
            v_cmp_eq_u32 vcc, -1, v1
            s_cbranch_vccnz P2_XR
            """)
            A.label("P2_XOK")
        for _ in range(opt.get("xr", 1) if n == 0 else 0):
            if issued < 40:
                xload(A, opt, issued)
                issued += 1
        for t in range(3):
            if i == last[t] + 3:
                pending += epi(t) + [[], [], [], []]
                done.add(t)
        if pending:
            for x in pending.pop(0): A(x)
    assert seen[0] == len(CH)
    A("s_nop 15")
    stamp(A, opt, 6)
    if opt.get("stamp"):
        A("s_memtime s[82:83]\ns_waitcnt lgkmcnt(0)\ns_sub_u32 s72, s82, s80")
    k = 0
    for t in range(3):
        if t in done: continue
        if Y64:
            for x in sum(epi(t, vF + 8 * k, ysc2), []): A(x)
            k += 1
            continue
        for p in range(2):
            a = vACC + 16 * t + 8 * p
            o = vF + 4 * k
            k += 1
            for j in range(4): A(f"v_cvt_pk_bf16_f32 v{o+j}, v{a+2*j}, v{a+2*j+1}")
            A(f"""
            s_nop 1
            v_permlane32_swap_b32 v{o}, v{o+2}
            v_permlane32_swap_b32 v{o+1}, v{o+3}
            buffer_store_dwordx4 {vr(o,4)}, v6, s[96:99], s23 offen offset:{64*t+32*p}{ysc2}
            """)


def descriptor(name, vgpr, accum, sgpr):
    return f""".amdhsa_kernel {name}
  .amdhsa_next_free_vgpr {vgpr}
  .amdhsa_next_free_sgpr {sgpr}
  .amdhsa_accum_offset {accum}
  .amdhsa_group_segment_fixed_size 0
  .amdhsa_kernarg_size 72
  .amdhsa_user_sgpr_count 2
  .amdhsa_user_sgpr_kernarg_segment_ptr 1
  .amdhsa_system_sgpr_workgroup_id_x 1
  .amdhsa_float_denorm_mode_32 3
.end_amdhsa_kernel
"""


def generate(opt):
    out = HEADER
    MAP["m"] = opt.get("map", 3)
    MAP["fsh"] = opt.get("fsh", 0)
    k = f"kernel={KNAME} " if opt.get("list") else ""
    out += f"; @launch {k}grid=(256,1,1) block=(512,1,1) lds={LDS1 + 16}\n"
    out += '.amdgcn_target "amdgcn-amd-amdhsa--gfx950"\n.text\n'
    A = Asm()
    out += f".globl {KNAME}\n.p2align 8\n.type {KNAME},@function\n"
    gen_kernel(A, opt)
    out += A.text()
    out += "CODE_END:\n"
    out += '.section .rodata,"a"\n.p2align 6\n'
    out += descriptor(KNAME, 256, 256, 100)
    return out


if __name__ == "__main__":
    path = sys.argv[1] if len(sys.argv) > 1 else "standalone__weight_only_int_quip__prompt.s"
    opt = {}
    for a in sys.argv[2:]:
        k, _, v = a.partition("=")
        opt[k] = int(v) if v else 1
    open(path, "w").write(generate(opt))
    print("wrote", path)
```

```python
import sys

KNAME = "standalone__weight_only_int_quip__prompt_kernel"
HEADER = """; Kernarg layout for this problem (72 bytes, ptrs only, base s[0:1]):
;   offset   0: d_in[0] x  shape=(1, 2048, 640) dtype=bfloat16 strides=(2621440, 1280, 2) contiguous=True
;   offset  16: d_in[2] scales  shape=(20, 1536) dtype=bfloat16 strides=(3072, 2) contiguous=True
;   offset  24: d_in[3] zeros  shape=(20, 1536) dtype=bfloat16 strides=(3072, 2) contiguous=True
;   offset  32: d_in[4] U  shape=(640, 640) dtype=bfloat16 strides=(1280, 2) contiguous=True
;   offset  40: d_in[5] V  shape=(1536, 1536) dtype=bfloat16 strides=(3072, 2) contiguous=True
;   offset  48: d_out     shape=(1, 2048, 1536) dtype=bfloat16 (2 bytes/elem)
; phase 2 makes y = xr@W2.  One workgroup per CU (256, all resident); hand-off through flags in d_ws
"""

XRF = 0
W2F = 64 * 40 * 1024
FLG = W2F + 48 * 40 * 1024
XFLG = FLG + 256 * 256
WS_USED = XFLG + 256 * 128

X_BYTES = 2048 * 640 * 2
QW_BYTES = 640 * 1536 * 4
SC_BYTES = 20 * 1536 * 2
U_BYTES = 640 * 640 * 2
V_BYTES = 1536 * 1536 * 2
OUT_BYTES = 2048 * 1536 * 2

VSTAGE = 32768
ABASE = 3 * VSTAGE
ASTAGE = 12288
TBL = ABASE + 2 * ASTAGE
LDS1 = TBL + 24576
LFLAG = LDS1
QE = 112
XSTAGE = 32768
POLL_MAX = 40000


class Asm:
    def __init__(self):
        self.lines = []

    def __call__(self, s):
        for l in s.strip("\n").split("\n"):
            self.lines.append("    " + l.strip() if not l.strip().endswith(":") else l.strip())

    def label(self, s):
        self.lines.append(s + ":")

    def comment(self, s):
        self.lines.append("    ; " + s)

    def text(self):
        return "\n".join(self.lines) + "\n"


def vr(a, n):
    return f"v[{a}:{a+n-1}]"


STAMP_OFS = 32 << 20
NSTAMP = 8


def stamp(A, opt, i, wait=False):
    if opt.get("stamp") or ("probe" in opt and i in (0, opt["probe"])):
        A(f"s_memrealtime s[{64+2*i}:{65+2*i}]")
        if wait: A("s_waitcnt lgkmcnt(0)")


def stamp_begin(A, opt):
    if opt.get("stamp") or "probe" in opt:
        for i in range(1, NSTAMP):
            A(f"s_mov_b32 s{64+2*i}, 0")
    stamp(A, opt, 0)


def stamp_end(A, opt):
    if "probe" in opt:
        p = opt["probe"]
        wl, wh = opt.get("pwl", 0), opt.get("pwh", 7)
        A(f"""
        s_waitcnt vmcnt(0) lgkmcnt(0)
        s_memrealtime s[78:79]
        s_waitcnt lgkmcnt(0)
        s_cmp_ge_u32 s2, 256
        s_cbranch_scc1 PRB_X
        s_cmp_lt_u32 s36, {wl}
        s_cbranch_scc1 PRB_X
        s_cmp_gt_u32 s36, {wh}
        s_cbranch_scc1 PRB_X
        s_cmp_eq_u32 s{64+2*p}, 0
        s_cbranch_scc1 PRB_X
        s_sub_u32 s4, s{64+2*p}, s64
        s_mul_i32 s4, s4, 3
        s_min_u32 s4, s4, 20000
        """)
        A.label("PRB")
        A("""
        s_memrealtime s[6:7]
        s_waitcnt lgkmcnt(0)
        s_sub_u32 s5, s6, s78
        s_cmp_lt_u32 s5, s4
        s_cbranch_scc1 PRB
        """)
        A.label("PRB_X")
    if opt.get("stamp"):
        A("s_waitcnt vmcnt(0) lgkmcnt(0)")
        stamp(A, opt, NSTAMP - 1)
        A(f"""
        s_load_dwordx2 s[56:57], s[0:1], 64
        s_waitcnt lgkmcnt(0)
        s_mov_b32 s58, 0x7fffffff
        s_mov_b32 s59, 0x00020000
        v_lshrrev_b32 v1, 6, v0
        v_lshlrev_b32 v1, 5, v1
        s_lshl_b32 s4, s2, 8
        s_add_u32 s4, s4, {STAMP_OFS}
        """)
        for i in range(NSTAMP):
            A(f"v_mov_b32 v{4+i}, s{64+2*i}")
        A("""
        buffer_store_dwordx4 v[4:7], v1, s[56:59], s4 offen
        buffer_store_dwordx4 v[8:11], v1, s[56:59], s4 offen offset:16
        """)
    A("s_endpgm")


def poll_check(A, vdst, dc, again):
    A(f"v_cmp_ne_u32 vcc, 0, {vdst}")
    if dc & 0xffffffff: A(f"s_or_b32 vcc_lo, vcc_lo, {hex(dc & 0xffffffff)}")
    if dc >> 32: A(f"s_or_b32 vcc_hi, vcc_hi, {hex(dc >> 32)}")
    A(f"""
    s_cmp_eq_u64 vcc, -1
    s_cbranch_scc0 {again}
    """)


def poll(A, name, srd, soff, vaddr, vdst, dc, scnt="s7", sleep=0, st=None):
    A(f"s_mov_b32 {scnt}, {POLL_MAX}")
    if sleep: A(f"s_branch {name}_1")
    A.label(name)
    if sleep:
        A(f"s_sleep {sleep}")
        A.label(name + "_1")
    A(f"""
    s_sub_u32 {scnt}, {scnt}, 1
    s_cbranch_scc1 {name}_X
    """)
    if st: st()
    A(f"""
    buffer_load_dword {vdst}, {vaddr}, {srd}, {soff} offen sc1
    s_waitcnt vmcnt(0)
    """)
    A.label(name + "_C")
    poll_check(A, vdst, dc, name)
    A.label(name + "_X")


DC_X = 0xC00003FFFFFFFFFF
DC_W = 0xFFFFFC0000000000
DBG = "s[92:95]"


MAP = {"m": 3}


def p2_tile(A):
    lm = MAP["m"]
    ln = 5 - lm
    xm = 4 - lm
    A(f"""
    s_and_b32 s38, s37, {(1 << xm) - 1}
    s_lshl_b32 s38, s38, {lm}
    s_and_b32 s39, s3, {(1 << lm) - 1}
    s_add_u32 s38, s38, s39
    s_lshr_b32 s39, s37, {xm}
    s_lshl_b32 s39, s39, {ln}
    s_lshr_b32 s4, s3, {lm}
    s_add_u32 s39, s39, s4
    s_lshl_b32 s45, s38, 4
    s_add_u32 s45, s45, s39
    s_lshl_b32 s44, s45, 7
    s_add_u32 s44, s44, {XFLG}
    """)
    if MAP["fsh"]:
        A(f"""
        s_lshr_b32 s45, s38, {MAP["fsh"]}
        s_lshl_b32 s45, s45, 4
        s_add_u32 s45, s45, s39
        """)
    A(f"""
    s_lshl_b32 s45, s45, 8
    s_add_u32 s45, s45, {FLG}
    """)


def publish(A, opt, sflag, sshift):
    A(f"""
    v_mov_b32 v2, 1
    v_lshlrev_b32 v3, {sshift}, v1
    {"" if opt.get("hs") else "s_waitcnt vmcnt(0)"}
    s_mov_b64 exec, s[58:59]
    buffer_store_dword v2, v3, s[24:27], {sflag} offen sc1
    s_mov_b64 exec, -1
    """)
    stamp(A, opt, 4)


def gen_kernel(A, opt):
    A.label(KNAME)
    stamp_begin(A, opt)
    A("""
    s_load_dwordx2 s[8:9], s[0:1], 8
    s_load_dwordx2 s[12:13], s[0:1], 40
    s_load_dwordx2 s[16:17], s[0:1], 16
    s_load_dwordx2 s[20:21], s[0:1], 24
    s_load_dwordx2 s[28:29], s[0:1], 0
    s_load_dwordx2 s[32:33], s[0:1], 32
    s_load_dwordx2 s[24:25], s[0:1], 64
    s_load_dwordx2 s[92:93], s[0:1], 56
    s_load_dwordx2 s[96:97], s[0:1], 48
    s_cmp_ge_u32 s2, 256
    s_cbranch_scc1 K_EXIT
    v_and_b32 v1, 63, v0
    v_lshrrev_b32 v2, 6, v0
    s_getpc_b64 s[4:5]
    """)
    A.label("P1_PC")
    A(f"""
    v_readfirstlane_b32 s36, v2
    v_lshlrev_b32 v3, 7, v1
    v_add_u32 v4, 0x2000, v3
    v_min_u32 v4, CODE_END-P1_PC-4, v4
    s_lshr_b32 s3, s2, 3
    s_and_b32 s37, s2, 7
    s_cmp_lg_u32 s36, 7
    s_cbranch_scc1 P1_NOPF
    global_load_dword v60, v3, s[4:5]
    global_load_dword v61, v4, s[4:5]
    v_mov_b32 v2, 0
    v_mov_b32 v3, 0
    v_mov_b32 v4, {LFLAG}
    ds_write_b64 v4, v[2:3]
    """)
    A.label("P1_NOPF")
    A(f"""
    s_mov_b32 s11, 0x00020000
    s_mov_b32 s15, 0x00020000
    s_mov_b32 s27, 0x00020000
    s_mov_b32 s26, {WS_USED}
    s_movk_i32 s94, 256
    s_mov_b32 s95, 0x00020000
    s_mov_b32 s98, {OUT_BYTES}
    s_mov_b32 s99, 0x00020000
    v_lshlrev_b32 v5, 4, v1
    s_cmp_ge_u32 s3, 21
    s_cbranch_scc1 P1_XR
    """)
    gen_w2(A, opt)
    A.label("P1_XR")
    gen_xr(A, opt)
    gen_p2(A, opt)
    A.label("K_EXIT")
    stamp_end(A, opt)


def gen_w2(A, opt):
    NQ = opt.get("nq", 2)
    RING = 3 * VSTAGE
    RG = opt.get("rg", 2)
    sW, sLOC, sXCD = "s36", "s3", "s37"
    sMI, sNI = "s40", "s41"
    sC = "s49"
    sVOFS = "s43"
    vVO = 6
    A(f"""
    s_mul_i32 s4, {sLOC}, 171
    s_lshr_b32 s4, s4, 9
    s_mul_i32 s5, s4, 3
    s_sub_u32 s5, {sLOC}, s5
    s_lshr_b32 s6, {sXCD}, 2
    s_mul_i32 s6, s6, 7
    s_add_u32 {sMI}, s6, s4
    s_and_b32 s6, {sXCD}, 3
    s_mul_i32 s6, s6, 3
    s_add_u32 {sNI}, s6, s5
    s_mul_i32 s42, {sMI}, 3
    s_mov_b32 s56, s4
    s_mov_b32 s57, s5
    """)
    W = opt.get("rw", 1)
    if W == 12:
        ra, rb, rx = opt.get("rota", 5), opt.get("rotb", 4), opt.get("rotx", 0)
        A(f"""
        s_mul_i32 s6, s4, {ra}
        s_mul_i32 s7, s5, {rb}
        s_add_u32 s6, s6, s7
        s_mul_i32 s7, {sXCD}, {rx}
        s_add_u32 s6, s6, s7
        s_mul_i32 s7, s6, 43
        s_lshr_b32 s7, s7, 9
        s_mul_i32 s7, s7, 12
        s_sub_u32 s6, s6, s7
        s_lshl_b32 s6, s6, 2
        s_sub_u32 s7, 48, s6
        s_mov_b32 s60, 0x76543210
        s_mov_b32 s61, 0xba98
        s_lshl_b64 s[62:63], s[60:61], s7
        s_lshr_b64 s[60:61], s[60:61], s6
        s_or_b64 s[60:61], s[60:61], s[62:63]
        """)
        assert all((v * 43) >> 9 == v // 12 for v in range(6 * ra + 2 * rb + 7 * rx + 1))
    elif W > 1:
        ra, rb = opt.get("rota", 1), opt.get("rotb", 1)
        P2 = sum((i % W) << (4 * i) for i in range(2 * W))
        A(f"""
        s_mul_i32 s6, s4, {ra}
        s_mul_i32 s7, s5, {rb}
        s_add_u32 s6, s6, s7
        """)
        if W in (2, 4):
            A(f"s_and_b32 s6, s6, {W-1}")
        else:
            M = {3: 86, 6: 43}[W]
            A(f"""
            s_mul_i32 s7, s6, {M}
            s_lshr_b32 s7, s7, 8
            s_mul_i32 s7, s7, {W}
            s_sub_u32 s6, s6, s7
            """)
        ones = sum(1 << (4 * i) for i in range(W))
        A(f"""
        s_lshl_b32 s6, s6, 2
        s_mov_b32 s60, {P2 & 0xffffffff}
        s_mov_b32 s61, {P2 >> 32}
        s_lshr_b64 s[60:61], s[60:61], s6
        s_and_b32 s6, s60, {(1 << (4*W)) - 1}
        s_mov_b32 s60, 0
        s_mov_b32 s61, 0
        s_mov_b32 s7, 0
        """)
        for j in range(12 // W - 1, -1, -1):
            A(f"""
            s_lshl_b64 s[60:61], s[60:61], {4*W}
            s_add_u32 s6, s6, {(ones * W * j) & 0xffffffff}
            s_or_b64 s[60:61], s[60:61], s[6:7]
            s_sub_u32 s6, s6, {(ones * W * j) & 0xffffffff}
            """)
    else:
        A("""
        s_mov_b32 s60, 0x76543210
        s_mov_b32 s61, 0xba98
        """)
    A(f"""
    s_sub_u32 s4, {sW}, 4
    s_cmp_lt_u32 s4, 3
    s_cbranch_scc1 W2_DEQ
    s_mov_b32 s14, {V_BYTES}
    v_lshrrev_b32 v2, 4, v1
    v_and_b32 v3, 15, v1
    v_lshlrev_b32 v4, 1, v2
    v_xor_b32 v3, v3, v4
    v_lshlrev_b32 v3, 4, v3
    v_mul_u32_u24 v4, 0xc00, v2
    v_add_u32 v{vVO}, v3, v4
    v_add_u32 v{vVO+1}, 11264, v{vVO}
    v_xor_b32 v3, 0x80, v{vVO}
    v_add_u32 v{vVO+2}, {2*11264}, v3
    v_add_u32 v{vVO+3}, {3*11264}, v3
    s_lshl_b32 {sVOFS}, {sNI}, 8
    s_cmp_lt_u32 {sW}, 4
    s_cbranch_scc1 W2_MFMA
    """)

    def v_group():
        for j in range(4):
            A(f"buffer_load_dwordx4 v{vVO+j}, s[12:15], {sVOFS} offen offset:{1024*j} lds")

    GPC, XPC = opt.get("gpc", 4), 11
    for g in range(1, 8):
        for j in range(4):
            A(f"v_add_u32 v{vVO+4*g+j}, {g*16*3072}, v{vVO+j}")
    if opt.get("hs") and opt.get("wf") == 200:
        A("""
        v_min_u32 v40, 8, v1
        v_lshlrev_b32 v40, 2, v40
        """)
    else:
        A("v_mov_b32 v40, 0")
    A(f"""
    s_mov_b32 s44, {sVOFS}
    s_mov_b32 m0, {VSTAGE}
    s_mov_b32 {sC}, 1
    s_waitcnt lgkmcnt(0)
    """)
    stamp(A, opt, 1)
    A.label("W2L_LOOP")
    A(f"""
    s_lshr_b64 s[60:61], s[60:61], 4
    s_and_b32 s4, s60, 15
    s_mul_i32 s4, s4, 393216
    s_add_u32 {sVOFS}, s44, s4
    s_cmp_lg_u32 {sC}, {GPC}
    s_cbranch_scc1 W2L_NG
    buffer_load_dword v42, v40, {DBG}, 0 offen sc1
    """)
    A.label("W2L_NG")
    for g in range(8):
        if g == 6: A("s_waitcnt vmcnt(54)")
        for j in range(4):
            A(f"buffer_load_dwordx4 v{vVO+4*g+j}, s[12:15], {sVOFS} offen offset:{1024*j} lds")
            if j == 3: A("s_add_u32 m0, m0, 4096")
            if j == 3 and g < 7: A("s_nop 0")
    A(f"""
    s_cmp_ge_u32 m0, {RING}
    s_cselect_b32 m0, 0, m0
    """)
    EC = opt.get("ec", 0)
    if EC:
        A(f"""
        s_cmp_gt_u32 {sC}, 2
        s_cbranch_scc1 W2L_NT
        s_add_u32 {sC}, {sC}, 1
        s_cmp_eq_u32 {sC}, 2
        s_cbranch_scc1 W2L_LOOP
        s_mov_b32 {sC}, 2
        s_barrier
        """)
    else:
        A(f"""
        s_cmp_lg_u32 {sC}, 1
        s_cbranch_scc1 W2L_NT
        """)
    A("s_barrier")
    if opt.get("prio", 1): A("s_setprio 3")
    A.label("W2L_NT")
    A(f"""
    s_waitcnt vmcnt(32)
    s_cmp_lg_u32 {sC}, {GPC}
    s_cbranch_scc1 W2L_G_X
    """)
    poll_check(A, "v42", 0, "W2L_GS")
    A.label("W2L_G_X")
    A(f"""
    s_add_u32 {sC}, {sC}, 1
    s_barrier
    s_cmp_lt_u32 {sC}, 12
    s_cbranch_scc1 W2L_LOOP
    s_setprio 0
    """)
    A("""
    s_waitcnt vmcnt(0)
    s_barrier
    """)
    if opt.get("bst"): A("s_barrier")
    A("s_branch P2_MM")
    A.label("W2L_GS")
    A(f"s_mov_b32 s7, {POLL_MAX}")
    A.label("W2L_G")
    A(f"""
    s_sub_u32 s7, s7, 1
    s_cbranch_scc1 W2L_G_X
    buffer_load_dword v42, v40, {DBG}, 0 offen sc1
    s_waitcnt vmcnt(0)
    """)
    poll_check(A, "v42", 0, "W2L_G")
    A("s_branch W2L_G_X")
    A.label("W2_DEQ")
    sB = "s38"
    sQOFS = "s43"
    vQO = 6
    vAW = 14
    vTB = 22
    U_ = 24
    Ft = 40
    O = 48
    vQ = 52
    QS = 32
    A(f"""
    s_mov_b32 {sB}, s4
    s_add_u32 s4, s42, {sB}
    s_cmp_ge_u32 s4, 40
    s_cbranch_scc1 W2D_IDLE
    s_mul_i32 s44, s4, {16*6144}
    s_mov_b64 s[62:63], s[60:61]
    s_lshr_b32 s6, s4, 1
    s_lshr_b32 s5, s42, 1
    s_sub_u32 s6, s6, s5
    s_mul_i32 s6, s6, 6144
    s_add_u32 s6, s6, {TBL}
    s_mov_b32 s10, {QW_BYTES}
    v_lshrrev_b32 v2, 5, v1
    v_and_b32 v3, 31, v1
    v_lshlrev_b32 v4, 4, v3
    v_mul_u32_u24 v{vQO}, 0x1800, v2
    v_add_u32 v{vQO}, v{vQO}, v4
    v_add_u32 v{vTB}, s6, v4
    """)
    QR = opt.get("qr", 3)
    A(f"s_mul_i32 s57, s57, {QR}")
    for i in range(7, -1, -1):
        A(f"""
        s_add_u32 s4, s57, {i}
        s_and_b32 s4, s4, 7
        s_mul_i32 s4, s4, 12288
        v_add_u32 v{vQO+i}, s4, v{vQO}
        """)
    A("s_waitcnt lgkmcnt(0)")
    stamp(A, opt, 1)

    def q_next():
        A(f"""
        s_and_b32 s4, s60, 15
        s_lshr_b64 s[60:61], s[60:61], 4
        s_lshl_b32 s4, s4, 9
        s_add_u32 {sQOFS}, s44, s4
        """)

    def q_issue(u):
        q = vQ + QS * u
        q_next()
        for i in range(8):
            A(f"buffer_load_dwordx4 {vr(q+4*i,4)}, v{vQO+i}, s[8:11], {sQOFS} offen")

    def t_read(n):
        u = U_ + 8 * (n & 1)
        A(f"""
        s_and_b32 s4, s62, 15
        s_lshr_b64 s[62:63], s[62:63], 4
        s_lshl_b32 s4, s4, 9
        v_add_u32 v{vTB+1}, s4, v{vTB}
        ds_read_b128 {vr(u,4)}, v{vTB+1}
        ds_read_b128 {vr(u+4,4)}, v{vTB+1} offset:12288
        """)

    for u in range(NQ):
        q_issue(u)
    A(f"""
    s_lshl_b32 s4, {sB}, 12
    s_add_u32 s4, s4, {ABASE}
    v_bfe_u32 v3, v1, 1, 4
    v_xor_b32 v4, v3, v2
    v_lshlrev_b32 v4, 4, v4
    v_lshl_add_u32 v4, v2, 8, v4
    v_and_b32 v3, 1, v1
    v_lshl_add_u32 v4, v3, 3, v4
    v_add_u32 v{vAW}, s4, v4
    """)
    for i in range(7, -1, -1):
        A(f"""
        s_add_u32 s4, s57, {i}
        s_and_b32 s4, s4, 7
        s_lshl_b32 s5, s4, 5
        s_lshl_b32 s4, s4, 9
        v_xor_b32 v3, s5, v{vAW}
        v_add_u32 v{vAW+i}, s4, v3
        """)
    A(f"""
    s_mov_b32 {sC}, 0
    s_barrier
    """)
    if opt.get("prio", 1): A("s_setprio 3")
    t_read(0)
    A("s_waitcnt lgkmcnt(0)")
    assert 12 % NQ == 0
    UN = NQ if NQ % 2 == 0 else 2 * NQ
    assert 12 % UN == 0
    A.label("W2D_LOOP")
    for n in range(UN):
        u = n % NQ
        q = vQ + QS * u
        S = U_ + 8 * (n & 1)
        t_read(n + 1)
        q_next()
        A(f"""
        s_cmp_lt_u32 {sC}, {12-NQ-n+1}
        s_waitcnt vmcnt({8*(NQ-1)})
        s_cbranch_scc1 W2D_NT{n}
        s_waitcnt vmcnt({8*min(NQ-1, max(0, UN-1-n))})
        """)
        A.label(f"W2D_NT{n}")
        A(f"s_cmp_lt_u32 {sC}, {12-NQ-n}")
        for i in range(8):
            qq = q + 4 * i
            f = Ft + 4 * (i & 1)
            o = O + 2 * (i & 1)
            A(f"""
            v_fma_f32 v{f}, v{qq}, v{S}, v{S+4}
            v_fma_f32 v{f+1}, v{qq+1}, v{S+1}, v{S+5}
            v_fma_f32 v{f+2}, v{qq+2}, v{S+2}, v{S+6}
            v_fma_f32 v{f+3}, v{qq+3}, v{S+3}, v{S+7}
            v_cvt_pk_bf16_f32 v{o}, v{f}, v{f+1}
            v_cvt_pk_bf16_f32 v{o+1}, v{f+2}, v{f+3}
            ds_write_b64 v{vAW+i}, {vr(o,2)} offset:{ASTAGE*(n&1)}
            """)
            if (i + 1) % RG == 0:
                A(f"s_cbranch_scc0 W2D_SK{n}_{i}")
                for ii in range(i + 1 - RG, i + 1):
                    A(f"buffer_load_dwordx4 {vr(q+4*ii,4)}, v{vQO+ii}, s[8:11], {sQOFS} offen")
                A.label(f"W2D_SK{n}_{i}")
        A("""
        s_waitcnt lgkmcnt(0)
        s_barrier
        """)
    A(f"""
    s_add_u32 {sC}, {sC}, {UN}
    s_cmp_lt_u32 {sC}, 12
    s_cbranch_scc1 W2D_LOOP
    s_setprio 0
    {"s_barrier" if opt.get("bst") else ""}
    s_branch P2_MM
    """)
    A.label("W2D_IDLE")
    A(f"""
    s_mov_b32 {sC}, 0
    s_waitcnt lgkmcnt(0)
    """)
    A.label("W2D_IDL")
    A(f"""
    s_barrier
    s_add_u32 {sC}, {sC}, 1
    s_cmp_lt_u32 {sC}, {14 if opt.get("bst") else 13}
    s_cbranch_scc1 W2D_IDL
    s_branch P2_MM
    """)
    A.label("W2_MFMA")
    sCST = "s45"
    vAR = 10
    vBR = 14
    vT0, vT1 = 16, 17
    vST = 18
    vACC = 20
    vF = 44
    P = vF
    A(f"""
    s_lshl_b32 s4, {sW}, 13
    s_mov_b32 m0, s4
    s_mul_i32 s4, {sW}, {32*3072}
    s_add_u32 {sVOFS}, {sVOFS}, s4
    s_and_b32 s4, s60, 15
    s_mul_i32 s4, s4, 393216
    s_add_u32 {sVOFS}, {sVOFS}, s4
    s_lshr_b32 s6, s42, 1
    s_mul_i32 s6, s6, 3072
    s_mov_b32 s18, {SC_BYTES}
    s_mov_b32 s19, 0x00020000
    s_mov_b32 s22, {SC_BYTES}
    s_mov_b32 s23, 0x00020000
    v_and_b32 v2, 0xff, v0
    v_lshlrev_b32 v19, 3, v2
    s_waitcnt lgkmcnt(0)
    """)
    stamp(A, opt, 1)
    for j in range(2):
        A(f"""
        buffer_load_dwordx2 {vr(P+4*j,2)}, v19, s[16:19], s6 offen offset:{2048*j}
        buffer_load_dwordx2 {vr(P+4*j+2,2)}, v19, s[20:23], s6 offen offset:{2048*j}
        """)
    A(f"""
    s_add_u32 s6, s6, 4096
    buffer_load_dwordx2 {vr(P+8,2)}, v19, s[16:19], s6 offen
    buffer_load_dwordx2 {vr(P+10,2)}, v19, s[20:23], s6 offen
    """)
    v_group()
    A(f"""
    s_add_u32 m0, m0, 4096
    s_add_u32 {sVOFS}, {sVOFS}, {16*3072}
    """)
    v_group()
    TP = opt.get("tp", 0)
    T = 2 if TP == 1 else 0
    TC = opt.get("tc", 3)

    def touches():
        A(f"""
        v_lshrrev_b32 v2, 1, v1
        v_and_b32 v3, 1, v1
        v_mul_u32_u24 v2, 0xc00, v2
        v_lshl_add_u32 v2, v3, 7, v2
        v_min_u32 v3, {47 - 4*TC}, v1
        v_lshlrev_b32 v3, 7, v3
        v_add_u32 v3, {512*TC}, v3
        s_lshl_b32 s4, {sMI}, 2
        s_add_u32 s4, s4, {sW}
        s_add_u32 s4, s4, {4*TC}
        s_mul_i32 s4, s4, {32*3072}
        s_lshl_b32 s5, {sNI}, 8
        s_add_u32 s4, s4, s5
        s_lshl_b32 s5, {sNI}, 2
        s_add_u32 s5, s5, {sW}
        s_mul_i32 s6, {sMI}, 48
        s_add_u32 s5, s5, s6
        s_mul_i32 s5, s5, 6144
        s_mov_b32 s10, {QW_BYTES}
        buffer_load_dword v208, v2, s[12:15], s4 offen
        buffer_load_dword v209, v3, s[8:11], s5 offen
        """)
    if TP == 1: touches()
    A(f"""
    v_lshlrev_b32 v19, 1, v19
    v_add_u32 v19, {TBL}, v19
    v_and_b32 v2, 15, v1
    v_lshrrev_b32 v3, 4, v1
    v_xor_b32 v4, v2, v3
    v_lshlrev_b32 v4, 4, v4
    v_lshl_add_u32 v4, v2, 8, v4
    v_add_u32 v{vAR}, {ABASE}, v4
    v_xor_b32 v{vAR+1}, 64, v{vAR}
    v_xor_b32 v{vAR+2}, 128, v{vAR}
    v_xor_b32 v{vAR+3}, 192, v{vAR}
    v_bfe_u32 v2, v1, 2, 2
    v_and_b32 v4, 1, v3
    v_lshl_or_b32 v4, v4, 2, v2
    s_lshl_b32 s5, {sW}, 1
    v_xor_b32 v4, s5, v4
    v_lshlrev_b32 v4, 5, v4
    v_lshl_add_u32 v2, v3, 3, v2
    v_lshl_add_u32 v4, v2, 8, v4
    v_and_b32 v2, 3, v1
    v_lshl_add_u32 v{vBR}, v2, 3, v4
    v_xor_b32 v{vBR+1}, 32, v{vBR}
    s_mov_b32 {sCST}, 0
    s_mov_b32 {sC}, 0
    s_lshl_b32 s4, {sNI}, 2
    s_add_u32 s4, s4, {sW}
    s_mul_i32 s5, s4, 40
    s_add_u32 s5, s5, s42
    s_lshl_b32 s5, s5, 10
    s_add_u32 s50, s5, {W2F}
    s_mul_i32 s5, s4, 171
    s_lshr_b32 s5, s5, 9
    s_mul_i32 s6, s5, 3
    s_sub_u32 s6, s4, s6
    s_mul_i32 s6, s6, 14
    s_add_u32 s6, s6, {sMI}
    s_lshl_b32 s6, s6, 2
    s_lshl_b32 s5, s5, 8
    s_add_u32 s5, s5, s6
    s_add_u32 s51, s5, {FLG}
    s_mov_b32 s53, 12
    s_mov_b64 s[58:59], {hex((1 << (16 >> MAP["fsh"])) - 1)}
    s_mov_b32 s54, {hex((127+149-QE) << 23)}
    s_mov_b32 s55, {hex((127+149-QE) << 23)}
    s_mov_b32 s46, 0xffff0000
    s_mov_b32 s47, {hex((127+QE) << 23)}
    s_mov_b32 s48, {hex(0x80000000 | ((127+QE-149) << 23))}
    v_bfe_u32 v3, v1, 4, 1
    v_lshrrev_b32 v4, 5, v1
    v_and_b32 v{vST}, 15, v1
    v_lshl_add_u32 v{vST}, v3, 5, v{vST}
    v_lshl_add_u32 v{vST}, v4, 4, v{vST}
    v_lshlrev_b32 v{vST}, 4, v{vST}
    """)
    if opt.get("m16"):
        A(f"""
        v_lshlrev_b32 v3, 6, v3
        v_xor_b32 v{vST}, v3, v{vST}
        """)
    for i in range(0, 24, 2):
        A(f"v_mov_b64 {vr(vACC+i,2)}, 0")
    for i in range(0, 80, 2):
        A(f"v_mov_b64 {vr(vF+80+i,2)}, 0")
    for j in range(3):
        q = P + 4 * j
        u = P + 16 + 8 * j
        A(f"""
        s_waitcnt vmcnt({8 + 4 - 2*j + T})
        v_lshlrev_b32 v{u}, 16, v{q}
        v_and_b32 v{u+1}, s46, v{q}
        v_lshlrev_b32 v{u+2}, 16, v{q+1}
        v_and_b32 v{u+3}, s46, v{q+1}
        v_lshlrev_b32 v{u+4}, 16, v{q+2}
        v_and_b32 v{u+5}, s46, v{q+2}
        v_lshlrev_b32 v{u+6}, 16, v{q+3}
        v_and_b32 v{u+7}, s46, v{q+3}
        """)
        for i in range(4): A(f"v_mul_f32 v{u+4+i}, s48, v{u+4+i}")
        for i in range(4): A(f"v_mul_f32 v{u+4+i}, v{u+i}, v{u+4+i}")
        for i in range(4): A(f"v_mul_f32 v{u+i}, s47, v{u+i}")
        A(f"""
        ds_write_b128 v19, {vr(u,4)} offset:{4096*j}
        ds_write_b128 v19, {vr(u+4,4)} offset:{4096*j+12288}
        """)
    if TP == 3: touches()
    A("""
    s_waitcnt lgkmcnt(0)
    s_barrier
    """)
    if TP == 2: touches()
    A(f"s_waitcnt vmcnt({2 if TP else 0})")
    HS, HL = opt.get("hs", 0), opt.get("hl", 0)
    WF = opt.get("wf", -1)

    def wfill():
        for i in range(4): A(f"v_mov_b32 v{204+i}, -1")
        A(f"""
        buffer_store_dwordx4 v[204:207], v{vST}, s[24:27], s50 offen sc1
        s_cmp_eq_u32 {sMI}, 13
        s_cbranch_scc1 W2M_FL
        buffer_store_dwordx4 v[204:207], v{vST}, s[24:27], s50 offen offset:1024 sc1
        buffer_store_dwordx4 v[204:207], v{vST}, s[24:27], s50 offen offset:2048 sc1
        """)
        A.label("W2M_FL")
    if HS and WF < 0: wfill()
    if HS and WF == 100:
        for i in range(4): A(f"v_mov_b32 v{204+i}, -1")
        A(f"""
        s_add_u32 s4, s56, {sW}
        s_mul_i32 s5, s4, 171
        s_lshr_b32 s5, s5, 9
        s_mul_i32 s5, s5, 3
        s_sub_u32 s47, s4, s5
        s_add_u32 s47, s47, {opt.get("wf0", 2)}
        s_mov_b32 s46, s50
        s_cmp_eq_u32 {sMI}, 13
        s_cselect_b32 s48, 1, 3
        s_lshl_b32 s48, s48, 10
        s_add_u32 s48, s48, s50
        """)

    def reads(s, buf):
        fa = vF + buf * 80 + 20 * s
        fb = fa + 12
        r = []
        for b in range(3):
            r.append(f"ds_read_b128 {vr(fa+4*b,4)}, v{vAR+s} offset:{4096*b + ASTAGE*buf}")
        for t in range(2):
            for u in range(2):
                r.append(f"ds_read_b64_tr_b16 {vr(fb+4*t+2*u,2)}, v{vT0+t} offset:{(32*s+4*u)*256}")
        return r

    def mfmas(s, buf):
        fa = vF + buf * 80 + 20 * s
        fb = fa + 12
        r = []
        for b in range(3):
            for t in range(2):
                acc = vACC + (b * 2 + t) * 4
                r.append(f"v_mfma_f32_16x16x32_bf16 {vr(acc,4)}, {vr(fa+4*b,4)}, {vr(fb+4*t,4)}, {vr(acc,4)}")
        return r

    A.label("W2M_LOOP")
    for buf in range(2):
        A(f"""
        v_add_u32 v{vT0}, {sCST}, v{vBR}
        v_add_u32 v{vT1}, {sCST}, v{vBR+1}
        s_add_u32 {sCST}, {sCST}, {VSTAGE}
        s_cmp_ge_u32 {sCST}, {RING}
        s_cselect_b32 {sCST}, 0, {sCST}
        s_barrier
        """)
        if HS and WF == 100:
            A(f"""
            s_sub_u32 s47, s47, 1
            s_cmp_lg_u32 s47, 0
            s_cbranch_scc1 W2M_SF{buf}
            buffer_store_dwordx4 v[204:207], v{vST}, s[24:27], s46 offen sc1
            s_add_u32 s46, s46, 1024
            s_cmp_eq_u32 s46, s48
            s_cselect_b32 s47, 64, 3
            """)
            A.label(f"W2M_SF{buf}")
        elif HS and 0 <= WF < 100 and buf == 0:
            A(f"""
            s_cmp_lg_u32 {sC}, {WF}
            s_cbranch_scc1 W2M_FL
            """)
            wfill()
        if HS and HL >= 2 and (HL & 1) == (buf ^ 1):
            A(f"""
            s_cmp_lg_u32 {sC}, {10 - 2 * ((HL - 2) // 2)}
            s_cbranch_scc1 W2M_NH
            s_waitcnt vmcnt(0)
            """)
            publish(A, opt, "s51", "s53")
            A.label("W2M_NH")
        rd = sum((reads(s, buf) for s in range(4)), [])
        mf = sum((mfmas(s, buf ^ 1) for s in range(4)), [])
        seq = rd[:4]
        ri = 4
        for m in mf:
            seq.append(m)
            seq += rd[ri:ri + 1]
            ri += 1
        seq += rd[ri:]
        for x in seq: A(x)
        A("s_waitcnt lgkmcnt(0)")
        if (opt.get("stamp") or opt.get("probe") == 2) and buf == 0:
            A(f"""
            s_cmp_lg_u32 {sC}, 0
            s_cbranch_scc1 W2M_ST
            """)
            stamp(A, opt, 2, True)
            if opt.get("clk"): A("s_memtime s[84:85]\ns_waitcnt lgkmcnt(0)")
            A.label("W2M_ST")
    A(f"""
    s_add_u32 {sC}, {sC}, 2
    s_cmp_lt_u32 {sC}, 12
    s_cbranch_scc1 W2M_LOOP
    s_setprio 3
    """)
    if opt.get("bst") == 3: A("s_barrier")
    if HS and HL < 2: A("s_waitcnt vmcnt(0)")
    if HS and HL == 1: publish(A, opt, "s51", "s53")
    for s_ in range(4):
        for m in mfmas(s_, 1): A(m)
    A("s_nop 7")
    stamp(A, opt, 3)
    if opt.get("clk"): A("s_memtime s[86:87]\ns_waitcnt lgkmcnt(0)\ns_sub_u32 s88, s86, s84")
    for b in range(3):
        a = vACC + 8 * b
        o = vF + 4 * b
        for j in range(4):
            A(f"v_pk_mul_f32 {vr(a+2*j,2)}, {vr(a+2*j,2)}, s[54:55]")
        A(f"""
        v_cvt_pk_bf16_f32 v{o}, v{a}, v{a+1}
        v_cvt_pk_bf16_f32 v{o+1}, v{a+2}, v{a+3}
        v_cvt_pk_bf16_f32 v{o+2}, v{a+4}, v{a+5}
        v_cvt_pk_bf16_f32 v{o+3}, v{a+6}, v{a+7}
        """)
        if HS:
            for j in range(4): A(f"v_min_u32 v{o+j}, -2, v{o+j}")
        A(f"""
        s_nop 1
        v_permlane32_swap_b32 v{o}, v{o+2}
        v_permlane32_swap_b32 v{o+1}, v{o+3}
        buffer_store_dwordx4 {vr(o,4)}, v{vST}, s[24:27], s50 offen offset:{1024*b} sc1
        """)
        if b == 0:
            A(f"""
            s_cmp_eq_u32 {sMI}, 13
            s_cbranch_scc1 W2M_END
            """)
    A.label("W2M_END")
    if opt.get("bst") == 1: A("s_barrier")
    if opt.get("bst") == 2:
        publish(A, opt, "s51", "s53")
        A("s_barrier\ns_branch P2_LD")
    A("s_branch P2_LD" if HS and HL else "s_branch P2_PUB")


def wt_setup(A, opt, tag):
    TC = opt.get("wtc", 2)
    A(f"""
    s_sub_u32 s4, s2, 168
    s_cmp_ge_u32 s4, 48
    s_cbranch_scc1 WT_Q{tag}
    v_lshlrev_b32 v7, 7, v1
    s_lshl_b32 s46, s4, 13
    s_add_u32 s46, s46, {TC*393216}
    s_mov_b32 s47, 393216
    s_mov_b32 s8, s12
    s_mov_b32 s9, s13
    s_mov_b32 s10, {V_BYTES}
    s_branch WT_G{tag}
    """)
    A.label(f"WT_Q{tag}")
    A(f"""
    v_lshrrev_b32 v7, 2, v1
    v_mul_u32_u24 v7, 0x1800, v7
    v_and_b32 v3, 3, v1
    v_lshl_add_u32 v7, v3, 7, v7
    s_sub_u32 s4, s4, 48
    s_mul_i32 s46, s4, {16*6144}
    s_add_u32 s46, s46, {TC*512}
    s_movk_i32 s47, 512
    s_mov_b32 s10, {QW_BYTES}
    """)
    A.label(f"WT_G{tag}")


def wt(A, i):
    A(f"""
    buffer_load_dword v{16+i}, v7, s[8:11], s46 offen
    s_add_u32 s46, s46, s47
    """)


def gen_xr(A, opt):
    sW, sLOC, sXCD = "s36", "s3", "s37"
    sMT, sNT = "s40", "s41"
    sC = "s48"
    A(f"""
    s_sub_u32 s4, {sLOC}, 21
    s_cmp_ge_u32 s4, 5
    s_cselect_b32 s5, 1, 0
    s_cselect_b32 s6, 5, 0
    s_sub_u32 {sNT}, s4, s6
    s_lshl_b32 s7, {sXCD}, 1
    s_add_u32 {sMT}, s7, s5
    s_cmp_ge_u32 {sLOC}, 31
    s_cbranch_scc1 IDLE_WG
    s_cmp_lt_u32 {sW}, 4
    s_cbranch_scc1 XR_MFMA
    s_cmp_lt_u32 {sW}, 6
    s_cbranch_scc1 XR_LD
    """)
    A(f"""
    v_mov_b32 v2, 0
    v_lshlrev_b32 v6, 7, v1
    s_mul_i32 s4, {sMT}, 5
    s_add_u32 s4, s4, {sNT}
    s_lshl_b32 s5, s4, 15
    s_lshl_b32 s6, s4, 14
    s_mov_b32 s30, {X_BYTES}
    s_mov_b32 s31, 0x00020000
    s_mov_b32 s34, {U_BYTES}
    s_mov_b32 s35, 0x00020000
    s_waitcnt lgkmcnt(0)
    """)
    if opt.get("tx", 1):
        A(f"""
        s_cmp_lg_u32 {sW}, 6
        s_cbranch_scc1 XR_TU
        """)
        for i in range(4):
            A(f"buffer_load_dword v{8+i}, v6, s[28:31], s5 offen")
            if i < 3: A("s_add_u32 s5, s5, 8192")
        A("s_branch XR_TX")
        A.label("XR_TU")
        for i in range(2):
            A(f"buffer_load_dword v{8+i}, v6, s[32:35], s6 offen")
            if i < 1: A("s_add_u32 s6, s6, 8192")
        A.label("XR_TX")
    WT = opt.get("wt", 2)
    NT_ = 12 - opt.get("wtc", 2)
    if WT:
        A(f"""
        s_cmp_lg_u32 {sW}, 7
        s_cbranch_scc1 XR_W6
        """)
        wt_setup(A, opt, "x")
        k = 0
        for b in range(10):
            for _ in range(WT if b == 0 else opt.get("wtn", 2)):
                if k < NT_:
                    wt(A, k); k += 1
            A("s_barrier")
        A("s_branch P2_MMX")
        A.label("XR_W6")
    for i in range(5): A("s_barrier")
    A(f"""
    s_cmp_lg_u32 {sW}, 6
    s_cbranch_scc1 XR_G_X
    """)
    poll(A, "XR_G", DBG, "0", "v2", "v3", 0)
    for i in range(5): A("s_barrier")
    A("s_branch P2_MMX")
    A.label("IDLE_WG")
    A(f"""
    v_mov_b32 v2, 0
    v_mov_b32 v3, 1
    s_cmp_lg_u32 {sXCD}, 0
    s_waitcnt lgkmcnt(0)
    s_cbranch_scc1 IDLE_G0
    v_mov_b32 v6, 0
    v_mov_b32 v7, 0
    v_mov_b32 v8, 0
    v_mov_b32 v9, 0
    s_lshl_b32 s4, {sW}, 13
    s_add_u32 s4, s4, {FLG}
    s_add_u32 s5, s4, 4096
    """)
    for i in range(8):
        A(f"buffer_store_dwordx4 v[6:9], v5, s[24:27], s{4+i//4} offen offset:{1024*(i&3)} sc1")
    A(f"""
    s_lshl_b32 s4, {sW}, 12
    s_add_u32 s4, s4, {XFLG}
    """)
    for i in range(4):
        A(f"buffer_store_dwordx4 v[6:9], v5, s[24:27], s4 offen offset:{1024*i} sc1")
    A("s_waitcnt vmcnt(0)")
    A.label("IDLE_G0")
    A("s_barrier")
    if opt.get("it"):
        TC = opt.get("wtc", 2)
        A(f"""
        s_lshl_b32 s4, {sXCD}, 3
        s_add_u32 s4, s4, {sW}
        v_lshlrev_b32 v7, 7, v1
        s_lshl_b32 s46, s4, 13
        s_add_u32 s46, s46, {TC*393216}
        s_mov_b32 s14, {V_BYTES}
        v_lshrrev_b32 v8, 3, v1
        v_mul_u32_u24 v8, 0x1800, v8
        v_and_b32 v9, 7, v1
        v_lshl_add_u32 v8, v9, 7, v8
        s_mul_i32 s47, s4, {10*6144}
        s_add_u32 s47, s47, {TC*512}
        s_mov_b32 s10, {QW_BYTES}
        v_cmp_gt_u32 vcc, 16, v1
        v_add_u32 v9, {8*6144}, v8
        v_cndmask_b32 v9, v8, v9, vcc
        """)
        nv = ((12 - TC) * 48 + 63) // 64
        k = 0
        for p in range((12 - TC) // 2):
            A(f"""
            buffer_load_dword v{16+k}, v8, s[8:11], s47 offen
            buffer_load_dword v{17+k}, v9, s[8:11], s47 offen
            s_add_u32 s47, s47, 1024
            """)
            k += 2
            for _ in range(2 if p % 2 == 0 else 1):
                if nv:
                    A(f"""
                    buffer_load_dword v{16+k}, v7, s[12:15], s46 offen
                    s_add_u32 s46, s46, {64*8192}
                    """)
                    k += 1; nv -= 1
        assert nv == 0, nv
    if WT:
        A(f"""
        s_cmp_lg_u32 {sW}, 7
        s_cbranch_scc1 IDLE_NT
        """)
        wt_setup(A, opt, "i")
        for k in range(NT_):
            wt(A, k)
            if k >= WT - 1 and k < NT_ - 1: A("s_sleep 12")
        A.label("IDLE_NT")
    IF = opt.get("hs") and opt.get("wf") == 200
    if IF:
        A(f"""
        s_sub_u32 s4, {sW}, 1
        s_cmp_gt_u32 s4, 5
        s_cbranch_scc1 IDLE_NF
        s_mul_i32 s5, {sXCD}, 6
        s_add_u32 s4, s4, s5
        s_mul_i32 s4, s4, 40960
        s_add_u32 s4, s4, {W2F}
        s_mov_b32 s5, 10
        v_mov_b32 v6, -1
        v_mov_b32 v7, -1
        v_mov_b32 v8, -1
        v_mov_b32 v9, -1
        """)
        A.label("IDLE_F")
        for i in range(4):
            A(f"buffer_store_dwordx4 v[6:9], v5, s[24:27], s4 offen offset:{1024*i} sc1")
        A(f"""
        s_add_u32 s4, s4, 4096
        s_sub_u32 s5, s5, 1
        s_cmp_lg_u32 s5, 0
        s_cbranch_scc1 IDLE_F
        s_waitcnt vmcnt(0)
        """)
        A.label("IDLE_NF")
    A(f"""
    s_cmp_lg_u32 {sW}, 0
    s_cbranch_scc1 IDLE_G_X
    s_cmp_lg_u32 {sXCD}, 0
    s_cbranch_scc1 IDLE_G1
    s_mov_b64 exec, 1
    buffer_store_dword v3, v2, {DBG}, 0 offen sc1
    s_mov_b64 exec, -1
    """)
    A.label("IDLE_G1")
    poll(A, "IDLE_G", DBG, "0", "v2", "v3", 0, sleep=8)
    A("s_barrier")
    if IF:
        A(f"""
        s_cmp_lg_u32 {sW}, 1
        s_cbranch_scc1 IDLE_NS
        s_lshl_b32 s4, {sXCD}, 2
        s_mov_b64 exec, 1
        buffer_store_dword v3, v2, {DBG}, s4 offen offset:4 sc1
        s_mov_b64 exec, -1
        """)
        A.label("IDLE_NS")
    A(f"""
    s_cmp_lt_u32 {sW}, 4
    s_cbranch_scc1 P2_LD
    s_branch P2_MMI
    """)
    A.label("XR_LD")
    sOFS, sGRP, sCH = "s43", "s45", "s46"
    vO = 6
    A(f"""
    v_lshrrev_b32 v3, 4, v1
    s_cmp_eq_u32 {sW}, 4
    s_cbranch_scc0 XRL_U
    v_lshrrev_b32 v2, 3, v1
    v_and_b32 v4, 7, v1
    v_xor_b32 v4, v4, v3
    v_lshlrev_b32 v4, 4, v4
    v_mul_u32_u24 v{vO}, 0x500, v2
    v_add_u32 v{vO}, v{vO}, v4
    v_xor_b32 v4, 64, v{vO}
    v_add_u32 v{vO+1}, 9216, v4
    v_add_u32 v{vO+2}, {2*9216}, v{vO}
    v_add_u32 v{vO+3}, {3*9216}, v4
    s_mul_i32 {sOFS}, {sMT}, {128*1280}
    s_mov_b32 {sGRP}, {32*1280}
    s_mov_b32 {sCH}, {128 - 128*1280 + (1<<32)}
    s_mov_b32 m0, 0
    s_mov_b32 s30, {X_BYTES}
    s_waitcnt lgkmcnt(0)
    s_branch XRL_GO
    """)
    A.label("XRL_U")
    A(f"""
    v_and_b32 v4, 15, v1
    v_lshlrev_b32 v2, 2, v3
    v_xor_b32 v4, v4, v2
    v_lshlrev_b32 v4, 4, v4
    v_mul_u32_u24 v{vO}, 0x500, v3
    v_add_u32 v{vO}, v{vO}, v4
    v_add_u32 v{vO+1}, {4*1280-1024}, v{vO}
    v_add_u32 v{vO+2}, {2*(4*1280-1024)}, v{vO}
    v_add_u32 v{vO+3}, {3*(4*1280-1024)}, v{vO}
    s_lshl_b32 {sOFS}, {sNT}, 8
    s_mov_b32 {sGRP}, {16*1280}
    s_mov_b32 {sCH}, 0
    s_movk_i32 m0, 16384
    s_mov_b32 s30, {U_BYTES}
    s_waitcnt lgkmcnt(0)
    s_mov_b32 s28, s32
    s_mov_b32 s29, s33
    """)
    A.label("XRL_GO")
    A(f"""
    s_mov_b32 s31, 0x00020000
    s_mov_b32 {sC}, 0
    """)
    A.label("XRL_LOOP")
    for g in range(4):
        for j in range(4):
            A(f"buffer_load_dwordx4 v{vO+j}, s[28:31], {sOFS} offen offset:{1024*j} lds")
        A(f"""
        s_add_u32 m0, m0, 4096
        s_add_u32 {sOFS}, {sOFS}, {sGRP}
        """)
    A(f"""
    s_add_u32 {sOFS}, {sOFS}, {sCH}
    s_add_u32 m0, m0, 16384
    s_and_b32 m0, m0, {4*XSTAGE-1}
    s_add_u32 {sC}, {sC}, 1
    s_and_b32 s4, {sC}, 13
    s_cmp_eq_u32 s4, 1
    s_cbranch_scc1 XRL_LOOP
    s_cmp_eq_u32 {sC}, 2
    s_cbranch_scc0 XRL_W
    s_waitcnt vmcnt(16)
    """)
    A.label("XRL_W")
    A(f"""
    s_waitcnt vmcnt(32)
    s_barrier
    s_cmp_lt_u32 {sC}, 10
    s_cbranch_scc1 XRL_LOOP
    s_waitcnt vmcnt(16)
    s_barrier
    s_waitcnt vmcnt(0)
    s_barrier
    s_branch P2_MMX
    """)
    A.label("XR_MFMA")
    sCST = "s43"
    vXR = 6
    vUR = 10
    vT = 12
    vACC = 20
    vF = 84
    A(f"""
    s_lshr_b32 s4, {sW}, 1
    s_and_b32 s5, {sW}, 1
    s_lshl_b32 s6, s4, 13
    v_and_b32 v3, 31, v1
    v_bfe_u32 v4, v1, 1, 3
    v_lshrrev_b32 v{vT}, 5, v1
    v_xor_b32 v4, v4, v{vT}
    v_lshlrev_b32 v4, 4, v4
    v_lshl_add_u32 v4, v3, 7, v4
    v_add_u32 v{vXR}, s6, v4
    v_xor_b32 v{vXR+1}, 32, v{vXR}
    v_xor_b32 v{vXR+2}, 64, v{vXR}
    v_xor_b32 v{vXR+3}, 96, v{vXR}
    v_bfe_u32 v2, v1, 4, 1
    v_bfe_u32 v3, v1, 2, 2
    s_lshl_b32 s6, s5, 1
    v_xor_b32 v4, s6, v3
    v_lshlrev_b32 v4, 6, v4
    v_lshl_add_u32 v4, v3, 8, v4
    v_lshl_add_u32 v4, v{vT}, 11, v4
    v_lshl_add_u32 v4, v2, 5, v4
    v_and_b32 v3, 3, v1
    v_lshl_add_u32 v4, v3, 3, v4
    v_add_u32 v{vUR}, 16384, v4
    v_xor_b32 v{vUR+1}, 64, v{vUR}
    s_mov_b32 {sCST}, 0
    s_mov_b32 {sC}, 0
    s_lshl_b32 s6, {sMT}, 1
    s_add_u32 s6, s6, s4
    s_lshl_b32 s7, {sNT}, 1
    s_add_u32 s7, s7, s5
    s_mul_i32 s51, s4, 10
    s_add_u32 s51, s51, s7
    s_lshl_b32 s51, s51, 2
    s_lshl_b32 s52, {sMT}, 11
    s_add_u32 s51, s51, s52
    s_add_u32 s51, s51, {XFLG}
    s_mov_b32 s53, 7
    s_mov_b64 s[58:59], 0xffff
    s_mul_i32 s6, s6, 80
    s_lshl_b32 s7, s7, 2
    s_add_u32 s6, s6, s7
    s_lshl_b32 s50, s6, 10
    s_add_u32 s52, s50, 40960
    """)
    for i in range(0, 64, 2):
        A(f"v_mov_b64 {vr(vACC+i,2)}, 0")
    for i in range(0, 64, 2):
        A(f"v_mov_b64 {vr(vF+64+i,2)}, 0")
    A("s_waitcnt lgkmcnt(0)")
    HS, HX = opt.get("hs", 0) == 1, opt.get("hx", 0)

    def fill():
        for i in range(4): A(f"v_mov_b32 v{212+i}, -1")
        for tm in range(2):
            for i in range(4):
                A(f"buffer_store_dwordx4 v[212:215], v5, s[24:27], s{50+2*tm} offen offset:{1024*i} sc1")
    XF = opt.get("xf", 2)
    if HS and XF < 0: fill()

    def reads(s, buf):
        f = vF + 64 * buf + 16 * s
        r = []
        for tn in range(2):
            r.append(f"ds_read_b128 {vr(f+8+4*tn,4)}, v{vT+s} offset:{4096*tn}")
            for u in range(2):
                r.append(f"ds_read_b64_tr_b16 {vr(f+4*tn+2*u,2)}, v{vT+4+tn} offset:{s*4096+u*1024}")
        return r

    def mfmas(s, buf):
        f = vF + 64 * buf + 16 * s
        r = []
        for tm in range(2):
            for tn in range(2):
                acc = vACC + 32 * tm + 16 * tn
                r.append(f"v_mfma_f32_32x32x16_bf16 {vr(acc,16)}, {vr(f+4*tn,4)}, {vr(f+8+4*tm,4)}, {vr(acc,16)}")
        return r

    A.label("XR_LOOP")
    for buf in range(2):
        for i in range(4):
            A(f"v_add_u32 v{vT+i}, {sCST}, v{vXR+i}")
        for i in range(2):
            A(f"v_add_u32 v{vT+4+i}, {sCST}, v{vUR+i}")
        A(f"""
        s_add_u32 {sCST}, {sCST}, {XSTAGE}
        s_and_b32 {sCST}, {sCST}, {4*XSTAGE-1}
        s_barrier
        """)
        if HS and XF >= 0 and buf == 0:
            A(f"""
            s_cmp_lg_u32 {sC}, {XF}
            s_cbranch_scc1 XR_NF
            """)
            fill()
            A.label("XR_NF")
        if HS and HX >= 2 and (HX & 1) == (buf ^ 1):
            A(f"""
            s_cmp_lg_u32 {sC}, {8 - 2 * ((HX - 2) // 2)}
            s_cbranch_scc1 XR_NH
            s_waitcnt vmcnt(0)
            """)
            publish(A, opt, "s51", "s53")
            A.label("XR_NH")
        rd = sum((reads(s_, buf) for s_ in range(4)), [])
        mf = sum((mfmas(s_, buf ^ 1) for s_ in range(4)), [])
        ri = 0
        for m in mf:
            A(m)
            for x in rd[ri:ri + 2]: A(x)
            ri += 2
        for x in rd[ri:]: A(x)
        A("s_waitcnt lgkmcnt(0)")
    A(f"""
    s_add_u32 {sC}, {sC}, 2
    s_cmp_lt_u32 {sC}, 10
    s_cbranch_scc1 XR_LOOP
    """)
    if opt.get("lgo"): A("s_barrier")
    if HS and HX < 2: A("s_waitcnt vmcnt(0)")
    if HS and HX == 1: publish(A, opt, "s51", "s53")
    for s_ in range(4):
        for m in mfmas(s_, 1): A(m)
    A("s_nop 15")
    stamp(A, opt, 3)
    for tm in range(2):
        for i in range(4):
            a = vACC + 32 * tm + 8 * i
            o = vF + 16 * tm + 4 * i
            for j in range(4):
                A(f"v_cvt_pk_bf16_f32 v{o+j}, v{a+2*j}, v{a+2*j+1}")
            if HS:
                for j in range(4): A(f"v_min_u32 v{o+j}, -2, v{o+j}")
            A(f"buffer_store_dwordx4 {vr(o,4)}, v5, s[24:27], s{50+2*tm} offen offset:{1024*i} sc1")
    if HS and HX: A("s_branch P2_LD")
    if opt.get("hs") == 2: A("s_waitcnt vmcnt(0)")


VX = 96


def xload(A, opt, kb):
    sc = "" if opt.get("xplain") else " sc1"
    off = 256 * (kb & 1) + 1024 * (kb & 2) if opt.get("m16") else 1024 * (kb & 3)
    A(f"buffer_load_dwordx4 {vr(VX+4*kb,4)}, v5, s[24:27], s20 offen offset:{off}{sc}")
    if kb & 3 == 3 and kb < 39:
        A("s_add_u32 s20, s20, 4096")
        if opt.get("pra") or opt.get("prb"):
            A("""
            s_cmp_eq_u32 s20, s19
            s_cselect_b32 s20, s18, s20
            """)


def p2_rot(A, opt):
    lm = MAP["m"]
    A(f"""
    s_and_b32 s17, s3, {(1 << lm) - 1}
    s_mul_i32 s17, s17, {opt.get("pra", 0)}
    s_lshr_b32 s16, s3, {lm}
    s_mul_i32 s16, s16, {opt.get("prb", 0)}
    s_add_u32 s17, s17, s16
    s_mul_i32 s16, s17, 205
    s_lshr_b32 s16, s16, 11
    s_mul_i32 s16, s16, 10
    s_sub_u32 s17, s17, s16
    s_lshl_b32 s17, s17, 12
    """)


def gen_p2(A, opt):
    NA = opt.get("na", 2)
    order = [(n, kb) for kb in range(40) for n in range(NA)] + [(n, kb) for n in range(NA, 3) for kb in range(40)]
    groups = []
    for n, kb in order:
        if (n, kb // 4) not in groups: groups.append((n, kb // 4))
    CH = {1: [2, 2, 4, 4, 4, 4, 10], 2: [2, 2, 2, 2, 4, 4, 4, 5, 5], 3: [2, 4, 6, 8, 10], 4: [3, 3, 6, 6, 6, 6],
          5: [1, 1, 2, 2, 4, 10, 10], 6: [2, 4, 8, 16], 7: [2, 2, 6, 20], 8: [4, 10, 16], 9: [2, 4, 6, 8, 10],
          10: [2, 6, 12, 10]}[opt.get("ch", 1)]
    assert sum(CH) == 30
    st = [sum(CH[:i]) for i in range(len(CH) + 1)]
    wsc = "" if opt.get("wplain") else " sc1"
    F2 = opt.get("fl", 1) == 2
    FS = opt.get("fs", 4)
    A.label("P2_PUB")
    if not F2: publish(A, opt, "s51", "s53")
    A.label("P2_LD")
    p2_tile(A)
    p2_rot(A, opt)
    if F2:
        A(f"""
        s_cmp_lg_u32 s36, 0
        s_cbranch_scc1 P2_NM
        s_mul_i32 s4, s39, 3
        s_add_u32 s5, s4, 2
        s_lshr_b32 s4, s4, 2
        s_lshr_b32 s5, s5, 2
        """)
        for j in range(4):
            if opt.get("fall"):
                A(f"v_mov_b32 v{12+j}, 0")
                continue
            A(f"v_lshl_add_u32 v2, v1, 2, {j}" if FS == 4 else f"v_add_u32 v2, {64*j}, v1")
            A(f"""
            v_and_b32 v3, 7, v2
            v_lshrrev_b32 v2, 3, v2
            v_mul_u32_u24 v4, 171, v2
            v_lshrrev_b32 v4, 9, v4
            v_mul_u32_u24 v4, 3, v4
            v_sub_u32 v4, v2, v4
            v_and_b32 v6, 3, v3
            v_mad_u32_u24 v4, v6, 3, v4
            v_cmp_eq_u32 s[6:7], s4, v4
            v_cmp_eq_u32 vcc, s5, v4
            s_or_b64 s[6:7], s[6:7], vcc
            v_cmp_gt_u32 vcc, 21, v2
            s_and_b64 s[6:7], s[6:7], vcc
            v_cmp_lt_u32 vcc, 25, v2
            v_lshlrev_b32 v3, 1, v3
            s_nop 0
            v_addc_co_u32 v3, vcc, 0, v3, vcc
            v_cmp_eq_u32 s[8:9], s38, v3
            v_subrev_u32 v2, 21, v2
            v_cmp_gt_u32 vcc, 10, v2
            s_and_b64 vcc, vcc, s[8:9]
            s_or_b64 vcc, vcc, s[6:7]
            v_cndmask_b32 v{12+j}, 1, 0, vcc
            """)
        A.label("P2_NM")
        A(f"""
        v_mov_b32 v2, 1
        v_mul_u32_u24 v3, {256*FS}, v1
        s_mul_i32 s4, s2, {FS}
        s_add_u32 s4, s4, {FLG}
        s_mul_i32 s45, s37, {256*FS}
        s_add_u32 s45, s45, {FLG}
        s_waitcnt vmcnt(0)
        s_barrier
        s_cmp_lg_u32 s36, 0
        s_cbranch_scc1 P2_NF
        s_mov_b64 exec, 0xff
        buffer_store_dword v2, v3, s[24:27], s4 offen sc1
        s_mov_b64 exec, -1
        """)
        A.label("P2_NF")
        stamp(A, opt, 4)
    A(f"""
    s_mul_i32 s22, s39, 122880
    s_add_u32 s22, s22, {W2F}
    s_lshl_b32 s21, s36, 10
    s_add_u32 s22, s22, s21
    s_add_u32 s20, s22, s17
    s_add_u32 s19, s22, 40960
    v_lshlrev_b32 v2, 2, v1
    v_mov_b32 v4, {LFLAG}
    s_cmp_lg_u32 s36, 0
    s_cbranch_scc1 {"P2_LW0" if opt.get("lgo") else "P2_W_X"}
    s_sub_u32 s4, s44, s45
    s_sub_u32 s4, s4, 168
    v_cmp_gt_u32 vcc, 42, v1
    v_add_u32 v3, s4, v2
    {"v_mov_b32 v3, 0" if opt.get("xe") else "s_nop 0"}
    v_cndmask_b32 v2, v3, v2, vcc
    """)
    XE = opt.get("xe", 0)
    if F2:
        A(f"""
        s_mov_b32 s7, {POLL_MAX}
        s_branch P2_W_1
        """)
        A.label("P2_W")
        A(f"s_sleep {opt.get('wsl', 16)}")
        A.label("P2_W_1")
        A("""
        s_sub_u32 s7, s7, 1
        s_cbranch_scc1 P2_W_X
        """)
        if FS == 4:
            A("buffer_load_dwordx4 v[8:11], v5, s[24:27], s45 offen sc1")
        else:
            assert FS == 16
            for j in range(4): A(f"buffer_load_dword v{8+j}, v5, s[24:27], s45 offen offset:{1024*j} sc1")
        A("s_waitcnt vmcnt(0)")
        if not opt.get("fall"):
            for j in range(4): A(f"v_or_b32 v{8+j}, v{8+j}, v{12+j}")
        A("""
        v_min3_u32 v8, v8, v9, v10
        v_min_u32 v8, v8, v11
        """)
        poll_check(A, "v8", 0, "P2_W")
        A.label("P2_W_X")
    else:
        poll(A, "P2_W", "s[24:27]", "s45", "v2", "v3", DC_W if XE else DC_W & DC_X, sleep=opt.get("wsl", 16),
             st=(lambda: stamp(A, opt, 1)) if opt.get("pst") else None)
    LGO = opt.get("lgo", 0)

    def lds_wait(name, ofs, vd, va):
        A(f"s_branch {name}")
        A.label(name + "_S")
        A(f"s_sleep {opt.get('lsl', 1)}")
        A.label(name)
        A(f"""
        ds_read_b32 {vd}, {va} offset:{ofs}
        s_waitcnt lgkmcnt(0)
        """)
        poll_check(A, vd, 0, name + "_S")
    if LGO:
        assert opt.get("bst") == 3 and not F2
        A(f"""
        v_mov_b32 v3, 1
        ds_write_b32 v4, v3 offset:4
        s_branch P2_GO
        """)
        A.label("P2_LW0")
        lds_wait("P2_LW", 4, "v3", "v4")
        A.label("P2_GO")
    else:
        A("s_barrier")
    stamp(A, opt, 5)
    AH = opt.get("ah", 3)

    ROT = opt.get("pra") or opt.get("prb")
    cur = [0]

    def issue(c):
        for n, q in groups[st[c]:st[c + 1]]:
            off = (n * 40 + q * 4) * 1024
            if ROT:
                if q != cur[0]:
                    assert q == (cur[0] + 1) % 10
                    A("""
                    s_add_u32 s20, s20, 4096
                    s_cmp_eq_u32 s20, s19
                    s_cselect_b32 s20, s22, s20
                    """)
                    cur[0] = q
                A(f"s_add_u32 s5, s20, {n * 40960}")
            else:
                A(f"s_add_u32 s5, s22, {off}")
            A(f"""
            s_add_u32 m0, s21, {off}
            s_nop 0
            buffer_load_dwordx4 v5, s[24:27], s5 offen{wsc} lds
            """)

    HS = opt.get("hs", 0)

    def count(ofs):
        if opt.get("stamp"):
            A(f"""
            v_mov_b32 v88, 1
            v_mov_b32 v89, {ofs}
            s_mov_b64 exec, 1
            buffer_atomic_add v88, v89, {DBG}, 0 offen
            s_mov_b64 exec, -1
            """)
    for c in range(min(AH, len(CH))): issue(c)
    if HS:
        assert not ROT and (XE == 40 or HS == 2)
        A(f"""
        v_add_u32 v6, s21, v5
        v_add_u32 v7, 61440, v6
        s_mov_b32 s7, {POLL_MAX}
        """)
    for c in range(len(CH)):
        issued = min(len(CH), AH + c)
        A(f"s_waitcnt vmcnt({st[issued] - st[c+1]})")
        if HS and not opt.get("noval"):
            A.label(f"P2_V{c}")
            for j, (n, q) in enumerate(groups[st[c]:st[c + 1]]):
                off = (n * 40 + q * 4) * 1024
                base, o = ("v6", off) if off < 61440 else ("v7", off - 61440)
                A(f"ds_read_b128 {vr(8+4*j,4)}, {base} offset:{o}")
            for j in range(CH[c]):
                A(f"s_waitcnt lgkmcnt({CH[c]-1-j})")
                A(f"v_max3_u32 v2, v{8+4*j}, v{9+4*j}, {'v2' if j else '0'}")
                A(f"v_max3_u32 v2, v{10+4*j}, v{11+4*j}, v2")
            A(f"""
            v_cmp_eq_u32 vcc, -1, v2
            s_cbranch_vccnz P2_R{c}
            """)
            A.label(f"P2_VX{c}")
        A("s_barrier")
        if AH + c < len(CH): issue(AH + c)
    stamp(A, opt, 6)
    if opt.get("clk"): A("s_waitcnt lgkmcnt(0)\ns_mov_b32 s76, s88")
    A("s_branch K_EXIT")
    if HS and not opt.get("noval"):
        for c in range(len(CH)):
            A.label(f"P2_R{c}")
            A(f"""
            s_sub_u32 s7, s7, 1
            s_cbranch_scc1 P2_VX{c}
            s_sleep {opt.get("rsl", 2)}
            """)
            count(48)
            issue(c)
            A(f"""
            s_waitcnt vmcnt(0)
            s_branch P2_V{c}
            """)

    HS = HS == 1
    if HS:
        A.comment("---- some xr word had not been written yet: fetch again, then redo the tile (barriers already passed are skipped)")
        A.label("P2_XR")
        A(f"""
        s_cmp_lg_u32 s16, 0
        s_cbranch_scc1 P2_XOK
        s_mov_b32 s16, 1
        s_mov_b32 s7, {POLL_MAX // 8}
        s_waitcnt lgkmcnt(0)
        s_nop 15
        """)
        A.label("P2_XR1")
        count(52)
        A(f"""
        s_sub_u32 s7, s7, 1
        s_cbranch_scc1 P2_AGAIN
        s_sleep 4
        s_mov_b32 s20, s18
        """)
        for kb in range(40): xload(A, opt, kb)
        A("v_mov_b32 v1, 0")
        for kb in range(40):
            A(f"""
            s_waitcnt vmcnt({39-kb})
            v_max3_u32 v1, v{VX+4*kb}, v{VX+4*kb+1}, v1
            v_max3_u32 v1, v{VX+4*kb+2}, v{VX+4*kb+3}, v1
            """)
        A("""
        v_cmp_eq_u32 vcc, -1, v1
        s_cbranch_vccnz P2_XR1
        s_branch P2_AGAIN
        """)
    vACC = 8
    vF = 56
    NF = 8
    vO = 88
    D = opt.get("xd", 16)
    A.label("P2_MMX")
    if opt.get("lgo"): A("s_barrier")
    A.label("P2_MMI")
    XT = opt.get("xt", 0)
    if XT:
        p2_tile(A)
        A(f"""
        s_cmp_lt_u32 s3, {opt.get("xtl", 24)}
        s_cbranch_scc1 P2_MM
        v_lshlrev_b32 v2, 2, v1
        v_lshlrev_b32 v4, 7, v1
        s_lshl_b32 s4, s38, 2
        s_add_u32 s4, s4, s36
        s_sub_u32 s4, s4, 4
        s_mul_i32 s18, s4, 40960
        """)
        A("v_min_u32 v2, 76, v2")
        poll(A, "P2_XT", "s[24:27]", "s44", "v2", "v3", 0, sleep=opt.get("xsl", 32))
        for i in range(5):
            A(f"buffer_load_dword v{8+i}, v4, s[24:27], s18 offen sc1")
            if i < 4: A("s_add_u32 s18, s18, 8192")
            if opt.get("xts"): A(f"s_sleep {opt['xts']}")
    A.label("P2_MM")
    stamp(A, opt, 2)
    p2_tile(A)
    p2_rot(A, opt)
    A(f"""
    s_lshl_b32 s4, s38, 2
    s_add_u32 s4, s4, s36
    s_sub_u32 s4, s4, 4
    s_mul_i32 s18, s4, 40960
    s_add_u32 s19, s18, 40960
    s_add_u32 s20, s18, s17
    s_mul_i32 s4, s4, {32*3072}
    s_mul_i32 s5, s39, 192
    s_add_u32 s23, s4, s5
    s_add_u32 s22, s23, {16*3072}
    """)
    Y64 = opt.get("y64", 1)
    M16 = opt.get("m16", 0)
    if M16:
        A("""
        v_lshrrev_b32 v2, 4, v1
        v_lshlrev_b32 v2, 9, v2
        v_and_b32 v6, 15, v1
        v_lshl_add_u32 v5, v6, 4, v2
        v_bfe_u32 v4, v1, 2, 2
        v_lshl_add_u32 v3, v4, 7, v2
        v_bfe_u32 v4, v1, 4, 1
        v_lshl_add_u32 v3, v4, 6, v3
        v_and_b32 v4, 3, v1
        v_lshl_add_u32 v3, v4, 4, v3
        v_and_b32 v7, 48, v1
        v_mul_u32_u24 v6, 0xc00, v6
        v_add_u32 v6, v6, v7
        """)
    elif Y64:
        A("""
        v_bfe_u32 v2, v1, 2, 1
        v_bfe_u32 v4, v1, 3, 2
        v_and_b32 v3, 0x23, v1
        v_lshl_add_u32 v3, v2, 4, v3
        v_lshl_add_u32 v3, v4, 2, v3
        v_lshlrev_b32 v3, 4, v3
        v_and_b32 v6, 15, v1
        v_and_b32 v7, 48, v1
        v_mul_u32_u24 v6, 0xc00, v6
        v_add_u32 v6, v6, v7
        """)
    else:
        A("""
        v_mov_b32 v3, v5
        v_and_b32 v6, 31, v1
        v_lshrrev_b32 v7, 5, v1
        v_mul_u32_u24 v6, 0xc00, v6
        v_lshl_add_u32 v6, v7, 4, v6
        """)
    A("""
    v_add_u32 v4, 61440, v3
    s_waitcnt vmcnt(0)
    """)
    if XE:
        A(f"""
        v_min_u32 v2, 19, v1
        v_lshlrev_b32 v2, 2, v2
        v_mov_b32 v8, {LFLAG}
        s_cmp_lg_u32 s36, 7
        s_cbranch_scc1 P2_XW
        """)
        poll(A, "P2_X", "s[24:27]", "s44", "v2", "v7", 0, sleep=opt.get("xsl", 8))
        A("""
        v_mov_b32 v7, 1
        ds_write_b32 v8, v7
        s_branch P2_XW_X
        """)
        A.label("P2_XW_S")
        A("s_sleep 2")
        A.label("P2_XW")
        A("""
        ds_read_b32 v7, v8
        s_waitcnt lgkmcnt(0)
        """)
        poll_check(A, "v7", 0, "P2_XW_S")
        A.label("P2_XW_X")
        stamp(A, opt, 1)
        for kb in range(XE):
            if opt.get("xp") and kb >= opt["xp"]: A(f"s_waitcnt vmcnt({opt['xp'] - 1})")
            xload(A, opt, kb)
    if F2: A("s_barrier")
    if not LGO: A("s_barrier")
    elif XE < D:
        A(f"v_mov_b32 v8, {LFLAG}")
        lds_wait("P2_MW", 4, "v7", "v8")
    for kb in range(XE, D): xload(A, opt, kb)
    D = max(D, XE)
    if M16:
        A("""
        v_xor_b32 v2, 64, v3
        v_xor_b32 v7, 64, v4
        """)
    stamp(A, opt, 5, True)
    ysc = {0: "", 1: " sc1", 2: " sc1", 3: " nt", 4: " sc0 sc1", 5: " sc1 nt"}[opt.get("ysc", 0)]
    ysc2 = ysc if opt.get("ysc", 0) > 1 else ""

    def epi(t, o=vO, sc=None):
        r = []
        if sc is None: sc = ysc if t < 2 else ''
        if Y64:
            a = vACC + 16 * t
            r.append([f"v_cvt_pk_bf16_f32 v{o+j}, v{a+2*j}, v{a+2*j+1}" for j in range(4)])
            r.append([f"v_cvt_pk_bf16_f32 v{o+j}, v{a+2*j}, v{a+2*j+1}" for j in range(4, 8)])
            if not M16: r.append(["s_nop 1"] + [f"v_permlane16_swap_b32 v{o+j}, v{o+4+j}" for j in range(4)])
            r.append([f"buffer_store_dwordx4 {vr(o,4)}, v6, s[96:99], s23 offen offset:{64*t}{sc}",
                      f"buffer_store_dwordx4 {vr(o+4,4)}, v6, s[96:99], s22 offen offset:{64*t}{sc}"])
            return r
        for p in range(2):
            a = vACC + 16 * t + 8 * p
            o = vO + 4 * p
            r.append([f"v_cvt_pk_bf16_f32 v{o+j}, v{a+2*j}, v{a+2*j+1}" for j in range(4)])
            r.append(["s_nop 1", f"v_permlane32_swap_b32 v{o}, v{o+2}", f"v_permlane32_swap_b32 v{o+1}, v{o+3}",
                      f"buffer_store_dwordx4 {vr(o,4)}, v6, s[96:99], s23 offen offset:{64*t+32*p}{ysc if t < 2 else ''}"])
        return r

    RA = opt.get("ra", 6)
    assert RA < NF
    seen = [0]

    def read(i):
        n, kb = order[i]
        g = groups.index((n, kb // 4))
        while st[seen[0]] <= g:
            if HS and i < 40 * NA + RA:
                A(f"""
                s_cmp_lg_u32 s16, 0
                s_cbranch_scc1 P2_SB{seen[0]}
                s_barrier
                """)
                A.label(f"P2_SB{seen[0]}")
            else:
                A("s_barrier")
            seen[0] += 1
        off = (n * 40 + kb) * 1024
        base, o = ("v3", off) if off < 61440 else ("v4", off - 61440)
        if M16 and kb & 1: base, o = {"v3": "v2", "v4": "v7"}[base], o - 1024
        A(f"ds_read_b128 {vr(vF+4*(i%NF),4)}, {base} offset:{o}")

    if HS:
        A("s_mov_b32 s16, 0")
        A.label("P2_AGAIN")
        A("v_mov_b32 v1, 0")
    for i in range(RA): read(i)
    pending = []
    done = set()
    issued = D
    last = {n: max(i for i, x in enumerate(order) if x[0] == n) for n in range(3)}
    for i, (n, kb) in enumerate(order):
        if n == 0 and not M16: A(f"s_waitcnt vmcnt({issued - kb - 1})")
        if n == 0 and M16 and not kb & 1: A(f"s_waitcnt vmcnt({issued - kb - 2})")
        A(f"s_waitcnt lgkmcnt({min(120, i + RA) - i - 1})")
        acc = vACC + 16 * n
        c = "0" if kb == 0 else vr(acc, 16)
        if M16:
            for a in range(2):
                ac = vr(acc + 8 * a + 4 * (kb & 1), 4)
                A(f"v_mfma_f32_16x16x32_bf16 {ac}, {vr(vF+4*(i%NF),4)}, {vr(VX+4*((kb&~1)+a),4)}, {'0' if kb < 2 else ac}")
        else:
            A(f"v_mfma_f32_32x32x16_bf16 {vr(acc,16)}, {vr(vF+4*(i%NF),4)}, {vr(VX+4*kb,4)}, {c}")
        if i == 0 and opt.get("stamp"):
            stamp(A, opt, 3)
            A("s_memtime s[80:81]\ns_nop 7\ns_nop 7\ns_waitcnt lgkmcnt(0)")
        if i == 0 and opt.get("probe") == 3:
            stamp(A, opt, 3)
            A("s_nop 7\ns_nop 7\ns_waitcnt lgkmcnt(0)")
        if i + RA < 120: read(i + RA)
        if HS and n == 0:
            A(f"v_max3_u32 v1, v{VX+4*kb}, v{VX+4*kb+1}, v1")
            A(f"v_max3_u32 v1, v{VX+4*kb+2}, v{VX+4*kb+3}, v1")
        if HS and i == 40 * NA - 1:
            A("""
            v_cmp_eq_u32 vcc, -1, v1
            s_cbranch_vccnz P2_XR
            """)
            A.label("P2_XOK")
        for _ in range(opt.get("xr", 1) if n == 0 else 0):
            if issued < 40:
                xload(A, opt, issued)
                issued += 1
        for t in range(3):
            if i == last[t] + 3:
                pending += epi(t) + [[], [], [], []]
                done.add(t)
        if pending:
            for x in pending.pop(0): A(x)
    assert seen[0] == len(CH)
    A("s_nop 15")
    stamp(A, opt, 6)
    if opt.get("stamp"):
        A("s_memtime s[82:83]\ns_waitcnt lgkmcnt(0)\ns_sub_u32 s72, s82, s80")
    k = 0
    for t in range(3):
        if t in done: continue
        if Y64:
            for x in sum(epi(t, vF + 8 * k, ysc2), []): A(x)
            k += 1
            continue
        for p in range(2):
            a = vACC + 16 * t + 8 * p
            o = vF + 4 * k
            k += 1
            for j in range(4): A(f"v_cvt_pk_bf16_f32 v{o+j}, v{a+2*j}, v{a+2*j+1}")
            A(f"""
            s_nop 1
            v_permlane32_swap_b32 v{o}, v{o+2}
            v_permlane32_swap_b32 v{o+1}, v{o+3}
            buffer_store_dwordx4 {vr(o,4)}, v6, s[96:99], s23 offen offset:{64*t+32*p}{ysc2}
            """)


def descriptor(name, vgpr, accum, sgpr):
    return f""".amdhsa_kernel {name}
  .amdhsa_next_free_vgpr {vgpr}
  .amdhsa_next_free_sgpr {sgpr}
  .amdhsa_accum_offset {accum}
  .amdhsa_group_segment_fixed_size 0
  .amdhsa_kernarg_size 72
  .amdhsa_user_sgpr_count 2
  .amdhsa_user_sgpr_kernarg_segment_ptr 1
  .amdhsa_system_sgpr_workgroup_id_x 1
  .amdhsa_float_denorm_mode_32 3
.end_amdhsa_kernel
"""


def generate(opt):
    out = HEADER
    MAP["m"] = opt.get("map", 3)
    MAP["fsh"] = opt.get("fsh", 0)
    k = f"kernel={KNAME} " if opt.get("list") else ""
    out += f"; @launch {k}grid=(256,1,1) block=(512,1,1) lds={LDS1 + 16}\n"
    out += '.amdgcn_target "amdgcn-amd-amdhsa--gfx950"\n.text\n'
    A = Asm()
    out += f".globl {KNAME}\n.p2align 8\n.type {KNAME},@function\n"
    gen_kernel(A, opt)
    out += A.text()
    out += "CODE_END:\n"
    out += '.section .rodata,"a"\n.p2align 6\n'
    out += descriptor(KNAME, 256, 256, 100)
    return out


if __name__ == "__main__":
    path = sys.argv[1] if len(sys.argv) > 1 else "standalone__weight_only_int_quip__prompt.s"
    opt = {}
    for a in sys.argv[2:]:
        k, _, v = a.partition("=")
        opt[k] = int(v) if v else 1
    open(path, "w").write(generate(opt))
    print("wrote", path)
```

```python
import sys

KNAME = "standalone__weight_only_int_quip__prompt_kernel"
HEADER = """; Kernarg layout for this problem (72 bytes, ptrs only, base s[0:1]):
"""

XRF = 0
W2F = 64 * 40 * 1024
FLG = W2F + 48 * 40 * 1024
XFLG = FLG + 256 * 256
SFLG = XFLG + 256 * 128
FLG_END = FLG + 64 * 3 * 1024
SA = FLG_END
WS_USED = SA + 40 * 12 * 4096
assert SFLG + 168 * 256 <= FLG_END

X_BYTES = 2048 * 640 * 2
QW_BYTES = 640 * 1536 * 4
SC_BYTES = 20 * 1536 * 2
U_BYTES = 640 * 640 * 2
V_BYTES = 1536 * 1536 * 2
OUT_BYTES = 2048 * 1536 * 2

VSTAGE = 32768
ABASE = 3 * VSTAGE
ASTAGE = 12288
TBL = ABASE + 2 * ASTAGE
LDS1 = TBL + 24576
LFLAG = LDS1
QE = 112
XSTAGE = 32768
POLL_MAX = 40000


class Asm:
    def __init__(self):
        self.lines = []

    def __call__(self, s):
        for l in s.strip("\n").split("\n"):
            if not l.strip(): continue
            self.lines.append("    " + l.strip() if not l.strip().endswith(":") else l.strip())

    def label(self, s):
        self.lines.append(s + ":")

    def comment(self, s):
        self.lines.append("    ; " + s)

    def text(self):
        return "\n".join(self.lines) + "\n"


def vr(a, n):
    return f"v[{a}:{a+n-1}]"


STAMP_OFS = 32 << 20
NSTAMP = 8


def stamp(A, opt, i, wait=False):
    if opt.get("stamp") or ("probe" in opt and i in (0, opt["probe"])):
        A(f"s_memrealtime s[{64+2*i}:{65+2*i}]")
        if wait: A("s_waitcnt lgkmcnt(0)")


def stamp_begin(A, opt):
    if opt.get("stamp") or "probe" in opt:
        for i in range(1, NSTAMP):
            A(f"s_mov_b32 s{64+2*i}, 0")
        A("s_mov_b32 s90, 0")
    stamp(A, opt, 0)


def stamp_end(A, opt):
    if "probe" in opt:
        p = opt["probe"]
        wl, wh = opt.get("pwl", 0), opt.get("pwh", 7)
        gl, gh = opt.get("pgl", 0), opt.get("pgh", 255)
        A(f"""
        s_waitcnt vmcnt(0) lgkmcnt(0)
        s_memrealtime s[78:79]
        s_waitcnt lgkmcnt(0)
        s_cmp_gt_u32 s2, {gh}
        s_cbranch_scc1 PRB_X
        s_cmp_lt_u32 s2, {gl}
        s_cbranch_scc1 PRB_X
        s_cmp_lt_u32 s36, {wl}
        s_cbranch_scc1 PRB_X
        s_cmp_gt_u32 s36, {wh}
        s_cbranch_scc1 PRB_X
        s_cmp_eq_u32 s{64+2*p}, 0
        s_cbranch_scc1 PRB_X
        s_sub_u32 s4, s{64+2*p}, s64
        s_mul_i32 s4, s4, 3
        s_min_u32 s4, s4, 20000
        """)
        A.label("PRB")
        A("""
        s_memrealtime s[6:7]
        s_waitcnt lgkmcnt(0)
        s_sub_u32 s5, s6, s78
        s_cmp_lt_u32 s5, s4
        s_cbranch_scc1 PRB
        """)
        A.label("PRB_X")
    if opt.get("stamp"):
        A("s_waitcnt vmcnt(0) lgkmcnt(0)")
        stamp(A, opt, NSTAMP - 1)
        A(f"""
        s_load_dwordx2 s[56:57], s[0:1], 64
        s_waitcnt lgkmcnt(0)
        s_mov_b32 s58, 0x7fffffff
        s_mov_b32 s59, 0x00020000
        v_lshrrev_b32 v1, 6, v0
        v_lshlrev_b32 v1, 5, v1
        s_lshl_b32 s4, s2, 8
        s_add_u32 s4, s4, {STAMP_OFS}
        """)
        for i in range(NSTAMP):
            A(f"v_mov_b32 v{4+i}, s{64+2*i}")
        A("""
        buffer_store_dwordx4 v[4:7], v1, s[56:59], s4 offen
        buffer_store_dwordx4 v[8:11], v1, s[56:59], s4 offen offset:16
        """)
    A("s_endpgm")


def cst(A, opt, sidx, add):
    if not opt.get("cst"): return
    A(f"""
    s_memtime s[84:85]
    s_add_u32 s86, {sidx}, {add}
    v_cmp_eq_u32 vcc, s86, v1
    s_waitcnt lgkmcnt(0)
    v_mov_b32 v231, s84
    v_cndmask_b32 v230, v230, v231, vcc
    """)


def cst_out(A, opt):
    if not opt.get("cst"): return
    A(f"""
    v_writelane_b32 v230, s88, 48
    s_mov_b64 s[84:85], s[24:25]
    s_mov_b32 s86, 0x7fffffff
    s_mov_b32 s87, 0x00020000
    v_lshlrev_b32 v231, 2, v0
    s_lshl_b32 s4, s2, 11
    s_add_u32 s4, s4, {STAMP_OFS + (1 << 20)}
    buffer_store_dword v230, v231, s[84:87], s4 offen
    """)


def poll_check(A, vdst, dc, again):
    A(f"v_cmp_ne_u32 vcc, 0, {vdst}")
    if dc & 0xffffffff: A(f"s_or_b32 vcc_lo, vcc_lo, {hex(dc & 0xffffffff)}")
    if dc >> 32: A(f"s_or_b32 vcc_hi, vcc_hi, {hex(dc >> 32)}")
    A(f"""
    s_cmp_eq_u64 vcc, -1
    s_cbranch_scc0 {again}
    """)


def poll(A, name, srd, soff, vaddr, vdst, dc, scnt="s7", sleep=0, st=None):
    A(f"s_mov_b32 {scnt}, {POLL_MAX}")
    if sleep: A(f"s_branch {name}_1")
    A.label(name)
    if sleep:
        A(f"s_sleep {sleep}")
        A.label(name + "_1")
    A(f"""
    s_sub_u32 {scnt}, {scnt}, 1
    s_cbranch_scc1 {name}_X
    """)
    if st: st()
    A(f"""
    buffer_load_dword {vdst}, {vaddr}, {srd}, {soff} offen sc1
    s_waitcnt vmcnt(0)
    """)
    A.label(name + "_C")
    poll_check(A, vdst, dc, name)
    A.label(name + "_X")


DC_W = 0xFFFFFC0000000000
DBG = "s[92:95]"
MAP = {"m": 2}


def p2_tile(A):
    lm = MAP["m"]
    ln = 5 - lm
    xm = 4 - lm
    A(f"""
    s_and_b32 s38, s37, {(1 << xm) - 1}
    s_lshl_b32 s38, s38, {lm}
    s_and_b32 s39, s3, {(1 << lm) - 1}
    s_add_u32 s38, s38, s39
    s_lshr_b32 s39, s37, {xm}
    s_lshl_b32 s39, s39, {ln}
    s_lshr_b32 s4, s3, {lm}
    s_add_u32 s39, s39, s4
    s_lshl_b32 s45, s38, 4
    s_add_u32 s45, s45, s39
    s_lshl_b32 s44, s45, 7
    s_add_u32 s44, s44, {XFLG}
    s_lshl_b32 s45, s45, 8
    s_add_u32 s45, s45, {FLG}
    """)


def publish(A, opt, sflag, sshift):
    A(f"""
    v_mov_b32 v2, 1
    v_lshlrev_b32 v3, {sshift}, v1
    s_waitcnt vmcnt(0)
    s_mov_b64 exec, 0xffff
    buffer_store_dword v2, v3, s[24:27], {sflag} offen sc1
    """)
    if opt.get("xap"):
        A(f"""
        v_mov_b32 v3, {LFLAG}
        s_mov_b64 exec, 1
        ds_add_u32 v3, v2 offset:8
        """)
    A("s_mov_b64 exec, -1")
    stamp(A, opt, 4)


def gen_kernel(A, opt):
    A.label(KNAME)
    stamp_begin(A, opt)
    A("""
    s_load_dwordx2 s[8:9], s[0:1], 8
    s_load_dwordx2 s[12:13], s[0:1], 40
    s_load_dwordx2 s[16:17], s[0:1], 16
    s_load_dwordx2 s[20:21], s[0:1], 24
    s_load_dwordx2 s[28:29], s[0:1], 0
    s_load_dwordx2 s[32:33], s[0:1], 32
    s_load_dwordx2 s[24:25], s[0:1], 64
    s_load_dwordx2 s[92:93], s[0:1], 56
    s_load_dwordx2 s[96:97], s[0:1], 48
    s_cmp_ge_u32 s2, 256
    s_cbranch_scc1 K_EXIT
    v_and_b32 v1, 63, v0
    v_lshrrev_b32 v2, 6, v0
    s_getpc_b64 s[4:5]
    """)
    A.label("P1_PC")
    A(f"""
    v_readfirstlane_b32 s36, v2
    v_lshlrev_b32 v3, 7, v1
    v_add_u32 v4, 0x2000, v3
    v_min_u32 v4, CODE_END-P1_PC-4, v4
    s_lshr_b32 s3, s2, 3
    s_and_b32 s37, s2, 7
    s_cmp_lg_u32 s36, 7
    s_cbranch_scc1 P1_NOPF
    global_load_dword v250, v3, s[4:5]
    global_load_dword v251, v4, s[4:5]
    v_mov_b32 v2, 0
    v_mov_b32 v3, 0
    v_mov_b32 v4, {LFLAG}
    ds_write_b64 v4, v[2:3]
    """)
    A.label("P1_NOPF")
    A(f"""
    s_mov_b32 s11, 0x00020000
    s_mov_b32 s15, 0x00020000
    s_mov_b32 s27, 0x00020000
    s_mov_b32 s26, {WS_USED}
    s_movk_i32 s94, 256
    s_mov_b32 s95, 0x00020000
    s_mov_b32 s98, {OUT_BYTES}
    s_mov_b32 s99, 0x00020000
    v_lshlrev_b32 v5, 4, v1
    s_cmp_ge_u32 s3, 21
    s_cbranch_scc1 P1_XR
    """)
    gen_w2(A, opt)
    A.label("P1_XR")
    gen_xr(A, opt)
    gen_p2(A, opt)
    A.label("K_EXIT")
    stamp_end(A, opt)


def gate_addr(A, v):
    A(f"""
    v_and_b32 {v}, 7, v1
    v_lshlrev_b32 {v}, 2, {v}
    """)


def gen_w2(A, opt):
    NQ = 2
    SH = opt.get("sh", 0)
    RING = 3 * VSTAGE
    RG = opt.get("rg", 2)
    sW, sLOC, sXCD = "s36", "s3", "s37"
    sMI, sNI = "s40", "s41"
    sC = "s49"
    sVOFS = "s43"
    vVO = 6
    if opt.get("cst"): A("s_memtime s[88:89]")
    A(f"""
    s_mul_i32 s4, {sLOC}, 171
    s_lshr_b32 s4, s4, 9
    s_mul_i32 s5, s4, 3
    s_sub_u32 s5, {sLOC}, s5
    s_lshr_b32 s6, {sXCD}, 2
    s_mul_i32 s6, s6, 7
    s_add_u32 {sMI}, s6, s4
    s_and_b32 s6, {sXCD}, 3
    s_mul_i32 s6, s6, 3
    s_add_u32 {sNI}, s6, s5
    s_mul_i32 s42, {sMI}, 3
    s_mov_b32 s57, s5
    s_sub_u32 s4, {sW}, 4
    s_cmp_lt_u32 s4, 3
    s_cbranch_scc1 W2_DEQ
    s_mov_b32 s14, {V_BYTES}
    v_lshrrev_b32 v2, 4, v1
    v_and_b32 v3, 15, v1
    v_lshlrev_b32 v4, 1, v2
    v_xor_b32 v3, v3, v4
    v_lshlrev_b32 v3, 4, v3
    v_mul_u32_u24 v4, 0xc00, v2
    v_add_u32 v{vVO}, v3, v4
    v_add_u32 v{vVO+1}, 11264, v{vVO}
    v_xor_b32 v3, 0x80, v{vVO}
    v_add_u32 v{vVO+2}, {2*11264}, v3
    v_add_u32 v{vVO+3}, {3*11264}, v3
    s_lshl_b32 {sVOFS}, {sNI}, 8
    s_cmp_lt_u32 {sW}, 4
    s_cbranch_scc1 W2_MFMA
    """)

    def v_group():
        for j in range(4):
            A(f"buffer_load_dwordx4 v{vVO+j}, s[12:15], {sVOFS} offen offset:{1024*j} lds")

    GPC = opt.get("gpc", 2 if SH else 4)
    for g in range(1, 8):
        for j in range(4):
            A(f"v_add_u32 v{vVO+4*g+j}, {g*16*3072}, v{vVO+j}")
    gate_addr(A, "v40")
    LP, LG = opt.get("lp", 0), opt.get("lg", 1)
    A(f"""
    s_mov_b32 m0, {VSTAGE}
    s_mov_b32 {sC}, 1
    s_waitcnt lgkmcnt(0)
    """)
    stamp(A, opt, 1)
    cst(A, opt, 0, 49)
    A.label("W2L_LOOP")
    A(f"""
    s_add_u32 {sVOFS}, {sVOFS}, 393216
    s_cmp_lg_u32 {sC}, {GPC}
    s_cbranch_scc1 W2L_NG
    buffer_load_dword v42, v40, {DBG}, 0 offen sc1
    """)
    A.label("W2L_NG")
    for g in range(8):
        if g == 6: A("s_waitcnt vmcnt(54)")
        for j in range(4):
            A(f"buffer_load_dwordx4 v{vVO+4*g+j}, s[12:15], {sVOFS} offen offset:{1024*j} lds")
            if j == 3: A("s_add_u32 m0, m0, 4096")
            if j == 3 and g < 7: A("s_nop 0")
    A(f"""
    s_cmp_ge_u32 m0, {RING}
    s_cselect_b32 m0, 0, m0
    s_cmp_lg_u32 {sC}, 1
    s_cbranch_scc1 W2L_NT
    """)
    cst(A, opt, 0, 50)
    A("s_barrier")
    cst(A, opt, 0, 51)
    A(f"s_setprio {opt.get('lpr', 3)}")
    A.label("W2L_NT")
    cst(A, opt, sC, 31)
    A(f"""
    s_waitcnt vmcnt(32)
    s_cmp_lg_u32 {sC}, {GPC}
    s_cbranch_scc1 W2L_G_X
    """)
    poll_check(A, "v42", 0, "W2L_GS")
    A.label("W2L_G_X")
    cst(A, opt, sC, 15)
    A("s_barrier")
    cst(A, opt, sC, -1)
    A(f"""
    s_add_u32 {sC}, {sC}, 1
    s_cmp_lt_u32 {sC}, {12 - (1 if LP else 0)}
    s_cbranch_scc1 W2L_LOOP
    """)
    if LP:
        A(f"s_add_u32 {sVOFS}, {sVOFS}, 393216")
        for g in range(8):
            if g == 6: A("s_waitcnt vmcnt(54)")
            for j in range(4):
                A(f"buffer_load_dwordx4 v{vVO+4*g+j}, s[12:15], {sVOFS} offen offset:{1024*j} lds")
                if j == 3: A("s_add_u32 m0, m0, 4096")
                if (4 * g + j + 1) % LG == 0 and 4 * g + j < 31:
                    n = LP
                    while n > 0:
                        A(f"s_nop {min(n, 16) - 1}"); n -= 16
                elif j == 3 and g < 7: A("s_nop 0")
        cst(A, opt, sC, 31)
        A("s_waitcnt vmcnt(32)")
        cst(A, opt, sC, 15)
        A("s_barrier")
        cst(A, opt, sC, -1)
    A(f"""
    s_setprio 0
    s_waitcnt vmcnt(0)
    s_barrier
    s_barrier
    """)
    cst_out(A, opt)
    A("s_branch P2_MM")
    A.label("W2L_GS")
    A(f"s_mov_b32 s7, {POLL_MAX}")
    A.label("W2L_G")
    A(f"""
    s_sub_u32 s7, s7, 1
    s_cbranch_scc1 W2L_G_X
    buffer_load_dword v42, v40, {DBG}, 0 offen sc1
    s_waitcnt vmcnt(0)
    """)
    poll_check(A, "v42", 0, "W2L_G")
    A("s_branch W2L_G_X")
    A.label("W2_DEQ")
    sB = "s38"
    sQOFS = "s43"
    vQO = 6
    vAW = 14
    vTB = 22
    U_ = 24
    Ft = 40
    O = 48
    vQ = 52
    QS = 32
    vAP = 116
    vP = 124
    vPL, vPA = 156, 157
    sCS, sPK, sQF = "s39", "s45", "s46"
    A(f"""
    s_mov_b32 {sB}, s4
    s_add_u32 s4, s42, {sB}
    s_cmp_ge_u32 s4, 40
    s_cbranch_scc1 W2D_IDLE
    s_mul_i32 {sQOFS}, s4, {16*6144}
    """)
    if SH:
        A(f"""
        s_mul_i32 {sPK}, s4, {12*4096}
        s_add_u32 {sPK}, {sPK}, {SA + 2*4096}
        """)
    A(f"""
    s_lshr_b32 s6, s4, 1
    s_lshr_b32 s5, s42, 1
    s_sub_u32 s6, s6, s5
    s_mul_i32 s6, s6, 6144
    s_add_u32 s6, s6, {TBL}
    s_mov_b32 s10, {QW_BYTES}
    v_lshrrev_b32 v2, 5, v1
    v_and_b32 v3, 31, v1
    v_lshlrev_b32 v4, 4, v3
    v_mul_u32_u24 v{vQO}, 0x1800, v2
    v_add_u32 v{vQO}, v{vQO}, v4
    v_add_u32 v{vTB}, s6, v4
    """)
    QR = opt.get("qr", 3)
    A(f"s_mul_i32 s57, s57, {QR}")
    for i in range(7, -1, -1):
        A(f"""
        s_add_u32 s4, s57, {i}
        s_and_b32 s4, s4, 7
        s_mul_i32 s4, s4, 12288
        v_add_u32 v{vQO+i}, s4, v{vQO}
        """)
    A("s_waitcnt lgkmcnt(0)")
    stamp(A, opt, 1)
    cst(A, opt, 0, 49)

    def t_read(n):
        u = U_ + 8 * (n & 1)
        A(f"""
        ds_read_b128 {vr(u,4)}, v{vTB}
        ds_read_b128 {vr(u+4,4)}, v{vTB} offset:12288
        v_add_u32 v{vTB}, 512, v{vTB}
        """)

    for u in range(NQ):
        for i in range(8):
            A(f"buffer_load_dwordx4 {vr(vQ+QS*u+4*i,4)}, v{vQO+i}, s[8:11], {sQOFS} offen offset:{512*u}")
    A(f"""
    s_add_u32 {sQOFS}, {sQOFS}, 512
    s_lshl_b32 s4, {sB}, 12
    s_add_u32 s4, s4, {ABASE}
    v_bfe_u32 v3, v1, 1, 4
    v_xor_b32 v4, v3, v2
    v_lshlrev_b32 v4, 4, v4
    v_lshl_add_u32 v4, v2, 8, v4
    v_and_b32 v3, 1, v1
    v_lshl_add_u32 v4, v3, 3, v4
    v_add_u32 v{vAW}, s4, v4
    """)
    if SH:
        for i in range(8):
            A(f"""
            v_xor_b32 v3, {32*i}, v{vAW}
            v_add_u32 v{vAP+i}, {512*i}, v3
            """)
        A(f"""
        s_mul_i32 {sQF}, {sMI}, 12
        s_add_u32 {sQF}, {sQF}, {sNI}
        s_lshl_b32 {sQF}, {sQF}, 2
        s_add_u32 {sQF}, {sQF}, {sB}
        s_lshl_b32 {sQF}, {sQF}, 6
        s_add_u32 {sQF}, {sQF}, {SFLG}
        s_movk_i32 {sCS}, 100
        v_max_u32 v{vPA}, {SH}, v1
        v_min_u32 v{vPA}, 11, v{vPA}
        v_lshlrev_b32 v{vPA}, 2, v{vPA}
        v_mov_b32 v{vPL}, 0
        """)
    for i in range(7, -1, -1):
        A(f"""
        s_add_u32 s4, s57, {i}
        s_and_b32 s4, s4, 7
        s_lshl_b32 s5, s4, 5
        s_lshl_b32 s4, s4, 9
        v_xor_b32 v3, s5, v{vAW}
        v_add_u32 v{vAW+i}, s4, v3
        """)
    A(f"s_mov_b32 {sC}, 0")
    cst(A, opt, 0, 50)
    if opt.get("cst"):
        A("s_waitcnt vmcnt(8)")
        cst(A, opt, 0, 52)
    A("s_barrier")
    cst(A, opt, 0, 51)
    A(f"s_setprio {opt.get('dpr', 3)}")
    t_read(0)
    A("s_waitcnt lgkmcnt(0)")
    UN = 2

    def sload(n, sofs):
        for j in range(4):
            A(f"buffer_load_dwordx4 {vr(vP+16*n+4*j,4)}, v5, s[24:27], {sofs} offen offset:{1024*j} sc1")

    A.label("W2D_LOOP")
    for n in range(UN):
        u = n % NQ
        q = vQ + QS * u
        S = U_ + 8 * (n & 1)
        if SH:
            A(f"""
            s_add_u32 s5, {sC}, {n}
            s_lshl_b32 s47, s5, 12
            s_add_u32 s47, s47, {sPK}
            s_cmp_ge_u32 s5, {sCS}
            s_cbranch_scc1 W2D_PK{n}
            """)
        t_read(n + 1)
        A(f"s_add_u32 {sQOFS}, {sQOFS}, 512")
        if SH:
            A(f"""
            s_add_u32 s6, s5, 1
            s_min_u32 s7, {sCS}, 12
            s_cmp_lt_u32 s6, s7
            s_waitcnt vmcnt(8)
            s_cbranch_scc1 W2D_NT{n}
            s_cmp_lt_u32 s6, 12
            s_waitcnt vmcnt(4)
            s_cbranch_scc1 W2D_NT{n}
            s_waitcnt vmcnt(0)
            """)
            A.label(f"W2D_NT{n}")
            A(f"""
            s_add_u32 s6, s5, 2
            s_cmp_lt_u32 {sCS}, 100
            s_cbranch_scc1 W2D_E{n}
            v_cmp_ne_u32 vcc, 0, v{vPL}
            s_max_u32 s7, s6, {SH}
            s_cmp_eq_u64 vcc, -1
            s_cselect_b32 {sCS}, s7, {sCS}
            s_cbranch_scc1 W2D_E{n}
            s_cmp_lt_u32 s5, {max(GPC, opt.get("sp0", 0))}
            s_cbranch_scc1 W2D_E{n}
            buffer_load_dword v{vPL}, v{vPA}, s[24:27], {sQF} offen sc1
            """)
            A.label(f"W2D_E{n}")
            A(f"""
            s_cmp_gt_u32 s6, 11
            s_cbranch_scc1 W2D_F{n}
            s_cmp_lt_u32 s6, {sCS}
            s_cbranch_scc1 W2D_F{n}
            """)
            sload(n, "s47")
            A.label(f"W2D_F{n}")
            A(f"""
            s_min_u32 s7, {sCS}, 12
            s_cmp_lt_u32 s6, s7
            """)
        else:
            A(f"""
            s_cmp_lt_u32 {sC}, {12-NQ-n+1}
            s_waitcnt vmcnt({8*(NQ-1)})
            s_cbranch_scc1 W2D_NT{n}
            s_waitcnt vmcnt({8*min(NQ-1, max(0, UN-1-n))})
            """)
            A.label(f"W2D_NT{n}")
            A(f"s_cmp_lt_u32 {sC}, {12-NQ-n}")
        for i in range(8):
            qq = q + 4 * i
            f = Ft + 4 * (i & 1)
            o = O + 2 * (i & 1)
            WL = opt.get("wl", 0)
            if WL: o = 160 + 2 * i
            A(f"""
            v_fma_f32 v{f}, v{qq}, v{S}, v{S+4}
            v_fma_f32 v{f+1}, v{qq+1}, v{S+1}, v{S+5}
            v_fma_f32 v{f+2}, v{qq+2}, v{S+2}, v{S+6}
            v_fma_f32 v{f+3}, v{qq+3}, v{S+3}, v{S+7}
            v_cvt_pk_bf16_f32 v{o}, v{f}, v{f+1}
            v_cvt_pk_bf16_f32 v{o+1}, v{f+2}, v{f+3}
            """)
            if i + 1 == WL:
                for ii in range(WL): A(f"ds_write_b64 v{vAW+ii}, {vr(160+2*ii,2)} offset:{ASTAGE*(n&1)}")
            elif i + 1 > WL:
                A(f"ds_write_b64 v{vAW+i}, {vr(o,2)} offset:{ASTAGE*(n&1)}")
            if (i + 1) % RG == 0:
                A(f"s_cbranch_scc0 W2D_SK{n}_{i}")
                for ii in range(i + 1 - RG, i + 1):
                    A(f"buffer_load_dwordx4 {vr(q+4*ii,4)}, v{vQO+ii}, s[8:11], {sQOFS} offen")
                A.label(f"W2D_SK{n}_{i}")
        A("s_waitcnt lgkmcnt(0)")
        if SH: A.label(f"W2D_J{n}")
        cst(A, opt, sC, 16 + n)
        A("s_barrier")
        cst(A, opt, sC, n)
    A(f"""
    s_add_u32 {sC}, {sC}, {UN}
    s_cmp_lt_u32 {sC}, 12
    s_cbranch_scc1 W2D_LOOP
    """)
    A("s_setprio 0")
    if SH and opt.get("stamp"): A(f"s_mov_b32 s90, {sCS}")
    A("s_barrier")
    cst_out(A, opt)
    A("s_branch P2_MM")
    if SH:
        for n in range(UN):
            A.label(f"W2D_PK{n}")
            A(f"""
            s_cmp_lt_u32 s5, 11
            s_waitcnt vmcnt(4)
            s_cbranch_scc1 W2D_PW{n}
            s_waitcnt vmcnt(0)
            """)
            A.label(f"W2D_PW{n}")
            for i in range(8):
                A(f"ds_write_b64 v{vAP+i}, {vr(vP+16*n+2*i,2)} offset:{ASTAGE*(n&1)}")
            A(f"""
            s_cmp_gt_u32 s5, 9
            s_waitcnt lgkmcnt(0)
            s_cbranch_scc1 W2D_J{n}
            """)
            sload(n, "s47")
            A(f"s_branch W2D_J{n}")
    A.label("W2D_IDLE")
    A(f"""
    s_mov_b32 {sC}, 0
    s_waitcnt lgkmcnt(0)
    """)
    A.label("W2D_IDL")
    A(f"""
    s_barrier
    s_add_u32 {sC}, {sC}, 1
    s_cmp_lt_u32 {sC}, 14
    s_cbranch_scc1 W2D_IDL
    s_branch P2_MM
    """)
    A.label("W2_MFMA")
    sCST = "s45"
    vAR = 10
    vBR = 14
    vT0, vT1 = 16, 17
    vST = 18
    vACC = 20
    vF = 44
    P = vF
    A(f"""
    s_lshl_b32 s4, {sW}, 13
    s_mov_b32 m0, s4
    s_mul_i32 s4, {sW}, {32*3072}
    s_add_u32 {sVOFS}, {sVOFS}, s4
    s_lshr_b32 s6, s42, 1
    s_mul_i32 s6, s6, 3072
    s_mov_b32 s18, {SC_BYTES}
    s_mov_b32 s19, 0x00020000
    s_mov_b32 s22, {SC_BYTES}
    s_mov_b32 s23, 0x00020000
    v_and_b32 v2, 0xff, v0
    v_lshlrev_b32 v19, 3, v2
    s_waitcnt lgkmcnt(0)
    """)
    stamp(A, opt, 1)
    cst(A, opt, 0, 49)
    for j in range(2):
        A(f"""
        buffer_load_dwordx2 {vr(P+4*j,2)}, v19, s[16:19], s6 offen offset:{2048*j}
        buffer_load_dwordx2 {vr(P+4*j+2,2)}, v19, s[20:23], s6 offen offset:{2048*j}
        """)
    A(f"""
    s_add_u32 s6, s6, 4096
    buffer_load_dwordx2 {vr(P+8,2)}, v19, s[16:19], s6 offen
    buffer_load_dwordx2 {vr(P+10,2)}, v19, s[20:23], s6 offen
    """)
    v_group()
    A(f"""
    s_add_u32 m0, m0, 4096
    s_add_u32 {sVOFS}, {sVOFS}, {16*3072}
    """)
    v_group()
    A(f"""
    v_lshlrev_b32 v19, 1, v19
    v_add_u32 v19, {TBL}, v19
    v_and_b32 v2, 15, v1
    v_lshrrev_b32 v3, 4, v1
    v_xor_b32 v4, v2, v3
    v_lshlrev_b32 v4, 4, v4
    v_lshl_add_u32 v4, v2, 8, v4
    v_add_u32 v{vAR}, {ABASE}, v4
    v_xor_b32 v{vAR+1}, 64, v{vAR}
    v_xor_b32 v{vAR+2}, 128, v{vAR}
    v_xor_b32 v{vAR+3}, 192, v{vAR}
    v_bfe_u32 v2, v1, 2, 2
    v_and_b32 v4, 1, v3
    v_lshl_or_b32 v4, v4, 2, v2
    s_lshl_b32 s5, {sW}, 1
    v_xor_b32 v4, s5, v4
    v_lshlrev_b32 v4, 5, v4
    v_lshl_add_u32 v2, v3, 3, v2
    v_lshl_add_u32 v4, v2, 8, v4
    v_and_b32 v2, 3, v1
    v_lshl_add_u32 v{vBR}, v2, 3, v4
    v_xor_b32 v{vBR+1}, 32, v{vBR}
    s_mov_b32 {sCST}, 0
    s_mov_b32 {sC}, 0
    s_lshl_b32 s4, {sNI}, 2
    s_add_u32 s4, s4, {sW}
    s_mul_i32 s5, s4, 40
    s_add_u32 s5, s5, s42
    s_lshl_b32 s5, s5, 10
    s_add_u32 s50, s5, {W2F}
    s_mul_i32 s5, s4, 171
    s_lshr_b32 s5, s5, 9
    s_mul_i32 s6, s5, 3
    s_sub_u32 s6, s4, s6
    s_mul_i32 s6, s6, 14
    s_add_u32 s6, s6, {sMI}
    s_lshl_b32 s6, s6, 2
    s_lshl_b32 s5, s5, 8
    s_add_u32 s5, s5, s6
    s_add_u32 s51, s5, {FLG}
    s_mov_b32 s53, 12
    s_mov_b32 s54, {hex((127+149-QE) << 23)}
    s_mov_b32 s55, {hex((127+149-QE) << 23)}
    s_mov_b32 s46, 0xffff0000
    s_mov_b32 s47, {hex((127+QE) << 23)}
    s_mov_b32 s48, {hex(0x80000000 | ((127+QE-149) << 23))}
    v_bfe_u32 v3, v1, 4, 1
    v_lshrrev_b32 v4, 5, v1
    v_and_b32 v{vST}, 15, v1
    v_lshl_add_u32 v{vST}, v3, 5, v{vST}
    v_lshl_add_u32 v{vST}, v4, 4, v{vST}
    v_lshlrev_b32 v{vST}, 4, v{vST}
    """)
    for i in range(0, 24, 2):
        A(f"v_mov_b64 {vr(vACC+i,2)}, 0")
    for i in range(0, 80, 2):
        A(f"v_mov_b64 {vr(vF+80+i,2)}, 0")
    for j in range(3):
        q = P + 4 * j
        u = P + 16 + 8 * j
        A(f"s_waitcnt vmcnt({8 + 4 - 2*j})")
        if j == 0: cst(A, opt, 0, 53)
        scale8(A, u, q, q + 2)
        A(f"""
        ds_write_b128 v19, {vr(u,4)} offset:{4096*j}
        ds_write_b128 v19, {vr(u+4,4)} offset:{4096*j+12288}
        """)
    A("s_waitcnt lgkmcnt(0)")
    cst(A, opt, 0, 50)
    A("s_barrier")
    cst(A, opt, 0, 51)
    A("s_waitcnt vmcnt(0)")
    cst(A, opt, 0, 52)

    def reads(s, buf):
        fa = vF + buf * 80 + 20 * s
        fb = fa + 12
        r = []
        for b in range(3):
            r.append(f"ds_read_b128 {vr(fa+4*b,4)}, v{vAR+s} offset:{4096*b + ASTAGE*buf}")
        for t in range(2):
            for u in range(2):
                r.append(f"ds_read_b64_tr_b16 {vr(fb+4*t+2*u,2)}, v{vT0+t} offset:{(32*s+4*u)*256}")
        return r

    def mfmas(s, buf):
        fa = vF + buf * 80 + 20 * s
        fb = fa + 12
        r = []
        for b in range(3):
            for t in range(2):
                acc = vACC + (b * 2 + t) * 4
                r.append(f"v_mfma_f32_16x16x32_bf16 {vr(acc,4)}, {vr(fa+4*b,4)}, {vr(fb+4*t,4)}, {vr(acc,4)}")
        return r

    A.label("W2M_LOOP")
    for buf in range(2):
        A(f"""
        v_add_u32 v{vT0}, {sCST}, v{vBR}
        v_add_u32 v{vT1}, {sCST}, v{vBR+1}
        s_add_u32 {sCST}, {sCST}, {VSTAGE}
        s_cmp_ge_u32 {sCST}, {RING}
        s_cselect_b32 {sCST}, 0, {sCST}
        """)
        cst(A, opt, sC, 16 + buf)
        A("s_barrier")
        cst(A, opt, sC, buf)
        rd = sum((reads(s, buf) for s in range(4)), [])
        mf = sum((mfmas(s, buf ^ 1) for s in range(4)), [])
        FR = opt.get("fr", 4)
        RP = opt.get("rp", 1)
        seq = rd[:FR]
        ri = FR
        for m in mf:
            seq.append(m)
            seq += rd[ri:ri + RP]
            ri += RP
        seq += rd[ri:]
        for x in seq: A(x)
        A("s_waitcnt lgkmcnt(0)")
        if (opt.get("stamp") or opt.get("probe") == 2) and buf == 0:
            A(f"""
            s_cmp_lg_u32 {sC}, 0
            s_cbranch_scc1 W2M_ST
            """)
            stamp(A, opt, 2, True)
            A.label("W2M_ST")
    A(f"""
    s_add_u32 {sC}, {sC}, 2
    s_cmp_lt_u32 {sC}, 12
    s_cbranch_scc1 W2M_LOOP
    s_setprio 3
    s_barrier
    """)
    for s_ in range(4):
        for m in mfmas(s_, 1): A(m)
    A("s_nop 7")
    stamp(A, opt, 3)
    for b in range(3):
        a = vACC + 8 * b
        o = vF + 4 * b
        for j in range(4):
            A(f"v_pk_mul_f32 {vr(a+2*j,2)}, {vr(a+2*j,2)}, s[54:55]")
        A(f"""
        v_cvt_pk_bf16_f32 v{o}, v{a}, v{a+1}
        v_cvt_pk_bf16_f32 v{o+1}, v{a+2}, v{a+3}
        v_cvt_pk_bf16_f32 v{o+2}, v{a+4}, v{a+5}
        v_cvt_pk_bf16_f32 v{o+3}, v{a+6}, v{a+7}
        s_nop 1
        v_permlane32_swap_b32 v{o}, v{o+2}
        v_permlane32_swap_b32 v{o+1}, v{o+3}
        buffer_store_dwordx4 {vr(o,4)}, v{vST}, s[24:27], s50 offen offset:{1024*b} sc1
        """)
        if b == 0:
            A(f"""
            s_cmp_eq_u32 {sMI}, 13
            s_cbranch_scc1 W2M_END
            """)
    A.label("W2M_END")
    cst_out(A, opt)
    A("s_branch P2_PUB")


def scale8(A, u, s, z):
    A(f"""
    v_lshlrev_b32 v{u}, 16, v{s}
    v_and_b32 v{u+1}, s46, v{s}
    v_lshlrev_b32 v{u+2}, 16, v{s+1}
    v_and_b32 v{u+3}, s46, v{s+1}
    v_lshlrev_b32 v{u+4}, 16, v{z}
    v_and_b32 v{u+5}, s46, v{z}
    v_lshlrev_b32 v{u+6}, 16, v{z+1}
    v_and_b32 v{u+7}, s46, v{z+1}
    """)
    for i in range(4): A(f"v_mul_f32 v{u+4+i}, s48, v{u+4+i}")
    for i in range(4): A(f"v_mul_f32 v{u+4+i}, v{u+i}, v{u+4+i}")
    for i in range(4): A(f"v_mul_f32 v{u+i}, s47, v{u+i}")


def wt_setup(A, opt, tag):
    TC = opt.get("wtc", 2)
    A(f"""
    s_sub_u32 s4, s2, 168
    s_cmp_ge_u32 s4, 48
    s_cbranch_scc1 WT_Q{tag}
    v_lshlrev_b32 v7, 7, v1
    s_lshl_b32 s46, s4, 13
    s_add_u32 s46, s46, {TC*393216}
    s_mov_b32 s47, 393216
    s_mov_b32 s8, s12
    s_mov_b32 s9, s13
    s_mov_b32 s10, {V_BYTES}
    s_branch WT_G{tag}
    """)
    A.label(f"WT_Q{tag}")
    A(f"""
    v_lshrrev_b32 v7, 2, v1
    v_mul_u32_u24 v7, 0x1800, v7
    v_and_b32 v3, 3, v1
    v_lshl_add_u32 v7, v3, 7, v7
    s_sub_u32 s4, s4, 48
    s_mul_i32 s46, s4, {16*6144}
    s_add_u32 s46, s46, {TC*512}
    s_movk_i32 s47, 512
    s_mov_b32 s10, {QW_BYTES}
    """)
    A.label(f"WT_G{tag}")


def wt(A, opt, i, tag):
    SH = opt.get("sh", 0)
    late = SH and i + opt.get("wtc", 2) >= SH
    if late:
        A(f"""
        s_cmpk_eq_u32 s47, 512
        s_cbranch_scc1 WT_S{tag}{i}
        """)
    A(f"""
    buffer_load_dword v{16+i}, v7, s[8:11], s46 offen
    s_add_u32 s46, s46, s47
    """)
    if late: A.label(f"WT_S{tag}{i}")


def gen_prod(A, opt):
    SH = opt["sh"]
    NU = 40 * (12 - SH)
    assert all((u * 205) >> 13 == u // 40 for u in range(320))
    A.label("PROD")
    A(f"""
    s_cmp_lt_u32 s59, {NU}
    s_cselect_b32 s61, 1, 0
    s_cselect_b32 s59, s59, s58
    s_mov_b32 s10, {QW_BYTES}
    s_mov_b32 s18, {SC_BYTES}
    s_mov_b32 s19, 0x00020000
    s_mov_b32 s22, {SC_BYTES}
    s_mov_b32 s23, 0x00020000
    v_lshrrev_b32 v6, 5, v1
    v_and_b32 v7, 31, v1
    v_mul_u32_u24 v6, 0x1800, v6
    v_lshl_add_u32 v6, v7, 4, v6
    v_lshlrev_b32 v7, 3, v7
    """)

    def issue(k):
        u = f"s{58+k}"
        st, fl = f"s{50+2*k}", f"s{51+2*k}"
        A(f"""
        s_mul_i32 s4, {u}, 205
        s_lshr_b32 s4, s4, 13
        s_mul_i32 s5, s4, 40
        s_sub_u32 s5, {u}, s5
        s_add_u32 s4, s4, {SH}
        s_lshr_b32 s6, s5, 1
        s_mul_i32 s6, s6, 3072
        s_lshl_b32 s7, s4, 8
        s_add_u32 s6, s6, s7
        s_mul_i32 s42, s5, {16*6144}
        s_lshl_b32 s7, s4, 9
        s_add_u32 s42, s42, s7
        buffer_load_dwordx2 {vr(8+4*k,2)}, v7, s[16:19], s6 offen
        buffer_load_dwordx2 {vr(10+4*k,2)}, v7, s[20:23], s6 offen
        """)
        for i in range(8):
            A(f"buffer_load_dwordx4 {vr(16+32*k+4*i,4)}, v6, s[8:11], s42 offen")
            if i < 7: A("s_add_u32 s42, s42, 12288")
        A(f"""
        s_mul_i32 {st}, s5, 12
        s_add_u32 {st}, {st}, s4
        s_lshl_b32 {st}, {st}, 12
        s_add_u32 {st}, {st}, {SA}
        s_mul_i32 s6, s5, 171
        s_lshr_b32 s6, s6, 9
        s_mul_i32 s7, s6, 3
        s_sub_u32 s7, s5, s7
        s_mul_i32 {fl}, s6, 3072
        s_lshl_b32 s7, s7, 6
        s_add_u32 {fl}, {fl}, s7
        s_lshl_b32 s7, s4, 2
        s_add_u32 {fl}, {fl}, s7
        s_add_u32 {fl}, {fl}, {SFLG}
        """)

    def bars(n, tag):
        if not n: return
        A(f"""
        s_cmp_eq_u32 s60, 0
        s_cbranch_scc1 PROD_B{tag}
        """)
        for _ in range(n): A("s_barrier")
        A.label(f"PROD_B{tag}")

    def compute(k, younger):
        A(f"s_waitcnt vmcnt({younger + 8})")
        scale8(A, 80, 8 + 4 * k, 10 + 4 * k)
        for i in range(8):
            q = 16 + 32 * k + 4 * i
            o = 96 + 16 * k + 2 * i
            A(f"s_waitcnt vmcnt({younger + 7 - i + i // 2})")
            for j in range(4):
                A(f"v_fma_f32 v{88+j}, v{q+j}, v{80+j}, v{84+j}")
            A(f"""
            v_cvt_pk_bf16_f32 v{o}, v88, v89
            v_cvt_pk_bf16_f32 v{o+1}, v90, v91
            """)
            if i & 1:
                A(f"buffer_store_dwordx4 {vr(o-2,4)}, v5, s[24:27], s{50+2*k} offen offset:{1024*(i//2)} sc1")

    issue(0)
    A("""
    s_cmp_lg_u32 s60, 0
    s_cbranch_scc1 PROD_1
    s_waitcnt vmcnt(10)
    """)
    gate_set(A, opt)
    A.label("PROD_1")
    issue(1)
    A(f"""
    s_mov_b32 s46, 0xffff0000
    s_mov_b32 s47, {hex((127+QE) << 23)}
    s_mov_b32 s48, {hex(0x80000000 | ((127+QE-149) << 23))}
    v_lshlrev_b32 v3, 8, v1
    v_mov_b32 v4, 1
    """)
    PB0, PB1 = opt.get("pb0", 0), opt.get("pb1", 2)
    bars(PB0, "0")
    compute(0, 10)
    A("""
    s_cmp_eq_u32 s61, 0
    s_cbranch_scc1 PROD_2
    """)
    compute(1, 4)
    A.label("PROD_2")
    stamp(A, opt, 4)
    bars(PB1, "1")
    poll(A, "PROD_G", DBG, "0", "v2", "v8", 0)
    A(f"""
    s_mov_b64 exec, 0xfff
    buffer_store_dword v4, v3, s[24:27], s51 offen sc1
    buffer_store_dword v4, v3, s[24:27], s53 offen sc1
    s_mov_b64 exec, -1
    """)
    stamp(A, opt, 2)
    A("""
    s_cmp_eq_u32 s60, 0
    s_cbranch_scc1 IDLE_T
    """)
    for _ in range(10 - PB0 - PB1): A("s_barrier")
    A("s_branch P2_MMX")


def gate_set(A, opt):
    A(f"""
    s_barrier
    s_cmp_lg_u32 s36, 0
    s_cbranch_scc1 IDLE_G1
    s_lshl_b32 s4, s37, 2
    v_mov_b32 v3, 0
    v_mov_b32 v4, 1
    s_mov_b64 exec, 1
    buffer_store_dword v4, v3, {DBG}, s4 offen sc1
    s_mov_b64 exec, -1
    """)
    A.label("IDLE_G1")


def gen_xr(A, opt):
    sW, sLOC, sXCD = "s36", "s3", "s37"
    sMT, sNT = "s40", "s41"
    sC = "s48"
    SH = opt.get("sh", 0)
    A(f"""
    s_sub_u32 s4, {sLOC}, 21
    s_cmp_ge_u32 s4, 5
    s_cselect_b32 s5, 1, 0
    s_cselect_b32 s6, 5, 0
    s_sub_u32 {sNT}, s4, s6
    s_lshl_b32 s7, {sXCD}, 1
    s_add_u32 {sMT}, s7, s5
    s_cmp_ge_u32 {sLOC}, 31
    s_cbranch_scc1 IDLE_WG
    s_cmp_lt_u32 {sW}, 4
    s_cbranch_scc1 XR_MFMA
    s_cmp_lt_u32 {sW}, 6
    s_cbranch_scc1 XR_LD
    """)
    gate_addr(A, "v2")
    if SH:
        A(f"""
        s_sub_u32 s58, s2, 168
        s_add_u32 s59, s58, 80
        s_mov_b32 s60, 1
        s_cmp_eq_u32 {sW}, 6
        s_waitcnt lgkmcnt(0)
        s_cbranch_scc1 PROD
        """)
    A(f"""
    v_lshlrev_b32 v6, 7, v1
    s_mul_i32 s4, {sMT}, 5
    s_add_u32 s4, s4, {sNT}
    s_lshl_b32 s5, s4, 15
    s_lshl_b32 s6, s4, 14
    s_mov_b32 s30, {X_BYTES}
    s_mov_b32 s31, 0x00020000
    s_mov_b32 s34, {U_BYTES}
    s_mov_b32 s35, 0x00020000
    s_waitcnt lgkmcnt(0)
    """)
    if opt.get("tx", 1):
        if not SH:
            A(f"""
            s_cmp_lg_u32 {sW}, 6
            s_cbranch_scc1 XR_TU
            """)
        for i in range(4):
            A(f"buffer_load_dword v{8+i}, v6, s[28:31], s5 offen")
            if i < 3: A("s_add_u32 s5, s5, 8192")
        if not SH:
            A("s_branch XR_TX")
            A.label("XR_TU")
        for i in range(2):
            A(f"buffer_load_dword v{12+i}, v6, s[32:35], s6 offen")
            if i < 1: A("s_add_u32 s6, s6, 8192")
        A.label("XR_TX")
    WT = opt.get("wt", 2)
    NT_ = 12 - opt.get("wtc", 2)
    if not SH:
        A(f"""
        s_cmp_lg_u32 {sW}, 7
        s_cbranch_scc1 XR_W6
        """)
    wt_setup(A, opt, "x")
    k = 0
    for b in range(10):
        for _ in range(WT if b == 0 else opt.get("wtn", 2)):
            if k < NT_:
                wt(A, opt, k, "x"); k += 1
        A("s_barrier")
    A("s_branch P2_MMX")
    if not SH:
        A.label("XR_W6")
        for i in range(5): A("s_barrier")
        poll(A, "XR_G", DBG, "0", "v2", "v3", 0)
        for i in range(5): A("s_barrier")
        A("s_branch P2_MMX")
    A.label("IDLE_WG")
    gate_addr(A, "v2")
    A(f"""
    v_mov_b32 v6, 0
    v_mov_b32 v7, 0
    v_mov_b32 v8, 0
    v_mov_b32 v9, 0
    s_lshl_b32 s58, {sXCD}, 3
    s_add_u32 s58, s58, {sW}
    s_mul_i32 s4, s58, 3072
    s_add_u32 s4, s4, {FLG}
    s_waitcnt lgkmcnt(0)
    """)
    for i in range(3):
        A(f"buffer_store_dwordx4 v[6:9], v5, s[24:27], s4 offen offset:{1024*i} sc1")
    if SH:
        A(f"""
        s_add_u32 s59, s58, 224
        s_add_u32 s58, s58, 160
        s_min_u32 s58, s58, {40 * (12 - SH) - 1}
        s_mov_b32 s60, 0
        """)
        gen_prod(A, opt)
    else:
        A("s_waitcnt vmcnt(0)")
        gate_set(A, opt)
    A.label("IDLE_T")
    A(f"""
    s_cmp_lg_u32 {sW}, 7
    s_cbranch_scc1 IDLE_NT
    """)
    wt_setup(A, opt, "i")
    for k in range(SH - opt.get("wtc", 2) if SH else NT_):
        wt(A, opt, k, "i")
        if k >= WT - 1 and k < NT_ - 1 and not SH: A("s_sleep 12")
    A.label("IDLE_NT")
    if not SH:
        A(f"""
        s_cmp_lg_u32 {sW}, 0
        s_cbranch_scc1 IDLE_G_X
        """)
        poll(A, "IDLE_G", DBG, "0", "v2", "v3", 0, sleep=8)
    A("s_barrier")
    A(f"""
    s_cmp_lt_u32 {sW}, 4
    s_cbranch_scc1 P2_LD
    s_branch P2_MMI
    """)
    A.label("XR_LD")
    sOFS, sGRP, sCH = "s43", "s45", "s46"
    vO = 6
    A(f"""
    v_lshrrev_b32 v3, 4, v1
    s_cmp_eq_u32 {sW}, 4
    s_cbranch_scc0 XRL_U
    v_lshrrev_b32 v2, 3, v1
    v_and_b32 v4, 7, v1
    v_xor_b32 v4, v4, v3
    v_lshlrev_b32 v4, 4, v4
    v_mul_u32_u24 v{vO}, 0x500, v2
    v_add_u32 v{vO}, v{vO}, v4
    v_xor_b32 v4, 64, v{vO}
    v_add_u32 v{vO+1}, 9216, v4
    v_add_u32 v{vO+2}, {2*9216}, v{vO}
    v_add_u32 v{vO+3}, {3*9216}, v4
    s_mul_i32 {sOFS}, {sMT}, {128*1280}
    s_mov_b32 {sGRP}, {32*1280}
    s_mov_b32 {sCH}, {128 - 128*1280 + (1<<32)}
    s_movk_i32 s47, 128
    s_mov_b32 m0, 0
    s_mov_b32 s30, {X_BYTES}
    s_waitcnt lgkmcnt(0)
    s_branch XRL_GO
    """)
    A.label("XRL_U")
    A(f"""
    v_and_b32 v4, 15, v1
    v_lshlrev_b32 v2, 2, v3
    v_xor_b32 v4, v4, v2
    v_lshlrev_b32 v4, 4, v4
    v_mul_u32_u24 v{vO}, 0x500, v3
    v_add_u32 v{vO}, v{vO}, v4
    v_add_u32 v{vO+1}, {4*1280-1024}, v{vO}
    v_add_u32 v{vO+2}, {2*(4*1280-1024)}, v{vO}
    v_add_u32 v{vO+3}, {3*(4*1280-1024)}, v{vO}
    s_lshl_b32 {sOFS}, {sNT}, 8
    s_mov_b32 {sGRP}, {16*1280}
    s_mov_b32 {sCH}, 0
    s_mov_b32 s47, {64*1280}
    s_movk_i32 m0, 16384
    s_mov_b32 s30, {U_BYTES}
    s_waitcnt lgkmcnt(0)
    s_mov_b32 s28, s32
    s_mov_b32 s29, s33
    """)
    A.label("XRL_GO")
    A(f"""
    s_mov_b32 s31, 0x00020000
    s_mov_b32 {sC}, 0
    """)
    XRO = opt.get("xra", 0) or opt.get("xrb", 0)
    if XRO:
        A(f"""
        s_mul_i32 s49, {sNT}, {opt.get("xra", 0)}
        s_and_b32 s4, {sMT}, 1
        s_mul_i32 s4, s4, {opt.get("xrb", 0)}
        s_add_u32 s49, s49, s4
        s_mul_i32 s4, s49, 205
        s_lshr_b32 s4, s4, 11
        s_mul_i32 s4, s4, 10
        s_sub_u32 s49, s49, s4
        s_mul_i32 s4, s49, s47
        s_add_u32 {sOFS}, {sOFS}, s4
        s_mul_i32 s47, s47, 10
        s_sub_u32 s49, 10, s49
        """)
    A.label("XRL_LOOP")
    for g in range(4):
        for j in range(4):
            A(f"buffer_load_dwordx4 v{vO+j}, s[28:31], {sOFS} offen offset:{1024*j} lds")
        A(f"""
        s_add_u32 m0, m0, 4096
        s_add_u32 {sOFS}, {sOFS}, {sGRP}
        """)
    A(f"""
    s_add_u32 {sOFS}, {sOFS}, {sCH}
    s_add_u32 m0, m0, 16384
    s_and_b32 m0, m0, {4*XSTAGE-1}
    s_add_u32 {sC}, {sC}, 1
    """)
    if XRO:
        A(f"""
        s_cmp_eq_u32 {sC}, s49
        s_cselect_b32 s4, s47, 0
        s_sub_u32 {sOFS}, {sOFS}, s4
        """)
    A(f"""
    s_and_b32 s4, {sC}, 13
    s_cmp_eq_u32 s4, 1
    s_cbranch_scc1 XRL_LOOP
    s_cmp_eq_u32 {sC}, 2
    s_cbranch_scc0 XRL_W
    s_waitcnt vmcnt(16)
    """)
    A.label("XRL_W")
    A(f"""
    s_waitcnt vmcnt(32)
    s_barrier
    s_cmp_lt_u32 {sC}, 10
    s_cbranch_scc1 XRL_LOOP
    s_waitcnt vmcnt(16)
    s_barrier
    s_waitcnt vmcnt(0)
    s_barrier
    s_branch P2_MMX
    """)
    A.label("XR_MFMA")
    sCST = "s43"
    vXR = 6
    vUR = 10
    vT = 12
    vACC = 20
    vF = 84
    A(f"""
    s_lshr_b32 s4, {sW}, 1
    s_and_b32 s5, {sW}, 1
    s_lshl_b32 s6, s4, 13
    v_and_b32 v3, 31, v1
    v_bfe_u32 v4, v1, 1, 3
    v_lshrrev_b32 v{vT}, 5, v1
    v_xor_b32 v4, v4, v{vT}
    v_lshlrev_b32 v4, 4, v4
    v_lshl_add_u32 v4, v3, 7, v4
    v_add_u32 v{vXR}, s6, v4
    v_xor_b32 v{vXR+1}, 32, v{vXR}
    v_xor_b32 v{vXR+2}, 64, v{vXR}
    v_xor_b32 v{vXR+3}, 96, v{vXR}
    v_bfe_u32 v2, v1, 4, 1
    v_bfe_u32 v3, v1, 2, 2
    s_lshl_b32 s6, s5, 1
    v_xor_b32 v4, s6, v3
    v_lshlrev_b32 v4, 6, v4
    v_lshl_add_u32 v4, v3, 8, v4
    v_lshl_add_u32 v4, v{vT}, 11, v4
    v_lshl_add_u32 v4, v2, 5, v4
    v_and_b32 v3, 3, v1
    v_lshl_add_u32 v4, v3, 3, v4
    v_add_u32 v{vUR}, 16384, v4
    v_xor_b32 v{vUR+1}, 64, v{vUR}
    s_mov_b32 {sCST}, 0
    s_mov_b32 {sC}, 0
    s_lshl_b32 s6, {sMT}, 1
    s_add_u32 s6, s6, s4
    s_lshl_b32 s7, {sNT}, 1
    s_add_u32 s7, s7, s5
    s_mul_i32 s51, s4, 10
    s_add_u32 s51, s51, s7
    s_lshl_b32 s51, s51, 2
    s_lshl_b32 s52, {sMT}, 11
    s_add_u32 s51, s51, s52
    s_add_u32 s51, s51, {XFLG}
    s_mov_b32 s53, 7
    s_mul_i32 s6, s6, 80
    s_lshl_b32 s7, s7, 2
    s_add_u32 s6, s6, s7
    s_lshl_b32 s50, s6, 10
    s_add_u32 s52, s50, 40960
    """)
    for i in range(0, 64, 2):
        A(f"v_mov_b64 {vr(vACC+i,2)}, 0")
    for i in range(0, 64, 2):
        A(f"v_mov_b64 {vr(vF+64+i,2)}, 0")
    A("s_waitcnt lgkmcnt(0)")

    def reads(s, buf):
        f = vF + 64 * buf + 16 * s
        r = []
        for tn in range(2):
            r.append(f"ds_read_b128 {vr(f+8+4*tn,4)}, v{vT+s} offset:{4096*tn}")
            for u in range(2):
                r.append(f"ds_read_b64_tr_b16 {vr(f+4*tn+2*u,2)}, v{vT+4+tn} offset:{s*4096+u*1024}")
        return r

    def mfmas(s, buf):
        f = vF + 64 * buf + 16 * s
        r = []
        for tm in range(2):
            for tn in range(2):
                acc = vACC + 32 * tm + 16 * tn
                r.append(f"v_mfma_f32_32x32x16_bf16 {vr(acc,16)}, {vr(f+4*tn,4)}, {vr(f+8+4*tm,4)}, {vr(acc,16)}")
        return r

    A.label("XR_LOOP")
    for buf in range(2):
        for i in range(4):
            A(f"v_add_u32 v{vT+i}, {sCST}, v{vXR+i}")
        for i in range(2):
            A(f"v_add_u32 v{vT+4+i}, {sCST}, v{vUR+i}")
        A(f"""
        s_add_u32 {sCST}, {sCST}, {XSTAGE}
        s_and_b32 {sCST}, {sCST}, {4*XSTAGE-1}
        s_barrier
        """)
        rd = sum((reads(s_, buf) for s_ in range(4)), [])
        mf = sum((mfmas(s_, buf ^ 1) for s_ in range(4)), [])
        ri = 0
        for m in mf:
            A(m)
            for x in rd[ri:ri + 2]: A(x)
            ri += 2
        for x in rd[ri:]: A(x)
        A("s_waitcnt lgkmcnt(0)")
    A(f"""
    s_add_u32 {sC}, {sC}, 2
    s_cmp_lt_u32 {sC}, 10
    s_cbranch_scc1 XR_LOOP
    s_barrier
    """)
    for s_ in range(4):
        for m in mfmas(s_, 1): A(m)
    A("s_nop 15")
    stamp(A, opt, 3)
    for tm in range(2):
        for i in range(4):
            a = vACC + 32 * tm + 8 * i
            o = vF + 16 * tm + 4 * i
            for j in range(4):
                A(f"v_cvt_pk_bf16_f32 v{o+j}, v{a+2*j}, v{a+2*j+1}")
            A(f"buffer_store_dwordx4 {vr(o,4)}, v5, s[24:27], s{50+2*tm} offen offset:{1024*i} sc1")


VX = 96


def xload(A, opt, kb):
    A(f"buffer_load_dwordx4 {vr(VX+4*kb,4)}, v5, s[24:27], s20 offen offset:{1024 * (kb & 3)} sc1")
    if kb & 3 == 3 and kb < 39:
        A("s_add_u32 s20, s20, 4096")


def p2_rot(A, opt):
    lm = MAP["m"]
    A(f"""
    s_and_b32 s17, s3, {(1 << lm) - 1}
    s_mul_i32 s17, s17, 0
    s_lshr_b32 s16, s3, {lm}
    s_mul_i32 s16, s16, 0
    s_add_u32 s17, s17, s16
    s_mul_i32 s16, s17, 205
    s_lshr_b32 s16, s16, 11
    s_mul_i32 s16, s16, 10
    s_sub_u32 s17, s17, s16
    s_lshl_b32 s17, s17, 12
    """)


def gen_p2(A, opt):
    NA = opt.get("na", 2)
    OLD = opt.get("old", 0)
    order = [(n, kb) for kb in range(40) for n in range(NA)] + [(n, kb) for n in range(NA, 3) for kb in range(40)]
    groups = []
    for n, kb in order:
        if (n, kb // 4) not in groups: groups.append((n, kb // 4))
    CH = {1: [2, 2, 4, 4, 4, 4, 10], 2: [2, 2, 2, 2, 4, 4, 4, 5, 5], 3: [2, 4, 6, 8, 10], 4: [3, 3, 6, 6, 6, 6],
          5: [1, 1, 2, 2, 4, 10, 10]}[opt.get("ch", 1)]
    assert sum(CH) == 30
    st = [sum(CH[:i]) for i in range(len(CH) + 1)]
    A.label("P2_PUB")
    publish(A, opt, "s51", "s53")
    A.label("P2_LD")
    p2_tile(A)
    if OLD: p2_rot(A, opt)
    A(f"""
    s_mul_i32 s22, s39, 122880
    s_add_u32 s22, s22, {W2F}
    s_lshl_b32 s21, s36, 10
    s_add_u32 s22, s22, s21
    """)
    if OLD: A("""
    s_add_u32 s20, s22, s17
    s_add_u32 s19, s22, 40960
    """)
    A(f"""
    v_lshlrev_b32 v2, 2, v1
    v_mov_b32 v4, {LFLAG}
    s_cmp_lg_u32 s36, 0
    s_cbranch_scc1 P2_LW0
    """)
    if OLD: A("""
    s_sub_u32 s4, s44, s45
    s_sub_u32 s4, s4, 168
    """)
    A("v_cmp_gt_u32 vcc, 42, v1")
    if OLD: A("v_add_u32 v3, s4, v2")
    A("""
    v_mov_b32 v3, 0
    v_cndmask_b32 v2, v3, v2, vcc
    """)
    poll(A, "P2_W", "s[24:27]", "s45", "v2", "v3", DC_W, sleep=opt.get("wsl", 16),
         st=(lambda: stamp(A, opt, 1)) if opt.get("pst") else None)

    def lds_wait(name, ofs, vd, va):
        A(f"s_branch {name}")
        A.label(name + "_S")
        A(f"s_sleep {opt.get('lsl', 1)}")
        A.label(name)
        A(f"""
        ds_read_b32 {vd}, {va} offset:{ofs}
        s_waitcnt lgkmcnt(0)
        """)
        poll_check(A, vd, 0, name + "_S")
    A(f"""
    v_mov_b32 v3, 1
    ds_write_b32 v4, v3 offset:4
    s_branch P2_GO
    """)
    A.label("P2_LW0")
    lds_wait("P2_LW", 4, "v3", "v4")
    A.label("P2_GO")
    stamp(A, opt, 5)
    AH = opt.get("ah", 3)

    def issue(c):
        for n, q in groups[st[c]:st[c + 1]]:
            off = (n * 40 + q * 4) * 1024
            A(f"""
            s_add_u32 s5, s22, {off}
            s_add_u32 m0, s21, {off}
            s_nop 0
            buffer_load_dwordx4 v5, s[24:27], s5 offen sc1 lds
            """)

    for c in range(min(AH, len(CH))): issue(c)
    for c in range(len(CH)):
        issued = min(len(CH), AH + c)
        A(f"s_waitcnt vmcnt({st[issued] - st[c+1]})")
        A("s_barrier")
        if AH + c < len(CH): issue(AH + c)
    stamp(A, opt, 6)
    A("s_branch K_EXIT")

    vACC = 8
    vF = 56
    NF = 8
    vO = 88
    A.label("P2_MMX")
    A("s_barrier")
    A.label("P2_MMI")
    A.label("P2_MM")
    if not opt.get("sh"): stamp(A, opt, 2)
    p2_tile(A)
    if OLD: p2_rot(A, opt)
    A(f"""
    s_lshl_b32 s4, s38, 2
    s_add_u32 s4, s4, s36
    s_sub_u32 s4, s4, 4
    """)
    if OLD:
        A("""
        s_mul_i32 s18, s4, 40960
        s_add_u32 s19, s18, 40960
        s_add_u32 s20, s18, s17
        """)
    else:
        A("s_mul_i32 s20, s4, 40960")
    A(f"""
    s_mul_i32 s4, s4, {32*3072}
    s_mul_i32 s5, s39, 192
    s_add_u32 s23, s4, s5
    s_add_u32 s22, s23, {16*3072}
    """)
    A("""
    v_bfe_u32 v2, v1, 2, 1
    v_bfe_u32 v4, v1, 3, 2
    v_and_b32 v3, 0x23, v1
    v_lshl_add_u32 v3, v2, 4, v3
    v_lshl_add_u32 v3, v4, 2, v3
    v_lshlrev_b32 v3, 4, v3
    v_and_b32 v6, 15, v1
    v_and_b32 v7, 48, v1
    v_mul_u32_u24 v6, 0xc00, v6
    v_add_u32 v6, v6, v7
    v_add_u32 v4, 61440, v3
    s_waitcnt vmcnt(0)
    """)
    A(f"""
    v_min_u32 v2, 19, v1
    v_lshlrev_b32 v2, 2, v2
    v_mov_b32 v8, {LFLAG}
    s_cmp_lg_u32 s36, 7
    s_cbranch_scc1 P2_XW
    """)
    poll(A, "P2_X", "s[24:27]", "s44", "v2", "v7", 0, sleep=opt.get("xsl", 16))
    if opt.get("xap"):
        A("""
        s_cmp_ge_u32 s3, 31
        s_cbranch_scc1 P2_XA_X
        """)
        A.label("P2_XA")
        A("""
        ds_read_b32 v7, v8 offset:8
        s_waitcnt lgkmcnt(0)
        v_readfirstlane_b32 s4, v7
        s_cmp_lt_u32 s4, 4
        s_cbranch_scc1 P2_XA
        """)
        A.label("P2_XA_X")
    A("""
    v_mov_b32 v7, 1
    ds_write_b32 v8, v7
    s_branch P2_XW_X
    """)
    A.label("P2_XW_S")
    A("s_sleep 2")
    A.label("P2_XW")
    A("""
    ds_read_b32 v7, v8
    s_waitcnt lgkmcnt(0)
    """)
    poll_check(A, "v7", 0, "P2_XW_S")
    A.label("P2_XW_X")
    stamp(A, opt, 1)
    for kb in range(40): xload(A, opt, kb)
    stamp(A, opt, 5, True)

    def epi(t, o=vO):
        a = vACC + 16 * t
        return [[f"v_cvt_pk_bf16_f32 v{o+j}, v{a+2*j}, v{a+2*j+1}" for j in range(4)],
                [f"v_cvt_pk_bf16_f32 v{o+j}, v{a+2*j}, v{a+2*j+1}" for j in range(4, 8)],
                ["s_nop 1"] + [f"v_permlane16_swap_b32 v{o+j}, v{o+4+j}" for j in range(4)],
                [f"buffer_store_dwordx4 {vr(o,4)}, v6, s[96:99], s23 offen offset:{64*t}",
                 f"buffer_store_dwordx4 {vr(o+4,4)}, v6, s[96:99], s22 offen offset:{64*t}"]]

    RA = opt.get("ra", 6)
    assert RA < NF
    seen = [0]

    def read(i):
        n, kb = order[i]
        g = groups.index((n, kb // 4))
        while st[seen[0]] <= g:
            A("s_barrier")
            seen[0] += 1
        off = (n * 40 + kb) * 1024
        base, o = ("v3", off) if off < 61440 else ("v4", off - 61440)
        A(f"ds_read_b128 {vr(vF+4*(i%NF),4)}, {base} offset:{o}")

    for i in range(RA): read(i)
    pending = []
    done = set()
    last = {n: max(i for i, x in enumerate(order) if x[0] == n) for n in range(3)}
    for i, (n, kb) in enumerate(order):
        if n == 0: A(f"s_waitcnt vmcnt({40 - kb - 1})")
        A(f"s_waitcnt lgkmcnt({min(120, i + RA) - i - 1})")
        acc = vACC + 16 * n
        c = "0" if kb == 0 else vr(acc, 16)
        A(f"v_mfma_f32_32x32x16_bf16 {vr(acc,16)}, {vr(vF+4*(i%NF),4)}, {vr(VX+4*kb,4)}, {c}")
        if i == 0 and opt.get("stamp"):
            stamp(A, opt, 3)
            A("s_memtime s[80:81]\ns_nop 7\ns_nop 7\ns_waitcnt lgkmcnt(0)")
        if i == 0 and opt.get("probe") == 3:
            stamp(A, opt, 3)
            A("s_nop 7\ns_nop 7\ns_waitcnt lgkmcnt(0)")
        if i + RA < 120: read(i + RA)
        for t in range(3):
            if i == last[t] + 3:
                pending += epi(t) + [[], [], [], []]
                done.add(t)
        if pending:
            for x in pending.pop(0): A(x)
    assert seen[0] == len(CH)
    A("s_nop 15")
    stamp(A, opt, 6)
    if opt.get("stamp"):
        A("s_memtime s[82:83]\ns_waitcnt lgkmcnt(0)\ns_sub_u32 s72, s82, s80")
        if opt.get("sh"): A("s_and_b32 s90, s90, 127\ns_lshl_b32 s90, s90, 24\ns_or_b32 s72, s72, s90")
    k = 0
    for t in range(3):
        if t in done: continue
        for x in sum(epi(t, vF + 8 * k), []): A(x)
        k += 1


def descriptor(name, vgpr, accum, sgpr):
    return f""".amdhsa_kernel {name}
  .amdhsa_next_free_vgpr {vgpr}
  .amdhsa_next_free_sgpr {sgpr}
  .amdhsa_accum_offset {accum}
  .amdhsa_group_segment_fixed_size 0
  .amdhsa_kernarg_size 72
  .amdhsa_user_sgpr_count 2
  .amdhsa_user_sgpr_kernarg_segment_ptr 1
  .amdhsa_system_sgpr_workgroup_id_x 1
  .amdhsa_float_denorm_mode_32 3
.end_amdhsa_kernel
"""


def generate(opt):
    out = HEADER
    MAP["m"] = opt.get("map", 2)
    out += f"; @launch grid=(256,1,1) block=(512,1,1) lds={LDS1 + 1024}\n"
    out += '.amdgcn_target "amdgcn-amd-amdhsa--gfx950"\n.text\n'
    A = Asm()
    out += f".globl {KNAME}\n.p2align 8\n.type {KNAME},@function\n"
    gen_kernel(A, opt)
    out += A.text()
    out += "CODE_END:\n"
    out += '.section .rodata,"a"\n.p2align 6\n'
    out += descriptor(KNAME, 256, 256, 100)
    return out


if __name__ == "__main__":
    path = sys.argv[1] if len(sys.argv) > 1 else "standalone__weight_only_int_quip__prompt.s"
    opt = {}
    for a in sys.argv[2:]:
        k, _, v = a.partition("=")
        opt[k] = int(v) if v else 1
    open(path, "w").write(generate(opt))
    print("wrote", path)
```

```python
import sys

KNAME = "standalone__weight_only_int_quip__prompt_kernel"
HEADER = """; Kernarg layout for this problem (72 bytes, ptrs only, base s[0:1]):
"""

XRF = 0
W2F = 64 * 40 * 1024
FLG = W2F + 48 * 40 * 1024
XFLG = FLG + 256 * 256
SFLG = XFLG + 256 * 128
FLG_END = FLG + 64 * 3 * 1024
SA = FLG_END
WS_USED = SA + 40 * 12 * 4096
assert SFLG + 168 * 256 <= FLG_END

X_BYTES = 2048 * 640 * 2
QW_BYTES = 640 * 1536 * 4
SC_BYTES = 20 * 1536 * 2
U_BYTES = 640 * 640 * 2
V_BYTES = 1536 * 1536 * 2
OUT_BYTES = 2048 * 1536 * 2

VSTAGE = 32768
ABASE = 3 * VSTAGE
ASTAGE = 12288
TBL = ABASE + 2 * ASTAGE
LDS1 = TBL + 24576
LFLAG = LDS1
QE = 112
XSTAGE = 32768
POLL_MAX = 40000


class Asm:
    def __init__(self):
        self.lines = []

    def __call__(self, s):
        for l in s.strip("\n").split("\n"):
            if not l.strip(): continue
            self.lines.append("    " + l.strip() if not l.strip().endswith(":") else l.strip())

    def label(self, s):
        self.lines.append(s + ":")

    def comment(self, s):
        self.lines.append("    ; " + s)

    def text(self):
        return "\n".join(self.lines) + "\n"


def vr(a, n):
    return f"v[{a}:{a+n-1}]"


STAMP_OFS = 32 << 20
NSTAMP = 8


def stamp(A, opt, i, wait=False):
    if opt.get("stamp") or ("probe" in opt and i in (0, opt["probe"])):
        A(f"s_memrealtime s[{64+2*i}:{65+2*i}]")
        if wait: A("s_waitcnt lgkmcnt(0)")


def stamp_begin(A, opt):
    if opt.get("stamp") or "probe" in opt:
        for i in range(1, NSTAMP):
            A(f"s_mov_b32 s{64+2*i}, 0")
        A("s_mov_b32 s90, 0")
    stamp(A, opt, 0)


def stamp_end(A, opt):
    if "probe" in opt:
        p = opt["probe"]
        wl, wh = opt.get("pwl", 0), opt.get("pwh", 7)
        gl, gh = opt.get("pgl", 0), opt.get("pgh", 255)
        A(f"""
        s_waitcnt vmcnt(0) lgkmcnt(0)
        s_memrealtime s[78:79]
        s_waitcnt lgkmcnt(0)
        s_cmp_gt_u32 s2, {gh}
        s_cbranch_scc1 PRB_X
        s_cmp_lt_u32 s2, {gl}
        s_cbranch_scc1 PRB_X
        s_cmp_lt_u32 s36, {wl}
        s_cbranch_scc1 PRB_X
        s_cmp_gt_u32 s36, {wh}
        s_cbranch_scc1 PRB_X
        s_cmp_eq_u32 s{64+2*p}, 0
        s_cbranch_scc1 PRB_X
        s_sub_u32 s4, s{64+2*p}, s64
        s_mul_i32 s4, s4, 3
        s_min_u32 s4, s4, 20000
        """)
        A.label("PRB")
        A("""
        s_memrealtime s[6:7]
        s_waitcnt lgkmcnt(0)
        s_sub_u32 s5, s6, s78
        s_cmp_lt_u32 s5, s4
        s_cbranch_scc1 PRB
        """)
        A.label("PRB_X")
    if opt.get("stamp"):
        A("s_waitcnt vmcnt(0) lgkmcnt(0)")
        stamp(A, opt, NSTAMP - 1)
        A(f"""
        s_load_dwordx2 s[56:57], s[0:1], 64
        s_waitcnt lgkmcnt(0)
        s_mov_b32 s58, 0x7fffffff
        s_mov_b32 s59, 0x00020000
        v_lshrrev_b32 v1, 6, v0
        v_lshlrev_b32 v1, 5, v1
        s_lshl_b32 s4, s2, 8
        s_add_u32 s4, s4, {STAMP_OFS}
        """)
        for i in range(NSTAMP):
            A(f"v_mov_b32 v{4+i}, s{64+2*i}")
        A("""
        buffer_store_dwordx4 v[4:7], v1, s[56:59], s4 offen
        buffer_store_dwordx4 v[8:11], v1, s[56:59], s4 offen offset:16
        """)
    A("s_endpgm")


def cst(A, opt, sidx, add):
    if not opt.get("cst"): return
    A(f"""
    s_memtime s[84:85]
    s_add_u32 s86, {sidx}, {add}
    v_cmp_eq_u32 vcc, s86, v1
    s_waitcnt lgkmcnt(0)
    v_mov_b32 v231, s84
    v_cndmask_b32 v230, v230, v231, vcc
    """)


def cst_out(A, opt):
    if not opt.get("cst"): return
    A(f"""
    v_writelane_b32 v230, s88, 48
    s_mov_b64 s[84:85], s[24:25]
    s_mov_b32 s86, 0x7fffffff
    s_mov_b32 s87, 0x00020000
    v_lshlrev_b32 v231, 2, v0
    s_lshl_b32 s4, s2, 11
    s_add_u32 s4, s4, {STAMP_OFS + (1 << 20)}
    buffer_store_dword v230, v231, s[84:87], s4 offen
    """)


def poll_check(A, vdst, dc, again):
    A(f"v_cmp_ne_u32 vcc, 0, {vdst}")
    if dc & 0xffffffff: A(f"s_or_b32 vcc_lo, vcc_lo, {hex(dc & 0xffffffff)}")
    if dc >> 32: A(f"s_or_b32 vcc_hi, vcc_hi, {hex(dc >> 32)}")
    A(f"""
    s_cmp_eq_u64 vcc, -1
    s_cbranch_scc0 {again}
    """)


def poll(A, name, srd, soff, vaddr, vdst, dc, scnt="s7", sleep=0, st=None):
    A(f"s_mov_b32 {scnt}, {POLL_MAX}")
    if sleep: A(f"s_branch {name}_1")
    A.label(name)
    if sleep:
        A(f"s_sleep {sleep}")
        A.label(name + "_1")
    A(f"""
    s_sub_u32 {scnt}, {scnt}, 1
    s_cbranch_scc1 {name}_X
    """)
    if st: st()
    A(f"""
    buffer_load_dword {vdst}, {vaddr}, {srd}, {soff} offen sc1
    s_waitcnt vmcnt(0)
    """)
    A.label(name + "_C")
    poll_check(A, vdst, dc, name)
    A.label(name + "_X")


DC_W = 0xFFFFFC0000000000
DBG = "s[92:95]"
MAP = {"m": 2}


def p2_tile(A):
    lm = MAP["m"]
    ln = 5 - lm
    xm = 4 - lm
    A(f"""
    s_and_b32 s38, s37, {(1 << xm) - 1}
    s_lshl_b32 s38, s38, {lm}
    s_and_b32 s39, s3, {(1 << lm) - 1}
    s_add_u32 s38, s38, s39
    s_lshr_b32 s39, s37, {xm}
    s_lshl_b32 s39, s39, {ln}
    s_lshr_b32 s4, s3, {lm}
    s_add_u32 s39, s39, s4
    s_lshl_b32 s45, s38, 4
    s_add_u32 s45, s45, s39
    s_lshl_b32 s44, s45, 7
    s_add_u32 s44, s44, {XFLG}
    s_lshl_b32 s45, s45, 8
    s_add_u32 s45, s45, {FLG}
    """)


def publish(A, opt, sflag, sshift):
    A(f"""
    v_mov_b32 v2, 1
    v_lshlrev_b32 v3, {sshift}, v1
    s_waitcnt vmcnt(0)
    s_mov_b64 exec, 0xffff
    buffer_store_dword v2, v3, s[24:27], {sflag} offen sc1
    """)
    if opt.get("xap"):
        A(f"""
        v_mov_b32 v3, {LFLAG}
        s_mov_b64 exec, 1
        ds_add_u32 v3, v2 offset:8
        """)
    A("s_mov_b64 exec, -1")
    stamp(A, opt, 4)


def gen_kernel(A, opt):
    A.label(KNAME)
    stamp_begin(A, opt)
    A("""
    s_load_dwordx2 s[8:9], s[0:1], 8
    s_load_dwordx2 s[12:13], s[0:1], 40
    s_load_dwordx2 s[16:17], s[0:1], 16
    s_load_dwordx2 s[20:21], s[0:1], 24
    s_load_dwordx2 s[28:29], s[0:1], 0
    s_load_dwordx2 s[32:33], s[0:1], 32
    s_load_dwordx2 s[24:25], s[0:1], 64
    s_load_dwordx2 s[92:93], s[0:1], 56
    s_load_dwordx2 s[96:97], s[0:1], 48
    s_cmp_ge_u32 s2, 256
    s_cbranch_scc1 K_EXIT
    v_and_b32 v1, 63, v0
    v_lshrrev_b32 v2, 6, v0
    s_getpc_b64 s[4:5]
    """)
    A.label("P1_PC")
    A(f"""
    v_readfirstlane_b32 s36, v2
    v_lshlrev_b32 v3, 7, v1
    v_add_u32 v4, 0x2000, v3
    v_min_u32 v4, CODE_END-P1_PC-4, v4
    s_lshr_b32 s3, s2, 3
    s_and_b32 s37, s2, 7
    s_cmp_lg_u32 s36, 7
    s_cbranch_scc1 P1_NOPF
    global_load_dword v250, v3, s[4:5]
    global_load_dword v251, v4, s[4:5]
    v_mov_b32 v2, 0
    v_mov_b32 v3, 0
    v_mov_b32 v4, {LFLAG}
    ds_write_b64 v4, v[2:3]
    """)
    A.label("P1_NOPF")
    A(f"""
    s_mov_b32 s11, 0x00020000
    s_mov_b32 s15, 0x00020000
    s_mov_b32 s27, 0x00020000
    s_mov_b32 s26, {WS_USED}
    s_movk_i32 s94, 256
    s_mov_b32 s95, 0x00020000
    s_mov_b32 s98, {OUT_BYTES}
    s_mov_b32 s99, 0x00020000
    v_lshlrev_b32 v5, 4, v1
    s_cmp_ge_u32 s3, 21
    s_cbranch_scc1 P1_XR
    """)
    gen_w2(A, opt)
    A.label("P1_XR")
    gen_xr(A, opt)
    gen_p2(A, opt)
    A.label("K_EXIT")
    stamp_end(A, opt)


def gate_addr(A, v):
    A(f"""
    v_and_b32 {v}, 7, v1
    v_lshlrev_b32 {v}, 2, {v}
    """)


def gen_w2(A, opt):
    NQ = 2
    SH = opt.get("sh", 0)
    RING = 3 * VSTAGE
    RG = opt.get("rg", 2)
    sW, sLOC, sXCD = "s36", "s3", "s37"
    sMI, sNI = "s40", "s41"
    sC = "s49"
    sVOFS = "s43"
    vVO = 6
    if opt.get("cst"): A("s_memtime s[88:89]")
    A(f"""
    s_mul_i32 s4, {sLOC}, 171
    s_lshr_b32 s4, s4, 9
    s_mul_i32 s5, s4, 3
    s_sub_u32 s5, {sLOC}, s5
    s_lshr_b32 s6, {sXCD}, 2
    s_mul_i32 s6, s6, 7
    s_add_u32 {sMI}, s6, s4
    s_and_b32 s6, {sXCD}, 3
    s_mul_i32 s6, s6, 3
    s_add_u32 {sNI}, s6, s5
    s_mul_i32 s42, {sMI}, 3
    s_mov_b32 s57, s5
    s_sub_u32 s4, {sW}, 4
    s_cmp_lt_u32 s4, 3
    s_cbranch_scc1 W2_DEQ
    s_mov_b32 s14, {V_BYTES}
    v_lshrrev_b32 v2, 4, v1
    v_and_b32 v3, 15, v1
    v_lshlrev_b32 v4, 1, v2
    v_xor_b32 v3, v3, v4
    v_lshlrev_b32 v3, 4, v3
    v_mul_u32_u24 v4, 0xc00, v2
    v_add_u32 v{vVO}, v3, v4
    v_add_u32 v{vVO+1}, 11264, v{vVO}
    v_xor_b32 v3, 0x80, v{vVO}
    v_add_u32 v{vVO+2}, {2*11264}, v3
    v_add_u32 v{vVO+3}, {3*11264}, v3
    s_lshl_b32 {sVOFS}, {sNI}, 8
    s_cmp_lt_u32 {sW}, 4
    s_cbranch_scc1 W2_MFMA
    """)

    def v_group():
        for j in range(4):
            A(f"buffer_load_dwordx4 v{vVO+j}, s[12:15], {sVOFS} offen offset:{1024*j} lds")

    GPC = opt.get("gpc", 2 if SH else 4)
    for g in range(1, 8):
        for j in range(4):
            A(f"v_add_u32 v{vVO+4*g+j}, {g*16*3072}, v{vVO+j}")
    gate_addr(A, "v40")
    LP, LG = opt.get("lp", 0), opt.get("lg", 1)
    A(f"""
    s_mov_b32 m0, {VSTAGE}
    s_mov_b32 {sC}, 1
    s_waitcnt lgkmcnt(0)
    """)
    stamp(A, opt, 1)
    cst(A, opt, 0, 49)
    A.label("W2L_LOOP")
    A(f"""
    s_add_u32 {sVOFS}, {sVOFS}, 393216
    s_cmp_lg_u32 {sC}, {GPC}
    s_cbranch_scc1 W2L_NG
    buffer_load_dword v42, v40, {DBG}, 0 offen sc1
    """)
    A.label("W2L_NG")
    for g in range(8):
        if g == 6: A("s_waitcnt vmcnt(54)")
        for j in range(4):
            A(f"buffer_load_dwordx4 v{vVO+4*g+j}, s[12:15], {sVOFS} offen offset:{1024*j} lds")
            if j == 3: A("s_add_u32 m0, m0, 4096")
            if j == 3 and g < 7: A("s_nop 0")
    A(f"""
    s_cmp_ge_u32 m0, {RING}
    s_cselect_b32 m0, 0, m0
    s_cmp_lg_u32 {sC}, 1
    s_cbranch_scc1 W2L_NT
    """)
    cst(A, opt, 0, 50)
    A("s_barrier")
    cst(A, opt, 0, 51)
    A(f"s_setprio {opt.get('lpr', 3)}")
    A.label("W2L_NT")
    cst(A, opt, sC, 31)
    A(f"""
    s_waitcnt vmcnt(32)
    s_cmp_lg_u32 {sC}, {GPC}
    s_cbranch_scc1 W2L_G_X
    """)
    poll_check(A, "v42", 0, "W2L_GS")
    A.label("W2L_G_X")
    cst(A, opt, sC, 15)
    A("s_barrier")
    cst(A, opt, sC, -1)
    A(f"""
    s_add_u32 {sC}, {sC}, 1
    s_cmp_lt_u32 {sC}, {12 - (1 if LP else 0)}
    s_cbranch_scc1 W2L_LOOP
    """)
    if LP:
        A(f"s_add_u32 {sVOFS}, {sVOFS}, 393216")
        for g in range(8):
            if g == 6: A("s_waitcnt vmcnt(54)")
            for j in range(4):
                A(f"buffer_load_dwordx4 v{vVO+4*g+j}, s[12:15], {sVOFS} offen offset:{1024*j} lds")
                if j == 3: A("s_add_u32 m0, m0, 4096")
                if (4 * g + j + 1) % LG == 0 and 4 * g + j < 31:
                    n = LP
                    while n > 0:
                        A(f"s_nop {min(n, 16) - 1}"); n -= 16
                elif j == 3 and g < 7: A("s_nop 0")
        cst(A, opt, sC, 31)
        A("s_waitcnt vmcnt(32)")
        cst(A, opt, sC, 15)
        A("s_barrier")
        cst(A, opt, sC, -1)
    A(f"""
    s_setprio 0
    s_waitcnt vmcnt(0)
    s_barrier
    s_barrier
    """)
    cst_out(A, opt)
    A("s_branch P2_MM")
    A.label("W2L_GS")
    A(f"s_mov_b32 s7, {POLL_MAX}")
    A.label("W2L_G")
    A(f"""
    s_sub_u32 s7, s7, 1
    s_cbranch_scc1 W2L_G_X
    buffer_load_dword v42, v40, {DBG}, 0 offen sc1
    s_waitcnt vmcnt(0)
    """)
    poll_check(A, "v42", 0, "W2L_G")
    A("s_branch W2L_G_X")
    A.label("W2_DEQ")
    sB = "s38"
    sQOFS = "s43"
    vQO = 6
    vAW = 14
    vTB = 22
    U_ = 24
    Ft = 40
    O = 48
    vQ = 52
    QS = 32
    vAP = 116
    vP = 124
    vPL, vPA = 156, 157
    sCS, sPK, sQF = "s39", "s45", "s46"
    A(f"""
    s_mov_b32 {sB}, s4
    s_add_u32 s4, s42, {sB}
    s_cmp_ge_u32 s4, 40
    s_cbranch_scc1 W2D_IDLE
    s_mul_i32 {sQOFS}, s4, {16*6144}
    """)
    if SH:
        A(f"""
        s_mul_i32 {sPK}, s4, {12*4096}
        s_add_u32 {sPK}, {sPK}, {SA + 2*4096}
        """)
    A(f"""
    s_lshr_b32 s6, s4, 1
    s_lshr_b32 s5, s42, 1
    s_sub_u32 s6, s6, s5
    s_mul_i32 s6, s6, 6144
    s_add_u32 s6, s6, {TBL}
    s_mov_b32 s10, {QW_BYTES}
    v_lshrrev_b32 v2, 5, v1
    v_and_b32 v3, 31, v1
    v_lshlrev_b32 v4, 4, v3
    v_mul_u32_u24 v{vQO}, 0x1800, v2
    v_add_u32 v{vQO}, v{vQO}, v4
    v_add_u32 v{vTB}, s6, v4
    """)
    QR = opt.get("qr", 3)
    A(f"s_mul_i32 s57, s57, {QR}")
    for i in range(7, -1, -1):
        A(f"""
        s_add_u32 s4, s57, {i}
        s_and_b32 s4, s4, 7
        s_mul_i32 s4, s4, 12288
        v_add_u32 v{vQO+i}, s4, v{vQO}
        """)
    A("s_waitcnt lgkmcnt(0)")
    stamp(A, opt, 1)
    cst(A, opt, 0, 49)

    def t_read(n):
        u = U_ + 8 * (n & 1)
        A(f"""
        ds_read_b128 {vr(u,4)}, v{vTB}
        ds_read_b128 {vr(u+4,4)}, v{vTB} offset:12288
        v_add_u32 v{vTB}, 512, v{vTB}
        """)

    for u in range(NQ):
        for i in range(8):
            A(f"buffer_load_dwordx4 {vr(vQ+QS*u+4*i,4)}, v{vQO+i}, s[8:11], {sQOFS} offen offset:{512*u}")
    A(f"""
    s_add_u32 {sQOFS}, {sQOFS}, 512
    s_lshl_b32 s4, {sB}, 12
    s_add_u32 s4, s4, {ABASE}
    v_bfe_u32 v3, v1, 1, 4
    v_xor_b32 v4, v3, v2
    v_lshlrev_b32 v4, 4, v4
    v_lshl_add_u32 v4, v2, 8, v4
    v_and_b32 v3, 1, v1
    v_lshl_add_u32 v4, v3, 3, v4
    v_add_u32 v{vAW}, s4, v4
    """)
    if SH:
        for i in range(8):
            A(f"""
            v_xor_b32 v3, {32*i}, v{vAW}
            v_add_u32 v{vAP+i}, {512*i}, v3
            """)
        A(f"""
        s_mul_i32 {sQF}, {sMI}, 12
        s_add_u32 {sQF}, {sQF}, {sNI}
        s_lshl_b32 {sQF}, {sQF}, 2
        s_add_u32 {sQF}, {sQF}, {sB}
        s_lshl_b32 {sQF}, {sQF}, 6
        s_add_u32 {sQF}, {sQF}, {SFLG}
        s_movk_i32 {sCS}, 100
        v_max_u32 v{vPA}, {SH}, v1
        v_min_u32 v{vPA}, 11, v{vPA}
        v_lshlrev_b32 v{vPA}, 2, v{vPA}
        v_mov_b32 v{vPL}, 0
        """)
    for i in range(7, -1, -1):
        A(f"""
        s_add_u32 s4, s57, {i}
        s_and_b32 s4, s4, 7
        s_lshl_b32 s5, s4, 5
        s_lshl_b32 s4, s4, 9
        v_xor_b32 v3, s5, v{vAW}
        v_add_u32 v{vAW+i}, s4, v3
        """)
    A(f"s_mov_b32 {sC}, 0")
    cst(A, opt, 0, 50)
    if opt.get("cst"):
        A("s_waitcnt vmcnt(8)")
        cst(A, opt, 0, 52)
    A("s_barrier")
    cst(A, opt, 0, 51)
    A(f"s_setprio {opt.get('dpr', 3)}")
    t_read(0)
    A("s_waitcnt lgkmcnt(0)")
    UN = 2

    def sload(n, sofs):
        for j in range(4):
            A(f"buffer_load_dwordx4 {vr(vP+16*n+4*j,4)}, v5, s[24:27], {sofs} offen offset:{1024*j} sc1")

    A.label("W2D_LOOP")
    for n in range(UN):
        u = n % NQ
        q = vQ + QS * u
        S = U_ + 8 * (n & 1)
        if SH:
            A(f"""
            s_add_u32 s5, {sC}, {n}
            s_lshl_b32 s47, s5, 12
            s_add_u32 s47, s47, {sPK}
            s_cmp_ge_u32 s5, {sCS}
            s_cbranch_scc1 W2D_PK{n}
            """)
        t_read(n + 1)
        A(f"s_add_u32 {sQOFS}, {sQOFS}, 512")
        if SH:
            A(f"""
            s_add_u32 s6, s5, 1
            s_min_u32 s7, {sCS}, 12
            s_cmp_lt_u32 s6, s7
            s_waitcnt vmcnt(8)
            s_cbranch_scc1 W2D_NT{n}
            s_cmp_lt_u32 s6, 12
            s_waitcnt vmcnt(4)
            s_cbranch_scc1 W2D_NT{n}
            s_waitcnt vmcnt(0)
            """)
            A.label(f"W2D_NT{n}")
            A(f"""
            s_add_u32 s6, s5, 2
            s_cmp_lt_u32 {sCS}, 100
            s_cbranch_scc1 W2D_E{n}
            v_cmp_ne_u32 vcc, 0, v{vPL}
            s_max_u32 s7, s6, {SH}
            s_cmp_eq_u64 vcc, -1
            s_cselect_b32 {sCS}, s7, {sCS}
            s_cbranch_scc1 W2D_E{n}
            s_cmp_lt_u32 s5, {max(GPC, opt.get("sp0", 0))}
            s_cbranch_scc1 W2D_E{n}
            buffer_load_dword v{vPL}, v{vPA}, s[24:27], {sQF} offen sc1
            """)
            A.label(f"W2D_E{n}")
            A(f"""
            s_cmp_gt_u32 s6, 11
            s_cbranch_scc1 W2D_F{n}
            s_cmp_lt_u32 s6, {sCS}
            s_cbranch_scc1 W2D_F{n}
            """)
            sload(n, "s47")
            A.label(f"W2D_F{n}")
            A(f"""
            s_min_u32 s7, {sCS}, 12
            s_cmp_lt_u32 s6, s7
            """)
        else:
            A(f"""
            s_cmp_lt_u32 {sC}, {12-NQ-n+1}
            s_waitcnt vmcnt({8*(NQ-1)})
            s_cbranch_scc1 W2D_NT{n}
            s_waitcnt vmcnt({8*min(NQ-1, max(0, UN-1-n))})
            """)
            A.label(f"W2D_NT{n}")
            A(f"s_cmp_lt_u32 {sC}, {12-NQ-n}")
        for i in range(8):
            qq = q + 4 * i
            f = Ft + 4 * (i & 1)
            o = O + 2 * (i & 1)
            WL = opt.get("wl", 0)
            if WL: o = 160 + 2 * i
            A(f"""
            v_fma_f32 v{f}, v{qq}, v{S}, v{S+4}
            v_fma_f32 v{f+1}, v{qq+1}, v{S+1}, v{S+5}
            v_fma_f32 v{f+2}, v{qq+2}, v{S+2}, v{S+6}
            v_fma_f32 v{f+3}, v{qq+3}, v{S+3}, v{S+7}
            v_cvt_pk_bf16_f32 v{o}, v{f}, v{f+1}
            v_cvt_pk_bf16_f32 v{o+1}, v{f+2}, v{f+3}
            """)
            if i + 1 == WL:
                for ii in range(WL): A(f"ds_write_b64 v{vAW+ii}, {vr(160+2*ii,2)} offset:{ASTAGE*(n&1)}")
            elif i + 1 > WL:
                A(f"ds_write_b64 v{vAW+i}, {vr(o,2)} offset:{ASTAGE*(n&1)}")
            if (i + 1) % RG == 0:
                A(f"s_cbranch_scc0 W2D_SK{n}_{i}")
                for ii in range(i + 1 - RG, i + 1):
                    A(f"buffer_load_dwordx4 {vr(q+4*ii,4)}, v{vQO+ii}, s[8:11], {sQOFS} offen")
                A.label(f"W2D_SK{n}_{i}")
        A("s_waitcnt lgkmcnt(0)")
        if SH: A.label(f"W2D_J{n}")
        cst(A, opt, sC, 16 + n)
        A("s_barrier")
        cst(A, opt, sC, n)
    A(f"""
    s_add_u32 {sC}, {sC}, {UN}
    s_cmp_lt_u32 {sC}, 12
    s_cbranch_scc1 W2D_LOOP
    """)
    A("s_setprio 0")
    if SH and opt.get("stamp"): A(f"s_mov_b32 s90, {sCS}")
    A("s_barrier")
    cst_out(A, opt)
    A("s_branch P2_MM")
    if SH:
        for n in range(UN):
            A.label(f"W2D_PK{n}")
            A(f"""
            s_cmp_lt_u32 s5, 11
            s_waitcnt vmcnt(4)
            s_cbranch_scc1 W2D_PW{n}
            s_waitcnt vmcnt(0)
            """)
            A.label(f"W2D_PW{n}")
            for i in range(8):
                A(f"ds_write_b64 v{vAP+i}, {vr(vP+16*n+2*i,2)} offset:{ASTAGE*(n&1)}")
            A(f"""
            s_cmp_gt_u32 s5, 9
            s_waitcnt lgkmcnt(0)
            s_cbranch_scc1 W2D_J{n}
            """)
            sload(n, "s47")
            A(f"s_branch W2D_J{n}")
    A.label("W2D_IDLE")
    A(f"""
    s_mov_b32 {sC}, 0
    s_waitcnt lgkmcnt(0)
    """)
    A.label("W2D_IDL")
    A(f"""
    s_barrier
    s_add_u32 {sC}, {sC}, 1
    s_cmp_lt_u32 {sC}, 14
    s_cbranch_scc1 W2D_IDL
    s_branch P2_MM
    """)
    A.label("W2_MFMA")
    sCST = "s45"
    vAR = 10
    vBR = 14
    vT0, vT1 = 16, 17
    vST = 18
    vACC = 20
    vF = 44
    P = vF
    A(f"""
    s_lshl_b32 s4, {sW}, 13
    s_mov_b32 m0, s4
    s_mul_i32 s4, {sW}, {32*3072}
    s_add_u32 {sVOFS}, {sVOFS}, s4
    s_lshr_b32 s6, s42, 1
    s_mul_i32 s6, s6, 3072
    s_mov_b32 s18, {SC_BYTES}
    s_mov_b32 s19, 0x00020000
    s_mov_b32 s22, {SC_BYTES}
    s_mov_b32 s23, 0x00020000
    v_and_b32 v2, 0xff, v0
    v_lshlrev_b32 v19, 3, v2
    s_waitcnt lgkmcnt(0)
    """)
    stamp(A, opt, 1)
    cst(A, opt, 0, 49)
    for j in range(2):
        A(f"""
        buffer_load_dwordx2 {vr(P+4*j,2)}, v19, s[16:19], s6 offen offset:{2048*j}
        buffer_load_dwordx2 {vr(P+4*j+2,2)}, v19, s[20:23], s6 offen offset:{2048*j}
        """)
    A(f"""
    s_add_u32 s6, s6, 4096
    buffer_load_dwordx2 {vr(P+8,2)}, v19, s[16:19], s6 offen
    buffer_load_dwordx2 {vr(P+10,2)}, v19, s[20:23], s6 offen
    """)
    v_group()
    A(f"""
    s_add_u32 m0, m0, 4096
    s_add_u32 {sVOFS}, {sVOFS}, {16*3072}
    """)
    v_group()
    A(f"""
    v_lshlrev_b32 v19, 1, v19
    v_add_u32 v19, {TBL}, v19
    v_and_b32 v2, 15, v1
    v_lshrrev_b32 v3, 4, v1
    v_xor_b32 v4, v2, v3
    v_lshlrev_b32 v4, 4, v4
    v_lshl_add_u32 v4, v2, 8, v4
    v_add_u32 v{vAR}, {ABASE}, v4
    v_xor_b32 v{vAR+1}, 64, v{vAR}
    v_xor_b32 v{vAR+2}, 128, v{vAR}
    v_xor_b32 v{vAR+3}, 192, v{vAR}
    v_bfe_u32 v2, v1, 2, 2
    v_and_b32 v4, 1, v3
    v_lshl_or_b32 v4, v4, 2, v2
    s_lshl_b32 s5, {sW}, 1
    v_xor_b32 v4, s5, v4
    v_lshlrev_b32 v4, 5, v4
    v_lshl_add_u32 v2, v3, 3, v2
    v_lshl_add_u32 v4, v2, 8, v4
    v_and_b32 v2, 3, v1
    v_lshl_add_u32 v{vBR}, v2, 3, v4
    v_xor_b32 v{vBR+1}, 32, v{vBR}
    s_mov_b32 {sCST}, 0
    s_mov_b32 {sC}, 0
    s_lshl_b32 s4, {sNI}, 2
    s_add_u32 s4, s4, {sW}
    s_mul_i32 s5, s4, 40
    s_add_u32 s5, s5, s42
    s_lshl_b32 s5, s5, 10
    s_add_u32 s50, s5, {W2F}
    s_mul_i32 s5, s4, 171
    s_lshr_b32 s5, s5, 9
    s_mul_i32 s6, s5, 3
    s_sub_u32 s6, s4, s6
    s_mul_i32 s6, s6, 14
    s_add_u32 s6, s6, {sMI}
    s_lshl_b32 s6, s6, 2
    s_lshl_b32 s5, s5, 8
    s_add_u32 s5, s5, s6
    s_add_u32 s51, s5, {FLG}
    s_mov_b32 s53, 12
    s_mov_b32 s54, {hex((127+149-QE) << 23)}
    s_mov_b32 s55, {hex((127+149-QE) << 23)}
    s_mov_b32 s46, 0xffff0000
    s_mov_b32 s47, {hex((127+QE) << 23)}
    s_mov_b32 s48, {hex(0x80000000 | ((127+QE-149) << 23))}
    v_bfe_u32 v3, v1, 4, 1
    v_lshrrev_b32 v4, 5, v1
    v_and_b32 v{vST}, 15, v1
    v_lshl_add_u32 v{vST}, v3, 5, v{vST}
    v_lshl_add_u32 v{vST}, v4, 4, v{vST}
    v_lshlrev_b32 v{vST}, 4, v{vST}
    """)
    for i in range(0, 24, 2):
        A(f"v_mov_b64 {vr(vACC+i,2)}, 0")
    for i in range(0, 80, 2):
        A(f"v_mov_b64 {vr(vF+80+i,2)}, 0")
    for j in range(3):
        q = P + 4 * j
        u = P + 16 + 8 * j
        A(f"s_waitcnt vmcnt({8 + 4 - 2*j})")
        if j == 0: cst(A, opt, 0, 53)
        scale8(A, u, q, q + 2)
        A(f"""
        ds_write_b128 v19, {vr(u,4)} offset:{4096*j}
        ds_write_b128 v19, {vr(u+4,4)} offset:{4096*j+12288}
        """)
    A("s_waitcnt lgkmcnt(0)")
    cst(A, opt, 0, 50)
    A("s_barrier")
    cst(A, opt, 0, 51)
    A("s_waitcnt vmcnt(0)")
    cst(A, opt, 0, 52)

    def reads(s, buf):
        fa = vF + buf * 80 + 20 * s
        fb = fa + 12
        r = []
        for b in range(3):
            r.append(f"ds_read_b128 {vr(fa+4*b,4)}, v{vAR+s} offset:{4096*b + ASTAGE*buf}")
        for t in range(2):
            for u in range(2):
                r.append(f"ds_read_b64_tr_b16 {vr(fb+4*t+2*u,2)}, v{vT0+t} offset:{(32*s+4*u)*256}")
        return r

    def mfmas(s, buf):
        fa = vF + buf * 80 + 20 * s
        fb = fa + 12
        r = []
        for b in range(3):
            for t in range(2):
                acc = vACC + (b * 2 + t) * 4
                r.append(f"v_mfma_f32_16x16x32_bf16 {vr(acc,4)}, {vr(fa+4*b,4)}, {vr(fb+4*t,4)}, {vr(acc,4)}")
        return r

    A.label("W2M_LOOP")
    for buf in range(2):
        A(f"""
        v_add_u32 v{vT0}, {sCST}, v{vBR}
        v_add_u32 v{vT1}, {sCST}, v{vBR+1}
        s_add_u32 {sCST}, {sCST}, {VSTAGE}
        s_cmp_ge_u32 {sCST}, {RING}
        s_cselect_b32 {sCST}, 0, {sCST}
        """)
        cst(A, opt, sC, 16 + buf)
        A("s_barrier")
        cst(A, opt, sC, buf)
        rd = sum((reads(s, buf) for s in range(4)), [])
        mf = sum((mfmas(s, buf ^ 1) for s in range(4)), [])
        FR = opt.get("fr", 4)
        RP = opt.get("rp", 1)
        seq = rd[:FR]
        ri = FR
        for m in mf:
            seq.append(m)
            seq += rd[ri:ri + RP]
            ri += RP
        seq += rd[ri:]
        for x in seq: A(x)
        A("s_waitcnt lgkmcnt(0)")
        if (opt.get("stamp") or opt.get("probe") == 2) and buf == 0:
            A(f"""
            s_cmp_lg_u32 {sC}, 0
            s_cbranch_scc1 W2M_ST
            """)
            stamp(A, opt, 2, True)
            A.label("W2M_ST")
    A(f"""
    s_add_u32 {sC}, {sC}, 2
    s_cmp_lt_u32 {sC}, 12
    s_cbranch_scc1 W2M_LOOP
    s_setprio 3
    s_barrier
    """)
    for s_ in range(4):
        for m in mfmas(s_, 1): A(m)
    A("s_nop 7")
    stamp(A, opt, 3)
    for b in range(3):
        a = vACC + 8 * b
        o = vF + 4 * b
        for j in range(4):
            A(f"v_pk_mul_f32 {vr(a+2*j,2)}, {vr(a+2*j,2)}, s[54:55]")
        A(f"""
        v_cvt_pk_bf16_f32 v{o}, v{a}, v{a+1}
        v_cvt_pk_bf16_f32 v{o+1}, v{a+2}, v{a+3}
        v_cvt_pk_bf16_f32 v{o+2}, v{a+4}, v{a+5}
        v_cvt_pk_bf16_f32 v{o+3}, v{a+6}, v{a+7}
        s_nop 1
        v_permlane32_swap_b32 v{o}, v{o+2}
        v_permlane32_swap_b32 v{o+1}, v{o+3}
        buffer_store_dwordx4 {vr(o,4)}, v{vST}, s[24:27], s50 offen offset:{1024*b} sc1
        """)
        if b == 0:
            A(f"""
            s_cmp_eq_u32 {sMI}, 13
            s_cbranch_scc1 W2M_END
            """)
    A.label("W2M_END")
    cst_out(A, opt)
    A("s_branch P2_PUB")


def scale8(A, u, s, z):
    A(f"""
    v_lshlrev_b32 v{u}, 16, v{s}
    v_and_b32 v{u+1}, s46, v{s}
    v_lshlrev_b32 v{u+2}, 16, v{s+1}
    v_and_b32 v{u+3}, s46, v{s+1}
    v_lshlrev_b32 v{u+4}, 16, v{z}
    v_and_b32 v{u+5}, s46, v{z}
    v_lshlrev_b32 v{u+6}, 16, v{z+1}
    v_and_b32 v{u+7}, s46, v{z+1}
    """)
    for i in range(4): A(f"v_mul_f32 v{u+4+i}, s48, v{u+4+i}")
    for i in range(4): A(f"v_mul_f32 v{u+4+i}, v{u+i}, v{u+4+i}")
    for i in range(4): A(f"v_mul_f32 v{u+i}, s47, v{u+i}")


def wt_setup(A, opt, tag):
    TC = opt.get("wtc", 2)
    if opt.get("wm", 0):
        assert all((u * 171) >> 10 == u // 6 for u in range(384))
        A(f"""
        s_sub_u32 s4, s3, 21
        s_lshr_b32 s5, s37, 2
        s_and_b32 s6, s37, 3
        s_cmp_ge_u32 s4, 6
        s_cbranch_scc1 WT_Q{tag}
        s_lshl_b32 s4, s4, 6
        v_add_u32 v3, s4, v1
        v_mul_u32_u24 v7, 171, v3
        v_lshrrev_b32 v7, 10, v7
        v_mul_u32_u24 v7, {3072 - 768}, v7
        v_lshl_add_u32 v7, v3, 7, v7
        s_mul_i32 s46, s5, {64*3072}
        s_mul_i32 s6, s6, 768
        s_add_u32 s46, s46, s6
        s_add_u32 s46, s46, {TC*393216}
        s_mov_b32 s47, 393216
        s_mov_b32 s8, s12
        s_mov_b32 s9, s13
        s_mov_b32 s10, {V_BYTES}
        s_branch WT_G{tag}
        """)
        A.label(f"WT_Q{tag}")
        A(f"""
        v_lshrrev_b32 v7, 2, v1
        v_mul_u32_u24 v7, 0x1800, v7
        v_and_b32 v3, 3, v1
        v_lshl_add_u32 v7, v3, 7, v7
        s_mul_i32 s5, s37, 5
        s_add_u32 s4, s4, s5
        s_sub_u32 s4, s4, 6
        s_mul_i32 s46, s4, {16*6144}
        s_add_u32 s46, s46, {TC*512}
        s_movk_i32 s47, 512
        s_mov_b32 s10, {QW_BYTES}
        """)
        A.label(f"WT_G{tag}")
        return
    A(f"""
    s_sub_u32 s4, s2, 168
    s_cmp_ge_u32 s4, 48
    s_cbranch_scc1 WT_Q{tag}
    v_lshlrev_b32 v7, 7, v1
    s_lshl_b32 s46, s4, 13
    s_add_u32 s46, s46, {TC*393216}
    s_mov_b32 s47, 393216
    s_mov_b32 s8, s12
    s_mov_b32 s9, s13
    s_mov_b32 s10, {V_BYTES}
    s_branch WT_G{tag}
    """)
    A.label(f"WT_Q{tag}")
    A(f"""
    v_lshrrev_b32 v7, 2, v1
    v_mul_u32_u24 v7, 0x1800, v7
    v_and_b32 v3, 3, v1
    v_lshl_add_u32 v7, v3, 7, v7
    s_sub_u32 s4, s4, 48
    s_mul_i32 s46, s4, {16*6144}
    s_add_u32 s46, s46, {TC*512}
    s_movk_i32 s47, 512
    s_mov_b32 s10, {QW_BYTES}
    """)
    A.label(f"WT_G{tag}")


def wt(A, opt, i, tag):
    SH = opt.get("sh", 0)
    late = SH and i + opt.get("wtc", 2) >= SH
    if late:
        A(f"""
        s_cmpk_eq_u32 s47, 512
        s_cbranch_scc1 WT_S{tag}{i}
        """)
    A(f"""
    buffer_load_dword v{16+i}, v7, s[8:11], s46 offen
    s_add_u32 s46, s46, s47
    """)
    if late: A.label(f"WT_S{tag}{i}")


def gen_prod(A, opt):
    SH = opt["sh"]
    NU = 40 * (12 - SH)
    assert all((u * 205) >> 13 == u // 40 for u in range(320))
    A.label("PROD")
    A(f"""
    s_cmp_lt_u32 s59, {NU}
    s_cselect_b32 s61, 1, 0
    s_cselect_b32 s59, s59, s58
    s_mov_b32 s10, {QW_BYTES}
    s_mov_b32 s18, {SC_BYTES}
    s_mov_b32 s19, 0x00020000
    s_mov_b32 s22, {SC_BYTES}
    s_mov_b32 s23, 0x00020000
    v_lshrrev_b32 v6, 5, v1
    v_and_b32 v7, 31, v1
    v_mul_u32_u24 v6, 0x1800, v6
    v_lshl_add_u32 v6, v7, 4, v6
    v_lshlrev_b32 v7, 3, v7
    """)

    def issue(k):
        u = f"s{58+k}"
        st, fl = f"s{50+2*k}", f"s{51+2*k}"
        A(f"""
        s_mul_i32 s4, {u}, 205
        s_lshr_b32 s4, s4, 13
        s_mul_i32 s5, s4, 40
        s_sub_u32 s5, {u}, s5
        s_add_u32 s4, s4, {SH}
        s_lshr_b32 s6, s5, 1
        s_mul_i32 s6, s6, 3072
        s_lshl_b32 s7, s4, 8
        s_add_u32 s6, s6, s7
        s_mul_i32 s42, s5, {16*6144}
        s_lshl_b32 s7, s4, 9
        s_add_u32 s42, s42, s7
        buffer_load_dwordx2 {vr(8+4*k,2)}, v7, s[16:19], s6 offen
        buffer_load_dwordx2 {vr(10+4*k,2)}, v7, s[20:23], s6 offen
        """)
        for i in range(8):
            A(f"buffer_load_dwordx4 {vr(16+32*k+4*i,4)}, v6, s[8:11], s42 offen")
            if i < 7: A("s_add_u32 s42, s42, 12288")
        A(f"""
        s_mul_i32 {st}, s5, 12
        s_add_u32 {st}, {st}, s4
        s_lshl_b32 {st}, {st}, 12
        s_add_u32 {st}, {st}, {SA}
        s_mul_i32 s6, s5, 171
        s_lshr_b32 s6, s6, 9
        s_mul_i32 s7, s6, 3
        s_sub_u32 s7, s5, s7
        s_mul_i32 {fl}, s6, 3072
        s_lshl_b32 s7, s7, 6
        s_add_u32 {fl}, {fl}, s7
        s_lshl_b32 s7, s4, 2
        s_add_u32 {fl}, {fl}, s7
        s_add_u32 {fl}, {fl}, {SFLG}
        """)

    def bars(n, tag):
        if not n: return
        A(f"""
        s_cmp_eq_u32 s60, 0
        s_cbranch_scc1 PROD_B{tag}
        """)
        for _ in range(n): A("s_barrier")
        A.label(f"PROD_B{tag}")

    def compute(k, younger):
        A(f"s_waitcnt vmcnt({younger + 8})")
        scale8(A, 80, 8 + 4 * k, 10 + 4 * k)
        for i in range(8):
            q = 16 + 32 * k + 4 * i
            o = 96 + 16 * k + 2 * i
            A(f"s_waitcnt vmcnt({younger + 7 - i + i // 2})")
            for j in range(4):
                A(f"v_fma_f32 v{88+j}, v{q+j}, v{80+j}, v{84+j}")
            A(f"""
            v_cvt_pk_bf16_f32 v{o}, v88, v89
            v_cvt_pk_bf16_f32 v{o+1}, v90, v91
            """)
            if i & 1:
                A(f"buffer_store_dwordx4 {vr(o-2,4)}, v5, s[24:27], s{50+2*k} offen offset:{1024*(i//2)} sc1")

    issue(0)
    A("""
    s_cmp_lg_u32 s60, 0
    s_cbranch_scc1 PROD_1
    s_waitcnt vmcnt(10)
    """)
    gate_set(A, opt)
    A.label("PROD_1")
    issue(1)
    A(f"""
    s_mov_b32 s46, 0xffff0000
    s_mov_b32 s47, {hex((127+QE) << 23)}
    s_mov_b32 s48, {hex(0x80000000 | ((127+QE-149) << 23))}
    v_lshlrev_b32 v3, 8, v1
    v_mov_b32 v4, 1
    """)
    PB0, PB1 = opt.get("pb0", 0), opt.get("pb1", 2)
    bars(PB0, "0")
    compute(0, 10)
    A("""
    s_cmp_eq_u32 s61, 0
    s_cbranch_scc1 PROD_2
    """)
    compute(1, 4)
    A.label("PROD_2")
    stamp(A, opt, 4)
    bars(PB1, "1")
    poll(A, "PROD_G", DBG, "0", "v2", "v8", 0)
    A(f"""
    s_mov_b64 exec, 0xfff
    buffer_store_dword v4, v3, s[24:27], s51 offen sc1
    buffer_store_dword v4, v3, s[24:27], s53 offen sc1
    s_mov_b64 exec, -1
    """)
    stamp(A, opt, 2)
    A("""
    s_cmp_eq_u32 s60, 0
    s_cbranch_scc1 IDLE_T
    """)
    for _ in range(10 - PB0 - PB1): A("s_barrier")
    A("s_branch P2_MMX")


def gate_set(A, opt):
    A(f"""
    s_barrier
    s_cmp_lg_u32 s36, 0
    s_cbranch_scc1 IDLE_G1
    s_lshl_b32 s4, s37, 2
    v_mov_b32 v3, 0
    v_mov_b32 v4, 1
    s_mov_b64 exec, 1
    buffer_store_dword v4, v3, {DBG}, s4 offen sc1
    s_mov_b64 exec, -1
    """)
    A.label("IDLE_G1")


def gen_xr(A, opt):
    sW, sLOC, sXCD = "s36", "s3", "s37"
    sMT, sNT = "s40", "s41"
    sC = "s48"
    SH = opt.get("sh", 0)
    A(f"""
    s_sub_u32 s4, {sLOC}, 21
    s_cmp_ge_u32 s4, 5
    s_cselect_b32 s5, 1, 0
    s_cselect_b32 s6, 5, 0
    s_sub_u32 {sNT}, s4, s6
    s_lshl_b32 s7, {sXCD}, 1
    s_add_u32 {sMT}, s7, s5
    s_cmp_ge_u32 {sLOC}, 31
    s_cbranch_scc1 IDLE_WG
    s_cmp_lt_u32 {sW}, 4
    s_cbranch_scc1 XR_MFMA
    s_cmp_lt_u32 {sW}, 6
    s_cbranch_scc1 XR_LD
    """)
    gate_addr(A, "v2")
    if SH:
        A(f"""
        s_sub_u32 s58, s2, 168
        s_add_u32 s59, s58, 80
        s_mov_b32 s60, 1
        s_cmp_eq_u32 {sW}, 6
        s_waitcnt lgkmcnt(0)
        s_cbranch_scc1 PROD
        """)
    A(f"""
    v_lshlrev_b32 v6, 7, v1
    s_mul_i32 s4, {sMT}, 5
    s_add_u32 s4, s4, {sNT}
    s_lshl_b32 s5, s4, 15
    s_lshl_b32 s6, s4, 14
    s_mov_b32 s30, {X_BYTES}
    s_mov_b32 s31, 0x00020000
    s_mov_b32 s34, {U_BYTES}
    s_mov_b32 s35, 0x00020000
    s_waitcnt lgkmcnt(0)
    """)
    if opt.get("tx", 1):
        if not SH:
            A(f"""
            s_cmp_lg_u32 {sW}, 6
            s_cbranch_scc1 XR_TU
            """)
        for i in range(4):
            A(f"buffer_load_dword v{8+i}, v6, s[28:31], s5 offen")
            if i < 3: A("s_add_u32 s5, s5, 8192")
        if not SH:
            A("s_branch XR_TX")
            A.label("XR_TU")
        for i in range(2):
            A(f"buffer_load_dword v{12+i}, v6, s[32:35], s6 offen")
            if i < 1: A("s_add_u32 s6, s6, 8192")
        A.label("XR_TX")
    WT = opt.get("wt", 2)
    NT_ = 12 - opt.get("wtc", 2)
    if not SH:
        A(f"""
        s_cmp_lg_u32 {sW}, 7
        s_cbranch_scc1 XR_W6
        """)
    wt_setup(A, opt, "x")
    k = 0
    for b in range(10):
        for _ in range(WT if b == 0 else opt.get("wtn", 2)):
            if k < NT_:
                wt(A, opt, k, "x"); k += 1
        A("s_barrier")
    A("s_branch P2_MMX")
    if not SH:
        A.label("XR_W6")
        for i in range(5): A("s_barrier")
        poll(A, "XR_G", DBG, "0", "v2", "v3", 0)
        for i in range(5): A("s_barrier")
        A("s_branch P2_MMX")
    A.label("IDLE_WG")
    gate_addr(A, "v2")
    A(f"""
    v_mov_b32 v6, 0
    v_mov_b32 v7, 0
    v_mov_b32 v8, 0
    v_mov_b32 v9, 0
    s_lshl_b32 s58, {sXCD}, 3
    s_add_u32 s58, s58, {sW}
    s_mul_i32 s4, s58, 3072
    s_add_u32 s4, s4, {FLG}
    s_waitcnt lgkmcnt(0)
    """)
    for i in range(3):
        A(f"buffer_store_dwordx4 v[6:9], v5, s[24:27], s4 offen offset:{1024*i} sc1")
    if SH:
        A(f"""
        s_add_u32 s59, s58, 224
        s_add_u32 s58, s58, 160
        s_min_u32 s58, s58, {40 * (12 - SH) - 1}
        s_mov_b32 s60, 0
        """)
        gen_prod(A, opt)
    else:
        A("s_waitcnt vmcnt(0)")
        gate_set(A, opt)
    A.label("IDLE_T")
    A(f"""
    s_cmp_lg_u32 {sW}, 7
    s_cbranch_scc1 IDLE_NT
    """)
    wt_setup(A, opt, "i")
    for k in range(SH - opt.get("wtc", 2) if SH else NT_):
        wt(A, opt, k, "i")
        if k >= WT - 1 and k < NT_ - 1 and not SH: A("s_sleep 12")
    A.label("IDLE_NT")
    if not SH:
        A(f"""
        s_cmp_lg_u32 {sW}, 0
        s_cbranch_scc1 IDLE_G_X
        """)
        poll(A, "IDLE_G", DBG, "0", "v2", "v3", 0, sleep=8)
    A("s_barrier")
    A(f"""
    s_cmp_lt_u32 {sW}, 4
    s_cbranch_scc1 P2_LD
    s_branch P2_MMI
    """)
    A.label("XR_LD")
    sOFS, sGRP, sCH = "s43", "s45", "s46"
    vO = 6
    A(f"""
    v_lshrrev_b32 v3, 4, v1
    s_cmp_eq_u32 {sW}, 4
    s_cbranch_scc0 XRL_U
    v_lshrrev_b32 v2, 3, v1
    v_and_b32 v4, 7, v1
    v_xor_b32 v4, v4, v3
    v_lshlrev_b32 v4, 4, v4
    v_mul_u32_u24 v{vO}, 0x500, v2
    v_add_u32 v{vO}, v{vO}, v4
    v_xor_b32 v4, 64, v{vO}
    v_add_u32 v{vO+1}, 9216, v4
    v_add_u32 v{vO+2}, {2*9216}, v{vO}
    v_add_u32 v{vO+3}, {3*9216}, v4
    s_mul_i32 {sOFS}, {sMT}, {128*1280}
    s_mov_b32 {sGRP}, {32*1280}
    s_mov_b32 {sCH}, {128 - 128*1280 + (1<<32)}
    s_movk_i32 s47, 128
    s_mov_b32 m0, 0
    s_mov_b32 s30, {X_BYTES}
    s_waitcnt lgkmcnt(0)
    s_branch XRL_GO
    """)
    A.label("XRL_U")
    A(f"""
    v_and_b32 v4, 15, v1
    v_lshlrev_b32 v2, 2, v3
    v_xor_b32 v4, v4, v2
    v_lshlrev_b32 v4, 4, v4
    v_mul_u32_u24 v{vO}, 0x500, v3
    v_add_u32 v{vO}, v{vO}, v4
    v_add_u32 v{vO+1}, {4*1280-1024}, v{vO}
    v_add_u32 v{vO+2}, {2*(4*1280-1024)}, v{vO}
    v_add_u32 v{vO+3}, {3*(4*1280-1024)}, v{vO}
    s_lshl_b32 {sOFS}, {sNT}, 8
    s_mov_b32 {sGRP}, {16*1280}
    s_mov_b32 {sCH}, 0
    s_mov_b32 s47, {64*1280}
    s_movk_i32 m0, 16384
    s_mov_b32 s30, {U_BYTES}
    s_waitcnt lgkmcnt(0)
    s_mov_b32 s28, s32
    s_mov_b32 s29, s33
    """)
    A.label("XRL_GO")
    A(f"""
    s_mov_b32 s31, 0x00020000
    s_mov_b32 {sC}, 0
    """)
    XRO = opt.get("xra", 0) or opt.get("xrb", 0)
    if XRO:
        A(f"""
        s_mul_i32 s49, {sNT}, {opt.get("xra", 0)}
        s_and_b32 s4, {sMT}, 1
        s_mul_i32 s4, s4, {opt.get("xrb", 0)}
        s_add_u32 s49, s49, s4
        s_mul_i32 s4, s49, 205
        s_lshr_b32 s4, s4, 11
        s_mul_i32 s4, s4, 10
        s_sub_u32 s49, s49, s4
        s_mul_i32 s4, s49, s47
        s_add_u32 {sOFS}, {sOFS}, s4
        s_mul_i32 s47, s47, 10
        s_sub_u32 s49, 10, s49
        """)
    A.label("XRL_LOOP")
    for g in range(4):
        for j in range(4):
            A(f"buffer_load_dwordx4 v{vO+j}, s[28:31], {sOFS} offen offset:{1024*j} lds")
        A(f"""
        s_add_u32 m0, m0, 4096
        s_add_u32 {sOFS}, {sOFS}, {sGRP}
        """)
    A(f"""
    s_add_u32 {sOFS}, {sOFS}, {sCH}
    s_add_u32 m0, m0, 16384
    s_and_b32 m0, m0, {4*XSTAGE-1}
    s_add_u32 {sC}, {sC}, 1
    """)
    if XRO:
        A(f"""
        s_cmp_eq_u32 {sC}, s49
        s_cselect_b32 s4, s47, 0
        s_sub_u32 {sOFS}, {sOFS}, s4
        """)
    A(f"""
    s_and_b32 s4, {sC}, 13
    s_cmp_eq_u32 s4, 1
    s_cbranch_scc1 XRL_LOOP
    s_cmp_eq_u32 {sC}, 2
    s_cbranch_scc0 XRL_W
    s_waitcnt vmcnt(16)
    """)
    A.label("XRL_W")
    A(f"""
    s_waitcnt vmcnt(32)
    s_barrier
    s_cmp_lt_u32 {sC}, 10
    s_cbranch_scc1 XRL_LOOP
    s_waitcnt vmcnt(16)
    s_barrier
    s_waitcnt vmcnt(0)
    s_barrier
    s_branch P2_MMX
    """)
    A.label("XR_MFMA")
    sCST = "s43"
    vXR = 6
    vUR = 10
    vT = 12
    vACC = 20
    vF = 84
    A(f"""
    s_lshr_b32 s4, {sW}, 1
    s_and_b32 s5, {sW}, 1
    s_lshl_b32 s6, s4, 13
    v_and_b32 v3, 31, v1
    v_bfe_u32 v4, v1, 1, 3
    v_lshrrev_b32 v{vT}, 5, v1
    v_xor_b32 v4, v4, v{vT}
    v_lshlrev_b32 v4, 4, v4
    v_lshl_add_u32 v4, v3, 7, v4
    v_add_u32 v{vXR}, s6, v4
    v_xor_b32 v{vXR+1}, 32, v{vXR}
    v_xor_b32 v{vXR+2}, 64, v{vXR}
    v_xor_b32 v{vXR+3}, 96, v{vXR}
    v_bfe_u32 v2, v1, 4, 1
    v_bfe_u32 v3, v1, 2, 2
    s_lshl_b32 s6, s5, 1
    v_xor_b32 v4, s6, v3
    v_lshlrev_b32 v4, 6, v4
    v_lshl_add_u32 v4, v3, 8, v4
    v_lshl_add_u32 v4, v{vT}, 11, v4
    v_lshl_add_u32 v4, v2, 5, v4
    v_and_b32 v3, 3, v1
    v_lshl_add_u32 v4, v3, 3, v4
    v_add_u32 v{vUR}, 16384, v4
    v_xor_b32 v{vUR+1}, 64, v{vUR}
    s_mov_b32 {sCST}, 0
    s_mov_b32 {sC}, 0
    s_lshl_b32 s6, {sMT}, 1
    s_add_u32 s6, s6, s4
    s_lshl_b32 s7, {sNT}, 1
    s_add_u32 s7, s7, s5
    s_mul_i32 s51, s4, 10
    s_add_u32 s51, s51, s7
    s_lshl_b32 s51, s51, 2
    s_lshl_b32 s52, {sMT}, 11
    s_add_u32 s51, s51, s52
    s_add_u32 s51, s51, {XFLG}
    s_mov_b32 s53, 7
    s_mul_i32 s6, s6, 80
    s_lshl_b32 s7, s7, 2
    s_add_u32 s6, s6, s7
    s_lshl_b32 s50, s6, 10
    s_add_u32 s52, s50, 40960
    """)
    for i in range(0, 64, 2):
        A(f"v_mov_b64 {vr(vACC+i,2)}, 0")
    for i in range(0, 64, 2):
        A(f"v_mov_b64 {vr(vF+64+i,2)}, 0")
    A("s_waitcnt lgkmcnt(0)")

    def reads(s, buf):
        f = vF + 64 * buf + 16 * s
        r = []
        for tn in range(2):
            r.append(f"ds_read_b128 {vr(f+8+4*tn,4)}, v{vT+s} offset:{4096*tn}")
            for u in range(2):
                r.append(f"ds_read_b64_tr_b16 {vr(f+4*tn+2*u,2)}, v{vT+4+tn} offset:{s*4096+u*1024}")
        return r

    def mfmas(s, buf):
        f = vF + 64 * buf + 16 * s
        r = []
        for tm in range(2):
            for tn in range(2):
                acc = vACC + 32 * tm + 16 * tn
                r.append(f"v_mfma_f32_32x32x16_bf16 {vr(acc,16)}, {vr(f+4*tn,4)}, {vr(f+8+4*tm,4)}, {vr(acc,16)}")
        return r

    A.label("XR_LOOP")
    for buf in range(2):
        for i in range(4):
            A(f"v_add_u32 v{vT+i}, {sCST}, v{vXR+i}")
        for i in range(2):
            A(f"v_add_u32 v{vT+4+i}, {sCST}, v{vUR+i}")
        A(f"""
        s_add_u32 {sCST}, {sCST}, {XSTAGE}
        s_and_b32 {sCST}, {sCST}, {4*XSTAGE-1}
        s_barrier
        """)
        rd = sum((reads(s_, buf) for s_ in range(4)), [])
        mf = sum((mfmas(s_, buf ^ 1) for s_ in range(4)), [])
        ri = 0
        for m in mf:
            A(m)
            for x in rd[ri:ri + 2]: A(x)
            ri += 2
        for x in rd[ri:]: A(x)
        A("s_waitcnt lgkmcnt(0)")
    A(f"""
    s_add_u32 {sC}, {sC}, 2
    s_cmp_lt_u32 {sC}, 10
    s_cbranch_scc1 XR_LOOP
    s_barrier
    """)
    for s_ in range(4):
        for m in mfmas(s_, 1): A(m)
    A("s_nop 15")
    stamp(A, opt, 3)
    for tm in range(2):
        for i in range(4):
            a = vACC + 32 * tm + 8 * i
            o = vF + 16 * tm + 4 * i
            for j in range(4):
                A(f"v_cvt_pk_bf16_f32 v{o+j}, v{a+2*j}, v{a+2*j+1}")
            A(f"buffer_store_dwordx4 {vr(o,4)}, v5, s[24:27], s{50+2*tm} offen offset:{1024*i} sc1")


VX = 96


def xload(A, opt, kb):
    A(f"buffer_load_dwordx4 {vr(VX+4*kb,4)}, v5, s[24:27], s20 offen offset:{1024 * (kb & 3)} sc1")
    if kb & 3 == 3 and kb < 39:
        A("s_add_u32 s20, s20, 4096")


def p2_rot(A, opt):
    lm = MAP["m"]
    A(f"""
    s_and_b32 s17, s3, {(1 << lm) - 1}
    s_mul_i32 s17, s17, 0
    s_lshr_b32 s16, s3, {lm}
    s_mul_i32 s16, s16, 0
    s_add_u32 s17, s17, s16
    s_mul_i32 s16, s17, 205
    s_lshr_b32 s16, s16, 11
    s_mul_i32 s16, s16, 10
    s_sub_u32 s17, s17, s16
    s_lshl_b32 s17, s17, 12
    """)


def gen_p2(A, opt):
    NA = opt.get("na", 2)
    OLD = opt.get("old", 0)
    order = [(n, kb) for kb in range(40) for n in range(NA)] + [(n, kb) for n in range(NA, 3) for kb in range(40)]
    groups = []
    for n, kb in order:
        if (n, kb // 4) not in groups: groups.append((n, kb // 4))
    CH = {1: [2, 2, 4, 4, 4, 4, 10], 2: [2, 2, 2, 2, 4, 4, 4, 5, 5], 3: [2, 4, 6, 8, 10], 4: [3, 3, 6, 6, 6, 6],
          5: [1, 1, 2, 2, 4, 10, 10]}[opt.get("ch", 1)]
    assert sum(CH) == 30
    st = [sum(CH[:i]) for i in range(len(CH) + 1)]
    A.label("P2_PUB")
    publish(A, opt, "s51", "s53")
    A.label("P2_LD")
    p2_tile(A)
    if OLD: p2_rot(A, opt)
    A(f"""
    s_mul_i32 s22, s39, 122880
    s_add_u32 s22, s22, {W2F}
    s_lshl_b32 s21, s36, 10
    s_add_u32 s22, s22, s21
    """)
    if OLD: A("""
    s_add_u32 s20, s22, s17
    s_add_u32 s19, s22, 40960
    """)
    A(f"""
    v_lshlrev_b32 v2, 2, v1
    v_mov_b32 v4, {LFLAG}
    s_cmp_lg_u32 s36, 0
    s_cbranch_scc1 P2_LW0
    """)
    if OLD: A("""
    s_sub_u32 s4, s44, s45
    s_sub_u32 s4, s4, 168
    """)
    A("v_cmp_gt_u32 vcc, 42, v1")
    if OLD: A("v_add_u32 v3, s4, v2")
    A("""
    v_mov_b32 v3, 0
    v_cndmask_b32 v2, v3, v2, vcc
    """)
    poll(A, "P2_W", "s[24:27]", "s45", "v2", "v3", DC_W, sleep=opt.get("wsl", 16),
         st=(lambda: stamp(A, opt, 1)) if opt.get("pst") else None)

    def lds_wait(name, ofs, vd, va):
        A(f"s_branch {name}")
        A.label(name + "_S")
        A(f"s_sleep {opt.get('lsl', 1)}")
        A.label(name)
        A(f"""
        ds_read_b32 {vd}, {va} offset:{ofs}
        s_waitcnt lgkmcnt(0)
        """)
        poll_check(A, vd, 0, name + "_S")
    A(f"""
    v_mov_b32 v3, 1
    ds_write_b32 v4, v3 offset:4
    s_branch P2_GO
    """)
    A.label("P2_LW0")
    lds_wait("P2_LW", 4, "v3", "v4")
    A.label("P2_GO")
    stamp(A, opt, 5)
    AH = opt.get("ah", 3)

    def issue(c):
        for n, q in groups[st[c]:st[c + 1]]:
            off = (n * 40 + q * 4) * 1024
            A(f"""
            s_add_u32 s5, s22, {off}
            s_add_u32 m0, s21, {off}
            s_nop 0
            buffer_load_dwordx4 v5, s[24:27], s5 offen sc1 lds
            """)

    for c in range(min(AH, len(CH))): issue(c)
    for c in range(len(CH)):
        issued = min(len(CH), AH + c)
        A(f"s_waitcnt vmcnt({st[issued] - st[c+1]})")
        A("s_barrier")
        if AH + c < len(CH): issue(AH + c)
    stamp(A, opt, 6)
    A("s_branch K_EXIT")

    vACC = 8
    vF = 56
    NF = 8
    vO = 88
    A.label("P2_MMX")
    A("s_barrier")
    A.label("P2_MMI")
    A.label("P2_MM")
    if not opt.get("sh"): stamp(A, opt, 2)
    p2_tile(A)
    if OLD: p2_rot(A, opt)
    A(f"""
    s_lshl_b32 s4, s38, 2
    s_add_u32 s4, s4, s36
    s_sub_u32 s4, s4, 4
    """)
    if OLD:
        A("""
        s_mul_i32 s18, s4, 40960
        s_add_u32 s19, s18, 40960
        s_add_u32 s20, s18, s17
        """)
    else:
        A("s_mul_i32 s20, s4, 40960")
    A(f"""
    s_mul_i32 s4, s4, {32*3072}
    s_mul_i32 s5, s39, 192
    s_add_u32 s23, s4, s5
    s_add_u32 s22, s23, {16*3072}
    """)
    A("""
    v_bfe_u32 v2, v1, 2, 1
    v_bfe_u32 v4, v1, 3, 2
    v_and_b32 v3, 0x23, v1
    v_lshl_add_u32 v3, v2, 4, v3
    v_lshl_add_u32 v3, v4, 2, v3
    v_lshlrev_b32 v3, 4, v3
    v_and_b32 v6, 15, v1
    v_and_b32 v7, 48, v1
    v_mul_u32_u24 v6, 0xc00, v6
    v_add_u32 v6, v6, v7
    v_add_u32 v4, 61440, v3
    s_waitcnt vmcnt(0)
    """)
    A(f"""
    v_min_u32 v2, 19, v1
    v_lshlrev_b32 v2, 2, v2
    v_mov_b32 v8, {LFLAG}
    s_cmp_lg_u32 s36, 7
    s_cbranch_scc1 P2_XW
    """)
    poll(A, "P2_X", "s[24:27]", "s44", "v2", "v7", 0, sleep=opt.get("xsl", 16))
    if opt.get("xap"):
        A("""
        s_cmp_ge_u32 s3, 31
        s_cbranch_scc1 P2_XA_X
        """)
        A.label("P2_XA")
        A("""
        ds_read_b32 v7, v8 offset:8
        s_waitcnt lgkmcnt(0)
        v_readfirstlane_b32 s4, v7
        s_cmp_lt_u32 s4, 4
        s_cbranch_scc1 P2_XA
        """)
        A.label("P2_XA_X")
    A("""
    v_mov_b32 v7, 1
    ds_write_b32 v8, v7
    s_branch P2_XW_X
    """)
    A.label("P2_XW_S")
    A("s_sleep 2")
    A.label("P2_XW")
    A("""
    ds_read_b32 v7, v8
    s_waitcnt lgkmcnt(0)
    """)
    poll_check(A, "v7", 0, "P2_XW_S")
    A.label("P2_XW_X")
    stamp(A, opt, 1)
    for kb in range(40): xload(A, opt, kb)
    stamp(A, opt, 5, True)

    def epi(t, o=vO):
        a = vACC + 16 * t
        return [[f"v_cvt_pk_bf16_f32 v{o+j}, v{a+2*j}, v{a+2*j+1}" for j in range(4)],
                [f"v_cvt_pk_bf16_f32 v{o+j}, v{a+2*j}, v{a+2*j+1}" for j in range(4, 8)],
                ["s_nop 1"] + [f"v_permlane16_swap_b32 v{o+j}, v{o+4+j}" for j in range(4)],
                [f"buffer_store_dwordx4 {vr(o,4)}, v6, s[96:99], s23 offen offset:{64*t}",
                 f"buffer_store_dwordx4 {vr(o+4,4)}, v6, s[96:99], s22 offen offset:{64*t}"]]

    RA = opt.get("ra", 6)
    assert RA < NF
    seen = [0]

    def read(i):
        n, kb = order[i]
        g = groups.index((n, kb // 4))
        while st[seen[0]] <= g:
            A("s_barrier")
            seen[0] += 1
        off = (n * 40 + kb) * 1024
        base, o = ("v3", off) if off < 61440 else ("v4", off - 61440)
        A(f"ds_read_b128 {vr(vF+4*(i%NF),4)}, {base} offset:{o}")

    for i in range(RA): read(i)
    pending = []
    done = set()
    last = {n: max(i for i, x in enumerate(order) if x[0] == n) for n in range(3)}
    for i, (n, kb) in enumerate(order):
        if n == 0: A(f"s_waitcnt vmcnt({40 - kb - 1})")
        A(f"s_waitcnt lgkmcnt({min(120, i + RA) - i - 1})")
        acc = vACC + 16 * n
        c = "0" if kb == 0 else vr(acc, 16)
        A(f"v_mfma_f32_32x32x16_bf16 {vr(acc,16)}, {vr(vF+4*(i%NF),4)}, {vr(VX+4*kb,4)}, {c}")
        if i == 0 and opt.get("stamp"):
            stamp(A, opt, 3)
            A("s_memtime s[80:81]\ns_nop 7\ns_nop 7\ns_waitcnt lgkmcnt(0)")
        if i == 0 and opt.get("probe") == 3:
            stamp(A, opt, 3)
            A("s_nop 7\ns_nop 7\ns_waitcnt lgkmcnt(0)")
        if i + RA < 120: read(i + RA)
        for t in range(3):
            if i == last[t] + 3:
                pending += epi(t) + [[], [], [], []]
                done.add(t)
        if pending:
            for x in pending.pop(0): A(x)
    assert seen[0] == len(CH)
    A("s_nop 15")
    stamp(A, opt, 6)
    if opt.get("stamp"):
        A("s_memtime s[82:83]\ns_waitcnt lgkmcnt(0)\ns_sub_u32 s72, s82, s80")
        if opt.get("sh"): A("s_and_b32 s90, s90, 127\ns_lshl_b32 s90, s90, 24\ns_or_b32 s72, s72, s90")
    k = 0
    for t in range(3):
        if t in done: continue
        for x in sum(epi(t, vF + 8 * k), []): A(x)
        k += 1


def descriptor(name, vgpr, accum, sgpr):
    return f""".amdhsa_kernel {name}
  .amdhsa_next_free_vgpr {vgpr}
  .amdhsa_next_free_sgpr {sgpr}
  .amdhsa_accum_offset {accum}
  .amdhsa_group_segment_fixed_size 0
  .amdhsa_kernarg_size 72
  .amdhsa_user_sgpr_count 2
  .amdhsa_user_sgpr_kernarg_segment_ptr 1
  .amdhsa_system_sgpr_workgroup_id_x 1
  .amdhsa_float_denorm_mode_32 3
.end_amdhsa_kernel
"""


def generate(opt):
    out = HEADER
    MAP["m"] = opt.get("map", 2)
    out += f"; @launch grid=(256,1,1) block=(512,1,1) lds={LDS1 + 1024}\n"
    out += '.amdgcn_target "amdgcn-amd-amdhsa--gfx950"\n.text\n'
    A = Asm()
    out += f".globl {KNAME}\n.p2align 8\n.type {KNAME},@function\n"
    gen_kernel(A, opt)
    out += A.text()
    out += "CODE_END:\n"
    out += '.section .rodata,"a"\n.p2align 6\n'
    out += descriptor(KNAME, 256, 256, 100)
    return out


if __name__ == "__main__":
    path = sys.argv[1] if len(sys.argv) > 1 else "standalone__weight_only_int_quip__prompt.s"
    opt = {}
    for a in sys.argv[2:]:
        k, _, v = a.partition("=")
        opt[k] = int(v) if v else 1
    open(path, "w").write(generate(opt))
    print("wrote", path)
```

```python
import sys

KNAME = "standalone__weight_only_int_quip__prompt_kernel"
HEADER = """; Kernarg layout for this problem (72 bytes, ptrs only, base s[0:1]):
"""

XRF = 0
W2F = 64 * 40 * 1024
FLG = W2F + 48 * 40 * 1024
XFLG = FLG + 256 * 256
SFLG = XFLG + 256 * 128
FLG_END = FLG + 64 * 3 * 1024
SA = FLG_END
WS_USED = SA + 40 * 12 * 4096
assert SFLG + 168 * 256 <= FLG_END

X_BYTES = 2048 * 640 * 2
QW_BYTES = 640 * 1536 * 4
SC_BYTES = 20 * 1536 * 2
U_BYTES = 640 * 640 * 2
V_BYTES = 1536 * 1536 * 2
OUT_BYTES = 2048 * 1536 * 2

VSTAGE = 32768
ABASE = 3 * VSTAGE
ASTAGE = 12288
TBL = ABASE + 2 * ASTAGE
LDS1 = TBL + 24576
LFLAG = LDS1
QE = 112
XSTAGE = 32768
POLL_MAX = 40000


class Asm:
    def __init__(self):
        self.lines = []

    def __call__(self, s):
        for l in s.strip("\n").split("\n"):
            if not l.strip(): continue
            self.lines.append("    " + l.strip() if not l.strip().endswith(":") else l.strip())

    def label(self, s):
        self.lines.append(s + ":")

    def comment(self, s):
        self.lines.append("    ; " + s)

    def text(self):
        return "\n".join(self.lines) + "\n"


def vr(a, n):
    return f"v[{a}:{a+n-1}]"


STAMP_OFS = 32 << 20
NSTAMP = 8


def stamp(A, opt, i, wait=False):
    if opt.get("stamp") or ("probe" in opt and i in (0, opt["probe"])):
        A(f"s_memrealtime s[{64+2*i}:{65+2*i}]")
        if wait: A("s_waitcnt lgkmcnt(0)")


def stamp_begin(A, opt):
    if opt.get("stamp") or "probe" in opt:
        for i in range(1, NSTAMP):
            A(f"s_mov_b32 s{64+2*i}, 0")
        A("s_mov_b32 s90, 0")
    stamp(A, opt, 0)


def stamp_end(A, opt):
    if "probe" in opt:
        p = opt["probe"]
        wl, wh = opt.get("pwl", 0), opt.get("pwh", 7)
        gl, gh = opt.get("pgl", 0), opt.get("pgh", 255)
        A(f"""
        s_waitcnt vmcnt(0) lgkmcnt(0)
        s_memrealtime s[78:79]
        s_waitcnt lgkmcnt(0)
        s_cmp_gt_u32 s2, {gh}
        s_cbranch_scc1 PRB_X
        s_cmp_lt_u32 s2, {gl}
        s_cbranch_scc1 PRB_X
        s_cmp_lt_u32 s36, {wl}
        s_cbranch_scc1 PRB_X
        s_cmp_gt_u32 s36, {wh}
        s_cbranch_scc1 PRB_X
        s_cmp_eq_u32 s{64+2*p}, 0
        s_cbranch_scc1 PRB_X
        s_sub_u32 s4, s{64+2*p}, s64
        s_mul_i32 s4, s4, 3
        s_min_u32 s4, s4, 20000
        """)
        A.label("PRB")
        A("""
        s_memrealtime s[6:7]
        s_waitcnt lgkmcnt(0)
        s_sub_u32 s5, s6, s78
        s_cmp_lt_u32 s5, s4
        s_cbranch_scc1 PRB
        """)
        A.label("PRB_X")
    if opt.get("stamp"):
        A("s_waitcnt vmcnt(0) lgkmcnt(0)")
        stamp(A, opt, NSTAMP - 1)
        A(f"""
        s_load_dwordx2 s[56:57], s[0:1], 64
        s_waitcnt lgkmcnt(0)
        s_mov_b32 s58, 0x7fffffff
        s_mov_b32 s59, 0x00020000
        v_lshrrev_b32 v1, 6, v0
        v_lshlrev_b32 v1, 5, v1
        s_lshl_b32 s4, s2, 8
        s_add_u32 s4, s4, {STAMP_OFS}
        """)
        for i in range(NSTAMP):
            A(f"v_mov_b32 v{4+i}, s{64+2*i}")
        A("""
        buffer_store_dwordx4 v[4:7], v1, s[56:59], s4 offen
        buffer_store_dwordx4 v[8:11], v1, s[56:59], s4 offen offset:16
        """)
    A("s_endpgm")


def cst(A, opt, sidx, add):
    if not opt.get("cst"): return
    A(f"""
    s_memtime s[84:85]
    s_add_u32 s86, {sidx}, {add}
    v_cmp_eq_u32 vcc, s86, v1
    s_waitcnt lgkmcnt(0)
    v_mov_b32 v231, s84
    v_cndmask_b32 v230, v230, v231, vcc
    """)


def cst_out(A, opt):
    if not opt.get("cst"): return
    A(f"""
    v_writelane_b32 v230, s88, 48
    s_mov_b64 s[84:85], s[24:25]
    s_mov_b32 s86, 0x7fffffff
    s_mov_b32 s87, 0x00020000
    v_lshlrev_b32 v231, 2, v0
    s_lshl_b32 s4, s2, 11
    s_add_u32 s4, s4, {STAMP_OFS + (1 << 20)}
    buffer_store_dword v230, v231, s[84:87], s4 offen
    """)


def poll_check(A, vdst, dc, again):
    A(f"v_cmp_ne_u32 vcc, 0, {vdst}")
    if dc & 0xffffffff: A(f"s_or_b32 vcc_lo, vcc_lo, {hex(dc & 0xffffffff)}")
    if dc >> 32: A(f"s_or_b32 vcc_hi, vcc_hi, {hex(dc >> 32)}")
    A(f"""
    s_cmp_eq_u64 vcc, -1
    s_cbranch_scc0 {again}
    """)


def poll(A, name, srd, soff, vaddr, vdst, dc, scnt="s7", sleep=0, st=None):
    A(f"s_mov_b32 {scnt}, {POLL_MAX}")
    if sleep: A(f"s_branch {name}_1")
    A.label(name)
    if sleep:
        A(f"s_sleep {sleep}")
        A.label(name + "_1")
    A(f"""
    s_sub_u32 {scnt}, {scnt}, 1
    s_cbranch_scc1 {name}_X
    """)
    if st: st()
    A(f"""
    buffer_load_dword {vdst}, {vaddr}, {srd}, {soff} offen sc1
    s_waitcnt vmcnt(0)
    """)
    A.label(name + "_C")
    poll_check(A, vdst, dc, name)
    A.label(name + "_X")


DC_W = 0xFFFFFC0000000000
DBG = "s[92:95]"
MAP = {"m": 2}


def p2_tile(A):
    lm = MAP["m"]
    ln = 5 - lm
    xm = 4 - lm
    A(f"""
    s_and_b32 s38, s37, {(1 << xm) - 1}
    s_lshl_b32 s38, s38, {lm}
    s_and_b32 s39, s3, {(1 << lm) - 1}
    s_add_u32 s38, s38, s39
    s_lshr_b32 s39, s37, {xm}
    s_lshl_b32 s39, s39, {ln}
    s_lshr_b32 s4, s3, {lm}
    s_add_u32 s39, s39, s4
    s_lshl_b32 s45, s38, 4
    s_add_u32 s45, s45, s39
    s_lshl_b32 s44, s45, 7
    s_add_u32 s44, s44, {XFLG}
    s_lshl_b32 s45, s45, 8
    s_add_u32 s45, s45, {FLG}
    """)


def publish(A, opt, sflag, sshift):
    A(f"""
    v_mov_b32 v2, 1
    v_lshlrev_b32 v3, {sshift}, v1
    s_waitcnt vmcnt(0)
    s_mov_b64 exec, 0xffff
    buffer_store_dword v2, v3, s[24:27], {sflag} offen sc1
    """)
    if opt.get("xap"):
        A(f"""
        v_mov_b32 v3, {LFLAG}
        s_mov_b64 exec, 1
        ds_add_u32 v3, v2 offset:8
        """)
    A("s_mov_b64 exec, -1")
    stamp(A, opt, 4)


def gen_kernel(A, opt):
    A.label(KNAME)
    stamp_begin(A, opt)
    A("""
    s_load_dwordx2 s[8:9], s[0:1], 8
    s_load_dwordx2 s[12:13], s[0:1], 40
    s_load_dwordx2 s[16:17], s[0:1], 16
    s_load_dwordx2 s[20:21], s[0:1], 24
    s_load_dwordx2 s[28:29], s[0:1], 0
    s_load_dwordx2 s[32:33], s[0:1], 32
    s_load_dwordx2 s[24:25], s[0:1], 64
    s_load_dwordx2 s[92:93], s[0:1], 56
    s_load_dwordx2 s[96:97], s[0:1], 48
    s_cmp_ge_u32 s2, 256
    s_cbranch_scc1 K_EXIT
    v_and_b32 v1, 63, v0
    v_lshrrev_b32 v2, 6, v0
    s_getpc_b64 s[4:5]
    """)
    A.label("P1_PC")
    A(f"""
    v_readfirstlane_b32 s36, v2
    v_lshlrev_b32 v3, 7, v1
    v_add_u32 v4, 0x2000, v3
    v_min_u32 v4, CODE_END-P1_PC-4, v4
    s_lshr_b32 s3, s2, 3
    s_and_b32 s37, s2, 7
    s_cmp_lg_u32 s36, 7
    s_cbranch_scc1 P1_NOPF
    global_load_dword v250, v3, s[4:5]
    global_load_dword v251, v4, s[4:5]
    v_mov_b32 v2, 0
    v_mov_b32 v3, 0
    v_mov_b32 v4, {LFLAG}
    ds_write_b64 v4, v[2:3]
    """)
    A.label("P1_NOPF")
    A(f"""
    s_mov_b32 s11, 0x00020000
    s_mov_b32 s15, 0x00020000
    s_mov_b32 s27, 0x00020000
    s_mov_b32 s26, {WS_USED}
    s_movk_i32 s94, 256
    s_mov_b32 s95, 0x00020000
    s_mov_b32 s98, {OUT_BYTES}
    s_mov_b32 s99, 0x00020000
    v_lshlrev_b32 v5, 4, v1
    s_cmp_ge_u32 s3, 21
    s_cbranch_scc1 P1_XR
    """)
    gen_w2(A, opt)
    A.label("P1_XR")
    gen_xr(A, opt)
    gen_p2(A, opt)
    A.label("K_EXIT")
    stamp_end(A, opt)


def gate_addr(A, v):
    A(f"""
    v_and_b32 {v}, 7, v1
    v_lshlrev_b32 {v}, 2, {v}
    """)


def gen_w2(A, opt):
    NQ = 2
    SH = opt.get("sh", 0)
    RING = 3 * VSTAGE
    RG = opt.get("rg", 2)
    sW, sLOC, sXCD = "s36", "s3", "s37"
    sMI, sNI = "s40", "s41"
    sC = "s49"
    sVOFS = "s43"
    vVO = 6
    if opt.get("cst"): A("s_memtime s[88:89]")
    A(f"""
    s_mul_i32 s4, {sLOC}, 171
    s_lshr_b32 s4, s4, 9
    s_mul_i32 s5, s4, 3
    s_sub_u32 s5, {sLOC}, s5
    s_lshr_b32 s6, {sXCD}, 2
    s_mul_i32 s6, s6, 7
    s_add_u32 {sMI}, s6, s4
    s_and_b32 s6, {sXCD}, 3
    s_mul_i32 s6, s6, 3
    s_add_u32 {sNI}, s6, s5
    s_mul_i32 s42, {sMI}, 3
    s_mov_b32 s57, s5
    s_sub_u32 s4, {sW}, 4
    s_cmp_lt_u32 s4, 3
    s_cbranch_scc1 W2_DEQ
    s_mov_b32 s14, {V_BYTES}
    v_lshrrev_b32 v2, 4, v1
    v_and_b32 v3, 15, v1
    v_lshlrev_b32 v4, 1, v2
    v_xor_b32 v3, v3, v4
    v_lshlrev_b32 v3, 4, v3
    v_mul_u32_u24 v4, 0xc00, v2
    v_add_u32 v{vVO}, v3, v4
    v_add_u32 v{vVO+1}, 11264, v{vVO}
    v_xor_b32 v3, 0x80, v{vVO}
    v_add_u32 v{vVO+2}, {2*11264}, v3
    v_add_u32 v{vVO+3}, {3*11264}, v3
    s_lshl_b32 {sVOFS}, {sNI}, 8
    s_cmp_lt_u32 {sW}, 4
    s_cbranch_scc1 W2_MFMA
    """)

    def v_group():
        for j in range(4):
            A(f"buffer_load_dwordx4 v{vVO+j}, s[12:15], {sVOFS} offen offset:{1024*j} lds")

    GPC = opt.get("gpc", 2 if SH else 4)
    for g in range(1, 8):
        for j in range(4):
            A(f"v_add_u32 v{vVO+4*g+j}, {g*16*3072}, v{vVO+j}")
    gate_addr(A, "v40")
    LP, LG = opt.get("lp", 0), opt.get("lg", 1)
    A(f"""
    s_mov_b32 m0, {VSTAGE}
    s_mov_b32 {sC}, 1
    s_waitcnt lgkmcnt(0)
    """)
    stamp(A, opt, 1)
    cst(A, opt, 0, 49)
    A.label("W2L_LOOP")
    A(f"""
    s_add_u32 {sVOFS}, {sVOFS}, 393216
    s_cmp_lg_u32 {sC}, {GPC}
    s_cbranch_scc1 W2L_NG
    buffer_load_dword v42, v40, {DBG}, 0 offen sc1
    """)
    A.label("W2L_NG")
    for g in range(8):
        if g == 6: A("s_waitcnt vmcnt(54)")
        for j in range(4):
            A(f"buffer_load_dwordx4 v{vVO+4*g+j}, s[12:15], {sVOFS} offen offset:{1024*j} lds")
            if j == 3: A("s_add_u32 m0, m0, 4096")
            if j == 3 and g < 7: A("s_nop 0")
    A(f"""
    s_cmp_ge_u32 m0, {RING}
    s_cselect_b32 m0, 0, m0
    s_cmp_lg_u32 {sC}, 1
    s_cbranch_scc1 W2L_NT
    """)
    cst(A, opt, 0, 50)
    A("s_barrier")
    cst(A, opt, 0, 51)
    A(f"s_setprio {opt.get('lpr', 3)}")
    A.label("W2L_NT")
    cst(A, opt, sC, 31)
    A(f"""
    s_waitcnt vmcnt(32)
    s_cmp_lg_u32 {sC}, {GPC}
    s_cbranch_scc1 W2L_G_X
    """)
    poll_check(A, "v42", 0, "W2L_GS")
    A.label("W2L_G_X")
    cst(A, opt, sC, 15)
    A("s_barrier")
    cst(A, opt, sC, -1)
    A(f"""
    s_add_u32 {sC}, {sC}, 1
    s_cmp_lt_u32 {sC}, {12 - (1 if LP else 0)}
    s_cbranch_scc1 W2L_LOOP
    """)
    if LP:
        A(f"s_add_u32 {sVOFS}, {sVOFS}, 393216")
        for g in range(8):
            if g == 6: A("s_waitcnt vmcnt(54)")
            for j in range(4):
                A(f"buffer_load_dwordx4 v{vVO+4*g+j}, s[12:15], {sVOFS} offen offset:{1024*j} lds")
                if j == 3: A("s_add_u32 m0, m0, 4096")
                if (4 * g + j + 1) % LG == 0 and 4 * g + j < 31:
                    n = LP
                    while n > 0:
                        A(f"s_nop {min(n, 16) - 1}"); n -= 16
                elif j == 3 and g < 7: A("s_nop 0")
        cst(A, opt, sC, 31)
        A("s_waitcnt vmcnt(32)")
        cst(A, opt, sC, 15)
        A("s_barrier")
        cst(A, opt, sC, -1)
    A(f"""
    s_setprio 0
    s_waitcnt vmcnt(0)
    s_barrier
    s_barrier
    """)
    cst_out(A, opt)
    A("s_branch P2_MM")
    A.label("W2L_GS")
    A(f"s_mov_b32 s7, {POLL_MAX}")
    A.label("W2L_G")
    A(f"""
    s_sub_u32 s7, s7, 1
    s_cbranch_scc1 W2L_G_X
    buffer_load_dword v42, v40, {DBG}, 0 offen sc1
    s_waitcnt vmcnt(0)
    """)
    poll_check(A, "v42", 0, "W2L_G")
    A("s_branch W2L_G_X")
    A.label("W2_DEQ")
    sB = "s38"
    sQOFS = "s43"
    vQO = 6
    vAW = 14
    vTB = 22
    U_ = 24
    Ft = 40
    O = 48
    vQ = 52
    QS = 32
    vAP = 116
    vP = 124
    vPL, vPA = 156, 157
    sCS, sPK, sQF = "s39", "s45", "s46"
    A(f"""
    s_mov_b32 {sB}, s4
    s_add_u32 s4, s42, {sB}
    s_cmp_ge_u32 s4, 40
    s_cbranch_scc1 W2D_IDLE
    s_mul_i32 {sQOFS}, s4, {16*6144}
    """)
    if SH:
        A(f"""
        s_mul_i32 {sPK}, s4, {12*4096}
        s_add_u32 {sPK}, {sPK}, {SA + 2*4096}
        """)
    A(f"""
    s_lshr_b32 s6, s4, 1
    s_lshr_b32 s5, s42, 1
    s_sub_u32 s6, s6, s5
    s_mul_i32 s6, s6, 6144
    s_add_u32 s6, s6, {TBL}
    s_mov_b32 s10, {QW_BYTES}
    v_lshrrev_b32 v2, 5, v1
    v_and_b32 v3, 31, v1
    v_lshlrev_b32 v4, 4, v3
    v_mul_u32_u24 v{vQO}, 0x1800, v2
    v_add_u32 v{vQO}, v{vQO}, v4
    v_add_u32 v{vTB}, s6, v4
    """)
    QR = opt.get("qr", 3)
    A(f"s_mul_i32 s57, s57, {QR}")
    for i in range(7, -1, -1):
        A(f"""
        s_add_u32 s4, s57, {i}
        s_and_b32 s4, s4, 7
        s_mul_i32 s4, s4, 12288
        v_add_u32 v{vQO+i}, s4, v{vQO}
        """)
    A("s_waitcnt lgkmcnt(0)")
    stamp(A, opt, 1)
    cst(A, opt, 0, 49)

    def t_read(n):
        u = U_ + 8 * (n & 1)
        A(f"""
        ds_read_b128 {vr(u,4)}, v{vTB}
        ds_read_b128 {vr(u+4,4)}, v{vTB} offset:12288
        v_add_u32 v{vTB}, 512, v{vTB}
        """)

    for u in range(NQ):
        for i in range(8):
            A(f"buffer_load_dwordx4 {vr(vQ+QS*u+4*i,4)}, v{vQO+i}, s[8:11], {sQOFS} offen offset:{512*u}")
    A(f"""
    s_add_u32 {sQOFS}, {sQOFS}, 512
    s_lshl_b32 s4, {sB}, 12
    s_add_u32 s4, s4, {ABASE}
    v_bfe_u32 v3, v1, 1, 4
    v_xor_b32 v4, v3, v2
    v_lshlrev_b32 v4, 4, v4
    v_lshl_add_u32 v4, v2, 8, v4
    v_and_b32 v3, 1, v1
    v_lshl_add_u32 v4, v3, 3, v4
    v_add_u32 v{vAW}, s4, v4
    """)
    if SH:
        for i in range(8):
            A(f"""
            v_xor_b32 v3, {32*i}, v{vAW}
            v_add_u32 v{vAP+i}, {512*i}, v3
            """)
        A(f"""
        s_mul_i32 {sQF}, {sMI}, 12
        s_add_u32 {sQF}, {sQF}, {sNI}
        s_lshl_b32 {sQF}, {sQF}, 2
        s_add_u32 {sQF}, {sQF}, {sB}
        s_lshl_b32 {sQF}, {sQF}, 6
        s_add_u32 {sQF}, {sQF}, {SFLG}
        s_movk_i32 {sCS}, 100
        v_max_u32 v{vPA}, {SH}, v1
        v_min_u32 v{vPA}, 11, v{vPA}
        v_lshlrev_b32 v{vPA}, 2, v{vPA}
        v_mov_b32 v{vPL}, 0
        """)
    for i in range(7, -1, -1):
        A(f"""
        s_add_u32 s4, s57, {i}
        s_and_b32 s4, s4, 7
        s_lshl_b32 s5, s4, 5
        s_lshl_b32 s4, s4, 9
        v_xor_b32 v3, s5, v{vAW}
        v_add_u32 v{vAW+i}, s4, v3
        """)
    A(f"s_mov_b32 {sC}, 0")
    cst(A, opt, 0, 50)
    if opt.get("cst"):
        A("s_waitcnt vmcnt(8)")
        cst(A, opt, 0, 52)
    A("s_barrier")
    cst(A, opt, 0, 51)
    A(f"s_setprio {opt.get('dpr', 3)}")
    t_read(0)
    A("s_waitcnt lgkmcnt(0)")
    UN = 2

    def sload(n, sofs):
        for j in range(4):
            A(f"buffer_load_dwordx4 {vr(vP+16*n+4*j,4)}, v5, s[24:27], {sofs} offen offset:{1024*j} sc1")

    A.label("W2D_LOOP")
    for n in range(UN):
        u = n % NQ
        q = vQ + QS * u
        S = U_ + 8 * (n & 1)
        if SH:
            A(f"""
            s_add_u32 s5, {sC}, {n}
            s_lshl_b32 s47, s5, 12
            s_add_u32 s47, s47, {sPK}
            s_cmp_ge_u32 s5, {sCS}
            s_cbranch_scc1 W2D_PK{n}
            """)
        t_read(n + 1)
        A(f"s_add_u32 {sQOFS}, {sQOFS}, 512")
        if SH:
            A(f"""
            s_add_u32 s6, s5, 1
            s_min_u32 s7, {sCS}, 12
            s_cmp_lt_u32 s6, s7
            s_waitcnt vmcnt(8)
            s_cbranch_scc1 W2D_NT{n}
            s_cmp_lt_u32 s6, 12
            s_waitcnt vmcnt(4)
            s_cbranch_scc1 W2D_NT{n}
            s_waitcnt vmcnt(0)
            """)
            A.label(f"W2D_NT{n}")
            A(f"""
            s_add_u32 s6, s5, 2
            s_cmp_lt_u32 {sCS}, 100
            s_cbranch_scc1 W2D_E{n}
            v_cmp_ne_u32 vcc, 0, v{vPL}
            s_max_u32 s7, s6, {SH}
            s_cmp_eq_u64 vcc, -1
            s_cselect_b32 {sCS}, s7, {sCS}
            s_cbranch_scc1 W2D_E{n}
            s_cmp_lt_u32 s5, {max(GPC, opt.get("sp0", 0))}
            s_cbranch_scc1 W2D_E{n}
            buffer_load_dword v{vPL}, v{vPA}, s[24:27], {sQF} offen sc1
            """)
            A.label(f"W2D_E{n}")
            A(f"""
            s_cmp_gt_u32 s6, 11
            s_cbranch_scc1 W2D_F{n}
            s_cmp_lt_u32 s6, {sCS}
            s_cbranch_scc1 W2D_F{n}
            """)
            sload(n, "s47")
            A.label(f"W2D_F{n}")
            A(f"""
            s_min_u32 s7, {sCS}, 12
            s_cmp_lt_u32 s6, s7
            """)
        else:
            A(f"""
            s_cmp_lt_u32 {sC}, {12-NQ-n+1}
            s_waitcnt vmcnt({8*(NQ-1)})
            s_cbranch_scc1 W2D_NT{n}
            s_waitcnt vmcnt({8*min(NQ-1, max(0, UN-1-n))})
            """)
            A.label(f"W2D_NT{n}")
            A(f"s_cmp_lt_u32 {sC}, {12-NQ-n}")
        for i in range(8):
            qq = q + 4 * i
            f = Ft + 4 * (i & 1)
            o = O + 2 * (i & 1)
            WL = opt.get("wl", 0)
            if WL: o = 160 + 2 * i
            A(f"""
            v_fma_f32 v{f}, v{qq}, v{S}, v{S+4}
            v_fma_f32 v{f+1}, v{qq+1}, v{S+1}, v{S+5}
            v_fma_f32 v{f+2}, v{qq+2}, v{S+2}, v{S+6}
            v_fma_f32 v{f+3}, v{qq+3}, v{S+3}, v{S+7}
            v_cvt_pk_bf16_f32 v{o}, v{f}, v{f+1}
            v_cvt_pk_bf16_f32 v{o+1}, v{f+2}, v{f+3}
            """)
            if i + 1 == WL:
                for ii in range(WL): A(f"ds_write_b64 v{vAW+ii}, {vr(160+2*ii,2)} offset:{ASTAGE*(n&1)}")
            elif i + 1 > WL:
                A(f"ds_write_b64 v{vAW+i}, {vr(o,2)} offset:{ASTAGE*(n&1)}")
            if (i + 1) % RG == 0:
                A(f"s_cbranch_scc0 W2D_SK{n}_{i}")
                for ii in range(i + 1 - RG, i + 1):
                    A(f"buffer_load_dwordx4 {vr(q+4*ii,4)}, v{vQO+ii}, s[8:11], {sQOFS} offen")
                A.label(f"W2D_SK{n}_{i}")
        A("s_waitcnt lgkmcnt(0)")
        if SH: A.label(f"W2D_J{n}")
        cst(A, opt, sC, 16 + n)
        A("s_barrier")
        cst(A, opt, sC, n)
    A(f"""
    s_add_u32 {sC}, {sC}, {UN}
    s_cmp_lt_u32 {sC}, 12
    s_cbranch_scc1 W2D_LOOP
    """)
    A("s_setprio 0")
    if SH and opt.get("stamp"): A(f"s_mov_b32 s90, {sCS}")
    A("s_barrier")
    cst_out(A, opt)
    A("s_branch P2_MM")
    if SH:
        for n in range(UN):
            A.label(f"W2D_PK{n}")
            A(f"""
            s_cmp_lt_u32 s5, 11
            s_waitcnt vmcnt(4)
            s_cbranch_scc1 W2D_PW{n}
            s_waitcnt vmcnt(0)
            """)
            A.label(f"W2D_PW{n}")
            for i in range(8):
                A(f"ds_write_b64 v{vAP+i}, {vr(vP+16*n+2*i,2)} offset:{ASTAGE*(n&1)}")
            A(f"""
            s_cmp_gt_u32 s5, 9
            s_waitcnt lgkmcnt(0)
            s_cbranch_scc1 W2D_J{n}
            """)
            sload(n, "s47")
            A(f"s_branch W2D_J{n}")
    A.label("W2D_IDLE")
    A(f"""
    s_mov_b32 {sC}, 0
    s_waitcnt lgkmcnt(0)
    """)
    A.label("W2D_IDL")
    A(f"""
    s_barrier
    s_add_u32 {sC}, {sC}, 1
    s_cmp_lt_u32 {sC}, 14
    s_cbranch_scc1 W2D_IDL
    s_branch P2_MM
    """)
    A.label("W2_MFMA")
    sCST = "s45"
    vAR = 10
    vBR = 14
    vT0, vT1 = 16, 17
    vST = 18
    vACC = 20
    vF = 44
    P = vF
    A(f"""
    s_lshl_b32 s4, {sW}, 13
    s_mov_b32 m0, s4
    s_mul_i32 s4, {sW}, {32*3072}
    s_add_u32 {sVOFS}, {sVOFS}, s4
    s_lshr_b32 s6, s42, 1
    s_mul_i32 s6, s6, 3072
    s_mov_b32 s18, {SC_BYTES}
    s_mov_b32 s19, 0x00020000
    s_mov_b32 s22, {SC_BYTES}
    s_mov_b32 s23, 0x00020000
    v_and_b32 v2, 0xff, v0
    v_lshlrev_b32 v19, 3, v2
    s_waitcnt lgkmcnt(0)
    """)
    stamp(A, opt, 1)
    cst(A, opt, 0, 49)
    for j in range(2):
        A(f"""
        buffer_load_dwordx2 {vr(P+4*j,2)}, v19, s[16:19], s6 offen offset:{2048*j}
        buffer_load_dwordx2 {vr(P+4*j+2,2)}, v19, s[20:23], s6 offen offset:{2048*j}
        """)
    A(f"""
    s_add_u32 s6, s6, 4096
    buffer_load_dwordx2 {vr(P+8,2)}, v19, s[16:19], s6 offen
    buffer_load_dwordx2 {vr(P+10,2)}, v19, s[20:23], s6 offen
    """)
    v_group()
    A(f"""
    s_add_u32 m0, m0, 4096
    s_add_u32 {sVOFS}, {sVOFS}, {16*3072}
    """)
    v_group()
    A(f"""
    v_lshlrev_b32 v19, 1, v19
    v_add_u32 v19, {TBL}, v19
    v_and_b32 v2, 15, v1
    v_lshrrev_b32 v3, 4, v1
    v_xor_b32 v4, v2, v3
    v_lshlrev_b32 v4, 4, v4
    v_lshl_add_u32 v4, v2, 8, v4
    v_add_u32 v{vAR}, {ABASE}, v4
    v_xor_b32 v{vAR+1}, 64, v{vAR}
    v_xor_b32 v{vAR+2}, 128, v{vAR}
    v_xor_b32 v{vAR+3}, 192, v{vAR}
    v_bfe_u32 v2, v1, 2, 2
    v_and_b32 v4, 1, v3
    v_lshl_or_b32 v4, v4, 2, v2
    s_lshl_b32 s5, {sW}, 1
    v_xor_b32 v4, s5, v4
    v_lshlrev_b32 v4, 5, v4
    v_lshl_add_u32 v2, v3, 3, v2
    v_lshl_add_u32 v4, v2, 8, v4
    v_and_b32 v2, 3, v1
    v_lshl_add_u32 v{vBR}, v2, 3, v4
    v_xor_b32 v{vBR+1}, 32, v{vBR}
    s_mov_b32 {sCST}, 0
    s_mov_b32 {sC}, 0
    s_lshl_b32 s4, {sNI}, 2
    s_add_u32 s4, s4, {sW}
    s_mul_i32 s5, s4, 40
    s_add_u32 s5, s5, s42
    s_lshl_b32 s5, s5, 10
    s_add_u32 s50, s5, {W2F}
    s_mul_i32 s5, s4, 171
    s_lshr_b32 s5, s5, 9
    s_mul_i32 s6, s5, 3
    s_sub_u32 s6, s4, s6
    s_mul_i32 s6, s6, 14
    s_add_u32 s6, s6, {sMI}
    s_lshl_b32 s6, s6, 2
    s_lshl_b32 s5, s5, 8
    s_add_u32 s5, s5, s6
    s_add_u32 s51, s5, {FLG}
    s_mov_b32 s53, 12
    s_mov_b32 s54, {hex((127+149-QE) << 23)}
    s_mov_b32 s55, {hex((127+149-QE) << 23)}
    s_mov_b32 s46, 0xffff0000
    s_mov_b32 s47, {hex((127+QE) << 23)}
    s_mov_b32 s48, {hex(0x80000000 | ((127+QE-149) << 23))}
    v_bfe_u32 v3, v1, 4, 1
    v_lshrrev_b32 v4, 5, v1
    v_and_b32 v{vST}, 15, v1
    v_lshl_add_u32 v{vST}, v3, 5, v{vST}
    v_lshl_add_u32 v{vST}, v4, 4, v{vST}
    v_lshlrev_b32 v{vST}, 4, v{vST}
    """)
    for i in range(0, 24, 2):
        A(f"v_mov_b64 {vr(vACC+i,2)}, 0")
    for i in range(0, 80, 2):
        A(f"v_mov_b64 {vr(vF+80+i,2)}, 0")
    for j in range(3):
        q = P + 4 * j
        u = P + 16 + 8 * j
        A(f"s_waitcnt vmcnt({8 + 4 - 2*j})")
        if j == 0: cst(A, opt, 0, 53)
        scale8(A, u, q, q + 2)
        A(f"""
        ds_write_b128 v19, {vr(u,4)} offset:{4096*j}
        ds_write_b128 v19, {vr(u+4,4)} offset:{4096*j+12288}
        """)
    A("s_waitcnt lgkmcnt(0)")
    cst(A, opt, 0, 50)
    A("s_barrier")
    cst(A, opt, 0, 51)
    A("s_waitcnt vmcnt(0)")
    cst(A, opt, 0, 52)

    def reads(s, buf):
        fa = vF + buf * 80 + 20 * s
        fb = fa + 12
        r = []
        for b in range(3):
            r.append(f"ds_read_b128 {vr(fa+4*b,4)}, v{vAR+s} offset:{4096*b + ASTAGE*buf}")
        for t in range(2):
            for u in range(2):
                r.append(f"ds_read_b64_tr_b16 {vr(fb+4*t+2*u,2)}, v{vT0+t} offset:{(32*s+4*u)*256}")
        return r

    def mfmas(s, buf):
        fa = vF + buf * 80 + 20 * s
        fb = fa + 12
        r = []
        for b in range(3):
            for t in range(2):
                acc = vACC + (b * 2 + t) * 4
                r.append(f"v_mfma_f32_16x16x32_bf16 {vr(acc,4)}, {vr(fa+4*b,4)}, {vr(fb+4*t,4)}, {vr(acc,4)}")
        return r

    A.label("W2M_LOOP")
    for buf in range(2):
        A(f"""
        v_add_u32 v{vT0}, {sCST}, v{vBR}
        v_add_u32 v{vT1}, {sCST}, v{vBR+1}
        s_add_u32 {sCST}, {sCST}, {VSTAGE}
        s_cmp_ge_u32 {sCST}, {RING}
        s_cselect_b32 {sCST}, 0, {sCST}
        """)
        cst(A, opt, sC, 16 + buf)
        A("s_barrier")
        cst(A, opt, sC, buf)
        rd = sum((reads(s, buf) for s in range(4)), [])
        mf = sum((mfmas(s, buf ^ 1) for s in range(4)), [])
        FR = opt.get("fr", 4)
        RP = opt.get("rp", 1)
        seq = rd[:FR]
        ri = FR
        for m in mf:
            seq.append(m)
            seq += rd[ri:ri + RP]
            ri += RP
        seq += rd[ri:]
        for x in seq: A(x)
        A("s_waitcnt lgkmcnt(0)")
        if (opt.get("stamp") or opt.get("probe") == 2) and buf == 0:
            A(f"""
            s_cmp_lg_u32 {sC}, 0
            s_cbranch_scc1 W2M_ST
            """)
            stamp(A, opt, 2, True)
            A.label("W2M_ST")
    A(f"""
    s_add_u32 {sC}, {sC}, 2
    s_cmp_lt_u32 {sC}, 12
    s_cbranch_scc1 W2M_LOOP
    s_setprio 3
    s_barrier
    """)
    for s_ in range(4):
        for m in mfmas(s_, 1): A(m)
    A("s_nop 7")
    stamp(A, opt, 3)
    for b in range(3):
        a = vACC + 8 * b
        o = vF + 4 * b
        for j in range(4):
            A(f"v_pk_mul_f32 {vr(a+2*j,2)}, {vr(a+2*j,2)}, s[54:55]")
        A(f"""
        v_cvt_pk_bf16_f32 v{o}, v{a}, v{a+1}
        v_cvt_pk_bf16_f32 v{o+1}, v{a+2}, v{a+3}
        v_cvt_pk_bf16_f32 v{o+2}, v{a+4}, v{a+5}
        v_cvt_pk_bf16_f32 v{o+3}, v{a+6}, v{a+7}
        s_nop 1
        v_permlane32_swap_b32 v{o}, v{o+2}
        v_permlane32_swap_b32 v{o+1}, v{o+3}
        buffer_store_dwordx4 {vr(o,4)}, v{vST}, s[24:27], s50 offen offset:{1024*b} sc1
        """)
        if b == 0:
            A(f"""
            s_cmp_eq_u32 {sMI}, 13
            s_cbranch_scc1 W2M_END
            """)
    A.label("W2M_END")
    cst_out(A, opt)
    A("s_branch P2_PUB")


def scale8(A, u, s, z):
    A(f"""
    v_lshlrev_b32 v{u}, 16, v{s}
    v_and_b32 v{u+1}, s46, v{s}
    v_lshlrev_b32 v{u+2}, 16, v{s+1}
    v_and_b32 v{u+3}, s46, v{s+1}
    v_lshlrev_b32 v{u+4}, 16, v{z}
    v_and_b32 v{u+5}, s46, v{z}
    v_lshlrev_b32 v{u+6}, 16, v{z+1}
    v_and_b32 v{u+7}, s46, v{z+1}
    """)
    for i in range(4): A(f"v_mul_f32 v{u+4+i}, s48, v{u+4+i}")
    for i in range(4): A(f"v_mul_f32 v{u+4+i}, v{u+i}, v{u+4+i}")
    for i in range(4): A(f"v_mul_f32 v{u+i}, s47, v{u+i}")


def wt_setup(A, opt, tag):
    TC = opt.get("wtc", 2)
    if opt.get("wm", 0):
        assert all((u * 171) >> 10 == u // 6 for u in range(384))
        A(f"""
        s_sub_u32 s4, s3, 21
        s_lshr_b32 s5, s37, 2
        s_and_b32 s6, s37, 3
        s_cmp_ge_u32 s4, 6
        s_cbranch_scc1 WT_Q{tag}
        s_lshl_b32 s4, s4, 6
        v_add_u32 v3, s4, v1
        v_mul_u32_u24 v7, 171, v3
        v_lshrrev_b32 v7, 10, v7
        v_mul_u32_u24 v7, {3072 - 768}, v7
        v_lshl_add_u32 v7, v3, 7, v7
        s_mul_i32 s46, s5, {64*3072}
        s_mul_i32 s6, s6, 768
        s_add_u32 s46, s46, s6
        s_add_u32 s46, s46, {TC*393216}
        s_mov_b32 s47, 393216
        s_mov_b32 s8, s12
        s_mov_b32 s9, s13
        s_mov_b32 s10, {V_BYTES}
        s_branch WT_G{tag}
        """)
        A.label(f"WT_Q{tag}")
        A(f"""
        v_lshrrev_b32 v7, 2, v1
        v_mul_u32_u24 v7, 0x1800, v7
        v_and_b32 v3, 3, v1
        v_lshl_add_u32 v7, v3, 7, v7
        s_mul_i32 s5, s37, 5
        s_add_u32 s4, s4, s5
        s_sub_u32 s4, s4, 6
        s_mul_i32 s46, s4, {16*6144}
        s_add_u32 s46, s46, {TC*512}
        s_movk_i32 s47, 512
        s_mov_b32 s10, {QW_BYTES}
        """)
        A.label(f"WT_G{tag}")
        return
    A(f"""
    s_sub_u32 s4, s2, 168
    s_cmp_ge_u32 s4, 48
    s_cbranch_scc1 WT_Q{tag}
    v_lshlrev_b32 v7, 7, v1
    s_lshl_b32 s46, s4, 13
    s_add_u32 s46, s46, {TC*393216}
    s_mov_b32 s47, 393216
    s_mov_b32 s8, s12
    s_mov_b32 s9, s13
    s_mov_b32 s10, {V_BYTES}
    s_branch WT_G{tag}
    """)
    A.label(f"WT_Q{tag}")
    A(f"""
    v_lshrrev_b32 v7, 2, v1
    v_mul_u32_u24 v7, 0x1800, v7
    v_and_b32 v3, 3, v1
    v_lshl_add_u32 v7, v3, 7, v7
    s_sub_u32 s4, s4, 48
    s_mul_i32 s46, s4, {16*6144}
    s_add_u32 s46, s46, {TC*512}
    s_movk_i32 s47, 512
    s_mov_b32 s10, {QW_BYTES}
    """)
    A.label(f"WT_G{tag}")


def wt(A, opt, i, tag):
    SH = opt.get("sh", 0)
    late = SH and i + opt.get("wtc", 2) >= SH
    if late:
        A(f"""
        s_cmpk_eq_u32 s47, 512
        s_cbranch_scc1 WT_S{tag}{i}
        """)
    A(f"""
    buffer_load_dword v{16+i}, v7, s[8:11], s46 offen
    s_add_u32 s46, s46, s47
    """)
    if late: A.label(f"WT_S{tag}{i}")


def gen_prod(A, opt):
    SH = opt["sh"]
    NU = 40 * (12 - SH)
    assert all((u * 205) >> 13 == u // 40 for u in range(320))
    A.label("PROD")
    A(f"""
    s_cmp_lt_u32 s59, {NU}
    s_cselect_b32 s61, 1, 0
    s_cselect_b32 s59, s59, s58
    s_mov_b32 s10, {QW_BYTES}
    s_mov_b32 s18, {SC_BYTES}
    s_mov_b32 s19, 0x00020000
    s_mov_b32 s22, {SC_BYTES}
    s_mov_b32 s23, 0x00020000
    v_lshrrev_b32 v6, 5, v1
    v_and_b32 v7, 31, v1
    v_mul_u32_u24 v6, 0x1800, v6
    v_lshl_add_u32 v6, v7, 4, v6
    v_lshlrev_b32 v7, 3, v7
    """)

    def issue(k):
        u = f"s{58+k}"
        st, fl = f"s{50+2*k}", f"s{51+2*k}"
        A(f"""
        s_mul_i32 s4, {u}, 205
        s_lshr_b32 s4, s4, 13
        s_mul_i32 s5, s4, 40
        s_sub_u32 s5, {u}, s5
        s_add_u32 s4, s4, {SH}
        s_lshr_b32 s6, s5, 1
        s_mul_i32 s6, s6, 3072
        s_lshl_b32 s7, s4, 8
        s_add_u32 s6, s6, s7
        s_mul_i32 s42, s5, {16*6144}
        s_lshl_b32 s7, s4, 9
        s_add_u32 s42, s42, s7
        buffer_load_dwordx2 {vr(8+4*k,2)}, v7, s[16:19], s6 offen
        buffer_load_dwordx2 {vr(10+4*k,2)}, v7, s[20:23], s6 offen
        """)
        for i in range(8):
            A(f"buffer_load_dwordx4 {vr(16+32*k+4*i,4)}, v6, s[8:11], s42 offen")
            if i < 7: A("s_add_u32 s42, s42, 12288")
        A(f"""
        s_mul_i32 {st}, s5, 12
        s_add_u32 {st}, {st}, s4
        s_lshl_b32 {st}, {st}, 12
        s_add_u32 {st}, {st}, {SA}
        s_mul_i32 s6, s5, 171
        s_lshr_b32 s6, s6, 9
        s_mul_i32 s7, s6, 3
        s_sub_u32 s7, s5, s7
        s_mul_i32 {fl}, s6, 3072
        s_lshl_b32 s7, s7, 6
        s_add_u32 {fl}, {fl}, s7
        s_lshl_b32 s7, s4, 2
        s_add_u32 {fl}, {fl}, s7
        s_add_u32 {fl}, {fl}, {SFLG}
        """)

    def bars(n, tag):
        if not n: return
        A(f"""
        s_cmp_eq_u32 s60, 0
        s_cbranch_scc1 PROD_B{tag}
        """)
        for _ in range(n): A("s_barrier")
        A.label(f"PROD_B{tag}")

    def compute(k, younger):
        A(f"s_waitcnt vmcnt({younger + 8})")
        scale8(A, 80, 8 + 4 * k, 10 + 4 * k)
        for i in range(8):
            q = 16 + 32 * k + 4 * i
            o = 96 + 16 * k + 2 * i
            A(f"s_waitcnt vmcnt({younger + 7 - i + i // 2})")
            for j in range(4):
                A(f"v_fma_f32 v{88+j}, v{q+j}, v{80+j}, v{84+j}")
            A(f"""
            v_cvt_pk_bf16_f32 v{o}, v88, v89
            v_cvt_pk_bf16_f32 v{o+1}, v90, v91
            """)
            if i & 1:
                A(f"buffer_store_dwordx4 {vr(o-2,4)}, v5, s[24:27], s{50+2*k} offen offset:{1024*(i//2)} sc1")

    issue(0)
    A("""
    s_cmp_lg_u32 s60, 0
    s_cbranch_scc1 PROD_1
    s_waitcnt vmcnt(10)
    """)
    gate_set(A, opt)
    A.label("PROD_1")
    issue(1)
    A(f"""
    s_mov_b32 s46, 0xffff0000
    s_mov_b32 s47, {hex((127+QE) << 23)}
    s_mov_b32 s48, {hex(0x80000000 | ((127+QE-149) << 23))}
    v_lshlrev_b32 v3, 8, v1
    v_mov_b32 v4, 1
    """)
    PB0, PB1 = opt.get("pb0", 0), opt.get("pb1", 2)
    bars(PB0, "0")
    compute(0, 10)
    A("""
    s_cmp_eq_u32 s61, 0
    s_cbranch_scc1 PROD_2
    """)
    compute(1, 4)
    A.label("PROD_2")
    stamp(A, opt, 4)
    bars(PB1, "1")
    poll(A, "PROD_G", DBG, "0", "v2", "v8", 0)
    A(f"""
    s_mov_b64 exec, 0xfff
    buffer_store_dword v4, v3, s[24:27], s51 offen sc1
    buffer_store_dword v4, v3, s[24:27], s53 offen sc1
    s_mov_b64 exec, -1
    """)
    stamp(A, opt, 2)
    A("""
    s_cmp_eq_u32 s60, 0
    s_cbranch_scc1 IDLE_T
    """)
    for _ in range(10 - PB0 - PB1): A("s_barrier")
    A("s_branch P2_MMX")


def gate_set(A, opt):
    A(f"""
    s_barrier
    s_cmp_lg_u32 s36, 0
    s_cbranch_scc1 IDLE_G1
    s_lshl_b32 s4, s37, 2
    v_mov_b32 v3, 0
    v_mov_b32 v4, 1
    s_mov_b64 exec, 1
    buffer_store_dword v4, v3, {DBG}, s4 offen sc1
    s_mov_b64 exec, -1
    """)
    A.label("IDLE_G1")


def gen_xr(A, opt):
    sW, sLOC, sXCD = "s36", "s3", "s37"
    sMT, sNT = "s40", "s41"
    sC = "s48"
    SH = opt.get("sh", 0)
    A(f"""
    s_sub_u32 s4, {sLOC}, 21
    s_cmp_ge_u32 s4, 5
    s_cselect_b32 s5, 1, 0
    s_cselect_b32 s6, 5, 0
    s_sub_u32 {sNT}, s4, s6
    s_lshl_b32 s7, {sXCD}, 1
    s_add_u32 {sMT}, s7, s5
    s_cmp_ge_u32 {sLOC}, 31
    s_cbranch_scc1 IDLE_WG
    s_cmp_lt_u32 {sW}, 4
    s_cbranch_scc1 XR_MFMA
    s_cmp_lt_u32 {sW}, 6
    s_cbranch_scc1 XR_LD
    """)
    gate_addr(A, "v2")
    if SH:
        A(f"""
        s_sub_u32 s58, s2, 168
        s_add_u32 s59, s58, 80
        s_mov_b32 s60, 1
        s_cmp_eq_u32 {sW}, 6
        s_waitcnt lgkmcnt(0)
        s_cbranch_scc1 PROD
        """)
    A(f"""
    v_lshlrev_b32 v6, 7, v1
    s_mul_i32 s4, {sMT}, 5
    s_add_u32 s4, s4, {sNT}
    s_lshl_b32 s5, s4, 15
    s_lshl_b32 s6, s4, 14
    s_mov_b32 s30, {X_BYTES}
    s_mov_b32 s31, 0x00020000
    s_mov_b32 s34, {U_BYTES}
    s_mov_b32 s35, 0x00020000
    s_waitcnt lgkmcnt(0)
    """)
    if opt.get("tx", 1):
        if not SH:
            A(f"""
            s_cmp_lg_u32 {sW}, 6
            s_cbranch_scc1 XR_TU
            """)
        for i in range(4):
            A(f"buffer_load_dword v{8+i}, v6, s[28:31], s5 offen")
            if i < 3: A("s_add_u32 s5, s5, 8192")
        if not SH:
            A("s_branch XR_TX")
            A.label("XR_TU")
        for i in range(2):
            A(f"buffer_load_dword v{12+i}, v6, s[32:35], s6 offen")
            if i < 1: A("s_add_u32 s6, s6, 8192")
        A.label("XR_TX")
    WT = opt.get("wt", 2)
    NT_ = 12 - opt.get("wtc", 2)
    if not SH:
        A(f"""
        s_cmp_lg_u32 {sW}, 7
        s_cbranch_scc1 XR_W6
        """)
    wt_setup(A, opt, "x")
    k = 0
    for b in range(10):
        for _ in range(WT if b == 0 else opt.get("wtn", 2)):
            if k < NT_:
                wt(A, opt, k, "x"); k += 1
        A("s_barrier")
    A("s_branch P2_MMX")
    if not SH:
        A.label("XR_W6")
        for i in range(5): A("s_barrier")
        poll(A, "XR_G", DBG, "0", "v2", "v3", 0)
        for i in range(5): A("s_barrier")
        A("s_branch P2_MMX")
    A.label("IDLE_WG")
    gate_addr(A, "v2")
    A(f"""
    v_mov_b32 v6, 0
    v_mov_b32 v7, 0
    v_mov_b32 v8, 0
    v_mov_b32 v9, 0
    s_lshl_b32 s58, {sXCD}, 3
    s_add_u32 s58, s58, {sW}
    s_mul_i32 s4, s58, 3072
    s_add_u32 s4, s4, {FLG}
    s_waitcnt lgkmcnt(0)
    """)
    for i in range(3):
        A(f"buffer_store_dwordx4 v[6:9], v5, s[24:27], s4 offen offset:{1024*i} sc1")
    if SH:
        A(f"""
        s_add_u32 s59, s58, 224
        s_add_u32 s58, s58, 160
        s_min_u32 s58, s58, {40 * (12 - SH) - 1}
        s_mov_b32 s60, 0
        """)
        gen_prod(A, opt)
    else:
        A("s_waitcnt vmcnt(0)")
        gate_set(A, opt)
    A.label("IDLE_T")
    A(f"""
    s_cmp_lg_u32 {sW}, 7
    s_cbranch_scc1 IDLE_NT
    """)
    wt_setup(A, opt, "i")
    for k in range(SH - opt.get("wtc", 2) if SH else NT_):
        wt(A, opt, k, "i")
        if k >= WT - 1 and k < NT_ - 1 and not SH: A("s_sleep 12")
    A.label("IDLE_NT")
    if not SH:
        A(f"""
        s_cmp_lg_u32 {sW}, 0
        s_cbranch_scc1 IDLE_G_X
        """)
        poll(A, "IDLE_G", DBG, "0", "v2", "v3", 0, sleep=8)
    A("s_barrier")
    A(f"""
    s_cmp_lt_u32 {sW}, 4
    s_cbranch_scc1 P2_LD
    s_branch P2_MMI
    """)
    A.label("XR_LD")
    if opt.get("cst"): A("s_memtime s[88:89]")
    sOFS, sGRP, sCH = "s43", "s45", "s46"
    vO = 6
    A(f"""
    v_lshrrev_b32 v3, 4, v1
    s_cmp_eq_u32 {sW}, 4
    s_cbranch_scc0 XRL_U
    v_lshrrev_b32 v2, 3, v1
    v_and_b32 v4, 7, v1
    v_xor_b32 v4, v4, v3
    v_lshlrev_b32 v4, 4, v4
    v_mul_u32_u24 v{vO}, 0x500, v2
    v_add_u32 v{vO}, v{vO}, v4
    v_xor_b32 v4, 64, v{vO}
    v_add_u32 v{vO+1}, 9216, v4
    v_add_u32 v{vO+2}, {2*9216}, v{vO}
    v_add_u32 v{vO+3}, {3*9216}, v4
    s_mul_i32 {sOFS}, {sMT}, {128*1280}
    s_mov_b32 {sGRP}, {32*1280}
    s_mov_b32 {sCH}, {128 - 128*1280 + (1<<32)}
    s_movk_i32 s47, 128
    s_mov_b32 m0, 0
    s_mov_b32 s30, {X_BYTES}
    s_waitcnt lgkmcnt(0)
    s_branch XRL_GO
    """)
    A.label("XRL_U")
    A(f"""
    v_and_b32 v4, 15, v1
    v_lshlrev_b32 v2, 2, v3
    v_xor_b32 v4, v4, v2
    v_lshlrev_b32 v4, 4, v4
    v_mul_u32_u24 v{vO}, 0x500, v3
    v_add_u32 v{vO}, v{vO}, v4
    v_add_u32 v{vO+1}, {4*1280-1024}, v{vO}
    v_add_u32 v{vO+2}, {2*(4*1280-1024)}, v{vO}
    v_add_u32 v{vO+3}, {3*(4*1280-1024)}, v{vO}
    s_lshl_b32 {sOFS}, {sNT}, 8
    s_mov_b32 {sGRP}, {16*1280}
    s_mov_b32 {sCH}, 0
    s_mov_b32 s47, {64*1280}
    s_movk_i32 m0, 16384
    s_mov_b32 s30, {U_BYTES}
    s_waitcnt lgkmcnt(0)
    s_mov_b32 s28, s32
    s_mov_b32 s29, s33
    """)
    A.label("XRL_GO")
    A(f"""
    s_mov_b32 s31, 0x00020000
    s_mov_b32 {sC}, 0
    """)
    XRO = opt.get("xra", 0) or opt.get("xrb", 0)
    if XRO:
        A(f"""
        s_mul_i32 s49, {sNT}, {opt.get("xra", 0)}
        s_and_b32 s4, {sMT}, 1
        s_mul_i32 s4, s4, {opt.get("xrb", 0)}
        s_add_u32 s49, s49, s4
        s_mul_i32 s4, s49, 205
        s_lshr_b32 s4, s4, 11
        s_mul_i32 s4, s4, 10
        s_sub_u32 s49, s49, s4
        s_mul_i32 s4, s49, s47
        s_add_u32 {sOFS}, {sOFS}, s4
        s_mul_i32 s47, s47, 10
        s_sub_u32 s49, 10, s49
        """)
    A.label("XRL_LOOP")
    for g in range(4):
        for j in range(4):
            A(f"buffer_load_dwordx4 v{vO+j}, s[28:31], {sOFS} offen offset:{1024*j} lds")
        A(f"""
        s_add_u32 m0, m0, 4096
        s_add_u32 {sOFS}, {sOFS}, {sGRP}
        """)
    A(f"""
    s_add_u32 {sOFS}, {sOFS}, {sCH}
    s_add_u32 m0, m0, 16384
    s_and_b32 m0, m0, {4*XSTAGE-1}
    s_add_u32 {sC}, {sC}, 1
    """)
    if XRO:
        A(f"""
        s_cmp_eq_u32 {sC}, s49
        s_cselect_b32 s4, s47, 0
        s_sub_u32 {sOFS}, {sOFS}, s4
        """)
    A(f"""
    s_and_b32 s4, {sC}, 13
    s_cmp_eq_u32 s4, 1
    s_cbranch_scc1 XRL_LOOP
    """)
    cst(A, opt, sC, 32)
    A(f"""
    s_cmp_eq_u32 {sC}, 2
    s_cbranch_scc0 XRL_W
    s_waitcnt vmcnt(16)
    """)
    A.label("XRL_W")
    A("s_waitcnt vmcnt(32)")
    cst(A, opt, sC, 16)
    A("s_barrier")
    cst(A, opt, sC, 0)
    A(f"""
    s_cmp_lt_u32 {sC}, 10
    s_cbranch_scc1 XRL_LOOP
    s_waitcnt vmcnt(16)
    """)
    cst(A, opt, 0, 27)
    A("s_barrier")
    cst(A, opt, 0, 11)
    A("s_waitcnt vmcnt(0)")
    cst(A, opt, 0, 28)
    A("s_barrier")
    cst(A, opt, 0, 12)
    cst_out(A, opt)
    A("s_branch P2_MMX")
    A.label("XR_MFMA")
    sCST = "s43"
    vXR = 6
    vUR = 10
    vT = 12
    vACC = 20
    vF = 84
    A(f"""
    s_lshr_b32 s4, {sW}, 1
    s_and_b32 s5, {sW}, 1
    s_lshl_b32 s6, s4, 13
    v_and_b32 v3, 31, v1
    v_bfe_u32 v4, v1, 1, 3
    v_lshrrev_b32 v{vT}, 5, v1
    v_xor_b32 v4, v4, v{vT}
    v_lshlrev_b32 v4, 4, v4
    v_lshl_add_u32 v4, v3, 7, v4
    v_add_u32 v{vXR}, s6, v4
    v_xor_b32 v{vXR+1}, 32, v{vXR}
    v_xor_b32 v{vXR+2}, 64, v{vXR}
    v_xor_b32 v{vXR+3}, 96, v{vXR}
    v_bfe_u32 v2, v1, 4, 1
    v_bfe_u32 v3, v1, 2, 2
    s_lshl_b32 s6, s5, 1
    v_xor_b32 v4, s6, v3
    v_lshlrev_b32 v4, 6, v4
    v_lshl_add_u32 v4, v3, 8, v4
    v_lshl_add_u32 v4, v{vT}, 11, v4
    v_lshl_add_u32 v4, v2, 5, v4
    v_and_b32 v3, 3, v1
    v_lshl_add_u32 v4, v3, 3, v4
    v_add_u32 v{vUR}, 16384, v4
    v_xor_b32 v{vUR+1}, 64, v{vUR}
    s_mov_b32 {sCST}, 0
    s_mov_b32 {sC}, 0
    s_lshl_b32 s6, {sMT}, 1
    s_add_u32 s6, s6, s4
    s_lshl_b32 s7, {sNT}, 1
    s_add_u32 s7, s7, s5
    s_mul_i32 s51, s4, 10
    s_add_u32 s51, s51, s7
    s_lshl_b32 s51, s51, 2
    s_lshl_b32 s52, {sMT}, 11
    s_add_u32 s51, s51, s52
    s_add_u32 s51, s51, {XFLG}
    s_mov_b32 s53, 7
    s_mul_i32 s6, s6, 80
    s_lshl_b32 s7, s7, 2
    s_add_u32 s6, s6, s7
    s_lshl_b32 s50, s6, 10
    s_add_u32 s52, s50, 40960
    """)
    for i in range(0, 64, 2):
        A(f"v_mov_b64 {vr(vACC+i,2)}, 0")
    for i in range(0, 64, 2):
        A(f"v_mov_b64 {vr(vF+64+i,2)}, 0")
    A("s_waitcnt lgkmcnt(0)")

    def reads(s, buf):
        f = vF + 64 * buf + 16 * s
        r = []
        for tn in range(2):
            r.append(f"ds_read_b128 {vr(f+8+4*tn,4)}, v{vT+s} offset:{4096*tn}")
            for u in range(2):
                r.append(f"ds_read_b64_tr_b16 {vr(f+4*tn+2*u,2)}, v{vT+4+tn} offset:{s*4096+u*1024}")
        return r

    def mfmas(s, buf):
        f = vF + 64 * buf + 16 * s
        r = []
        for tm in range(2):
            for tn in range(2):
                acc = vACC + 32 * tm + 16 * tn
                r.append(f"v_mfma_f32_32x32x16_bf16 {vr(acc,16)}, {vr(f+4*tn,4)}, {vr(f+8+4*tm,4)}, {vr(acc,16)}")
        return r

    A.label("XR_LOOP")
    for buf in range(2):
        for i in range(4):
            A(f"v_add_u32 v{vT+i}, {sCST}, v{vXR+i}")
        for i in range(2):
            A(f"v_add_u32 v{vT+4+i}, {sCST}, v{vUR+i}")
        A(f"""
        s_add_u32 {sCST}, {sCST}, {XSTAGE}
        s_and_b32 {sCST}, {sCST}, {4*XSTAGE-1}
        s_barrier
        """)
        rd = sum((reads(s_, buf) for s_ in range(4)), [])
        mf = sum((mfmas(s_, buf ^ 1) for s_ in range(4)), [])
        ri = 0
        for m in mf:
            A(m)
            for x in rd[ri:ri + 2]: A(x)
            ri += 2
        for x in rd[ri:]: A(x)
        A("s_waitcnt lgkmcnt(0)")
    A(f"""
    s_add_u32 {sC}, {sC}, 2
    s_cmp_lt_u32 {sC}, 10
    s_cbranch_scc1 XR_LOOP
    s_barrier
    """)
    for s_ in range(4):
        for m in mfmas(s_, 1): A(m)
    A("s_nop 15")
    stamp(A, opt, 3)
    for tm in range(2):
        for i in range(4):
            a = vACC + 32 * tm + 8 * i
            o = vF + 16 * tm + 4 * i
            for j in range(4):
                A(f"v_cvt_pk_bf16_f32 v{o+j}, v{a+2*j}, v{a+2*j+1}")
            A(f"buffer_store_dwordx4 {vr(o,4)}, v5, s[24:27], s{50+2*tm} offen offset:{1024*i} sc1")


VX = 96


def xload(A, opt, kb):
    A(f"buffer_load_dwordx4 {vr(VX+4*kb,4)}, v5, s[24:27], s20 offen offset:{1024 * (kb & 3)} sc1")
    if kb & 3 == 3 and kb < 39:
        A("s_add_u32 s20, s20, 4096")


def p2_rot(A, opt):
    lm = MAP["m"]
    A(f"""
    s_and_b32 s17, s3, {(1 << lm) - 1}
    s_mul_i32 s17, s17, 0
    s_lshr_b32 s16, s3, {lm}
    s_mul_i32 s16, s16, 0
    s_add_u32 s17, s17, s16
    s_mul_i32 s16, s17, 205
    s_lshr_b32 s16, s16, 11
    s_mul_i32 s16, s16, 10
    s_sub_u32 s17, s17, s16
    s_lshl_b32 s17, s17, 12
    """)


def gen_p2(A, opt):
    NA = opt.get("na", 2)
    OLD = opt.get("old", 0)
    order = [(n, kb) for kb in range(40) for n in range(NA)] + [(n, kb) for n in range(NA, 3) for kb in range(40)]
    groups = []
    for n, kb in order:
        if (n, kb // 4) not in groups: groups.append((n, kb // 4))
    CH = {1: [2, 2, 4, 4, 4, 4, 10], 2: [2, 2, 2, 2, 4, 4, 4, 5, 5], 3: [2, 4, 6, 8, 10], 4: [3, 3, 6, 6, 6, 6],
          5: [1, 1, 2, 2, 4, 10, 10]}[opt.get("ch", 1)]
    assert sum(CH) == 30
    st = [sum(CH[:i]) for i in range(len(CH) + 1)]
    A.label("P2_PUB")
    publish(A, opt, "s51", "s53")
    A.label("P2_LD")
    p2_tile(A)
    if OLD: p2_rot(A, opt)
    A(f"""
    s_mul_i32 s22, s39, 122880
    s_add_u32 s22, s22, {W2F}
    s_lshl_b32 s21, s36, 10
    s_add_u32 s22, s22, s21
    """)
    if OLD: A("""
    s_add_u32 s20, s22, s17
    s_add_u32 s19, s22, 40960
    """)
    A(f"""
    v_lshlrev_b32 v2, 2, v1
    v_mov_b32 v4, {LFLAG}
    s_cmp_lg_u32 s36, 0
    s_cbranch_scc1 P2_LW0
    """)
    if OLD: A("""
    s_sub_u32 s4, s44, s45
    s_sub_u32 s4, s4, 168
    """)
    A("v_cmp_gt_u32 vcc, 42, v1")
    if OLD: A("v_add_u32 v3, s4, v2")
    A("""
    v_mov_b32 v3, 0
    v_cndmask_b32 v2, v3, v2, vcc
    """)
    poll(A, "P2_W", "s[24:27]", "s45", "v2", "v3", DC_W, sleep=opt.get("wsl", 16),
         st=(lambda: stamp(A, opt, 1)) if opt.get("pst") else None)

    def lds_wait(name, ofs, vd, va):
        A(f"s_branch {name}")
        A.label(name + "_S")
        A(f"s_sleep {opt.get('lsl', 1)}")
        A.label(name)
        A(f"""
        ds_read_b32 {vd}, {va} offset:{ofs}
        s_waitcnt lgkmcnt(0)
        """)
        poll_check(A, vd, 0, name + "_S")
    A(f"""
    v_mov_b32 v3, 1
    ds_write_b32 v4, v3 offset:4
    s_branch P2_GO
    """)
    A.label("P2_LW0")
    lds_wait("P2_LW", 4, "v3", "v4")
    A.label("P2_GO")
    stamp(A, opt, 5)
    AH = opt.get("ah", 3)

    def issue(c):
        for n, q in groups[st[c]:st[c + 1]]:
            off = (n * 40 + q * 4) * 1024
            A(f"""
            s_add_u32 s5, s22, {off}
            s_add_u32 m0, s21, {off}
            s_nop 0
            buffer_load_dwordx4 v5, s[24:27], s5 offen sc1 lds
            """)

    for c in range(min(AH, len(CH))): issue(c)
    for c in range(len(CH)):
        issued = min(len(CH), AH + c)
        A(f"s_waitcnt vmcnt({st[issued] - st[c+1]})")
        A("s_barrier")
        if AH + c < len(CH): issue(AH + c)
    stamp(A, opt, 6)
    A("s_branch K_EXIT")

    vACC = 8
    vF = 56
    NF = 8
    vO = 88
    A.label("P2_MMX")
    A("s_barrier")
    A.label("P2_MMI")
    A.label("P2_MM")
    if not opt.get("sh"): stamp(A, opt, 2)
    p2_tile(A)
    if OLD: p2_rot(A, opt)
    A(f"""
    s_lshl_b32 s4, s38, 2
    s_add_u32 s4, s4, s36
    s_sub_u32 s4, s4, 4
    """)
    if OLD:
        A("""
        s_mul_i32 s18, s4, 40960
        s_add_u32 s19, s18, 40960
        s_add_u32 s20, s18, s17
        """)
    else:
        A("s_mul_i32 s20, s4, 40960")
    A(f"""
    s_mul_i32 s4, s4, {32*3072}
    s_mul_i32 s5, s39, 192
    s_add_u32 s23, s4, s5
    s_add_u32 s22, s23, {16*3072}
    """)
    A("""
    v_bfe_u32 v2, v1, 2, 1
    v_bfe_u32 v4, v1, 3, 2
    v_and_b32 v3, 0x23, v1
    v_lshl_add_u32 v3, v2, 4, v3
    v_lshl_add_u32 v3, v4, 2, v3
    v_lshlrev_b32 v3, 4, v3
    v_and_b32 v6, 15, v1
    v_and_b32 v7, 48, v1
    v_mul_u32_u24 v6, 0xc00, v6
    v_add_u32 v6, v6, v7
    v_add_u32 v4, 61440, v3
    s_waitcnt vmcnt(0)
    """)
    A(f"""
    v_min_u32 v2, 19, v1
    v_lshlrev_b32 v2, 2, v2
    v_mov_b32 v8, {LFLAG}
    s_cmp_lg_u32 s36, 7
    s_cbranch_scc1 P2_XW
    """)
    poll(A, "P2_X", "s[24:27]", "s44", "v2", "v7", 0, sleep=opt.get("xsl", 16))
    if opt.get("xap"):
        A("""
        s_cmp_ge_u32 s3, 31
        s_cbranch_scc1 P2_XA_X
        """)
        A.label("P2_XA")
        A("""
        ds_read_b32 v7, v8 offset:8
        s_waitcnt lgkmcnt(0)
        v_readfirstlane_b32 s4, v7
        s_cmp_lt_u32 s4, 4
        s_cbranch_scc1 P2_XA
        """)
        A.label("P2_XA_X")
    A("""
    v_mov_b32 v7, 1
    ds_write_b32 v8, v7
    s_branch P2_XW_X
    """)
    A.label("P2_XW_S")
    A("s_sleep 2")
    A.label("P2_XW")
    A("""
    ds_read_b32 v7, v8
    s_waitcnt lgkmcnt(0)
    """)
    poll_check(A, "v7", 0, "P2_XW_S")
    A.label("P2_XW_X")
    stamp(A, opt, 1)
    for kb in range(40): xload(A, opt, kb)
    stamp(A, opt, 5, True)

    def epi(t, o=vO):
        a = vACC + 16 * t
        return [[f"v_cvt_pk_bf16_f32 v{o+j}, v{a+2*j}, v{a+2*j+1}" for j in range(4)],
                [f"v_cvt_pk_bf16_f32 v{o+j}, v{a+2*j}, v{a+2*j+1}" for j in range(4, 8)],
                ["s_nop 1"] + [f"v_permlane16_swap_b32 v{o+j}, v{o+4+j}" for j in range(4)],
                [f"buffer_store_dwordx4 {vr(o,4)}, v6, s[96:99], s23 offen offset:{64*t}",
                 f"buffer_store_dwordx4 {vr(o+4,4)}, v6, s[96:99], s22 offen offset:{64*t}"]]

    RA = opt.get("ra", 6)
    assert RA < NF
    seen = [0]

    def read(i):
        n, kb = order[i]
        g = groups.index((n, kb // 4))
        while st[seen[0]] <= g:
            A("s_barrier")
            seen[0] += 1
        off = (n * 40 + kb) * 1024
        base, o = ("v3", off) if off < 61440 else ("v4", off - 61440)
        A(f"ds_read_b128 {vr(vF+4*(i%NF),4)}, {base} offset:{o}")

    for i in range(RA): read(i)
    pending = []
    done = set()
    last = {n: max(i for i, x in enumerate(order) if x[0] == n) for n in range(3)}
    for i, (n, kb) in enumerate(order):
        if n == 0: A(f"s_waitcnt vmcnt({40 - kb - 1})")
        A(f"s_waitcnt lgkmcnt({min(120, i + RA) - i - 1})")
        acc = vACC + 16 * n
        c = "0" if kb == 0 else vr(acc, 16)
        A(f"v_mfma_f32_32x32x16_bf16 {vr(acc,16)}, {vr(vF+4*(i%NF),4)}, {vr(VX+4*kb,4)}, {c}")
        if i == 0 and opt.get("stamp"):
            stamp(A, opt, 3)
            A("s_memtime s[80:81]\ns_nop 7\ns_nop 7\ns_waitcnt lgkmcnt(0)")
        if i == 0 and opt.get("probe") == 3:
            stamp(A, opt, 3)
            A("s_nop 7\ns_nop 7\ns_waitcnt lgkmcnt(0)")
        if i + RA < 120: read(i + RA)
        for t in range(3):
            if i == last[t] + 3:
                pending += epi(t) + [[], [], [], []]
                done.add(t)
        if pending:
            for x in pending.pop(0): A(x)
    assert seen[0] == len(CH)
    A("s_nop 15")
    stamp(A, opt, 6)
    if opt.get("stamp"):
        A("s_memtime s[82:83]\ns_waitcnt lgkmcnt(0)\ns_sub_u32 s72, s82, s80")
        if opt.get("sh"): A("s_and_b32 s90, s90, 127\ns_lshl_b32 s90, s90, 24\ns_or_b32 s72, s72, s90")
    k = 0
    for t in range(3):
        if t in done: continue
        for x in sum(epi(t, vF + 8 * k), []): A(x)
        k += 1


def descriptor(name, vgpr, accum, sgpr):
    return f""".amdhsa_kernel {name}
  .amdhsa_next_free_vgpr {vgpr}
  .amdhsa_next_free_sgpr {sgpr}
  .amdhsa_accum_offset {accum}
  .amdhsa_group_segment_fixed_size 0
  .amdhsa_kernarg_size 72
  .amdhsa_user_sgpr_count 2
  .amdhsa_user_sgpr_kernarg_segment_ptr 1
  .amdhsa_system_sgpr_workgroup_id_x 1
  .amdhsa_float_denorm_mode_32 3
.end_amdhsa_kernel
"""


def generate(opt):
    out = HEADER
    MAP["m"] = opt.get("map", 2)
    out += f"; @launch grid=(256,1,1) block=(512,1,1) lds={LDS1 + 1024}\n"
    out += '.amdgcn_target "amdgcn-amd-amdhsa--gfx950"\n.text\n'
    A = Asm()
    out += f".globl {KNAME}\n.p2align 8\n.type {KNAME},@function\n"
    gen_kernel(A, opt)
    out += A.text()
    out += "CODE_END:\n"
    out += '.section .rodata,"a"\n.p2align 6\n'
    out += descriptor(KNAME, 256, 256, 100)
    return out


if __name__ == "__main__":
    path = sys.argv[1] if len(sys.argv) > 1 else "standalone__weight_only_int_quip__prompt.s"
    opt = {}
    for a in sys.argv[2:]:
        k, _, v = a.partition("=")
        opt[k] = int(v) if v else 1
    open(path, "w").write(generate(opt))
    print("wrote", path)
```

```python
import sys

KNAME = "standalone__weight_only_int_quip__prompt_kernel"
HEADER = """; Kernarg layout for this problem (72 bytes, ptrs only, base s[0:1]):
"""

XRF = 0
W2F = 64 * 40 * 1024
FLG = W2F + 48 * 40 * 1024
XFLG = FLG + 256 * 256
SFLG = XFLG + 256 * 128
FLG_END = FLG + 64 * 3 * 1024
SA = FLG_END
WS_USED = SA + 40 * 12 * 4096
assert SFLG + 168 * 256 <= FLG_END

X_BYTES = 2048 * 640 * 2
QW_BYTES = 640 * 1536 * 4
SC_BYTES = 20 * 1536 * 2
U_BYTES = 640 * 640 * 2
V_BYTES = 1536 * 1536 * 2
OUT_BYTES = 2048 * 1536 * 2

VSTAGE = 32768
ABASE = 3 * VSTAGE
ASTAGE = 12288
TBL = ABASE + 2 * ASTAGE
LDS1 = TBL + 24576
LFLAG = LDS1
QE = 112
XSTAGE = 32768
POLL_MAX = 40000


class Asm:
    def __init__(self):
        self.lines = []

    def __call__(self, s):
        for l in s.strip("\n").split("\n"):
            if not l.strip(): continue
            self.lines.append("    " + l.strip() if not l.strip().endswith(":") else l.strip())

    def label(self, s):
        self.lines.append(s + ":")

    def comment(self, s):
        self.lines.append("    ; " + s)

    def text(self):
        return "\n".join(self.lines) + "\n"


def vr(a, n):
    return f"v[{a}:{a+n-1}]"


STAMP_OFS = 32 << 20
NSTAMP = 8


def stamp(A, opt, i, wait=False):
    if opt.get("stamp") or ("probe" in opt and i in (0, opt["probe"])):
        A(f"s_memrealtime s[{64+2*i}:{65+2*i}]")
        if wait: A("s_waitcnt lgkmcnt(0)")


def stamp_begin(A, opt):
    if opt.get("stamp") or "probe" in opt:
        for i in range(1, NSTAMP):
            A(f"s_mov_b32 s{64+2*i}, 0")
        A("s_mov_b32 s90, 0")
    stamp(A, opt, 0)


def stamp_end(A, opt):
    if "probe" in opt:
        p = opt["probe"]
        wl, wh = opt.get("pwl", 0), opt.get("pwh", 7)
        gl, gh = opt.get("pgl", 0), opt.get("pgh", 255)
        A(f"""
        s_waitcnt vmcnt(0) lgkmcnt(0)
        s_memrealtime s[78:79]
        s_waitcnt lgkmcnt(0)
        s_cmp_gt_u32 s2, {gh}
        s_cbranch_scc1 PRB_X
        s_cmp_lt_u32 s2, {gl}
        s_cbranch_scc1 PRB_X
        s_cmp_lt_u32 s36, {wl}
        s_cbranch_scc1 PRB_X
        s_cmp_gt_u32 s36, {wh}
        s_cbranch_scc1 PRB_X
        s_cmp_eq_u32 s{64+2*p}, 0
        s_cbranch_scc1 PRB_X
        s_sub_u32 s4, s{64+2*p}, s64
        s_mul_i32 s4, s4, 3
        s_min_u32 s4, s4, 20000
        """)
        A.label("PRB")
        A("""
        s_memrealtime s[6:7]
        s_waitcnt lgkmcnt(0)
        s_sub_u32 s5, s6, s78
        s_cmp_lt_u32 s5, s4
        s_cbranch_scc1 PRB
        """)
        A.label("PRB_X")
    if opt.get("stamp"):
        A("s_waitcnt vmcnt(0) lgkmcnt(0)")
        stamp(A, opt, NSTAMP - 1)
        A(f"""
        s_load_dwordx2 s[56:57], s[0:1], 64
        s_waitcnt lgkmcnt(0)
        s_mov_b32 s58, 0x7fffffff
        s_mov_b32 s59, 0x00020000
        v_lshrrev_b32 v1, 6, v0
        v_lshlrev_b32 v1, 5, v1
        s_lshl_b32 s4, s2, 8
        s_add_u32 s4, s4, {STAMP_OFS}
        """)
        for i in range(NSTAMP):
            A(f"v_mov_b32 v{4+i}, s{64+2*i}")
        A("""
        buffer_store_dwordx4 v[4:7], v1, s[56:59], s4 offen
        buffer_store_dwordx4 v[8:11], v1, s[56:59], s4 offen offset:16
        """)
    A("s_endpgm")


def cst(A, opt, sidx, add):
    if not opt.get("cst"): return
    A(f"""
    s_memtime s[84:85]
    s_add_u32 s86, {sidx}, {add}
    v_cmp_eq_u32 vcc, s86, v1
    s_waitcnt lgkmcnt(0)
    v_mov_b32 v231, s84
    v_cndmask_b32 v230, v230, v231, vcc
    """)


def cst_out(A, opt):
    if not opt.get("cst"): return
    A(f"""
    v_writelane_b32 v230, s88, 48
    s_mov_b64 s[84:85], s[24:25]
    s_mov_b32 s86, 0x7fffffff
    s_mov_b32 s87, 0x00020000
    v_lshlrev_b32 v231, 2, v0
    s_lshl_b32 s4, s2, 11
    s_add_u32 s4, s4, {STAMP_OFS + (1 << 20)}
    buffer_store_dword v230, v231, s[84:87], s4 offen
    """)


def poll_check(A, vdst, dc, again):
    A(f"v_cmp_ne_u32 vcc, 0, {vdst}")
    if dc & 0xffffffff: A(f"s_or_b32 vcc_lo, vcc_lo, {hex(dc & 0xffffffff)}")
    if dc >> 32: A(f"s_or_b32 vcc_hi, vcc_hi, {hex(dc >> 32)}")
    A(f"""
    s_cmp_eq_u64 vcc, -1
    s_cbranch_scc0 {again}
    """)


def poll(A, name, srd, soff, vaddr, vdst, dc, scnt="s7", sleep=0, st=None):
    A(f"s_mov_b32 {scnt}, {POLL_MAX}")
    if sleep: A(f"s_branch {name}_1")
    A.label(name)
    if sleep:
        A(f"s_sleep {sleep}")
        A.label(name + "_1")
    A(f"""
    s_sub_u32 {scnt}, {scnt}, 1
    s_cbranch_scc1 {name}_X
    """)
    if st: st()
    A(f"""
    buffer_load_dword {vdst}, {vaddr}, {srd}, {soff} offen sc1
    s_waitcnt vmcnt(0)
    """)
    A.label(name + "_C")
    poll_check(A, vdst, dc, name)
    A.label(name + "_X")


def ppoll(A, name, srd, soff, vaddr, v0, n, dc, sleep, scnt="s7"):
    A(f"s_mov_b32 {scnt}, {POLL_MAX}")
    for i in range(n - 1):
        A(f"buffer_load_dword v{v0+i}, {vaddr}, {srd}, {soff} offen sc1")
        if sleep: A(f"s_sleep {sleep}")
    A.label(name)
    A(f"""
    s_sub_u32 {scnt}, {scnt}, 1
    s_cbranch_scc1 {name}_X
    """)
    for i in range(n):
        A(f"""
        buffer_load_dword v{v0+(i+n-1)%n}, {vaddr}, {srd}, {soff} offen sc1
        s_waitcnt vmcnt({n-1})
        v_cmp_ne_u32 vcc, 0, v{v0+i}
        """)
        if dc & 0xffffffff: A(f"s_or_b32 vcc_lo, vcc_lo, {hex(dc & 0xffffffff)}")
        if dc >> 32: A(f"s_or_b32 vcc_hi, vcc_hi, {hex(dc >> 32)}")
        A(f"""
        s_cmp_eq_u64 vcc, -1
        s_cbranch_scc1 {name}_X
        """)
        if sleep: A(f"s_sleep {sleep}")
    A(f"s_branch {name}")
    A.label(name + "_X")


DC_W = 0xFFFFFC0000000000
DBG = "s[92:95]"
MAP = {"m": 2}


def p2_tile(A):
    lm = MAP["m"]
    ln = 5 - lm
    xm = 4 - lm
    A(f"""
    s_and_b32 s38, s37, {(1 << xm) - 1}
    s_lshl_b32 s38, s38, {lm}
    s_and_b32 s39, s3, {(1 << lm) - 1}
    s_add_u32 s38, s38, s39
    s_lshr_b32 s39, s37, {xm}
    s_lshl_b32 s39, s39, {ln}
    s_lshr_b32 s4, s3, {lm}
    s_add_u32 s39, s39, s4
    """)
    if MAP["lf"]:
        A(f"""
        s_mul_i32 s45, s39, {42*128}
        s_add_u32 s45, s45, {FLG}
        s_mul_i32 s44, s38, {20*128}
        s_add_u32 s44, s44, {FLG + 672*128}
        """)
        return
    A(f"""
    s_lshl_b32 s45, s38, 4
    s_add_u32 s45, s45, s39
    s_lshl_b32 s44, s45, 7
    s_add_u32 s44, s44, {XFLG}
    s_lshl_b32 s45, s45, 8
    s_add_u32 s45, s45, {FLG}
    """)


def publish(A, opt, sflag, sshift):
    A(f"""
    v_mov_b32 v2, 1
    v_lshlrev_b32 v3, {sshift}, v1
    s_waitcnt vmcnt(0)
    s_mov_b64 exec, {1 if MAP["lf"] else "0xffff"}
    buffer_store_dword v2, v3, s[24:27], {sflag} offen sc1
    """)
    if opt.get("xap"):
        A(f"""
        v_mov_b32 v3, {LFLAG}
        s_mov_b64 exec, 1
        ds_add_u32 v3, v2 offset:8
        """)
    A("s_mov_b64 exec, -1")
    stamp(A, opt, 4)


def gen_kernel(A, opt):
    A.label(KNAME)
    stamp_begin(A, opt)
    A("""
    s_load_dwordx2 s[8:9], s[0:1], 8
    s_load_dwordx2 s[12:13], s[0:1], 40
    s_load_dwordx2 s[16:17], s[0:1], 16
    s_load_dwordx2 s[20:21], s[0:1], 24
    s_load_dwordx2 s[28:29], s[0:1], 0
    s_load_dwordx2 s[32:33], s[0:1], 32
    s_load_dwordx2 s[24:25], s[0:1], 64
    s_load_dwordx2 s[92:93], s[0:1], 56
    s_load_dwordx2 s[96:97], s[0:1], 48
    s_cmp_ge_u32 s2, 256
    s_cbranch_scc1 K_EXIT
    v_and_b32 v1, 63, v0
    v_lshrrev_b32 v2, 6, v0
    s_getpc_b64 s[4:5]
    """)
    A.label("P1_PC")
    A(f"""
    v_readfirstlane_b32 s36, v2
    """)
    CP = opt.get("cp", 0)
    if CP:
        A(f"""
        s_lshr_b32 s3, s2, 3
        s_lshl_b32 s37, s3, 2
        v_min_u32 v3, {CP-1}, v1
        v_add_u32 v3, s37, v3
        v_and_b32 v3, 127, v3
        v_lshlrev_b32 v3, 7, v3
        v_min_u32 v3, CODE_END-P1_PC-4, v3
        s_and_b32 s37, s2, 7
        s_cmp_lg_u32 s36, {opt.get("cpw", 7)}
        s_cbranch_scc1 P1_NOPF
        global_load_dword v250, v3, s[4:5]
        """)
    else:
        A(f"""
        v_lshlrev_b32 v3, 7, v1
        v_add_u32 v4, 0x2000, v3
        v_min_u32 v4, CODE_END-P1_PC-4, v4
        s_lshr_b32 s3, s2, 3
        s_and_b32 s37, s2, 7
        s_cmp_lg_u32 s36, 7
        s_cbranch_scc1 P1_NOPF
        global_load_dword v250, v3, s[4:5]
        global_load_dword v251, v4, s[4:5]
        """)
    A(f"""
    v_mov_b32 v2, 0
    v_mov_b32 v3, 0
    v_mov_b32 v4, {LFLAG}
    ds_write_b64 v4, v[2:3]
    """)
    A.label("P1_NOPF")
    A(f"""
    s_mov_b32 s11, 0x00020000
    s_mov_b32 s15, 0x00020000
    s_mov_b32 s27, 0x00020000
    s_mov_b32 s26, {WS_USED}
    s_movk_i32 s94, 256
    s_mov_b32 s95, 0x00020000
    s_mov_b32 s98, {OUT_BYTES}
    s_mov_b32 s99, 0x00020000
    v_lshlrev_b32 v5, 4, v1
    s_cmp_ge_u32 s3, 21
    s_cbranch_scc1 P1_XR
    """)
    gen_w2(A, opt)
    A.label("P1_XR")
    gen_xr(A, opt)
    gen_p2(A, opt)
    A.label("K_EXIT")
    stamp_end(A, opt)


def gate_addr(A, v):
    A(f"""
    v_and_b32 {v}, 7, v1
    v_lshlrev_b32 {v}, 2, {v}
    """)


def gen_w2(A, opt):
    NQ = 2
    SH = opt.get("sh", 0)
    RING = 3 * VSTAGE
    RG = opt.get("rg", 2)
    sW, sLOC, sXCD = "s36", "s3", "s37"
    sMI, sNI = "s40", "s41"
    sC = "s49"
    sVOFS = "s43"
    vVO = 6
    if opt.get("cst"): A("s_memtime s[88:89]")
    A(f"""
    s_mul_i32 s4, {sLOC}, 171
    s_lshr_b32 s4, s4, 9
    s_mul_i32 s5, s4, 3
    s_sub_u32 s5, {sLOC}, s5
    s_lshr_b32 s6, {sXCD}, 2
    s_mul_i32 s6, s6, 7
    s_add_u32 {sMI}, s6, s4
    s_and_b32 s6, {sXCD}, 3
    s_mul_i32 s6, s6, 3
    s_add_u32 {sNI}, s6, s5
    s_mul_i32 s42, {sMI}, 3
    s_mov_b32 s57, s5
    """)
    RL = opt.get("rl", 0)
    if RL:
        A(f"""
        s_add_u32 s58, s4, s5
        s_mul_i32 s6, s58, 171
        s_lshr_b32 s6, s6, 9
        s_mul_i32 s6, s6, 3
        s_sub_u32 s58, s58, s6
        s_cmp_ge_u32 s4, 3
        s_cselect_b32 s6, 3, 2
        s_cmp_eq_u32 s58, 2
        s_cselect_b32 s58, s6, s58
        """)
    A(f"""
    s_sub_u32 s4, {sW}, 4
    s_cmp_lt_u32 s4, 3
    s_cbranch_scc1 W2_DEQ
    s_mov_b32 s14, {V_BYTES}
    v_lshrrev_b32 v2, 4, v1
    v_and_b32 v3, 15, v1
    v_lshlrev_b32 v4, 1, v2
    v_xor_b32 v3, v3, v4
    v_lshlrev_b32 v3, 4, v3
    v_mul_u32_u24 v4, 0xc00, v2
    v_add_u32 v{vVO}, v3, v4
    v_add_u32 v{vVO+1}, 11264, v{vVO}
    v_xor_b32 v3, 0x80, v{vVO}
    v_add_u32 v{vVO+2}, {2*11264}, v3
    v_add_u32 v{vVO+3}, {3*11264}, v3
    s_lshl_b32 {sVOFS}, {sNI}, 8
    s_cmp_lt_u32 {sW}, 4
    s_cbranch_scc1 W2_MFMA
    """)

    def v_group():
        for j in range(4):
            A(f"buffer_load_dwordx4 v{vVO+j}, s[12:15], {sVOFS} offen offset:{1024*j} lds")

    GPC = opt.get("gpc", 2 if SH else 4)
    for g in range(1, 8):
        for j in range(4):
            A(f"v_add_u32 v{vVO+4*g+j}, {g*16*3072}, v{vVO+j}")
    gate_addr(A, "v40")
    LP, LG = opt.get("lp", 0), opt.get("lg", 1)
    A(f"""
    s_mov_b32 m0, {VSTAGE}
    s_mov_b32 {sC}, 1
    """)
    if RL:
        A(f"""
        s_cmp_eq_u32 s58, 3
        s_cselect_b32 s59, {VSTAGE}, 0
        s_cselect_b32 s60, 393216, 0
        s_sub_u32 m0, m0, s59
        s_sub_u32 {sVOFS}, {sVOFS}, s60
        """)
    A("s_waitcnt lgkmcnt(0)")
    stamp(A, opt, 1)
    cst(A, opt, 0, 49)
    ST = 7 if RL else opt.get("st", 0)
    if ST & 1:
        cst(A, opt, 0, 50)
        A("s_barrier")
        cst(A, opt, 0, 51)
        A(f"s_setprio {opt.get('lpr', 3)}")
    A.label("W2L_LOOP")
    A(f"""
    s_add_u32 {sVOFS}, {sVOFS}, 393216
    s_cmp_lg_u32 {sC}, {GPC}
    s_cbranch_scc1 W2L_NG
    buffer_load_dword v42, v40, {DBG}, 0 offen sc1
    """)
    A.label("W2L_NG")
    for g in range(8):
        if g == 6: A("s_waitcnt vmcnt(54)")
        for j in range(4):
            A(f"buffer_load_dwordx4 v{vVO+4*g+j}, s[12:15], {sVOFS} offen offset:{1024*j} lds")
            if j == 3: A("s_add_u32 m0, m0, 4096")
            if j == 3 and g < 7: A("s_nop 0")
    A(f"""
    s_cmp_ge_u32 m0, {RING}
    s_cselect_b32 m0, 0, m0
    """)
    if RL:
        A(f"""
        s_cmp_eq_u32 s59, 0
        s_cbranch_scc1 W2L_R
        s_add_u32 m0, m0, s59
        s_add_u32 {sVOFS}, {sVOFS}, s60
        s_mov_b32 s59, 0
        s_waitcnt vmcnt(0)
        """)
        A.label("W2L_R")
    if not ST & 1:
        A(f"""
        s_cmp_lg_u32 {sC}, 1
        s_cbranch_scc1 W2L_NT
        """)
        cst(A, opt, 0, 50)
        A("s_barrier")
        cst(A, opt, 0, 51)
        A(f"s_setprio {opt.get('lpr', 3)}")
        A.label("W2L_NT")
    cst(A, opt, sC, 31)
    A(f"""
    s_waitcnt vmcnt(32)
    s_cmp_lg_u32 {sC}, {GPC}
    s_cbranch_scc1 W2L_G_X
    """)
    poll_check(A, "v42", 0, "W2L_GS")
    A.label("W2L_G_X")
    cst(A, opt, sC, 15)
    A("s_barrier")
    cst(A, opt, sC, -1)
    A(f"""
    s_add_u32 {sC}, {sC}, 1
    s_cmp_lt_u32 {sC}, {12 - (1 if LP else 0)}
    s_cbranch_scc1 W2L_LOOP
    """)
    if LP:
        A(f"s_add_u32 {sVOFS}, {sVOFS}, 393216")
        for g in range(8):
            if g == 6: A("s_waitcnt vmcnt(54)")
            for j in range(4):
                A(f"buffer_load_dwordx4 v{vVO+4*g+j}, s[12:15], {sVOFS} offen offset:{1024*j} lds")
                if j == 3: A("s_add_u32 m0, m0, 4096")
                if (4 * g + j + 1) % LG == 0 and 4 * g + j < 31:
                    n = LP
                    while n > 0:
                        A(f"s_nop {min(n, 16) - 1}"); n -= 16
                elif j == 3 and g < 7: A("s_nop 0")
        cst(A, opt, sC, 31)
        A("s_waitcnt vmcnt(32)")
        cst(A, opt, sC, 15)
        A("s_barrier")
        cst(A, opt, sC, -1)
    A(f"""
    s_setprio 0
    s_waitcnt vmcnt(0)
    s_barrier
    s_barrier
    """)
    cst_out(A, opt)
    A("s_branch P2_MM")
    A.label("W2L_GS")
    A(f"s_mov_b32 s7, {POLL_MAX}")
    A.label("W2L_G")
    A(f"""
    s_sub_u32 s7, s7, 1
    s_cbranch_scc1 W2L_G_X
    buffer_load_dword v42, v40, {DBG}, 0 offen sc1
    s_waitcnt vmcnt(0)
    """)
    poll_check(A, "v42", 0, "W2L_G")
    A("s_branch W2L_G_X")
    A.label("W2_DEQ")
    sB = "s38"
    sQOFS = "s43"
    vQO = 6
    vAW = 14
    vTB = 22
    U_ = 24
    Ft = 40
    O = 48
    vQ = 52
    QS = 32
    vAP = 116
    vP = 124
    vPL, vPA = 156, 157
    sCS, sPK, sQF = "s39", "s45", "s46"
    A(f"""
    s_mov_b32 {sB}, s4
    s_add_u32 s4, s42, {sB}
    s_cmp_ge_u32 s4, 40
    s_cbranch_scc1 W2D_IDLE
    s_mul_i32 {sQOFS}, s4, {16*6144}
    """)
    if SH:
        A(f"""
        s_mul_i32 {sPK}, s4, {12*4096}
        s_add_u32 {sPK}, {sPK}, {SA + 2*4096}
        """)
    A(f"""
    s_lshr_b32 s6, s4, 1
    s_lshr_b32 s5, s42, 1
    s_sub_u32 s6, s6, s5
    s_mul_i32 s6, s6, 6144
    s_add_u32 s6, s6, {TBL}
    s_mov_b32 s10, {QW_BYTES}
    v_lshrrev_b32 v2, 5, v1
    v_and_b32 v3, 31, v1
    v_lshlrev_b32 v4, 4, v3
    v_mul_u32_u24 v{vQO}, 0x1800, v2
    v_add_u32 v{vQO}, v{vQO}, v4
    v_add_u32 v{vTB}, s6, v4
    """)
    QR = opt.get("qr", 3)
    A(f"s_mul_i32 s57, s57, {QR}")
    for i in range(7, -1, -1):
        A(f"""
        s_add_u32 s4, s57, {i}
        s_and_b32 s4, s4, 7
        s_mul_i32 s4, s4, 12288
        v_add_u32 v{vQO+i}, s4, v{vQO}
        """)
    A("s_waitcnt lgkmcnt(0)")
    stamp(A, opt, 1)
    cst(A, opt, 0, 49)

    def t_read(n):
        u = U_ + 8 * (n & 1)
        A(f"""
        ds_read_b128 {vr(u,4)}, v{vTB}
        ds_read_b128 {vr(u+4,4)}, v{vTB} offset:12288
        v_add_u32 v{vTB}, 512, v{vTB}
        """)

    if RL:
        A("""
        s_cmp_lg_u32 s58, 1
        s_cbranch_scc1 W2D_R0
        """)
        for i in range(8):
            A(f"buffer_load_dwordx4 {vr(vQ+QS+4*i,4)}, v{vQO+i}, s[8:11], {sQOFS} offen offset:512")
        A.label("W2D_R0")
    for u in range(1 if ST & 2 else NQ):
        for i in range(8):
            A(f"buffer_load_dwordx4 {vr(vQ+QS*u+4*i,4)}, v{vQO+i}, s[8:11], {sQOFS} offen offset:{512*u}")
    A(f"""
    s_add_u32 {sQOFS}, {sQOFS}, 512
    s_lshl_b32 s4, {sB}, 12
    s_add_u32 s4, s4, {ABASE}
    v_bfe_u32 v3, v1, 1, 4
    v_xor_b32 v4, v3, v2
    v_lshlrev_b32 v4, 4, v4
    v_lshl_add_u32 v4, v2, 8, v4
    v_and_b32 v3, 1, v1
    v_lshl_add_u32 v4, v3, 3, v4
    v_add_u32 v{vAW}, s4, v4
    """)
    if SH:
        for i in range(8):
            A(f"""
            v_xor_b32 v3, {32*i}, v{vAW}
            v_add_u32 v{vAP+i}, {512*i}, v3
            """)
        A(f"""
        s_mul_i32 {sQF}, {sMI}, 12
        s_add_u32 {sQF}, {sQF}, {sNI}
        s_lshl_b32 {sQF}, {sQF}, 2
        s_add_u32 {sQF}, {sQF}, {sB}
        s_lshl_b32 {sQF}, {sQF}, 6
        s_add_u32 {sQF}, {sQF}, {SFLG}
        s_movk_i32 {sCS}, 100
        v_max_u32 v{vPA}, {SH}, v1
        v_min_u32 v{vPA}, 11, v{vPA}
        v_lshlrev_b32 v{vPA}, 2, v{vPA}
        v_mov_b32 v{vPL}, 0
        """)
    for i in range(7, -1, -1):
        A(f"""
        s_add_u32 s4, s57, {i}
        s_and_b32 s4, s4, 7
        s_lshl_b32 s5, s4, 5
        s_lshl_b32 s4, s4, 9
        v_xor_b32 v3, s5, v{vAW}
        v_add_u32 v{vAW+i}, s4, v3
        """)
    A(f"s_mov_b32 {sC}, 0")
    cst(A, opt, 0, 50)
    if opt.get("cst") and not ST & 2:
        A("s_waitcnt vmcnt(8)")
        cst(A, opt, 0, 52)
    A("s_barrier")
    cst(A, opt, 0, 51)
    A(f"s_setprio {opt.get('dpr', 3)}")
    t_read(0)
    if ST & 2:
        if RL:
            A("""
            s_cmp_lg_u32 s58, 1
            s_cbranch_scc1 W2D_R1
            s_waitcnt vmcnt(0)
            s_branch W2D_R2
            """)
            A.label("W2D_R1")
        for i in range(8):
            A(f"buffer_load_dwordx4 {vr(vQ+QS+4*i,4)}, v{vQO+i}, s[8:11], {sQOFS} offen")
        if RL: A.label("W2D_R2")
        if opt.get("cst"):
            cst(A, opt, 0, 53)
            A("s_waitcnt vmcnt(8)")
            cst(A, opt, 0, 52)
    A("s_waitcnt lgkmcnt(0)")
    UN = 2

    def sload(n, sofs):
        for j in range(4):
            A(f"buffer_load_dwordx4 {vr(vP+16*n+4*j,4)}, v5, s[24:27], {sofs} offen offset:{1024*j} sc1")

    A.label("W2D_LOOP")
    for n in range(UN):
        u = n % NQ
        q = vQ + QS * u
        S = U_ + 8 * (n & 1)
        if SH:
            A(f"""
            s_add_u32 s5, {sC}, {n}
            s_lshl_b32 s47, s5, 12
            s_add_u32 s47, s47, {sPK}
            s_cmp_ge_u32 s5, {sCS}
            s_cbranch_scc1 W2D_PK{n}
            """)
        t_read(n + 1)
        A(f"s_add_u32 {sQOFS}, {sQOFS}, 512")
        if SH:
            A(f"""
            s_add_u32 s6, s5, 1
            s_min_u32 s7, {sCS}, 12
            s_cmp_lt_u32 s6, s7
            s_waitcnt vmcnt(8)
            s_cbranch_scc1 W2D_NT{n}
            s_cmp_lt_u32 s6, 12
            s_waitcnt vmcnt(4)
            s_cbranch_scc1 W2D_NT{n}
            s_waitcnt vmcnt(0)
            """)
            A.label(f"W2D_NT{n}")
            A(f"""
            s_add_u32 s6, s5, 2
            s_cmp_lt_u32 {sCS}, 100
            s_cbranch_scc1 W2D_E{n}
            v_cmp_ne_u32 vcc, 0, v{vPL}
            s_max_u32 s7, s6, {SH}
            s_cmp_eq_u64 vcc, -1
            s_cselect_b32 {sCS}, s7, {sCS}
            s_cbranch_scc1 W2D_E{n}
            s_cmp_lt_u32 s5, {max(GPC, opt.get("sp0", 0))}
            s_cbranch_scc1 W2D_E{n}
            buffer_load_dword v{vPL}, v{vPA}, s[24:27], {sQF} offen sc1
            """)
            A.label(f"W2D_E{n}")
            A(f"""
            s_cmp_gt_u32 s6, 11
            s_cbranch_scc1 W2D_F{n}
            s_cmp_lt_u32 s6, {sCS}
            s_cbranch_scc1 W2D_F{n}
            """)
            sload(n, "s47")
            A.label(f"W2D_F{n}")
            A(f"""
            s_min_u32 s7, {sCS}, 12
            s_cmp_lt_u32 s6, s7
            """)
        else:
            A(f"""
            s_cmp_lt_u32 {sC}, {12-NQ-n+1}
            s_waitcnt vmcnt({8*(NQ-1)})
            s_cbranch_scc1 W2D_NT{n}
            s_waitcnt vmcnt({8*min(NQ-1, max(0, UN-1-n))})
            """)
            A.label(f"W2D_NT{n}")
            A(f"s_cmp_lt_u32 {sC}, {12-NQ-n}")
        for i in range(8):
            qq = q + 4 * i
            f = Ft + 4 * (i & 1)
            o = O + 2 * (i & 1)
            WL = opt.get("wl", 0)
            if WL: o = 160 + 2 * i
            A(f"""
            v_fma_f32 v{f}, v{qq}, v{S}, v{S+4}
            v_fma_f32 v{f+1}, v{qq+1}, v{S+1}, v{S+5}
            v_fma_f32 v{f+2}, v{qq+2}, v{S+2}, v{S+6}
            v_fma_f32 v{f+3}, v{qq+3}, v{S+3}, v{S+7}
            v_cvt_pk_bf16_f32 v{o}, v{f}, v{f+1}
            v_cvt_pk_bf16_f32 v{o+1}, v{f+2}, v{f+3}
            """)
            if i + 1 == WL:
                for ii in range(WL): A(f"ds_write_b64 v{vAW+ii}, {vr(160+2*ii,2)} offset:{ASTAGE*(n&1)}")
            elif i + 1 > WL:
                A(f"ds_write_b64 v{vAW+i}, {vr(o,2)} offset:{ASTAGE*(n&1)}")
            if (i + 1) % RG == 0:
                A(f"s_cbranch_scc0 W2D_SK{n}_{i}")
                for ii in range(i + 1 - RG, i + 1):
                    A(f"buffer_load_dwordx4 {vr(q+4*ii,4)}, v{vQO+ii}, s[8:11], {sQOFS} offen")
                A.label(f"W2D_SK{n}_{i}")
        A("s_waitcnt lgkmcnt(0)")
        if SH: A.label(f"W2D_J{n}")
        cst(A, opt, sC, 16 + n)
        A("s_barrier")
        cst(A, opt, sC, n)
    A(f"""
    s_add_u32 {sC}, {sC}, {UN}
    s_cmp_lt_u32 {sC}, 12
    s_cbranch_scc1 W2D_LOOP
    """)
    A("s_setprio 0")
    if SH and opt.get("stamp"): A(f"s_mov_b32 s90, {sCS}")
    A("s_barrier")
    cst_out(A, opt)
    A("s_branch P2_MM")
    if SH:
        for n in range(UN):
            A.label(f"W2D_PK{n}")
            A(f"""
            s_cmp_lt_u32 s5, 11
            s_waitcnt vmcnt(4)
            s_cbranch_scc1 W2D_PW{n}
            s_waitcnt vmcnt(0)
            """)
            A.label(f"W2D_PW{n}")
            for i in range(8):
                A(f"ds_write_b64 v{vAP+i}, {vr(vP+16*n+2*i,2)} offset:{ASTAGE*(n&1)}")
            A(f"""
            s_cmp_gt_u32 s5, 9
            s_waitcnt lgkmcnt(0)
            s_cbranch_scc1 W2D_J{n}
            """)
            sload(n, "s47")
            A(f"s_branch W2D_J{n}")
    A.label("W2D_IDLE")
    A(f"""
    s_mov_b32 {sC}, 0
    s_waitcnt lgkmcnt(0)
    """)
    A.label("W2D_IDL")
    A(f"""
    s_barrier
    s_add_u32 {sC}, {sC}, 1
    s_cmp_lt_u32 {sC}, 14
    s_cbranch_scc1 W2D_IDL
    s_branch P2_MM
    """)
    A.label("W2_MFMA")
    sCST = "s45"
    vAR = 10
    vBR = 14
    vT0, vT1 = 16, 17
    vST = 18
    vACC = 20
    vF = 44
    P = vF
    if ST & 8:
        A(f"""
        s_lshr_b32 s5, {sMI}, 1
        s_add_u32 s5, s5, {sW}
        s_and_b32 s5, s5, 3
        """)
    A(f"""
    s_lshl_b32 s4, {"s5" if ST & 8 else sW}, 13
    s_mov_b32 m0, s4
    s_mul_i32 s4, {"s5" if ST & 8 else sW}, {32*3072}
    s_add_u32 {sVOFS}, {sVOFS}, s4
    s_lshr_b32 s6, s42, 1
    s_mul_i32 s6, s6, 3072
    s_mov_b32 s18, {SC_BYTES}
    s_mov_b32 s19, 0x00020000
    s_mov_b32 s22, {SC_BYTES}
    s_mov_b32 s23, 0x00020000
    v_and_b32 v2, 0xff, v0
    v_lshlrev_b32 v19, 3, v2
    """)
    if ST & 4:
        A(f"""
        s_lshr_b32 s4, {sW}, 1
        s_lshl_b32 s4, s4, 11
        v_add_u32 v19, s4, v19
        s_mov_b32 s56, s6
        v_mov_b32 v{vT0}, v19
        """)
        if RL:
            A(f"""
            s_cmp_eq_u32 s58, 3
            s_cselect_b32 s4, {VSTAGE}, 0
            s_cselect_b32 s5, 393216, 0
            s_add_u32 m0, m0, s4
            s_add_u32 {sVOFS}, {sVOFS}, s5
            """)
        else:
            A(f"""
            s_add_u32 s58, s57, {sMI}
            s_and_b32 s58, s58, {1 if ST & 16 else 0}
            """)
    A("s_waitcnt lgkmcnt(0)")
    stamp(A, opt, 1)
    cst(A, opt, 0, 49)

    def v0_loads():
        v_group()
        A(f"""
        s_add_u32 m0, m0, 4096
        s_add_u32 {sVOFS}, {sVOFS}, {16*3072}
        """)
        v_group()
        if not RL: s12_loads()

    def s12_loads():
        for j in range(1, 3):
            A(f"""
            buffer_load_dwordx2 {vr(P+4*j,2)}, v{vT0}, s[16:19], s56 offen offset:{1024*j}
            buffer_load_dwordx2 {vr(P+4*j+2,2)}, v{vT0}, s[20:23], s56 offen offset:{1024*j}
            """)
    if ST & 4:
        A(f"""
        buffer_load_dwordx2 {vr(P,2)}, v19, s[16:19], s6 offen
        buffer_load_dwordx2 {vr(P+2,2)}, v19, s[20:23], s6 offen
        {"s_cmp_lt_u32 s58, 2" if RL else "s_cmp_lg_u32 s58, 0"}
        s_cbranch_scc1 W2M_VA
        """)
        v0_loads()
        A.label("W2M_VA")
        if RL: s12_loads()
    else:
        for j in range(2):
            A(f"""
            buffer_load_dwordx2 {vr(P+4*j,2)}, v19, s[16:19], s6 offen offset:{2048*j}
            buffer_load_dwordx2 {vr(P+4*j+2,2)}, v19, s[20:23], s6 offen offset:{2048*j}
            """)
        A(f"""
        s_add_u32 s6, s6, 4096
        buffer_load_dwordx2 {vr(P+8,2)}, v19, s[16:19], s6 offen
        buffer_load_dwordx2 {vr(P+10,2)}, v19, s[20:23], s6 offen
        """)
        v_group()
        A(f"""
        s_add_u32 m0, m0, 4096
        s_add_u32 {sVOFS}, {sVOFS}, {16*3072}
        """)
        v_group()
    A(f"""
    v_lshlrev_b32 v19, 1, v19
    v_add_u32 v19, {TBL}, v19
    v_and_b32 v2, 15, v1
    v_lshrrev_b32 v3, 4, v1
    v_xor_b32 v4, v2, v3
    v_lshlrev_b32 v4, 4, v4
    v_lshl_add_u32 v4, v2, 8, v4
    v_add_u32 v{vAR}, {ABASE}, v4
    v_xor_b32 v{vAR+1}, 64, v{vAR}
    v_xor_b32 v{vAR+2}, 128, v{vAR}
    v_xor_b32 v{vAR+3}, 192, v{vAR}
    v_bfe_u32 v2, v1, 2, 2
    v_and_b32 v4, 1, v3
    v_lshl_or_b32 v4, v4, 2, v2
    s_lshl_b32 s5, {sW}, 1
    v_xor_b32 v4, s5, v4
    v_lshlrev_b32 v4, 5, v4
    v_lshl_add_u32 v2, v3, 3, v2
    v_lshl_add_u32 v4, v2, 8, v4
    v_and_b32 v2, 3, v1
    v_lshl_add_u32 v{vBR}, v2, 3, v4
    v_xor_b32 v{vBR+1}, 32, v{vBR}
    s_mov_b32 {sCST}, 0
    s_mov_b32 {sC}, 0
    s_lshl_b32 s4, {sNI}, 2
    s_add_u32 s4, s4, {sW}
    s_mul_i32 s5, s4, 40
    s_add_u32 s5, s5, s42
    s_lshl_b32 s5, s5, 10
    s_add_u32 s50, s5, {W2F}
    s_mul_i32 s5, s4, 171
    s_lshr_b32 s5, s5, 9
    s_mul_i32 s6, s5, 3
    s_sub_u32 s6, s4, s6
    s_mul_i32 s6, s6, 14
    s_add_u32 s6, s6, {sMI}
    s_lshl_b32 s6, s6, 2
    s_lshl_b32 s5, s5, 8
    s_add_u32 s5, s5, s6
    s_add_u32 s51, s5, {FLG}
    """)
    if MAP["lf"]:
        A(f"""
        s_mul_i32 s51, s4, 14
        s_add_u32 s51, s51, {sMI}
        s_lshl_b32 s51, s51, 7
        s_add_u32 s51, s51, {FLG}
        """)
    A(f"""
    s_mov_b32 s53, 12
    s_mov_b32 s54, {hex((127+149-QE) << 23)}
    s_mov_b32 s55, {hex((127+149-QE) << 23)}
    s_mov_b32 s46, 0xffff0000
    s_mov_b32 s47, {hex((127+QE) << 23)}
    s_mov_b32 s48, {hex(0x80000000 | ((127+QE-149) << 23))}
    v_bfe_u32 v3, v1, 4, 1
    v_lshrrev_b32 v4, 5, v1
    v_and_b32 v{vST}, 15, v1
    v_lshl_add_u32 v{vST}, v3, 5, v{vST}
    v_lshl_add_u32 v{vST}, v4, 4, v{vST}
    v_lshlrev_b32 v{vST}, 4, v{vST}
    """)
    for i in range(0, 24, 2):
        A(f"v_mov_b64 {vr(vACC+i,2)}, 0")
    for i in range(0, 80, 2):
        A(f"v_mov_b64 {vr(vF+80+i,2)}, 0")
    if RL:
        A(f"""
        s_cmp_ge_u32 s58, 2
        s_cbranch_scc1 W2M_VB
        s_waitcnt vmcnt(0)
        """)
        A.label("W2M_VB")
    elif ST & 4:
        A(f"""
        s_cmp_eq_u32 s58, 0
        s_cbranch_scc1 W2M_VB
        """)
        nsleep(A, opt.get("vd", 0))
        v0_loads()
        A.label("W2M_VB")
    for j in range(3):
        q = P + 4 * j
        u = P + 16 + 8 * j
        if RL and j == 1:
            A(f"""
            s_cmp_ge_u32 s58, 2
            s_cbranch_scc1 W2M_VC
            s_setprio 3
            """)
            v0_loads()
            A("s_setprio 0")
            A("s_branch W2M_VD")
            A.label("W2M_VC")
            A("s_waitcnt vmcnt(0)")
            A.label("W2M_VD")
        if RL:
            if j == 0: A("s_waitcnt vmcnt(12)")
        elif ST & 4:
            A(f"s_waitcnt vmcnt({(12, 2, 0)[j]})")
            if j == 1: cst(A, opt, 0, 52)
        else:
            A(f"s_waitcnt vmcnt({8 + 4 - 2*j})")
        if j == 0: cst(A, opt, 0, 53)
        scale8(A, u, q, q + 2)
        TS = 2048 if ST & 4 else 4096
        A(f"""
        ds_write_b128 v19, {vr(u,4)} offset:{TS*j}
        ds_write_b128 v19, {vr(u+4,4)} offset:{TS*j+12288}
        """)
        if j == (0 if ST & 4 else 2):
            A("s_waitcnt lgkmcnt(0)")
            cst(A, opt, 0, 50)
            A("s_barrier")
            cst(A, opt, 0, 51)
    if RL:
        A("s_waitcnt vmcnt(0) lgkmcnt(0)")
        cst(A, opt, 0, 52)
    elif ST & 4:
        A("s_waitcnt lgkmcnt(0)")
    else:
        A("s_waitcnt vmcnt(0)")
        cst(A, opt, 0, 52)

    def reads(s, buf):
        fa = vF + buf * 80 + 20 * s
        fb = fa + 12
        r = []
        for b in range(3):
            r.append(f"ds_read_b128 {vr(fa+4*b,4)}, v{vAR+s} offset:{4096*b + ASTAGE*buf}")
        for t in range(2):
            for u in range(2):
                r.append(f"ds_read_b64_tr_b16 {vr(fb+4*t+2*u,2)}, v{vT0+t} offset:{(32*s+4*u)*256}")
        return r

    def mfmas(s, buf):
        fa = vF + buf * 80 + 20 * s
        fb = fa + 12
        r = []
        for b in range(3):
            for t in range(2):
                acc = vACC + (b * 2 + t) * 4
                r.append(f"v_mfma_f32_16x16x32_bf16 {vr(acc,4)}, {vr(fa+4*b,4)}, {vr(fb+4*t,4)}, {vr(acc,4)}")
        return r

    A.label("W2M_LOOP")
    for buf in range(2):
        A(f"""
        v_add_u32 v{vT0}, {sCST}, v{vBR}
        v_add_u32 v{vT1}, {sCST}, v{vBR+1}
        s_add_u32 {sCST}, {sCST}, {VSTAGE}
        s_cmp_ge_u32 {sCST}, {RING}
        s_cselect_b32 {sCST}, 0, {sCST}
        """)
        cst(A, opt, sC, 16 + buf)
        A("s_barrier")
        cst(A, opt, sC, buf)
        rd = sum((reads(s, buf) for s in range(4)), [])
        mf = sum((mfmas(s, buf ^ 1) for s in range(4)), [])
        FR = opt.get("fr", 4)
        RP = opt.get("rp", 1)
        seq = rd[:FR]
        ri = FR
        for m in mf:
            seq.append(m)
            seq += rd[ri:ri + RP]
            ri += RP
        seq += rd[ri:]
        for x in seq: A(x)
        A("s_waitcnt lgkmcnt(0)")
        if (opt.get("stamp") or opt.get("probe") == 2) and buf == 0:
            A(f"""
            s_cmp_lg_u32 {sC}, 0
            s_cbranch_scc1 W2M_ST
            """)
            stamp(A, opt, 2, True)
            A.label("W2M_ST")
    A(f"""
    s_add_u32 {sC}, {sC}, 2
    s_cmp_lt_u32 {sC}, 12
    s_cbranch_scc1 W2M_LOOP
    s_setprio 3
    s_barrier
    """)
    for s_ in range(4):
        for m in mfmas(s_, 1): A(m)
    A("s_nop 7")
    stamp(A, opt, 3)
    for b in range(3):
        a = vACC + 8 * b
        o = vF + 4 * b
        for j in range(4):
            A(f"v_pk_mul_f32 {vr(a+2*j,2)}, {vr(a+2*j,2)}, s[54:55]")
        A(f"""
        v_cvt_pk_bf16_f32 v{o}, v{a}, v{a+1}
        v_cvt_pk_bf16_f32 v{o+1}, v{a+2}, v{a+3}
        v_cvt_pk_bf16_f32 v{o+2}, v{a+4}, v{a+5}
        v_cvt_pk_bf16_f32 v{o+3}, v{a+6}, v{a+7}
        s_nop 1
        v_permlane32_swap_b32 v{o}, v{o+2}
        v_permlane32_swap_b32 v{o+1}, v{o+3}
        buffer_store_dwordx4 {vr(o,4)}, v{vST}, s[24:27], s50 offen offset:{1024*b} sc1
        """)
        if b == 0:
            A(f"""
            s_cmp_eq_u32 {sMI}, 13
            s_cbranch_scc1 W2M_END
            """)
    A.label("W2M_END")
    cst_out(A, opt)
    A("s_branch P2_PUB")


def scale8(A, u, s, z):
    A(f"""
    v_lshlrev_b32 v{u}, 16, v{s}
    v_and_b32 v{u+1}, s46, v{s}
    v_lshlrev_b32 v{u+2}, 16, v{s+1}
    v_and_b32 v{u+3}, s46, v{s+1}
    v_lshlrev_b32 v{u+4}, 16, v{z}
    v_and_b32 v{u+5}, s46, v{z}
    v_lshlrev_b32 v{u+6}, 16, v{z+1}
    v_and_b32 v{u+7}, s46, v{z+1}
    """)
    for i in range(4): A(f"v_mul_f32 v{u+4+i}, s48, v{u+4+i}")
    for i in range(4): A(f"v_mul_f32 v{u+4+i}, v{u+i}, v{u+4+i}")
    for i in range(4): A(f"v_mul_f32 v{u+i}, s47, v{u+i}")


def wt_setup(A, opt, tag):
    TC = opt.get("wtc", 2)
    if opt.get("wm", 0):
        assert all((u * 171) >> 10 == u // 6 for u in range(384))
        A(f"""
        s_sub_u32 s4, s3, 21
        s_lshr_b32 s5, s37, 2
        s_and_b32 s6, s37, 3
        s_cmp_ge_u32 s4, 6
        s_cbranch_scc1 WT_Q{tag}
        s_lshl_b32 s4, s4, 6
        v_add_u32 v3, s4, v1
        v_mul_u32_u24 v7, 171, v3
        v_lshrrev_b32 v7, 10, v7
        v_mul_u32_u24 v7, {3072 - 768}, v7
        v_lshl_add_u32 v7, v3, 7, v7
        s_mul_i32 s46, s5, {64*3072}
        s_mul_i32 s6, s6, 768
        s_add_u32 s46, s46, s6
        s_add_u32 s46, s46, {TC*393216}
        s_mov_b32 s47, 393216
        s_mov_b32 s8, s12
        s_mov_b32 s9, s13
        s_mov_b32 s10, {V_BYTES}
        s_branch WT_G{tag}
        """)
        A.label(f"WT_Q{tag}")
        A(f"""
        v_lshrrev_b32 v7, 2, v1
        v_mul_u32_u24 v7, 0x1800, v7
        v_and_b32 v3, 3, v1
        v_lshl_add_u32 v7, v3, 7, v7
        s_mul_i32 s5, s37, 5
        s_add_u32 s4, s4, s5
        s_sub_u32 s4, s4, 6
        s_mul_i32 s46, s4, {16*6144}
        s_add_u32 s46, s46, {TC*512}
        s_movk_i32 s47, 512
        s_mov_b32 s10, {QW_BYTES}
        """)
        A.label(f"WT_G{tag}")
        return
    A(f"""
    s_sub_u32 s4, s2, 168
    s_cmp_ge_u32 s4, 48
    s_cbranch_scc1 WT_Q{tag}
    v_lshlrev_b32 v7, 7, v1
    s_lshl_b32 s46, s4, 13
    s_add_u32 s46, s46, {TC*393216}
    s_mov_b32 s47, 393216
    s_mov_b32 s8, s12
    s_mov_b32 s9, s13
    s_mov_b32 s10, {V_BYTES}
    s_branch WT_G{tag}
    """)
    A.label(f"WT_Q{tag}")
    A(f"""
    v_lshrrev_b32 v7, 2, v1
    v_mul_u32_u24 v7, 0x1800, v7
    v_and_b32 v3, 3, v1
    v_lshl_add_u32 v7, v3, 7, v7
    s_sub_u32 s4, s4, 48
    s_mul_i32 s46, s4, {16*6144}
    s_add_u32 s46, s46, {TC*512}
    s_movk_i32 s47, 512
    s_mov_b32 s10, {QW_BYTES}
    """)
    A.label(f"WT_G{tag}")


def wt(A, opt, i, tag):
    SH = opt.get("sh", 0)
    late = SH and i + opt.get("wtc", 2) >= SH
    if late:
        A(f"""
        s_cmpk_eq_u32 s47, 512
        s_cbranch_scc1 WT_S{tag}{i}
        """)
    A(f"""
    buffer_load_dword v{16+i}, v7, s[8:11], s46 offen
    s_add_u32 s46, s46, s47
    """)
    if late: A.label(f"WT_S{tag}{i}")


def tb_addr(A, tag, ju, nu):
    A(f"""
    s_lshr_b32 s5, s37, 2
    s_and_b32 s6, s37, 3
    s_cmp_ge_u32 s4, 6
    s_cbranch_scc1 TB_Q{tag}
    s_lshl_b32 s4, s4, 6
    """)
    for e in range(nu):
        A(f"""
        v_add_u32 v3, s4, v1
        v_add_u32 v3, {64*e}, v3
        v_mul_u32_u24 v{40+e}, 171, v3
        v_lshrrev_b32 v{40+e}, 10, v{40+e}
        v_mul_u32_u24 v{40+e}, {3072 - 768}, v{40+e}
        v_lshl_add_u32 v{40+e}, v3, 7, v{40+e}
        """)
    A(f"""
    s_mul_i32 s46, s5, {64*3072}
    s_mul_i32 s6, s6, 768
    s_add_u32 s46, s46, s6
    s_mov_b32 s47, 393216
    s_mov_b32 s8, s12
    s_mov_b32 s9, s13
    s_mov_b32 s10, {V_BYTES}
    s_branch TB_G{tag}
    """)
    A.label(f"TB_Q{tag}")
    A(f"""
    v_lshrrev_b32 v40, 2, v1
    v_mul_u32_u24 v40, 0x1800, v40
    v_and_b32 v3, 3, v1
    v_lshl_add_u32 v40, v3, 7, v40
    """)
    for e in range(1, nu):
        A(f"v_add_u32 v{40+e}, {e*16*6144}, v40")
    A(f"""
    s_mul_i32 s5, s37, 5
    s_add_u32 s4, s4, s5
    s_sub_u32 s4, s4, 6
    s_mul_i32 s46, s4, {16*6144}
    s_movk_i32 s47, 512
    s_mov_b32 s10, {QW_BYTES}
    """)
    A.label(f"TB_G{tag}")


def tb_burst(A, nu, nc, k0):
    for c in range(nc):
        for e in range(nu):
            A(f"buffer_load_dword v{k0 + c*nu + e}, v{40+e}, s[8:11], s46 offen")
        A("s_add_u32 s46, s46, s47")


def nsleep(A, n):
    while n > 0:
        A(f"s_sleep {min(n, 127)}"); n -= 127


def gen_prod(A, opt):
    SH = opt["sh"]
    NU = 40 * (12 - SH)
    assert all((u * 205) >> 13 == u // 40 for u in range(320))
    A.label("PROD")
    A(f"""
    s_cmp_lt_u32 s59, {NU}
    s_cselect_b32 s61, 1, 0
    s_cselect_b32 s59, s59, s58
    s_mov_b32 s10, {QW_BYTES}
    s_mov_b32 s18, {SC_BYTES}
    s_mov_b32 s19, 0x00020000
    s_mov_b32 s22, {SC_BYTES}
    s_mov_b32 s23, 0x00020000
    v_lshrrev_b32 v6, 5, v1
    v_and_b32 v7, 31, v1
    v_mul_u32_u24 v6, 0x1800, v6
    v_lshl_add_u32 v6, v7, 4, v6
    v_lshlrev_b32 v7, 3, v7
    """)

    def issue(k):
        u = f"s{58+k}"
        st, fl = f"s{50+2*k}", f"s{51+2*k}"
        A(f"""
        s_mul_i32 s4, {u}, 205
        s_lshr_b32 s4, s4, 13
        s_mul_i32 s5, s4, 40
        s_sub_u32 s5, {u}, s5
        s_add_u32 s4, s4, {SH}
        s_lshr_b32 s6, s5, 1
        s_mul_i32 s6, s6, 3072
        s_lshl_b32 s7, s4, 8
        s_add_u32 s6, s6, s7
        s_mul_i32 s42, s5, {16*6144}
        s_lshl_b32 s7, s4, 9
        s_add_u32 s42, s42, s7
        buffer_load_dwordx2 {vr(8+4*k,2)}, v7, s[16:19], s6 offen
        buffer_load_dwordx2 {vr(10+4*k,2)}, v7, s[20:23], s6 offen
        """)
        for i in range(8):
            A(f"buffer_load_dwordx4 {vr(16+32*k+4*i,4)}, v6, s[8:11], s42 offen")
            if i < 7: A("s_add_u32 s42, s42, 12288")
        A(f"""
        s_mul_i32 {st}, s5, 12
        s_add_u32 {st}, {st}, s4
        s_lshl_b32 {st}, {st}, 12
        s_add_u32 {st}, {st}, {SA}
        s_mul_i32 s6, s5, 171
        s_lshr_b32 s6, s6, 9
        s_mul_i32 s7, s6, 3
        s_sub_u32 s7, s5, s7
        s_mul_i32 {fl}, s6, 3072
        s_lshl_b32 s7, s7, 6
        s_add_u32 {fl}, {fl}, s7
        s_lshl_b32 s7, s4, 2
        s_add_u32 {fl}, {fl}, s7
        s_add_u32 {fl}, {fl}, {SFLG}
        """)

    def bars(n, tag):
        if not n: return
        A(f"""
        s_cmp_eq_u32 s60, 0
        s_cbranch_scc1 PROD_B{tag}
        """)
        for _ in range(n): A("s_barrier")
        A.label(f"PROD_B{tag}")

    def compute(k, younger):
        A(f"s_waitcnt vmcnt({younger + 8})")
        scale8(A, 80, 8 + 4 * k, 10 + 4 * k)
        for i in range(8):
            q = 16 + 32 * k + 4 * i
            o = 96 + 16 * k + 2 * i
            A(f"s_waitcnt vmcnt({younger + 7 - i + i // 2})")
            for j in range(4):
                A(f"v_fma_f32 v{88+j}, v{q+j}, v{80+j}, v{84+j}")
            A(f"""
            v_cvt_pk_bf16_f32 v{o}, v88, v89
            v_cvt_pk_bf16_f32 v{o+1}, v90, v91
            """)
            if i & 1:
                A(f"buffer_store_dwordx4 {vr(o-2,4)}, v5, s[24:27], s{50+2*k} offen offset:{1024*(i//2)} sc1")

    issue(0)
    A("""
    s_cmp_lg_u32 s60, 0
    s_cbranch_scc1 PROD_1
    s_waitcnt vmcnt(10)
    """)
    gate_set(A, opt)
    A.label("PROD_1")
    issue(1)
    A(f"""
    s_mov_b32 s46, 0xffff0000
    s_mov_b32 s47, {hex((127+QE) << 23)}
    s_mov_b32 s48, {hex(0x80000000 | ((127+QE-149) << 23))}
    v_lshlrev_b32 v3, 8, v1
    v_mov_b32 v4, 1
    """)
    PB0, PB1 = opt.get("pb0", 0), opt.get("pb1", 2)
    bars(PB0, "0")
    compute(0, 10)
    A("""
    s_cmp_eq_u32 s61, 0
    s_cbranch_scc1 PROD_2
    """)
    compute(1, 4)
    A.label("PROD_2")
    stamp(A, opt, 4)
    bars(PB1, "1")
    poll(A, "PROD_G", DBG, "0", "v2", "v8", 0)
    A(f"""
    s_mov_b64 exec, 0xfff
    buffer_store_dword v4, v3, s[24:27], s51 offen sc1
    buffer_store_dword v4, v3, s[24:27], s53 offen sc1
    s_mov_b64 exec, -1
    """)
    stamp(A, opt, 2)
    A("""
    s_cmp_eq_u32 s60, 0
    s_cbranch_scc1 IDLE_T
    """)
    for _ in range(10 - PB0 - PB1): A("s_barrier")
    A("s_branch P2_MMX")


def gate_set(A, opt):
    A(f"""
    s_barrier
    s_cmp_lg_u32 s36, 0
    s_cbranch_scc1 IDLE_G1
    s_lshl_b32 s4, s37, 2
    v_mov_b32 v3, 0
    v_mov_b32 v4, 1
    s_mov_b64 exec, 1
    buffer_store_dword v4, v3, {DBG}, s4 offen sc1
    s_mov_b64 exec, -1
    """)
    A.label("IDLE_G1")


def gen_xr(A, opt):
    sW, sLOC, sXCD = "s36", "s3", "s37"
    sMT, sNT = "s40", "s41"
    sC = "s48"
    SH = opt.get("sh", 0)
    A(f"""
    s_sub_u32 s4, {sLOC}, 21
    s_cmp_ge_u32 s4, 5
    s_cselect_b32 s5, 1, 0
    s_cselect_b32 s6, 5, 0
    s_sub_u32 {sNT}, s4, s6
    s_lshl_b32 s7, {sXCD}, 1
    s_add_u32 {sMT}, s7, s5
    s_cmp_ge_u32 {sLOC}, 31
    s_cbranch_scc1 IDLE_WG
    s_cmp_lt_u32 {sW}, 4
    s_cbranch_scc1 XR_MFMA
    s_cmp_lt_u32 {sW}, 6
    s_cbranch_scc1 XR_LD
    """)
    if opt.get("tpr"): A(f"s_setprio {opt['tpr']}")
    gate_addr(A, "v2")
    if SH:
        A(f"""
        s_sub_u32 s58, s2, 168
        s_add_u32 s59, s58, 80
        s_mov_b32 s60, 1
        s_cmp_eq_u32 {sW}, 6
        s_waitcnt lgkmcnt(0)
        s_cbranch_scc1 PROD
        """)
    A(f"""
    v_lshlrev_b32 v6, 7, v1
    s_mul_i32 s4, {sMT}, 5
    s_add_u32 s4, s4, {sNT}
    s_lshl_b32 s5, s4, 15
    s_lshl_b32 s6, s4, 14
    s_mov_b32 s30, {X_BYTES}
    s_mov_b32 s31, 0x00020000
    s_mov_b32 s34, {U_BYTES}
    s_mov_b32 s35, 0x00020000
    s_waitcnt lgkmcnt(0)
    """)
    if opt.get("tx", 1) == 2:
        A(f"""
        s_cmp_lg_u32 {sW}, 6
        s_cbranch_scc1 XR_TX
        """)
        nsleep(A, opt.get("txd", 0))
        for i in range(4):
            A(f"buffer_load_dword v{8+i}, v6, s[28:31], s5 offen")
            if i < 3: A("s_add_u32 s5, s5, 8192")
        for i in range(2):
            A(f"buffer_load_dword v{12+i}, v6, s[32:35], s6 offen")
            if i < 1: A("s_add_u32 s6, s6, 8192")
        A.label("XR_TX")
    elif opt.get("tx", 1):
        if not SH:
            A(f"""
            s_cmp_lg_u32 {sW}, 6
            s_cbranch_scc1 XR_TU
            """)
        for i in range(4):
            A(f"buffer_load_dword v{8+i}, v6, s[28:31], s5 offen")
            if i < 3: A("s_add_u32 s5, s5, 8192")
        if not SH:
            A("s_branch XR_TX")
            A.label("XR_TU")
        for i in range(2):
            A(f"buffer_load_dword v{12+i}, v6, s[32:35], s6 offen")
            if i < 1: A("s_add_u32 s6, s6, 8192")
        A.label("XR_TX")
    WT = opt.get("wt", 2)
    NT_ = 12 - opt.get("wtc", 2)
    if not SH:
        A(f"""
        s_cmp_lg_u32 {sW}, 7
        s_cbranch_scc1 XR_W6
        """)
    TB = opt.get("tb", 0)
    if TB:
        A(f"""
        s_sub_u32 s4, s3, 21
        s_and_b32 s48, s4, 1
        s_and_b32 s4, s4, 14
        """)
        tb_addr(A, "x", 0, 2)
        A(f"""
        s_lshl_b32 s4, s48, 1
        s_add_u32 s4, s4, {opt.get("wtc", 2)}
        s_mul_i32 s4, s4, s47
        s_add_u32 s46, s46, s4
        s_cmp_eq_u32 s48, 0
        s_cbranch_scc1 TB_X0
        """)
        nsleep(A, opt.get("ts1", 40))
        A.label("TB_X0")
        nsleep(A, opt.get("ts0", 0))
        tb_burst(A, 2, 2, 16)
        A(f"""
        s_add_u32 s46, s46, s47
        s_add_u32 s46, s46, s47
        s_cmp_eq_u32 s48, 0
        s_cselect_b32 s48, {opt.get("tb2", 1)}, {opt.get("tb3", 3)}
        s_sub_u32 s49, 10, s48
        """)
        A.label("TB_X1")
        A(f"""
        s_barrier
        s_sub_u32 s48, s48, 1
        s_cmp_lg_u32 s48, 0
        s_cbranch_scc1 TB_X1
        """)
        tb_burst(A, 2, 2, 20)
        A.label("TB_X2")
        A(f"""
        s_barrier
        s_sub_u32 s49, s49, 1
        s_cmp_lg_u32 s49, 0
        s_cbranch_scc1 TB_X2
        """)
    else:
        wt_setup(A, opt, "x")
        k = 0
        for b in range(10):
            for _ in range(WT if b == 0 else opt.get("wtn", 2)):
                if k < NT_:
                    wt(A, opt, k, "x"); k += 1
            A("s_barrier")
    A("s_branch P2_MMX")
    if not SH:
        A.label("XR_W6")
        for i in range(5): A("s_barrier")
        poll(A, "XR_G", DBG, "0", "v2", "v3", 0)
        for i in range(5): A("s_barrier")
        A("s_branch P2_MMX")
    A.label("IDLE_WG")
    gate_addr(A, "v2")
    A(f"""
    v_mov_b32 v6, 0
    v_mov_b32 v7, 0
    v_mov_b32 v8, 0
    v_mov_b32 v9, 0
    s_lshl_b32 s58, {sXCD}, 3
    s_add_u32 s58, s58, {sW}
    s_mul_i32 s4, s58, 3072
    s_add_u32 s4, s4, {FLG}
    s_waitcnt lgkmcnt(0)
    """)
    for i in range(3):
        A(f"buffer_store_dwordx4 v[6:9], v5, s[24:27], s4 offen offset:{1024*i} sc1")
    if SH:
        A(f"""
        s_add_u32 s59, s58, 224
        s_add_u32 s58, s58, 160
        s_min_u32 s58, s58, {40 * (12 - SH) - 1}
        s_mov_b32 s60, 0
        """)
        gen_prod(A, opt)
    else:
        A("s_waitcnt vmcnt(0)")
        gate_set(A, opt)
    A.label("IDLE_T")
    if TB:
        A(f"""
        s_sub_u32 s4, {sW}, 2
        s_cmp_ge_u32 s4, 5
        s_cbranch_scc1 IDLE_T7
        s_lshl_b32 s4, s4, 1
        """)
        tb_addr(A, "i", 0, 2)
        A(f"""
        s_mul_i32 s4, s47, {8 + opt.get("wtc", 2)}
        s_add_u32 s46, s46, s4
        """)
        nsleep(A, opt.get("ts4", 100))
        tb_burst(A, 2, 4 - opt.get("wtc", 2), 16)
        A("s_branch IDLE_NT")
        A.label("IDLE_T7")
    A(f"""
    s_cmp_lg_u32 {sW}, 7
    s_cbranch_scc1 IDLE_NT
    """)
    wt_setup(A, opt, "i")
    for k in range(SH - opt.get("wtc", 2) if SH else NT_):
        wt(A, opt, k, "i")
        if k >= WT - 1 and k < NT_ - 1 and not SH: A(f"s_sleep {opt.get('isl', 12)}")
    A.label("IDLE_NT")
    if not SH:
        A(f"""
        s_cmp_lg_u32 {sW}, 0
        s_cbranch_scc1 IDLE_G_X
        """)
        poll(A, "IDLE_G", DBG, "0", "v2", "v3", 0, sleep=8)
    A("s_barrier")
    A(f"""
    s_cmp_lt_u32 {sW}, 4
    s_cbranch_scc1 P2_LD
    s_branch P2_MMI
    """)
    A.label("XR_LD")
    if opt.get("cst"): A("s_memtime s[88:89]")
    sOFS, sGRP, sCH = "s43", "s45", "s46"
    vO = 6
    A(f"""
    v_lshrrev_b32 v3, 4, v1
    s_cmp_eq_u32 {sW}, 4
    s_cbranch_scc0 XRL_U
    v_lshrrev_b32 v2, 3, v1
    v_and_b32 v4, 7, v1
    v_xor_b32 v4, v4, v3
    v_lshlrev_b32 v4, 4, v4
    v_mul_u32_u24 v{vO}, 0x500, v2
    v_add_u32 v{vO}, v{vO}, v4
    v_xor_b32 v4, 64, v{vO}
    v_add_u32 v{vO+1}, 9216, v4
    v_add_u32 v{vO+2}, {2*9216}, v{vO}
    v_add_u32 v{vO+3}, {3*9216}, v4
    s_mul_i32 {sOFS}, {sMT}, {128*1280}
    s_mov_b32 {sGRP}, {32*1280}
    s_mov_b32 {sCH}, {128 - 128*1280 + (1<<32)}
    s_movk_i32 s47, 128
    s_mov_b32 m0, 0
    s_mov_b32 s30, {X_BYTES}
    s_waitcnt lgkmcnt(0)
    s_branch XRL_GO
    """)
    A.label("XRL_U")
    A(f"""
    v_and_b32 v4, 15, v1
    v_lshlrev_b32 v2, 2, v3
    v_xor_b32 v4, v4, v2
    v_lshlrev_b32 v4, 4, v4
    v_mul_u32_u24 v{vO}, 0x500, v3
    v_add_u32 v{vO}, v{vO}, v4
    v_add_u32 v{vO+1}, {4*1280-1024}, v{vO}
    v_add_u32 v{vO+2}, {2*(4*1280-1024)}, v{vO}
    v_add_u32 v{vO+3}, {3*(4*1280-1024)}, v{vO}
    s_lshl_b32 {sOFS}, {sNT}, 8
    s_mov_b32 {sGRP}, {16*1280}
    s_mov_b32 {sCH}, 0
    s_mov_b32 s47, {64*1280}
    s_movk_i32 m0, 16384
    s_mov_b32 s30, {U_BYTES}
    s_waitcnt lgkmcnt(0)
    s_mov_b32 s28, s32
    s_mov_b32 s29, s33
    """)
    A.label("XRL_GO")
    A(f"""
    s_mov_b32 s31, 0x00020000
    s_mov_b32 {sC}, 0
    """)
    XRO = opt.get("xra", 0) or opt.get("xrb", 0)
    if XRO:
        A(f"""
        s_mul_i32 s49, {sNT}, {opt.get("xra", 0)}
        s_and_b32 s4, {sMT}, 1
        s_mul_i32 s4, s4, {opt.get("xrb", 0)}
        s_add_u32 s49, s49, s4
        s_mul_i32 s4, {sXCD}, {opt.get("xrc", 0)}
        s_add_u32 s49, s49, s4
        s_mul_i32 s4, s49, 205
        s_lshr_b32 s4, s4, 11
        s_mul_i32 s4, s4, 10
        s_sub_u32 s49, s49, s4
        s_mul_i32 s4, s49, s47
        s_add_u32 {sOFS}, {sOFS}, s4
        s_mul_i32 s47, s47, 10
        s_sub_u32 s49, 10, s49
        """)
    nsleep(A, opt.get("xd", 0))
    A.label("XRL_LOOP")
    for g in range(4):
        for j in range(4):
            A(f"buffer_load_dwordx4 v{vO+j}, s[28:31], {sOFS} offen offset:{1024*j} lds")
        A(f"""
        s_add_u32 m0, m0, 4096
        s_add_u32 {sOFS}, {sOFS}, {sGRP}
        """)
    A(f"""
    s_add_u32 {sOFS}, {sOFS}, {sCH}
    s_add_u32 m0, m0, 16384
    s_and_b32 m0, m0, {4*XSTAGE-1}
    s_add_u32 {sC}, {sC}, 1
    """)
    if XRO:
        A(f"""
        s_cmp_eq_u32 {sC}, s49
        s_cselect_b32 s4, s47, 0
        s_sub_u32 {sOFS}, {sOFS}, s4
        """)
    XT = opt.get("xt", 0)
    A(f"""
    s_and_b32 s4, {sC}, {15 if XT else 13}
    s_cmp_eq_u32 s4, 1
    s_cbranch_scc1 XRL_LOOP
    """)
    cst(A, opt, sC, 32)
    if XT:
        A("s_waitcnt vmcnt(16)")
    else:
        A(f"""
        s_cmp_eq_u32 {sC}, 2
        s_cbranch_scc0 XRL_W
        s_waitcnt vmcnt(16)
        """)
        A.label("XRL_W")
        A("s_waitcnt vmcnt(32)")
    cst(A, opt, sC, 16)
    A("s_barrier")
    cst(A, opt, sC, 0)
    A(f"""
    s_cmp_lt_u32 {sC}, 10
    s_cbranch_scc1 XRL_LOOP
    """)
    if not XT:
        A("s_waitcnt vmcnt(16)")
        cst(A, opt, 0, 27)
        A("s_barrier")
        cst(A, opt, 0, 11)
    A("s_waitcnt vmcnt(0)")
    cst(A, opt, 0, 28)
    A("s_barrier")
    cst(A, opt, 0, 12)
    cst_out(A, opt)
    A("s_branch P2_MMX")
    A.label("XR_MFMA")
    sCST = "s43"
    vXR = 6
    vUR = 10
    vT = 12
    vACC = 20
    vF = 84
    A(f"""
    s_lshr_b32 s4, {sW}, 1
    s_and_b32 s5, {sW}, 1
    s_lshl_b32 s6, s4, 13
    v_and_b32 v3, 31, v1
    v_bfe_u32 v4, v1, 1, 3
    v_lshrrev_b32 v{vT}, 5, v1
    v_xor_b32 v4, v4, v{vT}
    v_lshlrev_b32 v4, 4, v4
    v_lshl_add_u32 v4, v3, 7, v4
    v_add_u32 v{vXR}, s6, v4
    v_xor_b32 v{vXR+1}, 32, v{vXR}
    v_xor_b32 v{vXR+2}, 64, v{vXR}
    v_xor_b32 v{vXR+3}, 96, v{vXR}
    v_bfe_u32 v2, v1, 4, 1
    v_bfe_u32 v3, v1, 2, 2
    s_lshl_b32 s6, s5, 1
    v_xor_b32 v4, s6, v3
    v_lshlrev_b32 v4, 6, v4
    v_lshl_add_u32 v4, v3, 8, v4
    v_lshl_add_u32 v4, v{vT}, 11, v4
    v_lshl_add_u32 v4, v2, 5, v4
    v_and_b32 v3, 3, v1
    v_lshl_add_u32 v4, v3, 3, v4
    v_add_u32 v{vUR}, 16384, v4
    v_xor_b32 v{vUR+1}, 64, v{vUR}
    s_mov_b32 {sCST}, 0
    s_mov_b32 {sC}, 0
    s_lshl_b32 s6, {sMT}, 1
    s_add_u32 s6, s6, s4
    s_lshl_b32 s7, {sNT}, 1
    s_add_u32 s7, s7, s5
    s_mul_i32 s51, s4, 10
    s_add_u32 s51, s51, s7
    s_lshl_b32 s51, s51, {7 if MAP["lf"] else 2}
    s_mul_i32 s52, {sMT}, {20*128 if MAP["lf"] else 2048}
    s_add_u32 s51, s51, s52
    s_add_u32 s51, s51, {FLG + 672*128 if MAP["lf"] else XFLG}
    s_mov_b32 s53, 7
    s_mul_i32 s6, s6, 80
    s_lshl_b32 s7, s7, 2
    s_add_u32 s6, s6, s7
    s_lshl_b32 s50, s6, 10
    s_add_u32 s52, s50, 40960
    """)
    for i in range(0, 64, 2):
        A(f"v_mov_b64 {vr(vACC+i,2)}, 0")
    for i in range(0, 64, 2):
        A(f"v_mov_b64 {vr(vF+64+i,2)}, 0")
    A("s_waitcnt lgkmcnt(0)")

    def reads(s, buf):
        f = vF + 64 * buf + 16 * s
        r = []
        for tn in range(2):
            r.append(f"ds_read_b128 {vr(f+8+4*tn,4)}, v{vT+s} offset:{4096*tn}")
            for u in range(2):
                r.append(f"ds_read_b64_tr_b16 {vr(f+4*tn+2*u,2)}, v{vT+4+tn} offset:{s*4096+u*1024}")
        return r

    def mfmas(s, buf):
        f = vF + 64 * buf + 16 * s
        r = []
        for tm in range(2):
            for tn in range(2):
                acc = vACC + 32 * tm + 16 * tn
                r.append(f"v_mfma_f32_32x32x16_bf16 {vr(acc,16)}, {vr(f+4*tn,4)}, {vr(f+8+4*tm,4)}, {vr(acc,16)}")
        return r

    A.label("XR_LOOP")
    for buf in range(2):
        for i in range(4):
            A(f"v_add_u32 v{vT+i}, {sCST}, v{vXR+i}")
        for i in range(2):
            A(f"v_add_u32 v{vT+4+i}, {sCST}, v{vUR+i}")
        A(f"""
        s_add_u32 {sCST}, {sCST}, {XSTAGE}
        s_and_b32 {sCST}, {sCST}, {4*XSTAGE-1}
        s_barrier
        """)
        rd = sum((reads(s_, buf) for s_ in range(4)), [])
        mf = sum((mfmas(s_, buf ^ 1) for s_ in range(4)), [])
        ri = 0
        for m in mf:
            A(m)
            for x in rd[ri:ri + 2]: A(x)
            ri += 2
        for x in rd[ri:]: A(x)
        A("s_waitcnt lgkmcnt(0)")
    A(f"""
    s_add_u32 {sC}, {sC}, 2
    s_cmp_lt_u32 {sC}, 10
    s_cbranch_scc1 XR_LOOP
    s_barrier
    """)
    for s_ in range(4):
        for m in mfmas(s_, 1): A(m)
    A("s_nop 15")
    stamp(A, opt, 3)
    for tm in range(2):
        for i in range(4):
            a = vACC + 32 * tm + 8 * i
            o = vF + 16 * tm + 4 * i
            for j in range(4):
                A(f"v_cvt_pk_bf16_f32 v{o+j}, v{a+2*j}, v{a+2*j+1}")
            A(f"buffer_store_dwordx4 {vr(o,4)}, v5, s[24:27], s{50+2*tm} offen offset:{1024*i} sc1")


VX = 96


def xload(A, opt, kb):
    A(f"buffer_load_dwordx4 {vr(VX+4*kb,4)}, v5, s[24:27], s20 offen offset:{1024 * (kb & 3)} sc1")
    if kb & 3 == 3 and kb < 39:
        A("s_add_u32 s20, s20, 4096")


def p2_rot(A, opt):
    lm = MAP["m"]
    A(f"""
    s_and_b32 s17, s3, {(1 << lm) - 1}
    s_mul_i32 s17, s17, 0
    s_lshr_b32 s16, s3, {lm}
    s_mul_i32 s16, s16, 0
    s_add_u32 s17, s17, s16
    s_mul_i32 s16, s17, 205
    s_lshr_b32 s16, s16, 11
    s_mul_i32 s16, s16, 10
    s_sub_u32 s17, s17, s16
    s_lshl_b32 s17, s17, 12
    """)


def gen_p2(A, opt):
    NA = opt.get("na", 2)
    OLD = opt.get("old", 0)
    order = [(n, kb) for kb in range(40) for n in range(NA)] + [(n, kb) for n in range(NA, 3) for kb in range(40)]
    groups = []
    for n, kb in order:
        if (n, kb // 4) not in groups: groups.append((n, kb // 4))
    CH = {1: [2, 2, 4, 4, 4, 4, 10], 2: [2, 2, 2, 2, 4, 4, 4, 5, 5], 3: [2, 4, 6, 8, 10], 4: [3, 3, 6, 6, 6, 6],
          5: [1, 1, 2, 2, 4, 10, 10]}[opt.get("ch", 1)]
    assert sum(CH) == 30
    st = [sum(CH[:i]) for i in range(len(CH) + 1)]
    A.label("P2_PUB")
    publish(A, opt, "s51", "s53")
    A.label("P2_LD")
    p2_tile(A)
    if OLD: p2_rot(A, opt)
    A(f"""
    s_mul_i32 s22, s39, 122880
    s_add_u32 s22, s22, {W2F}
    s_lshl_b32 s21, s36, 10
    s_add_u32 s22, s22, s21
    """)
    if OLD: A("""
    s_add_u32 s20, s22, s17
    s_add_u32 s19, s22, 40960
    """)
    A(f"""
    v_lshlrev_b32 v2, {7 if MAP["lf"] else 2}, v1
    v_mov_b32 v4, {LFLAG}
    s_cmp_lg_u32 s36, 0
    s_cbranch_scc1 P2_LW0
    """)
    if OLD: A("""
    s_sub_u32 s4, s44, s45
    s_sub_u32 s4, s4, 168
    """)
    A("v_cmp_gt_u32 vcc, 42, v1")
    if OLD: A("v_add_u32 v3, s4, v2")
    A("""
    v_mov_b32 v3, 0
    v_cndmask_b32 v2, v3, v2, vcc
    """)
    if opt.get("pp"):
        for i in range(opt["pp"]): A(f"v_mov_b32 v{8+i}, 0")
        ppoll(A, "P2_W", "s[24:27]", "s45", "v2", 8, opt["pp"], DC_W, opt.get("wsl", 4))
    else:
        poll(A, "P2_W", "s[24:27]", "s45", "v2", "v3", DC_W, sleep=opt.get("wsl", 16),
             st=(lambda: stamp(A, opt, 1)) if opt.get("pst") else None)

    def lds_wait(name, ofs, vd, va):
        A(f"s_branch {name}")
        A.label(name + "_S")
        A(f"s_sleep {opt.get('lsl', 1)}")
        A.label(name)
        A(f"""
        ds_read_b32 {vd}, {va} offset:{ofs}
        s_waitcnt lgkmcnt(0)
        """)
        poll_check(A, vd, 0, name + "_S")
    A(f"""
    v_mov_b32 v3, 1
    ds_write_b32 v4, v3 offset:4
    s_branch P2_GO
    """)
    A.label("P2_LW0")
    lds_wait("P2_LW", 4, "v3", "v4")
    A.label("P2_GO")
    stamp(A, opt, 5)
    AH = opt.get("ah", 3)

    def issue(c):
        for n, q in groups[st[c]:st[c + 1]]:
            off = (n * 40 + q * 4) * 1024
            A(f"""
            s_add_u32 s5, s22, {off}
            s_add_u32 m0, s21, {off}
            s_nop 0
            buffer_load_dwordx4 v5, s[24:27], s5 offen sc1 lds
            """)

    for c in range(min(AH, len(CH))): issue(c)
    for c in range(len(CH)):
        issued = min(len(CH), AH + c)
        A(f"s_waitcnt vmcnt({st[issued] - st[c+1]})")
        A("s_barrier")
        if AH + c < len(CH): issue(AH + c)
    stamp(A, opt, 6)
    A("s_branch K_EXIT")

    vACC = 8
    vF = 56
    NF = 8
    vO = 88
    A.label("P2_MMX")
    A("s_barrier")
    A.label("P2_MMI")
    A.label("P2_MM")
    if not opt.get("sh"): stamp(A, opt, 2)
    p2_tile(A)
    if OLD: p2_rot(A, opt)
    A(f"""
    s_lshl_b32 s4, s38, 2
    s_add_u32 s4, s4, s36
    s_sub_u32 s4, s4, 4
    """)
    if OLD:
        A("""
        s_mul_i32 s18, s4, 40960
        s_add_u32 s19, s18, 40960
        s_add_u32 s20, s18, s17
        """)
    else:
        A("s_mul_i32 s20, s4, 40960")
    A(f"""
    s_mul_i32 s4, s4, {32*3072}
    s_mul_i32 s5, s39, 192
    s_add_u32 s23, s4, s5
    s_add_u32 s22, s23, {16*3072}
    """)
    A("""
    v_bfe_u32 v2, v1, 2, 1
    v_bfe_u32 v4, v1, 3, 2
    v_and_b32 v3, 0x23, v1
    v_lshl_add_u32 v3, v2, 4, v3
    v_lshl_add_u32 v3, v4, 2, v3
    v_lshlrev_b32 v3, 4, v3
    v_and_b32 v6, 15, v1
    v_and_b32 v7, 48, v1
    v_mul_u32_u24 v6, 0xc00, v6
    v_add_u32 v6, v6, v7
    v_add_u32 v4, 61440, v3
    s_waitcnt vmcnt(0)
    """)
    A(f"""
    v_min_u32 v2, 19, v1
    v_lshlrev_b32 v2, {7 if MAP["lf"] else 2}, v2
    v_mov_b32 v8, {LFLAG}
    s_cmp_lg_u32 s36, 7
    s_cbranch_scc1 P2_XW
    """)
    if opt.get("px"):
        ppoll(A, "P2_X", "s[24:27]", "s44", "v2", 88, opt["px"], 0, opt.get("xsl", 4))
    else:
        poll(A, "P2_X", "s[24:27]", "s44", "v2", "v7", 0, sleep=opt.get("xsl", 16))
    if opt.get("xap"):
        A("""
        s_cmp_ge_u32 s3, 31
        s_cbranch_scc1 P2_XA_X
        """)
        A.label("P2_XA")
        A("""
        ds_read_b32 v7, v8 offset:8
        s_waitcnt lgkmcnt(0)
        v_readfirstlane_b32 s4, v7
        s_cmp_lt_u32 s4, 4
        s_cbranch_scc1 P2_XA
        """)
        A.label("P2_XA_X")
    A("""
    v_mov_b32 v7, 1
    ds_write_b32 v8, v7
    s_branch P2_XW_X
    """)
    A.label("P2_XW_S")
    A("s_sleep 2")
    A.label("P2_XW")
    A("""
    ds_read_b32 v7, v8
    s_waitcnt lgkmcnt(0)
    """)
    poll_check(A, "v7", 0, "P2_XW_S")
    A.label("P2_XW_X")
    stamp(A, opt, 1)
    for kb in range(40): xload(A, opt, kb)
    stamp(A, opt, 5, True)

    def epi(t, o=vO):
        a = vACC + 16 * t
        return [[f"v_cvt_pk_bf16_f32 v{o+j}, v{a+2*j}, v{a+2*j+1}" for j in range(4)],
                [f"v_cvt_pk_bf16_f32 v{o+j}, v{a+2*j}, v{a+2*j+1}" for j in range(4, 8)],
                ["s_nop 1"] + [f"v_permlane16_swap_b32 v{o+j}, v{o+4+j}" for j in range(4)],
                [f"buffer_store_dwordx4 {vr(o,4)}, v6, s[96:99], s23 offen offset:{64*t}",
                 f"buffer_store_dwordx4 {vr(o+4,4)}, v6, s[96:99], s22 offen offset:{64*t}"]]

    RA = opt.get("ra", 6)
    assert RA < NF
    seen = [0]

    def read(i):
        n, kb = order[i]
        g = groups.index((n, kb // 4))
        while st[seen[0]] <= g:
            A("s_barrier")
            seen[0] += 1
        off = (n * 40 + kb) * 1024
        base, o = ("v3", off) if off < 61440 else ("v4", off - 61440)
        A(f"ds_read_b128 {vr(vF+4*(i%NF),4)}, {base} offset:{o}")

    for i in range(RA): read(i)
    pending = []
    done = set()
    last = {n: max(i for i, x in enumerate(order) if x[0] == n) for n in range(3)}
    for i, (n, kb) in enumerate(order):
        if n == 0: A(f"s_waitcnt vmcnt({40 - kb - 1})")
        A(f"s_waitcnt lgkmcnt({min(120, i + RA) - i - 1})")
        acc = vACC + 16 * n
        c = "0" if kb == 0 else vr(acc, 16)
        A(f"v_mfma_f32_32x32x16_bf16 {vr(acc,16)}, {vr(vF+4*(i%NF),4)}, {vr(VX+4*kb,4)}, {c}")
        if i == 0 and opt.get("stamp"):
            stamp(A, opt, 3)
            A("s_memtime s[80:81]\ns_nop 7\ns_nop 7\ns_waitcnt lgkmcnt(0)")
        if i == 0 and opt.get("probe") == 3:
            stamp(A, opt, 3)
            A("s_nop 7\ns_nop 7\ns_waitcnt lgkmcnt(0)")
        if i + RA < 120: read(i + RA)
        for t in range(3):
            if i == last[t] + 3:
                pending += epi(t) + [[], [], [], []]
                done.add(t)
        if pending:
            for x in pending.pop(0): A(x)
    assert seen[0] == len(CH)
    A("s_nop 15")
    stamp(A, opt, 6)
    if opt.get("stamp"):
        A("s_memtime s[82:83]\ns_waitcnt lgkmcnt(0)\ns_sub_u32 s72, s82, s80")
        if opt.get("sh"): A("s_and_b32 s90, s90, 127\ns_lshl_b32 s90, s90, 24\ns_or_b32 s72, s72, s90")
    k = 0
    for t in range(3):
        if t in done: continue
        for x in sum(epi(t, vF + 8 * k), []): A(x)
        k += 1


def descriptor(name, vgpr, accum, sgpr):
    return f""".amdhsa_kernel {name}
  .amdhsa_next_free_vgpr {vgpr}
  .amdhsa_next_free_sgpr {sgpr}
  .amdhsa_accum_offset {accum}
  .amdhsa_group_segment_fixed_size 0
  .amdhsa_kernarg_size 72
  .amdhsa_user_sgpr_count 2
  .amdhsa_user_sgpr_kernarg_segment_ptr 1
  .amdhsa_system_sgpr_workgroup_id_x 1
  .amdhsa_float_denorm_mode_32 3
.end_amdhsa_kernel
"""


def generate(opt):
    out = HEADER
    MAP["m"] = opt.get("map", 2)
    MAP["lf"] = opt.get("lf", 0)
    out += f"; @launch grid=(256,1,1) block=(512,1,1) lds={LDS1 + 1024}\n"
    out += '.amdgcn_target "amdgcn-amd-amdhsa--gfx950"\n.text\n'
    A = Asm()
    out += f".globl {KNAME}\n.p2align 8\n.type {KNAME},@function\n"
    gen_kernel(A, opt)
    out += A.text()
    out += "CODE_END:\n"
    out += '.section .rodata,"a"\n.p2align 6\n'
    out += descriptor(KNAME, 256, 256, 100)
    return out


if __name__ == "__main__":
    path = sys.argv[1] if len(sys.argv) > 1 else "standalone__weight_only_int_quip__prompt.s"
    opt = {}
    for a in sys.argv[2:]:
        k, _, v = a.partition("=")
        opt[k] = int(v) if v else 1
    open(path, "w").write(generate(opt))
    print("wrote", path)
```

```python
import sys

KNAME = "standalone__weight_only_int_quip__prompt_kernel"
HEADER = """; Kernarg layout for this problem (72 bytes, ptrs only, base s[0:1]):
"""

XRF = 0
W2F = 64 * 40 * 1024
FLG = W2F + 48 * 40 * 1024
XFLG = FLG + 256 * 256
SFLG = XFLG + 256 * 128
FLG_END = FLG + 64 * 3 * 1024
SA = FLG_END
WS_USED = SA + 40 * 12 * 4096
assert SFLG + 168 * 256 <= FLG_END

X_BYTES = 2048 * 640 * 2
QW_BYTES = 640 * 1536 * 4
SC_BYTES = 20 * 1536 * 2
U_BYTES = 640 * 640 * 2
V_BYTES = 1536 * 1536 * 2
OUT_BYTES = 2048 * 1536 * 2

VSTAGE = 32768
ABASE = 3 * VSTAGE
ASTAGE = 12288
TBL = ABASE + 2 * ASTAGE
LDS1 = TBL + 24576
LFLAG = LDS1
QE = 112
XSTAGE = 32768
POLL_MAX = 40000


class Asm:
    def __init__(self):
        self.lines = []

    def __call__(self, s):
        for l in s.strip("\n").split("\n"):
            if not l.strip(): continue
            self.lines.append("    " + l.strip() if not l.strip().endswith(":") else l.strip())

    def label(self, s):
        self.lines.append(s + ":")

    def comment(self, s):
        self.lines.append("    ; " + s)

    def text(self):
        return "\n".join(self.lines) + "\n"


def vr(a, n):
    return f"v[{a}:{a+n-1}]"


STAMP_OFS = 32 << 20
NSTAMP = 8


def stamp(A, opt, i, wait=False):
    if opt.get("stamp") or ("probe" in opt and i in (0, opt["probe"])):
        A(f"s_memrealtime s[{64+2*i}:{65+2*i}]")
        if wait: A("s_waitcnt lgkmcnt(0)")


def stamp_begin(A, opt):
    if opt.get("stamp") or "probe" in opt:
        for i in range(1, NSTAMP):
            A(f"s_mov_b32 s{64+2*i}, 0")
        A("s_mov_b32 s90, 0")
    stamp(A, opt, 0)


def stamp_end(A, opt):
    if "probe" in opt:
        p = opt["probe"]
        wl, wh = opt.get("pwl", 0), opt.get("pwh", 7)
        gl, gh = opt.get("pgl", 0), opt.get("pgh", 255)
        A(f"""
        s_waitcnt vmcnt(0) lgkmcnt(0)
        s_memrealtime s[78:79]
        s_waitcnt lgkmcnt(0)
        s_cmp_gt_u32 s2, {gh}
        s_cbranch_scc1 PRB_X
        s_cmp_lt_u32 s2, {gl}
        s_cbranch_scc1 PRB_X
        s_cmp_lt_u32 s36, {wl}
        s_cbranch_scc1 PRB_X
        s_cmp_gt_u32 s36, {wh}
        s_cbranch_scc1 PRB_X
        s_cmp_eq_u32 s{64+2*p}, 0
        s_cbranch_scc1 PRB_X
        s_sub_u32 s4, s{64+2*p}, s64
        s_mul_i32 s4, s4, 3
        s_min_u32 s4, s4, 20000
        """)
        A.label("PRB")
        A("""
        s_memrealtime s[6:7]
        s_waitcnt lgkmcnt(0)
        s_sub_u32 s5, s6, s78
        s_cmp_lt_u32 s5, s4
        s_cbranch_scc1 PRB
        """)
        A.label("PRB_X")
    if opt.get("stamp"):
        A("s_waitcnt vmcnt(0) lgkmcnt(0)")
        stamp(A, opt, NSTAMP - 1)
        A(f"""
        s_load_dwordx2 s[56:57], s[0:1], 64
        s_waitcnt lgkmcnt(0)
        s_mov_b32 s58, 0x7fffffff
        s_mov_b32 s59, 0x00020000
        v_lshrrev_b32 v1, 6, v0
        v_lshlrev_b32 v1, 5, v1
        s_lshl_b32 s4, s2, 8
        s_add_u32 s4, s4, {STAMP_OFS}
        """)
        for i in range(NSTAMP):
            A(f"v_mov_b32 v{4+i}, s{64+2*i}")
        A("""
        buffer_store_dwordx4 v[4:7], v1, s[56:59], s4 offen
        buffer_store_dwordx4 v[8:11], v1, s[56:59], s4 offen offset:16
        """)
    A("s_endpgm")


def cst(A, opt, sidx, add):
    if not opt.get("cst"): return
    A(f"""
    s_memtime s[84:85]
    s_add_u32 s86, {sidx}, {add}
    v_cmp_eq_u32 vcc, s86, v1
    s_waitcnt lgkmcnt(0)
    v_mov_b32 v231, s84
    v_cndmask_b32 v230, v230, v231, vcc
    """)


def cst_out(A, opt):
    if not opt.get("cst"): return
    A(f"""
    v_writelane_b32 v230, s88, 48
    s_mov_b64 s[84:85], s[24:25]
    s_mov_b32 s86, 0x7fffffff
    s_mov_b32 s87, 0x00020000
    v_lshlrev_b32 v231, 2, v0
    s_lshl_b32 s4, s2, 11
    s_add_u32 s4, s4, {STAMP_OFS + (1 << 20)}
    buffer_store_dword v230, v231, s[84:87], s4 offen
    """)


def poll_check(A, vdst, dc, again):
    A(f"v_cmp_ne_u32 vcc, 0, {vdst}")
    if dc & 0xffffffff: A(f"s_or_b32 vcc_lo, vcc_lo, {hex(dc & 0xffffffff)}")
    if dc >> 32: A(f"s_or_b32 vcc_hi, vcc_hi, {hex(dc >> 32)}")
    A(f"""
    s_cmp_eq_u64 vcc, -1
    s_cbranch_scc0 {again}
    """)


def poll(A, name, srd, soff, vaddr, vdst, dc, scnt="s7", sleep=0, st=None):
    A(f"s_mov_b32 {scnt}, {POLL_MAX}")
    if sleep: A(f"s_branch {name}_1")
    A.label(name)
    if sleep:
        A(f"s_sleep {sleep}")
        A.label(name + "_1")
    A(f"""
    s_sub_u32 {scnt}, {scnt}, 1
    s_cbranch_scc1 {name}_X
    """)
    if st: st()
    A(f"""
    buffer_load_dword {vdst}, {vaddr}, {srd}, {soff} offen sc1
    s_waitcnt vmcnt(0)
    """)
    A.label(name + "_C")
    poll_check(A, vdst, dc, name)
    A.label(name + "_X")


def ppoll(A, name, srd, soff, vaddr, v0, n, dc, sleep, scnt="s7"):
    A(f"s_mov_b32 {scnt}, {POLL_MAX}")
    for i in range(n - 1):
        A(f"buffer_load_dword v{v0+i}, {vaddr}, {srd}, {soff} offen sc1")
        if sleep: A(f"s_sleep {sleep}")
    A.label(name)
    A(f"""
    s_sub_u32 {scnt}, {scnt}, 1
    s_cbranch_scc1 {name}_X
    """)
    for i in range(n):
        A(f"""
        buffer_load_dword v{v0+(i+n-1)%n}, {vaddr}, {srd}, {soff} offen sc1
        s_waitcnt vmcnt({n-1})
        v_cmp_ne_u32 vcc, 0, v{v0+i}
        """)
        if dc & 0xffffffff: A(f"s_or_b32 vcc_lo, vcc_lo, {hex(dc & 0xffffffff)}")
        if dc >> 32: A(f"s_or_b32 vcc_hi, vcc_hi, {hex(dc >> 32)}")
        A(f"""
        s_cmp_eq_u64 vcc, -1
        s_cbranch_scc1 {name}_X
        """)
        if sleep: A(f"s_sleep {sleep}")
    A(f"s_branch {name}")
    A.label(name + "_X")


DC_W = 0xFFFFFC0000000000
DBG = "s[92:95]"
MAP = {"m": 2}


def p2_tile(A):
    lm = MAP["m"]
    ln = 5 - lm
    xm = 4 - lm
    A(f"""
    s_and_b32 s38, s37, {(1 << xm) - 1}
    s_lshl_b32 s38, s38, {lm}
    s_and_b32 s39, s3, {(1 << lm) - 1}
    s_add_u32 s38, s38, s39
    s_lshr_b32 s39, s37, {xm}
    s_lshl_b32 s39, s39, {ln}
    s_lshr_b32 s4, s3, {lm}
    s_add_u32 s39, s39, s4
    """)
    if MAP["ac"]:
        A(f"""
        s_lshl_b32 s45, s38, 4
        s_add_u32 s45, s45, s39
        s_lshl_b32 s45, s45, 7
        s_add_u32 s44, s45, {FLG + 32768}
        s_add_u32 s45, s45, {FLG}
        """)
        return
    if MAP["ef"]:
        A(f"""
        s_mul_i32 s45, s39, 3
        s_add_u32 s43, s45, 2
        s_lshr_b32 s45, s45, 2
        s_lshr_b32 s43, s43, 2
        s_cmp_eq_u32 s43, s45
        s_cselect_b32 s43, 13, 27
        s_mul_i32 s45, s45, {14*128}
        s_add_u32 s45, s45, {FLG}
        s_mul_i32 s44, s38, {20*128}
        s_add_u32 s44, s44, {FLG + 672*128}
        """)
        return
    if MAP["lf"]:
        A(f"""
        s_mul_i32 s45, s39, {42*128}
        s_add_u32 s45, s45, {FLG}
        s_mul_i32 s44, s38, {20*128}
        s_add_u32 s44, s44, {FLG + 672*128}
        """)
        return
    A(f"""
    s_lshl_b32 s45, s38, 4
    s_add_u32 s45, s45, s39
    s_lshl_b32 s44, s45, 7
    s_add_u32 s44, s44, {XFLG}
    s_lshl_b32 s45, s45, 8
    s_add_u32 s45, s45, {FLG}
    """)


def spoll(A, name, soff, want, sleep, first=True):
    A(f"s_mov_b32 s7, {POLL_MAX}")
    if not first: A(f"s_branch {name}_C")
    elif sleep: A(f"s_branch {name}_1")
    A.label(name)
    if sleep:
        A(f"s_sleep {sleep}")
        A.label(name + "_1")
    A(f"""
    s_sub_u32 s7, s7, 1
    s_cbranch_scc1 {name}_X
    s_buffer_load_dword s61, s[24:27], {soff} glc
    """)
    A.label(name + "_C")
    A(f"""
    s_waitcnt lgkmcnt(0)
    s_cmp_lt_u32 s61, {want}
    s_cbranch_scc1 {name}
    """)
    A.label(name + "_X")


def publish(A, opt, sflag, sshift):
    if MAP["ac"]:
        A(f"""
        v_mov_b32 v2, 1
        v_lshlrev_b32 v3, {sshift}, v1
        s_waitcnt vmcnt(0)
        s_mov_b64 exec, 0xffff
        buffer_atomic_add v2, v3, s[24:27], {sflag} offen sc1
        s_mov_b64 exec, -1
        """)
        stamp(A, opt, 4)
        return
    A(f"""
    v_mov_b32 v2, 1
    v_lshlrev_b32 v3, {sshift}, v1
    s_waitcnt vmcnt(0)
    s_mov_b64 exec, {1 if MAP["lf"] else "0xffff"}
    buffer_store_dword v2, v3, s[24:27], {sflag} offen sc1
    """)
    if opt.get("xap"):
        A(f"""
        v_mov_b32 v3, {LFLAG}
        s_mov_b64 exec, 1
        ds_add_u32 v3, v2 offset:8
        """)
    A("s_mov_b64 exec, -1")
    stamp(A, opt, 4)


def gen_kernel(A, opt):
    A.label(KNAME)
    stamp_begin(A, opt)
    A("""
    s_load_dwordx2 s[8:9], s[0:1], 8
    s_load_dwordx2 s[12:13], s[0:1], 40
    s_load_dwordx2 s[16:17], s[0:1], 16
    s_load_dwordx2 s[20:21], s[0:1], 24
    s_load_dwordx2 s[28:29], s[0:1], 0
    s_load_dwordx2 s[32:33], s[0:1], 32
    s_load_dwordx2 s[24:25], s[0:1], 64
    s_load_dwordx2 s[92:93], s[0:1], 56
    s_load_dwordx2 s[96:97], s[0:1], 48
    s_cmp_ge_u32 s2, 256
    s_cbranch_scc1 K_EXIT
    v_and_b32 v1, 63, v0
    v_lshrrev_b32 v2, 6, v0
    s_getpc_b64 s[4:5]
    """)
    A.label("P1_PC")
    A(f"""
    v_readfirstlane_b32 s36, v2
    """)
    CP = opt.get("cp", 0)
    if CP:
        A(f"""
        s_lshr_b32 s3, s2, 3
        s_lshl_b32 s37, s3, 2
        v_min_u32 v3, {CP-1}, v1
        v_add_u32 v3, s37, v3
        v_and_b32 v3, 127, v3
        v_lshlrev_b32 v3, 7, v3
        v_min_u32 v3, CODE_END-P1_PC-4, v3
        s_and_b32 s37, s2, 7
        s_cmp_lg_u32 s36, {opt.get("cpw", 7)}
        s_cbranch_scc1 P1_NOPF
        global_load_dword v250, v3, s[4:5]
        """)
    else:
        A(f"""
        v_lshlrev_b32 v3, 7, v1
        v_add_u32 v4, 0x2000, v3
        v_min_u32 v4, CODE_END-P1_PC-4, v4
        s_lshr_b32 s3, s2, 3
        s_and_b32 s37, s2, 7
        s_cmp_lg_u32 s36, 7
        s_cbranch_scc1 P1_NOPF
        global_load_dword v250, v3, s[4:5]
        global_load_dword v251, v4, s[4:5]
        """)
    A(f"""
    v_mov_b32 v2, 0
    v_mov_b32 v3, 0
    v_mov_b32 v4, {LFLAG}
    ds_write_b64 v4, v[2:3]
    """)
    if opt.get("nb") or opt.get("xw"): A("ds_write_b64 v4, v[2:3] offset:8")
    A.label("P1_NOPF")
    A(f"""
    s_mov_b32 s11, 0x00020000
    s_mov_b32 s15, 0x00020000
    s_mov_b32 s27, 0x00020000
    s_mov_b32 s26, {WS_USED}
    s_movk_i32 s94, 256
    s_mov_b32 s95, 0x00020000
    s_mov_b32 s98, {OUT_BYTES}
    s_mov_b32 s99, 0x00020000
    v_lshlrev_b32 v5, 4, v1
    s_cmp_ge_u32 s3, 21
    s_cbranch_scc1 P1_XR
    """)
    gen_w2(A, opt)
    A.label("P1_XR")
    gen_xr(A, opt)
    (gen_p2d if opt.get("dy") else gen_p2)(A, opt)
    A.label("K_EXIT")
    stamp_end(A, opt)


def gate_addr(A, v, m=7):
    A(f"""
    v_and_b32 {v}, {m}, v1
    v_lshlrev_b32 {v}, 2, {v}
    """)


def gen_w2(A, opt):
    NQ = 2
    SH = opt.get("sh", 0)
    RING = 3 * VSTAGE
    RG = opt.get("rg", 2)
    sW, sLOC, sXCD = "s36", "s3", "s37"
    sMI, sNI = "s40", "s41"
    sC = "s49"
    sVOFS = "s43"
    vVO = 6
    if opt.get("cst"): A("s_memtime s[88:89]")
    A(f"""
    s_mul_i32 s4, {sLOC}, 171
    s_lshr_b32 s4, s4, 9
    s_mul_i32 s5, s4, 3
    s_sub_u32 s5, {sLOC}, s5
    s_lshr_b32 s6, {sXCD}, 2
    s_mul_i32 s6, s6, 7
    s_add_u32 {sMI}, s6, s4
    s_and_b32 s6, {sXCD}, 3
    s_mul_i32 s6, s6, 3
    s_add_u32 {sNI}, s6, s5
    s_mul_i32 s42, {sMI}, 3
    s_mov_b32 s57, s5
    """)
    RL = opt.get("rl", 0)
    if RL:
        A(f"""
        s_add_u32 s58, s4, s5
        s_mul_i32 s6, s58, 171
        s_lshr_b32 s6, s6, 9
        s_mul_i32 s6, s6, 3
        s_sub_u32 s58, s58, s6
        s_cmp_ge_u32 s4, 3
        s_cselect_b32 s6, 3, 2
        s_cmp_eq_u32 s58, 2
        s_cselect_b32 s58, s6, s58
        """)
    A(f"""
    s_sub_u32 s4, {sW}, 4
    s_cmp_lt_u32 s4, 3
    s_cbranch_scc1 W2_DEQ
    s_mov_b32 s14, {V_BYTES}
    v_lshrrev_b32 v2, 4, v1
    v_and_b32 v3, 15, v1
    v_lshlrev_b32 v4, 1, v2
    v_xor_b32 v3, v3, v4
    v_lshlrev_b32 v3, 4, v3
    v_mul_u32_u24 v4, 0xc00, v2
    v_add_u32 v{vVO}, v3, v4
    v_add_u32 v{vVO+1}, 11264, v{vVO}
    v_xor_b32 v3, 0x80, v{vVO}
    v_add_u32 v{vVO+2}, {2*11264}, v3
    v_add_u32 v{vVO+3}, {3*11264}, v3
    s_lshl_b32 {sVOFS}, {sNI}, 8
    s_cmp_lt_u32 {sW}, 4
    s_cbranch_scc1 W2_MFMA
    """)

    def v_group():
        for j in range(4):
            A(f"buffer_load_dwordx4 v{vVO+j}, s[12:15], {sVOFS} offen offset:{1024*j} lds")

    GPC = opt.get("gpc", 2 if SH else 4)
    for g in range(1, 8):
        for j in range(4):
            A(f"v_add_u32 v{vVO+4*g+j}, {g*16*3072}, v{vVO+j}")
    gate_addr(A, "v40", 15 if opt.get("fw") else 7)
    LP, LG = opt.get("lp", 0), opt.get("lg", 1)
    A(f"""
    s_mov_b32 m0, {VSTAGE}
    s_mov_b32 {sC}, 1
    """)
    if RL:
        A(f"""
        s_cmp_eq_u32 s58, 3
        s_cselect_b32 s59, {VSTAGE}, 0
        s_cselect_b32 s60, 393216, 0
        s_sub_u32 m0, m0, s59
        s_sub_u32 {sVOFS}, {sVOFS}, s60
        """)
    A("s_waitcnt lgkmcnt(0)")
    stamp(A, opt, 1)
    cst(A, opt, 0, 49)
    ST = 7 if RL else opt.get("st", 0)
    if ST & 1:
        cst(A, opt, 0, 50)
        A("s_barrier")
        cst(A, opt, 0, 51)
        A(f"s_setprio {opt.get('lpr', 3)}")
    A.label("W2L_LOOP")
    A(f"""
    s_add_u32 {sVOFS}, {sVOFS}, 393216
    s_cmp_lg_u32 {sC}, {GPC}
    s_cbranch_scc1 W2L_NG
    buffer_load_dword v42, v40, {DBG}, 0 offen sc1
    """)
    A.label("W2L_NG")
    for g in range(8):
        if g == 6: A("s_waitcnt vmcnt(54)")
        for j in range(4):
            A(f"buffer_load_dwordx4 v{vVO+4*g+j}, s[12:15], {sVOFS} offen offset:{1024*j} lds")
            if j == 3: A("s_add_u32 m0, m0, 4096")
            if j == 3 and g < 7: A("s_nop 0")
            if opt.get("lpa") and (4*g+j+1) % opt.get("lpg", 1) == 0:
                n_ = opt["lpa"]
                while n_ > 0:
                    A(f"s_nop {min(n_, 16) - 1}"); n_ -= 16
    A(f"""
    s_cmp_ge_u32 m0, {RING}
    s_cselect_b32 m0, 0, m0
    """)
    if RL:
        A(f"""
        s_cmp_eq_u32 s59, 0
        s_cbranch_scc1 W2L_R
        s_add_u32 m0, m0, s59
        s_add_u32 {sVOFS}, {sVOFS}, s60
        s_mov_b32 s59, 0
        s_waitcnt vmcnt(0)
        """)
        A.label("W2L_R")
    if not ST & 1:
        A(f"""
        s_cmp_lg_u32 {sC}, 1
        s_cbranch_scc1 W2L_NT
        """)
        cst(A, opt, 0, 50)
        A("s_barrier")
        cst(A, opt, 0, 51)
        A(f"s_setprio {opt.get('lpr', 3)}")
        A.label("W2L_NT")
    cst(A, opt, sC, 31)
    A(f"""
    s_waitcnt vmcnt(32)
    s_cmp_lg_u32 {sC}, {GPC}
    s_cbranch_scc1 W2L_G_X
    """)
    poll_check(A, "v42", 0, "W2L_GS")
    A.label("W2L_G_X")
    cst(A, opt, sC, 15)
    A("s_barrier")
    cst(A, opt, sC, -1)
    A(f"""
    s_add_u32 {sC}, {sC}, 1
    s_cmp_lt_u32 {sC}, {12 - (1 if LP else 0)}
    s_cbranch_scc1 W2L_LOOP
    """)
    if LP:
        A(f"s_add_u32 {sVOFS}, {sVOFS}, 393216")
        for g in range(8):
            if g == 6: A("s_waitcnt vmcnt(54)")
            for j in range(4):
                A(f"buffer_load_dwordx4 v{vVO+4*g+j}, s[12:15], {sVOFS} offen offset:{1024*j} lds")
                if j == 3: A("s_add_u32 m0, m0, 4096")
                if (4 * g + j + 1) % LG == 0 and 4 * g + j < 31:
                    n = LP
                    while n > 0:
                        A(f"s_nop {min(n, 16) - 1}"); n -= 16
                elif j == 3 and g < 7: A("s_nop 0")
        cst(A, opt, sC, 31)
        A("s_waitcnt vmcnt(32)")
        cst(A, opt, sC, 15)
        A("s_barrier")
        cst(A, opt, sC, -1)
    EF = MAP["ef"]

    def early_flag():
        nsleep(A, opt.get("pd", 0))
        A(f"""
        s_mov_b64 exec, 1
        buffer_store_dword v41, v40, s[24:27], s51 offen sc1
        s_mov_b64 exec, -1
        """)
        stamp(A, opt, 4)
    if EF:
        A(f"""
        s_mul_i32 s51, {sNI}, 14
        s_add_u32 s51, s51, {sMI}
        s_lshl_b32 s51, s51, 7
        s_add_u32 s51, s51, {FLG}
        v_mov_b32 v41, 1
        """)
        if EF == 10: early_flag()
        A(f"""
        s_waitcnt vmcnt({1 if EF == 10 else 0})
        s_barrier
        """)
        if EF == 11: early_flag()
        A("s_barrier")
        if EF == 12: early_flag()
        A("s_setprio 0")
    elif opt.get("nb"):
        A("s_setprio 0")
        if opt["nb"] == 2 and MAP["ac"]:
            p2_tile(A)
            nsleep(A, opt.get("xpd", 0))
            A(f"""
            s_buffer_load_dword s61, s[24:27], s44 glc
            v_mov_b32 v4, {LFLAG}
            v_mov_b32 v3, 1
            s_waitcnt vmcnt(0) lgkmcnt(0)
            s_cmp_lt_u32 s61, 20
            s_cbranch_scc1 W2L_NX
            ds_write_b32 v4, v3
            s_waitcnt lgkmcnt(0)
            """)
            A.label("W2L_NX")
        elif opt["nb"] == 2:
            p2_tile(A)
            A(f"""
            v_min_u32 v2, 19, v1
            v_lshlrev_b32 v2, 7, v2
            buffer_load_dword v3, v2, s[24:27], s44 offen sc1
            v_mov_b32 v4, {LFLAG}
            s_waitcnt vmcnt(0)
            """)
            poll_check(A, "v3", 0, "W2L_NX")
            A("""
            ds_write_b32 v4, v3
            s_waitcnt lgkmcnt(0)
            """)
            A.label("W2L_NX")
        A("""
        s_waitcnt vmcnt(0)
        s_barrier
        """)
    else:
        A(f"""
        s_setprio 0
        s_waitcnt vmcnt(0)
        s_barrier
        s_barrier
        """)
    cst_out(A, opt)
    A("s_branch P2_MM")
    A.label("W2L_GS")
    A(f"s_mov_b32 s7, {POLL_MAX}")
    A.label("W2L_G")
    A(f"""
    s_sub_u32 s7, s7, 1
    s_cbranch_scc1 W2L_G_X
    buffer_load_dword v42, v40, {DBG}, 0 offen sc1
    s_waitcnt vmcnt(0)
    """)
    poll_check(A, "v42", 0, "W2L_G")
    A("s_branch W2L_G_X")
    A.label("W2_DEQ")
    sB = "s38"
    sQOFS = "s43"
    vQO = 6
    vAW = 14
    vTB = 22
    U_ = 24
    Ft = 40
    O = 48
    vQ = 52
    QS = 32
    vAP = 116
    vP = 124
    vPL, vPA = 156, 157
    sCS, sPK, sQF = "s39", "s45", "s46"
    A(f"""
    s_mov_b32 {sB}, s4
    s_add_u32 s4, s42, {sB}
    s_cmp_ge_u32 s4, 40
    s_cbranch_scc1 W2D_IDLE
    s_mul_i32 {sQOFS}, s4, {16*6144}
    """)
    if SH:
        A(f"""
        s_mul_i32 {sPK}, s4, {12*4096}
        s_add_u32 {sPK}, {sPK}, {SA + 2*4096}
        """)
    A(f"""
    s_lshr_b32 s6, s4, 1
    s_lshr_b32 s5, s42, 1
    s_sub_u32 s6, s6, s5
    s_mul_i32 s6, s6, 6144
    s_add_u32 s6, s6, {TBL}
    s_mov_b32 s10, {QW_BYTES}
    v_lshrrev_b32 v2, 5, v1
    v_and_b32 v3, 31, v1
    v_lshlrev_b32 v4, 4, v3
    v_mul_u32_u24 v{vQO}, 0x1800, v2
    v_add_u32 v{vQO}, v{vQO}, v4
    v_add_u32 v{vTB}, s6, v4
    """)
    QR = opt.get("qr", 3)
    A(f"s_mul_i32 s57, s57, {QR}")
    for i in range(7, -1, -1):
        A(f"""
        s_add_u32 s4, s57, {i}
        s_and_b32 s4, s4, 7
        s_mul_i32 s4, s4, 12288
        v_add_u32 v{vQO+i}, s4, v{vQO}
        """)
    A("s_waitcnt lgkmcnt(0)")
    stamp(A, opt, 1)
    cst(A, opt, 0, 49)

    def t_read(n):
        u = U_ + 8 * (n & 1)
        A(f"""
        ds_read_b128 {vr(u,4)}, v{vTB}
        ds_read_b128 {vr(u+4,4)}, v{vTB} offset:12288
        v_add_u32 v{vTB}, 512, v{vTB}
        """)

    if RL:
        A("""
        s_cmp_lg_u32 s58, 1
        s_cbranch_scc1 W2D_R0
        """)
        for i in range(8):
            A(f"buffer_load_dwordx4 {vr(vQ+QS+4*i,4)}, v{vQO+i}, s[8:11], {sQOFS} offen offset:512")
        A.label("W2D_R0")
    for u in range(1 if ST & 2 else NQ):
        for i in range(8):
            A(f"buffer_load_dwordx4 {vr(vQ+QS*u+4*i,4)}, v{vQO+i}, s[8:11], {sQOFS} offen offset:{512*u}")
    A(f"""
    s_add_u32 {sQOFS}, {sQOFS}, 512
    s_lshl_b32 s4, {sB}, 12
    s_add_u32 s4, s4, {ABASE}
    v_bfe_u32 v3, v1, 1, 4
    v_xor_b32 v4, v3, v2
    v_lshlrev_b32 v4, 4, v4
    v_lshl_add_u32 v4, v2, 8, v4
    v_and_b32 v3, 1, v1
    v_lshl_add_u32 v4, v3, 3, v4
    v_add_u32 v{vAW}, s4, v4
    """)
    if SH:
        for i in range(8):
            A(f"""
            v_xor_b32 v3, {32*i}, v{vAW}
            v_add_u32 v{vAP+i}, {512*i}, v3
            """)
        A(f"""
        s_mul_i32 {sQF}, {sMI}, 12
        s_add_u32 {sQF}, {sQF}, {sNI}
        s_lshl_b32 {sQF}, {sQF}, 2
        s_add_u32 {sQF}, {sQF}, {sB}
        s_lshl_b32 {sQF}, {sQF}, 6
        s_add_u32 {sQF}, {sQF}, {SFLG}
        s_movk_i32 {sCS}, 100
        v_max_u32 v{vPA}, {SH}, v1
        v_min_u32 v{vPA}, 11, v{vPA}
        v_lshlrev_b32 v{vPA}, 2, v{vPA}
        v_mov_b32 v{vPL}, 0
        """)
    for i in range(7, -1, -1):
        A(f"""
        s_add_u32 s4, s57, {i}
        s_and_b32 s4, s4, 7
        s_lshl_b32 s5, s4, 5
        s_lshl_b32 s4, s4, 9
        v_xor_b32 v3, s5, v{vAW}
        v_add_u32 v{vAW+i}, s4, v3
        """)
    A(f"s_mov_b32 {sC}, 0")
    cst(A, opt, 0, 50)
    if opt.get("cst") and not ST & 2:
        A("s_waitcnt vmcnt(8)")
        cst(A, opt, 0, 52)
    A("s_barrier")
    cst(A, opt, 0, 51)
    A(f"s_setprio {opt.get('dpr', 3)}")
    t_read(0)
    if ST & 2:
        if RL:
            A("""
            s_cmp_lg_u32 s58, 1
            s_cbranch_scc1 W2D_R1
            s_waitcnt vmcnt(0)
            s_branch W2D_R2
            """)
            A.label("W2D_R1")
        for i in range(8):
            A(f"buffer_load_dwordx4 {vr(vQ+QS+4*i,4)}, v{vQO+i}, s[8:11], {sQOFS} offen")
        if RL: A.label("W2D_R2")
        if opt.get("cst"):
            cst(A, opt, 0, 53)
            A("s_waitcnt vmcnt(8)")
            cst(A, opt, 0, 52)
    A("s_waitcnt lgkmcnt(0)")
    UN = 2

    def sload(n, sofs):
        for j in range(4):
            A(f"buffer_load_dwordx4 {vr(vP+16*n+4*j,4)}, v5, s[24:27], {sofs} offen offset:{1024*j} sc1")

    A.label("W2D_LOOP")
    for n in range(UN):
        u = n % NQ
        q = vQ + QS * u
        S = U_ + 8 * (n & 1)
        if SH:
            A(f"""
            s_add_u32 s5, {sC}, {n}
            s_lshl_b32 s47, s5, 12
            s_add_u32 s47, s47, {sPK}
            s_cmp_ge_u32 s5, {sCS}
            s_cbranch_scc1 W2D_PK{n}
            """)
        t_read(n + 1)
        A(f"s_add_u32 {sQOFS}, {sQOFS}, 512")
        if SH:
            A(f"""
            s_add_u32 s6, s5, 1
            s_min_u32 s7, {sCS}, 12
            s_cmp_lt_u32 s6, s7
            s_waitcnt vmcnt(8)
            s_cbranch_scc1 W2D_NT{n}
            s_cmp_lt_u32 s6, 12
            s_waitcnt vmcnt(4)
            s_cbranch_scc1 W2D_NT{n}
            s_waitcnt vmcnt(0)
            """)
            A.label(f"W2D_NT{n}")
            A(f"""
            s_add_u32 s6, s5, 2
            s_cmp_lt_u32 {sCS}, 100
            s_cbranch_scc1 W2D_E{n}
            v_cmp_ne_u32 vcc, 0, v{vPL}
            s_max_u32 s7, s6, {SH}
            s_cmp_eq_u64 vcc, -1
            s_cselect_b32 {sCS}, s7, {sCS}
            s_cbranch_scc1 W2D_E{n}
            s_cmp_lt_u32 s5, {max(GPC, opt.get("sp0", 0))}
            s_cbranch_scc1 W2D_E{n}
            buffer_load_dword v{vPL}, v{vPA}, s[24:27], {sQF} offen sc1
            """)
            A.label(f"W2D_E{n}")
            A(f"""
            s_cmp_gt_u32 s6, 11
            s_cbranch_scc1 W2D_F{n}
            s_cmp_lt_u32 s6, {sCS}
            s_cbranch_scc1 W2D_F{n}
            """)
            sload(n, "s47")
            A.label(f"W2D_F{n}")
            A(f"""
            s_min_u32 s7, {sCS}, 12
            s_cmp_lt_u32 s6, s7
            """)
        else:
            A(f"""
            s_cmp_lt_u32 {sC}, {12-NQ-n+1}
            s_waitcnt vmcnt({8*(NQ-1)})
            s_cbranch_scc1 W2D_NT{n}
            s_waitcnt vmcnt({8*min(NQ-1, max(0, UN-1-n))})
            """)
            A.label(f"W2D_NT{n}")
            A(f"s_cmp_lt_u32 {sC}, {opt.get('noq', 12)-NQ-n}")
        for i in range(8):
            qq = q + 4 * i
            f = Ft + 4 * (i & 1)
            o = O + 2 * (i & 1)
            WL = opt.get("wl", 0)
            if WL: o = 160 + 2 * i
            if opt.get("bf"):
                for j in range(4): A(f"v_bfe_u32 v{f+j}, v{qq+j}, 0, 3")
                A(f"""
                v_pk_fma_f32 {vr(f,2)}, {vr(f,2)}, {vr(S,2)}, {vr(S+4,2)}
                v_pk_fma_f32 {vr(f+2,2)}, {vr(f+2,2)}, {vr(S+2,2)}, {vr(S+6,2)}
                v_cvt_pk_bf16_f32 v{o}, v{f}, v{f+1}
                v_cvt_pk_bf16_f32 v{o+1}, v{f+2}, v{f+3}
                """)
            else:
              A(f"""
            v_fma_f32 v{f}, v{qq}, v{S}, v{S+4}
            v_fma_f32 v{f+1}, v{qq+1}, v{S+1}, v{S+5}
            v_fma_f32 v{f+2}, v{qq+2}, v{S+2}, v{S+6}
            v_fma_f32 v{f+3}, v{qq+3}, v{S+3}, v{S+7}
            v_cvt_pk_bf16_f32 v{o}, v{f}, v{f+1}
            v_cvt_pk_bf16_f32 v{o+1}, v{f+2}, v{f+3}
            """)
            if i + 1 == WL:
                for ii in range(WL): A(f"ds_write_b64 v{vAW+ii}, {vr(160+2*ii,2)} offset:{ASTAGE*(n&1)}")
            elif i + 1 > WL:
                A(f"ds_write_b64 v{vAW+i}, {vr(o,2)} offset:{ASTAGE*(n&1)}")
            if (i + 1) % RG == 0:
                A(f"s_cbranch_scc0 W2D_SK{n}_{i}")
                for ii in range(i + 1 - RG, i + 1):
                    A(f"buffer_load_dwordx4 {vr(q+4*ii,4)}, v{vQO+ii}, s[8:11], {sQOFS} offen")
                A.label(f"W2D_SK{n}_{i}")
        A("s_waitcnt lgkmcnt(0)")
        if SH: A.label(f"W2D_J{n}")
        cst(A, opt, sC, 16 + n)
        A("s_barrier")
        cst(A, opt, sC, n)
    A(f"""
    s_add_u32 {sC}, {sC}, {UN}
    s_cmp_lt_u32 {sC}, 12
    s_cbranch_scc1 W2D_LOOP
    """)
    A("s_setprio 0")
    if SH and opt.get("stamp"): A(f"s_mov_b32 s90, {sCS}")
    if not opt.get("nb"): A("s_barrier")
    cst_out(A, opt)
    A("s_branch P2_MM")
    if SH:
        for n in range(UN):
            A.label(f"W2D_PK{n}")
            A(f"""
            s_cmp_lt_u32 s5, 11
            s_waitcnt vmcnt(4)
            s_cbranch_scc1 W2D_PW{n}
            s_waitcnt vmcnt(0)
            """)
            A.label(f"W2D_PW{n}")
            for i in range(8):
                A(f"ds_write_b64 v{vAP+i}, {vr(vP+16*n+2*i,2)} offset:{ASTAGE*(n&1)}")
            A(f"""
            s_cmp_gt_u32 s5, 9
            s_waitcnt lgkmcnt(0)
            s_cbranch_scc1 W2D_J{n}
            """)
            sload(n, "s47")
            A(f"s_branch W2D_J{n}")
    A.label("W2D_IDLE")
    A(f"""
    s_mov_b32 {sC}, 0
    s_waitcnt lgkmcnt(0)
    """)
    A.label("W2D_IDL")
    A(f"""
    s_barrier
    s_add_u32 {sC}, {sC}, 1
    s_cmp_lt_u32 {sC}, {13 if opt.get("nb") else 14}
    s_cbranch_scc1 W2D_IDL
    s_branch P2_MM
    """)
    A.label("W2_MFMA")
    sCST = "s45"
    vAR = 10
    vBR = 14
    vT0, vT1 = 16, 17
    vST = 18
    vACC = 20
    vF = 44
    P = vF
    if ST & 8:
        A(f"""
        s_lshr_b32 s5, {sMI}, 1
        s_add_u32 s5, s5, {sW}
        s_and_b32 s5, s5, 3
        """)
    A(f"""
    s_lshl_b32 s4, {"s5" if ST & 8 else sW}, 13
    s_mov_b32 m0, s4
    s_mul_i32 s4, {"s5" if ST & 8 else sW}, {32*3072}
    s_add_u32 {sVOFS}, {sVOFS}, s4
    s_lshr_b32 s6, s42, 1
    s_mul_i32 s6, s6, 3072
    s_mov_b32 s18, {SC_BYTES}
    s_mov_b32 s19, 0x00020000
    s_mov_b32 s22, {SC_BYTES}
    s_mov_b32 s23, 0x00020000
    v_and_b32 v2, 0xff, v0
    v_lshlrev_b32 v19, 3, v2
    """)
    if ST & 4:
        A(f"""
        s_lshr_b32 s4, {sW}, 1
        s_lshl_b32 s4, s4, 11
        v_add_u32 v19, s4, v19
        s_mov_b32 s56, s6
        v_mov_b32 v{vT0}, v19
        """)
        if RL:
            A(f"""
            s_cmp_eq_u32 s58, 3
            s_cselect_b32 s4, {VSTAGE}, 0
            s_cselect_b32 s5, 393216, 0
            s_add_u32 m0, m0, s4
            s_add_u32 {sVOFS}, {sVOFS}, s5
            """)
        else:
            A(f"""
            s_add_u32 s58, s57, {sMI}
            s_and_b32 s58, s58, {1 if ST & 16 else 0}
            """)
    A("s_waitcnt lgkmcnt(0)")
    stamp(A, opt, 1)
    cst(A, opt, 0, 49)

    def v0_loads():
        v_group()
        A(f"""
        s_add_u32 m0, m0, 4096
        s_add_u32 {sVOFS}, {sVOFS}, {16*3072}
        """)
        v_group()
        if not RL: s12_loads()

    def s12_loads():
        for j in range(1, 3):
            A(f"""
            buffer_load_dwordx2 {vr(P+4*j,2)}, v{vT0}, s[16:19], s56 offen offset:{1024*j}
            buffer_load_dwordx2 {vr(P+4*j+2,2)}, v{vT0}, s[20:23], s56 offen offset:{1024*j}
            """)
    if ST & 4:
        A(f"""
        buffer_load_dwordx2 {vr(P,2)}, v19, s[16:19], s6 offen
        buffer_load_dwordx2 {vr(P+2,2)}, v19, s[20:23], s6 offen
        {"s_cmp_lt_u32 s58, 2" if RL else "s_cmp_lg_u32 s58, 0"}
        s_cbranch_scc1 W2M_VA
        """)
        v0_loads()
        A.label("W2M_VA")
        if RL: s12_loads()
    else:
        for j in range(2):
            A(f"""
            buffer_load_dwordx2 {vr(P+4*j,2)}, v19, s[16:19], s6 offen offset:{2048*j}
            buffer_load_dwordx2 {vr(P+4*j+2,2)}, v19, s[20:23], s6 offen offset:{2048*j}
            """)
        A(f"""
        s_add_u32 s6, s6, 4096
        buffer_load_dwordx2 {vr(P+8,2)}, v19, s[16:19], s6 offen
        buffer_load_dwordx2 {vr(P+10,2)}, v19, s[20:23], s6 offen
        """)
        v_group()
        A(f"""
        s_add_u32 m0, m0, 4096
        s_add_u32 {sVOFS}, {sVOFS}, {16*3072}
        """)
        v_group()
    A(f"""
    v_lshlrev_b32 v19, 1, v19
    v_add_u32 v19, {TBL}, v19
    v_and_b32 v2, 15, v1
    v_lshrrev_b32 v3, 4, v1
    v_xor_b32 v4, v2, v3
    v_lshlrev_b32 v4, 4, v4
    v_lshl_add_u32 v4, v2, 8, v4
    v_add_u32 v{vAR}, {ABASE}, v4
    v_xor_b32 v{vAR+1}, 64, v{vAR}
    v_xor_b32 v{vAR+2}, 128, v{vAR}
    v_xor_b32 v{vAR+3}, 192, v{vAR}
    v_bfe_u32 v2, v1, 2, 2
    v_and_b32 v4, 1, v3
    v_lshl_or_b32 v4, v4, 2, v2
    s_lshl_b32 s5, {sW}, 1
    v_xor_b32 v4, s5, v4
    v_lshlrev_b32 v4, 5, v4
    v_lshl_add_u32 v2, v3, 3, v2
    v_lshl_add_u32 v4, v2, 8, v4
    v_and_b32 v2, 3, v1
    v_lshl_add_u32 v{vBR}, v2, 3, v4
    v_xor_b32 v{vBR+1}, 32, v{vBR}
    s_mov_b32 {sCST}, 0
    s_mov_b32 {sC}, 0
    s_lshl_b32 s4, {sNI}, 2
    s_add_u32 s4, s4, {sW}
    s_mul_i32 s5, s4, 40
    s_add_u32 s5, s5, s42
    s_lshl_b32 s5, s5, 10
    s_add_u32 s50, s5, {W2F}
    s_mul_i32 s5, s4, 171
    s_lshr_b32 s5, s5, 9
    s_mul_i32 s6, s5, 3
    s_sub_u32 s6, s4, s6
    s_mul_i32 s6, s6, 14
    s_add_u32 s6, s6, {sMI}
    s_lshl_b32 s6, s6, 2
    s_lshl_b32 s5, s5, 8
    s_add_u32 s5, s5, s6
    s_add_u32 s51, s5, {FLG}
    """)
    if MAP["ac"]:
        A(f"""
        s_mul_i32 s51, s4, 171
        s_lshr_b32 s51, s51, 9
        s_lshl_b32 s51, s51, 7
        s_add_u32 s51, s51, {FLG}
        """)
    elif MAP["lf"]:
        A(f"""
        s_mul_i32 s51, s4, 14
        s_add_u32 s51, s51, {sMI}
        s_lshl_b32 s51, s51, 7
        s_add_u32 s51, s51, {FLG}
        """)
    A(f"""
    s_mov_b32 s53, {11 if MAP["ac"] else 12}
    s_mov_b32 s54, {hex((127+149-QE) << 23)}
    s_mov_b32 s55, {hex((127+149-QE) << 23)}
    s_mov_b32 s46, 0xffff0000
    s_mov_b32 s47, {hex((127+QE) << 23)}
    s_mov_b32 s48, {hex(0x80000000 | ((127+QE-149) << 23))}
    v_bfe_u32 v3, v1, 4, 1
    v_lshrrev_b32 v4, 5, v1
    v_and_b32 v{vST}, 15, v1
    v_lshl_add_u32 v{vST}, v3, 5, v{vST}
    v_lshl_add_u32 v{vST}, v4, 4, v{vST}
    v_lshlrev_b32 v{vST}, 4, v{vST}
    """)
    FC = opt.get("fc", 4)
    if FC > 50: FC = -1
    if opt.get("fw"): EF = 0
    if EF and FC < 0:
        assert not (ST & 4) and not RL
        for i in range(4): A(f"v_mov_b32 v{204+i}, -1")
        A(f"""
        s_cmp_eq_u32 {sMI}, 13
        s_cselect_b32 s4, 0, 1024
        s_add_u32 s5, s50, s4
        s_add_u32 s4, s5, s4
        buffer_store_dwordx4 v[204:207], v5, s[24:27], s50 offen sc1
        buffer_store_dwordx4 v[204:207], v5, s[24:27], s5 offen sc1
        buffer_store_dwordx4 v[204:207], v5, s[24:27], s4 offen sc1
        """)
    for i in range(0, 24, 2):
        A(f"v_mov_b64 {vr(vACC+i,2)}, 0")
    for i in range(0, 80, 2):
        A(f"v_mov_b64 {vr(vF+80+i,2)}, 0")
    if RL:
        A(f"""
        s_cmp_ge_u32 s58, 2
        s_cbranch_scc1 W2M_VB
        s_waitcnt vmcnt(0)
        """)
        A.label("W2M_VB")
    elif ST & 4:
        A(f"""
        s_cmp_eq_u32 s58, 0
        s_cbranch_scc1 W2M_VB
        """)
        nsleep(A, opt.get("vd", 0))
        v0_loads()
        A.label("W2M_VB")
    for j in range(3):
        q = P + 4 * j
        u = P + 16 + 8 * j
        if RL and j == 1:
            A(f"""
            s_cmp_ge_u32 s58, 2
            s_cbranch_scc1 W2M_VC
            s_setprio 3
            """)
            v0_loads()
            A("s_setprio 0")
            A("s_branch W2M_VD")
            A.label("W2M_VC")
            A("s_waitcnt vmcnt(0)")
            A.label("W2M_VD")
        if RL:
            if j == 0: A("s_waitcnt vmcnt(12)")
        elif ST & 4:
            A(f"s_waitcnt vmcnt({(12, 2, 0)[j]})")
            if j == 1: cst(A, opt, 0, 52)
        else:
            A(f"s_waitcnt vmcnt({8 + 4 - 2*j + (3 if EF and FC < 0 else 0)})")
        if j == 0: cst(A, opt, 0, 53)
        scale8(A, u, q, q + 2)
        TS = 2048 if ST & 4 else 4096
        A(f"""
        ds_write_b128 v19, {vr(u,4)} offset:{TS*j}
        ds_write_b128 v19, {vr(u+4,4)} offset:{TS*j+12288}
        """)
        if j == (0 if ST & 4 else 2):
            A("s_waitcnt lgkmcnt(0)")
            cst(A, opt, 0, 50)
            A("s_barrier")
            cst(A, opt, 0, 51)
    if RL:
        A("s_waitcnt vmcnt(0) lgkmcnt(0)")
        cst(A, opt, 0, 52)
    elif ST & 4:
        A("s_waitcnt lgkmcnt(0)")
    else:
        A(f"s_waitcnt vmcnt({3 if EF and FC < 0 else 0})")
        cst(A, opt, 0, 52)

    def reads(s, buf):
        fa = vF + buf * 80 + 20 * s
        fb = fa + 12
        r = []
        for b in range(3):
            r.append(f"ds_read_b128 {vr(fa+4*b,4)}, v{vAR+s} offset:{4096*b + ASTAGE*buf}")
        for t in range(2):
            for u in range(2):
                r.append(f"ds_read_b64_tr_b16 {vr(fb+4*t+2*u,2)}, v{vT0+t} offset:{(32*s+4*u)*256}")
        return r

    def mfmas(s, buf):
        fa = vF + buf * 80 + 20 * s
        fb = fa + 12
        r = []
        for b in range(3):
            for t in range(2):
                acc = vACC + (b * 2 + t) * 4
                r.append(f"v_mfma_f32_16x16x32_bf16 {vr(acc,4)}, {vr(fa+4*b,4)}, {vr(fb+4*t,4)}, {vr(acc,4)}")
        return r

    if EF and FC >= 0:
        for i in range(4): A(f"v_mov_b32 v{204+i}, -1")
    A.label("W2M_LOOP")
    if EF and FC >= 0:
        A(f"""
        s_waitcnt vmcnt(0)
        s_cmp_lg_u32 {sC}, {opt.get("fc", 4)}
        s_cbranch_scc1 W2M_NF
        buffer_store_dwordx4 v[204:207], v5, s[24:27], s50 offen sc1
        s_cmp_eq_u32 {sMI}, 13
        s_cbranch_scc1 W2M_NF
        buffer_store_dwordx4 v[204:207], v5, s[24:27], s50 offen offset:1024 sc1
        buffer_store_dwordx4 v[204:207], v5, s[24:27], s50 offen offset:2048 sc1
        """)
        A.label("W2M_NF")
        assert opt.get("fc", 4) in (0, 2, 4, 6, 8)
    for buf in range(2):
        A(f"""
        v_add_u32 v{vT0}, {sCST}, v{vBR}
        v_add_u32 v{vT1}, {sCST}, v{vBR+1}
        s_add_u32 {sCST}, {sCST}, {VSTAGE}
        s_cmp_ge_u32 {sCST}, {RING}
        s_cselect_b32 {sCST}, 0, {sCST}
        """)
        cst(A, opt, sC, 16 + buf)
        A("s_barrier")
        cst(A, opt, sC, buf)
        rd = sum((reads(s, buf) for s in range(4)), [])
        mf = sum((mfmas(s, buf ^ 1) for s in range(4)), [])
        FR = opt.get("fr", 4)
        RP = opt.get("rp", 1)
        seq = rd[:FR]
        ri = FR
        for m in mf:
            seq.append(m)
            seq += rd[ri:ri + RP]
            ri += RP
        seq += rd[ri:]
        for x in seq: A(x)
        A("s_waitcnt lgkmcnt(0)")
        if (opt.get("stamp") or opt.get("probe") == 2) and buf == 0:
            A(f"""
            s_cmp_lg_u32 {sC}, 0
            s_cbranch_scc1 W2M_ST
            """)
            stamp(A, opt, 2, True)
            A.label("W2M_ST")
    if EF and FC < 0: A("s_waitcnt vmcnt(0)")
    A(f"""
    s_add_u32 {sC}, {sC}, 2
    s_cmp_lt_u32 {sC}, 12
    s_cbranch_scc1 W2M_LOOP
    s_setprio 3
    """)
    if opt.get("nb"):
        A(f"""
        v_mov_b32 v2, 1
        v_mov_b32 v4, {LFLAG}
        s_mov_b64 exec, 1
        ds_add_u32 v4, v2 offset:8
        s_mov_b64 exec, -1
        """)
    else:
        A("s_barrier")
    for s_ in range(4):
        for m in mfmas(s_, 1): A(m)
    if opt.get("nb"): A("ds_read_b32 v3, v4 offset:8")
    A("s_nop 7")
    stamp(A, opt, 3)
    for b in range(3):
        a = vACC + 8 * b
        o = vF + 4 * b
        for j in range(4):
            A(f"v_pk_mul_f32 {vr(a+2*j,2)}, {vr(a+2*j,2)}, s[54:55]")
        A(f"""
        v_cvt_pk_bf16_f32 v{o}, v{a}, v{a+1}
        v_cvt_pk_bf16_f32 v{o+1}, v{a+2}, v{a+3}
        v_cvt_pk_bf16_f32 v{o+2}, v{a+4}, v{a+5}
        v_cvt_pk_bf16_f32 v{o+3}, v{a+6}, v{a+7}
        s_nop 1
        v_permlane32_swap_b32 v{o}, v{o+2}
        v_permlane32_swap_b32 v{o+1}, v{o+3}
        buffer_store_dwordx4 {vr(o,4)}, v{vST}, s[24:27], s50 offen offset:{1024*b} sc1
        """)
        if b == 0:
            A(f"""
            s_cmp_eq_u32 {sMI}, 13
            s_cbranch_scc1 W2M_END
            """)
    A.label("W2M_END")
    if opt.get("xw") or opt.get("xb"):
        A(f"""
        v_mov_b32 v2, 1
        v_mov_b32 v4, {LFLAG}
        s_mov_b64 exec, 1
        ds_add_u32 v4, v2 offset:12
        s_mov_b64 exec, -1
        """)
    EF = MAP["ef"]
    cst_out(A, opt)
    if EF: stamp(A, opt, 4)
    if opt.get("nb"):
        A.label("W2M_RC")
        A("""
        s_waitcnt lgkmcnt(0)
        v_readfirstlane_b32 s4, v3
        s_cmp_eq_u32 s4, 4
        s_cbranch_scc1 P2_PUB
        ds_read_b32 v3, v4 offset:8
        s_branch W2M_RC
        """)
        return
    A("s_branch P2_LD" if EF else "s_branch P2_PUB")


def scale8(A, u, s, z):
    A(f"""
    v_lshlrev_b32 v{u}, 16, v{s}
    v_and_b32 v{u+1}, s46, v{s}
    v_lshlrev_b32 v{u+2}, 16, v{s+1}
    v_and_b32 v{u+3}, s46, v{s+1}
    v_lshlrev_b32 v{u+4}, 16, v{z}
    v_and_b32 v{u+5}, s46, v{z}
    v_lshlrev_b32 v{u+6}, 16, v{z+1}
    v_and_b32 v{u+7}, s46, v{z+1}
    """)
    for i in range(4): A(f"v_mul_f32 v{u+4+i}, s48, v{u+4+i}")
    for i in range(4): A(f"v_mul_f32 v{u+4+i}, v{u+i}, v{u+4+i}")
    for i in range(4): A(f"v_mul_f32 v{u+i}, s47, v{u+i}")


def wt_setup(A, opt, tag):
    TC = opt.get("wtc", 2)
    if opt.get("wm", 0):
        assert all((u * 171) >> 10 == u // 6 for u in range(384))
        A(f"""
        s_sub_u32 s4, s3, 21
        s_lshr_b32 s5, s37, 2
        s_and_b32 s6, s37, 3
        s_cmp_ge_u32 s4, 6
        s_cbranch_scc1 WT_Q{tag}
        s_lshl_b32 s4, s4, 6
        v_add_u32 v3, s4, v1
        v_mul_u32_u24 v7, 171, v3
        v_lshrrev_b32 v7, 10, v7
        v_mul_u32_u24 v7, {3072 - 768}, v7
        v_lshl_add_u32 v7, v3, 7, v7
        s_mul_i32 s46, s5, {64*3072}
        s_mul_i32 s6, s6, 768
        s_add_u32 s46, s46, s6
        s_add_u32 s46, s46, {TC*393216}
        s_mov_b32 s47, 393216
        s_mov_b32 s8, s12
        s_mov_b32 s9, s13
        s_mov_b32 s10, {V_BYTES}
        s_branch WT_G{tag}
        """)
        A.label(f"WT_Q{tag}")
        A(f"""
        v_lshrrev_b32 v7, 2, v1
        v_mul_u32_u24 v7, 0x1800, v7
        v_and_b32 v3, 3, v1
        v_lshl_add_u32 v7, v3, 7, v7
        s_mul_i32 s5, s37, 5
        s_add_u32 s4, s4, s5
        s_sub_u32 s4, s4, 6
        s_mul_i32 s46, s4, {16*6144}
        s_add_u32 s46, s46, {TC*512}
        s_movk_i32 s47, 512
        s_mov_b32 s10, {QW_BYTES}
        """)
        A.label(f"WT_G{tag}")
        return
    A(f"""
    s_sub_u32 s4, s2, 168
    s_cmp_ge_u32 s4, 48
    s_cbranch_scc1 WT_Q{tag}
    v_lshlrev_b32 v7, 7, v1
    s_lshl_b32 s46, s4, 13
    s_add_u32 s46, s46, {TC*393216}
    s_mov_b32 s47, 393216
    s_mov_b32 s8, s12
    s_mov_b32 s9, s13
    s_mov_b32 s10, {V_BYTES}
    s_branch WT_G{tag}
    """)
    A.label(f"WT_Q{tag}")
    A(f"""
    v_lshrrev_b32 v7, 2, v1
    v_mul_u32_u24 v7, 0x1800, v7
    v_and_b32 v3, 3, v1
    v_lshl_add_u32 v7, v3, 7, v7
    s_sub_u32 s4, s4, 48
    s_mul_i32 s46, s4, {16*6144}
    s_add_u32 s46, s46, {TC*512}
    s_movk_i32 s47, 512
    s_mov_b32 s10, {QW_BYTES}
    """)
    A.label(f"WT_G{tag}")


def wt(A, opt, i, tag):
    SH = opt.get("sh", 0)
    late = SH and i + opt.get("wtc", 2) >= SH
    if late:
        A(f"""
        s_cmpk_eq_u32 s47, 512
        s_cbranch_scc1 WT_S{tag}{i}
        """)
    A(f"""
    buffer_load_dword v{16+i}, v7, s[8:11], s46 offen
    s_add_u32 s46, s46, s47
    """)
    if late: A.label(f"WT_S{tag}{i}")


def tb_addr(A, tag, ju, nu):
    A(f"""
    s_lshr_b32 s5, s37, 2
    s_and_b32 s6, s37, 3
    s_cmp_ge_u32 s4, 6
    s_cbranch_scc1 TB_Q{tag}
    s_lshl_b32 s4, s4, 6
    """)
    for e in range(nu):
        A(f"""
        v_add_u32 v3, s4, v1
        v_add_u32 v3, {64*e}, v3
        v_mul_u32_u24 v{40+e}, 171, v3
        v_lshrrev_b32 v{40+e}, 10, v{40+e}
        v_mul_u32_u24 v{40+e}, {3072 - 768}, v{40+e}
        v_lshl_add_u32 v{40+e}, v3, 7, v{40+e}
        """)
    A(f"""
    s_mul_i32 s46, s5, {64*3072}
    s_mul_i32 s6, s6, 768
    s_add_u32 s46, s46, s6
    s_mov_b32 s47, 393216
    s_mov_b32 s8, s12
    s_mov_b32 s9, s13
    s_mov_b32 s10, {V_BYTES}
    s_branch TB_G{tag}
    """)
    A.label(f"TB_Q{tag}")
    A(f"""
    v_lshrrev_b32 v40, 2, v1
    v_mul_u32_u24 v40, 0x1800, v40
    v_and_b32 v3, 3, v1
    v_lshl_add_u32 v40, v3, 7, v40
    """)
    for e in range(1, nu):
        A(f"v_add_u32 v{40+e}, {e*16*6144}, v40")
    A(f"""
    s_mul_i32 s5, s37, 5
    s_add_u32 s4, s4, s5
    s_sub_u32 s4, s4, 6
    s_mul_i32 s46, s4, {16*6144}
    s_movk_i32 s47, 512
    s_mov_b32 s10, {QW_BYTES}
    """)
    A.label(f"TB_G{tag}")


def tb_burst(A, nu, nc, k0):
    for c in range(nc):
        for e in range(nu):
            A(f"buffer_load_dword v{k0 + c*nu + e}, v{40+e}, s[8:11], s46 offen")
        A("s_add_u32 s46, s46, s47")


def nsleep(A, n):
    while n > 0:
        A(f"s_sleep {min(n, 127)}"); n -= 127


def gen_prod(A, opt):
    SH = opt["sh"]
    NU = 40 * (12 - SH)
    assert all((u * 205) >> 13 == u // 40 for u in range(320))
    A.label("PROD")
    A(f"""
    s_cmp_lt_u32 s59, {NU}
    s_cselect_b32 s61, 1, 0
    s_cselect_b32 s59, s59, s58
    s_mov_b32 s10, {QW_BYTES}
    s_mov_b32 s18, {SC_BYTES}
    s_mov_b32 s19, 0x00020000
    s_mov_b32 s22, {SC_BYTES}
    s_mov_b32 s23, 0x00020000
    v_lshrrev_b32 v6, 5, v1
    v_and_b32 v7, 31, v1
    v_mul_u32_u24 v6, 0x1800, v6
    v_lshl_add_u32 v6, v7, 4, v6
    v_lshlrev_b32 v7, 3, v7
    """)

    def issue(k):
        u = f"s{58+k}"
        st, fl = f"s{50+2*k}", f"s{51+2*k}"
        A(f"""
        s_mul_i32 s4, {u}, 205
        s_lshr_b32 s4, s4, 13
        s_mul_i32 s5, s4, 40
        s_sub_u32 s5, {u}, s5
        s_add_u32 s4, s4, {SH}
        s_lshr_b32 s6, s5, 1
        s_mul_i32 s6, s6, 3072
        s_lshl_b32 s7, s4, 8
        s_add_u32 s6, s6, s7
        s_mul_i32 s42, s5, {16*6144}
        s_lshl_b32 s7, s4, 9
        s_add_u32 s42, s42, s7
        buffer_load_dwordx2 {vr(8+4*k,2)}, v7, s[16:19], s6 offen
        buffer_load_dwordx2 {vr(10+4*k,2)}, v7, s[20:23], s6 offen
        """)
        for i in range(8):
            A(f"buffer_load_dwordx4 {vr(16+32*k+4*i,4)}, v6, s[8:11], s42 offen")
            if i < 7: A("s_add_u32 s42, s42, 12288")
        A(f"""
        s_mul_i32 {st}, s5, 12
        s_add_u32 {st}, {st}, s4
        s_lshl_b32 {st}, {st}, 12
        s_add_u32 {st}, {st}, {SA}
        s_mul_i32 s6, s5, 171
        s_lshr_b32 s6, s6, 9
        s_mul_i32 s7, s6, 3
        s_sub_u32 s7, s5, s7
        s_mul_i32 {fl}, s6, 3072
        s_lshl_b32 s7, s7, 6
        s_add_u32 {fl}, {fl}, s7
        s_lshl_b32 s7, s4, 2
        s_add_u32 {fl}, {fl}, s7
        s_add_u32 {fl}, {fl}, {SFLG}
        """)

    def bars(n, tag):
        if not n: return
        A(f"""
        s_cmp_eq_u32 s60, 0
        s_cbranch_scc1 PROD_B{tag}
        """)
        for _ in range(n): A("s_barrier")
        A.label(f"PROD_B{tag}")

    def compute(k, younger):
        A(f"s_waitcnt vmcnt({younger + 8})")
        scale8(A, 80, 8 + 4 * k, 10 + 4 * k)
        for i in range(8):
            q = 16 + 32 * k + 4 * i
            o = 96 + 16 * k + 2 * i
            A(f"s_waitcnt vmcnt({younger + 7 - i + i // 2})")
            for j in range(4):
                A(f"v_fma_f32 v{88+j}, v{q+j}, v{80+j}, v{84+j}")
            A(f"""
            v_cvt_pk_bf16_f32 v{o}, v88, v89
            v_cvt_pk_bf16_f32 v{o+1}, v90, v91
            """)
            if i & 1:
                A(f"buffer_store_dwordx4 {vr(o-2,4)}, v5, s[24:27], s{50+2*k} offen offset:{1024*(i//2)} sc1")

    issue(0)
    A("""
    s_cmp_lg_u32 s60, 0
    s_cbranch_scc1 PROD_1
    s_waitcnt vmcnt(10)
    """)
    gate_set(A, opt)
    A.label("PROD_1")
    issue(1)
    A(f"""
    s_mov_b32 s46, 0xffff0000
    s_mov_b32 s47, {hex((127+QE) << 23)}
    s_mov_b32 s48, {hex(0x80000000 | ((127+QE-149) << 23))}
    v_lshlrev_b32 v3, 8, v1
    v_mov_b32 v4, 1
    """)
    PB0, PB1 = opt.get("pb0", 0), opt.get("pb1", 2)
    bars(PB0, "0")
    compute(0, 10)
    A("""
    s_cmp_eq_u32 s61, 0
    s_cbranch_scc1 PROD_2
    """)
    compute(1, 4)
    A.label("PROD_2")
    stamp(A, opt, 4)
    bars(PB1, "1")
    poll(A, "PROD_G", DBG, "0", "v2", "v8", 0)
    A(f"""
    s_mov_b64 exec, 0xfff
    buffer_store_dword v4, v3, s[24:27], s51 offen sc1
    buffer_store_dword v4, v3, s[24:27], s53 offen sc1
    s_mov_b64 exec, -1
    """)
    stamp(A, opt, 2)
    A("""
    s_cmp_eq_u32 s60, 0
    s_cbranch_scc1 IDLE_T
    """)
    for _ in range(10 - PB0 - PB1): A("s_barrier")
    A("s_branch P2_MMX")


def gate_set(A, opt):
    A(f"""
    s_barrier
    s_cmp_lg_u32 s36, 0
    s_cbranch_scc1 IDLE_G1
    s_lshl_b32 s4, s37, 2
    v_mov_b32 v3, 0
    v_mov_b32 v4, 1
    s_mov_b64 exec, 1
    buffer_store_dword v4, v3, {DBG}, s4 offen sc1
    s_mov_b64 exec, -1
    """)
    A.label("IDLE_G1")


def gen_xr(A, opt):
    sW, sLOC, sXCD = "s36", "s3", "s37"
    sMT, sNT = "s40", "s41"
    sC = "s48"
    SH = opt.get("sh", 0)
    A(f"""
    s_sub_u32 s4, {sLOC}, 21
    s_cmp_ge_u32 s4, 5
    s_cselect_b32 s5, 1, 0
    s_cselect_b32 s6, 5, 0
    s_sub_u32 {sNT}, s4, s6
    s_lshl_b32 s7, {sXCD}, 1
    s_add_u32 {sMT}, s7, s5
    s_cmp_ge_u32 {sLOC}, 31
    s_cbranch_scc1 IDLE_WG
    s_cmp_lt_u32 {sW}, 4
    s_cbranch_scc1 XR_MFMA
    s_cmp_lt_u32 {sW}, 6
    s_cbranch_scc1 XR_LD
    """)
    if opt.get("tpr"): A(f"s_setprio {opt['tpr']}")
    gate_addr(A, "v2")
    if SH:
        A(f"""
        s_sub_u32 s58, s2, 168
        s_add_u32 s59, s58, 80
        s_mov_b32 s60, 1
        s_cmp_eq_u32 {sW}, 6
        s_waitcnt lgkmcnt(0)
        s_cbranch_scc1 PROD
        """)
    A(f"""
    v_lshlrev_b32 v6, 7, v1
    s_mul_i32 s4, {sMT}, 5
    s_add_u32 s4, s4, {sNT}
    s_lshl_b32 s5, s4, 15
    s_lshl_b32 s6, s4, 14
    s_mov_b32 s30, {X_BYTES}
    s_mov_b32 s31, 0x00020000
    s_mov_b32 s34, {U_BYTES}
    s_mov_b32 s35, 0x00020000
    s_waitcnt lgkmcnt(0)
    """)
    if opt.get("tx", 1) == 2:
        A(f"""
        s_cmp_lg_u32 {sW}, 6
        s_cbranch_scc1 XR_TX
        """)
        nsleep(A, opt.get("txd", 0))
        for i in range(4):
            A(f"buffer_load_dword v{8+i}, v6, s[28:31], s5 offen")
            if i < 3: A("s_add_u32 s5, s5, 8192")
        for i in range(2):
            A(f"buffer_load_dword v{12+i}, v6, s[32:35], s6 offen")
            if i < 1: A("s_add_u32 s6, s6, 8192")
        A.label("XR_TX")
    elif opt.get("tx", 1):
        if not SH:
            A(f"""
            s_cmp_lg_u32 {sW}, 6
            s_cbranch_scc1 XR_TU
            """)
        for i in range(4):
            A(f"buffer_load_dword v{8+i}, v6, s[28:31], s5 offen")
            if i < 3: A("s_add_u32 s5, s5, 8192")
        if not SH:
            A("s_branch XR_TX")
            A.label("XR_TU")
        for i in range(2):
            A(f"buffer_load_dword v{12+i}, v6, s[32:35], s6 offen")
            if i < 1: A("s_add_u32 s6, s6, 8192")
        A.label("XR_TX")
    WT = opt.get("wt", 2)
    NT_ = 12 - opt.get("wtc", 2)
    if not SH:
        A(f"""
        s_cmp_lg_u32 {sW}, 7
        s_cbranch_scc1 XR_W6
        """)
    TB = opt.get("tb", 0)
    if TB:
        A(f"""
        s_sub_u32 s4, s3, 21
        s_and_b32 s48, s4, 1
        s_and_b32 s4, s4, 14
        """)
        tb_addr(A, "x", 0, 2)
        A(f"""
        s_lshl_b32 s4, s48, 1
        s_add_u32 s4, s4, {opt.get("wtc", 2)}
        s_mul_i32 s4, s4, s47
        s_add_u32 s46, s46, s4
        s_cmp_eq_u32 s48, 0
        s_cbranch_scc1 TB_X0
        """)
        nsleep(A, opt.get("ts1", 40))
        A.label("TB_X0")
        nsleep(A, opt.get("ts0", 0))
        tb_burst(A, 2, 2, 16)
        A(f"""
        s_add_u32 s46, s46, s47
        s_add_u32 s46, s46, s47
        s_cmp_eq_u32 s48, 0
        s_cselect_b32 s48, {opt.get("tb2", 1)}, {opt.get("tb3", 3)}
        s_sub_u32 s49, 10, s48
        """)
        A.label("TB_X1")
        A(f"""
        s_barrier
        s_sub_u32 s48, s48, 1
        s_cmp_lg_u32 s48, 0
        s_cbranch_scc1 TB_X1
        """)
        tb_burst(A, 2, 2, 20)
        A.label("TB_X2")
        A(f"""
        s_barrier
        s_sub_u32 s49, s49, 1
        s_cmp_lg_u32 s49, 0
        s_cbranch_scc1 TB_X2
        """)
    else:
        wt_setup(A, opt, "x")
        k = 0
        for b in range(10):
            for _ in range(WT if b == 0 else opt.get("wtn", 2)):
                if k < NT_:
                    wt(A, opt, k, "x"); k += 1
            A("s_barrier")
    A("s_branch P2_MMX")
    if not SH:
        A.label("XR_W6")
        for i in range(5): A("s_barrier")
        poll(A, "XR_G", DBG, "0", "v2", "v3", 0)
        for i in range(5): A("s_barrier")
        A("s_branch P2_MMX")
    A.label("IDLE_WG")
    gate_addr(A, "v2")
    A(f"""
    v_mov_b32 v6, 0
    v_mov_b32 v7, 0
    v_mov_b32 v8, 0
    v_mov_b32 v9, 0
    s_lshl_b32 s58, {sXCD}, 3
    s_add_u32 s58, s58, {sW}
    s_mul_i32 s4, s58, 3072
    s_add_u32 s4, s4, {FLG}
    s_waitcnt lgkmcnt(0)
    """)
    for i in range(3):
        A(f"buffer_store_dwordx4 v[6:9], v5, s[24:27], s4 offen offset:{1024*i} sc1")
    if SH:
        A(f"""
        s_add_u32 s59, s58, 224
        s_add_u32 s58, s58, 160
        s_min_u32 s58, s58, {40 * (12 - SH) - 1}
        s_mov_b32 s60, 0
        """)
        gen_prod(A, opt)
    else:
        A("s_waitcnt vmcnt(0)")
        gate_set(A, opt)
    A.label("IDLE_T")
    if opt.get("fw"):
        A(f"""
        s_cmp_ge_u32 {sW}, 6
        s_cbranch_scc1 IDLE_F2
        s_mul_i32 s4, {sXCD}, 6
        s_add_u32 s4, s4, {sW}
        s_mul_i32 s4, s4, 40960
        s_add_u32 s4, s4, {W2F}
        s_mov_b32 s5, 10
        v_mov_b32 v6, -1
        v_mov_b32 v7, -1
        v_mov_b32 v8, -1
        v_mov_b32 v9, -1
        """)
        nsleep(A, opt.get("fd", 0))
        A.label("IDLE_F1")
        for i in range(4):
            A(f"buffer_store_dwordx4 v[6:9], v5, s[24:27], s4 offen offset:{1024*i} sc1")
        nsleep(A, opt.get("fp", 0))
        A(f"""
        s_add_u32 s4, s4, 4096
        s_sub_u32 s5, s5, 1
        s_cmp_lg_u32 s5, 0
        s_cbranch_scc1 IDLE_F1
        """)
        stamp(A, opt, 3)
        A.label("IDLE_F2")
    if TB:
        A(f"""
        s_sub_u32 s4, {sW}, 2
        s_cmp_ge_u32 s4, 5
        s_cbranch_scc1 IDLE_T7
        s_lshl_b32 s4, s4, 1
        """)
        tb_addr(A, "i", 0, 2)
        A(f"""
        s_mul_i32 s4, s47, {8 + opt.get("wtc", 2)}
        s_add_u32 s46, s46, s4
        """)
        nsleep(A, opt.get("ts4", 100))
        tb_burst(A, 2, 4 - opt.get("wtc", 2), 16)
        A("s_branch IDLE_NT")
        A.label("IDLE_T7")
    A(f"""
    s_cmp_lg_u32 {sW}, 7
    s_cbranch_scc1 IDLE_NT
    """)
    wt_setup(A, opt, "i")
    for k in range(SH - opt.get("wtc", 2) if SH else NT_):
        wt(A, opt, k, "i")
        if k >= WT - 1 and k < NT_ - 1 and not SH: A(f"s_sleep {opt.get('isl', 12)}")
    A.label("IDLE_NT")
    if not SH:
        A(f"""
        s_cmp_lg_u32 {sW}, 0
        s_cbranch_scc1 IDLE_G_X
        """)
        poll(A, "IDLE_G", DBG, "0", "v2", "v3", 0, sleep=8)
    if opt.get("fw"): A("s_waitcnt vmcnt(0)")
    A("s_barrier")
    if opt.get("fw"):
        A(f"""
        s_cmp_lg_u32 {sW}, 1
        s_cbranch_scc1 IDLE_H
        s_lshl_b32 s4, {sXCD}, 2
        v_mov_b32 v3, 32
        v_mov_b32 v4, 1
        s_mov_b64 exec, 1
        buffer_store_dword v4, v3, {DBG}, s4 offen sc1
        s_mov_b64 exec, -1
        """)
        stamp(A, opt, 4)
        A.label("IDLE_H")
    A(f"""
    s_mov_b32 s60, 0
    s_cmp_lt_u32 {sW}, 4
    s_cbranch_scc1 P2_LD
    s_branch P2_MMI
    """)
    A.label("XR_LD")
    if opt.get("cst"): A("s_memtime s[88:89]")
    sOFS, sGRP, sCH = "s43", "s45", "s46"
    vO = 6
    A(f"""
    v_lshrrev_b32 v3, 4, v1
    s_cmp_eq_u32 {sW}, 4
    s_cbranch_scc0 XRL_U
    v_lshrrev_b32 v2, 3, v1
    v_and_b32 v4, 7, v1
    v_xor_b32 v4, v4, v3
    v_lshlrev_b32 v4, 4, v4
    v_mul_u32_u24 v{vO}, 0x500, v2
    v_add_u32 v{vO}, v{vO}, v4
    v_xor_b32 v4, 64, v{vO}
    v_add_u32 v{vO+1}, 9216, v4
    v_add_u32 v{vO+2}, {2*9216}, v{vO}
    v_add_u32 v{vO+3}, {3*9216}, v4
    s_mul_i32 {sOFS}, {sMT}, {128*1280}
    s_mov_b32 {sGRP}, {32*1280}
    s_mov_b32 {sCH}, {128 - 128*1280 + (1<<32)}
    s_movk_i32 s47, 128
    s_mov_b32 m0, 0
    s_mov_b32 s30, {X_BYTES}
    s_waitcnt lgkmcnt(0)
    s_branch XRL_GO
    """)
    A.label("XRL_U")
    A(f"""
    v_and_b32 v4, 15, v1
    v_lshlrev_b32 v2, 2, v3
    v_xor_b32 v4, v4, v2
    v_lshlrev_b32 v4, 4, v4
    v_mul_u32_u24 v{vO}, 0x500, v3
    v_add_u32 v{vO}, v{vO}, v4
    v_add_u32 v{vO+1}, {4*1280-1024}, v{vO}
    v_add_u32 v{vO+2}, {2*(4*1280-1024)}, v{vO}
    v_add_u32 v{vO+3}, {3*(4*1280-1024)}, v{vO}
    s_lshl_b32 {sOFS}, {sNT}, 8
    s_mov_b32 {sGRP}, {16*1280}
    s_mov_b32 {sCH}, 0
    s_mov_b32 s47, {64*1280}
    s_movk_i32 m0, 16384
    s_mov_b32 s30, {U_BYTES}
    s_waitcnt lgkmcnt(0)
    s_mov_b32 s28, s32
    s_mov_b32 s29, s33
    """)
    A.label("XRL_GO")
    A(f"""
    s_mov_b32 s31, 0x00020000
    s_mov_b32 {sC}, 0
    """)
    XRO = opt.get("xra", 0) or opt.get("xrb", 0)
    if XRO:
        A(f"""
        s_mul_i32 s49, {sNT}, {opt.get("xra", 0)}
        s_and_b32 s4, {sMT}, 1
        s_mul_i32 s4, s4, {opt.get("xrb", 0)}
        s_add_u32 s49, s49, s4
        s_mul_i32 s4, {sXCD}, {opt.get("xrc", 0)}
        s_add_u32 s49, s49, s4
        s_mul_i32 s4, s49, 205
        s_lshr_b32 s4, s4, 11
        s_mul_i32 s4, s4, 10
        s_sub_u32 s49, s49, s4
        s_mul_i32 s4, s49, s47
        s_add_u32 {sOFS}, {sOFS}, s4
        s_mul_i32 s47, s47, 10
        s_sub_u32 s49, 10, s49
        """)
    nsleep(A, opt.get("xd", 0))
    A.label("XRL_LOOP")
    for g in range(4):
        for j in range(4):
            A(f"buffer_load_dwordx4 v{vO+j}, s[28:31], {sOFS} offen offset:{1024*j} lds")
        A(f"""
        s_add_u32 m0, m0, 4096
        s_add_u32 {sOFS}, {sOFS}, {sGRP}
        """)
    A(f"""
    s_add_u32 {sOFS}, {sOFS}, {sCH}
    s_add_u32 m0, m0, 16384
    s_and_b32 m0, m0, {4*XSTAGE-1}
    s_add_u32 {sC}, {sC}, 1
    """)
    if XRO:
        A(f"""
        s_cmp_eq_u32 {sC}, s49
        s_cselect_b32 s4, s47, 0
        s_sub_u32 {sOFS}, {sOFS}, s4
        """)
    XT = opt.get("xt", 0)
    A(f"""
    s_and_b32 s4, {sC}, {15 if XT else 13}
    s_cmp_eq_u32 s4, 1
    s_cbranch_scc1 XRL_LOOP
    """)
    cst(A, opt, sC, 32)
    if XT:
        A("s_waitcnt vmcnt(16)")
    else:
        A(f"""
        s_cmp_eq_u32 {sC}, 2
        s_cbranch_scc0 XRL_W
        s_waitcnt vmcnt(16)
        """)
        A.label("XRL_W")
        A("s_waitcnt vmcnt(32)")
    cst(A, opt, sC, 16)
    A("s_barrier")
    cst(A, opt, sC, 0)
    A(f"""
    s_cmp_lt_u32 {sC}, 10
    s_cbranch_scc1 XRL_LOOP
    """)
    if not XT:
        A("s_waitcnt vmcnt(16)")
        cst(A, opt, 0, 27)
        A("s_barrier")
        cst(A, opt, 0, 11)
    A("s_waitcnt vmcnt(0)")
    cst(A, opt, 0, 28)
    A("s_barrier")
    cst(A, opt, 0, 12)
    cst_out(A, opt)
    A("s_branch P2_MMX")
    A.label("XR_MFMA")
    sCST = "s43"
    vXR = 6
    vUR = 10
    vT = 12
    vACC = 20
    vF = 84
    A(f"""
    s_lshr_b32 s4, {sW}, 1
    s_and_b32 s5, {sW}, 1
    s_lshl_b32 s6, s4, 13
    v_and_b32 v3, 31, v1
    v_bfe_u32 v4, v1, 1, 3
    v_lshrrev_b32 v{vT}, 5, v1
    v_xor_b32 v4, v4, v{vT}
    v_lshlrev_b32 v4, 4, v4
    v_lshl_add_u32 v4, v3, 7, v4
    v_add_u32 v{vXR}, s6, v4
    v_xor_b32 v{vXR+1}, 32, v{vXR}
    v_xor_b32 v{vXR+2}, 64, v{vXR}
    v_xor_b32 v{vXR+3}, 96, v{vXR}
    v_bfe_u32 v2, v1, 4, 1
    v_bfe_u32 v3, v1, 2, 2
    s_lshl_b32 s6, s5, 1
    v_xor_b32 v4, s6, v3
    v_lshlrev_b32 v4, 6, v4
    v_lshl_add_u32 v4, v3, 8, v4
    v_lshl_add_u32 v4, v{vT}, 11, v4
    v_lshl_add_u32 v4, v2, 5, v4
    v_and_b32 v3, 3, v1
    v_lshl_add_u32 v4, v3, 3, v4
    v_add_u32 v{vUR}, 16384, v4
    v_xor_b32 v{vUR+1}, 64, v{vUR}
    s_mov_b32 {sCST}, 0
    s_mov_b32 {sC}, 0
    s_lshl_b32 s6, {sMT}, 1
    s_add_u32 s6, s6, s4
    s_lshl_b32 s7, {sNT}, 1
    s_add_u32 s7, s7, s5
    s_mul_i32 s51, s4, 10
    s_add_u32 s51, s51, s7
    s_lshl_b32 s51, s51, {7 if MAP["lf"] else 2}
    s_mul_i32 s52, {sMT}, {20*128 if MAP["lf"] else 2048}
    s_add_u32 s51, s51, s52
    s_add_u32 s51, s51, {FLG + 672*128 if MAP["lf"] else XFLG}
    s_mov_b32 s53, 7
    s_mul_i32 s6, s6, 80
    s_lshl_b32 s7, s7, 2
    s_add_u32 s6, s6, s7
    s_lshl_b32 s50, s6, 10
    s_add_u32 s52, s50, 40960
    """)
    if MAP["ac"]:
        A(f"""
        s_lshl_b32 s51, {sMT}, 11
        s_add_u32 s51, s51, {FLG + 32768}
        """)
    for i in range(0, 64, 2):
        A(f"v_mov_b64 {vr(vACC+i,2)}, 0")
    for i in range(0, 64, 2):
        A(f"v_mov_b64 {vr(vF+64+i,2)}, 0")
    A("s_waitcnt lgkmcnt(0)")

    def reads(s, buf):
        f = vF + 64 * buf + 16 * s
        r = []
        for tn in range(2):
            r.append(f"ds_read_b128 {vr(f+8+4*tn,4)}, v{vT+s} offset:{4096*tn}")
            for u in range(2):
                r.append(f"ds_read_b64_tr_b16 {vr(f+4*tn+2*u,2)}, v{vT+4+tn} offset:{s*4096+u*1024}")
        return r

    def mfmas(s, buf):
        f = vF + 64 * buf + 16 * s
        r = []
        for tm in range(2):
            for tn in range(2):
                acc = vACC + 32 * tm + 16 * tn
                r.append(f"v_mfma_f32_32x32x16_bf16 {vr(acc,16)}, {vr(f+4*tn,4)}, {vr(f+8+4*tm,4)}, {vr(acc,16)}")
        return r

    A.label("XR_LOOP")
    for buf in range(2):
        for i in range(4):
            A(f"v_add_u32 v{vT+i}, {sCST}, v{vXR+i}")
        for i in range(2):
            A(f"v_add_u32 v{vT+4+i}, {sCST}, v{vUR+i}")
        A(f"""
        s_add_u32 {sCST}, {sCST}, {XSTAGE}
        s_and_b32 {sCST}, {sCST}, {4*XSTAGE-1}
        s_barrier
        """)
        rd = sum((reads(s_, buf) for s_ in range(4)), [])
        mf = sum((mfmas(s_, buf ^ 1) for s_ in range(4)), [])
        ri = 0
        for m in mf:
            A(m)
            for x in rd[ri:ri + 2]: A(x)
            ri += 2
        for x in rd[ri:]: A(x)
        A("s_waitcnt lgkmcnt(0)")
    A(f"""
    s_add_u32 {sC}, {sC}, 2
    s_cmp_lt_u32 {sC}, 10
    s_cbranch_scc1 XR_LOOP
    s_barrier
    """)
    for s_ in range(4):
        for m in mfmas(s_, 1): A(m)
    A("s_nop 15")
    stamp(A, opt, 3)
    for tm in range(2):
        for i in range(4):
            a = vACC + 32 * tm + 8 * i
            o = vF + 16 * tm + 4 * i
            for j in range(4):
                A(f"v_cvt_pk_bf16_f32 v{o+j}, v{a+2*j}, v{a+2*j+1}")
            A(f"buffer_store_dwordx4 {vr(o,4)}, v5, s[24:27], s{50+2*tm} offen offset:{1024*i} sc1")


VX = 96


def xload(A, opt, kb):
    A(f"buffer_load_dwordx4 {vr(VX+4*kb,4)}, v5, s[24:27], s20 offen offset:{1024 * (kb & 3)} sc1")
    if kb & 3 == 3 and kb < 39:
        A("s_add_u32 s20, s20, 4096")


def p2_rot(A, opt):
    lm = MAP["m"]
    A(f"""
    s_and_b32 s17, s3, {(1 << lm) - 1}
    s_mul_i32 s17, s17, 0
    s_lshr_b32 s16, s3, {lm}
    s_mul_i32 s16, s16, 0
    s_add_u32 s17, s17, s16
    s_mul_i32 s16, s17, 205
    s_lshr_b32 s16, s16, 11
    s_mul_i32 s16, s16, 10
    s_sub_u32 s17, s17, s16
    s_lshl_b32 s17, s17, 12
    """)


def gen_p2(A, opt):
    NA = opt.get("na", 2)
    OLD = opt.get("old", 0)
    order = [(n, kb) for kb in range(40) for n in range(NA)] + [(n, kb) for n in range(NA, 3) for kb in range(40)]
    groups = []
    for n, kb in order:
        if (n, kb // 4) not in groups: groups.append((n, kb // 4))
    CH = {1: [2, 2, 4, 4, 4, 4, 10], 2: [2, 2, 2, 2, 4, 4, 4, 5, 5], 3: [2, 4, 6, 8, 10], 4: [3, 3, 6, 6, 6, 6],
          5: [1, 1, 2, 2, 4, 10, 10]}[opt.get("ch", 1)]
    assert sum(CH) == 30
    st = [sum(CH[:i]) for i in range(len(CH) + 1)]
    A.label("P2_PUB")
    publish(A, opt, "s51", "s53")
    A.label("P2_LD")
    p2_tile(A)
    if OLD: p2_rot(A, opt)
    A(f"""
    s_mul_i32 s22, s39, 122880
    s_add_u32 s22, s22, {W2F}
    s_lshl_b32 s21, s36, 10
    s_add_u32 s22, s22, s21
    """)
    if OLD: A("""
    s_add_u32 s20, s22, s17
    s_add_u32 s19, s22, 40960
    """)
    A(f"""
    v_lshlrev_b32 v2, {7 if MAP["lf"] else 2}, v1
    v_mov_b32 v4, {LFLAG}
    s_cmp_lg_u32 s36, 0
    s_cbranch_scc1 P2_LW0
    """)
    if OLD: A("""
    s_sub_u32 s4, s44, s45
    s_sub_u32 s4, s4, 168
    """)
    EF = MAP["ef"]
    if MAP["ac"]:
        pass
    elif EF:
        A("""
        v_min_u32 v2, s43, v1
        v_lshlrev_b32 v2, 7, v2
        """)
    else:
        A("v_cmp_gt_u32 vcc, 42, v1")
        if OLD: A("v_add_u32 v3, s4, v2")
        A("""
        v_mov_b32 v3, 0
        v_cndmask_b32 v2, v3, v2, vcc
        """)
    if MAP["ac"]:
        spoll(A, "P2_W", "s45", 42, opt.get("wsl", 0))
    elif EF:
        poll(A, "P2_W", "s[24:27]", "s45", "v2", "v3", 0, sleep=opt.get("wsl", 16),
             st=(lambda: stamp(A, opt, 1)) if opt.get("pst") else None)
    elif opt.get("pp"):
        for i in range(opt["pp"]): A(f"v_mov_b32 v{8+i}, 0")
        ppoll(A, "P2_W", "s[24:27]", "s45", "v2", 8, opt["pp"], DC_W, opt.get("wsl", 4))
    else:
        poll(A, "P2_W", "s[24:27]", "s45", "v2", "v3", DC_W, sleep=opt.get("wsl", 16),
             st=(lambda: stamp(A, opt, 1)) if opt.get("pst") else None)

    def lds_wait(name, ofs, vd, va):
        A(f"s_branch {name}")
        A.label(name + "_S")
        A(f"s_sleep {opt.get('lsl', 1)}")
        A.label(name)
        A(f"""
        ds_read_b32 {vd}, {va} offset:{ofs}
        s_waitcnt lgkmcnt(0)
        """)
        poll_check(A, vd, 0, name + "_S")
    A(f"""
    v_mov_b32 v3, 1
    ds_write_b32 v4, v3 offset:4
    s_branch P2_GO
    """)
    A.label("P2_LW0")
    lds_wait("P2_LW", 4, "v3", "v4")
    A.label("P2_GO")
    stamp(A, opt, 5)
    AH = opt.get("ah", 3)

    def issue(c):
        for n, q in groups[st[c]:st[c + 1]]:
            off = (n * 40 + q * 4) * 1024
            A(f"""
            s_add_u32 s5, s22, {off}
            s_add_u32 m0, s21, {off}
            s_nop 0
            buffer_load_dwordx4 v5, s[24:27], s5 offen sc1 lds
            """)

    for c in range(min(AH, len(CH))): issue(c)
    if EF:
        A(f"""
        v_add_u32 v6, s21, v5
        v_add_u32 v7, 61440, v6
        s_mov_b32 s7, {POLL_MAX}
        """)
    for c in range(len(CH)):
        issued = min(len(CH), AH + c)
        A(f"s_waitcnt vmcnt({st[issued] - st[c+1]})")
        if EF:
            A.label(f"P2_V{c}")
            g = groups[st[c]:st[c + 1]]
            for i, (n, q) in enumerate(g):
                off = (n * 40 + q * 4) * 1024
                base, o = ("v6", off) if off < 61440 else ("v7", off - 61440)
                A(f"ds_read_b128 {vr(8+4*i,4)}, {base} offset:{o}")
            for i in range(len(g)):
                A(f"s_waitcnt lgkmcnt({len(g)-1-i})")
                r = 8 + 4 * i
                if i == 0:
                    A(f"v_max_u32 v3, v{r}, v{r+1}")
                else:
                    A(f"v_max3_u32 v3, v3, v{r}, v{r+1}")
                A(f"v_max3_u32 v3, v3, v{r+2}, v{r+3}")
            A(f"""
            v_cmp_eq_u32 vcc, -1, v3
            s_cbranch_vccnz P2_R{c}
            """)
            A.label(f"P2_K{c}")
        A("s_barrier")
        if AH + c < len(CH): issue(AH + c)
    stamp(A, opt, 6)
    if EF and opt.get("stamp"):
        A(f"""
        s_sub_u32 s7, {POLL_MAX}, s7
        s_cmp_eq_u32 s7, 0
        s_cbranch_scc1 K_EXIT
        v_mov_b32 v3, s7
        v_mov_b32 v2, 192
        s_mov_b64 exec, 1
        buffer_atomic_add v3, v2, {DBG}, 0 offen sc1
        s_mov_b64 exec, -1
        """)
    A("s_branch K_EXIT")
    if EF:
        for c in range(len(CH)):
            A.label(f"P2_R{c}")
            A(f"""
            s_cmp_eq_u32 s7, 0
            s_cbranch_scc1 P2_K{c}
            s_sub_u32 s7, s7, 1
            """)
            nsleep(A, opt.get("rsl", 0))
            issue(c)
            A(f"""
            s_waitcnt vmcnt(0)
            s_branch P2_V{c}
            """)

    vACC = 8
    vF = 56
    NF = 8
    vO = 88
    A.label("P2_MMX")
    A("s_barrier")
    A.label("P2_MMI")
    A.label("P2_MM")
    if not opt.get("sh"): stamp(A, opt, 2)
    XB = opt.get("xb", 0)
    if opt.get("nb") == 2:
        A(f"""
        v_mov_b32 v95, {LFLAG}
        ds_read_b32 v94, v95
        """)
    p2_tile(A)
    if OLD: p2_rot(A, opt)
    A(f"""
    s_lshl_b32 s4, s38, 2
    s_add_u32 s4, s4, s36
    s_sub_u32 s4, s4, 4
    """)
    if OLD:
        A("""
        s_mul_i32 s18, s4, 40960
        s_add_u32 s19, s18, 40960
        s_add_u32 s20, s18, s17
        """)
    else:
        A("s_mul_i32 s20, s4, 40960")
    A(f"""
    s_mul_i32 s4, s4, {32*3072}
    s_mul_i32 s5, s39, 192
    s_add_u32 s23, s4, s5
    s_add_u32 s22, s23, {16*3072}
    """)
    A("""
    v_bfe_u32 v2, v1, 2, 1
    v_bfe_u32 v4, v1, 3, 2
    v_and_b32 v3, 0x23, v1
    v_lshl_add_u32 v3, v2, 4, v3
    v_lshl_add_u32 v3, v4, 2, v3
    v_lshlrev_b32 v3, 4, v3
    v_and_b32 v6, 15, v1
    v_and_b32 v7, 48, v1
    v_mul_u32_u24 v6, 0xc00, v6
    v_add_u32 v6, v6, v7
    v_add_u32 v4, 61440, v3
    s_waitcnt vmcnt(0)
    """)
    A(f"""
    v_min_u32 v2, 19, v1
    v_lshlrev_b32 v2, {7 if MAP["lf"] else 2}, v2
    v_mov_b32 v8, {LFLAG}
    """)
    if opt.get("nb") == 2:
        A("""
        s_waitcnt lgkmcnt(0)
        v_readfirstlane_b32 s4, v94
        s_cmp_lg_u32 s4, 0
        s_cbranch_scc1 P2_XW_E
        """)
    A("""
    s_cmp_lg_u32 s36, 7
    s_cbranch_scc1 P2_XW
    """)

    def wait_stores(tag):
        A(f"""
        s_cmp_ge_u32 s3, 21
        s_cbranch_scc1 P2_WS{tag}_X
        """)
        A.label(f"P2_WS{tag}")
        A(f"""
        ds_read_b32 v7, v8 offset:12
        s_waitcnt lgkmcnt(0)
        v_readfirstlane_b32 s4, v7
        s_cmp_lt_u32 s4, 4
        s_cbranch_scc1 P2_WS{tag}
        """)
        A.label(f"P2_WS{tag}_X")
    if MAP["ac"]:
        spoll(A, "P2_X", "s44", 20, opt.get("xsl", 0))
    elif opt.get("px"):
        ppoll(A, "P2_X", "s[24:27]", "s44", "v2", 88, opt["px"], 0, opt.get("xsl", 4))
    else:
        poll(A, "P2_X", "s[24:27]", "s44", "v2", "v7", 0, sleep=opt.get("xsl", 16))
    if opt.get("xap"):
        A("""
        s_cmp_ge_u32 s3, 31
        s_cbranch_scc1 P2_XA_X
        """)
        A.label("P2_XA")
        A("""
        ds_read_b32 v7, v8 offset:8
        s_waitcnt lgkmcnt(0)
        v_readfirstlane_b32 s4, v7
        s_cmp_lt_u32 s4, 4
        s_cbranch_scc1 P2_XA
        """)
        A.label("P2_XA_X")
    A("""
    v_mov_b32 v7, 1
    ds_write_b32 v8, v7
    s_branch P2_XW_X
    """)
    A.label("P2_XW_S")
    A("s_sleep 2")
    A.label("P2_XW")
    A("""
    ds_read_b32 v7, v8
    s_waitcnt lgkmcnt(0)
    """)
    poll_check(A, "v7", 0, "P2_XW_S")
    A.label("P2_XW_X")
    if opt.get("xw"): wait_stores("a")
    A.label("P2_XW_E")
    stamp(A, opt, 1)
    XS = opt.get("xs", 40)
    XE = opt.get("xe", 2)
    xi = [XS]
    for kb in range(XS):
        if XB and kb == XB: wait_stores("b")
        xload(A, opt, kb)
    stamp(A, opt, 5, True)
    if opt.get("mpr"): A(f"s_setprio {opt['mpr']}")

    def epi(t, o=vO):
        a = vACC + 16 * t
        return [[f"v_cvt_pk_bf16_f32 v{o+j}, v{a+2*j}, v{a+2*j+1}" for j in range(4)],
                [f"v_cvt_pk_bf16_f32 v{o+j}, v{a+2*j}, v{a+2*j+1}" for j in range(4, 8)],
                ["s_nop 1"] + [f"v_permlane16_swap_b32 v{o+j}, v{o+4+j}" for j in range(4)],
                [f"buffer_store_dwordx4 {vr(o,4)}, v6, s[96:99], s23 offen offset:{64*t}",
                 f"buffer_store_dwordx4 {vr(o+4,4)}, v6, s[96:99], s22 offen offset:{64*t}"]]

    RA = opt.get("ra", 6)
    assert RA < NF
    seen = [0]

    def read(i):
        n, kb = order[i]
        g = groups.index((n, kb // 4))
        while st[seen[0]] <= g:
            A("s_barrier")
            seen[0] += 1
        off = (n * 40 + kb) * 1024
        base, o = ("v3", off) if off < 61440 else ("v4", off - 61440)
        A(f"ds_read_b128 {vr(vF+4*(i%NF),4)}, {base} offset:{o}")

    for i in range(RA): read(i)
    pending = []
    done = set()
    last = {n: max(i for i, x in enumerate(order) if x[0] == n) for n in range(3)}
    for i, (n, kb) in enumerate(order):
        if n == 0:
            assert xi[0] > kb
            A(f"s_waitcnt vmcnt({xi[0] - kb - 1})")
        A(f"s_waitcnt lgkmcnt({min(120, i + RA) - i - 1})")
        acc = vACC + 16 * n
        c = "0" if kb == 0 else vr(acc, 16)
        A(f"v_mfma_f32_32x32x16_bf16 {vr(acc,16)}, {vr(vF+4*(i%NF),4)}, {vr(VX+4*kb,4)}, {c}")
        if i == 0 and opt.get("stamp"):
            stamp(A, opt, 3)
            A("s_memtime s[80:81]\ns_nop 7\ns_nop 7\ns_waitcnt lgkmcnt(0)")
        if i == 0 and opt.get("probe") == 3:
            stamp(A, opt, 3)
            A("s_nop 7\ns_nop 7\ns_waitcnt lgkmcnt(0)")
        if i + RA < 120: read(i + RA)
        if i % XE == 0 and xi[0] < 40:
            xload(A, opt, xi[0]); xi[0] += 1
        for t in range(3):
            if i == last[t] + 3:
                pending += epi(t) + [[], [], [], []]
                done.add(t)
        if pending:
            for x in pending.pop(0): A(x)
    assert seen[0] == len(CH)
    A("s_nop 15")
    stamp(A, opt, 6)
    if opt.get("stamp"):
        A("s_memtime s[82:83]\ns_waitcnt lgkmcnt(0)\ns_sub_u32 s72, s82, s80")
        if opt.get("sh"): A("s_and_b32 s90, s90, 127\ns_lshl_b32 s90, s90, 24\ns_or_b32 s72, s72, s90")
    k = 0
    for t in range(3):
        if t in done: continue
        for x in sum(epi(t, vF + 8 * k), []): A(x)
        k += 1


def gen_p2d(A, opt):
    assert MAP["lf"] and not MAP["ef"]
    PS = 9216
    A.label("P2_PUB")
    A("s_mov_b32 s60, 1")
    A.label("P2_LD")
    p2_tile(A)
    A(f"""
    v_lshrrev_b32 v2, 4, v1
    v_min_u32 v2, 2, v2
    v_and_b32 v3, 15, v1
    v_min_u32 v3, 13, v3
    v_mad_u32_u24 v2, v2, 14, v3
    v_lshlrev_b32 v2, 7, v2
    s_lshl_b32 s46, 0x1111, s36
    s_and_b32 s46, s46, 0x3fff
    s_mul_i32 s22, s39, 122880
    s_add_u32 s22, s22, {W2F}
    s_mov_b32 s47, 0
    s_mov_b32 s7, {POLL_MAX}
    v_mov_b32 v4, {LFLAG}
    v_mov_b32 v6, 0
    v_mov_b32 v7, 1
    """)
    A.label("P2_POLL")
    A(f"""
    s_lshl_b32 s48, s46, 16
    s_or_b32 s48, s48, s46
    s_mov_b32 s49, s46
    s_mov_b64 exec, s[48:49]
    buffer_load_dword v3, v2, s[24:27], s45 offen sc1
    s_mov_b64 exec, 1
    v_mov_b32 v8, s47
    s_cmp_eq_u32 s60, 0
    s_waitcnt vmcnt(1)
    s_cbranch_scc1 P2_NP
    buffer_store_dword v7, v6, s[24:27], s51 offen sc1
    """)
    stamp(A, opt, 4)
    A("""
    s_mov_b32 s60, 0
    s_waitcnt vmcnt(1)
    s_branch P2_PR
    """)
    A.label("P2_NP")
    A("""
    ds_or_b32 v4, v8 offset:4
    s_mov_b32 s47, 0
    s_waitcnt vmcnt(0)
    """)
    A.label("P2_PR")
    A(f"""
    s_mov_b64 exec, s[48:49]
    v_cmp_ne_u32 vcc, 0, v3
    s_mov_b64 exec, -1
    s_lshr_b32 s4, vcc_lo, 16
    s_and_b32 s4, s4, vcc_lo
    s_and_b32 s4, s4, vcc_hi
    s_cbranch_scc1 P2_ISS
    s_sub_u32 s7, s7, 1
    s_cselect_b32 s4, s46, 0
    s_cbranch_scc1 P2_ISS
    s_sleep {opt.get("wsl", 8)}
    s_branch P2_POLL
    """)
    A.label("P2_ISS")
    if opt.get("stamp"):
        A("""
        s_waitcnt lgkmcnt(0)
        s_cmp_lg_u32 s74, 0
        s_cbranch_scc1 P2_IS0
        """)
        stamp(A, opt, 5)
        A.label("P2_IS0")
    A("s_andn2_b32 s46, s46, s4")
    A.label("P2_IS1")
    A(f"""
    s_ff1_i32_b32 s5, s4
    s_mul_i32 m0, s5, {PS}
    s_mul_i32 s6, s5, 3072
    s_add_u32 s6, s6, s22
    s_bitset0_b32 s4, s5
    """)
    for n in range(3):
        for j in range(3):
            A(f"buffer_load_dwordx4 v5, s[24:27], s6 offen offset:{1024*j} sc1 lds")
        if n < 2:
            A("""
            s_add_u32 m0, m0, 3072
            s_add_u32 s6, s6, 40960
            """)
    A(f"""
    s_cmp_eq_u32 s47, 0
    s_cbranch_scc1 P2_IS2
    v_mov_b32 v8, s47
    s_mov_b64 exec, 1
    s_waitcnt vmcnt(9)
    ds_or_b32 v4, v8 offset:4
    s_mov_b64 exec, -1
    """)
    A.label("P2_IS2")
    A(f"""
    s_lshl_b32 s47, 1, s5
    s_cmp_lg_u32 s4, 0
    s_cbranch_scc1 P2_IS1
    s_cmp_lg_u32 s46, 0
    s_cbranch_scc1 P2_POLL
    v_mov_b32 v8, s47
    s_mov_b64 exec, 1
    s_waitcnt vmcnt(0)
    ds_or_b32 v4, v8 offset:4
    s_mov_b64 exec, -1
    s_waitcnt lgkmcnt(0)
    """)
    stamp(A, opt, 6)
    A("s_branch K_EXIT")

    vACC = 8
    vF = 56
    vM, vA = 92, 93
    A.label("P2_MMX")
    A("s_barrier")
    A.label("P2_MMI")
    A("s_waitcnt vmcnt(0)")
    A.label("P2_MM")
    stamp(A, opt, 2)
    A(f"""
    v_mov_b32 v7, {LFLAG}
    ds_read_b32 v{vM}, v7
    """)
    p2_tile(A)
    A(f"""
    s_lshl_b32 s4, s38, 2
    s_add_u32 s4, s4, s36
    s_sub_u32 s4, s4, 4
    s_mul_i32 s20, s4, 40960
    s_mul_i32 s4, s4, {32*3072}
    s_mul_i32 s5, s39, 192
    s_add_u32 s23, s4, s5
    s_add_u32 s22, s23, {16*3072}
    s_add_u32 s21, s20, {39*1024}
    v_bfe_u32 v2, v1, 2, 1
    v_bfe_u32 v4, v1, 3, 2
    v_and_b32 v3, 0x23, v1
    v_lshl_add_u32 v3, v2, 4, v3
    v_lshl_add_u32 v3, v4, 2, v3
    v_lshlrev_b32 v3, 4, v3
    v_and_b32 v6, 15, v1
    v_and_b32 v4, 48, v1
    v_mul_u32_u24 v6, 0xc00, v6
    v_add_u32 v6, v6, v4
    v_min_u32 v2, 19, v1
    v_lshlrev_b32 v2, 7, v2
    s_waitcnt lgkmcnt(0)
    v_readfirstlane_b32 s4, v{vM}
    s_cmp_lg_u32 s4, 0
    s_cbranch_scc1 P2_XW_X
    s_cmp_lg_u32 s36, 7
    s_cbranch_scc1 P2_XW
    """)
    poll(A, "P2_X", "s[24:27]", "s44", "v2", f"v{vM}", 0, sleep=opt.get("xsl", 16))
    A(f"""
    v_mov_b32 v{vM}, 1
    ds_write_b32 v7, v{vM}
    s_branch P2_XW_X
    """)
    A.label("P2_XW")
    A(f"""
    s_sleep 2
    ds_read_b32 v{vM}, v7
    s_waitcnt lgkmcnt(0)
    """)
    poll_check(A, f"v{vM}", 0, "P2_XW")
    A.label("P2_XW_X")
    stamp(A, opt, 1)
    NU = opt.get("nu", 7)
    LAG = opt.get("lag", 3)
    P0 = opt.get("p0", 6)
    XPB = opt.get("xpb", 1)

    def xpiece(p):
        r = [[f"buffer_load_dwordx4 {vr(VX+12*p+4*j,4)}, v5, s[24:27], s20 offen offset:{1024*j} sc1"] for j in range(3)]
        if p < 12: r[2].append("s_add_u32 s20, s20, 3072")
        return r
    A(f"buffer_load_dwordx4 {vr(VX+156,4)}, v5, s[24:27], s21 offen sc1")
    for p_ in range(NU):
        for x in sum(xpiece(p_), []): A(x)
    stamp(A, opt, 5, True)
    issued = lambda t: min(13, NU + XPB * max(0, t))
    Pt = [min(12, max(t, min(P0 + 2 * t, issued(t - LAG) - 1))) for t in range(13)]
    assert all(Pt[t] < issued(t) for t in range(13))
    A(f"""
    s_getpc_b64 s[52:53]
    """)
    A.label("P2_PC")
    A(f"""
    s_add_u32 s48, s52, P2_B0-P2_PC
    s_addc_u32 s49, s53, 0
    s_movk_i32 s50, {(2 << Pt[0]) - 1}
    s_mov_b32 s46, 0
    v_add_u32 v{vA}, {13*PS}, v3
    s_branch P2_F1
    """)
    A.label("P2_F0")
    A("s_sleep 1")
    A.label("P2_F1")
    A(f"""
    ds_read_b32 v{vM}, v7 offset:4
    s_waitcnt lgkmcnt(0)
    v_readfirstlane_b32 s4, v{vM}
    s_bitcmp1_b32 s4, 13
    s_cbranch_scc0 P2_F0
    """)
    for n in range(3): A(f"ds_read_b128 {vr(vF+4*(6+n),4)}, v{vA} offset:{3072*n}")
    A(f"s_waitcnt vmcnt({3*NU})")
    for n in range(3):
        A(f"""
        s_waitcnt lgkmcnt({2-n})
        v_mfma_f32_32x32x16_bf16 {vr(vACC+16*n,16)}, {vr(vF+4*(6+n),4)}, {vr(VX+156,4)}, 0
        """)
    A("""
    s_set_gpr_idx_on s46, gpr_idx(SRC1)
    s_branch P2_COLD
    """)

    def mfma(i):
        acc = vACC + 16 * (i // 3)
        A(f"v_mfma_f32_32x32x16_bf16 {vr(acc,16)}, {vr(vF+4*i,4)}, {vr(VX+4*(i%3),4)}, {vr(acc,16)}")

    def read(i):
        A(f"ds_read_b128 {vr(vF+4*i,4)}, v{vA} offset:{1024*i}")

    A.label("P2_DRAIN")
    if opt.get("stamp"): A("s_add_u32 s90, s90, 1")
    for i in range(4, 9):
        if i > 4: A(f"s_waitcnt lgkmcnt({8-i})")
        mfma(i)
    A("s_branch P2_COLD")
    A.label("P2_COLD_S")
    A("s_sleep 1")
    A.label("P2_COLD")
    A(f"""
    ds_read_b32 v{vM}, v7 offset:4
    s_waitcnt lgkmcnt(0)
    v_readfirstlane_b32 s4, v{vM}
    s_andn2_b32 s4, s4, s46
    s_and_b32 s4, s4, s50
    s_cbranch_scc0 P2_COLD_S
    s_ff1_i32_b32 s5, s4
    s_mul_i32 s6, s5, {PS}
    v_add_u32_e64 v{vA}, v3, s6
    s_bitset1_b32 s46, s5
    s_mul_i32 s47, s5, 12
    """)
    for i in range(5): read(i)
    A(f"""
    ds_read_b32 v{vM}, v7 offset:4
    s_set_gpr_idx_idx s47
    s_setpc_b64 s[48:49]
    """)
    for t in range(13):
        A.label(f"P2_B{t}")
        if t == 0 and opt.get("stamp"):
            stamp(A, opt, 3)
            A("s_memtime s[80:81]\ns_waitcnt lgkmcnt(0)")
        xl = sum((xpiece(p_) for p_ in range(issued(t), issued(t + 1))), [])
        xl = [sum(xl[i::3], []) for i in range(3)] if XPB == 1 else [sum(xl[i*XPB:(i+1)*XPB], []) for i in range(3)]
        W = 3 * (issued(t) - Pt[t] - 1)
        last = t == 12
        for i in range(9):
            c = (5, 5, 5, 3, None, 4, 4, 4, 4)[i]
            if last and i > 4: c = 8 - i
            if i == 0: A(f"s_waitcnt vmcnt({W}) lgkmcnt({c})")
            elif c is not None: A(f"s_waitcnt lgkmcnt({c})")
            mfma(i)
            if i < 4: read(5 + i)
            if i < 3:
                for x in xl[i]: A(x)
            if last: continue
            if i == 1:
                A(f"""
                s_add_u32 s48, s52, P2_B{t+1}-P2_PC
                s_addc_u32 s49, s53, 0
                """)
            if i == 2 and Pt[t + 1] != Pt[t]: A(f"s_movk_i32 s50, {(2 << Pt[t+1]) - 1}")
            if i == 3:
                A(f"""
                v_readfirstlane_b32 s4, v{vM}
                s_andn2_b32 s4, s4, s46
                s_and_b32 s4, s4, s50
                s_cbranch_scc0 P2_DRAIN
                s_ff1_i32_b32 s5, s4
                """)
            if i == 4:
                A(f"""
                s_mul_i32 s6, s5, {PS}
                v_add_u32_e64 v{vA}, v3, s6
                """)
            if i >= 4: read(i - 4)
            if i == 5:
                A(f"""
                s_bitset1_b32 s46, s5
                s_mul_i32 s47, s5, 12
                """)
            if i == 8:
                A(f"""
                ds_read_b32 v{vM}, v7 offset:4
                s_set_gpr_idx_idx s47
                """)
    A("s_set_gpr_idx_off")

    def epi(t, o):
        a = vACC + 16 * t
        return ([f"v_cvt_pk_bf16_f32 v{o+j}, v{a+2*j}, v{a+2*j+1}" for j in range(8)] +
                ["s_nop 1"] + [f"v_permlane16_swap_b32 v{o+j}, v{o+4+j}" for j in range(4)] +
                [f"buffer_store_dwordx4 {vr(o,4)}, v6, s[96:99], s23 offen offset:{64*t}",
                 f"buffer_store_dwordx4 {vr(o+4,4)}, v6, s[96:99], s22 offen offset:{64*t}"])
    A("s_nop 0")
    for t in range(3):
        if t == 2:
            stamp(A, opt, 6)
            if opt.get("stamp"):
                A("s_memtime s[82:83]\ns_waitcnt lgkmcnt(0)\ns_sub_u32 s72, s82, s80")
                A("s_and_b32 s90, s90, 127\ns_lshl_b32 s90, s90, 24\ns_or_b32 s72, s72, s90")
        for x in epi(t, vF + 8 * t): A(x)


def descriptor(name, vgpr, accum, sgpr):
    return f""".amdhsa_kernel {name}
  .amdhsa_next_free_vgpr {vgpr}
  .amdhsa_next_free_sgpr {sgpr}
  .amdhsa_accum_offset {accum}
  .amdhsa_group_segment_fixed_size 0
  .amdhsa_kernarg_size 72
  .amdhsa_user_sgpr_count 2
  .amdhsa_user_sgpr_kernarg_segment_ptr 1
  .amdhsa_system_sgpr_workgroup_id_x 1
  .amdhsa_float_denorm_mode_32 3
.end_amdhsa_kernel
"""


def generate(opt):
    out = HEADER
    MAP["m"] = opt.get("map", 2)
    MAP["lf"] = opt.get("lf", 0)
    MAP["ef"] = opt.get("ef", 0)
    MAP["ac"] = opt.get("ac", 0)
    assert MAP["lf"] or not MAP["ef"]
    out += f"; @launch grid=(256,1,1) block=(512,1,1) lds={LDS1 + 1024}\n"
    out += '.amdgcn_target "amdgcn-amd-amdhsa--gfx950"\n.text\n'
    A = Asm()
    out += f".globl {KNAME}\n.p2align 8\n.type {KNAME},@function\n"
    gen_kernel(A, opt)
    out += A.text()
    out += "CODE_END:\n"
    out += '.section .rodata,"a"\n.p2align 6\n'
    out += descriptor(KNAME, 256, 256, 100)
    return out


if __name__ == "__main__":
    path = sys.argv[1] if len(sys.argv) > 1 else "standalone__weight_only_int_quip__prompt.s"
    opt = {}
    for a in sys.argv[2:]:
        k, _, v = a.partition("=")
        opt[k] = int(v) if v else 1
    open(path, "w").write(generate(opt))
    print("wrote", path)
```

```python
import sys

KNAME = "standalone__weight_only_int_quip__prompt_kernel"
HEADER = """; Kernarg layout for this problem (72 bytes, ptrs only, base s[0:1]):
;   offset   0: d_in[0] x  shape=(1, 2048, 640) dtype=bfloat16 strides=(2621440, 1280, 2) contiguous=True
;   offset  16: d_in[2] scales  shape=(20, 1536) dtype=bfloat16 strides=(3072, 2) contiguous=True
;   offset  24: d_in[3] zeros  shape=(20, 1536) dtype=bfloat16 strides=(3072, 2) contiguous=True
;   offset  32: d_in[4] U  shape=(640, 640) dtype=bfloat16 strides=(1280, 2) contiguous=True
;   offset  40: d_in[5] V  shape=(1536, 1536) dtype=bfloat16 strides=(3072, 2) contiguous=True
;   offset  48: d_out     shape=(1, 2048, 1536) dtype=bfloat16 (2 bytes/elem)
"""

XRF = 0
W2F = 64 * 40 * 1024
FLG = W2F + 48 * 40 * 1024
XFLG = FLG + 256 * 256
SFLG = XFLG + 256 * 128
FLG_END = FLG + 64 * 3 * 1024
SA = FLG_END
WS_USED = SA + 40 * 12 * 4096
assert SFLG + 168 * 256 <= FLG_END

X_BYTES = 2048 * 640 * 2
QW_BYTES = 640 * 1536 * 4
SC_BYTES = 20 * 1536 * 2
U_BYTES = 640 * 640 * 2
V_BYTES = 1536 * 1536 * 2
OUT_BYTES = 2048 * 1536 * 2

VSTAGE = 32768
ABASE = 3 * VSTAGE
ASTAGE = 12288
TBL = ABASE + 2 * ASTAGE
LDS1 = TBL + 24576
LFLAG = LDS1
QE = 112
XSTAGE = 32768
POLL_MAX = 40000


class Asm:
    def __init__(self):
        self.lines = []

    def __call__(self, s):
        for l in s.strip("\n").split("\n"):
            if not l.strip(): continue
            self.lines.append("    " + l.strip() if not l.strip().endswith(":") else l.strip())

    def label(self, s):
        self.lines.append(s + ":")

    def comment(self, s):
        self.lines.append("    ; " + s)

    def text(self):
        return "\n".join(self.lines) + "\n"


def vr(a, n):
    return f"v[{a}:{a+n-1}]"


STAMP_OFS = 32 << 20
NSTAMP = 8


def stamp(A, opt, i, wait=False):
    if opt.get("stamp") or ("probe" in opt and i in (0, opt["probe"])):
        A(f"s_memrealtime s[{64+2*i}:{65+2*i}]")
        if wait: A("s_waitcnt lgkmcnt(0)")


def stamp_begin(A, opt):
    if opt.get("stamp") or "probe" in opt:
        for i in range(1, NSTAMP):
            A(f"s_mov_b32 s{64+2*i}, 0")
        A("s_mov_b32 s90, 0")
    stamp(A, opt, 0)


def stamp_end(A, opt):
    if "probe" in opt:
        p = opt["probe"]
        wl, wh = opt.get("pwl", 0), opt.get("pwh", 7)
        gl, gh = opt.get("pgl", 0), opt.get("pgh", 255)
        A(f"""
        s_waitcnt vmcnt(0) lgkmcnt(0)
        s_memrealtime s[78:79]
        s_waitcnt lgkmcnt(0)
        s_cmp_gt_u32 s2, {gh}
        s_cbranch_scc1 PRB_X
        s_cmp_lt_u32 s2, {gl}
        s_cbranch_scc1 PRB_X
        s_cmp_lt_u32 s36, {wl}
        s_cbranch_scc1 PRB_X
        s_cmp_gt_u32 s36, {wh}
        s_cbranch_scc1 PRB_X
        s_cmp_eq_u32 s{64+2*p}, 0
        s_cbranch_scc1 PRB_X
        s_sub_u32 s4, s{64+2*p}, s64
        s_mul_i32 s4, s4, 3
        s_min_u32 s4, s4, 20000
        """)
        A.label("PRB")
        A("""
        s_memrealtime s[6:7]
        s_waitcnt lgkmcnt(0)
        s_sub_u32 s5, s6, s78
        s_cmp_lt_u32 s5, s4
        s_cbranch_scc1 PRB
        """)
        A.label("PRB_X")
    if opt.get("stamp"):
        A("s_waitcnt vmcnt(0) lgkmcnt(0)")
        stamp(A, opt, NSTAMP - 1)
        A(f"""
        s_load_dwordx2 s[56:57], s[0:1], 64
        s_waitcnt lgkmcnt(0)
        s_mov_b32 s58, 0x7fffffff
        s_mov_b32 s59, 0x00020000
        v_lshrrev_b32 v1, 6, v0
        v_lshlrev_b32 v1, 5, v1
        s_lshl_b32 s4, s2, 8
        s_add_u32 s4, s4, {STAMP_OFS}
        """)
        for i in range(NSTAMP):
            A(f"v_mov_b32 v{4+i}, s{64+2*i}")
        A("""
        buffer_store_dwordx4 v[4:7], v1, s[56:59], s4 offen
        buffer_store_dwordx4 v[8:11], v1, s[56:59], s4 offen offset:16
        """)
    A("s_endpgm")


def cst(A, opt, sidx, add):
    if not opt.get("cst"): return
    A(f"""
    s_memtime s[84:85]
    s_add_u32 s86, {sidx}, {add}
    v_cmp_eq_u32 vcc, s86, v1
    s_waitcnt lgkmcnt(0)
    v_mov_b32 v231, s84
    v_cndmask_b32 v230, v230, v231, vcc
    """)


def cst_out(A, opt):
    if not opt.get("cst"): return
    A(f"""
    v_writelane_b32 v230, s88, 48
    s_mov_b64 s[84:85], s[24:25]
    s_mov_b32 s86, 0x7fffffff
    s_mov_b32 s87, 0x00020000
    v_lshlrev_b32 v231, 2, v0
    s_lshl_b32 s4, s2, 11
    s_add_u32 s4, s4, {STAMP_OFS + (1 << 20)}
    buffer_store_dword v230, v231, s[84:87], s4 offen
    """)


def poll_check(A, vdst, dc, again):
    A(f"v_cmp_ne_u32 vcc, 0, {vdst}")
    if dc & 0xffffffff: A(f"s_or_b32 vcc_lo, vcc_lo, {hex(dc & 0xffffffff)}")
    if dc >> 32: A(f"s_or_b32 vcc_hi, vcc_hi, {hex(dc >> 32)}")
    A(f"""
    s_cmp_eq_u64 vcc, -1
    s_cbranch_scc0 {again}
    """)


def poll(A, name, srd, soff, vaddr, vdst, dc, scnt="s7", sleep=0, st=None):
    A(f"s_mov_b32 {scnt}, {POLL_MAX}")
    if sleep: A(f"s_branch {name}_1")
    A.label(name)
    if sleep:
        A(f"s_sleep {sleep}")
        A.label(name + "_1")
    A(f"""
    s_sub_u32 {scnt}, {scnt}, 1
    s_cbranch_scc1 {name}_X
    """)
    if st: st()
    A(f"""
    buffer_load_dword {vdst}, {vaddr}, {srd}, {soff} offen sc1
    s_waitcnt vmcnt(0)
    """)
    A.label(name + "_C")
    poll_check(A, vdst, dc, name)
    A.label(name + "_X")


def ppoll(A, name, srd, soff, vaddr, v0, n, dc, sleep, scnt="s7"):
    A(f"s_mov_b32 {scnt}, {POLL_MAX}")
    for i in range(n - 1):
        A(f"buffer_load_dword v{v0+i}, {vaddr}, {srd}, {soff} offen sc1")
        if sleep: A(f"s_sleep {sleep}")
    A.label(name)
    A(f"""
    s_sub_u32 {scnt}, {scnt}, 1
    s_cbranch_scc1 {name}_X
    """)
    for i in range(n):
        A(f"""
        buffer_load_dword v{v0+(i+n-1)%n}, {vaddr}, {srd}, {soff} offen sc1
        s_waitcnt vmcnt({n-1})
        v_cmp_ne_u32 vcc, 0, v{v0+i}
        """)
        if dc & 0xffffffff: A(f"s_or_b32 vcc_lo, vcc_lo, {hex(dc & 0xffffffff)}")
        if dc >> 32: A(f"s_or_b32 vcc_hi, vcc_hi, {hex(dc >> 32)}")
        A(f"""
        s_cmp_eq_u64 vcc, -1
        s_cbranch_scc1 {name}_X
        """)
        if sleep: A(f"s_sleep {sleep}")
    A(f"s_branch {name}")
    A.label(name + "_X")


DC_W = 0xFFFFFC0000000000
DBG = "s[92:95]"
MAP = {"m": 2}


def p2_tile(A):
    lm = MAP["m"]
    ln = 5 - lm
    xm = 4 - lm
    A(f"""
    s_and_b32 s38, s37, {(1 << xm) - 1}
    s_lshl_b32 s38, s38, {lm}
    s_and_b32 s39, s3, {(1 << lm) - 1}
    s_add_u32 s38, s38, s39
    s_lshr_b32 s39, s37, {xm}
    s_lshl_b32 s39, s39, {ln}
    s_lshr_b32 s4, s3, {lm}
    s_add_u32 s39, s39, s4
    """)
    if MAP["ac"]:
        A(f"""
        s_lshl_b32 s45, s38, 4
        s_add_u32 s45, s45, s39
        s_lshl_b32 s45, s45, 7
        s_add_u32 s44, s45, {FLG + 32768}
        s_add_u32 s45, s45, {FLG}
        """)
        return
    if MAP["ef"]:
        A(f"""
        s_mul_i32 s45, s39, 3
        s_add_u32 s43, s45, 2
        s_lshr_b32 s45, s45, 2
        s_lshr_b32 s43, s43, 2
        s_cmp_eq_u32 s43, s45
        s_cselect_b32 s43, 13, 27
        s_mul_i32 s45, s45, {14*128}
        s_add_u32 s45, s45, {FLG}
        s_mul_i32 s44, s38, {20*128}
        s_add_u32 s44, s44, {FLG + 672*128}
        """)
        return
    if MAP["lf"]:
        A(f"""
        s_mul_i32 s45, s39, {42*128}
        s_add_u32 s45, s45, {FLG}
        s_mul_i32 s44, s38, {20*128}
        s_add_u32 s44, s44, {FLG + 672*128}
        """)
        return
    A(f"""
    s_lshl_b32 s45, s38, 4
    s_add_u32 s45, s45, s39
    s_lshl_b32 s44, s45, 7
    s_add_u32 s44, s44, {XFLG}
    s_lshl_b32 s45, s45, 8
    s_add_u32 s45, s45, {FLG}
    """)


def spoll(A, name, soff, want, sleep, first=True):
    A(f"s_mov_b32 s7, {POLL_MAX}")
    if not first: A(f"s_branch {name}_C")
    elif sleep: A(f"s_branch {name}_1")
    A.label(name)
    if sleep:
        A(f"s_sleep {sleep}")
        A.label(name + "_1")
    A(f"""
    s_sub_u32 s7, s7, 1
    s_cbranch_scc1 {name}_X
    s_buffer_load_dword s61, s[24:27], {soff} glc
    """)
    A.label(name + "_C")
    A(f"""
    s_waitcnt lgkmcnt(0)
    s_cmp_lt_u32 s61, {want}
    s_cbranch_scc1 {name}
    """)
    A.label(name + "_X")


def publish(A, opt, sflag, sshift):
    if MAP["ac"]:
        A(f"""
        v_mov_b32 v2, 1
        v_lshlrev_b32 v3, {sshift}, v1
        s_waitcnt vmcnt(0)
        s_mov_b64 exec, 0xffff
        buffer_atomic_add v2, v3, s[24:27], {sflag} offen sc1
        s_mov_b64 exec, -1
        """)
        stamp(A, opt, 4)
        return
    A(f"""
    v_mov_b32 v2, 1
    v_lshlrev_b32 v3, {sshift}, v1
    s_waitcnt vmcnt(0)
    s_mov_b64 exec, {1 if MAP["lf"] else "0xffff"}
    buffer_store_dword v2, v3, s[24:27], {sflag} offen sc1
    """)
    if opt.get("xap"):
        A(f"""
        v_mov_b32 v3, {LFLAG}
        s_mov_b64 exec, 1
        ds_add_u32 v3, v2 offset:8
        """)
    A("s_mov_b64 exec, -1")
    stamp(A, opt, 4)


def gen_kernel(A, opt):
    A.label(KNAME)
    stamp_begin(A, opt)
    CP0 = opt.get("cp0", 0)

    def cp0():
        A("s_getpc_b64 s[4:5]")
        A.label("P1_PC")
        A("""
        v_lshlrev_b32 v3, 7, v0
        v_min_u32 v3, CODE_END-P1_PC-4, v3
        global_load_dword v250, v3, s[4:5]
        """)
    if CP0 == 1:
        A("""
        s_cmp_ge_u32 s2, 256
        s_cbranch_scc1 K_EXIT
        """)
        cp0()
    A("""
    s_load_dwordx2 s[8:9], s[0:1], 8
    s_load_dwordx2 s[12:13], s[0:1], 40
    s_load_dwordx2 s[16:17], s[0:1], 16
    s_load_dwordx2 s[20:21], s[0:1], 24
    s_load_dwordx2 s[28:29], s[0:1], 0
    s_load_dwordx2 s[32:33], s[0:1], 32
    s_load_dwordx2 s[24:25], s[0:1], 64
    s_load_dwordx2 s[92:93], s[0:1], 56
    s_load_dwordx2 s[96:97], s[0:1], 48
    """)
    if CP0 != 1:
        A("""
        s_cmp_ge_u32 s2, 256
        s_cbranch_scc1 K_EXIT
        """)
    if CP0 == 2: cp0()
    A("""
    v_and_b32 v1, 63, v0
    v_lshrrev_b32 v2, 6, v0
    """)
    if not CP0:
        A("s_getpc_b64 s[4:5]")
        A.label("P1_PC")
    else:
        A("s_lshr_b32 s3, s2, 3")
    A(f"""
    v_readfirstlane_b32 s36, v2
    """)
    CP = opt.get("cp", 0)
    if CP0:
        A(f"""
        s_and_b32 s37, s2, 7
        s_cmp_lg_u32 s36, 7
        s_cbranch_scc1 P1_NOPF
        """)
    elif CP:
        A(f"""
        s_lshr_b32 s3, s2, 3
        s_lshl_b32 s37, s3, 2
        v_min_u32 v3, {CP-1}, v1
        v_add_u32 v3, s37, v3
        v_and_b32 v3, 127, v3
        v_lshlrev_b32 v3, 7, v3
        v_min_u32 v3, CODE_END-P1_PC-4, v3
        s_and_b32 s37, s2, 7
        s_cmp_lg_u32 s36, {opt.get("cpw", 7)}
        s_cbranch_scc1 P1_NOPF
        global_load_dword v250, v3, s[4:5]
        """)
    else:
        A(f"""
        v_lshlrev_b32 v3, 7, v1
        v_add_u32 v4, 0x2000, v3
        v_min_u32 v4, CODE_END-P1_PC-4, v4
        s_lshr_b32 s3, s2, 3
        s_and_b32 s37, s2, 7
        s_cmp_lg_u32 s36, 7
        s_cbranch_scc1 P1_NOPF
        global_load_dword v250, v3, s[4:5]
        global_load_dword v251, v4, s[4:5]
        """)
    A(f"""
    v_mov_b32 v2, 0
    v_mov_b32 v3, 0
    v_mov_b32 v4, {LFLAG}
    ds_write_b64 v4, v[2:3]
    """)
    if opt.get("nb") or opt.get("xw"): A("ds_write_b64 v4, v[2:3] offset:8")
    A.label("P1_NOPF")
    A(f"""
    s_mov_b32 s11, 0x00020000
    s_mov_b32 s15, 0x00020000
    s_mov_b32 s27, 0x00020000
    s_mov_b32 s26, {WS_USED}
    s_movk_i32 s94, 256
    s_mov_b32 s95, 0x00020000
    s_mov_b32 s98, {OUT_BYTES}
    s_mov_b32 s99, 0x00020000
    v_lshlrev_b32 v5, 4, v1
    s_cmp_ge_u32 s3, 21
    s_cbranch_scc1 P1_XR
    """)
    gen_w2(A, opt)
    A.label("P1_XR")
    gen_xr(A, opt)
    (gen_p2d if opt.get("dy") else gen_p2)(A, opt)
    A.label("K_EXIT")
    stamp_end(A, opt)


def gate_addr(A, v, m=7):
    A(f"""
    v_and_b32 {v}, {m}, v1
    v_lshlrev_b32 {v}, 2, {v}
    """)


def gen_w2(A, opt):
    NQ = 2
    SH = opt.get("sh", 0)
    RING = 3 * VSTAGE
    RG = opt.get("rg", 2)
    sW, sLOC, sXCD = "s36", "s3", "s37"
    sMI, sNI = "s40", "s41"
    sC = "s49"
    sVOFS = "s43"
    vVO = 6
    if opt.get("cst"): A("s_memtime s[88:89]")
    A(f"""
    s_mul_i32 s4, {sLOC}, 171
    s_lshr_b32 s4, s4, 9
    s_mul_i32 s5, s4, 3
    s_sub_u32 s5, {sLOC}, s5
    s_lshr_b32 s6, {sXCD}, 2
    s_mul_i32 s6, s6, 7
    s_add_u32 {sMI}, s6, s4
    s_and_b32 s6, {sXCD}, 3
    s_mul_i32 s6, s6, 3
    s_add_u32 {sNI}, s6, s5
    s_mul_i32 s42, {sMI}, 3
    s_mov_b32 s57, s5
    """)
    RL = opt.get("rl", 0)
    if RL:
        A(f"""
        s_add_u32 s58, s4, s5
        s_mul_i32 s6, s58, 171
        s_lshr_b32 s6, s6, 9
        s_mul_i32 s6, s6, 3
        s_sub_u32 s58, s58, s6
        s_cmp_ge_u32 s4, 3
        s_cselect_b32 s6, 3, 2
        s_cmp_eq_u32 s58, 2
        s_cselect_b32 s58, s6, s58
        """)
    A(f"""
    s_sub_u32 s4, {sW}, 4
    s_cmp_lt_u32 s4, 3
    s_cbranch_scc1 W2_DEQ
    s_mov_b32 s14, {V_BYTES}
    v_lshrrev_b32 v2, 4, v1
    v_and_b32 v3, 15, v1
    v_lshlrev_b32 v4, 1, v2
    v_xor_b32 v3, v3, v4
    v_lshlrev_b32 v3, 4, v3
    v_mul_u32_u24 v4, 0xc00, v2
    v_add_u32 v{vVO}, v3, v4
    v_add_u32 v{vVO+1}, 11264, v{vVO}
    v_xor_b32 v3, 0x80, v{vVO}
    v_add_u32 v{vVO+2}, {2*11264}, v3
    v_add_u32 v{vVO+3}, {3*11264}, v3
    s_lshl_b32 {sVOFS}, {sNI}, 8
    s_cmp_lt_u32 {sW}, 4
    s_cbranch_scc1 W2_MFMA
    """)

    def v_group():
        for j in range(4):
            A(f"buffer_load_dwordx4 v{vVO+j}, s[12:15], {sVOFS} offen offset:{1024*j} lds")

    GPC = opt.get("gpc", 2 if SH else 4)
    for g in range(1, 8):
        for j in range(4):
            A(f"v_add_u32 v{vVO+4*g+j}, {g*16*3072}, v{vVO+j}")
    gate_addr(A, "v40", 15 if opt.get("fw") else 7)
    LP, LG = opt.get("lp", 0), opt.get("lg", 1)
    A(f"""
    s_mov_b32 m0, {VSTAGE}
    s_mov_b32 {sC}, 1
    """)
    if RL:
        A(f"""
        s_cmp_eq_u32 s58, 3
        s_cselect_b32 s59, {VSTAGE}, 0
        s_cselect_b32 s60, 393216, 0
        s_sub_u32 m0, m0, s59
        s_sub_u32 {sVOFS}, {sVOFS}, s60
        """)
    A("s_waitcnt lgkmcnt(0)")
    stamp(A, opt, 1)
    cst(A, opt, 0, 49)
    ST = 7 if RL else opt.get("st", 0)
    if ST & 1:
        cst(A, opt, 0, 50)
        A("s_barrier")
        cst(A, opt, 0, 51)
        A(f"s_setprio {opt.get('lpr', 3)}")
    A.label("W2L_LOOP")
    A(f"""
    s_add_u32 {sVOFS}, {sVOFS}, 393216
    s_cmp_lg_u32 {sC}, {GPC}
    s_cbranch_scc1 W2L_NG
    buffer_load_dword v42, v40, {DBG}, 0 offen sc1
    """)
    A.label("W2L_NG")
    for g in range(8):
        if g == 6: A("s_waitcnt vmcnt(54)")
        for j in range(4):
            A(f"buffer_load_dwordx4 v{vVO+4*g+j}, s[12:15], {sVOFS} offen offset:{1024*j} lds")
            if j == 3: A("s_add_u32 m0, m0, 4096")
            if j == 3 and g < 7: A("s_nop 0")
            if opt.get("lpa") and (4*g+j+1) % opt.get("lpg", 1) == 0:
                n_ = opt["lpa"]
                while n_ > 0:
                    A(f"s_nop {min(n_, 16) - 1}"); n_ -= 16
    A(f"""
    s_cmp_ge_u32 m0, {RING}
    s_cselect_b32 m0, 0, m0
    """)
    if RL:
        A(f"""
        s_cmp_eq_u32 s59, 0
        s_cbranch_scc1 W2L_R
        s_add_u32 m0, m0, s59
        s_add_u32 {sVOFS}, {sVOFS}, s60
        s_mov_b32 s59, 0
        s_waitcnt vmcnt(0)
        """)
        A.label("W2L_R")
    if not ST & 1:
        A(f"""
        s_cmp_lg_u32 {sC}, 1
        s_cbranch_scc1 W2L_NT
        """)
        cst(A, opt, 0, 50)
        A("s_barrier")
        cst(A, opt, 0, 51)
        A(f"s_setprio {opt.get('lpr', 3)}")
        A.label("W2L_NT")
    cst(A, opt, sC, 31)
    A(f"""
    s_waitcnt vmcnt(32)
    s_cmp_lg_u32 {sC}, {GPC}
    s_cbranch_scc1 W2L_G_X
    """)
    poll_check(A, "v42", 0, "W2L_GS")
    A.label("W2L_G_X")
    cst(A, opt, sC, 15)
    A("s_barrier")
    cst(A, opt, sC, -1)
    A(f"""
    s_add_u32 {sC}, {sC}, 1
    s_cmp_lt_u32 {sC}, {12 - (1 if LP else 0)}
    s_cbranch_scc1 W2L_LOOP
    """)
    if LP:
        A(f"s_add_u32 {sVOFS}, {sVOFS}, 393216")
        for g in range(8):
            if g == 6: A("s_waitcnt vmcnt(54)")
            for j in range(4):
                A(f"buffer_load_dwordx4 v{vVO+4*g+j}, s[12:15], {sVOFS} offen offset:{1024*j} lds")
                if j == 3: A("s_add_u32 m0, m0, 4096")
                if (4 * g + j + 1) % LG == 0 and 4 * g + j < 31:
                    n = LP
                    while n > 0:
                        A(f"s_nop {min(n, 16) - 1}"); n -= 16
                elif j == 3 and g < 7: A("s_nop 0")
        cst(A, opt, sC, 31)
        A("s_waitcnt vmcnt(32)")
        cst(A, opt, sC, 15)
        A("s_barrier")
        cst(A, opt, sC, -1)
    EF = MAP["ef"]

    def early_flag():
        nsleep(A, opt.get("pd", 0))
        A(f"""
        s_mov_b64 exec, 1
        buffer_store_dword v41, v40, s[24:27], s51 offen sc1
        s_mov_b64 exec, -1
        """)
        stamp(A, opt, 4)
    if EF:
        A(f"""
        s_mul_i32 s51, {sNI}, 14
        s_add_u32 s51, s51, {sMI}
        s_lshl_b32 s51, s51, 7
        s_add_u32 s51, s51, {FLG}
        v_mov_b32 v41, 1
        """)
        if EF == 10: early_flag()
        A(f"""
        s_waitcnt vmcnt({1 if EF == 10 else 0})
        s_barrier
        """)
        if EF == 11: early_flag()
        A("s_barrier")
        if EF == 12: early_flag()
        A("s_setprio 0")
    elif opt.get("nb"):
        A("s_setprio 0")
        if opt["nb"] == 2 and MAP["ac"]:
            p2_tile(A)
            nsleep(A, opt.get("xpd", 0))
            A(f"""
            s_buffer_load_dword s61, s[24:27], s44 glc
            v_mov_b32 v4, {LFLAG}
            v_mov_b32 v3, 1
            s_waitcnt vmcnt(0) lgkmcnt(0)
            s_cmp_lt_u32 s61, 20
            s_cbranch_scc1 W2L_NX
            ds_write_b32 v4, v3
            s_waitcnt lgkmcnt(0)
            """)
            A.label("W2L_NX")
        elif opt["nb"] == 2:
            p2_tile(A)
            A(f"""
            v_min_u32 v2, 19, v1
            v_lshlrev_b32 v2, 7, v2
            buffer_load_dword v3, v2, s[24:27], s44 offen sc1
            v_mov_b32 v4, {LFLAG}
            s_waitcnt vmcnt(0)
            """)
            poll_check(A, "v3", 0, "W2L_NX")
            A("""
            ds_write_b32 v4, v3
            s_waitcnt lgkmcnt(0)
            """)
            A.label("W2L_NX")
        A("""
        s_waitcnt vmcnt(0)
        s_barrier
        """)
    else:
        A(f"""
        s_setprio 0
        s_waitcnt vmcnt(0)
        s_barrier
        s_barrier
        """)
    cst_out(A, opt)
    A("s_branch P2_MM")
    A.label("W2L_GS")
    A(f"s_mov_b32 s7, {POLL_MAX}")
    A.label("W2L_G")
    A(f"""
    s_sub_u32 s7, s7, 1
    s_cbranch_scc1 W2L_G_X
    buffer_load_dword v42, v40, {DBG}, 0 offen sc1
    s_waitcnt vmcnt(0)
    """)
    poll_check(A, "v42", 0, "W2L_G")
    A("s_branch W2L_G_X")
    A.label("W2_DEQ")
    sB = "s38"
    sQOFS = "s43"
    vQO = 6
    vAW = 14
    vTB = 22
    U_ = 24
    Ft = 40
    O = 48
    vQ = 52
    QS = 32
    vAP = 116
    vP = 124
    vPL, vPA = 156, 157
    sCS, sPK, sQF = "s39", "s45", "s46"
    A(f"""
    s_mov_b32 {sB}, s4
    s_add_u32 s4, s42, {sB}
    s_cmp_ge_u32 s4, 40
    s_cbranch_scc1 W2D_IDLE
    s_mul_i32 {sQOFS}, s4, {16*6144}
    """)
    if SH:
        A(f"""
        s_mul_i32 {sPK}, s4, {12*4096}
        s_add_u32 {sPK}, {sPK}, {SA + 2*4096}
        """)
    A(f"""
    s_lshr_b32 s6, s4, 1
    s_lshr_b32 s5, s42, 1
    s_sub_u32 s6, s6, s5
    s_mul_i32 s6, s6, 6144
    s_add_u32 s6, s6, {TBL}
    s_mov_b32 s10, {QW_BYTES}
    v_lshrrev_b32 v2, 5, v1
    v_and_b32 v3, 31, v1
    v_lshlrev_b32 v4, 4, v3
    v_mul_u32_u24 v{vQO}, 0x1800, v2
    v_add_u32 v{vQO}, v{vQO}, v4
    v_add_u32 v{vTB}, s6, v4
    """)
    QR = opt.get("qr", 3)
    A(f"s_mul_i32 s57, s57, {QR}")
    for i in range(7, -1, -1):
        A(f"""
        s_add_u32 s4, s57, {i}
        s_and_b32 s4, s4, 7
        s_mul_i32 s4, s4, 12288
        v_add_u32 v{vQO+i}, s4, v{vQO}
        """)
    A("s_waitcnt lgkmcnt(0)")
    stamp(A, opt, 1)
    cst(A, opt, 0, 49)

    def t_read(n):
        u = U_ + 8 * (n & 1)
        A(f"""
        ds_read_b128 {vr(u,4)}, v{vTB}
        ds_read_b128 {vr(u+4,4)}, v{vTB} offset:12288
        v_add_u32 v{vTB}, 512, v{vTB}
        """)

    if RL:
        A("""
        s_cmp_lg_u32 s58, 1
        s_cbranch_scc1 W2D_R0
        """)
        for i in range(8):
            A(f"buffer_load_dwordx4 {vr(vQ+QS+4*i,4)}, v{vQO+i}, s[8:11], {sQOFS} offen offset:512")
        A.label("W2D_R0")
    for u in range(1 if ST & 2 else NQ):
        for i in range(8):
            A(f"buffer_load_dwordx4 {vr(vQ+QS*u+4*i,4)}, v{vQO+i}, s[8:11], {sQOFS} offen offset:{512*u}")
    A(f"""
    s_add_u32 {sQOFS}, {sQOFS}, 512
    s_lshl_b32 s4, {sB}, 12
    s_add_u32 s4, s4, {ABASE}
    v_bfe_u32 v3, v1, 1, 4
    v_xor_b32 v4, v3, v2
    v_lshlrev_b32 v4, 4, v4
    v_lshl_add_u32 v4, v2, 8, v4
    v_and_b32 v3, 1, v1
    v_lshl_add_u32 v4, v3, 3, v4
    v_add_u32 v{vAW}, s4, v4
    """)
    if SH:
        for i in range(8):
            A(f"""
            v_xor_b32 v3, {32*i}, v{vAW}
            v_add_u32 v{vAP+i}, {512*i}, v3
            """)
        A(f"""
        s_mul_i32 {sQF}, {sMI}, 12
        s_add_u32 {sQF}, {sQF}, {sNI}
        s_lshl_b32 {sQF}, {sQF}, 2
        s_add_u32 {sQF}, {sQF}, {sB}
        s_lshl_b32 {sQF}, {sQF}, 6
        s_add_u32 {sQF}, {sQF}, {SFLG}
        s_movk_i32 {sCS}, 100
        v_max_u32 v{vPA}, {SH}, v1
        v_min_u32 v{vPA}, 11, v{vPA}
        v_lshlrev_b32 v{vPA}, 2, v{vPA}
        v_mov_b32 v{vPL}, 0
        """)
    for i in range(7, -1, -1):
        A(f"""
        s_add_u32 s4, s57, {i}
        s_and_b32 s4, s4, 7
        s_lshl_b32 s5, s4, 5
        s_lshl_b32 s4, s4, 9
        v_xor_b32 v3, s5, v{vAW}
        v_add_u32 v{vAW+i}, s4, v3
        """)
    A(f"s_mov_b32 {sC}, 0")
    cst(A, opt, 0, 50)
    if opt.get("cst") and not ST & 2:
        A("s_waitcnt vmcnt(8)")
        cst(A, opt, 0, 52)
    A("s_barrier")
    cst(A, opt, 0, 51)
    A(f"s_setprio {opt.get('dpr', 3)}")
    t_read(0)
    if ST & 2:
        if RL:
            A("""
            s_cmp_lg_u32 s58, 1
            s_cbranch_scc1 W2D_R1
            s_waitcnt vmcnt(0)
            s_branch W2D_R2
            """)
            A.label("W2D_R1")
        for i in range(8):
            A(f"buffer_load_dwordx4 {vr(vQ+QS+4*i,4)}, v{vQO+i}, s[8:11], {sQOFS} offen")
        if RL: A.label("W2D_R2")
        if opt.get("cst"):
            cst(A, opt, 0, 53)
            A("s_waitcnt vmcnt(8)")
            cst(A, opt, 0, 52)
    A("s_waitcnt lgkmcnt(0)")
    UN = 2

    def sload(n, sofs):
        for j in range(4):
            A(f"buffer_load_dwordx4 {vr(vP+16*n+4*j,4)}, v5, s[24:27], {sofs} offen offset:{1024*j} sc1")

    A.label("W2D_LOOP")
    for n in range(UN):
        u = n % NQ
        q = vQ + QS * u
        S = U_ + 8 * (n & 1)
        if SH:
            A(f"""
            s_add_u32 s5, {sC}, {n}
            s_lshl_b32 s47, s5, 12
            s_add_u32 s47, s47, {sPK}
            s_cmp_ge_u32 s5, {sCS}
            s_cbranch_scc1 W2D_PK{n}
            """)
        t_read(n + 1)
        A(f"s_add_u32 {sQOFS}, {sQOFS}, 512")
        if SH:
            A(f"""
            s_add_u32 s6, s5, 1
            s_min_u32 s7, {sCS}, 12
            s_cmp_lt_u32 s6, s7
            s_waitcnt vmcnt(8)
            s_cbranch_scc1 W2D_NT{n}
            s_cmp_lt_u32 s6, 12
            s_waitcnt vmcnt(4)
            s_cbranch_scc1 W2D_NT{n}
            s_waitcnt vmcnt(0)
            """)
            A.label(f"W2D_NT{n}")
            A(f"""
            s_add_u32 s6, s5, 2
            s_cmp_lt_u32 {sCS}, 100
            s_cbranch_scc1 W2D_E{n}
            v_cmp_ne_u32 vcc, 0, v{vPL}
            s_max_u32 s7, s6, {SH}
            s_cmp_eq_u64 vcc, -1
            s_cselect_b32 {sCS}, s7, {sCS}
            s_cbranch_scc1 W2D_E{n}
            s_cmp_lt_u32 s5, {max(GPC, opt.get("sp0", 0))}
            s_cbranch_scc1 W2D_E{n}
            buffer_load_dword v{vPL}, v{vPA}, s[24:27], {sQF} offen sc1
            """)
            A.label(f"W2D_E{n}")
            A(f"""
            s_cmp_gt_u32 s6, 11
            s_cbranch_scc1 W2D_F{n}
            s_cmp_lt_u32 s6, {sCS}
            s_cbranch_scc1 W2D_F{n}
            """)
            sload(n, "s47")
            A.label(f"W2D_F{n}")
            A(f"""
            s_min_u32 s7, {sCS}, 12
            s_cmp_lt_u32 s6, s7
            """)
        else:
            A(f"""
            s_cmp_lt_u32 {sC}, {12-NQ-n+1}
            s_waitcnt vmcnt({8*(NQ-1)})
            s_cbranch_scc1 W2D_NT{n}
            s_waitcnt vmcnt({8*min(NQ-1, max(0, UN-1-n))})
            """)
            A.label(f"W2D_NT{n}")
            A(f"s_cmp_lt_u32 {sC}, {opt.get('noq', 12)-NQ-n}")
        for i in range(8):
            qq = q + 4 * i
            f = Ft + 4 * (i & 1)
            o = O + 2 * (i & 1)
            WL = opt.get("wl", 0)
            if WL: o = 160 + 2 * i
            if opt.get("bf") == 2:
                for j in range(4): A(f"v_bfe_u32 v{f+j}, v{qq+j}, 0, 3")
                for j in range(4): A(f"v_fma_f32 v{f+j}, v{f+j}, v{S+j}, v{S+4+j}")
                A(f"""
                v_cvt_pk_bf16_f32 v{o}, v{f}, v{f+1}
                v_cvt_pk_bf16_f32 v{o+1}, v{f+2}, v{f+3}
                """)
            elif opt.get("bf"):
                for j in range(4): A(f"v_bfe_u32 v{f+j}, v{qq+j}, 0, 3")
                A(f"""
                v_pk_fma_f32 {vr(f,2)}, {vr(f,2)}, {vr(S,2)}, {vr(S+4,2)}
                v_pk_fma_f32 {vr(f+2,2)}, {vr(f+2,2)}, {vr(S+2,2)}, {vr(S+6,2)}
                v_cvt_pk_bf16_f32 v{o}, v{f}, v{f+1}
                v_cvt_pk_bf16_f32 v{o+1}, v{f+2}, v{f+3}
                """)
            else:
              A(f"""
            v_fma_f32 v{f}, v{qq}, v{S}, v{S+4}
            v_fma_f32 v{f+1}, v{qq+1}, v{S+1}, v{S+5}
            v_fma_f32 v{f+2}, v{qq+2}, v{S+2}, v{S+6}
            v_fma_f32 v{f+3}, v{qq+3}, v{S+3}, v{S+7}
            v_cvt_pk_bf16_f32 v{o}, v{f}, v{f+1}
            v_cvt_pk_bf16_f32 v{o+1}, v{f+2}, v{f+3}
            """)
            if i + 1 == WL:
                for ii in range(WL): A(f"ds_write_b64 v{vAW+ii}, {vr(160+2*ii,2)} offset:{ASTAGE*(n&1)}")
            elif i + 1 > WL:
                A(f"ds_write_b64 v{vAW+i}, {vr(o,2)} offset:{ASTAGE*(n&1)}")
            if (i + 1) % RG == 0:
                A(f"s_cbranch_scc0 W2D_SK{n}_{i}")
                for ii in range(i + 1 - RG, i + 1):
                    A(f"buffer_load_dwordx4 {vr(q+4*ii,4)}, v{vQO+ii}, s[8:11], {sQOFS} offen")
                A.label(f"W2D_SK{n}_{i}")
        A("s_waitcnt lgkmcnt(0)")
        if SH: A.label(f"W2D_J{n}")
        cst(A, opt, sC, 16 + n)
        A("s_barrier")
        cst(A, opt, sC, n)
    A(f"""
    s_add_u32 {sC}, {sC}, {UN}
    s_cmp_lt_u32 {sC}, 12
    s_cbranch_scc1 W2D_LOOP
    """)
    A("s_setprio 0")
    if SH and opt.get("stamp"): A(f"s_mov_b32 s90, {sCS}")
    if not opt.get("nb"): A("s_barrier")
    cst_out(A, opt)
    A("s_branch P2_MM")
    if SH:
        for n in range(UN):
            A.label(f"W2D_PK{n}")
            A(f"""
            s_cmp_lt_u32 s5, 11
            s_waitcnt vmcnt(4)
            s_cbranch_scc1 W2D_PW{n}
            s_waitcnt vmcnt(0)
            """)
            A.label(f"W2D_PW{n}")
            for i in range(8):
                A(f"ds_write_b64 v{vAP+i}, {vr(vP+16*n+2*i,2)} offset:{ASTAGE*(n&1)}")
            A(f"""
            s_cmp_gt_u32 s5, 9
            s_waitcnt lgkmcnt(0)
            s_cbranch_scc1 W2D_J{n}
            """)
            sload(n, "s47")
            A(f"s_branch W2D_J{n}")
    A.label("W2D_IDLE")
    A(f"""
    s_mov_b32 {sC}, 0
    s_waitcnt lgkmcnt(0)
    """)
    A.label("W2D_IDL")
    A(f"""
    s_barrier
    s_add_u32 {sC}, {sC}, 1
    s_cmp_lt_u32 {sC}, {13 if opt.get("nb") else 14}
    s_cbranch_scc1 W2D_IDL
    s_branch P2_MM
    """)
    A.label("W2_MFMA")
    sCST = "s45"
    vAR = 10
    vBR = 14
    vT0, vT1 = 16, 17
    vST = 18
    vACC = 20
    vF = 44
    P = vF
    if ST & 8:
        A(f"""
        s_lshr_b32 s5, {sMI}, 1
        s_add_u32 s5, s5, {sW}
        s_and_b32 s5, s5, 3
        """)
    A(f"""
    s_lshl_b32 s4, {"s5" if ST & 8 else sW}, 13
    s_mov_b32 m0, s4
    s_mul_i32 s4, {"s5" if ST & 8 else sW}, {32*3072}
    s_add_u32 {sVOFS}, {sVOFS}, s4
    s_lshr_b32 s6, s42, 1
    s_mul_i32 s6, s6, 3072
    s_mov_b32 s18, {SC_BYTES}
    s_mov_b32 s19, 0x00020000
    s_mov_b32 s22, {SC_BYTES}
    s_mov_b32 s23, 0x00020000
    v_and_b32 v2, 0xff, v0
    v_lshlrev_b32 v19, 3, v2
    """)
    if ST & 4:
        A(f"""
        s_lshr_b32 s4, {sW}, 1
        s_lshl_b32 s4, s4, 11
        v_add_u32 v19, s4, v19
        s_mov_b32 s56, s6
        v_mov_b32 v{vT0}, v19
        """)
        if RL:
            A(f"""
            s_cmp_eq_u32 s58, 3
            s_cselect_b32 s4, {VSTAGE}, 0
            s_cselect_b32 s5, 393216, 0
            s_add_u32 m0, m0, s4
            s_add_u32 {sVOFS}, {sVOFS}, s5
            """)
        else:
            A(f"""
            s_add_u32 s58, s57, {sMI}
            s_and_b32 s58, s58, {1 if ST & 16 else 0}
            """)
    A("s_waitcnt lgkmcnt(0)")
    stamp(A, opt, 1)
    cst(A, opt, 0, 49)

    def v0_loads():
        v_group()
        A(f"""
        s_add_u32 m0, m0, 4096
        s_add_u32 {sVOFS}, {sVOFS}, {16*3072}
        """)
        v_group()
        if not RL: s12_loads()

    def s12_loads():
        for j in range(1, 3):
            A(f"""
            buffer_load_dwordx2 {vr(P+4*j,2)}, v{vT0}, s[16:19], s56 offen offset:{1024*j}
            buffer_load_dwordx2 {vr(P+4*j+2,2)}, v{vT0}, s[20:23], s56 offen offset:{1024*j}
            """)
    if ST & 4:
        A(f"""
        buffer_load_dwordx2 {vr(P,2)}, v19, s[16:19], s6 offen
        buffer_load_dwordx2 {vr(P+2,2)}, v19, s[20:23], s6 offen
        {"s_cmp_lt_u32 s58, 2" if RL else "s_cmp_lg_u32 s58, 0"}
        s_cbranch_scc1 W2M_VA
        """)
        v0_loads()
        A.label("W2M_VA")
        if RL: s12_loads()
    else:
        for j in range(2):
            A(f"""
            buffer_load_dwordx2 {vr(P+4*j,2)}, v19, s[16:19], s6 offen offset:{2048*j}
            buffer_load_dwordx2 {vr(P+4*j+2,2)}, v19, s[20:23], s6 offen offset:{2048*j}
            """)
        A(f"""
        s_add_u32 s6, s6, 4096
        buffer_load_dwordx2 {vr(P+8,2)}, v19, s[16:19], s6 offen
        buffer_load_dwordx2 {vr(P+10,2)}, v19, s[20:23], s6 offen
        """)
        v_group()
        A(f"""
        s_add_u32 m0, m0, 4096
        s_add_u32 {sVOFS}, {sVOFS}, {16*3072}
        """)
        v_group()
    A(f"""
    v_lshlrev_b32 v19, 1, v19
    v_add_u32 v19, {TBL}, v19
    v_and_b32 v2, 15, v1
    v_lshrrev_b32 v3, 4, v1
    v_xor_b32 v4, v2, v3
    v_lshlrev_b32 v4, 4, v4
    v_lshl_add_u32 v4, v2, 8, v4
    v_add_u32 v{vAR}, {ABASE}, v4
    v_xor_b32 v{vAR+1}, 64, v{vAR}
    v_xor_b32 v{vAR+2}, 128, v{vAR}
    v_xor_b32 v{vAR+3}, 192, v{vAR}
    v_bfe_u32 v2, v1, 2, 2
    v_and_b32 v4, 1, v3
    v_lshl_or_b32 v4, v4, 2, v2
    s_lshl_b32 s5, {sW}, 1
    v_xor_b32 v4, s5, v4
    v_lshlrev_b32 v4, 5, v4
    v_lshl_add_u32 v2, v3, 3, v2
    v_lshl_add_u32 v4, v2, 8, v4
    v_and_b32 v2, 3, v1
    v_lshl_add_u32 v{vBR}, v2, 3, v4
    v_xor_b32 v{vBR+1}, 32, v{vBR}
    s_mov_b32 {sCST}, 0
    s_mov_b32 {sC}, 0
    s_lshl_b32 s4, {sNI}, 2
    s_add_u32 s4, s4, {sW}
    s_mul_i32 s5, s4, 40
    s_add_u32 s5, s5, s42
    s_lshl_b32 s5, s5, 10
    s_add_u32 s50, s5, {W2F}
    s_mul_i32 s5, s4, 171
    s_lshr_b32 s5, s5, 9
    s_mul_i32 s6, s5, 3
    s_sub_u32 s6, s4, s6
    s_mul_i32 s6, s6, 14
    s_add_u32 s6, s6, {sMI}
    s_lshl_b32 s6, s6, 2
    s_lshl_b32 s5, s5, 8
    s_add_u32 s5, s5, s6
    s_add_u32 s51, s5, {FLG}
    """)
    if MAP["ac"]:
        A(f"""
        s_mul_i32 s51, s4, 171
        s_lshr_b32 s51, s51, 9
        s_lshl_b32 s51, s51, 7
        s_add_u32 s51, s51, {FLG}
        """)
    elif MAP["lf"]:
        A(f"""
        s_mul_i32 s51, s4, 14
        s_add_u32 s51, s51, {sMI}
        s_lshl_b32 s51, s51, 7
        s_add_u32 s51, s51, {FLG}
        """)
    A(f"""
    s_mov_b32 s53, {11 if MAP["ac"] else 12}
    s_mov_b32 s54, {hex((127+149-QE) << 23)}
    s_mov_b32 s55, {hex((127+149-QE) << 23)}
    s_mov_b32 s46, 0xffff0000
    s_mov_b32 s47, {hex((127+QE) << 23)}
    s_mov_b32 s48, {hex(0x80000000 | ((127+QE-149) << 23))}
    v_bfe_u32 v3, v1, 4, 1
    v_lshrrev_b32 v4, 5, v1
    v_and_b32 v{vST}, 15, v1
    v_lshl_add_u32 v{vST}, v3, 5, v{vST}
    v_lshl_add_u32 v{vST}, v4, 4, v{vST}
    v_lshlrev_b32 v{vST}, 4, v{vST}
    """)
    FC = opt.get("fc", 4)
    if FC > 50: FC = -1
    if opt.get("fw"): EF = 0
    if EF and FC < 0:
        assert not (ST & 4) and not RL
        for i in range(4): A(f"v_mov_b32 v{204+i}, -1")
        A(f"""
        s_cmp_eq_u32 {sMI}, 13
        s_cselect_b32 s4, 0, 1024
        s_add_u32 s5, s50, s4
        s_add_u32 s4, s5, s4
        buffer_store_dwordx4 v[204:207], v5, s[24:27], s50 offen sc1
        buffer_store_dwordx4 v[204:207], v5, s[24:27], s5 offen sc1
        buffer_store_dwordx4 v[204:207], v5, s[24:27], s4 offen sc1
        """)
    for i in range(0, 24, 2):
        A(f"v_mov_b64 {vr(vACC+i,2)}, 0")
    for i in range(0, 80, 2):
        A(f"v_mov_b64 {vr(vF+80+i,2)}, 0")
    if RL:
        A(f"""
        s_cmp_ge_u32 s58, 2
        s_cbranch_scc1 W2M_VB
        s_waitcnt vmcnt(0)
        """)
        A.label("W2M_VB")
    elif ST & 4:
        A(f"""
        s_cmp_eq_u32 s58, 0
        s_cbranch_scc1 W2M_VB
        """)
        nsleep(A, opt.get("vd", 0))
        v0_loads()
        A.label("W2M_VB")
    for j in range(3):
        q = P + 4 * j
        u = P + 16 + 8 * j
        if RL and j == 1:
            A(f"""
            s_cmp_ge_u32 s58, 2
            s_cbranch_scc1 W2M_VC
            s_setprio 3
            """)
            v0_loads()
            A("s_setprio 0")
            A("s_branch W2M_VD")
            A.label("W2M_VC")
            A("s_waitcnt vmcnt(0)")
            A.label("W2M_VD")
        if RL:
            if j == 0: A("s_waitcnt vmcnt(12)")
        elif ST & 4:
            A(f"s_waitcnt vmcnt({(12, 2, 0)[j]})")
            if j == 1: cst(A, opt, 0, 52)
        else:
            A(f"s_waitcnt vmcnt({8 + 4 - 2*j + (3 if EF and FC < 0 else 0)})")
        if j == 0: cst(A, opt, 0, 53)
        scale8(A, u, q, q + 2)
        TS = 2048 if ST & 4 else 4096
        A(f"""
        ds_write_b128 v19, {vr(u,4)} offset:{TS*j}
        ds_write_b128 v19, {vr(u+4,4)} offset:{TS*j+12288}
        """)
        if j == (0 if ST & 4 else 2):
            A("s_waitcnt lgkmcnt(0)")
            cst(A, opt, 0, 50)
            A("s_barrier")
            cst(A, opt, 0, 51)
    if RL:
        A("s_waitcnt vmcnt(0) lgkmcnt(0)")
        cst(A, opt, 0, 52)
    elif ST & 4:
        A("s_waitcnt lgkmcnt(0)")
    else:
        A(f"s_waitcnt vmcnt({3 if EF and FC < 0 else 0})")
        cst(A, opt, 0, 52)

    def reads(s, buf):
        fa = vF + buf * 80 + 20 * s
        fb = fa + 12
        r = []
        for b in range(3):
            r.append(f"ds_read_b128 {vr(fa+4*b,4)}, v{vAR+s} offset:{4096*b + ASTAGE*buf}")
        for t in range(2):
            for u in range(2):
                r.append(f"ds_read_b64_tr_b16 {vr(fb+4*t+2*u,2)}, v{vT0+t} offset:{(32*s+4*u)*256}")
        return r

    def mfmas(s, buf):
        fa = vF + buf * 80 + 20 * s
        fb = fa + 12
        r = []
        for b in range(3):
            for t in range(2):
                acc = vACC + (b * 2 + t) * 4
                r.append(f"v_mfma_f32_16x16x32_bf16 {vr(acc,4)}, {vr(fa+4*b,4)}, {vr(fb+4*t,4)}, {vr(acc,4)}")
        return r

    if EF and FC >= 0:
        for i in range(4): A(f"v_mov_b32 v{204+i}, -1")
    A.label("W2M_LOOP")
    if EF and FC >= 0:
        A(f"""
        s_waitcnt vmcnt(0)
        s_cmp_lg_u32 {sC}, {opt.get("fc", 4)}
        s_cbranch_scc1 W2M_NF
        buffer_store_dwordx4 v[204:207], v5, s[24:27], s50 offen sc1
        s_cmp_eq_u32 {sMI}, 13
        s_cbranch_scc1 W2M_NF
        buffer_store_dwordx4 v[204:207], v5, s[24:27], s50 offen offset:1024 sc1
        buffer_store_dwordx4 v[204:207], v5, s[24:27], s50 offen offset:2048 sc1
        """)
        A.label("W2M_NF")
        assert opt.get("fc", 4) in (0, 2, 4, 6, 8)
    for buf in range(2):
        A(f"""
        v_add_u32 v{vT0}, {sCST}, v{vBR}
        v_add_u32 v{vT1}, {sCST}, v{vBR+1}
        s_add_u32 {sCST}, {sCST}, {VSTAGE}
        s_cmp_ge_u32 {sCST}, {RING}
        s_cselect_b32 {sCST}, 0, {sCST}
        """)
        cst(A, opt, sC, 16 + buf)
        A("s_barrier")
        cst(A, opt, sC, buf)
        rd = sum((reads(s, buf) for s in range(4)), [])
        mf = sum((mfmas(s, buf ^ 1) for s in range(4)), [])
        FR = opt.get("fr", 4)
        RP = opt.get("rp", 1)
        seq = rd[:FR]
        ri = FR
        for m in mf:
            seq.append(m)
            seq += rd[ri:ri + RP]
            ri += RP
        seq += rd[ri:]
        for x in seq: A(x)
        A("s_waitcnt lgkmcnt(0)")
        if (opt.get("stamp") or opt.get("probe") == 2) and buf == 0:
            A(f"""
            s_cmp_lg_u32 {sC}, 0
            s_cbranch_scc1 W2M_ST
            """)
            stamp(A, opt, 2, True)
            A.label("W2M_ST")
    if EF and FC < 0: A("s_waitcnt vmcnt(0)")
    A(f"""
    s_add_u32 {sC}, {sC}, 2
    s_cmp_lt_u32 {sC}, 12
    s_cbranch_scc1 W2M_LOOP
    s_setprio 3
    """)
    if opt.get("nb"):
        A(f"""
        v_mov_b32 v2, 1
        v_mov_b32 v4, {LFLAG}
        s_mov_b64 exec, 1
        ds_add_u32 v4, v2 offset:8
        s_mov_b64 exec, -1
        """)
    else:
        A("s_barrier")
    for s_ in range(4):
        for m in mfmas(s_, 1): A(m)
    if opt.get("nb"): A("ds_read_b32 v3, v4 offset:8")
    A("s_nop 7")
    stamp(A, opt, 3)
    for b in range(3):
        a = vACC + 8 * b
        o = vF + 4 * b
        for j in range(4):
            A(f"v_pk_mul_f32 {vr(a+2*j,2)}, {vr(a+2*j,2)}, s[54:55]")
        A(f"""
        v_cvt_pk_bf16_f32 v{o}, v{a}, v{a+1}
        v_cvt_pk_bf16_f32 v{o+1}, v{a+2}, v{a+3}
        v_cvt_pk_bf16_f32 v{o+2}, v{a+4}, v{a+5}
        v_cvt_pk_bf16_f32 v{o+3}, v{a+6}, v{a+7}
        s_nop 1
        v_permlane32_swap_b32 v{o}, v{o+2}
        v_permlane32_swap_b32 v{o+1}, v{o+3}
        buffer_store_dwordx4 {vr(o,4)}, v{vST}, s[24:27], s50 offen offset:{1024*b} sc1
        """)
        if b == 0:
            A(f"""
            s_cmp_eq_u32 {sMI}, 13
            s_cbranch_scc1 W2M_END
            """)
    A.label("W2M_END")
    if opt.get("xw") or opt.get("xb"):
        A(f"""
        v_mov_b32 v2, 1
        v_mov_b32 v4, {LFLAG}
        s_mov_b64 exec, 1
        ds_add_u32 v4, v2 offset:12
        s_mov_b64 exec, -1
        """)
    EF = MAP["ef"]
    cst_out(A, opt)
    if EF: stamp(A, opt, 4)
    if opt.get("nb"):
        A.label("W2M_RC")
        A("""
        s_waitcnt lgkmcnt(0)
        v_readfirstlane_b32 s4, v3
        s_cmp_eq_u32 s4, 4
        s_cbranch_scc1 P2_PUB
        ds_read_b32 v3, v4 offset:8
        s_branch W2M_RC
        """)
        return
    A("s_branch P2_LD" if EF else "s_branch P2_PUB")


def scale8(A, u, s, z):
    A(f"""
    v_lshlrev_b32 v{u}, 16, v{s}
    v_and_b32 v{u+1}, s46, v{s}
    v_lshlrev_b32 v{u+2}, 16, v{s+1}
    v_and_b32 v{u+3}, s46, v{s+1}
    v_lshlrev_b32 v{u+4}, 16, v{z}
    v_and_b32 v{u+5}, s46, v{z}
    v_lshlrev_b32 v{u+6}, 16, v{z+1}
    v_and_b32 v{u+7}, s46, v{z+1}
    """)
    for i in range(4): A(f"v_mul_f32 v{u+4+i}, s48, v{u+4+i}")
    for i in range(4): A(f"v_mul_f32 v{u+4+i}, v{u+i}, v{u+4+i}")
    for i in range(4): A(f"v_mul_f32 v{u+i}, s47, v{u+i}")


def wt_setup(A, opt, tag):
    TC = opt.get("wtc", 2)
    if opt.get("wm", 0):
        assert all((u * 171) >> 10 == u // 6 for u in range(384))
        A(f"""
        s_sub_u32 s4, s3, 21
        s_lshr_b32 s5, s37, 2
        s_and_b32 s6, s37, 3
        s_cmp_ge_u32 s4, 6
        s_cbranch_scc1 WT_Q{tag}
        s_lshl_b32 s4, s4, 6
        v_add_u32 v3, s4, v1
        v_mul_u32_u24 v7, 171, v3
        v_lshrrev_b32 v7, 10, v7
        v_mul_u32_u24 v7, {3072 - 768}, v7
        v_lshl_add_u32 v7, v3, 7, v7
        s_mul_i32 s46, s5, {64*3072}
        s_mul_i32 s6, s6, 768
        s_add_u32 s46, s46, s6
        s_add_u32 s46, s46, {TC*393216}
        s_mov_b32 s47, 393216
        s_mov_b32 s8, s12
        s_mov_b32 s9, s13
        s_mov_b32 s10, {V_BYTES}
        s_branch WT_G{tag}
        """)
        A.label(f"WT_Q{tag}")
        A(f"""
        v_lshrrev_b32 v7, 2, v1
        v_mul_u32_u24 v7, 0x1800, v7
        v_and_b32 v3, 3, v1
        v_lshl_add_u32 v7, v3, 7, v7
        s_mul_i32 s5, s37, 5
        s_add_u32 s4, s4, s5
        s_sub_u32 s4, s4, 6
        s_mul_i32 s46, s4, {16*6144}
        s_add_u32 s46, s46, {TC*512}
        s_movk_i32 s47, 512
        s_mov_b32 s10, {QW_BYTES}
        """)
        A.label(f"WT_G{tag}")
        return
    A(f"""
    s_sub_u32 s4, s2, 168
    s_cmp_ge_u32 s4, 48
    s_cbranch_scc1 WT_Q{tag}
    v_lshlrev_b32 v7, 7, v1
    s_lshl_b32 s46, s4, 13
    s_add_u32 s46, s46, {TC*393216}
    s_mov_b32 s47, 393216
    s_mov_b32 s8, s12
    s_mov_b32 s9, s13
    s_mov_b32 s10, {V_BYTES}
    s_branch WT_G{tag}
    """)
    A.label(f"WT_Q{tag}")
    A(f"""
    v_lshrrev_b32 v7, 2, v1
    v_mul_u32_u24 v7, 0x1800, v7
    v_and_b32 v3, 3, v1
    v_lshl_add_u32 v7, v3, 7, v7
    s_sub_u32 s4, s4, 48
    s_mul_i32 s46, s4, {16*6144}
    s_add_u32 s46, s46, {TC*512}
    s_movk_i32 s47, 512
    s_mov_b32 s10, {QW_BYTES}
    """)
    A.label(f"WT_G{tag}")


def wt(A, opt, i, tag):
    SH = opt.get("sh", 0)
    late = SH and i + opt.get("wtc", 2) >= SH
    if late:
        A(f"""
        s_cmpk_eq_u32 s47, 512
        s_cbranch_scc1 WT_S{tag}{i}
        """)
    A(f"""
    buffer_load_dword v{16+i}, v7, s[8:11], s46 offen
    s_add_u32 s46, s46, s47
    """)
    if late: A.label(f"WT_S{tag}{i}")


def tb_addr(A, tag, ju, nu):
    A(f"""
    s_lshr_b32 s5, s37, 2
    s_and_b32 s6, s37, 3
    s_cmp_ge_u32 s4, 6
    s_cbranch_scc1 TB_Q{tag}
    s_lshl_b32 s4, s4, 6
    """)
    for e in range(nu):
        A(f"""
        v_add_u32 v3, s4, v1
        v_add_u32 v3, {64*e}, v3
        v_mul_u32_u24 v{40+e}, 171, v3
        v_lshrrev_b32 v{40+e}, 10, v{40+e}
        v_mul_u32_u24 v{40+e}, {3072 - 768}, v{40+e}
        v_lshl_add_u32 v{40+e}, v3, 7, v{40+e}
        """)
    A(f"""
    s_mul_i32 s46, s5, {64*3072}
    s_mul_i32 s6, s6, 768
    s_add_u32 s46, s46, s6
    s_mov_b32 s47, 393216
    s_mov_b32 s8, s12
    s_mov_b32 s9, s13
    s_mov_b32 s10, {V_BYTES}
    s_branch TB_G{tag}
    """)
    A.label(f"TB_Q{tag}")
    A(f"""
    v_lshrrev_b32 v40, 2, v1
    v_mul_u32_u24 v40, 0x1800, v40
    v_and_b32 v3, 3, v1
    v_lshl_add_u32 v40, v3, 7, v40
    """)
    for e in range(1, nu):
        A(f"v_add_u32 v{40+e}, {e*16*6144}, v40")
    A(f"""
    s_mul_i32 s5, s37, 5
    s_add_u32 s4, s4, s5
    s_sub_u32 s4, s4, 6
    s_mul_i32 s46, s4, {16*6144}
    s_movk_i32 s47, 512
    s_mov_b32 s10, {QW_BYTES}
    """)
    A.label(f"TB_G{tag}")


def tb_burst(A, nu, nc, k0):
    for c in range(nc):
        for e in range(nu):
            A(f"buffer_load_dword v{k0 + c*nu + e}, v{40+e}, s[8:11], s46 offen")
        A("s_add_u32 s46, s46, s47")


def nsleep(A, n):
    while n > 0:
        A(f"s_sleep {min(n, 127)}"); n -= 127


def gen_prod(A, opt):
    SH = opt["sh"]
    NU = 40 * (12 - SH)
    assert all((u * 205) >> 13 == u // 40 for u in range(320))
    A.label("PROD")
    A(f"""
    s_cmp_lt_u32 s59, {NU}
    s_cselect_b32 s61, 1, 0
    s_cselect_b32 s59, s59, s58
    s_mov_b32 s10, {QW_BYTES}
    s_mov_b32 s18, {SC_BYTES}
    s_mov_b32 s19, 0x00020000
    s_mov_b32 s22, {SC_BYTES}
    s_mov_b32 s23, 0x00020000
    v_lshrrev_b32 v6, 5, v1
    v_and_b32 v7, 31, v1
    v_mul_u32_u24 v6, 0x1800, v6
    v_lshl_add_u32 v6, v7, 4, v6
    v_lshlrev_b32 v7, 3, v7
    """)

    def issue(k):
        u = f"s{58+k}"
        st, fl = f"s{50+2*k}", f"s{51+2*k}"
        A(f"""
        s_mul_i32 s4, {u}, 205
        s_lshr_b32 s4, s4, 13
        s_mul_i32 s5, s4, 40
        s_sub_u32 s5, {u}, s5
        s_add_u32 s4, s4, {SH}
        s_lshr_b32 s6, s5, 1
        s_mul_i32 s6, s6, 3072
        s_lshl_b32 s7, s4, 8
        s_add_u32 s6, s6, s7
        s_mul_i32 s42, s5, {16*6144}
        s_lshl_b32 s7, s4, 9
        s_add_u32 s42, s42, s7
        buffer_load_dwordx2 {vr(8+4*k,2)}, v7, s[16:19], s6 offen
        buffer_load_dwordx2 {vr(10+4*k,2)}, v7, s[20:23], s6 offen
        """)
        for i in range(8):
            A(f"buffer_load_dwordx4 {vr(16+32*k+4*i,4)}, v6, s[8:11], s42 offen")
            if i < 7: A("s_add_u32 s42, s42, 12288")
        A(f"""
        s_mul_i32 {st}, s5, 12
        s_add_u32 {st}, {st}, s4
        s_lshl_b32 {st}, {st}, 12
        s_add_u32 {st}, {st}, {SA}
        s_mul_i32 s6, s5, 171
        s_lshr_b32 s6, s6, 9
        s_mul_i32 s7, s6, 3
        s_sub_u32 s7, s5, s7
        s_mul_i32 {fl}, s6, 3072
        s_lshl_b32 s7, s7, 6
        s_add_u32 {fl}, {fl}, s7
        s_lshl_b32 s7, s4, 2
        s_add_u32 {fl}, {fl}, s7
        s_add_u32 {fl}, {fl}, {SFLG}
        """)

    def bars(n, tag):
        if not n: return
        A(f"""
        s_cmp_eq_u32 s60, 0
        s_cbranch_scc1 PROD_B{tag}
        """)
        for _ in range(n): A("s_barrier")
        A.label(f"PROD_B{tag}")

    def compute(k, younger):
        A(f"s_waitcnt vmcnt({younger + 8})")
        scale8(A, 80, 8 + 4 * k, 10 + 4 * k)
        for i in range(8):
            q = 16 + 32 * k + 4 * i
            o = 96 + 16 * k + 2 * i
            A(f"s_waitcnt vmcnt({younger + 7 - i + i // 2})")
            for j in range(4):
                A(f"v_fma_f32 v{88+j}, v{q+j}, v{80+j}, v{84+j}")
            A(f"""
            v_cvt_pk_bf16_f32 v{o}, v88, v89
            v_cvt_pk_bf16_f32 v{o+1}, v90, v91
            """)
            if i & 1:
                A(f"buffer_store_dwordx4 {vr(o-2,4)}, v5, s[24:27], s{50+2*k} offen offset:{1024*(i//2)} sc1")

    issue(0)
    A("""
    s_cmp_lg_u32 s60, 0
    s_cbranch_scc1 PROD_1
    s_waitcnt vmcnt(10)
    """)
    gate_set(A, opt)
    A.label("PROD_1")
    issue(1)
    A(f"""
    s_mov_b32 s46, 0xffff0000
    s_mov_b32 s47, {hex((127+QE) << 23)}
    s_mov_b32 s48, {hex(0x80000000 | ((127+QE-149) << 23))}
    v_lshlrev_b32 v3, 8, v1
    v_mov_b32 v4, 1
    """)
    PB0, PB1 = opt.get("pb0", 0), opt.get("pb1", 2)
    bars(PB0, "0")
    compute(0, 10)
    A("""
    s_cmp_eq_u32 s61, 0
    s_cbranch_scc1 PROD_2
    """)
    compute(1, 4)
    A.label("PROD_2")
    stamp(A, opt, 4)
    bars(PB1, "1")
    poll(A, "PROD_G", DBG, "0", "v2", "v8", 0)
    A(f"""
    s_mov_b64 exec, 0xfff
    buffer_store_dword v4, v3, s[24:27], s51 offen sc1
    buffer_store_dword v4, v3, s[24:27], s53 offen sc1
    s_mov_b64 exec, -1
    """)
    stamp(A, opt, 2)
    A("""
    s_cmp_eq_u32 s60, 0
    s_cbranch_scc1 IDLE_T
    """)
    for _ in range(10 - PB0 - PB1): A("s_barrier")
    A("s_branch P2_MMX")


def gate_set(A, opt):
    A(f"""
    s_barrier
    s_cmp_lg_u32 s36, 0
    s_cbranch_scc1 IDLE_G1
    s_lshl_b32 s4, s37, 2
    v_mov_b32 v3, 0
    v_mov_b32 v4, 1
    s_mov_b64 exec, 1
    buffer_store_dword v4, v3, {DBG}, s4 offen sc1
    s_mov_b64 exec, -1
    """)
    A.label("IDLE_G1")


def gen_xr(A, opt):
    sW, sLOC, sXCD = "s36", "s3", "s37"
    sMT, sNT = "s40", "s41"
    sC = "s48"
    SH = opt.get("sh", 0)
    A(f"""
    s_sub_u32 s4, {sLOC}, 21
    s_cmp_ge_u32 s4, 5
    s_cselect_b32 s5, 1, 0
    s_cselect_b32 s6, 5, 0
    s_sub_u32 {sNT}, s4, s6
    s_lshl_b32 s7, {sXCD}, 1
    s_add_u32 {sMT}, s7, s5
    s_cmp_ge_u32 {sLOC}, 31
    s_cbranch_scc1 IDLE_WG
    s_cmp_lt_u32 {sW}, 4
    s_cbranch_scc1 XR_MFMA
    s_cmp_lt_u32 {sW}, 6
    s_cbranch_scc1 XR_LD
    """)
    if opt.get("tpr"): A(f"s_setprio {opt['tpr']}")
    gate_addr(A, "v2")
    if SH:
        A(f"""
        s_sub_u32 s58, s2, 168
        s_add_u32 s59, s58, 80
        s_mov_b32 s60, 1
        s_cmp_eq_u32 {sW}, 6
        s_waitcnt lgkmcnt(0)
        s_cbranch_scc1 PROD
        """)
    A(f"""
    v_lshlrev_b32 v6, 7, v1
    s_mul_i32 s4, {sMT}, 5
    s_add_u32 s4, s4, {sNT}
    s_lshl_b32 s5, s4, 15
    s_lshl_b32 s6, s4, 14
    s_mov_b32 s30, {X_BYTES}
    s_mov_b32 s31, 0x00020000
    s_mov_b32 s34, {U_BYTES}
    s_mov_b32 s35, 0x00020000
    s_waitcnt lgkmcnt(0)
    """)
    if opt.get("tx", 1) == 2:
        A(f"""
        s_cmp_lg_u32 {sW}, 6
        s_cbranch_scc1 XR_TX
        """)
        nsleep(A, opt.get("txd", 0))
        for i in range(4):
            A(f"buffer_load_dword v{8+i}, v6, s[28:31], s5 offen")
            if i < 3: A("s_add_u32 s5, s5, 8192")
        for i in range(2):
            A(f"buffer_load_dword v{12+i}, v6, s[32:35], s6 offen")
            if i < 1: A("s_add_u32 s6, s6, 8192")
        A.label("XR_TX")
    elif opt.get("tx", 1):
        if not SH:
            A(f"""
            s_cmp_lg_u32 {sW}, 6
            s_cbranch_scc1 XR_TU
            """)
        for i in range(4):
            A(f"buffer_load_dword v{8+i}, v6, s[28:31], s5 offen")
            if i < 3: A("s_add_u32 s5, s5, 8192")
        if not SH:
            A("s_branch XR_TX")
            A.label("XR_TU")
        for i in range(2):
            A(f"buffer_load_dword v{12+i}, v6, s[32:35], s6 offen")
            if i < 1: A("s_add_u32 s6, s6, 8192")
        A.label("XR_TX")
    WT = opt.get("wt", 2)
    NT_ = 12 - opt.get("wtc", 2)
    if not SH:
        A(f"""
        s_cmp_lg_u32 {sW}, 7
        s_cbranch_scc1 XR_W6
        """)
    TB = opt.get("tb", 0)
    if TB:
        A(f"""
        s_sub_u32 s4, s3, 21
        s_and_b32 s48, s4, 1
        s_and_b32 s4, s4, 14
        """)
        tb_addr(A, "x", 0, 2)
        A(f"""
        s_lshl_b32 s4, s48, 1
        s_add_u32 s4, s4, {opt.get("wtc", 2)}
        s_mul_i32 s4, s4, s47
        s_add_u32 s46, s46, s4
        s_cmp_eq_u32 s48, 0
        s_cbranch_scc1 TB_X0
        """)
        nsleep(A, opt.get("ts1", 40))
        A.label("TB_X0")
        nsleep(A, opt.get("ts0", 0))
        tb_burst(A, 2, 2, 16)
        A(f"""
        s_add_u32 s46, s46, s47
        s_add_u32 s46, s46, s47
        s_cmp_eq_u32 s48, 0
        s_cselect_b32 s48, {opt.get("tb2", 1)}, {opt.get("tb3", 3)}
        s_sub_u32 s49, 10, s48
        """)
        A.label("TB_X1")
        A(f"""
        s_barrier
        s_sub_u32 s48, s48, 1
        s_cmp_lg_u32 s48, 0
        s_cbranch_scc1 TB_X1
        """)
        tb_burst(A, 2, 2, 20)
        A.label("TB_X2")
        A(f"""
        s_barrier
        s_sub_u32 s49, s49, 1
        s_cmp_lg_u32 s49, 0
        s_cbranch_scc1 TB_X2
        """)
    else:
        wt_setup(A, opt, "x")
        k = 0
        for b in range(10):
            for _ in range(WT if b == 0 else opt.get("wtn", 2)):
                if k < NT_:
                    wt(A, opt, k, "x"); k += 1
            A("s_barrier")
    A("s_branch P2_MMX")
    if not SH:
        A.label("XR_W6")
        for i in range(5): A("s_barrier")
        poll(A, "XR_G", DBG, "0", "v2", "v3", 0)
        for i in range(5): A("s_barrier")
        A("s_branch P2_MMX")
    A.label("IDLE_WG")
    gate_addr(A, "v2")
    A(f"""
    v_mov_b32 v6, 0
    v_mov_b32 v7, 0
    v_mov_b32 v8, 0
    v_mov_b32 v9, 0
    s_lshl_b32 s58, {sXCD}, 3
    s_add_u32 s58, s58, {sW}
    s_mul_i32 s4, s58, 3072
    s_add_u32 s4, s4, {FLG}
    s_waitcnt lgkmcnt(0)
    """)
    for i in range(3):
        A(f"buffer_store_dwordx4 v[6:9], v5, s[24:27], s4 offen offset:{1024*i} sc1")
    if SH:
        A(f"""
        s_add_u32 s59, s58, 224
        s_add_u32 s58, s58, 160
        s_min_u32 s58, s58, {40 * (12 - SH) - 1}
        s_mov_b32 s60, 0
        """)
        gen_prod(A, opt)
    else:
        A("s_waitcnt vmcnt(0)")
        gate_set(A, opt)
    A.label("IDLE_T")
    if opt.get("fw"):
        A(f"""
        s_cmp_ge_u32 {sW}, 6
        s_cbranch_scc1 IDLE_F2
        s_mul_i32 s4, {sXCD}, 6
        s_add_u32 s4, s4, {sW}
        s_mul_i32 s4, s4, 40960
        s_add_u32 s4, s4, {W2F}
        s_mov_b32 s5, 10
        v_mov_b32 v6, -1
        v_mov_b32 v7, -1
        v_mov_b32 v8, -1
        v_mov_b32 v9, -1
        """)
        nsleep(A, opt.get("fd", 0))
        A.label("IDLE_F1")
        for i in range(4):
            A(f"buffer_store_dwordx4 v[6:9], v5, s[24:27], s4 offen offset:{1024*i} sc1")
        nsleep(A, opt.get("fp", 0))
        A(f"""
        s_add_u32 s4, s4, 4096
        s_sub_u32 s5, s5, 1
        s_cmp_lg_u32 s5, 0
        s_cbranch_scc1 IDLE_F1
        """)
        stamp(A, opt, 3)
        A.label("IDLE_F2")
    if TB:
        A(f"""
        s_sub_u32 s4, {sW}, 2
        s_cmp_ge_u32 s4, 5
        s_cbranch_scc1 IDLE_T7
        s_lshl_b32 s4, s4, 1
        """)
        tb_addr(A, "i", 0, 2)
        A(f"""
        s_mul_i32 s4, s47, {8 + opt.get("wtc", 2)}
        s_add_u32 s46, s46, s4
        """)
        nsleep(A, opt.get("ts4", 100))
        tb_burst(A, 2, 4 - opt.get("wtc", 2), 16)
        A("s_branch IDLE_NT")
        A.label("IDLE_T7")
    A(f"""
    s_cmp_lg_u32 {sW}, 7
    s_cbranch_scc1 IDLE_NT
    """)
    wt_setup(A, opt, "i")
    for k in range(SH - opt.get("wtc", 2) if SH else NT_):
        wt(A, opt, k, "i")
        if k >= WT - 1 and k < NT_ - 1 and not SH: A(f"s_sleep {opt.get('isl', 12)}")
    A.label("IDLE_NT")
    if not SH:
        A(f"""
        s_cmp_lg_u32 {sW}, 0
        s_cbranch_scc1 IDLE_G_X
        """)
        poll(A, "IDLE_G", DBG, "0", "v2", "v3", 0, sleep=8)
    if opt.get("fw"): A("s_waitcnt vmcnt(0)")
    A("s_barrier")
    if opt.get("fw"):
        A(f"""
        s_cmp_lg_u32 {sW}, 1
        s_cbranch_scc1 IDLE_H
        s_lshl_b32 s4, {sXCD}, 2
        v_mov_b32 v3, 32
        v_mov_b32 v4, 1
        s_mov_b64 exec, 1
        buffer_store_dword v4, v3, {DBG}, s4 offen sc1
        s_mov_b64 exec, -1
        """)
        stamp(A, opt, 4)
        A.label("IDLE_H")
    A(f"""
    s_mov_b32 s60, 0
    s_cmp_lt_u32 {sW}, 4
    s_cbranch_scc1 P2_LD
    s_branch P2_MMI
    """)
    A.label("XR_LD")
    if opt.get("cst"): A("s_memtime s[88:89]")
    sOFS, sGRP, sCH = "s43", "s45", "s46"
    vO = 6
    A(f"""
    v_lshrrev_b32 v3, 4, v1
    s_cmp_eq_u32 {sW}, 4
    s_cbranch_scc0 XRL_U
    v_lshrrev_b32 v2, 3, v1
    v_and_b32 v4, 7, v1
    v_xor_b32 v4, v4, v3
    v_lshlrev_b32 v4, 4, v4
    v_mul_u32_u24 v{vO}, 0x500, v2
    v_add_u32 v{vO}, v{vO}, v4
    v_xor_b32 v4, 64, v{vO}
    v_add_u32 v{vO+1}, 9216, v4
    v_add_u32 v{vO+2}, {2*9216}, v{vO}
    v_add_u32 v{vO+3}, {3*9216}, v4
    s_mul_i32 {sOFS}, {sMT}, {128*1280}
    s_mov_b32 {sGRP}, {32*1280}
    s_mov_b32 {sCH}, {128 - 128*1280 + (1<<32)}
    s_movk_i32 s47, 128
    s_mov_b32 m0, 0
    s_mov_b32 s30, {X_BYTES}
    s_waitcnt lgkmcnt(0)
    s_branch XRL_GO
    """)
    A.label("XRL_U")
    A(f"""
    v_and_b32 v4, 15, v1
    v_lshlrev_b32 v2, 2, v3
    v_xor_b32 v4, v4, v2
    v_lshlrev_b32 v4, 4, v4
    v_mul_u32_u24 v{vO}, 0x500, v3
    v_add_u32 v{vO}, v{vO}, v4
    v_add_u32 v{vO+1}, {4*1280-1024}, v{vO}
    v_add_u32 v{vO+2}, {2*(4*1280-1024)}, v{vO}
    v_add_u32 v{vO+3}, {3*(4*1280-1024)}, v{vO}
    s_lshl_b32 {sOFS}, {sNT}, 8
    s_mov_b32 {sGRP}, {16*1280}
    s_mov_b32 {sCH}, 0
    s_mov_b32 s47, {64*1280}
    s_movk_i32 m0, 16384
    s_mov_b32 s30, {U_BYTES}
    s_waitcnt lgkmcnt(0)
    s_mov_b32 s28, s32
    s_mov_b32 s29, s33
    """)
    A.label("XRL_GO")
    A(f"""
    s_mov_b32 s31, 0x00020000
    s_mov_b32 {sC}, 0
    """)
    XRO = opt.get("xra", 0) or opt.get("xrb", 0)
    if XRO:
        A(f"""
        s_mul_i32 s49, {sNT}, {opt.get("xra", 0)}
        s_and_b32 s4, {sMT}, 1
        s_mul_i32 s4, s4, {opt.get("xrb", 0)}
        s_add_u32 s49, s49, s4
        s_mul_i32 s4, {sXCD}, {opt.get("xrc", 0)}
        s_add_u32 s49, s49, s4
        s_mul_i32 s4, s49, 205
        s_lshr_b32 s4, s4, 11
        s_mul_i32 s4, s4, 10
        s_sub_u32 s49, s49, s4
        s_mul_i32 s4, s49, s47
        s_add_u32 {sOFS}, {sOFS}, s4
        s_mul_i32 s47, s47, 10
        s_sub_u32 s49, 10, s49
        """)
    nsleep(A, opt.get("xd", 0))
    A.label("XRL_LOOP")
    for g in range(4):
        for j in range(4):
            A(f"buffer_load_dwordx4 v{vO+j}, s[28:31], {sOFS} offen offset:{1024*j} lds")
        A(f"""
        s_add_u32 m0, m0, 4096
        s_add_u32 {sOFS}, {sOFS}, {sGRP}
        """)
    A(f"""
    s_add_u32 {sOFS}, {sOFS}, {sCH}
    s_add_u32 m0, m0, 16384
    s_and_b32 m0, m0, {4*XSTAGE-1}
    s_add_u32 {sC}, {sC}, 1
    """)
    if XRO:
        A(f"""
        s_cmp_eq_u32 {sC}, s49
        s_cselect_b32 s4, s47, 0
        s_sub_u32 {sOFS}, {sOFS}, s4
        """)
    XT = opt.get("xt", 0)
    A(f"""
    s_and_b32 s4, {sC}, {15 if XT else 13}
    s_cmp_eq_u32 s4, 1
    s_cbranch_scc1 XRL_LOOP
    """)
    cst(A, opt, sC, 32)
    if XT:
        A("s_waitcnt vmcnt(16)")
    else:
        A(f"""
        s_cmp_eq_u32 {sC}, 2
        s_cbranch_scc0 XRL_W
        s_waitcnt vmcnt(16)
        """)
        A.label("XRL_W")
        A("s_waitcnt vmcnt(32)")
    cst(A, opt, sC, 16)
    A("s_barrier")
    cst(A, opt, sC, 0)
    A(f"""
    s_cmp_lt_u32 {sC}, 10
    s_cbranch_scc1 XRL_LOOP
    """)
    if not XT:
        A("s_waitcnt vmcnt(16)")
        cst(A, opt, 0, 27)
        A("s_barrier")
        cst(A, opt, 0, 11)
    A("s_waitcnt vmcnt(0)")
    cst(A, opt, 0, 28)
    A("s_barrier")
    cst(A, opt, 0, 12)
    cst_out(A, opt)
    A("s_branch P2_MMX")
    A.label("XR_MFMA")
    sCST = "s43"
    vXR = 6
    vUR = 10
    vT = 12
    vACC = 20
    vF = 84
    A(f"""
    s_lshr_b32 s4, {sW}, 1
    s_and_b32 s5, {sW}, 1
    s_lshl_b32 s6, s4, 13
    v_and_b32 v3, 31, v1
    v_bfe_u32 v4, v1, 1, 3
    v_lshrrev_b32 v{vT}, 5, v1
    v_xor_b32 v4, v4, v{vT}
    v_lshlrev_b32 v4, 4, v4
    v_lshl_add_u32 v4, v3, 7, v4
    v_add_u32 v{vXR}, s6, v4
    v_xor_b32 v{vXR+1}, 32, v{vXR}
    v_xor_b32 v{vXR+2}, 64, v{vXR}
    v_xor_b32 v{vXR+3}, 96, v{vXR}
    v_bfe_u32 v2, v1, 4, 1
    v_bfe_u32 v3, v1, 2, 2
    s_lshl_b32 s6, s5, 1
    v_xor_b32 v4, s6, v3
    v_lshlrev_b32 v4, 6, v4
    v_lshl_add_u32 v4, v3, 8, v4
    v_lshl_add_u32 v4, v{vT}, 11, v4
    v_lshl_add_u32 v4, v2, 5, v4
    v_and_b32 v3, 3, v1
    v_lshl_add_u32 v4, v3, 3, v4
    v_add_u32 v{vUR}, 16384, v4
    v_xor_b32 v{vUR+1}, 64, v{vUR}
    s_mov_b32 {sCST}, 0
    s_mov_b32 {sC}, 0
    s_lshl_b32 s6, {sMT}, 1
    s_add_u32 s6, s6, s4
    s_lshl_b32 s7, {sNT}, 1
    s_add_u32 s7, s7, s5
    s_mul_i32 s51, s4, 10
    s_add_u32 s51, s51, s7
    s_lshl_b32 s51, s51, {7 if MAP["lf"] else 2}
    s_mul_i32 s52, {sMT}, {20*128 if MAP["lf"] else 2048}
    s_add_u32 s51, s51, s52
    s_add_u32 s51, s51, {FLG + 672*128 if MAP["lf"] else XFLG}
    s_mov_b32 s53, 7
    s_mul_i32 s6, s6, 80
    s_lshl_b32 s7, s7, 2
    s_add_u32 s6, s6, s7
    s_lshl_b32 s50, s6, 10
    s_add_u32 s52, s50, 40960
    """)
    if MAP["ac"]:
        A(f"""
        s_lshl_b32 s51, {sMT}, 11
        s_add_u32 s51, s51, {FLG + 32768}
        """)
    for i in range(0, 64, 2):
        A(f"v_mov_b64 {vr(vACC+i,2)}, 0")
    for i in range(0, 64, 2):
        A(f"v_mov_b64 {vr(vF+64+i,2)}, 0")
    A("s_waitcnt lgkmcnt(0)")

    def reads(s, buf):
        f = vF + 64 * buf + 16 * s
        r = []
        for tn in range(2):
            r.append(f"ds_read_b128 {vr(f+8+4*tn,4)}, v{vT+s} offset:{4096*tn}")
            for u in range(2):
                r.append(f"ds_read_b64_tr_b16 {vr(f+4*tn+2*u,2)}, v{vT+4+tn} offset:{s*4096+u*1024}")
        return r

    def mfmas(s, buf):
        f = vF + 64 * buf + 16 * s
        r = []
        for tm in range(2):
            for tn in range(2):
                acc = vACC + 32 * tm + 16 * tn
                r.append(f"v_mfma_f32_32x32x16_bf16 {vr(acc,16)}, {vr(f+4*tn,4)}, {vr(f+8+4*tm,4)}, {vr(acc,16)}")
        return r

    A.label("XR_LOOP")
    for buf in range(2):
        for i in range(4):
            A(f"v_add_u32 v{vT+i}, {sCST}, v{vXR+i}")
        for i in range(2):
            A(f"v_add_u32 v{vT+4+i}, {sCST}, v{vUR+i}")
        A(f"""
        s_add_u32 {sCST}, {sCST}, {XSTAGE}
        s_and_b32 {sCST}, {sCST}, {4*XSTAGE-1}
        s_barrier
        """)
        rd = sum((reads(s_, buf) for s_ in range(4)), [])
        mf = sum((mfmas(s_, buf ^ 1) for s_ in range(4)), [])
        ri = 0
        for m in mf:
            A(m)
            for x in rd[ri:ri + 2]: A(x)
            ri += 2
        for x in rd[ri:]: A(x)
        A("s_waitcnt lgkmcnt(0)")
    A(f"""
    s_add_u32 {sC}, {sC}, 2
    s_cmp_lt_u32 {sC}, 10
    s_cbranch_scc1 XR_LOOP
    s_barrier
    """)
    for s_ in range(4):
        for m in mfmas(s_, 1): A(m)
    A("s_nop 15")
    stamp(A, opt, 3)
    for tm in range(2):
        for i in range(4):
            a = vACC + 32 * tm + 8 * i
            o = vF + 16 * tm + 4 * i
            for j in range(4):
                A(f"v_cvt_pk_bf16_f32 v{o+j}, v{a+2*j}, v{a+2*j+1}")
            A(f"buffer_store_dwordx4 {vr(o,4)}, v5, s[24:27], s{50+2*tm} offen offset:{1024*i} sc1")


VX = 96


def xload(A, opt, kb):
    A(f"buffer_load_dwordx4 {vr(VX+4*kb,4)}, v5, s[24:27], s20 offen offset:{1024 * (kb & 3)} sc1")
    if kb & 3 == 3 and kb < 39:
        A("s_add_u32 s20, s20, 4096")


def p2_rot(A, opt):
    lm = MAP["m"]
    A(f"""
    s_and_b32 s17, s3, {(1 << lm) - 1}
    s_mul_i32 s17, s17, 0
    s_lshr_b32 s16, s3, {lm}
    s_mul_i32 s16, s16, 0
    s_add_u32 s17, s17, s16
    s_mul_i32 s16, s17, 205
    s_lshr_b32 s16, s16, 11
    s_mul_i32 s16, s16, 10
    s_sub_u32 s17, s17, s16
    s_lshl_b32 s17, s17, 12
    """)


def gen_p2(A, opt):
    NA = opt.get("na", 2)
    OLD = opt.get("old", 0)
    order = [(n, kb) for kb in range(40) for n in range(NA)] + [(n, kb) for n in range(NA, 3) for kb in range(40)]
    groups = []
    for n, kb in order:
        if (n, kb // 4) not in groups: groups.append((n, kb // 4))
    CH = {1: [2, 2, 4, 4, 4, 4, 10], 2: [2, 2, 2, 2, 4, 4, 4, 5, 5], 3: [2, 4, 6, 8, 10], 4: [3, 3, 6, 6, 6, 6],
          5: [1, 1, 2, 2, 4, 10, 10]}[opt.get("ch", 1)]
    assert sum(CH) == 30
    st = [sum(CH[:i]) for i in range(len(CH) + 1)]
    A.label("P2_PUB")
    publish(A, opt, "s51", "s53")
    A.label("P2_LD")
    p2_tile(A)
    if OLD: p2_rot(A, opt)
    A(f"""
    s_mul_i32 s22, s39, 122880
    s_add_u32 s22, s22, {W2F}
    s_lshl_b32 s21, s36, 10
    s_add_u32 s22, s22, s21
    """)
    if OLD: A("""
    s_add_u32 s20, s22, s17
    s_add_u32 s19, s22, 40960
    """)
    A(f"""
    v_lshlrev_b32 v2, {7 if MAP["lf"] else 2}, v1
    v_mov_b32 v4, {LFLAG}
    s_cmp_lg_u32 s36, 0
    s_cbranch_scc1 P2_LW0
    """)
    if OLD: A("""
    s_sub_u32 s4, s44, s45
    s_sub_u32 s4, s4, 168
    """)
    EF = MAP["ef"]
    if MAP["ac"]:
        pass
    elif EF:
        A("""
        v_min_u32 v2, s43, v1
        v_lshlrev_b32 v2, 7, v2
        """)
    else:
        A("v_cmp_gt_u32 vcc, 42, v1")
        if OLD: A("v_add_u32 v3, s4, v2")
        A("""
        v_mov_b32 v3, 0
        v_cndmask_b32 v2, v3, v2, vcc
        """)
    if MAP["ac"]:
        spoll(A, "P2_W", "s45", 42, opt.get("wsl", 0))
    elif EF:
        poll(A, "P2_W", "s[24:27]", "s45", "v2", "v3", 0, sleep=opt.get("wsl", 16),
             st=(lambda: stamp(A, opt, 1)) if opt.get("pst") else None)
    elif opt.get("pp"):
        for i in range(opt["pp"]): A(f"v_mov_b32 v{8+i}, 0")
        ppoll(A, "P2_W", "s[24:27]", "s45", "v2", 8, opt["pp"], DC_W, opt.get("wsl", 4))
    else:
        poll(A, "P2_W", "s[24:27]", "s45", "v2", "v3", DC_W, sleep=opt.get("wsl", 16),
             st=(lambda: stamp(A, opt, 1)) if opt.get("pst") else None)

    def lds_wait(name, ofs, vd, va):
        A(f"s_branch {name}")
        A.label(name + "_S")
        A(f"s_sleep {opt.get('lsl', 1)}")
        A.label(name)
        A(f"""
        ds_read_b32 {vd}, {va} offset:{ofs}
        s_waitcnt lgkmcnt(0)
        """)
        poll_check(A, vd, 0, name + "_S")
    A(f"""
    v_mov_b32 v3, 1
    ds_write_b32 v4, v3 offset:4
    s_branch P2_GO
    """)
    A.label("P2_LW0")
    lds_wait("P2_LW", 4, "v3", "v4")
    A.label("P2_GO")
    stamp(A, opt, 5)
    AH = opt.get("ah", 3)

    def issue(c):
        for n, q in groups[st[c]:st[c + 1]]:
            off = (n * 40 + q * 4) * 1024
            A(f"""
            s_add_u32 s5, s22, {off}
            s_add_u32 m0, s21, {off}
            s_nop 0
            buffer_load_dwordx4 v5, s[24:27], s5 offen sc1 lds
            """)

    for c in range(min(AH, len(CH))): issue(c)
    if EF:
        A(f"""
        v_add_u32 v6, s21, v5
        v_add_u32 v7, 61440, v6
        s_mov_b32 s7, {POLL_MAX}
        """)
    for c in range(len(CH)):
        issued = min(len(CH), AH + c)
        A(f"s_waitcnt vmcnt({st[issued] - st[c+1]})")
        if EF:
            A.label(f"P2_V{c}")
            g = groups[st[c]:st[c + 1]]
            for i, (n, q) in enumerate(g):
                off = (n * 40 + q * 4) * 1024
                base, o = ("v6", off) if off < 61440 else ("v7", off - 61440)
                A(f"ds_read_b128 {vr(8+4*i,4)}, {base} offset:{o}")
            for i in range(len(g)):
                A(f"s_waitcnt lgkmcnt({len(g)-1-i})")
                r = 8 + 4 * i
                if i == 0:
                    A(f"v_max_u32 v3, v{r}, v{r+1}")
                else:
                    A(f"v_max3_u32 v3, v3, v{r}, v{r+1}")
                A(f"v_max3_u32 v3, v3, v{r+2}, v{r+3}")
            A(f"""
            v_cmp_eq_u32 vcc, -1, v3
            s_cbranch_vccnz P2_R{c}
            """)
            A.label(f"P2_K{c}")
        A("s_barrier")
        if AH + c < len(CH): issue(AH + c)
    stamp(A, opt, 6)
    if EF and opt.get("stamp"):
        A(f"""
        s_sub_u32 s7, {POLL_MAX}, s7
        s_cmp_eq_u32 s7, 0
        s_cbranch_scc1 K_EXIT
        v_mov_b32 v3, s7
        v_mov_b32 v2, 192
        s_mov_b64 exec, 1
        buffer_atomic_add v3, v2, {DBG}, 0 offen sc1
        s_mov_b64 exec, -1
        """)
    A("s_branch K_EXIT")
    if EF:
        for c in range(len(CH)):
            A.label(f"P2_R{c}")
            A(f"""
            s_cmp_eq_u32 s7, 0
            s_cbranch_scc1 P2_K{c}
            s_sub_u32 s7, s7, 1
            """)
            nsleep(A, opt.get("rsl", 0))
            issue(c)
            A(f"""
            s_waitcnt vmcnt(0)
            s_branch P2_V{c}
            """)

    vACC = 8
    vF = 56
    NF = 8
    vO = 88
    A.label("P2_MMX")
    A("s_barrier")
    A.label("P2_MMI")
    A.label("P2_MM")
    if not opt.get("sh"): stamp(A, opt, 2)
    XB = opt.get("xb", 0)
    if opt.get("nb") == 2:
        A(f"""
        v_mov_b32 v95, {LFLAG}
        ds_read_b32 v94, v95
        """)
    p2_tile(A)
    if OLD: p2_rot(A, opt)
    A(f"""
    s_lshl_b32 s4, s38, 2
    s_add_u32 s4, s4, s36
    s_sub_u32 s4, s4, 4
    """)
    if OLD:
        A("""
        s_mul_i32 s18, s4, 40960
        s_add_u32 s19, s18, 40960
        s_add_u32 s20, s18, s17
        """)
    else:
        A("s_mul_i32 s20, s4, 40960")
    A(f"""
    s_mul_i32 s4, s4, {32*3072}
    s_mul_i32 s5, s39, 192
    s_add_u32 s23, s4, s5
    s_add_u32 s22, s23, {16*3072}
    """)
    A("""
    v_bfe_u32 v2, v1, 2, 1
    v_bfe_u32 v4, v1, 3, 2
    v_and_b32 v3, 0x23, v1
    v_lshl_add_u32 v3, v2, 4, v3
    v_lshl_add_u32 v3, v4, 2, v3
    v_lshlrev_b32 v3, 4, v3
    v_and_b32 v6, 15, v1
    v_and_b32 v7, 48, v1
    v_mul_u32_u24 v6, 0xc00, v6
    v_add_u32 v6, v6, v7
    v_add_u32 v4, 61440, v3
    s_waitcnt vmcnt(0)
    """)
    A(f"""
    v_min_u32 v2, 19, v1
    v_lshlrev_b32 v2, {7 if MAP["lf"] else 2}, v2
    v_mov_b32 v8, {LFLAG}
    """)
    if opt.get("nb") == 2:
        A("""
        s_waitcnt lgkmcnt(0)
        v_readfirstlane_b32 s4, v94
        s_cmp_lg_u32 s4, 0
        s_cbranch_scc1 P2_XW_E
        """)
    A("""
    s_cmp_lg_u32 s36, 7
    s_cbranch_scc1 P2_XW
    """)

    def wait_stores(tag):
        A(f"""
        s_cmp_ge_u32 s3, 21
        s_cbranch_scc1 P2_WS{tag}_X
        """)
        A.label(f"P2_WS{tag}")
        A(f"""
        ds_read_b32 v7, v8 offset:12
        s_waitcnt lgkmcnt(0)
        v_readfirstlane_b32 s4, v7
        s_cmp_lt_u32 s4, 4
        s_cbranch_scc1 P2_WS{tag}
        """)
        A.label(f"P2_WS{tag}_X")
    if MAP["ac"]:
        spoll(A, "P2_X", "s44", 20, opt.get("xsl", 0))
    elif opt.get("px"):
        ppoll(A, "P2_X", "s[24:27]", "s44", "v2", 88, opt["px"], 0, opt.get("xsl", 4))
    else:
        poll(A, "P2_X", "s[24:27]", "s44", "v2", "v7", 0, sleep=opt.get("xsl", 16))
    if opt.get("xap"):
        A("""
        s_cmp_ge_u32 s3, 31
        s_cbranch_scc1 P2_XA_X
        """)
        A.label("P2_XA")
        A("""
        ds_read_b32 v7, v8 offset:8
        s_waitcnt lgkmcnt(0)
        v_readfirstlane_b32 s4, v7
        s_cmp_lt_u32 s4, 4
        s_cbranch_scc1 P2_XA
        """)
        A.label("P2_XA_X")
    A("""
    v_mov_b32 v7, 1
    ds_write_b32 v8, v7
    s_branch P2_XW_X
    """)
    A.label("P2_XW_S")
    A("s_sleep 2")
    A.label("P2_XW")
    A("""
    ds_read_b32 v7, v8
    s_waitcnt lgkmcnt(0)
    """)
    poll_check(A, "v7", 0, "P2_XW_S")
    A.label("P2_XW_X")
    if opt.get("xw"): wait_stores("a")
    A.label("P2_XW_E")
    stamp(A, opt, 1)
    XS = opt.get("xs", 40)
    XE = opt.get("xe", 2)
    xi = [XS]
    for kb in range(XS):
        if XB and kb == XB: wait_stores("b")
        xload(A, opt, kb)
    stamp(A, opt, 5, True)
    if opt.get("mpr"): A(f"s_setprio {opt['mpr']}")

    def epi(t, o=vO):
        a = vACC + 16 * t
        return [[f"v_cvt_pk_bf16_f32 v{o+j}, v{a+2*j}, v{a+2*j+1}" for j in range(4)],
                [f"v_cvt_pk_bf16_f32 v{o+j}, v{a+2*j}, v{a+2*j+1}" for j in range(4, 8)],
                ["s_nop 1"] + [f"v_permlane16_swap_b32 v{o+j}, v{o+4+j}" for j in range(4)],
                [f"buffer_store_dwordx4 {vr(o,4)}, v6, s[96:99], s23 offen offset:{64*t}",
                 f"buffer_store_dwordx4 {vr(o+4,4)}, v6, s[96:99], s22 offen offset:{64*t}"]]

    RA = opt.get("ra", 6)
    assert RA < NF
    seen = [0]

    def read(i):
        n, kb = order[i]
        g = groups.index((n, kb // 4))
        while st[seen[0]] <= g:
            A("s_barrier")
            seen[0] += 1
        off = (n * 40 + kb) * 1024
        base, o = ("v3", off) if off < 61440 else ("v4", off - 61440)
        A(f"ds_read_b128 {vr(vF+4*(i%NF),4)}, {base} offset:{o}")

    for i in range(RA): read(i)
    pending = []
    done = set()
    last = {n: max(i for i, x in enumerate(order) if x[0] == n) for n in range(3)}
    for i, (n, kb) in enumerate(order):
        if n == 0:
            assert xi[0] > kb
            A(f"s_waitcnt vmcnt({xi[0] - kb - 1})")
        A(f"s_waitcnt lgkmcnt({min(120, i + RA) - i - 1})")
        acc = vACC + 16 * n
        c = "0" if kb == 0 else vr(acc, 16)
        A(f"v_mfma_f32_32x32x16_bf16 {vr(acc,16)}, {vr(vF+4*(i%NF),4)}, {vr(VX+4*kb,4)}, {c}")
        if i == 0 and opt.get("stamp"):
            stamp(A, opt, 3)
            A("s_memtime s[80:81]\ns_nop 7\ns_nop 7\ns_waitcnt lgkmcnt(0)")
        if i == 0 and opt.get("probe") == 3:
            stamp(A, opt, 3)
            A("s_nop 7\ns_nop 7\ns_waitcnt lgkmcnt(0)")
        if i + RA < 120: read(i + RA)
        if i % XE == 0 and xi[0] < 40:
            xload(A, opt, xi[0]); xi[0] += 1
        for t in range(3):
            if i == last[t] + 3:
                pending += epi(t) + [[], [], [], []]
                done.add(t)
        if pending:
            for x in pending.pop(0): A(x)
    assert seen[0] == len(CH)
    A("s_nop 15")
    stamp(A, opt, 6)
    if opt.get("stamp"):
        A("s_memtime s[82:83]\ns_waitcnt lgkmcnt(0)\ns_sub_u32 s72, s82, s80")
        if opt.get("sh"): A("s_and_b32 s90, s90, 127\ns_lshl_b32 s90, s90, 24\ns_or_b32 s72, s72, s90")
    k = 0
    for t in range(3):
        if t in done: continue
        for x in sum(epi(t, vF + 8 * k), []): A(x)
        k += 1


def gen_p2d(A, opt):
    assert MAP["lf"] and not MAP["ef"]
    PS = 9216
    A.label("P2_PUB")
    A("s_mov_b32 s60, 1")
    A.label("P2_LD")
    p2_tile(A)
    A(f"""
    v_lshrrev_b32 v2, 4, v1
    v_min_u32 v2, 2, v2
    v_and_b32 v3, 15, v1
    v_min_u32 v3, 13, v3
    v_mad_u32_u24 v2, v2, 14, v3
    v_lshlrev_b32 v2, 7, v2
    s_lshl_b32 s46, 0x1111, s36
    s_and_b32 s46, s46, 0x3fff
    s_mul_i32 s22, s39, 122880
    s_add_u32 s22, s22, {W2F}
    s_mov_b32 s47, 0
    s_mov_b32 s7, {POLL_MAX}
    v_mov_b32 v4, {LFLAG}
    v_mov_b32 v6, 0
    v_mov_b32 v7, 1
    """)
    A.label("P2_POLL")
    A(f"""
    s_lshl_b32 s48, s46, 16
    s_or_b32 s48, s48, s46
    s_mov_b32 s49, s46
    s_mov_b64 exec, s[48:49]
    buffer_load_dword v3, v2, s[24:27], s45 offen sc1
    s_mov_b64 exec, 1
    v_mov_b32 v8, s47
    s_cmp_eq_u32 s60, 0
    s_waitcnt vmcnt(1)
    s_cbranch_scc1 P2_NP
    buffer_store_dword v7, v6, s[24:27], s51 offen sc1
    """)
    stamp(A, opt, 4)
    A("""
    s_mov_b32 s60, 0
    s_waitcnt vmcnt(1)
    s_branch P2_PR
    """)
    A.label("P2_NP")
    A("""
    ds_or_b32 v4, v8 offset:4
    s_mov_b32 s47, 0
    s_waitcnt vmcnt(0)
    """)
    A.label("P2_PR")
    A(f"""
    s_mov_b64 exec, s[48:49]
    v_cmp_ne_u32 vcc, 0, v3
    s_mov_b64 exec, -1
    s_lshr_b32 s4, vcc_lo, 16
    s_and_b32 s4, s4, vcc_lo
    s_and_b32 s4, s4, vcc_hi
    s_cbranch_scc1 P2_ISS
    s_sub_u32 s7, s7, 1
    s_cselect_b32 s4, s46, 0
    s_cbranch_scc1 P2_ISS
    s_sleep {opt.get("wsl", 8)}
    s_branch P2_POLL
    """)
    A.label("P2_ISS")
    if opt.get("stamp"):
        A("""
        s_waitcnt lgkmcnt(0)
        s_cmp_lg_u32 s74, 0
        s_cbranch_scc1 P2_IS0
        """)
        stamp(A, opt, 5)
        A.label("P2_IS0")
    A("s_andn2_b32 s46, s46, s4")
    A.label("P2_IS1")
    A(f"""
    s_ff1_i32_b32 s5, s4
    s_mul_i32 m0, s5, {PS}
    s_mul_i32 s6, s5, 3072
    s_add_u32 s6, s6, s22
    s_bitset0_b32 s4, s5
    """)
    for n in range(3):
        for j in range(3):
            A(f"buffer_load_dwordx4 v5, s[24:27], s6 offen offset:{1024*j} sc1 lds")
        if n < 2:
            A("""
            s_add_u32 m0, m0, 3072
            s_add_u32 s6, s6, 40960
            """)
    A(f"""
    s_cmp_eq_u32 s47, 0
    s_cbranch_scc1 P2_IS2
    v_mov_b32 v8, s47
    s_mov_b64 exec, 1
    s_waitcnt vmcnt(9)
    ds_or_b32 v4, v8 offset:4
    s_mov_b64 exec, -1
    """)
    A.label("P2_IS2")
    A(f"""
    s_lshl_b32 s47, 1, s5
    s_cmp_lg_u32 s4, 0
    s_cbranch_scc1 P2_IS1
    s_cmp_lg_u32 s46, 0
    s_cbranch_scc1 P2_POLL
    v_mov_b32 v8, s47
    s_mov_b64 exec, 1
    s_waitcnt vmcnt(0)
    ds_or_b32 v4, v8 offset:4
    s_mov_b64 exec, -1
    s_waitcnt lgkmcnt(0)
    """)
    stamp(A, opt, 6)
    A("s_branch K_EXIT")

    vACC = 8
    vF = 56
    vM, vA = 92, 93
    A.label("P2_MMX")
    A("s_barrier")
    A.label("P2_MMI")
    A("s_waitcnt vmcnt(0)")
    A.label("P2_MM")
    stamp(A, opt, 2)
    A(f"""
    v_mov_b32 v7, {LFLAG}
    ds_read_b32 v{vM}, v7
    """)
    p2_tile(A)
    A(f"""
    s_lshl_b32 s4, s38, 2
    s_add_u32 s4, s4, s36
    s_sub_u32 s4, s4, 4
    s_mul_i32 s20, s4, 40960
    s_mul_i32 s4, s4, {32*3072}
    s_mul_i32 s5, s39, 192
    s_add_u32 s23, s4, s5
    s_add_u32 s22, s23, {16*3072}
    s_add_u32 s21, s20, {39*1024}
    v_bfe_u32 v2, v1, 2, 1
    v_bfe_u32 v4, v1, 3, 2
    v_and_b32 v3, 0x23, v1
    v_lshl_add_u32 v3, v2, 4, v3
    v_lshl_add_u32 v3, v4, 2, v3
    v_lshlrev_b32 v3, 4, v3
    v_and_b32 v6, 15, v1
    v_and_b32 v4, 48, v1
    v_mul_u32_u24 v6, 0xc00, v6
    v_add_u32 v6, v6, v4
    v_min_u32 v2, 19, v1
    v_lshlrev_b32 v2, 7, v2
    s_waitcnt lgkmcnt(0)
    v_readfirstlane_b32 s4, v{vM}
    s_cmp_lg_u32 s4, 0
    s_cbranch_scc1 P2_XW_X
    s_cmp_lg_u32 s36, 7
    s_cbranch_scc1 P2_XW
    """)
    poll(A, "P2_X", "s[24:27]", "s44", "v2", f"v{vM}", 0, sleep=opt.get("xsl", 16))
    A(f"""
    v_mov_b32 v{vM}, 1
    ds_write_b32 v7, v{vM}
    s_branch P2_XW_X
    """)
    A.label("P2_XW")
    A(f"""
    s_sleep 2
    ds_read_b32 v{vM}, v7
    s_waitcnt lgkmcnt(0)
    """)
    poll_check(A, f"v{vM}", 0, "P2_XW")
    A.label("P2_XW_X")
    stamp(A, opt, 1)
    NU = opt.get("nu", 7)
    LAG = opt.get("lag", 3)
    P0 = opt.get("p0", 6)
    XPB = opt.get("xpb", 1)

    def xpiece(p):
        r = [[f"buffer_load_dwordx4 {vr(VX+12*p+4*j,4)}, v5, s[24:27], s20 offen offset:{1024*j} sc1"] for j in range(3)]
        if p < 12: r[2].append("s_add_u32 s20, s20, 3072")
        return r
    A(f"buffer_load_dwordx4 {vr(VX+156,4)}, v5, s[24:27], s21 offen sc1")
    for p_ in range(NU):
        for x in sum(xpiece(p_), []): A(x)
    stamp(A, opt, 5, True)
    issued = lambda t: min(13, NU + XPB * max(0, t))
    Pt = [min(12, max(t, min(P0 + 2 * t, issued(t - LAG) - 1))) for t in range(13)]
    assert all(Pt[t] < issued(t) for t in range(13))
    A(f"""
    s_getpc_b64 s[52:53]
    """)
    A.label("P2_PC")
    A(f"""
    s_add_u32 s48, s52, P2_B0-P2_PC
    s_addc_u32 s49, s53, 0
    s_movk_i32 s50, {(2 << Pt[0]) - 1}
    s_mov_b32 s46, 0
    v_add_u32 v{vA}, {13*PS}, v3
    s_branch P2_F1
    """)
    A.label("P2_F0")
    A("s_sleep 1")
    A.label("P2_F1")
    A(f"""
    ds_read_b32 v{vM}, v7 offset:4
    s_waitcnt lgkmcnt(0)
    v_readfirstlane_b32 s4, v{vM}
    s_bitcmp1_b32 s4, 13
    s_cbranch_scc0 P2_F0
    """)
    for n in range(3): A(f"ds_read_b128 {vr(vF+4*(6+n),4)}, v{vA} offset:{3072*n}")
    A(f"s_waitcnt vmcnt({3*NU})")
    for n in range(3):
        A(f"""
        s_waitcnt lgkmcnt({2-n})
        v_mfma_f32_32x32x16_bf16 {vr(vACC+16*n,16)}, {vr(vF+4*(6+n),4)}, {vr(VX+156,4)}, 0
        """)
    A("""
    s_set_gpr_idx_on s46, gpr_idx(SRC1)
    s_branch P2_COLD
    """)

    def mfma(i):
        acc = vACC + 16 * (i // 3)
        A(f"v_mfma_f32_32x32x16_bf16 {vr(acc,16)}, {vr(vF+4*i,4)}, {vr(VX+4*(i%3),4)}, {vr(acc,16)}")

    def read(i):
        A(f"ds_read_b128 {vr(vF+4*i,4)}, v{vA} offset:{1024*i}")

    A.label("P2_DRAIN")
    if opt.get("stamp"): A("s_add_u32 s90, s90, 1")
    for i in range(4, 9):
        if i > 4: A(f"s_waitcnt lgkmcnt({8-i})")
        mfma(i)
    A("s_branch P2_COLD")
    A.label("P2_COLD_S")
    A("s_sleep 1")
    A.label("P2_COLD")
    A(f"""
    ds_read_b32 v{vM}, v7 offset:4
    s_waitcnt lgkmcnt(0)
    v_readfirstlane_b32 s4, v{vM}
    s_andn2_b32 s4, s4, s46
    s_and_b32 s4, s4, s50
    s_cbranch_scc0 P2_COLD_S
    s_ff1_i32_b32 s5, s4
    s_mul_i32 s6, s5, {PS}
    v_add_u32_e64 v{vA}, v3, s6
    s_bitset1_b32 s46, s5
    s_mul_i32 s47, s5, 12
    """)
    for i in range(5): read(i)
    A(f"""
    ds_read_b32 v{vM}, v7 offset:4
    s_set_gpr_idx_idx s47
    s_setpc_b64 s[48:49]
    """)
    for t in range(13):
        A.label(f"P2_B{t}")
        if t == 0 and opt.get("stamp"):
            stamp(A, opt, 3)
            A("s_memtime s[80:81]\ns_waitcnt lgkmcnt(0)")
        xl = sum((xpiece(p_) for p_ in range(issued(t), issued(t + 1))), [])
        xl = [sum(xl[i::3], []) for i in range(3)] if XPB == 1 else [sum(xl[i*XPB:(i+1)*XPB], []) for i in range(3)]
        W = 3 * (issued(t) - Pt[t] - 1)
        last = t == 12
        for i in range(9):
            c = (5, 5, 5, 3, None, 4, 4, 4, 4)[i]
            if last and i > 4: c = 8 - i
            if i == 0: A(f"s_waitcnt vmcnt({W}) lgkmcnt({c})")
            elif c is not None: A(f"s_waitcnt lgkmcnt({c})")
            mfma(i)
            if i < 4: read(5 + i)
            if i < 3:
                for x in xl[i]: A(x)
            if last: continue
            if i == 1:
                A(f"""
                s_add_u32 s48, s52, P2_B{t+1}-P2_PC
                s_addc_u32 s49, s53, 0
                """)
            if i == 2 and Pt[t + 1] != Pt[t]: A(f"s_movk_i32 s50, {(2 << Pt[t+1]) - 1}")
            if i == 3:
                A(f"""
                v_readfirstlane_b32 s4, v{vM}
                s_andn2_b32 s4, s4, s46
                s_and_b32 s4, s4, s50
                s_cbranch_scc0 P2_DRAIN
                s_ff1_i32_b32 s5, s4
                """)
            if i == 4:
                A(f"""
                s_mul_i32 s6, s5, {PS}
                v_add_u32_e64 v{vA}, v3, s6
                """)
            if i >= 4: read(i - 4)
            if i == 5:
                A(f"""
                s_bitset1_b32 s46, s5
                s_mul_i32 s47, s5, 12
                """)
            if i == 8:
                A(f"""
                ds_read_b32 v{vM}, v7 offset:4
                s_set_gpr_idx_idx s47
                """)
    A("s_set_gpr_idx_off")

    def epi(t, o):
        a = vACC + 16 * t
        return ([f"v_cvt_pk_bf16_f32 v{o+j}, v{a+2*j}, v{a+2*j+1}" for j in range(8)] +
                ["s_nop 1"] + [f"v_permlane16_swap_b32 v{o+j}, v{o+4+j}" for j in range(4)] +
                [f"buffer_store_dwordx4 {vr(o,4)}, v6, s[96:99], s23 offen offset:{64*t}",
                 f"buffer_store_dwordx4 {vr(o+4,4)}, v6, s[96:99], s22 offen offset:{64*t}"])
    A("s_nop 0")
    for t in range(3):
        if t == 2:
            stamp(A, opt, 6)
            if opt.get("stamp"):
                A("s_memtime s[82:83]\ns_waitcnt lgkmcnt(0)\ns_sub_u32 s72, s82, s80")
                A("s_and_b32 s90, s90, 127\ns_lshl_b32 s90, s90, 24\ns_or_b32 s72, s72, s90")
        for x in epi(t, vF + 8 * t): A(x)


def descriptor(name, vgpr, accum, sgpr):
    return f""".amdhsa_kernel {name}
  .amdhsa_next_free_vgpr {vgpr}
  .amdhsa_next_free_sgpr {sgpr}
  .amdhsa_accum_offset {accum}
  .amdhsa_group_segment_fixed_size 0
  .amdhsa_kernarg_size 72
  .amdhsa_user_sgpr_count 2
  .amdhsa_user_sgpr_kernarg_segment_ptr 1
  .amdhsa_system_sgpr_workgroup_id_x 1
  .amdhsa_float_denorm_mode_32 3
.end_amdhsa_kernel
"""


def generate(opt):
    out = HEADER
    MAP["m"] = opt.get("map", 2)
    MAP["lf"] = opt.get("lf", 0)
    MAP["ef"] = opt.get("ef", 0)
    MAP["ac"] = opt.get("ac", 0)
    assert MAP["lf"] or not MAP["ef"]
    out += f"; @launch grid=(256,1,1) block=(512,1,1) lds={LDS1 + 1024}\n"
    out += '.amdgcn_target "amdgcn-amd-amdhsa--gfx950"\n.text\n'
    A = Asm()
    out += f".globl {KNAME}\n.p2align 8\n.type {KNAME},@function\n"
    gen_kernel(A, opt)
    out += A.text()
    out += "CODE_END:\n"
    out += '.section .rodata,"a"\n.p2align 6\n'
    out += descriptor(KNAME, 256, 256, 100)
    return out


if __name__ == "__main__":
    path = sys.argv[1] if len(sys.argv) > 1 else "standalone__weight_only_int_quip__prompt.s"
    opt = {}
    for a in sys.argv[2:]:
        k, _, v = a.partition("=")
        opt[k] = int(v) if v else 1
    open(path, "w").write(generate(opt))
    print("wrote", path)
```

```python
import sys

KNAME = "standalone__weight_only_int_quip__prompt_kernel"
HEADER = """; Kernarg layout for this problem (72 bytes, ptrs only, base s[0:1]):
;   offset   0: d_in[0] x  shape=(1, 2048, 640) dtype=bfloat16 strides=(2621440, 1280, 2) contiguous=True
;   offset  16: d_in[2] scales  shape=(20, 1536) dtype=bfloat16 strides=(3072, 2) contiguous=True
;   offset  24: d_in[3] zeros  shape=(20, 1536) dtype=bfloat16 strides=(3072, 2) contiguous=True
;   offset  32: d_in[4] U  shape=(640, 640) dtype=bfloat16 strides=(1280, 2) contiguous=True
;   offset  40: d_in[5] V  shape=(1536, 1536) dtype=bfloat16 strides=(3072, 2) contiguous=True
;   offset  48: d_out     shape=(1, 2048, 1536) dtype=bfloat16 (2 bytes/elem)
"""

XRF = 0
W2F = 64 * 40 * 1024
FLG = W2F + 48 * 40 * 1024
XFLG = FLG + 256 * 256
SFLG = XFLG + 256 * 128
FLG_END = FLG + 64 * 3 * 1024
SA = FLG_END
WS_USED = SA + 40 * 12 * 4096
assert SFLG + 168 * 256 <= FLG_END

X_BYTES = 2048 * 640 * 2
QW_BYTES = 640 * 1536 * 4
SC_BYTES = 20 * 1536 * 2
U_BYTES = 640 * 640 * 2
V_BYTES = 1536 * 1536 * 2
OUT_BYTES = 2048 * 1536 * 2

VSTAGE = 32768
ABASE = 3 * VSTAGE
ASTAGE = 12288
TBL = ABASE + 2 * ASTAGE
LDS1 = TBL + 24576
LFLAG = LDS1
QE = 112
XSTAGE = 32768
POLL_MAX = 40000


class Asm:
    def __init__(self):
        self.lines = []

    def __call__(self, s):
        for l in s.strip("\n").split("\n"):
            if not l.strip(): continue
            self.lines.append("    " + l.strip() if not l.strip().endswith(":") else l.strip())

    def label(self, s):
        self.lines.append(s + ":")

    def comment(self, s):
        self.lines.append("    ; " + s)

    def text(self):
        return "\n".join(self.lines) + "\n"


def vr(a, n):
    return f"v[{a}:{a+n-1}]"


STAMP_OFS = 32 << 20
NSTAMP = 8


def stamp(A, opt, i, wait=False):
    if opt.get("stamp") or ("probe" in opt and i in (0, opt["probe"])):
        A(f"s_memrealtime s[{64+2*i}:{65+2*i}]")
        if wait: A("s_waitcnt lgkmcnt(0)")


def stamp_begin(A, opt):
    if opt.get("stamp") or "probe" in opt:
        for i in range(1, NSTAMP):
            A(f"s_mov_b32 s{64+2*i}, 0")
        A("s_mov_b32 s90, 0")
    stamp(A, opt, 0)


def stamp_end(A, opt):
    if "probe" in opt:
        p = opt["probe"]
        wl, wh = opt.get("pwl", 0), opt.get("pwh", 7)
        gl, gh = opt.get("pgl", 0), opt.get("pgh", 255)
        A(f"""
        s_waitcnt vmcnt(0) lgkmcnt(0)
        s_memrealtime s[78:79]
        s_waitcnt lgkmcnt(0)
        s_cmp_gt_u32 s2, {gh}
        s_cbranch_scc1 PRB_X
        s_cmp_lt_u32 s2, {gl}
        s_cbranch_scc1 PRB_X
        s_cmp_lt_u32 s36, {wl}
        s_cbranch_scc1 PRB_X
        s_cmp_gt_u32 s36, {wh}
        s_cbranch_scc1 PRB_X
        s_cmp_eq_u32 s{64+2*p}, 0
        s_cbranch_scc1 PRB_X
        s_sub_u32 s4, s{64+2*p}, s64
        s_mul_i32 s4, s4, 3
        s_min_u32 s4, s4, 20000
        """)
        A.label("PRB")
        A("""
        s_memrealtime s[6:7]
        s_waitcnt lgkmcnt(0)
        s_sub_u32 s5, s6, s78
        s_cmp_lt_u32 s5, s4
        s_cbranch_scc1 PRB
        """)
        A.label("PRB_X")
    if opt.get("stamp"):
        A("s_waitcnt vmcnt(0) lgkmcnt(0)")
        stamp(A, opt, NSTAMP - 1)
        A(f"""
        s_load_dwordx2 s[56:57], s[0:1], 64
        s_waitcnt lgkmcnt(0)
        s_mov_b32 s58, 0x7fffffff
        s_mov_b32 s59, 0x00020000
        v_lshrrev_b32 v1, 6, v0
        v_lshlrev_b32 v1, 5, v1
        s_lshl_b32 s4, s2, 8
        s_add_u32 s4, s4, {STAMP_OFS}
        """)
        for i in range(NSTAMP):
            A(f"v_mov_b32 v{4+i}, s{64+2*i}")
        A("""
        buffer_store_dwordx4 v[4:7], v1, s[56:59], s4 offen
        buffer_store_dwordx4 v[8:11], v1, s[56:59], s4 offen offset:16
        """)
    A("s_endpgm")


def cst(A, opt, sidx, add):
    if not opt.get("cst"): return
    A(f"""
    s_memtime s[84:85]
    s_add_u32 s86, {sidx}, {add}
    v_cmp_eq_u32 vcc, s86, v1
    s_waitcnt lgkmcnt(0)
    v_mov_b32 v231, s84
    v_cndmask_b32 v230, v230, v231, vcc
    """)


def cst_out(A, opt):
    if not opt.get("cst"): return
    A(f"""
    v_writelane_b32 v230, s88, 48
    s_mov_b64 s[84:85], s[24:25]
    s_mov_b32 s86, 0x7fffffff
    s_mov_b32 s87, 0x00020000
    v_lshlrev_b32 v231, 2, v0
    s_lshl_b32 s4, s2, 11
    s_add_u32 s4, s4, {STAMP_OFS + (1 << 20)}
    buffer_store_dword v230, v231, s[84:87], s4 offen
    """)


def poll_check(A, vdst, dc, again):
    A(f"v_cmp_ne_u32 vcc, 0, {vdst}")
    if dc & 0xffffffff: A(f"s_or_b32 vcc_lo, vcc_lo, {hex(dc & 0xffffffff)}")
    if dc >> 32: A(f"s_or_b32 vcc_hi, vcc_hi, {hex(dc >> 32)}")
    A(f"""
    s_cmp_eq_u64 vcc, -1
    s_cbranch_scc0 {again}
    """)


def poll(A, name, srd, soff, vaddr, vdst, dc, scnt="s7", sleep=0, st=None):
    A(f"s_mov_b32 {scnt}, {POLL_MAX}")
    if sleep: A(f"s_branch {name}_1")
    A.label(name)
    if sleep:
        A(f"s_sleep {sleep}")
        A.label(name + "_1")
    A(f"""
    s_sub_u32 {scnt}, {scnt}, 1
    s_cbranch_scc1 {name}_X
    """)
    if st: st()
    A(f"""
    buffer_load_dword {vdst}, {vaddr}, {srd}, {soff} offen sc1
    s_waitcnt vmcnt(0)
    """)
    A.label(name + "_C")
    poll_check(A, vdst, dc, name)
    A.label(name + "_X")


def ppoll(A, name, srd, soff, vaddr, v0, n, dc, sleep, scnt="s7"):
    A(f"s_mov_b32 {scnt}, {POLL_MAX}")
    for i in range(n - 1):
        A(f"buffer_load_dword v{v0+i}, {vaddr}, {srd}, {soff} offen sc1")
        if sleep: A(f"s_sleep {sleep}")
    A.label(name)
    A(f"""
    s_sub_u32 {scnt}, {scnt}, 1
    s_cbranch_scc1 {name}_X
    """)
    for i in range(n):
        A(f"""
        buffer_load_dword v{v0+(i+n-1)%n}, {vaddr}, {srd}, {soff} offen sc1
        s_waitcnt vmcnt({n-1})
        v_cmp_ne_u32 vcc, 0, v{v0+i}
        """)
        if dc & 0xffffffff: A(f"s_or_b32 vcc_lo, vcc_lo, {hex(dc & 0xffffffff)}")
        if dc >> 32: A(f"s_or_b32 vcc_hi, vcc_hi, {hex(dc >> 32)}")
        A(f"""
        s_cmp_eq_u64 vcc, -1
        s_cbranch_scc1 {name}_X
        """)
        if sleep: A(f"s_sleep {sleep}")
    A(f"s_branch {name}")
    A.label(name + "_X")


DC_W = 0xFFFFFC0000000000
DBG = "s[92:95]"
MAP = {"m": 2}


def p2_tile(A):
    lm = MAP["m"]
    ln = 5 - lm
    xm = 4 - lm
    A(f"""
    s_and_b32 s38, s37, {(1 << xm) - 1}
    s_lshl_b32 s38, s38, {lm}
    s_and_b32 s39, s3, {(1 << lm) - 1}
    s_add_u32 s38, s38, s39
    s_lshr_b32 s39, s37, {xm}
    s_lshl_b32 s39, s39, {ln}
    s_lshr_b32 s4, s3, {lm}
    s_add_u32 s39, s39, s4
    """)
    if MAP["ac"]:
        A(f"""
        s_lshl_b32 s45, s38, 4
        s_add_u32 s45, s45, s39
        s_lshl_b32 s45, s45, 7
        s_add_u32 s44, s45, {FLG + 32768}
        s_add_u32 s45, s45, {FLG}
        """)
        return
    if MAP["ef"]:
        A(f"""
        s_mul_i32 s45, s39, 3
        s_add_u32 s43, s45, 2
        s_lshr_b32 s45, s45, 2
        s_lshr_b32 s43, s43, 2
        s_cmp_eq_u32 s43, s45
        s_cselect_b32 s43, 13, 27
        s_mul_i32 s45, s45, {14*128}
        s_add_u32 s45, s45, {FLG}
        s_mul_i32 s44, s38, {20*128}
        s_add_u32 s44, s44, {FLG + 672*128}
        """)
        return
    if MAP["lf"]:
        A(f"""
        s_mul_i32 s45, s39, {42*128}
        s_add_u32 s45, s45, {FLG}
        s_mul_i32 s44, s38, {20*128}
        s_add_u32 s44, s44, {FLG + 672*128}
        """)
        return
    A(f"""
    s_lshl_b32 s45, s38, 4
    s_add_u32 s45, s45, s39
    s_lshl_b32 s44, s45, 7
    s_add_u32 s44, s44, {XFLG}
    s_lshl_b32 s45, s45, 8
    s_add_u32 s45, s45, {FLG}
    """)


def spoll(A, name, soff, want, sleep, first=True):
    A(f"s_mov_b32 s7, {POLL_MAX}")
    if not first: A(f"s_branch {name}_C")
    elif sleep: A(f"s_branch {name}_1")
    A.label(name)
    if sleep:
        A(f"s_sleep {sleep}")
        A.label(name + "_1")
    A(f"""
    s_sub_u32 s7, s7, 1
    s_cbranch_scc1 {name}_X
    s_buffer_load_dword s61, s[24:27], {soff} glc
    """)
    A.label(name + "_C")
    A(f"""
    s_waitcnt lgkmcnt(0)
    s_cmp_lt_u32 s61, {want}
    s_cbranch_scc1 {name}
    """)
    A.label(name + "_X")


def publish(A, opt, sflag, sshift):
    if MAP["ac"]:
        A(f"""
        v_mov_b32 v2, 1
        v_lshlrev_b32 v3, {sshift}, v1
        s_waitcnt vmcnt(0)
        s_mov_b64 exec, 0xffff
        buffer_atomic_add v2, v3, s[24:27], {sflag} offen sc1
        s_mov_b64 exec, -1
        """)
        stamp(A, opt, 4)
        return
    A(f"""
    v_mov_b32 v2, 1
    v_lshlrev_b32 v3, {sshift}, v1
    s_waitcnt vmcnt(0)
    s_mov_b64 exec, {1 if MAP["lf"] else "0xffff"}
    buffer_store_dword v2, v3, s[24:27], {sflag} offen sc1
    """)
    if opt.get("xap"):
        A(f"""
        v_mov_b32 v3, {LFLAG}
        s_mov_b64 exec, 1
        ds_add_u32 v3, v2 offset:8
        """)
    A("s_mov_b64 exec, -1")
    stamp(A, opt, 4)


def gen_kernel(A, opt):
    A.label(KNAME)
    stamp_begin(A, opt)
    CP0 = opt.get("cp0", 0)

    def cp0():
        A("s_getpc_b64 s[4:5]")
        A.label("P1_PC")
        A("""
        v_lshlrev_b32 v3, 7, v0
        v_min_u32 v3, CODE_END-P1_PC-4, v3
        global_load_dword v250, v3, s[4:5]
        """)
    if CP0 == 1:
        A("""
        s_cmp_ge_u32 s2, 256
        s_cbranch_scc1 K_EXIT
        """)
        cp0()
    A("""
    s_load_dwordx2 s[8:9], s[0:1], 8
    s_load_dwordx2 s[12:13], s[0:1], 40
    s_load_dwordx2 s[16:17], s[0:1], 16
    s_load_dwordx2 s[20:21], s[0:1], 24
    s_load_dwordx2 s[28:29], s[0:1], 0
    s_load_dwordx2 s[32:33], s[0:1], 32
    s_load_dwordx2 s[24:25], s[0:1], 64
    s_load_dwordx2 s[92:93], s[0:1], 56
    s_load_dwordx2 s[96:97], s[0:1], 48
    """)
    if CP0 != 1:
        A("""
        s_cmp_ge_u32 s2, 256
        s_cbranch_scc1 K_EXIT
        """)
    if CP0 == 2: cp0()
    A("""
    v_and_b32 v1, 63, v0
    v_lshrrev_b32 v2, 6, v0
    """)
    if not CP0:
        A("s_getpc_b64 s[4:5]")
        A.label("P1_PC")
    else:
        A("s_lshr_b32 s3, s2, 3")
    A(f"""
    v_readfirstlane_b32 s36, v2
    """)
    CP = opt.get("cp", 0)
    if CP0:
        A(f"""
        s_and_b32 s37, s2, 7
        s_cmp_lg_u32 s36, 7
        s_cbranch_scc1 P1_NOPF
        """)
    elif CP:
        A(f"""
        s_lshr_b32 s3, s2, 3
        s_lshl_b32 s37, s3, 2
        v_min_u32 v3, {CP-1}, v1
        v_add_u32 v3, s37, v3
        v_and_b32 v3, 127, v3
        v_lshlrev_b32 v3, 7, v3
        v_min_u32 v3, CODE_END-P1_PC-4, v3
        s_and_b32 s37, s2, 7
        s_cmp_lg_u32 s36, {opt.get("cpw", 7)}
        s_cbranch_scc1 P1_NOPF
        global_load_dword v250, v3, s[4:5]
        """)
    else:
        A(f"""
        v_lshlrev_b32 v3, 7, v1
        v_add_u32 v4, 0x2000, v3
        v_min_u32 v4, CODE_END-P1_PC-4, v4
        s_lshr_b32 s3, s2, 3
        s_and_b32 s37, s2, 7
        s_cmp_lg_u32 s36, 7
        s_cbranch_scc1 P1_NOPF
        global_load_dword v250, v3, s[4:5]
        global_load_dword v251, v4, s[4:5]
        """)
    A(f"""
    v_mov_b32 v2, 0
    v_mov_b32 v3, 0
    v_mov_b32 v4, {LFLAG}
    ds_write_b64 v4, v[2:3]
    """)
    if opt.get("nb") or opt.get("xw"): A("ds_write_b64 v4, v[2:3] offset:8")
    A.label("P1_NOPF")
    A(f"""
    s_mov_b32 s11, 0x00020000
    s_mov_b32 s15, 0x00020000
    s_mov_b32 s27, 0x00020000
    s_mov_b32 s26, {WS_USED}
    s_movk_i32 s94, 256
    s_mov_b32 s95, 0x00020000
    s_mov_b32 s98, {OUT_BYTES}
    s_mov_b32 s99, 0x00020000
    v_lshlrev_b32 v5, 4, v1
    s_cmp_ge_u32 s3, 21
    s_cbranch_scc1 P1_XR
    """)
    gen_w2(A, opt)
    A.label("P1_XR")
    gen_xr(A, opt)
    (gen_p2d if opt.get("dy") else gen_p2)(A, opt)
    A.label("K_EXIT")
    stamp_end(A, opt)


def gate_addr(A, v, m=7):
    A(f"""
    v_and_b32 {v}, {m}, v1
    v_lshlrev_b32 {v}, 2, {v}
    """)


def gen_w2(A, opt):
    NQ = 2
    SH = opt.get("sh", 0)
    RING = 3 * VSTAGE
    RG = opt.get("rg", 2)
    sW, sLOC, sXCD = "s36", "s3", "s37"
    sMI, sNI = "s40", "s41"
    sC = "s49"
    sVOFS = "s43"
    vVO = 6
    if opt.get("cst"): A("s_memtime s[88:89]")
    A(f"""
    s_mul_i32 s4, {sLOC}, 171
    s_lshr_b32 s4, s4, 9
    s_mul_i32 s5, s4, 3
    s_sub_u32 s5, {sLOC}, s5
    s_lshr_b32 s6, {sXCD}, 2
    s_mul_i32 s6, s6, 7
    s_add_u32 {sMI}, s6, s4
    s_and_b32 s6, {sXCD}, 3
    s_mul_i32 s6, s6, 3
    s_add_u32 {sNI}, s6, s5
    s_mul_i32 s42, {sMI}, 3
    s_mov_b32 s57, s5
    """)
    RL = opt.get("rl", 0)
    if RL:
        A(f"""
        s_add_u32 s58, s4, s5
        s_mul_i32 s6, s58, 171
        s_lshr_b32 s6, s6, 9
        s_mul_i32 s6, s6, 3
        s_sub_u32 s58, s58, s6
        s_cmp_ge_u32 s4, 3
        s_cselect_b32 s6, 3, 2
        s_cmp_eq_u32 s58, 2
        s_cselect_b32 s58, s6, s58
        """)
    A(f"""
    s_sub_u32 s4, {sW}, 4
    s_cmp_lt_u32 s4, 3
    s_cbranch_scc1 W2_DEQ
    s_mov_b32 s14, {V_BYTES}
    v_lshrrev_b32 v2, 4, v1
    v_and_b32 v3, 15, v1
    v_lshlrev_b32 v4, 1, v2
    v_xor_b32 v3, v3, v4
    v_lshlrev_b32 v3, 4, v3
    v_mul_u32_u24 v4, 0xc00, v2
    v_add_u32 v{vVO}, v3, v4
    v_add_u32 v{vVO+1}, 11264, v{vVO}
    v_xor_b32 v3, 0x80, v{vVO}
    v_add_u32 v{vVO+2}, {2*11264}, v3
    v_add_u32 v{vVO+3}, {3*11264}, v3
    s_lshl_b32 {sVOFS}, {sNI}, 8
    s_cmp_lt_u32 {sW}, 4
    s_cbranch_scc1 W2_MFMA
    """)

    def v_group():
        for j in range(4):
            A(f"buffer_load_dwordx4 v{vVO+j}, s[12:15], {sVOFS} offen offset:{1024*j} lds")

    GPC = opt.get("gpc", 2 if SH else 4)
    for g in range(1, 8):
        for j in range(4):
            A(f"v_add_u32 v{vVO+4*g+j}, {g*16*3072}, v{vVO+j}")
    gate_addr(A, "v40", 15 if opt.get("fw") else 7)
    LP, LG = opt.get("lp", 0), opt.get("lg", 1)
    A(f"""
    s_mov_b32 m0, {VSTAGE}
    s_mov_b32 {sC}, 1
    """)
    if RL:
        A(f"""
        s_cmp_eq_u32 s58, 3
        s_cselect_b32 s59, {VSTAGE}, 0
        s_cselect_b32 s60, 393216, 0
        s_sub_u32 m0, m0, s59
        s_sub_u32 {sVOFS}, {sVOFS}, s60
        """)
    A("s_waitcnt lgkmcnt(0)")
    stamp(A, opt, 1)
    cst(A, opt, 0, 49)
    ST = 7 if RL else opt.get("st", 0)
    if ST & 1:
        cst(A, opt, 0, 50)
        A("s_barrier")
        cst(A, opt, 0, 51)
        A(f"s_setprio {opt.get('lpr', 3)}")
    A.label("W2L_LOOP")
    A(f"""
    s_add_u32 {sVOFS}, {sVOFS}, 393216
    s_cmp_lg_u32 {sC}, {GPC}
    s_cbranch_scc1 W2L_NG
    buffer_load_dword v42, v40, {DBG}, 0 offen sc1
    """)
    A.label("W2L_NG")
    for g in range(8):
        if g == 6: A("s_waitcnt vmcnt(54)")
        for j in range(4):
            A(f"buffer_load_dwordx4 v{vVO+4*g+j}, s[12:15], {sVOFS} offen offset:{1024*j} lds")
            if j == 3: A("s_add_u32 m0, m0, 4096")
            if j == 3 and g < 7: A("s_nop 0")
            if opt.get("lpa") and (4*g+j+1) % opt.get("lpg", 1) == 0:
                n_ = opt["lpa"]
                while n_ > 0:
                    A(f"s_nop {min(n_, 16) - 1}"); n_ -= 16
    A(f"""
    s_cmp_ge_u32 m0, {RING}
    s_cselect_b32 m0, 0, m0
    """)
    if RL:
        A(f"""
        s_cmp_eq_u32 s59, 0
        s_cbranch_scc1 W2L_R
        s_add_u32 m0, m0, s59
        s_add_u32 {sVOFS}, {sVOFS}, s60
        s_mov_b32 s59, 0
        s_waitcnt vmcnt(0)
        """)
        A.label("W2L_R")
    if not ST & 1:
        A(f"""
        s_cmp_lg_u32 {sC}, 1
        s_cbranch_scc1 W2L_NT
        """)
        cst(A, opt, 0, 50)
        A("s_barrier")
        cst(A, opt, 0, 51)
        A(f"s_setprio {opt.get('lpr', 3)}")
        A.label("W2L_NT")
    cst(A, opt, sC, 31)
    A(f"""
    s_waitcnt vmcnt(32)
    s_cmp_lg_u32 {sC}, {GPC}
    s_cbranch_scc1 W2L_G_X
    """)
    poll_check(A, "v42", 0, "W2L_GS")
    A.label("W2L_G_X")
    cst(A, opt, sC, 15)
    A("s_barrier")
    cst(A, opt, sC, -1)
    A(f"""
    s_add_u32 {sC}, {sC}, 1
    s_cmp_lt_u32 {sC}, {12 - (1 if LP else 0)}
    s_cbranch_scc1 W2L_LOOP
    """)
    if LP:
        A(f"s_add_u32 {sVOFS}, {sVOFS}, 393216")
        for g in range(8):
            if g == 6: A("s_waitcnt vmcnt(54)")
            for j in range(4):
                A(f"buffer_load_dwordx4 v{vVO+4*g+j}, s[12:15], {sVOFS} offen offset:{1024*j} lds")
                if j == 3: A("s_add_u32 m0, m0, 4096")
                if (4 * g + j + 1) % LG == 0 and 4 * g + j < 31:
                    n = LP
                    while n > 0:
                        A(f"s_nop {min(n, 16) - 1}"); n -= 16
                elif j == 3 and g < 7: A("s_nop 0")
        cst(A, opt, sC, 31)
        A("s_waitcnt vmcnt(32)")
        cst(A, opt, sC, 15)
        A("s_barrier")
        cst(A, opt, sC, -1)
    EF = MAP["ef"]

    def early_flag():
        nsleep(A, opt.get("pd", 0))
        A(f"""
        s_mov_b64 exec, 1
        buffer_store_dword v41, v40, s[24:27], s51 offen sc1
        s_mov_b64 exec, -1
        """)
        stamp(A, opt, 4)
    if EF:
        A(f"""
        s_mul_i32 s51, {sNI}, 14
        s_add_u32 s51, s51, {sMI}
        s_lshl_b32 s51, s51, 7
        s_add_u32 s51, s51, {FLG}
        v_mov_b32 v41, 1
        """)
        if EF == 10: early_flag()
        A(f"""
        s_waitcnt vmcnt({1 if EF == 10 else 0})
        s_barrier
        """)
        if EF == 11: early_flag()
        A("s_barrier")
        if EF == 12: early_flag()
        A("s_setprio 0")
    elif opt.get("nb"):
        A("s_setprio 0")
        if opt["nb"] == 2 and MAP["ac"]:
            p2_tile(A)
            nsleep(A, opt.get("xpd", 0))
            A(f"""
            s_buffer_load_dword s61, s[24:27], s44 glc
            v_mov_b32 v4, {LFLAG}
            v_mov_b32 v3, 1
            s_waitcnt vmcnt(0) lgkmcnt(0)
            s_cmp_lt_u32 s61, 20
            s_cbranch_scc1 W2L_NX
            ds_write_b32 v4, v3
            s_waitcnt lgkmcnt(0)
            """)
            A.label("W2L_NX")
        elif opt["nb"] == 2:
            p2_tile(A)
            A(f"""
            v_min_u32 v2, 19, v1
            v_lshlrev_b32 v2, 7, v2
            buffer_load_dword v3, v2, s[24:27], s44 offen sc1
            v_mov_b32 v4, {LFLAG}
            s_waitcnt vmcnt(0)
            """)
            poll_check(A, "v3", 0, "W2L_NX")
            A("""
            ds_write_b32 v4, v3
            s_waitcnt lgkmcnt(0)
            """)
            A.label("W2L_NX")
        A("""
        s_waitcnt vmcnt(0)
        s_barrier
        """)
    else:
        A(f"""
        s_setprio 0
        s_waitcnt vmcnt(0)
        s_barrier
        s_barrier
        """)
    cst_out(A, opt)
    A("s_branch P2_MM")
    A.label("W2L_GS")
    A(f"s_mov_b32 s7, {POLL_MAX}")
    A.label("W2L_G")
    A(f"""
    s_sub_u32 s7, s7, 1
    s_cbranch_scc1 W2L_G_X
    buffer_load_dword v42, v40, {DBG}, 0 offen sc1
    s_waitcnt vmcnt(0)
    """)
    poll_check(A, "v42", 0, "W2L_G")
    A("s_branch W2L_G_X")
    A.label("W2_DEQ")
    sB = "s38"
    sQOFS = "s43"
    vQO = 6
    vAW = 14
    vTB = 22
    U_ = 24
    Ft = 40
    O = 48
    vQ = 52
    QS = 32
    vAP = 116
    vP = 124
    vPL, vPA = 156, 157
    sCS, sPK, sQF = "s39", "s45", "s46"
    A(f"""
    s_mov_b32 {sB}, s4
    s_add_u32 s4, s42, {sB}
    s_cmp_ge_u32 s4, 40
    s_cbranch_scc1 W2D_IDLE
    s_mul_i32 {sQOFS}, s4, {16*6144}
    """)
    if SH:
        A(f"""
        s_mul_i32 {sPK}, s4, {12*4096}
        s_add_u32 {sPK}, {sPK}, {SA + 2*4096}
        """)
    A(f"""
    s_lshr_b32 s6, s4, 1
    s_lshr_b32 s5, s42, 1
    s_sub_u32 s6, s6, s5
    s_mul_i32 s6, s6, 6144
    s_add_u32 s6, s6, {TBL}
    s_mov_b32 s10, {QW_BYTES}
    v_lshrrev_b32 v2, 5, v1
    v_and_b32 v3, 31, v1
    v_lshlrev_b32 v4, 4, v3
    v_mul_u32_u24 v{vQO}, 0x1800, v2
    v_add_u32 v{vQO}, v{vQO}, v4
    v_add_u32 v{vTB}, s6, v4
    """)
    QR = opt.get("qr", 3)
    A(f"s_mul_i32 s57, s57, {QR}")
    for i in range(7, -1, -1):
        A(f"""
        s_add_u32 s4, s57, {i}
        s_and_b32 s4, s4, 7
        s_mul_i32 s4, s4, 12288
        v_add_u32 v{vQO+i}, s4, v{vQO}
        """)
    A("s_waitcnt lgkmcnt(0)")
    stamp(A, opt, 1)
    cst(A, opt, 0, 49)

    def t_read(n):
        u = U_ + 8 * (n & 1)
        A(f"""
        ds_read_b128 {vr(u,4)}, v{vTB}
        ds_read_b128 {vr(u+4,4)}, v{vTB} offset:12288
        v_add_u32 v{vTB}, 512, v{vTB}
        """)

    if RL:
        A("""
        s_cmp_lg_u32 s58, 1
        s_cbranch_scc1 W2D_R0
        """)
        for i in range(8):
            A(f"buffer_load_dwordx4 {vr(vQ+QS+4*i,4)}, v{vQO+i}, s[8:11], {sQOFS} offen offset:512")
        A.label("W2D_R0")
    for u in range(1 if ST & 2 else NQ):
        for i in range(8):
            A(f"buffer_load_dwordx4 {vr(vQ+QS*u+4*i,4)}, v{vQO+i}, s[8:11], {sQOFS} offen offset:{512*u}")
    A(f"""
    s_add_u32 {sQOFS}, {sQOFS}, 512
    s_lshl_b32 s4, {sB}, 12
    s_add_u32 s4, s4, {ABASE}
    v_bfe_u32 v3, v1, 1, 4
    v_xor_b32 v4, v3, v2
    v_lshlrev_b32 v4, 4, v4
    v_lshl_add_u32 v4, v2, 8, v4
    v_and_b32 v3, 1, v1
    v_lshl_add_u32 v4, v3, 3, v4
    v_add_u32 v{vAW}, s4, v4
    """)
    if SH:
        for i in range(8):
            A(f"""
            v_xor_b32 v3, {32*i}, v{vAW}
            v_add_u32 v{vAP+i}, {512*i}, v3
            """)
        A(f"""
        s_mul_i32 {sQF}, {sMI}, 12
        s_add_u32 {sQF}, {sQF}, {sNI}
        s_lshl_b32 {sQF}, {sQF}, 2
        s_add_u32 {sQF}, {sQF}, {sB}
        s_lshl_b32 {sQF}, {sQF}, 6
        s_add_u32 {sQF}, {sQF}, {SFLG}
        s_movk_i32 {sCS}, 100
        v_max_u32 v{vPA}, {SH}, v1
        v_min_u32 v{vPA}, 11, v{vPA}
        v_lshlrev_b32 v{vPA}, 2, v{vPA}
        v_mov_b32 v{vPL}, 0
        """)
    for i in range(7, -1, -1):
        A(f"""
        s_add_u32 s4, s57, {i}
        s_and_b32 s4, s4, 7
        s_lshl_b32 s5, s4, 5
        s_lshl_b32 s4, s4, 9
        v_xor_b32 v3, s5, v{vAW}
        v_add_u32 v{vAW+i}, s4, v3
        """)
    A(f"s_mov_b32 {sC}, 0")
    cst(A, opt, 0, 50)
    if opt.get("cst") and not ST & 2:
        A("s_waitcnt vmcnt(8)")
        cst(A, opt, 0, 52)
    A("s_barrier")
    cst(A, opt, 0, 51)
    A(f"s_setprio {opt.get('dpr', 3)}")
    t_read(0)
    if ST & 2:
        if RL:
            A("""
            s_cmp_lg_u32 s58, 1
            s_cbranch_scc1 W2D_R1
            s_waitcnt vmcnt(0)
            s_branch W2D_R2
            """)
            A.label("W2D_R1")
        for i in range(8):
            A(f"buffer_load_dwordx4 {vr(vQ+QS+4*i,4)}, v{vQO+i}, s[8:11], {sQOFS} offen")
        if RL: A.label("W2D_R2")
        if opt.get("cst"):
            cst(A, opt, 0, 53)
            A("s_waitcnt vmcnt(8)")
            cst(A, opt, 0, 52)
    A("s_waitcnt lgkmcnt(0)")
    UN = 2

    def sload(n, sofs):
        for j in range(4):
            A(f"buffer_load_dwordx4 {vr(vP+16*n+4*j,4)}, v5, s[24:27], {sofs} offen offset:{1024*j} sc1")

    A.label("W2D_LOOP")
    for n in range(UN):
        u = n % NQ
        q = vQ + QS * u
        S = U_ + 8 * (n & 1)
        if SH:
            A(f"""
            s_add_u32 s5, {sC}, {n}
            s_lshl_b32 s47, s5, 12
            s_add_u32 s47, s47, {sPK}
            s_cmp_ge_u32 s5, {sCS}
            s_cbranch_scc1 W2D_PK{n}
            """)
        t_read(n + 1)
        A(f"s_add_u32 {sQOFS}, {sQOFS}, 512")
        if SH:
            A(f"""
            s_add_u32 s6, s5, 1
            s_min_u32 s7, {sCS}, 12
            s_cmp_lt_u32 s6, s7
            s_waitcnt vmcnt(8)
            s_cbranch_scc1 W2D_NT{n}
            s_cmp_lt_u32 s6, 12
            s_waitcnt vmcnt(4)
            s_cbranch_scc1 W2D_NT{n}
            s_waitcnt vmcnt(0)
            """)
            A.label(f"W2D_NT{n}")
            A(f"""
            s_add_u32 s6, s5, 2
            s_cmp_lt_u32 {sCS}, 100
            s_cbranch_scc1 W2D_E{n}
            v_cmp_ne_u32 vcc, 0, v{vPL}
            s_max_u32 s7, s6, {SH}
            s_cmp_eq_u64 vcc, -1
            s_cselect_b32 {sCS}, s7, {sCS}
            s_cbranch_scc1 W2D_E{n}
            s_cmp_lt_u32 s5, {max(GPC, opt.get("sp0", 0))}
            s_cbranch_scc1 W2D_E{n}
            buffer_load_dword v{vPL}, v{vPA}, s[24:27], {sQF} offen sc1
            """)
            A.label(f"W2D_E{n}")
            A(f"""
            s_cmp_gt_u32 s6, 11
            s_cbranch_scc1 W2D_F{n}
            s_cmp_lt_u32 s6, {sCS}
            s_cbranch_scc1 W2D_F{n}
            """)
            sload(n, "s47")
            A.label(f"W2D_F{n}")
            A(f"""
            s_min_u32 s7, {sCS}, 12
            s_cmp_lt_u32 s6, s7
            """)
        else:
            A(f"""
            s_cmp_lt_u32 {sC}, {12-NQ-n+1}
            s_waitcnt vmcnt({8*(NQ-1)})
            s_cbranch_scc1 W2D_NT{n}
            s_waitcnt vmcnt({8*min(NQ-1, max(0, UN-1-n))})
            """)
            A.label(f"W2D_NT{n}")
            A(f"s_cmp_lt_u32 {sC}, {opt.get('noq', 12)-NQ-n}")
        for i in range(8):
            qq = q + 4 * i
            f = Ft + 4 * (i & 1)
            o = O + 2 * (i & 1)
            WL = opt.get("wl", 0)
            if WL: o = 160 + 2 * i
            if opt.get("bf") == 2:
                for j in range(4): A(f"v_bfe_u32 v{f+j}, v{qq+j}, 0, 3")
                for j in range(4): A(f"v_fma_f32 v{f+j}, v{f+j}, v{S+j}, v{S+4+j}")
                A(f"""
                v_cvt_pk_bf16_f32 v{o}, v{f}, v{f+1}
                v_cvt_pk_bf16_f32 v{o+1}, v{f+2}, v{f+3}
                """)
            elif opt.get("bf"):
                for j in range(4): A(f"v_bfe_u32 v{f+j}, v{qq+j}, 0, 3")
                A(f"""
                v_pk_fma_f32 {vr(f,2)}, {vr(f,2)}, {vr(S,2)}, {vr(S+4,2)}
                v_pk_fma_f32 {vr(f+2,2)}, {vr(f+2,2)}, {vr(S+2,2)}, {vr(S+6,2)}
                v_cvt_pk_bf16_f32 v{o}, v{f}, v{f+1}
                v_cvt_pk_bf16_f32 v{o+1}, v{f+2}, v{f+3}
                """)
            else:
              A(f"""
            v_fma_f32 v{f}, v{qq}, v{S}, v{S+4}
            v_fma_f32 v{f+1}, v{qq+1}, v{S+1}, v{S+5}
            v_fma_f32 v{f+2}, v{qq+2}, v{S+2}, v{S+6}
            v_fma_f32 v{f+3}, v{qq+3}, v{S+3}, v{S+7}
            v_cvt_pk_bf16_f32 v{o}, v{f}, v{f+1}
            v_cvt_pk_bf16_f32 v{o+1}, v{f+2}, v{f+3}
            """)
            if i + 1 == WL:
                for ii in range(WL): A(f"ds_write_b64 v{vAW+ii}, {vr(160+2*ii,2)} offset:{ASTAGE*(n&1)}")
            elif i + 1 > WL:
                A(f"ds_write_b64 v{vAW+i}, {vr(o,2)} offset:{ASTAGE*(n&1)}")
            if (i + 1) % RG == 0:
                A(f"s_cbranch_scc0 W2D_SK{n}_{i}")
                for ii in range(i + 1 - RG, i + 1):
                    A(f"buffer_load_dwordx4 {vr(q+4*ii,4)}, v{vQO+ii}, s[8:11], {sQOFS} offen")
                A.label(f"W2D_SK{n}_{i}")
        A("s_waitcnt lgkmcnt(0)")
        if SH: A.label(f"W2D_J{n}")
        cst(A, opt, sC, 16 + n)
        A("s_barrier")
        cst(A, opt, sC, n)
    A(f"""
    s_add_u32 {sC}, {sC}, {UN}
    s_cmp_lt_u32 {sC}, 12
    s_cbranch_scc1 W2D_LOOP
    """)
    A("s_setprio 0")
    if SH and opt.get("stamp"): A(f"s_mov_b32 s90, {sCS}")
    if not opt.get("nb"): A("s_barrier")
    cst_out(A, opt)
    A("s_branch P2_MM")
    if SH:
        for n in range(UN):
            A.label(f"W2D_PK{n}")
            A(f"""
            s_cmp_lt_u32 s5, 11
            s_waitcnt vmcnt(4)
            s_cbranch_scc1 W2D_PW{n}
            s_waitcnt vmcnt(0)
            """)
            A.label(f"W2D_PW{n}")
            for i in range(8):
                A(f"ds_write_b64 v{vAP+i}, {vr(vP+16*n+2*i,2)} offset:{ASTAGE*(n&1)}")
            A(f"""
            s_cmp_gt_u32 s5, 9
            s_waitcnt lgkmcnt(0)
            s_cbranch_scc1 W2D_J{n}
            """)
            sload(n, "s47")
            A(f"s_branch W2D_J{n}")
    A.label("W2D_IDLE")
    A(f"""
    s_mov_b32 {sC}, 0
    s_waitcnt lgkmcnt(0)
    """)
    A.label("W2D_IDL")
    A(f"""
    s_barrier
    s_add_u32 {sC}, {sC}, 1
    s_cmp_lt_u32 {sC}, {13 if opt.get("nb") else 14}
    s_cbranch_scc1 W2D_IDL
    s_branch P2_MM
    """)
    A.label("W2_MFMA")
    sCST = "s45"
    vAR = 10
    vBR = 14
    vT0, vT1 = 16, 17
    vST = 18
    vACC = 20
    vF = 44
    P = vF
    if ST & 8:
        A(f"""
        s_lshr_b32 s5, {sMI}, 1
        s_add_u32 s5, s5, {sW}
        s_and_b32 s5, s5, 3
        """)
    A(f"""
    s_lshl_b32 s4, {"s5" if ST & 8 else sW}, 13
    s_mov_b32 m0, s4
    s_mul_i32 s4, {"s5" if ST & 8 else sW}, {32*3072}
    s_add_u32 {sVOFS}, {sVOFS}, s4
    s_lshr_b32 s6, s42, 1
    s_mul_i32 s6, s6, 3072
    s_mov_b32 s18, {SC_BYTES}
    s_mov_b32 s19, 0x00020000
    s_mov_b32 s22, {SC_BYTES}
    s_mov_b32 s23, 0x00020000
    v_and_b32 v2, 0xff, v0
    v_lshlrev_b32 v19, 3, v2
    """)
    if ST & 4:
        A(f"""
        s_lshr_b32 s4, {sW}, 1
        s_lshl_b32 s4, s4, 11
        v_add_u32 v19, s4, v19
        s_mov_b32 s56, s6
        v_mov_b32 v{vT0}, v19
        """)
        if RL:
            A(f"""
            s_cmp_eq_u32 s58, 3
            s_cselect_b32 s4, {VSTAGE}, 0
            s_cselect_b32 s5, 393216, 0
            s_add_u32 m0, m0, s4
            s_add_u32 {sVOFS}, {sVOFS}, s5
            """)
        else:
            A(f"""
            s_add_u32 s58, s57, {sMI}
            s_and_b32 s58, s58, {1 if ST & 16 else 0}
            """)
    A("s_waitcnt lgkmcnt(0)")
    stamp(A, opt, 1)
    cst(A, opt, 0, 49)

    def v0_loads():
        v_group()
        A(f"""
        s_add_u32 m0, m0, 4096
        s_add_u32 {sVOFS}, {sVOFS}, {16*3072}
        """)
        v_group()
        if not RL: s12_loads()

    def s12_loads():
        for j in range(1, 3):
            A(f"""
            buffer_load_dwordx2 {vr(P+4*j,2)}, v{vT0}, s[16:19], s56 offen offset:{1024*j}
            buffer_load_dwordx2 {vr(P+4*j+2,2)}, v{vT0}, s[20:23], s56 offen offset:{1024*j}
            """)
    if ST & 4:
        A(f"""
        buffer_load_dwordx2 {vr(P,2)}, v19, s[16:19], s6 offen
        buffer_load_dwordx2 {vr(P+2,2)}, v19, s[20:23], s6 offen
        {"s_cmp_lt_u32 s58, 2" if RL else "s_cmp_lg_u32 s58, 0"}
        s_cbranch_scc1 W2M_VA
        """)
        v0_loads()
        A.label("W2M_VA")
        if RL: s12_loads()
    else:
        for j in range(2):
            A(f"""
            buffer_load_dwordx2 {vr(P+4*j,2)}, v19, s[16:19], s6 offen offset:{2048*j}
            buffer_load_dwordx2 {vr(P+4*j+2,2)}, v19, s[20:23], s6 offen offset:{2048*j}
            """)
        A(f"""
        s_add_u32 s6, s6, 4096
        buffer_load_dwordx2 {vr(P+8,2)}, v19, s[16:19], s6 offen
        buffer_load_dwordx2 {vr(P+10,2)}, v19, s[20:23], s6 offen
        """)
        v_group()
        A(f"""
        s_add_u32 m0, m0, 4096
        s_add_u32 {sVOFS}, {sVOFS}, {16*3072}
        """)
        v_group()
    A(f"""
    v_lshlrev_b32 v19, 1, v19
    v_add_u32 v19, {TBL}, v19
    v_and_b32 v2, 15, v1
    v_lshrrev_b32 v3, 4, v1
    v_xor_b32 v4, v2, v3
    v_lshlrev_b32 v4, 4, v4
    v_lshl_add_u32 v4, v2, 8, v4
    v_add_u32 v{vAR}, {ABASE}, v4
    v_xor_b32 v{vAR+1}, 64, v{vAR}
    v_xor_b32 v{vAR+2}, 128, v{vAR}
    v_xor_b32 v{vAR+3}, 192, v{vAR}
    v_bfe_u32 v2, v1, 2, 2
    v_and_b32 v4, 1, v3
    v_lshl_or_b32 v4, v4, 2, v2
    s_lshl_b32 s5, {sW}, 1
    v_xor_b32 v4, s5, v4
    v_lshlrev_b32 v4, 5, v4
    v_lshl_add_u32 v2, v3, 3, v2
    v_lshl_add_u32 v4, v2, 8, v4
    v_and_b32 v2, 3, v1
    v_lshl_add_u32 v{vBR}, v2, 3, v4
    v_xor_b32 v{vBR+1}, 32, v{vBR}
    s_mov_b32 {sCST}, 0
    s_mov_b32 {sC}, 0
    s_lshl_b32 s4, {sNI}, 2
    s_add_u32 s4, s4, {sW}
    s_mul_i32 s5, s4, 40
    s_add_u32 s5, s5, s42
    s_lshl_b32 s5, s5, 10
    s_add_u32 s50, s5, {W2F}
    s_mul_i32 s5, s4, 171
    s_lshr_b32 s5, s5, 9
    s_mul_i32 s6, s5, 3
    s_sub_u32 s6, s4, s6
    s_mul_i32 s6, s6, 14
    s_add_u32 s6, s6, {sMI}
    s_lshl_b32 s6, s6, 2
    s_lshl_b32 s5, s5, 8
    s_add_u32 s5, s5, s6
    s_add_u32 s51, s5, {FLG}
    """)
    if MAP["ac"]:
        A(f"""
        s_mul_i32 s51, s4, 171
        s_lshr_b32 s51, s51, 9
        s_lshl_b32 s51, s51, 7
        s_add_u32 s51, s51, {FLG}
        """)
    elif MAP["lf"]:
        A(f"""
        s_mul_i32 s51, s4, 14
        s_add_u32 s51, s51, {sMI}
        s_lshl_b32 s51, s51, 7
        s_add_u32 s51, s51, {FLG}
        """)
    A(f"""
    s_mov_b32 s53, {11 if MAP["ac"] else 12}
    s_mov_b32 s54, {hex((127+149-QE) << 23)}
    s_mov_b32 s55, {hex((127+149-QE) << 23)}
    s_mov_b32 s46, 0xffff0000
    s_mov_b32 s47, {hex((127+QE) << 23)}
    s_mov_b32 s48, {hex(0x80000000 | ((127+QE-149) << 23))}
    v_bfe_u32 v3, v1, 4, 1
    v_lshrrev_b32 v4, 5, v1
    v_and_b32 v{vST}, 15, v1
    v_lshl_add_u32 v{vST}, v3, 5, v{vST}
    v_lshl_add_u32 v{vST}, v4, 4, v{vST}
    v_lshlrev_b32 v{vST}, 4, v{vST}
    """)
    FC = opt.get("fc", 4)
    if FC > 50: FC = -1
    if opt.get("fw"): EF = 0
    if EF and FC < 0:
        assert not (ST & 4) and not RL
        for i in range(4): A(f"v_mov_b32 v{204+i}, -1")
        A(f"""
        s_cmp_eq_u32 {sMI}, 13
        s_cselect_b32 s4, 0, 1024
        s_add_u32 s5, s50, s4
        s_add_u32 s4, s5, s4
        buffer_store_dwordx4 v[204:207], v5, s[24:27], s50 offen sc1
        buffer_store_dwordx4 v[204:207], v5, s[24:27], s5 offen sc1
        buffer_store_dwordx4 v[204:207], v5, s[24:27], s4 offen sc1
        """)
    for i in range(0, 24, 2):
        A(f"v_mov_b64 {vr(vACC+i,2)}, 0")
    for i in range(0, 80, 2):
        A(f"v_mov_b64 {vr(vF+80+i,2)}, 0")
    if RL:
        A(f"""
        s_cmp_ge_u32 s58, 2
        s_cbranch_scc1 W2M_VB
        s_waitcnt vmcnt(0)
        """)
        A.label("W2M_VB")
    elif ST & 4:
        A(f"""
        s_cmp_eq_u32 s58, 0
        s_cbranch_scc1 W2M_VB
        """)
        nsleep(A, opt.get("vd", 0))
        v0_loads()
        A.label("W2M_VB")
    for j in range(3):
        q = P + 4 * j
        u = P + 16 + 8 * j
        if RL and j == 1:
            A(f"""
            s_cmp_ge_u32 s58, 2
            s_cbranch_scc1 W2M_VC
            s_setprio 3
            """)
            v0_loads()
            A("s_setprio 0")
            A("s_branch W2M_VD")
            A.label("W2M_VC")
            A("s_waitcnt vmcnt(0)")
            A.label("W2M_VD")
        if RL:
            if j == 0: A("s_waitcnt vmcnt(12)")
        elif ST & 4:
            A(f"s_waitcnt vmcnt({(12, 2, 0)[j]})")
            if j == 1: cst(A, opt, 0, 52)
        else:
            A(f"s_waitcnt vmcnt({8 + 4 - 2*j + (3 if EF and FC < 0 else 0)})")
        if j == 0: cst(A, opt, 0, 53)
        scale8(A, u, q, q + 2)
        TS = 2048 if ST & 4 else 4096
        A(f"""
        ds_write_b128 v19, {vr(u,4)} offset:{TS*j}
        ds_write_b128 v19, {vr(u+4,4)} offset:{TS*j+12288}
        """)
        if j == (0 if ST & 4 else 2):
            A("s_waitcnt lgkmcnt(0)")
            cst(A, opt, 0, 50)
            A("s_barrier")
            cst(A, opt, 0, 51)
    if RL:
        A("s_waitcnt vmcnt(0) lgkmcnt(0)")
        cst(A, opt, 0, 52)
    elif ST & 4:
        A("s_waitcnt lgkmcnt(0)")
    else:
        A(f"s_waitcnt vmcnt({3 if EF and FC < 0 else 0})")
        cst(A, opt, 0, 52)

    def reads(s, buf):
        fa = vF + buf * 80 + 20 * s
        fb = fa + 12
        r = []
        for b in range(3):
            r.append(f"ds_read_b128 {vr(fa+4*b,4)}, v{vAR+s} offset:{4096*b + ASTAGE*buf}")
        for t in range(2):
            for u in range(2):
                r.append(f"ds_read_b64_tr_b16 {vr(fb+4*t+2*u,2)}, v{vT0+t} offset:{(32*s+4*u)*256}")
        return r

    def mfmas(s, buf):
        fa = vF + buf * 80 + 20 * s
        fb = fa + 12
        r = []
        for b in range(3):
            for t in range(2):
                acc = vACC + (b * 2 + t) * 4
                r.append(f"v_mfma_f32_16x16x32_bf16 {vr(acc,4)}, {vr(fa+4*b,4)}, {vr(fb+4*t,4)}, {vr(acc,4)}")
        return r

    if EF and FC >= 0:
        for i in range(4): A(f"v_mov_b32 v{204+i}, -1")
    A.label("W2M_LOOP")
    if EF and FC >= 0:
        A(f"""
        s_waitcnt vmcnt(0)
        s_cmp_lg_u32 {sC}, {opt.get("fc", 4)}
        s_cbranch_scc1 W2M_NF
        buffer_store_dwordx4 v[204:207], v5, s[24:27], s50 offen sc1
        s_cmp_eq_u32 {sMI}, 13
        s_cbranch_scc1 W2M_NF
        buffer_store_dwordx4 v[204:207], v5, s[24:27], s50 offen offset:1024 sc1
        buffer_store_dwordx4 v[204:207], v5, s[24:27], s50 offen offset:2048 sc1
        """)
        A.label("W2M_NF")
        assert opt.get("fc", 4) in (0, 2, 4, 6, 8)
    for buf in range(2):
        A(f"""
        v_add_u32 v{vT0}, {sCST}, v{vBR}
        v_add_u32 v{vT1}, {sCST}, v{vBR+1}
        s_add_u32 {sCST}, {sCST}, {VSTAGE}
        s_cmp_ge_u32 {sCST}, {RING}
        s_cselect_b32 {sCST}, 0, {sCST}
        """)
        cst(A, opt, sC, 16 + buf)
        A("s_barrier")
        cst(A, opt, sC, buf)
        rd = sum((reads(s, buf) for s in range(4)), [])
        mf = sum((mfmas(s, buf ^ 1) for s in range(4)), [])
        FR = opt.get("fr", 4)
        RP = opt.get("rp", 1)
        seq = rd[:FR]
        ri = FR
        for m in mf:
            seq.append(m)
            seq += rd[ri:ri + RP]
            ri += RP
        seq += rd[ri:]
        for x in seq: A(x)
        A("s_waitcnt lgkmcnt(0)")
        if (opt.get("stamp") or opt.get("probe") == 2) and buf == 0:
            A(f"""
            s_cmp_lg_u32 {sC}, 0
            s_cbranch_scc1 W2M_ST
            """)
            stamp(A, opt, 2, True)
            A.label("W2M_ST")
    if EF and FC < 0: A("s_waitcnt vmcnt(0)")
    A(f"""
    s_add_u32 {sC}, {sC}, 2
    s_cmp_lt_u32 {sC}, 12
    s_cbranch_scc1 W2M_LOOP
    s_setprio 3
    """)
    if opt.get("nb"):
        A(f"""
        v_mov_b32 v2, 1
        v_mov_b32 v4, {LFLAG}
        s_mov_b64 exec, 1
        ds_add_u32 v4, v2 offset:8
        s_mov_b64 exec, -1
        """)
    else:
        A("s_barrier")
    for s_ in range(4):
        for m in mfmas(s_, 1): A(m)
    if opt.get("nb"): A("ds_read_b32 v3, v4 offset:8")
    A("s_nop 7")
    stamp(A, opt, 3)
    for b in range(3):
        a = vACC + 8 * b
        o = vF + 4 * b
        for j in range(4):
            A(f"v_pk_mul_f32 {vr(a+2*j,2)}, {vr(a+2*j,2)}, s[54:55]")
        A(f"""
        v_cvt_pk_bf16_f32 v{o}, v{a}, v{a+1}
        v_cvt_pk_bf16_f32 v{o+1}, v{a+2}, v{a+3}
        v_cvt_pk_bf16_f32 v{o+2}, v{a+4}, v{a+5}
        v_cvt_pk_bf16_f32 v{o+3}, v{a+6}, v{a+7}
        s_nop 1
        v_permlane32_swap_b32 v{o}, v{o+2}
        v_permlane32_swap_b32 v{o+1}, v{o+3}
        buffer_store_dwordx4 {vr(o,4)}, v{vST}, s[24:27], s50 offen offset:{1024*b} sc1
        """)
        if b == 0:
            A(f"""
            s_cmp_eq_u32 {sMI}, 13
            s_cbranch_scc1 W2M_END
            """)
    A.label("W2M_END")
    if opt.get("xw") or opt.get("xb"):
        A(f"""
        v_mov_b32 v2, 1
        v_mov_b32 v4, {LFLAG}
        s_mov_b64 exec, 1
        ds_add_u32 v4, v2 offset:12
        s_mov_b64 exec, -1
        """)
    EF = MAP["ef"]
    cst_out(A, opt)
    if EF: stamp(A, opt, 4)
    if opt.get("nb"):
        A.label("W2M_RC")
        A("""
        s_waitcnt lgkmcnt(0)
        v_readfirstlane_b32 s4, v3
        s_cmp_eq_u32 s4, 4
        s_cbranch_scc1 P2_PUB
        ds_read_b32 v3, v4 offset:8
        s_branch W2M_RC
        """)
        return
    A("s_branch P2_LD" if EF else "s_branch P2_PUB")


def scale8(A, u, s, z):
    A(f"""
    v_lshlrev_b32 v{u}, 16, v{s}
    v_and_b32 v{u+1}, s46, v{s}
    v_lshlrev_b32 v{u+2}, 16, v{s+1}
    v_and_b32 v{u+3}, s46, v{s+1}
    v_lshlrev_b32 v{u+4}, 16, v{z}
    v_and_b32 v{u+5}, s46, v{z}
    v_lshlrev_b32 v{u+6}, 16, v{z+1}
    v_and_b32 v{u+7}, s46, v{z+1}
    """)
    for i in range(4): A(f"v_mul_f32 v{u+4+i}, s48, v{u+4+i}")
    for i in range(4): A(f"v_mul_f32 v{u+4+i}, v{u+i}, v{u+4+i}")
    for i in range(4): A(f"v_mul_f32 v{u+i}, s47, v{u+i}")


def wt_setup(A, opt, tag):
    TC = opt.get("wtc", 2)
    if opt.get("wm", 0):
        assert all((u * 171) >> 10 == u // 6 for u in range(384))
        A(f"""
        s_sub_u32 s4, s3, 21
        s_lshr_b32 s5, s37, 2
        s_and_b32 s6, s37, 3
        s_cmp_ge_u32 s4, 6
        s_cbranch_scc1 WT_Q{tag}
        s_lshl_b32 s4, s4, 6
        v_add_u32 v3, s4, v1
        v_mul_u32_u24 v7, 171, v3
        v_lshrrev_b32 v7, 10, v7
        v_mul_u32_u24 v7, {3072 - 768}, v7
        v_lshl_add_u32 v7, v3, 7, v7
        s_mul_i32 s46, s5, {64*3072}
        s_mul_i32 s6, s6, 768
        s_add_u32 s46, s46, s6
        s_add_u32 s46, s46, {TC*393216}
        s_mov_b32 s47, 393216
        s_mov_b32 s8, s12
        s_mov_b32 s9, s13
        s_mov_b32 s10, {V_BYTES}
        s_branch WT_G{tag}
        """)
        A.label(f"WT_Q{tag}")
        A(f"""
        v_lshrrev_b32 v7, 2, v1
        v_mul_u32_u24 v7, 0x1800, v7
        v_and_b32 v3, 3, v1
        v_lshl_add_u32 v7, v3, 7, v7
        s_mul_i32 s5, s37, 5
        s_add_u32 s4, s4, s5
        s_sub_u32 s4, s4, 6
        s_mul_i32 s46, s4, {16*6144}
        s_add_u32 s46, s46, {TC*512}
        s_movk_i32 s47, 512
        s_mov_b32 s10, {QW_BYTES}
        """)
        A.label(f"WT_G{tag}")
        return
    A(f"""
    s_sub_u32 s4, s2, 168
    s_cmp_ge_u32 s4, 48
    s_cbranch_scc1 WT_Q{tag}
    v_lshlrev_b32 v7, 7, v1
    s_lshl_b32 s46, s4, 13
    s_add_u32 s46, s46, {TC*393216}
    s_mov_b32 s47, 393216
    s_mov_b32 s8, s12
    s_mov_b32 s9, s13
    s_mov_b32 s10, {V_BYTES}
    s_branch WT_G{tag}
    """)
    A.label(f"WT_Q{tag}")
    A(f"""
    v_lshrrev_b32 v7, 2, v1
    v_mul_u32_u24 v7, 0x1800, v7
    v_and_b32 v3, 3, v1
    v_lshl_add_u32 v7, v3, 7, v7
    s_sub_u32 s4, s4, 48
    s_mul_i32 s46, s4, {16*6144}
    s_add_u32 s46, s46, {TC*512}
    s_movk_i32 s47, 512
    s_mov_b32 s10, {QW_BYTES}
    """)
    A.label(f"WT_G{tag}")


def wt(A, opt, i, tag):
    SH = opt.get("sh", 0)
    late = SH and i + opt.get("wtc", 2) >= SH
    if late:
        A(f"""
        s_cmpk_eq_u32 s47, 512
        s_cbranch_scc1 WT_S{tag}{i}
        """)
    A(f"""
    buffer_load_dword v{16+i}, v7, s[8:11], s46 offen
    s_add_u32 s46, s46, s47
    """)
    if late: A.label(f"WT_S{tag}{i}")


def tb_addr(A, tag, ju, nu):
    A(f"""
    s_lshr_b32 s5, s37, 2
    s_and_b32 s6, s37, 3
    s_cmp_ge_u32 s4, 6
    s_cbranch_scc1 TB_Q{tag}
    s_lshl_b32 s4, s4, 6
    """)
    for e in range(nu):
        A(f"""
        v_add_u32 v3, s4, v1
        v_add_u32 v3, {64*e}, v3
        v_mul_u32_u24 v{40+e}, 171, v3
        v_lshrrev_b32 v{40+e}, 10, v{40+e}
        v_mul_u32_u24 v{40+e}, {3072 - 768}, v{40+e}
        v_lshl_add_u32 v{40+e}, v3, 7, v{40+e}
        """)
    A(f"""
    s_mul_i32 s46, s5, {64*3072}
    s_mul_i32 s6, s6, 768
    s_add_u32 s46, s46, s6
    s_mov_b32 s47, 393216
    s_mov_b32 s8, s12
    s_mov_b32 s9, s13
    s_mov_b32 s10, {V_BYTES}
    s_branch TB_G{tag}
    """)
    A.label(f"TB_Q{tag}")
    A(f"""
    v_lshrrev_b32 v40, 2, v1
    v_mul_u32_u24 v40, 0x1800, v40
    v_and_b32 v3, 3, v1
    v_lshl_add_u32 v40, v3, 7, v40
    """)
    for e in range(1, nu):
        A(f"v_add_u32 v{40+e}, {e*16*6144}, v40")
    A(f"""
    s_mul_i32 s5, s37, 5
    s_add_u32 s4, s4, s5
    s_sub_u32 s4, s4, 6
    s_mul_i32 s46, s4, {16*6144}
    s_movk_i32 s47, 512
    s_mov_b32 s10, {QW_BYTES}
    """)
    A.label(f"TB_G{tag}")


def tb_burst(A, nu, nc, k0):
    for c in range(nc):
        for e in range(nu):
            A(f"buffer_load_dword v{k0 + c*nu + e}, v{40+e}, s[8:11], s46 offen")
        A("s_add_u32 s46, s46, s47")


def nsleep(A, n):
    while n > 0:
        A(f"s_sleep {min(n, 127)}"); n -= 127


def gen_prod(A, opt):
    SH = opt["sh"]
    NU = 40 * (12 - SH)
    assert all((u * 205) >> 13 == u // 40 for u in range(320))
    A.label("PROD")
    A(f"""
    s_cmp_lt_u32 s59, {NU}
    s_cselect_b32 s61, 1, 0
    s_cselect_b32 s59, s59, s58
    s_mov_b32 s10, {QW_BYTES}
    s_mov_b32 s18, {SC_BYTES}
    s_mov_b32 s19, 0x00020000
    s_mov_b32 s22, {SC_BYTES}
    s_mov_b32 s23, 0x00020000
    v_lshrrev_b32 v6, 5, v1
    v_and_b32 v7, 31, v1
    v_mul_u32_u24 v6, 0x1800, v6
    v_lshl_add_u32 v6, v7, 4, v6
    v_lshlrev_b32 v7, 3, v7
    """)

    def issue(k):
        u = f"s{58+k}"
        st, fl = f"s{50+2*k}", f"s{51+2*k}"
        A(f"""
        s_mul_i32 s4, {u}, 205
        s_lshr_b32 s4, s4, 13
        s_mul_i32 s5, s4, 40
        s_sub_u32 s5, {u}, s5
        s_add_u32 s4, s4, {SH}
        s_lshr_b32 s6, s5, 1
        s_mul_i32 s6, s6, 3072
        s_lshl_b32 s7, s4, 8
        s_add_u32 s6, s6, s7
        s_mul_i32 s42, s5, {16*6144}
        s_lshl_b32 s7, s4, 9
        s_add_u32 s42, s42, s7
        buffer_load_dwordx2 {vr(8+4*k,2)}, v7, s[16:19], s6 offen
        buffer_load_dwordx2 {vr(10+4*k,2)}, v7, s[20:23], s6 offen
        """)
        for i in range(8):
            A(f"buffer_load_dwordx4 {vr(16+32*k+4*i,4)}, v6, s[8:11], s42 offen")
            if i < 7: A("s_add_u32 s42, s42, 12288")
        A(f"""
        s_mul_i32 {st}, s5, 12
        s_add_u32 {st}, {st}, s4
        s_lshl_b32 {st}, {st}, 12
        s_add_u32 {st}, {st}, {SA}
        s_mul_i32 s6, s5, 171
        s_lshr_b32 s6, s6, 9
        s_mul_i32 s7, s6, 3
        s_sub_u32 s7, s5, s7
        s_mul_i32 {fl}, s6, 3072
        s_lshl_b32 s7, s7, 6
        s_add_u32 {fl}, {fl}, s7
        s_lshl_b32 s7, s4, 2
        s_add_u32 {fl}, {fl}, s7
        s_add_u32 {fl}, {fl}, {SFLG}
        """)

    def bars(n, tag):
        if not n: return
        A(f"""
        s_cmp_eq_u32 s60, 0
        s_cbranch_scc1 PROD_B{tag}
        """)
        for _ in range(n): A("s_barrier")
        A.label(f"PROD_B{tag}")

    def compute(k, younger):
        A(f"s_waitcnt vmcnt({younger + 8})")
        scale8(A, 80, 8 + 4 * k, 10 + 4 * k)
        for i in range(8):
            q = 16 + 32 * k + 4 * i
            o = 96 + 16 * k + 2 * i
            A(f"s_waitcnt vmcnt({younger + 7 - i + i // 2})")
            for j in range(4):
                A(f"v_fma_f32 v{88+j}, v{q+j}, v{80+j}, v{84+j}")
            A(f"""
            v_cvt_pk_bf16_f32 v{o}, v88, v89
            v_cvt_pk_bf16_f32 v{o+1}, v90, v91
            """)
            if i & 1:
                A(f"buffer_store_dwordx4 {vr(o-2,4)}, v5, s[24:27], s{50+2*k} offen offset:{1024*(i//2)} sc1")

    issue(0)
    A("""
    s_cmp_lg_u32 s60, 0
    s_cbranch_scc1 PROD_1
    s_waitcnt vmcnt(10)
    """)
    gate_set(A, opt)
    A.label("PROD_1")
    issue(1)
    A(f"""
    s_mov_b32 s46, 0xffff0000
    s_mov_b32 s47, {hex((127+QE) << 23)}
    s_mov_b32 s48, {hex(0x80000000 | ((127+QE-149) << 23))}
    v_lshlrev_b32 v3, 8, v1
    v_mov_b32 v4, 1
    """)
    PB0, PB1 = opt.get("pb0", 0), opt.get("pb1", 2)
    bars(PB0, "0")
    compute(0, 10)
    A("""
    s_cmp_eq_u32 s61, 0
    s_cbranch_scc1 PROD_2
    """)
    compute(1, 4)
    A.label("PROD_2")
    stamp(A, opt, 4)
    bars(PB1, "1")
    poll(A, "PROD_G", DBG, "0", "v2", "v8", 0)
    A(f"""
    s_mov_b64 exec, 0xfff
    buffer_store_dword v4, v3, s[24:27], s51 offen sc1
    buffer_store_dword v4, v3, s[24:27], s53 offen sc1
    s_mov_b64 exec, -1
    """)
    stamp(A, opt, 2)
    A("""
    s_cmp_eq_u32 s60, 0
    s_cbranch_scc1 IDLE_T
    """)
    for _ in range(10 - PB0 - PB1): A("s_barrier")
    A("s_branch P2_MMX")


def gate_set(A, opt):
    A(f"""
    s_barrier
    s_cmp_lg_u32 s36, 0
    s_cbranch_scc1 IDLE_G1
    s_lshl_b32 s4, s37, 2
    v_mov_b32 v3, 0
    v_mov_b32 v4, 1
    s_mov_b64 exec, 1
    buffer_store_dword v4, v3, {DBG}, s4 offen sc1
    s_mov_b64 exec, -1
    """)
    A.label("IDLE_G1")


def gen_xr(A, opt):
    sW, sLOC, sXCD = "s36", "s3", "s37"
    sMT, sNT = "s40", "s41"
    sC = "s48"
    SH = opt.get("sh", 0)
    A(f"""
    s_sub_u32 s4, {sLOC}, 21
    s_cmp_ge_u32 s4, 5
    s_cselect_b32 s5, 1, 0
    s_cselect_b32 s6, 5, 0
    s_sub_u32 {sNT}, s4, s6
    s_lshl_b32 s7, {sXCD}, 1
    s_add_u32 {sMT}, s7, s5
    s_cmp_ge_u32 {sLOC}, 31
    s_cbranch_scc1 IDLE_WG
    s_cmp_lt_u32 {sW}, 4
    s_cbranch_scc1 XR_MFMA
    s_cmp_lt_u32 {sW}, 6
    s_cbranch_scc1 XR_LD
    """)
    if opt.get("tpr"): A(f"s_setprio {opt['tpr']}")
    gate_addr(A, "v2")
    if SH:
        A(f"""
        s_sub_u32 s58, s2, 168
        s_add_u32 s59, s58, 80
        s_mov_b32 s60, 1
        s_cmp_eq_u32 {sW}, 6
        s_waitcnt lgkmcnt(0)
        s_cbranch_scc1 PROD
        """)
    A(f"""
    v_lshlrev_b32 v6, 7, v1
    s_mul_i32 s4, {sMT}, 5
    s_add_u32 s4, s4, {sNT}
    s_lshl_b32 s5, s4, 15
    s_lshl_b32 s6, s4, 14
    s_mov_b32 s30, {X_BYTES}
    s_mov_b32 s31, 0x00020000
    s_mov_b32 s34, {U_BYTES}
    s_mov_b32 s35, 0x00020000
    s_waitcnt lgkmcnt(0)
    """)
    if opt.get("tx", 1) == 2:
        A(f"""
        s_cmp_lg_u32 {sW}, 6
        s_cbranch_scc1 XR_TX
        """)
        nsleep(A, opt.get("txd", 0))
        for i in range(4):
            A(f"buffer_load_dword v{8+i}, v6, s[28:31], s5 offen")
            if i < 3: A("s_add_u32 s5, s5, 8192")
        for i in range(2):
            A(f"buffer_load_dword v{12+i}, v6, s[32:35], s6 offen")
            if i < 1: A("s_add_u32 s6, s6, 8192")
        A.label("XR_TX")
    elif opt.get("tx", 1):
        if not SH:
            A(f"""
            s_cmp_lg_u32 {sW}, 6
            s_cbranch_scc1 XR_TU
            """)
        for i in range(4):
            A(f"buffer_load_dword v{8+i}, v6, s[28:31], s5 offen")
            if i < 3: A("s_add_u32 s5, s5, 8192")
        if not SH:
            A("s_branch XR_TX")
            A.label("XR_TU")
        for i in range(2):
            A(f"buffer_load_dword v{12+i}, v6, s[32:35], s6 offen")
            if i < 1: A("s_add_u32 s6, s6, 8192")
        A.label("XR_TX")
    WT = opt.get("wt", 2)
    NT_ = 12 - opt.get("wtc", 2)
    if not SH:
        A(f"""
        s_cmp_lg_u32 {sW}, 7
        s_cbranch_scc1 XR_W6
        """)
    TB = opt.get("tb", 0)
    if TB:
        A(f"""
        s_sub_u32 s4, s3, 21
        s_and_b32 s48, s4, 1
        s_and_b32 s4, s4, 14
        """)
        tb_addr(A, "x", 0, 2)
        A(f"""
        s_lshl_b32 s4, s48, 1
        s_add_u32 s4, s4, {opt.get("wtc", 2)}
        s_mul_i32 s4, s4, s47
        s_add_u32 s46, s46, s4
        s_cmp_eq_u32 s48, 0
        s_cbranch_scc1 TB_X0
        """)
        nsleep(A, opt.get("ts1", 40))
        A.label("TB_X0")
        nsleep(A, opt.get("ts0", 0))
        tb_burst(A, 2, 2, 16)
        A(f"""
        s_add_u32 s46, s46, s47
        s_add_u32 s46, s46, s47
        s_cmp_eq_u32 s48, 0
        s_cselect_b32 s48, {opt.get("tb2", 1)}, {opt.get("tb3", 3)}
        s_sub_u32 s49, 10, s48
        """)
        A.label("TB_X1")
        A(f"""
        s_barrier
        s_sub_u32 s48, s48, 1
        s_cmp_lg_u32 s48, 0
        s_cbranch_scc1 TB_X1
        """)
        tb_burst(A, 2, 2, 20)
        A.label("TB_X2")
        A(f"""
        s_barrier
        s_sub_u32 s49, s49, 1
        s_cmp_lg_u32 s49, 0
        s_cbranch_scc1 TB_X2
        """)
    else:
        wt_setup(A, opt, "x")
        k = 0
        for b in range(10):
            for _ in range(WT if b == 0 else opt.get("wtn", 2)):
                if k < NT_:
                    wt(A, opt, k, "x"); k += 1
            A("s_barrier")
    A("s_branch P2_MMX")
    if not SH:
        A.label("XR_W6")
        for i in range(5): A("s_barrier")
        poll(A, "XR_G", DBG, "0", "v2", "v3", 0)
        for i in range(5): A("s_barrier")
        A("s_branch P2_MMX")
    A.label("IDLE_WG")
    gate_addr(A, "v2")
    A(f"""
    v_mov_b32 v6, 0
    v_mov_b32 v7, 0
    v_mov_b32 v8, 0
    v_mov_b32 v9, 0
    s_lshl_b32 s58, {sXCD}, 3
    s_add_u32 s58, s58, {sW}
    s_mul_i32 s4, s58, 3072
    s_add_u32 s4, s4, {FLG}
    s_waitcnt lgkmcnt(0)
    """)
    for i in range(3):
        A(f"buffer_store_dwordx4 v[6:9], v5, s[24:27], s4 offen offset:{1024*i} sc1")
    if SH:
        A(f"""
        s_add_u32 s59, s58, 224
        s_add_u32 s58, s58, 160
        s_min_u32 s58, s58, {40 * (12 - SH) - 1}
        s_mov_b32 s60, 0
        """)
        gen_prod(A, opt)
    else:
        A("s_waitcnt vmcnt(0)")
        gate_set(A, opt)
    A.label("IDLE_T")
    if opt.get("fw"):
        A(f"""
        s_cmp_ge_u32 {sW}, 6
        s_cbranch_scc1 IDLE_F2
        s_mul_i32 s4, {sXCD}, 6
        s_add_u32 s4, s4, {sW}
        s_mul_i32 s4, s4, 40960
        s_add_u32 s4, s4, {W2F}
        s_mov_b32 s5, 10
        v_mov_b32 v6, -1
        v_mov_b32 v7, -1
        v_mov_b32 v8, -1
        v_mov_b32 v9, -1
        """)
        nsleep(A, opt.get("fd", 0))
        A.label("IDLE_F1")
        for i in range(4):
            A(f"buffer_store_dwordx4 v[6:9], v5, s[24:27], s4 offen offset:{1024*i} sc1")
        nsleep(A, opt.get("fp", 0))
        A(f"""
        s_add_u32 s4, s4, 4096
        s_sub_u32 s5, s5, 1
        s_cmp_lg_u32 s5, 0
        s_cbranch_scc1 IDLE_F1
        """)
        stamp(A, opt, 3)
        A.label("IDLE_F2")
    if TB:
        A(f"""
        s_sub_u32 s4, {sW}, 2
        s_cmp_ge_u32 s4, 5
        s_cbranch_scc1 IDLE_T7
        s_lshl_b32 s4, s4, 1
        """)
        tb_addr(A, "i", 0, 2)
        A(f"""
        s_mul_i32 s4, s47, {8 + opt.get("wtc", 2)}
        s_add_u32 s46, s46, s4
        """)
        nsleep(A, opt.get("ts4", 100))
        tb_burst(A, 2, 4 - opt.get("wtc", 2), 16)
        A("s_branch IDLE_NT")
        A.label("IDLE_T7")
    A(f"""
    s_cmp_lg_u32 {sW}, 7
    s_cbranch_scc1 IDLE_NT
    """)
    wt_setup(A, opt, "i")
    for k in range(SH - opt.get("wtc", 2) if SH else NT_):
        wt(A, opt, k, "i")
        if k >= WT - 1 and k < NT_ - 1 and not SH: A(f"s_sleep {opt.get('isl', 12)}")
    A.label("IDLE_NT")
    if not SH:
        A(f"""
        s_cmp_lg_u32 {sW}, 0
        s_cbranch_scc1 IDLE_G_X
        """)
        poll(A, "IDLE_G", DBG, "0", "v2", "v3", 0, sleep=8)
    if opt.get("fw"): A("s_waitcnt vmcnt(0)")
    A("s_barrier")
    if opt.get("fw"):
        A(f"""
        s_cmp_lg_u32 {sW}, 1
        s_cbranch_scc1 IDLE_H
        s_lshl_b32 s4, {sXCD}, 2
        v_mov_b32 v3, 32
        v_mov_b32 v4, 1
        s_mov_b64 exec, 1
        buffer_store_dword v4, v3, {DBG}, s4 offen sc1
        s_mov_b64 exec, -1
        """)
        stamp(A, opt, 4)
        A.label("IDLE_H")
    A(f"""
    s_mov_b32 s60, 0
    s_cmp_lt_u32 {sW}, 4
    s_cbranch_scc1 P2_LD
    s_branch P2_MMI
    """)
    A.label("XR_LD")
    if opt.get("cst"): A("s_memtime s[88:89]")
    sOFS, sGRP, sCH = "s43", "s45", "s46"
    vO = 6
    A(f"""
    v_lshrrev_b32 v3, 4, v1
    s_cmp_eq_u32 {sW}, 4
    s_cbranch_scc0 XRL_U
    v_lshrrev_b32 v2, 3, v1
    v_and_b32 v4, 7, v1
    v_xor_b32 v4, v4, v3
    v_lshlrev_b32 v4, 4, v4
    v_mul_u32_u24 v{vO}, 0x500, v2
    v_add_u32 v{vO}, v{vO}, v4
    v_xor_b32 v4, 64, v{vO}
    v_add_u32 v{vO+1}, 9216, v4
    v_add_u32 v{vO+2}, {2*9216}, v{vO}
    v_add_u32 v{vO+3}, {3*9216}, v4
    s_mul_i32 {sOFS}, {sMT}, {128*1280}
    s_mov_b32 {sGRP}, {32*1280}
    s_mov_b32 {sCH}, {128 - 128*1280 + (1<<32)}
    s_movk_i32 s47, 128
    s_mov_b32 m0, 0
    s_mov_b32 s30, {X_BYTES}
    s_waitcnt lgkmcnt(0)
    s_branch XRL_GO
    """)
    A.label("XRL_U")
    A(f"""
    v_and_b32 v4, 15, v1
    v_lshlrev_b32 v2, 2, v3
    v_xor_b32 v4, v4, v2
    v_lshlrev_b32 v4, 4, v4
    v_mul_u32_u24 v{vO}, 0x500, v3
    v_add_u32 v{vO}, v{vO}, v4
    v_add_u32 v{vO+1}, {4*1280-1024}, v{vO}
    v_add_u32 v{vO+2}, {2*(4*1280-1024)}, v{vO}
    v_add_u32 v{vO+3}, {3*(4*1280-1024)}, v{vO}
    s_lshl_b32 {sOFS}, {sNT}, 8
    s_mov_b32 {sGRP}, {16*1280}
    s_mov_b32 {sCH}, 0
    s_mov_b32 s47, {64*1280}
    s_movk_i32 m0, 16384
    s_mov_b32 s30, {U_BYTES}
    s_waitcnt lgkmcnt(0)
    s_mov_b32 s28, s32
    s_mov_b32 s29, s33
    """)
    A.label("XRL_GO")
    A(f"""
    s_mov_b32 s31, 0x00020000
    s_mov_b32 {sC}, 0
    """)
    XRO = opt.get("xra", 0) or opt.get("xrb", 0)
    if XRO:
        A(f"""
        s_mul_i32 s49, {sNT}, {opt.get("xra", 0)}
        s_and_b32 s4, {sMT}, 1
        s_mul_i32 s4, s4, {opt.get("xrb", 0)}
        s_add_u32 s49, s49, s4
        s_mul_i32 s4, {sXCD}, {opt.get("xrc", 0)}
        s_add_u32 s49, s49, s4
        s_mul_i32 s4, s49, 205
        s_lshr_b32 s4, s4, 11
        s_mul_i32 s4, s4, 10
        s_sub_u32 s49, s49, s4
        s_mul_i32 s4, s49, s47
        s_add_u32 {sOFS}, {sOFS}, s4
        s_mul_i32 s47, s47, 10
        s_sub_u32 s49, 10, s49
        """)
    nsleep(A, opt.get("xd", 0))
    A.label("XRL_LOOP")
    for g in range(4):
        for j in range(4):
            A(f"buffer_load_dwordx4 v{vO+j}, s[28:31], {sOFS} offen offset:{1024*j} lds")
        A(f"""
        s_add_u32 m0, m0, 4096
        s_add_u32 {sOFS}, {sOFS}, {sGRP}
        """)
    A(f"""
    s_add_u32 {sOFS}, {sOFS}, {sCH}
    s_add_u32 m0, m0, 16384
    s_and_b32 m0, m0, {4*XSTAGE-1}
    s_add_u32 {sC}, {sC}, 1
    """)
    if XRO:
        A(f"""
        s_cmp_eq_u32 {sC}, s49
        s_cselect_b32 s4, s47, 0
        s_sub_u32 {sOFS}, {sOFS}, s4
        """)
    XT = opt.get("xt", 0)
    A(f"""
    s_and_b32 s4, {sC}, {15 if XT else 13}
    s_cmp_eq_u32 s4, 1
    s_cbranch_scc1 XRL_LOOP
    """)
    cst(A, opt, sC, 32)
    if XT:
        A("s_waitcnt vmcnt(16)")
    else:
        A(f"""
        s_cmp_eq_u32 {sC}, 2
        s_cbranch_scc0 XRL_W
        s_waitcnt vmcnt(16)
        """)
        A.label("XRL_W")
        A("s_waitcnt vmcnt(32)")
    cst(A, opt, sC, 16)
    A("s_barrier")
    cst(A, opt, sC, 0)
    A(f"""
    s_cmp_lt_u32 {sC}, 10
    s_cbranch_scc1 XRL_LOOP
    """)
    if not XT:
        A("s_waitcnt vmcnt(16)")
        cst(A, opt, 0, 27)
        A("s_barrier")
        cst(A, opt, 0, 11)
    A("s_waitcnt vmcnt(0)")
    cst(A, opt, 0, 28)
    A("s_barrier")
    cst(A, opt, 0, 12)
    cst_out(A, opt)
    A("s_branch P2_MMX")
    A.label("XR_MFMA")
    sCST = "s43"
    vXR = 6
    vUR = 10
    vT = 12
    vACC = 20
    vF = 84
    A(f"""
    s_lshr_b32 s4, {sW}, 1
    s_and_b32 s5, {sW}, 1
    s_lshl_b32 s6, s4, 13
    v_and_b32 v3, 31, v1
    v_bfe_u32 v4, v1, 1, 3
    v_lshrrev_b32 v{vT}, 5, v1
    v_xor_b32 v4, v4, v{vT}
    v_lshlrev_b32 v4, 4, v4
    v_lshl_add_u32 v4, v3, 7, v4
    v_add_u32 v{vXR}, s6, v4
    v_xor_b32 v{vXR+1}, 32, v{vXR}
    v_xor_b32 v{vXR+2}, 64, v{vXR}
    v_xor_b32 v{vXR+3}, 96, v{vXR}
    v_bfe_u32 v2, v1, 4, 1
    v_bfe_u32 v3, v1, 2, 2
    s_lshl_b32 s6, s5, 1
    v_xor_b32 v4, s6, v3
    v_lshlrev_b32 v4, 6, v4
    v_lshl_add_u32 v4, v3, 8, v4
    v_lshl_add_u32 v4, v{vT}, 11, v4
    v_lshl_add_u32 v4, v2, 5, v4
    v_and_b32 v3, 3, v1
    v_lshl_add_u32 v4, v3, 3, v4
    v_add_u32 v{vUR}, 16384, v4
    v_xor_b32 v{vUR+1}, 64, v{vUR}
    s_mov_b32 {sCST}, 0
    s_mov_b32 {sC}, 0
    s_lshl_b32 s6, {sMT}, 1
    s_add_u32 s6, s6, s4
    s_lshl_b32 s7, {sNT}, 1
    s_add_u32 s7, s7, s5
    s_mul_i32 s51, s4, 10
    s_add_u32 s51, s51, s7
    s_lshl_b32 s51, s51, {7 if MAP["lf"] else 2}
    s_mul_i32 s52, {sMT}, {20*128 if MAP["lf"] else 2048}
    s_add_u32 s51, s51, s52
    s_add_u32 s51, s51, {FLG + 672*128 if MAP["lf"] else XFLG}
    s_mov_b32 s53, 7
    s_mul_i32 s6, s6, 80
    s_lshl_b32 s7, s7, 2
    s_add_u32 s6, s6, s7
    s_lshl_b32 s50, s6, 10
    s_add_u32 s52, s50, 40960
    """)
    if MAP["ac"]:
        A(f"""
        s_lshl_b32 s51, {sMT}, 11
        s_add_u32 s51, s51, {FLG + 32768}
        """)
    for i in range(0, 64, 2):
        A(f"v_mov_b64 {vr(vACC+i,2)}, 0")
    for i in range(0, 64, 2):
        A(f"v_mov_b64 {vr(vF+64+i,2)}, 0")
    A("s_waitcnt lgkmcnt(0)")

    def reads(s, buf):
        f = vF + 64 * buf + 16 * s
        r = []
        for tn in range(2):
            r.append(f"ds_read_b128 {vr(f+8+4*tn,4)}, v{vT+s} offset:{4096*tn}")
            for u in range(2):
                r.append(f"ds_read_b64_tr_b16 {vr(f+4*tn+2*u,2)}, v{vT+4+tn} offset:{s*4096+u*1024}")
        return r

    def mfmas(s, buf):
        f = vF + 64 * buf + 16 * s
        r = []
        for tm in range(2):
            for tn in range(2):
                acc = vACC + 32 * tm + 16 * tn
                r.append(f"v_mfma_f32_32x32x16_bf16 {vr(acc,16)}, {vr(f+4*tn,4)}, {vr(f+8+4*tm,4)}, {vr(acc,16)}")
        return r

    A.label("XR_LOOP")
    for buf in range(2):
        for i in range(4):
            A(f"v_add_u32 v{vT+i}, {sCST}, v{vXR+i}")
        for i in range(2):
            A(f"v_add_u32 v{vT+4+i}, {sCST}, v{vUR+i}")
        A(f"""
        s_add_u32 {sCST}, {sCST}, {XSTAGE}
        s_and_b32 {sCST}, {sCST}, {4*XSTAGE-1}
        s_barrier
        """)
        rd = sum((reads(s_, buf) for s_ in range(4)), [])
        mf = sum((mfmas(s_, buf ^ 1) for s_ in range(4)), [])
        ri = 0
        for m in mf:
            A(m)
            for x in rd[ri:ri + 2]: A(x)
            ri += 2
        for x in rd[ri:]: A(x)
        A("s_waitcnt lgkmcnt(0)")
    A(f"""
    s_add_u32 {sC}, {sC}, 2
    s_cmp_lt_u32 {sC}, 10
    s_cbranch_scc1 XR_LOOP
    s_barrier
    """)
    for s_ in range(4):
        for m in mfmas(s_, 1): A(m)
    A("s_nop 15")
    stamp(A, opt, 3)
    for tm in range(2):
        for i in range(4):
            a = vACC + 32 * tm + 8 * i
            o = vF + 16 * tm + 4 * i
            for j in range(4):
                A(f"v_cvt_pk_bf16_f32 v{o+j}, v{a+2*j}, v{a+2*j+1}")
            A(f"buffer_store_dwordx4 {vr(o,4)}, v5, s[24:27], s{50+2*tm} offen offset:{1024*i} sc1")


VX = 96


def xload(A, opt, kb):
    A(f"buffer_load_dwordx4 {vr(VX+4*kb,4)}, v5, s[24:27], s20 offen offset:{1024 * (kb & 3)} sc1")
    if kb & 3 == 3 and kb < 39:
        A("s_add_u32 s20, s20, 4096")


def p2_rot(A, opt):
    lm = MAP["m"]
    A(f"""
    s_and_b32 s17, s3, {(1 << lm) - 1}
    s_mul_i32 s17, s17, 0
    s_lshr_b32 s16, s3, {lm}
    s_mul_i32 s16, s16, 0
    s_add_u32 s17, s17, s16
    s_mul_i32 s16, s17, 205
    s_lshr_b32 s16, s16, 11
    s_mul_i32 s16, s16, 10
    s_sub_u32 s17, s17, s16
    s_lshl_b32 s17, s17, 12
    """)


def gen_p2(A, opt):
    NA = opt.get("na", 2)
    OLD = opt.get("old", 0)
    order = [(n, kb) for kb in range(40) for n in range(NA)] + [(n, kb) for n in range(NA, 3) for kb in range(40)]
    groups = []
    for n, kb in order:
        if (n, kb // 4) not in groups: groups.append((n, kb // 4))
    CH = {1: [2, 2, 4, 4, 4, 4, 10], 2: [2, 2, 2, 2, 4, 4, 4, 5, 5], 3: [2, 4, 6, 8, 10], 4: [3, 3, 6, 6, 6, 6],
          5: [1, 1, 2, 2, 4, 10, 10]}[opt.get("ch", 1)]
    assert sum(CH) == 30
    st = [sum(CH[:i]) for i in range(len(CH) + 1)]
    A.label("P2_PUB")
    publish(A, opt, "s51", "s53")
    A.label("P2_LD")
    p2_tile(A)
    if OLD: p2_rot(A, opt)
    A(f"""
    s_mul_i32 s22, s39, 122880
    s_add_u32 s22, s22, {W2F}
    s_lshl_b32 s21, s36, 10
    s_add_u32 s22, s22, s21
    """)
    if OLD: A("""
    s_add_u32 s20, s22, s17
    s_add_u32 s19, s22, 40960
    """)
    A(f"""
    v_lshlrev_b32 v2, {7 if MAP["lf"] else 2}, v1
    v_mov_b32 v4, {LFLAG}
    s_cmp_lg_u32 s36, 0
    s_cbranch_scc1 P2_LW0
    """)
    if OLD: A("""
    s_sub_u32 s4, s44, s45
    s_sub_u32 s4, s4, 168
    """)
    EF = MAP["ef"]
    if MAP["ac"]:
        pass
    elif EF:
        A("""
        v_min_u32 v2, s43, v1
        v_lshlrev_b32 v2, 7, v2
        """)
    else:
        A("v_cmp_gt_u32 vcc, 42, v1")
        if OLD: A("v_add_u32 v3, s4, v2")
        A("""
        v_mov_b32 v3, 0
        v_cndmask_b32 v2, v3, v2, vcc
        """)
    if MAP["ac"]:
        spoll(A, "P2_W", "s45", 42, opt.get("wsl", 0))
    elif EF:
        poll(A, "P2_W", "s[24:27]", "s45", "v2", "v3", 0, sleep=opt.get("wsl", 16),
             st=(lambda: stamp(A, opt, 1)) if opt.get("pst") else None)
    elif opt.get("pp"):
        for i in range(opt["pp"]): A(f"v_mov_b32 v{8+i}, 0")
        ppoll(A, "P2_W", "s[24:27]", "s45", "v2", 8, opt["pp"], DC_W, opt.get("wsl", 4))
    else:
        poll(A, "P2_W", "s[24:27]", "s45", "v2", "v3", DC_W, sleep=opt.get("wsl", 16),
             st=(lambda: stamp(A, opt, 1)) if opt.get("pst") else None)

    def lds_wait(name, ofs, vd, va):
        A(f"s_branch {name}")
        A.label(name + "_S")
        A(f"s_sleep {opt.get('lsl', 1)}")
        A.label(name)
        A(f"""
        ds_read_b32 {vd}, {va} offset:{ofs}
        s_waitcnt lgkmcnt(0)
        """)
        poll_check(A, vd, 0, name + "_S")
    A(f"""
    v_mov_b32 v3, 1
    ds_write_b32 v4, v3 offset:4
    s_branch P2_GO
    """)
    A.label("P2_LW0")
    lds_wait("P2_LW", 4, "v3", "v4")
    A.label("P2_GO")
    stamp(A, opt, 5)
    AH = opt.get("ah", 3)

    def issue(c):
        for n, q in groups[st[c]:st[c + 1]]:
            off = (n * 40 + q * 4) * 1024
            A(f"""
            s_add_u32 s5, s22, {off}
            s_add_u32 m0, s21, {off}
            s_nop 0
            buffer_load_dwordx4 v5, s[24:27], s5 offen sc1 lds
            """)

    for c in range(min(AH, len(CH))): issue(c)
    if EF:
        A(f"""
        v_add_u32 v6, s21, v5
        v_add_u32 v7, 61440, v6
        s_mov_b32 s7, {POLL_MAX}
        """)
    for c in range(len(CH)):
        issued = min(len(CH), AH + c)
        A(f"s_waitcnt vmcnt({st[issued] - st[c+1]})")
        if EF:
            A.label(f"P2_V{c}")
            g = groups[st[c]:st[c + 1]]
            for i, (n, q) in enumerate(g):
                off = (n * 40 + q * 4) * 1024
                base, o = ("v6", off) if off < 61440 else ("v7", off - 61440)
                A(f"ds_read_b128 {vr(8+4*i,4)}, {base} offset:{o}")
            for i in range(len(g)):
                A(f"s_waitcnt lgkmcnt({len(g)-1-i})")
                r = 8 + 4 * i
                if i == 0:
                    A(f"v_max_u32 v3, v{r}, v{r+1}")
                else:
                    A(f"v_max3_u32 v3, v3, v{r}, v{r+1}")
                A(f"v_max3_u32 v3, v3, v{r+2}, v{r+3}")
            A(f"""
            v_cmp_eq_u32 vcc, -1, v3
            s_cbranch_vccnz P2_R{c}
            """)
            A.label(f"P2_K{c}")
        A("s_barrier")
        if AH + c < len(CH): issue(AH + c)
    stamp(A, opt, 6)
    if EF and opt.get("stamp"):
        A(f"""
        s_sub_u32 s7, {POLL_MAX}, s7
        s_cmp_eq_u32 s7, 0
        s_cbranch_scc1 K_EXIT
        v_mov_b32 v3, s7
        v_mov_b32 v2, 192
        s_mov_b64 exec, 1
        buffer_atomic_add v3, v2, {DBG}, 0 offen sc1
        s_mov_b64 exec, -1
        """)
    A("s_branch K_EXIT")
    if EF:
        for c in range(len(CH)):
            A.label(f"P2_R{c}")
            A(f"""
            s_cmp_eq_u32 s7, 0
            s_cbranch_scc1 P2_K{c}
            s_sub_u32 s7, s7, 1
            """)
            nsleep(A, opt.get("rsl", 0))
            issue(c)
            A(f"""
            s_waitcnt vmcnt(0)
            s_branch P2_V{c}
            """)

    vACC = 8
    vF = 56
    NF = 8
    vO = 88
    A.label("P2_MMX")
    A("s_barrier")
    A.label("P2_MMI")
    A.label("P2_MM")
    if not opt.get("sh"): stamp(A, opt, 2)
    XB = opt.get("xb", 0)
    if opt.get("nb") == 2:
        A(f"""
        v_mov_b32 v95, {LFLAG}
        ds_read_b32 v94, v95
        """)
    p2_tile(A)
    if OLD: p2_rot(A, opt)
    A(f"""
    s_lshl_b32 s4, s38, 2
    s_add_u32 s4, s4, s36
    s_sub_u32 s4, s4, 4
    """)
    if OLD:
        A("""
        s_mul_i32 s18, s4, 40960
        s_add_u32 s19, s18, 40960
        s_add_u32 s20, s18, s17
        """)
    else:
        A("s_mul_i32 s20, s4, 40960")
    A(f"""
    s_mul_i32 s4, s4, {32*3072}
    s_mul_i32 s5, s39, 192
    s_add_u32 s23, s4, s5
    s_add_u32 s22, s23, {16*3072}
    """)
    A("""
    v_bfe_u32 v2, v1, 2, 1
    v_bfe_u32 v4, v1, 3, 2
    v_and_b32 v3, 0x23, v1
    v_lshl_add_u32 v3, v2, 4, v3
    v_lshl_add_u32 v3, v4, 2, v3
    v_lshlrev_b32 v3, 4, v3
    v_and_b32 v6, 15, v1
    v_and_b32 v7, 48, v1
    v_mul_u32_u24 v6, 0xc00, v6
    v_add_u32 v6, v6, v7
    v_add_u32 v4, 61440, v3
    s_waitcnt vmcnt(0)
    """)
    A(f"""
    v_min_u32 v2, 19, v1
    v_lshlrev_b32 v2, {7 if MAP["lf"] else 2}, v2
    v_mov_b32 v8, {LFLAG}
    """)
    if opt.get("nb") == 2:
        A("""
        s_waitcnt lgkmcnt(0)
        v_readfirstlane_b32 s4, v94
        s_cmp_lg_u32 s4, 0
        s_cbranch_scc1 P2_XW_E
        """)
    A("""
    s_cmp_lg_u32 s36, 7
    s_cbranch_scc1 P2_XW
    """)

    def wait_stores(tag):
        A(f"""
        s_cmp_ge_u32 s3, 21
        s_cbranch_scc1 P2_WS{tag}_X
        """)
        A.label(f"P2_WS{tag}")
        A(f"""
        ds_read_b32 v7, v8 offset:12
        s_waitcnt lgkmcnt(0)
        v_readfirstlane_b32 s4, v7
        s_cmp_lt_u32 s4, 4
        s_cbranch_scc1 P2_WS{tag}
        """)
        A.label(f"P2_WS{tag}_X")
    if MAP["ac"]:
        spoll(A, "P2_X", "s44", 20, opt.get("xsl", 0))
    elif opt.get("px"):
        ppoll(A, "P2_X", "s[24:27]", "s44", "v2", 88, opt["px"], 0, opt.get("xsl", 4))
    else:
        poll(A, "P2_X", "s[24:27]", "s44", "v2", "v7", 0, sleep=opt.get("xsl", 16))
    if opt.get("xap"):
        A("""
        s_cmp_ge_u32 s3, 31
        s_cbranch_scc1 P2_XA_X
        """)
        A.label("P2_XA")
        A("""
        ds_read_b32 v7, v8 offset:8
        s_waitcnt lgkmcnt(0)
        v_readfirstlane_b32 s4, v7
        s_cmp_lt_u32 s4, 4
        s_cbranch_scc1 P2_XA
        """)
        A.label("P2_XA_X")
    A("""
    v_mov_b32 v7, 1
    ds_write_b32 v8, v7
    s_branch P2_XW_X
    """)
    A.label("P2_XW_S")
    A("s_sleep 2")
    A.label("P2_XW")
    A("""
    ds_read_b32 v7, v8
    s_waitcnt lgkmcnt(0)
    """)
    poll_check(A, "v7", 0, "P2_XW_S")
    A.label("P2_XW_X")
    if opt.get("xw"): wait_stores("a")
    A.label("P2_XW_E")
    stamp(A, opt, 1)
    XS = opt.get("xs", 40)
    XE = opt.get("xe", 2)
    xi = [XS]
    for kb in range(XS):
        if XB and kb == XB: wait_stores("b")
        xload(A, opt, kb)
    stamp(A, opt, 5, True)
    if opt.get("mpr"): A(f"s_setprio {opt['mpr']}")

    def epi(t, o=vO):
        a = vACC + 16 * t
        return [[f"v_cvt_pk_bf16_f32 v{o+j}, v{a+2*j}, v{a+2*j+1}" for j in range(4)],
                [f"v_cvt_pk_bf16_f32 v{o+j}, v{a+2*j}, v{a+2*j+1}" for j in range(4, 8)],
                ["s_nop 1"] + [f"v_permlane16_swap_b32 v{o+j}, v{o+4+j}" for j in range(4)],
                [f"buffer_store_dwordx4 {vr(o,4)}, v6, s[96:99], s23 offen offset:{64*t}{ysfx(t)}",
                 f"buffer_store_dwordx4 {vr(o+4,4)}, v6, s[96:99], s22 offen offset:{64*t}{ysfx(t)}"]]

    def ysfx(t):
        m = opt.get("ya" if t < 2 else "yb", 0)
        return ("", " sc1", " nt", " sc0 sc1", " sc1 nt")[m]

    RA = opt.get("ra", 6)
    assert RA < NF
    seen = [0]

    def read(i):
        n, kb = order[i]
        g = groups.index((n, kb // 4))
        while st[seen[0]] <= g:
            A("s_barrier")
            seen[0] += 1
        off = (n * 40 + kb) * 1024
        base, o = ("v3", off) if off < 61440 else ("v4", off - 61440)
        A(f"ds_read_b128 {vr(vF+4*(i%NF),4)}, {base} offset:{o}")

    for i in range(RA): read(i)
    pending = []
    done = set()
    last = {n: max(i for i, x in enumerate(order) if x[0] == n) for n in range(3)}
    for i, (n, kb) in enumerate(order):
        if n == 0:
            assert xi[0] > kb
            A(f"s_waitcnt vmcnt({xi[0] - kb - 1})")
        A(f"s_waitcnt lgkmcnt({min(120, i + RA) - i - 1})")
        acc = vACC + 16 * n
        c = "0" if kb == 0 else vr(acc, 16)
        A(f"v_mfma_f32_32x32x16_bf16 {vr(acc,16)}, {vr(vF+4*(i%NF),4)}, {vr(VX+4*kb,4)}, {c}")
        if i == 0 and opt.get("stamp"):
            stamp(A, opt, 3)
            A("s_memtime s[80:81]\ns_nop 7\ns_nop 7\ns_waitcnt lgkmcnt(0)")
        if i == 0 and opt.get("probe") == 3:
            stamp(A, opt, 3)
            A("s_nop 7\ns_nop 7\ns_waitcnt lgkmcnt(0)")
        if i + RA < 120: read(i + RA)
        if i % XE == 0 and xi[0] < 40:
            xload(A, opt, xi[0]); xi[0] += 1
        for t in range(3):
            if i == last[t] + 3:
                pending += epi(t) + [[], [], [], []]
                done.add(t)
        if pending:
            for x in pending.pop(0): A(x)
    assert seen[0] == len(CH)
    A("s_nop 15")
    stamp(A, opt, 6)
    if opt.get("stamp"):
        A("s_memtime s[82:83]\ns_waitcnt lgkmcnt(0)\ns_sub_u32 s72, s82, s80")
        if opt.get("sh"): A("s_and_b32 s90, s90, 127\ns_lshl_b32 s90, s90, 24\ns_or_b32 s72, s72, s90")
    k = 0
    for t in range(3):
        if t in done: continue
        for x in sum(epi(t, vF + 8 * k), []): A(x)
        k += 1


def gen_p2d(A, opt):
    assert MAP["lf"] and not MAP["ef"]
    PS = 9216
    A.label("P2_PUB")
    A("s_mov_b32 s60, 1")
    A.label("P2_LD")
    p2_tile(A)
    A(f"""
    v_lshrrev_b32 v2, 4, v1
    v_min_u32 v2, 2, v2
    v_and_b32 v3, 15, v1
    v_min_u32 v3, 13, v3
    v_mad_u32_u24 v2, v2, 14, v3
    v_lshlrev_b32 v2, 7, v2
    s_lshl_b32 s46, 0x1111, s36
    s_and_b32 s46, s46, 0x3fff
    s_mul_i32 s22, s39, 122880
    s_add_u32 s22, s22, {W2F}
    s_mov_b32 s47, 0
    s_mov_b32 s7, {POLL_MAX}
    v_mov_b32 v4, {LFLAG}
    v_mov_b32 v6, 0
    v_mov_b32 v7, 1
    """)
    A.label("P2_POLL")
    A(f"""
    s_lshl_b32 s48, s46, 16
    s_or_b32 s48, s48, s46
    s_mov_b32 s49, s46
    s_mov_b64 exec, s[48:49]
    buffer_load_dword v3, v2, s[24:27], s45 offen sc1
    s_mov_b64 exec, 1
    v_mov_b32 v8, s47
    s_cmp_eq_u32 s60, 0
    s_waitcnt vmcnt(1)
    s_cbranch_scc1 P2_NP
    buffer_store_dword v7, v6, s[24:27], s51 offen sc1
    """)
    stamp(A, opt, 4)
    A("""
    s_mov_b32 s60, 0
    s_waitcnt vmcnt(1)
    s_branch P2_PR
    """)
    A.label("P2_NP")
    A("""
    ds_or_b32 v4, v8 offset:4
    s_mov_b32 s47, 0
    s_waitcnt vmcnt(0)
    """)
    A.label("P2_PR")
    A(f"""
    s_mov_b64 exec, s[48:49]
    v_cmp_ne_u32 vcc, 0, v3
    s_mov_b64 exec, -1
    s_lshr_b32 s4, vcc_lo, 16
    s_and_b32 s4, s4, vcc_lo
    s_and_b32 s4, s4, vcc_hi
    s_cbranch_scc1 P2_ISS
    s_sub_u32 s7, s7, 1
    s_cselect_b32 s4, s46, 0
    s_cbranch_scc1 P2_ISS
    s_sleep {opt.get("wsl", 8)}
    s_branch P2_POLL
    """)
    A.label("P2_ISS")
    if opt.get("stamp"):
        A("""
        s_waitcnt lgkmcnt(0)
        s_cmp_lg_u32 s74, 0
        s_cbranch_scc1 P2_IS0
        """)
        stamp(A, opt, 5)
        A.label("P2_IS0")
    A("s_andn2_b32 s46, s46, s4")
    A.label("P2_IS1")
    A(f"""
    s_ff1_i32_b32 s5, s4
    s_mul_i32 m0, s5, {PS}
    s_mul_i32 s6, s5, 3072
    s_add_u32 s6, s6, s22
    s_bitset0_b32 s4, s5
    """)
    for n in range(3):
        for j in range(3):
            A(f"buffer_load_dwordx4 v5, s[24:27], s6 offen offset:{1024*j} sc1 lds")
        if n < 2:
            A("""
            s_add_u32 m0, m0, 3072
            s_add_u32 s6, s6, 40960
            """)
    A(f"""
    s_cmp_eq_u32 s47, 0
    s_cbranch_scc1 P2_IS2
    v_mov_b32 v8, s47
    s_mov_b64 exec, 1
    s_waitcnt vmcnt(9)
    ds_or_b32 v4, v8 offset:4
    s_mov_b64 exec, -1
    """)
    A.label("P2_IS2")
    A(f"""
    s_lshl_b32 s47, 1, s5
    s_cmp_lg_u32 s4, 0
    s_cbranch_scc1 P2_IS1
    s_cmp_lg_u32 s46, 0
    s_cbranch_scc1 P2_POLL
    v_mov_b32 v8, s47
    s_mov_b64 exec, 1
    s_waitcnt vmcnt(0)
    ds_or_b32 v4, v8 offset:4
    s_mov_b64 exec, -1
    s_waitcnt lgkmcnt(0)
    """)
    stamp(A, opt, 6)
    A("s_branch K_EXIT")

    vACC = 8
    vF = 56
    vM, vA = 92, 93
    A.label("P2_MMX")
    A("s_barrier")
    A.label("P2_MMI")
    A("s_waitcnt vmcnt(0)")
    A.label("P2_MM")
    stamp(A, opt, 2)
    A(f"""
    v_mov_b32 v7, {LFLAG}
    ds_read_b32 v{vM}, v7
    """)
    p2_tile(A)
    A(f"""
    s_lshl_b32 s4, s38, 2
    s_add_u32 s4, s4, s36
    s_sub_u32 s4, s4, 4
    s_mul_i32 s20, s4, 40960
    s_mul_i32 s4, s4, {32*3072}
    s_mul_i32 s5, s39, 192
    s_add_u32 s23, s4, s5
    s_add_u32 s22, s23, {16*3072}
    s_add_u32 s21, s20, {39*1024}
    v_bfe_u32 v2, v1, 2, 1
    v_bfe_u32 v4, v1, 3, 2
    v_and_b32 v3, 0x23, v1
    v_lshl_add_u32 v3, v2, 4, v3
    v_lshl_add_u32 v3, v4, 2, v3
    v_lshlrev_b32 v3, 4, v3
    v_and_b32 v6, 15, v1
    v_and_b32 v4, 48, v1
    v_mul_u32_u24 v6, 0xc00, v6
    v_add_u32 v6, v6, v4
    v_min_u32 v2, 19, v1
    v_lshlrev_b32 v2, 7, v2
    s_waitcnt lgkmcnt(0)
    v_readfirstlane_b32 s4, v{vM}
    s_cmp_lg_u32 s4, 0
    s_cbranch_scc1 P2_XW_X
    s_cmp_lg_u32 s36, 7
    s_cbranch_scc1 P2_XW
    """)
    poll(A, "P2_X", "s[24:27]", "s44", "v2", f"v{vM}", 0, sleep=opt.get("xsl", 16))
    A(f"""
    v_mov_b32 v{vM}, 1
    ds_write_b32 v7, v{vM}
    s_branch P2_XW_X
    """)
    A.label("P2_XW")
    A(f"""
    s_sleep 2
    ds_read_b32 v{vM}, v7
    s_waitcnt lgkmcnt(0)
    """)
    poll_check(A, f"v{vM}", 0, "P2_XW")
    A.label("P2_XW_X")
    stamp(A, opt, 1)
    NU = opt.get("nu", 7)
    LAG = opt.get("lag", 3)
    P0 = opt.get("p0", 6)
    XPB = opt.get("xpb", 1)

    def xpiece(p):
        r = [[f"buffer_load_dwordx4 {vr(VX+12*p+4*j,4)}, v5, s[24:27], s20 offen offset:{1024*j} sc1"] for j in range(3)]
        if p < 12: r[2].append("s_add_u32 s20, s20, 3072")
        return r
    A(f"buffer_load_dwordx4 {vr(VX+156,4)}, v5, s[24:27], s21 offen sc1")
    for p_ in range(NU):
        for x in sum(xpiece(p_), []): A(x)
    stamp(A, opt, 5, True)
    issued = lambda t: min(13, NU + XPB * max(0, t))
    Pt = [min(12, max(t, min(P0 + 2 * t, issued(t - LAG) - 1))) for t in range(13)]
    assert all(Pt[t] < issued(t) for t in range(13))
    A(f"""
    s_getpc_b64 s[52:53]
    """)
    A.label("P2_PC")
    A(f"""
    s_add_u32 s48, s52, P2_B0-P2_PC
    s_addc_u32 s49, s53, 0
    s_movk_i32 s50, {(2 << Pt[0]) - 1}
    s_mov_b32 s46, 0
    v_add_u32 v{vA}, {13*PS}, v3
    s_branch P2_F1
    """)
    A.label("P2_F0")
    A("s_sleep 1")
    A.label("P2_F1")
    A(f"""
    ds_read_b32 v{vM}, v7 offset:4
    s_waitcnt lgkmcnt(0)
    v_readfirstlane_b32 s4, v{vM}
    s_bitcmp1_b32 s4, 13
    s_cbranch_scc0 P2_F0
    """)
    for n in range(3): A(f"ds_read_b128 {vr(vF+4*(6+n),4)}, v{vA} offset:{3072*n}")
    A(f"s_waitcnt vmcnt({3*NU})")
    for n in range(3):
        A(f"""
        s_waitcnt lgkmcnt({2-n})
        v_mfma_f32_32x32x16_bf16 {vr(vACC+16*n,16)}, {vr(vF+4*(6+n),4)}, {vr(VX+156,4)}, 0
        """)
    A("""
    s_set_gpr_idx_on s46, gpr_idx(SRC1)
    s_branch P2_COLD
    """)

    def mfma(i):
        acc = vACC + 16 * (i // 3)
        A(f"v_mfma_f32_32x32x16_bf16 {vr(acc,16)}, {vr(vF+4*i,4)}, {vr(VX+4*(i%3),4)}, {vr(acc,16)}")

    def read(i):
        A(f"ds_read_b128 {vr(vF+4*i,4)}, v{vA} offset:{1024*i}")

    A.label("P2_DRAIN")
    if opt.get("stamp"): A("s_add_u32 s90, s90, 1")
    for i in range(4, 9):
        if i > 4: A(f"s_waitcnt lgkmcnt({8-i})")
        mfma(i)
    A("s_branch P2_COLD")
    A.label("P2_COLD_S")
    A("s_sleep 1")
    A.label("P2_COLD")
    A(f"""
    ds_read_b32 v{vM}, v7 offset:4
    s_waitcnt lgkmcnt(0)
    v_readfirstlane_b32 s4, v{vM}
    s_andn2_b32 s4, s4, s46
    s_and_b32 s4, s4, s50
    s_cbranch_scc0 P2_COLD_S
    s_ff1_i32_b32 s5, s4
    s_mul_i32 s6, s5, {PS}
    v_add_u32_e64 v{vA}, v3, s6
    s_bitset1_b32 s46, s5
    s_mul_i32 s47, s5, 12
    """)
    for i in range(5): read(i)
    A(f"""
    ds_read_b32 v{vM}, v7 offset:4
    s_set_gpr_idx_idx s47
    s_setpc_b64 s[48:49]
    """)
    for t in range(13):
        A.label(f"P2_B{t}")
        if t == 0 and opt.get("stamp"):
            stamp(A, opt, 3)
            A("s_memtime s[80:81]\ns_waitcnt lgkmcnt(0)")
        xl = sum((xpiece(p_) for p_ in range(issued(t), issued(t + 1))), [])
        xl = [sum(xl[i::3], []) for i in range(3)] if XPB == 1 else [sum(xl[i*XPB:(i+1)*XPB], []) for i in range(3)]
        W = 3 * (issued(t) - Pt[t] - 1)
        last = t == 12
        for i in range(9):
            c = (5, 5, 5, 3, None, 4, 4, 4, 4)[i]
            if last and i > 4: c = 8 - i
            if i == 0: A(f"s_waitcnt vmcnt({W}) lgkmcnt({c})")
            elif c is not None: A(f"s_waitcnt lgkmcnt({c})")
            mfma(i)
            if i < 4: read(5 + i)
            if i < 3:
                for x in xl[i]: A(x)
            if last: continue
            if i == 1:
                A(f"""
                s_add_u32 s48, s52, P2_B{t+1}-P2_PC
                s_addc_u32 s49, s53, 0
                """)
            if i == 2 and Pt[t + 1] != Pt[t]: A(f"s_movk_i32 s50, {(2 << Pt[t+1]) - 1}")
            if i == 3:
                A(f"""
                v_readfirstlane_b32 s4, v{vM}
                s_andn2_b32 s4, s4, s46
                s_and_b32 s4, s4, s50
                s_cbranch_scc0 P2_DRAIN
                s_ff1_i32_b32 s5, s4
                """)
            if i == 4:
                A(f"""
                s_mul_i32 s6, s5, {PS}
                v_add_u32_e64 v{vA}, v3, s6
                """)
            if i >= 4: read(i - 4)
            if i == 5:
                A(f"""
                s_bitset1_b32 s46, s5
                s_mul_i32 s47, s5, 12
                """)
            if i == 8:
                A(f"""
                ds_read_b32 v{vM}, v7 offset:4
                s_set_gpr_idx_idx s47
                """)
    A("s_set_gpr_idx_off")

    def epi(t, o):
        a = vACC + 16 * t
        return ([f"v_cvt_pk_bf16_f32 v{o+j}, v{a+2*j}, v{a+2*j+1}" for j in range(8)] +
                ["s_nop 1"] + [f"v_permlane16_swap_b32 v{o+j}, v{o+4+j}" for j in range(4)] +
                [f"buffer_store_dwordx4 {vr(o,4)}, v6, s[96:99], s23 offen offset:{64*t}",
                 f"buffer_store_dwordx4 {vr(o+4,4)}, v6, s[96:99], s22 offen offset:{64*t}"])
    A("s_nop 0")
    for t in range(3):
        if t == 2:
            stamp(A, opt, 6)
            if opt.get("stamp"):
                A("s_memtime s[82:83]\ns_waitcnt lgkmcnt(0)\ns_sub_u32 s72, s82, s80")
                A("s_and_b32 s90, s90, 127\ns_lshl_b32 s90, s90, 24\ns_or_b32 s72, s72, s90")
        for x in epi(t, vF + 8 * t): A(x)


def descriptor(name, vgpr, accum, sgpr):
    return f""".amdhsa_kernel {name}
  .amdhsa_next_free_vgpr {vgpr}
  .amdhsa_next_free_sgpr {sgpr}
  .amdhsa_accum_offset {accum}
  .amdhsa_group_segment_fixed_size 0
  .amdhsa_kernarg_size 72
  .amdhsa_user_sgpr_count 2
  .amdhsa_user_sgpr_kernarg_segment_ptr 1
  .amdhsa_system_sgpr_workgroup_id_x 1
  .amdhsa_float_denorm_mode_32 3
.end_amdhsa_kernel
"""


def generate(opt):
    out = HEADER
    MAP["m"] = opt.get("map", 2)
    MAP["lf"] = opt.get("lf", 0)
    MAP["ef"] = opt.get("ef", 0)
    MAP["ac"] = opt.get("ac", 0)
    assert MAP["lf"] or not MAP["ef"]
    out += f"; @launch grid=(256,1,1) block=(512,1,1) lds={LDS1 + 1024}\n"
    out += '.amdgcn_target "amdgcn-amd-amdhsa--gfx950"\n.text\n'
    A = Asm()
    out += f".globl {KNAME}\n.p2align 8\n.type {KNAME},@function\n"
    gen_kernel(A, opt)
    out += A.text()
    out += "CODE_END:\n"
    out += '.section .rodata,"a"\n.p2align 6\n'
    out += descriptor(KNAME, 256, 256, 100)
    return out


if __name__ == "__main__":
    path = sys.argv[1] if len(sys.argv) > 1 else "standalone__weight_only_int_quip__prompt.s"
    opt = {}
    for a in sys.argv[2:]:
        k, _, v = a.partition("=")
        opt[k] = int(v) if v else 1
    open(path, "w").write(generate(opt))
    print("wrote", path)
```

```python
import sys

KNAME = "standalone__weight_only_int_quip__prompt_kernel"
HEADER = """; Kernarg layout for this problem (72 bytes, ptrs only, base s[0:1]):
;   offset   0: d_in[0] x  shape=(1, 2048, 640) dtype=bfloat16 strides=(2621440, 1280, 2) contiguous=True
;   offset  16: d_in[2] scales  shape=(20, 1536) dtype=bfloat16 strides=(3072, 2) contiguous=True
;   offset  24: d_in[3] zeros  shape=(20, 1536) dtype=bfloat16 strides=(3072, 2) contiguous=True
;   offset  32: d_in[4] U  shape=(640, 640) dtype=bfloat16 strides=(1280, 2) contiguous=True
;   offset  40: d_in[5] V  shape=(1536, 1536) dtype=bfloat16 strides=(3072, 2) contiguous=True
;   offset  48: d_out     shape=(1, 2048, 1536) dtype=bfloat16 (2 bytes/elem)
; phase 2 makes y = xr@W2.  One workgroup per CU (256, all resident); hand-off through flags in d_ws
"""

XRF = 0
W2F = 64 * 40 * 1024
FLG = W2F + 48 * 40 * 1024
XFLG = FLG + 256 * 256
SFLG = XFLG + 256 * 128
FLG_END = FLG + 64 * 3 * 1024
SA = FLG_END
WS_USED = SA + 40 * 12 * 4096
assert SFLG + 168 * 256 <= FLG_END

X_BYTES = 2048 * 640 * 2
QW_BYTES = 640 * 1536 * 4
SC_BYTES = 20 * 1536 * 2
U_BYTES = 640 * 640 * 2
V_BYTES = 1536 * 1536 * 2
OUT_BYTES = 2048 * 1536 * 2

VSTAGE = 32768
ABASE = 3 * VSTAGE
ASTAGE = 12288
TBL = ABASE + 2 * ASTAGE
LDS1 = TBL + 24576
LFLAG = LDS1
QE = 112
XSTAGE = 32768
POLL_MAX = 40000


class Asm:
    def __init__(self):
        self.lines = []

    def __call__(self, s):
        for l in s.strip("\n").split("\n"):
            if not l.strip(): continue
            self.lines.append("    " + l.strip() if not l.strip().endswith(":") else l.strip())

    def label(self, s):
        self.lines.append(s + ":")

    def comment(self, s):
        self.lines.append("    ; " + s)

    def text(self):
        return "\n".join(self.lines) + "\n"


def vr(a, n):
    return f"v[{a}:{a+n-1}]"


STAMP_OFS = 32 << 20
NSTAMP = 8


def stamp(A, opt, i, wait=False):
    if opt.get("stamp") or ("probe" in opt and i in (0, opt["probe"])):
        A(f"s_memrealtime s[{64+2*i}:{65+2*i}]")
        if wait: A("s_waitcnt lgkmcnt(0)")


def stamp_begin(A, opt):
    if opt.get("stamp") or "probe" in opt:
        for i in range(1, NSTAMP):
            A(f"s_mov_b32 s{64+2*i}, 0")
        A("s_mov_b32 s90, 0")
    stamp(A, opt, 0)


def stamp_end(A, opt):
    if "probe" in opt:
        p = opt["probe"]
        wl, wh = opt.get("pwl", 0), opt.get("pwh", 7)
        gl, gh = opt.get("pgl", 0), opt.get("pgh", 255)
        A(f"""
        s_waitcnt vmcnt(0) lgkmcnt(0)
        s_memrealtime s[78:79]
        s_waitcnt lgkmcnt(0)
        s_cmp_gt_u32 s2, {gh}
        s_cbranch_scc1 PRB_X
        s_cmp_lt_u32 s2, {gl}
        s_cbranch_scc1 PRB_X
        s_cmp_lt_u32 s36, {wl}
        s_cbranch_scc1 PRB_X
        s_cmp_gt_u32 s36, {wh}
        s_cbranch_scc1 PRB_X
        s_cmp_eq_u32 s{64+2*p}, 0
        s_cbranch_scc1 PRB_X
        s_sub_u32 s4, s{64+2*p}, s64
        s_mul_i32 s4, s4, 3
        s_min_u32 s4, s4, 20000
        """)
        A.label("PRB")
        A("""
        s_memrealtime s[6:7]
        s_waitcnt lgkmcnt(0)
        s_sub_u32 s5, s6, s78
        s_cmp_lt_u32 s5, s4
        s_cbranch_scc1 PRB
        """)
        A.label("PRB_X")
    if opt.get("stamp"):
        A("s_waitcnt vmcnt(0) lgkmcnt(0)")
        stamp(A, opt, NSTAMP - 1)
        A(f"""
        s_load_dwordx2 s[56:57], s[0:1], 64
        s_waitcnt lgkmcnt(0)
        s_mov_b32 s58, 0x7fffffff
        s_mov_b32 s59, 0x00020000
        v_lshrrev_b32 v1, 6, v0
        v_lshlrev_b32 v1, 5, v1
        s_lshl_b32 s4, s2, 8
        s_add_u32 s4, s4, {STAMP_OFS}
        """)
        for i in range(NSTAMP):
            A(f"v_mov_b32 v{4+i}, s{64+2*i}")
        A("""
        buffer_store_dwordx4 v[4:7], v1, s[56:59], s4 offen
        buffer_store_dwordx4 v[8:11], v1, s[56:59], s4 offen offset:16
        """)
    A("s_endpgm")


def cst(A, opt, sidx, add):
    if not opt.get("cst"): return
    A(f"""
    s_memtime s[84:85]
    s_add_u32 s86, {sidx}, {add}
    v_cmp_eq_u32 vcc, s86, v1
    s_waitcnt lgkmcnt(0)
    v_mov_b32 v231, s84
    v_cndmask_b32 v230, v230, v231, vcc
    """)


FSR = {"m": [8,10,12,14,16,18,20,22,28,30,32,34,56,58,60,62],
       "d": [12,14,16,18,20,22,28,30,32,34,50,52,54,58,60,62,44,46],
       "l": [8,10,16,18,20,22,28,30,32,34,50,52,54,56,58,60,62]}


class Fst:
    def __init__(self, A, opt, role, on):
        self.A, self.role, self.n = A, role, 0
        self.on = on and "fst" in opt

    def __call__(self):
        if not self.on: return
        r = FSR[self.role][self.n]; self.n += 1
        self.A(f"s_memtime s[{r}:{r+1}]")

    def save(self, sc, val, tag):
        if not self.on: return
        self.A(f"""
        s_waitcnt lgkmcnt(0)
        s_cmp_lg_u32 {sc}, {val}
        s_cbranch_scc1 FS_{tag}
        """)
        for i in range(self.n): self.A(f"v_writelane_b32 v230, s{FSR[self.role][i]}, {i}")
        self.A(f"s_mov_b32 s4, {self.n}")
        self.A("v_writelane_b32 v230, s4, 47")
        self.A.label(f"FS_{tag}")


def cst_out(A, opt):
    if not opt.get("cst") and "fst" not in opt: return
    A(f"""
    v_writelane_b32 v230, s88, 48
    s_mov_b64 s[84:85], s[24:25]
    s_mov_b32 s86, 0x7fffffff
    s_mov_b32 s87, 0x00020000
    v_lshlrev_b32 v231, 2, v0
    s_lshl_b32 s4, s2, 11
    s_add_u32 s4, s4, {STAMP_OFS + (1 << 20)}
    buffer_store_dword v230, v231, s[84:87], s4 offen
    """)


def poll_check(A, vdst, dc, again):
    A(f"v_cmp_ne_u32 vcc, 0, {vdst}")
    if dc & 0xffffffff: A(f"s_or_b32 vcc_lo, vcc_lo, {hex(dc & 0xffffffff)}")
    if dc >> 32: A(f"s_or_b32 vcc_hi, vcc_hi, {hex(dc >> 32)}")
    A(f"""
    s_cmp_eq_u64 vcc, -1
    s_cbranch_scc0 {again}
    """)


def poll(A, name, srd, soff, vaddr, vdst, dc, scnt="s7", sleep=0, st=None):
    A(f"s_mov_b32 {scnt}, {POLL_MAX}")
    if sleep: A(f"s_branch {name}_1")
    A.label(name)
    if sleep:
        A(f"s_sleep {sleep}")
        A.label(name + "_1")
    A(f"""
    s_sub_u32 {scnt}, {scnt}, 1
    s_cbranch_scc1 {name}_X
    """)
    if st: st()
    A(f"""
    buffer_load_dword {vdst}, {vaddr}, {srd}, {soff} offen sc1
    s_waitcnt vmcnt(0)
    """)
    A.label(name + "_C")
    poll_check(A, vdst, dc, name)
    A.label(name + "_X")


def ppoll(A, name, srd, soff, vaddr, v0, n, dc, sleep, scnt="s7"):
    A(f"s_mov_b32 {scnt}, {POLL_MAX}")
    for i in range(n - 1):
        A(f"buffer_load_dword v{v0+i}, {vaddr}, {srd}, {soff} offen sc1")
        if sleep: A(f"s_sleep {sleep}")
    A.label(name)
    A(f"""
    s_sub_u32 {scnt}, {scnt}, 1
    s_cbranch_scc1 {name}_X
    """)
    for i in range(n):
        A(f"""
        buffer_load_dword v{v0+(i+n-1)%n}, {vaddr}, {srd}, {soff} offen sc1
        s_waitcnt vmcnt({n-1})
        v_cmp_ne_u32 vcc, 0, v{v0+i}
        """)
        if dc & 0xffffffff: A(f"s_or_b32 vcc_lo, vcc_lo, {hex(dc & 0xffffffff)}")
        if dc >> 32: A(f"s_or_b32 vcc_hi, vcc_hi, {hex(dc >> 32)}")
        A(f"""
        s_cmp_eq_u64 vcc, -1
        s_cbranch_scc1 {name}_X
        """)
        if sleep: A(f"s_sleep {sleep}")
    A(f"s_branch {name}")
    A.label(name + "_X")


DC_W = 0xFFFFFC0000000000
DBG = "s[92:95]"
MAP = {"m": 2}


def p2_tile(A):
    lm = MAP["m"]
    ln = 5 - lm
    xm = 4 - lm
    A(f"""
    s_and_b32 s38, s37, {(1 << xm) - 1}
    s_lshl_b32 s38, s38, {lm}
    s_and_b32 s39, s3, {(1 << lm) - 1}
    s_add_u32 s38, s38, s39
    s_lshr_b32 s39, s37, {xm}
    s_lshl_b32 s39, s39, {ln}
    s_lshr_b32 s4, s3, {lm}
    s_add_u32 s39, s39, s4
    """)
    if MAP["ac"]:
        A(f"""
        s_lshl_b32 s45, s38, 4
        s_add_u32 s45, s45, s39
        s_lshl_b32 s45, s45, 7
        s_add_u32 s44, s45, {FLG + 32768}
        s_add_u32 s45, s45, {FLG}
        """)
        return
    if MAP["ef"]:
        A(f"""
        s_mul_i32 s45, s39, 3
        s_add_u32 s43, s45, 2
        s_lshr_b32 s45, s45, 2
        s_lshr_b32 s43, s43, 2
        s_cmp_eq_u32 s43, s45
        s_cselect_b32 s43, 13, 27
        s_mul_i32 s45, s45, {14*128}
        s_add_u32 s45, s45, {FLG}
        s_mul_i32 s44, s38, {20*128}
        s_add_u32 s44, s44, {FLG + 672*128}
        """)
        return
    if MAP["lf"]:
        A(f"""
        s_mul_i32 s45, s39, {42*128}
        s_add_u32 s45, s45, {FLG}
        s_mul_i32 s44, s38, {20*128}
        s_add_u32 s44, s44, {FLG + 672*128}
        """)
        return
    A(f"""
    s_lshl_b32 s45, s38, 4
    s_add_u32 s45, s45, s39
    s_lshl_b32 s44, s45, 7
    s_add_u32 s44, s44, {XFLG}
    s_lshl_b32 s45, s45, 8
    s_add_u32 s45, s45, {FLG}
    """)


def spoll(A, name, soff, want, sleep, first=True):
    A(f"s_mov_b32 s7, {POLL_MAX}")
    if not first: A(f"s_branch {name}_C")
    elif sleep: A(f"s_branch {name}_1")
    A.label(name)
    if sleep:
        A(f"s_sleep {sleep}")
        A.label(name + "_1")
    A(f"""
    s_sub_u32 s7, s7, 1
    s_cbranch_scc1 {name}_X
    s_buffer_load_dword s61, s[24:27], {soff} glc
    """)
    A.label(name + "_C")
    A(f"""
    s_waitcnt lgkmcnt(0)
    s_cmp_lt_u32 s61, {want}
    s_cbranch_scc1 {name}
    """)
    A.label(name + "_X")


def publish(A, opt, sflag, sshift):
    if MAP["ac"]:
        A(f"""
        v_mov_b32 v2, 1
        v_lshlrev_b32 v3, {sshift}, v1
        s_waitcnt vmcnt(0)
        s_mov_b64 exec, 0xffff
        buffer_atomic_add v2, v3, s[24:27], {sflag} offen sc1
        s_mov_b64 exec, -1
        """)
        stamp(A, opt, 4)
        return
    A(f"""
    v_mov_b32 v2, 1
    v_lshlrev_b32 v3, {sshift}, v1
    s_waitcnt vmcnt(0)
    s_mov_b64 exec, {1 if MAP["lf"] else "0xffff"}
    buffer_store_dword v2, v3, s[24:27], {sflag} offen sc1
    """)
    if opt.get("xap"):
        A(f"""
        v_mov_b32 v3, {LFLAG}
        s_mov_b64 exec, 1
        ds_add_u32 v3, v2 offset:8
        """)
    A("s_mov_b64 exec, -1")
    stamp(A, opt, 4)


def gen_kernel(A, opt):
    A.label(KNAME)
    stamp_begin(A, opt)
    CP0 = opt.get("cp0", 0)

    def cp0():
        A("s_getpc_b64 s[4:5]")
        A.label("P1_PC")
        A("""
        v_lshlrev_b32 v3, 7, v0
        v_min_u32 v3, CODE_END-P1_PC-4, v3
        global_load_dword v250, v3, s[4:5]
        """)
    if CP0 == 1:
        A("""
        s_cmp_ge_u32 s2, 256
        s_cbranch_scc1 K_EXIT
        """)
        cp0()
    A("""
    s_load_dwordx2 s[8:9], s[0:1], 8
    s_load_dwordx2 s[12:13], s[0:1], 40
    s_load_dwordx2 s[16:17], s[0:1], 16
    s_load_dwordx2 s[20:21], s[0:1], 24
    s_load_dwordx2 s[28:29], s[0:1], 0
    s_load_dwordx2 s[32:33], s[0:1], 32
    s_load_dwordx2 s[24:25], s[0:1], 64
    s_load_dwordx2 s[92:93], s[0:1], 56
    s_load_dwordx2 s[96:97], s[0:1], 48
    """)
    if CP0 != 1:
        A("""
        s_cmp_ge_u32 s2, 256
        s_cbranch_scc1 K_EXIT
        """)
    if CP0 == 2: cp0()
    A("""
    v_and_b32 v1, 63, v0
    v_lshrrev_b32 v2, 6, v0
    """)
    if not CP0:
        A("s_getpc_b64 s[4:5]")
        A.label("P1_PC")
    else:
        A("s_lshr_b32 s3, s2, 3")
    A(f"""
    v_readfirstlane_b32 s36, v2
    """)
    CP = opt.get("cp", 0)
    if CP0:
        A(f"""
        s_and_b32 s37, s2, 7
        s_cmp_lg_u32 s36, 7
        s_cbranch_scc1 P1_NOPF
        """)
    elif CP:
        A(f"""
        s_lshr_b32 s3, s2, 3
        s_lshl_b32 s37, s3, 2
        v_min_u32 v3, {CP-1}, v1
        v_add_u32 v3, s37, v3
        v_and_b32 v3, 127, v3
        v_lshlrev_b32 v3, 7, v3
        v_min_u32 v3, CODE_END-P1_PC-4, v3
        s_and_b32 s37, s2, 7
        s_cmp_lg_u32 s36, {opt.get("cpw", 7)}
        s_cbranch_scc1 P1_NOPF
        global_load_dword v250, v3, s[4:5]
        """)
    else:
        A(f"""
        v_lshlrev_b32 v3, 7, v1
        v_add_u32 v4, 0x2000, v3
        v_min_u32 v4, CODE_END-P1_PC-4, v4
        s_lshr_b32 s3, s2, 3
        s_and_b32 s37, s2, 7
        s_cmp_lg_u32 s36, 7
        s_cbranch_scc1 P1_NOPF
        global_load_dword v250, v3, s[4:5]
        global_load_dword v251, v4, s[4:5]
        """)
    A(f"""
    v_mov_b32 v2, 0
    v_mov_b32 v3, 0
    v_mov_b32 v4, {LFLAG}
    ds_write_b64 v4, v[2:3]
    """)
    if opt.get("nb") or opt.get("xw"): A("ds_write_b64 v4, v[2:3] offset:8")
    A.label("P1_NOPF")
    A(f"""
    s_mov_b32 s11, 0x00020000
    s_mov_b32 s15, 0x00020000
    s_mov_b32 s27, 0x00020000
    s_mov_b32 s26, {WS_USED}
    s_movk_i32 s94, 256
    s_mov_b32 s95, 0x00020000
    s_mov_b32 s98, {OUT_BYTES}
    s_mov_b32 s99, 0x00020000
    v_lshlrev_b32 v5, 4, v1
    s_cmp_ge_u32 s3, 21
    s_cbranch_scc1 P1_XR
    """)
    gen_w2(A, opt)
    A.label("P1_XR")
    gen_xr(A, opt)
    (gen_p2d if opt.get("dy") else gen_p2)(A, opt)
    A.label("K_EXIT")
    stamp_end(A, opt)


def gate_addr(A, v, m=7):
    A(f"""
    v_and_b32 {v}, {m}, v1
    v_lshlrev_b32 {v}, 2, {v}
    """)


def gen_w2(A, opt):
    NQ = 2
    SH = opt.get("sh", 0)
    RING = 3 * VSTAGE
    RG = opt.get("rg", 2)
    sW, sLOC, sXCD = "s36", "s3", "s37"
    sMI, sNI = "s40", "s41"
    sC = "s49"
    sVOFS = "s43"
    vVO = 6
    if opt.get("cst") or "fst" in opt: A("s_memtime s[88:89]\nv_mov_b32 v230, 0")
    A(f"""
    s_mul_i32 s4, {sLOC}, 171
    s_lshr_b32 s4, s4, 9
    s_mul_i32 s5, s4, 3
    s_sub_u32 s5, {sLOC}, s5
    s_lshr_b32 s6, {sXCD}, 2
    s_mul_i32 s6, s6, 7
    s_add_u32 {sMI}, s6, s4
    s_and_b32 s6, {sXCD}, 3
    s_mul_i32 s6, s6, 3
    s_add_u32 {sNI}, s6, s5
    s_mul_i32 s42, {sMI}, 3
    s_mov_b32 s57, s5
    """)
    RL = opt.get("rl", 0)
    if RL:
        A(f"""
        s_add_u32 s58, s4, s5
        s_mul_i32 s6, s58, 171
        s_lshr_b32 s6, s6, 9
        s_mul_i32 s6, s6, 3
        s_sub_u32 s58, s58, s6
        s_cmp_ge_u32 s4, 3
        s_cselect_b32 s6, 3, 2
        s_cmp_eq_u32 s58, 2
        s_cselect_b32 s58, s6, s58
        """)
    A(f"""
    s_sub_u32 s4, {sW}, 4
    s_cmp_lt_u32 s4, 3
    s_cbranch_scc1 W2_DEQ
    s_mov_b32 s14, {V_BYTES}
    v_lshrrev_b32 v2, 4, v1
    v_and_b32 v3, 15, v1
    v_lshlrev_b32 v4, 1, v2
    v_xor_b32 v3, v3, v4
    v_lshlrev_b32 v3, 4, v3
    v_mul_u32_u24 v4, 0xc00, v2
    v_add_u32 v{vVO}, v3, v4
    v_add_u32 v{vVO+1}, 11264, v{vVO}
    v_xor_b32 v3, 0x80, v{vVO}
    v_add_u32 v{vVO+2}, {2*11264}, v3
    v_add_u32 v{vVO+3}, {3*11264}, v3
    s_lshl_b32 {sVOFS}, {sNI}, 8
    s_cmp_lt_u32 {sW}, 4
    s_cbranch_scc1 W2_MFMA
    """)

    def v_group():
        for j in range(4):
            A(f"buffer_load_dwordx4 v{vVO+j}, s[12:15], {sVOFS} offen offset:{1024*j} lds")

    GPC = opt.get("gpc", 2 if SH else 4)
    VR = opt.get("vr", 0)
    sLO = [80, 81, 82, 83, 44, 45, 46, 47]
    if VR:
        A(f"""
        s_lshr_b32 s6, {sXCD}, 2
        s_xor_b32 s6, s6, {1 if VR == 2 else 0}
        s_lshl_b32 s6, s6, 2
        """)
        for g in range(7, -1, -1):
            if VR == 1:
                A(f"""
                s_add_u32 s5, {sMI}, {g}
                s_and_b32 s5, s5, 7
                """)
            else:
                A(f"""
                s_add_u32 s5, {sMI}, {g}
                s_and_b32 s5, s5, 3
                s_or_b32 s5, s5, {g & 4}
                s_xor_b32 s5, s5, s6
                """)
            A(f"""
            s_lshl_b32 s{sLO[g]}, s5, 12
            s_mul_i32 s5, s5, {16*3072}
            """)
            for j in range(4):
                A(f"v_add_u32 v{vVO+4*g+j}, s5, v{vVO+j}")
        A(f"s_mov_b32 s48, {VSTAGE}")
    else:
      for g in range(1, 8):
        for j in range(4):
            A(f"v_add_u32 v{vVO+4*g+j}, {g*16*3072}, v{vVO+j}")
    gate_addr(A, "v40", 15 if opt.get("fw") else 7)
    LP, LG = opt.get("lp", 0), opt.get("lg", 1)
    A(f"""
    s_mov_b32 m0, {VSTAGE}
    s_mov_b32 {sC}, 1
    """)
    if RL:
        A(f"""
        s_cmp_eq_u32 s58, 3
        s_cselect_b32 s59, {VSTAGE}, 0
        s_cselect_b32 s60, 393216, 0
        s_sub_u32 m0, m0, s59
        s_sub_u32 {sVOFS}, {sVOFS}, s60
        """)
    A("s_waitcnt lgkmcnt(0)")
    stamp(A, opt, 1)
    cst(A, opt, 0, 49)
    ST = 7 if RL else opt.get("st", 0)
    if ST & 1:
        cst(A, opt, 0, 50)
        A("s_barrier")
        cst(A, opt, 0, 51)
        A(f"s_setprio {opt.get('lpr', 3)}")
    A.label("W2L_LOOP")
    A(f"""
    s_add_u32 {sVOFS}, {sVOFS}, 393216
    s_cmp_lg_u32 {sC}, {GPC}
    s_cbranch_scc1 W2L_NG
    buffer_load_dword v42, v40, {DBG}, 0 offen sc1
    """)
    A.label("W2L_NG")
    FL_ = Fst(A, opt, "l", True)
    FL_()
    if opt.get("fl") == 2:
        A(f"""
        s_cmp_lg_u32 {sC}, {opt.get("fst", 0) + 2}
        s_cbranch_scc1 W2L_FL2
        """)
        for n_ in (28, 24, 20, 16, 12, 8, 4, 0):
            A(f"s_waitcnt vmcnt({n_})")
            FL_()
        A.label("W2L_FL2")
    nsleep(A, opt.get("ld", 0))
    if opt.get("ld11"):
        A(f"""
        s_cmp_lg_u32 {sC}, 11
        s_cbranch_scc1 W2L_LD
        s_sleep {opt["ld11"]}
        """)
        A.label("W2L_LD")
    for g in range(8):
        if VR: A(f"s_add_u32 m0, s48, s{sLO[g]}\ns_nop 0")
        if g == 6: A("s_waitcnt vmcnt(54)")
        for j in range(4):
            A(f"buffer_load_dwordx4 v{vVO+4*g+j}, s[12:15], {sVOFS} offen offset:{1024*j} lds")
            if j == 3 and not VR: A("s_add_u32 m0, m0, 4096")
            if j == 3 and g < 7 and not VR: A("s_nop 0")
            if j == 3 and (not opt.get("fl") or g in (0, 3, 7)): FL_()
            if opt.get("lpa") and (4*g+j+1) % opt.get("lpg", 1) == 0:
                n_ = opt["lpa"]
                while n_ > 0:
                    A(f"s_nop {min(n_, 16) - 1}"); n_ -= 16
    if VR:
        assert not LP and not RL
        A(f"""
        s_add_u32 s48, s48, {VSTAGE}
        s_cmp_ge_u32 s48, {RING}
        s_cselect_b32 s48, 0, s48
        """)
    else:
        A(f"""
        s_cmp_ge_u32 m0, {RING}
        s_cselect_b32 m0, 0, m0
        """)
    if RL:
        A(f"""
        s_cmp_eq_u32 s59, 0
        s_cbranch_scc1 W2L_R
        s_add_u32 m0, m0, s59
        s_add_u32 {sVOFS}, {sVOFS}, s60
        s_mov_b32 s59, 0
        s_waitcnt vmcnt(0)
        """)
        A.label("W2L_R")
    if not ST & 1:
        A(f"""
        s_cmp_lg_u32 {sC}, 1
        s_cbranch_scc1 W2L_NT
        """)
        cst(A, opt, 0, 50)
        A("s_barrier")
        cst(A, opt, 0, 51)
        A(f"s_setprio {opt.get('lpr', 3)}")
        if opt.get("v2e"): A("s_branch W2L_NB")
        A.label("W2L_NT")
        if opt.get("v2e"):
            A(f"""
            s_cmp_lg_u32 {sC}, 2
            s_cbranch_scc1 W2L_N2
            s_barrier
            """)
            A.label("W2L_N2")
    cst(A, opt, sC, 31)
    A(f"""
    s_waitcnt vmcnt(32)
    s_cmp_lg_u32 {sC}, {GPC}
    s_cbranch_scc1 W2L_G_X
    """)
    poll_check(A, "v42", 0, "W2L_GS")
    A.label("W2L_G_X")
    FL_()
    if opt.get("fl") == 1:
        A(f"""
        s_cmp_lg_u32 {sC}, {opt.get("fst", 0) + 2}
        s_cbranch_scc1 W2L_FL
        """)
        for n_ in (31, 28, 24, 20, 16, 12, 8, 4, 0):
            A(f"s_waitcnt vmcnt({n_})")
            FL_()
        A.label("W2L_FL")
    FL_.save(sC, opt.get("fst", 0) + 2, "L")
    cst(A, opt, sC, 15)
    A("s_barrier")
    cst(A, opt, sC, -1)
    A.label("W2L_NB")
    A(f"""
    s_add_u32 {sC}, {sC}, 1
    s_cmp_lt_u32 {sC}, {12 - (1 if LP else 0)}
    s_cbranch_scc1 W2L_LOOP
    """)
    if LP:
        A(f"s_add_u32 {sVOFS}, {sVOFS}, 393216")
        for g in range(8):
            if g == 6: A("s_waitcnt vmcnt(54)")
            for j in range(4):
                A(f"buffer_load_dwordx4 v{vVO+4*g+j}, s[12:15], {sVOFS} offen offset:{1024*j} lds")
                if j == 3: A("s_add_u32 m0, m0, 4096")
                if (4 * g + j + 1) % LG == 0 and 4 * g + j < 31:
                    n = LP
                    while n > 0:
                        A(f"s_nop {min(n, 16) - 1}"); n -= 16
                elif j == 3 and g < 7: A("s_nop 0")
        cst(A, opt, sC, 31)
        A("s_waitcnt vmcnt(32)")
        cst(A, opt, sC, 15)
        A("s_barrier")
        cst(A, opt, sC, -1)
    EF = MAP["ef"]

    def early_flag():
        nsleep(A, opt.get("pd", 0))
        A(f"""
        s_mov_b64 exec, 1
        buffer_store_dword v41, v40, s[24:27], s51 offen sc1
        s_mov_b64 exec, -1
        """)
        stamp(A, opt, 4)
    if EF:
        A(f"""
        s_mul_i32 s51, {sNI}, 14
        s_add_u32 s51, s51, {sMI}
        s_lshl_b32 s51, s51, 7
        s_add_u32 s51, s51, {FLG}
        v_mov_b32 v41, 1
        """)
        if EF == 10: early_flag()
        A(f"""
        s_waitcnt vmcnt({1 if EF == 10 else 0})
        s_barrier
        """)
        if EF == 11: early_flag()
        A("s_barrier")
        if EF == 12: early_flag()
        A("s_setprio 0")
    elif opt.get("nb"):
        A("s_setprio 0")
        if opt["nb"] == 2 and MAP["ac"]:
            p2_tile(A)
            nsleep(A, opt.get("xpd", 0))
            A(f"""
            s_buffer_load_dword s61, s[24:27], s44 glc
            v_mov_b32 v4, {LFLAG}
            v_mov_b32 v3, 1
            s_waitcnt vmcnt(0) lgkmcnt(0)
            s_cmp_lt_u32 s61, 20
            s_cbranch_scc1 W2L_NX
            ds_write_b32 v4, v3
            s_waitcnt lgkmcnt(0)
            """)
            A.label("W2L_NX")
        elif opt["nb"] == 2:
            p2_tile(A)
            A(f"""
            v_min_u32 v2, 19, v1
            v_lshlrev_b32 v2, 7, v2
            buffer_load_dword v3, v2, s[24:27], s44 offen sc1
            v_mov_b32 v4, {LFLAG}
            s_waitcnt vmcnt(0)
            """)
            poll_check(A, "v3", 0, "W2L_NX")
            A("""
            ds_write_b32 v4, v3
            s_waitcnt lgkmcnt(0)
            """)
            A.label("W2L_NX")
        A("""
        s_waitcnt vmcnt(0)
        s_barrier
        """)
    else:
        A(f"""
        s_setprio 0
        s_waitcnt vmcnt(0)
        s_barrier
        s_barrier
        """)
    cst_out(A, opt)
    A("s_branch P2_MM")
    A.label("W2L_GS")
    A(f"s_mov_b32 s7, {POLL_MAX}")
    A.label("W2L_G")
    A(f"""
    s_sub_u32 s7, s7, 1
    s_cbranch_scc1 W2L_G_X
    buffer_load_dword v42, v40, {DBG}, 0 offen sc1
    s_waitcnt vmcnt(0)
    """)
    poll_check(A, "v42", 0, "W2L_G")
    A("s_branch W2L_G_X")
    A.label("W2_DEQ")
    sB = "s38"
    sQOFS = "s43"
    vQO = 6
    vAW = 14
    vTB = 22
    U_ = 24
    Ft = 40
    O = 48
    vQ = 52
    QS = 32
    vAP = 116
    vP = 124
    vPL, vPA = 156, 157
    sCS, sPK, sQF = "s39", "s45", "s46"
    A(f"""
    s_mov_b32 {sB}, s4
    s_add_u32 s4, s42, {sB}
    s_cmp_ge_u32 s4, 40
    s_cbranch_scc1 W2D_IDLE
    s_mul_i32 {sQOFS}, s4, {16*6144}
    """)
    if SH:
        A(f"""
        s_mul_i32 {sPK}, s4, {12*4096}
        s_add_u32 {sPK}, {sPK}, {SA + 2*4096}
        """)
    A(f"""
    s_lshr_b32 s6, s4, 1
    s_lshr_b32 s5, s42, 1
    s_sub_u32 s6, s6, s5
    s_mul_i32 s6, s6, 6144
    s_add_u32 s6, s6, {TBL}
    s_mov_b32 s10, {QW_BYTES}
    v_lshrrev_b32 v2, 5, v1
    v_and_b32 v3, 31, v1
    v_lshlrev_b32 v4, 4, v3
    v_mul_u32_u24 v{vQO}, 0x1800, v2
    v_add_u32 v{vQO}, v{vQO}, v4
    v_add_u32 v{vTB}, s6, v4
    """)
    QR = opt.get("qr", 3)
    A(f"s_mul_i32 s57, s57, {QR}")
    for i in range(7, -1, -1):
        A(f"""
        s_add_u32 s4, s57, {i}
        s_and_b32 s4, s4, 7
        s_mul_i32 s4, s4, 12288
        v_add_u32 v{vQO+i}, s4, v{vQO}
        """)
    A("s_waitcnt lgkmcnt(0)")
    stamp(A, opt, 1)
    cst(A, opt, 0, 49)

    def t_read(n):
        u = U_ + 8 * (n & 1)
        A(f"""
        ds_read_b128 {vr(u,4)}, v{vTB}
        ds_read_b128 {vr(u+4,4)}, v{vTB} offset:12288
        v_add_u32 v{vTB}, 512, v{vTB}
        """)

    if RL:
        A("""
        s_cmp_lg_u32 s58, 1
        s_cbranch_scc1 W2D_R0
        """)
        for i in range(8):
            A(f"buffer_load_dwordx4 {vr(vQ+QS+4*i,4)}, v{vQO+i}, s[8:11], {sQOFS} offen offset:512")
        A.label("W2D_R0")
    for u in range(1 if ST & 2 else NQ):
        for i in range(8):
            A(f"buffer_load_dwordx4 {vr(vQ+QS*u+4*i,4)}, v{vQO+i}, s[8:11], {sQOFS} offen offset:{512*u}")
    A(f"""
    s_add_u32 {sQOFS}, {sQOFS}, 512
    s_lshl_b32 s4, {sB}, 12
    s_add_u32 s4, s4, {ABASE}
    v_bfe_u32 v3, v1, 1, 4
    v_xor_b32 v4, v3, v2
    v_lshlrev_b32 v4, 4, v4
    v_lshl_add_u32 v4, v2, 8, v4
    v_and_b32 v3, 1, v1
    v_lshl_add_u32 v4, v3, 3, v4
    v_add_u32 v{vAW}, s4, v4
    """)
    if SH:
        for i in range(8):
            A(f"""
            v_xor_b32 v3, {32*i}, v{vAW}
            v_add_u32 v{vAP+i}, {512*i}, v3
            """)
        A(f"""
        s_mul_i32 {sQF}, {sMI}, 12
        s_add_u32 {sQF}, {sQF}, {sNI}
        s_lshl_b32 {sQF}, {sQF}, 2
        s_add_u32 {sQF}, {sQF}, {sB}
        s_lshl_b32 {sQF}, {sQF}, 6
        s_add_u32 {sQF}, {sQF}, {SFLG}
        s_movk_i32 {sCS}, 100
        v_max_u32 v{vPA}, {SH}, v1
        v_min_u32 v{vPA}, 11, v{vPA}
        v_lshlrev_b32 v{vPA}, 2, v{vPA}
        v_mov_b32 v{vPL}, 0
        """)
    for i in range(7, -1, -1):
        A(f"""
        s_add_u32 s4, s57, {i}
        s_and_b32 s4, s4, 7
        s_lshl_b32 s5, s4, 5
        s_lshl_b32 s4, s4, 9
        v_xor_b32 v3, s5, v{vAW}
        v_add_u32 v{vAW+i}, s4, v3
        """)
    A(f"s_mov_b32 {sC}, 0")
    cst(A, opt, 0, 50)
    if opt.get("cst") and not ST & 2:
        A("s_waitcnt vmcnt(8)")
        cst(A, opt, 0, 52)
    A("s_barrier")
    cst(A, opt, 0, 51)
    A(f"s_setprio {opt.get('dpr', 3)}")
    t_read(0)
    if ST & 2:
        if RL:
            A("""
            s_cmp_lg_u32 s58, 1
            s_cbranch_scc1 W2D_R1
            s_waitcnt vmcnt(0)
            s_branch W2D_R2
            """)
            A.label("W2D_R1")
        for i in range(8):
            A(f"buffer_load_dwordx4 {vr(vQ+QS+4*i,4)}, v{vQO+i}, s[8:11], {sQOFS} offen")
        if RL: A.label("W2D_R2")
        if opt.get("cst"):
            cst(A, opt, 0, 53)
            A("s_waitcnt vmcnt(8)")
            cst(A, opt, 0, 52)
    A("s_waitcnt lgkmcnt(0)")
    UN = 2

    def sload(n, sofs):
        for j in range(4):
            A(f"buffer_load_dwordx4 {vr(vP+16*n+4*j,4)}, v5, s[24:27], {sofs} offen offset:{1024*j} sc1")

    if opt.get("pw"):
        assert not SH and not ST & 2
        OB = 160
        PW = opt["pw"]
        if not opt.get("tp"): t_read(1)
        A(f"""
        s_mov_b32 {sC}, -1
        s_waitcnt lgkmcnt(0)
        s_branch W2D_ENT
        .p2align 3
        """)
        A.label("W2D_LOOP")
        for n in range(2):
            FD = Fst(A, opt, "d", n == (opt.get("fst", 0) + 1) & 1)
            FD()
            for i in range(8):
                A(f"ds_write_b64 v{vAW+i}, {vr(OB+2*i,2)} offset:{ASTAGE*n}")
                if i in (3, 7): FD()
            if n == 1:
                A(f"""
                s_cmp_eq_u32 {sC}, 11
                s_cbranch_scc1 W2D_END
                """)
            TP = opt.get("tp", 0)
            if TP == 0: t_read(n)
            if n == 1: A.label("W2D_ENT")
            q = vQ + QS * (n ^ 1)
            S = U_ + 8 * (n ^ 1)
            A(f"""
            s_add_u32 {sQOFS}, {sQOFS}, 512
            s_cmp_lt_i32 {sC}, 9
            s_cbranch_scc1 W2D_NT{n}
            s_waitcnt vmcnt({8 if n == 1 else 0})
            """)
            A.label(f"W2D_NT{n}")
            for i in range(8):
                qq = q + 4 * i
                f = Ft + 4 * (i & 1)
                o = OB + 2 * i
                if i % RG == 0: A(f"s_waitcnt vmcnt({16 - RG})")
                A(f"""
                v_fma_f32 v{f}, v{qq}, v{S}, v{S+4}
                v_fma_f32 v{f+1}, v{qq+1}, v{S+1}, v{S+5}
                v_fma_f32 v{f+2}, v{qq+2}, v{S+2}, v{S+6}
                v_fma_f32 v{f+3}, v{qq+3}, v{S+3}, v{S+7}
                v_cvt_pk_bf16_f32 v{o}, v{f}, v{f+1}
                v_cvt_pk_bf16_f32 v{o+1}, v{f+2}, v{f+3}
                """)
                if i + 1 == TP: t_read(n)
                if (i + 1) % RG == 0:
                    FD()
                    A(f"s_cbranch_scc0 W2D_SK{n}_{i}")
                    for ii in range(i + 1 - RG, i + 1):
                        A(f"buffer_load_dwordx4 {vr(q+4*ii,4)}, v{vQO+ii}, s[8:11], {sQOFS} offen")
                    A.label(f"W2D_SK{n}_{i}")
                    FD()
            A("s_waitcnt lgkmcnt(0)")
            FD()
            FD.save(sC, opt.get("fst", 0) + 1, "D")
            A(f"s_add_u32 {sC}, {sC}, 1")
            if n == 1:
                A("s_cbranch_scc1 W2D_LOOP")
            cst(A, opt, sC, 15)
            A("s_barrier")
            cst(A, opt, sC, -1)
            if n == 1: A("s_branch W2D_LOOP")
            else: A(".p2align 3")
        A.label("W2D_END")
        A("""
        s_setprio 0
        s_waitcnt lgkmcnt(0)
        """)
        cst(A, opt, sC, 16)
        A("s_barrier")
        cst(A, opt, sC, 0)
        assert opt.get("nb")
        cst_out(A, opt)
        A("s_branch P2_MM")
        UN = 0
    else:
        A.label("W2D_LOOP")
    for n in range(UN):
        u = n % NQ
        q = vQ + QS * u
        S = U_ + 8 * (n & 1)
        if SH:
            A(f"""
            s_add_u32 s5, {sC}, {n}
            s_lshl_b32 s47, s5, 12
            s_add_u32 s47, s47, {sPK}
            s_cmp_ge_u32 s5, {sCS}
            s_cbranch_scc1 W2D_PK{n}
            """)
        FD = Fst(A, opt, "d", n == (opt.get("fst", 0) + 1) & 1)
        FD()
        t_read(n + 1)
        A(f"s_add_u32 {sQOFS}, {sQOFS}, 512")
        if SH:
            A(f"""
            s_add_u32 s6, s5, 1
            s_min_u32 s7, {sCS}, 12
            s_cmp_lt_u32 s6, s7
            s_waitcnt vmcnt(8)
            s_cbranch_scc1 W2D_NT{n}
            s_cmp_lt_u32 s6, 12
            s_waitcnt vmcnt(4)
            s_cbranch_scc1 W2D_NT{n}
            s_waitcnt vmcnt(0)
            """)
            A.label(f"W2D_NT{n}")
            A(f"""
            s_add_u32 s6, s5, 2
            s_cmp_lt_u32 {sCS}, 100
            s_cbranch_scc1 W2D_E{n}
            v_cmp_ne_u32 vcc, 0, v{vPL}
            s_max_u32 s7, s6, {SH}
            s_cmp_eq_u64 vcc, -1
            s_cselect_b32 {sCS}, s7, {sCS}
            s_cbranch_scc1 W2D_E{n}
            s_cmp_lt_u32 s5, {max(GPC, opt.get("sp0", 0))}
            s_cbranch_scc1 W2D_E{n}
            buffer_load_dword v{vPL}, v{vPA}, s[24:27], {sQF} offen sc1
            """)
            A.label(f"W2D_E{n}")
            A(f"""
            s_cmp_gt_u32 s6, 11
            s_cbranch_scc1 W2D_F{n}
            s_cmp_lt_u32 s6, {sCS}
            s_cbranch_scc1 W2D_F{n}
            """)
            sload(n, "s47")
            A.label(f"W2D_F{n}")
            A(f"""
            s_min_u32 s7, {sCS}, 12
            s_cmp_lt_u32 s6, s7
            """)
        else:
            A(f"""
            s_cmp_lt_u32 {sC}, {12-NQ-n+1}
            s_waitcnt vmcnt({8*(NQ-1)})
            s_cbranch_scc1 W2D_NT{n}
            s_waitcnt vmcnt({8*min(NQ-1, max(0, UN-1-n))})
            """)
            A.label(f"W2D_NT{n}")
            FD()
            A(f"s_cmp_lt_u32 {sC}, {opt.get('noq', 12)-NQ-n}")
        for i in range(8):
            qq = q + 4 * i
            f = Ft + 4 * (i & 1)
            o = O + 2 * (i & 1)
            WL = opt.get("wl", 0)
            if n == 1: WL = opt.get("wl1", WL)
            if WL: o = 160 + 2 * i
            if opt.get("bf") == 2:
                for j in range(4): A(f"v_bfe_u32 v{f+j}, v{qq+j}, 0, 3")
                for j in range(4): A(f"v_fma_f32 v{f+j}, v{f+j}, v{S+j}, v{S+4+j}")
                A(f"""
                v_cvt_pk_bf16_f32 v{o}, v{f}, v{f+1}
                v_cvt_pk_bf16_f32 v{o+1}, v{f+2}, v{f+3}
                """)
            elif opt.get("bf"):
                for j in range(4): A(f"v_bfe_u32 v{f+j}, v{qq+j}, 0, 3")
                A(f"""
                v_pk_fma_f32 {vr(f,2)}, {vr(f,2)}, {vr(S,2)}, {vr(S+4,2)}
                v_pk_fma_f32 {vr(f+2,2)}, {vr(f+2,2)}, {vr(S+2,2)}, {vr(S+6,2)}
                v_cvt_pk_bf16_f32 v{o}, v{f}, v{f+1}
                v_cvt_pk_bf16_f32 v{o+1}, v{f+2}, v{f+3}
                """)
            else:
              A(f"""
            v_fma_f32 v{f}, v{qq}, v{S}, v{S+4}
            v_fma_f32 v{f+1}, v{qq+1}, v{S+1}, v{S+5}
            v_fma_f32 v{f+2}, v{qq+2}, v{S+2}, v{S+6}
            v_fma_f32 v{f+3}, v{qq+3}, v{S+3}, v{S+7}
            v_cvt_pk_bf16_f32 v{o}, v{f}, v{f+1}
            v_cvt_pk_bf16_f32 v{o+1}, v{f+2}, v{f+3}
            """)
            if i + 1 == WL:
                for ii in range(WL): A(f"ds_write_b64 v{vAW+ii}, {vr(160+2*ii,2)} offset:{ASTAGE*(n&1)}")
            elif i + 1 > WL:
                A(f"ds_write_b64 v{vAW+i}, {vr(o,2)} offset:{ASTAGE*(n&1)}")
            FD()
            if (i + 1) % RG == 0:
                A(f"s_cbranch_scc0 W2D_SK{n}_{i}")
                for ii in range(i + 1 - RG, i + 1):
                    A(f"buffer_load_dwordx4 {vr(q+4*ii,4)}, v{vQO+ii}, s[8:11], {sQOFS} offen")
                A.label(f"W2D_SK{n}_{i}")
                FD()
        A("s_waitcnt lgkmcnt(0)")
        FD()
        FD.save(sC, (opt.get("fst", 0) + 1) & ~1, "D")
        if SH: A.label(f"W2D_J{n}")
        cst(A, opt, sC, 16 + n)
        A("s_barrier")
        cst(A, opt, sC, n)
    if UN:
        A(f"""
        s_add_u32 {sC}, {sC}, {UN}
        s_cmp_lt_u32 {sC}, 12
        s_cbranch_scc1 W2D_LOOP
        """)
        A("s_setprio 0")
        if SH and opt.get("stamp"): A(f"s_mov_b32 s90, {sCS}")
        if not opt.get("nb"): A("s_barrier")
        cst_out(A, opt)
        A("s_branch P2_MM")
    if SH:
        for n in range(UN):
            A.label(f"W2D_PK{n}")
            A(f"""
            s_cmp_lt_u32 s5, 11
            s_waitcnt vmcnt(4)
            s_cbranch_scc1 W2D_PW{n}
            s_waitcnt vmcnt(0)
            """)
            A.label(f"W2D_PW{n}")
            for i in range(8):
                A(f"ds_write_b64 v{vAP+i}, {vr(vP+16*n+2*i,2)} offset:{ASTAGE*(n&1)}")
            A(f"""
            s_cmp_gt_u32 s5, 9
            s_waitcnt lgkmcnt(0)
            s_cbranch_scc1 W2D_J{n}
            """)
            sload(n, "s47")
            A(f"s_branch W2D_J{n}")
    A.label("W2D_IDLE")
    A(f"""
    s_mov_b32 {sC}, 0
    s_waitcnt lgkmcnt(0)
    """)
    A.label("W2D_IDL")
    A(f"""
    s_barrier
    s_add_u32 {sC}, {sC}, 1
    s_cmp_lt_u32 {sC}, {13 if opt.get("nb") else 14}
    s_cbranch_scc1 W2D_IDL
    s_branch P2_MM
    """)
    A.label("W2_MFMA")
    sCST = "s45"
    vAR = 10
    vBR = 14
    vT0, vT1 = 16, 17
    vST = 18
    vACC = 20
    vF = 44
    P = vF
    if ST & 8:
        A(f"""
        s_lshr_b32 s5, {sMI}, 1
        s_add_u32 s5, s5, {sW}
        s_and_b32 s5, s5, 3
        """)
    A(f"""
    s_lshl_b32 s4, {"s5" if ST & 8 else sW}, 13
    s_mov_b32 m0, s4
    s_mul_i32 s4, {"s5" if ST & 8 else sW}, {32*3072}
    s_add_u32 {sVOFS}, {sVOFS}, s4
    s_lshr_b32 s6, s42, 1
    s_mul_i32 s6, s6, 3072
    s_mov_b32 s18, {SC_BYTES}
    s_mov_b32 s19, 0x00020000
    s_mov_b32 s22, {SC_BYTES}
    s_mov_b32 s23, 0x00020000
    v_and_b32 v2, 0xff, v0
    v_lshlrev_b32 v19, 3, v2
    """)
    if ST & 4:
        A(f"""
        s_lshr_b32 s4, {sW}, 1
        s_lshl_b32 s4, s4, 11
        v_add_u32 v19, s4, v19
        s_mov_b32 s56, s6
        v_mov_b32 v{vT0}, v19
        """)
        if RL:
            A(f"""
            s_cmp_eq_u32 s58, 3
            s_cselect_b32 s4, {VSTAGE}, 0
            s_cselect_b32 s5, 393216, 0
            s_add_u32 m0, m0, s4
            s_add_u32 {sVOFS}, {sVOFS}, s5
            """)
        else:
            A(f"""
            s_add_u32 s58, s57, {sMI}
            s_and_b32 s58, s58, {1 if ST & 16 else 0}
            """)
    A("s_waitcnt lgkmcnt(0)")
    stamp(A, opt, 1)
    cst(A, opt, 0, 49)

    def v0_loads():
        v_group()
        A(f"""
        s_add_u32 m0, m0, 4096
        s_add_u32 {sVOFS}, {sVOFS}, {16*3072}
        """)
        v_group()
        if not RL: s12_loads()

    def s12_loads():
        for j in range(1, 3):
            A(f"""
            buffer_load_dwordx2 {vr(P+4*j,2)}, v{vT0}, s[16:19], s56 offen offset:{1024*j}
            buffer_load_dwordx2 {vr(P+4*j+2,2)}, v{vT0}, s[20:23], s56 offen offset:{1024*j}
            """)
    if ST & 4:
        A(f"""
        buffer_load_dwordx2 {vr(P,2)}, v19, s[16:19], s6 offen
        buffer_load_dwordx2 {vr(P+2,2)}, v19, s[20:23], s6 offen
        {"s_cmp_lt_u32 s58, 2" if RL else "s_cmp_lg_u32 s58, 0"}
        s_cbranch_scc1 W2M_VA
        """)
        v0_loads()
        A.label("W2M_VA")
        if RL: s12_loads()
    else:
        for j in range(2):
            A(f"""
            buffer_load_dwordx2 {vr(P+4*j,2)}, v19, s[16:19], s6 offen offset:{2048*j}
            buffer_load_dwordx2 {vr(P+4*j+2,2)}, v19, s[20:23], s6 offen offset:{2048*j}
            """)
        A(f"""
        s_add_u32 s6, s6, 4096
        buffer_load_dwordx2 {vr(P+8,2)}, v19, s[16:19], s6 offen
        buffer_load_dwordx2 {vr(P+10,2)}, v19, s[20:23], s6 offen
        """)
        v_group()
        A(f"""
        s_add_u32 m0, m0, 4096
        s_add_u32 {sVOFS}, {sVOFS}, {16*3072}
        """)
        v_group()
    A(f"""
    v_lshlrev_b32 v19, 1, v19
    v_add_u32 v19, {TBL}, v19
    v_and_b32 v2, 15, v1
    v_lshrrev_b32 v3, 4, v1
    v_xor_b32 v4, v2, v3
    v_lshlrev_b32 v4, 4, v4
    v_lshl_add_u32 v4, v2, 8, v4
    v_add_u32 v{vAR}, {ABASE}, v4
    v_xor_b32 v{vAR+1}, 64, v{vAR}
    v_xor_b32 v{vAR+2}, 128, v{vAR}
    v_xor_b32 v{vAR+3}, 192, v{vAR}
    v_bfe_u32 v2, v1, 2, 2
    v_and_b32 v4, 1, v3
    v_lshl_or_b32 v4, v4, 2, v2
    s_lshl_b32 s5, {sW}, 1
    v_xor_b32 v4, s5, v4
    v_lshlrev_b32 v4, 5, v4
    v_lshl_add_u32 v2, v3, 3, v2
    v_lshl_add_u32 v4, v2, 8, v4
    v_and_b32 v2, 3, v1
    v_lshl_add_u32 v{vBR}, v2, 3, v4
    v_xor_b32 v{vBR+1}, 32, v{vBR}
    s_mov_b32 {sCST}, 0
    s_mov_b32 {sC}, 0
    s_lshl_b32 s4, {sNI}, 2
    s_add_u32 s4, s4, {sW}
    s_mul_i32 s5, s4, 40
    s_add_u32 s5, s5, s42
    s_lshl_b32 s5, s5, 10
    s_add_u32 s50, s5, {W2F}
    s_mul_i32 s5, s4, 171
    s_lshr_b32 s5, s5, 9
    s_mul_i32 s6, s5, 3
    s_sub_u32 s6, s4, s6
    s_mul_i32 s6, s6, 14
    s_add_u32 s6, s6, {sMI}
    s_lshl_b32 s6, s6, 2
    s_lshl_b32 s5, s5, 8
    s_add_u32 s5, s5, s6
    s_add_u32 s51, s5, {FLG}
    """)
    if MAP["ac"]:
        A(f"""
        s_mul_i32 s51, s4, 171
        s_lshr_b32 s51, s51, 9
        s_lshl_b32 s51, s51, 7
        s_add_u32 s51, s51, {FLG}
        """)
    elif MAP["lf"]:
        A(f"""
        s_mul_i32 s51, s4, 14
        s_add_u32 s51, s51, {sMI}
        s_lshl_b32 s51, s51, 7
        s_add_u32 s51, s51, {FLG}
        """)
    A(f"""
    s_mov_b32 s53, {11 if MAP["ac"] else 12}
    s_mov_b32 s54, {hex((127+149-QE) << 23)}
    s_mov_b32 s55, {hex((127+149-QE) << 23)}
    s_mov_b32 s46, 0xffff0000
    s_mov_b32 s47, {hex((127+QE) << 23)}
    s_mov_b32 s48, {hex(0x80000000 | ((127+QE-149) << 23))}
    v_bfe_u32 v3, v1, 4, 1
    v_lshrrev_b32 v4, 5, v1
    v_and_b32 v{vST}, 15, v1
    v_lshl_add_u32 v{vST}, v3, 5, v{vST}
    v_lshl_add_u32 v{vST}, v4, 4, v{vST}
    v_lshlrev_b32 v{vST}, 4, v{vST}
    """)
    FC = opt.get("fc", 4)
    if FC > 50: FC = -1
    if opt.get("fw"): EF = 0
    if EF and FC < 0:
        assert not (ST & 4) and not RL
        for i in range(4): A(f"v_mov_b32 v{204+i}, -1")
        A(f"""
        s_cmp_eq_u32 {sMI}, 13
        s_cselect_b32 s4, 0, 1024
        s_add_u32 s5, s50, s4
        s_add_u32 s4, s5, s4
        buffer_store_dwordx4 v[204:207], v5, s[24:27], s50 offen sc1
        buffer_store_dwordx4 v[204:207], v5, s[24:27], s5 offen sc1
        buffer_store_dwordx4 v[204:207], v5, s[24:27], s4 offen sc1
        """)
    for i in range(0, 24, 2):
        A(f"v_mov_b64 {vr(vACC+i,2)}, 0")
    for i in range(80 - 20 * opt.get("ml", 4), 80, 2):
        A(f"v_mov_b64 {vr(vF+80+i,2)}, 0")
    if RL:
        A(f"""
        s_cmp_ge_u32 s58, 2
        s_cbranch_scc1 W2M_VB
        s_waitcnt vmcnt(0)
        """)
        A.label("W2M_VB")
    elif ST & 4:
        A(f"""
        s_cmp_eq_u32 s58, 0
        s_cbranch_scc1 W2M_VB
        """)
        nsleep(A, opt.get("vd", 0))
        v0_loads()
        A.label("W2M_VB")
    for j in range(3):
        q = P + 4 * j
        u = P + 16 + 8 * j
        if RL and j == 1:
            A(f"""
            s_cmp_ge_u32 s58, 2
            s_cbranch_scc1 W2M_VC
            s_setprio 3
            """)
            v0_loads()
            A("s_setprio 0")
            A("s_branch W2M_VD")
            A.label("W2M_VC")
            A("s_waitcnt vmcnt(0)")
            A.label("W2M_VD")
        if RL:
            if j == 0: A("s_waitcnt vmcnt(12)")
        elif ST & 4:
            A(f"s_waitcnt vmcnt({(12, 2, 0)[j]})")
            if j == 1: cst(A, opt, 0, 52)
        else:
            A(f"s_waitcnt vmcnt({8 + 4 - 2*j + (3 if EF and FC < 0 else 0)})")
        if j == 0: cst(A, opt, 0, 53)
        scale8(A, u, q, q + 2)
        TS = 2048 if ST & 4 else 4096
        A(f"""
        ds_write_b128 v19, {vr(u,4)} offset:{TS*j}
        ds_write_b128 v19, {vr(u+4,4)} offset:{TS*j+12288}
        """)
        if j == (0 if ST & 4 else 2):
            A("s_waitcnt lgkmcnt(0)")
            cst(A, opt, 0, 50)
            A("s_barrier")
            cst(A, opt, 0, 51)
    if RL:
        A("s_waitcnt vmcnt(0) lgkmcnt(0)")
        cst(A, opt, 0, 52)
    elif ST & 4:
        A("s_waitcnt lgkmcnt(0)")
    else:
        A(f"s_waitcnt vmcnt({3 if EF and FC < 0 else 0})")
        cst(A, opt, 0, 52)

    def reads(s, buf):
        fa = vF + buf * 80 + 20 * s
        fb = fa + 12
        r = []
        for b in range(3):
            r.append(f"ds_read_b128 {vr(fa+4*b,4)}, v{vAR+s} offset:{4096*b + ASTAGE*buf}")
        for t in range(2):
            for u in range(2):
                r.append(f"ds_read_b64_tr_b16 {vr(fb+4*t+2*u,2)}, v{vT0+t} offset:{(32*s+4*u)*256}")
        return r

    def mfmas(s, buf):
        fa = vF + buf * 80 + 20 * s
        fb = fa + 12
        r = []
        for b in range(3):
            for t in range(2):
                acc = vACC + (b * 2 + t) * 4
                r.append(f"v_mfma_f32_16x16x32_bf16 {vr(acc,4)}, {vr(fa+4*b,4)}, {vr(fb+4*t,4)}, {vr(acc,4)}")
        return r

    if EF and FC >= 0:
        for i in range(4): A(f"v_mov_b32 v{204+i}, -1")
    A.label("W2M_LOOP")
    if EF and FC >= 0:
        A(f"""
        s_waitcnt vmcnt(0)
        s_cmp_lg_u32 {sC}, {opt.get("fc", 4)}
        s_cbranch_scc1 W2M_NF
        buffer_store_dwordx4 v[204:207], v5, s[24:27], s50 offen sc1
        s_cmp_eq_u32 {sMI}, 13
        s_cbranch_scc1 W2M_NF
        buffer_store_dwordx4 v[204:207], v5, s[24:27], s50 offen offset:1024 sc1
        buffer_store_dwordx4 v[204:207], v5, s[24:27], s50 offen offset:2048 sc1
        """)
        A.label("W2M_NF")
        assert opt.get("fc", 4) in (0, 2, 4, 6, 8)
    for buf in range(2):
        A(f"""
        v_add_u32 v{vT0}, {sCST}, v{vBR}
        v_add_u32 v{vT1}, {sCST}, v{vBR+1}
        s_add_u32 {sCST}, {sCST}, {VSTAGE}
        s_cmp_ge_u32 {sCST}, {RING}
        s_cselect_b32 {sCST}, 0, {sCST}
        """)
        cst(A, opt, sC, 16 + buf)
        A("s_barrier")
        cst(A, opt, sC, buf)
        rd = sum((reads(s, buf) for s in range(4)), [])
        ML = opt.get("ml", 4)
        mf = []
        for s in range(4):
            g = s - ML
            for k_, m in enumerate(mfmas(g % 4, buf ^ 1 if g < 0 else buf)):
                mf.append((m, -1 if g < 0 else 7 * g + (4 if k_ == 0 else 6)))
        FR = opt.get("fr", 4)
        RP = opt.get("rp", 1)
        seq = rd[:FR]
        ri = FR
        got = -1
        for mi_, (m, need) in enumerate(mf):
            while ri <= min(27, need + (opt.get("ra2", 0) if need >= 0 else 0)):
                seq.append(rd[ri]); ri += 1
            if need > got:
                seq.append(f"s_waitcnt lgkmcnt({min(15, min(ri, 28) - need - 1)})")
                got = need
            seq.append(m)
            if mi_ + 1 < opt.get("f0", 0): continue
            seq += rd[ri:ri + RP]
            ri += RP
        seq += rd[ri:]
        FM = Fst(A, opt, "m", buf == opt.get("fst", 0) & 1)
        FM()
        for xi_, x in enumerate(seq):
            A(x)
            if xi_ % 4 == 3 and FM.n < 14: FM()
        A("s_waitcnt lgkmcnt(0)")
        FM()
        FM.save(sC, opt.get("fst", 0) & ~1, "M")
        if (opt.get("stamp") or opt.get("probe") == 2) and buf == 0:
            A(f"""
            s_cmp_lg_u32 {sC}, 0
            s_cbranch_scc1 W2M_ST
            """)
            stamp(A, opt, 2, True)
            A.label("W2M_ST")
    if EF and FC < 0: A("s_waitcnt vmcnt(0)")
    A(f"""
    s_add_u32 {sC}, {sC}, 2
    s_cmp_lt_u32 {sC}, 12
    s_cbranch_scc1 W2M_LOOP
    s_setprio 3
    """)
    if opt.get("nb"):
        A(f"""
        v_mov_b32 v2, 1
        v_mov_b32 v4, {LFLAG}
        s_mov_b64 exec, 1
        ds_add_u32 v4, v2 offset:8
        s_mov_b64 exec, -1
        """)
    else:
        A("s_barrier")
    for s_ in range(4 - ML, 4):
        for m in mfmas(s_, 1): A(m)
    if opt.get("nb"): A("ds_read_b32 v3, v4 offset:8")
    A("s_nop 7")
    stamp(A, opt, 3)
    for b in range(3):
        a = vACC + 8 * b
        o = vF + 4 * b
        for j in range(4):
            A(f"v_pk_mul_f32 {vr(a+2*j,2)}, {vr(a+2*j,2)}, s[54:55]")
        A(f"""
        v_cvt_pk_bf16_f32 v{o}, v{a}, v{a+1}
        v_cvt_pk_bf16_f32 v{o+1}, v{a+2}, v{a+3}
        v_cvt_pk_bf16_f32 v{o+2}, v{a+4}, v{a+5}
        v_cvt_pk_bf16_f32 v{o+3}, v{a+6}, v{a+7}
        s_nop 1
        v_permlane32_swap_b32 v{o}, v{o+2}
        v_permlane32_swap_b32 v{o+1}, v{o+3}
        buffer_store_dwordx4 {vr(o,4)}, v{vST}, s[24:27], s50 offen offset:{1024*b} sc1
        """)
        if b == 0:
            A(f"""
            s_cmp_eq_u32 {sMI}, 13
            s_cbranch_scc1 W2M_END
            """)
    A.label("W2M_END")
    if opt.get("xw") or opt.get("xb"):
        A(f"""
        v_mov_b32 v2, 1
        v_mov_b32 v4, {LFLAG}
        s_mov_b64 exec, 1
        ds_add_u32 v4, v2 offset:12
        s_mov_b64 exec, -1
        """)
    EF = MAP["ef"]
    cst_out(A, opt)
    if EF: stamp(A, opt, 4)
    if opt.get("nb"):
        A.label("W2M_RC")
        A("""
        s_waitcnt lgkmcnt(0)
        v_readfirstlane_b32 s4, v3
        s_cmp_eq_u32 s4, 4
        s_cbranch_scc1 P2_PUB
        ds_read_b32 v3, v4 offset:8
        s_branch W2M_RC
        """)
        return
    A("s_branch P2_LD" if EF else "s_branch P2_PUB")


def scale8(A, u, s, z):
    A(f"""
    v_lshlrev_b32 v{u}, 16, v{s}
    v_and_b32 v{u+1}, s46, v{s}
    v_lshlrev_b32 v{u+2}, 16, v{s+1}
    v_and_b32 v{u+3}, s46, v{s+1}
    v_lshlrev_b32 v{u+4}, 16, v{z}
    v_and_b32 v{u+5}, s46, v{z}
    v_lshlrev_b32 v{u+6}, 16, v{z+1}
    v_and_b32 v{u+7}, s46, v{z+1}
    """)
    for i in range(4): A(f"v_mul_f32 v{u+4+i}, s48, v{u+4+i}")
    for i in range(4): A(f"v_mul_f32 v{u+4+i}, v{u+i}, v{u+4+i}")
    for i in range(4): A(f"v_mul_f32 v{u+i}, s47, v{u+i}")


def wt_setup(A, opt, tag):
    TC = opt.get("wtc", 2)
    if opt.get("wm", 0):
        assert all((u * 171) >> 10 == u // 6 for u in range(384))
        A(f"""
        s_sub_u32 s4, s3, 21
        s_lshr_b32 s5, s37, 2
        s_and_b32 s6, s37, 3
        s_cmp_ge_u32 s4, 6
        s_cbranch_scc1 WT_Q{tag}
        s_lshl_b32 s4, s4, 6
        v_add_u32 v3, s4, v1
        v_mul_u32_u24 v7, 171, v3
        v_lshrrev_b32 v7, 10, v7
        v_mul_u32_u24 v7, {3072 - 768}, v7
        v_lshl_add_u32 v7, v3, 7, v7
        s_mul_i32 s46, s5, {64*3072}
        s_mul_i32 s6, s6, 768
        s_add_u32 s46, s46, s6
        s_add_u32 s46, s46, {TC*393216}
        s_mov_b32 s47, 393216
        s_mov_b32 s8, s12
        s_mov_b32 s9, s13
        s_mov_b32 s10, {V_BYTES}
        s_branch WT_G{tag}
        """)
        A.label(f"WT_Q{tag}")
        A(f"""
        v_lshrrev_b32 v7, 2, v1
        v_mul_u32_u24 v7, 0x1800, v7
        v_and_b32 v3, 3, v1
        v_lshl_add_u32 v7, v3, 7, v7
        s_mul_i32 s5, s37, 5
        s_add_u32 s4, s4, s5
        s_sub_u32 s4, s4, 6
        s_mul_i32 s46, s4, {16*6144}
        s_add_u32 s46, s46, {TC*512}
        s_movk_i32 s47, 512
        s_mov_b32 s10, {QW_BYTES}
        """)
        A.label(f"WT_G{tag}")
        return
    A(f"""
    s_sub_u32 s4, s2, 168
    s_cmp_ge_u32 s4, 48
    s_cbranch_scc1 WT_Q{tag}
    v_lshlrev_b32 v7, 7, v1
    s_lshl_b32 s46, s4, 13
    s_add_u32 s46, s46, {TC*393216}
    s_mov_b32 s47, 393216
    s_mov_b32 s8, s12
    s_mov_b32 s9, s13
    s_mov_b32 s10, {V_BYTES}
    s_branch WT_G{tag}
    """)
    A.label(f"WT_Q{tag}")
    A(f"""
    v_lshrrev_b32 v7, 2, v1
    v_mul_u32_u24 v7, 0x1800, v7
    v_and_b32 v3, 3, v1
    v_lshl_add_u32 v7, v3, 7, v7
    s_sub_u32 s4, s4, 48
    s_mul_i32 s46, s4, {16*6144}
    s_add_u32 s46, s46, {TC*512}
    s_movk_i32 s47, 512
    s_mov_b32 s10, {QW_BYTES}
    """)
    A.label(f"WT_G{tag}")


def wt(A, opt, i, tag):
    SH = opt.get("sh", 0)
    late = SH and i + opt.get("wtc", 2) >= SH
    if late:
        A(f"""
        s_cmpk_eq_u32 s47, 512
        s_cbranch_scc1 WT_S{tag}{i}
        """)
    A(f"""
    buffer_load_dword v{16+i}, v7, s[8:11], s46 offen
    s_add_u32 s46, s46, s47
    """)
    if late: A.label(f"WT_S{tag}{i}")


def tb_addr(A, tag, ju, nu):
    A(f"""
    s_lshr_b32 s5, s37, 2
    s_and_b32 s6, s37, 3
    s_cmp_ge_u32 s4, 6
    s_cbranch_scc1 TB_Q{tag}
    s_lshl_b32 s4, s4, 6
    """)
    for e in range(nu):
        A(f"""
        v_add_u32 v3, s4, v1
        v_add_u32 v3, {64*e}, v3
        v_mul_u32_u24 v{40+e}, 171, v3
        v_lshrrev_b32 v{40+e}, 10, v{40+e}
        v_mul_u32_u24 v{40+e}, {3072 - 768}, v{40+e}
        v_lshl_add_u32 v{40+e}, v3, 7, v{40+e}
        """)
    A(f"""
    s_mul_i32 s46, s5, {64*3072}
    s_mul_i32 s6, s6, 768
    s_add_u32 s46, s46, s6
    s_mov_b32 s47, 393216
    s_mov_b32 s8, s12
    s_mov_b32 s9, s13
    s_mov_b32 s10, {V_BYTES}
    s_branch TB_G{tag}
    """)
    A.label(f"TB_Q{tag}")
    A(f"""
    v_lshrrev_b32 v40, 2, v1
    v_mul_u32_u24 v40, 0x1800, v40
    v_and_b32 v3, 3, v1
    v_lshl_add_u32 v40, v3, 7, v40
    """)
    for e in range(1, nu):
        A(f"v_add_u32 v{40+e}, {e*16*6144}, v40")
    A(f"""
    s_mul_i32 s5, s37, 5
    s_add_u32 s4, s4, s5
    s_sub_u32 s4, s4, 6
    s_mul_i32 s46, s4, {16*6144}
    s_movk_i32 s47, 512
    s_mov_b32 s10, {QW_BYTES}
    """)
    A.label(f"TB_G{tag}")


def tb_burst(A, nu, nc, k0):
    for c in range(nc):
        for e in range(nu):
            A(f"buffer_load_dword v{k0 + c*nu + e}, v{40+e}, s[8:11], s46 offen")
        A("s_add_u32 s46, s46, s47")


def nsleep(A, n):
    while n > 0:
        A(f"s_sleep {min(n, 127)}"); n -= 127


def gen_prod(A, opt):
    SH = opt["sh"]
    NU = 40 * (12 - SH)
    assert all((u * 205) >> 13 == u // 40 for u in range(320))
    A.label("PROD")
    A(f"""
    s_cmp_lt_u32 s59, {NU}
    s_cselect_b32 s61, 1, 0
    s_cselect_b32 s59, s59, s58
    s_mov_b32 s10, {QW_BYTES}
    s_mov_b32 s18, {SC_BYTES}
    s_mov_b32 s19, 0x00020000
    s_mov_b32 s22, {SC_BYTES}
    s_mov_b32 s23, 0x00020000
    v_lshrrev_b32 v6, 5, v1
    v_and_b32 v7, 31, v1
    v_mul_u32_u24 v6, 0x1800, v6
    v_lshl_add_u32 v6, v7, 4, v6
    v_lshlrev_b32 v7, 3, v7
    """)

    def issue(k):
        u = f"s{58+k}"
        st, fl = f"s{50+2*k}", f"s{51+2*k}"
        A(f"""
        s_mul_i32 s4, {u}, 205
        s_lshr_b32 s4, s4, 13
        s_mul_i32 s5, s4, 40
        s_sub_u32 s5, {u}, s5
        s_add_u32 s4, s4, {SH}
        s_lshr_b32 s6, s5, 1
        s_mul_i32 s6, s6, 3072
        s_lshl_b32 s7, s4, 8
        s_add_u32 s6, s6, s7
        s_mul_i32 s42, s5, {16*6144}
        s_lshl_b32 s7, s4, 9
        s_add_u32 s42, s42, s7
        buffer_load_dwordx2 {vr(8+4*k,2)}, v7, s[16:19], s6 offen
        buffer_load_dwordx2 {vr(10+4*k,2)}, v7, s[20:23], s6 offen
        """)
        for i in range(8):
            A(f"buffer_load_dwordx4 {vr(16+32*k+4*i,4)}, v6, s[8:11], s42 offen")
            if i < 7: A("s_add_u32 s42, s42, 12288")
        A(f"""
        s_mul_i32 {st}, s5, 12
        s_add_u32 {st}, {st}, s4
        s_lshl_b32 {st}, {st}, 12
        s_add_u32 {st}, {st}, {SA}
        s_mul_i32 s6, s5, 171
        s_lshr_b32 s6, s6, 9
        s_mul_i32 s7, s6, 3
        s_sub_u32 s7, s5, s7
        s_mul_i32 {fl}, s6, 3072
        s_lshl_b32 s7, s7, 6
        s_add_u32 {fl}, {fl}, s7
        s_lshl_b32 s7, s4, 2
        s_add_u32 {fl}, {fl}, s7
        s_add_u32 {fl}, {fl}, {SFLG}
        """)

    def bars(n, tag):
        if not n: return
        A(f"""
        s_cmp_eq_u32 s60, 0
        s_cbranch_scc1 PROD_B{tag}
        """)
        for _ in range(n): A("s_barrier")
        A.label(f"PROD_B{tag}")

    def compute(k, younger):
        A(f"s_waitcnt vmcnt({younger + 8})")
        scale8(A, 80, 8 + 4 * k, 10 + 4 * k)
        for i in range(8):
            q = 16 + 32 * k + 4 * i
            o = 96 + 16 * k + 2 * i
            A(f"s_waitcnt vmcnt({younger + 7 - i + i // 2})")
            for j in range(4):
                A(f"v_fma_f32 v{88+j}, v{q+j}, v{80+j}, v{84+j}")
            A(f"""
            v_cvt_pk_bf16_f32 v{o}, v88, v89
            v_cvt_pk_bf16_f32 v{o+1}, v90, v91
            """)
            if i & 1:
                A(f"buffer_store_dwordx4 {vr(o-2,4)}, v5, s[24:27], s{50+2*k} offen offset:{1024*(i//2)} sc1")

    issue(0)
    A("""
    s_cmp_lg_u32 s60, 0
    s_cbranch_scc1 PROD_1
    s_waitcnt vmcnt(10)
    """)
    gate_set(A, opt)
    A.label("PROD_1")
    issue(1)
    A(f"""
    s_mov_b32 s46, 0xffff0000
    s_mov_b32 s47, {hex((127+QE) << 23)}
    s_mov_b32 s48, {hex(0x80000000 | ((127+QE-149) << 23))}
    v_lshlrev_b32 v3, 8, v1
    v_mov_b32 v4, 1
    """)
    PB0, PB1 = opt.get("pb0", 0), opt.get("pb1", 2)
    bars(PB0, "0")
    compute(0, 10)
    A("""
    s_cmp_eq_u32 s61, 0
    s_cbranch_scc1 PROD_2
    """)
    compute(1, 4)
    A.label("PROD_2")
    stamp(A, opt, 4)
    bars(PB1, "1")
    poll(A, "PROD_G", DBG, "0", "v2", "v8", 0)
    A(f"""
    s_mov_b64 exec, 0xfff
    buffer_store_dword v4, v3, s[24:27], s51 offen sc1
    buffer_store_dword v4, v3, s[24:27], s53 offen sc1
    s_mov_b64 exec, -1
    """)
    stamp(A, opt, 2)
    A("""
    s_cmp_eq_u32 s60, 0
    s_cbranch_scc1 IDLE_T
    """)
    for _ in range(10 - PB0 - PB1): A("s_barrier")
    A("s_branch P2_MMX")


def gate_set(A, opt):
    A(f"""
    s_barrier
    s_cmp_lg_u32 s36, 0
    s_cbranch_scc1 IDLE_G1
    s_lshl_b32 s4, s37, 2
    v_mov_b32 v3, 0
    v_mov_b32 v4, 1
    s_mov_b64 exec, 1
    buffer_store_dword v4, v3, {DBG}, s4 offen sc1
    s_mov_b64 exec, -1
    """)
    A.label("IDLE_G1")


def gen_xr(A, opt):
    sW, sLOC, sXCD = "s36", "s3", "s37"
    sMT, sNT = "s40", "s41"
    sC = "s48"
    SH = opt.get("sh", 0)
    A(f"""
    s_sub_u32 s4, {sLOC}, 21
    s_cmp_ge_u32 s4, 5
    s_cselect_b32 s5, 1, 0
    s_cselect_b32 s6, 5, 0
    s_sub_u32 {sNT}, s4, s6
    s_lshl_b32 s7, {sXCD}, 1
    s_add_u32 {sMT}, s7, s5
    s_cmp_ge_u32 {sLOC}, 31
    s_cbranch_scc1 IDLE_WG
    s_cmp_lt_u32 {sW}, 4
    s_cbranch_scc1 XR_MFMA
    s_cmp_lt_u32 {sW}, 6
    s_cbranch_scc1 XR_LD
    """)
    if opt.get("tpr"): A(f"s_setprio {opt['tpr']}")
    gate_addr(A, "v2")
    if SH:
        A(f"""
        s_sub_u32 s58, s2, 168
        s_add_u32 s59, s58, 80
        s_mov_b32 s60, 1
        s_cmp_eq_u32 {sW}, 6
        s_waitcnt lgkmcnt(0)
        s_cbranch_scc1 PROD
        """)
    A(f"""
    v_lshlrev_b32 v6, 7, v1
    s_mul_i32 s4, {sMT}, 5
    s_add_u32 s4, s4, {sNT}
    s_lshl_b32 s5, s4, 15
    s_lshl_b32 s6, s4, 14
    s_mov_b32 s30, {X_BYTES}
    s_mov_b32 s31, 0x00020000
    s_mov_b32 s34, {U_BYTES}
    s_mov_b32 s35, 0x00020000
    s_waitcnt lgkmcnt(0)
    """)
    if opt.get("tx", 1) == 2:
        A(f"""
        s_cmp_lg_u32 {sW}, 6
        s_cbranch_scc1 XR_TX
        """)
        nsleep(A, opt.get("txd", 0))
        for i in range(4):
            A(f"buffer_load_dword v{8+i}, v6, s[28:31], s5 offen")
            if i < 3: A("s_add_u32 s5, s5, 8192")
        for i in range(2):
            A(f"buffer_load_dword v{12+i}, v6, s[32:35], s6 offen")
            if i < 1: A("s_add_u32 s6, s6, 8192")
        A.label("XR_TX")
    elif opt.get("tx", 1):
        if not SH:
            A(f"""
            s_cmp_lg_u32 {sW}, 6
            s_cbranch_scc1 XR_TU
            """)
        for i in range(4):
            A(f"buffer_load_dword v{8+i}, v6, s[28:31], s5 offen")
            if i < 3: A("s_add_u32 s5, s5, 8192")
        if not SH:
            A("s_branch XR_TX")
            A.label("XR_TU")
        for i in range(2):
            A(f"buffer_load_dword v{12+i}, v6, s[32:35], s6 offen")
            if i < 1: A("s_add_u32 s6, s6, 8192")
        A.label("XR_TX")
    WT = opt.get("wt", 2)
    NT_ = 12 - opt.get("wtc", 2)
    if not SH:
        A(f"""
        s_cmp_lg_u32 {sW}, 7
        s_cbranch_scc1 XR_W6
        """)
    TB = opt.get("tb", 0)
    if TB:
        A(f"""
        s_sub_u32 s4, s3, 21
        s_and_b32 s48, s4, 1
        s_and_b32 s4, s4, 14
        """)
        tb_addr(A, "x", 0, 2)
        A(f"""
        s_lshl_b32 s4, s48, 1
        s_add_u32 s4, s4, {opt.get("wtc", 2)}
        s_mul_i32 s4, s4, s47
        s_add_u32 s46, s46, s4
        s_cmp_eq_u32 s48, 0
        s_cbranch_scc1 TB_X0
        """)
        nsleep(A, opt.get("ts1", 40))
        A.label("TB_X0")
        nsleep(A, opt.get("ts0", 0))
        tb_burst(A, 2, 2, 16)
        A(f"""
        s_add_u32 s46, s46, s47
        s_add_u32 s46, s46, s47
        s_cmp_eq_u32 s48, 0
        s_cselect_b32 s48, {opt.get("tb2", 1)}, {opt.get("tb3", 3)}
        s_sub_u32 s49, 10, s48
        """)
        A.label("TB_X1")
        A(f"""
        s_barrier
        s_sub_u32 s48, s48, 1
        s_cmp_lg_u32 s48, 0
        s_cbranch_scc1 TB_X1
        """)
        tb_burst(A, 2, 2, 20)
        A.label("TB_X2")
        A(f"""
        s_barrier
        s_sub_u32 s49, s49, 1
        s_cmp_lg_u32 s49, 0
        s_cbranch_scc1 TB_X2
        """)
    else:
        wt_setup(A, opt, "x")
        k = 0
        for b in range(10):
            for _ in range(WT if b == 0 else opt.get("wtn", 2)):
                if k < NT_:
                    wt(A, opt, k, "x"); k += 1
            A("s_barrier")
    A("s_branch P2_MMX")
    if not SH:
        A.label("XR_W6")
        for i in range(5): A("s_barrier")
        poll(A, "XR_G", DBG, "0", "v2", "v3", 0)
        for i in range(5): A("s_barrier")
        A("s_branch P2_MMX")
    A.label("IDLE_WG")
    gate_addr(A, "v2")
    A(f"""
    v_mov_b32 v6, 0
    v_mov_b32 v7, 0
    v_mov_b32 v8, 0
    v_mov_b32 v9, 0
    s_lshl_b32 s58, {sXCD}, 3
    s_add_u32 s58, s58, {sW}
    s_mul_i32 s4, s58, 3072
    s_add_u32 s4, s4, {FLG}
    s_waitcnt lgkmcnt(0)
    """)
    for i in range(3):
        A(f"buffer_store_dwordx4 v[6:9], v5, s[24:27], s4 offen offset:{1024*i} sc1")
    if SH:
        A(f"""
        s_add_u32 s59, s58, 224
        s_add_u32 s58, s58, 160
        s_min_u32 s58, s58, {40 * (12 - SH) - 1}
        s_mov_b32 s60, 0
        """)
        gen_prod(A, opt)
    else:
        A("s_waitcnt vmcnt(0)")
        gate_set(A, opt)
    A.label("IDLE_T")
    if opt.get("fw"):
        A(f"""
        s_cmp_ge_u32 {sW}, 6
        s_cbranch_scc1 IDLE_F2
        s_mul_i32 s4, {sXCD}, 6
        s_add_u32 s4, s4, {sW}
        s_mul_i32 s4, s4, 40960
        s_add_u32 s4, s4, {W2F}
        s_mov_b32 s5, 10
        v_mov_b32 v6, -1
        v_mov_b32 v7, -1
        v_mov_b32 v8, -1
        v_mov_b32 v9, -1
        """)
        nsleep(A, opt.get("fd", 0))
        A.label("IDLE_F1")
        for i in range(4):
            A(f"buffer_store_dwordx4 v[6:9], v5, s[24:27], s4 offen offset:{1024*i} sc1")
        nsleep(A, opt.get("fp", 0))
        A(f"""
        s_add_u32 s4, s4, 4096
        s_sub_u32 s5, s5, 1
        s_cmp_lg_u32 s5, 0
        s_cbranch_scc1 IDLE_F1
        """)
        stamp(A, opt, 3)
        A.label("IDLE_F2")
    if TB:
        A(f"""
        s_sub_u32 s4, {sW}, 2
        s_cmp_ge_u32 s4, 5
        s_cbranch_scc1 IDLE_T7
        s_lshl_b32 s4, s4, 1
        """)
        tb_addr(A, "i", 0, 2)
        A(f"""
        s_mul_i32 s4, s47, {8 + opt.get("wtc", 2)}
        s_add_u32 s46, s46, s4
        """)
        nsleep(A, opt.get("ts4", 100))
        tb_burst(A, 2, 4 - opt.get("wtc", 2), 16)
        A("s_branch IDLE_NT")
        A.label("IDLE_T7")
    A(f"""
    s_cmp_lg_u32 {sW}, 7
    s_cbranch_scc1 IDLE_NT
    """)
    wt_setup(A, opt, "i")
    for k in range(SH - opt.get("wtc", 2) if SH else NT_):
        wt(A, opt, k, "i")
        if k >= WT - 1 and k < NT_ - 1 and not SH: A(f"s_sleep {opt.get('isl', 12)}")
    A.label("IDLE_NT")
    if not SH:
        A(f"""
        s_cmp_lg_u32 {sW}, 0
        s_cbranch_scc1 IDLE_G_X
        """)
        poll(A, "IDLE_G", DBG, "0", "v2", "v3", 0, sleep=8)
    if opt.get("fw"): A("s_waitcnt vmcnt(0)")
    A("s_barrier")
    if opt.get("fw"):
        A(f"""
        s_cmp_lg_u32 {sW}, 1
        s_cbranch_scc1 IDLE_H
        s_lshl_b32 s4, {sXCD}, 2
        v_mov_b32 v3, 32
        v_mov_b32 v4, 1
        s_mov_b64 exec, 1
        buffer_store_dword v4, v3, {DBG}, s4 offen sc1
        s_mov_b64 exec, -1
        """)
        stamp(A, opt, 4)
        A.label("IDLE_H")
    A(f"""
    s_mov_b32 s60, 0
    s_cmp_lt_u32 {sW}, 4
    s_cbranch_scc1 P2_LD
    s_branch P2_MMI
    """)
    A.label("XR_LD")
    if opt.get("cst"): A("s_memtime s[88:89]")
    sOFS, sGRP, sCH = "s43", "s45", "s46"
    vO = 6
    A(f"""
    v_lshrrev_b32 v3, 4, v1
    s_cmp_eq_u32 {sW}, 4
    s_cbranch_scc0 XRL_U
    v_lshrrev_b32 v2, 3, v1
    v_and_b32 v4, 7, v1
    v_xor_b32 v4, v4, v3
    v_lshlrev_b32 v4, 4, v4
    v_mul_u32_u24 v{vO}, 0x500, v2
    v_add_u32 v{vO}, v{vO}, v4
    v_xor_b32 v4, 64, v{vO}
    v_add_u32 v{vO+1}, 9216, v4
    v_add_u32 v{vO+2}, {2*9216}, v{vO}
    v_add_u32 v{vO+3}, {3*9216}, v4
    s_mul_i32 {sOFS}, {sMT}, {128*1280}
    s_mov_b32 {sGRP}, {32*1280}
    s_mov_b32 {sCH}, {128 - 128*1280 + (1<<32)}
    s_movk_i32 s47, 128
    s_mov_b32 m0, 0
    s_mov_b32 s30, {X_BYTES}
    s_waitcnt lgkmcnt(0)
    s_branch XRL_GO
    """)
    A.label("XRL_U")
    A(f"""
    v_and_b32 v4, 15, v1
    v_lshlrev_b32 v2, 2, v3
    v_xor_b32 v4, v4, v2
    v_lshlrev_b32 v4, 4, v4
    v_mul_u32_u24 v{vO}, 0x500, v3
    v_add_u32 v{vO}, v{vO}, v4
    v_add_u32 v{vO+1}, {4*1280-1024}, v{vO}
    v_add_u32 v{vO+2}, {2*(4*1280-1024)}, v{vO}
    v_add_u32 v{vO+3}, {3*(4*1280-1024)}, v{vO}
    s_lshl_b32 {sOFS}, {sNT}, 8
    s_mov_b32 {sGRP}, {16*1280}
    s_mov_b32 {sCH}, 0
    s_mov_b32 s47, {64*1280}
    s_movk_i32 m0, 16384
    s_mov_b32 s30, {U_BYTES}
    s_waitcnt lgkmcnt(0)
    s_mov_b32 s28, s32
    s_mov_b32 s29, s33
    """)
    A.label("XRL_GO")
    A(f"""
    s_mov_b32 s31, 0x00020000
    s_mov_b32 {sC}, 0
    """)
    XRO = opt.get("xra", 0) or opt.get("xrb", 0)
    if XRO:
        A(f"""
        s_mul_i32 s49, {sNT}, {opt.get("xra", 0)}
        s_and_b32 s4, {sMT}, 1
        s_mul_i32 s4, s4, {opt.get("xrb", 0)}
        s_add_u32 s49, s49, s4
        s_mul_i32 s4, {sXCD}, {opt.get("xrc", 0)}
        s_add_u32 s49, s49, s4
        s_mul_i32 s4, s49, 205
        s_lshr_b32 s4, s4, 11
        s_mul_i32 s4, s4, 10
        s_sub_u32 s49, s49, s4
        s_mul_i32 s4, s49, s47
        s_add_u32 {sOFS}, {sOFS}, s4
        s_mul_i32 s47, s47, 10
        s_sub_u32 s49, 10, s49
        """)
    nsleep(A, opt.get("xd", 0))
    A.label("XRL_LOOP")
    for g in range(4):
        for j in range(4):
            A(f"buffer_load_dwordx4 v{vO+j}, s[28:31], {sOFS} offen offset:{1024*j} lds")
        A(f"""
        s_add_u32 m0, m0, 4096
        s_add_u32 {sOFS}, {sOFS}, {sGRP}
        """)
    A(f"""
    s_add_u32 {sOFS}, {sOFS}, {sCH}
    s_add_u32 m0, m0, 16384
    s_and_b32 m0, m0, {4*XSTAGE-1}
    s_add_u32 {sC}, {sC}, 1
    """)
    if XRO:
        A(f"""
        s_cmp_eq_u32 {sC}, s49
        s_cselect_b32 s4, s47, 0
        s_sub_u32 {sOFS}, {sOFS}, s4
        """)
    XT = opt.get("xt", 0)
    A(f"""
    s_and_b32 s4, {sC}, {15 if XT else 13}
    s_cmp_eq_u32 s4, 1
    s_cbranch_scc1 XRL_LOOP
    """)
    cst(A, opt, sC, 32)
    if XT:
        A("s_waitcnt vmcnt(16)")
    else:
        A(f"""
        s_cmp_eq_u32 {sC}, 2
        s_cbranch_scc0 XRL_W
        s_waitcnt vmcnt(16)
        """)
        A.label("XRL_W")
        A("s_waitcnt vmcnt(32)")
    cst(A, opt, sC, 16)
    A("s_barrier")
    cst(A, opt, sC, 0)
    A(f"""
    s_cmp_lt_u32 {sC}, 10
    s_cbranch_scc1 XRL_LOOP
    """)
    if not XT:
        A("s_waitcnt vmcnt(16)")
        cst(A, opt, 0, 27)
        A("s_barrier")
        cst(A, opt, 0, 11)
    A("s_waitcnt vmcnt(0)")
    cst(A, opt, 0, 28)
    A("s_barrier")
    cst(A, opt, 0, 12)
    cst_out(A, opt)
    A("s_branch P2_MMX")
    A.label("XR_MFMA")
    sCST = "s43"
    vXR = 6
    vUR = 10
    vT = 12
    vACC = 20
    vF = 84
    A(f"""
    s_lshr_b32 s4, {sW}, 1
    s_and_b32 s5, {sW}, 1
    s_lshl_b32 s6, s4, 13
    v_and_b32 v3, 31, v1
    v_bfe_u32 v4, v1, 1, 3
    v_lshrrev_b32 v{vT}, 5, v1
    v_xor_b32 v4, v4, v{vT}
    v_lshlrev_b32 v4, 4, v4
    v_lshl_add_u32 v4, v3, 7, v4
    v_add_u32 v{vXR}, s6, v4
    v_xor_b32 v{vXR+1}, 32, v{vXR}
    v_xor_b32 v{vXR+2}, 64, v{vXR}
    v_xor_b32 v{vXR+3}, 96, v{vXR}
    v_bfe_u32 v2, v1, 4, 1
    v_bfe_u32 v3, v1, 2, 2
    s_lshl_b32 s6, s5, 1
    v_xor_b32 v4, s6, v3
    v_lshlrev_b32 v4, 6, v4
    v_lshl_add_u32 v4, v3, 8, v4
    v_lshl_add_u32 v4, v{vT}, 11, v4
    v_lshl_add_u32 v4, v2, 5, v4
    v_and_b32 v3, 3, v1
    v_lshl_add_u32 v4, v3, 3, v4
    v_add_u32 v{vUR}, 16384, v4
    v_xor_b32 v{vUR+1}, 64, v{vUR}
    s_mov_b32 {sCST}, 0
    s_mov_b32 {sC}, 0
    s_lshl_b32 s6, {sMT}, 1
    s_add_u32 s6, s6, s4
    s_lshl_b32 s7, {sNT}, 1
    s_add_u32 s7, s7, s5
    s_mul_i32 s51, s4, 10
    s_add_u32 s51, s51, s7
    s_lshl_b32 s51, s51, {7 if MAP["lf"] else 2}
    s_mul_i32 s52, {sMT}, {20*128 if MAP["lf"] else 2048}
    s_add_u32 s51, s51, s52
    s_add_u32 s51, s51, {FLG + 672*128 if MAP["lf"] else XFLG}
    s_mov_b32 s53, 7
    s_mul_i32 s6, s6, 80
    s_lshl_b32 s7, s7, 2
    s_add_u32 s6, s6, s7
    s_lshl_b32 s50, s6, 10
    s_add_u32 s52, s50, 40960
    """)
    if MAP["ac"]:
        A(f"""
        s_lshl_b32 s51, {sMT}, 11
        s_add_u32 s51, s51, {FLG + 32768}
        """)
    for i in range(0, 64, 2):
        A(f"v_mov_b64 {vr(vACC+i,2)}, 0")
    for i in range(0, 64, 2):
        A(f"v_mov_b64 {vr(vF+64+i,2)}, 0")
    A("s_waitcnt lgkmcnt(0)")

    def reads(s, buf):
        f = vF + 64 * buf + 16 * s
        r = []
        for tn in range(2):
            r.append(f"ds_read_b128 {vr(f+8+4*tn,4)}, v{vT+s} offset:{4096*tn}")
            for u in range(2):
                r.append(f"ds_read_b64_tr_b16 {vr(f+4*tn+2*u,2)}, v{vT+4+tn} offset:{s*4096+u*1024}")
        return r

    def mfmas(s, buf):
        f = vF + 64 * buf + 16 * s
        r = []
        for tm in range(2):
            for tn in range(2):
                acc = vACC + 32 * tm + 16 * tn
                r.append(f"v_mfma_f32_32x32x16_bf16 {vr(acc,16)}, {vr(f+4*tn,4)}, {vr(f+8+4*tm,4)}, {vr(acc,16)}")
        return r

    A.label("XR_LOOP")
    for buf in range(2):
        for i in range(4):
            A(f"v_add_u32 v{vT+i}, {sCST}, v{vXR+i}")
        for i in range(2):
            A(f"v_add_u32 v{vT+4+i}, {sCST}, v{vUR+i}")
        A(f"""
        s_add_u32 {sCST}, {sCST}, {XSTAGE}
        s_and_b32 {sCST}, {sCST}, {4*XSTAGE-1}
        s_barrier
        """)
        rd = sum((reads(s_, buf) for s_ in range(4)), [])
        mf = sum((mfmas(s_, buf ^ 1) for s_ in range(4)), [])
        ri = 0
        for m in mf:
            A(m)
            for x in rd[ri:ri + 2]: A(x)
            ri += 2
        for x in rd[ri:]: A(x)
        A("s_waitcnt lgkmcnt(0)")
    A(f"""
    s_add_u32 {sC}, {sC}, 2
    s_cmp_lt_u32 {sC}, 10
    s_cbranch_scc1 XR_LOOP
    s_barrier
    """)
    for s_ in range(4):
        for m in mfmas(s_, 1): A(m)
    A("s_nop 15")
    stamp(A, opt, 3)
    for tm in range(2):
        for i in range(4):
            a = vACC + 32 * tm + 8 * i
            o = vF + 16 * tm + 4 * i
            for j in range(4):
                A(f"v_cvt_pk_bf16_f32 v{o+j}, v{a+2*j}, v{a+2*j+1}")
            A(f"buffer_store_dwordx4 {vr(o,4)}, v5, s[24:27], s{50+2*tm} offen offset:{1024*i} sc1")


VX = 96


def xload(A, opt, kb):
    if opt.get("m16"):
        A(f"buffer_load_dwordx4 {vr(VX+4*kb,4)}, v3, s[24:27], s20 offen offset:{2048 * (kb >> 1 & 1) + 256 * (kb & 1)} sc1")
    else:
        A(f"buffer_load_dwordx4 {vr(VX+4*kb,4)}, v5, s[24:27], s20 offen offset:{1024 * (kb & 3)} sc1")
    if kb & 3 == 3 and kb < 39:
        A("s_add_u32 s20, s20, 4096")


def p2_rot(A, opt):
    lm = MAP["m"]
    A(f"""
    s_and_b32 s17, s3, {(1 << lm) - 1}
    s_mul_i32 s17, s17, 0
    s_lshr_b32 s16, s3, {lm}
    s_mul_i32 s16, s16, 0
    s_add_u32 s17, s17, s16
    s_mul_i32 s16, s17, 205
    s_lshr_b32 s16, s16, 11
    s_mul_i32 s16, s16, 10
    s_sub_u32 s17, s17, s16
    s_lshl_b32 s17, s17, 12
    """)


def gen_p2(A, opt):
    NA = opt.get("na", 2)
    OLD = opt.get("old", 0)
    order = [(n, kb) for kb in range(40) for n in range(NA)] + [(n, kb) for n in range(NA, 3) for kb in range(40)]
    groups = []
    for n, kb in order:
        if (n, kb // 4) not in groups: groups.append((n, kb // 4))
    CH = {1: [2, 2, 4, 4, 4, 4, 10], 2: [2, 2, 2, 2, 4, 4, 4, 5, 5], 3: [2, 4, 6, 8, 10], 4: [3, 3, 6, 6, 6, 6],
          5: [1, 1, 2, 2, 4, 10, 10]}[opt.get("ch", 1)]
    assert sum(CH) == 30
    st = [sum(CH[:i]) for i in range(len(CH) + 1)]
    A.label("P2_PUB")
    publish(A, opt, "s51", "s53")
    A.label("P2_LD")
    p2_tile(A)
    if OLD: p2_rot(A, opt)
    A(f"""
    s_mul_i32 s22, s39, 122880
    s_add_u32 s22, s22, {W2F}
    s_lshl_b32 s21, s36, 10
    s_add_u32 s22, s22, s21
    """)
    if OLD: A("""
    s_add_u32 s20, s22, s17
    s_add_u32 s19, s22, 40960
    """)
    M16 = opt.get("m16", 0)
    if M16:
        A("""
        v_bfe_u32 v2, v1, 2, 2
        v_bfe_u32 v3, v1, 4, 1
        v_and_b32 v5, 0x23, v1
        v_lshl_add_u32 v5, v2, 3, v5
        v_lshl_add_u32 v5, v3, 2, v5
        v_lshlrev_b32 v5, 4, v5
        """)
    A(f"""
    v_lshlrev_b32 v2, {7 if MAP["lf"] else 2}, v1
    v_mov_b32 v4, {LFLAG}
    s_cmp_lg_u32 s36, 0
    s_cbranch_scc1 P2_LW0
    """)
    if OLD: A("""
    s_sub_u32 s4, s44, s45
    s_sub_u32 s4, s4, 168
    """)
    EF = MAP["ef"]
    if MAP["ac"]:
        pass
    elif EF:
        A("""
        v_min_u32 v2, s43, v1
        v_lshlrev_b32 v2, 7, v2
        """)
    else:
        A("v_cmp_gt_u32 vcc, 42, v1")
        if OLD: A("v_add_u32 v3, s4, v2")
        A("""
        v_mov_b32 v3, 0
        v_cndmask_b32 v2, v3, v2, vcc
        """)
    if MAP["ac"]:
        spoll(A, "P2_W", "s45", 42, opt.get("wsl", 0))
    elif EF:
        poll(A, "P2_W", "s[24:27]", "s45", "v2", "v3", 0, sleep=opt.get("wsl", 16),
             st=(lambda: stamp(A, opt, 1)) if opt.get("pst") else None)
    elif opt.get("pp"):
        for i in range(opt["pp"]): A(f"v_mov_b32 v{8+i}, 0")
        ppoll(A, "P2_W", "s[24:27]", "s45", "v2", 8, opt["pp"], DC_W, opt.get("wsl", 4))
    else:
        poll(A, "P2_W", "s[24:27]", "s45", "v2", "v3", DC_W, sleep=opt.get("wsl", 16),
             st=(lambda: stamp(A, opt, 1)) if opt.get("pst") else None)

    def lds_wait(name, ofs, vd, va):
        A(f"s_branch {name}")
        A.label(name + "_S")
        A(f"s_sleep {opt.get('lsl', 1)}")
        A.label(name)
        A(f"""
        ds_read_b32 {vd}, {va} offset:{ofs}
        s_waitcnt lgkmcnt(0)
        """)
        poll_check(A, vd, 0, name + "_S")
    A(f"""
    v_mov_b32 v3, 1
    ds_write_b32 v4, v3 offset:4
    s_branch P2_GO
    """)
    A.label("P2_LW0")
    lds_wait("P2_LW", 4, "v3", "v4")
    A.label("P2_GO")
    stamp(A, opt, 5)
    AH = opt.get("ah", 3)

    def issue(c):
        for n, q in groups[st[c]:st[c + 1]]:
            off = (n * 40 + q * 4) * 1024
            A(f"""
            s_add_u32 s5, s22, {off}
            s_add_u32 m0, s21, {off}
            s_nop 0
            buffer_load_dwordx4 v5, s[24:27], s5 offen sc1 lds
            """)

    for c in range(min(AH, len(CH))): issue(c)
    if EF:
        A(f"""
        v_add_u32 v6, s21, v5
        v_add_u32 v7, 61440, v6
        s_mov_b32 s7, {POLL_MAX}
        """)
    for c in range(len(CH)):
        issued = min(len(CH), AH + c)
        A(f"s_waitcnt vmcnt({st[issued] - st[c+1]})")
        if EF:
            A.label(f"P2_V{c}")
            g = groups[st[c]:st[c + 1]]
            for i, (n, q) in enumerate(g):
                off = (n * 40 + q * 4) * 1024
                base, o = ("v6", off) if off < 61440 else ("v7", off - 61440)
                A(f"ds_read_b128 {vr(8+4*i,4)}, {base} offset:{o}")
            for i in range(len(g)):
                A(f"s_waitcnt lgkmcnt({len(g)-1-i})")
                r = 8 + 4 * i
                if i == 0:
                    A(f"v_max_u32 v3, v{r}, v{r+1}")
                else:
                    A(f"v_max3_u32 v3, v3, v{r}, v{r+1}")
                A(f"v_max3_u32 v3, v3, v{r+2}, v{r+3}")
            A(f"""
            v_cmp_eq_u32 vcc, -1, v3
            s_cbranch_vccnz P2_R{c}
            """)
            A.label(f"P2_K{c}")
        A("s_barrier")
        if AH + c < len(CH): issue(AH + c)
    stamp(A, opt, 6)
    if EF and opt.get("stamp"):
        A(f"""
        s_sub_u32 s7, {POLL_MAX}, s7
        s_cmp_eq_u32 s7, 0
        s_cbranch_scc1 K_EXIT
        v_mov_b32 v3, s7
        v_mov_b32 v2, 192
        s_mov_b64 exec, 1
        buffer_atomic_add v3, v2, {DBG}, 0 offen sc1
        s_mov_b64 exec, -1
        """)
    A("s_branch K_EXIT")
    if EF:
        for c in range(len(CH)):
            A.label(f"P2_R{c}")
            A(f"""
            s_cmp_eq_u32 s7, 0
            s_cbranch_scc1 P2_K{c}
            s_sub_u32 s7, s7, 1
            """)
            nsleep(A, opt.get("rsl", 0))
            issue(c)
            A(f"""
            s_waitcnt vmcnt(0)
            s_branch P2_V{c}
            """)

    vACC = 8
    vF = 56
    NF = 8
    vO = 88
    A.label("P2_MMX")
    A("s_barrier")
    if opt.get("cp2"):
        A("s_getpc_b64 s[4:5]")
        A.label("P2_PC")
        L0 = "P2_PUB" if opt["cp2"] == 1 else "W2L_LOOP"
        A(f"""
        s_sub_u32 s4, s4, P2_PC-{L0}
        s_subb_u32 s5, s5, 0
        v_and_b32 v3, {63 if opt["cp2"] == 1 else 127}, v0
        v_lshlrev_b32 v3, 7, v3
        v_min_u32 v3, CODE_END-{L0}-4, v3
        global_load_dword v250, v3, s[4:5]
        """)
    A.label("P2_MMI")
    A.label("P2_MM")
    if not opt.get("sh"): stamp(A, opt, 2)
    XB = opt.get("xb", 0)
    if opt.get("nb") == 2:
        A(f"""
        v_mov_b32 v95, {LFLAG}
        ds_read_b32 v94, v95
        """)
    p2_tile(A)
    if OLD: p2_rot(A, opt)
    A(f"""
    s_lshl_b32 s4, s38, 2
    s_add_u32 s4, s4, s36
    s_sub_u32 s4, s4, 4
    """)
    if OLD:
        A("""
        s_mul_i32 s18, s4, 40960
        s_add_u32 s19, s18, 40960
        s_add_u32 s20, s18, s17
        """)
    else:
        A("s_mul_i32 s20, s4, 40960")
    A(f"""
    s_mul_i32 s4, s4, {32*3072}
    s_mul_i32 s5, s39, 192
    s_add_u32 s23, s4, s5
    s_add_u32 s22, s23, {16*3072}
    """)
    if M16:
        A("""
        v_and_b32 v6, 15, v1
        v_and_b32 v7, 48, v1
        v_lshlrev_b32 v3, 4, v6
        v_lshl_add_u32 v3, v7, 5, v3
        """)
    else:
        A("""
        v_bfe_u32 v2, v1, 2, 1
        v_bfe_u32 v4, v1, 3, 2
        v_and_b32 v3, 0x23, v1
        v_lshl_add_u32 v3, v2, 4, v3
        v_lshl_add_u32 v3, v4, 2, v3
        v_lshlrev_b32 v3, 4, v3
        v_and_b32 v6, 15, v1
        v_and_b32 v7, 48, v1
        """)
    A("""
    v_mul_u32_u24 v6, 0xc00, v6
    v_add_u32 v6, v6, v7
    v_add_u32 v4, 61440, v3
    s_waitcnt vmcnt(0)
    """)
    A(f"""
    v_min_u32 v2, 19, v1
    v_lshlrev_b32 v2, {7 if MAP["lf"] else 2}, v2
    v_mov_b32 v8, {LFLAG}
    """)
    if opt.get("nb") == 2:
        A("""
        s_waitcnt lgkmcnt(0)
        v_readfirstlane_b32 s4, v94
        s_cmp_lg_u32 s4, 0
        s_cbranch_scc1 P2_XW_E
        """)
    A("""
    s_cmp_lg_u32 s36, 7
    s_cbranch_scc1 P2_XW
    """)

    def wait_stores(tag):
        A(f"""
        s_cmp_ge_u32 s3, 21
        s_cbranch_scc1 P2_WS{tag}_X
        """)
        A.label(f"P2_WS{tag}")
        A(f"""
        ds_read_b32 v7, v8 offset:12
        s_waitcnt lgkmcnt(0)
        v_readfirstlane_b32 s4, v7
        s_cmp_lt_u32 s4, 4
        s_cbranch_scc1 P2_WS{tag}
        """)
        A.label(f"P2_WS{tag}_X")
    if MAP["ac"]:
        spoll(A, "P2_X", "s44", 20, opt.get("xsl", 0))
    elif opt.get("px"):
        ppoll(A, "P2_X", "s[24:27]", "s44", "v2", 88, opt["px"], 0, opt.get("xsl", 4))
    else:
        poll(A, "P2_X", "s[24:27]", "s44", "v2", "v7", 0, sleep=opt.get("xsl", 16))
    if opt.get("xap"):
        A("""
        s_cmp_ge_u32 s3, 31
        s_cbranch_scc1 P2_XA_X
        """)
        A.label("P2_XA")
        A("""
        ds_read_b32 v7, v8 offset:8
        s_waitcnt lgkmcnt(0)
        v_readfirstlane_b32 s4, v7
        s_cmp_lt_u32 s4, 4
        s_cbranch_scc1 P2_XA
        """)
        A.label("P2_XA_X")
    A("""
    v_mov_b32 v7, 1
    ds_write_b32 v8, v7
    s_branch P2_XW_X
    """)
    A.label("P2_XW_S")
    A("s_sleep 2")
    A.label("P2_XW")
    A("""
    ds_read_b32 v7, v8
    s_waitcnt lgkmcnt(0)
    """)
    poll_check(A, "v7", 0, "P2_XW_S")
    A.label("P2_XW_X")
    if opt.get("xw"): wait_stores("a")
    A.label("P2_XW_E")
    stamp(A, opt, 1)
    XS = opt.get("xs", 40)
    XE = opt.get("xe", 2)
    xi = [XS]
    for kb in range(XS):
        if XB and kb == XB: wait_stores("b")
        xload(A, opt, kb)
    stamp(A, opt, 5, True)
    if opt.get("mpr"): A(f"s_setprio {opt['mpr']}")

    def epi(t, o=vO):
        a = vACC + 16 * t
        if M16:
            return [[f"v_cvt_pk_bf16_f32 v{o+j}, v{a+2*j}, v{a+2*j+1}" for j in range(2)],
                    [f"v_cvt_pk_bf16_f32 v{o+j}, v{a+2*j}, v{a+2*j+1}" for j in range(2, 4)],
                    [f"buffer_store_dwordx4 {vr(o,4)}, v6, s[96:99], s23 offen offset:{64*t}{ysfx(t)}"],
                    [f"v_cvt_pk_bf16_f32 v{o+j}, v{a+2*j}, v{a+2*j+1}" for j in range(4, 6)],
                    [f"v_cvt_pk_bf16_f32 v{o+j}, v{a+2*j}, v{a+2*j+1}" for j in range(6, 8)],
                    [f"buffer_store_dwordx4 {vr(o+4,4)}, v6, s[96:99], s22 offen offset:{64*t}{ysfx(t)}"]]
        return [[f"v_cvt_pk_bf16_f32 v{o+j}, v{a+2*j}, v{a+2*j+1}" for j in range(4)],
                [f"v_cvt_pk_bf16_f32 v{o+j}, v{a+2*j}, v{a+2*j+1}" for j in range(4, 8)],
                ["s_nop 1"] + [f"v_permlane16_swap_b32 v{o+j}, v{o+4+j}" for j in range(4)],
                [f"buffer_store_dwordx4 {vr(o,4)}, v6, s[96:99], s23 offen offset:{64*t}{ysfx(t)}",
                 f"buffer_store_dwordx4 {vr(o+4,4)}, v6, s[96:99], s22 offen offset:{64*t}{ysfx(t)}"]]

    def ysfx(t):
        m = opt.get("ya" if t < 2 else "yb", 0)
        return ("", " sc1", " nt", " sc0 sc1", " sc1 nt")[m]

    RA = opt.get("ra", 6)
    assert RA < NF
    seen = [0]

    def read(i):
        n, kb = order[i]
        g = groups.index((n, kb // 4))
        while st[seen[0]] <= g:
            A("s_barrier")
            seen[0] += 1
        off = (n * 40 + kb) * 1024
        if M16: off = (n * 40 + (kb & ~1)) * 1024 + 256 * (kb & 1)
        base, o = ("v3", off) if off < 61440 else ("v4", off - 61440)
        A(f"ds_read_b128 {vr(vF+4*(i%NF),4)}, {base} offset:{o}")

    for i in range(RA): read(i)
    pending = []
    done = set()
    last = {n: max(i for i, x in enumerate(order) if x[0] == n) for n in range(3)}
    for i, (n, kb) in enumerate(order):
        if M16:
            lg = f"lgkmcnt({min(120, i + RA) - i - 1})"
            if n == 0 and kb & 1 == 0:
                assert xi[0] > kb + 1
                lg = f"vmcnt({xi[0] - kb - 2}) " + lg
            A(f"s_waitcnt {lg}")
            for rb in range(2):
                acc = vACC + 16 * n + 8 * rb + 4 * (kb & 1)
                c = "0" if kb < 2 else vr(acc, 4)
                A(f"v_mfma_f32_16x16x32_bf16 {vr(acc,4)}, {vr(vF+4*(i%NF),4)}, {vr(VX+4*((kb & ~1) + rb),4)}, {c}")
                if rb == 0 and M16 == 2 and i + RA < 120 and not (i == 0 and opt.get("stamp")): read(i + RA)
        else:
            if n == 0:
                assert xi[0] > kb
                A(f"s_waitcnt vmcnt({xi[0] - kb - 1})")
            A(f"s_waitcnt lgkmcnt({min(120, i + RA) - i - 1})")
            acc = vACC + 16 * n
            c = "0" if kb == 0 else vr(acc, 16)
            A(f"v_mfma_f32_32x32x16_bf16 {vr(acc,16)}, {vr(vF+4*(i%NF),4)}, {vr(VX+4*kb,4)}, {c}")
        if i == 0 and opt.get("stamp"):
            stamp(A, opt, 3)
            A("s_memtime s[80:81]\ns_nop 7\ns_nop 7\ns_waitcnt lgkmcnt(0)")
        if i == 0 and opt.get("probe") == 3:
            stamp(A, opt, 3)
            A("s_nop 7\ns_nop 7\ns_waitcnt lgkmcnt(0)")
        if i + RA < 120 and (M16 != 2 or (i == 0 and opt.get("stamp"))): read(i + RA)
        if i % XE == 0 and xi[0] < 40:
            xload(A, opt, xi[0]); xi[0] += 1
        for t in range(3):
            if i == last[t] + 3:
                pending += epi(t) + [[], [], [], []]
                done.add(t)
        if pending:
            for x in pending.pop(0): A(x)
    assert seen[0] == len(CH)
    A("s_nop 7" if M16 else "s_nop 15")
    stamp(A, opt, 6)
    if opt.get("stamp"):
        A("s_memtime s[82:83]\ns_waitcnt lgkmcnt(0)\ns_sub_u32 s72, s82, s80")
        if opt.get("sh"): A("s_and_b32 s90, s90, 127\ns_lshl_b32 s90, s90, 24\ns_or_b32 s72, s72, s90")
    k = 0
    for t in range(3):
        if t in done: continue
        for x in sum(epi(t, vF + 8 * k), []): A(x)
        k += 1


def gen_p2d(A, opt):
    assert MAP["lf"] and not MAP["ef"]
    PS = 9216
    A.label("P2_PUB")
    A("s_mov_b32 s60, 1")
    A.label("P2_LD")
    p2_tile(A)
    A(f"""
    v_lshrrev_b32 v2, 4, v1
    v_min_u32 v2, 2, v2
    v_and_b32 v3, 15, v1
    v_min_u32 v3, 13, v3
    v_mad_u32_u24 v2, v2, 14, v3
    v_lshlrev_b32 v2, 7, v2
    s_lshl_b32 s46, 0x1111, s36
    s_and_b32 s46, s46, 0x3fff
    s_mul_i32 s22, s39, 122880
    s_add_u32 s22, s22, {W2F}
    s_mov_b32 s47, 0
    s_mov_b32 s7, {POLL_MAX}
    v_mov_b32 v4, {LFLAG}
    v_mov_b32 v6, 0
    v_mov_b32 v7, 1
    """)
    A.label("P2_POLL")
    A(f"""
    s_lshl_b32 s48, s46, 16
    s_or_b32 s48, s48, s46
    s_mov_b32 s49, s46
    s_mov_b64 exec, s[48:49]
    buffer_load_dword v3, v2, s[24:27], s45 offen sc1
    s_mov_b64 exec, 1
    v_mov_b32 v8, s47
    s_cmp_eq_u32 s60, 0
    s_waitcnt vmcnt(1)
    s_cbranch_scc1 P2_NP
    buffer_store_dword v7, v6, s[24:27], s51 offen sc1
    """)
    stamp(A, opt, 4)
    A("""
    s_mov_b32 s60, 0
    s_waitcnt vmcnt(1)
    s_branch P2_PR
    """)
    A.label("P2_NP")
    A("""
    ds_or_b32 v4, v8 offset:4
    s_mov_b32 s47, 0
    s_waitcnt vmcnt(0)
    """)
    A.label("P2_PR")
    A(f"""
    s_mov_b64 exec, s[48:49]
    v_cmp_ne_u32 vcc, 0, v3
    s_mov_b64 exec, -1
    s_lshr_b32 s4, vcc_lo, 16
    s_and_b32 s4, s4, vcc_lo
    s_and_b32 s4, s4, vcc_hi
    s_cbranch_scc1 P2_ISS
    s_sub_u32 s7, s7, 1
    s_cselect_b32 s4, s46, 0
    s_cbranch_scc1 P2_ISS
    s_sleep {opt.get("wsl", 8)}
    s_branch P2_POLL
    """)
    A.label("P2_ISS")
    if opt.get("stamp"):
        A("""
        s_waitcnt lgkmcnt(0)
        s_cmp_lg_u32 s74, 0
        s_cbranch_scc1 P2_IS0
        """)
        stamp(A, opt, 5)
        A.label("P2_IS0")
    A("s_andn2_b32 s46, s46, s4")
    A.label("P2_IS1")
    A(f"""
    s_ff1_i32_b32 s5, s4
    s_mul_i32 m0, s5, {PS}
    s_mul_i32 s6, s5, 3072
    s_add_u32 s6, s6, s22
    s_bitset0_b32 s4, s5
    """)
    for n in range(3):
        for j in range(3):
            A(f"buffer_load_dwordx4 v5, s[24:27], s6 offen offset:{1024*j} sc1 lds")
        if n < 2:
            A("""
            s_add_u32 m0, m0, 3072
            s_add_u32 s6, s6, 40960
            """)
    A(f"""
    s_cmp_eq_u32 s47, 0
    s_cbranch_scc1 P2_IS2
    v_mov_b32 v8, s47
    s_mov_b64 exec, 1
    s_waitcnt vmcnt(9)
    ds_or_b32 v4, v8 offset:4
    s_mov_b64 exec, -1
    """)
    A.label("P2_IS2")
    A(f"""
    s_lshl_b32 s47, 1, s5
    s_cmp_lg_u32 s4, 0
    s_cbranch_scc1 P2_IS1
    s_cmp_lg_u32 s46, 0
    s_cbranch_scc1 P2_POLL
    v_mov_b32 v8, s47
    s_mov_b64 exec, 1
    s_waitcnt vmcnt(0)
    ds_or_b32 v4, v8 offset:4
    s_mov_b64 exec, -1
    s_waitcnt lgkmcnt(0)
    """)
    stamp(A, opt, 6)
    A("s_branch K_EXIT")

    vACC = 8
    vF = 56
    vM, vA = 92, 93
    A.label("P2_MMX")
    A("s_barrier")
    A.label("P2_MMI")
    A("s_waitcnt vmcnt(0)")
    A.label("P2_MM")
    stamp(A, opt, 2)
    A(f"""
    v_mov_b32 v7, {LFLAG}
    ds_read_b32 v{vM}, v7
    """)
    p2_tile(A)
    A(f"""
    s_lshl_b32 s4, s38, 2
    s_add_u32 s4, s4, s36
    s_sub_u32 s4, s4, 4
    s_mul_i32 s20, s4, 40960
    s_mul_i32 s4, s4, {32*3072}
    s_mul_i32 s5, s39, 192
    s_add_u32 s23, s4, s5
    s_add_u32 s22, s23, {16*3072}
    s_add_u32 s21, s20, {39*1024}
    v_bfe_u32 v2, v1, 2, 1
    v_bfe_u32 v4, v1, 3, 2
    v_and_b32 v3, 0x23, v1
    v_lshl_add_u32 v3, v2, 4, v3
    v_lshl_add_u32 v3, v4, 2, v3
    v_lshlrev_b32 v3, 4, v3
    v_and_b32 v6, 15, v1
    v_and_b32 v4, 48, v1
    v_mul_u32_u24 v6, 0xc00, v6
    v_add_u32 v6, v6, v4
    v_min_u32 v2, 19, v1
    v_lshlrev_b32 v2, 7, v2
    s_waitcnt lgkmcnt(0)
    v_readfirstlane_b32 s4, v{vM}
    s_cmp_lg_u32 s4, 0
    s_cbranch_scc1 P2_XW_X
    s_cmp_lg_u32 s36, 7
    s_cbranch_scc1 P2_XW
    """)
    poll(A, "P2_X", "s[24:27]", "s44", "v2", f"v{vM}", 0, sleep=opt.get("xsl", 16))
    A(f"""
    v_mov_b32 v{vM}, 1
    ds_write_b32 v7, v{vM}
    s_branch P2_XW_X
    """)
    A.label("P2_XW")
    A(f"""
    s_sleep 2
    ds_read_b32 v{vM}, v7
    s_waitcnt lgkmcnt(0)
    """)
    poll_check(A, f"v{vM}", 0, "P2_XW")
    A.label("P2_XW_X")
    stamp(A, opt, 1)
    NU = opt.get("nu", 7)
    LAG = opt.get("lag", 3)
    P0 = opt.get("p0", 6)
    XPB = opt.get("xpb", 1)

    def xpiece(p):
        r = [[f"buffer_load_dwordx4 {vr(VX+12*p+4*j,4)}, v5, s[24:27], s20 offen offset:{1024*j} sc1"] for j in range(3)]
        if p < 12: r[2].append("s_add_u32 s20, s20, 3072")
        return r
    A(f"buffer_load_dwordx4 {vr(VX+156,4)}, v5, s[24:27], s21 offen sc1")
    for p_ in range(NU):
        for x in sum(xpiece(p_), []): A(x)
    stamp(A, opt, 5, True)
    issued = lambda t: min(13, NU + XPB * max(0, t))
    Pt = [min(12, max(t, min(P0 + 2 * t, issued(t - LAG) - 1))) for t in range(13)]
    assert all(Pt[t] < issued(t) for t in range(13))
    A(f"""
    s_getpc_b64 s[52:53]
    """)
    A.label("P2_PC")
    A(f"""
    s_add_u32 s48, s52, P2_B0-P2_PC
    s_addc_u32 s49, s53, 0
    s_movk_i32 s50, {(2 << Pt[0]) - 1}
    s_mov_b32 s46, 0
    v_add_u32 v{vA}, {13*PS}, v3
    s_branch P2_F1
    """)
    A.label("P2_F0")
    A("s_sleep 1")
    A.label("P2_F1")
    A(f"""
    ds_read_b32 v{vM}, v7 offset:4
    s_waitcnt lgkmcnt(0)
    v_readfirstlane_b32 s4, v{vM}
    s_bitcmp1_b32 s4, 13
    s_cbranch_scc0 P2_F0
    """)
    for n in range(3): A(f"ds_read_b128 {vr(vF+4*(6+n),4)}, v{vA} offset:{3072*n}")
    A(f"s_waitcnt vmcnt({3*NU})")
    for n in range(3):
        A(f"""
        s_waitcnt lgkmcnt({2-n})
        v_mfma_f32_32x32x16_bf16 {vr(vACC+16*n,16)}, {vr(vF+4*(6+n),4)}, {vr(VX+156,4)}, 0
        """)
    A("""
    s_set_gpr_idx_on s46, gpr_idx(SRC1)
    s_branch P2_COLD
    """)

    def mfma(i):
        acc = vACC + 16 * (i // 3)
        A(f"v_mfma_f32_32x32x16_bf16 {vr(acc,16)}, {vr(vF+4*i,4)}, {vr(VX+4*(i%3),4)}, {vr(acc,16)}")

    def read(i):
        A(f"ds_read_b128 {vr(vF+4*i,4)}, v{vA} offset:{1024*i}")

    A.label("P2_DRAIN")
    if opt.get("stamp"): A("s_add_u32 s90, s90, 1")
    for i in range(4, 9):
        if i > 4: A(f"s_waitcnt lgkmcnt({8-i})")
        mfma(i)
    A("s_branch P2_COLD")
    A.label("P2_COLD_S")
    A("s_sleep 1")
    A.label("P2_COLD")
    A(f"""
    ds_read_b32 v{vM}, v7 offset:4
    s_waitcnt lgkmcnt(0)
    v_readfirstlane_b32 s4, v{vM}
    s_andn2_b32 s4, s4, s46
    s_and_b32 s4, s4, s50
    s_cbranch_scc0 P2_COLD_S
    s_ff1_i32_b32 s5, s4
    s_mul_i32 s6, s5, {PS}
    v_add_u32_e64 v{vA}, v3, s6
    s_bitset1_b32 s46, s5
    s_mul_i32 s47, s5, 12
    """)
    for i in range(5): read(i)
    A(f"""
    ds_read_b32 v{vM}, v7 offset:4
    s_set_gpr_idx_idx s47
    s_setpc_b64 s[48:49]
    """)
    for t in range(13):
        A.label(f"P2_B{t}")
        if t == 0 and opt.get("stamp"):
            stamp(A, opt, 3)
            A("s_memtime s[80:81]\ns_waitcnt lgkmcnt(0)")
        xl = sum((xpiece(p_) for p_ in range(issued(t), issued(t + 1))), [])
        xl = [sum(xl[i::3], []) for i in range(3)] if XPB == 1 else [sum(xl[i*XPB:(i+1)*XPB], []) for i in range(3)]
        W = 3 * (issued(t) - Pt[t] - 1)
        last = t == 12
        for i in range(9):
            c = (5, 5, 5, 3, None, 4, 4, 4, 4)[i]
            if last and i > 4: c = 8 - i
            if i == 0: A(f"s_waitcnt vmcnt({W}) lgkmcnt({c})")
            elif c is not None: A(f"s_waitcnt lgkmcnt({c})")
            mfma(i)
            if i < 4: read(5 + i)
            if i < 3:
                for x in xl[i]: A(x)
            if last: continue
            if i == 1:
                A(f"""
                s_add_u32 s48, s52, P2_B{t+1}-P2_PC
                s_addc_u32 s49, s53, 0
                """)
            if i == 2 and Pt[t + 1] != Pt[t]: A(f"s_movk_i32 s50, {(2 << Pt[t+1]) - 1}")
            if i == 3:
                A(f"""
                v_readfirstlane_b32 s4, v{vM}
                s_andn2_b32 s4, s4, s46
                s_and_b32 s4, s4, s50
                s_cbranch_scc0 P2_DRAIN
                s_ff1_i32_b32 s5, s4
                """)
            if i == 4:
                A(f"""
                s_mul_i32 s6, s5, {PS}
                v_add_u32_e64 v{vA}, v3, s6
                """)
            if i >= 4: read(i - 4)
            if i == 5:
                A(f"""
                s_bitset1_b32 s46, s5
                s_mul_i32 s47, s5, 12
                """)
            if i == 8:
                A(f"""
                ds_read_b32 v{vM}, v7 offset:4
                s_set_gpr_idx_idx s47
                """)
    A("s_set_gpr_idx_off")

    def epi(t, o):
        a = vACC + 16 * t
        return ([f"v_cvt_pk_bf16_f32 v{o+j}, v{a+2*j}, v{a+2*j+1}" for j in range(8)] +
                ["s_nop 1"] + [f"v_permlane16_swap_b32 v{o+j}, v{o+4+j}" for j in range(4)] +
                [f"buffer_store_dwordx4 {vr(o,4)}, v6, s[96:99], s23 offen offset:{64*t}",
                 f"buffer_store_dwordx4 {vr(o+4,4)}, v6, s[96:99], s22 offen offset:{64*t}"])
    A("s_nop 0")
    for t in range(3):
        if t == 2:
            stamp(A, opt, 6)
            if opt.get("stamp"):
                A("s_memtime s[82:83]\ns_waitcnt lgkmcnt(0)\ns_sub_u32 s72, s82, s80")
                A("s_and_b32 s90, s90, 127\ns_lshl_b32 s90, s90, 24\ns_or_b32 s72, s72, s90")
        for x in epi(t, vF + 8 * t): A(x)


def descriptor(name, vgpr, accum, sgpr):
    return f""".amdhsa_kernel {name}
  .amdhsa_next_free_vgpr {vgpr}
  .amdhsa_next_free_sgpr {sgpr}
  .amdhsa_accum_offset {accum}
  .amdhsa_group_segment_fixed_size 0
  .amdhsa_kernarg_size 72
  .amdhsa_user_sgpr_count 2
  .amdhsa_user_sgpr_kernarg_segment_ptr 1
  .amdhsa_system_sgpr_workgroup_id_x 1
  .amdhsa_float_denorm_mode_32 3
.end_amdhsa_kernel
"""


def generate(opt):
    out = HEADER
    MAP["m"] = opt.get("map", 2)
    MAP["lf"] = opt.get("lf", 0)
    MAP["ef"] = opt.get("ef", 0)
    MAP["ac"] = opt.get("ac", 0)
    assert MAP["lf"] or not MAP["ef"]
    out += f"; @launch grid=(256,1,1) block=(512,1,1) lds={LDS1 + 1024}\n"
    out += '.amdgcn_target "amdgcn-amd-amdhsa--gfx950"\n.text\n'
    A = Asm()
    out += f".globl {KNAME}\n.p2align 8\n.type {KNAME},@function\n"
    gen_kernel(A, opt)
    out += A.text()
    out += "CODE_END:\n"
    out += '.section .rodata,"a"\n.p2align 6\n'
    out += descriptor(KNAME, 256, 256, 100)
    return out


if __name__ == "__main__":
    path = sys.argv[1] if len(sys.argv) > 1 else "standalone__weight_only_int_quip__prompt.s"
    opt = {}
    for a in sys.argv[2:]:
        k, _, v = a.partition("=")
        opt[k] = int(v) if v else 1
    open(path, "w").write(generate(opt))
    print("wrote", path)
```

```python
import sys

KNAME = "standalone__weight_only_int_quip__prompt_kernel"
HEADER = """; Kernarg layout for this problem (72 bytes, ptrs only, base s[0:1]):
;   offset   0: d_in[0] x  shape=(1, 2048, 640) dtype=bfloat16 strides=(2621440, 1280, 2) contiguous=True
;   offset   8: d_in[1] qw  shape=(640, 1536) dtype=int32 strides=(6144, 4) contiguous=True
;   offset  16: d_in[2] scales  shape=(20, 1536) dtype=bfloat16 strides=(3072, 2) contiguous=True
;   offset  24: d_in[3] zeros  shape=(20, 1536) dtype=bfloat16 strides=(3072, 2) contiguous=True
;   offset  32: d_in[4] U  shape=(640, 640) dtype=bfloat16 strides=(1280, 2) contiguous=True
;   offset  40: d_in[5] V  shape=(1536, 1536) dtype=bfloat16 strides=(3072, 2) contiguous=True
;   offset  48: d_out     shape=(1, 2048, 1536) dtype=bfloat16 (2 bytes/elem)
; phase 2 makes y = xr@W2.  One workgroup per CU (256, all resident); hand-off through flags in d_ws
"""

XRF = 0
W2F = 64 * 40 * 1024
FLG = W2F + 48 * 40 * 1024
XFLG = FLG + 256 * 256
SFLG = XFLG + 256 * 128
FLG_END = FLG + 64 * 3 * 1024
SA = FLG_END
WS_USED = SA + 40 * 12 * 4096
assert SFLG + 168 * 256 <= FLG_END

X_BYTES = 2048 * 640 * 2
QW_BYTES = 640 * 1536 * 4
SC_BYTES = 20 * 1536 * 2
U_BYTES = 640 * 640 * 2
V_BYTES = 1536 * 1536 * 2
OUT_BYTES = 2048 * 1536 * 2

VSTAGE = 32768
ABASE = 3 * VSTAGE
ASTAGE = 12288
TBL = ABASE + 2 * ASTAGE
LDS1 = TBL + 24576
LFLAG = LDS1
QE = 112
XSTAGE = 32768
POLL_MAX = 40000


class Asm:
    def __init__(self):
        self.lines = []

    def __call__(self, s):
        for l in s.strip("\n").split("\n"):
            if not l.strip(): continue
            self.lines.append("    " + l.strip() if not l.strip().endswith(":") else l.strip())

    def label(self, s):
        self.lines.append(s + ":")

    def comment(self, s):
        self.lines.append("    ; " + s)

    def text(self):
        return "\n".join(self.lines) + "\n"


def vr(a, n):
    return f"v[{a}:{a+n-1}]"


STAMP_OFS = 32 << 20
NSTAMP = 8


def stamp(A, opt, i, wait=False):
    if opt.get("stamp") or ("probe" in opt and i in (0, opt["probe"])):
        A(f"s_memrealtime s[{64+2*i}:{65+2*i}]")
        if wait: A("s_waitcnt lgkmcnt(0)")


def stamp_begin(A, opt):
    if opt.get("stamp") or "probe" in opt:
        for i in range(1, NSTAMP):
            A(f"s_mov_b32 s{64+2*i}, 0")
        A("s_mov_b32 s90, 0")
    stamp(A, opt, 0)


def stamp_end(A, opt):
    if "probe" in opt:
        p = opt["probe"]
        wl, wh = opt.get("pwl", 0), opt.get("pwh", 7)
        gl, gh = opt.get("pgl", 0), opt.get("pgh", 255)
        A(f"""
        s_waitcnt vmcnt(0) lgkmcnt(0)
        s_memrealtime s[78:79]
        s_waitcnt lgkmcnt(0)
        s_cmp_gt_u32 s2, {gh}
        s_cbranch_scc1 PRB_X
        s_cmp_lt_u32 s2, {gl}
        s_cbranch_scc1 PRB_X
        s_cmp_lt_u32 s36, {wl}
        s_cbranch_scc1 PRB_X
        s_cmp_gt_u32 s36, {wh}
        s_cbranch_scc1 PRB_X
        s_cmp_eq_u32 s{64+2*p}, 0
        s_cbranch_scc1 PRB_X
        s_sub_u32 s4, s{64+2*p}, s64
        s_mul_i32 s4, s4, 3
        s_min_u32 s4, s4, 20000
        """)
        A.label("PRB")
        A("""
        s_memrealtime s[6:7]
        s_waitcnt lgkmcnt(0)
        s_sub_u32 s5, s6, s78
        s_cmp_lt_u32 s5, s4
        s_cbranch_scc1 PRB
        """)
        A.label("PRB_X")
    if opt.get("stamp"):
        A("s_waitcnt vmcnt(0) lgkmcnt(0)")
        stamp(A, opt, NSTAMP - 1)
        A(f"""
        s_load_dwordx2 s[56:57], s[0:1], 64
        s_waitcnt lgkmcnt(0)
        s_mov_b32 s58, 0x7fffffff
        s_mov_b32 s59, 0x00020000
        v_lshrrev_b32 v1, 6, v0
        v_lshlrev_b32 v1, 5, v1
        s_lshl_b32 s4, s2, 8
        s_add_u32 s4, s4, {STAMP_OFS}
        """)
        for i in range(NSTAMP):
            A(f"v_mov_b32 v{4+i}, s{64+2*i}")
        A("""
        buffer_store_dwordx4 v[4:7], v1, s[56:59], s4 offen
        buffer_store_dwordx4 v[8:11], v1, s[56:59], s4 offen offset:16
        """)
    A("s_endpgm")


def cst(A, opt, sidx, add):
    if not opt.get("cst"): return
    A(f"""
    s_memtime s[84:85]
    s_add_u32 s86, {sidx}, {add}
    v_cmp_eq_u32 vcc, s86, v1
    s_waitcnt lgkmcnt(0)
    v_mov_b32 v231, s84
    v_cndmask_b32 v230, v230, v231, vcc
    """)


FSR = {"m": [8,10,12,14,16,18,20,22,28,30,32,34,56,58,60,62],
       "d": [12,14,16,18,20,22,28,30,32,34,50,52,54,58,60,62,44,46],
       "l": [8,10,16,18,20,22,28,30,32,34,50,52,54,56,58,60,62]}


class Fst:
    def __init__(self, A, opt, role, on):
        self.A, self.role, self.n = A, role, 0
        self.on = on and "fst" in opt

    def __call__(self):
        if not self.on: return
        r = FSR[self.role][self.n]; self.n += 1
        self.A(f"s_memtime s[{r}:{r+1}]")

    def save(self, sc, val, tag):
        if not self.on: return
        self.A(f"""
        s_waitcnt lgkmcnt(0)
        s_cmp_lg_u32 {sc}, {val}
        s_cbranch_scc1 FS_{tag}
        """)
        for i in range(self.n): self.A(f"v_writelane_b32 v230, s{FSR[self.role][i]}, {i}")
        self.A(f"s_mov_b32 s4, {self.n}")
        self.A("v_writelane_b32 v230, s4, 47")
        self.A.label(f"FS_{tag}")


def cst_out(A, opt):
    if not opt.get("cst") and "fst" not in opt: return
    A(f"""
    v_writelane_b32 v230, s88, 48
    s_mov_b64 s[84:85], s[24:25]
    s_mov_b32 s86, 0x7fffffff
    s_mov_b32 s87, 0x00020000
    v_lshlrev_b32 v231, 2, v0
    s_lshl_b32 s4, s2, 11
    s_add_u32 s4, s4, {STAMP_OFS + (1 << 20)}
    buffer_store_dword v230, v231, s[84:87], s4 offen
    """)


def poll_check(A, vdst, dc, again):
    A(f"v_cmp_ne_u32 vcc, 0, {vdst}")
    if dc & 0xffffffff: A(f"s_or_b32 vcc_lo, vcc_lo, {hex(dc & 0xffffffff)}")
    if dc >> 32: A(f"s_or_b32 vcc_hi, vcc_hi, {hex(dc >> 32)}")
    A(f"""
    s_cmp_eq_u64 vcc, -1
    s_cbranch_scc0 {again}
    """)


def poll(A, name, srd, soff, vaddr, vdst, dc, scnt="s7", sleep=0, st=None):
    A(f"s_mov_b32 {scnt}, {POLL_MAX}")
    if sleep: A(f"s_branch {name}_1")
    A.label(name)
    if sleep:
        A(f"s_sleep {sleep}")
        A.label(name + "_1")
    A(f"""
    s_sub_u32 {scnt}, {scnt}, 1
    s_cbranch_scc1 {name}_X
    """)
    if st: st()
    A(f"""
    buffer_load_dword {vdst}, {vaddr}, {srd}, {soff} offen sc1
    s_waitcnt vmcnt(0)
    """)
    A.label(name + "_C")
    poll_check(A, vdst, dc, name)
    A.label(name + "_X")


def ppoll(A, name, srd, soff, vaddr, v0, n, dc, sleep, scnt="s7"):
    A(f"s_mov_b32 {scnt}, {POLL_MAX}")
    for i in range(n - 1):
        A(f"buffer_load_dword v{v0+i}, {vaddr}, {srd}, {soff} offen sc1")
        if sleep: A(f"s_sleep {sleep}")
    A.label(name)
    A(f"""
    s_sub_u32 {scnt}, {scnt}, 1
    s_cbranch_scc1 {name}_X
    """)
    for i in range(n):
        A(f"""
        buffer_load_dword v{v0+(i+n-1)%n}, {vaddr}, {srd}, {soff} offen sc1
        s_waitcnt vmcnt({n-1})
        v_cmp_ne_u32 vcc, 0, v{v0+i}
        """)
        if dc & 0xffffffff: A(f"s_or_b32 vcc_lo, vcc_lo, {hex(dc & 0xffffffff)}")
        if dc >> 32: A(f"s_or_b32 vcc_hi, vcc_hi, {hex(dc >> 32)}")
        A(f"""
        s_cmp_eq_u64 vcc, -1
        s_cbranch_scc1 {name}_X
        """)
        if sleep: A(f"s_sleep {sleep}")
    A(f"s_branch {name}")
    A.label(name + "_X")


DC_W = 0xFFFFFC0000000000
DBG = "s[92:95]"
MAP = {"m": 2}


def p2_tile(A):
    lm = MAP["m"]
    ln = 5 - lm
    xm = 4 - lm
    A(f"""
    s_and_b32 s38, s37, {(1 << xm) - 1}
    s_lshl_b32 s38, s38, {lm}
    s_and_b32 s39, s3, {(1 << lm) - 1}
    s_add_u32 s38, s38, s39
    s_lshr_b32 s39, s37, {xm}
    s_lshl_b32 s39, s39, {ln}
    s_lshr_b32 s4, s3, {lm}
    s_add_u32 s39, s39, s4
    """)
    if MAP["ac"]:
        A(f"""
        s_lshl_b32 s45, s38, 4
        s_add_u32 s45, s45, s39
        s_lshl_b32 s45, s45, 7
        s_add_u32 s44, s45, {FLG + 32768}
        s_add_u32 s45, s45, {FLG}
        """)
        if MAP["xf"]:
            A(f"""
            s_max_u32 s4, s36, 5
            s_mul_i32 s4, s4, {MAP["xf"]}
            s_add_u32 s44, s44, s4
            s_sub_u32 s44, s44, {5 * MAP["xf"]}
            """)
        return
    if MAP["ef"]:
        A(f"""
        s_mul_i32 s45, s39, 3
        s_add_u32 s43, s45, 2
        s_lshr_b32 s45, s45, 2
        s_lshr_b32 s43, s43, 2
        s_cmp_eq_u32 s43, s45
        s_cselect_b32 s43, 13, 27
        s_mul_i32 s45, s45, {14*128}
        s_add_u32 s45, s45, {FLG}
        s_mul_i32 s44, s38, {20*128}
        s_add_u32 s44, s44, {FLG + 672*128}
        """)
        return
    if MAP["lf"]:
        A(f"""
        s_mul_i32 s45, s39, {42*128}
        s_add_u32 s45, s45, {FLG}
        s_mul_i32 s44, s38, {20*128}
        s_add_u32 s44, s44, {FLG + 672*128}
        """)
        return
    A(f"""
    s_lshl_b32 s45, s38, 4
    s_add_u32 s45, s45, s39
    s_lshl_b32 s44, s45, 7
    s_add_u32 s44, s44, {XFLG}
    s_lshl_b32 s45, s45, 8
    s_add_u32 s45, s45, {FLG}
    """)


def spoll(A, name, soff, want, sleep, first=True, sd="s61"):
    A(f"s_mov_b32 s7, {POLL_MAX}")
    if not first: A(f"s_branch {name}_C")
    elif sleep: A(f"s_branch {name}_1")
    A.label(name)
    if sleep:
        A(f"s_sleep {sleep}")
        A.label(name + "_1")
    A(f"""
    s_sub_u32 s7, s7, 1
    s_cbranch_scc1 {name}_X
    s_buffer_load_dword {sd}, s[24:27], {soff} glc
    """)
    A.label(name + "_C")
    A(f"""
    s_waitcnt lgkmcnt(0)
    s_cmp_lt_u32 {sd}, {want}
    s_cbranch_scc1 {name}
    """)
    A.label(name + "_X")


def publish(A, opt, sflag, sshift):
    if MAP["ac"]:
        A(f"""
        v_mov_b32 v2, 1
        v_lshlrev_b32 v3, {sshift}, v1
        s_waitcnt vmcnt(0)
        s_mov_b64 exec, 0xffff
        buffer_atomic_add v2, v3, s[24:27], {sflag} offen sc1
        """)
        if opt.get("xv"):
            A("""
            s_mov_b64 exec, 1
            ds_add_u32 v4, v2 offset:8
            """)
        A("s_mov_b64 exec, -1")
        stamp(A, opt, 4)
        return
    A(f"""
    v_mov_b32 v2, 1
    v_lshlrev_b32 v3, {sshift}, v1
    s_waitcnt vmcnt(0)
    s_mov_b64 exec, {1 if MAP["lf"] else "0xffff"}
    buffer_store_dword v2, v3, s[24:27], {sflag} offen sc1
    """)
    if opt.get("xap"):
        A(f"""
        v_mov_b32 v3, {LFLAG}
        s_mov_b64 exec, 1
        ds_add_u32 v3, v2 offset:8
        """)
    A("s_mov_b64 exec, -1")
    stamp(A, opt, 4)


def gen_kernel(A, opt):
    A.label(KNAME)
    stamp_begin(A, opt)
    CP0 = opt.get("cp0", 0)

    def cp0():
        A("s_getpc_b64 s[4:5]")
        A.label("P1_PC")
        A("""
        v_lshlrev_b32 v3, 7, v0
        v_min_u32 v3, CODE_END-P1_PC-4, v3
        global_load_dword v250, v3, s[4:5]
        """)
    if CP0 == 1:
        A("""
        s_cmp_ge_u32 s2, 256
        s_cbranch_scc1 K_EXIT
        """)
        cp0()
    A("""
    s_load_dwordx2 s[8:9], s[0:1], 8
    s_load_dwordx2 s[12:13], s[0:1], 40
    s_load_dwordx2 s[16:17], s[0:1], 16
    s_load_dwordx2 s[20:21], s[0:1], 24
    s_load_dwordx2 s[28:29], s[0:1], 0
    s_load_dwordx2 s[32:33], s[0:1], 32
    s_load_dwordx2 s[24:25], s[0:1], 64
    s_load_dwordx2 s[92:93], s[0:1], 56
    s_load_dwordx2 s[96:97], s[0:1], 48
    """)
    if CP0 != 1:
        A("""
        s_cmp_ge_u32 s2, 256
        s_cbranch_scc1 K_EXIT
        """)
    if CP0 == 2: cp0()
    A("""
    v_and_b32 v1, 63, v0
    v_lshrrev_b32 v2, 6, v0
    """)
    if not CP0:
        A("s_getpc_b64 s[4:5]")
        A.label("P1_PC")
    else:
        A("s_lshr_b32 s3, s2, 3")
    A(f"""
    v_readfirstlane_b32 s36, v2
    """)
    CP = opt.get("cp", 0)
    if CP0:
        A(f"""
        s_and_b32 s37, s2, 7
        s_cmp_lg_u32 s36, 7
        s_cbranch_scc1 P1_NOPF
        """)
    elif CP:
        A(f"""
        s_lshr_b32 s3, s2, 3
        s_lshl_b32 s37, s3, 2
        v_min_u32 v3, {CP-1}, v1
        v_add_u32 v3, s37, v3
        v_and_b32 v3, 127, v3
        v_lshlrev_b32 v3, 7, v3
        v_min_u32 v3, CODE_END-P1_PC-4, v3
        s_and_b32 s37, s2, 7
        s_cmp_lg_u32 s36, {opt.get("cpw", 7)}
        s_cbranch_scc1 P1_NOPF
        global_load_dword v250, v3, s[4:5]
        """)
    else:
        A(f"""
        v_lshlrev_b32 v3, 7, v1
        v_add_u32 v4, 0x2000, v3
        v_min_u32 v4, CODE_END-P1_PC-4, v4
        s_lshr_b32 s3, s2, 3
        s_and_b32 s37, s2, 7
        s_cmp_lg_u32 s36, 7
        s_cbranch_scc1 P1_NOPF
        global_load_dword v250, v3, s[4:5]
        global_load_dword v251, v4, s[4:5]
        """)
    A(f"""
    v_mov_b32 v2, 0
    v_mov_b32 v3, 0
    v_mov_b32 v4, {LFLAG}
    ds_write_b64 v4, v[2:3]
    """)
    if opt.get("nb") or opt.get("xw"): A("ds_write_b64 v4, v[2:3] offset:8")
    A.label("P1_NOPF")
    A(f"""
    s_mov_b32 s11, 0x00020000
    s_mov_b32 s15, 0x00020000
    s_mov_b32 s27, 0x00020000
    s_mov_b32 s26, {WS_USED}
    s_movk_i32 s94, 256
    s_mov_b32 s95, 0x00020000
    s_mov_b32 s98, {OUT_BYTES}
    s_mov_b32 s99, 0x00020000
    v_lshlrev_b32 v5, 4, v1
    """)
    if MAP["xf"]: A("s_mov_b32 s62, 0")
    A("""
    s_cmp_ge_u32 s3, 21
    s_cbranch_scc1 P1_XR
    """)
    (gen_w2p if opt.get("px") else gen_w2)(A, opt)
    A.label("P1_XR")
    gen_xr(A, opt)
    (gen_p2d if opt.get("dy") else gen_p2)(A, opt)
    A.label("K_EXIT")
    stamp_end(A, opt)


def gate_addr(A, v, m=7):
    A(f"""
    v_and_b32 {v}, {m}, v1
    v_lshlrev_b32 {v}, 2, {v}
    """)


def gen_w2(A, opt):
    NQ = 2
    SH = opt.get("sh", 0)
    RING = 3 * VSTAGE
    RG = opt.get("rg", 2)
    sW, sLOC, sXCD = "s36", "s3", "s37"
    sMI, sNI = "s40", "s41"
    sC = "s49"
    sVOFS = "s43"
    vVO = 6
    if opt.get("cst") or "fst" in opt: A("s_memtime s[88:89]\nv_mov_b32 v230, 0")
    A(f"""
    s_mul_i32 s4, {sLOC}, 171
    s_lshr_b32 s4, s4, 9
    s_mul_i32 s5, s4, 3
    s_sub_u32 s5, {sLOC}, s5
    s_lshr_b32 s6, {sXCD}, 2
    s_mul_i32 s6, s6, 7
    s_add_u32 {sMI}, s6, s4
    s_and_b32 s6, {sXCD}, 3
    s_mul_i32 s6, s6, 3
    s_add_u32 {sNI}, s6, s5
    s_mul_i32 s42, {sMI}, 3
    s_mov_b32 s57, s5
    """)
    RL = opt.get("rl", 0)
    if RL:
        A(f"""
        s_add_u32 s58, s4, s5
        s_mul_i32 s6, s58, 171
        s_lshr_b32 s6, s6, 9
        s_mul_i32 s6, s6, 3
        s_sub_u32 s58, s58, s6
        s_cmp_ge_u32 s4, 3
        s_cselect_b32 s6, 3, 2
        s_cmp_eq_u32 s58, 2
        s_cselect_b32 s58, s6, s58
        """)
    A(f"""
    s_sub_u32 s4, {sW}, 4
    s_cmp_lt_u32 s4, 3
    s_cbranch_scc1 W2_DEQ
    s_mov_b32 s14, {V_BYTES}
    v_lshrrev_b32 v2, 4, v1
    v_and_b32 v3, 15, v1
    v_lshlrev_b32 v4, 1, v2
    v_xor_b32 v3, v3, v4
    v_lshlrev_b32 v3, 4, v3
    v_mul_u32_u24 v4, 0xc00, v2
    v_add_u32 v{vVO}, v3, v4
    v_add_u32 v{vVO+1}, 11264, v{vVO}
    v_xor_b32 v3, 0x80, v{vVO}
    v_add_u32 v{vVO+2}, {2*11264}, v3
    v_add_u32 v{vVO+3}, {3*11264}, v3
    s_lshl_b32 {sVOFS}, {sNI}, 8
    s_cmp_lt_u32 {sW}, 4
    s_cbranch_scc1 W2_MFMA
    """)

    def v_group():
        for j in range(4):
            A(f"buffer_load_dwordx4 v{vVO+j}, s[12:15], {sVOFS} offen offset:{1024*j} lds")

    GPC = opt.get("gpc", 2 if SH else 4)
    VR = opt.get("vr", 0)
    sLO = [80, 81, 82, 83, 44, 45, 46, 47]
    if VR:
        A(f"""
        s_lshr_b32 s6, {sXCD}, 2
        s_xor_b32 s6, s6, {1 if VR == 2 else 0}
        s_lshl_b32 s6, s6, 2
        """)
        for g in range(7, -1, -1):
            if VR == 1:
                A(f"""
                s_add_u32 s5, {sMI}, {g}
                s_and_b32 s5, s5, 7
                """)
            else:
                A(f"""
                s_add_u32 s5, {sMI}, {g}
                s_and_b32 s5, s5, 3
                s_or_b32 s5, s5, {g & 4}
                s_xor_b32 s5, s5, s6
                """)
            A(f"""
            s_lshl_b32 s{sLO[g]}, s5, 12
            s_mul_i32 s5, s5, {16*3072}
            """)
            for j in range(4):
                A(f"v_add_u32 v{vVO+4*g+j}, s5, v{vVO+j}")
        A(f"s_mov_b32 s48, {VSTAGE}")
    else:
      for g in range(1, 8):
        for j in range(4):
            A(f"v_add_u32 v{vVO+4*g+j}, {g*16*3072}, v{vVO+j}")
    gate_addr(A, "v40", 15 if opt.get("fw") else 7)
    LP, LG = opt.get("lp", 0), opt.get("lg", 1)
    A(f"""
    s_mov_b32 m0, {VSTAGE}
    s_mov_b32 {sC}, 1
    """)
    if RL:
        A(f"""
        s_cmp_eq_u32 s58, 3
        s_cselect_b32 s59, {VSTAGE}, 0
        s_cselect_b32 s60, 393216, 0
        s_sub_u32 m0, m0, s59
        s_sub_u32 {sVOFS}, {sVOFS}, s60
        """)
    A("s_waitcnt lgkmcnt(0)")
    stamp(A, opt, 1)
    cst(A, opt, 0, 49)
    ST = 7 if RL else opt.get("st", 0)
    if ST & 1:
        cst(A, opt, 0, 50)
        A("s_barrier")
        cst(A, opt, 0, 51)
        A(f"s_setprio {opt.get('lpr', 3)}")
    A.label("W2L_LOOP")
    A(f"""
    s_add_u32 {sVOFS}, {sVOFS}, 393216
    s_cmp_lg_u32 {sC}, {GPC}
    s_cbranch_scc1 W2L_NG
    buffer_load_dword v42, v40, {DBG}, 0 offen sc1
    """)
    A.label("W2L_NG")
    FL_ = Fst(A, opt, "l", True)
    FL_()
    if opt.get("fl") == 2:
        A(f"""
        s_cmp_lg_u32 {sC}, {opt.get("fst", 0) + 2}
        s_cbranch_scc1 W2L_FL2
        """)
        for n_ in (28, 24, 20, 16, 12, 8, 4, 0):
            A(f"s_waitcnt vmcnt({n_})")
            FL_()
        A.label("W2L_FL2")
    nsleep(A, opt.get("ld", 0))
    if opt.get("ld11"):
        A(f"""
        s_cmp_lg_u32 {sC}, 11
        s_cbranch_scc1 W2L_LD
        s_sleep {opt["ld11"]}
        """)
        A.label("W2L_LD")
    for g in range(8):
        if VR: A(f"s_add_u32 m0, s48, s{sLO[g]}\ns_nop 0")
        if g == 6: A("s_waitcnt vmcnt(54)")
        for j in range(4):
            A(f"buffer_load_dwordx4 v{vVO+4*g+j}, s[12:15], {sVOFS} offen offset:{1024*j} lds")
            if j == 3 and not VR: A("s_add_u32 m0, m0, 4096")
            if j == 3 and g < 7 and not VR: A("s_nop 0")
            if j == 3 and (not opt.get("fl") or g in (0, 3, 7)): FL_()
            if opt.get("lpa") and (4*g+j+1) % opt.get("lpg", 1) == 0:
                n_ = opt["lpa"]
                while n_ > 0:
                    A(f"s_nop {min(n_, 16) - 1}"); n_ -= 16
    if VR:
        assert not LP and not RL
        A(f"""
        s_add_u32 s48, s48, {VSTAGE}
        s_cmp_ge_u32 s48, {RING}
        s_cselect_b32 s48, 0, s48
        """)
    else:
        A(f"""
        s_cmp_ge_u32 m0, {RING}
        s_cselect_b32 m0, 0, m0
        """)
    if RL:
        A(f"""
        s_cmp_eq_u32 s59, 0
        s_cbranch_scc1 W2L_R
        s_add_u32 m0, m0, s59
        s_add_u32 {sVOFS}, {sVOFS}, s60
        s_mov_b32 s59, 0
        s_waitcnt vmcnt(0)
        """)
        A.label("W2L_R")
    if not ST & 1:
        A(f"""
        s_cmp_lg_u32 {sC}, 1
        s_cbranch_scc1 W2L_NT
        """)
        cst(A, opt, 0, 50)
        A("s_barrier")
        cst(A, opt, 0, 51)
        A(f"s_setprio {opt.get('lpr', 3)}")
        if opt.get("v2e"): A("s_branch W2L_NB")
        A.label("W2L_NT")
        if opt.get("v2e"):
            A(f"""
            s_cmp_lg_u32 {sC}, 2
            s_cbranch_scc1 W2L_N2
            s_barrier
            """)
            A.label("W2L_N2")
    cst(A, opt, sC, 31)
    A(f"""
    s_waitcnt vmcnt(32)
    s_cmp_lg_u32 {sC}, {GPC}
    s_cbranch_scc1 W2L_G_X
    """)
    poll_check(A, "v42", 0, "W2L_GS")
    A.label("W2L_G_X")
    FL_()
    if opt.get("fl") == 1:
        A(f"""
        s_cmp_lg_u32 {sC}, {opt.get("fst", 0) + 2}
        s_cbranch_scc1 W2L_FL
        """)
        for n_ in (31, 28, 24, 20, 16, 12, 8, 4, 0):
            A(f"s_waitcnt vmcnt({n_})")
            FL_()
        A.label("W2L_FL")
    FL_.save(sC, opt.get("fst", 0) + 2, "L")
    cst(A, opt, sC, 15)
    A("s_barrier")
    cst(A, opt, sC, -1)
    A.label("W2L_NB")
    A(f"""
    s_add_u32 {sC}, {sC}, 1
    s_cmp_lt_u32 {sC}, {opt.get('nch', 12) - (1 if LP else 0)}
    s_cbranch_scc1 W2L_LOOP
    """)
    if LP:
        A(f"s_add_u32 {sVOFS}, {sVOFS}, 393216")
        for g in range(8):
            if g == 6: A("s_waitcnt vmcnt(54)")
            for j in range(4):
                A(f"buffer_load_dwordx4 v{vVO+4*g+j}, s[12:15], {sVOFS} offen offset:{1024*j} lds")
                if j == 3: A("s_add_u32 m0, m0, 4096")
                if (4 * g + j + 1) % LG == 0 and 4 * g + j < 31:
                    n = LP
                    while n > 0:
                        A(f"s_nop {min(n, 16) - 1}"); n -= 16
                elif j == 3 and g < 7: A("s_nop 0")
        cst(A, opt, sC, 31)
        A("s_waitcnt vmcnt(32)")
        cst(A, opt, sC, 15)
        A("s_barrier")
        cst(A, opt, sC, -1)
    EF = MAP["ef"]

    def early_flag():
        nsleep(A, opt.get("pd", 0))
        A(f"""
        s_mov_b64 exec, 1
        buffer_store_dword v41, v40, s[24:27], s51 offen sc1
        s_mov_b64 exec, -1
        """)
        stamp(A, opt, 4)
    if EF:
        A(f"""
        s_mul_i32 s51, {sNI}, 14
        s_add_u32 s51, s51, {sMI}
        s_lshl_b32 s51, s51, 7
        s_add_u32 s51, s51, {FLG}
        v_mov_b32 v41, 1
        """)
        if EF == 10: early_flag()
        A(f"""
        s_waitcnt vmcnt({1 if EF == 10 else 0})
        s_barrier
        """)
        if EF == 11: early_flag()
        A("s_barrier")
        if EF == 12: early_flag()
        A("s_setprio 0")
    elif opt.get("nb"):
        A("s_setprio 0")
        if opt["nb"] == 2 and MAP["ac"]:
            p2_tile(A)
            nsleep(A, opt.get("xpd", 0))
            A(f"""
            s_buffer_load_dword s61, s[24:27], s44 glc
            v_mov_b32 v4, {LFLAG}
            v_mov_b32 v3, 1
            s_waitcnt vmcnt(0) lgkmcnt(0)
            s_cmp_lt_u32 s61, 20
            s_cbranch_scc1 W2L_NX
            ds_write_b32 v4, v3
            s_waitcnt lgkmcnt(0)
            """)
            A.label("W2L_NX")
        elif opt["nb"] == 2:
            p2_tile(A)
            A(f"""
            v_min_u32 v2, 19, v1
            v_lshlrev_b32 v2, 7, v2
            buffer_load_dword v3, v2, s[24:27], s44 offen sc1
            v_mov_b32 v4, {LFLAG}
            s_waitcnt vmcnt(0)
            """)
            poll_check(A, "v3", 0, "W2L_NX")
            A("""
            ds_write_b32 v4, v3
            s_waitcnt lgkmcnt(0)
            """)
            A.label("W2L_NX")
        A("""
        s_waitcnt vmcnt(0)
        s_barrier
        """)
    else:
        A(f"""
        s_setprio 0
        s_waitcnt vmcnt(0)
        s_barrier
        s_barrier
        """)
    cst_out(A, opt)
    A("s_branch P2_MM")
    A.label("W2L_GS")
    A(f"s_mov_b32 s7, {POLL_MAX}")
    A.label("W2L_G")
    A(f"""
    s_sub_u32 s7, s7, 1
    s_cbranch_scc1 W2L_G_X
    buffer_load_dword v42, v40, {DBG}, 0 offen sc1
    s_waitcnt vmcnt(0)
    """)
    poll_check(A, "v42", 0, "W2L_G")
    A("s_branch W2L_G_X")
    A.label("W2_DEQ")
    sB = "s38"
    sQOFS = "s43"
    vQO = 6
    vAW = 14
    vTB = 22
    U_ = 24
    Ft = 40
    O = 48
    vQ = 52
    QS = 32
    vAP = 116
    vP = 124
    vPL, vPA = 156, 157
    sCS, sPK, sQF = "s39", "s45", "s46"
    A(f"""
    s_mov_b32 {sB}, s4
    s_add_u32 s4, s42, {sB}
    s_cmp_ge_u32 s4, 40
    s_cbranch_scc1 W2D_IDLE
    s_mul_i32 {sQOFS}, s4, {16*6144}
    """)
    if SH:
        A(f"""
        s_mul_i32 {sPK}, s4, {12*4096}
        s_add_u32 {sPK}, {sPK}, {SA + 2*4096}
        """)
    A(f"""
    s_lshr_b32 s6, s4, 1
    s_lshr_b32 s5, s42, 1
    s_sub_u32 s6, s6, s5
    s_mul_i32 s6, s6, 6144
    s_add_u32 s6, s6, {TBL}
    s_mov_b32 s10, {QW_BYTES}
    v_lshrrev_b32 v2, 5, v1
    v_and_b32 v3, 31, v1
    v_lshlrev_b32 v4, 4, v3
    v_mul_u32_u24 v{vQO}, 0x1800, v2
    v_add_u32 v{vQO}, v{vQO}, v4
    v_add_u32 v{vTB}, s6, v4
    """)
    QR = opt.get("qr", 3)
    A(f"s_mul_i32 s57, s57, {QR}")
    for i in range(7, -1, -1):
        A(f"""
        s_add_u32 s4, s57, {i}
        s_and_b32 s4, s4, 7
        s_mul_i32 s4, s4, 12288
        v_add_u32 v{vQO+i}, s4, v{vQO}
        """)
    A("s_waitcnt lgkmcnt(0)")
    stamp(A, opt, 1)
    cst(A, opt, 0, 49)

    def t_read(n):
        u = U_ + 8 * (n & 1)
        A(f"""
        ds_read_b128 {vr(u,4)}, v{vTB}
        ds_read_b128 {vr(u+4,4)}, v{vTB} offset:12288
        v_add_u32 v{vTB}, 512, v{vTB}
        """)

    if RL:
        A("""
        s_cmp_lg_u32 s58, 1
        s_cbranch_scc1 W2D_R0
        """)
        for i in range(8):
            A(f"buffer_load_dwordx4 {vr(vQ+QS+4*i,4)}, v{vQO+i}, s[8:11], {sQOFS} offen offset:512")
        A.label("W2D_R0")
    for u in range(1 if ST & 2 else NQ):
        for i in range(8):
            A(f"buffer_load_dwordx4 {vr(vQ+QS*u+4*i,4)}, v{vQO+i}, s[8:11], {sQOFS} offen offset:{512*u}")
    A(f"""
    s_add_u32 {sQOFS}, {sQOFS}, 512
    s_lshl_b32 s4, {sB}, 12
    s_add_u32 s4, s4, {ABASE}
    v_bfe_u32 v3, v1, 1, 4
    v_xor_b32 v4, v3, v2
    v_lshlrev_b32 v4, 4, v4
    v_lshl_add_u32 v4, v2, 8, v4
    v_and_b32 v3, 1, v1
    v_lshl_add_u32 v4, v3, 3, v4
    v_add_u32 v{vAW}, s4, v4
    """)
    if SH:
        for i in range(8):
            A(f"""
            v_xor_b32 v3, {32*i}, v{vAW}
            v_add_u32 v{vAP+i}, {512*i}, v3
            """)
        A(f"""
        s_mul_i32 {sQF}, {sMI}, 12
        s_add_u32 {sQF}, {sQF}, {sNI}
        s_lshl_b32 {sQF}, {sQF}, 2
        s_add_u32 {sQF}, {sQF}, {sB}
        s_lshl_b32 {sQF}, {sQF}, 6
        s_add_u32 {sQF}, {sQF}, {SFLG}
        s_movk_i32 {sCS}, 100
        v_max_u32 v{vPA}, {SH}, v1
        v_min_u32 v{vPA}, 11, v{vPA}
        v_lshlrev_b32 v{vPA}, 2, v{vPA}
        v_mov_b32 v{vPL}, 0
        """)
    for i in range(7, -1, -1):
        A(f"""
        s_add_u32 s4, s57, {i}
        s_and_b32 s4, s4, 7
        s_lshl_b32 s5, s4, 5
        s_lshl_b32 s4, s4, 9
        v_xor_b32 v3, s5, v{vAW}
        v_add_u32 v{vAW+i}, s4, v3
        """)
    A(f"s_mov_b32 {sC}, 0")
    cst(A, opt, 0, 50)
    if opt.get("cst") and not ST & 2:
        A("s_waitcnt vmcnt(8)")
        cst(A, opt, 0, 52)
    A("s_barrier")
    cst(A, opt, 0, 51)
    A(f"s_setprio {opt.get('dpr', 3)}")
    t_read(0)
    if ST & 2:
        if RL:
            A("""
            s_cmp_lg_u32 s58, 1
            s_cbranch_scc1 W2D_R1
            s_waitcnt vmcnt(0)
            s_branch W2D_R2
            """)
            A.label("W2D_R1")
        for i in range(8):
            A(f"buffer_load_dwordx4 {vr(vQ+QS+4*i,4)}, v{vQO+i}, s[8:11], {sQOFS} offen")
        if RL: A.label("W2D_R2")
        if opt.get("cst"):
            cst(A, opt, 0, 53)
            A("s_waitcnt vmcnt(8)")
            cst(A, opt, 0, 52)
    A("s_waitcnt lgkmcnt(0)")
    UN = 2

    def sload(n, sofs):
        for j in range(4):
            A(f"buffer_load_dwordx4 {vr(vP+16*n+4*j,4)}, v5, s[24:27], {sofs} offen offset:{1024*j} sc1")

    if opt.get("pw"):
        assert not SH and not ST & 2
        OB = 160
        PW = opt["pw"]
        if not opt.get("tp"): t_read(1)
        A(f"""
        s_mov_b32 {sC}, -1
        s_waitcnt lgkmcnt(0)
        s_branch W2D_ENT
        .p2align 3
        """)
        A.label("W2D_LOOP")
        for n in range(2):
            FD = Fst(A, opt, "d", n == (opt.get("fst", 0) + 1) & 1)
            FD()
            for i in range(8):
                A(f"ds_write_b64 v{vAW+i}, {vr(OB+2*i,2)} offset:{ASTAGE*n}")
                if i in (3, 7): FD()
            if n == 1:
                A(f"""
                s_cmp_eq_u32 {sC}, 11
                s_cbranch_scc1 W2D_END
                """)
            TP = opt.get("tp", 0)
            if TP == 0: t_read(n)
            if n == 1: A.label("W2D_ENT")
            q = vQ + QS * (n ^ 1)
            S = U_ + 8 * (n ^ 1)
            A(f"""
            s_add_u32 {sQOFS}, {sQOFS}, 512
            s_cmp_lt_i32 {sC}, 9
            s_cbranch_scc1 W2D_NT{n}
            s_waitcnt vmcnt({8 if n == 1 else 0})
            """)
            A.label(f"W2D_NT{n}")
            for i in range(8):
                qq = q + 4 * i
                f = Ft + 4 * (i & 1)
                o = OB + 2 * i
                if i % RG == 0: A(f"s_waitcnt vmcnt({16 - RG})")
                A(f"""
                v_fma_f32 v{f}, v{qq}, v{S}, v{S+4}
                v_fma_f32 v{f+1}, v{qq+1}, v{S+1}, v{S+5}
                v_fma_f32 v{f+2}, v{qq+2}, v{S+2}, v{S+6}
                v_fma_f32 v{f+3}, v{qq+3}, v{S+3}, v{S+7}
                v_cvt_pk_bf16_f32 v{o}, v{f}, v{f+1}
                v_cvt_pk_bf16_f32 v{o+1}, v{f+2}, v{f+3}
                """)
                if i + 1 == TP: t_read(n)
                if (i + 1) % RG == 0:
                    FD()
                    A(f"s_cbranch_scc0 W2D_SK{n}_{i}")
                    for ii in range(i + 1 - RG, i + 1):
                        A(f"buffer_load_dwordx4 {vr(q+4*ii,4)}, v{vQO+ii}, s[8:11], {sQOFS} offen")
                    A.label(f"W2D_SK{n}_{i}")
                    FD()
            A("s_waitcnt lgkmcnt(0)")
            FD()
            FD.save(sC, opt.get("fst", 0) + 1, "D")
            A(f"s_add_u32 {sC}, {sC}, 1")
            if n == 1:
                A("s_cbranch_scc1 W2D_LOOP")
            cst(A, opt, sC, 15)
            A("s_barrier")
            cst(A, opt, sC, -1)
            if n == 1: A("s_branch W2D_LOOP")
            else: A(".p2align 3")
        A.label("W2D_END")
        A("""
        s_setprio 0
        s_waitcnt lgkmcnt(0)
        """)
        cst(A, opt, sC, 16)
        A("s_barrier")
        cst(A, opt, sC, 0)
        assert opt.get("nb")
        cst_out(A, opt)
        A("s_branch P2_MM")
        UN = 0
    else:
        A.label("W2D_LOOP")
    for n in range(UN):
        u = n % NQ
        q = vQ + QS * u
        S = U_ + 8 * (n & 1)
        if SH:
            A(f"""
            s_add_u32 s5, {sC}, {n}
            s_lshl_b32 s47, s5, 12
            s_add_u32 s47, s47, {sPK}
            s_cmp_ge_u32 s5, {sCS}
            s_cbranch_scc1 W2D_PK{n}
            """)
        FD = Fst(A, opt, "d", n == (opt.get("fst", 0) + 1) & 1)
        FD()
        t_read(n + 1)
        A(f"s_add_u32 {sQOFS}, {sQOFS}, 512")
        if SH:
            A(f"""
            s_add_u32 s6, s5, 1
            s_min_u32 s7, {sCS}, 12
            s_cmp_lt_u32 s6, s7
            s_waitcnt vmcnt(8)
            s_cbranch_scc1 W2D_NT{n}
            s_cmp_lt_u32 s6, 12
            s_waitcnt vmcnt(4)
            s_cbranch_scc1 W2D_NT{n}
            s_waitcnt vmcnt(0)
            """)
            A.label(f"W2D_NT{n}")
            A(f"""
            s_add_u32 s6, s5, 2
            s_cmp_lt_u32 {sCS}, 100
            s_cbranch_scc1 W2D_E{n}
            v_cmp_ne_u32 vcc, 0, v{vPL}
            s_max_u32 s7, s6, {SH}
            s_cmp_eq_u64 vcc, -1
            s_cselect_b32 {sCS}, s7, {sCS}
            s_cbranch_scc1 W2D_E{n}
            s_cmp_lt_u32 s5, {max(GPC, opt.get("sp0", 0))}
            s_cbranch_scc1 W2D_E{n}
            buffer_load_dword v{vPL}, v{vPA}, s[24:27], {sQF} offen sc1
            """)
            A.label(f"W2D_E{n}")
            A(f"""
            s_cmp_gt_u32 s6, 11
            s_cbranch_scc1 W2D_F{n}
            s_cmp_lt_u32 s6, {sCS}
            s_cbranch_scc1 W2D_F{n}
            """)
            sload(n, "s47")
            A.label(f"W2D_F{n}")
            A(f"""
            s_min_u32 s7, {sCS}, 12
            s_cmp_lt_u32 s6, s7
            """)
        else:
            A(f"""
            s_cmp_lt_u32 {sC}, {opt.get('nch', 12)-NQ-n+1}
            s_waitcnt vmcnt({8*(NQ-1)})
            s_cbranch_scc1 W2D_NT{n}
            s_waitcnt vmcnt({8*min(NQ-1, max(0, UN-1-n))})
            """)
            A.label(f"W2D_NT{n}")
            FD()
            A(f"s_cmp_lt_u32 {sC}, {opt.get('noq', opt.get('nch', 12))-NQ-n}")
        for i in range(8):
            qq = q + 4 * i
            f = Ft + 4 * (i & 1)
            o = O + 2 * (i & 1)
            WL = opt.get("wl", 0)
            if n == 1: WL = opt.get("wl1", WL)
            if WL: o = 160 + 2 * i
            if opt.get("bf") == 2:
                for j in range(4): A(f"v_bfe_u32 v{f+j}, v{qq+j}, 0, 3")
                for j in range(4): A(f"v_fma_f32 v{f+j}, v{f+j}, v{S+j}, v{S+4+j}")
                A(f"""
                v_cvt_pk_bf16_f32 v{o}, v{f}, v{f+1}
                v_cvt_pk_bf16_f32 v{o+1}, v{f+2}, v{f+3}
                """)
            elif opt.get("bf"):
                for j in range(4): A(f"v_bfe_u32 v{f+j}, v{qq+j}, 0, 3")
                A(f"""
                v_pk_fma_f32 {vr(f,2)}, {vr(f,2)}, {vr(S,2)}, {vr(S+4,2)}
                v_pk_fma_f32 {vr(f+2,2)}, {vr(f+2,2)}, {vr(S+2,2)}, {vr(S+6,2)}
                v_cvt_pk_bf16_f32 v{o}, v{f}, v{f+1}
                v_cvt_pk_bf16_f32 v{o+1}, v{f+2}, v{f+3}
                """)
            else:
              A(f"""
            v_fma_f32 v{f}, v{qq}, v{S}, v{S+4}
            v_fma_f32 v{f+1}, v{qq+1}, v{S+1}, v{S+5}
            v_fma_f32 v{f+2}, v{qq+2}, v{S+2}, v{S+6}
            v_fma_f32 v{f+3}, v{qq+3}, v{S+3}, v{S+7}
            v_cvt_pk_bf16_f32 v{o}, v{f}, v{f+1}
            v_cvt_pk_bf16_f32 v{o+1}, v{f+2}, v{f+3}
            """)
            if i + 1 == WL:
                for ii in range(WL): A(f"ds_write_b64 v{vAW+ii}, {vr(160+2*ii,2)} offset:{ASTAGE*(n&1)}")
            elif i + 1 > WL:
                A(f"ds_write_b64 v{vAW+i}, {vr(o,2)} offset:{ASTAGE*(n&1)}")
            FD()
            if (i + 1) % RG == 0:
                A(f"s_cbranch_scc0 W2D_SK{n}_{i}")
                for ii in range(i + 1 - RG, i + 1):
                    A(f"buffer_load_dwordx4 {vr(q+4*ii,4)}, v{vQO+ii}, s[8:11], {sQOFS} offen")
                A.label(f"W2D_SK{n}_{i}")
                FD()
        A("s_waitcnt lgkmcnt(0)")
        FD()
        FD.save(sC, (opt.get("fst", 0) + 1) & ~1, "D")
        if SH: A.label(f"W2D_J{n}")
        cst(A, opt, sC, 16 + n)
        A("s_barrier")
        cst(A, opt, sC, n)
    if UN:
        A(f"""
        s_add_u32 {sC}, {sC}, {UN}
        s_cmp_lt_u32 {sC}, {opt.get('nch', 12)}
        s_cbranch_scc1 W2D_LOOP
        """)
        A("s_setprio 0")
        if SH and opt.get("stamp"): A(f"s_mov_b32 s90, {sCS}")
        if not opt.get("nb"): A("s_barrier")
        cst_out(A, opt)
        A("s_branch P2_MM")
    if SH:
        for n in range(UN):
            A.label(f"W2D_PK{n}")
            A(f"""
            s_cmp_lt_u32 s5, 11
            s_waitcnt vmcnt(4)
            s_cbranch_scc1 W2D_PW{n}
            s_waitcnt vmcnt(0)
            """)
            A.label(f"W2D_PW{n}")
            for i in range(8):
                A(f"ds_write_b64 v{vAP+i}, {vr(vP+16*n+2*i,2)} offset:{ASTAGE*(n&1)}")
            A(f"""
            s_cmp_gt_u32 s5, 9
            s_waitcnt lgkmcnt(0)
            s_cbranch_scc1 W2D_J{n}
            """)
            sload(n, "s47")
            A(f"s_branch W2D_J{n}")
    A.label("W2D_IDLE")
    A(f"""
    s_mov_b32 {sC}, 0
    s_waitcnt lgkmcnt(0)
    """)
    A.label("W2D_IDL")
    A(f"""
    s_barrier
    s_add_u32 {sC}, {sC}, 1
    s_cmp_lt_u32 {sC}, {opt.get('nch', 12) + (1 if opt.get("nb") else 2)}
    s_cbranch_scc1 W2D_IDL
    s_branch P2_MM
    """)
    A.label("W2_MFMA")
    sCST = "s45"
    vAR = 10
    vBR = 14
    vT0, vT1 = 16, 17
    vST = 18
    vACC = 20
    vF = 44
    P = vF
    if ST & 8:
        A(f"""
        s_lshr_b32 s5, {sMI}, 1
        s_add_u32 s5, s5, {sW}
        s_and_b32 s5, s5, 3
        """)
    A(f"""
    s_lshl_b32 s4, {"s5" if ST & 8 else sW}, 13
    s_mov_b32 m0, s4
    s_mul_i32 s4, {"s5" if ST & 8 else sW}, {32*3072}
    s_add_u32 {sVOFS}, {sVOFS}, s4
    s_lshr_b32 s6, s42, 1
    s_mul_i32 s6, s6, 3072
    s_mov_b32 s18, {SC_BYTES}
    s_mov_b32 s19, 0x00020000
    s_mov_b32 s22, {SC_BYTES}
    s_mov_b32 s23, 0x00020000
    v_and_b32 v2, 0xff, v0
    v_lshlrev_b32 v19, 3, v2
    """)
    if ST & 4:
        A(f"""
        s_lshr_b32 s4, {sW}, 1
        s_lshl_b32 s4, s4, 11
        v_add_u32 v19, s4, v19
        s_mov_b32 s56, s6
        v_mov_b32 v{vT0}, v19
        """)
        if RL:
            A(f"""
            s_cmp_eq_u32 s58, 3
            s_cselect_b32 s4, {VSTAGE}, 0
            s_cselect_b32 s5, 393216, 0
            s_add_u32 m0, m0, s4
            s_add_u32 {sVOFS}, {sVOFS}, s5
            """)
        else:
            A(f"""
            s_add_u32 s58, s57, {sMI}
            s_and_b32 s58, s58, {1 if ST & 16 else 0}
            """)
    A("s_waitcnt lgkmcnt(0)")
    stamp(A, opt, 1)
    cst(A, opt, 0, 49)

    def v0_loads():
        v_group()
        A(f"""
        s_add_u32 m0, m0, 4096
        s_add_u32 {sVOFS}, {sVOFS}, {16*3072}
        """)
        v_group()
        if not RL: s12_loads()

    def s12_loads():
        for j in range(1, 3):
            A(f"""
            buffer_load_dwordx2 {vr(P+4*j,2)}, v{vT0}, s[16:19], s56 offen offset:{1024*j}
            buffer_load_dwordx2 {vr(P+4*j+2,2)}, v{vT0}, s[20:23], s56 offen offset:{1024*j}
            """)
    if ST & 4:
        A(f"""
        buffer_load_dwordx2 {vr(P,2)}, v19, s[16:19], s6 offen
        buffer_load_dwordx2 {vr(P+2,2)}, v19, s[20:23], s6 offen
        {"s_cmp_lt_u32 s58, 2" if RL else "s_cmp_lg_u32 s58, 0"}
        s_cbranch_scc1 W2M_VA
        """)
        v0_loads()
        A.label("W2M_VA")
        if RL: s12_loads()
    else:
        for j in range(2):
            A(f"""
            buffer_load_dwordx2 {vr(P+4*j,2)}, v19, s[16:19], s6 offen offset:{2048*j}
            buffer_load_dwordx2 {vr(P+4*j+2,2)}, v19, s[20:23], s6 offen offset:{2048*j}
            """)
        A(f"""
        s_add_u32 s6, s6, 4096
        buffer_load_dwordx2 {vr(P+8,2)}, v19, s[16:19], s6 offen
        buffer_load_dwordx2 {vr(P+10,2)}, v19, s[20:23], s6 offen
        """)
        v_group()
        A(f"""
        s_add_u32 m0, m0, 4096
        s_add_u32 {sVOFS}, {sVOFS}, {16*3072}
        """)
        v_group()
    A(f"""
    v_lshlrev_b32 v19, 1, v19
    v_add_u32 v19, {TBL}, v19
    v_and_b32 v2, 15, v1
    v_lshrrev_b32 v3, 4, v1
    v_xor_b32 v4, v2, v3
    v_lshlrev_b32 v4, 4, v4
    v_lshl_add_u32 v4, v2, 8, v4
    v_add_u32 v{vAR}, {ABASE}, v4
    v_xor_b32 v{vAR+1}, 64, v{vAR}
    v_xor_b32 v{vAR+2}, 128, v{vAR}
    v_xor_b32 v{vAR+3}, 192, v{vAR}
    v_bfe_u32 v2, v1, 2, 2
    v_and_b32 v4, 1, v3
    v_lshl_or_b32 v4, v4, 2, v2
    s_lshl_b32 s5, {sW}, 1
    v_xor_b32 v4, s5, v4
    v_lshlrev_b32 v4, 5, v4
    v_lshl_add_u32 v2, v3, 3, v2
    v_lshl_add_u32 v4, v2, 8, v4
    v_and_b32 v2, 3, v1
    v_lshl_add_u32 v{vBR}, v2, 3, v4
    v_xor_b32 v{vBR+1}, 32, v{vBR}
    s_mov_b32 {sCST}, 0
    s_mov_b32 {sC}, 0
    s_lshl_b32 s4, {sNI}, 2
    s_add_u32 s4, s4, {sW}
    s_mul_i32 s5, s4, 40
    s_add_u32 s5, s5, s42
    s_lshl_b32 s5, s5, 10
    s_add_u32 s50, s5, {W2F}
    s_mul_i32 s5, s4, 171
    s_lshr_b32 s5, s5, 9
    s_mul_i32 s6, s5, 3
    s_sub_u32 s6, s4, s6
    s_mul_i32 s6, s6, 14
    s_add_u32 s6, s6, {sMI}
    s_lshl_b32 s6, s6, 2
    s_lshl_b32 s5, s5, 8
    s_add_u32 s5, s5, s6
    s_add_u32 s51, s5, {FLG}
    """)
    if MAP["ac"]:
        A(f"""
        s_mul_i32 s51, s4, 171
        s_lshr_b32 s51, s51, 9
        s_lshl_b32 s51, s51, 7
        s_add_u32 s51, s51, {FLG}
        """)
    elif MAP["lf"]:
        A(f"""
        s_mul_i32 s51, s4, 14
        s_add_u32 s51, s51, {sMI}
        s_lshl_b32 s51, s51, 7
        s_add_u32 s51, s51, {FLG}
        """)
    A(f"""
    s_mov_b32 s53, {11 if MAP["ac"] else 12}
    s_mov_b32 s54, {hex((127+149-QE) << 23)}
    s_mov_b32 s55, {hex((127+149-QE) << 23)}
    s_mov_b32 s46, 0xffff0000
    s_mov_b32 s47, {hex((127+QE) << 23)}
    s_mov_b32 s48, {hex(0x80000000 | ((127+QE-149) << 23))}
    v_bfe_u32 v3, v1, 4, 1
    v_lshrrev_b32 v4, 5, v1
    v_and_b32 v{vST}, 15, v1
    v_lshl_add_u32 v{vST}, v3, 5, v{vST}
    v_lshl_add_u32 v{vST}, v4, 4, v{vST}
    v_lshlrev_b32 v{vST}, 4, v{vST}
    """)
    FC = opt.get("fc", 4)
    if FC > 50: FC = -1
    if opt.get("fw"): EF = 0
    if EF and FC < 0:
        assert not (ST & 4) and not RL
        for i in range(4): A(f"v_mov_b32 v{204+i}, -1")
        A(f"""
        s_cmp_eq_u32 {sMI}, 13
        s_cselect_b32 s4, 0, 1024
        s_add_u32 s5, s50, s4
        s_add_u32 s4, s5, s4
        buffer_store_dwordx4 v[204:207], v5, s[24:27], s50 offen sc1
        buffer_store_dwordx4 v[204:207], v5, s[24:27], s5 offen sc1
        buffer_store_dwordx4 v[204:207], v5, s[24:27], s4 offen sc1
        """)
    for i in range(0, 24, 2):
        A(f"v_mov_b64 {vr(vACC+i,2)}, 0")
    for i in range(80 - 20 * opt.get("ml", 4), 80, 2):
        A(f"v_mov_b64 {vr(vF+80+i,2)}, 0")
    if RL:
        A(f"""
        s_cmp_ge_u32 s58, 2
        s_cbranch_scc1 W2M_VB
        s_waitcnt vmcnt(0)
        """)
        A.label("W2M_VB")
    elif ST & 4:
        A(f"""
        s_cmp_eq_u32 s58, 0
        s_cbranch_scc1 W2M_VB
        """)
        nsleep(A, opt.get("vd", 0))
        v0_loads()
        A.label("W2M_VB")
    for j in range(3):
        q = P + 4 * j
        u = P + 16 + 8 * j
        if RL and j == 1:
            A(f"""
            s_cmp_ge_u32 s58, 2
            s_cbranch_scc1 W2M_VC
            s_setprio 3
            """)
            v0_loads()
            A("s_setprio 0")
            A("s_branch W2M_VD")
            A.label("W2M_VC")
            A("s_waitcnt vmcnt(0)")
            A.label("W2M_VD")
        if RL:
            if j == 0: A("s_waitcnt vmcnt(12)")
        elif ST & 4:
            A(f"s_waitcnt vmcnt({(12, 2, 0)[j]})")
            if j == 1: cst(A, opt, 0, 52)
        else:
            A(f"s_waitcnt vmcnt({8 + 4 - 2*j + (3 if EF and FC < 0 else 0)})")
        if j == 0: cst(A, opt, 0, 53)
        scale8(A, u, q, q + 2)
        TS = 2048 if ST & 4 else 4096
        A(f"""
        ds_write_b128 v19, {vr(u,4)} offset:{TS*j}
        ds_write_b128 v19, {vr(u+4,4)} offset:{TS*j+12288}
        """)
        if j == (0 if ST & 4 else 2):
            A("s_waitcnt lgkmcnt(0)")
            cst(A, opt, 0, 50)
            A("s_barrier")
            cst(A, opt, 0, 51)
    if RL:
        A("s_waitcnt vmcnt(0) lgkmcnt(0)")
        cst(A, opt, 0, 52)
    elif ST & 4:
        A("s_waitcnt lgkmcnt(0)")
    else:
        A(f"s_waitcnt vmcnt({3 if EF and FC < 0 else 0})")
        cst(A, opt, 0, 52)

    def reads(s, buf):
        fa = vF + buf * 80 + 20 * s
        fb = fa + 12
        r = []
        for b in range(3):
            r.append(f"ds_read_b128 {vr(fa+4*b,4)}, v{vAR+s} offset:{4096*b + ASTAGE*buf}")
        for t in range(2):
            for u in range(2):
                r.append(f"ds_read_b64_tr_b16 {vr(fb+4*t+2*u,2)}, v{vT0+t} offset:{(32*s+4*u)*256}")
        return r

    def mfmas(s, buf):
        fa = vF + buf * 80 + 20 * s
        fb = fa + 12
        r = []
        for b in range(3):
            for t in range(2):
                acc = vACC + (b * 2 + t) * 4
                r.append(f"v_mfma_f32_16x16x32_bf16 {vr(acc,4)}, {vr(fa+4*b,4)}, {vr(fb+4*t,4)}, {vr(acc,4)}")
        return r

    if EF and FC >= 0:
        for i in range(4): A(f"v_mov_b32 v{204+i}, -1")
    A.label("W2M_LOOP")
    if EF and FC >= 0:
        A(f"""
        s_waitcnt vmcnt(0)
        s_cmp_lg_u32 {sC}, {opt.get("fc", 4)}
        s_cbranch_scc1 W2M_NF
        buffer_store_dwordx4 v[204:207], v5, s[24:27], s50 offen sc1
        s_cmp_eq_u32 {sMI}, 13
        s_cbranch_scc1 W2M_NF
        buffer_store_dwordx4 v[204:207], v5, s[24:27], s50 offen offset:1024 sc1
        buffer_store_dwordx4 v[204:207], v5, s[24:27], s50 offen offset:2048 sc1
        """)
        A.label("W2M_NF")
        assert opt.get("fc", 4) in (0, 2, 4, 6, 8)
    for buf in range(2):
        A(f"""
        v_add_u32 v{vT0}, {sCST}, v{vBR}
        v_add_u32 v{vT1}, {sCST}, v{vBR+1}
        s_add_u32 {sCST}, {sCST}, {VSTAGE}
        s_cmp_ge_u32 {sCST}, {RING}
        s_cselect_b32 {sCST}, 0, {sCST}
        """)
        cst(A, opt, sC, 16 + buf)
        A("s_barrier")
        cst(A, opt, sC, buf)
        rd = sum((reads(s, buf) for s in range(4)), [])
        ML = opt.get("ml", 4)
        mf = []
        for s in range(4):
            g = s - ML
            for k_, m in enumerate(mfmas(g % 4, buf ^ 1 if g < 0 else buf)):
                mf.append((m, -1 if g < 0 else 7 * g + (4 if k_ == 0 else 6)))
        FR = opt.get("fr", 4)
        RP = opt.get("rp", 1)
        seq = rd[:FR]
        ri = FR
        got = -1
        for mi_, (m, need) in enumerate(mf):
            while ri <= min(27, need + (opt.get("ra2", 0) if need >= 0 else 0)):
                seq.append(rd[ri]); ri += 1
            if need > got:
                seq.append(f"s_waitcnt lgkmcnt({min(15, min(ri, 28) - need - 1)})")
                got = need
            seq.append(m)
            if mi_ + 1 < opt.get("f0", 0): continue
            seq += rd[ri:ri + RP]
            ri += RP
        seq += rd[ri:]
        FM = Fst(A, opt, "m", buf == opt.get("fst", 0) & 1)
        FM()
        for xi_, x in enumerate(seq):
            A(x)
            if xi_ % 4 == 3 and FM.n < 14: FM()
        A("s_waitcnt lgkmcnt(0)")
        FM()
        FM.save(sC, opt.get("fst", 0) & ~1, "M")
        if (opt.get("stamp") or opt.get("probe") == 2) and buf == 0:
            A(f"""
            s_cmp_lg_u32 {sC}, 0
            s_cbranch_scc1 W2M_ST
            """)
            stamp(A, opt, 2, True)
            A.label("W2M_ST")
    if EF and FC < 0: A("s_waitcnt vmcnt(0)")
    A(f"""
    s_add_u32 {sC}, {sC}, 2
    s_cmp_lt_u32 {sC}, {opt.get('nch', 12)}
    s_cbranch_scc1 W2M_LOOP
    s_setprio 3
    """)
    if opt.get("nb"):
        A(f"""
        v_mov_b32 v2, 1
        v_mov_b32 v4, {LFLAG}
        s_mov_b64 exec, 1
        ds_add_u32 v4, v2 offset:8
        s_mov_b64 exec, -1
        """)
    else:
        A("s_barrier")
    for s_ in range(4 - ML, 4):
        for m in mfmas(s_, 1): A(m)
    if opt.get("nb"): A("ds_read_b32 v3, v4 offset:8")
    A("s_nop 7")
    stamp(A, opt, 3)
    for b in range(3):
        a = vACC + 8 * b
        o = vF + 4 * b
        for j in range(4):
            A(f"v_pk_mul_f32 {vr(a+2*j,2)}, {vr(a+2*j,2)}, s[54:55]")
        A(f"""
        v_cvt_pk_bf16_f32 v{o}, v{a}, v{a+1}
        v_cvt_pk_bf16_f32 v{o+1}, v{a+2}, v{a+3}
        v_cvt_pk_bf16_f32 v{o+2}, v{a+4}, v{a+5}
        v_cvt_pk_bf16_f32 v{o+3}, v{a+6}, v{a+7}
        s_nop 1
        v_permlane32_swap_b32 v{o}, v{o+2}
        v_permlane32_swap_b32 v{o+1}, v{o+3}
        buffer_store_dwordx4 {vr(o,4)}, v{vST}, s[24:27], s50 offen offset:{1024*b} sc1
        """)
        if b == 0:
            A(f"""
            s_cmp_eq_u32 {sMI}, 13
            s_cbranch_scc1 W2M_END
            """)
    A.label("W2M_END")
    if opt.get("xw") or opt.get("xb"):
        A(f"""
        v_mov_b32 v2, 1
        v_mov_b32 v4, {LFLAG}
        s_mov_b64 exec, 1
        ds_add_u32 v4, v2 offset:12
        s_mov_b64 exec, -1
        """)
    EF = MAP["ef"]
    cst_out(A, opt)
    if EF: stamp(A, opt, 4)
    if opt.get("nb"):
        A.label("W2M_RC")
        A("""
        s_waitcnt lgkmcnt(0)
        v_readfirstlane_b32 s4, v3
        s_cmp_eq_u32 s4, 4
        s_cbranch_scc1 P2_PUB
        ds_read_b32 v3, v4 offset:8
        s_branch W2M_RC
        """)
        return
    A("s_branch P2_LD" if EF else "s_branch P2_PUB")


PV = 81920
PA = PV
PP = PA + 4 * ASTAGE
PXF = FLG + 65536
PXB = SA


def gen_w2p(A, opt):
    NQ = 2
    RG = opt.get("rg", 2)
    sW, sLOC, sXCD = "s36", "s3", "s37"
    sMI, sNI, sH = "s40", "s41", "s58"
    sC = "s49"
    sVOFS = "s43"
    vVO = 6
    assert MAP["ac"] and opt.get("nb") == 2
    PB = opt.get("pb", 0)
    H2 = opt.get("h2", 0)
    assert PB or not H2
    if opt.get("cst"): A("s_memtime s[88:89]\nv_mov_b32 v230, 0")
    A(f"""
    s_mul_i32 s4, {sLOC}, 171
    s_lshr_b32 s4, s4, 9
    s_mul_i32 s5, s4, 3
    s_sub_u32 s57, {sLOC}, s5
    s_lshr_b32 s6, {sXCD}, 2
    s_mul_i32 s6, s6, 7
    s_add_u32 {sMI}, s6, s4
    s_and_b32 s6, {sXCD}, 1
    s_mul_i32 s6, s6, 3
    s_add_u32 s6, s6, s57
    s_bfe_u32 {sH}, {sXCD}, 0x10001
    s_lshl1_add_u32 {sNI}, s6, {sH}
    s_mul_i32 s42, {sMI}, 3
    s_sub_u32 s4, {sW}, 4
    s_cmp_lt_u32 s4, 3
    s_cbranch_scc1 W2_DEQ
    s_mov_b32 s14, {V_BYTES}
    v_lshrrev_b32 v2, 4, v1
    v_and_b32 v3, 15, v1
    v_lshlrev_b32 v4, 1, v2
    v_xor_b32 v3, v3, v4
    v_lshlrev_b32 v3, 4, v3
    v_mul_u32_u24 v4, 0xc00, v2
    v_add_u32 v{vVO}, v3, v4
    v_add_u32 v{vVO+1}, 11264, v{vVO}
    v_xor_b32 v3, 0x80, v{vVO}
    v_add_u32 v{vVO+2}, {2*11264}, v3
    v_add_u32 v{vVO+3}, {3*11264}, v3
    s_lshl_b32 {sVOFS}, {sNI}, 8
    s_mul_i32 s4, {sH}, {768*3072}
    s_add_u32 {sVOFS}, {sVOFS}, s4
    s_cmp_lt_u32 {sW}, 4
    s_cbranch_scc1 W2_MFMA
    """)

    def commit(sidx, add):
        for r, a in ((80, add), (82, add + 24 if add < 54 else 55)):
            A(f"""
            s_add_u32 s86, {sidx}, {a}
            v_cmp_eq_u32 vcc, s86, v1
            v_mov_b32 v231, s{r}
            v_cndmask_b32 v230, v230, v231, vcc
            """)

    MW = [0]

    def bar(sidx, add):
        if opt.get("cst") == 3:
            if MW[0] and add > 0: A(f"v_writelane_b32 v230, s80, {add - 1}")
            A("s_barrier")
            if MW[0]: A("s_memtime s[80:81]")
            if MW[0] and add == 24: A("s_waitcnt lgkmcnt(0)\nv_writelane_b32 v230, s80, 54")
            return
        if opt.get("cst") == 2:
            commit(sidx, add - 1)
            A("""
            s_memtime s[82:83]
            s_barrier
            s_memtime s[80:81]
            """)
            if (sidx, add) == (0, 24):
                A("s_waitcnt lgkmcnt(0)")
                commit(0, 54)
            return
        cst(A, opt, sidx, 24 + add if (sidx, add) != (0, 24) else 55)
        A("s_barrier")
        cst(A, opt, sidx, add if (sidx, add) != (0, 24) else 54)

    GPC = opt.get("gpc", 8)
    for g in range(1, 4):
        for j in range(4):
            A(f"v_add_u32 v{vVO+4*g+j}, {g*16*3072}, v{vVO+j}")
    gate_addr(A, "v40", 7)
    A(f"""
    s_mov_b32 m0, 32768
    s_mov_b32 {sC}, 2
    s_add_u32 {sVOFS}, {sVOFS}, {128*3072}
    s_lshl_b32 s48, {sH}, 9
    s_sub_u32 s48, {(256 + 64*3072 - 768*3072) % (1 << 32)}, s48
    s_waitcnt lgkmcnt(0)
    """)
    stamp(A, opt, 1)
    cst(A, opt, 0, 49)
    A.label("W2L_LOOP")
    A(f"""
    s_cmp_lg_u32 {sC}, {GPC}
    s_cbranch_scc1 W2L_NG
    buffer_load_dword v42, v40, {DBG}, 0 offen sc1
    """)
    A.label("W2L_NG")
    for g in range(4):
        if g == 3: A("s_waitcnt vmcnt(58)")
        for j in range(4):
            A(f"buffer_load_dwordx4 v{vVO+4*g+j}, s[12:15], {sVOFS} offen offset:{1024*j} lds")
        A("s_add_u32 m0, m0, 4096")
        if g < 2: A("s_nop 0")
    PE = opt.get("pe", 3)
    A(f"""
    s_cmp_ge_u32 m0, {PV}
    s_cselect_b32 m0, 0, m0
    s_cmp_eq_u32 {sC}, 11
    s_cselect_b32 s4, s48, {64*3072}
    s_add_u32 {sVOFS}, {sVOFS}, s4
    s_cmp_gt_u32 {sC}, {PE}
    s_cbranch_scc1 W2L_SY
    s_cmp_lt_u32 {sC}, {PE}
    s_cbranch_scc1 W2L_NB
    """)
    cst(A, opt, 0, 50)
    A("s_barrier")
    cst(A, opt, 0, 51)
    A(f"""
    s_setprio {opt.get('lpr', 3)}
    s_barrier
    """)
    if PE == 4: bar(0, 0)
    A.label("W2L_SY")
    A(f"""
    s_waitcnt vmcnt(48)
    s_cmp_lg_u32 {sC}, {GPC + 2}
    s_cbranch_scc1 W2L_G_X
    """)
    poll_check(A, "v42", 0, "W2L_GS")
    A.label("W2L_G_X")
    bar(sC, -3)
    A.label("W2L_NB")
    A(f"""
    s_add_u32 {sC}, {sC}, 1
    s_cmp_lt_u32 {sC}, {15 if H2 else 24}
    s_cbranch_scc1 W2L_LOOP
    """)
    if H2:
        assert GPC + 2 < 15
        A("s_mov_b32 s47, 0")
        A.label("W2L2")
        for g in range(2):
            for j in range(4):
                A(f"buffer_load_dwordx4 v{vVO+4*g+j}, s[12:15], {sVOFS} offen offset:{1024*j} lds")
            A(f"s_add_u32 m0, m0, {12288 if g else 4096}")
            if g == 0: A("s_nop 0")
        A(f"""
        s_cmp_ge_u32 m0, {PV}
        s_cselect_b32 m0, s47, m0
        s_add_u32 {sVOFS}, {sVOFS}, {64*3072}
        s_cmp_eq_u32 {sC}, 15
        s_waitcnt vmcnt(40)
        s_cbranch_scc1 W2L2_S
        s_cmp_eq_u32 {sC}, 16
        s_waitcnt vmcnt(32)
        s_cbranch_scc1 W2L2_S
        s_waitcnt vmcnt(24)
        """)
        A.label("W2L2_S")
        bar(sC, -3)
        A(f"""
        s_add_u32 {sC}, {sC}, 1
        s_cmp_lt_u32 {sC}, 24
        s_cbranch_scc1 W2L2
        """)
    A(f"""
    s_setprio 0
    s_waitcnt vmcnt({16 if H2 else 32})
    """)
    bar(0, 21)
    p2_tile(A)
    A(f"""
    v_mov_b32 v4, {LFLAG}
    v_mov_b32 v3, 1
    s_waitcnt vmcnt({8 if H2 else 16})
    """)
    bar(0, 22)
    if MAP["xf"]:
        A("s_waitcnt vmcnt(0)")
        bar(0, 23)
        A("s_buffer_load_dword s62, s[24:27], s44 glc")
    else:
        A(f"""
        s_buffer_load_dword s61, s[24:27], s44 glc
        s_waitcnt vmcnt(0)
        """)
        bar(0, 23)
        A(f"""
        s_waitcnt lgkmcnt(0)
        s_cmp_lt_u32 s61, 20
        s_cbranch_scc1 W2L_NX
        ds_write_b32 v4, v3
        s_waitcnt lgkmcnt(0)
        """)
        A.label("W2L_NX")
    bar(0, 24)
    cst_out(A, opt)
    A("s_branch P2_MM")
    A.label("W2L_GS")
    A(f"s_mov_b32 s7, {POLL_MAX}")
    A.label("W2L_G")
    A(f"""
    s_sub_u32 s7, s7, 1
    s_cbranch_scc1 W2L_G_X
    buffer_load_dword v42, v40, {DBG}, 0 offen sc1
    s_waitcnt vmcnt(0)
    """)
    poll_check(A, "v42", 0, "W2L_G")
    A("s_branch W2L_G_X")
    A.label("W2_DEQ")
    sB = "s38"
    sQOFS = "s43"
    vQO = 6
    vAW = 14
    vTB = 22
    U_ = 24
    Ft = 40
    O = 48
    vQ = 52
    QS = 32
    A(f"""
    s_mov_b32 {sB}, s4
    s_add_u32 s4, s42, {sB}
    s_cmp_ge_u32 s4, 40
    s_cbranch_scc1 W2D_IDLE
    s_mul_i32 {sQOFS}, s4, {16*6144}
    s_mul_i32 s6, {sH}, 3072
    s_add_u32 {sQOFS}, {sQOFS}, s6
    s_lshr_b32 s6, s4, 1
    s_lshr_b32 s5, s42, 1
    s_sub_u32 s6, s6, s5
    s_mul_i32 s6, s6, 3072
    s_add_u32 s6, s6, {PA}
    s_mov_b32 s10, {QW_BYTES}
    v_lshrrev_b32 v2, 5, v1
    v_and_b32 v3, 31, v1
    v_lshlrev_b32 v4, 4, v3
    v_mul_u32_u24 v{vQO}, 0x1800, v2
    v_add_u32 v{vQO}, v{vQO}, v4
    v_add_u32 v{vTB}, s6, v4
    """)
    QR = opt.get("qr", 3)
    A(f"s_mul_i32 s57, s57, {QR}")
    for i in range(7, -1, -1):
        A(f"""
        s_add_u32 s4, s57, {i}
        s_and_b32 s4, s4, 7
        s_mul_i32 s4, s4, 12288
        v_add_u32 v{vQO+i}, s4, v{vQO}
        """)
    A("s_waitcnt lgkmcnt(0)")
    stamp(A, opt, 1)
    cst(A, opt, 0, 49)

    def t_read(n):
        u = U_ + 8 * (n & 1)
        A(f"""
        ds_read_b128 {vr(u,4)}, v{vTB}
        ds_read_b128 {vr(u+4,4)}, v{vTB} offset:6144
        v_add_u32 v{vTB}, 512, v{vTB}
        """)

    for u in range(NQ):
        for i in range(8):
            A(f"buffer_load_dwordx4 {vr(vQ+QS*u+4*i,4)}, v{vQO+i}, s[8:11], {sQOFS} offen offset:{512*u}")
    A(f"""
    s_add_u32 {sQOFS}, {sQOFS}, 512
    s_lshl_b32 s4, {sB}, 12
    s_add_u32 s4, s4, {PA + 4 * ASTAGE}
    v_bfe_u32 v3, v1, 1, 4
    v_xor_b32 v4, v3, v2
    v_lshlrev_b32 v4, 4, v4
    v_lshl_add_u32 v4, v2, 8, v4
    v_and_b32 v3, 1, v1
    v_lshl_add_u32 v4, v3, 3, v4
    v_add_u32 v{vAW}, s4, v4
    """)
    for i in range(7, -1, -1):
        A(f"""
        s_add_u32 s4, s57, {i}
        s_and_b32 s4, s4, 7
        s_lshl_b32 s5, s4, 5
        s_lshl_b32 s4, s4, 9
        v_xor_b32 v3, s5, v{vAW}
        v_add_u32 v{vAW+i}, s4, v3
        """)
    A(f"""
    s_mov_b32 {sC}, 0
    s_xor_b32 s4, {sNI}, 1
    s_mul_i32 s5, {sMI}, 12
    s_add_u32 s4, s4, s5
    s_lshl_b32 s45, s4, 7
    s_add_u32 s45, s45, {PXF}
    s_mul_i32 s46, s4, 24576
    s_mul_i32 s47, {sB}, {6144 if H2 else 4096 if PB else 8192}
    s_add_u32 s46, s46, s47
    s_add_u32 s46, s46, {PXB}
    s_add_u32 s47, s47, {PP + (ASTAGE if PB else 0)}
    s_mov_b32 s48, {(-2 * ASTAGE) % (1 << 32)}
    s_mov_b32 s61, 0
    """)
    cst(A, opt, 0, 50)
    A("s_barrier")
    cst(A, opt, 0, 51)
    A(f"s_setprio {opt.get('dpr', 3)}")
    t_read(0)
    A("s_waitcnt lgkmcnt(0)")
    MB = opt.get("mb", 4)
    A.label("W2D_LOOP")
    for n in range(2):
        q = vQ + QS * n
        S = U_ + 8 * n
        t_read(n + 1)
        A(f"""
        s_add_u32 {sQOFS}, {sQOFS}, 512
        s_cmp_lt_u32 {sC}, {2 * (6 - NQ - n + 1)}
        s_waitcnt vmcnt({8*(NQ-1)})
        s_cbranch_scc1 W2D_NT{n}
        s_waitcnt vmcnt({8 * (1 - n)})
        """)
        A.label(f"W2D_NT{n}")
        A(f"s_cmp_lt_u32 {sC}, {2 * (6 - NQ - n)}")
        for i in range(8):
            qq = q + 4 * i
            f = Ft + 4 * (i & 1)
            o = O + 2 * (i & 1)
            A(f"""
            v_fma_f32 v{f}, v{qq}, v{S}, v{S+4}
            v_fma_f32 v{f+1}, v{qq+1}, v{S+1}, v{S+5}
            v_fma_f32 v{f+2}, v{qq+2}, v{S+2}, v{S+6}
            v_fma_f32 v{f+3}, v{qq+3}, v{S+3}, v{S+7}
            v_cvt_pk_bf16_f32 v{o}, v{f}, v{f+1}
            v_cvt_pk_bf16_f32 v{o+1}, v{f+2}, v{f+3}
            ds_write_b64 v{vAW+i}, {vr(o,2)} offset:{ASTAGE*(1-n)}
            """)
            if n == 1 and i > 0: A(f"v_add_u32 v{vAW+i-1}, s48, v{vAW+i-1}")
            if (i + 1) % RG == 0:
                A(f"s_cbranch_scc0 W2D_SK{n}_{i}")
                for ii in range(i + 1 - RG, i + 1):
                    A(f"buffer_load_dwordx4 {vr(q+4*ii,4)}, v{vQO+ii}, s[8:11], {sQOFS} offen")
                A.label(f"W2D_SK{n}_{i}")
            if i + 1 == MB:
                bar(sC, 2 * n - 1)
                if opt.get("cst"): A(f"s_cmp_lt_u32 {sC}, {2 * (6 - NQ - n)}")
        if n == 1: A(f"v_add_u32 v{vAW+7}, s48, v{vAW+7}")
        A("s_waitcnt lgkmcnt(0)")
        bar(sC, 2 * n)
    A(f"""
    s_add_u32 {sC}, {sC}, 4
    s_cmp_lt_u32 {sC}, 12
    s_cbranch_scc1 W2D_LOOP
    """)
    if H2:
        A(f"""
        s_cmp_eq_u32 {sB}, 2
        s_cbranch_scc1 W2D_H
        """)
    A("""
    s_setprio 0
    s_mov_b32 m0, s47
    """)
    P0 = 15 if PB else 17
    for h in range(11, P0):
        if h >= P0 - 2: A("s_buffer_load_dword s61, s[24:27], s45 glc")
        bar(0, h)
    A(f"s_mov_b32 {sC}, {P0}")
    A.label("W2D_PL")
    A(f"""
    s_cmp_ge_u32 s61, 4
    s_cbranch_scc1 W2D_GOT
    s_buffer_load_dword s61, s[24:27], s45 glc
    """)
    bar(sC, 0)
    A(f"""
    s_add_u32 {sC}, {sC}, 1
    s_cmp_lt_u32 {sC}, 24
    s_cbranch_scc1 W2D_PL
    """)
    spoll(A, "W2D_P", "s45", 4, 0, first=False)
    A.label("W2D_GOT")
    cst(A, opt, 0, 52)
    for i in range(6 if H2 else 4 if PB else 8):
        if i == 4: A("s_add_u32 m0, m0, 4096\ns_add_u32 s46, s46, 4096")
        A(f"buffer_load_dwordx4 v5, s[24:27], s46 offen offset:{1024*(i&3)} sc1 lds")
    if MAP["xf"]: p2_tile(A)
    A("s_branch W2D_R1")
    A.label("W2D_R0")
    bar(sC, 0)
    A(f"s_add_u32 {sC}, {sC}, 1")
    A.label("W2D_R1")
    A(f"""
    s_cmp_lt_u32 {sC}, 24
    s_cbranch_scc1 W2D_R0
    """)
    if MAP["xf"]:
        A("""
        s_buffer_load_dword s62, s[24:27], s44 glc
        s_waitcnt vmcnt(0)
        """)
    else:
        A("s_waitcnt vmcnt(0) lgkmcnt(0)")
    bar(0, 24)
    cst_out(A, opt)
    A("s_branch P2_MM")
    A.label("W2D_IDLE")
    A(f"""
    s_mov_b32 {sC}, 0
    s_waitcnt lgkmcnt(0)
    """)
    if H2:
        A(f"""
        s_cmp_eq_u32 {sB}, 2
        s_cselect_b32 {sC}, 14, 0
        """)
    A.label("W2D_IDL")
    A(f"""
    s_barrier
    s_add_u32 {sC}, {sC}, 1
    s_cmp_lt_u32 {sC}, 27
    s_cbranch_scc1 W2D_IDL
    """)
    if H2:
        A(f"""
        s_cmp_lg_u32 {sB}, 2
        s_cbranch_scc1 P2_MM
        s_setprio {opt.get('lpr', 3)}
        """)
        A.label("W2D_H")
        A(f"""
        s_mov_b32 s14, {V_BYTES}
        v_lshrrev_b32 v2, 4, v1
        v_and_b32 v3, 15, v1
        v_lshlrev_b32 v4, 1, v2
        v_xor_b32 v3, v3, v4
        v_lshlrev_b32 v3, 4, v3
        v_mul_u32_u24 v4, 0xc00, v2
        v_add_u32 v{vVO}, v3, v4
        v_add_u32 v{vVO+1}, 11264, v{vVO}
        v_xor_b32 v3, 0x80, v{vVO}
        v_add_u32 v{vVO+2}, {2*11264}, v3
        v_add_u32 v{vVO+3}, {3*11264}, v3
        v_add_u32 v{vVO+4}, {16*3072}, v{vVO}
        v_add_u32 v{vVO+5}, {16*3072}, v{vVO+1}
        v_add_u32 v{vVO+6}, {16*3072}, v{vVO+2}
        v_add_u32 v{vVO+7}, {16*3072}, v{vVO+3}
        s_xor_b32 {sVOFS}, {sNI}, 1
        s_lshl_b32 {sVOFS}, {sVOFS}, 8
        s_mul_i32 s4, {sH}, {768*3072}
        s_add_u32 {sVOFS}, {sVOFS}, s4
        s_add_u32 {sVOFS}, {sVOFS}, {(3*64 + 32)*3072}
        s_movk_i32 s47, 8192
        s_mov_b32 m0, {(15 * 16384) % PV + 8192}
        s_mov_b32 {sC}, 15
        """)
        bar(0, 11)
        A("s_branch W2L2")
    else:
        A("s_branch P2_MM")
    A.label("W2_MFMA")
    MW[0] = 1
    vAR = 10
    vBR = 18
    vST, vTA = 22, 23
    vACC = 24
    vF = 72
    vP = 152
    P = vF
    A(f"""
    s_lshl_b32 s4, {sW}, 13
    s_mov_b32 m0, s4
    s_mul_i32 s4, {sW}, {32*3072}
    s_add_u32 {sVOFS}, {sVOFS}, s4
    s_lshr_b32 s6, s42, 1
    s_lshl1_add_u32 s6, s6, {sH}
    s_mul_i32 s6, s6, 1536
    s_mov_b32 s18, {SC_BYTES}
    s_mov_b32 s19, 0x00020000
    s_mov_b32 s22, {SC_BYTES}
    s_mov_b32 s23, 0x00020000
    s_min_u32 s5, {sW}, 2
    s_lshl_b32 s5, s5, 9
    v_lshl_add_u32 v{vTA}, v1, 3, s5
    s_waitcnt lgkmcnt(0)
    """)
    stamp(A, opt, 1)
    cst(A, opt, 0, 49)
    for j in range(2):
        A(f"""
        buffer_load_dwordx2 {vr(P+4*j,2)}, v{vTA}, s[16:19], s6 offen offset:{3072*j}
        buffer_load_dwordx2 {vr(P+4*j+2,2)}, v{vTA}, s[20:23], s6 offen offset:{3072*j}
        """)
    for g in range(2):
        for j in range(4):
            A(f"buffer_load_dwordx4 v{vVO+j}, s[12:15], {sVOFS} offen offset:{1024*j} lds")
        if g == 0:
            A(f"""
            s_add_u32 m0, m0, 4096
            s_add_u32 {sVOFS}, {sVOFS}, {16*3072}
            """)
    A(f"""
    v_lshlrev_b32 v{vTA}, 1, v{vTA}
    v_add_u32 v{vTA}, {PA}, v{vTA}
    v_and_b32 v2, 15, v1
    v_lshrrev_b32 v3, 4, v1
    v_xor_b32 v4, v2, v3
    v_lshlrev_b32 v4, 4, v4
    v_lshl_add_u32 v4, v2, 8, v4
    v_add_u32 v{vAR}, {PA}, v4
    v_xor_b32 v{vAR+1}, 64, v{vAR}
    v_xor_b32 v{vAR+2}, 128, v{vAR}
    v_xor_b32 v{vAR+3}, 192, v{vAR}
    v_add_u32 v{vAR+4}, {3*ASTAGE}, v{vAR}
    v_add_u32 v{vAR+5}, {3*ASTAGE}, v{vAR+1}
    v_add_u32 v{vAR+6}, {3*ASTAGE}, v{vAR+2}
    v_add_u32 v{vAR+7}, {3*ASTAGE}, v{vAR+3}
    v_bfe_u32 v2, v1, 2, 2
    v_and_b32 v4, 1, v3
    v_lshl_or_b32 v4, v4, 2, v2
    s_lshl_b32 s5, {sW}, 1
    v_xor_b32 v4, s5, v4
    v_lshlrev_b32 v4, 5, v4
    v_lshl_add_u32 v2, v3, 3, v2
    v_lshl_add_u32 v4, v2, 8, v4
    v_and_b32 v2, 3, v1
    v_lshl_add_u32 v{vBR}, v2, 3, v4
    v_xor_b32 v{vBR+1}, 32, v{vBR}
    v_add_u32 v{vBR+2}, 40960, v{vBR}
    v_add_u32 v{vBR+3}, 40960, v{vBR+1}
    s_mul_i32 s4, {sMI}, 12
    s_add_u32 s4, s4, {sNI}
    s_lshl_b32 s45, s4, 7
    s_add_u32 s45, s45, {PXF}
    s_mul_i32 s44, s4, 24576
    s_lshl_b32 s5, {sW}, {10 if PB else 11}
    s_add_u32 s44, s44, s5
    s_add_u32 s44, s44, {PXB}
    s_add_u32 s5, s5, {PP + (ASTAGE if PB else 0)}
    v_add_u32 v6, s5, v5
    s_xor_b32 {sNI}, {sNI}, 1
    s_lshl_b32 s4, {sNI}, 2
    s_add_u32 s4, s4, {sW}
    s_mul_i32 s5, s4, 40
    s_add_u32 s5, s5, s42
    s_lshl_b32 s5, s5, 10
    s_add_u32 s50, s5, {W2F}
    s_mul_i32 s51, s4, 171
    s_lshr_b32 s51, s51, 9
    s_lshl_b32 s51, s51, 7
    s_add_u32 s51, s51, {FLG}
    s_mov_b32 s53, 11
    s_mov_b32 s54, {hex((127+149-QE) << 23)}
    s_mov_b32 s55, {hex((127+149-QE) << 23)}
    s_mov_b32 s46, 0xffff0000
    s_mov_b32 s47, {hex((127+QE) << 23)}
    s_mov_b32 s48, {hex(0x80000000 | ((127+QE-149) << 23))}
    v_bfe_u32 v3, v1, 4, 1
    v_lshrrev_b32 v4, 5, v1
    v_and_b32 v{vST}, 15, v1
    v_lshl_add_u32 v{vST}, v3, 5, v{vST}
    v_lshl_add_u32 v{vST}, v4, 4, v{vST}
    v_lshlrev_b32 v{vST}, 4, v{vST}
    v_mov_b32 v7, 1
    v_mov_b32 v8, 0
    """)
    for j in range(2):
        q = P + 4 * j
        u = P + 16 + 8 * j
        A(f"s_waitcnt vmcnt({8 + 2 - 2*j})")
        if j == 0: cst(A, opt, 0, 53)
        scale8(A, u, q, q + 2)
        A(f"""
        ds_write_b128 v{vTA}, {vr(u,4)} offset:{3072*j}
        ds_write_b128 v{vTA}, {vr(u+4,4)} offset:{3072*j+6144}
        """)
    A("s_waitcnt lgkmcnt(0)")
    cst(A, opt, 0, 50)
    A("s_barrier")
    cst(A, opt, 0, 51)
    A("""
    s_barrier
    s_waitcnt vmcnt(0)
    """)
    cst(A, opt, 0, 52)

    def reads(g):
        fa = vF + 20 * (g & 3)
        fb = fa + 12
        st = 5 - (g // 4) % 6
        sl = g % 10
        r = []
        for b in range(3):
            r.append(f"ds_read_b128 {vr(fa+4*b,4)}, v{vAR + (g & 3) + 4 * (st // 3)} offset:{4096*b + ASTAGE*(st % 3)}")
        for t in range(2):
            for u in range(2):
                r.append(f"ds_read_b64_tr_b16 {vr(fb+4*t+2*u,2)}, v{vBR + t + 2 * (sl // 5)} offset:{8192*(sl % 5) + 1024*u}")
        return r

    def mfmas(g):
        fa = vF + 20 * (g & 3)
        fb = fa + 12
        r = []
        for b in range(3):
            for t in range(2):
                acc = vr(vACC + 24 * (g // 24) + (b * 2 + t) * 4, 4)
                r.append(f"v_mfma_f32_16x16x32_bf16 {acc}, {vr(fa+4*b,4)}, {vr(fb+4*t,4)}, {'0' if g % 24 == 0 else acc}")
        return r
    L = opt.get("pl", 2)
    HF = opt.get("hf", 17)
    FR = opt.get("fr", 2)
    send = []
    for b in range(3):
        for t in range(2):
            send.append([f"buffer_store_dwordx4 {vr(vACC + (b*2+t)*4, 4)}, v5, s[24:27], s44 offen offset:{1024*t} sc1"] + (["s_add_u32 s44, s44, 8192"] if t else []))
    if PB:
        send = []
        for b in range(3):
            a = vACC + 8 * b
            send.append([f"v_cvt_pk_bf16_f32 v{a+j}, v{a+2*j}, v{a+2*j+1}" for j in range(4)] +
                        [f"buffer_store_dwordx4 {vr(a, 4)}, v5, s[24:27], s44 offen sc1", "s_add_u32 s44, s44, 4096"])
        A(f"""
        s_mov_b32 s56, {hex((127+149-QE) << 7)}
        s_mov_b32 s57, {hex((127+149-QE) << 23)}
        """)
    PS = opt.get("ps", 6)
    for h in range(24):
        bar(0, h)
        rd = reads(2 * h) + reads(2 * h + 1)
        mf = []
        for g in range(2 * h - L, 2 * h + 2 - L):
            if g < 0: continue
            for k_, m in enumerate(mfmas(g)):
                mf.append((m, -1 if g < 2 * h else 7 * (g - 2 * h) + (4 if k_ == 0 else 6), g))
        seq = rd[:FR]
        ri = FR
        got = -1
        ns = 0
        for m, need, g in mf:
            while ri <= need:
                seq.append(rd[ri]); ri += 1
            if need > got:
                while ri < 14:
                    seq.append(rd[ri]); ri += 1
                seq.append(f"s_waitcnt lgkmcnt({14 - need - 1})")
                got = need
            seq.append(m)
            seq += rd[ri:ri + (2 if L == 1 else 1)]
            ri += 2 if L == 1 else 1
            if g >= 24 and send and ns < PS and (m != mf[0][0] or g > 24):
                seq += send.pop(0); ns += 1
        seq += rd[ri:]
        for x in seq: A(x)
        if h == 12 and L == 2 and opt.get("es", 1):
            A("s_nop 3")
            while send and ns < PS:
                for x in send.pop(0): A(x)
                ns += 1
                if len(send) <= 2 and send: A("s_nop 3")
        if h == HF:
            A(f"""
            s_waitcnt vmcnt(0)
            s_mov_b64 exec, 1
            buffer_atomic_add v7, v8, s[24:27], s45 offen sc1
            s_mov_b64 exec, -1
            """)
        if h < 23: A("s_waitcnt lgkmcnt(0)")
        if (opt.get("stamp") or opt.get("probe") == 2) and h == 0: stamp(A, opt, 2, True)
    assert not send
    A("s_setprio 3")
    for g in range(48 - L, 48):
        for k_, m in enumerate(mfmas(g)):
            if k_ < 2: A(f"s_waitcnt lgkmcnt({14 - (7 * (g - 46) + (4 if k_ == 0 else 6)) - 1})")
            A(m)
    a0 = vACC + 24
    bar(0, 24)
    for i in range(3 if PB else 6):
        A(f"ds_read_b128 {vr(vP+4*i,4)}, v6 offset:{4096*i if PB else 8192*(i//2) + 1024*(i&1)}")
    A("s_nop 4")
    for j in range(12):
        A(f"v_pk_mul_f32 {vr(a0+2*j,2)}, {vr(a0+2*j,2)}, s[54:55]")
    stamp(A, opt, 3, True)
    for b in range(3):
        a = a0 + 8 * b
        o = vF + 4 * b
        A(f"s_waitcnt lgkmcnt({2 - b if PB else 4 - 2*b})")
        for j in range(4):
            if PB:
                A(f"v_dot2c_f32_bf16 v{a+2*j}, s56, v{vP+4*b+j}")
                A(f"v_dot2c_f32_bf16 v{a+2*j+1}, s57, v{vP+4*b+j}")
            else:
                A(f"v_pk_fma_f32 {vr(a+2*j,2)}, {vr(vP+8*b+2*j,2)}, s[54:55], {vr(a+2*j,2)}")
        if PB: A("s_nop 2")
        A(f"""
        v_cvt_pk_bf16_f32 v{o}, v{a}, v{a+1}
        v_cvt_pk_bf16_f32 v{o+1}, v{a+2}, v{a+3}
        v_cvt_pk_bf16_f32 v{o+2}, v{a+4}, v{a+5}
        v_cvt_pk_bf16_f32 v{o+3}, v{a+6}, v{a+7}
        s_nop 1
        v_permlane32_swap_b32 v{o}, v{o+2}
        v_permlane32_swap_b32 v{o+1}, v{o+3}
        buffer_store_dwordx4 {vr(o,4)}, v{vST}, s[24:27], s50 offen offset:{1024*b} sc1
        """)
        if b == 0:
            A(f"""
            s_cmp_eq_u32 {sMI}, 13
            s_cbranch_scc1 W2M_END
            """)
    A.label("W2M_END")
    if opt.get("xb"):
        A(f"""
        v_mov_b32 v4, {LFLAG}
        s_mov_b64 exec, 1
        ds_add_u32 v4, v7 offset:12
        s_mov_b64 exec, -1
        """)
    cst_out(A, opt)
    A("s_branch P2_PUB")


def scale8(A, u, s, z):
    A(f"""
    v_lshlrev_b32 v{u}, 16, v{s}
    v_and_b32 v{u+1}, s46, v{s}
    v_lshlrev_b32 v{u+2}, 16, v{s+1}
    v_and_b32 v{u+3}, s46, v{s+1}
    v_lshlrev_b32 v{u+4}, 16, v{z}
    v_and_b32 v{u+5}, s46, v{z}
    v_lshlrev_b32 v{u+6}, 16, v{z+1}
    v_and_b32 v{u+7}, s46, v{z+1}
    """)
    for i in range(4): A(f"v_mul_f32 v{u+4+i}, s48, v{u+4+i}")
    for i in range(4): A(f"v_mul_f32 v{u+4+i}, v{u+i}, v{u+4+i}")
    for i in range(4): A(f"v_mul_f32 v{u+i}, s47, v{u+i}")


def wt_setup(A, opt, tag):
    TC = opt.get("wtc", 2)
    if opt.get("wm", 0):
        assert all((u * 171) >> 10 == u // 6 for u in range(384))
        A(f"""
        s_sub_u32 s4, s3, 21
        s_lshr_b32 s5, s37, 2
        s_and_b32 s6, s37, 3
        s_cmp_ge_u32 s4, 6
        s_cbranch_scc1 WT_Q{tag}
        s_lshl_b32 s4, s4, 6
        v_add_u32 v3, s4, v1
        v_mul_u32_u24 v7, 171, v3
        v_lshrrev_b32 v7, 10, v7
        v_mul_u32_u24 v7, {3072 - 768}, v7
        v_lshl_add_u32 v7, v3, 7, v7
        s_mul_i32 s46, s5, {64*3072}
        s_mul_i32 s6, s6, 768
        s_add_u32 s46, s46, s6
        s_add_u32 s46, s46, {TC*393216}
        s_mov_b32 s47, 393216
        s_mov_b32 s8, s12
        s_mov_b32 s9, s13
        s_mov_b32 s10, {V_BYTES}
        s_branch WT_G{tag}
        """)
        A.label(f"WT_Q{tag}")
        A(f"""
        v_lshrrev_b32 v7, 2, v1
        v_mul_u32_u24 v7, 0x1800, v7
        v_and_b32 v3, 3, v1
        v_lshl_add_u32 v7, v3, 7, v7
        s_mul_i32 s5, s37, 5
        s_add_u32 s4, s4, s5
        s_sub_u32 s4, s4, 6
        s_mul_i32 s46, s4, {16*6144}
        s_add_u32 s46, s46, {TC*512}
        s_movk_i32 s47, 512
        s_mov_b32 s10, {QW_BYTES}
        """)
        A.label(f"WT_G{tag}")
        return
    A(f"""
    s_sub_u32 s4, s2, 168
    s_cmp_ge_u32 s4, 48
    s_cbranch_scc1 WT_Q{tag}
    v_lshlrev_b32 v7, 7, v1
    s_lshl_b32 s46, s4, 13
    s_add_u32 s46, s46, {TC*393216}
    s_mov_b32 s47, 393216
    s_mov_b32 s8, s12
    s_mov_b32 s9, s13
    s_mov_b32 s10, {V_BYTES}
    s_branch WT_G{tag}
    """)
    A.label(f"WT_Q{tag}")
    A(f"""
    v_lshrrev_b32 v7, 2, v1
    v_mul_u32_u24 v7, 0x1800, v7
    v_and_b32 v3, 3, v1
    v_lshl_add_u32 v7, v3, 7, v7
    s_sub_u32 s4, s4, 48
    s_mul_i32 s46, s4, {16*6144}
    s_add_u32 s46, s46, {TC*512}
    s_movk_i32 s47, 512
    s_mov_b32 s10, {QW_BYTES}
    """)
    A.label(f"WT_G{tag}")


def wt(A, opt, i, tag):
    SH = opt.get("sh", 0)
    late = SH and i + opt.get("wtc", 2) >= SH
    if late:
        A(f"""
        s_cmpk_eq_u32 s47, 512
        s_cbranch_scc1 WT_S{tag}{i}
        """)
    A(f"""
    buffer_load_dword v{16+i}, v7, s[8:11], s46 offen
    s_add_u32 s46, s46, s47
    """)
    if late: A.label(f"WT_S{tag}{i}")


def tb_addr(A, tag, ju, nu):
    A(f"""
    s_lshr_b32 s5, s37, 2
    s_and_b32 s6, s37, 3
    s_cmp_ge_u32 s4, 6
    s_cbranch_scc1 TB_Q{tag}
    s_lshl_b32 s4, s4, 6
    """)
    for e in range(nu):
        A(f"""
        v_add_u32 v3, s4, v1
        v_add_u32 v3, {64*e}, v3
        v_mul_u32_u24 v{40+e}, 171, v3
        v_lshrrev_b32 v{40+e}, 10, v{40+e}
        v_mul_u32_u24 v{40+e}, {3072 - 768}, v{40+e}
        v_lshl_add_u32 v{40+e}, v3, 7, v{40+e}
        """)
    A(f"""
    s_mul_i32 s46, s5, {64*3072}
    s_mul_i32 s6, s6, 768
    s_add_u32 s46, s46, s6
    s_mov_b32 s47, 393216
    s_mov_b32 s8, s12
    s_mov_b32 s9, s13
    s_mov_b32 s10, {V_BYTES}
    s_branch TB_G{tag}
    """)
    A.label(f"TB_Q{tag}")
    A(f"""
    v_lshrrev_b32 v40, 2, v1
    v_mul_u32_u24 v40, 0x1800, v40
    v_and_b32 v3, 3, v1
    v_lshl_add_u32 v40, v3, 7, v40
    """)
    for e in range(1, nu):
        A(f"v_add_u32 v{40+e}, {e*16*6144}, v40")
    A(f"""
    s_mul_i32 s5, s37, 5
    s_add_u32 s4, s4, s5
    s_sub_u32 s4, s4, 6
    s_mul_i32 s46, s4, {16*6144}
    s_movk_i32 s47, 512
    s_mov_b32 s10, {QW_BYTES}
    """)
    A.label(f"TB_G{tag}")


def tb_burst(A, nu, nc, k0):
    for c in range(nc):
        for e in range(nu):
            A(f"buffer_load_dword v{k0 + c*nu + e}, v{40+e}, s[8:11], s46 offen")
        A("s_add_u32 s46, s46, s47")


def tp_tables(opt):
    b2, b3, b4 = opt.get("b2", 5), opt.get("b3", 9), opt.get("b4", 10)
    i1, i2, i3 = opt.get("i1", 3), opt.get("i2", 6), opt.get("i3", 3)
    ts = opt.get("ts", 1)
    xr = [[(0, 3 + j % 5, 1 + j // 5)] for j in range(10)]
    idl = [[] for _ in range(8)]
    for e in range(3):
        idl[1 + e].append((0, e, 1))
        idl[4 + e].append((i1, e, 2))
    if ts == 1:
        for e in range(3):
            xr[e].append((b3, e, 4)); xr[5 + e].append((b2, e, 3)); xr[(3, 4, 8)[e]].append((b4, e, 5))
    elif ts == 2:
        for e in range(3):
            idl[1 + e].append((i2, e, 3))
            xr[e].append((b3, e, 4)); xr[5 + e].append((b4, e, 5))
    elif ts == 3:
        for e in range(3):
            idl[1 + e].append((i2, e, 3)); idl[4 + e].append((i3, e, 4))
            xr[e].append((b4, e, 5))
    elif ts == 4:
        for e in range(3):
            idl[1 + e].append((i2, e, 3)); idl[4 + e].append((i3, e, 4))
            idl[1 + e].append((opt.get("i4", 3), e, 5))
    elif ts == 5:
        for e in range(3):
            xr[5 + e].append((b2, e, 3))
            idl[1 + e].append((i2, e, 4)); idl[4 + e].append((i3, e, 5))

    def pack(l):
        w = 0
        for i, (n, p_, cp) in enumerate(l):
            assert n < 16
            w |= (n | (p_ | cp << 3) << 4) << (10 * i)
        return w
    return [pack(l) | ((1 << 31) if j >= 5 else 0) for j, l in enumerate(xr)], [pack(l) for l in idl]


def tp_select(A, sidx, tab):
    A(f"s_mov_b32 s48, {hex(tab[0])}")
    for i in range(1, len(tab)):
        A(f"""
        s_cmp_eq_u32 {sidx}, {i}
        s_cselect_b32 s48, {hex(tab[i])}, s48
        """)


def tp_run(A, opt):
    A.label("TP")
    A(f"""
    s_mov_b32 s14, {V_BYTES}
    s_mov_b32 s10, {QW_BYTES}
    s_bfe_u32 s58, s37, 0x10001
    s_lshr_b32 s5, s37, 2
    s_and_b32 s6, s37, 1
    s_mul_i32 s46, s5, {64*3072}
    s_mul_i32 s4, s58, {768*3072 + 256}
    s_add_u32 s46, s46, s4
    s_mul_i32 s4, s6, 1536
    s_add_u32 s46, s46, s4
    s_lshl1_add_u32 s47, s5, s6
    s_mul_i32 s47, s47, {10*16*6144}
    s_mul_i32 s4, s58, 3072
    s_add_u32 s47, s47, s4
    s_sub_u32 s47, s47, {6*16*6144}
    s_mov_b32 s59, s49
    v_lshrrev_b32 v40, 2, v1
    v_mul_u32_u24 v40, 0x1800, v40
    v_and_b32 v3, 3, v1
    v_lshl_add_u32 v40, v3, 7, v40
    v_add_u32 v41, {16*6144}, v40
    v_and_b32 v3, 1, v1
    v_lshlrev_b32 v3, 7, v3
    v_lshrrev_b32 v4, 1, v1
    v_lshl_add_u32 v44, v4, 9, v3
    v_add_u32 v45, 0x4000, v44
    s_bitcmp0_b32 s48, 31
    s_cbranch_scc1 TP_L
    s_bitset0_b32 s48, 31
    """)
    nsleep(A, opt.get("ts1", 40))
    A.label("TP_L")
    A(f"""
    s_and_b32 s4, s48, 15
    s_sub_u32 s49, s49, s4
    s_branch TP_W1
    """)
    A.label("TP_W0")
    A(f"""
    s_cmp_eq_u32 s59, 0
    s_cbranch_scc1 TP_S
    s_barrier
    s_branch TP_W1
    """)
    A.label("TP_S")
    A(f"s_sleep {opt.get('isu', 16)}")
    A.label("TP_W1")
    A(f"""
    s_sub_u32 s4, s4, 1
    s_cbranch_scc0 TP_W0
    s_bfe_u32 s5, s48, 0x30004
    s_bfe_u32 s6, s48, 0x30007
    s_lshr_b32 s48, s48, 10
    s_cmp_eq_u32 s6, 0
    s_cbranch_scc1 TP_X
    s_cmp_ge_u32 s5, 3
    s_cbranch_scc1 TP_Q
    s_lshl_b32 s4, s5, 7
    v_add_u32 v3, s4, v1
    v_add_u32 v4, 64, v3
    v_mul_u32_u24 v3, 171, v3
    v_mul_u32_u24 v4, 171, v4
    v_lshrrev_b32 v3, 10, v3
    v_lshrrev_b32 v4, 10, v4
    v_mul_u32_u24 v3, 1536, v3
    v_mul_u32_u24 v4, 1536, v4
    v_add_u32 v42, v44, v3
    v_add_u32 v43, v45, v4
    s_lshl_b32 s4, s5, 15
    s_add_u32 s4, s4, s46
    s_cmp_ge_u32 s6, 3
    s_cselect_b32 s5, 256, 0
    s_cselect_b32 s7, 3, 0
    s_xor_b32 s4, s4, s5
    s_sub_u32 s6, s6, s7
    s_mul_i32 s6, s6, {2*393216}
    s_add_u32 s4, s4, s6
    s_add_u32 s5, s4, 393216
    buffer_load_dword v16, v42, s[12:15], s4 offen
    buffer_load_dword v17, v43, s[12:15], s4 offen
    buffer_load_dword v18, v42, s[12:15], s5 offen
    buffer_load_dword v19, v43, s[12:15], s5 offen
    s_branch TP_L
    """)
    A.label("TP_Q")
    A(f"""
    s_mul_i32 s4, s5, {2*16*6144}
    s_add_u32 s4, s4, s47
    s_lshl_b32 s6, s6, 10
    s_add_u32 s4, s4, s6
    buffer_load_dword v16, v40, s[8:11], s4 offen
    buffer_load_dword v17, v41, s[8:11], s4 offen
    buffer_load_dword v18, v40, s[8:11], s4 offen offset:512
    buffer_load_dword v19, v41, s[8:11], s4 offen offset:512
    s_branch TP_L
    """)
    A.label("TP_X")
    A(f"""
    s_cmp_eq_u32 s59, 0
    s_cbranch_scc1 IDLE_G_X
    s_branch TP_E1
    """)
    A.label("TP_E0")
    A("s_barrier")
    A.label("TP_E1")
    A(f"""
    s_sub_u32 s49, s49, 1
    s_cbranch_scc0 TP_E0
    """)


def nsleep(A, n):
    while n > 0:
        A(f"s_sleep {min(n, 127)}"); n -= 127


def gen_prod(A, opt):
    SH = opt["sh"]
    NU = 40 * (12 - SH)
    assert all((u * 205) >> 13 == u // 40 for u in range(320))
    A.label("PROD")
    A(f"""
    s_cmp_lt_u32 s59, {NU}
    s_cselect_b32 s61, 1, 0
    s_cselect_b32 s59, s59, s58
    s_mov_b32 s10, {QW_BYTES}
    s_mov_b32 s18, {SC_BYTES}
    s_mov_b32 s19, 0x00020000
    s_mov_b32 s22, {SC_BYTES}
    s_mov_b32 s23, 0x00020000
    v_lshrrev_b32 v6, 5, v1
    v_and_b32 v7, 31, v1
    v_mul_u32_u24 v6, 0x1800, v6
    v_lshl_add_u32 v6, v7, 4, v6
    v_lshlrev_b32 v7, 3, v7
    """)

    def issue(k):
        u = f"s{58+k}"
        st, fl = f"s{50+2*k}", f"s{51+2*k}"
        A(f"""
        s_mul_i32 s4, {u}, 205
        s_lshr_b32 s4, s4, 13
        s_mul_i32 s5, s4, 40
        s_sub_u32 s5, {u}, s5
        s_add_u32 s4, s4, {SH}
        s_lshr_b32 s6, s5, 1
        s_mul_i32 s6, s6, 3072
        s_lshl_b32 s7, s4, 8
        s_add_u32 s6, s6, s7
        s_mul_i32 s42, s5, {16*6144}
        s_lshl_b32 s7, s4, 9
        s_add_u32 s42, s42, s7
        buffer_load_dwordx2 {vr(8+4*k,2)}, v7, s[16:19], s6 offen
        buffer_load_dwordx2 {vr(10+4*k,2)}, v7, s[20:23], s6 offen
        """)
        for i in range(8):
            A(f"buffer_load_dwordx4 {vr(16+32*k+4*i,4)}, v6, s[8:11], s42 offen")
            if i < 7: A("s_add_u32 s42, s42, 12288")
        A(f"""
        s_mul_i32 {st}, s5, 12
        s_add_u32 {st}, {st}, s4
        s_lshl_b32 {st}, {st}, 12
        s_add_u32 {st}, {st}, {SA}
        s_mul_i32 s6, s5, 171
        s_lshr_b32 s6, s6, 9
        s_mul_i32 s7, s6, 3
        s_sub_u32 s7, s5, s7
        s_mul_i32 {fl}, s6, 3072
        s_lshl_b32 s7, s7, 6
        s_add_u32 {fl}, {fl}, s7
        s_lshl_b32 s7, s4, 2
        s_add_u32 {fl}, {fl}, s7
        s_add_u32 {fl}, {fl}, {SFLG}
        """)

    def bars(n, tag):
        if not n: return
        A(f"""
        s_cmp_eq_u32 s60, 0
        s_cbranch_scc1 PROD_B{tag}
        """)
        for _ in range(n): A("s_barrier")
        A.label(f"PROD_B{tag}")

    def compute(k, younger):
        A(f"s_waitcnt vmcnt({younger + 8})")
        scale8(A, 80, 8 + 4 * k, 10 + 4 * k)
        for i in range(8):
            q = 16 + 32 * k + 4 * i
            o = 96 + 16 * k + 2 * i
            A(f"s_waitcnt vmcnt({younger + 7 - i + i // 2})")
            for j in range(4):
                A(f"v_fma_f32 v{88+j}, v{q+j}, v{80+j}, v{84+j}")
            A(f"""
            v_cvt_pk_bf16_f32 v{o}, v88, v89
            v_cvt_pk_bf16_f32 v{o+1}, v90, v91
            """)
            if i & 1:
                A(f"buffer_store_dwordx4 {vr(o-2,4)}, v5, s[24:27], s{50+2*k} offen offset:{1024*(i//2)} sc1")

    issue(0)
    A("""
    s_cmp_lg_u32 s60, 0
    s_cbranch_scc1 PROD_1
    s_waitcnt vmcnt(10)
    """)
    gate_set(A, opt)
    A.label("PROD_1")
    issue(1)
    A(f"""
    s_mov_b32 s46, 0xffff0000
    s_mov_b32 s47, {hex((127+QE) << 23)}
    s_mov_b32 s48, {hex(0x80000000 | ((127+QE-149) << 23))}
    v_lshlrev_b32 v3, 8, v1
    v_mov_b32 v4, 1
    """)
    PB0, PB1 = opt.get("pb0", 0), opt.get("pb1", 2)
    bars(PB0, "0")
    compute(0, 10)
    A("""
    s_cmp_eq_u32 s61, 0
    s_cbranch_scc1 PROD_2
    """)
    compute(1, 4)
    A.label("PROD_2")
    stamp(A, opt, 4)
    bars(PB1, "1")
    poll(A, "PROD_G", DBG, "0", "v2", "v8", 0)
    A(f"""
    s_mov_b64 exec, 0xfff
    buffer_store_dword v4, v3, s[24:27], s51 offen sc1
    buffer_store_dword v4, v3, s[24:27], s53 offen sc1
    s_mov_b64 exec, -1
    """)
    stamp(A, opt, 2)
    A("""
    s_cmp_eq_u32 s60, 0
    s_cbranch_scc1 IDLE_T
    """)
    for _ in range(10 - PB0 - PB1): A("s_barrier")
    A("s_branch P2_MMX")


def gate_set(A, opt):
    A(f"""
    s_barrier
    s_cmp_lg_u32 s36, 0
    s_cbranch_scc1 IDLE_G1
    s_lshl_b32 s4, s37, 2
    v_mov_b32 v3, 0
    v_mov_b32 v4, 1
    s_mov_b64 exec, 1
    buffer_store_dword v4, v3, {DBG}, s4 offen sc1
    s_mov_b64 exec, -1
    """)
    A.label("IDLE_G1")


def gen_xr(A, opt):
    sW, sLOC, sXCD = "s36", "s3", "s37"
    sMT, sNT = "s40", "s41"
    sC = "s48"
    SH = opt.get("sh", 0)
    XU = opt.get("xu", 0)
    XNB = 10 + (4 - XU) * 10 // opt.get("xus", 5) if XU else 10
    A(f"""
    s_sub_u32 s4, {sLOC}, 21
    s_cmp_ge_u32 s4, 5
    s_cselect_b32 s5, 1, 0
    s_cselect_b32 s6, 5, 0
    s_sub_u32 {sNT}, s4, s6
    s_lshl_b32 s7, {sXCD}, 1
    s_add_u32 {sMT}, s7, s5
    s_cmp_ge_u32 {sLOC}, 31
    s_cbranch_scc1 IDLE_WG
    s_cmp_lt_u32 {sW}, 4
    s_cbranch_scc1 XR_MFMA
    s_cmp_lt_u32 {sW}, 6
    s_cbranch_scc1 XR_LD
    """)
    if opt.get("tpr"): A(f"s_setprio {opt['tpr']}")
    gate_addr(A, "v2")
    if SH:
        A(f"""
        s_sub_u32 s58, s2, 168
        s_add_u32 s59, s58, 80
        s_mov_b32 s60, 1
        s_cmp_eq_u32 {sW}, 6
        s_waitcnt lgkmcnt(0)
        s_cbranch_scc1 PROD
        """)
    A(f"""
    v_lshlrev_b32 v6, 7, v1
    s_mul_i32 s4, {sMT}, 5
    s_add_u32 s4, s4, {sNT}
    s_lshl_b32 s5, s4, 15
    s_lshl_b32 s6, s4, 14
    s_mov_b32 s30, {X_BYTES}
    s_mov_b32 s31, 0x00020000
    s_mov_b32 s34, {U_BYTES}
    s_mov_b32 s35, 0x00020000
    s_waitcnt lgkmcnt(0)
    """)
    if opt.get("tx", 1) == 2:
        A(f"""
        s_cmp_lg_u32 {sW}, 6
        s_cbranch_scc1 XR_TX
        """)
        nsleep(A, opt.get("txd", 0))
        for i in range(4):
            A(f"buffer_load_dword v{8+i}, v6, s[28:31], s5 offen")
            if i < 3: A("s_add_u32 s5, s5, 8192")
        for i in range(2):
            A(f"buffer_load_dword v{12+i}, v6, s[32:35], s6 offen")
            if i < 1: A("s_add_u32 s6, s6, 8192")
        A.label("XR_TX")
    elif opt.get("tx", 1):
        if not SH:
            A(f"""
            s_cmp_lg_u32 {sW}, 6
            s_cbranch_scc1 XR_TU
            """)
        for i in range(4):
            A(f"buffer_load_dword v{8+i}, v6, s[28:31], s5 offen")
            if i < 3: A("s_add_u32 s5, s5, 8192")
        if not SH:
            A("s_branch XR_TX")
            A.label("XR_TU")
        for i in range(2):
            A(f"buffer_load_dword v{12+i}, v6, s[32:35], s6 offen")
            if i < 1: A("s_add_u32 s6, s6, 8192")
        A.label("XR_TX")
    WT = opt.get("wt", 2)
    NT_ = opt.get("nch", 12) - opt.get("wtc", 2)
    if not SH:
        A(f"""
        s_cmp_lg_u32 {sW}, 7
        s_cbranch_scc1 XR_W6
        """)
    TB = opt.get("tb", 0)
    TP = opt.get("ts", 0)
    if TP:
        A("s_sub_u32 s4, s3, 21")
        tp_select(A, "s4", tp_tables(opt)[0])
        A(f"s_mov_b32 s49, {XNB}")
        tp_run(A, opt)
    elif TB:
        A(f"""
        s_sub_u32 s4, s3, 21
        s_and_b32 s48, s4, 1
        s_and_b32 s4, s4, 14
        """)
        tb_addr(A, "x", 0, 2)
        A(f"""
        s_lshl_b32 s4, s48, 1
        s_add_u32 s4, s4, {opt.get("wtc", 2)}
        s_mul_i32 s4, s4, s47
        s_add_u32 s46, s46, s4
        s_cmp_eq_u32 s48, 0
        s_cbranch_scc1 TB_X0
        """)
        nsleep(A, opt.get("ts1", 40))
        A.label("TB_X0")
        nsleep(A, opt.get("ts0", 0))
        tb_burst(A, 2, 2, 16)
        A(f"""
        s_add_u32 s46, s46, s47
        s_add_u32 s46, s46, s47
        s_cmp_eq_u32 s48, 0
        s_cselect_b32 s48, {opt.get("tb2", 1)}, {opt.get("tb3", 3)}
        s_sub_u32 s49, {XNB}, s48
        """)
        A.label("TB_X1")
        A(f"""
        s_barrier
        s_sub_u32 s48, s48, 1
        s_cmp_lg_u32 s48, 0
        s_cbranch_scc1 TB_X1
        """)
        if opt.get("nch", 12) <= 8:
            A("""
            s_bitcmp0_b32 s3, 0
            s_cbranch_scc1 TB_X2
            """)
        tb_burst(A, 2, 2, 20)
        A.label("TB_X2")
        A(f"""
        s_barrier
        s_sub_u32 s49, s49, 1
        s_cmp_lg_u32 s49, 0
        s_cbranch_scc1 TB_X2
        """)
    else:
        wt_setup(A, opt, "x")
        k = 0
        for b in range(XNB):
            for _ in range(WT if b == 0 else opt.get("wtn", 2)):
                if k < NT_:
                    wt(A, opt, k, "x"); k += 1
            A("s_barrier")
    A("s_branch P2_MMX")
    if not SH:
        A.label("XR_W6")
        if opt.get("xg"):
            XGC = opt.get("xgc", 10 if MAP["xf"] else XNB)
            assert XGC <= 10 or not MAP["xf"]
            for i in range(opt["xg"]): A("s_barrier")
            A(f"buffer_load_dword v3, v2, {DBG}, 0 offen sc1")
            for i in range(XGC - opt["xg"]): A("s_barrier")
            A(f"s_mov_b32 s7, {POLL_MAX}\ns_waitcnt vmcnt(0)\ns_branch XR_G_C")
            poll(A, "XR_G", DBG, "0", "v2", "v3", 0)
            for i in range(XNB - XGC): A("s_barrier")
        else:
            for i in range(5): A("s_barrier")
            poll(A, "XR_G", DBG, "0", "v2", "v3", 0)
            for i in range(XNB - 5): A("s_barrier")
        A("s_branch P2_MMX")
    A.label("IDLE_WG")
    gate_addr(A, "v2")
    if TP:
        assert PXF + 168 * 128 <= FLG + 8 * 12288
        tp_select(A, sW, tp_tables(opt)[1])
        A(f"""
        s_mov_b32 s49, 0
        s_cmp_lg_u32 {sW}, 0
        s_waitcnt lgkmcnt(0)
        s_cbranch_scc1 TP
        s_setprio 3
        v_mov_b32 v6, 0
        v_mov_b32 v7, 0
        v_mov_b32 v8, 0
        v_mov_b32 v9, 0
        s_mul_i32 s4, {sXCD}, 12288
        s_add_u32 s4, s4, {FLG}
        """)
        for i in range(12):
            A(f"buffer_store_dwordx4 v[6:9], v5, s[24:27], s4 offen offset:{1024*(i&3)} sc1")
            if i & 3 == 3 and i < 11: A("s_add_u32 s4, s4, 4096")
        A(f"""
        s_lshl_b32 s4, s37, 2
        v_mov_b32 v4, 1
        s_waitcnt vmcnt(0)
        s_mov_b64 exec, 1
        buffer_store_dword v4, v6, {DBG}, s4 offen sc1
        s_mov_b64 exec, -1
        s_setprio 0
        """)
        stamp(A, opt, 4)
        poll(A, "IDLE_G", DBG, "0", "v2", "v3", 0, sleep=8)
        A(f"""
        s_barrier
        s_mov_b32 s60, 0
        s_cmp_lt_u32 {sW}, 4
        s_cbranch_scc1 P2_LD
        s_branch P2_MMI
        """)
        if XU: gen_xu(A, opt)
        else: gen_xr_rest(A, opt)
        return
    A(f"""
    v_mov_b32 v6, 0
    v_mov_b32 v7, 0
    v_mov_b32 v8, 0
    v_mov_b32 v9, 0
    s_lshl_b32 s58, {sXCD}, 3
    s_add_u32 s58, s58, {sW}
    s_mul_i32 s4, s58, 3072
    s_add_u32 s4, s4, {FLG}
    s_waitcnt lgkmcnt(0)
    """)
    for i in range(3):
        A(f"buffer_store_dwordx4 v[6:9], v5, s[24:27], s4 offen offset:{1024*i} sc1")
    if SH:
        A(f"""
        s_add_u32 s59, s58, 224
        s_add_u32 s58, s58, 160
        s_min_u32 s58, s58, {40 * (12 - SH) - 1}
        s_mov_b32 s60, 0
        """)
        gen_prod(A, opt)
    else:
        A("s_waitcnt vmcnt(0)")
        gate_set(A, opt)
    A.label("IDLE_T")
    if opt.get("fw"):
        A(f"""
        s_cmp_ge_u32 {sW}, 6
        s_cbranch_scc1 IDLE_F2
        s_mul_i32 s4, {sXCD}, 6
        s_add_u32 s4, s4, {sW}
        s_mul_i32 s4, s4, 40960
        s_add_u32 s4, s4, {W2F}
        s_mov_b32 s5, 10
        v_mov_b32 v6, -1
        v_mov_b32 v7, -1
        v_mov_b32 v8, -1
        v_mov_b32 v9, -1
        """)
        nsleep(A, opt.get("fd", 0))
        A.label("IDLE_F1")
        for i in range(4):
            A(f"buffer_store_dwordx4 v[6:9], v5, s[24:27], s4 offen offset:{1024*i} sc1")
        nsleep(A, opt.get("fp", 0))
        A(f"""
        s_add_u32 s4, s4, 4096
        s_sub_u32 s5, s5, 1
        s_cmp_lg_u32 s5, 0
        s_cbranch_scc1 IDLE_F1
        """)
        stamp(A, opt, 3)
        A.label("IDLE_F2")
    if TB:
        A(f"""
        s_sub_u32 s4, {sW}, 2
        s_cmp_ge_u32 s4, 5
        s_cbranch_scc1 IDLE_T7
        s_lshl_b32 s4, s4, 1
        """)
        tb_addr(A, "i", 0, 2)
        A(f"""
        s_mul_i32 s4, s47, {8 + opt.get("wtc", 2)}
        s_add_u32 s46, s46, s4
        """)
        nsleep(A, opt.get("ts4", 100))
        if opt.get("nch", 12) > 10: tb_burst(A, 2, 4 - opt.get("wtc", 2), 16)
        A("s_branch IDLE_NT")
        A.label("IDLE_T7")
    A(f"""
    s_cmp_lg_u32 {sW}, 7
    s_cbranch_scc1 IDLE_NT
    """)
    wt_setup(A, opt, "i")
    for k in range(SH - opt.get("wtc", 2) if SH else NT_):
        wt(A, opt, k, "i")
        if k >= WT - 1 and k < NT_ - 1 and not SH: A(f"s_sleep {opt.get('isl', 12)}")
    A.label("IDLE_NT")
    if not SH:
        A(f"""
        s_cmp_lg_u32 {sW}, 0
        s_cbranch_scc1 IDLE_G_X
        """)
        poll(A, "IDLE_G", DBG, "0", "v2", "v3", 0, sleep=8)
    if opt.get("fw"): A("s_waitcnt vmcnt(0)")
    A("s_barrier")
    if opt.get("fw"):
        A(f"""
        s_cmp_lg_u32 {sW}, 1
        s_cbranch_scc1 IDLE_H
        s_lshl_b32 s4, {sXCD}, 2
        v_mov_b32 v3, 32
        v_mov_b32 v4, 1
        s_mov_b64 exec, 1
        buffer_store_dword v4, v3, {DBG}, s4 offen sc1
        s_mov_b64 exec, -1
        """)
        stamp(A, opt, 4)
        A.label("IDLE_H")
    A(f"""
    s_mov_b32 s60, 0
    s_cmp_lt_u32 {sW}, 4
    s_cbranch_scc1 P2_LD
    s_branch P2_MMI
    """)
    if XU: gen_xu(A, opt)
    else: gen_xr_rest(A, opt)


def gen_xr_rest(A, opt):
    sW, sLOC, sXCD = "s36", "s3", "s37"
    sMT, sNT = "s40", "s41"
    sC = "s48"
    A.label("XR_LD")
    if opt.get("cst"): A("s_memtime s[88:89]")
    sOFS, sGRP, sCH = "s43", "s45", "s46"
    vO = 6
    A(f"""
    v_lshrrev_b32 v3, 4, v1
    s_cmp_eq_u32 {sW}, 4
    s_cbranch_scc0 XRL_U
    v_lshrrev_b32 v2, 3, v1
    v_and_b32 v4, 7, v1
    v_xor_b32 v4, v4, v3
    v_lshlrev_b32 v4, 4, v4
    v_mul_u32_u24 v{vO}, 0x500, v2
    v_add_u32 v{vO}, v{vO}, v4
    v_xor_b32 v4, 64, v{vO}
    v_add_u32 v{vO+1}, 9216, v4
    v_add_u32 v{vO+2}, {2*9216}, v{vO}
    v_add_u32 v{vO+3}, {3*9216}, v4
    s_mul_i32 {sOFS}, {sMT}, {128*1280}
    s_mov_b32 {sGRP}, {32*1280}
    s_mov_b32 {sCH}, {128 - 128*1280 + (1<<32)}
    s_movk_i32 s47, 128
    s_mov_b32 m0, 0
    s_mov_b32 s30, {X_BYTES}
    s_waitcnt lgkmcnt(0)
    s_branch XRL_GO
    """)
    A.label("XRL_U")
    A(f"""
    v_and_b32 v4, 15, v1
    v_lshlrev_b32 v2, 2, v3
    v_xor_b32 v4, v4, v2
    v_lshlrev_b32 v4, 4, v4
    v_mul_u32_u24 v{vO}, 0x500, v3
    v_add_u32 v{vO}, v{vO}, v4
    v_add_u32 v{vO+1}, {4*1280-1024}, v{vO}
    v_add_u32 v{vO+2}, {2*(4*1280-1024)}, v{vO}
    v_add_u32 v{vO+3}, {3*(4*1280-1024)}, v{vO}
    s_lshl_b32 {sOFS}, {sNT}, 8
    s_mov_b32 {sGRP}, {16*1280}
    s_mov_b32 {sCH}, 0
    s_mov_b32 s47, {64*1280}
    s_movk_i32 m0, 16384
    s_mov_b32 s30, {U_BYTES}
    s_waitcnt lgkmcnt(0)
    s_mov_b32 s28, s32
    s_mov_b32 s29, s33
    """)
    A.label("XRL_GO")
    A(f"""
    s_mov_b32 s31, 0x00020000
    s_mov_b32 {sC}, 0
    """)
    XRO = opt.get("xra", 0) or opt.get("xrb", 0)
    if XRO:
        A(f"""
        s_mul_i32 s49, {sNT}, {opt.get("xra", 0)}
        s_and_b32 s4, {sMT}, 1
        s_mul_i32 s4, s4, {opt.get("xrb", 0)}
        s_add_u32 s49, s49, s4
        s_mul_i32 s4, {sXCD}, {opt.get("xrc", 0)}
        s_add_u32 s49, s49, s4
        s_mul_i32 s4, s49, 205
        s_lshr_b32 s4, s4, 11
        s_mul_i32 s4, s4, 10
        s_sub_u32 s49, s49, s4
        s_mul_i32 s4, s49, s47
        s_add_u32 {sOFS}, {sOFS}, s4
        s_mul_i32 s47, s47, 10
        s_sub_u32 s49, 10, s49
        """)
    nsleep(A, opt.get("xd", 0))
    A.label("XRL_LOOP")
    for g in range(4):
        for j in range(4):
            A(f"buffer_load_dwordx4 v{vO+j}, s[28:31], {sOFS} offen offset:{1024*j} lds")
        A(f"""
        s_add_u32 m0, m0, 4096
        s_add_u32 {sOFS}, {sOFS}, {sGRP}
        """)
    A(f"""
    s_add_u32 {sOFS}, {sOFS}, {sCH}
    s_add_u32 m0, m0, 16384
    s_and_b32 m0, m0, {4*XSTAGE-1}
    s_add_u32 {sC}, {sC}, 1
    """)
    if XRO:
        A(f"""
        s_cmp_eq_u32 {sC}, s49
        s_cselect_b32 s4, s47, 0
        s_sub_u32 {sOFS}, {sOFS}, s4
        """)
    XT = opt.get("xt", 0)
    A(f"""
    s_and_b32 s4, {sC}, {15 if XT else 13}
    s_cmp_eq_u32 s4, 1
    s_cbranch_scc1 XRL_LOOP
    """)
    cst(A, opt, sC, 32)
    if XT:
        A("s_waitcnt vmcnt(16)")
    else:
        A(f"""
        s_cmp_eq_u32 {sC}, 2
        s_cbranch_scc0 XRL_W
        s_waitcnt vmcnt(16)
        """)
        A.label("XRL_W")
        A("s_waitcnt vmcnt(32)")
    cst(A, opt, sC, 16)
    A("s_barrier")
    cst(A, opt, sC, 0)
    A(f"""
    s_cmp_lt_u32 {sC}, 10
    s_cbranch_scc1 XRL_LOOP
    """)
    if not XT:
        A("s_waitcnt vmcnt(16)")
        cst(A, opt, 0, 27)
        A("s_barrier")
        cst(A, opt, 0, 11)
    A("s_waitcnt vmcnt(0)")
    cst(A, opt, 0, 28)
    A("s_barrier")
    cst(A, opt, 0, 12)
    cst_out(A, opt)
    A("s_branch P2_MMX")
    A.label("XR_MFMA")
    sCST = "s43"
    vXR = 6
    vUR = 10
    vT = 12
    vACC = 20
    vF = 84
    A(f"""
    s_lshr_b32 s4, {sW}, 1
    s_and_b32 s5, {sW}, 1
    s_lshl_b32 s6, s4, 13
    v_and_b32 v3, 31, v1
    v_bfe_u32 v4, v1, 1, 3
    v_lshrrev_b32 v{vT}, 5, v1
    v_xor_b32 v4, v4, v{vT}
    v_lshlrev_b32 v4, 4, v4
    v_lshl_add_u32 v4, v3, 7, v4
    v_add_u32 v{vXR}, s6, v4
    v_xor_b32 v{vXR+1}, 32, v{vXR}
    v_xor_b32 v{vXR+2}, 64, v{vXR}
    v_xor_b32 v{vXR+3}, 96, v{vXR}
    v_bfe_u32 v2, v1, 4, 1
    v_bfe_u32 v3, v1, 2, 2
    s_lshl_b32 s6, s5, 1
    v_xor_b32 v4, s6, v3
    v_lshlrev_b32 v4, 6, v4
    v_lshl_add_u32 v4, v3, 8, v4
    v_lshl_add_u32 v4, v{vT}, 11, v4
    v_lshl_add_u32 v4, v2, 5, v4
    v_and_b32 v3, 3, v1
    v_lshl_add_u32 v4, v3, 3, v4
    v_add_u32 v{vUR}, 16384, v4
    v_xor_b32 v{vUR+1}, 64, v{vUR}
    s_mov_b32 {sCST}, 0
    s_mov_b32 {sC}, 0
    s_lshl_b32 s6, {sMT}, 1
    s_add_u32 s6, s6, s4
    s_lshl_b32 s7, {sNT}, 1
    s_add_u32 s7, s7, s5
    s_mul_i32 s51, s4, 10
    s_add_u32 s51, s51, s7
    s_lshl_b32 s51, s51, {7 if MAP["lf"] else 2}
    s_mul_i32 s52, {sMT}, {20*128 if MAP["lf"] else 2048}
    s_add_u32 s51, s51, s52
    s_add_u32 s51, s51, {FLG + 672*128 if MAP["lf"] else XFLG}
    s_mov_b32 s53, 7
    s_mul_i32 s6, s6, 80
    s_lshl_b32 s7, s7, 2
    s_add_u32 s6, s6, s7
    s_lshl_b32 s50, s6, 10
    s_add_u32 s52, s50, 40960
    """)
    if MAP["ac"]:
        A(f"""
        s_lshl_b32 s51, {sMT}, 11
        s_add_u32 s51, s51, {FLG + 32768}
        """)
    for i in range(0, 64, 2):
        A(f"v_mov_b64 {vr(vACC+i,2)}, 0")
    for i in range(0, 64, 2):
        A(f"v_mov_b64 {vr(vF+64+i,2)}, 0")
    A("s_waitcnt lgkmcnt(0)")

    def reads(s, buf):
        f = vF + 64 * buf + 16 * s
        r = []
        for tn in range(2):
            r.append(f"ds_read_b128 {vr(f+8+4*tn,4)}, v{vT+s} offset:{4096*tn}")
            for u in range(2):
                r.append(f"ds_read_b64_tr_b16 {vr(f+4*tn+2*u,2)}, v{vT+4+tn} offset:{s*4096+u*1024}")
        return r

    def mfmas(s, buf):
        f = vF + 64 * buf + 16 * s
        r = []
        for tm in range(2):
            for tn in range(2):
                acc = vACC + 32 * tm + 16 * tn
                r.append(f"v_mfma_f32_32x32x16_bf16 {vr(acc,16)}, {vr(f+4*tn,4)}, {vr(f+8+4*tm,4)}, {vr(acc,16)}")
        return r

    A.label("XR_LOOP")
    for buf in range(2):
        for i in range(4):
            A(f"v_add_u32 v{vT+i}, {sCST}, v{vXR+i}")
        for i in range(2):
            A(f"v_add_u32 v{vT+4+i}, {sCST}, v{vUR+i}")
        A(f"""
        s_add_u32 {sCST}, {sCST}, {XSTAGE}
        s_and_b32 {sCST}, {sCST}, {4*XSTAGE-1}
        s_barrier
        """)
        rd = sum((reads(s_, buf) for s_ in range(4)), [])
        mf = sum((mfmas(s_, buf ^ 1) for s_ in range(4)), [])
        ri = 0
        for m in mf:
            A(m)
            for x in rd[ri:ri + 2]: A(x)
            ri += 2
        for x in rd[ri:]: A(x)
        A("s_waitcnt lgkmcnt(0)")
    A(f"""
    s_add_u32 {sC}, {sC}, 2
    s_cmp_lt_u32 {sC}, 10
    s_cbranch_scc1 XR_LOOP
    s_barrier
    """)
    for s_ in range(4):
        for m in mfmas(s_, 1): A(m)
    A("s_nop 15")
    stamp(A, opt, 3)
    for tm in range(2):
        for i in range(4):
            a = vACC + 32 * tm + 8 * i
            o = vF + 16 * tm + 4 * i
            for j in range(4):
                A(f"v_cvt_pk_bf16_f32 v{o+j}, v{a+2*j}, v{a+2*j+1}")
            A(f"buffer_store_dwordx4 {vr(o,4)}, v5, s[24:27], s{50+2*tm} offen offset:{1024*i} sc1")


def gen_xu(A, opt):
    sW, sLOC, sXCD = "s36", "s3", "s37"
    sMT, sNT = "s40", "s41"
    sC = "s48"
    NB = opt["xu"]
    UPS = opt.get("xus", 5)
    S2 = (4 - NB) * 10 // UPS
    NST = 10 + S2
    SS = 4096 * max(NB + 4, UPS)
    NS = opt.get("xns", LDS1 // SS)
    DP = opt.get("xdp", 2)
    assert NS * SS <= LDS1 and 2 <= DP <= NS - 2 and 10 % UPS == 0
    UO = 4096 * NB
    sOFS = "s43"
    vO = 6
    A.label("XR_LD")
    if opt.get("cst"): A("s_memtime s[88:89]")
    A(f"""
    v_lshrrev_b32 v3, 4, v1
    s_mov_b32 s31, 0x00020000
    s_mov_b32 {sC}, 0
    s_cmp_eq_u32 {sW}, 4
    s_cbranch_scc0 XRL_U
    v_lshrrev_b32 v2, 3, v1
    v_and_b32 v4, 7, v1
    v_xor_b32 v4, v4, v3
    v_lshlrev_b32 v4, 4, v4
    v_mul_u32_u24 v{vO}, 0x500, v2
    v_add_u32 v{vO}, v{vO}, v4
    v_xor_b32 v4, 64, v{vO}
    v_add_u32 v{vO+1}, 9216, v4
    v_add_u32 v{vO+2}, {2*9216}, v{vO}
    v_add_u32 v{vO+3}, {3*9216}, v4
    s_mul_i32 {sOFS}, {sMT}, {128*1280}
    s_mov_b32 m0, 0
    s_mov_b32 s30, {X_BYTES}
    s_waitcnt lgkmcnt(0)
    """)

    def grp():
        for j in range(4):
            A(f"buffer_load_dwordx4 v{vO+j}, s[28:31], {sOFS} offen offset:{1024*j} lds")

    def wrap(used, base):
        A(f"""
        s_add_u32 m0, m0, {SS - used + 4096}
        s_cmp_ge_u32 m0, {NS*SS}
        s_cselect_b32 m0, {base}, m0
        """)

    def sync(n, tag):
        cst(A, opt, sC, 32)
        A(f"s_waitcnt vmcnt({n})")
        cst(A, opt, sC, 16)
        A("s_barrier")
        cst(A, opt, sC, 0)
    cnt = lambda j: 4 * NB if j < 10 else 4 * UPS if j < NST else 0
    A.label("XRL_XL")
    for g in range(NB):
        grp()
        if g < NB - 1:
            A(f"""
            s_add_u32 m0, m0, 4096
            s_add_u32 {sOFS}, {sOFS}, {32*1280}
            """)
    A(f"s_add_u32 {sOFS}, {sOFS}, {(128 - (NB-1)*32*1280) % (1 << 32)}")
    wrap(4096 * NB, 0)
    A(f"""
    s_add_u32 {sC}, {sC}, 1
    s_cmp_lt_u32 {sC}, {DP}
    s_cbranch_scc1 XRL_XL
    """)
    sync(4 * NB * (DP - 1), "x")
    A(f"""
    s_cmp_lt_u32 {sC}, 10
    s_cbranch_scc1 XRL_XL
    s_add_u32 {sOFS}, {sOFS}, {NB*32*1280 - 1280}
    """)
    for j in range(10, NST + DP - 1):
        if j < NST:
            for u in range(UPS):
                grp()
                last = ((j - 10) * UPS + u) % 10 == 9
                A(f"s_add_u32 {sOFS}, {sOFS}, {32*1280 - 1280 + 128 if last else 128}")
                if u < UPS - 1: A("s_add_u32 m0, m0, 4096\ns_nop 0")
            wrap(4096 * UPS, 0)
        if opt.get("cst"): A(f"s_add_u32 {sC}, {sC}, 1")
        sync(sum(cnt(i) for i in range(j - DP + 2, j + 1)), "x2")
    cst_out(A, opt)
    A("s_branch P2_MMX")
    A.label("XRL_U")
    A(f"""
    v_and_b32 v4, 15, v1
    v_lshlrev_b32 v2, 2, v3
    v_xor_b32 v4, v4, v2
    v_lshlrev_b32 v4, 4, v4
    v_mul_u32_u24 v{vO}, 0x500, v3
    v_add_u32 v{vO}, v{vO}, v4
    v_add_u32 v{vO+1}, {4*1280-1024}, v{vO}
    v_add_u32 v{vO+2}, {2*(4*1280-1024)}, v{vO}
    v_add_u32 v{vO+3}, {3*(4*1280-1024)}, v{vO}
    s_lshl_b32 {sOFS}, {sNT}, 8
    s_mov_b32 m0, {UO}
    s_mov_b32 s30, {U_BYTES}
    s_waitcnt lgkmcnt(0)
    s_mov_b32 s28, s32
    s_mov_b32 s29, s33
    """)
    A.label("XRL_UL")
    for g in range(4):
        grp()
        A(f"s_add_u32 {sOFS}, {sOFS}, {16*1280}")
        if g < 3: A("s_add_u32 m0, m0, 4096\ns_nop 0")
    wrap(16384, UO)
    A(f"""
    s_add_u32 {sC}, {sC}, 1
    s_cmp_lt_u32 {sC}, {DP}
    s_cbranch_scc1 XRL_UL
    """)
    assert 16 * DP <= 63
    sync(16 * (DP - 1), "u")
    A(f"""
    s_cmp_lt_u32 {sC}, 10
    s_cbranch_scc1 XRL_UL
    """)
    for j in range(10, NST + DP - 1):
        if opt.get("cst"): A(f"s_add_u32 {sC}, {sC}, 1")
        if j - DP + 1 < 10: sync(16 * (9 - (j - DP + 1)), "u2")
        else: A("s_barrier")
    cst_out(A, opt)
    A("s_branch P2_MMX")

    A.label("XR_MFMA")
    vXR = 6
    vUR = 10
    vACC = 16
    vF = 64
    NF = 8
    vU = 96
    A(f"""
    v_and_b32 v3, 31, v1
    v_bfe_u32 v4, v1, 1, 3
    v_lshrrev_b32 v11, 5, v1
    v_xor_b32 v4, v4, v11
    v_lshlrev_b32 v4, 4, v4
    v_lshl_add_u32 v{vXR}, v3, 7, v4
    v_xor_b32 v{vXR+1}, 32, v{vXR}
    v_xor_b32 v{vXR+2}, 64, v{vXR}
    v_xor_b32 v{vXR+3}, 96, v{vXR}
    v_bfe_u32 v2, v1, 4, 1
    v_bfe_u32 v3, v1, 2, 2
    v_xor_b32 v4, {sW}, v3
    v_lshlrev_b32 v4, 6, v4
    v_lshl_add_u32 v4, v3, 8, v4
    v_lshl_add_u32 v4, v11, 11, v4
    v_lshl_add_u32 v4, v2, 5, v4
    v_and_b32 v3, 3, v1
    v_lshl_add_u32 v{vUR}, v3, 3, v4
    s_mul_i32 s6, {sMT}, 160
    s_lshl_b32 s7, {sNT}, 3
    s_add_u32 s6, s6, s7
    s_lshl_b32 s7, {sW}, 1
    s_add_u32 s6, s6, s7
    s_lshl_b32 s50, s6, 10
    s_mov_b32 s53, 7
    s_lshl_b32 s51, {sMT}, 11
    s_add_u32 s51, s51, {FLG + 32768}
    s_waitcnt vmcnt(0) lgkmcnt(0)
    """)
    assert MAP["ac"]
    rd, ops = [], []
    for c in range(10):
        for s_ in range(4):
            k = 4 * c + s_
            for u in range(2):
                rd.append(("u", c, f"ds_read_b64_tr_b16 {vr(vU+4*k+2*u,2)}, v{vUR}", UO + s_ * 4096 + u * 1024))
            for rb in range(NB):
                rd.append(("x", c, f"v{vXR+s_}", 4096 * rb))
                ops.append((rb, k, len(rd) - 1))
    for rb in range(NB, 4):
        for c in range(10):
            j, u = divmod((rb - NB) * 10 + c, UPS)
            for s_ in range(4):
                rd.append(("x", 10 + j, f"v{vXR+s_}", 4096 * u))
                ops.append((rb, 4 * c + s_, len(rd) - 1))
    xno = {}
    for i, r in enumerate(rd):
        if r[0] == "x": xno[i] = len(xno)
    RA = opt.get("xra2", 7)
    assert RA < NF
    st = {"ri": 0, "step": -1, "base": 0}

    def issue():
        kind, step, txt, off = rd[st["ri"]]
        if step != st["step"]:
            A("s_barrier")
            st["step"] = step
            a = (step % NS) * SS
            if a < st["base"] or a + SS - st["base"] > 65536:
                d = (a - st["base"]) % (1 << 32)
                for v in range(vXR, vUR + (1 if step < 10 else 0)): A(f"v_add_u32 v{v}, {hex(d)}, v{v}")
                st["base"] = a
        o = (step % NS) * SS - st["base"] + off
        if kind == "u": A(f"{txt} offset:{o}")
        else: A(f"ds_read_b128 {vr(vF + 4 * (xno[st['ri']] % NF), 4)}, {txt} offset:{o}")
        st["ri"] += 1

    def may(i):
        r = st["ri"]
        if r >= len(rd): return False
        nx = r
        while rd[nx][0] != "x": nx += 1
        return xno[nx] < i + RA and r - ops[min(i, len(ops) - 1)][2] < 15

    def epi(rb):
        a = vACC + 16 * (rb % 3)
        r = []
        for h in range(2):
            b = a + 8 * h
            r.append([f"v_cvt_pk_bf16_f32 v{b+j}, v{b+2*j}, v{b+2*j+1}" for j in range(4)])
            r.append([f"buffer_store_dwordx4 {vr(b,4)}, v5, s[24:27], s50 offen offset:{1024*h} sc1"] + (["s_add_u32 s50, s50, 40960"] if h else []))
        return r
    last = {rb: max(i for i, o in enumerate(ops) if o[0] == rb) for rb in range(4)}
    pending = []
    got = -1
    XF = MAP["xf"]
    vm = []

    def tell(g, rbs):
        n = len(vm) - 1 - max(j for j, x in enumerate(vm) if x in rbs)
        assert all(vm.count(x) == 2 for x in rbs)
        A(f"""
        s_waitcnt vmcnt({n})
        s_mov_b64 exec, 0xffff
        buffer_atomic_add v2, v3, s[24:27], s51 offen offset:{g * XF} sc1
        s_mov_b64 exec, -1
        """)
        vm.append(-1)
    if XF:
        assert NB == 2 and opt.get("xg")
        A("""
        v_mov_b32 v2, 1
        v_lshlrev_b32 v3, 7, v1
        """)
        XFA, XFB = 80 + opt.get("xfa", 36), 80 + opt.get("xfb", 80)
    for i, (rb, k, need) in enumerate(ops):
        if XF and i == XFA:
            assert st["step"] >= 10
            tell(0, (0, 1))
        if XF and i == XFB: tell(1, (2,))
        while may(i) and (st["ri"] <= need or i == 0): issue()
        assert st["ri"] > need
        if rb == 3 and k == 0 and NB == 3:
            A("s_nop 7")
            for x in sum(epi(0), []): A(x)
        if need > got:
            A(f"s_waitcnt lgkmcnt({st['ri'] - need - 1})")
            got = need
        acc = vr(vACC + 16 * (rb % 3), 16)
        A(f"v_mfma_f32_32x32x16_bf16 {acc}, {vr(vU+4*k,4)}, {vr(vF + 4 * (xno[need] % NF), 4)}, {'0' if k == 0 else acc}")
        n = 0
        while may(i + 1) and n < 3:
            issue(); n += 1
        for t in range(3):
            if i == last[t] + 2 + (NB - 1 - t if t < NB else 0) and not (NB == 3 and t == 0):
                pending += epi(t)
        if pending:
            for x in pending.pop(0):
                A(x)
                if x.startswith("buffer_store"): vm.append(len(vm) - vm.count(-1) >> 1)
    assert not pending
    A("s_nop 15")
    stamp(A, opt, 3)
    for x in sum(epi(3), []): A(x)
    vm += [3, 3]
    A("s_barrier")
    if XF:
        if XFB >= len(ops): tell(1, (2,))
        tell(2, (3,))
        stamp(A, opt, 4)
        A("s_branch P2_LD")


VX = 96


def xload(A, opt, kb):
    if opt.get("m16"):
        A(f"buffer_load_dwordx4 {vr(VX+4*kb,4)}, v3, s[24:27], s20 offen offset:{2048 * (kb >> 1 & 1) + 256 * (kb & 1)} sc1")
    else:
        A(f"buffer_load_dwordx4 {vr(VX+4*kb,4)}, v5, s[24:27], s20 offen offset:{1024 * (kb & 3)} sc1")
    if kb & 3 == 3 and kb < 39:
        A("s_add_u32 s20, s20, 4096")


def p2_rot(A, opt):
    lm = MAP["m"]
    A(f"""
    s_and_b32 s17, s3, {(1 << lm) - 1}
    s_mul_i32 s17, s17, 0
    s_lshr_b32 s16, s3, {lm}
    s_mul_i32 s16, s16, 0
    s_add_u32 s17, s17, s16
    s_mul_i32 s16, s17, 205
    s_lshr_b32 s16, s16, 11
    s_mul_i32 s16, s16, 10
    s_sub_u32 s17, s17, s16
    s_lshl_b32 s17, s17, 12
    """)


def gen_p2(A, opt):
    NA = opt.get("na", 2)
    OLD = opt.get("old", 0)
    order = [(n, kb) for kb in range(40) for n in range(NA)] + [(n, kb) for n in range(NA, 3) for kb in range(40)]
    groups = []
    for n, kb in order:
        if (n, kb // 4) not in groups: groups.append((n, kb // 4))
    CH = {1: [2, 2, 4, 4, 4, 4, 10], 2: [2, 2, 2, 2, 4, 4, 4, 5, 5], 3: [2, 4, 6, 8, 10], 4: [3, 3, 6, 6, 6, 6],
          5: [1, 1, 2, 2, 4, 10, 10]}[opt.get("ch", 1)]
    assert sum(CH) == 30
    st = [sum(CH[:i]) for i in range(len(CH) + 1)]
    A.label("P2_PUB")
    publish(A, opt, "s51", "s53")
    A.label("P2_LD")
    p2_tile(A)
    if OLD: p2_rot(A, opt)
    A(f"""
    s_mul_i32 s22, s39, 122880
    s_add_u32 s22, s22, {W2F}
    s_lshl_b32 s21, s36, 10
    s_add_u32 s22, s22, s21
    """)
    if OLD: A("""
    s_add_u32 s20, s22, s17
    s_add_u32 s19, s22, 40960
    """)
    M16 = opt.get("m16", 0)
    if M16:
        A("""
        v_bfe_u32 v2, v1, 2, 2
        v_bfe_u32 v3, v1, 4, 1
        v_and_b32 v5, 0x23, v1
        v_lshl_add_u32 v5, v2, 3, v5
        v_lshl_add_u32 v5, v3, 2, v5
        v_lshlrev_b32 v5, 4, v5
        """)
    A(f"""
    v_lshlrev_b32 v2, {7 if MAP["lf"] else 2}, v1
    v_mov_b32 v4, {LFLAG}
    s_cmp_lg_u32 s36, 0
    s_cbranch_scc1 P2_LW0
    """)
    if OLD: A("""
    s_sub_u32 s4, s44, s45
    s_sub_u32 s4, s4, 168
    """)
    EF = MAP["ef"]
    if MAP["ac"]:
        pass
    elif EF:
        A("""
        v_min_u32 v2, s43, v1
        v_lshlrev_b32 v2, 7, v2
        """)
    else:
        A("v_cmp_gt_u32 vcc, 42, v1")
        if OLD: A("v_add_u32 v3, s4, v2")
        A("""
        v_mov_b32 v3, 0
        v_cndmask_b32 v2, v3, v2, vcc
        """)
    if MAP["ac"]:
        spoll(A, "P2_W", "s45", 42, opt.get("wsl", 0))
    elif EF:
        poll(A, "P2_W", "s[24:27]", "s45", "v2", "v3", 0, sleep=opt.get("wsl", 16),
             st=(lambda: stamp(A, opt, 1)) if opt.get("pst") else None)
    elif opt.get("pp"):
        for i in range(opt["pp"]): A(f"v_mov_b32 v{8+i}, 0")
        ppoll(A, "P2_W", "s[24:27]", "s45", "v2", 8, opt["pp"], DC_W, opt.get("wsl", 4))
    else:
        poll(A, "P2_W", "s[24:27]", "s45", "v2", "v3", DC_W, sleep=opt.get("wsl", 16),
             st=(lambda: stamp(A, opt, 1)) if opt.get("pst") else None)

    def lds_wait(name, ofs, vd, va):
        A(f"s_branch {name}")
        A.label(name + "_S")
        A(f"s_sleep {opt.get('lsl', 1)}")
        A.label(name)
        A(f"""
        ds_read_b32 {vd}, {va} offset:{ofs}
        s_waitcnt lgkmcnt(0)
        """)
        poll_check(A, vd, 0, name + "_S")
    A(f"""
    v_mov_b32 v3, 1
    ds_write_b32 v4, v3 offset:4
    s_branch P2_GO
    """)
    A.label("P2_LW0")
    lds_wait("P2_LW", 4, "v3", "v4")
    A.label("P2_GO")
    stamp(A, opt, 5)
    AH = opt.get("ah", 3)

    def issue(c):
        for n, q in groups[st[c]:st[c + 1]]:
            off = (n * 40 + q * 4) * 1024
            A(f"""
            s_add_u32 s5, s22, {off}
            s_add_u32 m0, s21, {off}
            s_nop 0
            buffer_load_dwordx4 v5, s[24:27], s5 offen sc1 lds
            """)

    for c in range(min(AH, len(CH))): issue(c)
    if EF:
        A(f"""
        v_add_u32 v6, s21, v5
        v_add_u32 v7, 61440, v6
        s_mov_b32 s7, {POLL_MAX}
        """)
    for c in range(len(CH)):
        issued = min(len(CH), AH + c)
        A(f"s_waitcnt vmcnt({st[issued] - st[c+1]})")
        if EF:
            A.label(f"P2_V{c}")
            g = groups[st[c]:st[c + 1]]
            for i, (n, q) in enumerate(g):
                off = (n * 40 + q * 4) * 1024
                base, o = ("v6", off) if off < 61440 else ("v7", off - 61440)
                A(f"ds_read_b128 {vr(8+4*i,4)}, {base} offset:{o}")
            for i in range(len(g)):
                A(f"s_waitcnt lgkmcnt({len(g)-1-i})")
                r = 8 + 4 * i
                if i == 0:
                    A(f"v_max_u32 v3, v{r}, v{r+1}")
                else:
                    A(f"v_max3_u32 v3, v3, v{r}, v{r+1}")
                A(f"v_max3_u32 v3, v3, v{r+2}, v{r+3}")
            A(f"""
            v_cmp_eq_u32 vcc, -1, v3
            s_cbranch_vccnz P2_R{c}
            """)
            A.label(f"P2_K{c}")
        A("s_barrier")
        if AH + c < len(CH): issue(AH + c)
    stamp(A, opt, 6)
    if EF and opt.get("stamp"):
        A(f"""
        s_sub_u32 s7, {POLL_MAX}, s7
        s_cmp_eq_u32 s7, 0
        s_cbranch_scc1 K_EXIT
        v_mov_b32 v3, s7
        v_mov_b32 v2, 192
        s_mov_b64 exec, 1
        buffer_atomic_add v3, v2, {DBG}, 0 offen sc1
        s_mov_b64 exec, -1
        """)
    A("s_branch K_EXIT")
    if EF:
        for c in range(len(CH)):
            A.label(f"P2_R{c}")
            A(f"""
            s_cmp_eq_u32 s7, 0
            s_cbranch_scc1 P2_K{c}
            s_sub_u32 s7, s7, 1
            """)
            nsleep(A, opt.get("rsl", 0))
            issue(c)
            A(f"""
            s_waitcnt vmcnt(0)
            s_branch P2_V{c}
            """)

    vACC = 8
    vF = 56
    NF = 8
    vO = 88
    A.label("P2_MMX")
    NW = opt.get("nw", 0)
    if NW:
        assert MAP["xf"]
        p2_tile(A)
        A("s_buffer_load_dword s62, s[24:27], s44 glc")
    if NW != 2: A("s_barrier")
    if opt.get("cp2"):
        A("s_getpc_b64 s[4:5]")
        A.label("P2_PC")
        L0 = "P2_PUB" if opt["cp2"] == 1 else "W2L_LOOP"
        A(f"""
        s_sub_u32 s4, s4, P2_PC-{L0}
        s_subb_u32 s5, s5, 0
        v_and_b32 v3, {63 if opt["cp2"] == 1 else 255 if opt.get("xu") else 127}, v0
        v_lshlrev_b32 v3, 7, v3
        v_min_u32 v3, CODE_END-{L0}-4, v3
        global_load_dword v250, v3, s[4:5]
        """)
    if NW == 2: A("s_barrier")
    A.label("P2_MMI")
    A.label("P2_MM")
    if not opt.get("sh"): stamp(A, opt, 2)
    XB = opt.get("xb", 0)
    XF = MAP["xf"]
    if opt.get("nb") == 2 and not XF:
        A(f"""
        v_mov_b32 v95, {LFLAG}
        ds_read_b32 v94, v95
        """)
    p2_tile(A)
    if OLD: p2_rot(A, opt)
    A(f"""
    s_lshl_b32 s4, s38, 2
    s_add_u32 s4, s4, s36
    s_sub_u32 s4, s4, 4
    """)
    if OLD:
        A("""
        s_mul_i32 s18, s4, 40960
        s_add_u32 s19, s18, 40960
        s_add_u32 s20, s18, s17
        """)
    else:
        A("s_mul_i32 s20, s4, 40960")
    A(f"""
    s_mul_i32 s4, s4, {32*3072}
    s_mul_i32 s5, s39, 192
    s_add_u32 s23, s4, s5
    s_add_u32 s22, s23, {16*3072}
    """)
    if M16:
        A("""
        v_and_b32 v6, 15, v1
        v_and_b32 v7, 48, v1
        v_lshlrev_b32 v3, 4, v6
        v_lshl_add_u32 v3, v7, 5, v3
        """)
    else:
        A("""
        v_bfe_u32 v2, v1, 2, 1
        v_bfe_u32 v4, v1, 3, 2
        v_and_b32 v3, 0x23, v1
        v_lshl_add_u32 v3, v2, 4, v3
        v_lshl_add_u32 v3, v4, 2, v3
        v_lshlrev_b32 v3, 4, v3
        v_and_b32 v6, 15, v1
        v_and_b32 v7, 48, v1
        """)
    A("""
    v_mul_u32_u24 v6, 0xc00, v6
    v_add_u32 v6, v6, v7
    v_add_u32 v4, 61440, v3
    """)
    if not NW: A("s_waitcnt vmcnt(0)")
    A(f"""
    v_min_u32 v2, 19, v1
    v_lshlrev_b32 v2, {7 if MAP["lf"] else 2}, v2
    v_mov_b32 v8, {LFLAG}
    """)
    if XF:
        spoll(A, "P2_XF", "s44", 20, opt.get("xsl", 0), first=False, sd="s62")
        A("s_branch P2_XW_E")
    elif opt.get("nb") == 2:
        A("""
        s_waitcnt lgkmcnt(0)
        v_readfirstlane_b32 s4, v94
        s_cmp_lg_u32 s4, 0
        s_cbranch_scc1 P2_XW_E
        """)
    A("""
    s_cmp_lg_u32 s36, 7
    s_cbranch_scc1 P2_XW
    """)

    def wait_stores(tag, word=12):
        A(f"""
        s_cmp_ge_u32 s3, 21
        s_cbranch_scc1 P2_WS{tag}_X
        """)
        A.label(f"P2_WS{tag}")
        if word == 8 and opt.get("xvs"): A(f"s_sleep {opt['xvs']}")
        A(f"""
        ds_read_b32 v7, v8 offset:{word}
        s_waitcnt lgkmcnt(0)
        v_readfirstlane_b32 s4, v7
        s_cmp_lt_u32 s4, 4
        s_cbranch_scc1 P2_WS{tag}
        """)
        A.label(f"P2_WS{tag}_X")
    if MAP["ac"]:
        spoll(A, "P2_X", "s44", 20, opt.get("xsl", 0))
    elif opt.get("px"):
        ppoll(A, "P2_X", "s[24:27]", "s44", "v2", 88, opt["px"], 0, opt.get("xsl", 4))
    else:
        poll(A, "P2_X", "s[24:27]", "s44", "v2", "v7", 0, sleep=opt.get("xsl", 16))
    if opt.get("xap"):
        A("""
        s_cmp_ge_u32 s3, 31
        s_cbranch_scc1 P2_XA_X
        """)
        A.label("P2_XA")
        A("""
        ds_read_b32 v7, v8 offset:8
        s_waitcnt lgkmcnt(0)
        v_readfirstlane_b32 s4, v7
        s_cmp_lt_u32 s4, 4
        s_cbranch_scc1 P2_XA
        """)
        A.label("P2_XA_X")
    A("""
    v_mov_b32 v7, 1
    ds_write_b32 v8, v7
    s_branch P2_XW_X
    """)
    A.label("P2_XW_S")
    A("s_sleep 2")
    A.label("P2_XW")
    A("""
    ds_read_b32 v7, v8
    s_waitcnt lgkmcnt(0)
    """)
    poll_check(A, "v7", 0, "P2_XW_S")
    A.label("P2_XW_X")
    if opt.get("xw"): wait_stores("a")
    A.label("P2_XW_E")
    if opt.get("xpr"): A(f"s_setprio {opt['xpr']}")
    stamp(A, opt, 1)
    XS = opt.get("xs", 40)
    XE = opt.get("xe", 2)
    xi = [XS]
    for kb in range(XS):
        if XB and kb == XB % 100: wait_stores("b")
        if opt.get("xv") and kb == opt["xv"] % 100:
            assert opt.get("px") and MAP["xf"] and XB
            wait_stores("v", 8)
        xload(A, opt, kb)
    stamp(A, opt, 5, True)
    if opt.get("mpr"): A(f"s_setprio {opt['mpr']}")

    def epi(t, o=vO):
        a = vACC + 16 * t
        if M16:
            return [[f"v_cvt_pk_bf16_f32 v{o+j}, v{a+2*j}, v{a+2*j+1}" for j in range(2)],
                    [f"v_cvt_pk_bf16_f32 v{o+j}, v{a+2*j}, v{a+2*j+1}" for j in range(2, 4)],
                    [f"buffer_store_dwordx4 {vr(o,4)}, v6, s[96:99], s23 offen offset:{64*t}{ysfx(t)}"],
                    [f"v_cvt_pk_bf16_f32 v{o+j}, v{a+2*j}, v{a+2*j+1}" for j in range(4, 6)],
                    [f"v_cvt_pk_bf16_f32 v{o+j}, v{a+2*j}, v{a+2*j+1}" for j in range(6, 8)],
                    [f"buffer_store_dwordx4 {vr(o+4,4)}, v6, s[96:99], s22 offen offset:{64*t}{ysfx(t)}"]]
        return [[f"v_cvt_pk_bf16_f32 v{o+j}, v{a+2*j}, v{a+2*j+1}" for j in range(4)],
                [f"v_cvt_pk_bf16_f32 v{o+j}, v{a+2*j}, v{a+2*j+1}" for j in range(4, 8)],
                ["s_nop 1"] + [f"v_permlane16_swap_b32 v{o+j}, v{o+4+j}" for j in range(4)],
                [f"buffer_store_dwordx4 {vr(o,4)}, v6, s[96:99], s23 offen offset:{64*t}{ysfx(t)}",
                 f"buffer_store_dwordx4 {vr(o+4,4)}, v6, s[96:99], s22 offen offset:{64*t}{ysfx(t)}"]]

    def ysfx(t):
        m = opt.get("ya" if t < 2 else "yb", 0)
        return ("", " sc1", " nt", " sc0 sc1", " sc1 nt")[m]

    RA = opt.get("ra", 6)
    assert RA < NF
    seen = [0]

    def read(i):
        n, kb = order[i]
        g = groups.index((n, kb // 4))
        while st[seen[0]] <= g:
            A("s_barrier")
            seen[0] += 1
        off = (n * 40 + kb) * 1024
        if M16: off = (n * 40 + (kb & ~1)) * 1024 + 256 * (kb & 1)
        base, o = ("v3", off) if off < 61440 else ("v4", off - 61440)
        A(f"ds_read_b128 {vr(vF+4*(i%NF),4)}, {base} offset:{o}")

    for i in range(RA): read(i)
    pending = []
    done = set()
    last = {n: max(i for i, x in enumerate(order) if x[0] == n) for n in range(3)}
    for i, (n, kb) in enumerate(order):
        if M16:
            lg = f"lgkmcnt({min(120, i + RA) - i - 1})"
            if n == 0 and kb & 1 == 0:
                assert xi[0] > kb + 1
                lg = f"vmcnt({xi[0] - kb - 2}) " + lg
            A(f"s_waitcnt {lg}")
            for rb in range(2):
                acc = vACC + 16 * n + 8 * rb + 4 * (kb & 1)
                c = "0" if kb < 2 else vr(acc, 4)
                A(f"v_mfma_f32_16x16x32_bf16 {vr(acc,4)}, {vr(vF+4*(i%NF),4)}, {vr(VX+4*((kb & ~1) + rb),4)}, {c}")
                if rb == 0 and M16 == 2 and i + RA < 120 and not (i == 0 and opt.get("stamp")): read(i + RA)
        else:
            if n == 0:
                assert xi[0] > kb
                A(f"s_waitcnt vmcnt({xi[0] - kb - 1})")
            A(f"s_waitcnt lgkmcnt({min(120, i + RA) - i - 1})")
            acc = vACC + 16 * n
            c = "0" if kb == 0 else vr(acc, 16)
            A(f"v_mfma_f32_32x32x16_bf16 {vr(acc,16)}, {vr(vF+4*(i%NF),4)}, {vr(VX+4*kb,4)}, {c}")
        if i == 0 and opt.get("stamp"):
            stamp(A, opt, 3)
            A("s_memtime s[80:81]\ns_nop 7\ns_nop 7\ns_waitcnt lgkmcnt(0)")
        if i == 0 and opt.get("probe") == 3:
            stamp(A, opt, 3)
            A("s_nop 7\ns_nop 7\ns_waitcnt lgkmcnt(0)")
        if i + RA < 120 and (M16 != 2 or (i == 0 and opt.get("stamp"))): read(i + RA)
        if i % XE == 0 and xi[0] < 40:
            xload(A, opt, xi[0]); xi[0] += 1
        for t in range(3):
            if i == last[t] + 3:
                pending += epi(t) + [[], [], [], []]
                done.add(t)
        if pending:
            for x in pending.pop(0): A(x)
    assert seen[0] == len(CH)
    A("s_nop 7" if M16 else "s_nop 15")
    stamp(A, opt, 6)
    if opt.get("stamp"):
        A("s_memtime s[82:83]\ns_waitcnt lgkmcnt(0)\ns_sub_u32 s72, s82, s80")
        if opt.get("sh"): A("s_and_b32 s90, s90, 127\ns_lshl_b32 s90, s90, 24\ns_or_b32 s72, s72, s90")
    k = 0
    for t in range(3):
        if t in done: continue
        for x in sum(epi(t, vF + 8 * k), []): A(x)
        k += 1


def gen_p2d(A, opt):
    assert MAP["lf"] and not MAP["ef"]
    PS = 9216
    A.label("P2_PUB")
    A("s_mov_b32 s60, 1")
    A.label("P2_LD")
    p2_tile(A)
    A(f"""
    v_lshrrev_b32 v2, 4, v1
    v_min_u32 v2, 2, v2
    v_and_b32 v3, 15, v1
    v_min_u32 v3, 13, v3
    v_mad_u32_u24 v2, v2, 14, v3
    v_lshlrev_b32 v2, 7, v2
    s_lshl_b32 s46, 0x1111, s36
    s_and_b32 s46, s46, 0x3fff
    s_mul_i32 s22, s39, 122880
    s_add_u32 s22, s22, {W2F}
    s_mov_b32 s47, 0
    s_mov_b32 s7, {POLL_MAX}
    v_mov_b32 v4, {LFLAG}
    v_mov_b32 v6, 0
    v_mov_b32 v7, 1
    """)
    A.label("P2_POLL")
    A(f"""
    s_lshl_b32 s48, s46, 16
    s_or_b32 s48, s48, s46
    s_mov_b32 s49, s46
    s_mov_b64 exec, s[48:49]
    buffer_load_dword v3, v2, s[24:27], s45 offen sc1
    s_mov_b64 exec, 1
    v_mov_b32 v8, s47
    s_cmp_eq_u32 s60, 0
    s_waitcnt vmcnt(1)
    s_cbranch_scc1 P2_NP
    buffer_store_dword v7, v6, s[24:27], s51 offen sc1
    """)
    stamp(A, opt, 4)
    A("""
    s_mov_b32 s60, 0
    s_waitcnt vmcnt(1)
    s_branch P2_PR
    """)
    A.label("P2_NP")
    A("""
    ds_or_b32 v4, v8 offset:4
    s_mov_b32 s47, 0
    s_waitcnt vmcnt(0)
    """)
    A.label("P2_PR")
    A(f"""
    s_mov_b64 exec, s[48:49]
    v_cmp_ne_u32 vcc, 0, v3
    s_mov_b64 exec, -1
    s_lshr_b32 s4, vcc_lo, 16
    s_and_b32 s4, s4, vcc_lo
    s_and_b32 s4, s4, vcc_hi
    s_cbranch_scc1 P2_ISS
    s_sub_u32 s7, s7, 1
    s_cselect_b32 s4, s46, 0
    s_cbranch_scc1 P2_ISS
    s_sleep {opt.get("wsl", 8)}
    s_branch P2_POLL
    """)
    A.label("P2_ISS")
    if opt.get("stamp"):
        A("""
        s_waitcnt lgkmcnt(0)
        s_cmp_lg_u32 s74, 0
        s_cbranch_scc1 P2_IS0
        """)
        stamp(A, opt, 5)
        A.label("P2_IS0")
    A("s_andn2_b32 s46, s46, s4")
    A.label("P2_IS1")
    A(f"""
    s_ff1_i32_b32 s5, s4
    s_mul_i32 m0, s5, {PS}
    s_mul_i32 s6, s5, 3072
    s_add_u32 s6, s6, s22
    s_bitset0_b32 s4, s5
    """)
    for n in range(3):
        for j in range(3):
            A(f"buffer_load_dwordx4 v5, s[24:27], s6 offen offset:{1024*j} sc1 lds")
        if n < 2:
            A("""
            s_add_u32 m0, m0, 3072
            s_add_u32 s6, s6, 40960
            """)
    A(f"""
    s_cmp_eq_u32 s47, 0
    s_cbranch_scc1 P2_IS2
    v_mov_b32 v8, s47
    s_mov_b64 exec, 1
    s_waitcnt vmcnt(9)
    ds_or_b32 v4, v8 offset:4
    s_mov_b64 exec, -1
    """)
    A.label("P2_IS2")
    A(f"""
    s_lshl_b32 s47, 1, s5
    s_cmp_lg_u32 s4, 0
    s_cbranch_scc1 P2_IS1
    s_cmp_lg_u32 s46, 0
    s_cbranch_scc1 P2_POLL
    v_mov_b32 v8, s47
    s_mov_b64 exec, 1
    s_waitcnt vmcnt(0)
    ds_or_b32 v4, v8 offset:4
    s_mov_b64 exec, -1
    s_waitcnt lgkmcnt(0)
    """)
    stamp(A, opt, 6)
    A("s_branch K_EXIT")

    vACC = 8
    vF = 56
    vM, vA = 92, 93
    A.label("P2_MMX")
    A("s_barrier")
    A.label("P2_MMI")
    A("s_waitcnt vmcnt(0)")
    A.label("P2_MM")
    stamp(A, opt, 2)
    A(f"""
    v_mov_b32 v7, {LFLAG}
    ds_read_b32 v{vM}, v7
    """)
    p2_tile(A)
    A(f"""
    s_lshl_b32 s4, s38, 2
    s_add_u32 s4, s4, s36
    s_sub_u32 s4, s4, 4
    s_mul_i32 s20, s4, 40960
    s_mul_i32 s4, s4, {32*3072}
    s_mul_i32 s5, s39, 192
    s_add_u32 s23, s4, s5
    s_add_u32 s22, s23, {16*3072}
    s_add_u32 s21, s20, {39*1024}
    v_bfe_u32 v2, v1, 2, 1
    v_bfe_u32 v4, v1, 3, 2
    v_and_b32 v3, 0x23, v1
    v_lshl_add_u32 v3, v2, 4, v3
    v_lshl_add_u32 v3, v4, 2, v3
    v_lshlrev_b32 v3, 4, v3
    v_and_b32 v6, 15, v1
    v_and_b32 v4, 48, v1
    v_mul_u32_u24 v6, 0xc00, v6
    v_add_u32 v6, v6, v4
    v_min_u32 v2, 19, v1
    v_lshlrev_b32 v2, 7, v2
    s_waitcnt lgkmcnt(0)
    v_readfirstlane_b32 s4, v{vM}
    s_cmp_lg_u32 s4, 0
    s_cbranch_scc1 P2_XW_X
    s_cmp_lg_u32 s36, 7
    s_cbranch_scc1 P2_XW
    """)
    poll(A, "P2_X", "s[24:27]", "s44", "v2", f"v{vM}", 0, sleep=opt.get("xsl", 16))
    A(f"""
    v_mov_b32 v{vM}, 1
    ds_write_b32 v7, v{vM}
    s_branch P2_XW_X
    """)
    A.label("P2_XW")
    A(f"""
    s_sleep 2
    ds_read_b32 v{vM}, v7
    s_waitcnt lgkmcnt(0)
    """)
    poll_check(A, f"v{vM}", 0, "P2_XW")
    A.label("P2_XW_X")
    stamp(A, opt, 1)
    NU = opt.get("nu", 7)
    LAG = opt.get("lag", 3)
    P0 = opt.get("p0", 6)
    XPB = opt.get("xpb", 1)

    def xpiece(p):
        r = [[f"buffer_load_dwordx4 {vr(VX+12*p+4*j,4)}, v5, s[24:27], s20 offen offset:{1024*j} sc1"] for j in range(3)]
        if p < 12: r[2].append("s_add_u32 s20, s20, 3072")
        return r
    A(f"buffer_load_dwordx4 {vr(VX+156,4)}, v5, s[24:27], s21 offen sc1")
    for p_ in range(NU):
        for x in sum(xpiece(p_), []): A(x)
    stamp(A, opt, 5, True)
    issued = lambda t: min(13, NU + XPB * max(0, t))
    Pt = [min(12, max(t, min(P0 + 2 * t, issued(t - LAG) - 1))) for t in range(13)]
    assert all(Pt[t] < issued(t) for t in range(13))
    A(f"""
    s_getpc_b64 s[52:53]
    """)
    A.label("P2_PC")
    A(f"""
    s_add_u32 s48, s52, P2_B0-P2_PC
    s_addc_u32 s49, s53, 0
    s_movk_i32 s50, {(2 << Pt[0]) - 1}
    s_mov_b32 s46, 0
    v_add_u32 v{vA}, {13*PS}, v3
    s_branch P2_F1
    """)
    A.label("P2_F0")
    A("s_sleep 1")
    A.label("P2_F1")
    A(f"""
    ds_read_b32 v{vM}, v7 offset:4
    s_waitcnt lgkmcnt(0)
    v_readfirstlane_b32 s4, v{vM}
    s_bitcmp1_b32 s4, 13
    s_cbranch_scc0 P2_F0
    """)
    for n in range(3): A(f"ds_read_b128 {vr(vF+4*(6+n),4)}, v{vA} offset:{3072*n}")
    A(f"s_waitcnt vmcnt({3*NU})")
    for n in range(3):
        A(f"""
        s_waitcnt lgkmcnt({2-n})
        v_mfma_f32_32x32x16_bf16 {vr(vACC+16*n,16)}, {vr(vF+4*(6+n),4)}, {vr(VX+156,4)}, 0
        """)
    A("""
    s_set_gpr_idx_on s46, gpr_idx(SRC1)
    s_branch P2_COLD
    """)

    def mfma(i):
        acc = vACC + 16 * (i // 3)
        A(f"v_mfma_f32_32x32x16_bf16 {vr(acc,16)}, {vr(vF+4*i,4)}, {vr(VX+4*(i%3),4)}, {vr(acc,16)}")

    def read(i):
        A(f"ds_read_b128 {vr(vF+4*i,4)}, v{vA} offset:{1024*i}")

    A.label("P2_DRAIN")
    if opt.get("stamp"): A("s_add_u32 s90, s90, 1")
    for i in range(4, 9):
        if i > 4: A(f"s_waitcnt lgkmcnt({8-i})")
        mfma(i)
    A("s_branch P2_COLD")
    A.label("P2_COLD_S")
    A("s_sleep 1")
    A.label("P2_COLD")
    A(f"""
    ds_read_b32 v{vM}, v7 offset:4
    s_waitcnt lgkmcnt(0)
    v_readfirstlane_b32 s4, v{vM}
    s_andn2_b32 s4, s4, s46
    s_and_b32 s4, s4, s50
    s_cbranch_scc0 P2_COLD_S
    s_ff1_i32_b32 s5, s4
    s_mul_i32 s6, s5, {PS}
    v_add_u32_e64 v{vA}, v3, s6
    s_bitset1_b32 s46, s5
    s_mul_i32 s47, s5, 12
    """)
    for i in range(5): read(i)
    A(f"""
    ds_read_b32 v{vM}, v7 offset:4
    s_set_gpr_idx_idx s47
    s_setpc_b64 s[48:49]
    """)
    for t in range(13):
        A.label(f"P2_B{t}")
        if t == 0 and opt.get("stamp"):
            stamp(A, opt, 3)
            A("s_memtime s[80:81]\ns_waitcnt lgkmcnt(0)")
        xl = sum((xpiece(p_) for p_ in range(issued(t), issued(t + 1))), [])
        xl = [sum(xl[i::3], []) for i in range(3)] if XPB == 1 else [sum(xl[i*XPB:(i+1)*XPB], []) for i in range(3)]
        W = 3 * (issued(t) - Pt[t] - 1)
        last = t == 12
        for i in range(9):
            c = (5, 5, 5, 3, None, 4, 4, 4, 4)[i]
            if last and i > 4: c = 8 - i
            if i == 0: A(f"s_waitcnt vmcnt({W}) lgkmcnt({c})")
            elif c is not None: A(f"s_waitcnt lgkmcnt({c})")
            mfma(i)
            if i < 4: read(5 + i)
            if i < 3:
                for x in xl[i]: A(x)
            if last: continue
            if i == 1:
                A(f"""
                s_add_u32 s48, s52, P2_B{t+1}-P2_PC
                s_addc_u32 s49, s53, 0
                """)
            if i == 2 and Pt[t + 1] != Pt[t]: A(f"s_movk_i32 s50, {(2 << Pt[t+1]) - 1}")
            if i == 3:
                A(f"""
                v_readfirstlane_b32 s4, v{vM}
                s_andn2_b32 s4, s4, s46
                s_and_b32 s4, s4, s50
                s_cbranch_scc0 P2_DRAIN
                s_ff1_i32_b32 s5, s4
                """)
            if i == 4:
                A(f"""
                s_mul_i32 s6, s5, {PS}
                v_add_u32_e64 v{vA}, v3, s6
                """)
            if i >= 4: read(i - 4)
            if i == 5:
                A(f"""
                s_bitset1_b32 s46, s5
                s_mul_i32 s47, s5, 12
                """)
            if i == 8:
                A(f"""
                ds_read_b32 v{vM}, v7 offset:4
                s_set_gpr_idx_idx s47
                """)
    A("s_set_gpr_idx_off")

    def epi(t, o):
        a = vACC + 16 * t
        return ([f"v_cvt_pk_bf16_f32 v{o+j}, v{a+2*j}, v{a+2*j+1}" for j in range(8)] +
                ["s_nop 1"] + [f"v_permlane16_swap_b32 v{o+j}, v{o+4+j}" for j in range(4)] +
                [f"buffer_store_dwordx4 {vr(o,4)}, v6, s[96:99], s23 offen offset:{64*t}",
                 f"buffer_store_dwordx4 {vr(o+4,4)}, v6, s[96:99], s22 offen offset:{64*t}"])
    A("s_nop 0")
    for t in range(3):
        if t == 2:
            stamp(A, opt, 6)
            if opt.get("stamp"):
                A("s_memtime s[82:83]\ns_waitcnt lgkmcnt(0)\ns_sub_u32 s72, s82, s80")
                A("s_and_b32 s90, s90, 127\ns_lshl_b32 s90, s90, 24\ns_or_b32 s72, s72, s90")
        for x in epi(t, vF + 8 * t): A(x)


def descriptor(name, vgpr, accum, sgpr):
    return f""".amdhsa_kernel {name}
  .amdhsa_next_free_vgpr {vgpr}
  .amdhsa_next_free_sgpr {sgpr}
  .amdhsa_accum_offset {accum}
  .amdhsa_group_segment_fixed_size 0
  .amdhsa_kernarg_size 72
  .amdhsa_user_sgpr_count 2
  .amdhsa_user_sgpr_kernarg_segment_ptr 1
  .amdhsa_system_sgpr_workgroup_id_x 1
  .amdhsa_float_denorm_mode_32 3
.end_amdhsa_kernel
"""


def generate(opt):
    out = HEADER
    MAP["m"] = opt.get("map", 2)
    MAP["lf"] = opt.get("lf", 0)
    MAP["ef"] = opt.get("ef", 0)
    MAP["ac"] = opt.get("ac", 0)
    MAP["xf"] = opt.get("xf", 0)
    assert MAP["lf"] or not MAP["ef"]
    global LFLAG, WS_USED
    if opt.get("px"):
        LFLAG = PA + 6 * ASTAGE
        WS_USED = PXB + 168 * 24576
    out += f"; @launch grid=(256,1,1) block=(512,1,1) lds={LFLAG + 1024}\n"
    out += '.amdgcn_target "amdgcn-amd-amdhsa--gfx950"\n.text\n'
    A = Asm()
    out += f".globl {KNAME}\n.p2align 8\n.type {KNAME},@function\n"
    gen_kernel(A, opt)
    out += A.text()
    out += "CODE_END:\n"
    out += '.section .rodata,"a"\n.p2align 6\n'
    out += descriptor(KNAME, 256, 256, 100)
    return out


if __name__ == "__main__":
    path = sys.argv[1] if len(sys.argv) > 1 else "standalone__weight_only_int_quip__prompt.s"
    opt = {}
    for a in sys.argv[2:]:
        k, _, v = a.partition("=")
        opt[k] = int(v) if v else 1
    open(path, "w").write(generate(opt))
    print("wrote", path)
```

```python
import sys

KNAME = "standalone__weight_only_int_quip__prompt_kernel"
HEADER = """; Kernarg layout for this problem (72 bytes, ptrs only, base s[0:1]):
;   offset   0: d_in[0] x  shape=(1, 2048, 640) dtype=bfloat16 strides=(2621440, 1280, 2) contiguous=True
;   offset   8: d_in[1] qw  shape=(640, 1536) dtype=int32 strides=(6144, 4) contiguous=True
;   offset  16: d_in[2] scales  shape=(20, 1536) dtype=bfloat16 strides=(3072, 2) contiguous=True
;   offset  24: d_in[3] zeros  shape=(20, 1536) dtype=bfloat16 strides=(3072, 2) contiguous=True
;   offset  32: d_in[4] U  shape=(640, 640) dtype=bfloat16 strides=(1280, 2) contiguous=True
;   offset  40: d_in[5] V  shape=(1536, 1536) dtype=bfloat16 strides=(3072, 2) contiguous=True
;   offset  48: d_out     shape=(1, 2048, 1536) dtype=bfloat16 (2 bytes/elem)
; y = ((x@U)@wq)@V is evaluated as (x@U)@(wq@V): phase 1 makes xr = x@U and W2 = dequant(qw)@V in d_ws,
; phase 2 makes y = xr@W2.  One workgroup per CU (256, all resident); hand-off through flags in d_ws
"""

XRF = 0
W2F = 64 * 40 * 1024
FLG = W2F + 48 * 40 * 1024
XFLG = FLG + 256 * 256
SFLG = XFLG + 256 * 128
FLG_END = FLG + 64 * 3 * 1024
SA = FLG_END
WS_USED = SA + 40 * 12 * 4096
assert SFLG + 168 * 256 <= FLG_END

X_BYTES = 2048 * 640 * 2
QW_BYTES = 640 * 1536 * 4
SC_BYTES = 20 * 1536 * 2
U_BYTES = 640 * 640 * 2
V_BYTES = 1536 * 1536 * 2
OUT_BYTES = 2048 * 1536 * 2

VSTAGE = 32768
ABASE = 3 * VSTAGE
ASTAGE = 12288
TBL = ABASE + 2 * ASTAGE
LDS1 = TBL + 24576
LFLAG = LDS1
QE = 112
XSTAGE = 32768
POLL_MAX = 40000


class Asm:
    def __init__(self):
        self.lines = []

    def __call__(self, s):
        for l in s.strip("\n").split("\n"):
            if not l.strip(): continue
            self.lines.append("    " + l.strip() if not l.strip().endswith(":") else l.strip())

    def label(self, s):
        self.lines.append(s + ":")

    def comment(self, s):
        self.lines.append("    ; " + s)

    def text(self):
        return "\n".join(self.lines) + "\n"


def vr(a, n):
    return f"v[{a}:{a+n-1}]"


STAMP_OFS = 32 << 20
NSTAMP = 8


def stamp(A, opt, i, wait=False):
    if opt.get("stamp") or ("probe" in opt and i in (0, opt["probe"])):
        A(f"s_memrealtime s[{64+2*i}:{65+2*i}]")
        if wait: A("s_waitcnt lgkmcnt(0)")


def stamp_begin(A, opt):
    if opt.get("stamp") or "probe" in opt:
        for i in range(1, NSTAMP):
            A(f"s_mov_b32 s{64+2*i}, 0")
        A("s_mov_b32 s90, 0")
    stamp(A, opt, 0)


def stamp_end(A, opt):
    if "probe" in opt:
        p = opt["probe"]
        wl, wh = opt.get("pwl", 0), opt.get("pwh", 7)
        gl, gh = opt.get("pgl", 0), opt.get("pgh", 255)
        A(f"""
        s_waitcnt vmcnt(0) lgkmcnt(0)
        s_memrealtime s[78:79]
        s_waitcnt lgkmcnt(0)
        s_cmp_gt_u32 s2, {gh}
        s_cbranch_scc1 PRB_X
        s_cmp_lt_u32 s2, {gl}
        s_cbranch_scc1 PRB_X
        s_cmp_lt_u32 s36, {wl}
        s_cbranch_scc1 PRB_X
        s_cmp_gt_u32 s36, {wh}
        s_cbranch_scc1 PRB_X
        s_cmp_eq_u32 s{64+2*p}, 0
        s_cbranch_scc1 PRB_X
        s_sub_u32 s4, s{64+2*p}, s64
        s_mul_i32 s4, s4, 3
        s_min_u32 s4, s4, 20000
        """)
        A.label("PRB")
        A("""
        s_memrealtime s[6:7]
        s_waitcnt lgkmcnt(0)
        s_sub_u32 s5, s6, s78
        s_cmp_lt_u32 s5, s4
        s_cbranch_scc1 PRB
        """)
        A.label("PRB_X")
    if opt.get("stamp"):
        A("s_waitcnt vmcnt(0) lgkmcnt(0)")
        stamp(A, opt, NSTAMP - 1)
        A(f"""
        s_load_dwordx2 s[56:57], s[0:1], 64
        s_waitcnt lgkmcnt(0)
        s_mov_b32 s58, 0x7fffffff
        s_mov_b32 s59, 0x00020000
        v_lshrrev_b32 v1, 6, v0
        v_lshlrev_b32 v1, 5, v1
        s_lshl_b32 s4, s2, 8
        s_add_u32 s4, s4, {STAMP_OFS}
        """)
        for i in range(NSTAMP):
            A(f"v_mov_b32 v{4+i}, s{64+2*i}")
        A("""
        buffer_store_dwordx4 v[4:7], v1, s[56:59], s4 offen
        buffer_store_dwordx4 v[8:11], v1, s[56:59], s4 offen offset:16
        """)
    A("s_endpgm")


def cst(A, opt, sidx, add):
    if not opt.get("cst"): return
    A(f"""
    s_memtime s[84:85]
    s_add_u32 s86, {sidx}, {add}
    v_cmp_eq_u32 vcc, s86, v1
    s_waitcnt lgkmcnt(0)
    v_mov_b32 v231, s84
    v_cndmask_b32 v230, v230, v231, vcc
    """)


FSR = {"m": [8,10,12,14,16,18,20,22,28,30,32,34,56,58,60,62],
       "d": [12,14,16,18,20,22,28,30,32,34,50,52,54,58,60,62,44,46],
       "l": [8,10,16,18,20,22,28,30,32,34,50,52,54,56,58,60,62]}


class Fst:
    def __init__(self, A, opt, role, on):
        self.A, self.role, self.n = A, role, 0
        self.on = on and "fst" in opt

    def __call__(self):
        if not self.on: return
        r = FSR[self.role][self.n]; self.n += 1
        self.A(f"s_memtime s[{r}:{r+1}]")

    def save(self, sc, val, tag):
        if not self.on: return
        self.A(f"""
        s_waitcnt lgkmcnt(0)
        s_cmp_lg_u32 {sc}, {val}
        s_cbranch_scc1 FS_{tag}
        """)
        for i in range(self.n): self.A(f"v_writelane_b32 v230, s{FSR[self.role][i]}, {i}")
        self.A(f"s_mov_b32 s4, {self.n}")
        self.A("v_writelane_b32 v230, s4, 47")
        self.A.label(f"FS_{tag}")


def cst_out(A, opt):
    if not opt.get("cst") and "fst" not in opt: return
    A(f"""
    v_writelane_b32 v230, s88, 48
    s_mov_b64 s[84:85], s[24:25]
    s_mov_b32 s86, 0x7fffffff
    s_mov_b32 s87, 0x00020000
    v_lshlrev_b32 v231, 2, v0
    s_lshl_b32 s4, s2, 11
    s_add_u32 s4, s4, {STAMP_OFS + (1 << 20)}
    buffer_store_dword v230, v231, s[84:87], s4 offen
    """)


def poll_check(A, vdst, dc, again):
    A(f"v_cmp_ne_u32 vcc, 0, {vdst}")
    if dc & 0xffffffff: A(f"s_or_b32 vcc_lo, vcc_lo, {hex(dc & 0xffffffff)}")
    if dc >> 32: A(f"s_or_b32 vcc_hi, vcc_hi, {hex(dc >> 32)}")
    A(f"""
    s_cmp_eq_u64 vcc, -1
    s_cbranch_scc0 {again}
    """)


def poll(A, name, srd, soff, vaddr, vdst, dc, scnt="s7", sleep=0, st=None):
    A(f"s_mov_b32 {scnt}, {POLL_MAX}")
    if sleep: A(f"s_branch {name}_1")
    A.label(name)
    if sleep:
        A(f"s_sleep {sleep}")
        A.label(name + "_1")
    A(f"""
    s_sub_u32 {scnt}, {scnt}, 1
    s_cbranch_scc1 {name}_X
    """)
    if st: st()
    A(f"""
    buffer_load_dword {vdst}, {vaddr}, {srd}, {soff} offen sc1
    s_waitcnt vmcnt(0)
    """)
    A.label(name + "_C")
    poll_check(A, vdst, dc, name)
    A.label(name + "_X")


def ppoll(A, name, srd, soff, vaddr, v0, n, dc, sleep, scnt="s7"):
    A(f"s_mov_b32 {scnt}, {POLL_MAX}")
    for i in range(n - 1):
        A(f"buffer_load_dword v{v0+i}, {vaddr}, {srd}, {soff} offen sc1")
        if sleep: A(f"s_sleep {sleep}")
    A.label(name)
    A(f"""
    s_sub_u32 {scnt}, {scnt}, 1
    s_cbranch_scc1 {name}_X
    """)
    for i in range(n):
        A(f"""
        buffer_load_dword v{v0+(i+n-1)%n}, {vaddr}, {srd}, {soff} offen sc1
        s_waitcnt vmcnt({n-1})
        v_cmp_ne_u32 vcc, 0, v{v0+i}
        """)
        if dc & 0xffffffff: A(f"s_or_b32 vcc_lo, vcc_lo, {hex(dc & 0xffffffff)}")
        if dc >> 32: A(f"s_or_b32 vcc_hi, vcc_hi, {hex(dc >> 32)}")
        A(f"""
        s_cmp_eq_u64 vcc, -1
        s_cbranch_scc1 {name}_X
        """)
        if sleep: A(f"s_sleep {sleep}")
    A(f"s_branch {name}")
    A.label(name + "_X")


DC_W = 0xFFFFFC0000000000
DBG = "s[92:95]"
MAP = {"m": 2}


def p2_tile(A):
    lm = MAP["m"]
    ln = 5 - lm
    xm = 4 - lm
    A(f"""
    s_and_b32 s38, s37, {(1 << xm) - 1}
    s_lshl_b32 s38, s38, {lm}
    s_and_b32 s39, s3, {(1 << lm) - 1}
    s_add_u32 s38, s38, s39
    s_lshr_b32 s39, s37, {xm}
    s_lshl_b32 s39, s39, {ln}
    s_lshr_b32 s4, s3, {lm}
    s_add_u32 s39, s39, s4
    """)
    if MAP["ac"]:
        A(f"""
        s_lshl_b32 s45, s38, 4
        s_add_u32 s45, s45, s39
        s_lshl_b32 s45, s45, 7
        s_add_u32 s44, s45, {FLG + 32768}
        s_add_u32 s45, s45, {FLG}
        """)
        if MAP["xf"]:
            A(f"""
            s_max_u32 s4, s36, 5
            s_mul_i32 s4, s4, {MAP["xf"]}
            s_add_u32 s44, s44, s4
            s_sub_u32 s44, s44, {5 * MAP["xf"]}
            """)
        return
    if MAP["ef"]:
        A(f"""
        s_mul_i32 s45, s39, 3
        s_add_u32 s43, s45, 2
        s_lshr_b32 s45, s45, 2
        s_lshr_b32 s43, s43, 2
        s_cmp_eq_u32 s43, s45
        s_cselect_b32 s43, 13, 27
        s_mul_i32 s45, s45, {14*128}
        s_add_u32 s45, s45, {FLG}
        s_mul_i32 s44, s38, {20*128}
        s_add_u32 s44, s44, {FLG + 672*128}
        """)
        return
    if MAP["lf"]:
        A(f"""
        s_mul_i32 s45, s39, {42*128}
        s_add_u32 s45, s45, {FLG}
        s_mul_i32 s44, s38, {20*128}
        s_add_u32 s44, s44, {FLG + 672*128}
        """)
        return
    A(f"""
    s_lshl_b32 s45, s38, 4
    s_add_u32 s45, s45, s39
    s_lshl_b32 s44, s45, 7
    s_add_u32 s44, s44, {XFLG}
    s_lshl_b32 s45, s45, 8
    s_add_u32 s45, s45, {FLG}
    """)


def spoll(A, name, soff, want, sleep, first=True, sd="s61"):
    A(f"s_mov_b32 s7, {POLL_MAX}")
    if not first: A(f"s_branch {name}_C")
    elif sleep: A(f"s_branch {name}_1")
    A.label(name)
    if sleep:
        A(f"s_sleep {sleep}")
        A.label(name + "_1")
    A(f"""
    s_sub_u32 s7, s7, 1
    s_cbranch_scc1 {name}_X
    s_buffer_load_dword {sd}, s[24:27], {soff} glc
    """)
    A.label(name + "_C")
    A(f"""
    s_waitcnt lgkmcnt(0)
    s_cmp_lt_u32 {sd}, {want}
    s_cbranch_scc1 {name}
    """)
    A.label(name + "_X")


def npoll(A, name, soff, want, sleep, sd):
    A(f"s_mov_b32 s7, {POLL_MAX}")
    A.label(name)
    A(f"""
    s_sub_u32 s7, s7, 1
    s_cbranch_scc1 {name}_X
    s_buffer_load_dword {sd}, s[24:27], {soff} glc
    """)
    for i in range(sleep):
        A(f"""
        s_sleep 1
        s_cmp_ge_u32 {sd}, {want}
        s_cbranch_scc1 {name}_X
        """)
    A(f"s_branch {name}")
    A.label(name + "_X")


def publish(A, opt, sflag, sshift):
    if MAP["ac"]:
        A(f"""
        v_mov_b32 v2, 1
        v_lshlrev_b32 v3, {sshift}, v1
        s_waitcnt vmcnt(0)
        s_mov_b64 exec, 0xffff
        buffer_atomic_add v2, v3, s[24:27], {sflag} offen sc1
        """)
        if opt.get("xv"):
            A("""
            s_mov_b64 exec, 1
            ds_add_u32 v4, v2 offset:8
            """)
        A("s_mov_b64 exec, -1")
        stamp(A, opt, 4)
        return
    A(f"""
    v_mov_b32 v2, 1
    v_lshlrev_b32 v3, {sshift}, v1
    s_waitcnt vmcnt(0)
    s_mov_b64 exec, {1 if MAP["lf"] else "0xffff"}
    buffer_store_dword v2, v3, s[24:27], {sflag} offen sc1
    """)
    if opt.get("xap"):
        A(f"""
        v_mov_b32 v3, {LFLAG}
        s_mov_b64 exec, 1
        ds_add_u32 v3, v2 offset:8
        """)
    A("s_mov_b64 exec, -1")
    stamp(A, opt, 4)


def gen_kernel(A, opt):
    A.label(KNAME)
    stamp_begin(A, opt)
    CP0 = opt.get("cp0", 0)

    def cp0():
        A("s_getpc_b64 s[4:5]")
        A.label("P1_PC")
        CQ = opt.get("cq", 0)
        if CQ:
            A(f"""
            s_bfe_u32 s6, s2, {hex(CQ << 16 | 3)}
            v_lshl_add_u32 v3, v0, {CQ}, s6
            v_lshlrev_b32 v3, 7, v3
            """)
        else: A("v_lshlrev_b32 v3, 7, v0")
        A("""
        v_min_u32 v3, CODE_END-P1_PC-4, v3
        global_load_dword v250, v3, s[4:5]
        """)
    if CP0 == 1:
        A("""
        s_cmp_ge_u32 s2, 256
        s_cbranch_scc1 K_EXIT
        """)
        cp0()
    A("""
    s_load_dwordx2 s[8:9], s[0:1], 8
    s_load_dwordx2 s[12:13], s[0:1], 40
    s_load_dwordx2 s[16:17], s[0:1], 16
    s_load_dwordx2 s[20:21], s[0:1], 24
    s_load_dwordx2 s[28:29], s[0:1], 0
    s_load_dwordx2 s[32:33], s[0:1], 32
    s_load_dwordx2 s[24:25], s[0:1], 64
    s_load_dwordx2 s[92:93], s[0:1], 56
    s_load_dwordx2 s[96:97], s[0:1], 48
    """)
    if CP0 != 1:
        A("""
        s_cmp_ge_u32 s2, 256
        s_cbranch_scc1 K_EXIT
        """)
    if CP0 == 2: cp0()
    A("""
    v_and_b32 v1, 63, v0
    v_lshrrev_b32 v2, 6, v0
    """)
    if not CP0:
        A("s_getpc_b64 s[4:5]")
        A.label("P1_PC")
    else:
        A("s_lshr_b32 s3, s2, 3")
    A(f"""
    v_readfirstlane_b32 s36, v2
    """)
    CP = opt.get("cp", 0)
    if CP0:
        A(f"""
        s_and_b32 s37, s2, 7
        s_cmp_lg_u32 s36, 7
        s_cbranch_scc1 P1_NOPF
        """)
    elif CP:
        A(f"""
        s_lshr_b32 s3, s2, 3
        s_lshl_b32 s37, s3, 2
        v_min_u32 v3, {CP-1}, v1
        v_add_u32 v3, s37, v3
        v_and_b32 v3, 127, v3
        v_lshlrev_b32 v3, 7, v3
        v_min_u32 v3, CODE_END-P1_PC-4, v3
        s_and_b32 s37, s2, 7
        s_cmp_lg_u32 s36, {opt.get("cpw", 7)}
        s_cbranch_scc1 P1_NOPF
        global_load_dword v250, v3, s[4:5]
        """)
    else:
        A(f"""
        v_lshlrev_b32 v3, 7, v1
        v_add_u32 v4, 0x2000, v3
        v_min_u32 v4, CODE_END-P1_PC-4, v4
        s_lshr_b32 s3, s2, 3
        s_and_b32 s37, s2, 7
        s_cmp_lg_u32 s36, 7
        s_cbranch_scc1 P1_NOPF
        global_load_dword v250, v3, s[4:5]
        global_load_dword v251, v4, s[4:5]
        """)
    A(f"""
    v_mov_b32 v2, 0
    v_mov_b32 v3, 0
    v_mov_b32 v4, {LFLAG}
    ds_write_b64 v4, v[2:3]
    """)
    if opt.get("nb") or opt.get("xw"): A("ds_write_b64 v4, v[2:3] offset:8")
    A.label("P1_NOPF")
    A(f"""
    s_mov_b32 s11, 0x00020000
    s_mov_b32 s15, 0x00020000
    s_mov_b32 s27, 0x00020000
    s_mov_b32 s26, {WS_USED}
    s_movk_i32 s94, 256
    s_mov_b32 s95, 0x00020000
    s_mov_b32 s98, {OUT_BYTES}
    s_mov_b32 s99, 0x00020000
    v_lshlrev_b32 v5, 4, v1
    """)
    if MAP["xf"]: A("s_mov_b32 s62, 0")
    A("""
    s_cmp_ge_u32 s3, 21
    s_cbranch_scc1 P1_XR
    """)
    (gen_w2p if opt.get("px") else gen_w2)(A, opt)
    A.label("P1_XR")
    gen_xr(A, opt)
    (gen_p2d if opt.get("dy") else gen_p2)(A, opt)
    A.label("K_EXIT")
    stamp_end(A, opt)


def rr_share(A, v, t):
    A(f"""
    v_readfirstlane_b32 s63, {v}
    v_mov_b32 v{t}, {LFLAG}
    s_lshl_b32 s63, s63, 20
    v_mov_b32 v{t+1}, s63
    ds_write_b32 v{t}, v{t+1} offset:16
    """)


def rr_ask(A, t):
    A(f"""
    v_mov_b32 v{t}, {LFLAG}
    ds_read_b32 v{t}, v{t} offset:16
    """)


def gate_addr(A, v, m=7):
    A(f"""
    v_and_b32 {v}, {m}, v1
    v_lshlrev_b32 {v}, 2, {v}
    """)


def gen_w2(A, opt):
    NQ = 2
    SH = opt.get("sh", 0)
    RING = 3 * VSTAGE
    RG = opt.get("rg", 2)
    sW, sLOC, sXCD = "s36", "s3", "s37"
    sMI, sNI = "s40", "s41"
    sC = "s49"
    sVOFS = "s43"
    vVO = 6
    if opt.get("cst") or "fst" in opt: A("s_memtime s[88:89]\nv_mov_b32 v230, 0")
    A(f"""
    s_mul_i32 s4, {sLOC}, 171
    s_lshr_b32 s4, s4, 9
    s_mul_i32 s5, s4, 3
    s_sub_u32 s5, {sLOC}, s5
    s_lshr_b32 s6, {sXCD}, 2
    s_mul_i32 s6, s6, 7
    s_add_u32 {sMI}, s6, s4
    s_and_b32 s6, {sXCD}, 3
    s_mul_i32 s6, s6, 3
    s_add_u32 {sNI}, s6, s5
    s_mul_i32 s42, {sMI}, 3
    s_mov_b32 s57, s5
    """)
    RL = opt.get("rl", 0)
    if RL:
        A(f"""
        s_add_u32 s58, s4, s5
        s_mul_i32 s6, s58, 171
        s_lshr_b32 s6, s6, 9
        s_mul_i32 s6, s6, 3
        s_sub_u32 s58, s58, s6
        s_cmp_ge_u32 s4, 3
        s_cselect_b32 s6, 3, 2
        s_cmp_eq_u32 s58, 2
        s_cselect_b32 s58, s6, s58
        """)
    A(f"""
    s_sub_u32 s4, {sW}, 4
    s_cmp_lt_u32 s4, 3
    s_cbranch_scc1 W2_DEQ
    s_mov_b32 s14, {V_BYTES}
    v_lshrrev_b32 v2, 4, v1
    v_and_b32 v3, 15, v1
    v_lshlrev_b32 v4, 1, v2
    v_xor_b32 v3, v3, v4
    v_lshlrev_b32 v3, 4, v3
    v_mul_u32_u24 v4, 0xc00, v2
    v_add_u32 v{vVO}, v3, v4
    v_add_u32 v{vVO+1}, 11264, v{vVO}
    v_xor_b32 v3, 0x80, v{vVO}
    v_add_u32 v{vVO+2}, {2*11264}, v3
    v_add_u32 v{vVO+3}, {3*11264}, v3
    s_lshl_b32 {sVOFS}, {sNI}, 8
    s_cmp_lt_u32 {sW}, 4
    s_cbranch_scc1 W2_MFMA
    """)

    def v_group():
        for j in range(4):
            A(f"buffer_load_dwordx4 v{vVO+j}, s[12:15], {sVOFS} offen offset:{1024*j} lds")

    GPC = opt.get("gpc", 2 if SH else 4)
    VR = opt.get("vr", 0)
    sLO = [80, 81, 82, 83, 44, 45, 46, 47]
    if VR:
        A(f"""
        s_lshr_b32 s6, {sXCD}, 2
        s_xor_b32 s6, s6, {1 if VR == 2 else 0}
        s_lshl_b32 s6, s6, 2
        """)
        for g in range(7, -1, -1):
            if VR == 1:
                A(f"""
                s_add_u32 s5, {sMI}, {g}
                s_and_b32 s5, s5, 7
                """)
            else:
                A(f"""
                s_add_u32 s5, {sMI}, {g}
                s_and_b32 s5, s5, 3
                s_or_b32 s5, s5, {g & 4}
                s_xor_b32 s5, s5, s6
                """)
            A(f"""
            s_lshl_b32 s{sLO[g]}, s5, 12
            s_mul_i32 s5, s5, {16*3072}
            """)
            for j in range(4):
                A(f"v_add_u32 v{vVO+4*g+j}, s5, v{vVO+j}")
        A(f"s_mov_b32 s48, {VSTAGE}")
    else:
      for g in range(1, 8):
        for j in range(4):
            A(f"v_add_u32 v{vVO+4*g+j}, {g*16*3072}, v{vVO+j}")
    gate_addr(A, "v40", 15 if opt.get("fw") else 7)
    LP, LG = opt.get("lp", 0), opt.get("lg", 1)
    A(f"""
    s_mov_b32 m0, {VSTAGE}
    s_mov_b32 {sC}, 1
    """)
    if RL:
        A(f"""
        s_cmp_eq_u32 s58, 3
        s_cselect_b32 s59, {VSTAGE}, 0
        s_cselect_b32 s60, 393216, 0
        s_sub_u32 m0, m0, s59
        s_sub_u32 {sVOFS}, {sVOFS}, s60
        """)
    A("s_waitcnt lgkmcnt(0)")
    stamp(A, opt, 1)
    cst(A, opt, 0, 49)
    ST = 7 if RL else opt.get("st", 0)
    if ST & 1:
        cst(A, opt, 0, 50)
        A("s_barrier")
        cst(A, opt, 0, 51)
        A(f"s_setprio {opt.get('lpr', 3)}")
    A.label("W2L_LOOP")
    A(f"""
    s_add_u32 {sVOFS}, {sVOFS}, 393216
    s_cmp_lg_u32 {sC}, {GPC}
    s_cbranch_scc1 W2L_NG
    buffer_load_dword v42, v40, {DBG}, 0 offen sc1
    """)
    A.label("W2L_NG")
    FL_ = Fst(A, opt, "l", True)
    FL_()
    if opt.get("fl") == 2:
        A(f"""
        s_cmp_lg_u32 {sC}, {opt.get("fst", 0) + 2}
        s_cbranch_scc1 W2L_FL2
        """)
        for n_ in (28, 24, 20, 16, 12, 8, 4, 0):
            A(f"s_waitcnt vmcnt({n_})")
            FL_()
        A.label("W2L_FL2")
    nsleep(A, opt.get("ld", 0))
    if opt.get("ld11"):
        A(f"""
        s_cmp_lg_u32 {sC}, 11
        s_cbranch_scc1 W2L_LD
        s_sleep {opt["ld11"]}
        """)
        A.label("W2L_LD")
    for g in range(8):
        if VR: A(f"s_add_u32 m0, s48, s{sLO[g]}\ns_nop 0")
        if g == 6: A("s_waitcnt vmcnt(54)")
        for j in range(4):
            A(f"buffer_load_dwordx4 v{vVO+4*g+j}, s[12:15], {sVOFS} offen offset:{1024*j} lds")
            if j == 3 and not VR: A("s_add_u32 m0, m0, 4096")
            if j == 3 and g < 7 and not VR: A("s_nop 0")
            if j == 3 and (not opt.get("fl") or g in (0, 3, 7)): FL_()
            if opt.get("lpa") and (4*g+j+1) % opt.get("lpg", 1) == 0:
                n_ = opt["lpa"]
                while n_ > 0:
                    A(f"s_nop {min(n_, 16) - 1}"); n_ -= 16
    if VR:
        assert not LP and not RL
        A(f"""
        s_add_u32 s48, s48, {VSTAGE}
        s_cmp_ge_u32 s48, {RING}
        s_cselect_b32 s48, 0, s48
        """)
    else:
        A(f"""
        s_cmp_ge_u32 m0, {RING}
        s_cselect_b32 m0, 0, m0
        """)
    if RL:
        A(f"""
        s_cmp_eq_u32 s59, 0
        s_cbranch_scc1 W2L_R
        s_add_u32 m0, m0, s59
        s_add_u32 {sVOFS}, {sVOFS}, s60
        s_mov_b32 s59, 0
        s_waitcnt vmcnt(0)
        """)
        A.label("W2L_R")
    if not ST & 1:
        A(f"""
        s_cmp_lg_u32 {sC}, 1
        s_cbranch_scc1 W2L_NT
        """)
        cst(A, opt, 0, 50)
        A("s_barrier")
        cst(A, opt, 0, 51)
        A(f"s_setprio {opt.get('lpr', 3)}")
        if opt.get("v2e"): A("s_branch W2L_NB")
        A.label("W2L_NT")
        if opt.get("v2e"):
            A(f"""
            s_cmp_lg_u32 {sC}, 2
            s_cbranch_scc1 W2L_N2
            s_barrier
            """)
            A.label("W2L_N2")
    cst(A, opt, sC, 31)
    A(f"""
    s_waitcnt vmcnt(32)
    s_cmp_lg_u32 {sC}, {GPC}
    s_cbranch_scc1 W2L_G_X
    """)
    poll_check(A, "v42", 0, "W2L_GS")
    A.label("W2L_G_X")
    FL_()
    if opt.get("fl") == 1:
        A(f"""
        s_cmp_lg_u32 {sC}, {opt.get("fst", 0) + 2}
        s_cbranch_scc1 W2L_FL
        """)
        for n_ in (31, 28, 24, 20, 16, 12, 8, 4, 0):
            A(f"s_waitcnt vmcnt({n_})")
            FL_()
        A.label("W2L_FL")
    FL_.save(sC, opt.get("fst", 0) + 2, "L")
    cst(A, opt, sC, 15)
    A("s_barrier")
    cst(A, opt, sC, -1)
    A.label("W2L_NB")
    A(f"""
    s_add_u32 {sC}, {sC}, 1
    s_cmp_lt_u32 {sC}, {opt.get('nch', 12) - (1 if LP else 0)}
    s_cbranch_scc1 W2L_LOOP
    """)
    if LP:
        A(f"s_add_u32 {sVOFS}, {sVOFS}, 393216")
        for g in range(8):
            if g == 6: A("s_waitcnt vmcnt(54)")
            for j in range(4):
                A(f"buffer_load_dwordx4 v{vVO+4*g+j}, s[12:15], {sVOFS} offen offset:{1024*j} lds")
                if j == 3: A("s_add_u32 m0, m0, 4096")
                if (4 * g + j + 1) % LG == 0 and 4 * g + j < 31:
                    n = LP
                    while n > 0:
                        A(f"s_nop {min(n, 16) - 1}"); n -= 16
                elif j == 3 and g < 7: A("s_nop 0")
        cst(A, opt, sC, 31)
        A("s_waitcnt vmcnt(32)")
        cst(A, opt, sC, 15)
        A("s_barrier")
        cst(A, opt, sC, -1)
    EF = MAP["ef"]

    def early_flag():
        nsleep(A, opt.get("pd", 0))
        A(f"""
        s_mov_b64 exec, 1
        buffer_store_dword v41, v40, s[24:27], s51 offen sc1
        s_mov_b64 exec, -1
        """)
        stamp(A, opt, 4)
    if EF:
        A(f"""
        s_mul_i32 s51, {sNI}, 14
        s_add_u32 s51, s51, {sMI}
        s_lshl_b32 s51, s51, 7
        s_add_u32 s51, s51, {FLG}
        v_mov_b32 v41, 1
        """)
        if EF == 10: early_flag()
        A(f"""
        s_waitcnt vmcnt({1 if EF == 10 else 0})
        s_barrier
        """)
        if EF == 11: early_flag()
        A("s_barrier")
        if EF == 12: early_flag()
        A("s_setprio 0")
    elif opt.get("nb"):
        A("s_setprio 0")
        if opt["nb"] == 2 and MAP["ac"]:
            p2_tile(A)
            nsleep(A, opt.get("xpd", 0))
            A(f"""
            s_buffer_load_dword s61, s[24:27], s44 glc
            v_mov_b32 v4, {LFLAG}
            v_mov_b32 v3, 1
            s_waitcnt vmcnt(0) lgkmcnt(0)
            s_cmp_lt_u32 s61, 20
            s_cbranch_scc1 W2L_NX
            ds_write_b32 v4, v3
            s_waitcnt lgkmcnt(0)
            """)
            A.label("W2L_NX")
        elif opt["nb"] == 2:
            p2_tile(A)
            A(f"""
            v_min_u32 v2, 19, v1
            v_lshlrev_b32 v2, 7, v2
            buffer_load_dword v3, v2, s[24:27], s44 offen sc1
            v_mov_b32 v4, {LFLAG}
            s_waitcnt vmcnt(0)
            """)
            poll_check(A, "v3", 0, "W2L_NX")
            A("""
            ds_write_b32 v4, v3
            s_waitcnt lgkmcnt(0)
            """)
            A.label("W2L_NX")
        A("""
        s_waitcnt vmcnt(0)
        s_barrier
        """)
    else:
        A(f"""
        s_setprio 0
        s_waitcnt vmcnt(0)
        s_barrier
        s_barrier
        """)
    cst_out(A, opt)
    A("s_branch P2_MM")
    A.label("W2L_GS")
    A(f"s_mov_b32 s7, {POLL_MAX}")
    A.label("W2L_G")
    A(f"""
    s_sub_u32 s7, s7, 1
    s_cbranch_scc1 W2L_G_X
    buffer_load_dword v42, v40, {DBG}, 0 offen sc1
    s_waitcnt vmcnt(0)
    """)
    poll_check(A, "v42", 0, "W2L_G")
    A("s_branch W2L_G_X")
    A.label("W2_DEQ")
    sB = "s38"
    sQOFS = "s43"
    vQO = 6
    vAW = 14
    vTB = 22
    U_ = 24
    Ft = 40
    O = 48
    vQ = 52
    QS = 32
    vAP = 116
    vP = 124
    vPL, vPA = 156, 157
    sCS, sPK, sQF = "s39", "s45", "s46"
    A(f"""
    s_mov_b32 {sB}, s4
    s_add_u32 s4, s42, {sB}
    s_cmp_ge_u32 s4, 40
    s_cbranch_scc1 W2D_IDLE
    s_mul_i32 {sQOFS}, s4, {16*6144}
    """)
    if SH:
        A(f"""
        s_mul_i32 {sPK}, s4, {12*4096}
        s_add_u32 {sPK}, {sPK}, {SA + 2*4096}
        """)
    A(f"""
    s_lshr_b32 s6, s4, 1
    s_lshr_b32 s5, s42, 1
    s_sub_u32 s6, s6, s5
    s_mul_i32 s6, s6, 6144
    s_add_u32 s6, s6, {TBL}
    s_mov_b32 s10, {QW_BYTES}
    v_lshrrev_b32 v2, 5, v1
    v_and_b32 v3, 31, v1
    v_lshlrev_b32 v4, 4, v3
    v_mul_u32_u24 v{vQO}, 0x1800, v2
    v_add_u32 v{vQO}, v{vQO}, v4
    v_add_u32 v{vTB}, s6, v4
    """)
    QR = opt.get("qr", 3)
    A(f"s_mul_i32 s57, s57, {QR}")
    for i in range(7, -1, -1):
        A(f"""
        s_add_u32 s4, s57, {i}
        s_and_b32 s4, s4, 7
        s_mul_i32 s4, s4, 12288
        v_add_u32 v{vQO+i}, s4, v{vQO}
        """)
    A("s_waitcnt lgkmcnt(0)")
    stamp(A, opt, 1)
    cst(A, opt, 0, 49)

    def t_read(n):
        u = U_ + 8 * (n & 1)
        A(f"""
        ds_read_b128 {vr(u,4)}, v{vTB}
        ds_read_b128 {vr(u+4,4)}, v{vTB} offset:12288
        v_add_u32 v{vTB}, 512, v{vTB}
        """)

    if RL:
        A("""
        s_cmp_lg_u32 s58, 1
        s_cbranch_scc1 W2D_R0
        """)
        for i in range(8):
            A(f"buffer_load_dwordx4 {vr(vQ+QS+4*i,4)}, v{vQO+i}, s[8:11], {sQOFS} offen offset:512")
        A.label("W2D_R0")
    for u in range(1 if ST & 2 else NQ):
        for i in range(8):
            A(f"buffer_load_dwordx4 {vr(vQ+QS*u+4*i,4)}, v{vQO+i}, s[8:11], {sQOFS} offen offset:{512*u}")
    A(f"""
    s_add_u32 {sQOFS}, {sQOFS}, 512
    s_lshl_b32 s4, {sB}, 12
    s_add_u32 s4, s4, {ABASE}
    v_bfe_u32 v3, v1, 1, 4
    v_xor_b32 v4, v3, v2
    v_lshlrev_b32 v4, 4, v4
    v_lshl_add_u32 v4, v2, 8, v4
    v_and_b32 v3, 1, v1
    v_lshl_add_u32 v4, v3, 3, v4
    v_add_u32 v{vAW}, s4, v4
    """)
    if SH:
        for i in range(8):
            A(f"""
            v_xor_b32 v3, {32*i}, v{vAW}
            v_add_u32 v{vAP+i}, {512*i}, v3
            """)
        A(f"""
        s_mul_i32 {sQF}, {sMI}, 12
        s_add_u32 {sQF}, {sQF}, {sNI}
        s_lshl_b32 {sQF}, {sQF}, 2
        s_add_u32 {sQF}, {sQF}, {sB}
        s_lshl_b32 {sQF}, {sQF}, 6
        s_add_u32 {sQF}, {sQF}, {SFLG}
        s_movk_i32 {sCS}, 100
        v_max_u32 v{vPA}, {SH}, v1
        v_min_u32 v{vPA}, 11, v{vPA}
        v_lshlrev_b32 v{vPA}, 2, v{vPA}
        v_mov_b32 v{vPL}, 0
        """)
    for i in range(7, -1, -1):
        A(f"""
        s_add_u32 s4, s57, {i}
        s_and_b32 s4, s4, 7
        s_lshl_b32 s5, s4, 5
        s_lshl_b32 s4, s4, 9
        v_xor_b32 v3, s5, v{vAW}
        v_add_u32 v{vAW+i}, s4, v3
        """)
    A(f"s_mov_b32 {sC}, 0")
    cst(A, opt, 0, 50)
    if opt.get("cst") and not ST & 2:
        A("s_waitcnt vmcnt(8)")
        cst(A, opt, 0, 52)
    A("s_barrier")
    cst(A, opt, 0, 51)
    A(f"s_setprio {opt.get('dpr', 3)}")
    t_read(0)
    if ST & 2:
        if RL:
            A("""
            s_cmp_lg_u32 s58, 1
            s_cbranch_scc1 W2D_R1
            s_waitcnt vmcnt(0)
            s_branch W2D_R2
            """)
            A.label("W2D_R1")
        for i in range(8):
            A(f"buffer_load_dwordx4 {vr(vQ+QS+4*i,4)}, v{vQO+i}, s[8:11], {sQOFS} offen")
        if RL: A.label("W2D_R2")
        if opt.get("cst"):
            cst(A, opt, 0, 53)
            A("s_waitcnt vmcnt(8)")
            cst(A, opt, 0, 52)
    A("s_waitcnt lgkmcnt(0)")
    UN = 2

    def sload(n, sofs):
        for j in range(4):
            A(f"buffer_load_dwordx4 {vr(vP+16*n+4*j,4)}, v5, s[24:27], {sofs} offen offset:{1024*j} sc1")

    if opt.get("pw"):
        assert not SH and not ST & 2
        OB = 160
        PW = opt["pw"]
        if not opt.get("tp"): t_read(1)
        A(f"""
        s_mov_b32 {sC}, -1
        s_waitcnt lgkmcnt(0)
        s_branch W2D_ENT
        .p2align 3
        """)
        A.label("W2D_LOOP")
        for n in range(2):
            FD = Fst(A, opt, "d", n == (opt.get("fst", 0) + 1) & 1)
            FD()
            for i in range(8):
                A(f"ds_write_b64 v{vAW+i}, {vr(OB+2*i,2)} offset:{ASTAGE*n}")
                if i in (3, 7): FD()
            if n == 1:
                A(f"""
                s_cmp_eq_u32 {sC}, 11
                s_cbranch_scc1 W2D_END
                """)
            TP = opt.get("tp", 0)
            if TP == 0: t_read(n)
            if n == 1: A.label("W2D_ENT")
            q = vQ + QS * (n ^ 1)
            S = U_ + 8 * (n ^ 1)
            A(f"""
            s_add_u32 {sQOFS}, {sQOFS}, 512
            s_cmp_lt_i32 {sC}, 9
            s_cbranch_scc1 W2D_NT{n}
            s_waitcnt vmcnt({8 if n == 1 else 0})
            """)
            A.label(f"W2D_NT{n}")
            for i in range(8):
                qq = q + 4 * i
                f = Ft + 4 * (i & 1)
                o = OB + 2 * i
                if i % RG == 0: A(f"s_waitcnt vmcnt({16 - RG})")
                A(f"""
                v_fma_f32 v{f}, v{qq}, v{S}, v{S+4}
                v_fma_f32 v{f+1}, v{qq+1}, v{S+1}, v{S+5}
                v_fma_f32 v{f+2}, v{qq+2}, v{S+2}, v{S+6}
                v_fma_f32 v{f+3}, v{qq+3}, v{S+3}, v{S+7}
                v_cvt_pk_bf16_f32 v{o}, v{f}, v{f+1}
                v_cvt_pk_bf16_f32 v{o+1}, v{f+2}, v{f+3}
                """)
                if i + 1 == TP: t_read(n)
                if (i + 1) % RG == 0:
                    FD()
                    A(f"s_cbranch_scc0 W2D_SK{n}_{i}")
                    for ii in range(i + 1 - RG, i + 1):
                        A(f"buffer_load_dwordx4 {vr(q+4*ii,4)}, v{vQO+ii}, s[8:11], {sQOFS} offen")
                    A.label(f"W2D_SK{n}_{i}")
                    FD()
            A("s_waitcnt lgkmcnt(0)")
            FD()
            FD.save(sC, opt.get("fst", 0) + 1, "D")
            A(f"s_add_u32 {sC}, {sC}, 1")
            if n == 1:
                A("s_cbranch_scc1 W2D_LOOP")
            cst(A, opt, sC, 15)
            A("s_barrier")
            cst(A, opt, sC, -1)
            if n == 1: A("s_branch W2D_LOOP")
            else: A(".p2align 3")
        A.label("W2D_END")
        A("""
        s_setprio 0
        s_waitcnt lgkmcnt(0)
        """)
        cst(A, opt, sC, 16)
        A("s_barrier")
        cst(A, opt, sC, 0)
        assert opt.get("nb")
        cst_out(A, opt)
        A("s_branch P2_MM")
        UN = 0
    else:
        A.label("W2D_LOOP")
    for n in range(UN):
        u = n % NQ
        q = vQ + QS * u
        S = U_ + 8 * (n & 1)
        if SH:
            A(f"""
            s_add_u32 s5, {sC}, {n}
            s_lshl_b32 s47, s5, 12
            s_add_u32 s47, s47, {sPK}
            s_cmp_ge_u32 s5, {sCS}
            s_cbranch_scc1 W2D_PK{n}
            """)
        FD = Fst(A, opt, "d", n == (opt.get("fst", 0) + 1) & 1)
        FD()
        t_read(n + 1)
        A(f"s_add_u32 {sQOFS}, {sQOFS}, 512")
        if SH:
            A(f"""
            s_add_u32 s6, s5, 1
            s_min_u32 s7, {sCS}, 12
            s_cmp_lt_u32 s6, s7
            s_waitcnt vmcnt(8)
            s_cbranch_scc1 W2D_NT{n}
            s_cmp_lt_u32 s6, 12
            s_waitcnt vmcnt(4)
            s_cbranch_scc1 W2D_NT{n}
            s_waitcnt vmcnt(0)
            """)
            A.label(f"W2D_NT{n}")
            A(f"""
            s_add_u32 s6, s5, 2
            s_cmp_lt_u32 {sCS}, 100
            s_cbranch_scc1 W2D_E{n}
            v_cmp_ne_u32 vcc, 0, v{vPL}
            s_max_u32 s7, s6, {SH}
            s_cmp_eq_u64 vcc, -1
            s_cselect_b32 {sCS}, s7, {sCS}
            s_cbranch_scc1 W2D_E{n}
            s_cmp_lt_u32 s5, {max(GPC, opt.get("sp0", 0))}
            s_cbranch_scc1 W2D_E{n}
            buffer_load_dword v{vPL}, v{vPA}, s[24:27], {sQF} offen sc1
            """)
            A.label(f"W2D_E{n}")
            A(f"""
            s_cmp_gt_u32 s6, 11
            s_cbranch_scc1 W2D_F{n}
            s_cmp_lt_u32 s6, {sCS}
            s_cbranch_scc1 W2D_F{n}
            """)
            sload(n, "s47")
            A.label(f"W2D_F{n}")
            A(f"""
            s_min_u32 s7, {sCS}, 12
            s_cmp_lt_u32 s6, s7
            """)
        else:
            A(f"""
            s_cmp_lt_u32 {sC}, {opt.get('nch', 12)-NQ-n+1}
            s_waitcnt vmcnt({8*(NQ-1)})
            s_cbranch_scc1 W2D_NT{n}
            s_waitcnt vmcnt({8*min(NQ-1, max(0, UN-1-n))})
            """)
            A.label(f"W2D_NT{n}")
            FD()
            A(f"s_cmp_lt_u32 {sC}, {opt.get('noq', opt.get('nch', 12))-NQ-n}")
        for i in range(8):
            qq = q + 4 * i
            f = Ft + 4 * (i & 1)
            o = O + 2 * (i & 1)
            WL = opt.get("wl", 0)
            if n == 1: WL = opt.get("wl1", WL)
            if WL: o = 160 + 2 * i
            if opt.get("bf") == 2:
                for j in range(4): A(f"v_bfe_u32 v{f+j}, v{qq+j}, 0, 3")
                for j in range(4): A(f"v_fma_f32 v{f+j}, v{f+j}, v{S+j}, v{S+4+j}")
                A(f"""
                v_cvt_pk_bf16_f32 v{o}, v{f}, v{f+1}
                v_cvt_pk_bf16_f32 v{o+1}, v{f+2}, v{f+3}
                """)
            elif opt.get("bf"):
                for j in range(4): A(f"v_bfe_u32 v{f+j}, v{qq+j}, 0, 3")
                A(f"""
                v_pk_fma_f32 {vr(f,2)}, {vr(f,2)}, {vr(S,2)}, {vr(S+4,2)}
                v_pk_fma_f32 {vr(f+2,2)}, {vr(f+2,2)}, {vr(S+2,2)}, {vr(S+6,2)}
                v_cvt_pk_bf16_f32 v{o}, v{f}, v{f+1}
                v_cvt_pk_bf16_f32 v{o+1}, v{f+2}, v{f+3}
                """)
            else:
              A(f"""
            v_fma_f32 v{f}, v{qq}, v{S}, v{S+4}
            v_fma_f32 v{f+1}, v{qq+1}, v{S+1}, v{S+5}
            v_fma_f32 v{f+2}, v{qq+2}, v{S+2}, v{S+6}
            v_fma_f32 v{f+3}, v{qq+3}, v{S+3}, v{S+7}
            v_cvt_pk_bf16_f32 v{o}, v{f}, v{f+1}
            v_cvt_pk_bf16_f32 v{o+1}, v{f+2}, v{f+3}
            """)
            if i + 1 == WL:
                for ii in range(WL): A(f"ds_write_b64 v{vAW+ii}, {vr(160+2*ii,2)} offset:{ASTAGE*(n&1)}")
            elif i + 1 > WL:
                A(f"ds_write_b64 v{vAW+i}, {vr(o,2)} offset:{ASTAGE*(n&1)}")
            FD()
            if (i + 1) % RG == 0:
                A(f"s_cbranch_scc0 W2D_SK{n}_{i}")
                for ii in range(i + 1 - RG, i + 1):
                    A(f"buffer_load_dwordx4 {vr(q+4*ii,4)}, v{vQO+ii}, s[8:11], {sQOFS} offen")
                A.label(f"W2D_SK{n}_{i}")
                FD()
        A("s_waitcnt lgkmcnt(0)")
        FD()
        FD.save(sC, (opt.get("fst", 0) + 1) & ~1, "D")
        if SH: A.label(f"W2D_J{n}")
        cst(A, opt, sC, 16 + n)
        A("s_barrier")
        cst(A, opt, sC, n)
    if UN:
        A(f"""
        s_add_u32 {sC}, {sC}, {UN}
        s_cmp_lt_u32 {sC}, {opt.get('nch', 12)}
        s_cbranch_scc1 W2D_LOOP
        """)
        A("s_setprio 0")
        if SH and opt.get("stamp"): A(f"s_mov_b32 s90, {sCS}")
        if not opt.get("nb"): A("s_barrier")
        cst_out(A, opt)
        A("s_branch P2_MM")
    if SH:
        for n in range(UN):
            A.label(f"W2D_PK{n}")
            A(f"""
            s_cmp_lt_u32 s5, 11
            s_waitcnt vmcnt(4)
            s_cbranch_scc1 W2D_PW{n}
            s_waitcnt vmcnt(0)
            """)
            A.label(f"W2D_PW{n}")
            for i in range(8):
                A(f"ds_write_b64 v{vAP+i}, {vr(vP+16*n+2*i,2)} offset:{ASTAGE*(n&1)}")
            A(f"""
            s_cmp_gt_u32 s5, 9
            s_waitcnt lgkmcnt(0)
            s_cbranch_scc1 W2D_J{n}
            """)
            sload(n, "s47")
            A(f"s_branch W2D_J{n}")
    A.label("W2D_IDLE")
    A(f"""
    s_mov_b32 {sC}, 0
    s_waitcnt lgkmcnt(0)
    """)
    A.label("W2D_IDL")
    A(f"""
    s_barrier
    s_add_u32 {sC}, {sC}, 1
    s_cmp_lt_u32 {sC}, {opt.get('nch', 12) + (1 if opt.get("nb") else 2)}
    s_cbranch_scc1 W2D_IDL
    s_branch P2_MM
    """)
    A.label("W2_MFMA")
    sCST = "s45"
    vAR = 10
    vBR = 14
    vT0, vT1 = 16, 17
    vST = 18
    vACC = 20
    vF = 44
    P = vF
    if ST & 8:
        A(f"""
        s_lshr_b32 s5, {sMI}, 1
        s_add_u32 s5, s5, {sW}
        s_and_b32 s5, s5, 3
        """)
    A(f"""
    s_lshl_b32 s4, {"s5" if ST & 8 else sW}, 13
    s_mov_b32 m0, s4
    s_mul_i32 s4, {"s5" if ST & 8 else sW}, {32*3072}
    s_add_u32 {sVOFS}, {sVOFS}, s4
    s_lshr_b32 s6, s42, 1
    s_mul_i32 s6, s6, 3072
    s_mov_b32 s18, {SC_BYTES}
    s_mov_b32 s19, 0x00020000
    s_mov_b32 s22, {SC_BYTES}
    s_mov_b32 s23, 0x00020000
    v_and_b32 v2, 0xff, v0
    v_lshlrev_b32 v19, 3, v2
    """)
    if ST & 4:
        A(f"""
        s_lshr_b32 s4, {sW}, 1
        s_lshl_b32 s4, s4, 11
        v_add_u32 v19, s4, v19
        s_mov_b32 s56, s6
        v_mov_b32 v{vT0}, v19
        """)
        if RL:
            A(f"""
            s_cmp_eq_u32 s58, 3
            s_cselect_b32 s4, {VSTAGE}, 0
            s_cselect_b32 s5, 393216, 0
            s_add_u32 m0, m0, s4
            s_add_u32 {sVOFS}, {sVOFS}, s5
            """)
        else:
            A(f"""
            s_add_u32 s58, s57, {sMI}
            s_and_b32 s58, s58, {1 if ST & 16 else 0}
            """)
    A("s_waitcnt lgkmcnt(0)")
    stamp(A, opt, 1)
    cst(A, opt, 0, 49)

    def v0_loads():
        v_group()
        A(f"""
        s_add_u32 m0, m0, 4096
        s_add_u32 {sVOFS}, {sVOFS}, {16*3072}
        """)
        v_group()
        if not RL: s12_loads()

    def s12_loads():
        for j in range(1, 3):
            A(f"""
            buffer_load_dwordx2 {vr(P+4*j,2)}, v{vT0}, s[16:19], s56 offen offset:{1024*j}
            buffer_load_dwordx2 {vr(P+4*j+2,2)}, v{vT0}, s[20:23], s56 offen offset:{1024*j}
            """)
    if ST & 4:
        A(f"""
        buffer_load_dwordx2 {vr(P,2)}, v19, s[16:19], s6 offen
        buffer_load_dwordx2 {vr(P+2,2)}, v19, s[20:23], s6 offen
        {"s_cmp_lt_u32 s58, 2" if RL else "s_cmp_lg_u32 s58, 0"}
        s_cbranch_scc1 W2M_VA
        """)
        v0_loads()
        A.label("W2M_VA")
        if RL: s12_loads()
    else:
        for j in range(2):
            A(f"""
            buffer_load_dwordx2 {vr(P+4*j,2)}, v19, s[16:19], s6 offen offset:{2048*j}
            buffer_load_dwordx2 {vr(P+4*j+2,2)}, v19, s[20:23], s6 offen offset:{2048*j}
            """)
        A(f"""
        s_add_u32 s6, s6, 4096
        buffer_load_dwordx2 {vr(P+8,2)}, v19, s[16:19], s6 offen
        buffer_load_dwordx2 {vr(P+10,2)}, v19, s[20:23], s6 offen
        """)
        v_group()
        A(f"""
        s_add_u32 m0, m0, 4096
        s_add_u32 {sVOFS}, {sVOFS}, {16*3072}
        """)
        v_group()
    A(f"""
    v_lshlrev_b32 v19, 1, v19
    v_add_u32 v19, {TBL}, v19
    v_and_b32 v2, 15, v1
    v_lshrrev_b32 v3, 4, v1
    v_xor_b32 v4, v2, v3
    v_lshlrev_b32 v4, 4, v4
    v_lshl_add_u32 v4, v2, 8, v4
    v_add_u32 v{vAR}, {ABASE}, v4
    v_xor_b32 v{vAR+1}, 64, v{vAR}
    v_xor_b32 v{vAR+2}, 128, v{vAR}
    v_xor_b32 v{vAR+3}, 192, v{vAR}
    v_bfe_u32 v2, v1, 2, 2
    v_and_b32 v4, 1, v3
    v_lshl_or_b32 v4, v4, 2, v2
    s_lshl_b32 s5, {sW}, 1
    v_xor_b32 v4, s5, v4
    v_lshlrev_b32 v4, 5, v4
    v_lshl_add_u32 v2, v3, 3, v2
    v_lshl_add_u32 v4, v2, 8, v4
    v_and_b32 v2, 3, v1
    v_lshl_add_u32 v{vBR}, v2, 3, v4
    v_xor_b32 v{vBR+1}, 32, v{vBR}
    s_mov_b32 {sCST}, 0
    s_mov_b32 {sC}, 0
    s_lshl_b32 s4, {sNI}, 2
    s_add_u32 s4, s4, {sW}
    s_mul_i32 s5, s4, 40
    s_add_u32 s5, s5, s42
    s_lshl_b32 s5, s5, 10
    s_add_u32 s50, s5, {W2F}
    s_mul_i32 s5, s4, 171
    s_lshr_b32 s5, s5, 9
    s_mul_i32 s6, s5, 3
    s_sub_u32 s6, s4, s6
    s_mul_i32 s6, s6, 14
    s_add_u32 s6, s6, {sMI}
    s_lshl_b32 s6, s6, 2
    s_lshl_b32 s5, s5, 8
    s_add_u32 s5, s5, s6
    s_add_u32 s51, s5, {FLG}
    """)
    if MAP["ac"]:
        A(f"""
        s_mul_i32 s51, s4, 171
        s_lshr_b32 s51, s51, 9
        s_lshl_b32 s51, s51, 7
        s_add_u32 s51, s51, {FLG}
        """)
    elif MAP["lf"]:
        A(f"""
        s_mul_i32 s51, s4, 14
        s_add_u32 s51, s51, {sMI}
        s_lshl_b32 s51, s51, 7
        s_add_u32 s51, s51, {FLG}
        """)
    A(f"""
    s_mov_b32 s53, {11 if MAP["ac"] else 12}
    s_mov_b32 s54, {hex((127+149-QE) << 23)}
    s_mov_b32 s55, {hex((127+149-QE) << 23)}
    s_mov_b32 s46, 0xffff0000
    s_mov_b32 s47, {hex((127+QE) << 23)}
    s_mov_b32 s48, {hex(0x80000000 | ((127+QE-149) << 23))}
    v_bfe_u32 v3, v1, 4, 1
    v_lshrrev_b32 v4, 5, v1
    v_and_b32 v{vST}, 15, v1
    v_lshl_add_u32 v{vST}, v3, 5, v{vST}
    v_lshl_add_u32 v{vST}, v4, 4, v{vST}
    v_lshlrev_b32 v{vST}, 4, v{vST}
    """)
    FC = opt.get("fc", 4)
    if FC > 50: FC = -1
    if opt.get("fw"): EF = 0
    if EF and FC < 0:
        assert not (ST & 4) and not RL
        for i in range(4): A(f"v_mov_b32 v{204+i}, -1")
        A(f"""
        s_cmp_eq_u32 {sMI}, 13
        s_cselect_b32 s4, 0, 1024
        s_add_u32 s5, s50, s4
        s_add_u32 s4, s5, s4
        buffer_store_dwordx4 v[204:207], v5, s[24:27], s50 offen sc1
        buffer_store_dwordx4 v[204:207], v5, s[24:27], s5 offen sc1
        buffer_store_dwordx4 v[204:207], v5, s[24:27], s4 offen sc1
        """)
    for i in range(0, 24, 2):
        A(f"v_mov_b64 {vr(vACC+i,2)}, 0")
    for i in range(80 - 20 * opt.get("ml", 4), 80, 2):
        A(f"v_mov_b64 {vr(vF+80+i,2)}, 0")
    if RL:
        A(f"""
        s_cmp_ge_u32 s58, 2
        s_cbranch_scc1 W2M_VB
        s_waitcnt vmcnt(0)
        """)
        A.label("W2M_VB")
    elif ST & 4:
        A(f"""
        s_cmp_eq_u32 s58, 0
        s_cbranch_scc1 W2M_VB
        """)
        nsleep(A, opt.get("vd", 0))
        v0_loads()
        A.label("W2M_VB")
    for j in range(3):
        q = P + 4 * j
        u = P + 16 + 8 * j
        if RL and j == 1:
            A(f"""
            s_cmp_ge_u32 s58, 2
            s_cbranch_scc1 W2M_VC
            s_setprio 3
            """)
            v0_loads()
            A("s_setprio 0")
            A("s_branch W2M_VD")
            A.label("W2M_VC")
            A("s_waitcnt vmcnt(0)")
            A.label("W2M_VD")
        if RL:
            if j == 0: A("s_waitcnt vmcnt(12)")
        elif ST & 4:
            A(f"s_waitcnt vmcnt({(12, 2, 0)[j]})")
            if j == 1: cst(A, opt, 0, 52)
        else:
            A(f"s_waitcnt vmcnt({8 + 4 - 2*j + (3 if EF and FC < 0 else 0)})")
        if j == 0: cst(A, opt, 0, 53)
        scale8(A, u, q, q + 2)
        TS = 2048 if ST & 4 else 4096
        A(f"""
        ds_write_b128 v19, {vr(u,4)} offset:{TS*j}
        ds_write_b128 v19, {vr(u+4,4)} offset:{TS*j+12288}
        """)
        if j == (0 if ST & 4 else 2):
            A("s_waitcnt lgkmcnt(0)")
            cst(A, opt, 0, 50)
            A("s_barrier")
            cst(A, opt, 0, 51)
    if RL:
        A("s_waitcnt vmcnt(0) lgkmcnt(0)")
        cst(A, opt, 0, 52)
    elif ST & 4:
        A("s_waitcnt lgkmcnt(0)")
    else:
        A(f"s_waitcnt vmcnt({3 if EF and FC < 0 else 0})")
        cst(A, opt, 0, 52)

    def reads(s, buf):
        fa = vF + buf * 80 + 20 * s
        fb = fa + 12
        r = []
        for b in range(3):
            r.append(f"ds_read_b128 {vr(fa+4*b,4)}, v{vAR+s} offset:{4096*b + ASTAGE*buf}")
        for t in range(2):
            for u in range(2):
                r.append(f"ds_read_b64_tr_b16 {vr(fb+4*t+2*u,2)}, v{vT0+t} offset:{(32*s+4*u)*256}")
        return r

    def mfmas(s, buf):
        fa = vF + buf * 80 + 20 * s
        fb = fa + 12
        r = []
        for b in range(3):
            for t in range(2):
                acc = vACC + (b * 2 + t) * 4
                r.append(f"v_mfma_f32_16x16x32_bf16 {vr(acc,4)}, {vr(fa+4*b,4)}, {vr(fb+4*t,4)}, {vr(acc,4)}")
        return r

    if EF and FC >= 0:
        for i in range(4): A(f"v_mov_b32 v{204+i}, -1")
    A.label("W2M_LOOP")
    if EF and FC >= 0:
        A(f"""
        s_waitcnt vmcnt(0)
        s_cmp_lg_u32 {sC}, {opt.get("fc", 4)}
        s_cbranch_scc1 W2M_NF
        buffer_store_dwordx4 v[204:207], v5, s[24:27], s50 offen sc1
        s_cmp_eq_u32 {sMI}, 13
        s_cbranch_scc1 W2M_NF
        buffer_store_dwordx4 v[204:207], v5, s[24:27], s50 offen offset:1024 sc1
        buffer_store_dwordx4 v[204:207], v5, s[24:27], s50 offen offset:2048 sc1
        """)
        A.label("W2M_NF")
        assert opt.get("fc", 4) in (0, 2, 4, 6, 8)
    for buf in range(2):
        A(f"""
        v_add_u32 v{vT0}, {sCST}, v{vBR}
        v_add_u32 v{vT1}, {sCST}, v{vBR+1}
        s_add_u32 {sCST}, {sCST}, {VSTAGE}
        s_cmp_ge_u32 {sCST}, {RING}
        s_cselect_b32 {sCST}, 0, {sCST}
        """)
        cst(A, opt, sC, 16 + buf)
        A("s_barrier")
        cst(A, opt, sC, buf)
        rd = sum((reads(s, buf) for s in range(4)), [])
        ML = opt.get("ml", 4)
        mf = []
        for s in range(4):
            g = s - ML
            for k_, m in enumerate(mfmas(g % 4, buf ^ 1 if g < 0 else buf)):
                mf.append((m, -1 if g < 0 else 7 * g + (4 if k_ == 0 else 6)))
        FR = opt.get("fr", 4)
        RP = opt.get("rp", 1)
        seq = rd[:FR]
        ri = FR
        got = -1
        for mi_, (m, need) in enumerate(mf):
            while ri <= min(27, need + (opt.get("ra2", 0) if need >= 0 else 0)):
                seq.append(rd[ri]); ri += 1
            if need > got:
                seq.append(f"s_waitcnt lgkmcnt({min(15, min(ri, 28) - need - 1)})")
                got = need
            seq.append(m)
            if mi_ + 1 < opt.get("f0", 0): continue
            seq += rd[ri:ri + RP]
            ri += RP
        seq += rd[ri:]
        FM = Fst(A, opt, "m", buf == opt.get("fst", 0) & 1)
        FM()
        for xi_, x in enumerate(seq):
            A(x)
            if xi_ % 4 == 3 and FM.n < 14: FM()
        A("s_waitcnt lgkmcnt(0)")
        FM()
        FM.save(sC, opt.get("fst", 0) & ~1, "M")
        if (opt.get("stamp") or opt.get("probe") == 2) and buf == 0:
            A(f"""
            s_cmp_lg_u32 {sC}, 0
            s_cbranch_scc1 W2M_ST
            """)
            stamp(A, opt, 2, True)
            A.label("W2M_ST")
    if EF and FC < 0: A("s_waitcnt vmcnt(0)")
    A(f"""
    s_add_u32 {sC}, {sC}, 2
    s_cmp_lt_u32 {sC}, {opt.get('nch', 12)}
    s_cbranch_scc1 W2M_LOOP
    s_setprio 3
    """)
    if opt.get("nb"):
        A(f"""
        v_mov_b32 v2, 1
        v_mov_b32 v4, {LFLAG}
        s_mov_b64 exec, 1
        ds_add_u32 v4, v2 offset:8
        s_mov_b64 exec, -1
        """)
    else:
        A("s_barrier")
    for s_ in range(4 - ML, 4):
        for m in mfmas(s_, 1): A(m)
    if opt.get("nb"): A("ds_read_b32 v3, v4 offset:8")
    A("s_nop 7")
    stamp(A, opt, 3)
    for b in range(3):
        a = vACC + 8 * b
        o = vF + 4 * b
        for j in range(4):
            A(f"v_pk_mul_f32 {vr(a+2*j,2)}, {vr(a+2*j,2)}, s[54:55]")
        A(f"""
        v_cvt_pk_bf16_f32 v{o}, v{a}, v{a+1}
        v_cvt_pk_bf16_f32 v{o+1}, v{a+2}, v{a+3}
        v_cvt_pk_bf16_f32 v{o+2}, v{a+4}, v{a+5}
        v_cvt_pk_bf16_f32 v{o+3}, v{a+6}, v{a+7}
        s_nop 1
        v_permlane32_swap_b32 v{o}, v{o+2}
        v_permlane32_swap_b32 v{o+1}, v{o+3}
        buffer_store_dwordx4 {vr(o,4)}, v{vST}, s[24:27], s50 offen offset:{1024*b} sc1
        """)
        if b == 0:
            A(f"""
            s_cmp_eq_u32 {sMI}, 13
            s_cbranch_scc1 W2M_END
            """)
    A.label("W2M_END")
    if opt.get("xw") or opt.get("xb"):
        A(f"""
        v_mov_b32 v2, 1
        v_mov_b32 v4, {LFLAG}
        s_mov_b64 exec, 1
        ds_add_u32 v4, v2 offset:12
        s_mov_b64 exec, -1
        """)
    EF = MAP["ef"]
    cst_out(A, opt)
    if EF: stamp(A, opt, 4)
    if opt.get("nb"):
        A.label("W2M_RC")
        A("""
        s_waitcnt lgkmcnt(0)
        v_readfirstlane_b32 s4, v3
        s_cmp_eq_u32 s4, 4
        s_cbranch_scc1 P2_PUB
        ds_read_b32 v3, v4 offset:8
        s_branch W2M_RC
        """)
        return
    A("s_branch P2_LD" if EF else "s_branch P2_PUB")


PV = 81920
PA = PV
PP = PA + 4 * ASTAGE
PXF = FLG + 65536
PXB = SA


def gen_w2p(A, opt):
    NQ = 2
    RG = opt.get("rg", 2)
    sW, sLOC, sXCD = "s36", "s3", "s37"
    sMI, sNI, sH = "s40", "s41", "s58"
    sC = "s49"
    sVOFS = "s43"
    vVO = 6
    assert MAP["ac"] and opt.get("nb") == 2
    PB = opt.get("pb", 0)
    H2 = opt.get("h2", 0)
    assert PB or not H2
    if opt.get("cst"): A("s_memtime s[88:89]\nv_mov_b32 v230, 0")
    A(f"""
    s_mul_i32 s4, {sLOC}, 171
    s_lshr_b32 s4, s4, 9
    s_mul_i32 s5, s4, 3
    s_sub_u32 s57, {sLOC}, s5
    s_lshr_b32 s6, {sXCD}, 2
    s_mul_i32 s6, s6, 7
    s_add_u32 {sMI}, s6, s4
    s_and_b32 s6, {sXCD}, 1
    s_mul_i32 s6, s6, 3
    s_add_u32 s6, s6, s57
    s_bfe_u32 {sH}, {sXCD}, 0x10001
    s_lshl1_add_u32 {sNI}, s6, {sH}
    s_mul_i32 s42, {sMI}, 3
    s_sub_u32 s4, {sW}, 4
    s_cmp_lt_u32 s4, 3
    s_cbranch_scc1 W2_DEQ
    s_mov_b32 s14, {V_BYTES}
    v_lshrrev_b32 v2, 4, v1
    v_and_b32 v3, 15, v1
    v_lshlrev_b32 v4, 1, v2
    v_xor_b32 v3, v3, v4
    v_lshlrev_b32 v3, 4, v3
    v_mul_u32_u24 v4, 0xc00, v2
    v_add_u32 v{vVO}, v3, v4
    v_add_u32 v{vVO+1}, 11264, v{vVO}
    v_xor_b32 v3, 0x80, v{vVO}
    v_add_u32 v{vVO+2}, {2*11264}, v3
    v_add_u32 v{vVO+3}, {3*11264}, v3
    s_lshl_b32 {sVOFS}, {sNI}, 8
    s_mul_i32 s4, {sH}, {768*3072}
    s_add_u32 {sVOFS}, {sVOFS}, s4
    s_cmp_lt_u32 {sW}, 4
    s_cbranch_scc1 W2_MFMA
    """)

    def commit(sidx, add):
        for r, a in ((80, add), (82, add + 24 if add < 54 else 55)):
            A(f"""
            s_add_u32 s86, {sidx}, {a}
            v_cmp_eq_u32 vcc, s86, v1
            v_mov_b32 v231, s{r}
            v_cndmask_b32 v230, v230, v231, vcc
            """)

    MW = [0]

    def bar(sidx, add):
        if opt.get("cst") == 3:
            if MW[0] and add > 0: A(f"v_writelane_b32 v230, s80, {add - 1}")
            A("s_barrier")
            if MW[0]: A("s_memtime s[80:81]")
            if MW[0] and add == 24: A("s_waitcnt lgkmcnt(0)\nv_writelane_b32 v230, s80, 54")
            return
        if opt.get("cst") == 2:
            commit(sidx, add - 1)
            A("""
            s_memtime s[82:83]
            s_barrier
            s_memtime s[80:81]
            """)
            if (sidx, add) == (0, 24):
                A("s_waitcnt lgkmcnt(0)")
                commit(0, 54)
            return
        cst(A, opt, sidx, 24 + add if (sidx, add) != (0, 24) else 55)
        A("s_barrier")
        cst(A, opt, sidx, add if (sidx, add) != (0, 24) else 54)

    GPC = opt.get("gpc", 8)
    for g in range(1, 4):
        for j in range(4):
            A(f"v_add_u32 v{vVO+4*g+j}, {g*16*3072}, v{vVO+j}")
    gate_addr(A, "v40", 7)
    A(f"""
    s_mov_b32 m0, 32768
    s_mov_b32 {sC}, 2
    s_add_u32 {sVOFS}, {sVOFS}, {128*3072}
    s_lshl_b32 s48, {sH}, 9
    s_sub_u32 s48, {(256 + 64*3072 - 768*3072) % (1 << 32)}, s48
    s_waitcnt lgkmcnt(0)
    """)
    stamp(A, opt, 1)
    cst(A, opt, 0, 49)
    A.label("W2L_LOOP")
    A(f"""
    s_cmp_lg_u32 {sC}, {GPC}
    s_cbranch_scc1 W2L_NG
    buffer_load_dword v42, v40, {DBG}, 0 offen sc1
    """)
    A.label("W2L_NG")
    for g in range(4):
        if g == 3: A("s_waitcnt vmcnt(58)")
        for j in range(4):
            A(f"buffer_load_dwordx4 v{vVO+4*g+j}, s[12:15], {sVOFS} offen offset:{1024*j} lds")
        A("s_add_u32 m0, m0, 4096")
        if g < 2: A("s_nop 0")
    PE = opt.get("pe", 3)
    A(f"""
    s_cmp_ge_u32 m0, {PV}
    s_cselect_b32 m0, 0, m0
    s_cmp_eq_u32 {sC}, 11
    s_cselect_b32 s4, s48, {64*3072}
    s_add_u32 {sVOFS}, {sVOFS}, s4
    s_cmp_gt_u32 {sC}, {PE}
    s_cbranch_scc1 W2L_SY
    s_cmp_lt_u32 {sC}, {PE}
    s_cbranch_scc1 W2L_NB
    """)
    cst(A, opt, 0, 50)
    A("s_barrier")
    cst(A, opt, 0, 51)
    A(f"""
    s_setprio {opt.get('lpr', 3)}
    s_barrier
    """)
    if PE == 4: bar(0, 0)
    A.label("W2L_SY")
    RR = opt.get("rr", 0)
    RH = opt.get("rh", 11)
    assert not RR or (GPC <= RH <= 11 and not opt.get("hg"))
    A(f"""
    s_waitcnt vmcnt(48){" lgkmcnt(0)" if RR else ""}
    s_cmp_lg_u32 {sC}, {GPC + 2}
    s_cbranch_scc1 W2L_G_{"Y" if RR else "X"}
    """)
    poll_check(A, "v42", 0, "W2L_GS")
    A.label("W2L_G_X")
    if RR:
        rr_share(A, "v42", 43)
        A.label("W2L_G_Y")
    bar(sC, -3)
    A.label("W2L_NB")
    A(f"""
    s_add_u32 {sC}, {sC}, 1
    s_cmp_lt_u32 {sC}, {15 if H2 else 24}
    s_cbranch_scc1 W2L_LOOP
    """)
    VG = opt.get("vg", 0)
    assert H2 or not VG
    vQ, QS = 52, 32

    def vg_write(lo, hi):
        n_ = opt.get("vdl", 0) if hi > lo else 0
        while n_ > 0:
            A(f"s_nop {min(n_, 16) - 1}"); n_ -= 16
        for j in range(lo, hi):
            A(f"ds_write_b128 v{vVG+2}, {vr(vQ+4*j,4)} offset:{1024*j}")
    vVG = 116
    V6 = [int(c) for c in str(opt.get("v6", 466))]
    VW = [int(c) for c in str(opt.get("vw", 4444))]
    assert sum(V6) == 16 and sum(VW) == 16 and len(V6) <= 4 and len(VW) <= 4
    if VG:
        assert GPC + 2 < 15
        A("s_mov_b32 s47, 0")
        A.label("W2L2")
        ld = [h for h in range(15, 24) if not 16 <= h < 16 + VG]
        n7 = lambda h: 16 if h < 15 else 8 if h in ld else 0
        for h in range(15, 24):
            if h in ld:
                A(f"s_add_u32 m0, s47, {(h * 16384) % PV}\ns_nop 0")
                for g in range(2):
                    for j in range(4):
                        A(f"buffer_load_dwordx4 v{vVO+4*g+j}, s[12:15], {sVOFS} offen offset:{1024*j} lds")
                    if g == 0: A("s_add_u32 m0, m0, 4096\ns_nop 0")
                A(f"s_add_u32 {sVOFS}, {sVOFS}, {64*3072*(1 + VG if h == 15 else 1)}")
            if VG == 3 and 16 <= h < 16 + len(V6):
                A(f"""
                s_cmp_eq_u32 s47, 0
                s_cbranch_scc1 W2L2_W{h}
                """)
                vg_write(sum(V6[:h-16]), sum(V6[:h-15]))
                A.label(f"W2L2_W{h}")
            if VG == 3 and h == 15: A(f"s_cmp_eq_u32 s47, 0\ns_cbranch_scc1 W2L2_W\ns_waitcnt vmcnt(8)\nW2L2_W:")
            if VG == 3 and h == 19: A("s_waitcnt lgkmcnt(0)")
            if n7(h - 3): A(f"s_waitcnt vmcnt({n7(h-2) + n7(h-1) + n7(h)})")
            bar(0, h - 3)
    elif H2:
        assert GPC + 2 < 15
        A("s_mov_b32 s47, 0")
        A.label("W2L2")
        for g in range(2):
            for j in range(4):
                A(f"buffer_load_dwordx4 v{vVO+4*g+j}, s[12:15], {sVOFS} offen offset:{1024*j} lds")
            A(f"s_add_u32 m0, m0, {12288 if g else 4096}")
            if g == 0: A("s_nop 0")
        A(f"""
        s_cmp_ge_u32 m0, {PV}
        s_cselect_b32 m0, s47, m0
        s_add_u32 {sVOFS}, {sVOFS}, {64*3072}
        s_cmp_eq_u32 {sC}, 15
        s_waitcnt vmcnt(40)
        s_cbranch_scc1 W2L2_S
        s_cmp_eq_u32 {sC}, 16
        s_waitcnt vmcnt(32)
        s_cbranch_scc1 W2L2_S
        s_waitcnt vmcnt(24)
        """)
        A.label("W2L2_S")
        bar(sC, -3)
        A(f"""
        s_add_u32 {sC}, {sC}, 1
        s_cmp_lt_u32 {sC}, 24
        s_cbranch_scc1 W2L2
        """)
    A(f"""
    s_setprio 0
    s_waitcnt vmcnt({16 if H2 else 32})
    """)
    if RR: rr_ask(A, 43)
    bar(0, 21)
    p2_tile(A)
    A(f"""
    v_mov_b32 v4, {LFLAG}
    v_mov_b32 v3, 1
    s_waitcnt vmcnt({8 if H2 else 16}){" lgkmcnt(0)" if RR else ""}
    """)
    if RR: A("v_readfirstlane_b32 s63, v43")
    bar(0, 22)
    if MAP["xf"]:
        A("s_waitcnt vmcnt(0)")
        bar(0, 23)
        A("s_buffer_load_dword s62, s[24:27], s44 glc")
    else:
        A(f"""
        s_buffer_load_dword s61, s[24:27], s44 glc
        s_waitcnt vmcnt(0)
        """)
        bar(0, 23)
        A(f"""
        s_waitcnt lgkmcnt(0)
        s_cmp_lt_u32 s61, 20
        s_cbranch_scc1 W2L_NX
        ds_write_b32 v4, v3
        s_waitcnt lgkmcnt(0)
        """)
        A.label("W2L_NX")
    bar(0, 24)
    cst_out(A, opt)
    A("s_branch P2_MM")
    A.label("W2L_GS")
    A(f"s_mov_b32 s7, {POLL_MAX}")
    A.label("W2L_G")
    A(f"""
    s_sub_u32 s7, s7, 1
    s_cbranch_scc1 W2L_G_X
    buffer_load_dword v42, v40, {DBG}, 0 offen sc1
    s_waitcnt vmcnt(0)
    """)
    poll_check(A, "v42", 0, "W2L_G")
    A("s_branch W2L_G_X")
    A.label("W2_DEQ")
    sB = "s38"
    sQOFS = "s43"
    vQO = 6
    vAW = 14
    vTB = 22
    U_ = 24
    Ft = 40
    O = 48
    vQ = 52
    QS = 32
    A(f"""
    s_mov_b32 {sB}, s4
    s_add_u32 s4, s42, {sB}
    """)
    if VG: A("s_min_u32 s4, s4, 39")
    else: A("s_cmp_ge_u32 s4, 40\ns_cbranch_scc1 W2D_IDLE")
    A(f"""
    s_mul_i32 {sQOFS}, s4, {16*6144}
    s_mul_i32 s6, {sH}, 3072
    s_add_u32 {sQOFS}, {sQOFS}, s6
    s_lshr_b32 s6, s4, 1
    s_lshr_b32 s5, s42, 1
    s_sub_u32 s6, s6, s5
    s_mul_i32 s6, s6, 3072
    s_add_u32 s6, s6, {PA}
    s_mov_b32 s10, {QW_BYTES}
    v_lshrrev_b32 v2, 5, v1
    v_and_b32 v3, 31, v1
    v_lshlrev_b32 v4, 4, v3
    v_mul_u32_u24 v{vQO}, 0x1800, v2
    v_add_u32 v{vQO}, v{vQO}, v4
    v_add_u32 v{vTB}, s6, v4
    """)
    QR = opt.get("qr", 3)
    A(f"s_mul_i32 s57, s57, {QR}")
    for i in range(7, -1, -1):
        A(f"""
        s_add_u32 s4, s57, {i}
        s_and_b32 s4, s4, 7
        s_mul_i32 s4, s4, 12288
        v_add_u32 v{vQO+i}, s4, v{vQO}
        """)
    A("s_waitcnt lgkmcnt(0)")
    stamp(A, opt, 1)
    cst(A, opt, 0, 49)

    def t_read(n):
        u = U_ + 8 * (n & 1)
        A(f"""
        ds_read_b128 {vr(u,4)}, v{vTB}
        ds_read_b128 {vr(u+4,4)}, v{vTB} offset:6144
        v_add_u32 v{vTB}, 512, v{vTB}
        """)

    for u in range(NQ):
        for i in range(8):
            A(f"buffer_load_dwordx4 {vr(vQ+QS*u+4*i,4)}, v{vQO+i}, s[8:11], {sQOFS} offen offset:{512*u}")
    A(f"""
    s_add_u32 {sQOFS}, {sQOFS}, 512
    s_lshl_b32 s4, {sB}, 12
    s_add_u32 s4, s4, {PA + 4 * ASTAGE}
    v_bfe_u32 v3, v1, 1, 4
    v_xor_b32 v4, v3, v2
    v_lshlrev_b32 v4, 4, v4
    v_lshl_add_u32 v4, v2, 8, v4
    v_and_b32 v3, 1, v1
    v_lshl_add_u32 v4, v3, 3, v4
    v_add_u32 v{vAW}, s4, v4
    """)
    for i in range(7, -1, -1):
        A(f"""
        s_add_u32 s4, s57, {i}
        s_and_b32 s4, s4, 7
        s_lshl_b32 s5, s4, 5
        s_lshl_b32 s4, s4, 9
        v_xor_b32 v3, s5, v{vAW}
        v_add_u32 v{vAW+i}, s4, v3
        """)
    A(f"""
    s_mov_b32 {sC}, 0
    s_xor_b32 s4, {sNI}, 1
    s_mul_i32 s5, {sMI}, 12
    s_add_u32 s4, s4, s5
    s_lshl_b32 s45, s4, 7
    s_add_u32 s45, s45, {PXF}
    s_mul_i32 s46, s4, 24576
    s_mul_i32 s47, {sB}, {6144 if H2 else 4096 if PB else 8192}
    s_add_u32 s46, s46, s47
    s_add_u32 s46, s46, {PXB}
    s_add_u32 s47, s47, {PP + (ASTAGE if PB else 0)}
    s_mov_b32 s48, {(-2 * ASTAGE) % (1 << 32)}
    s_mov_b32 s61, 0
    """)
    if VG:
        A(f"""
        s_mov_b32 s14, {V_BYTES}
        v_lshrrev_b32 v2, 4, v1
        v_and_b32 v3, 15, v1
        v_lshlrev_b32 v4, 1, v2
        v_xor_b32 v3, v3, v4
        v_lshlrev_b32 v3, 4, v3
        v_mul_u32_u24 v4, 0xc00, v2
        v_add_u32 v{vVG}, v3, v4
        v_xor_b32 v{vVG+1}, 0x80, v{vVG}
        s_xor_b32 s59, {sNI}, 1
        s_lshl_b32 s59, s59, 8
        s_mul_i32 s4, {sH}, {768*3072}
        s_add_u32 s59, s59, s4
        s_add_u32 s5, {sB}, {1 if VG == 3 else 0}
        s_cmp_eq_u32 s5, 3
        s_cselect_b32 s5, 0, s5
        s_mul_i32 s4, s5, {64*3072}
        s_add_u32 s60, s59, s4
        s_add_u32 s60, s60, {4*64*3072}
        s_lshl_b32 s4, s5, 14
        s_add_u32 s4, s4, {(16 * 16384) % PV}
        v_add_u32 v{vVG+2}, s4, v5
        """)
    cst(A, opt, 0, 50)
    A("s_barrier")
    cst(A, opt, 0, 51)
    A(f"s_setprio {opt.get('dpr', 3)}")
    t_read(0)
    A("s_waitcnt lgkmcnt(0)")
    MB = opt.get("mb", 4)
    A.label("W2D_LOOP")
    for n in range(4 if VG else 2):
        last = n >= 2
        if n == 2:
            A(f"""
            s_add_u32 {sC}, {sC}, 4
            s_cmp_lt_u32 {sC}, 8
            s_cbranch_scc1 W2D_LOOP
            """)
            if VG < 3:
                A(f"""
                s_cmp_lt_u32 {sB}, {VG}
                s_cselect_b64 vcc, -1, 0
                """)
        n &= 1
        q = vQ + QS * n
        S = U_ + 8 * n
        if not (last and n): t_read(n + 1)
        if VG:
            if not last: A(f"s_add_u32 {sQOFS}, {sQOFS}, 512")
            A("s_waitcnt vmcnt(8)")
            if last and n and VG < 3:
                A("""
                s_cbranch_vccnz W2D_VN
                s_waitcnt vmcnt(0)
                """)
                A.label("W2D_VN")
        else:
            A(f"""
            s_add_u32 {sQOFS}, {sQOFS}, 512
            s_cmp_lt_u32 {sC}, {2 * (6 - NQ - n + 1)}
            s_waitcnt vmcnt({8*(NQ-1)})
            s_cbranch_scc1 W2D_NT{n}
            s_waitcnt vmcnt({8 * (1 - n)})
            """)
            A.label(f"W2D_NT{n}")
            A(f"s_cmp_lt_u32 {sC}, {2 * (6 - NQ - n)}")
        for i in range(8):
            qq = q + 4 * i
            f = Ft + 4 * (i & 1)
            o = O + 2 * (i & 1)
            A(f"""
            v_fma_f32 v{f}, v{qq}, v{S}, v{S+4}
            v_fma_f32 v{f+1}, v{qq+1}, v{S+1}, v{S+5}
            v_fma_f32 v{f+2}, v{qq+2}, v{S+2}, v{S+6}
            v_fma_f32 v{f+3}, v{qq+3}, v{S+3}, v{S+7}
            v_cvt_pk_bf16_f32 v{o}, v{f}, v{f+1}
            v_cvt_pk_bf16_f32 v{o+1}, v{f+2}, v{f+3}
            ds_write_b64 v{vAW+i}, {vr(o,2)} offset:{ASTAGE*(1-n)}
            """)
            if n == 1 and i > 0 and not last: A(f"v_add_u32 v{vAW+i-1}, s48, v{vAW+i-1}")
            if (i + 1) % RG == 0 and last:
                if VG < 3: A(f"s_cbranch_vccz W2D_SV{n}_{i}")
                for ii in range(i + 1 - RG, i + 1):
                    A(f"""
                    buffer_load_dwordx4 {vr(q+4*ii,4)}, v{vVG + (ii >> 1 & 1)}, s[12:15], s60 offen
                    s_add_u32 s60, s60, {4*3072}
                    """)
                if VG < 3: A.label(f"W2D_SV{n}_{i}")
            elif (i + 1) % RG == 0:
                if not VG: A(f"s_cbranch_scc0 W2D_SK{n}_{i}")
                for ii in range(i + 1 - RG, i + 1):
                    A(f"buffer_load_dwordx4 {vr(q+4*ii,4)}, v{vQO+ii}, s[8:11], {sQOFS} offen")
                if not VG: A.label(f"W2D_SK{n}_{i}")
            if i + 1 == MB:
                bar(sC, 2 * n - 1)
                if opt.get("cst") and not VG: A(f"s_cmp_lt_u32 {sC}, {2 * (6 - NQ - n)}")
        if n == 1 and not last: A(f"v_add_u32 v{vAW+7}, s48, v{vAW+7}")
        A("s_waitcnt lgkmcnt(0)")
        bar(sC, 2 * n)
    assert not (VG and opt.get("cst") in (1, 2))
    if not VG:
        A(f"""
        s_add_u32 {sC}, {sC}, 4
        s_cmp_lt_u32 {sC}, 12
        s_cbranch_scc1 W2D_LOOP
        """)
    if H2:
        A(f"""
        s_cmp_eq_u32 {sB}, 2
        s_cbranch_scc1 W2D_H
        """)
    A(f"""
    s_setprio {opt.get("vpr", 0)}
    s_mov_b32 m0, s47
    """)
    P0 = 15 if PB else 17
    if VG:
        P0 = VG + 12 + len(VW)
        bar(0, 11)
        if RR: rr_ask(A, 2)
        if VG == 3: bar(0, 12)
        A(f"""
        s_waitcnt vmcnt(0)
        s_cmp_eq_u32 {sB}, 0
        s_cbranch_scc1 W2D_V0
        s_barrier
        """)
        A.label("W2D_V0")
        for i in range(len(VW)):
            A("s_barrier")
            vg_write(sum(VW[:i]), sum(VW[:i+1]))
        A(f"""
        s_waitcnt lgkmcnt(0)
        s_setprio 0
        s_add_u32 {sC}, {sB}, {VG + 10 + len(VW)}
        """)
        if RR: A("v_readfirstlane_b32 s63, v2\ns_add_u32 s46, s46, s63")
        assert VG + 10 + len(VW) >= 15
    SX = opt.get("sx", 0)
    for h in range(11, 0 if VG else P0):
        if RR and h == 12: rr_ask(A, 2)
        if RR and h == 13: A("s_waitcnt lgkmcnt(0)\nv_readfirstlane_b32 s63, v2\ns_add_u32 s46, s46, s63")
        if h >= P0 - 2: A("s_buffer_load_dword s61, s[24:27], s45 glc")
        bar(0, h)
    if not VG: A(f"s_mov_b32 {sC}, {P0}")
    if SX:
        A(f"""
        s_cmp_lg_u32 {sB}, 0
        s_cbranch_scc1 W2D_GOT
        """)
    A.label("W2D_PL")
    A(f"""
    s_cmp_ge_u32 s61, 4
    s_cbranch_scc1 W2D_GOT
    s_buffer_load_dword s61, s[24:27], s45 glc
    """)
    for i in range(opt.get("pd2", 0)):
        A(f"""
        s_sleep {opt.get("pd3", 1)}
        s_cmp_ge_u32 s61, 4
        s_cbranch_scc1 W2D_GOT
        """)
        if opt.get("pd4") and i + 1 == opt["pd4"]: A("s_buffer_load_dword s61, s[24:27], s45 glc")
    bar(sC, 0)
    A(f"""
    s_add_u32 {sC}, {sC}, 1
    s_cmp_lt_u32 {sC}, {SX if SX else 24}
    s_cbranch_scc1 W2D_PL
    """)
    spoll(A, "W2D_P", "s45", 4, 0, first=False)
    A.label("W2D_GOT")
    cst(A, opt, 0, 52)
    for i in range(0 if SX else 6 if H2 else 4 if PB else 8):
        if i == 4: A("s_add_u32 m0, m0, 4096\ns_add_u32 s46, s46, 4096")
        A(f"buffer_load_dwordx4 v5, s[24:27], s46 offen offset:{1024*(i&3)} sc1 lds")
    if MAP["xf"]: p2_tile(A)
    A("s_branch W2D_R1")
    A.label("W2D_R0")
    bar(sC, 0)
    A(f"s_add_u32 {sC}, {sC}, 1")
    A.label("W2D_R1")
    A(f"""
    s_cmp_lt_u32 {sC}, 24
    s_cbranch_scc1 W2D_R0
    """)
    if MAP["xf"]:
        A("""
        s_buffer_load_dword s62, s[24:27], s44 glc
        s_waitcnt vmcnt(0)
        """)
    else:
        A("s_waitcnt vmcnt(0) lgkmcnt(0)")
    bar(0, 24)
    cst_out(A, opt)
    A("s_branch P2_MM")
    if not VG:
        A.label("W2D_IDLE")
        A(f"""
        s_mov_b32 {sC}, 0
        s_waitcnt lgkmcnt(0)
        """)
        if H2:
            A(f"""
            s_cmp_eq_u32 {sB}, 2
            s_cselect_b32 {sC}, 14, 0
            """)
        A.label("W2D_IDL")
        A(f"""
        s_barrier
        s_add_u32 {sC}, {sC}, 1
        s_cmp_lt_u32 {sC}, 27
        s_cbranch_scc1 W2D_IDL
        """)
    if H2:
        if not VG:
            A(f"""
            s_cmp_lg_u32 {sB}, 2
            s_cbranch_scc1 {"P2_MMR" if RR else "P2_MM"}
            s_setprio {opt.get('lpr', 3)}
            """)
        A.label("W2D_H")
        A(f"""
        s_mov_b32 s14, {V_BYTES}
        v_lshrrev_b32 v2, 4, v1
        v_and_b32 v3, 15, v1
        v_lshlrev_b32 v4, 1, v2
        v_xor_b32 v3, v3, v4
        v_lshlrev_b32 v3, 4, v3
        v_mul_u32_u24 v4, 0xc00, v2
        v_add_u32 v{vVO}, v3, v4
        v_add_u32 v{vVO+1}, 11264, v{vVO}
        v_xor_b32 v3, 0x80, v{vVO}
        v_add_u32 v{vVO+2}, {2*11264}, v3
        v_add_u32 v{vVO+3}, {3*11264}, v3
        v_add_u32 v{vVO+4}, {16*3072}, v{vVO}
        v_add_u32 v{vVO+5}, {16*3072}, v{vVO+1}
        v_add_u32 v{vVO+6}, {16*3072}, v{vVO+2}
        v_add_u32 v{vVO+7}, {16*3072}, v{vVO+3}
        s_xor_b32 {sVOFS}, {sNI}, 1
        s_lshl_b32 {sVOFS}, {sVOFS}, 8
        s_mul_i32 s4, {sH}, {768*3072}
        s_add_u32 {sVOFS}, {sVOFS}, s4
        s_add_u32 {sVOFS}, {sVOFS}, {(3*64 + 32)*3072}
        s_movk_i32 s47, 8192
        s_mov_b32 m0, {(15 * 16384) % PV + 8192}
        s_mov_b32 {sC}, 15
        """)
        if "v6p" in opt: A(f"s_setprio {opt['v6p']}")
        bar(0, 11)
        A("s_branch W2L2")
    else:
        A("s_branch P2_MM")
    A.label("W2_MFMA")
    MW[0] = 1
    vAR = 10
    vBR = 18
    vST, vTA = 22, 23
    vACC = 24
    vF = 72
    vP = 152
    P = vF
    A(f"""
    s_lshl_b32 s4, {sW}, 13
    s_mov_b32 m0, s4
    s_mul_i32 s4, {sW}, {32*3072}
    s_add_u32 {sVOFS}, {sVOFS}, s4
    s_lshr_b32 s6, s42, 1
    s_lshl1_add_u32 s6, s6, {sH}
    s_mul_i32 s6, s6, 1536
    s_mov_b32 s18, {SC_BYTES}
    s_mov_b32 s19, 0x00020000
    s_mov_b32 s22, {SC_BYTES}
    s_mov_b32 s23, 0x00020000
    s_min_u32 s5, {sW}, 2
    s_lshl_b32 s5, s5, 9
    v_lshl_add_u32 v{vTA}, v1, 3, s5
    s_waitcnt lgkmcnt(0)
    """)
    stamp(A, opt, 1)
    cst(A, opt, 0, 49)
    for j in range(2):
        A(f"""
        buffer_load_dwordx2 {vr(P+4*j,2)}, v{vTA}, s[16:19], s6 offen offset:{3072*j}
        buffer_load_dwordx2 {vr(P+4*j+2,2)}, v{vTA}, s[20:23], s6 offen offset:{3072*j}
        """)
    for g in range(2):
        for j in range(4):
            A(f"buffer_load_dwordx4 v{vVO+j}, s[12:15], {sVOFS} offen offset:{1024*j} lds")
        if g == 0:
            A(f"""
            s_add_u32 m0, m0, 4096
            s_add_u32 {sVOFS}, {sVOFS}, {16*3072}
            """)
    A(f"""
    v_lshlrev_b32 v{vTA}, 1, v{vTA}
    v_add_u32 v{vTA}, {PA}, v{vTA}
    v_and_b32 v2, 15, v1
    v_lshrrev_b32 v3, 4, v1
    v_xor_b32 v4, v2, v3
    v_lshlrev_b32 v4, 4, v4
    v_lshl_add_u32 v4, v2, 8, v4
    v_add_u32 v{vAR}, {PA}, v4
    v_xor_b32 v{vAR+1}, 64, v{vAR}
    v_xor_b32 v{vAR+2}, 128, v{vAR}
    v_xor_b32 v{vAR+3}, 192, v{vAR}
    v_add_u32 v{vAR+4}, {3*ASTAGE}, v{vAR}
    v_add_u32 v{vAR+5}, {3*ASTAGE}, v{vAR+1}
    v_add_u32 v{vAR+6}, {3*ASTAGE}, v{vAR+2}
    v_add_u32 v{vAR+7}, {3*ASTAGE}, v{vAR+3}
    v_bfe_u32 v2, v1, 2, 2
    v_and_b32 v4, 1, v3
    v_lshl_or_b32 v4, v4, 2, v2
    s_lshl_b32 s5, {sW}, 1
    v_xor_b32 v4, s5, v4
    v_lshlrev_b32 v4, 5, v4
    v_lshl_add_u32 v2, v3, 3, v2
    v_lshl_add_u32 v4, v2, 8, v4
    v_and_b32 v2, 3, v1
    v_lshl_add_u32 v{vBR}, v2, 3, v4
    v_xor_b32 v{vBR+1}, 32, v{vBR}
    v_add_u32 v{vBR+2}, 40960, v{vBR}
    v_add_u32 v{vBR+3}, 40960, v{vBR+1}
    s_mul_i32 s4, {sMI}, 12
    s_add_u32 s4, s4, {sNI}
    s_lshl_b32 s45, s4, 7
    s_add_u32 s45, s45, {PXF}
    s_mul_i32 s44, s4, 24576
    s_lshl_b32 s5, {sW}, {10 if PB else 11}
    s_add_u32 s44, s44, s5
    s_add_u32 s44, s44, {PXB}
    """)
    SM = opt.get("sm", -1 if SX else 99)
    if SM > 50: SM = -1 if SX else 99

    def marks():
        r = [f"v_mov_b32 v{vP+i}, -1" for i in range(4)]
        for b in range(3):
            r.append(f"buffer_store_dwordx4 {vr(vP,4)}, v{vP+4+b}, s[24:27], s44 offen sc1")
        return r
    if SX:
        assert PB
        A(f"""
        s_xor_b32 s6, s4, 1
        s_mul_i32 s59, s6, 24576
        s_add_u32 s59, s59, s5
        s_add_u32 s59, s59, {PXB}
        v_mov_b32 v{vP+4}, v5
        v_add_u32 v{vP+5}, 4096, v5
        v_add_u32 v{vP+6}, 8192, v5
        """)
        if SM < 0:
            for x in marks(): A(x)
    A(f"""
    s_add_u32 s5, s5, {PP + (ASTAGE if PB else 0)}
    v_add_u32 v6, s5, v5
    s_xor_b32 {sNI}, {sNI}, 1
    s_lshl_b32 s4, {sNI}, 2
    s_add_u32 s4, s4, {sW}
    s_mul_i32 s5, s4, 40
    s_add_u32 s5, s5, s42
    s_lshl_b32 s5, s5, 10
    s_add_u32 s50, s5, {W2F}
    s_mul_i32 s51, s4, 171
    s_lshr_b32 s51, s51, 9
    s_lshl_b32 s51, s51, 7
    s_add_u32 s51, s51, {FLG}
    s_mov_b32 s53, 11
    s_mov_b32 s54, {hex((127+149-QE) << 23)}
    s_mov_b32 s55, {hex((127+149-QE) << 23)}
    s_mov_b32 s46, 0xffff0000
    s_mov_b32 s47, {hex((127+QE) << 23)}
    s_mov_b32 s48, {hex(0x80000000 | ((127+QE-149) << 23))}
    v_bfe_u32 v3, v1, 4, 1
    v_lshrrev_b32 v4, 5, v1
    v_and_b32 v{vST}, 15, v1
    v_lshl_add_u32 v{vST}, v3, 5, v{vST}
    v_lshl_add_u32 v{vST}, v4, 4, v{vST}
    v_lshlrev_b32 v{vST}, 4, v{vST}
    v_mov_b32 v7, 1
    v_mov_b32 v8, 0
    """)
    if opt.get("hg"): A("s_mov_b32 s63, 0")
    for j in range(2):
        q = P + 4 * j
        u = P + 16 + 8 * j
        A(f"s_waitcnt vmcnt({8 + 2 - 2*j + (3 if SM < 0 else 0)})")
        if j == 0: cst(A, opt, 0, 53)
        scale8(A, u, q, q + 2)
        A(f"""
        ds_write_b128 v{vTA}, {vr(u,4)} offset:{3072*j}
        ds_write_b128 v{vTA}, {vr(u+4,4)} offset:{3072*j+6144}
        """)
    A("s_waitcnt lgkmcnt(0)")
    cst(A, opt, 0, 50)
    A("s_barrier")
    cst(A, opt, 0, 51)
    A(f"""
    s_barrier
    s_waitcnt vmcnt({3 if SM < 0 else 0})
    """)
    cst(A, opt, 0, 52)

    def reads(g):
        fa = vF + 20 * (g & 3)
        fb = fa + 12
        st = 5 - (g // 4) % 6
        sl = g % 10
        r = []
        for b in range(3):
            r.append(f"ds_read_b128 {vr(fa+4*b,4)}, v{vAR + (g & 3) + 4 * (st // 3)} offset:{4096*b + ASTAGE*(st % 3)}")
        for t in range(2):
            for u in range(2):
                r.append(f"ds_read_b64_tr_b16 {vr(fb+4*t+2*u,2)}, v{vBR + t + 2 * (sl // 5)} offset:{8192*(sl % 5) + 1024*u}")
        return r

    def mfmas(g):
        fa = vF + 20 * (g & 3)
        fb = fa + 12
        r = []
        for b in range(3):
            for t in range(2):
                acc = vr(vACC + 24 * (g // 24) + (b * 2 + t) * 4, 4)
                r.append(f"v_mfma_f32_16x16x32_bf16 {acc}, {vr(fa+4*b,4)}, {vr(fb+4*t,4)}, {'0' if g % 24 == 0 else acc}")
        return r
    L = opt.get("pl", 2)
    HF = opt.get("hf", 17)
    FR = opt.get("fr", 2)
    send = []
    for b in range(3):
        for t in range(2):
            send.append([f"buffer_store_dwordx4 {vr(vACC + (b*2+t)*4, 4)}, v5, s[24:27], s44 offen offset:{1024*t} sc1"] + (["s_add_u32 s44, s44, 8192"] if t else []))
    if PB:
        send = []
        for b in range(3):
            a = vACC + 8 * b
            send.append([f"v_cvt_pk_bf16_f32 v{a+j}, v{a+2*j}, v{a+2*j+1}" for j in range(4)] +
                        [f"v_min_u32 v{a+j}, -2, v{a+j}" for j in range(4 if SX else 0)] +
                        [f"buffer_store_dwordx4 {vr(a, 4)}, v5, s[24:27], s44 offen sc1", "s_add_u32 s44, s44, 4096"])
        A(f"""
        s_mov_b32 s56, {hex((127+149-QE) << 7)}
        s_mov_b32 s57, {hex((127+149-QE) << 23)}
        """)
    if opt.get("nosend") == 1: send = [[x for x in l if not x.startswith("buffer_store")] for l in send]
    if opt.get("nosend") == 2:
        send = [l[:4] + ["s_bitcmp1_b32 s3, 0", f"s_cbranch_scc1 W2M_NS{i}", l[4], f"W2M_NS{i}:"] + l[5:] for i, l in enumerate(send)]
    PS = opt.get("ps", 6)
    for h in range(24):
        bar(0, h)
        rd = reads(2 * h) + reads(2 * h + 1)
        mf = []
        for g in range(2 * h - L, 2 * h + 2 - L):
            if g < 0: continue
            for k_, m in enumerate(mfmas(g)):
                mf.append((m, -1 if g < 2 * h else 7 * (g - 2 * h) + (4 if k_ == 0 else 6), g))
        seq = rd[:FR]
        ri = FR
        got = -1
        ns = 0
        tail = []
        PQ = opt.get("pq", 0)
        for m, need, g in mf:
            while ri <= need:
                seq.append(rd[ri]); ri += 1
            if need > got:
                while ri < 14:
                    seq.append(rd[ri]); ri += 1
                seq.append(f"s_waitcnt lgkmcnt({14 - need - 1})")
                got = need
            seq.append(m)
            seq += rd[ri:ri + (2 if L == 1 else 1)]
            ri += 2 if L == 1 else 1
            if g >= 24 and send and ns < PS and (m != mf[0][0] or g > 24) and h >= opt.get("ph", 0):
                x = send.pop(0); ns += 1
                if PQ:
                    seq += x[:4]; tail += x[4:]
                else: seq += x
        seq += rd[ri:]
        seq += tail
        HG = opt.get("hg", 0)

        def tell(tag, force):
            r = ["s_cmp_lg_u32 s63, 0"] if force else ["s_getreg_b32 s4, hwreg(HW_REG_IB_STS, 0, 4)", "s_or_b32 s4, s4, s63"]
            return r + [f"s_cbranch_scc1 W2M_T{tag}", "s_waitcnt vmcnt(0)", "s_mov_b64 exec, 1",
                        "buffer_atomic_add v7, v8, s[24:27], s45 offen sc1", "s_mov_b64 exec, -1", "s_mov_b32 s63, 16", f"W2M_T{tag}:"]
        if HG and HG < h <= HF and opt.get("hm"):
            k_ = [i for i, x in enumerate(seq) if x.startswith("v_mfma")][5]
            seq[k_+1:k_+1] = tell(f"m{h}", False)
        vR = vP + 8

        def fetch():
            return [f"buffer_load_dwordx4 {vr(vR+4*b,4)}, v{vP+4+b}, s[24:27], s59 offen sc1" for b in range(3)]
        if SX:
            assert GPC - 1 <= HF <= 11 and not HG and not PQ and SM < HF - 2
            km = [i for i, x in enumerate(seq) if x.startswith("v_mfma")]
            ex = fetch() if h == SX else marks() if h == SM else []
            if h == SM: seq += ex
            else:
                for j, x in enumerate(ex): seq.insert(km[6 + 2 * j] + 1 + j, x)
        for x in seq: A(x)
        if RR and h == RH: rr_ask(A, 9)
        if HG and HG <= h <= HF:
            for x in tell(h, h == HF): A(x)
        if h == 12 and L == 2 and opt.get("es", 1):
            A("s_nop 3")
            while send and ns < PS:
                for x in send.pop(0): A(x)
                ns += 1
                if len(send) <= 2 and send: A("s_nop 3")
        if h == HF and not HG:
            A(f"""
            s_waitcnt vmcnt(0)
            s_mov_b64 exec, 1
            buffer_atomic_add v7, v8, s[24:27], s45 offen sc1
            s_mov_b64 exec, -1
            """)
        if h < 23: A("s_waitcnt lgkmcnt(0)")
        if RR and h == RH:
            assert not SX or SM > RH
            A("""
            v_readfirstlane_b32 s63, v9
            s_add_u32 s44, s44, s63
            s_add_u32 s50, s50, s63
            """)
            if SX: A("s_add_u32 s59, s59, s63")
        if (opt.get("stamp") or opt.get("probe") == 2) and h == 0: stamp(A, opt, 2, True)
    assert not send
    A("s_setprio 3")
    for g in range(48 - L, 48):
        for k_, m in enumerate(mfmas(g)):
            if k_ < 2: A(f"s_waitcnt lgkmcnt({14 - (7 * (g - 46) + (4 if k_ == 0 else 6)) - 1})")
            A(m)
    a0 = vACC + 24
    bar(0, 24)
    if SX:
        A(f"s_mov_b32 s7, {POLL_MAX}")
        A.label("W2M_CK")
        A(f"""
        s_waitcnt vmcnt(0)
        v_max3_u32 v2, v{vR}, v{vR+1}, v{vR+2}
        v_max3_u32 v3, v{vR+3}, v{vR+4}, v{vR+5}
        v_max3_u32 v2, v{vR+6}, v{vR+7}, v2
        v_max3_u32 v3, v{vR+8}, v{vR+9}, v3
        v_max3_u32 v2, v{vR+10}, v{vR+11}, v2
        v_max_u32 v2, v2, v3
        v_cmp_eq_u32 vcc, -1, v2
        s_cbranch_vccnz W2M_RT
        """)
        A.label("W2M_OK")
        if opt.get("stamp"):
            A(f"""
            s_sub_u32 s7, {POLL_MAX}, s7
            s_cbranch_scc0 W2M_NR
            """)
        vP = vR
    for i in range(0 if SX else 3 if PB else 6):
        A(f"ds_read_b128 {vr(vP+4*i,4)}, v6 offset:{4096*i if PB else 8192*(i//2) + 1024*(i&1)}")
    if not SX: A("s_nop 4")
    if SX and opt.get("stamp"): A.label("W2M_NR")
    for j in range(12):
        A(f"v_pk_mul_f32 {vr(a0+2*j,2)}, {vr(a0+2*j,2)}, s[54:55]")
    stamp(A, opt, 3, True)
    for b in range(3):
        a = a0 + 8 * b
        o = vF + 4 * b
        if not SX: A(f"s_waitcnt lgkmcnt({2 - b if PB else 4 - 2*b})")
        for j in range(4):
            if PB:
                A(f"v_dot2c_f32_bf16 v{a+2*j}, s56, v{vP+4*b+j}")
                A(f"v_dot2c_f32_bf16 v{a+2*j+1}, s57, v{vP+4*b+j}")
            else:
                A(f"v_pk_fma_f32 {vr(a+2*j,2)}, {vr(vP+8*b+2*j,2)}, s[54:55], {vr(a+2*j,2)}")
        if PB: A("s_nop 2")
        A(f"""
        v_cvt_pk_bf16_f32 v{o}, v{a}, v{a+1}
        v_cvt_pk_bf16_f32 v{o+1}, v{a+2}, v{a+3}
        v_cvt_pk_bf16_f32 v{o+2}, v{a+4}, v{a+5}
        v_cvt_pk_bf16_f32 v{o+3}, v{a+6}, v{a+7}
        s_nop 1
        v_permlane32_swap_b32 v{o}, v{o+2}
        v_permlane32_swap_b32 v{o+1}, v{o+3}
        buffer_store_dwordx4 {vr(o,4)}, v{vST}, s[24:27], s50 offen offset:{1024*b} sc1
        """)
        if b == 0:
            A(f"""
            s_cmp_eq_u32 {sMI}, 13
            s_cbranch_scc1 W2M_END
            """)
    A.label("W2M_END")
    if opt.get("xb"):
        A(f"""
        v_mov_b32 v4, {LFLAG}
        s_mov_b64 exec, 1
        ds_add_u32 v4, v7 offset:12
        s_mov_b64 exec, -1
        """)
    if SX and opt.get("cst"): A("v_writelane_b32 v230, s7, 56")
    cst_out(A, opt)
    A("s_branch P2_PUB")
    if SX:
        vP = 152
        A.label("W2M_RT")
        A("""
        s_sub_u32 s7, s7, 1
        s_cbranch_scc1 W2M_OK
        """)
        for x in fetch(): A(x)
        A("s_branch W2M_CK")


def scale8(A, u, s, z):
    A(f"""
    v_lshlrev_b32 v{u}, 16, v{s}
    v_and_b32 v{u+1}, s46, v{s}
    v_lshlrev_b32 v{u+2}, 16, v{s+1}
    v_and_b32 v{u+3}, s46, v{s+1}
    v_lshlrev_b32 v{u+4}, 16, v{z}
    v_and_b32 v{u+5}, s46, v{z}
    v_lshlrev_b32 v{u+6}, 16, v{z+1}
    v_and_b32 v{u+7}, s46, v{z+1}
    """)
    for i in range(4): A(f"v_mul_f32 v{u+4+i}, s48, v{u+4+i}")
    for i in range(4): A(f"v_mul_f32 v{u+4+i}, v{u+i}, v{u+4+i}")
    for i in range(4): A(f"v_mul_f32 v{u+i}, s47, v{u+i}")


def wt_setup(A, opt, tag):
    TC = opt.get("wtc", 2)
    if opt.get("wm", 0):
        assert all((u * 171) >> 10 == u // 6 for u in range(384))
        A(f"""
        s_sub_u32 s4, s3, 21
        s_lshr_b32 s5, s37, 2
        s_and_b32 s6, s37, 3
        s_cmp_ge_u32 s4, 6
        s_cbranch_scc1 WT_Q{tag}
        s_lshl_b32 s4, s4, 6
        v_add_u32 v3, s4, v1
        v_mul_u32_u24 v7, 171, v3
        v_lshrrev_b32 v7, 10, v7
        v_mul_u32_u24 v7, {3072 - 768}, v7
        v_lshl_add_u32 v7, v3, 7, v7
        s_mul_i32 s46, s5, {64*3072}
        s_mul_i32 s6, s6, 768
        s_add_u32 s46, s46, s6
        s_add_u32 s46, s46, {TC*393216}
        s_mov_b32 s47, 393216
        s_mov_b32 s8, s12
        s_mov_b32 s9, s13
        s_mov_b32 s10, {V_BYTES}
        s_branch WT_G{tag}
        """)
        A.label(f"WT_Q{tag}")
        A(f"""
        v_lshrrev_b32 v7, 2, v1
        v_mul_u32_u24 v7, 0x1800, v7
        v_and_b32 v3, 3, v1
        v_lshl_add_u32 v7, v3, 7, v7
        s_mul_i32 s5, s37, 5
        s_add_u32 s4, s4, s5
        s_sub_u32 s4, s4, 6
        s_mul_i32 s46, s4, {16*6144}
        s_add_u32 s46, s46, {TC*512}
        s_movk_i32 s47, 512
        s_mov_b32 s10, {QW_BYTES}
        """)
        A.label(f"WT_G{tag}")
        return
    A(f"""
    s_sub_u32 s4, s2, 168
    s_cmp_ge_u32 s4, 48
    s_cbranch_scc1 WT_Q{tag}
    v_lshlrev_b32 v7, 7, v1
    s_lshl_b32 s46, s4, 13
    s_add_u32 s46, s46, {TC*393216}
    s_mov_b32 s47, 393216
    s_mov_b32 s8, s12
    s_mov_b32 s9, s13
    s_mov_b32 s10, {V_BYTES}
    s_branch WT_G{tag}
    """)
    A.label(f"WT_Q{tag}")
    A(f"""
    v_lshrrev_b32 v7, 2, v1
    v_mul_u32_u24 v7, 0x1800, v7
    v_and_b32 v3, 3, v1
    v_lshl_add_u32 v7, v3, 7, v7
    s_sub_u32 s4, s4, 48
    s_mul_i32 s46, s4, {16*6144}
    s_add_u32 s46, s46, {TC*512}
    s_movk_i32 s47, 512
    s_mov_b32 s10, {QW_BYTES}
    """)
    A.label(f"WT_G{tag}")


def wt(A, opt, i, tag):
    SH = opt.get("sh", 0)
    late = SH and i + opt.get("wtc", 2) >= SH
    if late:
        A(f"""
        s_cmpk_eq_u32 s47, 512
        s_cbranch_scc1 WT_S{tag}{i}
        """)
    A(f"""
    buffer_load_dword v{16+i}, v7, s[8:11], s46 offen
    s_add_u32 s46, s46, s47
    """)
    if late: A.label(f"WT_S{tag}{i}")


def tb_addr(A, tag, ju, nu):
    A(f"""
    s_lshr_b32 s5, s37, 2
    s_and_b32 s6, s37, 3
    s_cmp_ge_u32 s4, 6
    s_cbranch_scc1 TB_Q{tag}
    s_lshl_b32 s4, s4, 6
    """)
    for e in range(nu):
        A(f"""
        v_add_u32 v3, s4, v1
        v_add_u32 v3, {64*e}, v3
        v_mul_u32_u24 v{40+e}, 171, v3
        v_lshrrev_b32 v{40+e}, 10, v{40+e}
        v_mul_u32_u24 v{40+e}, {3072 - 768}, v{40+e}
        v_lshl_add_u32 v{40+e}, v3, 7, v{40+e}
        """)
    A(f"""
    s_mul_i32 s46, s5, {64*3072}
    s_mul_i32 s6, s6, 768
    s_add_u32 s46, s46, s6
    s_mov_b32 s47, 393216
    s_mov_b32 s8, s12
    s_mov_b32 s9, s13
    s_mov_b32 s10, {V_BYTES}
    s_branch TB_G{tag}
    """)
    A.label(f"TB_Q{tag}")
    A(f"""
    v_lshrrev_b32 v40, 2, v1
    v_mul_u32_u24 v40, 0x1800, v40
    v_and_b32 v3, 3, v1
    v_lshl_add_u32 v40, v3, 7, v40
    """)
    for e in range(1, nu):
        A(f"v_add_u32 v{40+e}, {e*16*6144}, v40")
    A(f"""
    s_mul_i32 s5, s37, 5
    s_add_u32 s4, s4, s5
    s_sub_u32 s4, s4, 6
    s_mul_i32 s46, s4, {16*6144}
    s_movk_i32 s47, 512
    s_mov_b32 s10, {QW_BYTES}
    """)
    A.label(f"TB_G{tag}")


def tb_burst(A, nu, nc, k0):
    for c in range(nc):
        for e in range(nu):
            A(f"buffer_load_dword v{k0 + c*nu + e}, v{40+e}, s[8:11], s46 offen")
        A("s_add_u32 s46, s46, s47")


def tp_tables(opt):
    b2, b3, b4 = opt.get("b2", 5), opt.get("b3", 9), opt.get("b4", 10)
    i1, i2, i3 = opt.get("i1", 3), opt.get("i2", 6), opt.get("i3", 3)
    ts = opt.get("ts", 1)
    xr = [[(0, 3 + j % 5, 1 + j // 5)] for j in range(10)]
    idl = [[] for _ in range(8)]
    for e in range(3):
        idl[1 + e].append((0, e, 1))
        idl[4 + e].append((i1, e, 2))
    if ts == 1:
        for e in range(3):
            xr[e].append((b3, e, 4)); xr[5 + e].append((b2, e, 3)); xr[(3, 4, 8)[e]].append((b4, e, 5))
    elif ts == 2:
        for e in range(3):
            idl[1 + e].append((i2, e, 3))
            xr[e].append((b3, e, 4)); xr[5 + e].append((b4, e, 5))
    elif ts == 3:
        for e in range(3):
            idl[1 + e].append((i2, e, 3)); idl[4 + e].append((i3, e, 4))
            xr[e].append((b4, e, 5))
    elif ts == 4:
        for e in range(3):
            idl[1 + e].append((i2, e, 3)); idl[4 + e].append((i3, e, 4))
            idl[1 + e].append((opt.get("i4", 3), e, 5))
    elif ts == 5:
        for e in range(3):
            xr[5 + e].append((b2, e, 3))
            idl[1 + e].append((i2, e, 4)); idl[4 + e].append((i3, e, 5))

    def pack(l):
        w = 0
        for i, (n, p_, cp) in enumerate(l):
            assert n < 16
            w |= (n | (p_ | cp << 3) << 4) << (10 * i)
        return w
    return [pack(l) | ((1 << 31) if j >= 5 else 0) for j, l in enumerate(xr)], [pack(l) for l in idl]


def tp_select(A, sidx, tab):
    A(f"s_mov_b32 s48, {hex(tab[0])}")
    for i in range(1, len(tab)):
        A(f"""
        s_cmp_eq_u32 {sidx}, {i}
        s_cselect_b32 s48, {hex(tab[i])}, s48
        """)


def tp_run(A, opt):
    A.label("TP")
    A(f"""
    s_mov_b32 s14, {V_BYTES}
    s_mov_b32 s10, {QW_BYTES}
    s_bfe_u32 s58, s37, 0x10001
    s_lshr_b32 s5, s37, 2
    s_and_b32 s6, s37, 1
    s_mul_i32 s46, s5, {64*3072}
    s_mul_i32 s4, s58, {768*3072 + 256}
    s_add_u32 s46, s46, s4
    s_mul_i32 s4, s6, 1536
    s_add_u32 s46, s46, s4
    s_lshl1_add_u32 s47, s5, s6
    s_mul_i32 s47, s47, {10*16*6144}
    s_mul_i32 s4, s58, 3072
    s_add_u32 s47, s47, s4
    s_sub_u32 s47, s47, {6*16*6144}
    s_mov_b32 s59, s49
    v_lshrrev_b32 v40, 2, v1
    v_mul_u32_u24 v40, 0x1800, v40
    v_and_b32 v3, 3, v1
    v_lshl_add_u32 v40, v3, 7, v40
    v_add_u32 v41, {16*6144}, v40
    v_and_b32 v3, 1, v1
    v_lshlrev_b32 v3, 7, v3
    v_lshrrev_b32 v4, 1, v1
    v_lshl_add_u32 v44, v4, 9, v3
    v_add_u32 v45, 0x4000, v44
    s_bitcmp0_b32 s48, 31
    s_cbranch_scc1 TP_L
    s_bitset0_b32 s48, 31
    """)
    nsleep(A, opt.get("ts1", 40))
    A.label("TP_L")
    A(f"""
    s_and_b32 s4, s48, 15
    s_sub_u32 s49, s49, s4
    s_branch TP_W1
    """)
    A.label("TP_W0")
    A(f"""
    s_cmp_eq_u32 s59, 0
    s_cbranch_scc1 TP_S
    s_barrier
    s_branch TP_W1
    """)
    A.label("TP_S")
    A(f"s_sleep {opt.get('isu', 16)}")
    A.label("TP_W1")
    A(f"""
    s_sub_u32 s4, s4, 1
    s_cbranch_scc0 TP_W0
    s_bfe_u32 s5, s48, 0x30004
    s_bfe_u32 s6, s48, 0x30007
    s_lshr_b32 s48, s48, 10
    s_cmp_eq_u32 s6, 0
    s_cbranch_scc1 TP_X
    s_cmp_ge_u32 s5, 3
    s_cbranch_scc1 TP_Q
    s_lshl_b32 s4, s5, 7
    v_add_u32 v3, s4, v1
    v_add_u32 v4, 64, v3
    v_mul_u32_u24 v3, 171, v3
    v_mul_u32_u24 v4, 171, v4
    v_lshrrev_b32 v3, 10, v3
    v_lshrrev_b32 v4, 10, v4
    v_mul_u32_u24 v3, 1536, v3
    v_mul_u32_u24 v4, 1536, v4
    v_add_u32 v42, v44, v3
    v_add_u32 v43, v45, v4
    s_lshl_b32 s4, s5, 15
    s_add_u32 s4, s4, s46
    s_cmp_ge_u32 s6, 3
    s_cselect_b32 s5, 256, 0
    s_cselect_b32 s7, 3, 0
    s_xor_b32 s4, s4, s5
    s_sub_u32 s6, s6, s7
    s_mul_i32 s6, s6, {2*393216}
    s_add_u32 s4, s4, s6
    s_add_u32 s5, s4, 393216
    buffer_load_dword v16, v42, s[12:15], s4 offen
    buffer_load_dword v17, v43, s[12:15], s4 offen
    buffer_load_dword v18, v42, s[12:15], s5 offen
    buffer_load_dword v19, v43, s[12:15], s5 offen
    s_branch TP_L
    """)
    A.label("TP_Q")
    A(f"""
    s_mul_i32 s4, s5, {2*16*6144}
    s_add_u32 s4, s4, s47
    s_lshl_b32 s6, s6, 10
    s_add_u32 s4, s4, s6
    buffer_load_dword v16, v40, s[8:11], s4 offen
    buffer_load_dword v17, v41, s[8:11], s4 offen
    buffer_load_dword v18, v40, s[8:11], s4 offen offset:512
    buffer_load_dword v19, v41, s[8:11], s4 offen offset:512
    s_branch TP_L
    """)
    A.label("TP_X")
    A(f"""
    s_cmp_eq_u32 s59, 0
    s_cbranch_scc1 IDLE_G_X
    s_branch TP_E1
    """)
    A.label("TP_E0")
    A("s_barrier")
    A.label("TP_E1")
    A(f"""
    s_sub_u32 s49, s49, 1
    s_cbranch_scc0 TP_E0
    """)


def nsleep(A, n):
    while n > 0:
        A(f"s_sleep {min(n, 127)}"); n -= 127


def gen_prod(A, opt):
    SH = opt["sh"]
    NU = 40 * (12 - SH)
    assert all((u * 205) >> 13 == u // 40 for u in range(320))
    A.label("PROD")
    A(f"""
    s_cmp_lt_u32 s59, {NU}
    s_cselect_b32 s61, 1, 0
    s_cselect_b32 s59, s59, s58
    s_mov_b32 s10, {QW_BYTES}
    s_mov_b32 s18, {SC_BYTES}
    s_mov_b32 s19, 0x00020000
    s_mov_b32 s22, {SC_BYTES}
    s_mov_b32 s23, 0x00020000
    v_lshrrev_b32 v6, 5, v1
    v_and_b32 v7, 31, v1
    v_mul_u32_u24 v6, 0x1800, v6
    v_lshl_add_u32 v6, v7, 4, v6
    v_lshlrev_b32 v7, 3, v7
    """)

    def issue(k):
        u = f"s{58+k}"
        st, fl = f"s{50+2*k}", f"s{51+2*k}"
        A(f"""
        s_mul_i32 s4, {u}, 205
        s_lshr_b32 s4, s4, 13
        s_mul_i32 s5, s4, 40
        s_sub_u32 s5, {u}, s5
        s_add_u32 s4, s4, {SH}
        s_lshr_b32 s6, s5, 1
        s_mul_i32 s6, s6, 3072
        s_lshl_b32 s7, s4, 8
        s_add_u32 s6, s6, s7
        s_mul_i32 s42, s5, {16*6144}
        s_lshl_b32 s7, s4, 9
        s_add_u32 s42, s42, s7
        buffer_load_dwordx2 {vr(8+4*k,2)}, v7, s[16:19], s6 offen
        buffer_load_dwordx2 {vr(10+4*k,2)}, v7, s[20:23], s6 offen
        """)
        for i in range(8):
            A(f"buffer_load_dwordx4 {vr(16+32*k+4*i,4)}, v6, s[8:11], s42 offen")
            if i < 7: A("s_add_u32 s42, s42, 12288")
        A(f"""
        s_mul_i32 {st}, s5, 12
        s_add_u32 {st}, {st}, s4
        s_lshl_b32 {st}, {st}, 12
        s_add_u32 {st}, {st}, {SA}
        s_mul_i32 s6, s5, 171
        s_lshr_b32 s6, s6, 9
        s_mul_i32 s7, s6, 3
        s_sub_u32 s7, s5, s7
        s_mul_i32 {fl}, s6, 3072
        s_lshl_b32 s7, s7, 6
        s_add_u32 {fl}, {fl}, s7
        s_lshl_b32 s7, s4, 2
        s_add_u32 {fl}, {fl}, s7
        s_add_u32 {fl}, {fl}, {SFLG}
        """)

    def bars(n, tag):
        if not n: return
        A(f"""
        s_cmp_eq_u32 s60, 0
        s_cbranch_scc1 PROD_B{tag}
        """)
        for _ in range(n): A("s_barrier")
        A.label(f"PROD_B{tag}")

    def compute(k, younger):
        A(f"s_waitcnt vmcnt({younger + 8})")
        scale8(A, 80, 8 + 4 * k, 10 + 4 * k)
        for i in range(8):
            q = 16 + 32 * k + 4 * i
            o = 96 + 16 * k + 2 * i
            A(f"s_waitcnt vmcnt({younger + 7 - i + i // 2})")
            for j in range(4):
                A(f"v_fma_f32 v{88+j}, v{q+j}, v{80+j}, v{84+j}")
            A(f"""
            v_cvt_pk_bf16_f32 v{o}, v88, v89
            v_cvt_pk_bf16_f32 v{o+1}, v90, v91
            """)
            if i & 1:
                A(f"buffer_store_dwordx4 {vr(o-2,4)}, v5, s[24:27], s{50+2*k} offen offset:{1024*(i//2)} sc1")

    issue(0)
    A("""
    s_cmp_lg_u32 s60, 0
    s_cbranch_scc1 PROD_1
    s_waitcnt vmcnt(10)
    """)
    gate_set(A, opt)
    A.label("PROD_1")
    issue(1)
    A(f"""
    s_mov_b32 s46, 0xffff0000
    s_mov_b32 s47, {hex((127+QE) << 23)}
    s_mov_b32 s48, {hex(0x80000000 | ((127+QE-149) << 23))}
    v_lshlrev_b32 v3, 8, v1
    v_mov_b32 v4, 1
    """)
    PB0, PB1 = opt.get("pb0", 0), opt.get("pb1", 2)
    bars(PB0, "0")
    compute(0, 10)
    A("""
    s_cmp_eq_u32 s61, 0
    s_cbranch_scc1 PROD_2
    """)
    compute(1, 4)
    A.label("PROD_2")
    stamp(A, opt, 4)
    bars(PB1, "1")
    poll(A, "PROD_G", DBG, "0", "v2", "v8", 0)
    A(f"""
    s_mov_b64 exec, 0xfff
    buffer_store_dword v4, v3, s[24:27], s51 offen sc1
    buffer_store_dword v4, v3, s[24:27], s53 offen sc1
    s_mov_b64 exec, -1
    """)
    stamp(A, opt, 2)
    A("""
    s_cmp_eq_u32 s60, 0
    s_cbranch_scc1 IDLE_T
    """)
    for _ in range(10 - PB0 - PB1): A("s_barrier")
    A("s_branch P2_MMX")


def gate_set(A, opt):
    A(f"""
    s_barrier
    s_cmp_lg_u32 s36, 0
    s_cbranch_scc1 IDLE_G1
    s_lshl_b32 s4, s37, 2
    v_mov_b32 v3, 0
    v_mov_b32 v4, 1
    s_mov_b64 exec, 1
    buffer_store_dword v4, v3, {DBG}, s4 offen sc1
    s_mov_b64 exec, -1
    """)
    A.label("IDLE_G1")


def gen_xr(A, opt):
    sW, sLOC, sXCD = "s36", "s3", "s37"
    sMT, sNT = "s40", "s41"
    sC = "s48"
    SH = opt.get("sh", 0)
    XU = opt.get("xu", 0)
    XNB = 10 + (4 - XU) * 10 // opt.get("xus", 5) if XU else 10
    A(f"""
    s_sub_u32 s4, {sLOC}, 21
    s_cmp_ge_u32 s4, 5
    s_cselect_b32 s5, 1, 0
    s_cselect_b32 s6, 5, 0
    s_sub_u32 {sNT}, s4, s6
    s_lshl_b32 s7, {sXCD}, 1
    s_add_u32 {sMT}, s7, s5
    s_cmp_ge_u32 {sLOC}, 31
    s_cbranch_scc1 IDLE_WG
    s_cmp_lt_u32 {sW}, 4
    s_cbranch_scc1 XR_MFMA
    s_cmp_lt_u32 {sW}, 6
    s_cbranch_scc1 XR_LD
    """)
    if opt.get("tpr"): A(f"s_setprio {opt['tpr']}")
    gate_addr(A, "v2")
    if SH:
        A(f"""
        s_sub_u32 s58, s2, 168
        s_add_u32 s59, s58, 80
        s_mov_b32 s60, 1
        s_cmp_eq_u32 {sW}, 6
        s_waitcnt lgkmcnt(0)
        s_cbranch_scc1 PROD
        """)
    A(f"""
    v_lshlrev_b32 v6, 7, v1
    s_mul_i32 s4, {sMT}, 5
    s_add_u32 s4, s4, {sNT}
    s_lshl_b32 s5, s4, 15
    s_lshl_b32 s6, s4, 14
    s_mov_b32 s30, {X_BYTES}
    s_mov_b32 s31, 0x00020000
    s_mov_b32 s34, {U_BYTES}
    s_mov_b32 s35, 0x00020000
    s_waitcnt lgkmcnt(0)
    """)
    if opt.get("tx", 1) == 2:
        A(f"""
        s_cmp_lg_u32 {sW}, 6
        s_cbranch_scc1 XR_TX
        """)
        nsleep(A, opt.get("txd", 0))
        for i in range(4):
            A(f"buffer_load_dword v{8+i}, v6, s[28:31], s5 offen")
            if i < 3: A("s_add_u32 s5, s5, 8192")
        for i in range(2):
            A(f"buffer_load_dword v{12+i}, v6, s[32:35], s6 offen")
            if i < 1: A("s_add_u32 s6, s6, 8192")
        A.label("XR_TX")
    elif opt.get("tx", 1):
        if not SH:
            A(f"""
            s_cmp_lg_u32 {sW}, 6
            s_cbranch_scc1 XR_TU
            """)
        for i in range(4):
            A(f"buffer_load_dword v{8+i}, v6, s[28:31], s5 offen")
            if i < 3: A("s_add_u32 s5, s5, 8192")
        if not SH:
            A("s_branch XR_TX")
            A.label("XR_TU")
        for i in range(2):
            A(f"buffer_load_dword v{12+i}, v6, s[32:35], s6 offen")
            if i < 1: A("s_add_u32 s6, s6, 8192")
        A.label("XR_TX")
    WT = opt.get("wt", 2)
    NT_ = opt.get("nch", 12) - opt.get("wtc", 2)
    if not SH:
        A(f"""
        s_cmp_lg_u32 {sW}, 7
        s_cbranch_scc1 XR_W6
        """)
    TB = opt.get("tb", 0)
    TP = opt.get("ts", 0)
    if TP:
        A("s_sub_u32 s4, s3, 21")
        tp_select(A, "s4", tp_tables(opt)[0])
        A(f"s_mov_b32 s49, {XNB}")
        tp_run(A, opt)
    elif TB:
        A(f"""
        s_sub_u32 s4, s3, 21
        s_and_b32 s48, s4, 1
        s_and_b32 s4, s4, 14
        """)
        tb_addr(A, "x", 0, 2)
        A(f"""
        s_lshl_b32 s4, s48, 1
        s_add_u32 s4, s4, {opt.get("wtc", 2)}
        s_mul_i32 s4, s4, s47
        s_add_u32 s46, s46, s4
        s_cmp_eq_u32 s48, 0
        s_cbranch_scc1 TB_X0
        """)
        nsleep(A, opt.get("ts1", 40))
        A.label("TB_X0")
        nsleep(A, opt.get("ts0", 0))
        tb_burst(A, 2, 2, 16)
        A(f"""
        s_add_u32 s46, s46, s47
        s_add_u32 s46, s46, s47
        s_cmp_eq_u32 s48, 0
        s_cselect_b32 s48, {opt.get("tb2", 1)}, {opt.get("tb3", 3)}
        s_sub_u32 s49, {XNB}, s48
        """)
        A.label("TB_X1")
        A(f"""
        s_barrier
        s_sub_u32 s48, s48, 1
        s_cmp_lg_u32 s48, 0
        s_cbranch_scc1 TB_X1
        """)
        if opt.get("nch", 12) <= 8:
            A("""
            s_bitcmp0_b32 s3, 0
            s_cbranch_scc1 TB_X2
            """)
        tb_burst(A, 2, 2, 20)
        A.label("TB_X2")
        A(f"""
        s_barrier
        s_sub_u32 s49, s49, 1
        s_cmp_lg_u32 s49, 0
        s_cbranch_scc1 TB_X2
        """)
    else:
        wt_setup(A, opt, "x")
        k = 0
        for b in range(XNB):
            for _ in range(WT if b == 0 else opt.get("wtn", 2)):
                if k < NT_:
                    wt(A, opt, k, "x"); k += 1
            A("s_barrier")
    A("s_branch P2_MMX")
    if not SH:
        A.label("XR_W6")
        if opt.get("xg"):
            XGC = opt.get("xgc", 10 if MAP["xf"] else XNB)
            assert XGC <= 10 or not MAP["xf"]
            for i in range(opt["xg"]): A("s_barrier")
            A(f"buffer_load_dword v3, v2, {DBG}, 0 offen sc1")
            for i in range(XGC - opt["xg"]): A("s_barrier")
            A(f"s_mov_b32 s7, {POLL_MAX}\ns_waitcnt vmcnt(0)\ns_branch XR_G_C")
            poll(A, "XR_G", DBG, "0", "v2", "v3", 0)
            if opt.get("rr"):
                rr_share(A, "v3", 6)
                A("s_waitcnt lgkmcnt(0)")
            for i in range(XNB - XGC): A("s_barrier")
        else:
            for i in range(5): A("s_barrier")
            poll(A, "XR_G", DBG, "0", "v2", "v3", 0)
            for i in range(XNB - 5): A("s_barrier")
        A("s_branch P2_MMX")
    A.label("IDLE_WG")
    gate_addr(A, "v2")
    if TP:
        assert PXF + 168 * 128 <= FLG + 8 * 12288
        tp_select(A, sW, tp_tables(opt)[1])
        if opt.get("rr"): A("s_memrealtime s[50:51]")
        A(f"""
        s_mov_b32 s49, 0
        s_cmp_lg_u32 {sW}, 0
        s_waitcnt lgkmcnt(0)
        s_cbranch_scc1 TP
        s_setprio 3
        v_mov_b32 v6, 0
        v_mov_b32 v7, 0
        v_mov_b32 v8, 0
        v_mov_b32 v9, 0
        s_mul_i32 s4, {sXCD}, 12288
        s_add_u32 s4, s4, {FLG}
        """)
        for i in range(12):
            A(f"buffer_store_dwordx4 v[6:9], v5, s[24:27], s4 offen offset:{1024*(i&3)} sc1")
            if i & 3 == 3 and i < 11: A("s_add_u32 s4, s4, 4096")
        A(f"""
        s_lshl_b32 s4, s37, 2
        v_mov_b32 v4, 1
        """)
        if opt.get("rr"):
            A(f"""
            s_lshr_b32 s5, s50, 2
            s_lshr_b32 s6, s50, 6
            s_xor_b32 s5, s5, s6
            s_and_b32 s5, s5, {(1 << opt["rr"]) - 1}
            s_mul_i32 s5, s5, 12
            s_add_u32 s5, s5, 36
            v_mov_b32 v4, s5
            """)
        A(f"""
        s_waitcnt vmcnt(0)
        s_mov_b64 exec, 1
        buffer_store_dword v4, v6, {DBG}, s4 offen sc1
        s_mov_b64 exec, -1
        s_setprio 0
        """)
        stamp(A, opt, 4)
        nsleep(A, opt.get("igs", 0))
        if opt.get("rr"):
            poll(A, "IDLE_H", DBG, "0", "v2", "v3", 0, sleep=8)
            rr_share(A, "v3", 6)
            A("s_waitcnt lgkmcnt(0)")
            A.label("IDLE_G_X")
            A("s_barrier")
            rr_ask(A, 6)
            A("s_waitcnt lgkmcnt(0)\nv_readfirstlane_b32 s63, v6")
        else:
            poll(A, "IDLE_G", DBG, "0", "v2", "v3", 0, sleep=8)
            A("s_barrier")
        A(f"""
        s_mov_b32 s60, 0
        s_cmp_lt_u32 {sW}, 4
        s_cbranch_scc1 P2_LD
        s_branch P2_MMI
        """)
        if XU: gen_xu(A, opt)
        else: gen_xr_rest(A, opt)
        return
    A(f"""
    v_mov_b32 v6, 0
    v_mov_b32 v7, 0
    v_mov_b32 v8, 0
    v_mov_b32 v9, 0
    s_lshl_b32 s58, {sXCD}, 3
    s_add_u32 s58, s58, {sW}
    s_mul_i32 s4, s58, 3072
    s_add_u32 s4, s4, {FLG}
    s_waitcnt lgkmcnt(0)
    """)
    for i in range(3):
        A(f"buffer_store_dwordx4 v[6:9], v5, s[24:27], s4 offen offset:{1024*i} sc1")
    if SH:
        A(f"""
        s_add_u32 s59, s58, 224
        s_add_u32 s58, s58, 160
        s_min_u32 s58, s58, {40 * (12 - SH) - 1}
        s_mov_b32 s60, 0
        """)
        gen_prod(A, opt)
    else:
        A("s_waitcnt vmcnt(0)")
        gate_set(A, opt)
    A.label("IDLE_T")
    if opt.get("fw"):
        A(f"""
        s_cmp_ge_u32 {sW}, 6
        s_cbranch_scc1 IDLE_F2
        s_mul_i32 s4, {sXCD}, 6
        s_add_u32 s4, s4, {sW}
        s_mul_i32 s4, s4, 40960
        s_add_u32 s4, s4, {W2F}
        s_mov_b32 s5, 10
        v_mov_b32 v6, -1
        v_mov_b32 v7, -1
        v_mov_b32 v8, -1
        v_mov_b32 v9, -1
        """)
        nsleep(A, opt.get("fd", 0))
        A.label("IDLE_F1")
        for i in range(4):
            A(f"buffer_store_dwordx4 v[6:9], v5, s[24:27], s4 offen offset:{1024*i} sc1")
        nsleep(A, opt.get("fp", 0))
        A(f"""
        s_add_u32 s4, s4, 4096
        s_sub_u32 s5, s5, 1
        s_cmp_lg_u32 s5, 0
        s_cbranch_scc1 IDLE_F1
        """)
        stamp(A, opt, 3)
        A.label("IDLE_F2")
    if TB:
        A(f"""
        s_sub_u32 s4, {sW}, 2
        s_cmp_ge_u32 s4, 5
        s_cbranch_scc1 IDLE_T7
        s_lshl_b32 s4, s4, 1
        """)
        tb_addr(A, "i", 0, 2)
        A(f"""
        s_mul_i32 s4, s47, {8 + opt.get("wtc", 2)}
        s_add_u32 s46, s46, s4
        """)
        nsleep(A, opt.get("ts4", 100))
        if opt.get("nch", 12) > 10: tb_burst(A, 2, 4 - opt.get("wtc", 2), 16)
        A("s_branch IDLE_NT")
        A.label("IDLE_T7")
    A(f"""
    s_cmp_lg_u32 {sW}, 7
    s_cbranch_scc1 IDLE_NT
    """)
    wt_setup(A, opt, "i")
    for k in range(SH - opt.get("wtc", 2) if SH else NT_):
        wt(A, opt, k, "i")
        if k >= WT - 1 and k < NT_ - 1 and not SH: A(f"s_sleep {opt.get('isl', 12)}")
    A.label("IDLE_NT")
    if not SH:
        A(f"""
        s_cmp_lg_u32 {sW}, 0
        s_cbranch_scc1 IDLE_G_X
        """)
        poll(A, "IDLE_G", DBG, "0", "v2", "v3", 0, sleep=8)
    if opt.get("fw"): A("s_waitcnt vmcnt(0)")
    A("s_barrier")
    if opt.get("fw"):
        A(f"""
        s_cmp_lg_u32 {sW}, 1
        s_cbranch_scc1 IDLE_H
        s_lshl_b32 s4, {sXCD}, 2
        v_mov_b32 v3, 32
        v_mov_b32 v4, 1
        s_mov_b64 exec, 1
        buffer_store_dword v4, v3, {DBG}, s4 offen sc1
        s_mov_b64 exec, -1
        """)
        stamp(A, opt, 4)
        A.label("IDLE_H")
    A(f"""
    s_mov_b32 s60, 0
    s_cmp_lt_u32 {sW}, 4
    s_cbranch_scc1 P2_LD
    s_branch P2_MMI
    """)
    if XU: gen_xu(A, opt)
    else: gen_xr_rest(A, opt)


def gen_xr_rest(A, opt):
    sW, sLOC, sXCD = "s36", "s3", "s37"
    sMT, sNT = "s40", "s41"
    sC = "s48"
    A.label("XR_LD")
    if opt.get("cst"): A("s_memtime s[88:89]")
    sOFS, sGRP, sCH = "s43", "s45", "s46"
    vO = 6
    A(f"""
    v_lshrrev_b32 v3, 4, v1
    s_cmp_eq_u32 {sW}, 4
    s_cbranch_scc0 XRL_U
    v_lshrrev_b32 v2, 3, v1
    v_and_b32 v4, 7, v1
    v_xor_b32 v4, v4, v3
    v_lshlrev_b32 v4, 4, v4
    v_mul_u32_u24 v{vO}, 0x500, v2
    v_add_u32 v{vO}, v{vO}, v4
    v_xor_b32 v4, 64, v{vO}
    v_add_u32 v{vO+1}, 9216, v4
    v_add_u32 v{vO+2}, {2*9216}, v{vO}
    v_add_u32 v{vO+3}, {3*9216}, v4
    s_mul_i32 {sOFS}, {sMT}, {128*1280}
    s_mov_b32 {sGRP}, {32*1280}
    s_mov_b32 {sCH}, {128 - 128*1280 + (1<<32)}
    s_movk_i32 s47, 128
    s_mov_b32 m0, 0
    s_mov_b32 s30, {X_BYTES}
    s_waitcnt lgkmcnt(0)
    s_branch XRL_GO
    """)
    A.label("XRL_U")
    A(f"""
    v_and_b32 v4, 15, v1
    v_lshlrev_b32 v2, 2, v3
    v_xor_b32 v4, v4, v2
    v_lshlrev_b32 v4, 4, v4
    v_mul_u32_u24 v{vO}, 0x500, v3
    v_add_u32 v{vO}, v{vO}, v4
    v_add_u32 v{vO+1}, {4*1280-1024}, v{vO}
    v_add_u32 v{vO+2}, {2*(4*1280-1024)}, v{vO}
    v_add_u32 v{vO+3}, {3*(4*1280-1024)}, v{vO}
    s_lshl_b32 {sOFS}, {sNT}, 8
    s_mov_b32 {sGRP}, {16*1280}
    s_mov_b32 {sCH}, 0
    s_mov_b32 s47, {64*1280}
    s_movk_i32 m0, 16384
    s_mov_b32 s30, {U_BYTES}
    s_waitcnt lgkmcnt(0)
    s_mov_b32 s28, s32
    s_mov_b32 s29, s33
    """)
    A.label("XRL_GO")
    A(f"""
    s_mov_b32 s31, 0x00020000
    s_mov_b32 {sC}, 0
    """)
    XRO = opt.get("xra", 0) or opt.get("xrb", 0)
    if XRO:
        A(f"""
        s_mul_i32 s49, {sNT}, {opt.get("xra", 0)}
        s_and_b32 s4, {sMT}, 1
        s_mul_i32 s4, s4, {opt.get("xrb", 0)}
        s_add_u32 s49, s49, s4
        s_mul_i32 s4, {sXCD}, {opt.get("xrc", 0)}
        s_add_u32 s49, s49, s4
        s_mul_i32 s4, s49, 205
        s_lshr_b32 s4, s4, 11
        s_mul_i32 s4, s4, 10
        s_sub_u32 s49, s49, s4
        s_mul_i32 s4, s49, s47
        s_add_u32 {sOFS}, {sOFS}, s4
        s_mul_i32 s47, s47, 10
        s_sub_u32 s49, 10, s49
        """)
    nsleep(A, opt.get("xd", 0))
    A.label("XRL_LOOP")
    for g in range(4):
        for j in range(4):
            A(f"buffer_load_dwordx4 v{vO+j}, s[28:31], {sOFS} offen offset:{1024*j} lds")
        A(f"""
        s_add_u32 m0, m0, 4096
        s_add_u32 {sOFS}, {sOFS}, {sGRP}
        """)
    A(f"""
    s_add_u32 {sOFS}, {sOFS}, {sCH}
    s_add_u32 m0, m0, 16384
    s_and_b32 m0, m0, {4*XSTAGE-1}
    s_add_u32 {sC}, {sC}, 1
    """)
    if XRO:
        A(f"""
        s_cmp_eq_u32 {sC}, s49
        s_cselect_b32 s4, s47, 0
        s_sub_u32 {sOFS}, {sOFS}, s4
        """)
    XT = opt.get("xt", 0)
    A(f"""
    s_and_b32 s4, {sC}, {15 if XT else 13}
    s_cmp_eq_u32 s4, 1
    s_cbranch_scc1 XRL_LOOP
    """)
    cst(A, opt, sC, 32)
    if XT:
        A("s_waitcnt vmcnt(16)")
    else:
        A(f"""
        s_cmp_eq_u32 {sC}, 2
        s_cbranch_scc0 XRL_W
        s_waitcnt vmcnt(16)
        """)
        A.label("XRL_W")
        A("s_waitcnt vmcnt(32)")
    cst(A, opt, sC, 16)
    A("s_barrier")
    cst(A, opt, sC, 0)
    A(f"""
    s_cmp_lt_u32 {sC}, 10
    s_cbranch_scc1 XRL_LOOP
    """)
    if not XT:
        A("s_waitcnt vmcnt(16)")
        cst(A, opt, 0, 27)
        A("s_barrier")
        cst(A, opt, 0, 11)
    A("s_waitcnt vmcnt(0)")
    cst(A, opt, 0, 28)
    A("s_barrier")
    cst(A, opt, 0, 12)
    cst_out(A, opt)
    A("s_branch P2_MMX")
    A.label("XR_MFMA")
    sCST = "s43"
    vXR = 6
    vUR = 10
    vT = 12
    vACC = 20
    vF = 84
    A(f"""
    s_lshr_b32 s4, {sW}, 1
    s_and_b32 s5, {sW}, 1
    s_lshl_b32 s6, s4, 13
    v_and_b32 v3, 31, v1
    v_bfe_u32 v4, v1, 1, 3
    v_lshrrev_b32 v{vT}, 5, v1
    v_xor_b32 v4, v4, v{vT}
    v_lshlrev_b32 v4, 4, v4
    v_lshl_add_u32 v4, v3, 7, v4
    v_add_u32 v{vXR}, s6, v4
    v_xor_b32 v{vXR+1}, 32, v{vXR}
    v_xor_b32 v{vXR+2}, 64, v{vXR}
    v_xor_b32 v{vXR+3}, 96, v{vXR}
    v_bfe_u32 v2, v1, 4, 1
    v_bfe_u32 v3, v1, 2, 2
    s_lshl_b32 s6, s5, 1
    v_xor_b32 v4, s6, v3
    v_lshlrev_b32 v4, 6, v4
    v_lshl_add_u32 v4, v3, 8, v4
    v_lshl_add_u32 v4, v{vT}, 11, v4
    v_lshl_add_u32 v4, v2, 5, v4
    v_and_b32 v3, 3, v1
    v_lshl_add_u32 v4, v3, 3, v4
    v_add_u32 v{vUR}, 16384, v4
    v_xor_b32 v{vUR+1}, 64, v{vUR}
    s_mov_b32 {sCST}, 0
    s_mov_b32 {sC}, 0
    s_lshl_b32 s6, {sMT}, 1
    s_add_u32 s6, s6, s4
    s_lshl_b32 s7, {sNT}, 1
    s_add_u32 s7, s7, s5
    s_mul_i32 s51, s4, 10
    s_add_u32 s51, s51, s7
    s_lshl_b32 s51, s51, {7 if MAP["lf"] else 2}
    s_mul_i32 s52, {sMT}, {20*128 if MAP["lf"] else 2048}
    s_add_u32 s51, s51, s52
    s_add_u32 s51, s51, {FLG + 672*128 if MAP["lf"] else XFLG}
    s_mov_b32 s53, 7
    s_mul_i32 s6, s6, 80
    s_lshl_b32 s7, s7, 2
    s_add_u32 s6, s6, s7
    s_lshl_b32 s50, s6, 10
    s_add_u32 s52, s50, 40960
    """)
    if MAP["ac"]:
        A(f"""
        s_lshl_b32 s51, {sMT}, 11
        s_add_u32 s51, s51, {FLG + 32768}
        """)
    for i in range(0, 64, 2):
        A(f"v_mov_b64 {vr(vACC+i,2)}, 0")
    for i in range(0, 64, 2):
        A(f"v_mov_b64 {vr(vF+64+i,2)}, 0")
    A("s_waitcnt lgkmcnt(0)")

    def reads(s, buf):
        f = vF + 64 * buf + 16 * s
        r = []
        for tn in range(2):
            r.append(f"ds_read_b128 {vr(f+8+4*tn,4)}, v{vT+s} offset:{4096*tn}")
            for u in range(2):
                r.append(f"ds_read_b64_tr_b16 {vr(f+4*tn+2*u,2)}, v{vT+4+tn} offset:{s*4096+u*1024}")
        return r

    def mfmas(s, buf):
        f = vF + 64 * buf + 16 * s
        r = []
        for tm in range(2):
            for tn in range(2):
                acc = vACC + 32 * tm + 16 * tn
                r.append(f"v_mfma_f32_32x32x16_bf16 {vr(acc,16)}, {vr(f+4*tn,4)}, {vr(f+8+4*tm,4)}, {vr(acc,16)}")
        return r

    A.label("XR_LOOP")
    for buf in range(2):
        for i in range(4):
            A(f"v_add_u32 v{vT+i}, {sCST}, v{vXR+i}")
        for i in range(2):
            A(f"v_add_u32 v{vT+4+i}, {sCST}, v{vUR+i}")
        A(f"""
        s_add_u32 {sCST}, {sCST}, {XSTAGE}
        s_and_b32 {sCST}, {sCST}, {4*XSTAGE-1}
        s_barrier
        """)
        rd = sum((reads(s_, buf) for s_ in range(4)), [])
        mf = sum((mfmas(s_, buf ^ 1) for s_ in range(4)), [])
        ri = 0
        for m in mf:
            A(m)
            for x in rd[ri:ri + 2]: A(x)
            ri += 2
        for x in rd[ri:]: A(x)
        A("s_waitcnt lgkmcnt(0)")
    A(f"""
    s_add_u32 {sC}, {sC}, 2
    s_cmp_lt_u32 {sC}, 10
    s_cbranch_scc1 XR_LOOP
    s_barrier
    """)
    for s_ in range(4):
        for m in mfmas(s_, 1): A(m)
    A("s_nop 15")
    stamp(A, opt, 3)
    for tm in range(2):
        for i in range(4):
            a = vACC + 32 * tm + 8 * i
            o = vF + 16 * tm + 4 * i
            for j in range(4):
                A(f"v_cvt_pk_bf16_f32 v{o+j}, v{a+2*j}, v{a+2*j+1}")
            A(f"buffer_store_dwordx4 {vr(o,4)}, v5, s[24:27], s{50+2*tm} offen offset:{1024*i} sc1")


def gen_xu(A, opt):
    sW, sLOC, sXCD = "s36", "s3", "s37"
    sMT, sNT = "s40", "s41"
    sC = "s48"
    NB = opt["xu"]
    UPS = opt.get("xus", 5)
    S2 = (4 - NB) * 10 // UPS
    NST = 10 + S2
    SS = 4096 * max(NB + 4, UPS)
    NS = opt.get("xns", LDS1 // SS)
    DP = opt.get("xdp", 2)
    assert NS * SS <= LDS1 and 2 <= DP <= NS - 2 and 10 % UPS == 0
    UO = 4096 * NB
    sOFS = "s43"
    vO = 6
    A.label("XR_LD")
    if opt.get("cst"): A("s_memtime s[88:89]")
    A(f"""
    v_lshrrev_b32 v3, 4, v1
    s_mov_b32 s31, 0x00020000
    s_mov_b32 {sC}, 0
    s_cmp_eq_u32 {sW}, 4
    s_cbranch_scc0 XRL_U
    v_lshrrev_b32 v2, 3, v1
    v_and_b32 v4, 7, v1
    v_xor_b32 v4, v4, v3
    v_lshlrev_b32 v4, 4, v4
    v_mul_u32_u24 v{vO}, 0x500, v2
    v_add_u32 v{vO}, v{vO}, v4
    v_xor_b32 v4, 64, v{vO}
    v_add_u32 v{vO+1}, 9216, v4
    v_add_u32 v{vO+2}, {2*9216}, v{vO}
    v_add_u32 v{vO+3}, {3*9216}, v4
    s_mul_i32 {sOFS}, {sMT}, {128*1280}
    s_mov_b32 m0, 0
    s_mov_b32 s30, {X_BYTES}
    s_waitcnt lgkmcnt(0)
    """)

    def grp():
        for j in range(4):
            A(f"buffer_load_dwordx4 v{vO+j}, s[28:31], {sOFS} offen offset:{1024*j} lds")

    def wrap(used, base):
        A(f"""
        s_add_u32 m0, m0, {SS - used + 4096}
        s_cmp_ge_u32 m0, {NS*SS}
        s_cselect_b32 m0, {base}, m0
        """)

    def sync(n, tag):
        cst(A, opt, sC, 32)
        A(f"s_waitcnt vmcnt({n})")
        cst(A, opt, sC, 16)
        A("s_barrier")
        cst(A, opt, sC, 0)
    cnt = lambda j: 4 * NB if j < 10 else 4 * UPS if j < NST else 0
    A.label("XRL_XL")
    for g in range(NB):
        grp()
        if g < NB - 1:
            A(f"""
            s_add_u32 m0, m0, 4096
            s_add_u32 {sOFS}, {sOFS}, {32*1280}
            """)
    A(f"s_add_u32 {sOFS}, {sOFS}, {(128 - (NB-1)*32*1280) % (1 << 32)}")
    wrap(4096 * NB, 0)
    A(f"""
    s_add_u32 {sC}, {sC}, 1
    s_cmp_lt_u32 {sC}, {DP}
    s_cbranch_scc1 XRL_XL
    """)
    sync(4 * NB * (DP - 1), "x")
    A(f"""
    s_cmp_lt_u32 {sC}, 10
    s_cbranch_scc1 XRL_XL
    s_add_u32 {sOFS}, {sOFS}, {NB*32*1280 - 1280}
    """)
    for j in range(10, NST + DP - 1):
        if j < NST:
            for u in range(UPS):
                if sum(cnt(i) for i in range(j - DP + 1, j)) + 4 * u + 4 > 63: A("s_waitcnt vmcnt(59)")
                grp()
                last = ((j - 10) * UPS + u) % 10 == 9
                A(f"s_add_u32 {sOFS}, {sOFS}, {32*1280 - 1280 + 128 if last else 128}")
                if u < UPS - 1: A("s_add_u32 m0, m0, 4096\ns_nop 0")
            wrap(4096 * UPS, 0)
        if opt.get("cst"): A(f"s_add_u32 {sC}, {sC}, 1")
        sync(min(63, sum(cnt(i) for i in range(j - DP + 2, j + 1))), "x2")
    cst_out(A, opt)
    A("s_branch P2_MMX")
    A.label("XRL_U")
    A(f"""
    v_and_b32 v4, 15, v1
    v_lshlrev_b32 v2, 2, v3
    v_xor_b32 v4, v4, v2
    v_lshlrev_b32 v4, 4, v4
    v_mul_u32_u24 v{vO}, 0x500, v3
    v_add_u32 v{vO}, v{vO}, v4
    v_add_u32 v{vO+1}, {4*1280-1024}, v{vO}
    v_add_u32 v{vO+2}, {2*(4*1280-1024)}, v{vO}
    v_add_u32 v{vO+3}, {3*(4*1280-1024)}, v{vO}
    s_lshl_b32 {sOFS}, {sNT}, 8
    s_mov_b32 m0, {UO}
    s_mov_b32 s30, {U_BYTES}
    s_waitcnt lgkmcnt(0)
    s_mov_b32 s28, s32
    s_mov_b32 s29, s33
    """)
    A.label("XRL_UL")
    for g in range(4):
        if 16 * (DP - 1) + 4 * g + 4 > 63: A("s_waitcnt vmcnt(59)")
        grp()
        A(f"s_add_u32 {sOFS}, {sOFS}, {16*1280}")
        if g < 3: A("s_add_u32 m0, m0, 4096\ns_nop 0")
    wrap(16384, UO)
    A(f"""
    s_add_u32 {sC}, {sC}, 1
    s_cmp_lt_u32 {sC}, {DP}
    s_cbranch_scc1 XRL_UL
    """)
    assert 16 * (DP - 1) <= 63
    sync(16 * (DP - 1), "u")
    A(f"""
    s_cmp_lt_u32 {sC}, 10
    s_cbranch_scc1 XRL_UL
    """)
    for j in range(10, NST + DP - 1):
        if opt.get("cst"): A(f"s_add_u32 {sC}, {sC}, 1")
        if j - DP + 1 < 10: sync(16 * (9 - (j - DP + 1)), "u2")
        else: A("s_barrier")
    cst_out(A, opt)
    A("s_branch P2_MMX")

    A.label("XR_MFMA")
    vXR = 6
    vUR = 10
    vACC = 16
    vF = 64
    NF = 8
    vU = 96
    A(f"""
    v_and_b32 v3, 31, v1
    v_bfe_u32 v4, v1, 1, 3
    v_lshrrev_b32 v11, 5, v1
    v_xor_b32 v4, v4, v11
    v_lshlrev_b32 v4, 4, v4
    v_lshl_add_u32 v{vXR}, v3, 7, v4
    v_xor_b32 v{vXR+1}, 32, v{vXR}
    v_xor_b32 v{vXR+2}, 64, v{vXR}
    v_xor_b32 v{vXR+3}, 96, v{vXR}
    v_bfe_u32 v2, v1, 4, 1
    v_bfe_u32 v3, v1, 2, 2
    v_xor_b32 v4, {sW}, v3
    v_lshlrev_b32 v4, 6, v4
    v_lshl_add_u32 v4, v3, 8, v4
    v_lshl_add_u32 v4, v11, 11, v4
    v_lshl_add_u32 v4, v2, 5, v4
    v_and_b32 v3, 3, v1
    v_lshl_add_u32 v{vUR}, v3, 3, v4
    s_mul_i32 s6, {sMT}, 160
    s_lshl_b32 s7, {sNT}, 3
    s_add_u32 s6, s6, s7
    s_lshl_b32 s7, {sW}, 1
    s_add_u32 s6, s6, s7
    s_lshl_b32 s50, s6, 10
    s_mov_b32 s53, 7
    s_lshl_b32 s51, {sMT}, 11
    s_add_u32 s51, s51, {FLG + 32768}
    s_waitcnt vmcnt(0) lgkmcnt(0)
    """)
    assert MAP["ac"]
    rd, ops = [], []
    RR = opt.get("rr", 0)
    if RR: A(f"v_mov_b32 v12, {LFLAG}")
    for c in range(10):
        for s_ in range(4):
            k = 4 * c + s_
            if RR and c == opt.get("xgc", 10) and s_ == 1:
                rd.append(("r", c, "ds_read_b32 v12, v12 offset:16", 0))
                RRI = len(rd) - 1
            for u in range(2):
                rd.append(("u", c, f"ds_read_b64_tr_b16 {vr(vU+4*k+2*u,2)}, v{vUR}", UO + s_ * 4096 + u * 1024))
            for rb in range(NB):
                rd.append(("x", c, f"v{vXR+s_}", 4096 * rb))
                ops.append((rb, k, len(rd) - 1))
    for rb in range(NB, 4):
        for c in range(10):
            j, u = divmod((rb - NB) * 10 + c, UPS)
            for s_ in range(4):
                rd.append(("x", 10 + j, f"v{vXR+s_}", 4096 * u))
                ops.append((rb, 4 * c + s_, len(rd) - 1))
    xno = {}
    for i, r in enumerate(rd):
        if r[0] == "x": xno[i] = len(xno)
    RA = opt.get("xra2", 7)
    assert RA < NF
    st = {"ri": 0, "step": -1, "base": 0}

    def issue():
        kind, step, txt, off = rd[st["ri"]]
        if step != st["step"]:
            A("s_barrier")
            st["step"] = step
            a = (step % NS) * SS
            if a < st["base"] or a + SS - st["base"] > 65536:
                d = (a - st["base"]) % (1 << 32)
                for v in range(vXR, vUR + (1 if step < 10 else 0)): A(f"v_add_u32 v{v}, {hex(d)}, v{v}")
                st["base"] = a
        o = (step % NS) * SS - st["base"] + off
        if kind == "r": A(txt)
        elif kind == "u": A(f"{txt} offset:{o}")
        else: A(f"ds_read_b128 {vr(vF + 4 * (xno[st['ri']] % NF), 4)}, {txt} offset:{o}")
        st["ri"] += 1

    def may(i):
        r = st["ri"]
        if r >= len(rd): return False
        nx = r
        while rd[nx][0] != "x": nx += 1
        return xno[nx] < i + RA and r - ops[min(i, len(ops) - 1)][2] < 15

    def epi(rb):
        a = vACC + 16 * (rb % 3)
        r = []
        for h in range(2):
            b = a + 8 * h
            r.append([f"v_cvt_pk_bf16_f32 v{b+j}, v{b+2*j}, v{b+2*j+1}" for j in range(4)])
            r.append([f"buffer_store_dwordx4 {vr(b,4)}, v5, s[24:27], s50 offen offset:{1024*h} sc1"] + (["s_add_u32 s50, s50, 40960"] if h else []))
        return r
    last = {rb: max(i for i, o in enumerate(ops) if o[0] == rb) for rb in range(4)}
    pending = []
    got = -1
    XF = MAP["xf"]
    vm = []

    def tell(g, rbs):
        n = len(vm) - 1 - max(j for j, x in enumerate(vm) if x in rbs)
        assert all(vm.count(x) == 2 for x in rbs)
        A(f"""
        s_waitcnt vmcnt({n})
        s_mov_b64 exec, 0xffff
        buffer_atomic_add v2, v3, s[24:27], s51 offen offset:{g * XF} sc1
        s_mov_b64 exec, -1
        """)
        vm.append(-1)
    if XF:
        assert NB == 2 and opt.get("xg")
        A("""
        v_mov_b32 v2, 1
        v_lshlrev_b32 v3, 7, v1
        """)
        XFA, XFB = 80 + opt.get("xfa", 36), 80 + opt.get("xfb", 80)
    for i, (rb, k, need) in enumerate(ops):
        if XF and i == XFA:
            assert st["step"] >= 10
            tell(0, (0, 1))
        if XF and i == XFB: tell(1, (2,))
        while may(i) and (st["ri"] <= need or i == 0): issue()
        assert st["ri"] > need
        if rb == 3 and k == 0 and NB == 3:
            A("s_nop 7")
            for x in sum(epi(0), []): A(x)
        if need > got:
            A(f"s_waitcnt lgkmcnt({st['ri'] - need - 1})")
            if RR and got < RRI <= need: A("v_readfirstlane_b32 s63, v12\ns_add_u32 s50, s50, s63")
            got = need
        acc = vr(vACC + 16 * (rb % 3), 16)
        A(f"v_mfma_f32_32x32x16_bf16 {acc}, {vr(vU+4*k,4)}, {vr(vF + 4 * (xno[need] % NF), 4)}, {'0' if k == 0 else acc}")
        n = 0
        while may(i + 1) and n < 3:
            issue(); n += 1
        for t in range(3):
            if i == last[t] + 2 + (NB - 1 - t if t < NB else 0) and not (NB == 3 and t == 0):
                pending += epi(t)
        if pending:
            for x in pending.pop(0):
                A(x)
                if x.startswith("buffer_store"): vm.append(len(vm) - vm.count(-1) >> 1)
    assert not pending
    A("s_nop 15")
    stamp(A, opt, 3)
    for x in sum(epi(3), []): A(x)
    vm += [3, 3]
    A("s_barrier")
    if XF:
        if XFB >= len(ops): tell(1, (2,))
        tell(2, (3,))
        stamp(A, opt, 4)
        A("s_branch P2_LD")


VX = 96


def xload(A, opt, kb):
    if opt.get("m16"):
        A(f"buffer_load_dwordx4 {vr(VX+4*kb,4)}, v3, s[24:27], s20 offen offset:{2048 * (kb >> 1 & 1) + 256 * (kb & 1)} sc1")
    else:
        A(f"buffer_load_dwordx4 {vr(VX+4*kb,4)}, v5, s[24:27], s20 offen offset:{1024 * (kb & 3)} sc1")
    if kb & 3 == 3 and kb < 39:
        A("s_add_u32 s20, s20, 4096")


def p2_rot(A, opt):
    lm = MAP["m"]
    A(f"""
    s_and_b32 s17, s3, {(1 << lm) - 1}
    s_mul_i32 s17, s17, 0
    s_lshr_b32 s16, s3, {lm}
    s_mul_i32 s16, s16, 0
    s_add_u32 s17, s17, s16
    s_mul_i32 s16, s17, 205
    s_lshr_b32 s16, s16, 11
    s_mul_i32 s16, s16, 10
    s_sub_u32 s17, s17, s16
    s_lshl_b32 s17, s17, 12
    """)


def gen_p2(A, opt):
    NA = opt.get("na", 2)
    OLD = opt.get("old", 0)
    order = [(n, kb) for kb in range(40) for n in range(NA)] + [(n, kb) for n in range(NA, 3) for kb in range(40)]
    groups = []
    for n, kb in order:
        if (n, kb // 4) not in groups: groups.append((n, kb // 4))
    CH = {1: [2, 2, 4, 4, 4, 4, 10], 2: [2, 2, 2, 2, 4, 4, 4, 5, 5], 3: [2, 4, 6, 8, 10], 4: [3, 3, 6, 6, 6, 6],
          5: [1, 1, 2, 2, 4, 10, 10]}[opt.get("ch", 1)]
    assert sum(CH) == 30
    st = [sum(CH[:i]) for i in range(len(CH) + 1)]
    A.label("P2_PUB")
    publish(A, opt, "s51", "s53")
    A.label("P2_LD")
    p2_tile(A)
    if OLD: p2_rot(A, opt)
    A(f"""
    s_mul_i32 s22, s39, 122880
    s_add_u32 s22, s22, {W2F}
    s_lshl_b32 s21, s36, 10
    s_add_u32 s22, s22, s21
    """)
    if opt.get("rr"): A("s_add_u32 s22, s22, s63")
    if OLD: A("""
    s_add_u32 s20, s22, s17
    s_add_u32 s19, s22, 40960
    """)
    M16 = opt.get("m16", 0)
    if M16:
        A("""
        v_bfe_u32 v2, v1, 2, 2
        v_bfe_u32 v3, v1, 4, 1
        v_and_b32 v5, 0x23, v1
        v_lshl_add_u32 v5, v2, 3, v5
        v_lshl_add_u32 v5, v3, 2, v5
        v_lshlrev_b32 v5, 4, v5
        """)
    A(f"""
    v_lshlrev_b32 v2, {7 if MAP["lf"] else 2}, v1
    v_mov_b32 v4, {LFLAG}
    """)
    if opt.get("wpa"):
        A("s_mul_i32 s4, s36, %d" % opt.get("wst", 3))
        A.label("P2_WD")
        A("""
        s_sleep 1
        s_sub_u32 s4, s4, 1
        s_cbranch_scc0 P2_WD
        """)
        spoll(A, "P2_WA", "s45", 42, opt.get("wsl", 0))
        A("s_branch P2_GO")
    A("""
    s_cmp_lg_u32 s36, 0
    s_cbranch_scc1 P2_LW0
    """)
    if OLD: A("""
    s_sub_u32 s4, s44, s45
    s_sub_u32 s4, s4, 168
    """)
    EF = MAP["ef"]
    if MAP["ac"]:
        pass
    elif EF:
        A("""
        v_min_u32 v2, s43, v1
        v_lshlrev_b32 v2, 7, v2
        """)
    else:
        A("v_cmp_gt_u32 vcc, 42, v1")
        if OLD: A("v_add_u32 v3, s4, v2")
        A("""
        v_mov_b32 v3, 0
        v_cndmask_b32 v2, v3, v2, vcc
        """)
    if opt.get("wpp"):
        A("s_mov_b32 s61, 0")
        npoll(A, "P2_W", "s45", 42, opt["wpp"], "s61")
    elif MAP["ac"]:
        spoll(A, "P2_W", "s45", 42, opt.get("wsl", 0))
    elif EF:
        poll(A, "P2_W", "s[24:27]", "s45", "v2", "v3", 0, sleep=opt.get("wsl", 16),
             st=(lambda: stamp(A, opt, 1)) if opt.get("pst") else None)
    elif opt.get("pp"):
        for i in range(opt["pp"]): A(f"v_mov_b32 v{8+i}, 0")
        ppoll(A, "P2_W", "s[24:27]", "s45", "v2", 8, opt["pp"], DC_W, opt.get("wsl", 4))
    else:
        poll(A, "P2_W", "s[24:27]", "s45", "v2", "v3", DC_W, sleep=opt.get("wsl", 16),
             st=(lambda: stamp(A, opt, 1)) if opt.get("pst") else None)

    def lds_wait(name, ofs, vd, va):
        A(f"s_branch {name}")
        A.label(name + "_S")
        A(f"s_sleep {opt.get('lsl', 1)}")
        A.label(name)
        A(f"""
        ds_read_b32 {vd}, {va} offset:{ofs}
        s_waitcnt lgkmcnt(0)
        """)
        poll_check(A, vd, 0, name + "_S")
    A(f"""
    v_mov_b32 v3, 1
    ds_write_b32 v4, v3 offset:4
    s_branch P2_GO
    """)
    A.label("P2_LW0")
    lds_wait("P2_LW", 4, "v3", "v4")
    A.label("P2_GO")
    stamp(A, opt, 5)
    AH = opt.get("ah", 3)

    def issue(c):
        for n, q in groups[st[c]:st[c + 1]]:
            off = (n * 40 + q * 4) * 1024
            A(f"""
            s_add_u32 s5, s22, {off}
            s_add_u32 m0, s21, {off}
            s_nop 0
            buffer_load_dwordx4 v5, s[24:27], s5 offen sc1 lds
            """)

    for c in range(min(AH, len(CH))): issue(c)
    if EF:
        A(f"""
        v_add_u32 v6, s21, v5
        v_add_u32 v7, 61440, v6
        s_mov_b32 s7, {POLL_MAX}
        """)
    for c in range(len(CH)):
        issued = min(len(CH), AH + c)
        A(f"s_waitcnt vmcnt({st[issued] - st[c+1]})")
        if EF:
            A.label(f"P2_V{c}")
            g = groups[st[c]:st[c + 1]]
            for i, (n, q) in enumerate(g):
                off = (n * 40 + q * 4) * 1024
                base, o = ("v6", off) if off < 61440 else ("v7", off - 61440)
                A(f"ds_read_b128 {vr(8+4*i,4)}, {base} offset:{o}")
            for i in range(len(g)):
                A(f"s_waitcnt lgkmcnt({len(g)-1-i})")
                r = 8 + 4 * i
                if i == 0:
                    A(f"v_max_u32 v3, v{r}, v{r+1}")
                else:
                    A(f"v_max3_u32 v3, v3, v{r}, v{r+1}")
                A(f"v_max3_u32 v3, v3, v{r+2}, v{r+3}")
            A(f"""
            v_cmp_eq_u32 vcc, -1, v3
            s_cbranch_vccnz P2_R{c}
            """)
            A.label(f"P2_K{c}")
        A("s_barrier")
        if AH + c < len(CH): issue(AH + c)
    stamp(A, opt, 6)
    if EF and opt.get("stamp"):
        A(f"""
        s_sub_u32 s7, {POLL_MAX}, s7
        s_cmp_eq_u32 s7, 0
        s_cbranch_scc1 K_EXIT
        v_mov_b32 v3, s7
        v_mov_b32 v2, 192
        s_mov_b64 exec, 1
        buffer_atomic_add v3, v2, {DBG}, 0 offen sc1
        s_mov_b64 exec, -1
        """)
    A("s_branch K_EXIT")
    if EF:
        for c in range(len(CH)):
            A.label(f"P2_R{c}")
            A(f"""
            s_cmp_eq_u32 s7, 0
            s_cbranch_scc1 P2_K{c}
            s_sub_u32 s7, s7, 1
            """)
            nsleep(A, opt.get("rsl", 0))
            issue(c)
            A(f"""
            s_waitcnt vmcnt(0)
            s_branch P2_V{c}
            """)

    vACC = 8
    vF = 56
    NF = 8
    vO = 88
    if opt.get("rr"):
        A.label("P2_MMR")
        rr_ask(A, 6)
        A("s_waitcnt lgkmcnt(0)\nv_readfirstlane_b32 s63, v6\ns_branch P2_MM")
    A.label("P2_MMX")
    if opt.get("rr"):
        rr_ask(A, 6)
        A("s_waitcnt lgkmcnt(0)\nv_readfirstlane_b32 s63, v6")
    NW = opt.get("nw", 0)
    if NW:
        assert MAP["xf"]
        p2_tile(A)
        A("s_buffer_load_dword s62, s[24:27], s44 glc")
    if NW != 2: A("s_barrier")
    if opt.get("cp2"):
        A("s_getpc_b64 s[4:5]")
        A.label("P2_PC")
        L0 = "P2_PUB" if opt["cp2"] == 1 else "W2L_LOOP"
        A(f"""
        s_sub_u32 s4, s4, P2_PC-{L0}
        s_subb_u32 s5, s5, 0
        v_and_b32 v3, {63 if opt["cp2"] == 1 else 255 if opt.get("xu") else 127}, v0
        v_lshlrev_b32 v3, 7, v3
        v_min_u32 v3, CODE_END-{L0}-4, v3
        global_load_dword v250, v3, s[4:5]
        """)
    if NW == 2: A("s_barrier")
    A.label("P2_MMI")
    A.label("P2_MM")
    if not opt.get("sh"): stamp(A, opt, 2)
    XB = opt.get("xb", 0)
    XF = MAP["xf"]
    if opt.get("nb") == 2 and not XF:
        A(f"""
        v_mov_b32 v95, {LFLAG}
        ds_read_b32 v94, v95
        """)
    p2_tile(A)
    if OLD: p2_rot(A, opt)
    A(f"""
    s_lshl_b32 s4, s38, 2
    s_add_u32 s4, s4, s36
    s_sub_u32 s4, s4, 4
    """)
    if OLD:
        A("""
        s_mul_i32 s18, s4, 40960
        s_add_u32 s19, s18, 40960
        s_add_u32 s20, s18, s17
        """)
    else:
        A("s_mul_i32 s20, s4, 40960")
        if opt.get("rr"): A("s_add_u32 s20, s20, s63")
    A(f"""
    s_mul_i32 s4, s4, {32*3072}
    s_mul_i32 s5, s39, 192
    s_add_u32 s23, s4, s5
    s_add_u32 s22, s23, {16*3072}
    """)
    if M16:
        A("""
        v_and_b32 v6, 15, v1
        v_and_b32 v7, 48, v1
        v_lshlrev_b32 v3, 4, v6
        v_lshl_add_u32 v3, v7, 5, v3
        """)
    else:
        A("""
        v_bfe_u32 v2, v1, 2, 1
        v_bfe_u32 v4, v1, 3, 2
        v_and_b32 v3, 0x23, v1
        v_lshl_add_u32 v3, v2, 4, v3
        v_lshl_add_u32 v3, v4, 2, v3
        v_lshlrev_b32 v3, 4, v3
        v_and_b32 v6, 15, v1
        v_and_b32 v7, 48, v1
        """)
    A("""
    v_mul_u32_u24 v6, 0xc00, v6
    v_add_u32 v6, v6, v7
    v_add_u32 v4, 61440, v3
    """)
    if not NW: A("s_waitcnt vmcnt(0)")
    A(f"""
    v_min_u32 v2, 19, v1
    v_lshlrev_b32 v2, {7 if MAP["lf"] else 2}, v2
    v_mov_b32 v8, {LFLAG}
    """)
    if XF:
        spoll(A, "P2_XF", "s44", 20, opt.get("xsl", 0), first=False, sd="s62")
        A("s_branch P2_XW_E")
    elif opt.get("nb") == 2:
        A("""
        s_waitcnt lgkmcnt(0)
        v_readfirstlane_b32 s4, v94
        s_cmp_lg_u32 s4, 0
        s_cbranch_scc1 P2_XW_E
        """)
    A("""
    s_cmp_lg_u32 s36, 7
    s_cbranch_scc1 P2_XW
    """)

    def wait_stores(tag, word=12):
        A(f"""
        s_cmp_ge_u32 s3, 21
        s_cbranch_scc1 P2_WS{tag}_X
        """)
        A.label(f"P2_WS{tag}")
        if word == 8 and opt.get("xvs"): A(f"s_sleep {opt['xvs']}")
        A(f"""
        ds_read_b32 v7, v8 offset:{word}
        s_waitcnt lgkmcnt(0)
        v_readfirstlane_b32 s4, v7
        s_cmp_lt_u32 s4, 4
        s_cbranch_scc1 P2_WS{tag}
        """)
        A.label(f"P2_WS{tag}_X")
    if MAP["ac"]:
        spoll(A, "P2_X", "s44", 20, opt.get("xsl", 0))
    elif opt.get("px"):
        ppoll(A, "P2_X", "s[24:27]", "s44", "v2", 88, opt["px"], 0, opt.get("xsl", 4))
    else:
        poll(A, "P2_X", "s[24:27]", "s44", "v2", "v7", 0, sleep=opt.get("xsl", 16))
    if opt.get("xap"):
        A("""
        s_cmp_ge_u32 s3, 31
        s_cbranch_scc1 P2_XA_X
        """)
        A.label("P2_XA")
        A("""
        ds_read_b32 v7, v8 offset:8
        s_waitcnt lgkmcnt(0)
        v_readfirstlane_b32 s4, v7
        s_cmp_lt_u32 s4, 4
        s_cbranch_scc1 P2_XA
        """)
        A.label("P2_XA_X")
    A("""
    v_mov_b32 v7, 1
    ds_write_b32 v8, v7
    s_branch P2_XW_X
    """)
    A.label("P2_XW_S")
    A("s_sleep 2")
    A.label("P2_XW")
    A("""
    ds_read_b32 v7, v8
    s_waitcnt lgkmcnt(0)
    """)
    poll_check(A, "v7", 0, "P2_XW_S")
    A.label("P2_XW_X")
    if opt.get("xw"): wait_stores("a")
    A.label("P2_XW_E")
    if opt.get("xpr"): A(f"s_setprio {opt['xpr']}")
    stamp(A, opt, 1)
    XS = opt.get("xs", 40)
    XE = opt.get("xe", 2)
    xi = [XS]
    for kb in range(XS):
        if XB and kb == XB % 100: wait_stores("b")
        if opt.get("xv") and kb == opt["xv"] % 100:
            assert opt.get("px") and MAP["xf"] and XB
            wait_stores("v", 8)
        xload(A, opt, kb)
    stamp(A, opt, 5, True)
    if opt.get("mpr"): A(f"s_setprio {opt['mpr']}")

    def epi(t, o=vO):
        a = vACC + 16 * t
        if M16:
            return [[f"v_cvt_pk_bf16_f32 v{o+j}, v{a+2*j}, v{a+2*j+1}" for j in range(2)],
                    [f"v_cvt_pk_bf16_f32 v{o+j}, v{a+2*j}, v{a+2*j+1}" for j in range(2, 4)],
                    [f"buffer_store_dwordx4 {vr(o,4)}, v6, s[96:99], s23 offen offset:{64*t}{ysfx(t)}"],
                    [f"v_cvt_pk_bf16_f32 v{o+j}, v{a+2*j}, v{a+2*j+1}" for j in range(4, 6)],
                    [f"v_cvt_pk_bf16_f32 v{o+j}, v{a+2*j}, v{a+2*j+1}" for j in range(6, 8)],
                    [f"buffer_store_dwordx4 {vr(o+4,4)}, v6, s[96:99], s22 offen offset:{64*t}{ysfx(t)}"]]
        return [[f"v_cvt_pk_bf16_f32 v{o+j}, v{a+2*j}, v{a+2*j+1}" for j in range(4)],
                [f"v_cvt_pk_bf16_f32 v{o+j}, v{a+2*j}, v{a+2*j+1}" for j in range(4, 8)],
                ["s_nop 1"] + [f"v_permlane16_swap_b32 v{o+j}, v{o+4+j}" for j in range(4)],
                [f"buffer_store_dwordx4 {vr(o,4)}, v6, s[96:99], s23 offen offset:{64*t}{ysfx(t)}",
                 f"buffer_store_dwordx4 {vr(o+4,4)}, v6, s[96:99], s22 offen offset:{64*t}{ysfx(t)}"]]

    def ysfx(t):
        m = opt.get("ya" if t < 2 else "yb", 0)
        return ("", " sc1", " nt", " sc0 sc1", " sc1 nt")[m]

    RA = opt.get("ra", 6)
    assert RA < NF
    seen = [0]

    def read(i):
        n, kb = order[i]
        g = groups.index((n, kb // 4))
        while st[seen[0]] <= g:
            A("s_barrier")
            seen[0] += 1
        off = (n * 40 + kb) * 1024
        if M16: off = (n * 40 + (kb & ~1)) * 1024 + 256 * (kb & 1)
        base, o = ("v3", off) if off < 61440 else ("v4", off - 61440)
        A(f"ds_read_b128 {vr(vF+4*(i%NF),4)}, {base} offset:{o}")

    for i in range(RA): read(i)
    pending = []
    done = set()
    last = {n: max(i for i, x in enumerate(order) if x[0] == n) for n in range(3)}
    for i, (n, kb) in enumerate(order):
        if M16:
            lg = f"lgkmcnt({min(120, i + RA) - i - 1})"
            if n == 0 and kb & 1 == 0:
                assert xi[0] > kb + 1
                lg = f"vmcnt({xi[0] - kb - 2}) " + lg
            A(f"s_waitcnt {lg}")
            for rb in range(2):
                acc = vACC + 16 * n + 8 * rb + 4 * (kb & 1)
                c = "0" if kb < 2 else vr(acc, 4)
                A(f"v_mfma_f32_16x16x32_bf16 {vr(acc,4)}, {vr(vF+4*(i%NF),4)}, {vr(VX+4*((kb & ~1) + rb),4)}, {c}")
                if rb == 0 and M16 == 2 and i + RA < 120 and not (i == 0 and opt.get("stamp")): read(i + RA)
        else:
            if n == 0:
                assert xi[0] > kb
                A(f"s_waitcnt vmcnt({xi[0] - kb - 1})")
            A(f"s_waitcnt lgkmcnt({min(120, i + RA) - i - 1})")
            acc = vACC + 16 * n
            c = "0" if kb == 0 else vr(acc, 16)
            A(f"v_mfma_f32_32x32x16_bf16 {vr(acc,16)}, {vr(vF+4*(i%NF),4)}, {vr(VX+4*kb,4)}, {c}")
        if i == 0 and opt.get("stamp"):
            stamp(A, opt, 3)
            A("s_memtime s[80:81]\ns_nop 7\ns_nop 7\ns_waitcnt lgkmcnt(0)")
        if i == 0 and opt.get("probe") == 3:
            stamp(A, opt, 3)
            A("s_nop 7\ns_nop 7\ns_waitcnt lgkmcnt(0)")
        if i + RA < 120 and (M16 != 2 or (i == 0 and opt.get("stamp"))): read(i + RA)
        if i % XE == 0 and xi[0] < 40:
            xload(A, opt, xi[0]); xi[0] += 1
        for t in range(3):
            if i == last[t] + 3:
                pending += epi(t) + [[], [], [], []]
                done.add(t)
        if pending:
            for x in pending.pop(0): A(x)
    assert seen[0] == len(CH)
    A("s_nop 7" if M16 else "s_nop 15")
    stamp(A, opt, 6)
    if opt.get("stamp"):
        A("s_memtime s[82:83]\ns_waitcnt lgkmcnt(0)\ns_sub_u32 s72, s82, s80")
        if opt.get("sh"): A("s_and_b32 s90, s90, 127\ns_lshl_b32 s90, s90, 24\ns_or_b32 s72, s72, s90")
    k = 0
    for t in range(3):
        if t in done: continue
        for x in sum(epi(t, vF + 8 * k), []): A(x)
        k += 1


def gen_p2d(A, opt):
    assert MAP["lf"] and not MAP["ef"]
    PS = 9216
    A.label("P2_PUB")
    A("s_mov_b32 s60, 1")
    A.label("P2_LD")
    p2_tile(A)
    A(f"""
    v_lshrrev_b32 v2, 4, v1
    v_min_u32 v2, 2, v2
    v_and_b32 v3, 15, v1
    v_min_u32 v3, 13, v3
    v_mad_u32_u24 v2, v2, 14, v3
    v_lshlrev_b32 v2, 7, v2
    s_lshl_b32 s46, 0x1111, s36
    s_and_b32 s46, s46, 0x3fff
    s_mul_i32 s22, s39, 122880
    s_add_u32 s22, s22, {W2F}
    s_mov_b32 s47, 0
    s_mov_b32 s7, {POLL_MAX}
    v_mov_b32 v4, {LFLAG}
    v_mov_b32 v6, 0
    v_mov_b32 v7, 1
    """)
    A.label("P2_POLL")
    A(f"""
    s_lshl_b32 s48, s46, 16
    s_or_b32 s48, s48, s46
    s_mov_b32 s49, s46
    s_mov_b64 exec, s[48:49]
    buffer_load_dword v3, v2, s[24:27], s45 offen sc1
    s_mov_b64 exec, 1
    v_mov_b32 v8, s47
    s_cmp_eq_u32 s60, 0
    s_waitcnt vmcnt(1)
    s_cbranch_scc1 P2_NP
    buffer_store_dword v7, v6, s[24:27], s51 offen sc1
    """)
    stamp(A, opt, 4)
    A("""
    s_mov_b32 s60, 0
    s_waitcnt vmcnt(1)
    s_branch P2_PR
    """)
    A.label("P2_NP")
    A("""
    ds_or_b32 v4, v8 offset:4
    s_mov_b32 s47, 0
    s_waitcnt vmcnt(0)
    """)
    A.label("P2_PR")
    A(f"""
    s_mov_b64 exec, s[48:49]
    v_cmp_ne_u32 vcc, 0, v3
    s_mov_b64 exec, -1
    s_lshr_b32 s4, vcc_lo, 16
    s_and_b32 s4, s4, vcc_lo
    s_and_b32 s4, s4, vcc_hi
    s_cbranch_scc1 P2_ISS
    s_sub_u32 s7, s7, 1
    s_cselect_b32 s4, s46, 0
    s_cbranch_scc1 P2_ISS
    s_sleep {opt.get("wsl", 8)}
    s_branch P2_POLL
    """)
    A.label("P2_ISS")
    if opt.get("stamp"):
        A("""
        s_waitcnt lgkmcnt(0)
        s_cmp_lg_u32 s74, 0
        s_cbranch_scc1 P2_IS0
        """)
        stamp(A, opt, 5)
        A.label("P2_IS0")
    A("s_andn2_b32 s46, s46, s4")
    A.label("P2_IS1")
    A(f"""
    s_ff1_i32_b32 s5, s4
    s_mul_i32 m0, s5, {PS}
    s_mul_i32 s6, s5, 3072
    s_add_u32 s6, s6, s22
    s_bitset0_b32 s4, s5
    """)
    for n in range(3):
        for j in range(3):
            A(f"buffer_load_dwordx4 v5, s[24:27], s6 offen offset:{1024*j} sc1 lds")
        if n < 2:
            A("""
            s_add_u32 m0, m0, 3072
            s_add_u32 s6, s6, 40960
            """)
    A(f"""
    s_cmp_eq_u32 s47, 0
    s_cbranch_scc1 P2_IS2
    v_mov_b32 v8, s47
    s_mov_b64 exec, 1
    s_waitcnt vmcnt(9)
    ds_or_b32 v4, v8 offset:4
    s_mov_b64 exec, -1
    """)
    A.label("P2_IS2")
    A(f"""
    s_lshl_b32 s47, 1, s5
    s_cmp_lg_u32 s4, 0
    s_cbranch_scc1 P2_IS1
    s_cmp_lg_u32 s46, 0
    s_cbranch_scc1 P2_POLL
    v_mov_b32 v8, s47
    s_mov_b64 exec, 1
    s_waitcnt vmcnt(0)
    ds_or_b32 v4, v8 offset:4
    s_mov_b64 exec, -1
    s_waitcnt lgkmcnt(0)
    """)
    stamp(A, opt, 6)
    A("s_branch K_EXIT")

    vACC = 8
    vF = 56
    vM, vA = 92, 93
    A.label("P2_MMX")
    A("s_barrier")
    A.label("P2_MMI")
    A("s_waitcnt vmcnt(0)")
    A.label("P2_MM")
    stamp(A, opt, 2)
    A(f"""
    v_mov_b32 v7, {LFLAG}
    ds_read_b32 v{vM}, v7
    """)
    p2_tile(A)
    A(f"""
    s_lshl_b32 s4, s38, 2
    s_add_u32 s4, s4, s36
    s_sub_u32 s4, s4, 4
    s_mul_i32 s20, s4, 40960
    s_mul_i32 s4, s4, {32*3072}
    s_mul_i32 s5, s39, 192
    s_add_u32 s23, s4, s5
    s_add_u32 s22, s23, {16*3072}
    s_add_u32 s21, s20, {39*1024}
    v_bfe_u32 v2, v1, 2, 1
    v_bfe_u32 v4, v1, 3, 2
    v_and_b32 v3, 0x23, v1
    v_lshl_add_u32 v3, v2, 4, v3
    v_lshl_add_u32 v3, v4, 2, v3
    v_lshlrev_b32 v3, 4, v3
    v_and_b32 v6, 15, v1
    v_and_b32 v4, 48, v1
    v_mul_u32_u24 v6, 0xc00, v6
    v_add_u32 v6, v6, v4
    v_min_u32 v2, 19, v1
    v_lshlrev_b32 v2, 7, v2
    s_waitcnt lgkmcnt(0)
    v_readfirstlane_b32 s4, v{vM}
    s_cmp_lg_u32 s4, 0
    s_cbranch_scc1 P2_XW_X
    s_cmp_lg_u32 s36, 7
    s_cbranch_scc1 P2_XW
    """)
    poll(A, "P2_X", "s[24:27]", "s44", "v2", f"v{vM}", 0, sleep=opt.get("xsl", 16))
    A(f"""
    v_mov_b32 v{vM}, 1
    ds_write_b32 v7, v{vM}
    s_branch P2_XW_X
    """)
    A.label("P2_XW")
    A(f"""
    s_sleep 2
    ds_read_b32 v{vM}, v7
    s_waitcnt lgkmcnt(0)
    """)
    poll_check(A, f"v{vM}", 0, "P2_XW")
    A.label("P2_XW_X")
    stamp(A, opt, 1)
    NU = opt.get("nu", 7)
    LAG = opt.get("lag", 3)
    P0 = opt.get("p0", 6)
    XPB = opt.get("xpb", 1)

    def xpiece(p):
        r = [[f"buffer_load_dwordx4 {vr(VX+12*p+4*j,4)}, v5, s[24:27], s20 offen offset:{1024*j} sc1"] for j in range(3)]
        if p < 12: r[2].append("s_add_u32 s20, s20, 3072")
        return r
    A(f"buffer_load_dwordx4 {vr(VX+156,4)}, v5, s[24:27], s21 offen sc1")
    for p_ in range(NU):
        for x in sum(xpiece(p_), []): A(x)
    stamp(A, opt, 5, True)
    issued = lambda t: min(13, NU + XPB * max(0, t))
    Pt = [min(12, max(t, min(P0 + 2 * t, issued(t - LAG) - 1))) for t in range(13)]
    assert all(Pt[t] < issued(t) for t in range(13))
    A(f"""
    s_getpc_b64 s[52:53]
    """)
    A.label("P2_PC")
    A(f"""
    s_add_u32 s48, s52, P2_B0-P2_PC
    s_addc_u32 s49, s53, 0
    s_movk_i32 s50, {(2 << Pt[0]) - 1}
    s_mov_b32 s46, 0
    v_add_u32 v{vA}, {13*PS}, v3
    s_branch P2_F1
    """)
    A.label("P2_F0")
    A("s_sleep 1")
    A.label("P2_F1")
    A(f"""
    ds_read_b32 v{vM}, v7 offset:4
    s_waitcnt lgkmcnt(0)
    v_readfirstlane_b32 s4, v{vM}
    s_bitcmp1_b32 s4, 13
    s_cbranch_scc0 P2_F0
    """)
    for n in range(3): A(f"ds_read_b128 {vr(vF+4*(6+n),4)}, v{vA} offset:{3072*n}")
    A(f"s_waitcnt vmcnt({3*NU})")
    for n in range(3):
        A(f"""
        s_waitcnt lgkmcnt({2-n})
        v_mfma_f32_32x32x16_bf16 {vr(vACC+16*n,16)}, {vr(vF+4*(6+n),4)}, {vr(VX+156,4)}, 0
        """)
    A("""
    s_set_gpr_idx_on s46, gpr_idx(SRC1)
    s_branch P2_COLD
    """)

    def mfma(i):
        acc = vACC + 16 * (i // 3)
        A(f"v_mfma_f32_32x32x16_bf16 {vr(acc,16)}, {vr(vF+4*i,4)}, {vr(VX+4*(i%3),4)}, {vr(acc,16)}")

    def read(i):
        A(f"ds_read_b128 {vr(vF+4*i,4)}, v{vA} offset:{1024*i}")

    A.label("P2_DRAIN")
    if opt.get("stamp"): A("s_add_u32 s90, s90, 1")
    for i in range(4, 9):
        if i > 4: A(f"s_waitcnt lgkmcnt({8-i})")
        mfma(i)
    A("s_branch P2_COLD")
    A.label("P2_COLD_S")
    A("s_sleep 1")
    A.label("P2_COLD")
    A(f"""
    ds_read_b32 v{vM}, v7 offset:4
    s_waitcnt lgkmcnt(0)
    v_readfirstlane_b32 s4, v{vM}
    s_andn2_b32 s4, s4, s46
    s_and_b32 s4, s4, s50
    s_cbranch_scc0 P2_COLD_S
    s_ff1_i32_b32 s5, s4
    s_mul_i32 s6, s5, {PS}
    v_add_u32_e64 v{vA}, v3, s6
    s_bitset1_b32 s46, s5
    s_mul_i32 s47, s5, 12
    """)
    for i in range(5): read(i)
    A(f"""
    ds_read_b32 v{vM}, v7 offset:4
    s_set_gpr_idx_idx s47
    s_setpc_b64 s[48:49]
    """)
    for t in range(13):
        A.label(f"P2_B{t}")
        if t == 0 and opt.get("stamp"):
            stamp(A, opt, 3)
            A("s_memtime s[80:81]\ns_waitcnt lgkmcnt(0)")
        xl = sum((xpiece(p_) for p_ in range(issued(t), issued(t + 1))), [])
        xl = [sum(xl[i::3], []) for i in range(3)] if XPB == 1 else [sum(xl[i*XPB:(i+1)*XPB], []) for i in range(3)]
        W = 3 * (issued(t) - Pt[t] - 1)
        last = t == 12
        for i in range(9):
            c = (5, 5, 5, 3, None, 4, 4, 4, 4)[i]
            if last and i > 4: c = 8 - i
            if i == 0: A(f"s_waitcnt vmcnt({W}) lgkmcnt({c})")
            elif c is not None: A(f"s_waitcnt lgkmcnt({c})")
            mfma(i)
            if i < 4: read(5 + i)
            if i < 3:
                for x in xl[i]: A(x)
            if last: continue
            if i == 1:
                A(f"""
                s_add_u32 s48, s52, P2_B{t+1}-P2_PC
                s_addc_u32 s49, s53, 0
                """)
            if i == 2 and Pt[t + 1] != Pt[t]: A(f"s_movk_i32 s50, {(2 << Pt[t+1]) - 1}")
            if i == 3:
                A(f"""
                v_readfirstlane_b32 s4, v{vM}
                s_andn2_b32 s4, s4, s46
                s_and_b32 s4, s4, s50
                s_cbranch_scc0 P2_DRAIN
                s_ff1_i32_b32 s5, s4
                """)
            if i == 4:
                A(f"""
                s_mul_i32 s6, s5, {PS}
                v_add_u32_e64 v{vA}, v3, s6
                """)
            if i >= 4: read(i - 4)
            if i == 5:
                A(f"""
                s_bitset1_b32 s46, s5
                s_mul_i32 s47, s5, 12
                """)
            if i == 8:
                A(f"""
                ds_read_b32 v{vM}, v7 offset:4
                s_set_gpr_idx_idx s47
                """)
    A("s_set_gpr_idx_off")

    def epi(t, o):
        a = vACC + 16 * t
        return ([f"v_cvt_pk_bf16_f32 v{o+j}, v{a+2*j}, v{a+2*j+1}" for j in range(8)] +
                ["s_nop 1"] + [f"v_permlane16_swap_b32 v{o+j}, v{o+4+j}" for j in range(4)] +
                [f"buffer_store_dwordx4 {vr(o,4)}, v6, s[96:99], s23 offen offset:{64*t}",
                 f"buffer_store_dwordx4 {vr(o+4,4)}, v6, s[96:99], s22 offen offset:{64*t}"])
    A("s_nop 0")
    for t in range(3):
        if t == 2:
            stamp(A, opt, 6)
            if opt.get("stamp"):
                A("s_memtime s[82:83]\ns_waitcnt lgkmcnt(0)\ns_sub_u32 s72, s82, s80")
                A("s_and_b32 s90, s90, 127\ns_lshl_b32 s90, s90, 24\ns_or_b32 s72, s72, s90")
        for x in epi(t, vF + 8 * t): A(x)


def descriptor(name, vgpr, accum, sgpr):
    return f""".amdhsa_kernel {name}
  .amdhsa_next_free_vgpr {vgpr}
  .amdhsa_next_free_sgpr {sgpr}
  .amdhsa_accum_offset {accum}
  .amdhsa_group_segment_fixed_size 0
  .amdhsa_kernarg_size 72
  .amdhsa_user_sgpr_count 2
  .amdhsa_user_sgpr_kernarg_segment_ptr 1
  .amdhsa_system_sgpr_workgroup_id_x 1
  .amdhsa_float_denorm_mode_32 3
.end_amdhsa_kernel
"""


def generate(opt):
    out = HEADER
    MAP["m"] = opt.get("map", 2)
    MAP["lf"] = opt.get("lf", 0)
    MAP["ef"] = opt.get("ef", 0)
    MAP["ac"] = opt.get("ac", 0)
    MAP["xf"] = opt.get("xf", 0)
    assert MAP["lf"] or not MAP["ef"]
    global LFLAG, WS_USED
    if opt.get("px"):
        LFLAG = PA + 6 * ASTAGE
        WS_USED = PXB + 168 * 24576
        if opt.get("rr"):
            assert WS_USED <= 12 << 20 and opt["rr"] <= 4 and opt.get("ts") and opt.get("xf") and opt.get("xgc", 10) <= 9
            WS_USED += (36 + 12 * ((1 << opt["rr"]) - 1)) << 20
            assert WS_USED <= 256 << 20
    out += f"; @launch grid=(256,1,1) block=(512,1,1) lds={LFLAG + 1024}\n"
    out += '.amdgcn_target "amdgcn-amd-amdhsa--gfx950"\n.text\n'
    A = Asm()
    out += f".globl {KNAME}\n.p2align 8\n.type {KNAME},@function\n"
    gen_kernel(A, opt)
    out += A.text()
    out += "CODE_END:\n"
    out += '.section .rodata,"a"\n.p2align 6\n'
    out += descriptor(KNAME, 256, 256, 100)
    return out


if __name__ == "__main__":
    path = sys.argv[1] if len(sys.argv) > 1 else "standalone__weight_only_int_quip__prompt.s"
    opt = {}
    for a in sys.argv[2:]:
        k, _, v = a.partition("=")
        opt[k] = int(v) if v else 1
    open(path, "w").write(generate(opt))
    print("wrote", path)
```

```python
import sys

KNAME = "standalone__weight_only_int_quip__prompt_kernel"
HEADER = """; Kernarg layout for this problem (72 bytes, ptrs only, base s[0:1]):
;   offset   0: d_in[0] x  shape=(1, 2048, 640) dtype=bfloat16 strides=(2621440, 1280, 2) contiguous=True
;   offset   8: d_in[1] qw  shape=(640, 1536) dtype=int32 strides=(6144, 4) contiguous=True
;   offset  16: d_in[2] scales  shape=(20, 1536) dtype=bfloat16 strides=(3072, 2) contiguous=True
;   offset  24: d_in[3] zeros  shape=(20, 1536) dtype=bfloat16 strides=(3072, 2) contiguous=True
;   offset  32: d_in[4] U  shape=(640, 640) dtype=bfloat16 strides=(1280, 2) contiguous=True
;   offset  40: d_in[5] V  shape=(1536, 1536) dtype=bfloat16 strides=(3072, 2) contiguous=True
;   offset  48: d_out     shape=(1, 2048, 1536) dtype=bfloat16 (2 bytes/elem)
;   offset  56: d_debug   256 bytes
;   offset  64: d_ws      268435456 bytes workspace
; y = ((x@U)@wq)@V is evaluated as (x@U)@(wq@V): phase 1 makes xr = x@U and W2 = dequant(qw)@V in d_ws,
; phase 2 makes y = xr@W2.  One workgroup per CU (256, all resident); hand-off through flags in d_ws
; that workgroups 248..255 clear first (d_debug[0..7] = 1 once they are clear).  (generated by gen/gen_i.py)
"""

XRF = 0
W2F = 64 * 40 * 1024
FLG = W2F + 48 * 40 * 1024
XFLG = FLG + 256 * 256
SFLG = XFLG + 256 * 128
FLG_END = FLG + 64 * 3 * 1024
SA = FLG_END
WS_USED = SA + 40 * 12 * 4096
assert SFLG + 168 * 256 <= FLG_END

X_BYTES = 2048 * 640 * 2
QW_BYTES = 640 * 1536 * 4
SC_BYTES = 20 * 1536 * 2
U_BYTES = 640 * 640 * 2
V_BYTES = 1536 * 1536 * 2
OUT_BYTES = 2048 * 1536 * 2

VSTAGE = 32768
ABASE = 3 * VSTAGE
ASTAGE = 12288
TBL = ABASE + 2 * ASTAGE
LDS1 = TBL + 24576
LFLAG = LDS1
QE = 112
XSTAGE = 32768
POLL_MAX = 40000


PADS = {"on": 0, "l": []}


class Asm:
    def __init__(self):
        self.lines = []

    def __call__(self, s):
        for l in s.strip("\n").split("\n"):
            if not l.strip(): continue
            self.lines.append("    " + l.strip() if not l.strip().endswith(":") else l.strip())

    def label(self, s):
        self.lines.append(s + ":")

    def pad(self, label, off=0):
        if PADS["on"]:
            self.lines.append(f"PAD{len(PADS['l'])}:")
            self.lines.append(f";PADFILL {len(PADS['l'])}")
            PADS["l"].append((label, off))

    def comment(self, s):
        self.lines.append("    ; " + s)

    def text(self):
        return "\n".join(self.lines) + "\n"


def vr(a, n):
    return f"v[{a}:{a+n-1}]"


STAMP_OFS = 32 << 20
NSTAMP = 8


def stamp(A, opt, i, wait=False):
    if opt.get("stamp") or ("probe" in opt and i in (0, opt["probe"])):
        A(f"s_memrealtime s[{64+2*i}:{65+2*i}]")
        if wait: A("s_waitcnt lgkmcnt(0)")


def stamp_begin(A, opt):
    if opt.get("stamp") or "probe" in opt:
        for i in range(1, NSTAMP):
            A(f"s_mov_b32 s{64+2*i}, 0")
        A("s_mov_b32 s90, 0")
    stamp(A, opt, 0)


def stamp_end(A, opt):
    if "probe" in opt:
        p = opt["probe"]
        wl, wh = opt.get("pwl", 0), opt.get("pwh", 7)
        gl, gh = opt.get("pgl", 0), opt.get("pgh", 255)
        A(f"""
        s_waitcnt vmcnt(0) lgkmcnt(0)
        s_memrealtime s[78:79]
        s_waitcnt lgkmcnt(0)
        s_cmp_gt_u32 s2, {gh}
        s_cbranch_scc1 PRB_X
        s_cmp_lt_u32 s2, {gl}
        s_cbranch_scc1 PRB_X
        s_cmp_lt_u32 s36, {wl}
        s_cbranch_scc1 PRB_X
        s_cmp_gt_u32 s36, {wh}
        s_cbranch_scc1 PRB_X
        s_cmp_eq_u32 s{64+2*p}, 0
        s_cbranch_scc1 PRB_X
        s_sub_u32 s4, s{64+2*p}, s64
        s_mul_i32 s4, s4, 3
        s_min_u32 s4, s4, 20000
        """)
        A.label("PRB")
        A("""
        s_memrealtime s[6:7]
        s_waitcnt lgkmcnt(0)
        s_sub_u32 s5, s6, s78
        s_cmp_lt_u32 s5, s4
        s_cbranch_scc1 PRB
        """)
        A.label("PRB_X")
    if opt.get("stamp"):
        A("s_waitcnt vmcnt(0) lgkmcnt(0)")
        stamp(A, opt, NSTAMP - 1)
        A(f"""
        s_load_dwordx2 s[56:57], s[0:1], 64
        s_waitcnt lgkmcnt(0)
        s_mov_b32 s58, 0x7fffffff
        s_mov_b32 s59, 0x00020000
        v_lshrrev_b32 v1, 6, v0
        v_lshlrev_b32 v1, 5, v1
        s_lshl_b32 s4, s2, 8
        s_add_u32 s4, s4, {STAMP_OFS}
        """)
        for i in range(NSTAMP):
            A(f"v_mov_b32 v{4+i}, s{64+2*i}")
        A("""
        buffer_store_dwordx4 v[4:7], v1, s[56:59], s4 offen
        buffer_store_dwordx4 v[8:11], v1, s[56:59], s4 offen offset:16
        """)
    A("s_endpgm")


def cst(A, opt, sidx, add):
    if not opt.get("cst"): return
    A(f"""
    s_memtime s[84:85]
    s_add_u32 s86, {sidx}, {add}
    v_cmp_eq_u32 vcc, s86, v1
    s_waitcnt lgkmcnt(0)
    v_mov_b32 v231, s84
    v_cndmask_b32 v230, v230, v231, vcc
    """)


FSR = {"m": [8,10,12,14,16,18,20,22,28,30,32,34,56,58,60,62],
       "d": [12,14,16,18,20,22,28,30,32,34,50,52,54,58,60,62,44,46],
       "l": [8,10,16,18,20,22,28,30,32,34,50,52,54,56,58,60,62]}


class Fst:
    def __init__(self, A, opt, role, on):
        self.A, self.role, self.n = A, role, 0
        self.on = on and "fst" in opt

    def __call__(self):
        if not self.on: return
        r = FSR[self.role][self.n]; self.n += 1
        self.A(f"s_memtime s[{r}:{r+1}]")

    def save(self, sc, val, tag):
        if not self.on: return
        self.A(f"""
        s_waitcnt lgkmcnt(0)
        s_cmp_lg_u32 {sc}, {val}
        s_cbranch_scc1 FS_{tag}
        """)
        for i in range(self.n): self.A(f"v_writelane_b32 v230, s{FSR[self.role][i]}, {i}")
        self.A(f"s_mov_b32 s4, {self.n}")
        self.A("v_writelane_b32 v230, s4, 47")
        self.A.label(f"FS_{tag}")


def cst_out(A, opt):
    if not opt.get("cst") and "fst" not in opt: return
    A(f"""
    v_writelane_b32 v230, s88, 48
    s_mov_b64 s[84:85], s[24:25]
    s_mov_b32 s86, 0x7fffffff
    s_mov_b32 s87, 0x00020000
    v_lshlrev_b32 v231, 2, v0
    s_lshl_b32 s4, s2, 11
    s_add_u32 s4, s4, {STAMP_OFS + (1 << 20)}
    buffer_store_dword v230, v231, s[84:87], s4 offen
    """)


def poll_check(A, vdst, dc, again):
    A(f"v_cmp_ne_u32 vcc, 0, {vdst}")
    if dc & 0xffffffff: A(f"s_or_b32 vcc_lo, vcc_lo, {hex(dc & 0xffffffff)}")
    if dc >> 32: A(f"s_or_b32 vcc_hi, vcc_hi, {hex(dc >> 32)}")
    A(f"""
    s_cmp_eq_u64 vcc, -1
    s_cbranch_scc0 {again}
    """)


def poll(A, name, srd, soff, vaddr, vdst, dc, scnt="s7", sleep=0, st=None):
    A(f"s_mov_b32 {scnt}, {POLL_MAX}")
    if sleep: A(f"s_branch {name}_1")
    A.label(name)
    if sleep:
        A(f"s_sleep {sleep}")
        A.label(name + "_1")
    A(f"""
    s_sub_u32 {scnt}, {scnt}, 1
    s_cbranch_scc1 {name}_X
    """)
    if st: st()
    A(f"""
    buffer_load_dword {vdst}, {vaddr}, {srd}, {soff} offen sc1
    s_waitcnt vmcnt(0)
    """)
    A.label(name + "_C")
    poll_check(A, vdst, dc, name)
    A.label(name + "_X")


def ppoll(A, name, srd, soff, vaddr, v0, n, dc, sleep, scnt="s7"):
    A(f"s_mov_b32 {scnt}, {POLL_MAX}")
    for i in range(n - 1):
        A(f"buffer_load_dword v{v0+i}, {vaddr}, {srd}, {soff} offen sc1")
        if sleep: A(f"s_sleep {sleep}")
    A.label(name)
    A(f"""
    s_sub_u32 {scnt}, {scnt}, 1
    s_cbranch_scc1 {name}_X
    """)
    for i in range(n):
        A(f"""
        buffer_load_dword v{v0+(i+n-1)%n}, {vaddr}, {srd}, {soff} offen sc1
        s_waitcnt vmcnt({n-1})
        v_cmp_ne_u32 vcc, 0, v{v0+i}
        """)
        if dc & 0xffffffff: A(f"s_or_b32 vcc_lo, vcc_lo, {hex(dc & 0xffffffff)}")
        if dc >> 32: A(f"s_or_b32 vcc_hi, vcc_hi, {hex(dc >> 32)}")
        A(f"""
        s_cmp_eq_u64 vcc, -1
        s_cbranch_scc1 {name}_X
        """)
        if sleep: A(f"s_sleep {sleep}")
    A(f"s_branch {name}")
    A.label(name + "_X")


DC_W = 0xFFFFFC0000000000
DBG = "s[92:95]"
MAP = {"m": 2}


def p2_tile(A):
    lm = MAP["m"]
    ln = 5 - lm
    xm = 4 - lm
    A(f"""
    s_and_b32 s38, s37, {(1 << xm) - 1}
    s_lshl_b32 s38, s38, {lm}
    s_and_b32 s39, s3, {(1 << lm) - 1}
    s_add_u32 s38, s38, s39
    s_lshr_b32 s39, s37, {xm}
    s_lshl_b32 s39, s39, {ln}
    s_lshr_b32 s4, s3, {lm}
    s_add_u32 s39, s39, s4
    """)
    if MAP["ac"]:
        A(f"""
        s_lshl_b32 s45, s38, 4
        s_add_u32 s45, s45, s39
        s_lshl_b32 s45, s45, 7
        s_add_u32 s44, s45, {FLG + 32768}
        s_add_u32 s45, s45, {FLG}
        """)
        if MAP["xf"]:
            A(f"""
            s_max_u32 s4, s36, 5
            s_mul_i32 s4, s4, {MAP["xf"]}
            s_add_u32 s44, s44, s4
            s_sub_u32 s44, s44, {5 * MAP["xf"]}
            """)
        return
    if MAP["ef"]:
        A(f"""
        s_mul_i32 s45, s39, 3
        s_add_u32 s43, s45, 2
        s_lshr_b32 s45, s45, 2
        s_lshr_b32 s43, s43, 2
        s_cmp_eq_u32 s43, s45
        s_cselect_b32 s43, 13, 27
        s_mul_i32 s45, s45, {14*128}
        s_add_u32 s45, s45, {FLG}
        s_mul_i32 s44, s38, {20*128}
        s_add_u32 s44, s44, {FLG + 672*128}
        """)
        return
    if MAP["lf"]:
        A(f"""
        s_mul_i32 s45, s39, {42*128}
        s_add_u32 s45, s45, {FLG}
        s_mul_i32 s44, s38, {20*128}
        s_add_u32 s44, s44, {FLG + 672*128}
        """)
        return
    A(f"""
    s_lshl_b32 s45, s38, 4
    s_add_u32 s45, s45, s39
    s_lshl_b32 s44, s45, 7
    s_add_u32 s44, s44, {XFLG}
    s_lshl_b32 s45, s45, 8
    s_add_u32 s45, s45, {FLG}
    """)


def spoll(A, name, soff, want, sleep, first=True, sd="s61"):
    A(f"s_mov_b32 s7, {POLL_MAX}")
    if not first: A(f"s_branch {name}_C")
    elif sleep: A(f"s_branch {name}_1")
    A.label(name)
    if sleep:
        A(f"s_sleep {sleep}")
        A.label(name + "_1")
    A(f"""
    s_sub_u32 s7, s7, 1
    s_cbranch_scc1 {name}_X
    s_buffer_load_dword {sd}, s[24:27], {soff} glc
    """)
    A.label(name + "_C")
    A(f"""
    s_waitcnt lgkmcnt(0)
    s_cmp_lt_u32 {sd}, {want}
    s_cbranch_scc1 {name}
    """)
    A.label(name + "_X")


def npoll(A, name, soff, want, sleep, sd):
    A(f"s_mov_b32 s7, {POLL_MAX}")
    A.label(name)
    A(f"""
    s_sub_u32 s7, s7, 1
    s_cbranch_scc1 {name}_X
    s_buffer_load_dword {sd}, s[24:27], {soff} glc
    """)
    for i in range(sleep):
        A(f"""
        s_sleep 1
        s_cmp_ge_u32 {sd}, {want}
        s_cbranch_scc1 {name}_X
        """)
    A(f"s_branch {name}")
    A.label(name + "_X")


def publish(A, opt, sflag, sshift):
    if MAP["ac"]:
        A(f"""
        v_mov_b32 v2, 1
        v_lshlrev_b32 v3, {sshift}, v1
        {"s_waitcnt vmcnt(0)" if "te" not in opt else "s_sleep %d" % opt["te"]}
        s_mov_b64 exec, 0xffff
        buffer_atomic_add v2, v3, s[24:27], {sflag} offen sc1
        """)
        if opt.get("xv"):
            A("""
            s_mov_b64 exec, 1
            ds_add_u32 v4, v2 offset:8
            """)
        A("s_mov_b64 exec, -1")
        stamp(A, opt, 4)
        return
    A(f"""
    v_mov_b32 v2, 1
    v_lshlrev_b32 v3, {sshift}, v1
    s_waitcnt vmcnt(0)
    s_mov_b64 exec, {1 if MAP["lf"] else "0xffff"}
    buffer_store_dword v2, v3, s[24:27], {sflag} offen sc1
    """)
    if opt.get("xap"):
        A(f"""
        v_mov_b32 v3, {LFLAG}
        s_mov_b64 exec, 1
        ds_add_u32 v3, v2 offset:8
        """)
    A("s_mov_b64 exec, -1")
    stamp(A, opt, 4)


def gen_kernel(A, opt):
    A.label(KNAME)
    stamp_begin(A, opt)
    CP0 = opt.get("cp0", 0)

    def cp0():
        A("s_getpc_b64 s[4:5]")
        A.label("P1_PC")
        CQ = opt.get("cq", 0)
        if CQ:
            A(f"""
            s_bfe_u32 s6, s2, {hex(CQ << 16 | 3)}
            v_lshl_add_u32 v3, v0, {CQ}, s6
            v_lshlrev_b32 v3, 7, v3
            """)
        else: A("v_lshlrev_b32 v3, 7, v0")
        A("""
        v_min_u32 v3, CODE_END-P1_PC-4, v3
        global_load_dword v250, v3, s[4:5]
        """)
    if CP0 == 1:
        A("""
        s_cmp_ge_u32 s2, 256
        s_cbranch_scc1 K_EXIT
        """)
        cp0()
    A("""
    s_load_dwordx2 s[8:9], s[0:1], 8
    s_load_dwordx2 s[12:13], s[0:1], 40
    s_load_dwordx2 s[16:17], s[0:1], 16
    s_load_dwordx2 s[20:21], s[0:1], 24
    s_load_dwordx2 s[28:29], s[0:1], 0
    s_load_dwordx2 s[32:33], s[0:1], 32
    s_load_dwordx2 s[24:25], s[0:1], 64
    s_load_dwordx2 s[92:93], s[0:1], 56
    s_load_dwordx2 s[96:97], s[0:1], 48
    """)
    if CP0 != 1:
        A("""
        s_cmp_ge_u32 s2, 256
        s_cbranch_scc1 K_EXIT
        """)
    if CP0 == 2: cp0()
    A("""
    v_and_b32 v1, 63, v0
    v_lshrrev_b32 v2, 6, v0
    """)
    if not CP0:
        A("s_getpc_b64 s[4:5]")
        A.label("P1_PC")
    else:
        A("s_lshr_b32 s3, s2, 3")
    A(f"""
    v_readfirstlane_b32 s36, v2
    """)
    CP = opt.get("cp", 0)
    if CP0:
        A(f"""
        s_and_b32 s37, s2, 7
        s_cmp_lg_u32 s36, 7
        s_cbranch_scc1 P1_NOPF
        """)
    elif CP:
        A(f"""
        s_lshr_b32 s3, s2, 3
        s_lshl_b32 s37, s3, 2
        v_min_u32 v3, {CP-1}, v1
        v_add_u32 v3, s37, v3
        v_and_b32 v3, 127, v3
        v_lshlrev_b32 v3, 7, v3
        v_min_u32 v3, CODE_END-P1_PC-4, v3
        s_and_b32 s37, s2, 7
        s_cmp_lg_u32 s36, {opt.get("cpw", 7)}
        s_cbranch_scc1 P1_NOPF
        global_load_dword v250, v3, s[4:5]
        """)
    else:
        A(f"""
        v_lshlrev_b32 v3, 7, v1
        v_add_u32 v4, 0x2000, v3
        v_min_u32 v4, CODE_END-P1_PC-4, v4
        s_lshr_b32 s3, s2, 3
        s_and_b32 s37, s2, 7
        s_cmp_lg_u32 s36, 7
        s_cbranch_scc1 P1_NOPF
        global_load_dword v250, v3, s[4:5]
        global_load_dword v251, v4, s[4:5]
        """)
    A(f"""
    v_mov_b32 v2, 0
    v_mov_b32 v3, 0
    v_mov_b32 v4, {LFLAG}
    ds_write_b64 v4, v[2:3]
    """)
    if opt.get("nb") or opt.get("xw"): A("ds_write_b64 v4, v[2:3] offset:8")
    A.label("P1_NOPF")
    A(f"""
    s_mov_b32 s11, 0x00020000
    s_mov_b32 s15, 0x00020000
    s_mov_b32 s27, 0x00020000
    s_mov_b32 s26, {WS_USED}
    s_movk_i32 s94, 256
    s_mov_b32 s95, 0x00020000
    s_mov_b32 s98, {OUT_BYTES}
    s_mov_b32 s99, 0x00020000
    v_lshlrev_b32 v5, 4, v1
    """)
    if MAP["xf"]: A("s_mov_b32 s62, 0")
    A("""
    s_cmp_ge_u32 s3, 21
    s_cbranch_scc1 P1_XR
    """)
    (gen_w2q if opt.get("qf") else gen_w2p if opt.get("px") else gen_w2)(A, opt)
    A.label("P1_XR")
    gen_xr(A, opt)
    (gen_p2d if opt.get("dy") else gen_p2)(A, opt)
    A.label("K_EXIT")
    stamp_end(A, opt)


def rr_share(A, v, t):
    A(f"""
    v_readfirstlane_b32 s63, {v}
    v_mov_b32 v{t}, {LFLAG}
    s_lshl_b32 s63, s63, 20
    v_mov_b32 v{t+1}, s63
    ds_write_b32 v{t}, v{t+1} offset:16
    """)


def rr_ask(A, t):
    A(f"""
    v_mov_b32 v{t}, {LFLAG}
    ds_read_b32 v{t}, v{t} offset:16
    """)


def gate_addr(A, v, m=7):
    A(f"""
    v_and_b32 {v}, {m}, v1
    v_lshlrev_b32 {v}, 2, {v}
    """)


def gen_w2(A, opt):
    NQ = 2
    SH = opt.get("sh", 0)
    RING = 3 * VSTAGE
    RG = opt.get("rg", 2)
    sW, sLOC, sXCD = "s36", "s3", "s37"
    sMI, sNI = "s40", "s41"
    sC = "s49"
    sVOFS = "s43"
    vVO = 6
    if opt.get("cst") or "fst" in opt: A("s_memtime s[88:89]\nv_mov_b32 v230, 0")
    A(f"""
    s_mul_i32 s4, {sLOC}, 171
    s_lshr_b32 s4, s4, 9
    s_mul_i32 s5, s4, 3
    s_sub_u32 s5, {sLOC}, s5
    s_lshr_b32 s6, {sXCD}, 2
    s_mul_i32 s6, s6, 7
    s_add_u32 {sMI}, s6, s4
    s_and_b32 s6, {sXCD}, 3
    s_mul_i32 s6, s6, 3
    s_add_u32 {sNI}, s6, s5
    s_mul_i32 s42, {sMI}, 3
    s_mov_b32 s57, s5
    """)
    RL = opt.get("rl", 0)
    if RL:
        A(f"""
        s_add_u32 s58, s4, s5
        s_mul_i32 s6, s58, 171
        s_lshr_b32 s6, s6, 9
        s_mul_i32 s6, s6, 3
        s_sub_u32 s58, s58, s6
        s_cmp_ge_u32 s4, 3
        s_cselect_b32 s6, 3, 2
        s_cmp_eq_u32 s58, 2
        s_cselect_b32 s58, s6, s58
        """)
    A(f"""
    s_sub_u32 s4, {sW}, 4
    s_cmp_lt_u32 s4, 3
    s_cbranch_scc1 W2_DEQ
    s_mov_b32 s14, {V_BYTES}
    v_lshrrev_b32 v2, 4, v1
    v_and_b32 v3, 15, v1
    v_lshlrev_b32 v4, 1, v2
    v_xor_b32 v3, v3, v4
    v_lshlrev_b32 v3, 4, v3
    v_mul_u32_u24 v4, 0xc00, v2
    v_add_u32 v{vVO}, v3, v4
    v_add_u32 v{vVO+1}, 11264, v{vVO}
    v_xor_b32 v3, 0x80, v{vVO}
    v_add_u32 v{vVO+2}, {2*11264}, v3
    v_add_u32 v{vVO+3}, {3*11264}, v3
    s_lshl_b32 {sVOFS}, {sNI}, 8
    s_cmp_lt_u32 {sW}, 4
    s_cbranch_scc1 W2_MFMA
    """)

    def v_group():
        for j in range(4):
            A(f"buffer_load_dwordx4 v{vVO+j}, s[12:15], {sVOFS} offen offset:{1024*j} lds")

    GPC = opt.get("gpc", 2 if SH else 4)
    VR = opt.get("vr", 0)
    sLO = [80, 81, 82, 83, 44, 45, 46, 47]
    if VR:
        A(f"""
        s_lshr_b32 s6, {sXCD}, 2
        s_xor_b32 s6, s6, {1 if VR == 2 else 0}
        s_lshl_b32 s6, s6, 2
        """)
        for g in range(7, -1, -1):
            if VR == 1:
                A(f"""
                s_add_u32 s5, {sMI}, {g}
                s_and_b32 s5, s5, 7
                """)
            else:
                A(f"""
                s_add_u32 s5, {sMI}, {g}
                s_and_b32 s5, s5, 3
                s_or_b32 s5, s5, {g & 4}
                s_xor_b32 s5, s5, s6
                """)
            A(f"""
            s_lshl_b32 s{sLO[g]}, s5, 12
            s_mul_i32 s5, s5, {16*3072}
            """)
            for j in range(4):
                A(f"v_add_u32 v{vVO+4*g+j}, s5, v{vVO+j}")
        A(f"s_mov_b32 s48, {VSTAGE}")
    else:
      for g in range(1, 8):
        for j in range(4):
            A(f"v_add_u32 v{vVO+4*g+j}, {g*16*3072}, v{vVO+j}")
    gate_addr(A, "v40", 15 if opt.get("fw") else 7)
    LP, LG = opt.get("lp", 0), opt.get("lg", 1)
    A(f"""
    s_mov_b32 m0, {VSTAGE}
    s_mov_b32 {sC}, 1
    """)
    if RL:
        A(f"""
        s_cmp_eq_u32 s58, 3
        s_cselect_b32 s59, {VSTAGE}, 0
        s_cselect_b32 s60, 393216, 0
        s_sub_u32 m0, m0, s59
        s_sub_u32 {sVOFS}, {sVOFS}, s60
        """)
    A("s_waitcnt lgkmcnt(0)")
    stamp(A, opt, 1)
    cst(A, opt, 0, 49)
    ST = 7 if RL else opt.get("st", 0)
    if ST & 1:
        cst(A, opt, 0, 50)
        A("s_barrier")
        cst(A, opt, 0, 51)
        A(f"s_setprio {opt.get('lpr', 3)}")
    A.label("W2L_LOOP")
    A(f"""
    s_add_u32 {sVOFS}, {sVOFS}, 393216
    s_cmp_lg_u32 {sC}, {GPC}
    s_cbranch_scc1 W2L_NG
    buffer_load_dword v42, v40, {DBG}, 0 offen sc1
    """)
    A.label("W2L_NG")
    FL_ = Fst(A, opt, "l", True)
    FL_()
    if opt.get("fl") == 2:
        A(f"""
        s_cmp_lg_u32 {sC}, {opt.get("fst", 0) + 2}
        s_cbranch_scc1 W2L_FL2
        """)
        for n_ in (28, 24, 20, 16, 12, 8, 4, 0):
            A(f"s_waitcnt vmcnt({n_})")
            FL_()
        A.label("W2L_FL2")
    nsleep(A, opt.get("ld", 0))
    if opt.get("ld11"):
        A(f"""
        s_cmp_lg_u32 {sC}, 11
        s_cbranch_scc1 W2L_LD
        s_sleep {opt["ld11"]}
        """)
        A.label("W2L_LD")
    for g in range(8):
        if VR: A(f"s_add_u32 m0, s48, s{sLO[g]}\ns_nop 0")
        if g == 6: A("s_waitcnt vmcnt(54)")
        for j in range(4):
            A(f"buffer_load_dwordx4 v{vVO+4*g+j}, s[12:15], {sVOFS} offen offset:{1024*j} lds")
            if j == 3 and not VR: A("s_add_u32 m0, m0, 4096")
            if j == 3 and g < 7 and not VR: A("s_nop 0")
            if j == 3 and (not opt.get("fl") or g in (0, 3, 7)): FL_()
            if opt.get("lpa") and (4*g+j+1) % opt.get("lpg", 1) == 0:
                n_ = opt["lpa"]
                while n_ > 0:
                    A(f"s_nop {min(n_, 16) - 1}"); n_ -= 16
    if VR:
        assert not LP and not RL
        A(f"""
        s_add_u32 s48, s48, {VSTAGE}
        s_cmp_ge_u32 s48, {RING}
        s_cselect_b32 s48, 0, s48
        """)
    else:
        A(f"""
        s_cmp_ge_u32 m0, {RING}
        s_cselect_b32 m0, 0, m0
        """)
    if RL:
        A(f"""
        s_cmp_eq_u32 s59, 0
        s_cbranch_scc1 W2L_R
        s_add_u32 m0, m0, s59
        s_add_u32 {sVOFS}, {sVOFS}, s60
        s_mov_b32 s59, 0
        s_waitcnt vmcnt(0)
        """)
        A.label("W2L_R")
    if not ST & 1:
        A(f"""
        s_cmp_lg_u32 {sC}, 1
        s_cbranch_scc1 W2L_NT
        """)
        cst(A, opt, 0, 50)
        A("s_barrier")
        cst(A, opt, 0, 51)
        A(f"s_setprio {opt.get('lpr', 3)}")
        if opt.get("v2e"): A("s_branch W2L_NB")
        A.label("W2L_NT")
        if opt.get("v2e"):
            A(f"""
            s_cmp_lg_u32 {sC}, 2
            s_cbranch_scc1 W2L_N2
            s_barrier
            """)
            A.label("W2L_N2")
    cst(A, opt, sC, 31)
    A(f"""
    s_waitcnt vmcnt(32)
    s_cmp_lg_u32 {sC}, {GPC}
    s_cbranch_scc1 W2L_G_X
    """)
    poll_check(A, "v42", 0, "W2L_GS")
    A.label("W2L_G_X")
    FL_()
    if opt.get("fl") == 1:
        A(f"""
        s_cmp_lg_u32 {sC}, {opt.get("fst", 0) + 2}
        s_cbranch_scc1 W2L_FL
        """)
        for n_ in (31, 28, 24, 20, 16, 12, 8, 4, 0):
            A(f"s_waitcnt vmcnt({n_})")
            FL_()
        A.label("W2L_FL")
    FL_.save(sC, opt.get("fst", 0) + 2, "L")
    cst(A, opt, sC, 15)
    A("s_barrier")
    cst(A, opt, sC, -1)
    A.label("W2L_NB")
    A(f"""
    s_add_u32 {sC}, {sC}, 1
    s_cmp_lt_u32 {sC}, {opt.get('nch', 12) - (1 if LP else 0)}
    s_cbranch_scc1 W2L_LOOP
    """)
    if LP:
        A(f"s_add_u32 {sVOFS}, {sVOFS}, 393216")
        for g in range(8):
            if g == 6: A("s_waitcnt vmcnt(54)")
            for j in range(4):
                A(f"buffer_load_dwordx4 v{vVO+4*g+j}, s[12:15], {sVOFS} offen offset:{1024*j} lds")
                if j == 3: A("s_add_u32 m0, m0, 4096")
                if (4 * g + j + 1) % LG == 0 and 4 * g + j < 31:
                    n = LP
                    while n > 0:
                        A(f"s_nop {min(n, 16) - 1}"); n -= 16
                elif j == 3 and g < 7: A("s_nop 0")
        cst(A, opt, sC, 31)
        A("s_waitcnt vmcnt(32)")
        cst(A, opt, sC, 15)
        A("s_barrier")
        cst(A, opt, sC, -1)
    EF = MAP["ef"]

    def early_flag():
        nsleep(A, opt.get("pd", 0))
        A(f"""
        s_mov_b64 exec, 1
        buffer_store_dword v41, v40, s[24:27], s51 offen sc1
        s_mov_b64 exec, -1
        """)
        stamp(A, opt, 4)
    if EF:
        A(f"""
        s_mul_i32 s51, {sNI}, 14
        s_add_u32 s51, s51, {sMI}
        s_lshl_b32 s51, s51, 7
        s_add_u32 s51, s51, {FLG}
        v_mov_b32 v41, 1
        """)
        if EF == 10: early_flag()
        A(f"""
        s_waitcnt vmcnt({1 if EF == 10 else 0})
        s_barrier
        """)
        if EF == 11: early_flag()
        A("s_barrier")
        if EF == 12: early_flag()
        A("s_setprio 0")
    elif opt.get("nb"):
        A("s_setprio 0")
        if opt["nb"] == 2 and MAP["ac"]:
            p2_tile(A)
            nsleep(A, opt.get("xpd", 0))
            A(f"""
            s_buffer_load_dword s61, s[24:27], s44 glc
            v_mov_b32 v4, {LFLAG}
            v_mov_b32 v3, 1
            s_waitcnt vmcnt(0) lgkmcnt(0)
            s_cmp_lt_u32 s61, 20
            s_cbranch_scc1 W2L_NX
            ds_write_b32 v4, v3
            s_waitcnt lgkmcnt(0)
            """)
            A.label("W2L_NX")
        elif opt["nb"] == 2:
            p2_tile(A)
            A(f"""
            v_min_u32 v2, 19, v1
            v_lshlrev_b32 v2, 7, v2
            buffer_load_dword v3, v2, s[24:27], s44 offen sc1
            v_mov_b32 v4, {LFLAG}
            s_waitcnt vmcnt(0)
            """)
            poll_check(A, "v3", 0, "W2L_NX")
            A("""
            ds_write_b32 v4, v3
            s_waitcnt lgkmcnt(0)
            """)
            A.label("W2L_NX")
        A("""
        s_waitcnt vmcnt(0)
        s_barrier
        """)
    else:
        A(f"""
        s_setprio 0
        s_waitcnt vmcnt(0)
        s_barrier
        s_barrier
        """)
    cst_out(A, opt)
    A("s_branch P2_MM")
    A.label("W2L_GS")
    A(f"s_mov_b32 s7, {POLL_MAX}")
    A.label("W2L_G")
    A(f"""
    s_sub_u32 s7, s7, 1
    s_cbranch_scc1 W2L_G_X
    buffer_load_dword v42, v40, {DBG}, 0 offen sc1
    s_waitcnt vmcnt(0)
    """)
    poll_check(A, "v42", 0, "W2L_G")
    A("s_branch W2L_G_X")
    A.label("W2_DEQ")
    sB = "s38"
    sQOFS = "s43"
    vQO = 6
    vAW = 14
    vTB = 22
    U_ = 24
    Ft = 40
    O = 48
    vQ = 52
    QS = 32
    vAP = 116
    vP = 124
    vPL, vPA = 156, 157
    sCS, sPK, sQF = "s39", "s45", "s46"
    A(f"""
    s_mov_b32 {sB}, s4
    s_add_u32 s4, s42, {sB}
    s_cmp_ge_u32 s4, 40
    s_cbranch_scc1 W2D_IDLE
    s_mul_i32 {sQOFS}, s4, {16*6144}
    """)
    if SH:
        A(f"""
        s_mul_i32 {sPK}, s4, {12*4096}
        s_add_u32 {sPK}, {sPK}, {SA + 2*4096}
        """)
    A(f"""
    s_lshr_b32 s6, s4, 1
    s_lshr_b32 s5, s42, 1
    s_sub_u32 s6, s6, s5
    s_mul_i32 s6, s6, 6144
    s_add_u32 s6, s6, {TBL}
    s_mov_b32 s10, {QW_BYTES}
    v_lshrrev_b32 v2, 5, v1
    v_and_b32 v3, 31, v1
    v_lshlrev_b32 v4, 4, v3
    v_mul_u32_u24 v{vQO}, 0x1800, v2
    v_add_u32 v{vQO}, v{vQO}, v4
    v_add_u32 v{vTB}, s6, v4
    """)
    QR = opt.get("qr", 3)
    A(f"s_mul_i32 s57, s57, {QR}")
    for i in range(7, -1, -1):
        A(f"""
        s_add_u32 s4, s57, {i}
        s_and_b32 s4, s4, 7
        s_mul_i32 s4, s4, 12288
        v_add_u32 v{vQO+i}, s4, v{vQO}
        """)
    A("s_waitcnt lgkmcnt(0)")
    stamp(A, opt, 1)
    cst(A, opt, 0, 49)

    def t_read(n):
        u = U_ + 8 * (n & 1)
        A(f"""
        ds_read_b128 {vr(u,4)}, v{vTB}
        ds_read_b128 {vr(u+4,4)}, v{vTB} offset:12288
        v_add_u32 v{vTB}, 512, v{vTB}
        """)

    if RL:
        A("""
        s_cmp_lg_u32 s58, 1
        s_cbranch_scc1 W2D_R0
        """)
        for i in range(8):
            A(f"buffer_load_dwordx4 {vr(vQ+QS+4*i,4)}, v{vQO+i}, s[8:11], {sQOFS} offen offset:512")
        A.label("W2D_R0")
    for u in range(1 if ST & 2 else NQ):
        for i in range(8):
            A(f"buffer_load_dwordx4 {vr(vQ+QS*u+4*i,4)}, v{vQO+i}, s[8:11], {sQOFS} offen offset:{512*u}")
    A(f"""
    s_add_u32 {sQOFS}, {sQOFS}, 512
    s_lshl_b32 s4, {sB}, 12
    s_add_u32 s4, s4, {ABASE}
    v_bfe_u32 v3, v1, 1, 4
    v_xor_b32 v4, v3, v2
    v_lshlrev_b32 v4, 4, v4
    v_lshl_add_u32 v4, v2, 8, v4
    v_and_b32 v3, 1, v1
    v_lshl_add_u32 v4, v3, 3, v4
    v_add_u32 v{vAW}, s4, v4
    """)
    if SH:
        for i in range(8):
            A(f"""
            v_xor_b32 v3, {32*i}, v{vAW}
            v_add_u32 v{vAP+i}, {512*i}, v3
            """)
        A(f"""
        s_mul_i32 {sQF}, {sMI}, 12
        s_add_u32 {sQF}, {sQF}, {sNI}
        s_lshl_b32 {sQF}, {sQF}, 2
        s_add_u32 {sQF}, {sQF}, {sB}
        s_lshl_b32 {sQF}, {sQF}, 6
        s_add_u32 {sQF}, {sQF}, {SFLG}
        s_movk_i32 {sCS}, 100
        v_max_u32 v{vPA}, {SH}, v1
        v_min_u32 v{vPA}, 11, v{vPA}
        v_lshlrev_b32 v{vPA}, 2, v{vPA}
        v_mov_b32 v{vPL}, 0
        """)
    for i in range(7, -1, -1):
        A(f"""
        s_add_u32 s4, s57, {i}
        s_and_b32 s4, s4, 7
        s_lshl_b32 s5, s4, 5
        s_lshl_b32 s4, s4, 9
        v_xor_b32 v3, s5, v{vAW}
        v_add_u32 v{vAW+i}, s4, v3
        """)
    A(f"s_mov_b32 {sC}, 0")
    cst(A, opt, 0, 50)
    if opt.get("cst") and not ST & 2:
        A("s_waitcnt vmcnt(8)")
        cst(A, opt, 0, 52)
    A("s_barrier")
    cst(A, opt, 0, 51)
    A(f"s_setprio {opt.get('dpr', 3)}")
    t_read(0)
    if ST & 2:
        if RL:
            A("""
            s_cmp_lg_u32 s58, 1
            s_cbranch_scc1 W2D_R1
            s_waitcnt vmcnt(0)
            s_branch W2D_R2
            """)
            A.label("W2D_R1")
        for i in range(8):
            A(f"buffer_load_dwordx4 {vr(vQ+QS+4*i,4)}, v{vQO+i}, s[8:11], {sQOFS} offen")
        if RL: A.label("W2D_R2")
        if opt.get("cst"):
            cst(A, opt, 0, 53)
            A("s_waitcnt vmcnt(8)")
            cst(A, opt, 0, 52)
    A("s_waitcnt lgkmcnt(0)")
    UN = 2

    def sload(n, sofs):
        for j in range(4):
            A(f"buffer_load_dwordx4 {vr(vP+16*n+4*j,4)}, v5, s[24:27], {sofs} offen offset:{1024*j} sc1")

    if opt.get("pw"):
        assert not SH and not ST & 2
        OB = 160
        PW = opt["pw"]
        if not opt.get("tp"): t_read(1)
        A(f"""
        s_mov_b32 {sC}, -1
        s_waitcnt lgkmcnt(0)
        s_branch W2D_ENT
        .p2align 3
        """)
        A.label("W2D_LOOP")
        for n in range(2):
            FD = Fst(A, opt, "d", n == (opt.get("fst", 0) + 1) & 1)
            FD()
            for i in range(8):
                A(f"ds_write_b64 v{vAW+i}, {vr(OB+2*i,2)} offset:{ASTAGE*n}")
                if i in (3, 7): FD()
            if n == 1:
                A(f"""
                s_cmp_eq_u32 {sC}, 11
                s_cbranch_scc1 W2D_END
                """)
            TP = opt.get("tp", 0)
            if TP == 0: t_read(n)
            if n == 1: A.label("W2D_ENT")
            q = vQ + QS * (n ^ 1)
            S = U_ + 8 * (n ^ 1)
            A(f"""
            s_add_u32 {sQOFS}, {sQOFS}, 512
            s_cmp_lt_i32 {sC}, 9
            s_cbranch_scc1 W2D_NT{n}
            s_waitcnt vmcnt({8 if n == 1 else 0})
            """)
            A.label(f"W2D_NT{n}")
            for i in range(8):
                qq = q + 4 * i
                f = Ft + 4 * (i & 1)
                o = OB + 2 * i
                if i % RG == 0: A(f"s_waitcnt vmcnt({16 - RG})")
                A(f"""
                v_fma_f32 v{f}, v{qq}, v{S}, v{S+4}
                v_fma_f32 v{f+1}, v{qq+1}, v{S+1}, v{S+5}
                v_fma_f32 v{f+2}, v{qq+2}, v{S+2}, v{S+6}
                v_fma_f32 v{f+3}, v{qq+3}, v{S+3}, v{S+7}
                v_cvt_pk_bf16_f32 v{o}, v{f}, v{f+1}
                v_cvt_pk_bf16_f32 v{o+1}, v{f+2}, v{f+3}
                """)
                if i + 1 == TP: t_read(n)
                if (i + 1) % RG == 0:
                    FD()
                    A(f"s_cbranch_scc0 W2D_SK{n}_{i}")
                    for ii in range(i + 1 - RG, i + 1):
                        A(f"buffer_load_dwordx4 {vr(q+4*ii,4)}, v{vQO+ii}, s[8:11], {sQOFS} offen")
                    A.label(f"W2D_SK{n}_{i}")
                    FD()
            A("s_waitcnt lgkmcnt(0)")
            FD()
            FD.save(sC, opt.get("fst", 0) + 1, "D")
            A(f"s_add_u32 {sC}, {sC}, 1")
            if n == 1:
                A("s_cbranch_scc1 W2D_LOOP")
            cst(A, opt, sC, 15)
            A("s_barrier")
            cst(A, opt, sC, -1)
            if n == 1: A("s_branch W2D_LOOP")
            else: A(".p2align 3")
        A.label("W2D_END")
        A("""
        s_setprio 0
        s_waitcnt lgkmcnt(0)
        """)
        cst(A, opt, sC, 16)
        A("s_barrier")
        cst(A, opt, sC, 0)
        assert opt.get("nb")
        cst_out(A, opt)
        A("s_branch P2_MM")
        UN = 0
    else:
        A.label("W2D_LOOP")
    for n in range(UN):
        u = n % NQ
        q = vQ + QS * u
        S = U_ + 8 * (n & 1)
        if SH:
            A(f"""
            s_add_u32 s5, {sC}, {n}
            s_lshl_b32 s47, s5, 12
            s_add_u32 s47, s47, {sPK}
            s_cmp_ge_u32 s5, {sCS}
            s_cbranch_scc1 W2D_PK{n}
            """)
        FD = Fst(A, opt, "d", n == (opt.get("fst", 0) + 1) & 1)
        FD()
        t_read(n + 1)
        A(f"s_add_u32 {sQOFS}, {sQOFS}, 512")
        if SH:
            A(f"""
            s_add_u32 s6, s5, 1
            s_min_u32 s7, {sCS}, 12
            s_cmp_lt_u32 s6, s7
            s_waitcnt vmcnt(8)
            s_cbranch_scc1 W2D_NT{n}
            s_cmp_lt_u32 s6, 12
            s_waitcnt vmcnt(4)
            s_cbranch_scc1 W2D_NT{n}
            s_waitcnt vmcnt(0)
            """)
            A.label(f"W2D_NT{n}")
            A(f"""
            s_add_u32 s6, s5, 2
            s_cmp_lt_u32 {sCS}, 100
            s_cbranch_scc1 W2D_E{n}
            v_cmp_ne_u32 vcc, 0, v{vPL}
            s_max_u32 s7, s6, {SH}
            s_cmp_eq_u64 vcc, -1
            s_cselect_b32 {sCS}, s7, {sCS}
            s_cbranch_scc1 W2D_E{n}
            s_cmp_lt_u32 s5, {max(GPC, opt.get("sp0", 0))}
            s_cbranch_scc1 W2D_E{n}
            buffer_load_dword v{vPL}, v{vPA}, s[24:27], {sQF} offen sc1
            """)
            A.label(f"W2D_E{n}")
            A(f"""
            s_cmp_gt_u32 s6, 11
            s_cbranch_scc1 W2D_F{n}
            s_cmp_lt_u32 s6, {sCS}
            s_cbranch_scc1 W2D_F{n}
            """)
            sload(n, "s47")
            A.label(f"W2D_F{n}")
            A(f"""
            s_min_u32 s7, {sCS}, 12
            s_cmp_lt_u32 s6, s7
            """)
        else:
            A(f"""
            s_cmp_lt_u32 {sC}, {opt.get('nch', 12)-NQ-n+1}
            s_waitcnt vmcnt({8*(NQ-1)})
            s_cbranch_scc1 W2D_NT{n}
            s_waitcnt vmcnt({8*min(NQ-1, max(0, UN-1-n))})
            """)
            A.label(f"W2D_NT{n}")
            FD()
            A(f"s_cmp_lt_u32 {sC}, {opt.get('noq', opt.get('nch', 12))-NQ-n}")
        for i in range(8):
            qq = q + 4 * i
            f = Ft + 4 * (i & 1)
            o = O + 2 * (i & 1)
            WL = opt.get("wl", 0)
            if n == 1: WL = opt.get("wl1", WL)
            if WL: o = 160 + 2 * i
            if opt.get("bf") == 2:
                for j in range(4): A(f"v_bfe_u32 v{f+j}, v{qq+j}, 0, 3")
                for j in range(4): A(f"v_fma_f32 v{f+j}, v{f+j}, v{S+j}, v{S+4+j}")
                A(f"""
                v_cvt_pk_bf16_f32 v{o}, v{f}, v{f+1}
                v_cvt_pk_bf16_f32 v{o+1}, v{f+2}, v{f+3}
                """)
            elif opt.get("bf"):
                for j in range(4): A(f"v_bfe_u32 v{f+j}, v{qq+j}, 0, 3")
                A(f"""
                v_pk_fma_f32 {vr(f,2)}, {vr(f,2)}, {vr(S,2)}, {vr(S+4,2)}
                v_pk_fma_f32 {vr(f+2,2)}, {vr(f+2,2)}, {vr(S+2,2)}, {vr(S+6,2)}
                v_cvt_pk_bf16_f32 v{o}, v{f}, v{f+1}
                v_cvt_pk_bf16_f32 v{o+1}, v{f+2}, v{f+3}
                """)
            else:
              A(f"""
            v_fma_f32 v{f}, v{qq}, v{S}, v{S+4}
            v_fma_f32 v{f+1}, v{qq+1}, v{S+1}, v{S+5}
            v_fma_f32 v{f+2}, v{qq+2}, v{S+2}, v{S+6}
            v_fma_f32 v{f+3}, v{qq+3}, v{S+3}, v{S+7}
            v_cvt_pk_bf16_f32 v{o}, v{f}, v{f+1}
            v_cvt_pk_bf16_f32 v{o+1}, v{f+2}, v{f+3}
            """)
            if i + 1 == WL:
                for ii in range(WL): A(f"ds_write_b64 v{vAW+ii}, {vr(160+2*ii,2)} offset:{ASTAGE*(n&1)}")
            elif i + 1 > WL:
                A(f"ds_write_b64 v{vAW+i}, {vr(o,2)} offset:{ASTAGE*(n&1)}")
            FD()
            if (i + 1) % RG == 0:
                A(f"s_cbranch_scc0 W2D_SK{n}_{i}")
                for ii in range(i + 1 - RG, i + 1):
                    A(f"buffer_load_dwordx4 {vr(q+4*ii,4)}, v{vQO+ii}, s[8:11], {sQOFS} offen")
                A.label(f"W2D_SK{n}_{i}")
                FD()
        A("s_waitcnt lgkmcnt(0)")
        FD()
        FD.save(sC, (opt.get("fst", 0) + 1) & ~1, "D")
        if SH: A.label(f"W2D_J{n}")
        cst(A, opt, sC, 16 + n)
        A("s_barrier")
        cst(A, opt, sC, n)
    if UN:
        A(f"""
        s_add_u32 {sC}, {sC}, {UN}
        s_cmp_lt_u32 {sC}, {opt.get('nch', 12)}
        s_cbranch_scc1 W2D_LOOP
        """)
        A("s_setprio 0")
        if SH and opt.get("stamp"): A(f"s_mov_b32 s90, {sCS}")
        if not opt.get("nb"): A("s_barrier")
        cst_out(A, opt)
        A("s_branch P2_MM")
    if SH:
        for n in range(UN):
            A.label(f"W2D_PK{n}")
            A(f"""
            s_cmp_lt_u32 s5, 11
            s_waitcnt vmcnt(4)
            s_cbranch_scc1 W2D_PW{n}
            s_waitcnt vmcnt(0)
            """)
            A.label(f"W2D_PW{n}")
            for i in range(8):
                A(f"ds_write_b64 v{vAP+i}, {vr(vP+16*n+2*i,2)} offset:{ASTAGE*(n&1)}")
            A(f"""
            s_cmp_gt_u32 s5, 9
            s_waitcnt lgkmcnt(0)
            s_cbranch_scc1 W2D_J{n}
            """)
            sload(n, "s47")
            A(f"s_branch W2D_J{n}")
    A.label("W2D_IDLE")
    A(f"""
    s_mov_b32 {sC}, 0
    s_waitcnt lgkmcnt(0)
    """)
    A.label("W2D_IDL")
    A(f"""
    s_barrier
    s_add_u32 {sC}, {sC}, 1
    s_cmp_lt_u32 {sC}, {opt.get('nch', 12) + (1 if opt.get("nb") else 2)}
    s_cbranch_scc1 W2D_IDL
    s_branch P2_MM
    """)
    A.label("W2_MFMA")
    sCST = "s45"
    vAR = 10
    vBR = 14
    vT0, vT1 = 16, 17
    vST = 18
    vACC = 20
    vF = 44
    P = vF
    if ST & 8:
        A(f"""
        s_lshr_b32 s5, {sMI}, 1
        s_add_u32 s5, s5, {sW}
        s_and_b32 s5, s5, 3
        """)
    A(f"""
    s_lshl_b32 s4, {"s5" if ST & 8 else sW}, 13
    s_mov_b32 m0, s4
    s_mul_i32 s4, {"s5" if ST & 8 else sW}, {32*3072}
    s_add_u32 {sVOFS}, {sVOFS}, s4
    s_lshr_b32 s6, s42, 1
    s_mul_i32 s6, s6, 3072
    s_mov_b32 s18, {SC_BYTES}
    s_mov_b32 s19, 0x00020000
    s_mov_b32 s22, {SC_BYTES}
    s_mov_b32 s23, 0x00020000
    v_and_b32 v2, 0xff, v0
    v_lshlrev_b32 v19, 3, v2
    """)
    if ST & 4:
        A(f"""
        s_lshr_b32 s4, {sW}, 1
        s_lshl_b32 s4, s4, 11
        v_add_u32 v19, s4, v19
        s_mov_b32 s56, s6
        v_mov_b32 v{vT0}, v19
        """)
        if RL:
            A(f"""
            s_cmp_eq_u32 s58, 3
            s_cselect_b32 s4, {VSTAGE}, 0
            s_cselect_b32 s5, 393216, 0
            s_add_u32 m0, m0, s4
            s_add_u32 {sVOFS}, {sVOFS}, s5
            """)
        else:
            A(f"""
            s_add_u32 s58, s57, {sMI}
            s_and_b32 s58, s58, {1 if ST & 16 else 0}
            """)
    A("s_waitcnt lgkmcnt(0)")
    stamp(A, opt, 1)
    cst(A, opt, 0, 49)

    def v0_loads():
        v_group()
        A(f"""
        s_add_u32 m0, m0, 4096
        s_add_u32 {sVOFS}, {sVOFS}, {16*3072}
        """)
        v_group()
        if not RL: s12_loads()

    def s12_loads():
        for j in range(1, 3):
            A(f"""
            buffer_load_dwordx2 {vr(P+4*j,2)}, v{vT0}, s[16:19], s56 offen offset:{1024*j}
            buffer_load_dwordx2 {vr(P+4*j+2,2)}, v{vT0}, s[20:23], s56 offen offset:{1024*j}
            """)
    if ST & 4:
        A(f"""
        buffer_load_dwordx2 {vr(P,2)}, v19, s[16:19], s6 offen
        buffer_load_dwordx2 {vr(P+2,2)}, v19, s[20:23], s6 offen
        {"s_cmp_lt_u32 s58, 2" if RL else "s_cmp_lg_u32 s58, 0"}
        s_cbranch_scc1 W2M_VA
        """)
        v0_loads()
        A.label("W2M_VA")
        if RL: s12_loads()
    else:
        for j in range(2):
            A(f"""
            buffer_load_dwordx2 {vr(P+4*j,2)}, v19, s[16:19], s6 offen offset:{2048*j}
            buffer_load_dwordx2 {vr(P+4*j+2,2)}, v19, s[20:23], s6 offen offset:{2048*j}
            """)
        A(f"""
        s_add_u32 s6, s6, 4096
        buffer_load_dwordx2 {vr(P+8,2)}, v19, s[16:19], s6 offen
        buffer_load_dwordx2 {vr(P+10,2)}, v19, s[20:23], s6 offen
        """)
        v_group()
        A(f"""
        s_add_u32 m0, m0, 4096
        s_add_u32 {sVOFS}, {sVOFS}, {16*3072}
        """)
        v_group()
    A(f"""
    v_lshlrev_b32 v19, 1, v19
    v_add_u32 v19, {TBL}, v19
    v_and_b32 v2, 15, v1
    v_lshrrev_b32 v3, 4, v1
    v_xor_b32 v4, v2, v3
    v_lshlrev_b32 v4, 4, v4
    v_lshl_add_u32 v4, v2, 8, v4
    v_add_u32 v{vAR}, {ABASE}, v4
    v_xor_b32 v{vAR+1}, 64, v{vAR}
    v_xor_b32 v{vAR+2}, 128, v{vAR}
    v_xor_b32 v{vAR+3}, 192, v{vAR}
    v_bfe_u32 v2, v1, 2, 2
    v_and_b32 v4, 1, v3
    v_lshl_or_b32 v4, v4, 2, v2
    s_lshl_b32 s5, {sW}, 1
    v_xor_b32 v4, s5, v4
    v_lshlrev_b32 v4, 5, v4
    v_lshl_add_u32 v2, v3, 3, v2
    v_lshl_add_u32 v4, v2, 8, v4
    v_and_b32 v2, 3, v1
    v_lshl_add_u32 v{vBR}, v2, 3, v4
    v_xor_b32 v{vBR+1}, 32, v{vBR}
    s_mov_b32 {sCST}, 0
    s_mov_b32 {sC}, 0
    s_lshl_b32 s4, {sNI}, 2
    s_add_u32 s4, s4, {sW}
    s_mul_i32 s5, s4, 40
    s_add_u32 s5, s5, s42
    s_lshl_b32 s5, s5, 10
    s_add_u32 s50, s5, {W2F}
    s_mul_i32 s5, s4, 171
    s_lshr_b32 s5, s5, 9
    s_mul_i32 s6, s5, 3
    s_sub_u32 s6, s4, s6
    s_mul_i32 s6, s6, 14
    s_add_u32 s6, s6, {sMI}
    s_lshl_b32 s6, s6, 2
    s_lshl_b32 s5, s5, 8
    s_add_u32 s5, s5, s6
    s_add_u32 s51, s5, {FLG}
    """)
    if MAP["ac"]:
        A(f"""
        s_mul_i32 s51, s4, 171
        s_lshr_b32 s51, s51, 9
        s_lshl_b32 s51, s51, 7
        s_add_u32 s51, s51, {FLG}
        """)
    elif MAP["lf"]:
        A(f"""
        s_mul_i32 s51, s4, 14
        s_add_u32 s51, s51, {sMI}
        s_lshl_b32 s51, s51, 7
        s_add_u32 s51, s51, {FLG}
        """)
    A(f"""
    s_mov_b32 s53, {11 if MAP["ac"] else 12}
    s_mov_b32 s54, {hex((127+149-QE) << 23)}
    s_mov_b32 s55, {hex((127+149-QE) << 23)}
    s_mov_b32 s46, 0xffff0000
    s_mov_b32 s47, {hex((127+QE) << 23)}
    s_mov_b32 s48, {hex(0x80000000 | ((127+QE-149) << 23))}
    v_bfe_u32 v3, v1, 4, 1
    v_lshrrev_b32 v4, 5, v1
    v_and_b32 v{vST}, 15, v1
    v_lshl_add_u32 v{vST}, v3, 5, v{vST}
    v_lshl_add_u32 v{vST}, v4, 4, v{vST}
    v_lshlrev_b32 v{vST}, 4, v{vST}
    """)
    FC = opt.get("fc", 4)
    if FC > 50: FC = -1
    if opt.get("fw"): EF = 0
    if EF and FC < 0:
        assert not (ST & 4) and not RL
        for i in range(4): A(f"v_mov_b32 v{204+i}, -1")
        A(f"""
        s_cmp_eq_u32 {sMI}, 13
        s_cselect_b32 s4, 0, 1024
        s_add_u32 s5, s50, s4
        s_add_u32 s4, s5, s4
        buffer_store_dwordx4 v[204:207], v5, s[24:27], s50 offen sc1
        buffer_store_dwordx4 v[204:207], v5, s[24:27], s5 offen sc1
        buffer_store_dwordx4 v[204:207], v5, s[24:27], s4 offen sc1
        """)
    for i in range(0, 24, 2):
        A(f"v_mov_b64 {vr(vACC+i,2)}, 0")
    for i in range(80 - 20 * opt.get("ml", 4), 80, 2):
        A(f"v_mov_b64 {vr(vF+80+i,2)}, 0")
    if RL:
        A(f"""
        s_cmp_ge_u32 s58, 2
        s_cbranch_scc1 W2M_VB
        s_waitcnt vmcnt(0)
        """)
        A.label("W2M_VB")
    elif ST & 4:
        A(f"""
        s_cmp_eq_u32 s58, 0
        s_cbranch_scc1 W2M_VB
        """)
        nsleep(A, opt.get("vd", 0))
        v0_loads()
        A.label("W2M_VB")
    for j in range(3):
        q = P + 4 * j
        u = P + 16 + 8 * j
        if RL and j == 1:
            A(f"""
            s_cmp_ge_u32 s58, 2
            s_cbranch_scc1 W2M_VC
            s_setprio 3
            """)
            v0_loads()
            A("s_setprio 0")
            A("s_branch W2M_VD")
            A.label("W2M_VC")
            A("s_waitcnt vmcnt(0)")
            A.label("W2M_VD")
        if RL:
            if j == 0: A("s_waitcnt vmcnt(12)")
        elif ST & 4:
            A(f"s_waitcnt vmcnt({(12, 2, 0)[j]})")
            if j == 1: cst(A, opt, 0, 52)
        else:
            A(f"s_waitcnt vmcnt({8 + 4 - 2*j + (3 if EF and FC < 0 else 0)})")
        if j == 0: cst(A, opt, 0, 53)
        scale8(A, u, q, q + 2)
        TS = 2048 if ST & 4 else 4096
        A(f"""
        ds_write_b128 v19, {vr(u,4)} offset:{TS*j}
        ds_write_b128 v19, {vr(u+4,4)} offset:{TS*j+12288}
        """)
        if j == (0 if ST & 4 else 2):
            A("s_waitcnt lgkmcnt(0)")
            cst(A, opt, 0, 50)
            A("s_barrier")
            cst(A, opt, 0, 51)
    if RL:
        A("s_waitcnt vmcnt(0) lgkmcnt(0)")
        cst(A, opt, 0, 52)
    elif ST & 4:
        A("s_waitcnt lgkmcnt(0)")
    else:
        A(f"s_waitcnt vmcnt({3 if EF and FC < 0 else 0})")
        cst(A, opt, 0, 52)

    def reads(s, buf):
        fa = vF + buf * 80 + 20 * s
        fb = fa + 12
        r = []
        for b in range(3):
            r.append(f"ds_read_b128 {vr(fa+4*b,4)}, v{vAR+s} offset:{4096*b + ASTAGE*buf}")
        for t in range(2):
            for u in range(2):
                r.append(f"ds_read_b64_tr_b16 {vr(fb+4*t+2*u,2)}, v{vT0+t} offset:{(32*s+4*u)*256}")
        return r

    def mfmas(s, buf):
        fa = vF + buf * 80 + 20 * s
        fb = fa + 12
        r = []
        for b in range(3):
            for t in range(2):
                acc = vACC + (b * 2 + t) * 4
                r.append(f"v_mfma_f32_16x16x32_bf16 {vr(acc,4)}, {vr(fa+4*b,4)}, {vr(fb+4*t,4)}, {vr(acc,4)}")
        return r

    if EF and FC >= 0:
        for i in range(4): A(f"v_mov_b32 v{204+i}, -1")
    A.label("W2M_LOOP")
    if EF and FC >= 0:
        A(f"""
        s_waitcnt vmcnt(0)
        s_cmp_lg_u32 {sC}, {opt.get("fc", 4)}
        s_cbranch_scc1 W2M_NF
        buffer_store_dwordx4 v[204:207], v5, s[24:27], s50 offen sc1
        s_cmp_eq_u32 {sMI}, 13
        s_cbranch_scc1 W2M_NF
        buffer_store_dwordx4 v[204:207], v5, s[24:27], s50 offen offset:1024 sc1
        buffer_store_dwordx4 v[204:207], v5, s[24:27], s50 offen offset:2048 sc1
        """)
        A.label("W2M_NF")
        assert opt.get("fc", 4) in (0, 2, 4, 6, 8)
    for buf in range(2):
        A(f"""
        v_add_u32 v{vT0}, {sCST}, v{vBR}
        v_add_u32 v{vT1}, {sCST}, v{vBR+1}
        s_add_u32 {sCST}, {sCST}, {VSTAGE}
        s_cmp_ge_u32 {sCST}, {RING}
        s_cselect_b32 {sCST}, 0, {sCST}
        """)
        cst(A, opt, sC, 16 + buf)
        A("s_barrier")
        cst(A, opt, sC, buf)
        rd = sum((reads(s, buf) for s in range(4)), [])
        ML = opt.get("ml", 4)
        mf = []
        for s in range(4):
            g = s - ML
            for k_, m in enumerate(mfmas(g % 4, buf ^ 1 if g < 0 else buf)):
                mf.append((m, -1 if g < 0 else 7 * g + (4 if k_ == 0 else 6)))
        FR = opt.get("fr", 4)
        RP = opt.get("rp", 1)
        seq = rd[:FR]
        ri = FR
        got = -1
        for mi_, (m, need) in enumerate(mf):
            while ri <= min(27, need + (opt.get("ra2", 0) if need >= 0 else 0)):
                seq.append(rd[ri]); ri += 1
            if need > got:
                seq.append(f"s_waitcnt lgkmcnt({min(15, min(ri, 28) - need - 1)})")
                got = need
            seq.append(m)
            if mi_ + 1 < opt.get("f0", 0): continue
            seq += rd[ri:ri + RP]
            ri += RP
        seq += rd[ri:]
        FM = Fst(A, opt, "m", buf == opt.get("fst", 0) & 1)
        FM()
        for xi_, x in enumerate(seq):
            A(x)
            if xi_ % 4 == 3 and FM.n < 14: FM()
        A("s_waitcnt lgkmcnt(0)")
        FM()
        FM.save(sC, opt.get("fst", 0) & ~1, "M")
        if (opt.get("stamp") or opt.get("probe") == 2) and buf == 0:
            A(f"""
            s_cmp_lg_u32 {sC}, 0
            s_cbranch_scc1 W2M_ST
            """)
            stamp(A, opt, 2, True)
            A.label("W2M_ST")
    if EF and FC < 0: A("s_waitcnt vmcnt(0)")
    A(f"""
    s_add_u32 {sC}, {sC}, 2
    s_cmp_lt_u32 {sC}, {opt.get('nch', 12)}
    s_cbranch_scc1 W2M_LOOP
    s_setprio 3
    """)
    if opt.get("nb"):
        A(f"""
        v_mov_b32 v2, 1
        v_mov_b32 v4, {LFLAG}
        s_mov_b64 exec, 1
        ds_add_u32 v4, v2 offset:8
        s_mov_b64 exec, -1
        """)
    else:
        A("s_barrier")
    for s_ in range(4 - ML, 4):
        for m in mfmas(s_, 1): A(m)
    if opt.get("nb"): A("ds_read_b32 v3, v4 offset:8")
    A("s_nop 7")
    stamp(A, opt, 3)
    for b in range(3):
        a = vACC + 8 * b
        o = vF + 4 * b
        for j in range(4):
            A(f"v_pk_mul_f32 {vr(a+2*j,2)}, {vr(a+2*j,2)}, s[54:55]")
        A(f"""
        v_cvt_pk_bf16_f32 v{o}, v{a}, v{a+1}
        v_cvt_pk_bf16_f32 v{o+1}, v{a+2}, v{a+3}
        v_cvt_pk_bf16_f32 v{o+2}, v{a+4}, v{a+5}
        v_cvt_pk_bf16_f32 v{o+3}, v{a+6}, v{a+7}
        s_nop 1
        v_permlane32_swap_b32 v{o}, v{o+2}
        v_permlane32_swap_b32 v{o+1}, v{o+3}
        buffer_store_dwordx4 {vr(o,4)}, v{vST}, s[24:27], s50 offen offset:{1024*b} sc1
        """)
        if b == 0:
            A(f"""
            s_cmp_eq_u32 {sMI}, 13
            s_cbranch_scc1 W2M_END
            """)
    A.label("W2M_END")
    if opt.get("xw") or opt.get("xb"):
        A(f"""
        v_mov_b32 v2, 1
        v_mov_b32 v4, {LFLAG}
        s_mov_b64 exec, 1
        ds_add_u32 v4, v2 offset:12
        s_mov_b64 exec, -1
        """)
    EF = MAP["ef"]
    cst_out(A, opt)
    if EF: stamp(A, opt, 4)
    if opt.get("nb"):
        A.label("W2M_RC")
        A("""
        s_waitcnt lgkmcnt(0)
        v_readfirstlane_b32 s4, v3
        s_cmp_eq_u32 s4, 4
        s_cbranch_scc1 P2_PUB
        ds_read_b32 v3, v4 offset:8
        s_branch W2M_RC
        """)
        return
    A("s_branch P2_LD" if EF else "s_branch P2_PUB")


PV = 81920
PA = PV
PP = PA + 4 * ASTAGE
PXF = FLG + 65536
PXB = SA


def gen_w2p(A, opt):
    NQ = 2
    RG = opt.get("rg", 2)
    sW, sLOC, sXCD = "s36", "s3", "s37"
    sMI, sNI, sH = "s40", "s41", "s58"
    sC = "s49"
    sVOFS = "s43"
    vVO = 6
    assert MAP["ac"] and opt.get("nb") == 2
    PB = opt.get("pb", 0)
    H2 = opt.get("h2", 0)
    assert PB or not H2
    if opt.get("cst"): A("s_memtime s[88:89]\nv_mov_b32 v230, 0")
    A(f"""
    s_mul_i32 s4, {sLOC}, 171
    s_lshr_b32 s4, s4, 9
    s_mul_i32 s5, s4, 3
    s_sub_u32 s57, {sLOC}, s5
    s_lshr_b32 s6, {sXCD}, 2
    s_mul_i32 s6, s6, 7
    s_add_u32 {sMI}, s6, s4
    s_and_b32 s6, {sXCD}, 1
    s_mul_i32 s6, s6, 3
    s_add_u32 s6, s6, s57
    s_bfe_u32 {sH}, {sXCD}, 0x10001
    s_lshl1_add_u32 {sNI}, s6, {sH}
    s_mul_i32 s42, {sMI}, 3
    s_sub_u32 s4, {sW}, 4
    s_cmp_lt_u32 s4, 3
    s_cbranch_scc1 W2_DEQ
    s_mov_b32 s14, {V_BYTES}
    v_lshrrev_b32 v2, 4, v1
    v_and_b32 v3, 15, v1
    v_lshlrev_b32 v4, 1, v2
    v_xor_b32 v3, v3, v4
    v_lshlrev_b32 v3, 4, v3
    v_mul_u32_u24 v4, 0xc00, v2
    v_add_u32 v{vVO}, v3, v4
    v_add_u32 v{vVO+1}, 11264, v{vVO}
    v_xor_b32 v3, 0x80, v{vVO}
    v_add_u32 v{vVO+2}, {2*11264}, v3
    v_add_u32 v{vVO+3}, {3*11264}, v3
    s_lshl_b32 {sVOFS}, {sNI}, 8
    s_mul_i32 s4, {sH}, {768*3072}
    s_add_u32 {sVOFS}, {sVOFS}, s4
    s_cmp_lt_u32 {sW}, 4
    s_cbranch_scc1 W2_MFMA
    """)

    def commit(sidx, add):
        for r, a in ((80, add), (82, add + 24 if add < 54 else 55)):
            A(f"""
            s_add_u32 s86, {sidx}, {a}
            v_cmp_eq_u32 vcc, s86, v1
            v_mov_b32 v231, s{r}
            v_cndmask_b32 v230, v230, v231, vcc
            """)

    MW = [0]

    def bar(sidx, add):
        if opt.get("cst") == 3:
            if MW[0] and add > 0: A(f"v_writelane_b32 v230, s80, {add - 1}")
            A("s_barrier")
            if MW[0]: A("s_memtime s[80:81]")
            if MW[0] and add == 24: A("s_waitcnt lgkmcnt(0)\nv_writelane_b32 v230, s80, 54")
            return
        if opt.get("cst") == 2:
            commit(sidx, add - 1)
            A("""
            s_memtime s[82:83]
            s_barrier
            s_memtime s[80:81]
            """)
            if (sidx, add) == (0, 24):
                A("s_waitcnt lgkmcnt(0)")
                commit(0, 54)
            return
        cst(A, opt, sidx, 24 + add if (sidx, add) != (0, 24) else 55)
        A("s_barrier")
        cst(A, opt, sidx, add if (sidx, add) != (0, 24) else 54)

    GPC = opt.get("gpc", 8)
    for g in range(1, 4):
        for j in range(4):
            A(f"v_add_u32 v{vVO+4*g+j}, {g*16*3072}, v{vVO+j}")
    gate_addr(A, "v40", 7)
    A(f"""
    s_mov_b32 m0, 32768
    s_mov_b32 {sC}, 2
    s_add_u32 {sVOFS}, {sVOFS}, {128*3072}
    s_lshl_b32 s48, {sH}, 9
    s_sub_u32 s48, {(256 + 64*3072 - 768*3072) % (1 << 32)}, s48
    s_waitcnt lgkmcnt(0)
    """)
    stamp(A, opt, 1)
    cst(A, opt, 0, 49)
    EB = opt.get("eb", 0)
    if EB == 1: A("s_barrier")
    A.label("W2L_LOOP")
    A(f"""
    s_cmp_lg_u32 {sC}, {GPC}
    s_cbranch_scc1 W2L_NG
    buffer_load_dword v42, v40, {DBG}, 0 offen sc1
    """)
    A.label("W2L_NG")
    for g in range(4):
        if g == 3: A("s_waitcnt vmcnt(58)")
        for j in range(4):
            A(f"buffer_load_dwordx4 v{vVO+4*g+j}, s[12:15], {sVOFS} offen offset:{1024*j} lds")
        A("s_add_u32 m0, m0, 4096")
        if g < 2: A("s_nop 0")
    PE = opt.get("pe", 3)
    A(f"""
    s_cmp_ge_u32 m0, {PV}
    s_cselect_b32 m0, 0, m0
    s_cmp_eq_u32 {sC}, 11
    s_cselect_b32 s4, s48, {64*3072}
    s_add_u32 {sVOFS}, {sVOFS}, s4
    s_cmp_gt_u32 {sC}, {PE}
    s_cbranch_scc1 W2L_SY
    s_cmp_lt_u32 {sC}, {PE}
    s_cbranch_scc1 W2L_{"BB" if EB == 2 else "NB"}
    """)
    cst(A, opt, 0, 50)
    if not EB: A("s_barrier")
    cst(A, opt, 0, 51)
    A(f"s_setprio {opt.get('lpr', 3)}")
    if not EB: A("s_barrier")
    assert not EB or (PE == 3 and opt.get("cst", 3) == 3 and not opt.get("vg"))
    if PE == 4: bar(0, 0)
    A.label("W2L_SY")
    RR = opt.get("rr", 0)
    RH = opt.get("rh", 11)
    assert not RR or (GPC <= RH <= 11 and not opt.get("hg"))
    A(f"""
    s_waitcnt vmcnt(48){" lgkmcnt(0)" if RR else ""}
    s_cmp_lg_u32 {sC}, {GPC + 2}
    s_cbranch_scc1 W2L_G_{"Y" if RR else "X"}
    """)
    poll_check(A, "v42", 0, "W2L_GS")
    A.label("W2L_G_X")
    if RR:
        rr_share(A, "v42", 43)
        A.label("W2L_G_Y")
    A.label("W2L_BB")
    bar(sC, -3)
    A.label("W2L_NB")
    A(f"""
    s_add_u32 {sC}, {sC}, 1
    s_cmp_lt_u32 {sC}, {15 if H2 else 24}
    s_cbranch_scc1 W2L_LOOP
    """)
    VG = opt.get("vg", 0)
    assert H2 or not VG
    vQ, QS = 52, 32

    def vg_write(lo, hi):
        n_ = opt.get("vdl", 0) if hi > lo else 0
        while n_ > 0:
            A(f"s_nop {min(n_, 16) - 1}"); n_ -= 16
        for j in range(lo, hi):
            A(f"ds_write_b128 v{vVG+2}, {vr(vQ+4*j,4)} offset:{1024*j}")
    vVG = 116
    V6 = [int(c) for c in str(opt.get("v6", 466))]
    VW = [int(c) for c in str(opt.get("vw", 4444))]
    assert sum(V6) == 16 and sum(VW) == 16 and len(V6) <= 4 and len(VW) <= 4
    if VG:
        assert GPC + 2 < 15
        A("s_mov_b32 s47, 0")
        A.label("W2L2")
        ld = [h for h in range(15, 24) if not 16 <= h < 16 + VG]
        n7 = lambda h: 16 if h < 15 else 8 if h in ld else 0
        for h in range(15, 24):
            if h in ld:
                A(f"s_add_u32 m0, s47, {(h * 16384) % PV}\ns_nop 0")
                for g in range(2):
                    for j in range(4):
                        A(f"buffer_load_dwordx4 v{vVO+4*g+j}, s[12:15], {sVOFS} offen offset:{1024*j} lds")
                    if g == 0: A("s_add_u32 m0, m0, 4096\ns_nop 0")
                A(f"s_add_u32 {sVOFS}, {sVOFS}, {64*3072*(1 + VG if h == 15 else 1)}")
            if VG == 3 and 16 <= h < 16 + len(V6):
                A(f"""
                s_cmp_eq_u32 s47, 0
                s_cbranch_scc1 W2L2_W{h}
                """)
                vg_write(sum(V6[:h-16]), sum(V6[:h-15]))
                A.label(f"W2L2_W{h}")
            if VG == 3 and h == 15: A(f"s_cmp_eq_u32 s47, 0\ns_cbranch_scc1 W2L2_W\ns_waitcnt vmcnt(8)\nW2L2_W:")
            if VG == 3 and h == 19: A("s_waitcnt lgkmcnt(0)")
            if n7(h - 3): A(f"s_waitcnt vmcnt({n7(h-2) + n7(h-1) + n7(h)})")
            bar(0, h - 3)
    elif H2:
        assert GPC + 2 < 15
        A("s_mov_b32 s47, 0")
        A.label("W2L2")
        for g in range(2):
            for j in range(4):
                A(f"buffer_load_dwordx4 v{vVO+4*g+j}, s[12:15], {sVOFS} offen offset:{1024*j} lds")
            A(f"s_add_u32 m0, m0, {12288 if g else 4096}")
            if g == 0: A("s_nop 0")
        A(f"""
        s_cmp_ge_u32 m0, {PV}
        s_cselect_b32 m0, s47, m0
        s_add_u32 {sVOFS}, {sVOFS}, {64*3072}
        s_cmp_eq_u32 {sC}, 15
        s_waitcnt vmcnt(40)
        s_cbranch_scc1 W2L2_S
        s_cmp_eq_u32 {sC}, 16
        s_waitcnt vmcnt(32)
        s_cbranch_scc1 W2L2_S
        s_waitcnt vmcnt(24)
        """)
        A.label("W2L2_S")
        bar(sC, -3)
        A(f"""
        s_add_u32 {sC}, {sC}, 1
        s_cmp_lt_u32 {sC}, 24
        s_cbranch_scc1 W2L2
        """)
    A(f"""
    s_setprio 0
    s_waitcnt vmcnt({16 if H2 else 32})
    """)
    if RR: rr_ask(A, 43)
    bar(0, 21)
    p2_tile(A)
    A(f"""
    v_mov_b32 v4, {LFLAG}
    v_mov_b32 v3, 1
    s_waitcnt vmcnt({8 if H2 else 16}){" lgkmcnt(0)" if RR else ""}
    """)
    if RR: A("v_readfirstlane_b32 s63, v43")
    bar(0, 22)
    if MAP["xf"]:
        A("s_waitcnt vmcnt(0)")
        bar(0, 23)
        A("s_buffer_load_dword s62, s[24:27], s44 glc")
    else:
        A(f"""
        s_buffer_load_dword s61, s[24:27], s44 glc
        s_waitcnt vmcnt(0)
        """)
        bar(0, 23)
        A(f"""
        s_waitcnt lgkmcnt(0)
        s_cmp_lt_u32 s61, 20
        s_cbranch_scc1 W2L_NX
        ds_write_b32 v4, v3
        s_waitcnt lgkmcnt(0)
        """)
        A.label("W2L_NX")
    bar(0, 24)
    cst_out(A, opt)
    A("s_branch P2_MM")
    A.label("W2L_GS")
    A(f"s_mov_b32 s7, {POLL_MAX}")
    A.label("W2L_G")
    A(f"""
    s_sub_u32 s7, s7, 1
    s_cbranch_scc1 W2L_G_X
    buffer_load_dword v42, v40, {DBG}, 0 offen sc1
    s_waitcnt vmcnt(0)
    """)
    poll_check(A, "v42", 0, "W2L_G")
    A("s_branch W2L_G_X")
    A.label("W2_DEQ")
    sB = "s38"
    sQOFS = "s43"
    vQO = 6
    vAW = 14
    vTB = 22
    U_ = 24
    Ft = 40
    O = 48
    vQ = 52
    QS = 32
    A(f"""
    s_mov_b32 {sB}, s4
    s_add_u32 s4, s42, {sB}
    """)
    if VG: A("s_min_u32 s4, s4, 39")
    else: A("s_cmp_ge_u32 s4, 40\ns_cbranch_scc1 W2D_IDLE")
    A(f"""
    s_mul_i32 {sQOFS}, s4, {16*6144}
    s_mul_i32 s6, {sH}, 3072
    s_add_u32 {sQOFS}, {sQOFS}, s6
    s_lshr_b32 s6, s4, 1
    s_lshr_b32 s5, s42, 1
    s_sub_u32 s6, s6, s5
    s_mul_i32 s6, s6, 3072
    s_add_u32 s6, s6, {PA}
    s_mov_b32 s10, {QW_BYTES}
    v_lshrrev_b32 v2, 5, v1
    v_and_b32 v3, 31, v1
    v_lshlrev_b32 v4, 4, v3
    v_mul_u32_u24 v{vQO}, 0x1800, v2
    v_add_u32 v{vQO}, v{vQO}, v4
    v_add_u32 v{vTB}, s6, v4
    """)
    QR = opt.get("qr", 3)
    A(f"s_mul_i32 s57, s57, {QR}")
    for i in range(7, -1, -1):
        A(f"""
        s_add_u32 s4, s57, {i}
        s_and_b32 s4, s4, 7
        s_mul_i32 s4, s4, 12288
        v_add_u32 v{vQO+i}, s4, v{vQO}
        """)
    A("s_waitcnt lgkmcnt(0)")
    stamp(A, opt, 1)
    cst(A, opt, 0, 49)

    def t_read(n):
        u = U_ + 8 * (n & 1)
        A(f"""
        ds_read_b128 {vr(u,4)}, v{vTB}
        ds_read_b128 {vr(u+4,4)}, v{vTB} offset:6144
        v_add_u32 v{vTB}, 512, v{vTB}
        """)

    EQ = opt.get("eq", 16)
    ql = [f"buffer_load_dwordx4 {vr(vQ+QS*u+4*i,4)}, v{vQO+i}, s[8:11], {sQOFS} offen offset:{512*u}" for u in range(NQ) for i in range(8)]
    assert EQ >= 8
    for x in ql[:EQ]: A(x)
    A(f"""
    s_add_u32 {sQOFS}, {sQOFS}, 512
    s_lshl_b32 s4, {sB}, 12
    s_add_u32 s4, s4, {PA + 4 * ASTAGE}
    v_bfe_u32 v3, v1, 1, 4
    v_xor_b32 v4, v3, v2
    v_lshlrev_b32 v4, 4, v4
    v_lshl_add_u32 v4, v2, 8, v4
    v_and_b32 v3, 1, v1
    v_lshl_add_u32 v4, v3, 3, v4
    v_add_u32 v{vAW}, s4, v4
    """)
    for i in range(7, -1, -1):
        A(f"""
        s_add_u32 s4, s57, {i}
        s_and_b32 s4, s4, 7
        s_lshl_b32 s5, s4, 5
        s_lshl_b32 s4, s4, 9
        v_xor_b32 v3, s5, v{vAW}
        v_add_u32 v{vAW+i}, s4, v3
        """)
    A(f"""
    s_mov_b32 {sC}, 0
    s_xor_b32 s4, {sNI}, 1
    s_mul_i32 s5, {sMI}, 12
    s_add_u32 s4, s4, s5
    s_lshl_b32 s45, s4, 7
    s_add_u32 s45, s45, {PXF}
    s_mul_i32 s46, s4, 24576
    s_mul_i32 s47, {sB}, {6144 if H2 else 4096 if PB else 8192}
    s_add_u32 s46, s46, s47
    s_add_u32 s46, s46, {PXB}
    s_add_u32 s47, s47, {PP + (ASTAGE if PB else 0)}
    s_mov_b32 s48, {(-2 * ASTAGE) % (1 << 32)}
    s_mov_b32 s61, 0
    """)
    if VG:
        A(f"""
        s_mov_b32 s14, {V_BYTES}
        v_lshrrev_b32 v2, 4, v1
        v_and_b32 v3, 15, v1
        v_lshlrev_b32 v4, 1, v2
        v_xor_b32 v3, v3, v4
        v_lshlrev_b32 v3, 4, v3
        v_mul_u32_u24 v4, 0xc00, v2
        v_add_u32 v{vVG}, v3, v4
        v_xor_b32 v{vVG+1}, 0x80, v{vVG}
        s_xor_b32 s59, {sNI}, 1
        s_lshl_b32 s59, s59, 8
        s_mul_i32 s4, {sH}, {768*3072}
        s_add_u32 s59, s59, s4
        s_add_u32 s5, {sB}, {1 if VG == 3 else 0}
        s_cmp_eq_u32 s5, 3
        s_cselect_b32 s5, 0, s5
        s_mul_i32 s4, s5, {64*3072}
        s_add_u32 s60, s59, s4
        s_add_u32 s60, s60, {4*64*3072}
        s_lshl_b32 s4, s5, 14
        s_add_u32 s4, s4, {(16 * 16384) % PV}
        v_add_u32 v{vVG+2}, s4, v5
        """)
    if opt.get("dq"):
        A(f"""
        s_mov_b32 s59, 0x07060302
        s_lshl_b32 s4, {sB}, 12
        s_add_u32 s4, s4, {PA + 4 * ASTAGE}
        v_add_u32 v118, s4, v5
        v_and_b32 v119, {0x70 if opt["dq"] & 128 else 0xf0}, v5
        v_add_u32 v119, {PA}, v119
        """)
    cst(A, opt, 0, 50)
    A("s_barrier")
    cst(A, opt, 0, 51)
    A(f"s_setprio {opt.get('dpr', 3)}")
    t_read(0)
    for x in ql[EQ:]: A(x.replace(" offset:512", ""))
    A("s_waitcnt lgkmcnt(0)")
    MB = opt.get("mb", 4)
    A.label("W2D_LOOP")
    for n in range(4 if VG else 2):
        last = n >= 2
        if n == 2:
            A(f"""
            s_add_u32 {sC}, {sC}, 4
            s_cmp_lt_u32 {sC}, 8
            s_cbranch_scc1 W2D_LOOP
            """)
            if VG < 3:
                A(f"""
                s_cmp_lt_u32 {sB}, {VG}
                s_cselect_b64 vcc, -1, 0
                """)
        n &= 1
        q = vQ + QS * n
        S = U_ + 8 * n
        DSR = [16, 18, 20, 22, 28, 30, 32, 34, 50, 52, 54, 80, 82]
        dsn = [0]

        def dsam():
            if opt.get("ds", -1) // 16 == n:
                A(f"s_memtime s[{DSR[dsn[0]]}:{DSR[dsn[0]]+1}]"); dsn[0] += 1
        dsam()
        if not (last and n): t_read(n + 1)
        if VG:
            if not last: A(f"s_add_u32 {sQOFS}, {sQOFS}, 512")
            A("s_waitcnt vmcnt(8)")
            if last and n and VG < 3:
                A("""
                s_cbranch_vccnz W2D_VN
                s_waitcnt vmcnt(0)
                """)
                A.label("W2D_VN")
        else:
            A(f"""
            s_add_u32 {sQOFS}, {sQOFS}, 512
            s_cmp_lt_u32 {sC}, {2 * (6 - NQ - n + 1)}
            s_waitcnt vmcnt({8*(NQ-1)})
            s_cbranch_scc1 W2D_NT{n}
            s_waitcnt vmcnt({8 * (1 - n)})
            """)
            A.label(f"W2D_NT{n}")
            A(f"s_cmp_lt_u32 {sC}, {2 * (6 - NQ - n)}")
        DB = opt.get("db", 0)
        held = []
        dsam()
        for i in range(8):
            qq = q + 4 * i
            f = Ft + 4 * (i & 1)
            o = 120 + 2 * i if DB else O + 2 * (i & 1)
            DQ = opt.get("dq", 0)
            if not DQ & 4:
                if DQ & 16:
                    A(f"""
                    v_pk_fma_f32 {vr(f,2)}, {vr(qq,2)}, {vr(S,2)}, {vr(S+4,2)}
                    v_pk_fma_f32 {vr(f+2,2)}, {vr(qq+2,2)}, {vr(S+2,2)}, {vr(S+6,2)}
                    """)
                else:
                    A(f"""
                    v_fma_f32 v{f}, v{qq}, v{S}, v{S+4}
                    v_fma_f32 v{f+1}, v{qq+1}, v{S+1}, v{S+5}
                    v_fma_f32 v{f+2}, v{qq+2}, v{S+2}, v{S+6}
                    v_fma_f32 v{f+3}, v{qq+3}, v{S+3}, v{S+7}
                    """)
                if DQ & 1:
                    A(f"""
                    v_perm_b32 v{o}, v{f+1}, v{f}, s59
                    v_perm_b32 v{o+1}, v{f+3}, v{f+2}, s59
                    """)
                else:
                    A(f"""
                    v_cvt_pk_bf16_f32 v{o}, v{f}, v{f+1}
                    v_cvt_pk_bf16_f32 v{o+1}, v{f+2}, v{f+3}
                    """)
            if DQ & 2:
                if i & 1: held.append(f"ds_write_b128 v118, {vr(o-2,4)} offset:{ASTAGE*(1-n) + 512*(i-1)}")
            elif not DQ & 8:
                held.append(f"ds_write_b64 v{vAW+i}, {vr(o,2)} offset:{ASTAGE*(1-n)}")
            if n == 1 and i > 0 and not last: held.append(f"v_add_u32 v{vAW+i-1}, s48, v{vAW+i-1}")
            if not DB:
                for x in held: A(x)
                held = []
                dsam()
            if (i + 1) % RG == 0 and last:
                if VG < 3: A(f"s_cbranch_vccz W2D_SV{n}_{i}")
                for ii in range(i + 1 - RG, i + 1):
                    A(f"""
                    buffer_load_dwordx4 {vr(q+4*ii,4)}, v{vVG + (ii >> 1 & 1)}, s[12:15], s60 offen
                    s_add_u32 s60, s60, {4*3072}
                    """)
                if VG < 3: A.label(f"W2D_SV{n}_{i}")
            elif (i + 1) % RG == 0:
                if not VG: A(f"s_cbranch_scc0 W2D_SK{n}_{i}")
                for ii in range(i + 1 - RG, i + 1):
                    A(f"buffer_load_dwordx4 {vr(q+4*ii,4)}, v{vQO+ii}, s[8:11], {sQOFS} offen")
                if not VG: A.label(f"W2D_SK{n}_{i}")
            if DB and ((i + 1) % DB == 0 or i == 7):
                WB = opt.get("wb", 99)
                k_ = 0
                for x in held:
                    if x.startswith("ds_write"):
                        if k_ == WB and MB == 8: bar(sC, 2 * n - 1)
                        k_ += 1
                    A(x)
                held = []
            if i + 1 == MB and not (DB and MB == 8):
                if DQ & 32: A(f"s_waitcnt lgkmcnt({2 if DQ & 2 else 4})")
                if EB and n == 0:
                    A(f"""
                    s_cmp_eq_u32 {sC}, 0
                    s_cbranch_scc1 W2D_NM
                    s_barrier
                    s_cmp_lt_u32 {sC}, {2 * (6 - NQ - n)}
                    """)
                    A.label("W2D_NM")
                else: bar(sC, 2 * n - 1)
                dsam()
                for j in range(2 if DQ & 64 else 4 if DQ & 128 else 0): A(f"ds_read_b128 {vr(140+4*j,4)}, v119 offset:{128*j}")
                if opt.get("cst") and not VG: A(f"s_cmp_lt_u32 {sC}, {2 * (6 - NQ - n)}")
        assert not (DB and MB == 8) or (DB == 8 and opt.get("wb", 99) < 8)
        if n == 1 and not last: A(f"v_add_u32 v{vAW+7}, s48, v{vAW+7}")
        A(f"s_waitcnt lgkmcnt({0 if not DQ & 32 else 2 if DQ & 2 else 4})")
        dsam()
        bar(sC, 2 * n)
        dsam()
        if dsn[0]:
            A(f"""
            s_cmp_lg_u32 {sC}, {opt["ds"] % 16}
            s_cbranch_scc1 W2D_DS
            s_waitcnt lgkmcnt(0)
            """)
            for j in range(dsn[0]): A(f"v_writelane_b32 v230, s{DSR[j]}, {j}")
            A.label("W2D_DS")
        for j in range(2 if DQ & 128 else 0): A(f"ds_read_b128 {vr(140+4*j,4)}, v119 offset:{128*j}")
    assert not (VG and opt.get("cst") in (1, 2))
    if not VG:
        A(f"""
        s_add_u32 {sC}, {sC}, 4
        s_cmp_lt_u32 {sC}, 12
        s_cbranch_scc1 W2D_LOOP
        """)
    if H2:
        A(f"""
        s_cmp_eq_u32 {sB}, 2
        s_cbranch_scc1 W2D_H
        """)
    A(f"""
    s_setprio {opt.get("vpr", 0)}
    s_mov_b32 m0, s47
    """)
    P0 = 15 if PB else 17
    if VG:
        P0 = VG + 12 + len(VW)
        bar(0, 11)
        if RR: rr_ask(A, 2)
        if VG == 3: bar(0, 12)
        A(f"""
        s_waitcnt vmcnt(0)
        s_cmp_eq_u32 {sB}, 0
        s_cbranch_scc1 W2D_V0
        s_barrier
        """)
        A.label("W2D_V0")
        for i in range(len(VW)):
            A("s_barrier")
            vg_write(sum(VW[:i]), sum(VW[:i+1]))
        A(f"""
        s_waitcnt lgkmcnt(0)
        s_setprio 0
        s_add_u32 {sC}, {sB}, {VG + 10 + len(VW)}
        """)
        if RR: A("v_readfirstlane_b32 s63, v2\ns_add_u32 s46, s46, s63")
        assert VG + 10 + len(VW) >= 15
    SX = opt.get("sx", 0)
    for h in range(11, 0 if VG else P0):
        if RR and h == 12: rr_ask(A, 2)
        if RR and h == 13: A("s_waitcnt lgkmcnt(0)\nv_readfirstlane_b32 s63, v2\ns_add_u32 s46, s46, s63")
        if h >= P0 - 2: A("s_buffer_load_dword s61, s[24:27], s45 glc")
        bar(0, h)
    if not VG: A(f"s_mov_b32 {sC}, {P0}")
    if SX:
        A(f"""
        s_cmp_lg_u32 {sB}, 0
        s_cbranch_scc1 W2D_GOT
        """)
    A.label("W2D_PL")
    A(f"""
    s_cmp_ge_u32 s61, 4
    s_cbranch_scc1 W2D_GOT
    s_buffer_load_dword s61, s[24:27], s45 glc
    """)
    for i in range(opt.get("pd2", 0)):
        A(f"""
        s_sleep {opt.get("pd3", 1)}
        s_cmp_ge_u32 s61, 4
        s_cbranch_scc1 W2D_GOT
        """)
        if opt.get("pd4") and i + 1 == opt["pd4"]: A("s_buffer_load_dword s61, s[24:27], s45 glc")
    bar(sC, 0)
    A(f"""
    s_add_u32 {sC}, {sC}, 1
    s_cmp_lt_u32 {sC}, {SX if SX else 24}
    s_cbranch_scc1 W2D_PL
    """)
    spoll(A, "W2D_P", "s45", 4, 0, first=False)
    A.label("W2D_GOT")
    cst(A, opt, 0, 52)
    for i in range(0 if SX else 6 if H2 else 4 if PB else 8):
        if i == 4: A("s_add_u32 m0, m0, 4096\ns_add_u32 s46, s46, 4096")
        A(f"buffer_load_dwordx4 v5, s[24:27], s46 offen offset:{1024*(i&3)} sc1 lds")
    if MAP["xf"]: p2_tile(A)
    A("s_branch W2D_R1")
    A.label("W2D_R0")
    bar(sC, 0)
    A(f"s_add_u32 {sC}, {sC}, 1")
    A.label("W2D_R1")
    A(f"""
    s_cmp_lt_u32 {sC}, 24
    s_cbranch_scc1 W2D_R0
    """)
    if MAP["xf"]:
        A("""
        s_buffer_load_dword s62, s[24:27], s44 glc
        s_waitcnt vmcnt(0)
        """)
    else:
        A("s_waitcnt vmcnt(0) lgkmcnt(0)")
    bar(0, 24)
    cst_out(A, opt)
    A("s_branch P2_MM")
    if not VG:
        A.label("W2D_IDLE")
        A(f"""
        s_mov_b32 {sC}, 0
        s_waitcnt lgkmcnt(0)
        """)
        if H2:
            A(f"""
            s_cmp_eq_u32 {sB}, 2
            s_cselect_b32 {sC}, 14, 0
            """)
        A.label("W2D_IDL")
        A(f"""
        s_barrier
        s_add_u32 {sC}, {sC}, 1
        s_cmp_lt_u32 {sC}, {26 if EB else 27}
        s_cbranch_scc1 W2D_IDL
        """)
    if H2:
        if not VG:
            A(f"""
            s_cmp_lg_u32 {sB}, 2
            s_cbranch_scc1 {"P2_MMR" if RR else "P2_MM"}
            s_setprio {opt.get('lpr', 3)}
            """)
        A.label("W2D_H")
        A(f"""
        s_mov_b32 s14, {V_BYTES}
        v_lshrrev_b32 v2, 4, v1
        v_and_b32 v3, 15, v1
        v_lshlrev_b32 v4, 1, v2
        v_xor_b32 v3, v3, v4
        v_lshlrev_b32 v3, 4, v3
        v_mul_u32_u24 v4, 0xc00, v2
        v_add_u32 v{vVO}, v3, v4
        v_add_u32 v{vVO+1}, 11264, v{vVO}
        v_xor_b32 v3, 0x80, v{vVO}
        v_add_u32 v{vVO+2}, {2*11264}, v3
        v_add_u32 v{vVO+3}, {3*11264}, v3
        v_add_u32 v{vVO+4}, {16*3072}, v{vVO}
        v_add_u32 v{vVO+5}, {16*3072}, v{vVO+1}
        v_add_u32 v{vVO+6}, {16*3072}, v{vVO+2}
        v_add_u32 v{vVO+7}, {16*3072}, v{vVO+3}
        s_xor_b32 {sVOFS}, {sNI}, 1
        s_lshl_b32 {sVOFS}, {sVOFS}, 8
        s_mul_i32 s4, {sH}, {768*3072}
        s_add_u32 {sVOFS}, {sVOFS}, s4
        s_add_u32 {sVOFS}, {sVOFS}, {(3*64 + 32)*3072}
        s_movk_i32 s47, 8192
        s_mov_b32 m0, {(15 * 16384) % PV + 8192}
        s_mov_b32 {sC}, 15
        """)
        if "v6p" in opt: A(f"s_setprio {opt['v6p']}")
        bar(0, 11)
        A("s_branch W2L2")
    else:
        A("s_branch P2_MM")
    if opt.get("awh", 99) == 99: A.pad("P1_XR", 0)
    else: A.pad("W2M_PG", opt.get("aw", 100))
    A.label("W2_MFMA")
    MW[0] = 1
    vAR = 10
    vBR = 18
    vST, vTA = 22, 23
    vACC = 24
    vF = 72
    vP = 152
    P = vF
    A(f"""
    s_lshl_b32 s4, {sW}, 13
    s_mov_b32 m0, s4
    s_mul_i32 s4, {sW}, {32*3072}
    s_add_u32 {sVOFS}, {sVOFS}, s4
    s_lshr_b32 s6, s42, 1
    s_lshl1_add_u32 s6, s6, {sH}
    s_mul_i32 s6, s6, 1536
    s_mov_b32 s18, {SC_BYTES}
    s_mov_b32 s19, 0x00020000
    s_mov_b32 s22, {SC_BYTES}
    s_mov_b32 s23, 0x00020000
    s_min_u32 s5, {sW}, 2
    s_lshl_b32 s5, s5, 9
    v_lshl_add_u32 v{vTA}, v1, 3, s5
    s_waitcnt lgkmcnt(0)
    """)
    stamp(A, opt, 1)
    cst(A, opt, 0, 49)
    for j in range(2):
        A(f"""
        buffer_load_dwordx2 {vr(P+4*j,2)}, v{vTA}, s[16:19], s6 offen offset:{3072*j}
        buffer_load_dwordx2 {vr(P+4*j+2,2)}, v{vTA}, s[20:23], s6 offen offset:{3072*j}
        """)
    for g in range(2):
        for j in range(4):
            A(f"buffer_load_dwordx4 v{vVO+j}, s[12:15], {sVOFS} offen offset:{1024*j} lds")
        if g == 0:
            A(f"""
            s_add_u32 m0, m0, 4096
            s_add_u32 {sVOFS}, {sVOFS}, {16*3072}
            """)
    A(f"""
    v_lshlrev_b32 v{vTA}, 1, v{vTA}
    v_add_u32 v{vTA}, {PA}, v{vTA}
    v_and_b32 v2, 15, v1
    v_lshrrev_b32 v3, 4, v1
    v_xor_b32 v4, v2, v3
    v_lshlrev_b32 v4, 4, v4
    v_lshl_add_u32 v4, v2, 8, v4
    v_add_u32 v{vAR}, {PA}, v4
    v_xor_b32 v{vAR+1}, 64, v{vAR}
    v_xor_b32 v{vAR+2}, 128, v{vAR}
    v_xor_b32 v{vAR+3}, 192, v{vAR}
    v_add_u32 v{vAR+4}, {3*ASTAGE}, v{vAR}
    v_add_u32 v{vAR+5}, {3*ASTAGE}, v{vAR+1}
    v_add_u32 v{vAR+6}, {3*ASTAGE}, v{vAR+2}
    v_add_u32 v{vAR+7}, {3*ASTAGE}, v{vAR+3}
    v_bfe_u32 v2, v1, 2, 2
    v_and_b32 v4, 1, v3
    v_lshl_or_b32 v4, v4, 2, v2
    s_lshl_b32 s5, {sW}, 1
    v_xor_b32 v4, s5, v4
    v_lshlrev_b32 v4, 5, v4
    v_lshl_add_u32 v2, v3, 3, v2
    v_lshl_add_u32 v4, v2, 8, v4
    v_and_b32 v2, 3, v1
    v_lshl_add_u32 v{vBR}, v2, 3, v4
    v_xor_b32 v{vBR+1}, 32, v{vBR}
    v_add_u32 v{vBR+2}, 40960, v{vBR}
    v_add_u32 v{vBR+3}, 40960, v{vBR+1}
    s_mul_i32 s4, {sMI}, 12
    s_add_u32 s4, s4, {sNI}
    s_lshl_b32 s45, s4, 7
    s_add_u32 s45, s45, {PXF}
    s_mul_i32 s44, s4, 24576
    s_lshl_b32 s5, {sW}, {10 if PB else 11}
    s_add_u32 s44, s44, s5
    s_add_u32 s44, s44, {PXB}
    """)
    SM = opt.get("sm", -1 if SX else 99)
    if SM > 50: SM = -1 if SX else 99

    def marks():
        r = [f"v_mov_b32 v{vP+i}, -1" for i in range(4)]
        for b in range(3):
            r.append(f"buffer_store_dwordx4 {vr(vP,4)}, v{vP+4+b}, s[24:27], s44 offen sc1")
        return r
    if SX:
        assert PB
        A(f"""
        s_xor_b32 s6, s4, 1
        s_mul_i32 s59, s6, 24576
        s_add_u32 s59, s59, s5
        s_add_u32 s59, s59, {PXB}
        v_mov_b32 v{vP+4}, v5
        v_add_u32 v{vP+5}, 4096, v5
        v_add_u32 v{vP+6}, 8192, v5
        """)
        if SM < 0:
            for x in marks(): A(x)
    A(f"""
    s_add_u32 s5, s5, {PP + (ASTAGE if PB else 0)}
    v_add_u32 v6, s5, v5
    s_xor_b32 {sNI}, {sNI}, 1
    s_lshl_b32 s4, {sNI}, 2
    s_add_u32 s4, s4, {sW}
    s_mul_i32 s5, s4, 40
    s_add_u32 s5, s5, s42
    s_lshl_b32 s5, s5, 10
    s_add_u32 s50, s5, {W2F}
    s_mul_i32 s51, s4, 171
    s_lshr_b32 s51, s51, 9
    s_lshl_b32 s51, s51, 7
    s_add_u32 s51, s51, {FLG}
    s_mov_b32 s53, 11
    s_mov_b32 s54, {hex((127+149-QE) << 23)}
    s_mov_b32 s55, {hex((127+149-QE) << 23)}
    s_mov_b32 s46, 0xffff0000
    s_mov_b32 s47, {hex((127+QE) << 23)}
    s_mov_b32 s48, {hex(0x80000000 | ((127+QE-149) << 23))}
    v_bfe_u32 v3, v1, 4, 1
    v_lshrrev_b32 v4, 5, v1
    v_and_b32 v{vST}, 15, v1
    v_lshl_add_u32 v{vST}, v3, 5, v{vST}
    v_lshl_add_u32 v{vST}, v4, 4, v{vST}
    v_lshlrev_b32 v{vST}, 4, v{vST}
    v_mov_b32 v7, 1
    v_mov_b32 v8, 0
    """)
    if opt.get("hg"): A("s_mov_b32 s63, 0")
    for j in range(2):
        q = P + 4 * j
        u = P + 16 + 8 * j
        A(f"s_waitcnt vmcnt({8 + 2 - 2*j + (3 if SM < 0 else 0)})")
        if j == 0: cst(A, opt, 0, 53)
        scale8(A, u, q, q + 2)
        A(f"""
        ds_write_b128 v{vTA}, {vr(u,4)} offset:{3072*j}
        ds_write_b128 v{vTA}, {vr(u+4,4)} offset:{3072*j+6144}
        """)
    A("s_waitcnt lgkmcnt(0)")
    cst(A, opt, 0, 50)
    A("s_barrier")
    cst(A, opt, 0, 51)
    if not EB: A("s_barrier")
    A(f"s_waitcnt vmcnt({3 if SM < 0 else 0})")
    cst(A, opt, 0, 52)

    def reads(g):
        fa = vF + 20 * (g & 3)
        fb = fa + 12
        st = 5 - (g // 4) % 6
        sl = g % 10
        r = []
        for b in range(3):
            r.append(f"ds_read_b128 {vr(fa+4*b,4)}, v{vAR + (g & 3) + 4 * (st // 3)} offset:{4096*b + ASTAGE*(st % 3)}")
        for t in range(2):
            for u in range(2):
                r.append(f"ds_read_b64_tr_b16 {vr(fb+4*t+2*u,2)}, v{vBR + t + 2 * (sl // 5)} offset:{8192*(sl % 5) + 1024*u}")
        return r

    def mfmas(g):
        fa = vF + 20 * (g & 3)
        fb = fa + 12
        r = []
        for b in range(3):
            for t in range(2):
                acc = vr(vACC + 24 * (g // 24) + (b * 2 + t) * 4, 4)
                r.append(f"v_mfma_f32_16x16x32_bf16 {acc}, {vr(fa+4*b,4)}, {vr(fb+4*t,4)}, {'0' if g % 24 == 0 else acc}")
        return r
    L = opt.get("pl", 2)
    HF = opt.get("hf", 17)
    FR = opt.get("fr", 2)
    send = []
    for b in range(3):
        for t in range(2):
            send.append([f"buffer_store_dwordx4 {vr(vACC + (b*2+t)*4, 4)}, v5, s[24:27], s44 offen offset:{1024*t} sc1"] + (["s_add_u32 s44, s44, 8192"] if t else []))
    if PB:
        send = []
        for b in range(3):
            a = vACC + 8 * b
            send.append([f"v_cvt_pk_bf16_f32 v{a+j}, v{a+2*j}, v{a+2*j+1}" for j in range(4)] +
                        [f"v_min_u32 v{a+j}, -2, v{a+j}" for j in range(4 if SX else 0)] +
                        [f"buffer_store_dwordx4 {vr(a, 4)}, v5, s[24:27], s44 offen sc1", "s_add_u32 s44, s44, 4096"])
        A(f"""
        s_mov_b32 s56, {hex((127+149-QE) << 7)}
        s_mov_b32 s57, {hex((127+149-QE) << 23)}
        """)
    if opt.get("nosend") == 1: send = [[x for x in l if not x.startswith("buffer_store")] for l in send]
    if opt.get("nosend") == 2:
        send = [l[:4] + ["s_bitcmp1_b32 s3, 0", f"s_cbranch_scc1 W2M_NS{i}", l[4], f"W2M_NS{i}:"] + l[5:] for i, l in enumerate(send)]
    PS = opt.get("ps", 6)
    for h in range(24):
        bar(0, h)
        if h == opt.get("awh", 9): A.label("W2M_PG")
        rd = reads(2 * h) + reads(2 * h + 1)
        if opt.get("dq", 0) & 256 and h < 12: rd[7:10] = ["s_nop 0"] * 3
        mf = []
        for g in range(2 * h - L, 2 * h + 2 - L):
            if g < 0: continue
            for k_, m in enumerate(mfmas(g)):
                mf.append((m, -1 if g < 2 * h else 7 * (g - 2 * h) + (4 if k_ == 0 else 6), g))
        seq = rd[:FR]
        ri = FR
        got = -1
        ns = 0
        tail = []
        PQ = opt.get("pq", 0)
        for m, need, g in mf:
            while ri <= need:
                seq.append(rd[ri]); ri += 1
            if need > got:
                while ri < 14:
                    seq.append(rd[ri]); ri += 1
                seq.append(f"s_waitcnt lgkmcnt({sum(x.startswith('ds') for x in rd[need+1:])})")
                got = need
            seq.append(m)
            seq += rd[ri:ri + (2 if L == 1 else 1)]
            ri += 2 if L == 1 else 1
            if g >= 24 and send and ns < PS and (m != mf[0][0] or g > 24) and h >= opt.get("ph", 0):
                x = send.pop(0); ns += 1
                if PQ:
                    seq += x[:4]; tail += x[4:]
                else: seq += x
        seq += rd[ri:]
        seq += tail
        HG = opt.get("hg", 0)

        def tell(tag, force):
            r = ["s_cmp_lg_u32 s63, 0"] if force else ["s_getreg_b32 s4, hwreg(HW_REG_IB_STS, 0, 4)", "s_or_b32 s4, s4, s63"]
            return r + [f"s_cbranch_scc1 W2M_T{tag}", "s_waitcnt vmcnt(0)", "s_mov_b64 exec, 1",
                        "buffer_atomic_add v7, v8, s[24:27], s45 offen sc1", "s_mov_b64 exec, -1", "s_mov_b32 s63, 16", f"W2M_T{tag}:"]
        if HG and HG < h <= HF and opt.get("hm"):
            k_ = [i for i, x in enumerate(seq) if x.startswith("v_mfma")][5]
            seq[k_+1:k_+1] = tell(f"m{h}", False)
        vR = vP + 8

        def fetch():
            return [f"buffer_load_dwordx4 {vr(vR+4*b,4)}, v{vP+4+b}, s[24:27], s59 offen sc1" for b in range(3)]
        if SX:
            assert GPC - 1 <= HF <= 11 and not HG and not PQ and SM < HF - 2
            km = [i for i, x in enumerate(seq) if x.startswith("v_mfma")]
            ex = fetch() if h == SX else marks() if h == SM else []
            if h == SM: seq += ex
            else:
                for j, x in enumerate(ex): seq.insert(km[6 + 2 * j] + 1 + j, x)
        for x in seq: A(x)
        if RR and h == RH: rr_ask(A, 9)
        if HG and HG <= h <= HF:
            for x in tell(h, h == HF): A(x)
        if h == 12 and L == 2 and opt.get("es", 1):
            A("s_nop 3")
            while send and ns < PS:
                for x in send.pop(0): A(x)
                ns += 1
                if len(send) <= 2 and send: A("s_nop 3")
        if h == HF and not HG:
            A(f"""
            s_waitcnt vmcnt(0)
            s_mov_b64 exec, 1
            buffer_atomic_add v7, v8, s[24:27], s45 offen sc1
            s_mov_b64 exec, -1
            """)
        if h < 23: A("s_waitcnt lgkmcnt(0)")
        if RR and h == RH:
            assert not SX or SM > RH
            A("""
            v_readfirstlane_b32 s63, v9
            s_add_u32 s44, s44, s63
            s_add_u32 s50, s50, s63
            """)
            if SX: A("s_add_u32 s59, s59, s63")
        if (opt.get("stamp") or opt.get("probe") == 2) and h == 0: stamp(A, opt, 2, True)
    assert not send
    A("s_setprio 3")
    for g in range(48 - L, 48):
        for k_, m in enumerate(mfmas(g)):
            if k_ < 2: A(f"s_waitcnt lgkmcnt({14 - (7 * (g - 46) + (4 if k_ == 0 else 6)) - 1})")
            A(m)
    a0 = vACC + 24
    bar(0, 24)
    if SX:
        A(f"s_mov_b32 s7, {POLL_MAX}")
        A.label("W2M_CK")
        A(f"""
        s_waitcnt vmcnt(0)
        v_max3_u32 v2, v{vR}, v{vR+1}, v{vR+2}
        v_max3_u32 v3, v{vR+3}, v{vR+4}, v{vR+5}
        v_max3_u32 v2, v{vR+6}, v{vR+7}, v2
        v_max3_u32 v3, v{vR+8}, v{vR+9}, v3
        v_max3_u32 v2, v{vR+10}, v{vR+11}, v2
        v_max_u32 v2, v2, v3
        v_cmp_eq_u32 vcc, -1, v2
        s_cbranch_vccnz W2M_RT
        """)
        A.label("W2M_OK")
        if opt.get("stamp"):
            A(f"""
            s_sub_u32 s7, {POLL_MAX}, s7
            s_cbranch_scc0 W2M_NR
            """)
        vP = vR
    for i in range(0 if SX else 3 if PB else 6):
        A(f"ds_read_b128 {vr(vP+4*i,4)}, v6 offset:{4096*i if PB else 8192*(i//2) + 1024*(i&1)}")
    if not SX: A("s_nop 4")
    if SX and opt.get("stamp"): A.label("W2M_NR")
    for j in range(12):
        A(f"v_pk_mul_f32 {vr(a0+2*j,2)}, {vr(a0+2*j,2)}, s[54:55]")
    stamp(A, opt, 3, True)
    for b in range(3):
        a = a0 + 8 * b
        o = vF + 4 * b
        if not SX: A(f"s_waitcnt lgkmcnt({2 - b if PB else 4 - 2*b})")
        for j in range(4):
            if PB:
                A(f"v_dot2c_f32_bf16 v{a+2*j}, s56, v{vP+4*b+j}")
                A(f"v_dot2c_f32_bf16 v{a+2*j+1}, s57, v{vP+4*b+j}")
            else:
                A(f"v_pk_fma_f32 {vr(a+2*j,2)}, {vr(vP+8*b+2*j,2)}, s[54:55], {vr(a+2*j,2)}")
        if PB: A("s_nop 2")
        A(f"""
        v_cvt_pk_bf16_f32 v{o}, v{a}, v{a+1}
        v_cvt_pk_bf16_f32 v{o+1}, v{a+2}, v{a+3}
        v_cvt_pk_bf16_f32 v{o+2}, v{a+4}, v{a+5}
        v_cvt_pk_bf16_f32 v{o+3}, v{a+6}, v{a+7}
        s_nop 1
        v_permlane32_swap_b32 v{o}, v{o+2}
        v_permlane32_swap_b32 v{o+1}, v{o+3}
        buffer_store_dwordx4 {vr(o,4)}, v{vST}, s[24:27], s50 offen offset:{1024*b} sc1
        """)
        if b == 0:
            A(f"""
            s_cmp_eq_u32 {sMI}, 13
            s_cbranch_scc1 W2M_END
            """)
    A.label("W2M_END")
    if opt.get("xb"):
        A(f"""
        v_mov_b32 v4, {LFLAG}
        s_mov_b64 exec, 1
        ds_add_u32 v4, v7 offset:12
        s_mov_b64 exec, -1
        """)
    if SX and opt.get("cst"): A("v_writelane_b32 v230, s7, 56")
    cst_out(A, opt)
    A("s_branch P2_PUB")
    if SX:
        vP = 152
        A.label("W2M_RT")
        A("""
        s_sub_u32 s7, s7, 1
        s_cbranch_scc1 W2M_OK
        """)
        for x in fetch(): A(x)
        A("s_branch W2M_CK")


def gen_w2q(A, opt):
    sW, sLOC, sXCD = "s36", "s3", "s37"
    sMI, sNI, sH = "s40", "s41", "s58"
    sC = "s49"
    sVOFS = "s43"
    vVO = 6
    assert MAP["ac"] and opt.get("nb") == 2 and MAP["xf"] and opt.get("cst", 3) == 3 and not opt.get("rr")
    HY = opt["qf"] == 2
    if opt.get("cst"): A("s_memtime s[88:89]\nv_mov_b32 v230, 0")
    QM = opt.get("qm", 0)
    if QM:
        A(f"""
        s_lshr_b32 s4, {sXCD}, 2
        s_and_b32 s5, {sXCD}, 1
        s_lshl1_add_u32 s4, s4, s5
        s_mul_i32 s4, s4, 21
        s_add_u32 s4, s4, {sLOC}
        s_mul_i32 {sMI}, s4, 171
        s_lshr_b32 {sMI}, {sMI}, 10
        s_mul_i32 s5, {sMI}, 6
        s_sub_u32 s6, s4, s5
        s_lshr_b32 s57, s6, 1
        s_and_b32 s38, s6, 1
        """)
    else:
        A(f"""
        s_mul_i32 s4, {sLOC}, 171
        s_lshr_b32 s4, s4, 9
        s_mul_i32 s5, s4, 3
        s_sub_u32 s57, {sLOC}, s5
        s_lshr_b32 s6, {sXCD}, 2
        s_mul_i32 s6, s6, 7
        s_add_u32 {sMI}, s6, s4
        s_and_b32 s38, {sXCD}, 1
        s_mul_i32 s6, s38, 3
        s_add_u32 s6, s6, s57
        """)
    A(f"""
    s_bfe_u32 {sH}, {sXCD}, 0x10001
    s_lshl1_add_u32 {sNI}, s6, {sH}
    s_mul_i32 s42, {sMI}, 3
    """)
    if HY: A(f"s_and_b32 s4, {sW}, 3\ns_cmp_lt_u32 s4, 3")
    else: A(f"s_cmp_lt_u32 {sW}, 6")
    A("s_cbranch_scc1 W2_DEQ")
    MW = [0]

    def bar(add):
        if opt.get("cst") and MW[0] and add > 0: A(f"v_writelane_b32 v230, s80, {add - 1}")
        A("s_barrier")
        if opt.get("cst") and MW[0]:
            A("s_memtime s[80:81]")
            if add == 24: A("s_waitcnt lgkmcnt(0)\nv_writelane_b32 v230, s80, 54")

    def v_setup(n):
        A(f"""
        s_mov_b32 s14, {V_BYTES}
        v_lshrrev_b32 v2, 4, v1
        v_and_b32 v3, 15, v1
        v_lshlrev_b32 v4, 1, v2
        v_xor_b32 v3, v3, v4
        v_lshlrev_b32 v3, 4, v3
        v_mul_u32_u24 v4, 0xc00, v2
        v_add_u32 v{vVO}, v3, v4
        v_add_u32 v{vVO+1}, 11264, v{vVO}
        v_xor_b32 v3, 0x80, v{vVO}
        v_add_u32 v{vVO+2}, {2*11264}, v3
        v_add_u32 v{vVO+3}, {3*11264}, v3
        """)
        for g in range(1, n):
            for j in range(4): A(f"v_add_u32 v{vVO+4*g+j}, {g*16*3072}, v{vVO+j}")
    KS = opt.get("ks", 10)
    if HY:
        vVO = 24
        v_setup(4)
        A(f"""
        s_lshl_b32 {sVOFS}, {sNI}, 8
        s_mul_i32 s4, {sH}, {768*3072}
        s_add_u32 {sVOFS}, {sVOFS}, s4
        s_lshr_b32 {sC}, {sW}, 2
        s_lshl_b32 {sC}, {sC}, 1
        s_mul_i32 s4, {sC}, {64*3072}
        s_add_u32 {sVOFS}, {sVOFS}, s4
        s_lshl_b32 m0, {sC}, 14
        s_mov_b32 s47, 0
        s_lshl_b32 s48, {sH}, 9
        s_sub_u32 s48, {(256 + 64*3072 - 768*3072) % (1 << 32)}, s48
        s_cmp_eq_u32 {sW}, 3
        s_waitcnt lgkmcnt(0)
        s_cbranch_scc1 W2L1
        """)
        stamp(A, opt, 1)
        nsleep(A, opt.get("vd", 0))
        A.label("W2L1")
        for g in range(4):
            if g == 3: A("s_waitcnt vmcnt(58)")
            for j in range(4):
                A(f"buffer_load_dwordx4 v{vVO+4*g+j}, s[12:15], {sVOFS} offen offset:{1024*j} lds")
            A("s_add_u32 m0, m0, 4096")
            if g < 2: A("s_nop 0")
        assert KS <= 11
        A(f"""
        s_cmp_ge_u32 m0, {PV}
        s_cselect_b32 m0, 0, m0
        s_add_u32 {sVOFS}, {sVOFS}, {64*3072}
        s_add_u32 {sC}, {sC}, 1
        s_cmp_eq_u32 {sC}, 2
        s_cbranch_scc1 W2_SET
        s_cmp_lt_u32 {sC}, 4
        s_cbranch_scc1 W2L1
        s_setprio {opt.get('lpr', 3)}
        s_waitcnt vmcnt(48)
        s_barrier
        s_cmp_lt_u32 {sC}, {KS}
        s_cbranch_scc1 W2L1
        """)
        A.label("W2L")
        for g in range(2):
            for j in range(4):
                A(f"buffer_load_dwordx4 v{vVO+4*g+j}, s[12:15], {sVOFS} offen offset:{1024*j} lds")
            A(f"s_add_u32 m0, m0, {12288 if g else 4096}")
            if g == 0: A("s_nop 0")
        A(f"""
        s_cmp_ge_u32 m0, {PV}
        s_cselect_b32 m0, s47, m0
        s_cmp_eq_u32 {sC}, 11
        s_cselect_b32 s4, s48, {64*3072}
        s_add_u32 {sVOFS}, {sVOFS}, s4
        s_cmp_eq_u32 {sC}, {KS}
        s_waitcnt vmcnt(40)
        s_cbranch_scc1 W2L_S
        s_cmp_eq_u32 {sC}, {KS + 1}
        s_waitcnt vmcnt(32)
        s_cbranch_scc1 W2L_S
        s_waitcnt vmcnt(24)
        """)
        A.label("W2L_S")
        A(f"""
        s_barrier
        s_add_u32 {sC}, {sC}, 1
        s_cmp_lt_u32 {sC}, 24
        s_cbranch_scc1 W2L
        s_setprio 0
        s_waitcnt vmcnt(16)
        s_barrier
        """)
        p2_tile(A)
        A(f"""
        v_mov_b32 v4, {LFLAG}
        v_mov_b32 v3, 1
        s_waitcnt vmcnt(8)
        s_barrier
        s_waitcnt vmcnt(0)
        s_barrier
        s_buffer_load_dword s62, s[24:27], s44 glc
        s_barrier
        """)
        cst_out(A, opt)
        A("s_branch P2_MM")
    else:
        A.comment("---- V loaders")
        A(f"""
        s_mov_b32 s14, {V_BYTES}
        v_lshrrev_b32 v2, 4, v1
        v_and_b32 v3, 15, v1
        v_lshlrev_b32 v4, 1, v2
        v_xor_b32 v3, v3, v4
        v_lshlrev_b32 v3, 4, v3
        v_mul_u32_u24 v4, 0xc00, v2
        v_add_u32 v{vVO}, v3, v4
        v_add_u32 v{vVO+1}, 11264, v{vVO}
        v_xor_b32 v3, 0x80, v{vVO}
        v_add_u32 v{vVO+2}, {2*11264}, v3
        v_add_u32 v{vVO+3}, {3*11264}, v3
        v_add_u32 v{vVO+4}, {16*3072}, v{vVO}
        v_add_u32 v{vVO+5}, {16*3072}, v{vVO+1}
        v_add_u32 v{vVO+6}, {16*3072}, v{vVO+2}
        v_add_u32 v{vVO+7}, {16*3072}, v{vVO+3}
        s_lshl_b32 {sVOFS}, {sNI}, 8
        s_mul_i32 s4, {sH}, {768*3072}
        s_add_u32 {sVOFS}, {sVOFS}, s4
        s_sub_u32 s5, 7, {sW}
        s_mul_i32 s4, s5, {32*3072}
        s_add_u32 {sVOFS}, {sVOFS}, s4
        s_lshl_b32 s47, s5, 13
        s_mov_b32 m0, s47
        s_mov_b32 {sC}, 0
        s_lshl_b32 s48, {sH}, 9
        s_sub_u32 s48, {(256 + 64*3072 - 768*3072) % (1 << 32)}, s48
        s_waitcnt lgkmcnt(0)
        """)
        stamp(A, opt, 1)
        cst(A, opt, 0, 49)
        nsleep(A, opt.get("vd", 0))
        if opt.get("dq", 0) & 64: A("s_barrier\ns_barrier")
        A.label("W2L")
        for g in range(2):
            for j in range(4):
                A(f"buffer_load_dwordx4 v{vVO+4*g+j}, s[12:15], {sVOFS} offen offset:{1024*j} lds")
            A(f"s_add_u32 m0, m0, {12288 if g else 4096}")
            if g == 0: A("s_nop 0")
        A(f"""
        s_cmp_ge_u32 m0, {PV}
        s_cselect_b32 m0, s47, m0
        s_cmp_eq_u32 {sC}, 11
        s_cselect_b32 s4, s48, {64*3072}
        s_add_u32 {sVOFS}, {sVOFS}, s4
        s_add_u32 {sC}, {sC}, 1
        s_cmp_lt_u32 {sC}, 4
        s_cbranch_scc1 W2L_P
        s_setprio {opt.get('lpr', 3)}
        s_waitcnt vmcnt(24)
        s_barrier
        s_cmp_lt_u32 {sC}, 24
        s_cbranch_scc1 W2L
        s_setprio 0
        s_waitcnt vmcnt(16)
        s_barrier
        """)
        p2_tile(A)
        A(f"""
        v_mov_b32 v4, {LFLAG}
        v_mov_b32 v3, 1
        s_waitcnt vmcnt(8)
        s_barrier
        s_waitcnt vmcnt(0)
        s_barrier
        s_buffer_load_dword s62, s[24:27], s44 glc
        s_barrier
        """)
        cst_out(A, opt)
        A("s_branch P2_MM")
        A.label("W2L_P")
        nsleep(A, opt.get("vp", 0))
        A("s_branch W2L")
    A.label("W2_DEQ")
    vT, vR_, Ft, O, vQO, vTO, vAW, vQ = 24, 48, 60, 68, 76, 77, 78, 96
    A(f"s_setprio {opt.get('dpr', 3)}")
    if "dp4" in opt: A(f"s_cmp_lt_u32 {sW}, 4\ns_cbranch_scc1 W2D_P4\ns_setprio {opt['dp4']}\nW2D_P4:")
    A(f"""
    s_mov_b32 s10, {QW_BYTES}
    s_mov_b32 s18, {SC_BYTES}
    s_mov_b32 s19, 0x00020000
    s_mov_b32 s22, {SC_BYTES}
    s_mov_b32 s23, 0x00020000
    s_lshr_b32 s43, {sW}, {2 if HY else 3}
    s_sub_u32 s43, {sW}, s43
    s_mul_i32 s7, {sH}, 6
    s_add_u32 s7, s7, s43
    s_lshl_b32 s7, s7, 8
    v_lshrrev_b32 v2, 5, v1
    v_and_b32 v3, 31, v1
    v_lshlrev_b32 v4, 4, v3
    v_mul_u32_u24 v{vQO}, 0x1800, v2
    v_add_u32 v{vQO}, v{vQO}, v4
    v_lshlrev_b32 v{vTO}, 3, v3
    """)
    sQ = ["s59", "s60", "s63"]
    QR = opt.get("qr", 3)
    A(f"""
    s_and_b32 s38, s38, {1 if QR & 2 else 0}
    s_mul_i32 s52, s38, {(-8 * 12288) % (1 << 32)}
    s_add_u32 s52, s52, 12288
    s_mul_i32 s39, s38, {2 * 12288}
    s_add_u32 s39, s39, s7
    """)
    if not QR & 1: A("s_mov_b32 s57, 0")
    T2 = opt.get("t2", 1)
    for p in range(3):
        A(f"""
        s_add_u32 s{4+p}, s57, {p}
        s_cmp_ge_u32 s{4+p}, 3
        s_cselect_b32 s44, 3, 0
        s_sub_u32 s{4+p}, s{4+p}, s44
        s_add_u32 s{4+p}, s{4+p}, s42
        s_min_u32 s{4+p}, s{4+p}, 39
        s_mul_i32 {sQ[p]}, s{4+p}, {16*6144}
        s_lshr_b32 s{4+p}, s{4+p}, 1
        s_lshl1_add_u32 {sQ[p]}, s39, {sQ[p]}
        """)
        if not T2:
            A(f"""
            s_mul_i32 s{4+p}, s{4+p}, 3072
            s_add_u32 s{4+p}, s{4+p}, s7
            """)
    if T2:
        A(f"""
        s_lshr_b32 s44, s42, 1
        s_min_u32 s44, s44, 18
        s_mul_i32 s45, s44, 3072
        s_add_u32 s45, s45, s7
        v_mul_u32_u24 v4, 0xc00, v2
        v_add_u32 v{vTO}, v{vTO}, v4
        """)
    A("s_waitcnt lgkmcnt(0)")
    stamp(A, opt, 1)
    cst(A, opt, 0, 49)
    if HY and opt.get("d4"):
        A(f"s_cmp_lt_u32 {sW}, 4\ns_cbranch_scc1 W2D_D4")
        nsleep(A, opt["d4"])
        A.label("W2D_D4")
    for p in range(1 if T2 else 3):
        A(f"""
        buffer_load_dwordx2 {vr(vR_+4*p,2)}, v{vTO}, s[16:19], s{45 if T2 else 4+p} offen
        buffer_load_dwordx2 {vr(vR_+4*p+2,2)}, v{vTO}, s[20:23], s{45 if T2 else 4+p} offen
        """)
    QN = opt.get("qn", 12)
    iss = [0]

    def qload():
        n = iss[0]
        if n >= 24: return
        A(f"buffer_load_dwordx4 {vr(vQ+4*n,4)}, v{vQO}, s[8:11], {sQ[n//8]} offen")
        if n % 8 < 7: A(f"s_add_u32 {sQ[n//8]}, {sQ[n//8]}, {'s52' if n % 8 == 3 else 12288}")
        iss[0] += 1
    for n in range(QN): qload()
    if T2:
        for p in range(3):
            A(f"""
            s_cmp_lg_u32 s{4+p}, s44
            s_cselect_b64 s[{28+2*p}:{29+2*p}], -1, 0
            """)
    A(f"""
    s_sub_u32 s4, 5, s43
    s_mul_i32 s4, s4, {ASTAGE}
    s_add_u32 s4, s4, {PA}
    s_lshl_b32 s5, s57, 12
    s_add_u32 s4, s4, s5
    s_cmp_eq_u32 s57, 2
    s_cselect_b32 s39, -2, 1
    s_lshl_b32 s39, s39, 12
    s_cmp_eq_u32 s57, 1
    s_cselect_b32 s91, -2, 1
    s_lshl_b32 s91, s91, 12
    s_mul_i32 s5, s38, {128 + 2048}
    v_bfe_u32 v3, v1, 1, 4
    v_xor_b32 v4, v3, v2
    v_lshlrev_b32 v4, 4, v4
    v_lshl_add_u32 v4, v2, 8, v4
    v_and_b32 v3, 1, v1
    v_lshl_add_u32 v4, v3, 3, v4
    v_xor_b32 v4, s5, v4
    v_add_u32 v{vAW}, s4, v4
    """)
    for i in range(1, 8): A(f"v_xor_b32 v{vAW+i}, {(32 + 512) * i}, v{vAW}")
    if HY:
        A(f"s_mov_b32 s34, 0\ns_mov_b32 {sC}, 0")
        for w, dflt in ((4, "16333333"), (5, "1433323222"), (6, "143222222221")):
            d = [int(c) for c in str(opt.get(f"m{w}", dflt))[1:]]
            assert sum(d) == 24 and len(d) - 1 <= 2 * (w - 1) and all(d[1:]) and (w > 4 or len(d) - 1 <= KS - 4)
            m = sum(1 << sum(d[:i]) for i in range(1, len(d)))
            A(f"""
            s_cmp_eq_u32 {sW}, {w}
            s_cselect_b32 s34, {hex(m)}, s34
            s_cselect_b32 {sC}, {len(d) - 1}, {sC}
            """)
    vAR = 10
    vBR = 18
    vST = 22
    vACC = 24
    vF = 72
    vP = 152
    SETUP = f"""
    s_mov_b32 s46, 0xffff0000
    s_mov_b32 s47, {hex((127+QE) << 23)}
    s_mov_b32 s48, {hex(0x80000000 | ((127+QE-149) << 23))}
    v_and_b32 v2, 15, v1
    v_lshrrev_b32 v3, 4, v1
    v_xor_b32 v4, v2, v3
    v_lshlrev_b32 v4, 4, v4
    v_lshl_add_u32 v4, v2, 8, v4
    v_add_u32 v{vAR}, {PA}, v4
    v_xor_b32 v{vAR+1}, 64, v{vAR}
    v_xor_b32 v{vAR+2}, 128, v{vAR}
    v_xor_b32 v{vAR+3}, 192, v{vAR}
    v_add_u32 v{vAR+4}, {3*ASTAGE}, v{vAR}
    v_add_u32 v{vAR+5}, {3*ASTAGE}, v{vAR+1}
    v_add_u32 v{vAR+6}, {3*ASTAGE}, v{vAR+2}
    v_add_u32 v{vAR+7}, {3*ASTAGE}, v{vAR+3}
    v_bfe_u32 v2, v1, 2, 2
    v_and_b32 v4, 1, v3
    v_lshl_or_b32 v4, v4, 2, v2
    s_lshl_b32 s5, {sW}, 1
    v_xor_b32 v4, s5, v4
    v_lshlrev_b32 v4, 5, v4
    v_lshl_add_u32 v2, v3, 3, v2
    v_lshl_add_u32 v4, v2, 8, v4
    v_and_b32 v2, 3, v1
    v_lshl_add_u32 v{vBR}, v2, 3, v4
    v_xor_b32 v{vBR+1}, 32, v{vBR}
    v_add_u32 v{vBR+2}, 40960, v{vBR}
    v_add_u32 v{vBR+3}, 40960, v{vBR+1}
    s_mul_i32 s4, {sMI}, 12
    s_add_u32 s4, s4, {sNI}
    s_lshl_b32 s45, s4, 7
    s_add_u32 s45, s45, {PXF}
    s_mul_i32 s44, s4, 24576
    s_lshl_b32 s5, {sW}, 10
    s_add_u32 s44, s44, s5
    s_add_u32 s44, s44, {PXB}
    s_add_u32 s5, s5, {PP + ASTAGE}
    v_add_u32 v6, s5, v5
    s_xor_b32 {sNI}, {sNI}, 1
    s_lshl_b32 s4, {sNI}, 2
    s_add_u32 s4, s4, {sW}
    s_mul_i32 s5, s4, 40
    s_add_u32 s5, s5, s42
    s_lshl_b32 s5, s5, 10
    s_add_u32 s50, s5, {W2F}
    s_mul_i32 s51, s4, 171
    s_lshr_b32 s51, s51, 9
    s_lshl_b32 s51, s51, 7
    s_add_u32 s51, s51, {FLG}
    s_mov_b32 s53, 11
    s_mov_b32 s54, {hex((127+149-QE) << 23)}
    s_mov_b32 s55, {hex((127+149-QE) << 23)}
    s_mov_b32 s56, {hex((127+149-QE) << 7)}
    s_mov_b32 s57, {hex((127+149-QE) << 23)}
    v_bfe_u32 v3, v1, 4, 1
    v_lshrrev_b32 v4, 5, v1
    v_and_b32 v{vST}, 15, v1
    v_lshl_add_u32 v{vST}, v3, 5, v{vST}
    v_lshl_add_u32 v{vST}, v4, 4, v{vST}
    v_lshlrev_b32 v{vST}, 4, v{vST}
    v_mov_b32 v7, 1
    v_mov_b32 v8, 0
    """
    A(SETUP)
    if HY:
        A("s_bitcmp0_b32 s34, 0\ns_cbranch_scc1 W2D_B0\ns_barrier\nW2D_B0:")
    A(f"s_waitcnt vmcnt({min(QN, opt.get('q1', QN))})")
    cst(A, opt, 0, 53)
    for n in range(opt.get("q2", 0)): qload()
    if T2:
        scale8(A, Ft, vR_, vR_ + 2)
        for j in range(8): A(f"v_mov_b32 v{vR_+4+j}, v{Ft+j}")
        A("s_nop 1")
        for j in range(8): A(f"v_permlane32_swap_b32 v{Ft+j}, v{vR_+4+j}")
        A("s_nop 1")
        for p in range(3):
            for j in range(8): A(f"v_cndmask_b32 v{vT+8*p+j}, v{Ft+j}, v{vR_+4+j}, s[{28+2*p}:{29+2*p}]")
    else:
        for p in range(3): scale8(A, vT + 8 * p, vR_ + 4 * p, vR_ + 4 * p + 2)
    QW = opt.get("qw", 1)
    for n in range(24):
        p, i = divmod(n, 8)
        S = vT + 8 * p
        qq = vQ + 4 * n
        f = Ft + 4 * (n & 1)
        o = O + 2 * (n & 3)
        if HY and n: A(f"s_bitcmp0_b32 s34, {n}\ns_cbranch_scc1 W2D_B{n}\ns_barrier\nW2D_B{n}:")
        if n % QW == 0: A(f"s_waitcnt vmcnt({iss[0] - min(n + QW, 24)})")
        if not opt.get("dq", 0) & 4:
            A(f"""
            v_fma_f32 v{f}, v{qq}, v{S}, v{S+4}
            v_fma_f32 v{f+1}, v{qq+1}, v{S+1}, v{S+5}
            v_fma_f32 v{f+2}, v{qq+2}, v{S+2}, v{S+6}
            v_fma_f32 v{f+3}, v{qq+3}, v{S+3}, v{S+7}
            v_cvt_pk_bf16_f32 v{o}, v{f}, v{f+1}
            v_cvt_pk_bf16_f32 v{o+1}, v{f+2}, v{f+3}
            """)
        if not opt.get("dq", 0) & 8: A(f"ds_write_b64 v{vAW+i}, {vr(o,2)}")
        if 0 < n <= 16: A(f"v_add_u32 v{vAW+(n-1)%8}, {'s39' if n <= 8 else 's91'}, v{vAW+(n-1)%8}")
        if iss[0] == 23: cst(A, opt, 0, 50)
        qload()
    if opt.get("dq", 0) & 64:
        A("s_barrier")
        cst(A, opt, 0, 50)
        for n in range(24):
            A(f"buffer_load_dwordx4 {vr(vQ+4*n,4)}, v{vQO}, s[8:11], {sQ[n//8]} offen")
            if n % 8 < 7: A(f"s_sub_u32 {sQ[n//8]}, {sQ[n//8]}, 12288")
        A("s_waitcnt vmcnt(0)\ns_barrier")
    A(f"""
    s_setprio 0
    s_cmp_lt_u32 {sW}, 4
    s_waitcnt lgkmcnt(0)
    """)
    if opt.get("cst"):
        cst(A, opt, 0, 51)
        A(f"s_cmp_lt_u32 {sW}, 4")
    A("s_cbranch_scc1 W2_MFMA")
    G0, G1 = opt.get("g0", 9), opt.get("g1", 12)
    P0 = 15
    HF = opt.get("hf", 16)
    PF = opt.get("pf", P0 - 2)
    assert 0 < G0 < G1 < PF <= P0 and G1 <= HF
    W0 = 5 if HY else 4
    if HY:
        A(f"""
        s_barrier
        s_cmp_lg_u32 {sW}, 4
        s_cbranch_scc1 W2D_F
        s_branch W2D_J1
        """)
        A.label("W2D_J0")
        A(f"s_barrier\ns_add_u32 {sC}, {sC}, 1")
        A.label("W2D_J1")
        A(f"""
        s_cmp_lt_u32 {sC}, {KS - 4}
        s_cbranch_scc1 W2D_J0
        s_setprio {opt.get('lpr', 3)}
        """)
        v_setup(2)
        A(f"""
        s_xor_b32 {sVOFS}, {sNI}, 1
        s_lshl_b32 {sVOFS}, {sVOFS}, 8
        s_mul_i32 s4, {sH}, {768*3072}
        s_add_u32 {sVOFS}, {sVOFS}, s4
        s_add_u32 {sVOFS}, {sVOFS}, {(KS*64 + 32)*3072}
        s_movk_i32 s47, 8192
        s_mov_b32 m0, {(KS * 16384) % PV + 8192}
        s_lshl_b32 s48, {sH}, 9
        s_sub_u32 s48, {(256 + 64*3072 - 768*3072) % (1 << 32)}, s48
        s_mov_b32 {sC}, {KS}
        s_branch W2L
        """)
        A.label("W2D_F")
    gate_addr(A, "v40", 7)
    if not HY: A("s_barrier")
    A(f"""
    s_sub_u32 s38, {sW}, {W0}
    s_mul_i32 s5, {sMI}, 12
    s_add_u32 s4, {sNI}, s5
    s_lshl_b32 s45, s4, 7
    s_add_u32 s45, s45, {PXF}
    s_mul_i32 s46, s4, 24576
    s_mul_i32 s47, s38, 6144
    s_add_u32 s46, s46, s47
    s_add_u32 s46, s46, {PXB}
    s_add_u32 s47, s47, {PP + ASTAGE}
    s_mov_b32 m0, s47
    s_mov_b32 s61, 0
    v_mov_b32 v42, 1
    """)
    if HY:
        assert G1 >= 11 and 8 <= G0 <= 10
        A("s_branch W2D_K1")
        A.label("W2D_K0")
        A(f"s_barrier\ns_add_u32 {sC}, {sC}, 1")
        A.label("W2D_K1")
        A(f"""
        s_cmp_eq_u32 {sC}, {G0}
        s_cselect_b32 s4, {sW}, 0
        s_cmp_lg_u32 s4, 5
        s_cbranch_scc1 W2D_NG
        buffer_load_dword v42, v40, {DBG}, 0 offen sc1
        """)
        A.label("W2D_NG")
        A(f"""
        s_cmp_lt_u32 {sC}, 10
        s_cbranch_scc1 W2D_K0
        """)
    for h in range(11 if HY else 1, P0):
        if h == G0 + 1 and not HY:
            A(f"""
            s_cmp_lg_u32 {sW}, 4
            s_cbranch_scc1 W2D_NG
            buffer_load_dword v42, v40, {DBG}, 0 offen sc1
            """)
            A.label("W2D_NG")
        if h == G1:
            A("s_waitcnt vmcnt(0)")
            poll_check(A, "v42", 0, "W2D_GS")
            A.label("W2D_G_X")
        if h >= PF: A("s_buffer_load_dword s61, s[24:27], s45 glc")
        A("s_barrier")
    A(f"s_mov_b32 {sC}, {P0}")
    A.label("W2D_PL")
    A(f"""
    s_cmp_ge_u32 s61, 4
    s_cbranch_scc1 W2D_GOT
    s_buffer_load_dword s61, s[24:27], s45 glc
    s_barrier
    s_add_u32 {sC}, {sC}, 1
    s_cmp_lt_u32 {sC}, 24
    s_cbranch_scc1 W2D_PL
    """)
    spoll(A, "W2D_P", "s45", 4, 0, first=False)
    A.label("W2D_GOT")
    cst(A, opt, 0, 52)
    for i in range(6):
        if i == 4: A("s_add_u32 m0, m0, 4096\ns_add_u32 s46, s46, 4096")
        A(f"buffer_load_dwordx4 v5, s[24:27], s46 offen offset:{1024*(i&3)} sc1 lds")
    p2_tile(A)
    A("s_branch W2D_R1")
    A.label("W2D_R0")
    A(f"s_barrier\ns_add_u32 {sC}, {sC}, 1")
    A.label("W2D_R1")
    A(f"""
    s_cmp_lt_u32 {sC}, 24
    s_cbranch_scc1 W2D_R0
    s_buffer_load_dword s62, s[24:27], s44 glc
    s_waitcnt vmcnt(0)
    s_barrier
    """)
    cst_out(A, opt)
    A("s_branch P2_MM")
    A.label("W2D_GS")
    A(f"s_mov_b32 s7, {POLL_MAX}")
    A.label("W2D_G")
    A(f"""
    s_sub_u32 s7, s7, 1
    s_cbranch_scc1 W2D_G_X
    buffer_load_dword v42, v40, {DBG}, 0 offen sc1
    s_waitcnt vmcnt(0)
    """)
    poll_check(A, "v42", 0, "W2D_G")
    A("s_branch W2D_G_X")
    if HY:
        A.label("W2_SET")
        A(SETUP)
        A("s_waitcnt vmcnt(0)")
    A.label("W2_MFMA")
    MW[0] = 1

    def reads(g):
        fa = vF + 20 * (g & 3)
        fb = fa + 12
        st = 5 - (g // 4) % 6
        sl = g % 10
        r = []
        for b in range(3):
            r.append(f"ds_read_b128 {vr(fa+4*b,4)}, v{vAR + (g & 3) + 4 * (st // 3)} offset:{4096*b + ASTAGE*(st % 3)}")
        for t in range(2):
            for u in range(2):
                r.append(f"ds_read_b64_tr_b16 {vr(fb+4*t+2*u,2)}, v{vBR + t + 2 * (sl // 5)} offset:{8192*(sl % 5) + 1024*u}")
        return r

    def mfmas(g):
        fa = vF + 20 * (g & 3)
        fb = fa + 12
        r = []
        for b in range(3):
            for t in range(2):
                acc = vr(vACC + 24 * (g // 24) + (b * 2 + t) * 4, 4)
                r.append(f"v_mfma_f32_16x16x32_bf16 {acc}, {vr(fa+4*b,4)}, {vr(fb+4*t,4)}, {'0' if g % 24 == 0 else acc}")
        return r
    L = 1
    FR = opt.get("fr", 2)
    send = []
    for b in range(3):
        a = vACC + 8 * b
        send.append([f"v_cvt_pk_bf16_f32 v{a+j}, v{a+2*j}, v{a+2*j+1}" for j in range(4)] +
                    [f"buffer_store_dwordx4 {vr(a, 4)}, v5, s[24:27], s44 offen sc1", "s_add_u32 s44, s44, 4096"])
    PS = opt.get("ps", 3)
    for h in range(24):
        bar(h)
        rd = reads(2 * h) + reads(2 * h + 1)
        mf = []
        for g in range(2 * h - L, 2 * h + 2 - L):
            if g < 0: continue
            for k_, m in enumerate(mfmas(g)):
                mf.append((m, -1 if g < 2 * h else 7 * (g - 2 * h) + (4 if k_ == 0 else 6), g))
        seq = rd[:FR]
        ri = FR
        got = -1
        ns = 0
        for m, need, g in mf:
            while ri <= need:
                seq.append(rd[ri]); ri += 1
            if need > got:
                while ri < 14:
                    seq.append(rd[ri]); ri += 1
                seq.append(f"s_waitcnt lgkmcnt({14 - need - 1})")
                got = need
            seq.append(m)
            seq += rd[ri:ri + 2]
            ri += 2
            if g >= 24 and send and ns < PS and (m != mf[0][0] or g > 24):
                seq += send.pop(0); ns += 1
        seq += rd[ri:]
        for x in seq: A(x)
        if h == HF:
            A(f"""
            s_waitcnt vmcnt(0)
            s_mov_b64 exec, 1
            buffer_atomic_add v7, v8, s[24:27], s45 offen sc1
            s_mov_b64 exec, -1
            """)
        if h < 23: A("s_waitcnt lgkmcnt(0)")
        if (opt.get("stamp") or opt.get("probe") == 2) and h == 0: stamp(A, opt, 2, True)
    assert not send
    A("s_setprio 3")
    for g in range(48 - L, 48):
        for k_, m in enumerate(mfmas(g)):
            if k_ < 2: A(f"s_waitcnt lgkmcnt({14 - (7 * (g - 46) + (4 if k_ == 0 else 6)) - 1})")
            A(m)
    a0 = vACC + 24
    bar(24)
    for i in range(3):
        A(f"ds_read_b128 {vr(vP+4*i,4)}, v6 offset:{4096*i}")
    A("s_nop 4")
    for j in range(12):
        A(f"v_pk_mul_f32 {vr(a0+2*j,2)}, {vr(a0+2*j,2)}, s[54:55]")
    stamp(A, opt, 3, True)
    for b in range(3):
        a = a0 + 8 * b
        o = vF + 4 * b
        A(f"s_waitcnt lgkmcnt({2 - b})")
        for j in range(4):
            A(f"v_dot2c_f32_bf16 v{a+2*j}, s56, v{vP+4*b+j}")
            A(f"v_dot2c_f32_bf16 v{a+2*j+1}, s57, v{vP+4*b+j}")
        A(f"""
        s_nop 2
        v_cvt_pk_bf16_f32 v{o}, v{a}, v{a+1}
        v_cvt_pk_bf16_f32 v{o+1}, v{a+2}, v{a+3}
        v_cvt_pk_bf16_f32 v{o+2}, v{a+4}, v{a+5}
        v_cvt_pk_bf16_f32 v{o+3}, v{a+6}, v{a+7}
        s_nop 1
        v_permlane32_swap_b32 v{o}, v{o+2}
        v_permlane32_swap_b32 v{o+1}, v{o+3}
        buffer_store_dwordx4 {vr(o,4)}, v{vST}, s[24:27], s50 offen offset:{1024*b} sc1
        """)
        if b == 0:
            A(f"""
            s_cmp_eq_u32 {sMI}, 13
            s_cbranch_scc1 W2M_END
            """)
    A.label("W2M_END")
    if opt.get("xb"):
        A(f"""
        v_mov_b32 v4, {LFLAG}
        s_mov_b64 exec, 1
        ds_add_u32 v4, v7 offset:12
        s_mov_b64 exec, -1
        """)
    cst_out(A, opt)
    A("s_branch P2_PUB")


def scale8(A, u, s, z):
    A(f"""
    v_lshlrev_b32 v{u}, 16, v{s}
    v_and_b32 v{u+1}, s46, v{s}
    v_lshlrev_b32 v{u+2}, 16, v{s+1}
    v_and_b32 v{u+3}, s46, v{s+1}
    v_lshlrev_b32 v{u+4}, 16, v{z}
    v_and_b32 v{u+5}, s46, v{z}
    v_lshlrev_b32 v{u+6}, 16, v{z+1}
    v_and_b32 v{u+7}, s46, v{z+1}
    """)
    for i in range(4): A(f"v_mul_f32 v{u+4+i}, s48, v{u+4+i}")
    for i in range(4): A(f"v_mul_f32 v{u+4+i}, v{u+i}, v{u+4+i}")
    for i in range(4): A(f"v_mul_f32 v{u+i}, s47, v{u+i}")


def wt_setup(A, opt, tag):
    TC = opt.get("wtc", 2)
    if opt.get("wm", 0):
        assert all((u * 171) >> 10 == u // 6 for u in range(384))
        A(f"""
        s_sub_u32 s4, s3, 21
        s_lshr_b32 s5, s37, 2
        s_and_b32 s6, s37, 3
        s_cmp_ge_u32 s4, 6
        s_cbranch_scc1 WT_Q{tag}
        s_lshl_b32 s4, s4, 6
        v_add_u32 v3, s4, v1
        v_mul_u32_u24 v7, 171, v3
        v_lshrrev_b32 v7, 10, v7
        v_mul_u32_u24 v7, {3072 - 768}, v7
        v_lshl_add_u32 v7, v3, 7, v7
        s_mul_i32 s46, s5, {64*3072}
        s_mul_i32 s6, s6, 768
        s_add_u32 s46, s46, s6
        s_add_u32 s46, s46, {TC*393216}
        s_mov_b32 s47, 393216
        s_mov_b32 s8, s12
        s_mov_b32 s9, s13
        s_mov_b32 s10, {V_BYTES}
        s_branch WT_G{tag}
        """)
        A.label(f"WT_Q{tag}")
        A(f"""
        v_lshrrev_b32 v7, 2, v1
        v_mul_u32_u24 v7, 0x1800, v7
        v_and_b32 v3, 3, v1
        v_lshl_add_u32 v7, v3, 7, v7
        s_mul_i32 s5, s37, 5
        s_add_u32 s4, s4, s5
        s_sub_u32 s4, s4, 6
        s_mul_i32 s46, s4, {16*6144}
        s_add_u32 s46, s46, {TC*512}
        s_movk_i32 s47, 512
        s_mov_b32 s10, {QW_BYTES}
        """)
        A.label(f"WT_G{tag}")
        return
    A(f"""
    s_sub_u32 s4, s2, 168
    s_cmp_ge_u32 s4, 48
    s_cbranch_scc1 WT_Q{tag}
    v_lshlrev_b32 v7, 7, v1
    s_lshl_b32 s46, s4, 13
    s_add_u32 s46, s46, {TC*393216}
    s_mov_b32 s47, 393216
    s_mov_b32 s8, s12
    s_mov_b32 s9, s13
    s_mov_b32 s10, {V_BYTES}
    s_branch WT_G{tag}
    """)
    A.label(f"WT_Q{tag}")
    A(f"""
    v_lshrrev_b32 v7, 2, v1
    v_mul_u32_u24 v7, 0x1800, v7
    v_and_b32 v3, 3, v1
    v_lshl_add_u32 v7, v3, 7, v7
    s_sub_u32 s4, s4, 48
    s_mul_i32 s46, s4, {16*6144}
    s_add_u32 s46, s46, {TC*512}
    s_movk_i32 s47, 512
    s_mov_b32 s10, {QW_BYTES}
    """)
    A.label(f"WT_G{tag}")


def wt(A, opt, i, tag):
    SH = opt.get("sh", 0)
    late = SH and i + opt.get("wtc", 2) >= SH
    if late:
        A(f"""
        s_cmpk_eq_u32 s47, 512
        s_cbranch_scc1 WT_S{tag}{i}
        """)
    A(f"""
    buffer_load_dword v{16+i}, v7, s[8:11], s46 offen
    s_add_u32 s46, s46, s47
    """)
    if late: A.label(f"WT_S{tag}{i}")


def tb_addr(A, tag, ju, nu):
    A(f"""
    s_lshr_b32 s5, s37, 2
    s_and_b32 s6, s37, 3
    s_cmp_ge_u32 s4, 6
    s_cbranch_scc1 TB_Q{tag}
    s_lshl_b32 s4, s4, 6
    """)
    for e in range(nu):
        A(f"""
        v_add_u32 v3, s4, v1
        v_add_u32 v3, {64*e}, v3
        v_mul_u32_u24 v{40+e}, 171, v3
        v_lshrrev_b32 v{40+e}, 10, v{40+e}
        v_mul_u32_u24 v{40+e}, {3072 - 768}, v{40+e}
        v_lshl_add_u32 v{40+e}, v3, 7, v{40+e}
        """)
    A(f"""
    s_mul_i32 s46, s5, {64*3072}
    s_mul_i32 s6, s6, 768
    s_add_u32 s46, s46, s6
    s_mov_b32 s47, 393216
    s_mov_b32 s8, s12
    s_mov_b32 s9, s13
    s_mov_b32 s10, {V_BYTES}
    s_branch TB_G{tag}
    """)
    A.label(f"TB_Q{tag}")
    A(f"""
    v_lshrrev_b32 v40, 2, v1
    v_mul_u32_u24 v40, 0x1800, v40
    v_and_b32 v3, 3, v1
    v_lshl_add_u32 v40, v3, 7, v40
    """)
    for e in range(1, nu):
        A(f"v_add_u32 v{40+e}, {e*16*6144}, v40")
    A(f"""
    s_mul_i32 s5, s37, 5
    s_add_u32 s4, s4, s5
    s_sub_u32 s4, s4, 6
    s_mul_i32 s46, s4, {16*6144}
    s_movk_i32 s47, 512
    s_mov_b32 s10, {QW_BYTES}
    """)
    A.label(f"TB_G{tag}")


def tb_burst(A, nu, nc, k0):
    for c in range(nc):
        for e in range(nu):
            A(f"buffer_load_dword v{k0 + c*nu + e}, v{40+e}, s[8:11], s46 offen")
        A("s_add_u32 s46, s46, s47")


def tp_tables(opt):
    b2, b3, b4 = opt.get("b2", 5), opt.get("b3", 9), opt.get("b4", 10)
    i1, i2, i3 = opt.get("i1", 3), opt.get("i2", 6), opt.get("i3", 3)
    ts = opt.get("ts", 1)
    xr = [[(0, 3 + j % 5, 1 + j // 5)] for j in range(10)]
    idl = [[] for _ in range(8)]
    for e in range(3):
        idl[1 + e].append((opt.get("i0", 0), e, 1))
        idl[4 + e].append((i1, e, 2))
    if ts == 1:
        for e in range(3):
            xr[e].append((b3, e, 4)); xr[5 + e].append((b2, e, 3)); xr[(3, 4, 8)[e]].append((b4, e, 5))
    elif ts == 2:
        for e in range(3):
            idl[1 + e].append((i2, e, 3))
            xr[e].append((b3, e, 4)); xr[5 + e].append((b4, e, 5))
    elif ts == 3:
        for e in range(3):
            idl[1 + e].append((i2, e, 3)); idl[4 + e].append((i3, e, 4))
            xr[e].append((b4, e, 5))
    elif ts == 4:
        for e in range(3):
            idl[1 + e].append((i2, e, 3)); idl[4 + e].append((i3, e, 4))
            idl[1 + e].append((opt.get("i4", 3), e, 5))
    elif ts == 6:
        xr = [[] for _ in range(10)]
        for e in range(3):
            xr[e].append((b3, e, 4)); xr[5 + e].append((b2, e, 3)); xr[(3, 4, 8)[e]].append((b4, e, 5))
    elif ts == 5:
        for e in range(3):
            xr[5 + e].append((b2, e, 3))
            idl[1 + e].append((i2, e, 4)); idl[4 + e].append((i3, e, 5))

    def pack(l):
        w = 0
        for i, (n, p_, cp) in enumerate(l):
            assert n < 16
            w |= (n | (p_ | cp << 3) << 4) << (10 * i)
        return w
    return [pack(l) | ((1 << 31) if j >= 5 else 0) for j, l in enumerate(xr)], [pack(l) for l in idl]


def tp_select(A, sidx, tab):
    A(f"s_mov_b32 s48, {hex(tab[0])}")
    for i in range(1, len(tab)):
        A(f"""
        s_cmp_eq_u32 {sidx}, {i}
        s_cselect_b32 s48, {hex(tab[i])}, s48
        """)


def tp_run(A, opt):
    A.label("TP")
    A(f"""
    s_mov_b32 s14, {V_BYTES}
    s_mov_b32 s10, {QW_BYTES}
    s_bfe_u32 s58, s37, 0x10001
    s_lshr_b32 s5, s37, 2
    s_and_b32 s6, s37, 1
    s_mul_i32 s46, s5, {64*3072}
    s_mul_i32 s4, s58, {768*3072 + 256}
    s_add_u32 s46, s46, s4
    s_mul_i32 s4, s6, 1536
    s_add_u32 s46, s46, s4
    s_lshl1_add_u32 s47, s5, s6
    s_mul_i32 s47, s47, {10*16*6144}
    s_mul_i32 s4, s58, 3072
    s_add_u32 s47, s47, s4
    s_sub_u32 s47, s47, {6*16*6144}
    s_mov_b32 s59, s49
    v_lshrrev_b32 v40, 2, v1
    v_mul_u32_u24 v40, 0x1800, v40
    v_and_b32 v3, 3, v1
    v_lshl_add_u32 v40, v3, 7, v40
    v_add_u32 v41, {16*6144}, v40
    v_and_b32 v3, 1, v1
    v_lshlrev_b32 v3, 7, v3
    v_lshrrev_b32 v4, 1, v1
    v_lshl_add_u32 v44, v4, 9, v3
    v_add_u32 v45, 0x4000, v44
    s_bitcmp0_b32 s48, 31
    s_cbranch_scc1 TP_L
    s_bitset0_b32 s48, 31
    """)
    nsleep(A, opt.get("ts1", 40))
    A.label("TP_L")
    A(f"""
    s_and_b32 s4, s48, 15
    s_sub_u32 s49, s49, s4
    s_branch TP_W1
    """)
    A.label("TP_W0")
    A(f"""
    s_cmp_eq_u32 s59, 0
    s_cbranch_scc1 TP_S
    s_barrier
    s_branch TP_W1
    """)
    A.label("TP_S")
    A(f"s_sleep {opt.get('isu', 16)}")
    A.label("TP_W1")
    A(f"""
    s_sub_u32 s4, s4, 1
    s_cbranch_scc0 TP_W0
    s_bfe_u32 s5, s48, 0x30004
    s_bfe_u32 s6, s48, 0x30007
    s_lshr_b32 s48, s48, 10
    s_cmp_eq_u32 s6, 0
    s_cbranch_scc1 TP_X
    s_cmp_ge_u32 s5, 3
    s_cbranch_scc1 TP_Q
    s_lshl_b32 s4, s5, 7
    v_add_u32 v3, s4, v1
    v_add_u32 v4, 64, v3
    v_mul_u32_u24 v3, 171, v3
    v_mul_u32_u24 v4, 171, v4
    v_lshrrev_b32 v3, 10, v3
    v_lshrrev_b32 v4, 10, v4
    v_mul_u32_u24 v3, 1536, v3
    v_mul_u32_u24 v4, 1536, v4
    v_add_u32 v42, v44, v3
    v_add_u32 v43, v45, v4
    s_lshl_b32 s4, s5, 15
    s_add_u32 s4, s4, s46
    s_cmp_ge_u32 s6, 3
    s_cselect_b32 s5, 256, 0
    s_cselect_b32 s7, 3, 0
    s_xor_b32 s4, s4, s5
    s_sub_u32 s6, s6, s7
    s_mul_i32 s6, s6, {2*393216}
    s_add_u32 s4, s4, s6
    s_add_u32 s5, s4, 393216
    buffer_load_dword v16, v42, s[12:15], s4 offen
    buffer_load_dword v17, v43, s[12:15], s4 offen
    buffer_load_dword v18, v42, s[12:15], s5 offen
    buffer_load_dword v19, v43, s[12:15], s5 offen
    s_branch TP_L
    """)
    A.label("TP_Q")
    A(f"""
    s_mul_i32 s4, s5, {2*16*6144}
    s_add_u32 s4, s4, s47
    s_lshl_b32 s6, s6, 10
    s_add_u32 s4, s4, s6
    buffer_load_dword v16, v40, s[8:11], s4 offen
    buffer_load_dword v17, v41, s[8:11], s4 offen
    buffer_load_dword v18, v40, s[8:11], s4 offen offset:512
    buffer_load_dword v19, v41, s[8:11], s4 offen offset:512
    s_branch TP_L
    """)
    A.label("TP_X")
    A(f"""
    s_cmp_eq_u32 s59, 0
    s_cbranch_scc1 IDLE_G_X
    s_branch TP_E1
    """)
    A.label("TP_E0")
    A("s_barrier")
    A.label("TP_E1")
    A(f"""
    s_sub_u32 s49, s49, 1
    s_cbranch_scc0 TP_E0
    """)


def nsleep(A, n):
    while n > 0:
        A(f"s_sleep {min(n, 127)}"); n -= 127


def gen_prod(A, opt):
    SH = opt["sh"]
    NU = 40 * (12 - SH)
    assert all((u * 205) >> 13 == u // 40 for u in range(320))
    A.label("PROD")
    A(f"""
    s_cmp_lt_u32 s59, {NU}
    s_cselect_b32 s61, 1, 0
    s_cselect_b32 s59, s59, s58
    s_mov_b32 s10, {QW_BYTES}
    s_mov_b32 s18, {SC_BYTES}
    s_mov_b32 s19, 0x00020000
    s_mov_b32 s22, {SC_BYTES}
    s_mov_b32 s23, 0x00020000
    v_lshrrev_b32 v6, 5, v1
    v_and_b32 v7, 31, v1
    v_mul_u32_u24 v6, 0x1800, v6
    v_lshl_add_u32 v6, v7, 4, v6
    v_lshlrev_b32 v7, 3, v7
    """)

    def issue(k):
        u = f"s{58+k}"
        st, fl = f"s{50+2*k}", f"s{51+2*k}"
        A(f"""
        s_mul_i32 s4, {u}, 205
        s_lshr_b32 s4, s4, 13
        s_mul_i32 s5, s4, 40
        s_sub_u32 s5, {u}, s5
        s_add_u32 s4, s4, {SH}
        s_lshr_b32 s6, s5, 1
        s_mul_i32 s6, s6, 3072
        s_lshl_b32 s7, s4, 8
        s_add_u32 s6, s6, s7
        s_mul_i32 s42, s5, {16*6144}
        s_lshl_b32 s7, s4, 9
        s_add_u32 s42, s42, s7
        buffer_load_dwordx2 {vr(8+4*k,2)}, v7, s[16:19], s6 offen
        buffer_load_dwordx2 {vr(10+4*k,2)}, v7, s[20:23], s6 offen
        """)
        for i in range(8):
            A(f"buffer_load_dwordx4 {vr(16+32*k+4*i,4)}, v6, s[8:11], s42 offen")
            if i < 7: A("s_add_u32 s42, s42, 12288")
        A(f"""
        s_mul_i32 {st}, s5, 12
        s_add_u32 {st}, {st}, s4
        s_lshl_b32 {st}, {st}, 12
        s_add_u32 {st}, {st}, {SA}
        s_mul_i32 s6, s5, 171
        s_lshr_b32 s6, s6, 9
        s_mul_i32 s7, s6, 3
        s_sub_u32 s7, s5, s7
        s_mul_i32 {fl}, s6, 3072
        s_lshl_b32 s7, s7, 6
        s_add_u32 {fl}, {fl}, s7
        s_lshl_b32 s7, s4, 2
        s_add_u32 {fl}, {fl}, s7
        s_add_u32 {fl}, {fl}, {SFLG}
        """)

    def bars(n, tag):
        if not n: return
        A(f"""
        s_cmp_eq_u32 s60, 0
        s_cbranch_scc1 PROD_B{tag}
        """)
        for _ in range(n): A("s_barrier")
        A.label(f"PROD_B{tag}")

    def compute(k, younger):
        A(f"s_waitcnt vmcnt({younger + 8})")
        scale8(A, 80, 8 + 4 * k, 10 + 4 * k)
        for i in range(8):
            q = 16 + 32 * k + 4 * i
            o = 96 + 16 * k + 2 * i
            A(f"s_waitcnt vmcnt({younger + 7 - i + i // 2})")
            for j in range(4):
                A(f"v_fma_f32 v{88+j}, v{q+j}, v{80+j}, v{84+j}")
            A(f"""
            v_cvt_pk_bf16_f32 v{o}, v88, v89
            v_cvt_pk_bf16_f32 v{o+1}, v90, v91
            """)
            if i & 1:
                A(f"buffer_store_dwordx4 {vr(o-2,4)}, v5, s[24:27], s{50+2*k} offen offset:{1024*(i//2)} sc1")

    issue(0)
    A("""
    s_cmp_lg_u32 s60, 0
    s_cbranch_scc1 PROD_1
    s_waitcnt vmcnt(10)
    """)
    gate_set(A, opt)
    A.label("PROD_1")
    issue(1)
    A(f"""
    s_mov_b32 s46, 0xffff0000
    s_mov_b32 s47, {hex((127+QE) << 23)}
    s_mov_b32 s48, {hex(0x80000000 | ((127+QE-149) << 23))}
    v_lshlrev_b32 v3, 8, v1
    v_mov_b32 v4, 1
    """)
    PB0, PB1 = opt.get("pb0", 0), opt.get("pb1", 2)
    bars(PB0, "0")
    compute(0, 10)
    A("""
    s_cmp_eq_u32 s61, 0
    s_cbranch_scc1 PROD_2
    """)
    compute(1, 4)
    A.label("PROD_2")
    stamp(A, opt, 4)
    bars(PB1, "1")
    poll(A, "PROD_G", DBG, "0", "v2", "v8", 0)
    A(f"""
    s_mov_b64 exec, 0xfff
    buffer_store_dword v4, v3, s[24:27], s51 offen sc1
    buffer_store_dword v4, v3, s[24:27], s53 offen sc1
    s_mov_b64 exec, -1
    """)
    stamp(A, opt, 2)
    A("""
    s_cmp_eq_u32 s60, 0
    s_cbranch_scc1 IDLE_T
    """)
    for _ in range(10 - PB0 - PB1): A("s_barrier")
    A("s_branch P2_MMX")


def gate_set(A, opt):
    A(f"""
    s_barrier
    s_cmp_lg_u32 s36, 0
    s_cbranch_scc1 IDLE_G1
    s_lshl_b32 s4, s37, 2
    v_mov_b32 v3, 0
    v_mov_b32 v4, 1
    s_mov_b64 exec, 1
    buffer_store_dword v4, v3, {DBG}, s4 offen sc1
    s_mov_b64 exec, -1
    """)
    A.label("IDLE_G1")


def gen_xr(A, opt):
    sW, sLOC, sXCD = "s36", "s3", "s37"
    sMT, sNT = "s40", "s41"
    sC = "s48"
    SH = opt.get("sh", 0)
    XU = opt.get("xu", 0)
    XNB = 10 + (4 - XU) * 10 // opt.get("xus", 5) if XU else 10
    A(f"""
    s_sub_u32 s4, {sLOC}, 21
    s_cmp_ge_u32 s4, 5
    s_cselect_b32 s5, 1, 0
    s_cselect_b32 s6, 5, 0
    s_sub_u32 {sNT}, s4, s6
    s_lshl_b32 s7, {sXCD}, 1
    s_add_u32 {sMT}, s7, s5
    s_cmp_ge_u32 {sLOC}, 31
    s_cbranch_scc1 IDLE_WG
    s_cmp_lt_u32 {sW}, 4
    s_cbranch_scc1 XR_MFMA
    s_cmp_lt_u32 {sW}, 6
    s_cbranch_scc1 XR_LD
    """)
    if opt.get("tpr"): A(f"s_setprio {opt['tpr']}")
    gate_addr(A, "v2")
    if SH:
        A(f"""
        s_sub_u32 s58, s2, 168
        s_add_u32 s59, s58, 80
        s_mov_b32 s60, 1
        s_cmp_eq_u32 {sW}, 6
        s_waitcnt lgkmcnt(0)
        s_cbranch_scc1 PROD
        """)
    A(f"""
    v_lshlrev_b32 v6, 7, v1
    s_mul_i32 s4, {sMT}, 5
    s_add_u32 s4, s4, {sNT}
    s_lshl_b32 s5, s4, 15
    s_lshl_b32 s6, s4, 14
    s_mov_b32 s30, {X_BYTES}
    s_mov_b32 s31, 0x00020000
    s_mov_b32 s34, {U_BYTES}
    s_mov_b32 s35, 0x00020000
    s_waitcnt lgkmcnt(0)
    """)
    if opt.get("tx", 1) == 2:
        A(f"""
        s_cmp_lg_u32 {sW}, 6
        s_cbranch_scc1 XR_TX
        """)
        nsleep(A, opt.get("txd", 0))
        for i in range(4):
            A(f"buffer_load_dword v{8+i}, v6, s[28:31], s5 offen")
            if i < 3: A("s_add_u32 s5, s5, 8192")
        for i in range(2):
            A(f"buffer_load_dword v{12+i}, v6, s[32:35], s6 offen")
            if i < 1: A("s_add_u32 s6, s6, 8192")
        A.label("XR_TX")
    elif opt.get("tx", 1):
        if not SH:
            A(f"""
            s_cmp_lg_u32 {sW}, 6
            s_cbranch_scc1 XR_TU
            """)
        for i in range(4):
            A(f"buffer_load_dword v{8+i}, v6, s[28:31], s5 offen")
            if i < 3: A("s_add_u32 s5, s5, 8192")
        if not SH:
            A("s_branch XR_TX")
            A.label("XR_TU")
        for i in range(2):
            A(f"buffer_load_dword v{12+i}, v6, s[32:35], s6 offen")
            if i < 1: A("s_add_u32 s6, s6, 8192")
        A.label("XR_TX")
    WT = opt.get("wt", 2)
    NT_ = opt.get("nch", 12) - opt.get("wtc", 2)
    if not SH:
        A(f"""
        s_cmp_lg_u32 {sW}, 7
        s_cbranch_scc1 XR_W6
        """)
    TB = opt.get("tb", 0)
    TP = opt.get("ts", 0)
    if TP:
        A("s_sub_u32 s4, s3, 21")
        tp_select(A, "s4", tp_tables(opt)[0])
        A(f"s_mov_b32 s49, {XNB}")
        tp_run(A, opt)
    elif TB:
        A(f"""
        s_sub_u32 s4, s3, 21
        s_and_b32 s48, s4, 1
        s_and_b32 s4, s4, 14
        """)
        tb_addr(A, "x", 0, 2)
        A(f"""
        s_lshl_b32 s4, s48, 1
        s_add_u32 s4, s4, {opt.get("wtc", 2)}
        s_mul_i32 s4, s4, s47
        s_add_u32 s46, s46, s4
        s_cmp_eq_u32 s48, 0
        s_cbranch_scc1 TB_X0
        """)
        nsleep(A, opt.get("ts1", 40))
        A.label("TB_X0")
        nsleep(A, opt.get("ts0", 0))
        tb_burst(A, 2, 2, 16)
        A(f"""
        s_add_u32 s46, s46, s47
        s_add_u32 s46, s46, s47
        s_cmp_eq_u32 s48, 0
        s_cselect_b32 s48, {opt.get("tb2", 1)}, {opt.get("tb3", 3)}
        s_sub_u32 s49, {XNB}, s48
        """)
        A.label("TB_X1")
        A(f"""
        s_barrier
        s_sub_u32 s48, s48, 1
        s_cmp_lg_u32 s48, 0
        s_cbranch_scc1 TB_X1
        """)
        if opt.get("nch", 12) <= 8:
            A("""
            s_bitcmp0_b32 s3, 0
            s_cbranch_scc1 TB_X2
            """)
        tb_burst(A, 2, 2, 20)
        A.label("TB_X2")
        A(f"""
        s_barrier
        s_sub_u32 s49, s49, 1
        s_cmp_lg_u32 s49, 0
        s_cbranch_scc1 TB_X2
        """)
    else:
        wt_setup(A, opt, "x")
        k = 0
        for b in range(XNB):
            for _ in range(WT if b == 0 else opt.get("wtn", 2)):
                if k < NT_:
                    wt(A, opt, k, "x"); k += 1
            A("s_barrier")
    A("s_branch P2_MMX")
    if not SH:
        A.label("XR_W6")
        if opt.get("xg"):
            XGC = opt.get("xgc", 10 if MAP["xf"] else XNB)
            assert XGC <= 10 or not MAP["xf"]
            for i in range(opt["xg"]): A("s_barrier")
            A(f"buffer_load_dword v3, v2, {DBG}, 0 offen sc1")
            for i in range(XGC - opt["xg"]): A("s_barrier")
            A(f"s_mov_b32 s7, {POLL_MAX}\ns_waitcnt vmcnt(0)\ns_branch XR_G_C")
            poll(A, "XR_G", DBG, "0", "v2", "v3", 0)
            if opt.get("rr"):
                rr_share(A, "v3", 6)
                A("s_waitcnt lgkmcnt(0)")
            for i in range(XNB - XGC): A("s_barrier")
        else:
            for i in range(5): A("s_barrier")
            poll(A, "XR_G", DBG, "0", "v2", "v3", 0)
            for i in range(XNB - 5): A("s_barrier")
        A("s_branch P2_MMX")
    A.label("IDLE_WG")
    gate_addr(A, "v2")
    if TP:
        assert PXF + 168 * 128 <= FLG + 8 * 12288
        tp_select(A, sW, tp_tables(opt)[1])
        if opt.get("rr"): A("s_memrealtime s[50:51]")
        A(f"""
        s_mov_b32 s49, 0
        s_cmp_lg_u32 {sW}, 0
        s_waitcnt lgkmcnt(0)
        s_cbranch_scc1 TP
        s_setprio 3
        v_mov_b32 v6, 0
        v_mov_b32 v7, 0
        v_mov_b32 v8, 0
        v_mov_b32 v9, 0
        s_mul_i32 s4, {sXCD}, 12288
        s_add_u32 s4, s4, {FLG}
        """)
        for i in range(12):
            A(f"buffer_store_dwordx4 v[6:9], v5, s[24:27], s4 offen offset:{1024*(i&3)} sc1")
            if i & 3 == 3 and i < 11: A("s_add_u32 s4, s4, 4096")
        A(f"""
        s_lshl_b32 s4, s37, 2
        v_mov_b32 v4, 1
        """)
        if opt.get("rr"):
            A(f"""
            s_lshr_b32 s5, s50, 2
            s_lshr_b32 s6, s50, 6
            s_xor_b32 s5, s5, s6
            s_and_b32 s5, s5, {(1 << opt["rr"]) - 1}
            s_mul_i32 s5, s5, 12
            s_add_u32 s5, s5, 36
            v_mov_b32 v4, s5
            """)
        A(f"""
        s_waitcnt vmcnt(0)
        s_mov_b64 exec, 1
        buffer_store_dword v4, v6, {DBG}, s4 offen sc1
        s_mov_b64 exec, -1
        s_setprio 0
        """)
        stamp(A, opt, 4)
        nsleep(A, opt.get("igs", 0))
        if opt.get("rr"):
            poll(A, "IDLE_H", DBG, "0", "v2", "v3", 0, sleep=8)
            rr_share(A, "v3", 6)
            A("s_waitcnt lgkmcnt(0)")
            A.label("IDLE_G_X")
            A("s_barrier")
            rr_ask(A, 6)
            A("s_waitcnt lgkmcnt(0)\nv_readfirstlane_b32 s63, v6")
        else:
            poll(A, "IDLE_G", DBG, "0", "v2", "v3", 0, sleep=8)
            A("s_barrier")
        A(f"""
        s_mov_b32 s60, 0
        s_cmp_lt_u32 {sW}, 4
        s_cbranch_scc1 P2_LD
        s_branch P2_MMI
        """)
        if XU: gen_xu(A, opt)
        else: gen_xr_rest(A, opt)
        return
    A(f"""
    v_mov_b32 v6, 0
    v_mov_b32 v7, 0
    v_mov_b32 v8, 0
    v_mov_b32 v9, 0
    s_lshl_b32 s58, {sXCD}, 3
    s_add_u32 s58, s58, {sW}
    s_mul_i32 s4, s58, 3072
    s_add_u32 s4, s4, {FLG}
    s_waitcnt lgkmcnt(0)
    """)
    for i in range(3):
        A(f"buffer_store_dwordx4 v[6:9], v5, s[24:27], s4 offen offset:{1024*i} sc1")
    if SH:
        A(f"""
        s_add_u32 s59, s58, 224
        s_add_u32 s58, s58, 160
        s_min_u32 s58, s58, {40 * (12 - SH) - 1}
        s_mov_b32 s60, 0
        """)
        gen_prod(A, opt)
    else:
        A("s_waitcnt vmcnt(0)")
        gate_set(A, opt)
    A.label("IDLE_T")
    if opt.get("fw"):
        A(f"""
        s_cmp_ge_u32 {sW}, 6
        s_cbranch_scc1 IDLE_F2
        s_mul_i32 s4, {sXCD}, 6
        s_add_u32 s4, s4, {sW}
        s_mul_i32 s4, s4, 40960
        s_add_u32 s4, s4, {W2F}
        s_mov_b32 s5, 10
        v_mov_b32 v6, -1
        v_mov_b32 v7, -1
        v_mov_b32 v8, -1
        v_mov_b32 v9, -1
        """)
        nsleep(A, opt.get("fd", 0))
        A.label("IDLE_F1")
        for i in range(4):
            A(f"buffer_store_dwordx4 v[6:9], v5, s[24:27], s4 offen offset:{1024*i} sc1")
        nsleep(A, opt.get("fp", 0))
        A(f"""
        s_add_u32 s4, s4, 4096
        s_sub_u32 s5, s5, 1
        s_cmp_lg_u32 s5, 0
        s_cbranch_scc1 IDLE_F1
        """)
        stamp(A, opt, 3)
        A.label("IDLE_F2")
    if TB:
        A(f"""
        s_sub_u32 s4, {sW}, 2
        s_cmp_ge_u32 s4, 5
        s_cbranch_scc1 IDLE_T7
        s_lshl_b32 s4, s4, 1
        """)
        tb_addr(A, "i", 0, 2)
        A(f"""
        s_mul_i32 s4, s47, {8 + opt.get("wtc", 2)}
        s_add_u32 s46, s46, s4
        """)
        nsleep(A, opt.get("ts4", 100))
        if opt.get("nch", 12) > 10: tb_burst(A, 2, 4 - opt.get("wtc", 2), 16)
        A("s_branch IDLE_NT")
        A.label("IDLE_T7")
    A(f"""
    s_cmp_lg_u32 {sW}, 7
    s_cbranch_scc1 IDLE_NT
    """)
    wt_setup(A, opt, "i")
    for k in range(SH - opt.get("wtc", 2) if SH else NT_):
        wt(A, opt, k, "i")
        if k >= WT - 1 and k < NT_ - 1 and not SH: A(f"s_sleep {opt.get('isl', 12)}")
    A.label("IDLE_NT")
    if not SH:
        A(f"""
        s_cmp_lg_u32 {sW}, 0
        s_cbranch_scc1 IDLE_G_X
        """)
        poll(A, "IDLE_G", DBG, "0", "v2", "v3", 0, sleep=8)
    if opt.get("fw"): A("s_waitcnt vmcnt(0)")
    A("s_barrier")
    if opt.get("fw"):
        A(f"""
        s_cmp_lg_u32 {sW}, 1
        s_cbranch_scc1 IDLE_H
        s_lshl_b32 s4, {sXCD}, 2
        v_mov_b32 v3, 32
        v_mov_b32 v4, 1
        s_mov_b64 exec, 1
        buffer_store_dword v4, v3, {DBG}, s4 offen sc1
        s_mov_b64 exec, -1
        """)
        stamp(A, opt, 4)
        A.label("IDLE_H")
    A(f"""
    s_mov_b32 s60, 0
    s_cmp_lt_u32 {sW}, 4
    s_cbranch_scc1 P2_LD
    s_branch P2_MMI
    """)
    if XU: gen_xu(A, opt)
    else: gen_xr_rest(A, opt)


def gen_xr_rest(A, opt):
    sW, sLOC, sXCD = "s36", "s3", "s37"
    sMT, sNT = "s40", "s41"
    sC = "s48"
    A.label("XR_LD")
    if opt.get("cst"): A("s_memtime s[88:89]")
    sOFS, sGRP, sCH = "s43", "s45", "s46"
    vO = 6
    A(f"""
    v_lshrrev_b32 v3, 4, v1
    s_cmp_eq_u32 {sW}, 4
    s_cbranch_scc0 XRL_U
    v_lshrrev_b32 v2, 3, v1
    v_and_b32 v4, 7, v1
    v_xor_b32 v4, v4, v3
    v_lshlrev_b32 v4, 4, v4
    v_mul_u32_u24 v{vO}, 0x500, v2
    v_add_u32 v{vO}, v{vO}, v4
    v_xor_b32 v4, 64, v{vO}
    v_add_u32 v{vO+1}, 9216, v4
    v_add_u32 v{vO+2}, {2*9216}, v{vO}
    v_add_u32 v{vO+3}, {3*9216}, v4
    s_mul_i32 {sOFS}, {sMT}, {128*1280}
    s_mov_b32 {sGRP}, {32*1280}
    s_mov_b32 {sCH}, {128 - 128*1280 + (1<<32)}
    s_movk_i32 s47, 128
    s_mov_b32 m0, 0
    s_mov_b32 s30, {X_BYTES}
    s_waitcnt lgkmcnt(0)
    s_branch XRL_GO
    """)
    A.label("XRL_U")
    A(f"""
    v_and_b32 v4, 15, v1
    v_lshlrev_b32 v2, 2, v3
    v_xor_b32 v4, v4, v2
    v_lshlrev_b32 v4, 4, v4
    v_mul_u32_u24 v{vO}, 0x500, v3
    v_add_u32 v{vO}, v{vO}, v4
    v_add_u32 v{vO+1}, {4*1280-1024}, v{vO}
    v_add_u32 v{vO+2}, {2*(4*1280-1024)}, v{vO}
    v_add_u32 v{vO+3}, {3*(4*1280-1024)}, v{vO}
    s_lshl_b32 {sOFS}, {sNT}, 8
    s_mov_b32 {sGRP}, {16*1280}
    s_mov_b32 {sCH}, 0
    s_mov_b32 s47, {64*1280}
    s_movk_i32 m0, 16384
    s_mov_b32 s30, {U_BYTES}
    s_waitcnt lgkmcnt(0)
    s_mov_b32 s28, s32
    s_mov_b32 s29, s33
    """)
    A.label("XRL_GO")
    A(f"""
    s_mov_b32 s31, 0x00020000
    s_mov_b32 {sC}, 0
    """)
    XRO = opt.get("xra", 0) or opt.get("xrb", 0)
    if XRO:
        A(f"""
        s_mul_i32 s49, {sNT}, {opt.get("xra", 0)}
        s_and_b32 s4, {sMT}, 1
        s_mul_i32 s4, s4, {opt.get("xrb", 0)}
        s_add_u32 s49, s49, s4
        s_mul_i32 s4, {sXCD}, {opt.get("xrc", 0)}
        s_add_u32 s49, s49, s4
        s_mul_i32 s4, s49, 205
        s_lshr_b32 s4, s4, 11
        s_mul_i32 s4, s4, 10
        s_sub_u32 s49, s49, s4
        s_mul_i32 s4, s49, s47
        s_add_u32 {sOFS}, {sOFS}, s4
        s_mul_i32 s47, s47, 10
        s_sub_u32 s49, 10, s49
        """)
    nsleep(A, opt.get("xd", 0))
    A.label("XRL_LOOP")
    for g in range(4):
        for j in range(4):
            A(f"buffer_load_dwordx4 v{vO+j}, s[28:31], {sOFS} offen offset:{1024*j} lds")
        A(f"""
        s_add_u32 m0, m0, 4096
        s_add_u32 {sOFS}, {sOFS}, {sGRP}
        """)
    A(f"""
    s_add_u32 {sOFS}, {sOFS}, {sCH}
    s_add_u32 m0, m0, 16384
    s_and_b32 m0, m0, {4*XSTAGE-1}
    s_add_u32 {sC}, {sC}, 1
    """)
    if XRO:
        A(f"""
        s_cmp_eq_u32 {sC}, s49
        s_cselect_b32 s4, s47, 0
        s_sub_u32 {sOFS}, {sOFS}, s4
        """)
    XT = opt.get("xt", 0)
    A(f"""
    s_and_b32 s4, {sC}, {15 if XT else 13}
    s_cmp_eq_u32 s4, 1
    s_cbranch_scc1 XRL_LOOP
    """)
    cst(A, opt, sC, 32)
    if XT:
        A("s_waitcnt vmcnt(16)")
    else:
        A(f"""
        s_cmp_eq_u32 {sC}, 2
        s_cbranch_scc0 XRL_W
        s_waitcnt vmcnt(16)
        """)
        A.label("XRL_W")
        A("s_waitcnt vmcnt(32)")
    cst(A, opt, sC, 16)
    A("s_barrier")
    cst(A, opt, sC, 0)
    A(f"""
    s_cmp_lt_u32 {sC}, 10
    s_cbranch_scc1 XRL_LOOP
    """)
    if not XT:
        A("s_waitcnt vmcnt(16)")
        cst(A, opt, 0, 27)
        A("s_barrier")
        cst(A, opt, 0, 11)
    A("s_waitcnt vmcnt(0)")
    cst(A, opt, 0, 28)
    A("s_barrier")
    cst(A, opt, 0, 12)
    cst_out(A, opt)
    A("s_branch P2_MMX")
    A.label("XR_MFMA")
    sCST = "s43"
    vXR = 6
    vUR = 10
    vT = 12
    vACC = 20
    vF = 84
    A(f"""
    s_lshr_b32 s4, {sW}, 1
    s_and_b32 s5, {sW}, 1
    s_lshl_b32 s6, s4, 13
    v_and_b32 v3, 31, v1
    v_bfe_u32 v4, v1, 1, 3
    v_lshrrev_b32 v{vT}, 5, v1
    v_xor_b32 v4, v4, v{vT}
    v_lshlrev_b32 v4, 4, v4
    v_lshl_add_u32 v4, v3, 7, v4
    v_add_u32 v{vXR}, s6, v4
    v_xor_b32 v{vXR+1}, 32, v{vXR}
    v_xor_b32 v{vXR+2}, 64, v{vXR}
    v_xor_b32 v{vXR+3}, 96, v{vXR}
    v_bfe_u32 v2, v1, 4, 1
    v_bfe_u32 v3, v1, 2, 2
    s_lshl_b32 s6, s5, 1
    v_xor_b32 v4, s6, v3
    v_lshlrev_b32 v4, 6, v4
    v_lshl_add_u32 v4, v3, 8, v4
    v_lshl_add_u32 v4, v{vT}, 11, v4
    v_lshl_add_u32 v4, v2, 5, v4
    v_and_b32 v3, 3, v1
    v_lshl_add_u32 v4, v3, 3, v4
    v_add_u32 v{vUR}, 16384, v4
    v_xor_b32 v{vUR+1}, 64, v{vUR}
    s_mov_b32 {sCST}, 0
    s_mov_b32 {sC}, 0
    s_lshl_b32 s6, {sMT}, 1
    s_add_u32 s6, s6, s4
    s_lshl_b32 s7, {sNT}, 1
    s_add_u32 s7, s7, s5
    s_mul_i32 s51, s4, 10
    s_add_u32 s51, s51, s7
    s_lshl_b32 s51, s51, {7 if MAP["lf"] else 2}
    s_mul_i32 s52, {sMT}, {20*128 if MAP["lf"] else 2048}
    s_add_u32 s51, s51, s52
    s_add_u32 s51, s51, {FLG + 672*128 if MAP["lf"] else XFLG}
    s_mov_b32 s53, 7
    s_mul_i32 s6, s6, 80
    s_lshl_b32 s7, s7, 2
    s_add_u32 s6, s6, s7
    s_lshl_b32 s50, s6, 10
    s_add_u32 s52, s50, 40960
    """)
    if MAP["ac"]:
        A(f"""
        s_lshl_b32 s51, {sMT}, 11
        s_add_u32 s51, s51, {FLG + 32768}
        """)
    for i in range(0, 64, 2):
        A(f"v_mov_b64 {vr(vACC+i,2)}, 0")
    for i in range(0, 64, 2):
        A(f"v_mov_b64 {vr(vF+64+i,2)}, 0")
    A("s_waitcnt lgkmcnt(0)")

    def reads(s, buf):
        f = vF + 64 * buf + 16 * s
        r = []
        for tn in range(2):
            r.append(f"ds_read_b128 {vr(f+8+4*tn,4)}, v{vT+s} offset:{4096*tn}")
            for u in range(2):
                r.append(f"ds_read_b64_tr_b16 {vr(f+4*tn+2*u,2)}, v{vT+4+tn} offset:{s*4096+u*1024}")
        return r

    def mfmas(s, buf):
        f = vF + 64 * buf + 16 * s
        r = []
        for tm in range(2):
            for tn in range(2):
                acc = vACC + 32 * tm + 16 * tn
                r.append(f"v_mfma_f32_32x32x16_bf16 {vr(acc,16)}, {vr(f+4*tn,4)}, {vr(f+8+4*tm,4)}, {vr(acc,16)}")
        return r

    A.label("XR_LOOP")
    for buf in range(2):
        for i in range(4):
            A(f"v_add_u32 v{vT+i}, {sCST}, v{vXR+i}")
        for i in range(2):
            A(f"v_add_u32 v{vT+4+i}, {sCST}, v{vUR+i}")
        A(f"""
        s_add_u32 {sCST}, {sCST}, {XSTAGE}
        s_and_b32 {sCST}, {sCST}, {4*XSTAGE-1}
        s_barrier
        """)
        rd = sum((reads(s_, buf) for s_ in range(4)), [])
        mf = sum((mfmas(s_, buf ^ 1) for s_ in range(4)), [])
        ri = 0
        for m in mf:
            A(m)
            for x in rd[ri:ri + 2]: A(x)
            ri += 2
        for x in rd[ri:]: A(x)
        A("s_waitcnt lgkmcnt(0)")
    A(f"""
    s_add_u32 {sC}, {sC}, 2
    s_cmp_lt_u32 {sC}, 10
    s_cbranch_scc1 XR_LOOP
    s_barrier
    """)
    for s_ in range(4):
        for m in mfmas(s_, 1): A(m)
    A("s_nop 15")
    stamp(A, opt, 3)
    for tm in range(2):
        for i in range(4):
            a = vACC + 32 * tm + 8 * i
            o = vF + 16 * tm + 4 * i
            for j in range(4):
                A(f"v_cvt_pk_bf16_f32 v{o+j}, v{a+2*j}, v{a+2*j+1}")
            A(f"buffer_store_dwordx4 {vr(o,4)}, v5, s[24:27], s{50+2*tm} offen offset:{1024*i} sc1")


def gen_xu(A, opt):
    sW, sLOC, sXCD = "s36", "s3", "s37"
    sMT, sNT = "s40", "s41"
    sC = "s48"
    NB = opt["xu"]
    UPS = opt.get("xus", 5)
    S2 = (4 - NB) * 10 // UPS
    NST = 10 + S2
    SS = 4096 * max(NB + 4, UPS)
    NS = opt.get("xns", LDS1 // SS)
    DP = opt.get("xdp", 2)
    assert NS * SS <= LDS1 and 2 <= DP <= NS - 2 and 10 % UPS == 0
    UO = 4096 * NB
    sOFS = "s43"
    vO = 6
    A.label("XR_LD")
    if opt.get("cst"): A("s_memtime s[88:89]")
    A(f"""
    v_lshrrev_b32 v3, 4, v1
    s_mov_b32 s31, 0x00020000
    s_mov_b32 {sC}, 0
    s_cmp_eq_u32 {sW}, 4
    s_cbranch_scc0 XRL_U
    v_lshrrev_b32 v2, 3, v1
    v_and_b32 v4, 7, v1
    v_xor_b32 v4, v4, v3
    v_lshlrev_b32 v4, 4, v4
    v_mul_u32_u24 v{vO}, 0x500, v2
    v_add_u32 v{vO}, v{vO}, v4
    v_xor_b32 v4, 64, v{vO}
    v_add_u32 v{vO+1}, 9216, v4
    v_add_u32 v{vO+2}, {2*9216}, v{vO}
    v_add_u32 v{vO+3}, {3*9216}, v4
    s_mul_i32 {sOFS}, {sMT}, {128*1280}
    s_mov_b32 m0, 0
    s_mov_b32 s30, {X_BYTES}
    s_waitcnt lgkmcnt(0)
    """)

    def grp():
        for j in range(4):
            A(f"buffer_load_dwordx4 v{vO+j}, s[28:31], {sOFS} offen offset:{1024*j} lds")

    def wrap(used, base):
        A(f"""
        s_add_u32 m0, m0, {SS - used + 4096}
        s_cmp_ge_u32 m0, {NS*SS}
        s_cselect_b32 m0, {base}, m0
        """)

    def sync(n, tag):
        cst(A, opt, sC, 32)
        A(f"s_waitcnt vmcnt({n})")
        cst(A, opt, sC, 16)
        A("s_barrier")
        cst(A, opt, sC, 0)
    cnt = lambda j: 4 * NB if j < 10 else 4 * UPS if j < NST else 0
    A.label("XRL_XL")
    for g in range(NB):
        grp()
        if g < NB - 1:
            A(f"""
            s_add_u32 m0, m0, 4096
            s_add_u32 {sOFS}, {sOFS}, {32*1280}
            """)
    A(f"s_add_u32 {sOFS}, {sOFS}, {(128 - (NB-1)*32*1280) % (1 << 32)}")
    wrap(4096 * NB, 0)
    A(f"""
    s_add_u32 {sC}, {sC}, 1
    s_cmp_lt_u32 {sC}, {DP}
    s_cbranch_scc1 XRL_XL
    """)
    sync(4 * NB * (DP - 1), "x")
    A(f"""
    s_cmp_lt_u32 {sC}, 10
    s_cbranch_scc1 XRL_XL
    s_add_u32 {sOFS}, {sOFS}, {NB*32*1280 - 1280}
    """)
    for j in range(10, NST + DP - 1):
        if j < NST:
            for u in range(UPS):
                if sum(cnt(i) for i in range(j - DP + 1, j)) + 4 * u + 4 > 63: A("s_waitcnt vmcnt(59)")
                grp()
                last = ((j - 10) * UPS + u) % 10 == 9
                A(f"s_add_u32 {sOFS}, {sOFS}, {32*1280 - 1280 + 128 if last else 128}")
                if u < UPS - 1: A("s_add_u32 m0, m0, 4096\ns_nop 0")
            wrap(4096 * UPS, 0)
        if opt.get("cst"): A(f"s_add_u32 {sC}, {sC}, 1")
        sync(min(63, sum(cnt(i) for i in range(j - DP + 2, j + 1))), "x2")
    cst_out(A, opt)
    A("s_branch P2_MMX")
    A.label("XRL_U")
    A(f"""
    v_and_b32 v4, 15, v1
    v_lshlrev_b32 v2, 2, v3
    v_xor_b32 v4, v4, v2
    v_lshlrev_b32 v4, 4, v4
    v_mul_u32_u24 v{vO}, 0x500, v3
    v_add_u32 v{vO}, v{vO}, v4
    v_add_u32 v{vO+1}, {4*1280-1024}, v{vO}
    v_add_u32 v{vO+2}, {2*(4*1280-1024)}, v{vO}
    v_add_u32 v{vO+3}, {3*(4*1280-1024)}, v{vO}
    s_lshl_b32 {sOFS}, {sNT}, 8
    s_mov_b32 m0, {UO}
    s_mov_b32 s30, {U_BYTES}
    s_waitcnt lgkmcnt(0)
    s_mov_b32 s28, s32
    s_mov_b32 s29, s33
    """)
    A.label("XRL_UL")
    for g in range(4):
        if 16 * (DP - 1) + 4 * g + 4 > 63: A("s_waitcnt vmcnt(59)")
        grp()
        A(f"s_add_u32 {sOFS}, {sOFS}, {16*1280}")
        if g < 3: A("s_add_u32 m0, m0, 4096\ns_nop 0")
    wrap(16384, UO)
    A(f"""
    s_add_u32 {sC}, {sC}, 1
    s_cmp_lt_u32 {sC}, {DP}
    s_cbranch_scc1 XRL_UL
    """)
    assert 16 * (DP - 1) <= 63
    sync(16 * (DP - 1), "u")
    A(f"""
    s_cmp_lt_u32 {sC}, 10
    s_cbranch_scc1 XRL_UL
    """)
    for j in range(10, NST + DP - 1):
        if opt.get("cst"): A(f"s_add_u32 {sC}, {sC}, 1")
        if j - DP + 1 < 10: sync(16 * (9 - (j - DP + 1)), "u2")
        else: A("s_barrier")
    cst_out(A, opt)
    A("s_branch P2_MMX")

    A.pad("XRM_END", opt.get("ax", 0))
    A.label("XR_MFMA")
    vXR = 6
    vUR = 10
    vACC = 16
    vF = 64
    NF = 8
    vU = 96
    A(f"""
    v_and_b32 v3, 31, v1
    v_bfe_u32 v4, v1, 1, 3
    v_lshrrev_b32 v11, 5, v1
    v_xor_b32 v4, v4, v11
    v_lshlrev_b32 v4, 4, v4
    v_lshl_add_u32 v{vXR}, v3, 7, v4
    v_xor_b32 v{vXR+1}, 32, v{vXR}
    v_xor_b32 v{vXR+2}, 64, v{vXR}
    v_xor_b32 v{vXR+3}, 96, v{vXR}
    v_bfe_u32 v2, v1, 4, 1
    v_bfe_u32 v3, v1, 2, 2
    v_xor_b32 v4, {sW}, v3
    v_lshlrev_b32 v4, 6, v4
    v_lshl_add_u32 v4, v3, 8, v4
    v_lshl_add_u32 v4, v11, 11, v4
    v_lshl_add_u32 v4, v2, 5, v4
    v_and_b32 v3, 3, v1
    v_lshl_add_u32 v{vUR}, v3, 3, v4
    s_mul_i32 s6, {sMT}, 160
    s_lshl_b32 s7, {sNT}, 3
    s_add_u32 s6, s6, s7
    s_lshl_b32 s7, {sW}, 1
    s_add_u32 s6, s6, s7
    s_lshl_b32 s50, s6, 10
    s_mov_b32 s53, 7
    s_lshl_b32 s51, {sMT}, 11
    s_add_u32 s51, s51, {FLG + 32768}
    s_waitcnt vmcnt(0) lgkmcnt(0)
    """)
    assert MAP["ac"]
    rd, ops = [], []
    RR = opt.get("rr", 0)
    if RR: A(f"v_mov_b32 v12, {LFLAG}")
    for c in range(10):
        for s_ in range(4):
            k = 4 * c + s_
            if RR and c == opt.get("xgc", 10) and s_ == 1:
                rd.append(("r", c, "ds_read_b32 v12, v12 offset:16", 0))
                RRI = len(rd) - 1
            for u in range(2):
                rd.append(("u", c, f"ds_read_b64_tr_b16 {vr(vU+4*k+2*u,2)}, v{vUR}", UO + s_ * 4096 + u * 1024))
            for rb in range(NB):
                rd.append(("x", c, f"v{vXR+s_}", 4096 * rb))
                ops.append((rb, k, len(rd) - 1))
    for rb in range(NB, 4):
        for c in range(10):
            j, u = divmod((rb - NB) * 10 + c, UPS)
            for s_ in range(4):
                rd.append(("x", 10 + j, f"v{vXR+s_}", 4096 * u))
                ops.append((rb, 4 * c + s_, len(rd) - 1))
    xno = {}
    for i, r in enumerate(rd):
        if r[0] == "x": xno[i] = len(xno)
    RA = opt.get("xra2", 7)
    assert RA < NF
    st = {"ri": 0, "step": -1, "base": 0}

    def issue():
        kind, step, txt, off = rd[st["ri"]]
        if step != st["step"]:
            A("s_barrier")
            st["step"] = step
            a = (step % NS) * SS
            if a < st["base"] or a + SS - st["base"] > 65536:
                d = (a - st["base"]) % (1 << 32)
                for v in range(vXR, vUR + (1 if step < 10 else 0)): A(f"v_add_u32 v{v}, {hex(d)}, v{v}")
                st["base"] = a
        o = (step % NS) * SS - st["base"] + off
        if kind == "r": A(txt)
        elif kind == "u": A(f"{txt} offset:{o}")
        else: A(f"ds_read_b128 {vr(vF + 4 * (xno[st['ri']] % NF), 4)}, {txt} offset:{o}")
        st["ri"] += 1

    def may(i):
        r = st["ri"]
        if r >= len(rd): return False
        nx = r
        while rd[nx][0] != "x": nx += 1
        return xno[nx] < i + RA and r - ops[min(i, len(ops) - 1)][2] < 15

    def epi(rb):
        a = vACC + 16 * (rb % 3)
        r = []
        for h in range(2):
            b = a + 8 * h
            r.append([f"v_cvt_pk_bf16_f32 v{b+j}, v{b+2*j}, v{b+2*j+1}" for j in range(4)])
            r.append([f"buffer_store_dwordx4 {vr(b,4)}, v5, s[24:27], s50 offen offset:{1024*h} sc1"] + (["s_add_u32 s50, s50, 40960"] if h else []))
        return r
    last = {rb: max(i for i, o in enumerate(ops) if o[0] == rb) for rb in range(4)}
    pending = []
    got = -1
    XF = MAP["xf"]
    vm = []

    def tell(g, rbs):
        n = len(vm) - 1 - max(j for j, x in enumerate(vm) if x in rbs)
        assert all(vm.count(x) == 2 for x in rbs)
        A(f"""
        s_waitcnt vmcnt({n})
        s_mov_b64 exec, 0xffff
        buffer_atomic_add v2, v3, s[24:27], s51 offen offset:{g * XF} sc1
        s_mov_b64 exec, -1
        """)
        vm.append(-1)
    if XF:
        assert NB == 2 and opt.get("xg")
        A("""
        v_mov_b32 v2, 1
        v_lshlrev_b32 v3, 7, v1
        """)
        XFA, XFB = 80 + opt.get("xfa", 36), 80 + opt.get("xfb", 80)
    for i, (rb, k, need) in enumerate(ops):
        if XF and i == XFA:
            assert st["step"] >= 10
            tell(0, (0, 1))
        if XF and i == XFB: tell(1, (2,))
        while may(i) and (st["ri"] <= need or i == 0): issue()
        assert st["ri"] > need
        if rb == 3 and k == 0 and NB == 3:
            A("s_nop 7")
            for x in sum(epi(0), []): A(x)
        if need > got:
            A(f"s_waitcnt lgkmcnt({st['ri'] - need - 1})")
            if RR and got < RRI <= need: A("v_readfirstlane_b32 s63, v12\ns_add_u32 s50, s50, s63")
            got = need
        acc = vr(vACC + 16 * (rb % 3), 16)
        A(f"v_mfma_f32_32x32x16_bf16 {acc}, {vr(vU+4*k,4)}, {vr(vF + 4 * (xno[need] % NF), 4)}, {'0' if k == 0 else acc}")
        n = 0
        while may(i + 1) and n < 3:
            issue(); n += 1
        for t in range(3):
            if i == last[t] + 2 + (NB - 1 - t if t < NB else 0) and not (NB == 3 and t == 0):
                pending += epi(t)
        if pending:
            for x in pending.pop(0):
                A(x)
                if x.startswith("buffer_store"): vm.append(len(vm) - vm.count(-1) >> 1)
    assert not pending
    A("s_nop 15")
    stamp(A, opt, 3)
    for x in sum(epi(3), []): A(x)
    vm += [3, 3]
    A("s_barrier")
    if XF:
        if XFB >= len(ops): tell(1, (2,))
        tell(2, (3,))
        stamp(A, opt, 4)
        A("s_branch P2_LD")
        A.label("XRM_END")


VX = 96


def xload(A, opt, kb):
    if opt.get("m16"):
        A(f"buffer_load_dwordx4 {vr(VX+4*kb,4)}, v3, s[24:27], s20 offen offset:{2048 * (kb >> 1 & 1) + 256 * (kb & 1)} sc1")
    else:
        A(f"buffer_load_dwordx4 {vr(VX+4*kb,4)}, v5, s[24:27], s20 offen offset:{1024 * (kb & 3)} sc1")
    if kb & 3 == 3 and kb < 39:
        A("s_add_u32 s20, s20, 4096")


def p2_rot(A, opt):
    lm = MAP["m"]
    A(f"""
    s_and_b32 s17, s3, {(1 << lm) - 1}
    s_mul_i32 s17, s17, 0
    s_lshr_b32 s16, s3, {lm}
    s_mul_i32 s16, s16, 0
    s_add_u32 s17, s17, s16
    s_mul_i32 s16, s17, 205
    s_lshr_b32 s16, s16, 11
    s_mul_i32 s16, s16, 10
    s_sub_u32 s17, s17, s16
    s_lshl_b32 s17, s17, 12
    """)


def gen_p2(A, opt):
    NA = opt.get("na", 2)
    OLD = opt.get("old", 0)
    order = [(n, kb) for kb in range(40) for n in range(NA)] + [(n, kb) for n in range(NA, 3) for kb in range(40)]
    groups = []
    for n, kb in order:
        if (n, kb // 4) not in groups: groups.append((n, kb // 4))
    CH = {1: [2, 2, 4, 4, 4, 4, 10], 2: [2, 2, 2, 2, 4, 4, 4, 5, 5], 3: [2, 4, 6, 8, 10], 4: [3, 3, 6, 6, 6, 6],
          5: [1, 1, 2, 2, 4, 10, 10]}[opt.get("ch", 1)]
    assert sum(CH) == 30
    XL = opt.get("xl", 0)
    if XL:
        assert XL in (4, 8, 12, 16) and NA == 2 and opt.get("m16") == 2 and opt.get("px") and not MAP["ef"] and not opt.get("rr") and not OLD
        assert opt.get("ch", 1) == 1 and "xs" not in opt
        xg = [("x", j) for j in range(XL)]
        v = opt.get("xlc", 1)
        if v == 1:
            groups = groups[:16] + xg + groups[16:]
            CH = [2, 2, 4, 4, XL, 8, 10]
        elif v == 2:
            groups = groups[:16] + xg + groups[16:]
            CH = [2, 2, 4, 4, 4, 4 + XL, 10]
        elif v == 3:
            groups = groups[:12] + xg[:XL-4] + groups[12:16] + xg[XL-4:] + groups[16:]
            CH = [2, 2, 4, XL, 8, 4, 10]
        elif v == 4:
            groups = groups[:16] + xg[:XL-4] + groups[16:18] + xg[XL-4:] + groups[18:]
            CH = [2, 2, 4, 4, 4, XL - 2, 6, 10]
        elif v in (5, 6):
            assert XL == 8
            groups = groups[:12] + xg[:2] + groups[12:16] + xg[2:4] + groups[16:18] + xg[4:] + groups[18:]
            CH = [2, 2, 4, 6, 6, 4, 4] + ([5, 5] if v == 5 else [10])
        elif v == 7:
            groups = groups[:16] + xg[:XL-4] + groups[16:18] + xg[XL-4:] + groups[18:]
            CH = [2, 2, 4, 4, 4, XL - 2, 6, 5, 5]
        elif v == 8:
            assert XL == 8
            groups = groups[:16] + xg[:4] + groups[16:18] + xg[4:] + groups[18:]
            CH = [2, 2, 4, 4, 6, 6, 4, 4, 6]
        elif v == 9:
            g0, q0 = groups, 10 - XL // 4
            groups = g0[:2*q0]
            for q in range(q0, 10): groups += xg[4*(q-q0):4*(q-q0)+4] + g0[2*q:2*q+2]
            groups += g0[20:]
            CH = {12: [2, 2, 4, 4, 2, 6, 6, 6, 5, 5], 16: [2, 2, 4, 4, 6, 6, 6, 6, 5, 5]}[XL]
        if opt.get("xch"): CH = [int(c) for c in str(opt["xch"])]
        assert sum(CH) == 30 + XL and groups.index(xg[0]) >= sum(CH[:opt.get("ah", 3)])
    st = [sum(CH[:i]) for i in range(len(CH) + 1)]
    XAD = opt.get("xad", 0)
    assert XL or not XAD
    XW = max(XL, 8) * 1024
    XB0 = 155648 - 4 * XW
    chunk = lambda g: max(c for c in range(len(CH)) if st[c] <= groups.index(g))
    cum = [st[min(len(CH), opt.get("ah", 3) + c)] for c in range(len(CH) + 1)]
    if opt.get("xis"):
        assert XL and not XAD
        d = [int(c) for c in str(opt["xis"])]
        cum = [sum(d[:c + 1]) for c in range(len(CH) + 1)]
        assert cum[-1] == len(groups) and all(cum[c] >= st[c + 1] for c in range(len(CH))) and groups.index(("x", 0)) >= cum[0]
    behind = lambda g: min(c for c in range(len(cum)) if cum[c] > groups.index(g)) - 1
    place = {}
    free = [(n, q) for q in range(10) for n in range(2)]
    for n, q in groups:
        if n == "x": continue
        place[(n, q)] = (n * 40 + q * 4) * 1024
        if XL and place[(n, q)] + 4096 > XB0:
            old = free.pop(0)
            assert behind((n, q)) >= chunk(old) + 2 and opt.get("ra", 6) <= 8
            place[(n, q)] = place[old]
    A.label("P2_PUB")
    publish(A, opt, "s51", "s53")
    A.label("P2_LD")
    p2_tile(A)
    if XL:
        A(f"""
        s_lshl2_add_u32 s19, s38, s36
        s_mul_i32 s19, s19, 40960
        s_mul_i32 s18, s36, {XW}
        v_lshlrev_b32 v6, 4, v1
        """)
    if OLD: p2_rot(A, opt)
    A(f"""
    s_mul_i32 s22, s39, 122880
    s_add_u32 s22, s22, {W2F}
    s_lshl_b32 s21, s36, 10
    s_add_u32 s22, s22, s21
    """)
    if opt.get("rr"): A("s_add_u32 s22, s22, s63")
    if OLD: A("""
    s_add_u32 s20, s22, s17
    s_add_u32 s19, s22, 40960
    """)
    M16 = opt.get("m16", 0)
    if M16:
        A("""
        v_bfe_u32 v2, v1, 2, 2
        v_bfe_u32 v3, v1, 4, 1
        v_and_b32 v5, 0x23, v1
        v_lshl_add_u32 v5, v2, 3, v5
        v_lshl_add_u32 v5, v3, 2, v5
        v_lshlrev_b32 v5, 4, v5
        """)
    A(f"""
    v_lshlrev_b32 v2, {7 if MAP["lf"] else 2}, v1
    v_mov_b32 v4, {LFLAG}
    """)
    if opt.get("wpa"):
        A("s_mul_i32 s4, s36, %d" % opt.get("wst", 3))
        A.label("P2_WD")
        A("""
        s_sleep 1
        s_sub_u32 s4, s4, 1
        s_cbranch_scc0 P2_WD
        """)
        spoll(A, "P2_WA", "s45", 42, opt.get("wsl", 0))
        A("s_branch P2_GO")
    A("""
    s_cmp_lg_u32 s36, 0
    s_cbranch_scc1 P2_LW0
    """)
    if OLD: A("""
    s_sub_u32 s4, s44, s45
    s_sub_u32 s4, s4, 168
    """)
    EF = MAP["ef"]
    if MAP["ac"]:
        pass
    elif EF:
        A("""
        v_min_u32 v2, s43, v1
        v_lshlrev_b32 v2, 7, v2
        """)
    else:
        A("v_cmp_gt_u32 vcc, 42, v1")
        if OLD: A("v_add_u32 v3, s4, v2")
        A("""
        v_mov_b32 v3, 0
        v_cndmask_b32 v2, v3, v2, vcc
        """)
    if opt.get("wpp"):
        A("s_mov_b32 s61, 0")
        npoll(A, "P2_W", "s45", 42, opt["wpp"], "s61")
    elif MAP["ac"]:
        spoll(A, "P2_W", "s45", 42, opt.get("wsl", 0))
    elif EF:
        poll(A, "P2_W", "s[24:27]", "s45", "v2", "v3", 0, sleep=opt.get("wsl", 16),
             st=(lambda: stamp(A, opt, 1)) if opt.get("pst") else None)
    elif opt.get("pp"):
        for i in range(opt["pp"]): A(f"v_mov_b32 v{8+i}, 0")
        ppoll(A, "P2_W", "s[24:27]", "s45", "v2", 8, opt["pp"], DC_W, opt.get("wsl", 4))
    else:
        poll(A, "P2_W", "s[24:27]", "s45", "v2", "v3", DC_W, sleep=opt.get("wsl", 16),
             st=(lambda: stamp(A, opt, 1)) if opt.get("pst") else None)

    def lds_wait(name, ofs, vd, va):
        A(f"s_branch {name}")
        A.label(name + "_S")
        A(f"s_sleep {opt.get('lsl', 1)}")
        A.label(name)
        A(f"""
        ds_read_b32 {vd}, {va} offset:{ofs}
        s_waitcnt lgkmcnt(0)
        """)
        poll_check(A, vd, 0, name + "_S")
    A(f"""
    v_mov_b32 v3, 1
    ds_write_b32 v4, v3 offset:4
    s_branch P2_GO
    """)
    A.label("P2_LW0")
    lds_wait("P2_LW", 4, "v3", "v4")
    A.label("P2_GO")
    stamp(A, opt, 5)
    AH = opt.get("ah", 3)

    def issue(c, gs=None):
        for n, q in groups[st[c]:st[c + 1]] if gs is None else gs:
            if n == "x" and XAD:
                if q & 3: continue
                assert all(chunk(("x", q + j)) == c for j in range(4)) and c - AH >= 1
                A(f"""
                s_add_u32 s5, s19, {XRF + (40 - XL + q) * 1024}
                s_add_u32 m0, s18, {XB0 + q * 1024}
                s_cmp_gt_u32 s17, {q // 4}
                s_cbranch_scc1 P2_XD{q}
                """)
                for j in range(4): A(f"buffer_load_dwordx4 v6, s[24:27], s5 offen offset:{1024*j} sc1 lds")
                A.label(f"P2_XR{q}")
                continue
            if n == "x":
                A(f"""
                s_add_u32 s5, s19, {XRF + (40 - XL + q) * 1024}
                s_add_u32 m0, s18, {XB0 + q * 1024}
                s_nop 0
                buffer_load_dwordx4 v6, s[24:27], s5 offen sc1 lds
                """)
                continue
            off = (n * 40 + q * 4) * 1024
            A(f"""
            s_add_u32 s5, s22, {off}
            s_add_u32 m0, s21, {place[(n, q)]}
            s_nop 0
            buffer_load_dwordx4 v5, s[24:27], s5 offen sc1 lds
            """)

    issue(0, groups[:cum[0]])
    if EF:
        A(f"""
        v_add_u32 v6, s21, v5
        v_add_u32 v7, 61440, v6
        s_mov_b32 s7, {POLL_MAX}
        """)
    for c in range(len(CH)):
        A(f"s_waitcnt vmcnt({cum[c] - st[c+1]})")
        if EF:
            A.label(f"P2_V{c}")
            g = groups[st[c]:st[c + 1]]
            for i, (n, q) in enumerate(g):
                off = (n * 40 + q * 4) * 1024
                base, o = ("v6", off) if off < 61440 else ("v7", off - 61440)
                A(f"ds_read_b128 {vr(8+4*i,4)}, {base} offset:{o}")
            for i in range(len(g)):
                A(f"s_waitcnt lgkmcnt({len(g)-1-i})")
                r = 8 + 4 * i
                if i == 0:
                    A(f"v_max_u32 v3, v{r}, v{r+1}")
                else:
                    A(f"v_max3_u32 v3, v3, v{r}, v{r+1}")
                A(f"v_max3_u32 v3, v3, v{r+2}, v{r+3}")
            A(f"""
            v_cmp_eq_u32 vcc, -1, v3
            s_cbranch_vccnz P2_R{c}
            """)
            A.label(f"P2_K{c}")
        A("s_barrier")
        if XAD and c == 0:
            A(f"""
            s_lshl2_add_u32 s4, s36, {LFLAG + 16}
            v_mov_b32 v7, s4
            ds_read_b32 v7, v7
            """)
        issue(AH + c, groups[cum[c]:cum[c + 1]])
        if XAD and c == 0:
            A("""
            s_waitcnt lgkmcnt(0)
            v_readfirstlane_b32 s17, v7
            """)
    stamp(A, opt, 6)
    if EF and opt.get("stamp"):
        A(f"""
        s_sub_u32 s7, {POLL_MAX}, s7
        s_cmp_eq_u32 s7, 0
        s_cbranch_scc1 K_EXIT
        v_mov_b32 v3, s7
        v_mov_b32 v2, 192
        s_mov_b64 exec, 1
        buffer_atomic_add v3, v2, {DBG}, 0 offen sc1
        s_mov_b64 exec, -1
        """)
    A("s_branch K_EXIT")
    for q in range(0, XL if XAD else 0, 4):
        A.label(f"P2_XD{q}")
        for j in range(4): A("buffer_load_dword v7, off, s[24:27], s5")
        A(f"s_branch P2_XR{q}")
    if EF:
        for c in range(len(CH)):
            A.label(f"P2_R{c}")
            A(f"""
            s_cmp_eq_u32 s7, 0
            s_cbranch_scc1 P2_K{c}
            s_sub_u32 s7, s7, 1
            """)
            nsleep(A, opt.get("rsl", 0))
            issue(c)
            A(f"""
            s_waitcnt vmcnt(0)
            s_branch P2_V{c}
            """)

    vACC = 8
    vF = 56
    NF = 8
    vO = 88
    A.pad("P2_WSb_X", opt.get("ap", 96))
    if opt.get("rr"):
        A.label("P2_MMR")
        rr_ask(A, 6)
        A("s_waitcnt lgkmcnt(0)\nv_readfirstlane_b32 s63, v6\ns_branch P2_MM")
    A.label("P2_MMX")
    if opt.get("rr"):
        rr_ask(A, 6)
        A("s_waitcnt lgkmcnt(0)\nv_readfirstlane_b32 s63, v6")
    NW = opt.get("nw", 0)
    if NW:
        assert MAP["xf"]
        p2_tile(A)
        A("s_buffer_load_dword s62, s[24:27], s44 glc")
    if NW != 2: A("s_barrier")
    if opt.get("cp2"):
        A("s_getpc_b64 s[4:5]")
        A.label("P2_PC")
        L0 = "P2_PUB" if opt["cp2"] == 1 else "W2L_LOOP"
        A(f"""
        s_sub_u32 s4, s4, P2_PC-{L0}
        s_subb_u32 s5, s5, 0
        v_and_b32 v3, {63 if opt["cp2"] == 1 else 255 if opt.get("xu") else 127}, v0
        v_lshlrev_b32 v3, 7, v3
        v_min_u32 v3, CODE_END-{L0}-4, v3
        global_load_dword v250, v3, s[4:5]
        """)
    if NW == 2: A("s_barrier")
    A.label("P2_MMI")
    A.label("P2_MM")
    if not opt.get("sh"): stamp(A, opt, 2)
    XB = opt.get("xb", 0)
    XF = MAP["xf"]
    if opt.get("nb") == 2 and not XF:
        A(f"""
        v_mov_b32 v95, {LFLAG}
        ds_read_b32 v94, v95
        """)
    p2_tile(A)
    if OLD: p2_rot(A, opt)
    A(f"""
    s_lshl_b32 s4, s38, 2
    s_add_u32 s4, s4, s36
    s_sub_u32 s4, s4, 4
    """)
    if OLD:
        A("""
        s_mul_i32 s18, s4, 40960
        s_add_u32 s19, s18, 40960
        s_add_u32 s20, s18, s17
        """)
    else:
        A("s_mul_i32 s20, s4, 40960")
        if opt.get("rr"): A("s_add_u32 s20, s20, s63")
    A(f"""
    s_mul_i32 s4, s4, {32*3072}
    s_mul_i32 s5, s39, 192
    s_add_u32 s23, s4, s5
    s_add_u32 s22, s23, {16*3072}
    """)
    if M16:
        A("""
        v_and_b32 v6, 15, v1
        v_and_b32 v7, 48, v1
        v_lshlrev_b32 v3, 4, v6
        v_lshl_add_u32 v3, v7, 5, v3
        """)
    else:
        A("""
        v_bfe_u32 v2, v1, 2, 1
        v_bfe_u32 v4, v1, 3, 2
        v_and_b32 v3, 0x23, v1
        v_lshl_add_u32 v3, v2, 4, v3
        v_lshl_add_u32 v3, v4, 2, v3
        v_lshlrev_b32 v3, 4, v3
        v_and_b32 v6, 15, v1
        v_and_b32 v7, 48, v1
        """)
    A("""
    v_mul_u32_u24 v6, 0xc00, v6
    v_add_u32 v6, v6, v7
    v_add_u32 v4, 61440, v3
    """)
    if XL:
        A(f"""
        s_mul_i32 s4, s36, {XW}
        s_add_u32 s4, s4, {XB0 - 4 * XW}
        v_add_u32 v5, s4, v3
        """)
    if not NW: A("s_waitcnt vmcnt(0)")
    A(f"""
    v_min_u32 v2, 19, v1
    v_lshlrev_b32 v2, {7 if MAP["lf"] else 2}, v2
    v_mov_b32 v8, {LFLAG}
    """)
    if XF:
        spoll(A, "P2_XF", "s44", 20, opt.get("xsl", 0), first=False, sd="s62")
        A("s_branch P2_XW_E")
    elif opt.get("nb") == 2:
        A("""
        s_waitcnt lgkmcnt(0)
        v_readfirstlane_b32 s4, v94
        s_cmp_lg_u32 s4, 0
        s_cbranch_scc1 P2_XW_E
        """)
    A("""
    s_cmp_lg_u32 s36, 7
    s_cbranch_scc1 P2_XW
    """)

    def wait_stores(tag, word=12):
        A(f"""
        s_cmp_ge_u32 s3, 21
        s_cbranch_scc1 P2_WS{tag}_X
        """)
        A.label(f"P2_WS{tag}")
        if word == 8 and opt.get("xvs"): A(f"s_sleep {opt['xvs']}")
        A(f"""
        ds_read_b32 v7, v8 offset:{word}
        s_waitcnt lgkmcnt(0)
        v_readfirstlane_b32 s4, v7
        s_cmp_lt_u32 s4, 4
        s_cbranch_scc1 P2_WS{tag}
        """)
        A.label(f"P2_WS{tag}_X")
    if MAP["ac"]:
        spoll(A, "P2_X", "s44", 20, opt.get("xsl", 0))
    elif opt.get("px"):
        ppoll(A, "P2_X", "s[24:27]", "s44", "v2", 88, opt["px"], 0, opt.get("xsl", 4))
    else:
        poll(A, "P2_X", "s[24:27]", "s44", "v2", "v7", 0, sleep=opt.get("xsl", 16))
    if opt.get("xap"):
        A("""
        s_cmp_ge_u32 s3, 31
        s_cbranch_scc1 P2_XA_X
        """)
        A.label("P2_XA")
        A("""
        ds_read_b32 v7, v8 offset:8
        s_waitcnt lgkmcnt(0)
        v_readfirstlane_b32 s4, v7
        s_cmp_lt_u32 s4, 4
        s_cbranch_scc1 P2_XA
        """)
        A.label("P2_XA_X")
    A("""
    v_mov_b32 v7, 1
    ds_write_b32 v8, v7
    s_branch P2_XW_X
    """)
    A.label("P2_XW_S")
    A("s_sleep 2")
    A.label("P2_XW")
    A("""
    ds_read_b32 v7, v8
    s_waitcnt lgkmcnt(0)
    """)
    poll_check(A, "v7", 0, "P2_XW_S")
    A.label("P2_XW_X")
    if opt.get("xw"): wait_stores("a")
    A.label("P2_XW_E")
    if opt.get("xpr"): A(f"s_setprio {opt['xpr']}")
    stamp(A, opt, 1)
    XS = opt.get("xs", 40 - XL)
    XE = opt.get("xe", 2)
    xi = [XS]
    for kb in range(XS):
        if XB and kb == XB % 100: wait_stores("b")
        if opt.get("xv") and kb == opt["xv"] % 100:
            assert opt.get("px") and MAP["xf"] and XB
            wait_stores("v", 8)
        if XAD and kb == XS - XAD: A("ds_read_b32 v7, v8 offset:4")
        xload(A, opt, kb)
    if XAD:
        assert XS % 4 == 0 and 1 <= XAD <= 3
        A(f"""
        v_lshlrev_b32 v2, 4, v1
        s_mov_b32 s21, 0
        s_mul_i32 s4, s36, {XW}
        s_add_u32 m0, s4, {XB0 - 4 * XW}
        """)
        A.label("P2_XM")
        A("""
        s_waitcnt lgkmcnt(0)
        v_readfirstlane_b32 s4, v7
        s_cmp_lg_u32 s4, 0
        s_cbranch_scc1 P2_XM_X
        """)
        for j in range(4):
            if j == 4 - XAD: A("ds_read_b32 v7, v8 offset:4")
            A(f"buffer_load_dwordx4 v2, s[24:27], s20 offen offset:{1024*j} sc1 lds")
        A(f"""
        s_add_u32 m0, m0, 4096
        s_add_u32 s20, s20, 4096
        s_add_u32 s21, s21, 1
        s_cmp_lt_u32 s21, {XL // 4}
        s_cbranch_scc1 P2_XM
        """)
        A.label("P2_XM_X")
        A(f"""
        s_lshl2_add_u32 s4, s36, {LFLAG}
        v_mov_b32 v2, s4
        v_mov_b32 v9, s21
        ds_write_b32 v2, v9
        s_waitcnt lgkmcnt(0)
        """)
    stamp(A, opt, 5, True)
    if opt.get("mpr"): A(f"s_setprio {opt['mpr']}")

    def epi(t, o=vO):
        a = vACC + 16 * t
        if M16:
            return [[f"v_cvt_pk_bf16_f32 v{o+j}, v{a+2*j}, v{a+2*j+1}" for j in range(2)],
                    [f"v_cvt_pk_bf16_f32 v{o+j}, v{a+2*j}, v{a+2*j+1}" for j in range(2, 4)],
                    [f"buffer_store_dwordx4 {vr(o,4)}, v6, s[96:99], s23 offen offset:{64*t}{ysfx(t)}"],
                    [f"v_cvt_pk_bf16_f32 v{o+j}, v{a+2*j}, v{a+2*j+1}" for j in range(4, 6)],
                    [f"v_cvt_pk_bf16_f32 v{o+j}, v{a+2*j}, v{a+2*j+1}" for j in range(6, 8)],
                    [f"buffer_store_dwordx4 {vr(o+4,4)}, v6, s[96:99], s22 offen offset:{64*t}{ysfx(t)}"]]
        return [[f"v_cvt_pk_bf16_f32 v{o+j}, v{a+2*j}, v{a+2*j+1}" for j in range(4)],
                [f"v_cvt_pk_bf16_f32 v{o+j}, v{a+2*j}, v{a+2*j+1}" for j in range(4, 8)],
                ["s_nop 1"] + [f"v_permlane16_swap_b32 v{o+j}, v{o+4+j}" for j in range(4)],
                [f"buffer_store_dwordx4 {vr(o,4)}, v6, s[96:99], s23 offen offset:{64*t}{ysfx(t)}",
                 f"buffer_store_dwordx4 {vr(o+4,4)}, v6, s[96:99], s22 offen offset:{64*t}{ysfx(t)}"]]

    def ysfx(t):
        m = opt.get("ya" if t < 2 else "yb", 0)
        return ("", " sc1", " nt", " sc0 sc1", " sc1 nt")[m]

    RA = opt.get("ra", 6)
    assert RA < NF
    seen = [0]

    def read(i):
        n, kb = order[i]
        g = groups.index((n, kb // 4))
        while st[seen[0]] <= g:
            A("s_barrier")
            seen[0] += 1
        off = (n * 40 + kb) * 1024
        if M16: off = place[(n, kb // 4)] + (kb & 2) * 1024 + 256 * (kb & 1)
        base, o = ("v3", off) if off < 61440 else ("v4", off - 61440)
        A(f"ds_read_b128 {vr(vF+4*(i%NF),4)}, {base} offset:{o}")
        lq.append(i)

    lq = []

    def xread(kb):
        j = kb - XS
        g = groups.index(("x", j | 1))
        while st[seen[0]] <= g:
            A("s_barrier")
            seen[0] += 1
        if XAD and j == 0: A("s_waitcnt vmcnt(0)")
        A(f"ds_read_b128 {vr(VX+4*kb,4)}, v5 offset:{2048 * (j >> 1) + 256 * (j & 1)}")
        lq.append(("x", kb))

    XA = opt.get("xa", RA)

    for i in range(RA): read(i)
    pending = []
    done = set()
    last = {n: max(i for i, x in enumerate(order) if x[0] == n) for n in range(3)}
    for i, (n, kb) in enumerate(order):
        if M16:
            need = [i] + ([("x", kb), ("x", kb + 1)] if XL and n == 0 and kb & 1 == 0 and kb >= XS else [])
            lg = f"lgkmcnt({len(lq) - 1 - max(lq.index(x) for x in need)})"
            assert XL or lg == f"lgkmcnt({min(120, i + RA) - i - 1})"
            if n == 0 and kb & 1 == 0 and not (XL and kb >= XS):
                assert xi[0] > kb + 1
                lg = f"vmcnt({xi[0] - kb - 2}) " + lg
            A(f"s_waitcnt {lg}")
            for rb in range(2):
                acc = vACC + 16 * n + 8 * rb + 4 * (kb & 1)
                c = "0" if kb < 2 else vr(acc, 4)
                A(f"v_mfma_f32_16x16x32_bf16 {vr(acc,4)}, {vr(vF+4*(i%NF),4)}, {vr(VX+4*((kb & ~1) + rb),4)}, {c}")
                if rb == 0 and M16 == 2 and i + RA < 120 and not (i == 0 and opt.get("stamp")): read(i + RA)
                if rb == 1 and XL and 2 * XS <= i + XA < 80 and (i + XA) & 3 < 2: xread(((i + XA) >> 2 << 1) + ((i + XA) & 1))
        else:
            if n == 0:
                assert xi[0] > kb
                A(f"s_waitcnt vmcnt({xi[0] - kb - 1})")
            A(f"s_waitcnt lgkmcnt({min(120, i + RA) - i - 1})")
            acc = vACC + 16 * n
            c = "0" if kb == 0 else vr(acc, 16)
            A(f"v_mfma_f32_32x32x16_bf16 {vr(acc,16)}, {vr(vF+4*(i%NF),4)}, {vr(VX+4*kb,4)}, {c}")
        if i == 0 and opt.get("stamp"):
            stamp(A, opt, 3)
            A("s_memtime s[80:81]\ns_nop 7\ns_nop 7\ns_waitcnt lgkmcnt(0)")
        if i == 0 and opt.get("probe") == 3:
            stamp(A, opt, 3)
            A("s_nop 7\ns_nop 7\ns_waitcnt lgkmcnt(0)")
        if i + RA < 120 and (M16 != 2 or (i == 0 and opt.get("stamp"))): read(i + RA)
        if i % XE == 0 and xi[0] < 40 - XL:
            xload(A, opt, xi[0]); xi[0] += 1
        for t in range(3):
            if i == last[t] + 3:
                pending += epi(t) + [[], [], [], []]
                done.add(t)
        if pending:
            for x in pending.pop(0): A(x)
    assert seen[0] == len(CH)
    A("s_nop 7" if M16 else "s_nop 15")
    stamp(A, opt, 6)
    if opt.get("stamp"):
        A("s_memtime s[82:83]\ns_waitcnt lgkmcnt(0)\ns_sub_u32 s72, s82, s80")
        if opt.get("sh"): A("s_and_b32 s90, s90, 127\ns_lshl_b32 s90, s90, 24\ns_or_b32 s72, s72, s90")
    k = 0
    for t in range(3):
        if t in done: continue
        for x in sum(epi(t, vF + 8 * k), []): A(x)
        k += 1


def gen_p2d(A, opt):
    assert MAP["lf"] and not MAP["ef"]
    PS = 9216
    A.label("P2_PUB")
    A("s_mov_b32 s60, 1")
    A.label("P2_LD")
    p2_tile(A)
    A(f"""
    v_lshrrev_b32 v2, 4, v1
    v_min_u32 v2, 2, v2
    v_and_b32 v3, 15, v1
    v_min_u32 v3, 13, v3
    v_mad_u32_u24 v2, v2, 14, v3
    v_lshlrev_b32 v2, 7, v2
    s_lshl_b32 s46, 0x1111, s36
    s_and_b32 s46, s46, 0x3fff
    s_mul_i32 s22, s39, 122880
    s_add_u32 s22, s22, {W2F}
    s_mov_b32 s47, 0
    s_mov_b32 s7, {POLL_MAX}
    v_mov_b32 v4, {LFLAG}
    v_mov_b32 v6, 0
    v_mov_b32 v7, 1
    """)
    A.label("P2_POLL")
    A(f"""
    s_lshl_b32 s48, s46, 16
    s_or_b32 s48, s48, s46
    s_mov_b32 s49, s46
    s_mov_b64 exec, s[48:49]
    buffer_load_dword v3, v2, s[24:27], s45 offen sc1
    s_mov_b64 exec, 1
    v_mov_b32 v8, s47
    s_cmp_eq_u32 s60, 0
    s_waitcnt vmcnt(1)
    s_cbranch_scc1 P2_NP
    buffer_store_dword v7, v6, s[24:27], s51 offen sc1
    """)
    stamp(A, opt, 4)
    A("""
    s_mov_b32 s60, 0
    s_waitcnt vmcnt(1)
    s_branch P2_PR
    """)
    A.label("P2_NP")
    A("""
    ds_or_b32 v4, v8 offset:4
    s_mov_b32 s47, 0
    s_waitcnt vmcnt(0)
    """)
    A.label("P2_PR")
    A(f"""
    s_mov_b64 exec, s[48:49]
    v_cmp_ne_u32 vcc, 0, v3
    s_mov_b64 exec, -1
    s_lshr_b32 s4, vcc_lo, 16
    s_and_b32 s4, s4, vcc_lo
    s_and_b32 s4, s4, vcc_hi
    s_cbranch_scc1 P2_ISS
    s_sub_u32 s7, s7, 1
    s_cselect_b32 s4, s46, 0
    s_cbranch_scc1 P2_ISS
    s_sleep {opt.get("wsl", 8)}
    s_branch P2_POLL
    """)
    A.label("P2_ISS")
    if opt.get("stamp"):
        A("""
        s_waitcnt lgkmcnt(0)
        s_cmp_lg_u32 s74, 0
        s_cbranch_scc1 P2_IS0
        """)
        stamp(A, opt, 5)
        A.label("P2_IS0")
    A("s_andn2_b32 s46, s46, s4")
    A.label("P2_IS1")
    A(f"""
    s_ff1_i32_b32 s5, s4
    s_mul_i32 m0, s5, {PS}
    s_mul_i32 s6, s5, 3072
    s_add_u32 s6, s6, s22
    s_bitset0_b32 s4, s5
    """)
    for n in range(3):
        for j in range(3):
            A(f"buffer_load_dwordx4 v5, s[24:27], s6 offen offset:{1024*j} sc1 lds")
        if n < 2:
            A("""
            s_add_u32 m0, m0, 3072
            s_add_u32 s6, s6, 40960
            """)
    A(f"""
    s_cmp_eq_u32 s47, 0
    s_cbranch_scc1 P2_IS2
    v_mov_b32 v8, s47
    s_mov_b64 exec, 1
    s_waitcnt vmcnt(9)
    ds_or_b32 v4, v8 offset:4
    s_mov_b64 exec, -1
    """)
    A.label("P2_IS2")
    A(f"""
    s_lshl_b32 s47, 1, s5
    s_cmp_lg_u32 s4, 0
    s_cbranch_scc1 P2_IS1
    s_cmp_lg_u32 s46, 0
    s_cbranch_scc1 P2_POLL
    v_mov_b32 v8, s47
    s_mov_b64 exec, 1
    s_waitcnt vmcnt(0)
    ds_or_b32 v4, v8 offset:4
    s_mov_b64 exec, -1
    s_waitcnt lgkmcnt(0)
    """)
    stamp(A, opt, 6)
    A("s_branch K_EXIT")

    vACC = 8
    vF = 56
    vM, vA = 92, 93
    A.label("P2_MMX")
    A("s_barrier")
    A.label("P2_MMI")
    A("s_waitcnt vmcnt(0)")
    A.label("P2_MM")
    stamp(A, opt, 2)
    A(f"""
    v_mov_b32 v7, {LFLAG}
    ds_read_b32 v{vM}, v7
    """)
    p2_tile(A)
    A(f"""
    s_lshl_b32 s4, s38, 2
    s_add_u32 s4, s4, s36
    s_sub_u32 s4, s4, 4
    s_mul_i32 s20, s4, 40960
    s_mul_i32 s4, s4, {32*3072}
    s_mul_i32 s5, s39, 192
    s_add_u32 s23, s4, s5
    s_add_u32 s22, s23, {16*3072}
    s_add_u32 s21, s20, {39*1024}
    v_bfe_u32 v2, v1, 2, 1
    v_bfe_u32 v4, v1, 3, 2
    v_and_b32 v3, 0x23, v1
    v_lshl_add_u32 v3, v2, 4, v3
    v_lshl_add_u32 v3, v4, 2, v3
    v_lshlrev_b32 v3, 4, v3
    v_and_b32 v6, 15, v1
    v_and_b32 v4, 48, v1
    v_mul_u32_u24 v6, 0xc00, v6
    v_add_u32 v6, v6, v4
    v_min_u32 v2, 19, v1
    v_lshlrev_b32 v2, 7, v2
    s_waitcnt lgkmcnt(0)
    v_readfirstlane_b32 s4, v{vM}
    s_cmp_lg_u32 s4, 0
    s_cbranch_scc1 P2_XW_X
    s_cmp_lg_u32 s36, 7
    s_cbranch_scc1 P2_XW
    """)
    poll(A, "P2_X", "s[24:27]", "s44", "v2", f"v{vM}", 0, sleep=opt.get("xsl", 16))
    A(f"""
    v_mov_b32 v{vM}, 1
    ds_write_b32 v7, v{vM}
    s_branch P2_XW_X
    """)
    A.label("P2_XW")
    A(f"""
    s_sleep 2
    ds_read_b32 v{vM}, v7
    s_waitcnt lgkmcnt(0)
    """)
    poll_check(A, f"v{vM}", 0, "P2_XW")
    A.label("P2_XW_X")
    stamp(A, opt, 1)
    NU = opt.get("nu", 7)
    LAG = opt.get("lag", 3)
    P0 = opt.get("p0", 6)
    XPB = opt.get("xpb", 1)

    def xpiece(p):
        r = [[f"buffer_load_dwordx4 {vr(VX+12*p+4*j,4)}, v5, s[24:27], s20 offen offset:{1024*j} sc1"] for j in range(3)]
        if p < 12: r[2].append("s_add_u32 s20, s20, 3072")
        return r
    A(f"buffer_load_dwordx4 {vr(VX+156,4)}, v5, s[24:27], s21 offen sc1")
    for p_ in range(NU):
        for x in sum(xpiece(p_), []): A(x)
    stamp(A, opt, 5, True)
    issued = lambda t: min(13, NU + XPB * max(0, t))
    Pt = [min(12, max(t, min(P0 + 2 * t, issued(t - LAG) - 1))) for t in range(13)]
    assert all(Pt[t] < issued(t) for t in range(13))
    A(f"""
    s_getpc_b64 s[52:53]
    """)
    A.label("P2_PC")
    A(f"""
    s_add_u32 s48, s52, P2_B0-P2_PC
    s_addc_u32 s49, s53, 0
    s_movk_i32 s50, {(2 << Pt[0]) - 1}
    s_mov_b32 s46, 0
    v_add_u32 v{vA}, {13*PS}, v3
    s_branch P2_F1
    """)
    A.label("P2_F0")
    A("s_sleep 1")
    A.label("P2_F1")
    A(f"""
    ds_read_b32 v{vM}, v7 offset:4
    s_waitcnt lgkmcnt(0)
    v_readfirstlane_b32 s4, v{vM}
    s_bitcmp1_b32 s4, 13
    s_cbranch_scc0 P2_F0
    """)
    for n in range(3): A(f"ds_read_b128 {vr(vF+4*(6+n),4)}, v{vA} offset:{3072*n}")
    A(f"s_waitcnt vmcnt({3*NU})")
    for n in range(3):
        A(f"""
        s_waitcnt lgkmcnt({2-n})
        v_mfma_f32_32x32x16_bf16 {vr(vACC+16*n,16)}, {vr(vF+4*(6+n),4)}, {vr(VX+156,4)}, 0
        """)
    A("""
    s_set_gpr_idx_on s46, gpr_idx(SRC1)
    s_branch P2_COLD
    """)

    def mfma(i):
        acc = vACC + 16 * (i // 3)
        A(f"v_mfma_f32_32x32x16_bf16 {vr(acc,16)}, {vr(vF+4*i,4)}, {vr(VX+4*(i%3),4)}, {vr(acc,16)}")

    def read(i):
        A(f"ds_read_b128 {vr(vF+4*i,4)}, v{vA} offset:{1024*i}")

    A.label("P2_DRAIN")
    if opt.get("stamp"): A("s_add_u32 s90, s90, 1")
    for i in range(4, 9):
        if i > 4: A(f"s_waitcnt lgkmcnt({8-i})")
        mfma(i)
    A("s_branch P2_COLD")
    A.label("P2_COLD_S")
    A("s_sleep 1")
    A.label("P2_COLD")
    A(f"""
    ds_read_b32 v{vM}, v7 offset:4
    s_waitcnt lgkmcnt(0)
    v_readfirstlane_b32 s4, v{vM}
    s_andn2_b32 s4, s4, s46
    s_and_b32 s4, s4, s50
    s_cbranch_scc0 P2_COLD_S
    s_ff1_i32_b32 s5, s4
    s_mul_i32 s6, s5, {PS}
    v_add_u32_e64 v{vA}, v3, s6
    s_bitset1_b32 s46, s5
    s_mul_i32 s47, s5, 12
    """)
    for i in range(5): read(i)
    A(f"""
    ds_read_b32 v{vM}, v7 offset:4
    s_set_gpr_idx_idx s47
    s_setpc_b64 s[48:49]
    """)
    for t in range(13):
        A.label(f"P2_B{t}")
        if t == 0 and opt.get("stamp"):
            stamp(A, opt, 3)
            A("s_memtime s[80:81]\ns_waitcnt lgkmcnt(0)")
        xl = sum((xpiece(p_) for p_ in range(issued(t), issued(t + 1))), [])
        xl = [sum(xl[i::3], []) for i in range(3)] if XPB == 1 else [sum(xl[i*XPB:(i+1)*XPB], []) for i in range(3)]
        W = 3 * (issued(t) - Pt[t] - 1)
        last = t == 12
        for i in range(9):
            c = (5, 5, 5, 3, None, 4, 4, 4, 4)[i]
            if last and i > 4: c = 8 - i
            if i == 0: A(f"s_waitcnt vmcnt({W}) lgkmcnt({c})")
            elif c is not None: A(f"s_waitcnt lgkmcnt({c})")
            mfma(i)
            if i < 4: read(5 + i)
            if i < 3:
                for x in xl[i]: A(x)
            if last: continue
            if i == 1:
                A(f"""
                s_add_u32 s48, s52, P2_B{t+1}-P2_PC
                s_addc_u32 s49, s53, 0
                """)
            if i == 2 and Pt[t + 1] != Pt[t]: A(f"s_movk_i32 s50, {(2 << Pt[t+1]) - 1}")
            if i == 3:
                A(f"""
                v_readfirstlane_b32 s4, v{vM}
                s_andn2_b32 s4, s4, s46
                s_and_b32 s4, s4, s50
                s_cbranch_scc0 P2_DRAIN
                s_ff1_i32_b32 s5, s4
                """)
            if i == 4:
                A(f"""
                s_mul_i32 s6, s5, {PS}
                v_add_u32_e64 v{vA}, v3, s6
                """)
            if i >= 4: read(i - 4)
            if i == 5:
                A(f"""
                s_bitset1_b32 s46, s5
                s_mul_i32 s47, s5, 12
                """)
            if i == 8:
                A(f"""
                ds_read_b32 v{vM}, v7 offset:4
                s_set_gpr_idx_idx s47
                """)
    A("s_set_gpr_idx_off")

    def epi(t, o):
        a = vACC + 16 * t
        return ([f"v_cvt_pk_bf16_f32 v{o+j}, v{a+2*j}, v{a+2*j+1}" for j in range(8)] +
                ["s_nop 1"] + [f"v_permlane16_swap_b32 v{o+j}, v{o+4+j}" for j in range(4)] +
                [f"buffer_store_dwordx4 {vr(o,4)}, v6, s[96:99], s23 offen offset:{64*t}",
                 f"buffer_store_dwordx4 {vr(o+4,4)}, v6, s[96:99], s22 offen offset:{64*t}"])
    A("s_nop 0")
    for t in range(3):
        if t == 2:
            stamp(A, opt, 6)
            if opt.get("stamp"):
                A("s_memtime s[82:83]\ns_waitcnt lgkmcnt(0)\ns_sub_u32 s72, s82, s80")
                A("s_and_b32 s90, s90, 127\ns_lshl_b32 s90, s90, 24\ns_or_b32 s72, s72, s90")
        for x in epi(t, vF + 8 * t): A(x)


def descriptor(name, vgpr, accum, sgpr):
    return f""".amdhsa_kernel {name}
  .amdhsa_next_free_vgpr {vgpr}
  .amdhsa_next_free_sgpr {sgpr}
  .amdhsa_accum_offset {accum}
  .amdhsa_group_segment_fixed_size 0
  .amdhsa_kernarg_size 72
  .amdhsa_user_sgpr_count 2
  .amdhsa_user_sgpr_kernarg_segment_ptr 1
  .amdhsa_system_sgpr_workgroup_id_x 1
  .amdhsa_float_denorm_mode_32 3
.end_amdhsa_kernel
"""


def generate(opt):
    out = HEADER
    MAP["m"] = opt.get("map", 2)
    MAP["lf"] = opt.get("lf", 0)
    MAP["ef"] = opt.get("ef", 0)
    MAP["ac"] = opt.get("ac", 0)
    MAP["xf"] = opt.get("xf", 0)
    assert MAP["lf"] or not MAP["ef"]
    global LFLAG, WS_USED
    if opt.get("px"):
        LFLAG = PA + 6 * ASTAGE
        WS_USED = PXB + 168 * 24576
        if opt.get("rr"):
            assert WS_USED <= 12 << 20 and opt["rr"] <= 4 and opt.get("ts") and opt.get("xf") and opt.get("xgc", 10) <= 9
            WS_USED += (36 + 12 * ((1 << opt["rr"]) - 1)) << 20
            assert WS_USED <= 256 << 20
    out += f"; @launch grid=(256,1,1) block=(512,1,1) lds={LFLAG + 1024}\n"
    out += '.amdgcn_target "amdgcn-amd-amdhsa--gfx950"\n.text\n'
    A = Asm()
    PADS["on"] = opt.get("al", 0)
    out += f".globl {KNAME}\n.p2align {12 if PADS['on'] else 8}\n.type {KNAME},@function\n"
    gen_kernel(A, opt)
    out += A.text()
    out += "CODE_END:\n"
    out += '.section .rodata,"a"\n.p2align 6\n'
    out += descriptor(KNAME, 256, 256, 100)
    if PADS["on"]:
        import subprocess, re
        open("pad.s", "w").write(out)
        subprocess.run(["clang", "-x", "assembler", "-target", "amdgcn-amd-amdhsa", "-mcpu=gfx950", "-c", "pad.s", "-o", "pad.o"], check=True)
        sym = {}
        for l in subprocess.run(["llvm-objdump", "-t", "pad.o"], capture_output=True, text=True).stdout.split("\n"):
            p = l.split()
            if len(p) >= 5 and ".text" in l: sym[p[-1]] = int(p[0], 16)
        acc = 0
        for i, (lab, off) in enumerate(PADS["l"]):
            assert sym[lab] >= sym[f"PAD{i}"] and (i + 1 == len(PADS["l"]) or sym[lab] <= sym[f"PAD{i+1}"])
            n = -(sym[lab] + off + acc) % 4096
            acc += n
            out = out.replace(f"PAD{i}:\n;PADFILL {i}\n", f"    .fill {n // 4}, 4, 0xbf810000\n" if n else "")
    return out


if __name__ == "__main__":
    path = sys.argv[1] if len(sys.argv) > 1 else "standalone__weight_only_int_quip__prompt.s"
    opt = {}
    for a in sys.argv[2:]:
        k, _, v = a.partition("=")
        opt[k] = int(v) if v else 1
    open(path, "w").write(generate(opt))
    print("wrote", path)
```
